```python
import torch

def _softmax(x, axis=-1):
    return torch.softmax(x, dim=axis)
def _gelu(x):
    return torch.nn.functional.gelu(x, approximate="tanh")
def _silu(x):
    return torch.nn.functional.silu(x)
def _sigmoid(x):
    return torch.sigmoid(x)
def _layernorm(x, axis=-1, eps=1e-5):
    m = x.mean(dim=axis, keepdim=True)
    v = x.var(dim=axis, keepdim=True, unbiased=False)
    return (x - m) / torch.sqrt(v + eps)
def _scatter_add(tgt, idx, src, axis=0):
    return tgt.clone().index_add_(axis, idx, src)
def _segment_sum(src, seg, n):
    out = torch.zeros((n,) + src.shape[1:], dtype=src.dtype)
    return out.index_add_(0, seg, src)
def _pad(x, pw):
    flat = tuple(v for pair in reversed(pw) for v in pair)
    return torch.nn.functional.pad(x, flat)

kernel_name = 'gated_mix__grouped_kv_mqa__geglu_ffn__prompt'

def setup_inputs():

    _w = (lambda a: (lambda t: t.to(torch.bfloat16) if t.is_floating_point() else t)(torch.as_tensor(a)))
    def _A_setup():
        B, S, D, H = 1, 2048, 512, 32
        Dh = D // H
        return {
            "x": _w((lambda *s: torch.randn(*s, dtype=torch.bfloat16) * 0.05)(B, S, D)),
            "wq": _w((lambda *s: torch.randn(*s, dtype=torch.bfloat16) * 0.8)(D, H * Dh)),
            "wk": _w((lambda *s: torch.randn(*s, dtype=torch.bfloat16) * 0.8)(D, Dh)),
            "wv": _w((lambda *s: torch.randn(*s, dtype=torch.bfloat16) * 0.05)(D, Dh)),
            "wo": _w((lambda *s: torch.randn(*s, dtype=torch.bfloat16) * 0.05)(H * Dh, D)),
        }
    _A_in = _A_setup()

    def _B_setup():
        B, S, D, F = 1, 2048, 512, 1792
        return {
            "x": _w((lambda *s: torch.randn(*s, dtype=torch.bfloat16) * 0.05)(B, S, D)),
            "w_gate": _w((lambda *s: torch.randn(*s, dtype=torch.bfloat16) * 0.05)(D, F)),
            "w_up": _w((lambda *s: torch.randn(*s, dtype=torch.bfloat16) * 0.05)(D, F)),
            "w_down": _w((lambda *s: torch.randn(*s, dtype=torch.bfloat16) * 0.05)(F, D)),
        }
    _B_in = _B_setup()

    return {
        "A_x": _A_in["x"],
        "A_wq": _A_in["wq"],
        "A_wk": _A_in["wk"],
        "A_wv": _A_in["wv"],
        "A_wo": _A_in["wo"],
        "B_x": _B_in["x"],
        "B_w_gate": _B_in["w_gate"],
        "B_w_up": _B_in["w_up"],
        "B_w_down": _B_in["w_down"],
        "gate_w": _w((lambda *s: torch.randn(*s, dtype=torch.bfloat16) * 0.05)(512) * 16.0),
    }

def reference(A_x, A_wq, A_wk, A_wv, A_wo, B_x, B_w_gate, B_w_up, B_w_down, gate_w):
    def _A_ref(x, wq, wk, wv, wo):
        B, S, D = x.shape
        H = 32
        Dh = D // H
        q = (lambda x, *d: x.permute(*d))((x @ wq).reshape(B, S, H, Dh), 0, 2, 1, 3)
        k = x @ wk
        v = x @ wv
        scores = torch.einsum("bhqd,bkd->bhqk", q, k) * (Dh ** -0.5)
        p = _softmax(scores, axis=-1)
        o = torch.einsum("bhqk,bkd->bhqd", p, v)
        return (lambda x, *d: x.permute(*d))(o, 0, 2, 1, 3).reshape(B, S, H * Dh) @ wo

    def _B_ref(x, w_gate, w_up, w_down):
        return (_gelu(x @ w_gate) * (x @ w_up)) @ w_down

    x = A_x
    g = _sigmoid((x * gate_w).sum(-1, keepdims=True))
    a = _A_ref(x, A_wq, A_wk, A_wv, A_wo)
    b = _B_ref(x, B_w_gate, B_w_up, B_w_down)
    return g * a + (1 - g) * b
```

```python
import re

REG = re.compile(r'^-?\|?(?:abs\()?([vsa])(?:(\d+)|\[(\d+):(\d+)\])\)?\|?$')
TRANS = ('v_exp_f32', 'v_log_f32', 'v_rcp_f32', 'v_rsq_f32', 'v_sqrt_f32')
NODST_S = ('s_cmp', 's_branch', 's_cbranch', 's_waitcnt', 's_barrier', 's_nop', 's_setprio', 's_sleep', 's_endpgm', 's_bitcmp')


def regs_of(op):
    op = op.strip()
    if op in ('vcc', 'exec', 'm0'):
        return {(op, 0)}
    if op in ('vcc_lo', 'vcc_hi'):
        return {('vcc', 0)}
    if op in ('exec_lo', 'exec_hi'):
        return {('exec', 0)}
    m = REG.match(op)
    if not m:
        return set()
    k = m.group(1)
    if m.group(2) is not None:
        return {(k, int(m.group(2)))}
    return {(k, i) for i in range(int(m.group(3)), int(m.group(4)) + 1)}


class Ins:
    def __init__(self, text):
        self.text = text
        self.dst = set(); self.src = set(); self.cls = 'other'
        self.A = self.B = self.C = set(); self.passes = 0; self.data = set(); self.ws = 1
        t = text.split(';')[0].strip()
        if not t or t.startswith('.'):
            self.cls = 'dir'; self.ws = 0; self.op = t; return
        if t.endswith(':'):
            self.cls = 'label'; self.ws = 0; self.op = t[:-1]; return
        parts = t.split(None, 1)
        op = self.op = parts[0]
        rest = parts[1] if len(parts) > 1 else ''
        ops, depth, cur = [], 0, ''
        for ch in rest:
            if ch == '[': depth += 1
            if ch == ']': depth -= 1
            if ch == ',' and depth == 0:
                ops.append(cur.strip()); cur = ''
            else:
                cur += ch
        mods = ''
        if cur.strip():
            last = cur.strip().split(None, 1)
            ops.append(last[0]); mods = last[1] if len(last) > 1 else ''
        self.ops = ops; self.mods = mods
        R = [regs_of(o) for o in ops]
        U = lambda l: set().union(*l) if l else set()
        if op.startswith('v_mfma') or op.startswith('v_smfmac'):
            self.cls = 'mfma'; self.passes = 8 if '32x32' in op else 4
            self.dst = R[0]; self.A = R[1]
            if op.startswith('v_smfmac'):
                self.B = R[2] | R[3]; self.C = R[0]
            else:
                self.B = R[2]; self.C = R[3]
            self.src = self.A | self.B | self.C
        elif op.startswith('v_'):
            self.cls = 'trans' if op.replace('_e32', '').replace('_e64', '') in TRANS else 'valu'
            if op.startswith('v_permlane'):
                self.dst = R[0] | R[1]; self.src = R[0] | R[1]
            elif op.startswith(('v_add_co', 'v_sub_co', 'v_addc_co', 'v_subb_co')):
                self.dst = R[0] | R[1]; self.src = U(R[2:])
            elif op.startswith('v_nop'):
                pass
            else:
                self.dst = R[0]; self.src = U(R[1:])
                if op.startswith(('v_fmac', 'v_writelane')): self.src |= R[0]
        elif op.startswith('buffer_load'):
            if 'lds' in mods.split():
                self.cls = 'dma'; self.src = U(R) | {('m0', 0)}
            else:
                self.cls = 'vld'; self.dst = R[0]; self.src = U(R[1:])
        elif op.startswith(('buffer_store', 'buffer_atomic')):
            self.cls = 'vst'; self.src = U(R); self.data = R[0]
        elif op.startswith('global_load'):
            self.cls = 'vld'; self.dst = R[0]; self.src = U(R[1:])
        elif op.startswith(('global_store', 'global_atomic')):
            self.cls = 'vst'; self.src = U(R); self.data = R[1]
        elif op.startswith('ds_read') or '_rtn_' in op:
            self.cls = 'dsr'; self.dst = R[0]; self.src = U(R[1:])
        elif op.startswith('ds_'):
            self.cls = 'dsw'; self.src = U(R)
            if 'addtid' in op: self.src |= {('m0', 0)}
        elif op.startswith(('s_load', 's_memtime', 's_memrealtime')):
            self.cls = 'smem'; self.dst = R[0]; self.src = U(R[1:])
        elif op.startswith('s_'):
            self.cls = 'salu'
            if op.startswith(NODST_S):
                self.src = U(R)
                if op == 's_nop': self.ws = int(ops[0], 0) + 1; self.cls = 'nop'
                if op.startswith(('s_branch', 's_cbranch')): self.cls = 'branch'; self.target = ops[0]
                if op == 's_endpgm': self.cls = 'end'
            else:
                self.dst = R[0]; self.src = U(R[1:])
                if 'saveexec' in op: self.dst |= {('exec', 0)}
        else:
            raise ValueError("unknown op " + text)


def isv(s): return {r for r in s if r[0] in 'va'}
def iss(s): return {r for r in s if r[0] in ('s', 'vcc')}


def need(p, c):
    n = 0
    pv = p.cls in ('valu', 'trans')
    cv = c.cls in ('valu', 'trans')
    mem = c.cls in ('vld', 'vst', 'dma', 'dsr', 'dsw')
    if pv:
        if c.cls == 'mfma' and isv(p.dst) & c.src: n = max(n, 2)
        if p.cls == 'trans' and (cv or mem) and isv(p.dst) & c.src: n = max(n, 1)
        if iss(p.dst):
            if c.cls in ('vld', 'vst', 'dma') and iss(p.dst) & c.src: n = max(n, 5)
            if cv and iss(p.dst) & c.src: n = max(n, 4 if c.op.startswith(('v_readlane', 'v_writelane')) else 2)
            if c.cls in ('salu', 'smem') and iss(p.dst) & c.src: n = max(n, 1)
        if c.op.startswith(('v_readfirstlane', 'v_readlane')) and isv(p.dst) & c.src: n = max(n, 1)
        if c.op.startswith('v_permlane') and isv(p.dst) & c.src: n = max(n, 2)
        if 'dpp' in c.op or 'row_' in getattr(c, 'mods', ''):
            if isv(p.dst) & c.src: n = max(n, 2)
    if p.cls == 'mfma':
        big = 12 if p.passes == 8 else 8
        if (cv or mem) and p.dst & (c.src | c.dst): n = max(n, big)
        if c.cls == 'mfma':
            if p.dst & (c.A | c.B): n = max(n, big)
            if p.dst & (c.C | c.dst) and not (p.dst == c.C and p.passes == c.passes):
                n = max(n, 10 if p.passes == 8 else 6)
        if cv and p.C & c.dst: n = max(n, 7 if p.passes == 8 else 3)
    if p.cls == 'salu' and ('m0', 0) in p.dst and ('m0', 0) in c.src and c.cls in ('dma', 'dsw'): n = max(n, 1)
    if p.cls == 'vst' and len(p.data) >= 3 and p.data & c.dst: n = max(n, 2 if cv else 1)
    return n


class Asm:
    def __init__(self):
        self.ins = []
        self.vm = 0; self.vm_done = 0
        self.lg = 0; self.lg_done = 0
        self.nnop = 0

    def __call__(self, text):
        tok = None
        for line in text.strip().split('\n'):
            line = line.strip()
            if not line: continue
            i = Ins(line)
            self._pad(i)
            self.ins.append(i)
            if i.cls in ('vld', 'vst', 'dma'):
                self.vm += 1; tok = ('vm', self.vm)
            elif i.cls in ('dsr', 'dsw'):
                self.lg += 1; tok = ('lg', self.lg)
        return tok

    def _pad(self, c):
        if c.ws == 0: return
        dist = 0; worst = 0
        for p in reversed(self.ins):
            if p.cls == 'end' or (p.cls == 'branch' and p.op == 's_branch'): break
            worst = max(worst, need(p, c) - dist)
            dist += p.ws
            if dist >= 13: break
        if worst > 0:
            self.nnop += 1
            self.ins.append(Ins(f"s_nop {worst-1}"))

    def wait(self, *toks):
        v = max([t[1] for t in toks if t and t[0] == 'vm'], default=0)
        l = max([t[1] for t in toks if t and t[0] == 'lg'], default=0)
        s = []
        if v > self.vm_done:
            n = min(self.vm - v, 63); s.append(f"vmcnt({n})"); self.vm_done = self.vm - n
        if l > self.lg_done:
            n = min(self.lg - l, 15); s.append(f"lgkmcnt({n})"); self.lg_done = self.lg - n
        if s: self("s_waitcnt " + " ".join(s))

    def wait_vm0(self):
        self("s_waitcnt vmcnt(0)"); self.vm_done = self.vm
    def wait_lg0(self):
        self("s_waitcnt lgkmcnt(0)"); self.lg_done = self.lg
    def lastvm(self): return ('vm', self.vm)
    def lastlg(self): return ('lg', self.lg)
    def forget(self):
        self.vm += 64; self.lg += 16
        self.vm_done = 0; self.lg_done = 0

    def check_branches(self):
        labels = {i.op: k for k, i in enumerate(self.ins) if i.cls == 'label'}
        bad = []
        for k, b in enumerate(self.ins):
            if b.cls != 'branch' or b.op == 's_cbranch_execz' or b.target.startswith('L_pg'): continue
            t = labels[b.target]
            pre = []; d = 0; j = k
            while j >= 0 and d < 13:
                p = self.ins[j]
                if j != k and (p.cls == 'end' or (p.cls == 'branch' and p.op == 's_branch')): break
                pre.append((p, d)); d += p.ws; j -= 1
            d2 = 0; j = t
            while j < len(self.ins) and d2 < 13:
                c = self.ins[j]
                if c.ws:
                    for p, dp in pre:
                        if need(p, c) > dp + d2: bad.append((b.text, p.text, c.text))
                if c.cls == 'end' or (c.cls == 'branch' and c.op == 's_branch'): break
                d2 += c.ws; j += 1
        return bad

    def text(self):
        out = []
        for i in self.ins:
            out.append(i.text if i.cls in ('label', 'dir') else "    " + i.text)
        return "\n".join(out)
```

```python
import sys, math, struct
sys.path.insert(0, 'gen')
from asmlib import Asm

NAME = 'gated_mix__grouped_kv_mqa__geglu_ffn__prompt'
OPT = dict(stamp=0, force_fb=0)
for x in sys.argv[2:]:
    k, v = x.split('='); OPT[k] = int(v)

def fbits(x): return struct.unpack('<I', struct.pack('<f', x))[0]

WS_KV, WS_G, WS_F2, WS_Q, WS_O, WS_H, WS_STAMP = 0, 0x20000, 0x22000, 0x100000, 0x300000, 0x500000, 0xC00000
WS_SIZE = 0x1000000
XR, WR, EX = 0, 65536, 131072
REC = 2064
MERGE = 64 * REC
LDS_BYTES = 163840
SPIN = 0x40000
SX, SWG, SWU, SWQ, SEX, SWS, SDBG, SWD, SWO, SOUT = 32, 36, 40, 44, 48, 52, 56, 60, 64, 92
sW, sTI, sQ, sU, sROT, sXO, sWOF, sMX, sMW, sI, sJ, sROT0 = range(68, 80)
sT = list(range(80, 90))
sC1 = 96
sQS = 98
def srd(n): return f"s[{n}:{n+3}]"
def vr(b, n): return f"v[{b}:{b+n-1}]"

vXS0, vXS1, vWA, vWB = 1, 2, 3, 4
vXR = [5, 6, 7, 8]
vWR = [9, 10]
vXE = [11, 12]; vWE = 13
vL16 = 14
vLANE = 15
vC0 = 16
vGT = 18
vTMP = list(range(20, 32))
F = [32, 48]
ACC = [64, 96]
XF = 128
ACCE, XE, WE = 96, 100, 108

a = Asm()
def stamp(k):
    if OPT['stamp']: a(f"s_memrealtime s[{4+2*k}:{5+2*k}]")

def mk_srd(n, p, size):
    a(f"s_mov_b32 s{n}, s{p}\ns_mov_b32 s{n+1}, s{p+1}\ns_mov_b32 s{n+2}, {size}\ns_mov_b32 s{n+3}, 0x20000")

a("s_cmp_ge_u32 s2, 256\ns_cbranch_scc1 L_end")
a("s_load_dwordx16 s[4:19], s[0:1], 0\ns_load_dwordx8 s[20:27], s[0:1], 64\ns_load_dwordx2 s[28:29], s[0:1], 96")
if OPT['stamp']: a("s_memrealtime s[30:31]")
a(f"v_lshrrev_b32 v1, 6, v0\nv_and_b32 v{vLANE}, 63, v0\nv_readfirstlane_b32 s{sW}, v1")
a(f"""
s_and_b32 s{sT[0]}, s2, 7
s_lshr_b32 s{sT[1]}, s2, 3
s_and_b32 s{sJ}, s{sT[1]}, 7
s_lshr_b32 s{sU}, s{sT[1]}, 3
s_lshr_b32 s{sQ}, s{sT[0]}, 1
s_and_b32 s{sT[2]}, s{sT[0]}, 1
s_lshl_b32 s{sT[2]}, s{sT[2]}, 3
s_add_u32 s{sTI}, s{sT[2]}, s{sJ}
s_lshl_b32 s{sI}, s{sT[0]}, 2
s_add_u32 s{sI}, s{sI}, s{sU}
s_lshl_b32 s{sROT}, s{sU}, 1
s_add_u32 s{sROT}, s{sROT}, s{sJ}
s_and_b32 s{sROT}, s{sROT}, 7
s_mov_b32 s{sROT0}, s{sROT}
s_lshl_b32 s{sMX}, s{sW}, 11
s_lshl_b32 s{sMW}, s{sW}, 10
s_add_u32 s{sMW}, s{sMW}, {WR}
""")
L = vLANE
t0, t1, t2, t3 = vTMP[0:4]
a(f"""
v_lshlrev_b32 v{vL16}, 4, v{L}
v_lshrrev_b32 v{t0}, 3, v{L}
v_and_b32 v{t1}, 7, v{L}
v_lshrrev_b32 v{t2}, 4, v{L}
s_lshl_b32 s{sT[0]}, s{sTI}, 3
s_add_u32 s{sT[0]}, s{sT[0]}, s{sW}
s_lshl_b32 s{sT[0]}, s{sT[0]}, 14
v_xor_b32 v{t3}, v{t1}, v{t2}
v_lshlrev_b32 v{t3}, 4, v{t3}
v_lshl_add_u32 v{vXS0}, v{t0}, 10, v{t3}
v_add_u32 v{vXS0}, s{sT[0]}, v{vXS0}
v_xor_b32 v{vXS1}, 64, v{vXS0}
v_add_u32 v{vXS1}, 8192, v{vXS1}
""")
def w_src(pitch, colA, colB):
    a(f"""
    v_lshrrev_b32 v{t0}, 3, v{L}
    s_lshl_b32 s{sT[0]}, s{sW}, 3
    v_add_u32 v{t0}, s{sT[0]}, v{t0}
    v_mul_u32_u24 v{t0}, {pitch}, v{t0}
    v_and_b32 v{t1}, 7, v{L}
    v_bfe_u32 v{t2}, v{L}, 4, 1
    v_lshlrev_b32 v{t2}, 1, v{t2}
    v_xor_b32 v{t1}, v{t1}, v{t2}
    v_lshlrev_b32 v{t1}, 4, v{t1}
    v_xor_b32 v{t2}, 64, v{t1}
    v_add3_u32 v{vWA}, v{t0}, v{t1}, s{colA}
    v_add3_u32 v{vWB}, v{t0}, v{t2}, s{colB}
    """)
def read_addrs():
    a(f"""
    v_and_b32 v{t0}, 31, v{L}
    s_and_b32 s{sT[0]}, s{sW}, 3
    s_lshl_b32 s{sT[0]}, s{sT[0]}, 12
    v_bfe_u32 v{t1}, v{L}, 1, 3
    v_lshrrev_b32 v{t2}, 5, v{L}
    v_xor_b32 v{t1}, v{t1}, v{t2}
    v_lshlrev_b32 v{t1}, 4, v{t1}
    v_lshl_add_u32 v{t0}, v{t0}, 7, v{t1}
    v_add_u32 v{vXR[0]}, s{sT[0]}, v{t0}
    v_xor_b32 v{vXR[1]}, 32, v{vXR[0]}
    v_xor_b32 v{vXR[2]}, 64, v{vXR[0]}
    v_xor_b32 v{vXR[3]}, 0x60, v{vXR[0]}
    """)
    a(f"""
    v_bfe_u32 v{t0}, v{L}, 4, 1
    v_bfe_u32 v{t1}, v{L}, 2, 2
    v_lshrrev_b32 v{t2}, 5, v{L}
    v_lshl_add_u32 v{t2}, v{t2}, 3, v{t1}
    v_lshlrev_b32 v{t2}, 7, v{t2}
    v_lshl_add_u32 v{t2}, v{t0}, 13, v{t2}
    v_lshrrev_b32 v{t1}, 1, v{t1}
    v_lshl_add_u32 v{t1}, v{t0}, 1, v{t1}
    s_lshr_b32 s{sT[0]}, s{sW}, 2
    s_lshl_b32 s{sT[0]}, s{sT[0]}, 1
    v_xor_b32 v{t1}, s{sT[0]}, v{t1}
    v_lshl_add_u32 v{t2}, v{t1}, 5, v{t2}
    v_and_b32 v{t0}, 1, v{L}
    v_bfe_u32 v{t1}, v{L}, 1, 1
    v_lshl_add_u32 v{t2}, v{t0}, 4, v{t2}
    v_lshl_add_u32 v{t2}, v{t1}, 3, v{t2}
    v_add_u32 v{vWR[0]}, {WR}, v{t2}
    v_xor_b32 v{vWR[1]}, 32, v{vWR[0]}
    """)
C0 = -2.0 * math.sqrt(2.0 / math.pi) * math.log2(math.e)
C1 = C0 * 0.044715
QS = 0.25 * math.log2(math.e)
a(f"""
s_mov_b32 s{sC1}, {fbits(C1):#x}
s_mov_b32 s{sC1+1}, {fbits(C1):#x}
s_mov_b32 s{sQS}, {fbits(QS):#x}
s_mov_b32 s{sQS+1}, {fbits(QS):#x}
v_mov_b32 v{vC0}, {fbits(C0):#x}
v_mov_b32 v{vC0+1}, {fbits(C0):#x}
""")
a("s_waitcnt lgkmcnt(0)")
mk_srd(SX, 4, 2048 * 1024)
mk_srd(SWG, 16, 512 * 3584)
mk_srd(SWU, 18, 512 * 3584)
mk_srd(SWQ, 6, 512 * 1024)

PG = 3584
def dma_ops(sig, path):
    p = sig >> 3
    isq = (path == 'Q' and p == 0)
    pitch = 1024 if isq else PG
    extra = 128 if (path == 'G' and p == 1) else 0
    sa, sb = (SWQ, SWQ) if isq else (SWG, SWU)
    slot = (sig & 3) * 16384
    ops = []
    pre = f"s_mul_i32 s{sWOF}, s{sROT}, {64*pitch}\n"
    if extra: pre += f"s_add_u32 s{sWOF}, s{sWOF}, {extra}\n"
    if p == 0: pre += f"s_lshl_b32 s{sXO}, s{sROT}, 7\n"
    post = f"s_add_u32 s{sROT}, s{sROT}, 1\n"
    post2 = f"s_and_b32 s{sROT}, s{sROT}, 7\n"
    if p == 0:
        ops.append(f"s_add_u32 m0, s{sMX}, {XR+slot}\n" + pre + f"buffer_load_dwordx4 v{vXS0}, {srd(SX)}, s{sXO} offen lds")
        ops.append(f"s_add_u32 m0, s{sMW}, {slot}\n" + post + f"buffer_load_dwordx4 v{vWA}, {srd(sa)}, s{sWOF} offen lds")
        ops.append(f"s_add_u32 m0, s{sMW}, {slot+8192}\n" + post2 + f"buffer_load_dwordx4 v{vWB}, {srd(sb)}, s{sWOF} offen lds")
        ops.append(f"s_add_u32 m0, s{sMX}, {XR+slot+1024}\nbuffer_load_dwordx4 v{vXS1}, {srd(SX)}, s{sXO} offen lds")
    else:
        ops.append(f"s_add_u32 m0, s{sMW}, {slot}\n" + pre + f"buffer_load_dwordx4 v{vWA}, {srd(sa)}, s{sWOF} offen lds")
        ops.append(f"s_add_u32 m0, s{sMW}, {slot+8192}\n" + post + post2 + f"buffer_load_dwordx4 v{vWB}, {srd(sb)}, s{sWOF} offen lds")
    return ops

def rest_srds():
    mk_srd(SWS, 28, WS_SIZE)
    mk_srd(SDBG, 26, 256)
    mk_srd(SWD, 20, 1792 * 1024)
    mk_srd(SWO, 12, 512 * 1024)
    mk_srd(SOUT, 24, 2048 * 1024)

def reads(sig, h):
    slot = (sig & 3) * 16384
    out = []
    for kk in range(2):
        ks = 2 * h + kk
        if sig < 8:
            out.append(f"ds_read_b128 {vr(XF + 4*(4*sig+ks), 4)}, v{vXR[ks]} offset:{XR+slot}")
        for b in range(2):
            for e in range(2):
                out.append(f"ds_read_b64_tr_b16 {vr(F[h] + 8*kk + 4*b + 2*e, 2)}, v{vWR[b]} offset:{slot + ks*2048 + e*512}")
    return out

def mfmas(sig, h):
    out = []
    acc = ACC[sig >> 3]
    for kk in range(2):
        ks = 2 * h + kk
        for b in range(2):
            d = vr(acc + 16 * b, 16)
            c = "0" if ((sig & 7) == 0 and ks == 0) else d
            out.append(f"v_mfma_f32_32x32x16_bf16 {d}, {vr(F[h] + 8*kk + 4*b, 4)}, {vr(XF + 4*(4*(sig&7)+ks), 4)}, {c}")
    return out

def gelu_pair(base, j, T=vGT):
    G = vr(base + 2 * j, 2); U = vr(base + 8 + 2 * j, 2); TT = vr(T, 2)
    return [f"v_pk_mul_f32 {TT}, {G}, {G}",
            f"v_pk_fma_f32 {TT}, {TT}, s[{sC1}:{sC1+1}], {vr(vC0,2)}",
            f"v_pk_mul_f32 {TT}, {TT}, {G}",
            f"v_exp_f32 v{T}, v{T}",
            f"v_exp_f32 v{T+1}, v{T+1}",
            f"v_pk_mul_f32 {G}, {G}, {U}",
            f"v_pk_add_f32 {TT}, {TT}, 1.0 op_sel_hi:[1,0]",
            f"v_rcp_f32 v{T}, v{T}",
            f"v_rcp_f32 v{T+1}, v{T+1}",
            f"s_nop 0",
            f"v_pk_mul_f32 {G}, {G}, {TT}",
            f"v_cvt_pk_bf16_f32 v{base+j}, v{base+2*j}, v{base+2*j+1}"]

def interleave(ms, fill):
    n = max(len(ms), 1)
    k = 0
    for i in range(n):
        if i < len(ms): a(ms[i])
        upto = (len(fill) * (i + 1) + n - 1) // n
        while k < upto:
            a(fill[k]); k += 1

DEPTH = 3
def extra_reads(sig):
    slot = (sig & 3) * 16384
    out = []
    for j in range(2):
        out.append(f"ds_read_b128 {vr(XE + 4*j, 4)}, v{vXE[j]} offset:{XR+slot}")
        for e in range(2):
            out.append(f"ds_read_b64_tr_b16 {vr(WE + 4*j + 2*e, 2)}, v{vWE} offset:{sig*2048 + j*1024 + e*128}")
    return out
def extra_mfmas(sig):
    return [f"v_mfma_f32_16x16x32_bf16 {vr(ACCE,4)}, {vr(WE+4*j,4)}, {vr(XE+4*j,4)}, {'0' if (sig==0 and j==0) else vr(ACCE,4)}" for j in range(2)]

def proj_path(path):
    tok = {}
    P = path
    if P == 'G':
        a(f"s_mul_i32 s{sT[1]}, s{sQ}, 7\ns_lshl_b32 s{sT[2]}, s{sU}, 1\ns_add_u32 s{sT[1]}, s{sT[1]}, s{sT[2]}\ns_sub_u32 s{sT[1]}, s{sT[1]}, 1\ns_lshl_b32 s{sT[1]}, s{sT[1]}, 7")
        w_src(PG, sT[1], sT[1])
    else:
        a(f"s_lshl_b32 s{sT[1]}, s{sQ}, 8\ns_add_u32 s{sT[2]}, s{sT[1]}, 128")
        w_src(1024, sT[1], sT[2])
    for sig in range(DEPTH):
        for o in dma_ops(sig, P): a(o)
        tok[sig] = a.lastvm()
        if sig == 0 and P == 'Q':
            a(f"""
            s_cmp_eq_u32 s{sQ}, 1
            s_cselect_b64 s[{SEX}:{SEX+1}], s[10:11], s[8:9]
            s_mov_b32 s{SEX+2}, 16384
            s_mov_b32 s{SEX+3}, 0x20000
            s_add_u32 s{sT[3]}, s{sW}, s{sROT0}
            s_and_b32 s{sT[3]}, s{sT[3]}, 7
            s_cmp_eq_u32 s{sQ}, 2
            s_cbranch_scc1 L_exg
            s_lshl_b32 s{sT[3]}, s{sT[3]}, 11
            s_add_u32 m0, s{sMX}, {EX}
            s_nop 0
            buffer_load_dwordx4 v{vL16}, {srd(SEX)}, s{sT[3]} offen lds
            buffer_load_dwordx4 v{vL16}, {srd(SEX)}, s{sT[3]} offen offset:1024 lds
            s_branch L_exdone
            L_exg:
            s_mov_b32 s{SEX}, s22
            s_mov_b32 s{SEX+1}, s23
            s_mov_b32 s{SEX+2}, 1024
            s_lshl_b32 s{sT[3]}, s{sT[3]}, 7
            v_lshlrev_b32 v{t0}, 1, v{L}
            buffer_load_ushort v{t1}, v{t0}, {srd(SEX)}, s{sT[3]} offen
            v_lshlrev_b32 v{t0}, 5, v{L}
            v_add_u32 v{t0}, s{sMX}, v{t0}
            v_add_u32 v{t0}, {EX}, v{t0}
            s_waitcnt vmcnt(0)
            ds_write_b16 v{t0}, v{t1}
            s_waitcnt lgkmcnt(0)
            L_exdone:
            """)
            tok[0] = a.lastvm()
    rest_srds()
    read_addrs()
    if P == 'Q':
        a(f"""
        v_and_b32 v{t0}, 15, v{L}
        v_bfe_u32 v{t1}, v{L}, 1, 3
        v_lshrrev_b32 v{t2}, 4, v{L}
        v_xor_b32 v{t1}, v{t1}, v{t2}
        v_lshlrev_b32 v{t1}, 4, v{t1}
        v_lshl_add_u32 v{t0}, v{t0}, 7, v{t1}
        v_add_u32 v{vXE[0]}, s{sMX}, v{t0}
        v_xor_b32 v{vXE[1]}, 64, v{vXE[0]}
        v_and_b32 v{t0}, 15, v{L}
        v_lshlrev_b32 v{t0}, 3, v{t0}
        v_lshl_add_u32 v{t0}, v{t2}, 8, v{t0}
        v_add_u32 v{vWE}, {EX}, v{t0}
        """)
        a(f"""
        s_lshl_b32 s{sT[4]}, s{sTI}, 2
        s_and_b32 s{sT[5]}, s{sW}, 3
        s_add_u32 s{sT[4]}, s{sT[4]}, s{sT[5]}
        s_lshl_b32 s{sT[4]}, s{sT[4]}, 5
        s_lshl_b32 s{sT[5]}, s{sQ}, 3
        s_add_u32 s{sT[4]}, s{sT[4]}, s{sT[5]}
        s_lshr_b32 s{sT[5]}, s{sW}, 2
        s_lshl_b32 s{sT[5]}, s{sT[5]}, 1
        s_add_u32 s{sT[4]}, s{sT[4]}, s{sT[5]}
        s_lshl_b32 s{sT[4]}, s{sT[4]}, 10
        s_add_u32 s{sT[5]}, s{sT[4]}, {WS_O}
        s_add_u32 s{sT[6]}, s{sT[4]}, {WS_O + 4096}
        v_mov_b32 v24, -1
        v_mov_b32 v25, -1
        v_mov_b32 v26, -1
        v_mov_b32 v27, -1
        v_mov_b32 v28, 0
        buffer_store_dwordx4 v[24:27], v{vL16}, {srd(SWS)}, s{sT[5]} offen sc1
        buffer_store_dwordx4 v[24:27], v{vL16}, {srd(SWS)}, s{sT[5]} offen offset:1024 sc1
        buffer_store_dwordx4 v[24:27], v{vL16}, {srd(SWS)}, s{sT[6]} offen sc1
        buffer_store_dwordx4 v[24:27], v{vL16}, {srd(SWS)}, s{sT[6]} offen offset:1024 sc1
        s_lshl_b32 s{sT[5]}, s{sTI}, 8
        s_lshl_b32 s{sT[6]}, s{sQ}, 12
        s_add_u32 s{sT[5]}, s{sT[5]}, s{sT[6]}
        s_add_u32 s{sT[5]}, s{sT[5]}, {WS_F2}
        v_lshlrev_b32 v29, 2, v{L}
        buffer_store_dword v28, v29, {srd(SWS)}, s{sT[5]} offen sc1
        """)
    stamp(0)
    qtok = None
    for sig in range(16):
        a.wait(tok[sig])
        if P == 'Q' and sig == 11: a.wait(qtok)
        a("s_barrier")
        if sig == 1: stamp(1)
        if sig == 8: stamp(2)
        if P == 'Q' and sig == 11:
            a(f"""
            s_cmp_lg_u32 s{sW}, 0
            s_cbranch_scc1 L_noflag1
            s_lshl_b32 s{sT[5]}, s{sQ}, 4
            s_add_u32 s{sT[5]}, s{sT[5]}, s{sTI}
            s_lshl_b32 s{sT[5]}, s{sT[5]}, 2
            v_mov_b32 v{t0}, 1
            v_mov_b32 v{t1}, 0
            s_mov_b64 exec, 1
            buffer_store_dword v{t0}, v{t1}, {srd(SDBG)}, s{sT[5]} offen sc1
            s_mov_b64 exec, -1
            L_noflag1:
            """)
            a.vm -= 1
        if sig == 15:
            a(f"""
            s_cmp_lg_u32 s{sW}, 0
            s_cbranch_scc1 L_nopoll0{P}
            v_lshlrev_b32 v{t1}, 2, v{L}
            buffer_load_dword v{t0}, v{t1}, {srd(SDBG)}, 0 offen sc1
            L_nopoll0{P}:
            """)
        if P == 'Q' and sig + DEPTH == 8:
            a(f"s_mul_i32 s{sT[1]}, s{sQ}, {7*128}")
            w_src(PG, sT[1], sT[1])
        d = dma_ops(sig + DEPTH, P) if sig + DEPTH < 16 else []
        g = gelu_pair(ACC[0] + 16 * ((sig - 8) >> 2), (sig - 8) & 3) if (P == 'G' and sig >= 8) else []
        m1 = mfmas(sig - 1, 1) if sig > 0 else []
        if P == 'Q' and 0 < sig <= 8: m1 = extra_mfmas(sig - 1)[:1] + m1[:2] + extra_mfmas(sig - 1)[1:] + m1[2:]
        interleave(m1, reads(sig, 0) + d[:len(d)//2] + (g[:6] if sig > 8 else []))
        if P == 'Q' and sig == 8:
            for o in d[len(d)//2:]: a(o)
            tok[sig + DEPTH] = a.lastvm(); d = []
            q_epilogue()
            qtok = a.lastvm()
        a.wait(a.lastlg())
        r1 = reads(sig, 1)
        if P == 'Q' and sig < 8: r1 = r1 + extra_reads(sig)
        interleave(mfmas(sig, 0), r1 + d[len(d)//2:] + (g[6:] if sig > 8 else g))
        if d: tok[sig + DEPTH] = a.lastvm()
        a.wait(a.lastlg())

def q_epilogue():
    a(f"s_add_u32 s{sT[5]}, s{sT[4]}, {WS_Q}\ns_add_u32 s{sT[6]}, s{sT[4]}, {WS_Q + 4096}")
    tq, tn, ta = vTMP[4:7]
    a(f"""
    v_lshrrev_b32 v{tq}, 4, v{L}
    v_and_b32 v{tn}, 15, v{L}
    s_lshl_b32 s{sT[7]}, s{sTI}, 2
    s_lshr_b32 s{sT[8]}, s{sW}, 1
    s_add_u32 s{sT[7]}, s{sT[7]}, s{sT[8]}
    s_lshl_b32 s{sT[7]}, s{sT[7]}, 11
    s_and_b32 s{sT[8]}, s{sW}, 1
    v_cvt_pk_bf16_f32 v{XE}, v{ACCE}, v{ACCE+1}
    v_cvt_pk_bf16_f32 v{XE+1}, v{ACCE+2}, v{ACCE+3}
    s_cmp_eq_u32 s{sQ}, 1
    s_cbranch_scc1 L_pubV
    s_cmp_eq_u32 s{sQ}, 2
    s_cbranch_scc1 L_pubG
    s_cmp_eq_u32 s{sQ}, 3
    s_cbranch_scc1 L_pubE
    s_lshl_b32 s{sT[8]}, s{sT[8]}, 8
    s_add_u32 s{sT[7]}, s{sT[7]}, s{sT[8]}
    v_lshrrev_b32 v{ta}, 1, v{tq}
    v_lshlrev_b32 v{ta}, 9, v{ta}
    v_lshl_add_u32 v{ta}, v{tn}, 4, v{ta}
    v_and_b32 v{tq}, 1, v{tq}
    v_lshl_add_u32 v{ta}, v{tq}, 3, v{ta}
    buffer_store_dwordx2 {vr(XE,2)}, v{ta}, {srd(SWS)}, s{sT[7]} offen sc1
    s_branch L_pubE
    L_pubV:
    s_lshl_b32 s{sT[8]}, s{sT[8]}, 9
    s_add_u32 s{sT[7]}, s{sT[7]}, s{sT[8]}
    v_lshrrev_b32 v{ta}, 3, v{tn}
    v_lshlrev_b32 v{ta}, 8, v{ta}
    v_and_b32 v{tn}, 7, v{tn}
    v_lshl_add_u32 v{ta}, v{tn}, 1, v{ta}
    v_lshrrev_b32 v{tn}, 1, v{tq}
    v_lshl_add_u32 v{ta}, v{tn}, 6, v{ta}
    v_and_b32 v{tq}, 1, v{tq}
    v_lshl_add_u32 v{ta}, v{tq}, 7, v{ta}
    buffer_store_short v{XE}, v{ta}, {srd(SWS)}, s{sT[7]} offen offset:1024 sc1
    buffer_store_short_d16_hi v{XE}, v{ta}, {srd(SWS)}, s{sT[7]} offen offset:1040 sc1
    buffer_store_short v{XE+1}, v{ta}, {srd(SWS)}, s{sT[7]} offen offset:1056 sc1
    buffer_store_short_d16_hi v{XE+1}, v{ta}, {srd(SWS)}, s{sT[7]} offen offset:1072 sc1
    s_branch L_pubE
    L_pubG:
    v_mul_f32 v{ta}, {fbits(-math.log2(math.e)):#x}, v{ACCE}
    v_exp_f32 v{ta}, v{ta}
    s_lshl_b32 s{sT[7]}, s{sTI}, 3
    s_add_u32 s{sT[7]}, s{sT[7]}, s{sW}
    v_add_f32 v{ta}, 1.0, v{ta}
    v_rcp_f32 v{ta}, v{ta}
    s_lshl_b32 s{sT[7]}, s{sT[7]}, 6
    s_add_u32 s{sT[7]}, s{sT[7]}, {WS_G}
    v_lshlrev_b32 v{tn}, 2, v{tn}
    s_mov_b64 exec, 0xffff
    buffer_store_dword v{ta}, v{tn}, {srd(SWS)}, s{sT[7]} offen sc1
    s_mov_b64 exec, -1
    L_pubE:
    """)
    a.vm -= 6
    for b in range(2):
        for hf in range(2):
            base = ACC[0] + 16 * b + 8 * hf
            for j in range(4):
                a(f"v_pk_mul_f32 {vr(base+2*j,2)}, {vr(base+2*j,2)}, s[{sQS}:{sQS+1}]")
            for j in range(4):
                a(f"v_cvt_pk_bf16_f32 v{base+j}, v{base+2*j}, v{base+2*j+1}")
            a(f"buffer_store_dwordx4 {vr(base,4)}, v{vL16}, {srd(SWS)}, s{sT[5+hf]} offen offset:{1024*b} sc1")

a(f"s_cmp_eq_u32 s{sU}, 0\ns_cbranch_scc1 L_pathQ")
proj_path('G')
a("L_join:")
a.forget()

QA, QB, KF, V1, V2 = 128, 132, 136, 140, 144
vG, vG0, vG1, vIDX, vAK, vAV1, vAV2 = 148, 149, 150, 151, 152, 153, 154
SA, SB, OA, OB = 160, 176, 192, 208
for m in mfmas(15, 1): a(m)
stamp(3)
a(f"""
s_cmp_lg_u32 s{sW}, 0
s_cbranch_scc1 L_s1done
v_and_b32 v{t2}, 15, v{L}
s_lshr_b32 s{sT[0]}, s{sI}, 1
v_cmp_ne_u32 s[{sT[2]}:{sT[3]}], s{sT[0]}, v{t2}
s_mov_b32 vcc_lo, 0
s_mov_b32 vcc_hi, s{sT[3]}
s_mov_b32 s{sT[1]}, 0
v_cndmask_b32 v{t2}, 0, 1, vcc
L_s1poll:
s_waitcnt vmcnt(0)
v_or_b32 v{t0}, v{t0}, v{t2}
v_cmp_eq_u32 vcc, 0, v{t0}
s_cbranch_vccz L_s1done
s_sleep 4
buffer_load_dword v{t0}, v{t1}, {srd(SDBG)}, 0 offen sc1
s_add_u32 s{sT[1]}, s{sT[1]}, 1
s_cmp_lt_u32 s{sT[1]}, {SPIN}
s_cbranch_scc1 L_s1poll
s_waitcnt vmcnt(0)
L_s1done:
s_barrier
""")
a.forget()
stamp(4)
a(f"""
s_lshl_b32 s{sT[0]}, s{sI}, 1
s_and_b32 s{sT[1]}, s{sW}, 1
s_add_u32 s{sT[1]}, s{sT[0]}, s{sT[1]}
s_lshl_b32 s{sT[2]}, s{sT[1]}, 5
s_lshl_b32 s{sT[3]}, s{sJ}, 2
s_add_u32 s{sT[2]}, s{sT[2]}, s{sT[3]}
s_and_b32 s{sT[3]}, s{sW}, 2
s_add_u32 s{sT[2]}, s{sT[2]}, s{sT[3]}
s_lshr_b32 s{sT[3]}, s{sW}, 2
s_add_u32 s{sT[2]}, s{sT[2]}, s{sT[3]}
s_lshl_b32 s{sT[9]}, s{sT[2]}, 10
s_add_u32 s{sT[4]}, s{sT[9]}, {WS_Q}
s_xor_b32 s{sT[5]}, s{sT[4]}, 1024
buffer_load_dwordx4 {vr(QA,4)}, v{vL16}, {srd(SWS)}, s{sT[4]} offen sc1
buffer_load_dwordx4 {vr(QB,4)}, v{vL16}, {srd(SWS)}, s{sT[5]} offen sc1
""")
a(f"""
s_lshr_b32 s{sT[3]}, s{sW}, 2
s_and_b32 s{sT[4]}, s{sW}, 1
s_bfe_u32 s{sT[5]}, s{sW}, 0x10001
s_lshl_b32 s{sT[6]}, s{sT[3]}, 16
s_lshl_b32 s{sT[7]}, s{sT[4]}, 10
s_add_u32 s{sT[6]}, s{sT[6]}, s{sT[7]}
v_add_u32 v{t3}, s{sT[6]}, v{vL16}
s_lshl_b32 s{sT[6]}, s{sT[3]}, 5
s_add_u32 s{sT[6]}, s{sT[6]}, s{sT[5]}
s_mul_i32 s{sT[6]}, s{sT[6]}, {REC}
s_add_u32 s{sMX}, s{sT[6]}, s{sT[7]}
s_lshr_b32 s{sT[6]}, s2, 3
s_add_u32 s{sT[6]}, s{sT[6]}, s{sT[5]}
s_and_b32 s{sT[6]}, s{sT[6]}, 31
s_lshl_b32 s{sXO}, s{sT[6]}, 11
""")
kvtok = []
def kv_step(m):
    a(f"s_add_u32 m0, s{sMX}, {2*m*REC}\ns_nop 0\nbuffer_load_dwordx4 v{t3}, {srd(SWS)}, s{sXO} offen sc1 lds")
    kvtok.append(a.lastvm())
    a(f"s_add_u32 s{sXO}, s{sXO}, 4096\ns_and_b32 s{sXO}, s{sXO}, 0xffff")
for m in range(3): kv_step(m)
a(f"""
v_and_b32 v{t0}, 31, v{L}
v_lshlrev_b32 v{t0}, 2, v{t0}
s_lshl_b32 s{sT[0]}, s{sT[0]}, 7
s_add_u32 s{sT[0]}, s{sT[0]}, {WS_G}
s_lshl_b32 s{sT[1]}, s{sT[1]}, 7
s_add_u32 s{sT[1]}, s{sT[1]}, {WS_G}
buffer_load_dword v{vG0}, v{t0}, {srd(SWS)}, s{sT[0]} offen sc1
buffer_load_dword v{vG1}, v{t0}, {srd(SWS)}, s{sT[0]} offen offset:128 sc1
buffer_load_dword v{vG}, v{t0}, {srd(SWS)}, s{sT[1]} offen sc1
""")
a(f"""
v_mov_b32 v24, 0x3f803f80
v_mov_b32 v25, 0x3f803f80
v_mov_b32 v26, 0x3f803f80
v_mov_b32 v27, 0x3f803f80
v_mul_u32_u24 v28, {REC}, v{L}
ds_write_b128 v28, v[24:27] offset:2048
s_lshr_b32 s{sT[3]}, s{sW}, 2
s_mul_i32 s{sT[3]}, s{sT[3]}, {32*REC}
v_add_u32 v{vAK}, s{sT[3]}, v{vL16}
v_and_b32 v{t0}, 15, v{L}
v_lshrrev_b32 v{t1}, 5, v{L}
v_lshlrev_b32 v{t0}, 4, v{t0}
v_lshl_add_u32 v{t0}, v{t1}, 8, v{t0}
v_add_u32 v{t1}, 1024, v{t0}
v_add_u32 v{t2}, 1536, v{t0}
v_mov_b32 v29, 2048
s_mov_b32 vcc_lo, 0xffff0000
s_mov_b32 vcc_hi, 0xffff0000
v_cndmask_b32 v{t1}, v{t1}, v29, vcc
v_cndmask_b32 v{t2}, v{t2}, v29, vcc
v_add_u32 v{vAV1}, s{sT[3]}, v{t1}
v_add_u32 v{vAV2}, s{sT[3]}, v{t2}
v_mov_b32 v{vIDX}, 0xdddddddd
""")
for r in range(16): a(f"v_mov_b32 v{OA+r}, 0\nv_mov_b32 v{OB+r}, 0")
m = 3
for b in range(2):
    for jp in range(2):
        g0 = gelu_pair(ACC[1] + 16 * b, 2 * jp, vGT); g1 = gelu_pair(ACC[1] + 16 * b, 2 * jp + 1, 30)
        for k, (x, y) in enumerate(zip(g0, g1)):
            if x.startswith('s_nop'): continue
            a(x); a(y)
            if k in (2, 5, 8, 10) and m < 16: kv_step(m); m += 1
assert m == 16
a(f"""
s_lshl_b32 s{sT[0]}, s{sTI}, 2
s_and_b32 s{sT[1]}, s{sW}, 3
s_add_u32 s{sT[0]}, s{sT[0]}, s{sT[1]}
s_mul_i32 s{sT[0]}, s{sT[0]}, 112
s_mul_i32 s{sT[1]}, s{sQ}, 28
s_add_u32 s{sT[0]}, s{sT[0]}, s{sT[1]}
s_lshl_b32 s{sT[1]}, s{sU}, 3
s_add_u32 s{sT[0]}, s{sT[0]}, s{sT[1]}
s_lshr_b32 s{sT[1]}, s{sW}, 2
s_lshl_b32 s{sT[1]}, s{sT[1]}, 1
s_add_u32 s{sT[0]}, s{sT[0]}, s{sT[1]}
s_lshl_b32 s{sT[0]}, s{sT[0]}, 10
s_add_u32 s{sT[0]}, s{sT[0]}, {WS_H}
buffer_store_dwordx4 {vr(ACC[1],4)}, v{vL16}, {srd(SWS)}, s{sT[0]} offen sc1
buffer_store_dwordx4 {vr(ACC[1]+16,4)}, v{vL16}, {srd(SWS)}, s{sT[0]} offen offset:1024 sc1
s_cmp_eq_u32 s{sU}, 0
s_cbranch_scc1 L_noh1
s_sub_u32 s{sT[0]}, s{sT[0]}, 4096
buffer_store_dwordx4 {vr(ACC[0],4)}, v{vL16}, {srd(SWS)}, s{sT[0]} offen sc1
buffer_store_dwordx4 {vr(ACC[0]+16,4)}, v{vL16}, {srd(SWS)}, s{sT[0]} offen offset:1024 sc1
L_noh1:
""")
a.vm -= 2
a.wait(kvtok[2], a.lastlg())
a("s_barrier")
stamp(5)

def qk(S, Q): return f"v_mfma_f32_32x32x16_bf16 {vr(S,16)}, {vr(KF,4)}, {vr(Q,4)}, 0"
def pv(O, V, S): return f"v_smfmac_f32_32x32x32_bf16 {vr(O,16)}, {vr(V,4)}, {vr(S,8)}, v{vIDX}"
def rdK(t): return a(f"ds_read_b128 {vr(KF,4)}, v{vAK} offset:{t*REC}")
def rdV1(t): return a(f"ds_read_b128 {vr(V1,4)}, v{vAV1} offset:{t*REC}")
def rdV2(t): return a(f"ds_read_b128 {vr(V2,4)}, v{vAV2} offset:{t*REC}")
NT = 32
tK = rdK(0); tV1 = rdV1(0); tV2 = None
a.wait(tK)
a(qk(SA, QA))
B1 = 4
for t in range(NT):
    if t == B1:
        a.wait_vm0()
        a("s_barrier")
        a(f"""
        s_cmp_lg_u32 s{sW}, 0
        s_cbranch_scc1 L_noflag2
        s_lshl_b32 s{sT[0]}, s{sTI}, 6
        s_lshl_b32 s{sT[1]}, s{sQ}, 2
        s_add_u32 s{sT[0]}, s{sT[0]}, s{sT[1]}
        s_add_u32 s{sT[0]}, s{sT[0]}, s{sU}
        s_lshl_b32 s{sT[0]}, s{sT[0]}, 2
        s_add_u32 s{sT[0]}, s{sT[0]}, {WS_F2}
        v_mov_b32 v{t0}, 1
        v_mov_b32 v{t1}, 0
        s_mov_b64 exec, 1
        buffer_store_dword v{t0}, v{t1}, {srd(SWS)}, s{sT[0]} offen sc1
        s_mov_b64 exec, -1
        L_noflag2:
        """)
        a.vm -= 1
        stamp(6)
    for e in range(16):
        if e == 2:
            if t > 0: a(pv(OB, V2, SB + 8))
            tV2 = rdV2(t)
        if e == 5 or (t == 0 and e == 0):
            if not (t == 0 and e == 5):
                a(qk(SB, QB))
                if t + 1 < NT: tK = rdK(t + 1)
        if e == 10:
            a.wait(tV1); a(pv(OA, V1, SA))
        a(f"v_exp_f32 v{SA+e}, v{SA+e}")
    for e in range(16):
        if e == 2:
            a.wait(tV2, tK); a(pv(OA, V2, SA + 8))
        if e == 5 and t + 1 < NT: a(qk(SA, QA))
        if e == 10:
            a(pv(OB, V1, SB))
            if t + 1 < NT: tV1 = rdV1(t + 1)
        a(f"v_exp_f32 v{SB+e}, v{SB+e}")
a(pv(OB, V2, SB + 8))
stamp(7)
a(f"""
s_mul_i32 s{sT[0]}, s{sW}, 2304
s_xor_b32 s{sT[1]}, s{sW}, 4
s_mul_i32 s{sT[1]}, s{sT[1]}, 2304
s_add_u32 s{sT[0]}, s{sT[0]}, {MERGE}
s_add_u32 s{sT[1]}, s{sT[1]}, {MERGE}
v_add_u32 v{t0}, s{sT[0]}, v{vL16}
v_add_u32 v{t1}, s{sT[1]}, v{vL16}
v_lshl_add_u32 v{t2}, v{L}, 2, s{sT[0]}
v_lshl_add_u32 v{t3}, v{L}, 2, s{sT[1]}
ds_write_b128 v{t0}, {vr(OB,4)}
ds_write_b128 v{t0}, {vr(OB+4,4)} offset:1024
ds_write_b32 v{t2}, v{OB+8} offset:2048
""")
a.wait_lg0()
a("s_barrier")
a(f"""
ds_read_b32 v{SB+8}, v{t3} offset:2048
ds_read_b128 {vr(SB,4)}, v{t1}
ds_read_b128 {vr(SB+4,4)}, v{t1} offset:1024
""")
a.wait_lg0()
a(f"v_add_f32 v{OA+8}, v{OA+8}, v{SB+8}")
for j in range(4): a(f"v_pk_add_f32 {vr(OA+2*j,2)}, {vr(OA+2*j,2)}, {vr(SB+2*j,2)}")
a(f"v_mov_b32 v{t0}, v{OA+8}")
for r in range(8): a(f"v_fma_f32 v{t0}, v{OA+r}, 0, v{t0}")
a(f"""
s_mov_b32 s{sT[0]}, {fbits(2.0**-60):#x}
s_mov_b32 s{sT[1]}, {fbits(2.0**60):#x}
v_cmp_nle_f32 vcc, s{sT[0]}, v{t0}
v_cmp_nge_f32 s[{sT[2]}:{sT[3]}], s{sT[1]}, v{t0}
s_or_b64 vcc, vcc, s[{sT[2]}:{sT[3]}]
""")
if OPT['force_fb']: a("s_mov_b64 vcc, -1")
a("""
s_cbranch_vccnz L_true_max
L_norm:
""")
a(f"""
v_rcp_f32 v{t0}, v{OA+8}
s_add_u32 s{sT[4]}, s{sT[9]}, {WS_O}
v_mul_f32 v{t0}, v{t0}, v{vG}
""")
for j in range(4): a(f"v_pk_mul_f32 {vr(OA+2*j,2)}, {vr(OA+2*j,2)}, {vr(t0,2)} op_sel_hi:[1,0]")
for j in range(4): a(f"v_cvt_pk_bf16_f32 v{OA+j}, v{OA+2*j}, v{OA+2*j+1}")
for j in range(4): a(f"v_min_u32 v{OA+j}, -2, v{OA+j}")
a(f"buffer_store_dwordx4 {vr(OA,4)}, v{vL16}, {srd(SWS)}, s{sT[4]} offen sc1")
stamp(8)

DACC = 64
HF = [32, 40, 48, 56]
WF = [224, 232]
OF = 160
vDS, vDR0, vDR1, vH1 = 1, 2, 3, 4
a(f"""
v_lshrrev_b32 v{t0}, 3, v{L}
v_and_b32 v{t1}, 7, v{L}
v_bfe_u32 v{t2}, v{L}, 4, 1
v_lshlrev_b32 v{t2}, 2, v{t2}
v_xor_b32 v{t1}, v{t1}, v{t2}
v_lshlrev_b32 v{t1}, 4, v{t1}
v_lshl_add_u32 v{t0}, v{t0}, 10, v{t1}
s_lshl_b32 s{sT[0]}, s{sJ}, 7
v_add_u32 v{vDS}, s{sT[0]}, v{t0}
s_lshl_b32 s{sMW}, s{sW}, 14
v_bfe_u32 v{t0}, v{L}, 2, 2
v_lshrrev_b32 v{t1}, 5, v{L}
v_lshl_add_u32 v{t1}, v{t1}, 3, v{t0}
v_lshlrev_b32 v{t1}, 7, v{t1}
v_lshrrev_b32 v{t0}, 1, v{t0}
v_lshl_add_u32 v{t1}, v{t0}, 6, v{t1}
v_bfe_u32 v{t0}, v{L}, 4, 1
v_lshl_add_u32 v{t1}, v{t0}, 5, v{t1}
v_and_b32 v{t0}, 3, v{L}
v_lshl_add_u32 v{t1}, v{t0}, 3, v{t1}
v_add_u32 v{vDR0}, s{sMW}, v{t1}
v_xor_b32 v{vDR1}, 64, v{vDR0}
v_add_u32 v{vH1}, {112*1024}, v{vL16}
s_mul_i32 s{sWOF}, s{sW}, {14*16384}
s_mul_i32 s{sXO}, s{sI}, 224
s_mul_i32 s{sT[0]}, s{sW}, 14
s_add_u32 s{sXO}, s{sXO}, s{sT[0]}
s_lshl_b32 s{sXO}, s{sXO}, 10
s_add_u32 s{sXO}, s{sXO}, {WS_H}
s_lshr_b32 s{sT[0]}, s{sI}, 1
s_lshl_b32 s{sT[0]}, s{sT[0]}, 8
s_add_u32 s{sT[0]}, s{sT[0]}, {WS_F2}
v_and_b32 v{t1}, 15, v{L}
v_lshlrev_b32 v{t1}, 2, v{t1}
s_mov_b32 s{sT[1]}, 0
L_s2poll:
buffer_load_dword v{t0}, v{t1}, {srd(SWS)}, s{sT[0]} offen sc1
s_add_u32 s{sT[1]}, s{sT[1]}, 1
s_waitcnt vmcnt(0)
v_cmp_ne_u32 vcc, 1, v{t0}
s_cbranch_vccz L_s2done
s_cmp_lt_u32 s{sT[1]}, {SPIN}
s_cbranch_scc1 L_s2poll
L_s2done:
""")
a.forget(); a.vm_done = a.vm; a.lg_done = a.lg
wtok, htok = {}, {}
def w_load(u):
    s = SWD if u < 14 else SWO
    if u == 14: a(f"s_lshl_b32 s{sWOF}, s{sW}, 16")
    slot = (u & 7) * 2048
    a(f"""
    s_add_u32 m0, s{sMW}, {slot}
    s_add_u32 s{sT[1]}, s{sWOF}, 8192
    buffer_load_dwordx4 v{vDS}, {srd(s)}, s{sWOF} offen lds
    s_add_u32 m0, s{sMW}, {slot+1024}
    s_add_u32 s{sWOF}, s{sWOF}, 16384
    buffer_load_dwordx4 v{vDS}, {srd(s)}, s{sT[1]} offen lds
    """)
    wtok[u] = a.lastvm()
def h_load(u):
    r = HF[u & 3]
    a(f"""
    buffer_load_dwordx4 {vr(r,4)}, v{vL16}, {srd(SWS)}, s{sXO} offen offset:{(u&3)*1024} sc1
    buffer_load_dwordx4 {vr(r+4,4)}, v{vH1}, {srd(SWS)}, s{sXO} offen offset:{(u&3)*1024} sc1
    """)
    if (u & 3) == 3: a(f"s_add_u32 s{sXO}, s{sXO}, 4096")
    htok[u] = a.lastvm()
rtok = {}
def w_read(u):
    a.wait(wtok[u])
    slot = (u & 7) * 2048
    for b in range(2):
        for e in range(2):
            a(f"ds_read_b64_tr_b16 {vr(WF[u&1] + 4*b + 2*e, 2)}, v{(vDR0, vDR1)[b]} offset:{slot + e*512}")
    rtok[u] = a.lastlg()
def d_mfma(u, hreg):
    for tb in range(2):
        for b in range(2):
            d = vr(DACC + 32 * tb + 16 * b, 16)
            a(f"v_mfma_f32_32x32x16_bf16 {d}, {vr(WF[u&1]+4*b,4)}, {vr(hreg(tb),4)}, {'0' if u == 0 else d}")
for u in range(3):
    w_load(u); h_load(u)
w_read(0)
for u in range(14):
    if u + 3 < 14:
        w_load(u + 3); h_load(u + 3)
    elif u + 3 < 18:
        w_load(u + 3)
    if u + 1 < 14: w_read(u + 1)
    a.wait(rtok[u], htok[u])
    d_mfma(u, lambda tb: HF[u & 3] + 4 * tb)
w_load(17)
stamp(9)
a(f"""
s_lshl_b32 s{sT[0]}, s{sI}, 6
s_lshl_b32 s{sT[1]}, s{sW}, 2
s_add_u32 s{sT[0]}, s{sT[0]}, s{sT[1]}
s_lshl_b32 s{sT[0]}, s{sT[0]}, 10
s_add_u32 s{sT[0]}, s{sT[0]}, {WS_O}
s_add_u32 s{sT[1]}, s{sT[0]}, 32768
v_sub_f32 v{vG0}, 1.0, v{vG0}
v_sub_f32 v{vG1+1}, 1.0, v{vG1}
v_mov_b32 v{vG0-1}, v{vG0}
v_mov_b32 v{vG1}, v{vG1+1}
""")
for tb in range(2):
    for j in range(16):
        r = DACC + 32 * tb + 2 * j
        a(f"v_pk_mul_f32 {vr(r,2)}, {vr(r,2)}, {vr(vG if tb == 0 else vG1, 2)}")
a(f"s_mov_b32 s{sT[2]}, 0\nL_s3poll:")
for u in range(4):
    for tb in range(2):
        a(f"buffer_load_dwordx4 {vr(OF + 8*u + 4*tb, 4)}, v{vL16}, {srd(SWS)}, s{sT[tb]} offen offset:{1024*u} sc1")
a.wait_vm0()
a(f"v_max_u32 v{t0}, v{OF}, v{OF+1}")
for j in range(1, 16): a(f"v_max3_u32 v{t0}, v{t0}, v{OF+2*j}, v{OF+2*j+1}")
a(f"v_cmp_eq_u32 vcc, -1, v{t0}\ns_cbranch_vccz L_s3done\ns_add_u32 s{sT[2]}, s{sT[2]}, 1\ns_cmp_lt_u32 s{sT[2]}, {SPIN}\ns_cbranch_scc1 L_s3poll\nL_s3done:")
stamp(10)
w_read(14)
for u in range(14, 18):
    if u + 1 < 18: w_read(u + 1)
    a.wait(rtok[u])
    d_mfma(u, lambda tb: OF + 8 * (u - 14) + 4 * tb)
a(f"""
v_and_b32 v{t0}, 31, v{L}
v_lshrrev_b32 v{t1}, 5, v{L}
v_and_b32 v{t2}, 7, v{L}
v_xor_b32 v{t1}, v{t1}, v{t2}
v_lshlrev_b32 v{t1}, 4, v{t1}
v_lshl_add_u32 v{t0}, v{t0}, 8, v{t1}
v_add_u32 v24, s{sMW}, v{t0}
v_xor_b32 v25, 32, v24
v_xor_b32 v26, 64, v24
v_xor_b32 v27, 0x60, v24
v_lshrrev_b32 v{t0}, 3, v{L}
v_lshlrev_b32 v{t1}, 1, v{t2}
v_xor_b32 v{t1}, v{t1}, v{t0}
v_lshlrev_b32 v{t1}, 4, v{t1}
v_lshl_add_u32 v{t1}, v{t0}, 8, v{t1}
s_lshl_b32 s{sT[0]}, s{sW}, 11
v_add_u32 v28, s{sT[0]}, v{t1}
v_xor_b32 v29, 16, v28
v_add_u32 v30, 0x10000, v28
v_add_u32 v31, 0x10000, v29
""")
for tb in range(2):
    for b in range(2):
        for qd in range(4):
            a(f"ds_write_b128 v{24+qd}, {vr(DACC + 32*tb + 16*b + 4*qd, 4)} offset:{tb*8192 + b*128}")
a.wait_lg0()
a("s_barrier")
RD = 128
rt = []
for p in range(8):
    for e in range(2):
        rt.append(a(f"ds_read_b128 {vr(RD + 8*p + 4*e, 4)}, v{28 + e + 2*(p>>2)} offset:{(p&3)*16384}"))
a(f"""
s_lshl_b32 s{sT[0]}, s{sI}, 3
s_add_u32 s{sT[0]}, s{sT[0]}, s{sW}
s_lshl_b32 s{sT[0]}, s{sT[0]}, 13
s_lshl_b32 s{sT[1]}, s{sJ}, 7
s_add_u32 s{sT[0]}, s{sT[0]}, s{sT[1]}
v_lshlrev_b32 v{t2}, 4, v{t2}
v_lshl_add_u32 v{t0}, v{t0}, 10, v{t2}
""")
for p in range(1, 8):
    a.wait(rt[2 * p + 1])
    for j in range(4):
        a(f"v_pk_add_f32 {vr(RD+2*j,2)}, {vr(RD+2*j,2)}, {vr(RD+8*p+2*j,2)}")
for j in range(4): a(f"v_cvt_pk_bf16_f32 v{RD+j}, v{RD+2*j}, v{RD+2*j+1}")
a(f"buffer_store_dwordx4 {vr(RD,4)}, v{t0}, {srd(SOUT)}, s{sT[0]} offen")
if OPT['stamp']:
    a("s_waitcnt vmcnt(0)")
    stamp(11)
    a("s_waitcnt lgkmcnt(0)")
    a(f"s_lshl_b32 s{sT[0]}, s2, 3\ns_add_u32 s{sT[0]}, s{sT[0]}, s{sW}\ns_lshl_b32 s{sT[0]}, s{sT[0]}, 6\ns_add_u32 s{sT[0]}, s{sT[0]}, {WS_STAMP}")
    a("v_mov_b32 v1, 0\ns_mov_b64 exec, 1")
    for k in range(14):
        a(f"v_mov_b32 v2, s{4+2*k}\nbuffer_store_dword v2, v1, {srd(SWS)}, s{sT[0]} offen offset:{4*k}")
a("L_end:\ns_endpgm")

a("L_pathQ:")
a.forget()
proj_path('Q')
a("s_branch L_join")

CM = SB
a(f"""
L_true_max:
s_waitcnt vmcnt(0) lgkmcnt(0)
v_mov_b32 v{t0}, 0xff800000
s_mov_b32 s{sT[0]}, {WS_KV}
L_tm1:
buffer_load_dwordx4 {vr(KF,4)}, v{vL16}, {srd(SWS)}, s{sT[0]} offen sc1
s_waitcnt vmcnt(0)
{qk(SA, QA)}
""")
for j in range(8): a(f"v_max3_f32 v{t0}, v{t0}, v{SA+2*j}, v{SA+2*j+1}")
a(f"""
s_add_u32 s{sT[0]}, s{sT[0]}, 2048
s_cmp_lt_u32 s{sT[0]}, {WS_KV + 64*2048}
s_cbranch_scc1 L_tm1
v_mov_b32 v{t1}, v{t0}
v_permlane32_swap_b32 v{t0}, v{t1}
v_max_f32 v{t0}, v{t0}, v{t1}
""")
for r in range(16): a(f"v_sub_f32 v{CM+r}, 0, v{t0}\nv_mov_b32 v{OA+r}, 0")
for r in range(8): a(f"v_mov_b32 v{V1+r}, 0x3f803f80")
a(f"""
v_and_b32 v{t1}, 15, v{L}
v_lshrrev_b32 v{t2}, 5, v{L}
v_lshlrev_b32 v{t1}, 4, v{t1}
v_lshl_add_u32 v{t1}, v{t2}, 8, v{t1}
s_mov_b32 s{sT[0]}, {WS_KV}
s_mov_b32 s{sT[2]}, 0xffff
s_mov_b32 s{sT[3]}, 0xffff
L_tm2:
buffer_load_dwordx4 {vr(KF,4)}, v{vL16}, {srd(SWS)}, s{sT[0]} offen sc1
s_mov_b64 exec, s[{sT[2]}:{sT[3]}]
buffer_load_dwordx4 {vr(V1,4)}, v{t1}, {srd(SWS)}, s{sT[0]} offen offset:1024 sc1
buffer_load_dwordx4 {vr(V2,4)}, v{t1}, {srd(SWS)}, s{sT[0]} offen offset:1536 sc1
s_mov_b64 exec, -1
s_waitcnt vmcnt(0)
v_mfma_f32_32x32x16_bf16 {vr(SA,16)}, {vr(KF,4)}, {vr(QA,4)}, {vr(CM,16)}
""")
for e in range(16): a(f"v_exp_f32 v{SA+e}, v{SA+e}")
a(pv(OA, V1, SA)); a(pv(OA, V2, SA + 8))
a(f"""
s_add_u32 s{sT[0]}, s{sT[0]}, 2048
s_cmp_lt_u32 s{sT[0]}, {WS_KV + 64*2048}
s_nop 7
s_cbranch_scc1 L_tm2
s_nop 7
s_branch L_norm
""")

bad = a.check_branches()
assert not bad, bad

hdr = open(f'cdna_kernels/{NAME}.s.ref').read().split('\n')
head = [l for l in hdr if l.startswith(';') and '@launch' not in l]
out = "\n".join(head) + f"\n; @launch grid=(256,1,1) block=(512,1,1) lds={LDS_BYTES}\n"
out += f""".amdgcn_target "amdgcn-amd-amdhsa--gfx950"
.text
.globl {NAME}_kernel
.p2align 8
.type {NAME}_kernel,@function
{NAME}_kernel:
{a.text()}
.section .rodata,"a"
.p2align 6
.amdhsa_kernel {NAME}_kernel
  .amdhsa_next_free_vgpr 256
  .amdhsa_next_free_sgpr 102
  .amdhsa_accum_offset 256
  .amdhsa_group_segment_fixed_size 0
  .amdhsa_kernarg_size 104
  .amdhsa_user_sgpr_count 2
  .amdhsa_user_sgpr_kernarg_segment_ptr 1
  .amdhsa_system_sgpr_workgroup_id_x 1
.end_amdhsa_kernel
"""
open(sys.argv[1], 'w').write(out)
print("instructions:", sum(1 for i in a.ins if i.ws), "auto nops:", a.nnop, file=sys.stderr)
```

```python
import sys, math, struct
sys.path.insert(0, 'gen')
from asmlib import Asm

NAME = 'gated_mix__grouped_kv_mqa__geglu_ffn__prompt'
OPT = dict(stamp=0, force_fb=0, b1=5, b2=13, prio=1, pre=2, qflag=11, touch=1, pk=0, dens=4, sprio=1)
for x in sys.argv[2:]:
    k, v = x.split('='); OPT[k] = int(v)

def fbits(x): return struct.unpack('<I', struct.pack('<f', x))[0]

WS_KV, WS_G, WS_F1, WS_Q, WS_O, WS_H, WS_STAMP = 0, 0x20000, 0x30000, 0x100000, 0x300000, 0x500000, 0xC00000
WS_F2 = WS_F1 + 8192
WS_SIZE = 0x1000000
CLEAR_WG = 64
XR, WR, EX = 0, 65536, 131072
REC = 2064
HALF = 32 * REC
TOP = 64 * REC
LDS_BYTES = 163840
SPIN = 0x40000
SX, SWG, SWU, SWQ, SEX, SWS, SDBG, SWD, SWO, SOUT = 32, 36, 40, 44, 48, 52, 56, 60, 64, 92
sW, sTI, sQ, sU, sROT, sXO, sWOF, sMX, sMW, sI, sJ, sROT0 = range(68, 80)
sT = list(range(80, 90))
sC1 = 96
sQS = 98
sEXW, sEXO = 90, 91
sRING, sOO = 100, 101
def srd(n): return f"s[{n}:{n+3}]"
def vr(b, n): return f"v[{b}:{b+n-1}]"

vXS0, vXS1, vWA, vWB = 1, 2, 3, 4
vXR = [5, 6, 7, 8]
vWR = [9, 10]
vXE = [11, 12]; vWE = 13
vL16 = 14
vLANE = 15
vC0 = 16
vGT = 18
vTMP = list(range(20, 32))
F = [32, 48]
ACC = [64, 96]
XF = 128
ACCE, XE, WE = 96, 100, 108

a = Asm()
CLK = 's_memtime' if OPT['stamp'] == 2 else 's_memrealtime'
def stamp(k, grp=0):
    if grp != OPT.get('grp', 0) and k != 11: return
    if OPT['stamp']: a(f"{CLK} s[{4+2*k}:{5+2*k}]")

def mk_srd(n, p, size):
    a(f"s_mov_b32 s{n}, s{p}\ns_mov_b32 s{n+1}, s{p+1}\ns_mov_b32 s{n+2}, {size}\ns_mov_b32 s{n+3}, 0x20000")

a("s_cmp_ge_u32 s2, 256\ns_cbranch_scc1 L_end")
a("s_load_dwordx16 s[4:19], s[0:1], 0\ns_load_dwordx8 s[20:27], s[0:1], 64\ns_load_dwordx2 s[28:29], s[0:1], 96")
if OPT['stamp']: a(f"{CLK} s[30:31]")
a(f"v_lshrrev_b32 v1, 6, v0\nv_and_b32 v{vLANE}, 63, v0\nv_readfirstlane_b32 s{sW}, v1")
a(f"""
s_and_b32 s{sT[0]}, s2, 7
s_lshr_b32 s{sT[1]}, s2, 3
s_and_b32 s{sJ}, s{sT[1]}, 7
s_lshr_b32 s{sU}, s{sT[1]}, 3
s_lshr_b32 s{sQ}, s{sT[0]}, 1
s_and_b32 s{sT[2]}, s{sT[0]}, 1
s_lshl_b32 s{sT[2]}, s{sT[2]}, 3
s_add_u32 s{sTI}, s{sT[2]}, s{sJ}
s_lshl_b32 s{sI}, s{sT[0]}, 2
s_add_u32 s{sI}, s{sI}, s{sU}
s_lshl_b32 s{sROT}, s{sU}, 1
s_add_u32 s{sROT}, s{sROT}, s{sJ}
s_and_b32 s{sROT}, s{sROT}, 7
s_mov_b32 s{sROT0}, s{sROT}
s_lshl_b32 s{sMX}, s{sW}, 11
s_lshl_b32 s{sMW}, s{sW}, 10
s_add_u32 s{sMW}, s{sMW}, {WR}
""")
L = vLANE
t0, t1, t2, t3 = vTMP[0:4]
a(f"""
v_lshlrev_b32 v{vL16}, 4, v{L}
v_lshrrev_b32 v{t0}, 3, v{L}
v_and_b32 v{t1}, 7, v{L}
v_lshrrev_b32 v{t2}, 4, v{L}
s_lshl_b32 s{sT[0]}, s{sTI}, 3
s_add_u32 s{sT[0]}, s{sT[0]}, s{sW}
s_lshl_b32 s{sT[0]}, s{sT[0]}, 14
v_xor_b32 v{t3}, v{t1}, v{t2}
v_lshlrev_b32 v{t3}, 4, v{t3}
v_lshl_add_u32 v{vXS0}, v{t0}, 10, v{t3}
v_add_u32 v{vXS0}, s{sT[0]}, v{vXS0}
v_xor_b32 v{vXS1}, 64, v{vXS0}
v_add_u32 v{vXS1}, 8192, v{vXS1}
""")
def w_src(pitch, colA, colB):
    a(f"""
    v_lshrrev_b32 v{t0}, 3, v{L}
    s_lshl_b32 s{sT[0]}, s{sW}, 3
    v_add_u32 v{t0}, s{sT[0]}, v{t0}
    v_mul_u32_u24 v{t0}, {pitch}, v{t0}
    v_and_b32 v{t1}, 7, v{L}
    v_bfe_u32 v{t2}, v{L}, 4, 1
    v_lshlrev_b32 v{t2}, 1, v{t2}
    v_xor_b32 v{t1}, v{t1}, v{t2}
    v_lshlrev_b32 v{t1}, 4, v{t1}
    v_xor_b32 v{t2}, 64, v{t1}
    v_add3_u32 v{vWA}, v{t0}, v{t1}, s{colA}
    v_add3_u32 v{vWB}, v{t0}, v{t2}, s{colB}
    """)
def read_addrs():
    a(f"""
    v_and_b32 v{t0}, 31, v{L}
    s_and_b32 s{sT[0]}, s{sW}, 3
    s_lshl_b32 s{sT[0]}, s{sT[0]}, 12
    v_bfe_u32 v{t1}, v{L}, 1, 3
    v_lshrrev_b32 v{t2}, 5, v{L}
    v_xor_b32 v{t1}, v{t1}, v{t2}
    v_lshlrev_b32 v{t1}, 4, v{t1}
    v_lshl_add_u32 v{t0}, v{t0}, 7, v{t1}
    v_add_u32 v{vXR[0]}, s{sT[0]}, v{t0}
    v_xor_b32 v{vXR[1]}, 32, v{vXR[0]}
    v_xor_b32 v{vXR[2]}, 64, v{vXR[0]}
    v_xor_b32 v{vXR[3]}, 0x60, v{vXR[0]}
    """)
    a(f"""
    v_bfe_u32 v{t0}, v{L}, 4, 1
    v_bfe_u32 v{t1}, v{L}, 2, 2
    v_lshrrev_b32 v{t2}, 5, v{L}
    v_lshl_add_u32 v{t2}, v{t2}, 3, v{t1}
    v_lshlrev_b32 v{t2}, 7, v{t2}
    v_lshl_add_u32 v{t2}, v{t0}, 13, v{t2}
    v_lshrrev_b32 v{t1}, 1, v{t1}
    v_lshl_add_u32 v{t1}, v{t0}, 1, v{t1}
    s_lshr_b32 s{sT[0]}, s{sW}, 2
    s_lshl_b32 s{sT[0]}, s{sT[0]}, 1
    v_xor_b32 v{t1}, s{sT[0]}, v{t1}
    v_lshl_add_u32 v{t2}, v{t1}, 5, v{t2}
    v_and_b32 v{t0}, 1, v{L}
    v_bfe_u32 v{t1}, v{L}, 1, 1
    v_lshl_add_u32 v{t2}, v{t0}, 4, v{t2}
    v_lshl_add_u32 v{t2}, v{t1}, 3, v{t2}
    v_add_u32 v{vWR[0]}, {WR}, v{t2}
    v_xor_b32 v{vWR[1]}, 32, v{vWR[0]}
    """)
C0 = -2.0 * math.sqrt(2.0 / math.pi) * math.log2(math.e)
C1 = C0 * 0.044715
QS = 0.25 * math.log2(math.e)
a(f"""
s_mov_b32 s{sC1}, {fbits(C1):#x}
s_mov_b32 s{sC1+1}, {fbits(C1):#x}
s_mov_b32 s{sQS}, {fbits(QS):#x}
s_mov_b32 s{sQS+1}, {fbits(QS):#x}
v_mov_b32 v{vC0}, {fbits(C0):#x}
v_mov_b32 v{vC0+1}, {fbits(C0):#x}
""")
a("s_waitcnt lgkmcnt(0)")
mk_srd(SX, 4, 2048 * 1024)
mk_srd(SWG, 16, 512 * 3584)
mk_srd(SWU, 18, 512 * 3584)
mk_srd(SWQ, 6, 512 * 1024)

PG = 3584
def dma_ops(sig, path):
    p = sig >> 3
    isq = (path == 'Q' and p == 0)
    pitch = 1024 if isq else PG
    extra = 128 if (path == 'G' and p == 1) else 0
    sa, sb = (SWQ, SWQ) if isq else (SWG, SWU)
    slot = (sig & 3) * 16384
    ops = []
    pre = f"s_mul_i32 s{sWOF}, s{sROT}, {64*pitch}\n"
    if extra: pre += f"s_add_u32 s{sWOF}, s{sWOF}, {extra}\n"
    if p == 0: pre += f"s_lshl_b32 s{sXO}, s{sROT}, 7\n"
    post = f"s_add_u32 s{sROT}, s{sROT}, 1\n"
    post2 = f"s_and_b32 s{sROT}, s{sROT}, 7\n"
    if p == 0:
        ops.append(f"s_add_u32 m0, s{sMX}, {XR+slot}\n" + pre + f"buffer_load_dwordx4 v{vXS0}, {srd(SX)}, s{sXO} offen lds")
        ops.append(f"s_add_u32 m0, s{sMW}, {slot}\n" + post + f"buffer_load_dwordx4 v{vWA}, {srd(sa)}, s{sWOF} offen lds")
        ops.append(f"s_add_u32 m0, s{sMW}, {slot+8192}\n" + post2 + f"buffer_load_dwordx4 v{vWB}, {srd(sb)}, s{sWOF} offen lds")
        ops.append(f"s_add_u32 m0, s{sMX}, {XR+slot+1024}\nbuffer_load_dwordx4 v{vXS1}, {srd(SX)}, s{sXO} offen lds")
    else:
        ops.append(f"s_add_u32 m0, s{sMW}, {slot}\n" + pre + f"buffer_load_dwordx4 v{vWA}, {srd(sa)}, s{sWOF} offen lds")
        ops.append(f"s_add_u32 m0, s{sMW}, {slot+8192}\n" + post + post2 + f"buffer_load_dwordx4 v{vWB}, {srd(sb)}, s{sWOF} offen lds")
    return ops

def rest_srds():
    mk_srd(SWS, 28, WS_SIZE)
    mk_srd(SDBG, 26, 256)
    mk_srd(SWD, 20, 1792 * 1024)
    mk_srd(SWO, 12, 512 * 1024)
    mk_srd(SOUT, 24, 2048 * 1024)

def reads(sig, h):
    slot = (sig & 3) * 16384
    out = []
    for kk in range(2):
        ks = 2 * h + kk
        if sig < 8:
            out.append(f"ds_read_b128 {vr(XF + 4*(4*sig+ks), 4)}, v{vXR[ks]} offset:{XR+slot}")
        for b in range(2):
            for e in range(2):
                out.append(f"ds_read_b64_tr_b16 {vr(F[h] + 8*kk + 4*b + 2*e, 2)}, v{vWR[b]} offset:{slot + ks*2048 + e*512}")
    return out

def mfmas(sig, h):
    out = []
    acc = ACC[sig >> 3]
    for kk in range(2):
        ks = 2 * h + kk
        for b in range(2):
            d = vr(acc + 16 * b, 16)
            c = "0" if ((sig & 7) == 0 and ks == 0) else d
            out.append(f"v_mfma_f32_32x32x16_bf16 {d}, {vr(F[h] + 8*kk + 4*b, 4)}, {vr(XF + 4*(4*(sig&7)+ks), 4)}, {c}")
    return out

def gelu_pair(base, j, T=vGT, pk=True):
    G = vr(base + 2 * j, 2); U = vr(base + 8 + 2 * j, 2); TT = vr(T, 2)
    g0, g1, u0, u1 = base + 2 * j, base + 2 * j + 1, base + 8 + 2 * j, base + 9 + 2 * j
    if pk:
        return [f"v_pk_mul_f32 {TT}, {G}, {G}",
                f"v_pk_fma_f32 {TT}, {TT}, s[{sC1}:{sC1+1}], {vr(vC0,2)}",
                f"v_pk_mul_f32 {TT}, {TT}, {G}",
                f"v_exp_f32 v{T}, v{T}",
                f"v_exp_f32 v{T+1}, v{T+1}",
                f"v_pk_mul_f32 {G}, {G}, {U}",
                f"v_pk_add_f32 {TT}, {TT}, 1.0 op_sel_hi:[1,0]",
                f"v_rcp_f32 v{T}, v{T}",
                f"v_rcp_f32 v{T+1}, v{T+1}",
                f"v_pk_mul_f32 {G}, {G}, {TT}",
                f"v_cvt_pk_bf16_f32 v{base+j}, v{g0}, v{g1}"]
    return [f"v_mul_f32 v{T}, v{g0}, v{g0}\nv_mul_f32 v{T+1}, v{g1}, v{g1}",
            f"v_fma_f32 v{T}, v{T}, s{sC1}, v{vC0}\nv_fma_f32 v{T+1}, v{T+1}, s{sC1}, v{vC0}",
            f"v_mul_f32 v{T}, v{T}, v{g0}\nv_mul_f32 v{T+1}, v{T+1}, v{g1}",
            f"v_exp_f32 v{T}, v{T}",
            f"v_exp_f32 v{T+1}, v{T+1}",
            f"v_mul_f32 v{g0}, v{g0}, v{u0}\nv_mul_f32 v{g1}, v{g1}, v{u1}",
            f"v_add_f32 v{T}, 1.0, v{T}\nv_add_f32 v{T+1}, 1.0, v{T+1}",
            f"v_rcp_f32 v{T}, v{T}",
            f"v_rcp_f32 v{T+1}, v{T+1}",
            f"v_mul_f32 v{g0}, v{g0}, v{T}\nv_mul_f32 v{g1}, v{g1}, v{T+1}",
            f"v_cvt_pk_bf16_f32 v{base+j}, v{g0}, v{g1}"]

def interleave(ms, fill):
    n = max(len(ms), 1)
    k = 0
    for i in range(n):
        if i < len(ms): a(ms[i])
        upto = (len(fill) * (i + 1) + n - 1) // n
        while k < upto:
            a(fill[k]); k += 1

DEPTH = 3
def extra_reads(sig):
    slot = (sig & 3) * 16384
    out = []
    for j in range(2):
        out.append(f"ds_read_b128 {vr(XE + 4*j, 4)}, v{vXE[j]} offset:{XR+slot}")
        for e in range(2):
            out.append(f"ds_read_b64_tr_b16 {vr(WE + 4*j + 2*e, 2)}, v{vWE} offset:{sig*2048 + j*1024 + e*128}")
    return out
def extra_mfmas(sig):
    return [f"v_mfma_f32_16x16x32_bf16 {vr(ACCE,4)}, {vr(WE+4*j,4)}, {vr(XE+4*j,4)}, {'0' if (sig==0 and j==0) else vr(ACCE,4)}" for j in range(2)]

def sched_of(sig):
    if OPT['pre'] == 3: l = [sig + 3]
    else: l = [sig + 2] if sig < 6 else ([8, 9] if sig == 6 else [sig + 3])
    return [x for x in l if x < 16]

vS0, vZ = 28, 29
def proj_path(path):
    tok = {}
    P = path
    def dma_groups(sg):
        d = dma_ops(sg, P)
        if P == 'Q' and sg < 8:
            d[0] = f"""
            s_cmp_lg_u32 s{sEXW}, {sg}
            s_cbranch_scc1 L_noex{sg}
            s_add_u32 m0, s{sMX}, {EX}
            s_nop 0
            buffer_load_dwordx4 v{vL16}, {srd(SEX)}, s{sEXO} offen lds
            buffer_load_dwordx4 v{vL16}, {srd(SEX)}, s{sEXO} offen offset:1024 lds
            L_noex{sg}:
            ;uncount 2
            """ + d[0]
        return d
    def emit(x):
        parts = x.split(";uncount 2")
        for k, part in enumerate(parts):
            a(part)
            if k < len(parts) - 1: a.vm -= 2
    if P == 'G':
        a(f"s_cmp_lg_u32 s2, {CLEAR_WG}\ns_cbranch_scc1 L_noclear")
        mk_srd(SWS, 28, WS_SIZE)
        a(f"""
        s_lshl_b32 s{sT[1]}, s{sW}, 13
        s_add_u32 s{sT[1]}, s{sT[1]}, {WS_F1}
        v_lshlrev_b32 v{t0}, 7, v{L}
        v_mov_b32 v{t1}, 0
        buffer_store_dword v{t1}, v{t0}, {srd(SWS)}, s{sT[1]} offen sc1
        L_noclear:
        """)
        a(f"s_mul_i32 s{sT[1]}, s{sQ}, 7\ns_lshl_b32 s{sT[2]}, s{sU}, 1\ns_add_u32 s{sT[1]}, s{sT[1]}, s{sT[2]}\ns_sub_u32 s{sT[1]}, s{sT[1]}, 1\ns_lshl_b32 s{sT[1]}, s{sT[1]}, 7")
        w_src(PG, sT[1], sT[1])
    else:
        a(f"s_lshl_b32 s{sT[1]}, s{sQ}, 8\ns_add_u32 s{sT[2]}, s{sT[1]}, 128")
        w_src(1024, sT[1], sT[2])
        a(f"""
        s_cmp_eq_u32 s{sQ}, 1
        s_cselect_b64 s[{SEX}:{SEX+1}], s[10:11], s[8:9]
        s_mov_b32 s{SEX+2}, 16384
        s_mov_b32 s{SEX+3}, 0x20000
        s_add_u32 s{sT[3]}, s{sW}, s{sROT0}
        s_and_b32 s{sT[3]}, s{sT[3]}, 7
        s_lshl_b32 s{sEXO}, s{sT[3]}, 11
        s_cmp_lt_u32 s{sQ}, 2
        s_cselect_b32 s{sEXW}, s{sW}, 64
        s_cmp_lg_u32 s{sQ}, 2
        s_cbranch_scc1 L_exdone
        s_mov_b32 s{SEX}, s22
        s_mov_b32 s{SEX+1}, s23
        s_mov_b32 s{SEX+2}, 1024
        s_lshl_b32 s{sT[3]}, s{sT[3]}, 7
        v_lshlrev_b32 v{t0}, 1, v{L}
        buffer_load_ushort v{vS0}, v{t0}, {srd(SEX)}, s{sT[3]} offen
        L_exdone:
        """)
    for sig in range(OPT['pre']):
        for o in dma_groups(sig): emit(o)
        tok[sig] = a.lastvm()
        if sig == 0:
            rest_srds()
            read_addrs()
            a(f"v_mov_b32 v{vZ}, 0")
            if P == 'Q':
                a(f"""
                v_and_b32 v{t0}, 15, v{L}
                v_bfe_u32 v{t1}, v{L}, 1, 3
                v_lshrrev_b32 v{t2}, 4, v{L}
                v_xor_b32 v{t1}, v{t1}, v{t2}
                v_lshlrev_b32 v{t1}, 4, v{t1}
                v_lshl_add_u32 v{t0}, v{t0}, 7, v{t1}
                v_add_u32 v{vXE[0]}, s{sMX}, v{t0}
                v_xor_b32 v{vXE[1]}, 64, v{vXE[0]}
                v_and_b32 v{t0}, 15, v{L}
                v_lshlrev_b32 v{t0}, 3, v{t0}
                v_lshl_add_u32 v{t0}, v{t2}, 8, v{t0}
                v_add_u32 v{vWE}, {EX}, v{t0}
                s_lshl_b32 s{sT[4]}, s{sTI}, 2
                s_and_b32 s{sT[5]}, s{sW}, 3
                s_add_u32 s{sT[4]}, s{sT[4]}, s{sT[5]}
                s_lshl_b32 s{sT[4]}, s{sT[4]}, 5
                s_lshl_b32 s{sT[5]}, s{sQ}, 3
                s_add_u32 s{sT[4]}, s{sT[4]}, s{sT[5]}
                s_lshr_b32 s{sT[5]}, s{sW}, 2
                s_lshl_b32 s{sT[5]}, s{sT[5]}, 1
                s_add_u32 s{sT[4]}, s{sT[4]}, s{sT[5]}
                s_lshl_b32 s{sT[4]}, s{sT[4]}, 10
                """)
    stamp(0)
    qtok = None
    QF = OPT['qflag']
    for sig in range(16):
        a.wait(tok[sig])
        if P == 'Q' and sig == 0:
            a(f"""
            s_cmp_lg_u32 s{sQ}, 2
            s_cbranch_scc1 L_nogw
            v_lshlrev_b32 v{t0}, 5, v{L}
            v_add_u32 v{t0}, s{sMX}, v{t0}
            v_add_u32 v{t0}, {EX}, v{t0}
            ds_write_b16 v{t0}, v{vS0}
            s_waitcnt lgkmcnt(0)
            L_nogw:
            """)
        if P == 'Q' and sig == QF: a.wait(qtok)
        a("s_barrier")
        if sig == 1: stamp(1)
        if sig == 8: stamp(2)
        if sig < 11: stamp(sig, 1)
        if sig >= 6: stamp(sig - 6, 2)
        if P == 'G' and sig == 0:
            a(f"""
            s_lshl_b32 s{sT[1]}, s{sW}, 8
            s_or_b32 s{sT[1]}, s{sT[1]}, s2
            s_cmp_lg_u32 s{sT[1]}, {CLEAR_WG}
            s_cbranch_scc1 L_nos0
            v_mov_b32 v{t0}, 1
            s_mov_b64 exec, 1
            buffer_store_dword v{t0}, v{vZ}, {srd(SDBG)}, 0 offen sc1
            s_mov_b64 exec, -1
            L_nos0:
            """)
            a.vm -= 1
        if sig == 7:
            a(f"""
            s_cmp_lg_u32 s{sW}, 0
            s_cbranch_scc1 L_nos0l{P}
            buffer_load_dword v{vS0}, v{vZ}, {srd(SDBG)}, 0 offen sc1
            L_nos0l{P}:
            """)
            a.vm -= 1; s0pos = a.vm
        if sig == QF:
            assert a.vm_done > s0pos
            a(f"""
            s_cmp_lg_u32 s{sW}, 0
            s_cbranch_scc1 L_noflag1{P}
            s_mov_b32 s{sT[1]}, 0
            L_s0poll{P}:
            v_cmp_eq_u32 vcc, 0, v{vS0}
            s_cbranch_vccz L_s0done{P}
            buffer_load_dword v{vS0}, v{vZ}, {srd(SDBG)}, 0 offen sc1
            s_add_u32 s{sT[1]}, s{sT[1]}, 1
            s_cmp_lt_u32 s{sT[1]}, {SPIN}
            s_waitcnt vmcnt(0)
            s_cbranch_scc1 L_s0poll{P}
            L_s0done{P}:
            """)
            a.vm -= 1
            if P == 'Q':
                a(f"""
                s_lshl_b32 s{sT[5]}, s{sQ}, 4
                s_add_u32 s{sT[5]}, s{sT[5]}, s{sTI}
                s_lshl_b32 s{sT[5]}, s{sT[5]}, 7
                s_add_u32 s{sT[5]}, s{sT[5]}, {WS_F1}
                v_mov_b32 v{t0}, 1
                s_mov_b64 exec, 1
                buffer_store_dword v{t0}, v{vZ}, {srd(SWS)}, s{sT[5]} offen sc1
                s_mov_b64 exec, -1
                """)
                a.vm -= 1
            a(f"L_noflag1{P}:")
        if sig == 15:
            a(f"""
            s_cmp_lg_u32 s{sW}, 0
            s_cbranch_scc1 L_nopoll0{P}
            s_lshr_b32 s{sT[0]}, s{sI}, 1
            s_lshl_b32 s{sT[3]}, 0x10001, s{sT[0]}
            s_mov_b32 s{sT[2]}, -1
            s_mov_b32 s{sT[1]}, {WS_F1}
            v_lshlrev_b32 v{t1}, 7, v{L}
            v_mov_b32 v{t0}, 1
            s_mov_b64 exec, s[{sT[2]}:{sT[3]}]
            buffer_load_dword v{t0}, v{t1}, {srd(SWS)}, s{sT[1]} offen sc1
            s_mov_b64 exec, -1
            L_nopoll0{P}:
            """)
        d = []
        for sg in sched_of(sig):
            dg = dma_groups(sg)
            d += [(x, sg if k == len(dg) - 1 else None) for k, x in enumerate(dg)]
        def dma_emit(item):
            emit(item[0])
            if item[1] is not None: tok[item[1]] = a.lastvm()
        g = gelu_pair(ACC[0] + 16 * ((sig - 8) >> 2), (sig - 8) & 3, pk=OPT['pk']) if (P == 'G' and sig >= 8) else []
        m1 = mfmas(sig - 1, 1) if sig > 0 else []
        if P == 'Q' and 0 < sig <= 8: m1 = extra_mfmas(sig - 1)[:1] + m1[:2] + extra_mfmas(sig - 1)[1:] + m1[2:]
        if OPT['sprio']: a("s_setprio 1")
        if P == 'Q' and 8 in sched_of(sig):
            a(f"s_mul_i32 s{sT[1]}, s{sQ}, {7*128}")
            w_src(PG, sT[1], sT[1])
        late = sig < OPT.get('late', 1)
        fill = [lambda r=r: a(r) for r in reads(sig, 0)]
        box = {}
        fill.append(lambda: box.update(h0=a.lastlg()))
        if not late: fill += [lambda it=it: dma_emit(it) for it in d]
        if sig == 13: fill.append(lambda: early_stores(P))
        n = max(len(m1) - 1, 1)
        wts = [1] * (len(reads(sig, 0))) + [0] + [OPT.get('dw', 3)] * (len(fill) - len(reads(sig, 0)) - 1)
        tot = sum(wts); k = 0; accw = 0
        for i in range(n):
            if i < len(m1) - 1: a(m1[i])
            while k < len(fill) and (accw + wts[k] <= tot * (i + 1) / n + 0.5 or i == n - 1):
                fill[k](); accw += wts[k]; k += 1
        if m1: a(m1[-1])
        if OPT['sprio']: a("s_setprio 0")
        r1 = reads(sig, 1)
        if P == 'Q' and sig < 8: r1 = r1 + extra_reads(sig)
        if g:
            k = 0
            for i, r in enumerate(r1):
                a(r)
                if i >= 1 and k < len(g): a(g[k]); k += 1
            for x in g[k:]: a(x)
        else:
            for r in r1: a(r)
        if P == 'Q' and sig == 8:
            q_epilogue()
            qtok = a.lastvm()
        a.wait(box['h0'])
        for x in mfmas(sig, 0): a(x)
        if late:
            for it in d: dma_emit(it)
        a.wait(a.lastlg())

sHO = 3
def early_stores(P):
    a(f"""
    s_lshr_b32 s{sT[3]}, s{sW}, 2
    s_lshl_b32 s{sT[0]}, s{sTI}, 2
    s_and_b32 s{sT[1]}, s{sW}, 3
    s_add_u32 s{sT[0]}, s{sT[0]}, s{sT[1]}
    s_lshl_b32 s{sT[8]}, s{sT[0]}, 5
    s_mul_i32 s{sT[0]}, s{sT[0]}, 112
    s_mul_i32 s{sT[1]}, s{sQ}, 28
    s_add_u32 s{sT[0]}, s{sT[0]}, s{sT[1]}
    s_lshl_b32 s{sT[1]}, s{sU}, 3
    s_add_u32 s{sT[0]}, s{sT[0]}, s{sT[1]}
    s_lshl_b32 s{sT[1]}, s{sT[3]}, 1
    s_add_u32 s{sT[0]}, s{sT[0]}, s{sT[1]}
    s_lshl_b32 s{sT[0]}, s{sT[0]}, 10
    s_add_u32 s{sHO}, s{sT[0]}, {WS_H}
    """)
    if P == 'G':
        a(f"s_sub_u32 s{sT[1]}, s{sHO}, 4096\nbuffer_store_dwordx4 {vr(ACC[0],4)}, v{vL16}, {srd(SWS)}, s{sT[1]} offen sc1")
    a(f"""
    s_lshl_b32 s{sT[1]}, s{sQ}, 2
    s_add_u32 s{sT[1]}, s{sT[1]}, s{sU}
    s_lshl_b32 s{sT[9]}, s{sTI}, 4
    s_add_u32 s{sT[9]}, s{sT[9]}, s{sT[1]}
    s_lshl_b32 s{sT[1]}, s{sT[1]}, 1
    s_add_u32 s{sT[8]}, s{sT[8]}, s{sT[1]}
    s_add_u32 s{sT[8]}, s{sT[8]}, s{sT[3]}
    s_lshl_b32 s{sT[8]}, s{sT[8]}, 10
    s_add_u32 s{sT[8]}, s{sT[8]}, {WS_O}
    v_mov_b32 v24, -1
    v_mov_b32 v25, -1
    v_mov_b32 v26, -1
    v_mov_b32 v27, -1
    buffer_store_dwordx4 v[24:27], v{vL16}, {srd(SWS)}, s{sT[8]} offen sc1
    """)

def q_epilogue():
    a(f"s_add_u32 s{sT[5]}, s{sT[4]}, {WS_Q}\ns_add_u32 s{sT[6]}, s{sT[4]}, {WS_Q + 4096}")
    tq, tn, ta = vTMP[4:7]
    lg0 = a.lg
    a(f"""
    v_lshrrev_b32 v{tq}, 4, v{L}
    v_and_b32 v{tn}, 15, v{L}
    s_lshl_b32 s{sT[7]}, s{sTI}, 2
    s_lshr_b32 s{sT[8]}, s{sW}, 1
    s_add_u32 s{sT[7]}, s{sT[7]}, s{sT[8]}
    s_lshl_b32 s{sT[7]}, s{sT[7]}, 11
    s_and_b32 s{sT[8]}, s{sW}, 1
    s_cmp_eq_u32 s{sQ}, 0
    s_cselect_b32 s{sT[0]}, s{sQS}, 1.0
    v_mul_f32 v{XE}, s{sT[0]}, v{ACCE}
    v_mul_f32 v{XE+1}, s{sT[0]}, v{ACCE+1}
    v_mul_f32 v{XE+2}, s{sT[0]}, v{ACCE+2}
    v_mul_f32 v{XE+3}, s{sT[0]}, v{ACCE+3}
    v_cvt_pk_bf16_f32 v{XE}, v{XE}, v{XE+1}
    v_cvt_pk_bf16_f32 v{XE+1}, v{XE+2}, v{XE+3}
    s_cmp_eq_u32 s{sQ}, 1
    s_cbranch_scc1 L_pubV
    s_cmp_eq_u32 s{sQ}, 2
    s_cbranch_scc1 L_pubG
    s_cmp_eq_u32 s{sQ}, 3
    s_cbranch_scc1 L_pubE
    s_lshl_b32 s{sT[8]}, s{sT[8]}, 8
    s_add_u32 s{sT[7]}, s{sT[7]}, s{sT[8]}
    v_lshrrev_b32 v{ta}, 1, v{tq}
    v_lshlrev_b32 v{ta}, 9, v{ta}
    v_lshl_add_u32 v{ta}, v{tn}, 4, v{ta}
    v_and_b32 v{tq}, 1, v{tq}
    v_lshl_add_u32 v{ta}, v{tq}, 3, v{ta}
    buffer_store_dwordx2 {vr(XE,2)}, v{ta}, {srd(SWS)}, s{sT[7]} offen sc1
    s_branch L_pubE
    L_pubV:
    s_lshl_b32 s{sT[8]}, s{sT[8]}, 9
    s_add_u32 s{sT[7]}, s{sT[7]}, s{sT[8]}
    s_add_u32 s{sT[8]}, s{sMX}, {EX}
    v_lshlrev_b32 v{ta}, 5, v{tn}
    v_lshl_add_u32 v{ta}, v{tq}, 3, v{ta}
    v_add_u32 v{ta}, s{sT[8]}, v{ta}
    ds_write_b64 v{ta}, {vr(XE,2)}
    v_lshrrev_b32 v{ta}, 2, v{L}
    v_lshlrev_b32 v{ta}, 5, v{ta}
    v_and_b32 v{XE+2}, 1, v{L}
    v_lshl_add_u32 v{ta}, v{XE+2}, 4, v{ta}
    v_bfe_u32 v{XE+2}, v{L}, 1, 1
    v_lshl_add_u32 v{ta}, v{XE+2}, 3, v{ta}
    v_add_u32 v{ta}, s{sT[8]}, v{ta}
    s_waitcnt lgkmcnt(0)
    ds_read_b64_tr_b16 {vr(XE,2)}, v{ta}
    v_lshrrev_b32 v{ta}, 1, v{tq}
    v_lshlrev_b32 v{ta}, 8, v{ta}
    v_lshl_add_u32 v{ta}, v{tn}, 4, v{ta}
    v_and_b32 v{tq}, 1, v{tq}
    v_lshl_add_u32 v{ta}, v{tq}, 3, v{ta}
    s_waitcnt lgkmcnt(0)
    buffer_store_dwordx2 {vr(XE,2)}, v{ta}, {srd(SWS)}, s{sT[7]} offen offset:1024 sc1
    s_branch L_pubE
    L_pubG:
    v_mul_f32 v{ta}, {fbits(-math.log2(math.e)):#x}, v{ACCE}
    v_exp_f32 v{ta}, v{ta}
    s_lshl_b32 s{sT[7]}, s{sTI}, 3
    s_add_u32 s{sT[7]}, s{sT[7]}, s{sW}
    v_add_f32 v{ta}, 1.0, v{ta}
    v_rcp_f32 v{ta}, v{ta}
    s_lshl_b32 s{sT[7]}, s{sT[7]}, 6
    s_add_u32 s{sT[7]}, s{sT[7]}, {WS_G}
    v_lshlrev_b32 v{tn}, 2, v{tn}
    s_mov_b64 exec, 0xffff
    buffer_store_dword v{ta}, v{tn}, {srd(SWS)}, s{sT[7]} offen sc1
    s_mov_b64 exec, -1
    L_pubE:
    """)
    a.vm -= 3
    a.lg = lg0
    for b in range(2):
        for hf in range(2):
            base = ACC[0] + 16 * b + 8 * hf
            for j in range(4):
                a(f"v_cvt_pk_bf16_f32 v{base+j}, v{base+2*j}, v{base+2*j+1}")
            a(f"buffer_store_dwordx4 {vr(base,4)}, v{vL16}, {srd(SWS)}, s{sT[5+hf]} offen offset:{1024*b} sc1")

a(f"s_cmp_eq_u32 s{sU}, 0\ns_cbranch_scc1 L_pathQ")
proj_path('G')
a("L_join:")
a.forget()

QA, QB, KF, V1, V2 = 128, 132, 136, 140, 144
vG, vIDX, vAK, vAV1, vAV2, vKVS = 148, 150, 151, 152, 153, 154
SA, SB, OA, OB = 160, 176, 192, 208
for m in mfmas(15, 1): a(m)
stamp(3); stamp(10, 2)
a(f"""
s_cmp_lg_u32 s{sW}, 0
s_cbranch_scc1 L_s1done
s_mov_b32 s{sT[0]}, 0
L_s1poll:
s_waitcnt vmcnt(0)
v_cmp_ne_u32 vcc, 1, v{t0}
s_cbranch_vccz L_s1done
s_mov_b64 exec, vcc
buffer_load_dword v{t0}, v{t1}, {srd(SWS)}, s{sT[1]} offen sc1
s_mov_b64 exec, -1
s_add_u32 s{sT[0]}, s{sT[0]}, 1
s_cmp_lt_u32 s{sT[0]}, {SPIN}
s_cbranch_scc1 L_s1poll
s_waitcnt vmcnt(0)
L_s1done:
s_barrier
""")
a.forget()
stamp(4)
a(f"""
s_lshl_b32 s{sT[0]}, s{sI}, 1
s_and_b32 s{sT[1]}, s{sW}, 1
s_add_u32 s{sT[1]}, s{sT[0]}, s{sT[1]}
s_lshl_b32 s{sT[2]}, s{sT[1]}, 5
s_lshl_b32 s{sT[3]}, s{sJ}, 2
s_add_u32 s{sT[2]}, s{sT[2]}, s{sT[3]}
s_and_b32 s{sT[3]}, s{sW}, 2
s_add_u32 s{sT[2]}, s{sT[2]}, s{sT[3]}
s_lshr_b32 s{sT[3]}, s{sW}, 2
s_add_u32 s{sT[2]}, s{sT[2]}, s{sT[3]}
s_lshl_b32 s{sOO}, s{sT[2]}, 10
s_add_u32 s{sT[4]}, s{sOO}, {WS_Q}
s_xor_b32 s{sT[5]}, s{sT[4]}, 1024
buffer_load_dwordx4 {vr(QA,4)}, v{vL16}, {srd(SWS)}, s{sT[4]} offen sc1
buffer_load_dwordx4 {vr(QB,4)}, v{vL16}, {srd(SWS)}, s{sT[5]} offen sc1
""")
a(f"""
s_and_b32 s{sT[4]}, s{sW}, 1
s_bfe_u32 s{sT[5]}, s{sW}, 0x10001
s_lshl_b32 s{sT[6]}, s{sT[3]}, 16
s_lshl_b32 s{sT[7]}, s{sT[4]}, 10
s_add_u32 s{sT[6]}, s{sT[6]}, s{sT[7]}
v_add_u32 v{vKVS}, s{sT[6]}, v{vL16}
s_lshl_b32 s{sT[6]}, s{sT[3]}, 5
s_add_u32 s{sT[6]}, s{sT[6]}, s{sT[5]}
s_mul_i32 s{sT[6]}, s{sT[6]}, {REC}
s_add_u32 s{sMX}, s{sT[6]}, s{sT[7]}
s_lshr_b32 s{sT[6]}, s2, 3
s_add_u32 s{sT[6]}, s{sT[6]}, s{sT[5]}
s_and_b32 s{sT[6]}, s{sT[6]}, 31
s_lshl_b32 s{sXO}, s{sT[6]}, 11
""")
kvtok = {}
def kv_step(m):
    if m == 0:
        a(f"s_mov_b32 m0, s{sMX}\ns_nop 0")
    else:
        a(f"s_add_u32 s{sXO}, s{sXO}, 4096\ns_add_u32 m0, s{sMX}, {2*m*REC}\ns_and_b32 s{sXO}, s{sXO}, 0xffff")
    kvtok[m] = a(f"buffer_load_dwordx4 v{vKVS}, {srd(SWS)}, s{sXO} offen sc1 lds")
B1, B2 = OPT['b1'], OPT['b2']
KV_FIRST = B1 // 2 + 1
KV_PRE = B2 // 2 + 1
for m in range(KV_FIRST): kv_step(m)
a(f"""
v_and_b32 v{t0}, 31, v{L}
v_lshlrev_b32 v{t0}, 2, v{t0}
s_lshl_b32 s{sT[1]}, s{sT[1]}, 7
s_add_u32 s{sT[1]}, s{sT[1]}, {WS_G}
buffer_load_dword v{vG}, v{t0}, {srd(SWS)}, s{sT[1]} offen sc1
""")
a(f"""
v_mov_b32 v24, 0x3f803f80
v_mov_b32 v25, 0x3f803f80
v_mov_b32 v26, 0x3f803f80
v_mov_b32 v27, 0x3f803f80
v_mul_u32_u24 v{t3}, {REC}, v{L}
ds_write_b128 v{t3}, v[24:27] offset:2048
s_mul_i32 s{sT[3]}, s{sT[3]}, {HALF}
v_add_u32 v{vAK}, s{sT[3]}, v{vL16}
v_and_b32 v{t0}, 15, v{L}
v_lshrrev_b32 v{t1}, 5, v{L}
v_lshlrev_b32 v{t0}, 4, v{t0}
v_lshl_add_u32 v{t0}, v{t1}, 8, v{t0}
v_add_u32 v{t1}, 1024, v{t0}
v_add_u32 v{t2}, 1536, v{t0}
v_mov_b32 v{t3}, 2048
s_mov_b32 vcc_lo, 0xffff0000
s_mov_b32 vcc_hi, 0xffff0000
v_cndmask_b32 v{t1}, v{t1}, v{t3}, vcc
v_cndmask_b32 v{t2}, v{t2}, v{t3}, vcc
v_add_u32 v{vAV1}, s{sT[3]}, v{t1}
v_add_u32 v{vAV2}, s{sT[3]}, v{t2}
v_mov_b32 v{vIDX}, 0xdddddddd
""")
for r in range(0, 16, 2): a(f"v_mov_b64 {vr(OA+r,2)}, 0\nv_mov_b64 {vr(OB+r,2)}, 0")
for b in range(2):
    for jp in range(2):
        g0 = gelu_pair(ACC[1] + 16 * b, 2 * jp, vGT, pk=OPT.get('pk2', 1)); g1 = gelu_pair(ACC[1] + 16 * b, 2 * jp + 1, 30, pk=OPT.get('pk2', 1))
        for k, (x, y) in enumerate(zip(g0, g1)):
            a(x); a(y)
tokbox = {}
def h_store(k):
    if k == 0:
        a(f"""
        s_cmp_eq_u32 s{sU}, 0
        s_cbranch_scc1 L_noh1
        s_sub_u32 s{sT[1]}, s{sHO}, 4096
        buffer_store_dwordx4 {vr(ACC[0]+16,4)}, v{vL16}, {srd(SWS)}, s{sT[1]} offen offset:1024 sc1
        L_noh1:
        """)
        a.vm -= 1
    else:
        tokbox['h'] = a(f"buffer_store_dwordx4 {vr(ACC[1]+16*(k-1),4)}, v{vL16}, {srd(SWS)}, s{sHO} offen offset:{1024*(k-1)} sc1")

DACC = 64
HF = [32, 40, 48, 56]
WF = [224, 232]
vDS, vDR0, vDR1, vH0, vH1, vTCH, vF2 = 1, 2, 3, 4, 5, 6, 7
def ring_base(dst, w, tmp):
    a(f"""
    s_lshl_b32 s{dst}, s{w}, 13
    s_cmp_ge_u32 s{w}, 3
    s_cselect_b32 s{tmp}, {HALF - 3*8192}, 0
    s_add_u32 s{dst}, s{dst}, s{tmp}
    s_cmp_ge_u32 s{w}, 6
    s_cselect_b32 s{tmp}, {HALF - 3*8192}, 0
    s_add_u32 s{dst}, s{dst}, s{tmp}
    """)
assert B2 * REC >= 3 * 8192 + 2048
vTRP = 8
ring_base(sRING, sW, sT[1])
a(f"""
v_lshrrev_b32 v{t0}, 3, v{L}
v_and_b32 v{t1}, 7, v{L}
v_bfe_u32 v{t2}, v{L}, 4, 1
v_lshlrev_b32 v{t3}, 2, v{t2}
v_xor_b32 v{t1}, v{t1}, v{t3}
v_lshlrev_b32 v{t1}, 4, v{t1}
v_lshl_add_u32 v{t0}, v{t0}, 10, v{t1}
s_lshl_b32 s{sT[1]}, s{sJ}, 7
v_add_u32 v{vDS}, s{sT[1]}, v{t0}
v_bfe_u32 v{t0}, v{L}, 2, 2
v_lshrrev_b32 v{t1}, 5, v{L}
v_lshl_add_u32 v{t1}, v{t1}, 3, v{t0}
v_lshlrev_b32 v{t1}, 7, v{t1}
v_lshrrev_b32 v{t0}, 1, v{t0}
v_lshl_add_u32 v{t1}, v{t0}, 6, v{t1}
v_lshl_add_u32 v{t1}, v{t2}, 5, v{t1}
v_and_b32 v{t0}, 3, v{L}
v_lshl_add_u32 v{vTRP}, v{t0}, 3, v{t1}
v_add_u32 v{vDR0}, s{sRING}, v{vTRP}
v_xor_b32 v{vDR1}, 64, v{vDR0}
s_and_b32 s{sT[1]}, s{sW}, 1
s_mul_i32 s{sT[1]}, s{sT[1]}, {112*1024}
s_mul_i32 s{sT[2]}, s{sI}, 224
s_mul_i32 s{sT[3]}, s{sW}, 14
s_add_u32 s{sT[2]}, s{sT[2]}, s{sT[3]}
s_lshl_b32 s{sT[2]}, s{sT[2]}, 10
s_add_u32 s{sT[2]}, s{sT[2]}, {WS_H}
s_add_u32 s{sT[4]}, s{sT[2]}, s{sT[1]}
v_add_u32 v{vH0}, s{sT[4]}, v{vL16}
s_sub_u32 s{sT[4]}, s{sT[2]}, s{sT[1]}
s_add_u32 s{sT[4]}, s{sT[4]}, {112*1024}
v_add_u32 v{vH1}, s{sT[4]}, v{vL16}
s_lshl_b32 s{sMW}, s{sT[3]}, 14
v_lshlrev_b32 v{vTCH}, 7, v{L}
v_and_b32 v{vF2}, 0x7ff, v{vTCH}
s_mul_i32 s{sROT}, s{sJ}, 7
s_lshr_b32 s{sROT}, s{sROT}, 2
s_mul_i32 s{sT[1]}, s{sU}, 7
s_lshr_b32 s{sT[1]}, s{sT[1]}, 1
s_add_u32 s{sROT}, s{sROT}, s{sT[1]}
s_cmp_ge_u32 s{sROT}, 14
s_cselect_b32 s{sT[1]}, 14, 0
s_sub_u32 s{sROT}, s{sROT}, s{sT[1]}
s_lshl_b32 s{sROT}, s{sROT}, 10
""")
a.wait(kvtok[KV_FIRST - 1], a.lastlg())
a("s_barrier")
stamp(5)

def qk(S, Q): return f"v_mfma_f32_32x32x16_bf16 {vr(S,16)}, {vr(KF,4)}, {vr(Q,4)}, 0"
def pv(O, V, S): return f"v_smfmac_f32_32x32x32_bf16 {vr(O,16)}, {vr(V,4)}, {vr(S,8)}, v{vIDX}"
def rdK(t): return a(f"ds_read_b128 {vr(KF,4)}, v{vAK} offset:{t*REC}")
def rdV1(t): return a(f"ds_read_b128 {vr(V1,4)}, v{vAV1} offset:{t*REC}")
def rdV2(t): return a(f"ds_read_b128 {vr(V2,4)}, v{vAV2} offset:{t*REC}")
NT = 32
wtok, htok, rtok = {}, {}, {}
def w_load_a(u):
    slot = (u & 3) * 2048
    if u < 14:
        a(f"s_lshl4_add_u32 s{sWOF}, s{sROT}, s{sMW}\ns_add_u32 m0, s{sRING}, {slot}\ns_add_u32 s{sT[1]}, s{sWOF}, 8192")
    else:
        if u == 14: a(f"s_lshl_b32 s{sWOF}, s{sW}, 16")
        else: a(f"s_add_u32 s{sWOF}, s{sWOF}, 16384")
        a(f"s_add_u32 m0, s{sRING}, {slot}\ns_add_u32 s{sT[1]}, s{sWOF}, 8192")
    a(f"buffer_load_dwordx4 v{vDS}, {srd(SWD if u < 14 else SWO)}, s{sWOF} offen lds")
def w_load_b(u):
    slot = (u & 3) * 2048
    a(f"s_add_u32 m0, s{sRING}, {slot+1024}")
    if u < 14:
        a(f"buffer_load_dwordx4 {vr(HF[u&3],4)}, v{vH0}, {srd(SWS)}, s{sROT} offen sc1")
    wtok[u] = a(f"buffer_load_dwordx4 v{vDS}, {srd(SWD if u < 14 else SWO)}, s{sT[1]} offen lds")
def h_load_b(u):
    htok[u] = a(f"buffer_load_dwordx4 {vr(HF[u&3]+4,4)}, v{vH1}, {srd(SWS)}, s{sROT} offen sc1")
    if u < 13:
        a(f"s_add_u32 s{sROT}, s{sROT}, 1024\ns_cmp_eq_u32 s{sROT}, {14*1024}\ns_cselect_b32 s{sROT}, 0, s{sROT}")
def w_read(u, b):
    if b == 0: a.wait(wtok[u], htok[u])
    slot = (u & 3) * 2048
    for e in range(2):
        rtok[u, b] = a(f"ds_read_b64_tr_b16 {vr(WF[u&1] + 4*b + 2*e, 2)}, v{(vDR0, vDR1)[b]} offset:{slot + e*512}")
def d_mfma(u, k):
    tb, b = k >> 1, k & 1
    a.wait(rtok[u, 1])
    d = vr(DACC + 32 * tb + 16 * b, 16)
    a(f"v_mfma_f32_32x32x16_bf16 {d}, {vr(WF[u&1]+4*b,4)}, {vr(HF[u&3]+4*tb,4)}, {'0' if u == 0 else d}")

ev = {}
def at(pos, f):
    ev.setdefault(pos, []).append(f)
p = 3
VS = OPT.get('vs', 8)
for k in range(3):
    at(p, lambda k=k: h_store(k)); p += VS // 2
for m in range(KV_FIRST, 16):
    at(p, lambda m=m: kv_step(m)); p += VS
p = max(p, 32 * B1 + 3)
def touch():
    a(f"""
    s_cmp_ge_u32 s{sW}, 4
    s_cbranch_scc1 L_notouch
    s_lshr_b32 s{sT[0]}, s2, 3
    s_mul_i32 s{sT[1]}, s{sT[0]}, 57344
    s_lshl_b32 s{sT[2]}, s{sW}, 14
    s_add_u32 s{sT[1]}, s{sT[1]}, s{sT[2]}
    buffer_load_dword v9, v{vTCH}, {srd(SWD)}, s{sT[1]} offen
    s_add_u32 s{sT[1]}, s{sT[1]}, 8192
    s_lshl_b32 s{sT[0]}, s{sT[0]}, 14
    s_lshl_b32 s{sT[2]}, s{sW}, 12
    buffer_load_dword v10, v{vTCH}, {srd(SWD)}, s{sT[1]} offen
    s_add_u32 s{sT[0]}, s{sT[0]}, s{sT[2]}
    s_mov_b32 exec_hi, 0
    buffer_load_dword v11, v{vTCH}, {srd(SWO)}, s{sT[0]} offen
    s_mov_b32 exec_hi, -1
    L_notouch:
    """)
    a.vm -= 3
if OPT['touch']: at(p, touch)
f2tok = {}
def f2_load():
    a(f"s_lshr_b32 s{sT[0]}, s{sI}, 1\ns_lshl_b32 s{sT[0]}, s{sT[0]}, 11\ns_add_u32 s{sT[0]}, s{sT[0]}, {WS_F2}")
    f2tok[0] = a(f"buffer_load_dword v12, v{vF2}, {srd(SWS)}, s{sT[0]} offen sc1")
at(32 * (B2 - 2) + 7, f2_load)
def f2_check():
    a(f"""
    s_mov_b32 s{sT[1]}, 0
    L_s2poll:
    v_cmp_ne_u32 vcc, 1, v12
    s_cbranch_vccz L_s2done
    buffer_load_dword v12, v{vF2}, {srd(SWS)}, s{sT[0]} offen sc1
    s_add_u32 s{sT[1]}, s{sT[1]}, 1
    s_cmp_lt_u32 s{sT[1]}, {SPIN}
    s_waitcnt vmcnt(0)
    s_cbranch_scc1 L_s2poll
    L_s2done:
    """)
    a.vm -= 1
D0 = B2 + OPT.get('dlag', 2)
slots = []
for t in range(D0, NT):
    sl = [32 * t + 8, 32 * t + 14, 32 * t + 24, 32 * t + 30]
    dens = OPT.get('dens', 3)
    if dens == 3 or (dens == 0 and len(slots) + 4 > 56 - 3 * (NT - 1 - t) and (len(slots) + 3) * (NT - D0) >= 56 * (t + 1 - D0)): sl.pop(2)
    slots += sl
nfused = min(14, len(slots) // 4)
loadpos = {}
for u in range(18):
    if u < 3: loadpos[u] = 32 * B2 + 3 + 10 * u
    elif u < 14 and u - 3 < nfused: loadpos[u] = slots[4 * (u - 3)] + 1
    elif u >= 14 and u - 4 < nfused and loadpos[u - 1] is not None: loadpos[u] = slots[4 * (u - 4)] + 10
    else: loadpos[u] = None
for u in range(18):
    if loadpos[u] is None: continue
    at(loadpos[u], lambda u=u: w_load_a(u))
    at(loadpos[u] + 3, lambda u=u: w_load_b(u))
    if u < 14: at(loadpos[u] + 6 + (1 if u >= 3 else 0), lambda u=u: h_load_b(u))
for u in range(nfused):
    rp = slots[4 * u] - 14 if u == 0 else slots[4 * u - 2] + 1
    at(rp, lambda u=u: w_read(u, 0)); at(rp + 2, lambda u=u: w_read(u, 1))
    for k in range(4): at(slots[4 * u + k], lambda u=u, k=k: d_mfma(u, k))
if OPT['prio']:
    lad = [OPT.get('l1', 70), OPT.get('l2', 92), OPT.get('l3', 98)]
    for lo, hi, fr in ((0, B1, (30, 60, 88)), (B1, B2, (60, 87, 96)), (B2, NT, lad)):
        at(32 * lo + 1, lambda: a("s_setprio 3"))
        for k in range(3): at(32 * lo + (32 * (hi - lo) * fr[k]) // 100, lambda k=k: a(f"s_setprio {2-k}"))

tK = rdK(0); tV1 = rdV1(0); tV2 = None
a.wait(tK)
a(qk(SA, QA))
EPV1 = OPT.get('epv1', 11)
for t in range(NT):
    if t == B1:
        a.wait(tokbox['h'], kvtok[KV_PRE - 1])
        a("s_barrier")
        a(f"""
        s_cmp_lg_u32 s{sW}, 0
        s_cbranch_scc1 L_noflag2
        s_lshl_b32 s{sT[9]}, s{sT[9]}, 7
        s_add_u32 s{sT[9]}, s{sT[9]}, {WS_F2}
        v_mov_b32 v{t0}, 1
        s_mov_b64 exec, 1
        buffer_store_dword v{t0}, v{vZ}, {srd(SWS)}, s{sT[9]} offen sc1
        s_mov_b64 exec, -1
        L_noflag2:
        """)
        a.vm -= 1
        stamp(6)
    if t == B2:
        a.wait(kvtok[15], f2tok[0], tV2)
        f2_check()
        a("s_barrier")
        stamp(9)
    for ph, (S, So, O, Oo, Qo) in enumerate(((SA, SB, OA, OB, QB), (SB, SA, OB, OA, QA))):
        for e in range(16):
            if e == 2:
                if ph == 0:
                    if t > 0: a(pv(Oo, V2, So + 8))
                    tV2 = rdV2(t)
                else:
                    a.wait(tV2, tK); a(pv(Oo, V2, So + 8))
            if (e == 5 and not (t == 0 and ph == 0)) or (t == 0 and ph == 0 and e == 0):
                if ph == 0:
                    a(qk(So, Qo))
                    if t + 1 < NT: tK = rdK(t + 1)
                elif t + 1 < NT: a(qk(So, Qo))
            if e == EPV1:
                if ph == 0: a.wait(tV1)
                a(pv(O, V1, S))
                if ph == 1 and t + 1 < NT: tV1 = rdV1(t + 1)
            for f in ev.pop(32 * t + 16 * ph + e, []): f()
            a(f"v_exp_f32 v{S+e}, v{S+e}")
assert not ev, sorted(ev)
a(pv(OB, V2, SB + 8))
stamp(7)
MO = TOP + 2 * 8192
ML = HALF + 3 * 8192
def merge_base(dst, w):
    a(f"s_lshl_b32 s{dst}, s{w}, 11\ns_add_u32 s{dst}, s{dst}, {MO}\ns_cmp_eq_u32 s{w}, 7\ns_cselect_b32 s{dst}, {3*8192}, s{dst}")
a(f"s_xor_b32 s{sT[2]}, s{sW}, 4")
merge_base(sT[0], sW); merge_base(sT[3], sT[2])
a(f"""
v_add_u32 v{t0}, s{sT[0]}, v{vL16}
v_add_u32 v{t1}, s{sT[3]}, v{vL16}
s_lshl_b32 s{sT[0]}, s{sW}, 8
s_add_u32 s{sT[0]}, s{sT[0]}, {ML}
v_lshl_add_u32 v{t2}, v{L}, 2, s{sT[0]}
s_lshl_b32 s{sT[2]}, s{sT[2]}, 8
s_add_u32 s{sT[2]}, s{sT[2]}, {ML}
v_lshl_add_u32 v{t3}, v{L}, 2, s{sT[2]}
ds_write_b128 v{t0}, {vr(OB,4)}
ds_write_b128 v{t0}, {vr(OB+4,4)} offset:1024
ds_write_b32 v{t2}, v{OB+8}
""")
a.wait_lg0()
a("s_barrier")
a(f"""
ds_read_b32 v{SB+8}, v{t3}
ds_read_b128 {vr(SB,4)}, v{t1}
ds_read_b128 {vr(SB+4,4)}, v{t1} offset:1024
s_add_u32 s{sT[4]}, s{sOO}, {WS_O}
s_mov_b32 s{sT[6]}, {fbits(2.0**-60):#x}
s_mov_b32 s{sT[7]}, {fbits(2.0**60):#x}
""")
a.wait_lg0()
a(f"v_add_f32 v{OA+8}, v{OA+8}, v{SB+8}")
for j in range(4): a(f"v_pk_add_f32 {vr(OA+2*j,2)}, {vr(OA+2*j,2)}, {vr(SB+2*j,2)}")
a(f"v_pk_mul_f32 {vr(t2,2)}, {vr(OA,2)}, 0 op_sel_hi:[1,0]")
for j in range(1, 4): a(f"v_pk_fma_f32 {vr(t2,2)}, {vr(OA+2*j,2)}, 0, {vr(t2,2)} op_sel_hi:[1,0,1]")
a(f"""
v_add_f32 v{t2}, v{t2}, v{t3}
v_add_f32 v{t2}, v{t2}, v{OA+8}
v_cmp_nle_f32 vcc, s{sT[6]}, v{t2}
v_cmp_nge_f32 s[{sT[2]}:{sT[3]}], s{sT[7]}, v{t2}
s_or_b64 vcc, vcc, s[{sT[2]}:{sT[3]}]
""")
if OPT['force_fb']: a("s_mov_b64 vcc, -1")
a("""
s_cbranch_vccnz L_true_max
L_norm:
""")
a(f"""
v_rcp_f32 v{t0}, v{OA+8}
s_nop 0
v_mul_f32 v{t0}, v{t0}, v{vG}
""")
for j in range(4): a(f"v_pk_mul_f32 {vr(OA+2*j,2)}, {vr(OA+2*j,2)}, {vr(t0,2)} op_sel_hi:[1,0]")
for j in range(4): a(f"v_cvt_pk_bf16_f32 v{OA+j}, v{OA+2*j}, v{OA+2*j+1}")
for j in range(4): a(f"v_min_u32 v{OA+j}, -2, v{OA+j}")
a(f"buffer_store_dwordx4 {vr(OA,4)}, v{vL16}, {srd(SWS)}, s{sT[4]} offen sc1")
stamp(8)

pending = [u for u in range(18) if loadpos[u] is None]
for u in range(nfused, 14):
    w_read(u, 0); w_read(u, 1)
    for k in range(4): d_mfma(u, k)
    while pending and pending[0] - 4 <= u:
        v = pending.pop(0)
        w_load_a(v); w_load_b(v)
        if v < 14: h_load_b(v)
for v in pending:
    w_load_a(v); w_load_b(v)
XB0 = ((B2 * REC + 255) // 256) * 256
assert XB0 + 4 * 8192 <= HALF
def inbox(dst, w, tmp):
    a(f"s_and_b32 s{dst}, s{w}, 3\ns_lshl_b32 s{dst}, s{dst}, 13\ns_cmp_ge_u32 s{w}, 4\ns_cselect_b32 s{tmp}, {HALF}, 0\ns_add_u32 s{dst}, s{dst}, s{tmp}\ns_add_u32 s{dst}, s{dst}, {XB0}")
a(f"s_xor_b32 s{sT[2]}, s{sW}, 1")
inbox(sT[8], sW, sT[0]); inbox(sT[3], sT[2], sT[0])
a(f"v_add_u32 v{t0}, s{sT[3]}, v{vL16}\nv_add_u32 v{t1}, s{sT[8]}, v{vL16}")
for j in range(8): a(f"ds_write_b128 v{t0}, {vr(DACC+32+4*j,4)} offset:{1024*j}")
a(f"s_and_b32 s{sT[2]}, s{sW}, 6")
ring_base(sT[3], sT[2], sT[0])
a(f"s_or_b32 s{sT[2]}, s{sW}, 1")
ring_base(sT[4], sT[2], sT[0])
a(f"""
v_add_u32 v24, s{sT[3]}, v{vTRP}
v_add_u32 v26, s{sT[4]}, v{vTRP}
v_xor_b32 v25, 64, v24
v_xor_b32 v27, 64, v26
v_sub_f32 v{vG}, 1.0, v{vG}
s_lshl_b32 s{sT[0]}, s{sI}, 1
s_and_b32 s{sT[1]}, s{sW}, 1
s_add_u32 s{sT[0]}, s{sT[0]}, s{sT[1]}
s_lshl_b32 s{sT[0]}, s{sT[0]}, 15
s_lshr_b32 s{sT[1]}, s{sW}, 1
s_lshl_b32 s{sT[1]}, s{sT[1]}, 13
s_add_u32 s{sT[0]}, s{sT[0]}, s{sT[1]}
s_add_u32 s{sT[0]}, s{sT[0]}, {WS_O}
s_add_u32 s{sT[1]}, s{sT[0]}, 4096
""")
a.wait(wtok[17], a.lastlg())
a("s_barrier")
OF, WOF, XT = 32, 160, 96
def o_loads():
    for v in range(8):
        a(f"buffer_load_dwordx4 {vr(OF + 4*v, 4)}, v{vL16}, {srd(SWS)}, s{sT[v>>2]} offen offset:{1024*(v&3)} sc1")
o_loads()
xt = [a(f"ds_read_b128 {vr(XT+4*j,4)}, v{t1} offset:{1024*j}") for j in range(8)]
def wo_read(v):
    slot = ((14 + (v & 3)) & 3) * 2048
    for b in range(2):
        for e in range(2):
            a(f"ds_read_b64_tr_b16 {vr(WOF + 8*v + 4*b + 2*e, 2)}, v{24 + 2*(v>>2) + b} offset:{slot + e*512}")
for j in range(8):
    a.wait(xt[j])
    wo_read(j)
    for i in range(2):
        r = 4 * j + 2 * i
        a(f"v_pk_add_f32 {vr(DACC+r,2)}, {vr(DACC+r,2)}, {vr(XT+r,2)}")
    for i in range(2):
        r = 4 * j + 2 * i
        a(f"v_pk_mul_f32 {vr(DACC+r,2)}, {vr(DACC+r,2)}, {vr(vG,2)} op_sel_hi:[1,0]")
a(f"""
v_and_b32 v{t0}, 31, v{L}
v_lshrrev_b32 v{t1}, 5, v{L}
v_and_b32 v{t2}, 7, v{L}
v_xor_b32 v{t1}, v{t1}, v{t2}
v_lshlrev_b32 v{t1}, 4, v{t1}
v_lshl_add_u32 v{t0}, v{t0}, 8, v{t1}
v_add_u32 v9, s{sT[8]}, v{t0}
v_xor_b32 v10, 32, v9
v_xor_b32 v11, 64, v9
v_xor_b32 v12, 0x60, v9
v_lshrrev_b32 v{t0}, 3, v{L}
v_lshlrev_b32 v{t1}, 1, v{t2}
v_xor_b32 v{t1}, v{t1}, v{t0}
v_lshlrev_b32 v{t1}, 4, v{t1}
v_lshl_add_u32 v{t1}, v{t0}, 8, v{t1}
s_lshl_b32 s{sT[3]}, s{sW}, 11
s_add_u32 s{sT[3]}, s{sT[3]}, {XB0}
v_add_u32 v1, s{sT[3]}, v{t1}
v_xor_b32 v2, 16, v1
v_add_u32 v3, {HALF}, v1
v_add_u32 v4, {HALF}, v2
s_lshl_b32 s{sT[4]}, s{sI}, 3
s_add_u32 s{sT[4]}, s{sT[4]}, s{sW}
s_lshl_b32 s{sT[4]}, s{sT[4]}, 13
s_lshl_b32 s{sT[5]}, s{sJ}, 7
s_add_u32 s{sT[4]}, s{sT[4]}, s{sT[5]}
v_lshlrev_b32 v{t2}, 4, v{t2}
v_lshl_add_u32 v5, v{t0}, 10, v{t2}
s_mov_b32 s{sT[2]}, 0
L_s3poll:
""")
a.wait_vm0()
a(f"v_max_u32 v{t0}, v{OF}, v{OF+1}\nv_max_u32 v{t1}, v{OF+2}, v{OF+3}")
for j in range(2, 16): a(f"v_max3_u32 v{t0 + (j&1)}, v{t0 + (j&1)}, v{OF+2*j}, v{OF+2*j+1}")
a(f"""
v_max_u32 v{t0}, v{t0}, v{t1}
v_cmp_eq_u32 vcc, -1, v{t0}
s_cbranch_vccnz L_s3retry
L_s3done:
""")
stamp(10)
a.wait_lg0()
for v in range(8):
    for b in range(2):
        d = vr(DACC + 16 * b, 16)
        a(f"v_mfma_f32_32x32x16_bf16 {d}, {vr(WOF+8*v+4*b,4)}, {vr(OF+4*v,4)}, {d}")
for b in range(2):
    for qd in range(4):
        a(f"ds_write_b128 v{9+qd}, {vr(DACC + 16*b + 4*qd, 4)} offset:{b*128}")
a.wait_lg0()
a("s_barrier")
RD = 128
rt = []
for p in range(4):
    for e in range(2):
        rt.append(a(f"ds_read_b128 {vr(RD + 8*p + 4*e, 4)}, v{1 + e + 2*(p>>1)} offset:{(p&1)*16384}"))
for p in range(1, 4):
    a.wait(rt[2 * p + 1])
    for j in range(4):
        a(f"v_pk_add_f32 {vr(RD+2*j,2)}, {vr(RD+2*j,2)}, {vr(RD+8*p+2*j,2)}")
for j in range(4): a(f"v_cvt_pk_bf16_f32 v{RD+j}, v{RD+2*j}, v{RD+2*j+1}")
a(f"buffer_store_dwordx4 {vr(RD,4)}, v5, {srd(SOUT)}, s{sT[4]} offen")
if OPT['stamp']:
    a("s_waitcnt vmcnt(0)")
    stamp(11)
    a("s_waitcnt lgkmcnt(0)")
    a(f"s_mov_b32 s28, s{sT[2]}")
    a(f"s_lshl_b32 s{sT[0]}, s2, 3\ns_add_u32 s{sT[0]}, s{sT[0]}, s{sW}\ns_lshl_b32 s{sT[0]}, s{sT[0]}, 6\ns_add_u32 s{sT[0]}, s{sT[0]}, {WS_STAMP}")
    a("v_mov_b32 v1, 0\ns_mov_b64 exec, 1")
    for k in range(14):
        a(f"v_mov_b32 v2, s{4+2*k}\nbuffer_store_dword v2, v1, {srd(SWS)}, s{sT[0]} offen offset:{4*k}")
a("L_end:\ns_endpgm")
a("L_s3retry:")
o_loads()
a(f"""
s_add_u32 s{sT[2]}, s{sT[2]}, 1
s_cmp_lt_u32 s{sT[2]}, {SPIN}
s_cbranch_scc1 L_s3poll
s_waitcnt vmcnt(0)
s_branch L_s3done
""")

a("L_pathQ:")
a.forget()
proj_path('Q')
a("s_branch L_join")

CM = SB
a(f"""
L_true_max:
s_waitcnt vmcnt(0) lgkmcnt(0)
v_mov_b32 v{t0}, 0xff800000
s_mov_b32 s{sT[0]}, {WS_KV}
L_tm1:
buffer_load_dwordx4 {vr(KF,4)}, v{vL16}, {srd(SWS)}, s{sT[0]} offen sc1
s_waitcnt vmcnt(0)
{qk(SA, QA)}
""")
for j in range(8): a(f"v_max3_f32 v{t0}, v{t0}, v{SA+2*j}, v{SA+2*j+1}")
a(f"""
s_add_u32 s{sT[0]}, s{sT[0]}, 2048
s_cmp_lt_u32 s{sT[0]}, {WS_KV + 64*2048}
s_cbranch_scc1 L_tm1
v_mov_b32 v{t1}, v{t0}
v_permlane32_swap_b32 v{t0}, v{t1}
v_max_f32 v{t0}, v{t0}, v{t1}
""")
for r in range(16): a(f"v_sub_f32 v{CM+r}, 0, v{t0}\nv_mov_b32 v{OA+r}, 0")
for r in range(8): a(f"v_mov_b32 v{V1+r}, 0x3f803f80")
a(f"""
v_and_b32 v{t1}, 15, v{L}
v_lshrrev_b32 v{t2}, 5, v{L}
v_lshlrev_b32 v{t1}, 4, v{t1}
v_lshl_add_u32 v{t1}, v{t2}, 8, v{t1}
s_mov_b32 s{sT[0]}, {WS_KV}
s_mov_b32 s{sT[2]}, 0xffff
s_mov_b32 s{sT[3]}, 0xffff
L_tm2:
buffer_load_dwordx4 {vr(KF,4)}, v{vL16}, {srd(SWS)}, s{sT[0]} offen sc1
s_mov_b64 exec, s[{sT[2]}:{sT[3]}]
buffer_load_dwordx4 {vr(V1,4)}, v{t1}, {srd(SWS)}, s{sT[0]} offen offset:1024 sc1
buffer_load_dwordx4 {vr(V2,4)}, v{t1}, {srd(SWS)}, s{sT[0]} offen offset:1536 sc1
s_mov_b64 exec, -1
s_waitcnt vmcnt(0)
v_mfma_f32_32x32x16_bf16 {vr(SA,16)}, {vr(KF,4)}, {vr(QA,4)}, {vr(CM,16)}
""")
for e in range(16): a(f"v_exp_f32 v{SA+e}, v{SA+e}")
a(pv(OA, V1, SA)); a(pv(OA, V2, SA + 8))
a(f"""
s_add_u32 s{sT[0]}, s{sT[0]}, 2048
s_cmp_lt_u32 s{sT[0]}, {WS_KV + 64*2048}
s_nop 7
s_cbranch_scc1 L_tm2
s_nop 7
s_branch L_norm
""")

bad = a.check_branches()
assert not bad, bad

hdr = open(f'cdna_kernels/{NAME}.s.ref').read().split('\n')
head = [l for l in hdr if l.startswith(';') and '@launch' not in l]
out = "\n".join(head) + f"\n; @launch grid=(256,1,1) block=(512,1,1) lds={LDS_BYTES}\n"
out += f""".amdgcn_target "amdgcn-amd-amdhsa--gfx950"
.text
.globl {NAME}_kernel
.p2align 8
.type {NAME}_kernel,@function
{NAME}_kernel:
{a.text()}
.section .rodata,"a"
.p2align 6
.amdhsa_kernel {NAME}_kernel
  .amdhsa_next_free_vgpr 256
  .amdhsa_next_free_sgpr 102
  .amdhsa_accum_offset 256
  .amdhsa_group_segment_fixed_size 0
  .amdhsa_kernarg_size 104
  .amdhsa_user_sgpr_count 2
  .amdhsa_user_sgpr_kernarg_segment_ptr 1
  .amdhsa_system_sgpr_workgroup_id_x 1
.end_amdhsa_kernel
"""
open(sys.argv[1], 'w').write(out)
print("fused k-steps", nfused, "instructions:", sum(1 for i in a.ins if i.ws), "auto nops:", a.nnop, file=sys.stderr)
```

```python
import sys, math, struct
sys.path.insert(0, 'gen')
from asmlib import Asm

NAME = 'gated_mix__grouped_kv_mqa__geglu_ffn__prompt'
OPT = dict(stamp=0, force_fb=0, b1=5, b2=13, prio=1, pre=2, qflag=11, touch=1, pk=0, dens=4, sprio=1)
for x in sys.argv[2:]:
    k, v = x.split('='); OPT[k] = int(v)

def fbits(x): return struct.unpack('<I', struct.pack('<f', x))[0]

WS_KV, WS_G, WS_F1, WS_Q, WS_O, WS_H, WS_STAMP = 0, 0x20000, 0x30000, 0x100000, 0x300000, 0x500000, 0xC00000
WS_F2 = WS_F1 + 8192
WS_SIZE = 0x1000000
CLEAR_WG = 64
XR, WR, EX = 0, 65536, 131072
REC = 2064
HALF = 32 * REC
TOP = 64 * REC
LDS_BYTES = 163840
SPIN = 0x40000
SX, SWG, SWU, SWQ, SEX, SWS, SDBG, SWD, SWO, SOUT = 32, 36, 40, 44, 48, 52, 56, 60, 64, 92
sW, sTI, sQ, sU, sROT, sXO, sWOF, sMX, sMW, sI, sJ, sROT0 = range(68, 80)
sT = list(range(80, 90))
sC1 = 96
sQS = 98
sEXW, sEXO = 90, 91
sRING, sOO = 100, 101
def srd(n): return f"s[{n}:{n+3}]"
def vr(b, n): return f"v[{b}:{b+n-1}]"

vXS0, vXS1, vWA, vWB = 1, 2, 3, 4
vXR = [5, 6, 7, 8]
vWR = [9, 10]
vXE = [11, 12]; vWE = 13
vL16 = 14
vLANE = 15
vC0 = 16
vGT = 18
vTMP = list(range(20, 32))
F = [32, 48]
ACC = [64, 96]
XF = 128
ACCE, XE, WE = 96, 100, 108

a = Asm()
CLK = 's_memtime' if OPT['stamp'] == 2 else 's_memrealtime'
def stamp(k, grp=0):
    if grp != OPT.get('grp', 0) and k != 11: return
    if OPT['stamp']: a(f"{CLK} s[{4+2*k}:{5+2*k}]")

def mk_srd(n, p, size):
    a(f"s_mov_b32 s{n}, s{p}\ns_mov_b32 s{n+1}, s{p+1}\ns_mov_b32 s{n+2}, {size}\ns_mov_b32 s{n+3}, 0x20000")

a("s_cmp_ge_u32 s2, 256\ns_cbranch_scc1 L_end")
a("s_load_dwordx16 s[4:19], s[0:1], 0\ns_load_dwordx8 s[20:27], s[0:1], 64\ns_load_dwordx2 s[28:29], s[0:1], 96")
if OPT['stamp']: a(f"{CLK} s[30:31]")
a(f"v_lshrrev_b32 v1, 6, v0\nv_and_b32 v{vLANE}, 63, v0\nv_readfirstlane_b32 s{sW}, v1")
a(f"""
s_and_b32 s{sT[0]}, s2, 7
s_lshr_b32 s{sT[1]}, s2, 3
s_and_b32 s{sJ}, s{sT[1]}, 7
s_lshr_b32 s{sU}, s{sT[1]}, 3
s_lshr_b32 s{sQ}, s{sT[0]}, 1
s_and_b32 s{sT[2]}, s{sT[0]}, 1
s_lshl_b32 s{sT[2]}, s{sT[2]}, 3
s_add_u32 s{sTI}, s{sT[2]}, s{sJ}
s_lshl_b32 s{sI}, s{sT[0]}, 2
s_add_u32 s{sI}, s{sI}, s{sU}
s_lshl_b32 s{sROT}, s{sU}, 1
s_add_u32 s{sROT}, s{sROT}, s{sJ}
s_and_b32 s{sROT}, s{sROT}, 7
s_mov_b32 s{sROT0}, s{sROT}
s_lshl_b32 s{sMX}, s{sW}, 11
s_lshl_b32 s{sMW}, s{sW}, 10
s_add_u32 s{sMW}, s{sMW}, {WR}
""")
L = vLANE
t0, t1, t2, t3 = vTMP[0:4]
a(f"""
v_lshlrev_b32 v{vL16}, 4, v{L}
v_lshrrev_b32 v{t0}, 3, v{L}
v_and_b32 v{t1}, 7, v{L}
v_lshrrev_b32 v{t2}, 4, v{L}
s_lshl_b32 s{sT[0]}, s{sTI}, 3
s_add_u32 s{sT[0]}, s{sT[0]}, s{sW}
s_lshl_b32 s{sT[0]}, s{sT[0]}, 14
v_xor_b32 v{t3}, v{t1}, v{t2}
v_lshlrev_b32 v{t3}, 4, v{t3}
v_lshl_add_u32 v{vXS0}, v{t0}, 10, v{t3}
v_add_u32 v{vXS0}, s{sT[0]}, v{vXS0}
v_xor_b32 v{vXS1}, 64, v{vXS0}
v_add_u32 v{vXS1}, 8192, v{vXS1}
""")
def w_src(pitch, colA, colB):
    a(f"""
    v_lshrrev_b32 v{t0}, 3, v{L}
    s_lshl_b32 s{sT[0]}, s{sW}, 3
    v_add_u32 v{t0}, s{sT[0]}, v{t0}
    v_mul_u32_u24 v{t0}, {pitch}, v{t0}
    v_and_b32 v{t1}, 7, v{L}
    v_bfe_u32 v{t2}, v{L}, 4, 1
    v_lshlrev_b32 v{t2}, 1, v{t2}
    v_xor_b32 v{t1}, v{t1}, v{t2}
    v_lshlrev_b32 v{t1}, 4, v{t1}
    v_xor_b32 v{t2}, 64, v{t1}
    v_add3_u32 v{vWA}, v{t0}, v{t1}, s{colA}
    v_add3_u32 v{vWB}, v{t0}, v{t2}, s{colB}
    """)
def read_addrs():
    a(f"""
    v_and_b32 v{t0}, 31, v{L}
    s_and_b32 s{sT[0]}, s{sW}, 3
    s_lshl_b32 s{sT[0]}, s{sT[0]}, 12
    v_bfe_u32 v{t1}, v{L}, 1, 3
    v_lshrrev_b32 v{t2}, 5, v{L}
    v_xor_b32 v{t1}, v{t1}, v{t2}
    v_lshlrev_b32 v{t1}, 4, v{t1}
    v_lshl_add_u32 v{t0}, v{t0}, 7, v{t1}
    v_add_u32 v{vXR[0]}, s{sT[0]}, v{t0}
    v_xor_b32 v{vXR[1]}, 32, v{vXR[0]}
    v_xor_b32 v{vXR[2]}, 64, v{vXR[0]}
    v_xor_b32 v{vXR[3]}, 0x60, v{vXR[0]}
    """)
    a(f"""
    v_bfe_u32 v{t0}, v{L}, 4, 1
    v_bfe_u32 v{t1}, v{L}, 2, 2
    v_lshrrev_b32 v{t2}, 5, v{L}
    v_lshl_add_u32 v{t2}, v{t2}, 3, v{t1}
    v_lshlrev_b32 v{t2}, 7, v{t2}
    v_lshl_add_u32 v{t2}, v{t0}, 13, v{t2}
    v_lshrrev_b32 v{t1}, 1, v{t1}
    v_lshl_add_u32 v{t1}, v{t0}, 1, v{t1}
    s_lshr_b32 s{sT[0]}, s{sW}, 2
    s_lshl_b32 s{sT[0]}, s{sT[0]}, 1
    v_xor_b32 v{t1}, s{sT[0]}, v{t1}
    v_lshl_add_u32 v{t2}, v{t1}, 5, v{t2}
    v_and_b32 v{t0}, 1, v{L}
    v_bfe_u32 v{t1}, v{L}, 1, 1
    v_lshl_add_u32 v{t2}, v{t0}, 4, v{t2}
    v_lshl_add_u32 v{t2}, v{t1}, 3, v{t2}
    v_add_u32 v{vWR[0]}, {WR}, v{t2}
    v_xor_b32 v{vWR[1]}, 32, v{vWR[0]}
    """)
C0 = -2.0 * math.sqrt(2.0 / math.pi) * math.log2(math.e)
C1 = C0 * 0.044715
QS = 0.25 * math.log2(math.e)
a(f"""
s_mov_b32 s{sC1}, {fbits(C1):#x}
s_mov_b32 s{sC1+1}, {fbits(C1):#x}
s_mov_b32 s{sQS}, {fbits(QS):#x}
s_mov_b32 s{sQS+1}, {fbits(QS):#x}
v_mov_b32 v{vC0}, {fbits(C0):#x}
v_mov_b32 v{vC0+1}, {fbits(C0):#x}
""")
a("s_waitcnt lgkmcnt(0)")
mk_srd(SX, 4, 2048 * 1024)
mk_srd(SWG, 16, 512 * 3584)
mk_srd(SWU, 18, 512 * 3584)
mk_srd(SWQ, 6, 512 * 1024)

PG = 3584
def dma_ops(sig, path):
    p = sig >> 3
    isq = (path == 'Q' and p == 0)
    pitch = 1024 if isq else PG
    extra = 128 if (path == 'G' and p == 1) else 0
    sa, sb = (SWQ, SWQ) if isq else (SWG, SWU)
    slot = (sig & 3) * 16384
    ops = []
    pre = f"s_mul_i32 s{sWOF}, s{sROT}, {64*pitch}\n"
    if extra: pre += f"s_add_u32 s{sWOF}, s{sWOF}, {extra}\n"
    if p == 0: pre += f"s_lshl_b32 s{sXO}, s{sROT}, 7\n"
    post = f"s_add_u32 s{sROT}, s{sROT}, 1\n"
    post2 = f"s_and_b32 s{sROT}, s{sROT}, 7\n"
    if p == 0:
        ops.append(f"s_add_u32 m0, s{sMX}, {XR+slot}\n" + pre + f"buffer_load_dwordx4 v{vXS0}, {srd(SX)}, s{sXO} offen lds")
        ops.append(f"s_add_u32 m0, s{sMW}, {slot}\n" + post + f"buffer_load_dwordx4 v{vWA}, {srd(sa)}, s{sWOF} offen lds")
        ops.append(f"s_add_u32 m0, s{sMW}, {slot+8192}\n" + post2 + f"buffer_load_dwordx4 v{vWB}, {srd(sb)}, s{sWOF} offen lds")
        ops.append(f"s_add_u32 m0, s{sMX}, {XR+slot+1024}\nbuffer_load_dwordx4 v{vXS1}, {srd(SX)}, s{sXO} offen lds")
    else:
        ops.append(f"s_add_u32 m0, s{sMW}, {slot}\n" + pre + f"buffer_load_dwordx4 v{vWA}, {srd(sa)}, s{sWOF} offen lds")
        ops.append(f"s_add_u32 m0, s{sMW}, {slot+8192}\n" + post + post2 + f"buffer_load_dwordx4 v{vWB}, {srd(sb)}, s{sWOF} offen lds")
    return ops

def rest_srds():
    mk_srd(SWS, 28, WS_SIZE)
    mk_srd(SDBG, 26, 256)
    mk_srd(SWD, 20, 1792 * 1024)
    mk_srd(SWO, 12, 512 * 1024)
    mk_srd(SOUT, 24, 2048 * 1024)

def reads(sig, h):
    slot = (sig & 3) * 16384
    out = []
    for kk in range(2):
        ks = 2 * h + kk
        if sig < 8:
            out.append(f"ds_read_b128 {vr(XF + 4*(4*sig+ks), 4)}, v{vXR[ks]} offset:{XR+slot}")
        for b in range(2):
            for e in range(2):
                out.append(f"ds_read_b64_tr_b16 {vr(F[h] + 8*kk + 4*b + 2*e, 2)}, v{vWR[b]} offset:{slot + ks*2048 + e*512}")
    return out

def mfmas(sig, h):
    out = []
    acc = ACC[sig >> 3]
    for kk in range(2):
        ks = 2 * h + kk
        for b in range(2):
            d = vr(acc + 16 * b, 16)
            c = "0" if ((sig & 7) == 0 and ks == 0) else d
            out.append(f"v_mfma_f32_32x32x16_bf16 {d}, {vr(F[h] + 8*kk + 4*b, 4)}, {vr(XF + 4*(4*(sig&7)+ks), 4)}, {c}")
    return out

def gelu_pair(base, j, T=vGT, pk=True):
    G = vr(base + 2 * j, 2); U = vr(base + 8 + 2 * j, 2); TT = vr(T, 2)
    g0, g1, u0, u1 = base + 2 * j, base + 2 * j + 1, base + 8 + 2 * j, base + 9 + 2 * j
    if pk:
        return [f"v_pk_mul_f32 {TT}, {G}, {G}",
                f"v_pk_fma_f32 {TT}, {TT}, s[{sC1}:{sC1+1}], {vr(vC0,2)}",
                f"v_pk_mul_f32 {TT}, {TT}, {G}",
                f"v_exp_f32 v{T}, v{T}",
                f"v_exp_f32 v{T+1}, v{T+1}",
                f"v_pk_mul_f32 {G}, {G}, {U}",
                f"v_pk_add_f32 {TT}, {TT}, 1.0 op_sel_hi:[1,0]",
                f"v_rcp_f32 v{T}, v{T}",
                f"v_rcp_f32 v{T+1}, v{T+1}",
                f"v_pk_mul_f32 {G}, {G}, {TT}",
                f"v_cvt_pk_bf16_f32 v{base+j}, v{g0}, v{g1}"]
    return [f"v_mul_f32 v{T}, v{g0}, v{g0}\nv_mul_f32 v{T+1}, v{g1}, v{g1}",
            f"v_fma_f32 v{T}, v{T}, s{sC1}, v{vC0}\nv_fma_f32 v{T+1}, v{T+1}, s{sC1}, v{vC0}",
            f"v_mul_f32 v{T}, v{T}, v{g0}\nv_mul_f32 v{T+1}, v{T+1}, v{g1}",
            f"v_exp_f32 v{T}, v{T}",
            f"v_exp_f32 v{T+1}, v{T+1}",
            f"v_mul_f32 v{g0}, v{g0}, v{u0}\nv_mul_f32 v{g1}, v{g1}, v{u1}",
            f"v_add_f32 v{T}, 1.0, v{T}\nv_add_f32 v{T+1}, 1.0, v{T+1}",
            f"v_rcp_f32 v{T}, v{T}",
            f"v_rcp_f32 v{T+1}, v{T+1}",
            f"v_mul_f32 v{g0}, v{g0}, v{T}\nv_mul_f32 v{g1}, v{g1}, v{T+1}",
            f"v_cvt_pk_bf16_f32 v{base+j}, v{g0}, v{g1}"]

def interleave(ms, fill):
    n = max(len(ms), 1)
    k = 0
    for i in range(n):
        if i < len(ms): a(ms[i])
        upto = (len(fill) * (i + 1) + n - 1) // n
        while k < upto:
            a(fill[k]); k += 1

DEPTH = 3
def extra_reads(sig):
    slot = (sig & 3) * 16384
    out = []
    for j in range(2):
        out.append(f"ds_read_b128 {vr(XE + 4*j, 4)}, v{vXE[j]} offset:{XR+slot}")
        for e in range(2):
            out.append(f"ds_read_b64_tr_b16 {vr(WE + 4*j + 2*e, 2)}, v{vWE} offset:{sig*2048 + j*1024 + e*128}")
    return out
def extra_mfmas(sig):
    return [f"v_mfma_f32_16x16x32_bf16 {vr(ACCE,4)}, {vr(WE+4*j,4)}, {vr(XE+4*j,4)}, {'0' if (sig==0 and j==0) else vr(ACCE,4)}" for j in range(2)]

def sched_of(sig):
    if OPT['pre'] == 3: l = [sig + 3]
    else: l = [sig + 2] if sig < 6 else ([8, 9] if sig == 6 else [sig + 3])
    return [x for x in l if x < 16]

vS0, vZ = 28, 29
def proj_path(path):
    tok = {}
    P = path
    def dma_groups(sg):
        d = dma_ops(sg, P)
        if P == 'Q' and sg < 8:
            d[0] = f"""
            s_cmp_lg_u32 s{sEXW}, {sg}
            s_cbranch_scc1 L_noex{sg}
            s_add_u32 m0, s{sMX}, {EX}
            s_nop 0
            buffer_load_dwordx4 v{vL16}, {srd(SEX)}, s{sEXO} offen lds
            buffer_load_dwordx4 v{vL16}, {srd(SEX)}, s{sEXO} offen offset:1024 lds
            L_noex{sg}:
            ;uncount 2
            """ + d[0]
        return d
    def emit(x):
        parts = x.split(";uncount 2")
        for k, part in enumerate(parts):
            a(part)
            if k < len(parts) - 1: a.vm -= 2
    if P == 'G':
        a(f"s_cmp_lg_u32 s2, {CLEAR_WG}\ns_cbranch_scc1 L_noclear")
        mk_srd(SWS, 28, WS_SIZE)
        a(f"""
        s_lshl_b32 s{sT[1]}, s{sW}, 13
        s_add_u32 s{sT[1]}, s{sT[1]}, {WS_F1}
        v_lshlrev_b32 v{t0}, 7, v{L}
        v_mov_b32 v{t1}, 0
        buffer_store_dword v{t1}, v{t0}, {srd(SWS)}, s{sT[1]} offen sc1
        L_noclear:
        """)
        a(f"s_mul_i32 s{sT[1]}, s{sQ}, 7\ns_lshl_b32 s{sT[2]}, s{sU}, 1\ns_add_u32 s{sT[1]}, s{sT[1]}, s{sT[2]}\ns_sub_u32 s{sT[1]}, s{sT[1]}, 1\ns_lshl_b32 s{sT[1]}, s{sT[1]}, 7")
        w_src(PG, sT[1], sT[1])
    else:
        a(f"s_lshl_b32 s{sT[1]}, s{sQ}, 8\ns_add_u32 s{sT[2]}, s{sT[1]}, 128")
        w_src(1024, sT[1], sT[2])
        a(f"""
        s_cmp_eq_u32 s{sQ}, 1
        s_cselect_b64 s[{SEX}:{SEX+1}], s[10:11], s[8:9]
        s_mov_b32 s{SEX+2}, 16384
        s_mov_b32 s{SEX+3}, 0x20000
        s_add_u32 s{sT[3]}, s{sW}, s{sROT0}
        s_and_b32 s{sT[3]}, s{sT[3]}, 7
        s_lshl_b32 s{sEXO}, s{sT[3]}, 11
        s_cmp_lt_u32 s{sQ}, 2
        s_cselect_b32 s{sEXW}, s{sW}, 64
        s_cmp_lg_u32 s{sQ}, 2
        s_cbranch_scc1 L_exdone
        s_mov_b32 s{SEX}, s22
        s_mov_b32 s{SEX+1}, s23
        s_mov_b32 s{SEX+2}, 1024
        s_lshl_b32 s{sT[3]}, s{sT[3]}, 7
        v_lshlrev_b32 v{t0}, 1, v{L}
        buffer_load_ushort v{vS0}, v{t0}, {srd(SEX)}, s{sT[3]} offen
        L_exdone:
        """)
    for sig in range(OPT['pre']):
        for o in dma_groups(sig): emit(o)
        tok[sig] = a.lastvm()
        if sig == 0:
            rest_srds()
            read_addrs()
            a(f"v_mov_b32 v{vZ}, 0")
            if P == 'Q':
                a(f"""
                v_and_b32 v{t0}, 15, v{L}
                v_bfe_u32 v{t1}, v{L}, 1, 3
                v_lshrrev_b32 v{t2}, 4, v{L}
                v_xor_b32 v{t1}, v{t1}, v{t2}
                v_lshlrev_b32 v{t1}, 4, v{t1}
                v_lshl_add_u32 v{t0}, v{t0}, 7, v{t1}
                v_add_u32 v{vXE[0]}, s{sMX}, v{t0}
                v_xor_b32 v{vXE[1]}, 64, v{vXE[0]}
                v_and_b32 v{t0}, 15, v{L}
                v_lshlrev_b32 v{t0}, 3, v{t0}
                v_lshl_add_u32 v{t0}, v{t2}, 8, v{t0}
                v_add_u32 v{vWE}, {EX}, v{t0}
                s_lshl_b32 s{sT[4]}, s{sTI}, 2
                s_and_b32 s{sT[5]}, s{sW}, 3
                s_add_u32 s{sT[4]}, s{sT[4]}, s{sT[5]}
                s_lshl_b32 s{sT[4]}, s{sT[4]}, 5
                s_lshl_b32 s{sT[5]}, s{sQ}, 3
                s_add_u32 s{sT[4]}, s{sT[4]}, s{sT[5]}
                s_lshr_b32 s{sT[5]}, s{sW}, 2
                s_lshl_b32 s{sT[5]}, s{sT[5]}, 1
                s_add_u32 s{sT[4]}, s{sT[4]}, s{sT[5]}
                s_lshl_b32 s{sT[4]}, s{sT[4]}, 10
                """)
    stamp(0)
    qtok = None
    QF = OPT['qflag']
    for sig in range(16):
        a.wait(tok[sig])
        if P == 'Q' and sig == 0:
            a(f"""
            s_cmp_lg_u32 s{sQ}, 2
            s_cbranch_scc1 L_nogw
            v_lshlrev_b32 v{t0}, 5, v{L}
            v_add_u32 v{t0}, s{sMX}, v{t0}
            v_add_u32 v{t0}, {EX}, v{t0}
            ds_write_b16 v{t0}, v{vS0}
            s_waitcnt lgkmcnt(0)
            L_nogw:
            """)
        if P == 'Q' and sig == QF: a.wait(qtok)
        a("s_barrier")
        if sig == 1: stamp(1)
        if sig == 8: stamp(2)
        if sig < 11: stamp(sig, 1)
        if sig >= 6: stamp(sig - 6, 2)
        if P == 'G' and sig == 0:
            a(f"""
            s_lshl_b32 s{sT[1]}, s{sW}, 8
            s_or_b32 s{sT[1]}, s{sT[1]}, s2
            s_cmp_lg_u32 s{sT[1]}, {CLEAR_WG}
            s_cbranch_scc1 L_nos0
            v_mov_b32 v{t0}, 1
            s_mov_b64 exec, 1
            buffer_store_dword v{t0}, v{vZ}, {srd(SDBG)}, 0 offen sc1
            s_mov_b64 exec, -1
            L_nos0:
            """)
            a.vm -= 1
        if sig == 7:
            a(f"""
            s_cmp_lg_u32 s{sW}, 0
            s_cbranch_scc1 L_nos0l{P}
            buffer_load_dword v{vS0}, v{vZ}, {srd(SDBG)}, 0 offen sc1
            L_nos0l{P}:
            """)
            a.vm -= 1; s0pos = a.vm
        if sig == QF:
            assert a.vm_done > s0pos
            a(f"""
            s_cmp_lg_u32 s{sW}, 0
            s_cbranch_scc1 L_noflag1{P}
            s_mov_b32 s{sT[1]}, 0
            L_s0poll{P}:
            v_cmp_eq_u32 vcc, 0, v{vS0}
            s_cbranch_vccz L_s0done{P}
            buffer_load_dword v{vS0}, v{vZ}, {srd(SDBG)}, 0 offen sc1
            s_add_u32 s{sT[1]}, s{sT[1]}, 1
            s_cmp_lt_u32 s{sT[1]}, {SPIN}
            s_waitcnt vmcnt(0)
            s_cbranch_scc1 L_s0poll{P}
            L_s0done{P}:
            """)
            a.vm -= 1
            if P == 'Q':
                a(f"""
                s_lshl_b32 s{sT[5]}, s{sQ}, 4
                s_add_u32 s{sT[5]}, s{sT[5]}, s{sTI}
                s_lshl_b32 s{sT[5]}, s{sT[5]}, 7
                s_add_u32 s{sT[5]}, s{sT[5]}, {WS_F1}
                v_mov_b32 v{t0}, 1
                s_mov_b64 exec, 1
                buffer_store_dword v{t0}, v{vZ}, {srd(SWS)}, s{sT[5]} offen sc1
                s_mov_b64 exec, -1
                """)
                a.vm -= 1
            a(f"L_noflag1{P}:")
        if sig == 15:
            a(f"""
            s_cmp_lg_u32 s{sW}, 0
            s_cbranch_scc1 L_nopoll0{P}
            s_lshr_b32 s{sT[0]}, s{sI}, 1
            s_lshl_b32 s{sT[3]}, 0x10001, s{sT[0]}
            s_mov_b32 s{sT[2]}, -1
            s_mov_b32 s{sT[1]}, {WS_F1}
            v_lshlrev_b32 v{t1}, 7, v{L}
            v_mov_b32 v{t0}, 1
            s_mov_b64 exec, s[{sT[2]}:{sT[3]}]
            buffer_load_dword v{t0}, v{t1}, {srd(SWS)}, s{sT[1]} offen sc1
            s_mov_b64 exec, -1
            L_nopoll0{P}:
            """)
        d = []
        for sg in sched_of(sig):
            dg = dma_groups(sg)
            d += [(x, sg if k == len(dg) - 1 else None) for k, x in enumerate(dg)]
        def dma_emit(item):
            emit(item[0])
            if item[1] is not None: tok[item[1]] = a.lastvm()
        g = gelu_pair(ACC[0] + 16 * ((sig - 8) >> 2), (sig - 8) & 3, pk=OPT['pk']) if (P == 'G' and sig >= 8) else []
        m1 = mfmas(sig - 1, 1) if sig > 0 else []
        if P == 'Q' and 0 < sig <= 8: m1 = extra_mfmas(sig - 1)[:1] + m1[:2] + extra_mfmas(sig - 1)[1:] + m1[2:]
        if OPT['sprio']: a("s_setprio 1")
        if P == 'Q' and 8 in sched_of(sig):
            a(f"s_mul_i32 s{sT[1]}, s{sQ}, {7*128}")
            w_src(PG, sT[1], sT[1])
        late = sig < OPT.get('late', 1)
        fill = [lambda r=r: a(r) for r in reads(sig, 0)]
        box = {}
        fill.append(lambda: box.update(h0=a.lastlg()))
        if not late: fill += [lambda it=it: dma_emit(it) for it in d]
        if sig == 13: fill.append(lambda: early_stores(P))
        n = max(len(m1) - 1, 1)
        wts = [1] * (len(reads(sig, 0))) + [0] + [OPT.get('dw', 3)] * (len(fill) - len(reads(sig, 0)) - 1)
        tot = sum(wts); k = 0; accw = 0
        for i in range(n):
            if i < len(m1) - 1: a(m1[i])
            while k < len(fill) and (accw + wts[k] <= tot * (i + 1) / n + 0.5 or i == n - 1):
                fill[k](); accw += wts[k]; k += 1
        if m1: a(m1[-1])
        if OPT['sprio']: a("s_setprio 0")
        r1 = reads(sig, 1)
        if P == 'Q' and sig < 8: r1 = r1 + extra_reads(sig)
        if g:
            k = 0
            for i, r in enumerate(r1):
                a(r)
                if i >= 1 and k < len(g): a(g[k]); k += 1
            for x in g[k:]: a(x)
        else:
            for r in r1: a(r)
        if P == 'Q' and sig == 8:
            q_epilogue()
            qtok = a.lastvm()
        a.wait(box['h0'])
        for x in mfmas(sig, 0): a(x)
        if late:
            for it in d: dma_emit(it)
        a.wait(a.lastlg())

sHO = 3
def early_stores(P):
    a(f"""
    s_lshr_b32 s{sT[3]}, s{sW}, 2
    s_lshl_b32 s{sT[0]}, s{sTI}, 2
    s_and_b32 s{sT[1]}, s{sW}, 3
    s_add_u32 s{sT[0]}, s{sT[0]}, s{sT[1]}
    s_lshl_b32 s{sT[8]}, s{sT[0]}, 5
    s_mul_i32 s{sT[0]}, s{sT[0]}, 112
    s_mul_i32 s{sT[1]}, s{sQ}, 28
    s_add_u32 s{sT[0]}, s{sT[0]}, s{sT[1]}
    s_lshl_b32 s{sT[1]}, s{sU}, 3
    s_add_u32 s{sT[0]}, s{sT[0]}, s{sT[1]}
    s_lshl_b32 s{sT[1]}, s{sT[3]}, 1
    s_add_u32 s{sT[0]}, s{sT[0]}, s{sT[1]}
    s_lshl_b32 s{sT[0]}, s{sT[0]}, 10
    s_add_u32 s{sHO}, s{sT[0]}, {WS_H}
    """)
    if P == 'G':
        a(f"s_sub_u32 s{sT[1]}, s{sHO}, 4096\nbuffer_store_dwordx4 {vr(ACC[0],4)}, v{vL16}, {srd(SWS)}, s{sT[1]} offen sc1")
    a(f"""
    s_lshl_b32 s{sT[1]}, s{sQ}, 2
    s_add_u32 s{sT[1]}, s{sT[1]}, s{sU}
    s_lshl_b32 s{sT[9]}, s{sTI}, 4
    s_add_u32 s{sT[9]}, s{sT[9]}, s{sT[1]}
    s_lshl_b32 s{sT[1]}, s{sT[1]}, 1
    s_add_u32 s{sT[8]}, s{sT[8]}, s{sT[1]}
    s_add_u32 s{sT[8]}, s{sT[8]}, s{sT[3]}
    s_lshl_b32 s{sT[8]}, s{sT[8]}, 10
    s_add_u32 s{sT[8]}, s{sT[8]}, {WS_O}
    v_mov_b32 v24, -1
    v_mov_b32 v25, -1
    v_mov_b32 v26, -1
    v_mov_b32 v27, -1
    buffer_store_dwordx4 v[24:27], v{vL16}, {srd(SWS)}, s{sT[8]} offen sc1
    """)

def q_epilogue():
    a(f"s_add_u32 s{sT[5]}, s{sT[4]}, {WS_Q}\ns_add_u32 s{sT[6]}, s{sT[4]}, {WS_Q + 4096}")
    tq, tn, ta = vTMP[4:7]
    lg0 = a.lg
    a(f"""
    v_lshrrev_b32 v{tq}, 4, v{L}
    v_and_b32 v{tn}, 15, v{L}
    s_lshl_b32 s{sT[7]}, s{sTI}, 2
    s_lshr_b32 s{sT[8]}, s{sW}, 1
    s_add_u32 s{sT[7]}, s{sT[7]}, s{sT[8]}
    s_lshl_b32 s{sT[7]}, s{sT[7]}, 11
    s_and_b32 s{sT[8]}, s{sW}, 1
    s_cmp_eq_u32 s{sQ}, 0
    s_cselect_b32 s{sT[0]}, s{sQS}, 1.0
    v_mul_f32 v{XE}, s{sT[0]}, v{ACCE}
    v_mul_f32 v{XE+1}, s{sT[0]}, v{ACCE+1}
    v_mul_f32 v{XE+2}, s{sT[0]}, v{ACCE+2}
    v_mul_f32 v{XE+3}, s{sT[0]}, v{ACCE+3}
    v_cvt_pk_bf16_f32 v{XE}, v{XE}, v{XE+1}
    v_cvt_pk_bf16_f32 v{XE+1}, v{XE+2}, v{XE+3}
    s_cmp_eq_u32 s{sQ}, 1
    s_cbranch_scc1 L_pubV
    s_cmp_eq_u32 s{sQ}, 2
    s_cbranch_scc1 L_pubG
    s_cmp_eq_u32 s{sQ}, 3
    s_cbranch_scc1 L_pubE
    s_lshl_b32 s{sT[8]}, s{sT[8]}, 8
    s_add_u32 s{sT[7]}, s{sT[7]}, s{sT[8]}
    v_lshrrev_b32 v{ta}, 1, v{tq}
    v_lshlrev_b32 v{ta}, 9, v{ta}
    v_lshl_add_u32 v{ta}, v{tn}, 4, v{ta}
    v_and_b32 v{tq}, 1, v{tq}
    v_lshl_add_u32 v{ta}, v{tq}, 3, v{ta}
    buffer_store_dwordx2 {vr(XE,2)}, v{ta}, {srd(SWS)}, s{sT[7]} offen sc1
    s_branch L_pubE
    L_pubV:
    s_lshl_b32 s{sT[8]}, s{sT[8]}, 9
    s_add_u32 s{sT[7]}, s{sT[7]}, s{sT[8]}
    s_add_u32 s{sT[8]}, s{sMX}, {EX}
    v_lshlrev_b32 v{ta}, 5, v{tn}
    v_lshl_add_u32 v{ta}, v{tq}, 3, v{ta}
    v_add_u32 v{ta}, s{sT[8]}, v{ta}
    ds_write_b64 v{ta}, {vr(XE,2)}
    v_lshrrev_b32 v{ta}, 2, v{L}
    v_lshlrev_b32 v{ta}, 5, v{ta}
    v_and_b32 v{XE+2}, 1, v{L}
    v_lshl_add_u32 v{ta}, v{XE+2}, 4, v{ta}
    v_bfe_u32 v{XE+2}, v{L}, 1, 1
    v_lshl_add_u32 v{ta}, v{XE+2}, 3, v{ta}
    v_add_u32 v{ta}, s{sT[8]}, v{ta}
    s_waitcnt lgkmcnt(0)
    ds_read_b64_tr_b16 {vr(XE,2)}, v{ta}
    v_lshrrev_b32 v{ta}, 1, v{tq}
    v_lshlrev_b32 v{ta}, 8, v{ta}
    v_lshl_add_u32 v{ta}, v{tn}, 4, v{ta}
    v_and_b32 v{tq}, 1, v{tq}
    v_lshl_add_u32 v{ta}, v{tq}, 3, v{ta}
    s_waitcnt lgkmcnt(0)
    buffer_store_dwordx2 {vr(XE,2)}, v{ta}, {srd(SWS)}, s{sT[7]} offen offset:1024 sc1
    s_branch L_pubE
    L_pubG:
    v_mul_f32 v{ta}, {fbits(-math.log2(math.e)):#x}, v{ACCE}
    v_exp_f32 v{ta}, v{ta}
    s_lshl_b32 s{sT[7]}, s{sTI}, 3
    s_add_u32 s{sT[7]}, s{sT[7]}, s{sW}
    v_add_f32 v{ta}, 1.0, v{ta}
    v_rcp_f32 v{ta}, v{ta}
    s_lshl_b32 s{sT[7]}, s{sT[7]}, 6
    s_add_u32 s{sT[7]}, s{sT[7]}, {WS_G}
    v_lshlrev_b32 v{tn}, 2, v{tn}
    s_mov_b64 exec, 0xffff
    buffer_store_dword v{ta}, v{tn}, {srd(SWS)}, s{sT[7]} offen sc1
    s_mov_b64 exec, -1
    L_pubE:
    """)
    a.vm -= 3
    a.lg = lg0
    for b in range(2):
        for hf in range(2):
            base = ACC[0] + 16 * b + 8 * hf
            for j in range(4):
                a(f"v_cvt_pk_bf16_f32 v{base+j}, v{base+2*j}, v{base+2*j+1}")
            a(f"buffer_store_dwordx4 {vr(base,4)}, v{vL16}, {srd(SWS)}, s{sT[5+hf]} offen offset:{1024*b} sc1")

a(f"s_cmp_eq_u32 s{sU}, 0\ns_cbranch_scc1 L_pathQ")
proj_path('G')
a("L_join:")
a.forget()

QA, QB, KF, V1, V2 = 128, 132, 136, 140, 144
vG, vIDX, vAK, vAV1, vAV2, vKVS = 148, 150, 151, 152, 153, 154
SA, SB, OA, OB = 160, 176, 192, 208
for m in mfmas(15, 1): a(m)
stamp(3); stamp(10, 2)
a(f"""
s_cmp_lg_u32 s{sW}, 0
s_cbranch_scc1 L_s1done
s_mov_b32 s{sT[0]}, 0
L_s1poll:
s_waitcnt vmcnt(0)
v_cmp_ne_u32 vcc, 1, v{t0}
s_cbranch_vccz L_s1done
s_mov_b64 exec, vcc
buffer_load_dword v{t0}, v{t1}, {srd(SWS)}, s{sT[1]} offen sc1
s_mov_b64 exec, -1
s_add_u32 s{sT[0]}, s{sT[0]}, 1
s_cmp_lt_u32 s{sT[0]}, {SPIN}
s_cbranch_scc1 L_s1poll
s_waitcnt vmcnt(0)
L_s1done:
s_barrier
""")
a.forget()
stamp(4)
a(f"""
s_lshl_b32 s{sT[0]}, s{sI}, 1
s_and_b32 s{sT[1]}, s{sW}, 1
s_add_u32 s{sT[1]}, s{sT[0]}, s{sT[1]}
s_lshl_b32 s{sT[2]}, s{sT[1]}, 5
s_lshl_b32 s{sT[3]}, s{sJ}, 2
s_add_u32 s{sT[2]}, s{sT[2]}, s{sT[3]}
s_and_b32 s{sT[3]}, s{sW}, 2
s_add_u32 s{sT[2]}, s{sT[2]}, s{sT[3]}
s_lshr_b32 s{sT[3]}, s{sW}, 2
s_add_u32 s{sT[2]}, s{sT[2]}, s{sT[3]}
s_lshl_b32 s{sOO}, s{sT[2]}, 10
s_add_u32 s{sT[4]}, s{sOO}, {WS_Q}
s_xor_b32 s{sT[5]}, s{sT[4]}, 1024
buffer_load_dwordx4 {vr(QA,4)}, v{vL16}, {srd(SWS)}, s{sT[4]} offen sc1
buffer_load_dwordx4 {vr(QB,4)}, v{vL16}, {srd(SWS)}, s{sT[5]} offen sc1
""")
a(f"""
s_and_b32 s{sT[4]}, s{sW}, 1
s_bfe_u32 s{sT[5]}, s{sW}, 0x10001
s_lshl_b32 s{sT[6]}, s{sT[3]}, 16
s_lshl_b32 s{sT[7]}, s{sT[4]}, 10
s_add_u32 s{sT[6]}, s{sT[6]}, s{sT[7]}
v_add_u32 v{vKVS}, s{sT[6]}, v{vL16}
s_lshl_b32 s{sT[6]}, s{sT[3]}, 5
s_add_u32 s{sT[6]}, s{sT[6]}, s{sT[5]}
s_mul_i32 s{sT[6]}, s{sT[6]}, {REC}
s_add_u32 s{sMX}, s{sT[6]}, s{sT[7]}
s_lshr_b32 s{sT[6]}, s2, 3
s_add_u32 s{sT[6]}, s{sT[6]}, s{sT[5]}
s_and_b32 s{sT[6]}, s{sT[6]}, 31
s_lshl_b32 s{sXO}, s{sT[6]}, 11
""")
kvtok = {}
def kv_step(m):
    if m == 0:
        a(f"s_mov_b32 m0, s{sMX}\ns_nop 0")
    else:
        a(f"s_add_u32 s{sXO}, s{sXO}, 4096\ns_add_u32 m0, s{sMX}, {2*m*REC}\ns_and_b32 s{sXO}, s{sXO}, 0xffff")
    kvtok[m] = a(f"buffer_load_dwordx4 v{vKVS}, {srd(SWS)}, s{sXO} offen sc1 lds")
B1, B2 = OPT['b1'], OPT['b2']
KV_FIRST = B1 // 2 + 1
KV_PRE = B2 // 2 + 1
for m in range(KV_FIRST): kv_step(m)
a(f"""
v_and_b32 v{t0}, 31, v{L}
v_lshlrev_b32 v{t0}, 2, v{t0}
s_lshl_b32 s{sT[1]}, s{sT[1]}, 7
s_add_u32 s{sT[1]}, s{sT[1]}, {WS_G}
buffer_load_dword v{vG}, v{t0}, {srd(SWS)}, s{sT[1]} offen sc1
""")
a(f"""
v_mov_b32 v24, 0x3f803f80
v_mov_b32 v25, 0x3f803f80
v_mov_b32 v26, 0x3f803f80
v_mov_b32 v27, 0x3f803f80
v_mul_u32_u24 v{t3}, {REC}, v{L}
ds_write_b128 v{t3}, v[24:27] offset:2048
s_mul_i32 s{sT[3]}, s{sT[3]}, {HALF}
v_add_u32 v{vAK}, s{sT[3]}, v{vL16}
v_and_b32 v{t0}, 15, v{L}
v_lshrrev_b32 v{t1}, 5, v{L}
v_lshlrev_b32 v{t0}, 4, v{t0}
v_lshl_add_u32 v{t0}, v{t1}, 8, v{t0}
v_add_u32 v{t1}, 1024, v{t0}
v_add_u32 v{t2}, 1536, v{t0}
v_mov_b32 v{t3}, 2048
s_mov_b32 vcc_lo, 0xffff0000
s_mov_b32 vcc_hi, 0xffff0000
v_cndmask_b32 v{t1}, v{t1}, v{t3}, vcc
v_cndmask_b32 v{t2}, v{t2}, v{t3}, vcc
v_add_u32 v{vAV1}, s{sT[3]}, v{t1}
v_add_u32 v{vAV2}, s{sT[3]}, v{t2}
v_mov_b32 v{vIDX}, 0xdddddddd
""")
for r in range(0, 16, 2): a(f"v_mov_b64 {vr(OA+r,2)}, 0\nv_mov_b64 {vr(OB+r,2)}, 0")
for b in range(2):
    for jp in range(2):
        g0 = gelu_pair(ACC[1] + 16 * b, 2 * jp, vGT, pk=OPT.get('pk2', 1)); g1 = gelu_pair(ACC[1] + 16 * b, 2 * jp + 1, 30, pk=OPT.get('pk2', 1))
        for k, (x, y) in enumerate(zip(g0, g1)):
            a(x); a(y)
tokbox = {}
def h_store(k):
    if k == 0:
        a(f"""
        s_cmp_eq_u32 s{sU}, 0
        s_cbranch_scc1 L_noh1
        s_sub_u32 s{sT[1]}, s{sHO}, 4096
        buffer_store_dwordx4 {vr(ACC[0]+16,4)}, v{vL16}, {srd(SWS)}, s{sT[1]} offen offset:1024 sc1
        L_noh1:
        """)
        a.vm -= 1
    else:
        tokbox['h'] = a(f"buffer_store_dwordx4 {vr(ACC[1]+16*(k-1),4)}, v{vL16}, {srd(SWS)}, s{sHO} offen offset:{1024*(k-1)} sc1")

DACC = 64
HF = [32, 40, 48, 56]
WF = [224, 232]
vDS, vDR0, vDR1, vH0, vH1, vTCH, vF2 = 1, 2, 3, 4, 5, 6, 7
def ring_base(dst, w, tmp):
    a(f"""
    s_lshl_b32 s{dst}, s{w}, 13
    s_cmp_ge_u32 s{w}, 3
    s_cselect_b32 s{tmp}, {HALF - 3*8192}, 0
    s_add_u32 s{dst}, s{dst}, s{tmp}
    s_cmp_ge_u32 s{w}, 6
    s_cselect_b32 s{tmp}, {HALF - 3*8192}, 0
    s_add_u32 s{dst}, s{dst}, s{tmp}
    """)
assert B2 * REC >= 3 * 8192 + 2048
vTRP = 8
ring_base(sRING, sW, sT[1])
a(f"""
v_lshrrev_b32 v{t0}, 3, v{L}
v_and_b32 v{t1}, 7, v{L}
v_bfe_u32 v{t2}, v{L}, 4, 1
v_lshlrev_b32 v{t3}, 2, v{t2}
v_xor_b32 v{t1}, v{t1}, v{t3}
v_lshlrev_b32 v{t1}, 4, v{t1}
v_lshl_add_u32 v{t0}, v{t0}, 10, v{t1}
s_lshl_b32 s{sT[1]}, s{sJ}, 7
v_add_u32 v{vDS}, s{sT[1]}, v{t0}
v_bfe_u32 v{t0}, v{L}, 2, 2
v_lshrrev_b32 v{t1}, 5, v{L}
v_lshl_add_u32 v{t1}, v{t1}, 3, v{t0}
v_lshlrev_b32 v{t1}, 7, v{t1}
v_lshrrev_b32 v{t0}, 1, v{t0}
v_lshl_add_u32 v{t1}, v{t0}, 6, v{t1}
v_lshl_add_u32 v{t1}, v{t2}, 5, v{t1}
v_and_b32 v{t0}, 3, v{L}
v_lshl_add_u32 v{vTRP}, v{t0}, 3, v{t1}
v_add_u32 v{vDR0}, s{sRING}, v{vTRP}
v_xor_b32 v{vDR1}, 64, v{vDR0}
s_and_b32 s{sT[1]}, s{sW}, 1
s_mul_i32 s{sT[1]}, s{sT[1]}, {112*1024}
s_mul_i32 s{sT[2]}, s{sI}, 224
s_mul_i32 s{sT[3]}, s{sW}, 14
s_add_u32 s{sT[2]}, s{sT[2]}, s{sT[3]}
s_lshl_b32 s{sT[2]}, s{sT[2]}, 10
s_add_u32 s{sT[2]}, s{sT[2]}, {WS_H}
s_add_u32 s{sT[4]}, s{sT[2]}, s{sT[1]}
v_add_u32 v{vH0}, s{sT[4]}, v{vL16}
s_sub_u32 s{sT[4]}, s{sT[2]}, s{sT[1]}
s_add_u32 s{sT[4]}, s{sT[4]}, {112*1024}
v_add_u32 v{vH1}, s{sT[4]}, v{vL16}
s_lshl_b32 s{sMW}, s{sT[3]}, 14
v_lshlrev_b32 v{vTCH}, 7, v{L}
v_and_b32 v{vF2}, 0x7ff, v{vTCH}
s_mul_i32 s{sROT}, s{sJ}, 7
s_lshr_b32 s{sROT}, s{sROT}, 2
s_mul_i32 s{sT[1]}, s{sU}, 7
s_lshr_b32 s{sT[1]}, s{sT[1]}, 1
s_add_u32 s{sROT}, s{sROT}, s{sT[1]}
s_cmp_ge_u32 s{sROT}, 14
s_cselect_b32 s{sT[1]}, 14, 0
s_sub_u32 s{sROT}, s{sROT}, s{sT[1]}
s_lshl_b32 s{sROT}, s{sROT}, 10
""")
a.wait(kvtok[KV_FIRST - 1], a.lastlg())
a("s_barrier")
stamp(5)

def qk(S, Q): return f"v_mfma_f32_32x32x16_bf16 {vr(S,16)}, {vr(KF,4)}, {vr(Q,4)}, 0"
def pv(O, V, S): return f"v_smfmac_f32_32x32x32_bf16 {vr(O,16)}, {vr(V,4)}, {vr(S,8)}, v{vIDX}"
def rdK(t): return a(f"ds_read_b128 {vr(KF,4)}, v{vAK} offset:{t*REC}")
def rdV1(t): return a(f"ds_read_b128 {vr(V1,4)}, v{vAV1} offset:{t*REC}")
def rdV2(t): return a(f"ds_read_b128 {vr(V2,4)}, v{vAV2} offset:{t*REC}")
NT = 32
wtok, htok, rtok = {}, {}, {}
def w_load_a(u):
    slot = (u & 3) * 2048
    if u < 14:
        a(f"s_lshl4_add_u32 s{sWOF}, s{sROT}, s{sMW}\ns_add_u32 m0, s{sRING}, {slot}\ns_add_u32 s{sT[1]}, s{sWOF}, 8192")
    else:
        if u == 14: a(f"s_lshl_b32 s{sWOF}, s{sW}, 16")
        else: a(f"s_add_u32 s{sWOF}, s{sWOF}, 16384")
        a(f"s_add_u32 m0, s{sRING}, {slot}\ns_add_u32 s{sT[1]}, s{sWOF}, 8192")
    a(f"buffer_load_dwordx4 v{vDS}, {srd(SWD if u < 14 else SWO)}, s{sWOF} offen lds")
def w_load_b(u):
    slot = (u & 3) * 2048
    a(f"s_add_u32 m0, s{sRING}, {slot+1024}")
    if u < 14:
        a(f"buffer_load_dwordx4 {vr(HF[u&3],4)}, v{vH0}, {srd(SWS)}, s{sROT} offen sc1")
    wtok[u] = a(f"buffer_load_dwordx4 v{vDS}, {srd(SWD if u < 14 else SWO)}, s{sT[1]} offen lds")
def h_load_b(u):
    htok[u] = a(f"buffer_load_dwordx4 {vr(HF[u&3]+4,4)}, v{vH1}, {srd(SWS)}, s{sROT} offen sc1")
    if u < 13:
        a(f"s_add_u32 s{sROT}, s{sROT}, 1024\ns_cmp_eq_u32 s{sROT}, {14*1024}\ns_cselect_b32 s{sROT}, 0, s{sROT}")
def w_read(u, b):
    if b == 0: a.wait(wtok[u], htok[u])
    slot = (u & 3) * 2048
    for e in range(2):
        rtok[u, b] = a(f"ds_read_b64_tr_b16 {vr(WF[u&1] + 4*b + 2*e, 2)}, v{(vDR0, vDR1)[b]} offset:{slot + e*512}")
def d_mfma(u, k):
    tb, b = k >> 1, k & 1
    a.wait(rtok[u, 1])
    d = vr(DACC + 32 * tb + 16 * b, 16)
    a(f"v_mfma_f32_32x32x16_bf16 {d}, {vr(WF[u&1]+4*b,4)}, {vr(HF[u&3]+4*tb,4)}, {'0' if u == 0 else d}")

ev = {}
def at(pos, f):
    ev.setdefault(pos, []).append(f)
p = 3
VS = OPT.get('vs', 8)
for k in range(3):
    at(p, lambda k=k: h_store(k)); p += VS // 2
for m in range(KV_FIRST, 16):
    at(p, lambda m=m: kv_step(m)); p += VS
p = max(p, 32 * B1 + 3)
def touch():
    a(f"""
    s_cmp_ge_u32 s{sW}, 4
    s_cbranch_scc1 L_notouch
    s_lshr_b32 s{sT[0]}, s2, 3
    s_mul_i32 s{sT[1]}, s{sT[0]}, 57344
    s_lshl_b32 s{sT[2]}, s{sW}, 14
    s_add_u32 s{sT[1]}, s{sT[1]}, s{sT[2]}
    buffer_load_dword v9, v{vTCH}, {srd(SWD)}, s{sT[1]} offen
    s_add_u32 s{sT[1]}, s{sT[1]}, 8192
    s_lshl_b32 s{sT[0]}, s{sT[0]}, 14
    s_lshl_b32 s{sT[2]}, s{sW}, 12
    buffer_load_dword v10, v{vTCH}, {srd(SWD)}, s{sT[1]} offen
    s_add_u32 s{sT[0]}, s{sT[0]}, s{sT[2]}
    s_mov_b32 exec_hi, 0
    buffer_load_dword v11, v{vTCH}, {srd(SWO)}, s{sT[0]} offen
    s_mov_b32 exec_hi, -1
    L_notouch:
    """)
    a.vm -= 3
if OPT['touch']: at(p, touch)
f2tok = {}
def f2_load():
    a(f"s_lshr_b32 s{sT[0]}, s{sI}, 1\ns_lshl_b32 s{sT[0]}, s{sT[0]}, 11\ns_add_u32 s{sT[0]}, s{sT[0]}, {WS_F2}")
    f2tok[0] = a(f"buffer_load_dword v12, v{vF2}, {srd(SWS)}, s{sT[0]} offen sc1")
at(32 * (B2 - 2) + 7, f2_load)
def f2_check():
    a(f"""
    s_mov_b32 s{sT[1]}, 0
    L_s2poll:
    v_cmp_ne_u32 vcc, 1, v12
    s_cbranch_vccz L_s2done
    buffer_load_dword v12, v{vF2}, {srd(SWS)}, s{sT[0]} offen sc1
    s_add_u32 s{sT[1]}, s{sT[1]}, 1
    s_cmp_lt_u32 s{sT[1]}, {SPIN}
    s_waitcnt vmcnt(0)
    s_cbranch_scc1 L_s2poll
    L_s2done:
    """)
    a.vm -= 1
D0 = B2 + OPT.get('dlag', 2)
slots = []
for t in range(D0, NT):
    sl = [32 * t + 8, 32 * t + 14, 32 * t + 24, 32 * t + 30]
    dens = OPT.get('dens', 3)
    if dens == 3 or (dens == 0 and len(slots) + 4 > 56 - 3 * (NT - 1 - t) and (len(slots) + 3) * (NT - D0) >= 56 * (t + 1 - D0)): sl.pop(2)
    slots += sl
nfused = min(14, len(slots) // 4)
loadpos = {}
for u in range(18):
    if u < 3: loadpos[u] = 32 * B2 + 3 + 10 * u
    elif u < 14 and u - 3 < nfused: loadpos[u] = slots[4 * (u - 3)] + 1
    elif u >= 14 and u - 4 < nfused and loadpos[u - 1] is not None: loadpos[u] = slots[4 * (u - 4)] + 10
    else: loadpos[u] = None
for u in range(18):
    if loadpos[u] is None: continue
    at(loadpos[u], lambda u=u: w_load_a(u))
    at(loadpos[u] + 3, lambda u=u: w_load_b(u))
    if u < 14: at(loadpos[u] + 6 + (1 if u >= 3 else 0), lambda u=u: h_load_b(u))
for u in range(nfused):
    rp = slots[4 * u] - 14 if u == 0 else slots[4 * u - 2] + 1
    at(rp, lambda u=u: w_read(u, 0)); at(rp + 2, lambda u=u: w_read(u, 1))
    for k in range(4): at(slots[4 * u + k], lambda u=u, k=k: d_mfma(u, k))
if OPT['prio']:
    lad = [OPT.get('l1', 70), OPT.get('l2', 92), OPT.get('l3', 98)]
    for lo, hi, fr in ((0, B1, (30, 60, 88)), (B1, B2, (60, 87, 96)), (B2, NT, lad)):
        at(32 * lo + 1, lambda: a("s_setprio 3"))
        for k in range(3): at(32 * lo + (32 * (hi - lo) * fr[k]) // 100, lambda k=k: a(f"s_setprio {2-k}"))

tK = rdK(0); tV1 = rdV1(0); tV2 = None
a.wait(tK)
a(qk(SA, QA))
EPV1 = OPT.get('epv1', 11)
for t in range(NT):
    if t == B1:
        a.wait(tokbox['h'], kvtok[KV_PRE - 1])
        a("s_barrier")
        a(f"""
        s_cmp_lg_u32 s{sW}, 0
        s_cbranch_scc1 L_noflag2
        s_lshl_b32 s{sT[9]}, s{sT[9]}, 7
        s_add_u32 s{sT[9]}, s{sT[9]}, {WS_F2}
        v_mov_b32 v{t0}, 1
        s_mov_b64 exec, 1
        buffer_store_dword v{t0}, v{vZ}, {srd(SWS)}, s{sT[9]} offen sc1
        s_mov_b64 exec, -1
        L_noflag2:
        """)
        a.vm -= 1
        stamp(6)
    if t == B2:
        a.wait(kvtok[15], f2tok[0], tV2)
        f2_check()
        a("s_barrier")
        stamp(9)
    for ph, (S, So, O, Oo, Qo) in enumerate(((SA, SB, OA, OB, QB), (SB, SA, OB, OA, QA))):
        for e in range(16):
            if e == 2:
                if ph == 0:
                    if t > 0: a(pv(Oo, V2, So + 8))
                    tV2 = rdV2(t)
                else:
                    a.wait(tV2, tK); a(pv(Oo, V2, So + 8))
            if (e == 5 and not (t == 0 and ph == 0)) or (t == 0 and ph == 0 and e == 0):
                if ph == 0:
                    a(qk(So, Qo))
                    if t + 1 < NT: tK = rdK(t + 1)
                elif t + 1 < NT: a(qk(So, Qo))
            if e == EPV1:
                if ph == 0: a.wait(tV1)
                a(pv(O, V1, S))
                if ph == 1 and t + 1 < NT: tV1 = rdV1(t + 1)
            for f in ev.pop(32 * t + 16 * ph + e, []): f()
            a(f"v_exp_f32 v{S+e}, v{S+e}")
assert not ev, sorted(ev)
a(pv(OB, V2, SB + 8))
stamp(7)
MO = TOP + 2 * 8192
ML = HALF + 3 * 8192
def merge_base(dst, w):
    a(f"s_lshl_b32 s{dst}, s{w}, 11\ns_add_u32 s{dst}, s{dst}, {MO}\ns_cmp_eq_u32 s{w}, 7\ns_cselect_b32 s{dst}, {3*8192}, s{dst}")
a(f"s_xor_b32 s{sT[2]}, s{sW}, 4")
merge_base(sT[0], sW); merge_base(sT[3], sT[2])
a(f"""
v_add_u32 v{t0}, s{sT[0]}, v{vL16}
v_add_u32 v{t1}, s{sT[3]}, v{vL16}
s_lshl_b32 s{sT[0]}, s{sW}, 8
s_add_u32 s{sT[0]}, s{sT[0]}, {ML}
v_lshl_add_u32 v{t2}, v{L}, 2, s{sT[0]}
s_lshl_b32 s{sT[2]}, s{sT[2]}, 8
s_add_u32 s{sT[2]}, s{sT[2]}, {ML}
v_lshl_add_u32 v{t3}, v{L}, 2, s{sT[2]}
ds_write_b128 v{t0}, {vr(OB,4)}
ds_write_b128 v{t0}, {vr(OB+4,4)} offset:1024
ds_write_b32 v{t2}, v{OB+8}
""")
a.wait_lg0()
a("s_barrier")
a(f"""
ds_read_b32 v{SB+8}, v{t3}
ds_read_b128 {vr(SB,4)}, v{t1}
ds_read_b128 {vr(SB+4,4)}, v{t1} offset:1024
s_add_u32 s{sT[4]}, s{sOO}, {WS_O}
s_mov_b32 s{sT[6]}, {fbits(2.0**-60):#x}
s_mov_b32 s{sT[7]}, {fbits(2.0**60):#x}
""")
a.wait_lg0()
a(f"v_add_f32 v{OA+8}, v{OA+8}, v{SB+8}")
for j in range(4): a(f"v_pk_add_f32 {vr(OA+2*j,2)}, {vr(OA+2*j,2)}, {vr(SB+2*j,2)}")
a(f"v_pk_mul_f32 {vr(t2,2)}, {vr(OA,2)}, 0 op_sel_hi:[1,0]")
for j in range(1, 4): a(f"v_pk_fma_f32 {vr(t2,2)}, {vr(OA+2*j,2)}, 0, {vr(t2,2)} op_sel_hi:[1,0,1]")
a(f"""
v_add_f32 v{t2}, v{t2}, v{t3}
v_add_f32 v{t2}, v{t2}, v{OA+8}
v_cmp_nle_f32 vcc, s{sT[6]}, v{t2}
v_cmp_nge_f32 s[{sT[2]}:{sT[3]}], s{sT[7]}, v{t2}
s_or_b64 vcc, vcc, s[{sT[2]}:{sT[3]}]
""")
if OPT['force_fb']: a("s_mov_b64 vcc, -1")
a("""
s_cbranch_vccnz L_true_max
L_norm:
""")
a(f"""
v_rcp_f32 v{t0}, v{OA+8}
s_nop 0
v_mul_f32 v{t0}, v{t0}, v{vG}
""")
for j in range(4): a(f"v_pk_mul_f32 {vr(OA+2*j,2)}, {vr(OA+2*j,2)}, {vr(t0,2)} op_sel_hi:[1,0]")
for j in range(4): a(f"v_cvt_pk_bf16_f32 v{OA+j}, v{OA+2*j}, v{OA+2*j+1}")
for j in range(4): a(f"v_min_u32 v{OA+j}, -2, v{OA+j}")
a(f"buffer_store_dwordx4 {vr(OA,4)}, v{vL16}, {srd(SWS)}, s{sT[4]} offen sc1")
stamp(8)

pending = [u for u in range(18) if loadpos[u] is None]
for u in range(nfused, 14):
    w_read(u, 0); w_read(u, 1)
    for k in range(4): d_mfma(u, k)
    while pending and pending[0] - 4 <= u:
        v = pending.pop(0)
        w_load_a(v); w_load_b(v)
        if v < 14: h_load_b(v)
for v in pending:
    w_load_a(v); w_load_b(v)
XB0 = ((B2 * REC + 255) // 256) * 256
assert XB0 + 4 * 8192 <= HALF
def inbox(dst, w, tmp):
    a(f"s_and_b32 s{dst}, s{w}, 3\ns_lshl_b32 s{dst}, s{dst}, 13\ns_cmp_ge_u32 s{w}, 4\ns_cselect_b32 s{tmp}, {HALF}, 0\ns_add_u32 s{dst}, s{dst}, s{tmp}\ns_add_u32 s{dst}, s{dst}, {XB0}")
a(f"s_xor_b32 s{sT[2]}, s{sW}, 1")
inbox(sT[8], sW, sT[0]); inbox(sT[3], sT[2], sT[0])
a(f"v_add_u32 v{t0}, s{sT[3]}, v{vL16}\nv_add_u32 v{t1}, s{sT[8]}, v{vL16}")
for j in range(8): a(f"ds_write_b128 v{t0}, {vr(DACC+32+4*j,4)} offset:{1024*j}")
a(f"s_and_b32 s{sT[2]}, s{sW}, 6")
ring_base(sT[3], sT[2], sT[0])
a(f"s_or_b32 s{sT[2]}, s{sW}, 1")
ring_base(sT[4], sT[2], sT[0])
a(f"""
v_add_u32 v24, s{sT[3]}, v{vTRP}
v_add_u32 v26, s{sT[4]}, v{vTRP}
v_xor_b32 v25, 64, v24
v_xor_b32 v27, 64, v26
v_sub_f32 v{vG}, 1.0, v{vG}
s_lshl_b32 s{sT[0]}, s{sI}, 1
s_and_b32 s{sT[1]}, s{sW}, 1
s_add_u32 s{sT[0]}, s{sT[0]}, s{sT[1]}
s_lshl_b32 s{sT[0]}, s{sT[0]}, 15
s_lshr_b32 s{sT[1]}, s{sW}, 1
s_lshl_b32 s{sT[1]}, s{sT[1]}, 13
s_add_u32 s{sT[0]}, s{sT[0]}, s{sT[1]}
s_add_u32 s{sT[0]}, s{sT[0]}, {WS_O}
s_add_u32 s{sT[1]}, s{sT[0]}, 4096
""")
a.wait(wtok[17], a.lastlg())
a("s_barrier")
OF, WOF, XT = 32, 160, 96
def o_loads():
    for v in range(8):
        a(f"buffer_load_dwordx4 {vr(OF + 4*v, 4)}, v{vL16}, {srd(SWS)}, s{sT[v>>2]} offen offset:{1024*(v&3)} sc1")
o_loads()
xt = [a(f"ds_read_b128 {vr(XT+4*j,4)}, v{t1} offset:{1024*j}") for j in range(8)]
def wo_read(v):
    slot = ((14 + (v & 3)) & 3) * 2048
    for b in range(2):
        for e in range(2):
            a(f"ds_read_b64_tr_b16 {vr(WOF + 8*v + 4*b + 2*e, 2)}, v{24 + 2*(v>>2) + b} offset:{slot + e*512}")
for j in range(8):
    a.wait(xt[j])
    wo_read(j)
    for i in range(2):
        r = 4 * j + 2 * i
        a(f"v_pk_add_f32 {vr(DACC+r,2)}, {vr(DACC+r,2)}, {vr(XT+r,2)}")
    for i in range(2):
        r = 4 * j + 2 * i
        a(f"v_pk_mul_f32 {vr(DACC+r,2)}, {vr(DACC+r,2)}, {vr(vG,2)} op_sel_hi:[1,0]")
a(f"""
v_and_b32 v{t0}, 31, v{L}
v_lshrrev_b32 v{t1}, 5, v{L}
v_and_b32 v{t2}, 7, v{L}
v_xor_b32 v{t1}, v{t1}, v{t2}
v_lshlrev_b32 v{t1}, 4, v{t1}
v_lshl_add_u32 v{t0}, v{t0}, 8, v{t1}
v_add_u32 v9, s{sT[8]}, v{t0}
v_xor_b32 v10, 32, v9
v_xor_b32 v11, 64, v9
v_xor_b32 v12, 0x60, v9
v_lshrrev_b32 v{t0}, 3, v{L}
v_lshlrev_b32 v{t1}, 1, v{t2}
v_xor_b32 v{t1}, v{t1}, v{t0}
v_lshlrev_b32 v{t1}, 4, v{t1}
v_lshl_add_u32 v{t1}, v{t0}, 8, v{t1}
s_lshl_b32 s{sT[3]}, s{sW}, 11
s_add_u32 s{sT[3]}, s{sT[3]}, {XB0}
v_add_u32 v1, s{sT[3]}, v{t1}
v_xor_b32 v2, 16, v1
v_add_u32 v3, {HALF}, v1
v_add_u32 v4, {HALF}, v2
s_lshl_b32 s{sT[4]}, s{sI}, 3
s_add_u32 s{sT[4]}, s{sT[4]}, s{sW}
s_lshl_b32 s{sT[4]}, s{sT[4]}, 13
s_lshl_b32 s{sT[5]}, s{sJ}, 7
s_add_u32 s{sT[4]}, s{sT[4]}, s{sT[5]}
v_lshlrev_b32 v{t2}, 4, v{t2}
v_lshl_add_u32 v5, v{t0}, 10, v{t2}
s_mov_b32 s{sT[2]}, 0
L_s3poll:
""")
a.wait_vm0()
a(f"v_max_u32 v{t0}, v{OF}, v{OF+1}\nv_max_u32 v{t1}, v{OF+2}, v{OF+3}")
for j in range(2, 16): a(f"v_max3_u32 v{t0 + (j&1)}, v{t0 + (j&1)}, v{OF+2*j}, v{OF+2*j+1}")
a(f"""
v_max_u32 v{t0}, v{t0}, v{t1}
v_cmp_eq_u32 vcc, -1, v{t0}
s_cbranch_vccnz L_s3retry
L_s3done:
""")
stamp(10)
a.wait_lg0()
for v in range(8):
    for b in range(2):
        d = vr(DACC + 16 * b, 16)
        a(f"v_mfma_f32_32x32x16_bf16 {d}, {vr(WOF+8*v+4*b,4)}, {vr(OF+4*v,4)}, {d}")
for b in range(2):
    for qd in range(4):
        a(f"ds_write_b128 v{9+qd}, {vr(DACC + 16*b + 4*qd, 4)} offset:{b*128}")
a.wait_lg0()
a("s_barrier")
RD = 128
rt = []
for p in range(4):
    for e in range(2):
        rt.append(a(f"ds_read_b128 {vr(RD + 8*p + 4*e, 4)}, v{1 + e + 2*(p>>1)} offset:{(p&1)*16384}"))
for p in range(1, 4):
    a.wait(rt[2 * p + 1])
    for j in range(4):
        a(f"v_pk_add_f32 {vr(RD+2*j,2)}, {vr(RD+2*j,2)}, {vr(RD+8*p+2*j,2)}")
for j in range(4): a(f"v_cvt_pk_bf16_f32 v{RD+j}, v{RD+2*j}, v{RD+2*j+1}")
a(f"buffer_store_dwordx4 {vr(RD,4)}, v5, {srd(SOUT)}, s{sT[4]} offen")
if OPT['stamp']:
    a("s_waitcnt vmcnt(0)")
    stamp(11)
    a("s_waitcnt lgkmcnt(0)")
    a(f"s_mov_b32 s28, s{sT[2]}")
    if 'pad' in OPT:
        K = OPT['pad']
        if K >= 0: a(f"s_sub_u32 s{sT[0]}, s{4+2*K}, s30\ns_mul_i32 s{sT[0]}, s{sT[0]}, 4")
        else: a(f"s_mov_b32 s{sT[0]}, 0")
        a(f"""
        s_add_u32 s{sT[0]}, s{sT[0]}, 6000
        L_pad:
        s_memrealtime s[{sT[2]}:{sT[3]}]
        s_waitcnt lgkmcnt(0)
        s_sub_u32 s{sT[2]}, s{sT[2]}, s30
        s_cmp_lt_u32 s{sT[2]}, s{sT[0]}
        s_cbranch_scc1 L_pad
        """)
        a(f"""
        s_lshl_b32 s{sT[0]}, s{sW}, 8
        s_or_b32 s{sT[0]}, s{sT[0]}, s2
        s_cmp_lg_u32 s{sT[0]}, 100
        s_cbranch_scc1 L_end
        """)
        a("v_mov_b32 v1, 0\ns_mov_b64 exec, 1")
        for k in range(12):
            a(f"s_sub_u32 s{sT[0]}, s{4+2*k}, s30\nv_mov_b32 v2, s{sT[0]}\nbuffer_store_dword v2, v1, {srd(SDBG)}, 0 offen offset:{4+4*k}")
    else:
        a(f"s_lshl_b32 s{sT[0]}, s2, 3\ns_add_u32 s{sT[0]}, s{sT[0]}, s{sW}\ns_lshl_b32 s{sT[0]}, s{sT[0]}, 6\ns_add_u32 s{sT[0]}, s{sT[0]}, {WS_STAMP}")
        a("v_mov_b32 v1, 0\ns_mov_b64 exec, 1")
        for k in range(14):
            a(f"v_mov_b32 v2, s{4+2*k}\nbuffer_store_dword v2, v1, {srd(SWS)}, s{sT[0]} offen offset:{4*k}")
a("L_end:\ns_endpgm")
a("L_s3retry:")
o_loads()
a(f"""
s_add_u32 s{sT[2]}, s{sT[2]}, 1
s_cmp_lt_u32 s{sT[2]}, {SPIN}
s_cbranch_scc1 L_s3poll
s_waitcnt vmcnt(0)
s_branch L_s3done
""")

a("L_pathQ:")
a.forget()
proj_path('Q')
a("s_branch L_join")

CM = SB
a(f"""
L_true_max:
s_waitcnt vmcnt(0) lgkmcnt(0)
v_mov_b32 v{t0}, 0xff800000
s_mov_b32 s{sT[0]}, {WS_KV}
L_tm1:
buffer_load_dwordx4 {vr(KF,4)}, v{vL16}, {srd(SWS)}, s{sT[0]} offen sc1
s_waitcnt vmcnt(0)
{qk(SA, QA)}
""")
for j in range(8): a(f"v_max3_f32 v{t0}, v{t0}, v{SA+2*j}, v{SA+2*j+1}")
a(f"""
s_add_u32 s{sT[0]}, s{sT[0]}, 2048
s_cmp_lt_u32 s{sT[0]}, {WS_KV + 64*2048}
s_cbranch_scc1 L_tm1
v_mov_b32 v{t1}, v{t0}
v_permlane32_swap_b32 v{t0}, v{t1}
v_max_f32 v{t0}, v{t0}, v{t1}
""")
for r in range(16): a(f"v_sub_f32 v{CM+r}, 0, v{t0}\nv_mov_b32 v{OA+r}, 0")
for r in range(8): a(f"v_mov_b32 v{V1+r}, 0x3f803f80")
a(f"""
v_and_b32 v{t1}, 15, v{L}
v_lshrrev_b32 v{t2}, 5, v{L}
v_lshlrev_b32 v{t1}, 4, v{t1}
v_lshl_add_u32 v{t1}, v{t2}, 8, v{t1}
s_mov_b32 s{sT[0]}, {WS_KV}
s_mov_b32 s{sT[2]}, 0xffff
s_mov_b32 s{sT[3]}, 0xffff
L_tm2:
buffer_load_dwordx4 {vr(KF,4)}, v{vL16}, {srd(SWS)}, s{sT[0]} offen sc1
s_mov_b64 exec, s[{sT[2]}:{sT[3]}]
buffer_load_dwordx4 {vr(V1,4)}, v{t1}, {srd(SWS)}, s{sT[0]} offen offset:1024 sc1
buffer_load_dwordx4 {vr(V2,4)}, v{t1}, {srd(SWS)}, s{sT[0]} offen offset:1536 sc1
s_mov_b64 exec, -1
s_waitcnt vmcnt(0)
v_mfma_f32_32x32x16_bf16 {vr(SA,16)}, {vr(KF,4)}, {vr(QA,4)}, {vr(CM,16)}
""")
for e in range(16): a(f"v_exp_f32 v{SA+e}, v{SA+e}")
a(pv(OA, V1, SA)); a(pv(OA, V2, SA + 8))
a(f"""
s_add_u32 s{sT[0]}, s{sT[0]}, 2048
s_cmp_lt_u32 s{sT[0]}, {WS_KV + 64*2048}
s_nop 7
s_cbranch_scc1 L_tm2
s_nop 7
s_branch L_norm
""")

bad = a.check_branches()
assert not bad, bad

hdr = open(f'cdna_kernels/{NAME}.s.ref').read().split('\n')
head = [l for l in hdr if l.startswith(';') and '@launch' not in l]
out = "\n".join(head) + f"\n; @launch grid=(256,1,1) block=(512,1,1) lds={LDS_BYTES}\n"
out += f""".amdgcn_target "amdgcn-amd-amdhsa--gfx950"
.text
.globl {NAME}_kernel
.p2align 8
.type {NAME}_kernel,@function
{NAME}_kernel:
{a.text()}
.section .rodata,"a"
.p2align 6
.amdhsa_kernel {NAME}_kernel
  .amdhsa_next_free_vgpr 256
  .amdhsa_next_free_sgpr 102
  .amdhsa_accum_offset 256
  .amdhsa_group_segment_fixed_size 0
  .amdhsa_kernarg_size 104
  .amdhsa_user_sgpr_count 2
  .amdhsa_user_sgpr_kernarg_segment_ptr 1
  .amdhsa_system_sgpr_workgroup_id_x 1
.end_amdhsa_kernel
"""
open(sys.argv[1], 'w').write(out)
print("fused k-steps", nfused, "instructions:", sum(1 for i in a.ins if i.ws), "auto nops:", a.nnop, file=sys.stderr)
```

```python
import sys, math, struct
sys.path.insert(0, 'gen')
from asmlib import Asm

NAME = 'gated_mix__grouped_kv_mqa__geglu_ffn__prompt'
OPT = dict(stamp=0, force_fb=0, b1=5, b2=13, prio=1, pre=2, qflag=11, touch=1, pk=0, dens=4, sprio=1)
for x in sys.argv[2:]:
    k, v = x.split('='); OPT[k] = int(v)

def fbits(x): return struct.unpack('<I', struct.pack('<f', x))[0]

WS_KV, WS_G, WS_F1, WS_Q, WS_O, WS_H, WS_STAMP = 0, 0x20000, 0x30000, 0x100000, 0x300000, 0x500000, 0xC00000
WS_F2 = WS_F1 + 8192
WS_SIZE = 0x1000000
CLEAR_WG = 64
XR, WR, EX = 0, 65536, 131072
REC = 2064
HALF = 32 * REC
TOP = 64 * REC
LDS_BYTES = 163840
SPIN = 0x40000
SX, SWG, SWU, SWQ, SEX, SWS, SDBG, SWD, SWO, SOUT = 32, 36, 40, 44, 48, 52, 56, 60, 64, 92
sW, sTI, sQ, sU, sROT, sXO, sWOF, sMX, sMW, sI, sJ, sROT0 = range(68, 80)
sT = list(range(80, 90))
sC1 = 96
sQS = 98
sEXW, sEXO = 90, 91
sRING, sOO = 100, 101
def srd(n): return f"s[{n}:{n+3}]"
def vr(b, n): return f"v[{b}:{b+n-1}]"

vXS0, vXS1, vWA, vWB = 1, 2, 3, 4
vXR = [5, 6, 7, 8]
vWR = [9, 10]
vXE = [11, 12]; vWE = 13
vL16 = 14
vLANE = 15
vC0 = 16
vGT = 18
vTMP = list(range(20, 32))
F = [32, 48]
ACC = [64, 96]
XF = 128
ACCE, XE, WE = 96, 100, 108

a = Asm()
CLK = 's_memtime' if OPT['stamp'] == 2 else 's_memrealtime'
def stamp(k, grp=0):
    if grp != OPT.get('grp', 0) and k != 11: return
    if OPT['stamp']: a(f"{CLK} s[{4+2*k}:{5+2*k}]")

def mk_srd(n, p, size):
    a(f"s_mov_b32 s{n}, s{p}\ns_mov_b32 s{n+1}, s{p+1}\ns_mov_b32 s{n+2}, {size}\ns_mov_b32 s{n+3}, 0x20000")

a("s_cmp_ge_u32 s2, 256\ns_cbranch_scc1 L_end")
a("s_load_dwordx16 s[4:19], s[0:1], 0\ns_load_dwordx8 s[20:27], s[0:1], 64\ns_load_dwordx2 s[28:29], s[0:1], 96")
if OPT['stamp']: a(f"{CLK} s[30:31]")
a(f"v_lshrrev_b32 v1, 6, v0\nv_and_b32 v{vLANE}, 63, v0\nv_readfirstlane_b32 s{sW}, v1")
a(f"""
s_and_b32 s{sT[0]}, s2, 7
s_lshr_b32 s{sT[1]}, s2, 3
s_and_b32 s{sJ}, s{sT[1]}, 7
s_lshr_b32 s{sU}, s{sT[1]}, 3
s_lshr_b32 s{sQ}, s{sT[0]}, 1
s_and_b32 s{sT[2]}, s{sT[0]}, 1
s_lshl_b32 s{sT[2]}, s{sT[2]}, 3
s_add_u32 s{sTI}, s{sT[2]}, s{sJ}
s_lshl_b32 s{sI}, s{sT[0]}, 2
s_add_u32 s{sI}, s{sI}, s{sU}
s_lshl_b32 s{sROT}, s{sU}, 1
s_add_u32 s{sROT}, s{sROT}, s{sJ}
s_and_b32 s{sROT}, s{sROT}, 7
s_mov_b32 s{sROT0}, s{sROT}
s_lshl_b32 s{sMX}, s{sW}, 11
s_lshl_b32 s{sMW}, s{sW}, 10
s_add_u32 s{sMW}, s{sMW}, {WR}
""")
L = vLANE
t0, t1, t2, t3 = vTMP[0:4]
a(f"""
v_lshlrev_b32 v{vL16}, 4, v{L}
v_lshrrev_b32 v{t0}, 3, v{L}
v_and_b32 v{t1}, 7, v{L}
v_lshrrev_b32 v{t2}, 4, v{L}
s_lshl_b32 s{sT[0]}, s{sTI}, 3
s_add_u32 s{sT[0]}, s{sT[0]}, s{sW}
s_lshl_b32 s{sT[0]}, s{sT[0]}, 14
v_xor_b32 v{t3}, v{t1}, v{t2}
v_lshlrev_b32 v{t3}, 4, v{t3}
v_lshl_add_u32 v{vXS0}, v{t0}, 10, v{t3}
v_add_u32 v{vXS0}, s{sT[0]}, v{vXS0}
v_xor_b32 v{vXS1}, 64, v{vXS0}
v_add_u32 v{vXS1}, 8192, v{vXS1}
""")
def w_src(pitch, colA, colB):
    a(f"""
    v_lshrrev_b32 v{t0}, 3, v{L}
    s_lshl_b32 s{sT[0]}, s{sW}, 3
    v_add_u32 v{t0}, s{sT[0]}, v{t0}
    v_mul_u32_u24 v{t0}, {pitch}, v{t0}
    v_and_b32 v{t1}, 7, v{L}
    v_bfe_u32 v{t2}, v{L}, 4, 1
    v_lshlrev_b32 v{t2}, 1, v{t2}
    v_xor_b32 v{t1}, v{t1}, v{t2}
    v_lshlrev_b32 v{t1}, 4, v{t1}
    v_xor_b32 v{t2}, 64, v{t1}
    v_add3_u32 v{vWA}, v{t0}, v{t1}, s{colA}
    v_add3_u32 v{vWB}, v{t0}, v{t2}, s{colB}
    """)
def read_addrs():
    a(f"""
    v_and_b32 v{t0}, 31, v{L}
    s_and_b32 s{sT[0]}, s{sW}, 3
    s_lshl_b32 s{sT[0]}, s{sT[0]}, 12
    v_bfe_u32 v{t1}, v{L}, 1, 3
    v_lshrrev_b32 v{t2}, 5, v{L}
    v_xor_b32 v{t1}, v{t1}, v{t2}
    v_lshlrev_b32 v{t1}, 4, v{t1}
    v_lshl_add_u32 v{t0}, v{t0}, 7, v{t1}
    v_add_u32 v{vXR[0]}, s{sT[0]}, v{t0}
    v_xor_b32 v{vXR[1]}, 32, v{vXR[0]}
    v_xor_b32 v{vXR[2]}, 64, v{vXR[0]}
    v_xor_b32 v{vXR[3]}, 0x60, v{vXR[0]}
    """)
    a(f"""
    v_bfe_u32 v{t0}, v{L}, 4, 1
    v_bfe_u32 v{t1}, v{L}, 2, 2
    v_lshrrev_b32 v{t2}, 5, v{L}
    v_lshl_add_u32 v{t2}, v{t2}, 3, v{t1}
    v_lshlrev_b32 v{t2}, 7, v{t2}
    v_lshl_add_u32 v{t2}, v{t0}, 13, v{t2}
    v_lshrrev_b32 v{t1}, 1, v{t1}
    v_lshl_add_u32 v{t1}, v{t0}, 1, v{t1}
    s_lshr_b32 s{sT[0]}, s{sW}, 2
    s_lshl_b32 s{sT[0]}, s{sT[0]}, 1
    v_xor_b32 v{t1}, s{sT[0]}, v{t1}
    v_lshl_add_u32 v{t2}, v{t1}, 5, v{t2}
    v_and_b32 v{t0}, 1, v{L}
    v_bfe_u32 v{t1}, v{L}, 1, 1
    v_lshl_add_u32 v{t2}, v{t0}, 4, v{t2}
    v_lshl_add_u32 v{t2}, v{t1}, 3, v{t2}
    v_add_u32 v{vWR[0]}, {WR}, v{t2}
    v_xor_b32 v{vWR[1]}, 32, v{vWR[0]}
    """)
C0 = -2.0 * math.sqrt(2.0 / math.pi) * math.log2(math.e)
C1 = C0 * 0.044715
QS = 0.25 * math.log2(math.e)
a(f"""
s_mov_b32 s{sC1}, {fbits(C1):#x}
s_mov_b32 s{sC1+1}, {fbits(C1):#x}
s_mov_b32 s{sQS}, {fbits(QS):#x}
s_mov_b32 s{sQS+1}, {fbits(QS):#x}
v_mov_b32 v{vC0}, {fbits(C0):#x}
v_mov_b32 v{vC0+1}, {fbits(C0):#x}
""")
a("s_waitcnt lgkmcnt(0)")
mk_srd(SX, 4, 2048 * 1024)
mk_srd(SWG, 16, 512 * 3584)
mk_srd(SWU, 18, 512 * 3584)
mk_srd(SWQ, 6, 512 * 1024)

PG = 3584
def dma_ops(sig, path):
    p = sig >> 3
    isq = (path == 'Q' and p == 0)
    pitch = 1024 if isq else PG
    extra = 128 if (path == 'G' and p == 1) else 0
    sa, sb = (SWQ, SWQ) if isq else (SWG, SWU)
    slot = (sig & 3) * 16384
    ops = []
    pre = f"s_mul_i32 s{sWOF}, s{sROT}, {64*pitch}\n"
    if extra: pre += f"s_add_u32 s{sWOF}, s{sWOF}, {extra}\n"
    if p == 0: pre += f"s_lshl_b32 s{sXO}, s{sROT}, 7\n"
    post = f"s_add_u32 s{sROT}, s{sROT}, 1\n"
    post2 = f"s_and_b32 s{sROT}, s{sROT}, 7\n"
    if p == 0:
        ops.append(f"s_add_u32 m0, s{sMX}, {XR+slot}\n" + pre + f"buffer_load_dwordx4 v{vXS0}, {srd(SX)}, s{sXO} offen lds")
        ops.append(f"s_add_u32 m0, s{sMW}, {slot}\n" + post + f"buffer_load_dwordx4 v{vWA}, {srd(sa)}, s{sWOF} offen lds")
        ops.append(f"s_add_u32 m0, s{sMW}, {slot+8192}\n" + post2 + f"buffer_load_dwordx4 v{vWB}, {srd(sb)}, s{sWOF} offen lds")
        ops.append(f"s_add_u32 m0, s{sMX}, {XR+slot+1024}\nbuffer_load_dwordx4 v{vXS1}, {srd(SX)}, s{sXO} offen lds")
    else:
        ops.append(f"s_add_u32 m0, s{sMW}, {slot}\n" + pre + f"buffer_load_dwordx4 v{vWA}, {srd(sa)}, s{sWOF} offen lds")
        ops.append(f"s_add_u32 m0, s{sMW}, {slot+8192}\n" + post + post2 + f"buffer_load_dwordx4 v{vWB}, {srd(sb)}, s{sWOF} offen lds")
    return ops

def rest_srds():
    mk_srd(SWS, 28, WS_SIZE)
    mk_srd(SDBG, 26, 256)
    mk_srd(SWD, 20, 1792 * 1024)
    mk_srd(SWO, 12, 512 * 1024)
    mk_srd(SOUT, 24, 2048 * 1024)

def reads(sig, h):
    slot = (sig & 3) * 16384
    out = []
    for kk in range(2):
        ks = 2 * h + kk
        if sig < 8:
            out.append(f"ds_read_b128 {vr(XF + 4*(4*sig+ks), 4)}, v{vXR[ks]} offset:{XR+slot}")
        for b in range(2):
            for e in range(2):
                out.append(f"ds_read_b64_tr_b16 {vr(F[h] + 8*kk + 4*b + 2*e, 2)}, v{vWR[b]} offset:{slot + ks*2048 + e*512}")
    return out

def mfmas(sig, h):
    out = []
    acc = ACC[sig >> 3]
    for kk in range(2):
        ks = 2 * h + kk
        for b in range(2):
            d = vr(acc + 16 * b, 16)
            c = "0" if ((sig & 7) == 0 and ks == 0) else d
            out.append(f"v_mfma_f32_32x32x16_bf16 {d}, {vr(F[h] + 8*kk + 4*b, 4)}, {vr(XF + 4*(4*(sig&7)+ks), 4)}, {c}")
    return out

def gelu_pair(base, j, T=vGT, pk=True):
    G = vr(base + 2 * j, 2); U = vr(base + 8 + 2 * j, 2); TT = vr(T, 2)
    g0, g1, u0, u1 = base + 2 * j, base + 2 * j + 1, base + 8 + 2 * j, base + 9 + 2 * j
    if pk:
        return [f"v_pk_mul_f32 {TT}, {G}, {G}",
                f"v_pk_fma_f32 {TT}, {TT}, s[{sC1}:{sC1+1}], {vr(vC0,2)}",
                f"v_pk_mul_f32 {TT}, {TT}, {G}",
                f"v_exp_f32 v{T}, v{T}",
                f"v_exp_f32 v{T+1}, v{T+1}",
                f"v_pk_mul_f32 {G}, {G}, {U}",
                f"v_pk_add_f32 {TT}, {TT}, 1.0 op_sel_hi:[1,0]",
                f"v_rcp_f32 v{T}, v{T}",
                f"v_rcp_f32 v{T+1}, v{T+1}",
                f"v_pk_mul_f32 {G}, {G}, {TT}",
                f"v_cvt_pk_bf16_f32 v{base+j}, v{g0}, v{g1}"]
    return [f"v_mul_f32 v{T}, v{g0}, v{g0}\nv_mul_f32 v{T+1}, v{g1}, v{g1}",
            f"v_fma_f32 v{T}, v{T}, s{sC1}, v{vC0}\nv_fma_f32 v{T+1}, v{T+1}, s{sC1}, v{vC0}",
            f"v_mul_f32 v{T}, v{T}, v{g0}\nv_mul_f32 v{T+1}, v{T+1}, v{g1}",
            f"v_exp_f32 v{T}, v{T}",
            f"v_exp_f32 v{T+1}, v{T+1}",
            f"v_mul_f32 v{g0}, v{g0}, v{u0}\nv_mul_f32 v{g1}, v{g1}, v{u1}",
            f"v_add_f32 v{T}, 1.0, v{T}\nv_add_f32 v{T+1}, 1.0, v{T+1}",
            f"v_rcp_f32 v{T}, v{T}",
            f"v_rcp_f32 v{T+1}, v{T+1}",
            f"v_mul_f32 v{g0}, v{g0}, v{T}\nv_mul_f32 v{g1}, v{g1}, v{T+1}",
            f"v_cvt_pk_bf16_f32 v{base+j}, v{g0}, v{g1}"]

def interleave(ms, fill):
    n = max(len(ms), 1)
    k = 0
    for i in range(n):
        if i < len(ms): a(ms[i])
        upto = (len(fill) * (i + 1) + n - 1) // n
        while k < upto:
            a(fill[k]); k += 1

DEPTH = 3
def extra_reads(sig):
    slot = (sig & 3) * 16384
    out = []
    for j in range(2):
        out.append(f"ds_read_b128 {vr(XE + 4*j, 4)}, v{vXE[j]} offset:{XR+slot}")
        for e in range(2):
            out.append(f"ds_read_b64_tr_b16 {vr(WE + 4*j + 2*e, 2)}, v{vWE} offset:{sig*2048 + j*1024 + e*128}")
    return out
def extra_mfmas(sig):
    return [f"v_mfma_f32_16x16x32_bf16 {vr(ACCE,4)}, {vr(WE+4*j,4)}, {vr(XE+4*j,4)}, {'0' if (sig==0 and j==0) else vr(ACCE,4)}" for j in range(2)]

def sched_of(sig):
    if OPT['pre'] == 3: l = [sig + 3]
    else: l = [sig + 2] if sig < 6 else ([8, 9] if sig == 6 else [sig + 3])
    return [x for x in l if x < 16]

vS0, vZ = 28, 29
def proj_path(path):
    tok = {}
    P = path
    def dma_groups(sg):
        d = dma_ops(sg, P)
        if P == 'Q' and sg < 8:
            d[0] = f"""
            s_cmp_lg_u32 s{sEXW}, {sg}
            s_cbranch_scc1 L_noex{sg}
            s_add_u32 m0, s{sMX}, {EX}
            s_nop 0
            buffer_load_dwordx4 v{vL16}, {srd(SEX)}, s{sEXO} offen lds
            buffer_load_dwordx4 v{vL16}, {srd(SEX)}, s{sEXO} offen offset:1024 lds
            L_noex{sg}:
            ;uncount 2
            """ + d[0]
        return d
    def emit(x):
        parts = x.split(";uncount 2")
        for k, part in enumerate(parts):
            a(part)
            if k < len(parts) - 1: a.vm -= 2
    if P == 'G':
        a(f"s_cmp_lg_u32 s2, {CLEAR_WG}\ns_cbranch_scc1 L_noclear")
        mk_srd(SWS, 28, WS_SIZE)
        a(f"""
        s_lshl_b32 s{sT[1]}, s{sW}, 13
        s_add_u32 s{sT[1]}, s{sT[1]}, {WS_F1}
        v_lshlrev_b32 v{t0}, 7, v{L}
        v_mov_b32 v{t1}, 0
        buffer_store_dword v{t1}, v{t0}, {srd(SWS)}, s{sT[1]} offen sc1
        L_noclear:
        """)
        a(f"s_mul_i32 s{sT[1]}, s{sQ}, 7\ns_lshl_b32 s{sT[2]}, s{sU}, 1\ns_add_u32 s{sT[1]}, s{sT[1]}, s{sT[2]}\ns_sub_u32 s{sT[1]}, s{sT[1]}, 1\ns_lshl_b32 s{sT[1]}, s{sT[1]}, 7")
        w_src(PG, sT[1], sT[1])
    else:
        a(f"s_lshl_b32 s{sT[1]}, s{sQ}, 8\ns_add_u32 s{sT[2]}, s{sT[1]}, 128")
        w_src(1024, sT[1], sT[2])
        a(f"""
        s_cmp_eq_u32 s{sQ}, 1
        s_cselect_b64 s[{SEX}:{SEX+1}], s[10:11], s[8:9]
        s_mov_b32 s{SEX+2}, 16384
        s_mov_b32 s{SEX+3}, 0x20000
        s_add_u32 s{sT[3]}, s{sW}, s{sROT0}
        s_and_b32 s{sT[3]}, s{sT[3]}, 7
        s_lshl_b32 s{sEXO}, s{sT[3]}, 11
        s_cmp_lt_u32 s{sQ}, 2
        s_cselect_b32 s{sEXW}, s{sW}, 64
        s_cmp_lg_u32 s{sQ}, 2
        s_cbranch_scc1 L_exdone
        s_mov_b32 s{SEX}, s22
        s_mov_b32 s{SEX+1}, s23
        s_mov_b32 s{SEX+2}, 1024
        s_lshl_b32 s{sT[3]}, s{sT[3]}, 7
        v_lshlrev_b32 v{t0}, 1, v{L}
        buffer_load_ushort v{vS0}, v{t0}, {srd(SEX)}, s{sT[3]} offen
        L_exdone:
        """)
    for sig in range(OPT['pre']):
        for o in dma_groups(sig): emit(o)
        tok[sig] = a.lastvm()
        if sig == 0:
            rest_srds()
            read_addrs()
            a(f"v_mov_b32 v{vZ}, 0")
            if P == 'Q':
                a(f"""
                v_and_b32 v{t0}, 15, v{L}
                v_bfe_u32 v{t1}, v{L}, 1, 3
                v_lshrrev_b32 v{t2}, 4, v{L}
                v_xor_b32 v{t1}, v{t1}, v{t2}
                v_lshlrev_b32 v{t1}, 4, v{t1}
                v_lshl_add_u32 v{t0}, v{t0}, 7, v{t1}
                v_add_u32 v{vXE[0]}, s{sMX}, v{t0}
                v_xor_b32 v{vXE[1]}, 64, v{vXE[0]}
                v_and_b32 v{t0}, 15, v{L}
                v_lshlrev_b32 v{t0}, 3, v{t0}
                v_lshl_add_u32 v{t0}, v{t2}, 8, v{t0}
                v_add_u32 v{vWE}, {EX}, v{t0}
                s_lshl_b32 s{sT[4]}, s{sTI}, 2
                s_and_b32 s{sT[5]}, s{sW}, 3
                s_add_u32 s{sT[4]}, s{sT[4]}, s{sT[5]}
                s_lshl_b32 s{sT[4]}, s{sT[4]}, 5
                s_lshl_b32 s{sT[5]}, s{sQ}, 3
                s_add_u32 s{sT[4]}, s{sT[4]}, s{sT[5]}
                s_lshr_b32 s{sT[5]}, s{sW}, 2
                s_lshl_b32 s{sT[5]}, s{sT[5]}, 1
                s_add_u32 s{sT[4]}, s{sT[4]}, s{sT[5]}
                s_lshl_b32 s{sT[4]}, s{sT[4]}, 10
                """)
    stamp(0)
    qtok = None
    QF = OPT['qflag']
    for sig in range(16):
        a.wait(tok[sig])
        if P == 'Q' and sig == 0:
            a(f"""
            s_cmp_lg_u32 s{sQ}, 2
            s_cbranch_scc1 L_nogw
            v_lshlrev_b32 v{t0}, 5, v{L}
            v_add_u32 v{t0}, s{sMX}, v{t0}
            v_add_u32 v{t0}, {EX}, v{t0}
            ds_write_b16 v{t0}, v{vS0}
            s_waitcnt lgkmcnt(0)
            L_nogw:
            """)
        if P == 'Q' and sig == QF: a.wait(qtok)
        a("s_barrier")
        if sig == 1: stamp(1)
        if sig == 8: stamp(2)
        if sig < 11: stamp(sig, 1)
        if sig >= 6: stamp(sig - 6, 2)
        if P == 'G' and sig == 0:
            a(f"""
            s_lshl_b32 s{sT[1]}, s{sW}, 8
            s_or_b32 s{sT[1]}, s{sT[1]}, s2
            s_cmp_lg_u32 s{sT[1]}, {CLEAR_WG}
            s_cbranch_scc1 L_nos0
            v_mov_b32 v{t0}, 1
            s_mov_b64 exec, 1
            buffer_store_dword v{t0}, v{vZ}, {srd(SDBG)}, 0 offen sc1
            s_mov_b64 exec, -1
            L_nos0:
            """)
            a.vm -= 1
        if sig == 7:
            a(f"""
            s_cmp_lg_u32 s{sW}, 0
            s_cbranch_scc1 L_nos0l{P}
            buffer_load_dword v{vS0}, v{vZ}, {srd(SDBG)}, 0 offen sc1
            L_nos0l{P}:
            """)
            a.vm -= 1; s0pos = a.vm
        if sig == QF:
            assert a.vm_done > s0pos
            a(f"""
            s_cmp_lg_u32 s{sW}, 0
            s_cbranch_scc1 L_noflag1{P}
            s_mov_b32 s{sT[1]}, 0
            L_s0poll{P}:
            v_cmp_eq_u32 vcc, 0, v{vS0}
            s_cbranch_vccz L_s0done{P}
            buffer_load_dword v{vS0}, v{vZ}, {srd(SDBG)}, 0 offen sc1
            s_add_u32 s{sT[1]}, s{sT[1]}, 1
            s_cmp_lt_u32 s{sT[1]}, {SPIN}
            s_waitcnt vmcnt(0)
            s_cbranch_scc1 L_s0poll{P}
            L_s0done{P}:
            """)
            a.vm -= 1
            if P == 'Q':
                a(f"""
                s_lshl_b32 s{sT[5]}, s{sQ}, 4
                s_add_u32 s{sT[5]}, s{sT[5]}, s{sTI}
                s_lshl_b32 s{sT[5]}, s{sT[5]}, 7
                s_add_u32 s{sT[5]}, s{sT[5]}, {WS_F1}
                v_mov_b32 v{t0}, 1
                s_mov_b64 exec, 1
                buffer_store_dword v{t0}, v{vZ}, {srd(SWS)}, s{sT[5]} offen sc1
                s_mov_b64 exec, -1
                """)
                a.vm -= 1
            a(f"L_noflag1{P}:")
        if sig == 15:
            a(f"""
            s_cmp_lg_u32 s{sW}, 0
            s_cbranch_scc1 L_nopoll0{P}
            s_lshr_b32 s{sT[0]}, s{sI}, 1
            s_lshl_b32 s{sT[3]}, 0x10001, s{sT[0]}
            s_mov_b32 s{sT[2]}, -1
            s_mov_b32 s{sT[1]}, {WS_F1}
            v_lshlrev_b32 v{t1}, 7, v{L}
            v_mov_b32 v{t0}, 1
            s_mov_b64 exec, s[{sT[2]}:{sT[3]}]
            buffer_load_dword v{t0}, v{t1}, {srd(SWS)}, s{sT[1]} offen sc1
            s_mov_b64 exec, -1
            L_nopoll0{P}:
            """)
        d = []
        for sg in sched_of(sig):
            dg = dma_groups(sg)
            d += [(x, sg if k == len(dg) - 1 else None) for k, x in enumerate(dg)]
        def dma_emit(item):
            emit(item[0])
            if item[1] is not None: tok[item[1]] = a.lastvm()
        g = gelu_pair(ACC[0] + 16 * ((sig - 8) >> 2), (sig - 8) & 3, pk=OPT['pk']) if (P == 'G' and sig >= 8) else []
        m1 = mfmas(sig - 1, 1) if sig > 0 else []
        if P == 'Q' and 0 < sig <= 8: m1 = extra_mfmas(sig - 1)[:1] + m1[:2] + extra_mfmas(sig - 1)[1:] + m1[2:]
        if OPT['sprio']: a("s_setprio 1")
        if P == 'Q' and 8 in sched_of(sig):
            a(f"s_mul_i32 s{sT[1]}, s{sQ}, {7*128}")
            w_src(PG, sT[1], sT[1])
        late = sig < OPT.get('late', 1)
        fill = [lambda r=r: a(r) for r in reads(sig, 0)]
        box = {}
        fill.append(lambda: box.update(h0=a.lastlg()))
        if not late: fill += [lambda it=it: dma_emit(it) for it in d]
        if sig == 13: fill.append(lambda: early_stores(P))
        n = max(len(m1) - 1, 1)
        wts = [1] * (len(reads(sig, 0))) + [0] + [OPT.get('dw', 3)] * (len(fill) - len(reads(sig, 0)) - 1)
        tot = sum(wts); k = 0; accw = 0
        for i in range(n):
            if i < len(m1) - 1: a(m1[i])
            while k < len(fill) and (accw + wts[k] <= tot * (i + 1) / n + 0.5 or i == n - 1):
                fill[k](); accw += wts[k]; k += 1
        if m1: a(m1[-1])
        if OPT['sprio']: a("s_setprio 0")
        r1 = reads(sig, 1)
        if P == 'Q' and sig < 8: r1 = r1 + extra_reads(sig)
        if g:
            k = 0
            for i, r in enumerate(r1):
                a(r)
                if i >= 1 and k < len(g): a(g[k]); k += 1
            for x in g[k:]: a(x)
        else:
            for r in r1: a(r)
        if P == 'Q' and sig == 8:
            q_epilogue()
            qtok = a.lastvm()
        a.wait(box['h0'])
        for x in mfmas(sig, 0): a(x)
        if late:
            for it in d: dma_emit(it)
        a.wait(a.lastlg())

sHO = 3
def early_stores(P):
    a(f"""
    s_lshr_b32 s{sT[3]}, s{sW}, 2
    s_lshl_b32 s{sT[0]}, s{sTI}, 2
    s_and_b32 s{sT[1]}, s{sW}, 3
    s_add_u32 s{sT[0]}, s{sT[0]}, s{sT[1]}
    s_lshl_b32 s{sT[8]}, s{sT[0]}, 5
    s_mul_i32 s{sT[0]}, s{sT[0]}, 112
    s_mul_i32 s{sT[1]}, s{sQ}, 28
    s_add_u32 s{sT[0]}, s{sT[0]}, s{sT[1]}
    s_lshl_b32 s{sT[1]}, s{sU}, 3
    s_add_u32 s{sT[0]}, s{sT[0]}, s{sT[1]}
    s_lshl_b32 s{sT[1]}, s{sT[3]}, 1
    s_add_u32 s{sT[0]}, s{sT[0]}, s{sT[1]}
    s_lshl_b32 s{sT[0]}, s{sT[0]}, 10
    s_add_u32 s{sHO}, s{sT[0]}, {WS_H}
    """)
    if P == 'G':
        a(f"s_sub_u32 s{sT[1]}, s{sHO}, 4096\nbuffer_store_dwordx4 {vr(ACC[0],4)}, v{vL16}, {srd(SWS)}, s{sT[1]} offen sc1")
    a(f"""
    s_lshl_b32 s{sT[1]}, s{sQ}, 2
    s_add_u32 s{sT[1]}, s{sT[1]}, s{sU}
    s_lshl_b32 s{sT[9]}, s{sTI}, 4
    s_add_u32 s{sT[9]}, s{sT[9]}, s{sT[1]}
    s_lshl_b32 s{sT[1]}, s{sT[1]}, 1
    s_add_u32 s{sT[8]}, s{sT[8]}, s{sT[1]}
    s_add_u32 s{sT[8]}, s{sT[8]}, s{sT[3]}
    s_lshl_b32 s{sT[8]}, s{sT[8]}, 10
    s_add_u32 s{sT[8]}, s{sT[8]}, {WS_O}
    v_mov_b32 v24, -1
    v_mov_b32 v25, -1
    v_mov_b32 v26, -1
    v_mov_b32 v27, -1
    buffer_store_dwordx4 v[24:27], v{vL16}, {srd(SWS)}, s{sT[8]} offen sc1
    """)

def q_epilogue():
    a(f"s_add_u32 s{sT[5]}, s{sT[4]}, {WS_Q}\ns_add_u32 s{sT[6]}, s{sT[4]}, {WS_Q + 4096}")
    tq, tn, ta = vTMP[4:7]
    lg0 = a.lg
    a(f"""
    v_lshrrev_b32 v{tq}, 4, v{L}
    v_and_b32 v{tn}, 15, v{L}
    s_lshl_b32 s{sT[7]}, s{sTI}, 2
    s_lshr_b32 s{sT[8]}, s{sW}, 1
    s_add_u32 s{sT[7]}, s{sT[7]}, s{sT[8]}
    s_lshl_b32 s{sT[7]}, s{sT[7]}, 11
    s_and_b32 s{sT[8]}, s{sW}, 1
    s_cmp_eq_u32 s{sQ}, 0
    s_cselect_b32 s{sT[0]}, s{sQS}, 1.0
    v_mul_f32 v{XE}, s{sT[0]}, v{ACCE}
    v_mul_f32 v{XE+1}, s{sT[0]}, v{ACCE+1}
    v_mul_f32 v{XE+2}, s{sT[0]}, v{ACCE+2}
    v_mul_f32 v{XE+3}, s{sT[0]}, v{ACCE+3}
    v_cvt_pk_bf16_f32 v{XE}, v{XE}, v{XE+1}
    v_cvt_pk_bf16_f32 v{XE+1}, v{XE+2}, v{XE+3}
    s_cmp_eq_u32 s{sQ}, 1
    s_cbranch_scc1 L_pubV
    s_cmp_eq_u32 s{sQ}, 2
    s_cbranch_scc1 L_pubG
    s_cmp_eq_u32 s{sQ}, 3
    s_cbranch_scc1 L_pubE
    s_lshl_b32 s{sT[8]}, s{sT[8]}, 8
    s_add_u32 s{sT[7]}, s{sT[7]}, s{sT[8]}
    v_lshrrev_b32 v{ta}, 1, v{tq}
    v_lshlrev_b32 v{ta}, 9, v{ta}
    v_lshl_add_u32 v{ta}, v{tn}, 4, v{ta}
    v_and_b32 v{tq}, 1, v{tq}
    v_lshl_add_u32 v{ta}, v{tq}, 3, v{ta}
    buffer_store_dwordx2 {vr(XE,2)}, v{ta}, {srd(SWS)}, s{sT[7]} offen sc1
    s_branch L_pubE
    L_pubV:
    s_lshl_b32 s{sT[8]}, s{sT[8]}, 9
    s_add_u32 s{sT[7]}, s{sT[7]}, s{sT[8]}
    s_add_u32 s{sT[8]}, s{sMX}, {EX}
    v_lshlrev_b32 v{ta}, 5, v{tn}
    v_lshl_add_u32 v{ta}, v{tq}, 3, v{ta}
    v_add_u32 v{ta}, s{sT[8]}, v{ta}
    ds_write_b64 v{ta}, {vr(XE,2)}
    v_lshrrev_b32 v{ta}, 2, v{L}
    v_lshlrev_b32 v{ta}, 5, v{ta}
    v_and_b32 v{XE+2}, 1, v{L}
    v_lshl_add_u32 v{ta}, v{XE+2}, 4, v{ta}
    v_bfe_u32 v{XE+2}, v{L}, 1, 1
    v_lshl_add_u32 v{ta}, v{XE+2}, 3, v{ta}
    v_add_u32 v{ta}, s{sT[8]}, v{ta}
    s_waitcnt lgkmcnt(0)
    ds_read_b64_tr_b16 {vr(XE,2)}, v{ta}
    v_lshrrev_b32 v{ta}, 1, v{tq}
    v_lshlrev_b32 v{ta}, 8, v{ta}
    v_lshl_add_u32 v{ta}, v{tn}, 4, v{ta}
    v_and_b32 v{tq}, 1, v{tq}
    v_lshl_add_u32 v{ta}, v{tq}, 3, v{ta}
    s_waitcnt lgkmcnt(0)
    buffer_store_dwordx2 {vr(XE,2)}, v{ta}, {srd(SWS)}, s{sT[7]} offen offset:1024 sc1
    s_branch L_pubE
    L_pubG:
    v_mul_f32 v{ta}, {fbits(-math.log2(math.e)):#x}, v{ACCE}
    v_exp_f32 v{ta}, v{ta}
    s_lshl_b32 s{sT[7]}, s{sTI}, 3
    s_add_u32 s{sT[7]}, s{sT[7]}, s{sW}
    v_add_f32 v{ta}, 1.0, v{ta}
    v_rcp_f32 v{ta}, v{ta}
    s_lshl_b32 s{sT[7]}, s{sT[7]}, 6
    s_add_u32 s{sT[7]}, s{sT[7]}, {WS_G}
    v_lshlrev_b32 v{tn}, 2, v{tn}
    s_mov_b64 exec, 0xffff
    buffer_store_dword v{ta}, v{tn}, {srd(SWS)}, s{sT[7]} offen sc1
    s_mov_b64 exec, -1
    L_pubE:
    """)
    a.vm -= 3
    a.lg = lg0
    for b in range(2):
        for hf in range(2):
            base = ACC[0] + 16 * b + 8 * hf
            for j in range(4):
                a(f"v_cvt_pk_bf16_f32 v{base+j}, v{base+2*j}, v{base+2*j+1}")
            a(f"buffer_store_dwordx4 {vr(base,4)}, v{vL16}, {srd(SWS)}, s{sT[5+hf]} offen offset:{1024*b} sc1")

a(f"s_cmp_eq_u32 s{sU}, 0\ns_cbranch_scc1 L_pathQ")
proj_path('G')
a("L_join:")
a.forget()

QA, QB, KF, V1, V2 = 128, 132, 136, 140, 144
vG, vIDX, vAK, vAV1, vAV2, vKVS = 148, 150, 151, 152, 153, 154
SA, SB, OA, OB = 160, 176, 192, 208
for m in mfmas(15, 1): a(m)
stamp(3); stamp(10, 2)
a(f"""
s_cmp_lg_u32 s{sW}, 0
s_cbranch_scc1 L_s1done
s_mov_b32 s{sT[0]}, 0
L_s1poll:
s_waitcnt vmcnt(0)
v_cmp_ne_u32 vcc, 1, v{t0}
s_cbranch_vccz L_s1done
s_mov_b64 exec, vcc
buffer_load_dword v{t0}, v{t1}, {srd(SWS)}, s{sT[1]} offen sc1
s_mov_b64 exec, -1
s_add_u32 s{sT[0]}, s{sT[0]}, 1
s_cmp_lt_u32 s{sT[0]}, {SPIN}
s_cbranch_scc1 L_s1poll
s_waitcnt vmcnt(0)
L_s1done:
s_barrier
""")
a.forget()
stamp(4)
a(f"""
s_lshl_b32 s{sT[0]}, s{sI}, 1
s_and_b32 s{sT[1]}, s{sW}, 1
s_add_u32 s{sT[1]}, s{sT[0]}, s{sT[1]}
s_lshl_b32 s{sT[2]}, s{sT[1]}, 5
s_lshl_b32 s{sT[3]}, s{sJ}, 2
s_add_u32 s{sT[2]}, s{sT[2]}, s{sT[3]}
s_and_b32 s{sT[3]}, s{sW}, 2
s_add_u32 s{sT[2]}, s{sT[2]}, s{sT[3]}
s_lshr_b32 s{sT[3]}, s{sW}, 2
s_add_u32 s{sT[2]}, s{sT[2]}, s{sT[3]}
s_lshl_b32 s{sOO}, s{sT[2]}, 10
s_add_u32 s{sT[4]}, s{sOO}, {WS_Q}
s_xor_b32 s{sT[5]}, s{sT[4]}, 1024
buffer_load_dwordx4 {vr(QA,4)}, v{vL16}, {srd(SWS)}, s{sT[4]} offen sc1
buffer_load_dwordx4 {vr(QB,4)}, v{vL16}, {srd(SWS)}, s{sT[5]} offen sc1
""")
a(f"""
s_and_b32 s{sT[4]}, s{sW}, 1
s_bfe_u32 s{sT[5]}, s{sW}, 0x10001
s_lshl_b32 s{sT[6]}, s{sT[3]}, 16
s_lshl_b32 s{sT[7]}, s{sT[4]}, 10
s_add_u32 s{sT[6]}, s{sT[6]}, s{sT[7]}
v_add_u32 v{vKVS}, s{sT[6]}, v{vL16}
s_lshl_b32 s{sT[6]}, s{sT[3]}, 5
s_add_u32 s{sT[6]}, s{sT[6]}, s{sT[5]}
s_mul_i32 s{sT[6]}, s{sT[6]}, {REC}
s_add_u32 s{sMX}, s{sT[6]}, s{sT[7]}
s_lshr_b32 s{sT[6]}, s2, 3
s_add_u32 s{sT[6]}, s{sT[6]}, s{sT[5]}
s_and_b32 s{sT[6]}, s{sT[6]}, 31
s_lshl_b32 s{sXO}, s{sT[6]}, 11
""")
kvtok = {}
def kv_step(m):
    if m == 0:
        a(f"s_mov_b32 m0, s{sMX}\ns_nop 0")
    else:
        a(f"s_add_u32 s{sXO}, s{sXO}, 4096\ns_add_u32 m0, s{sMX}, {2*m*REC}\ns_and_b32 s{sXO}, s{sXO}, 0xffff")
    kvtok[m] = a(f"buffer_load_dwordx4 v{vKVS}, {srd(SWS)}, s{sXO} offen sc1 lds")
B1, B2 = OPT['b1'], OPT['b2']
KV_FIRST = B1 // 2 + 1
KV_PRE = B2 // 2 + 1
for m in range(KV_FIRST): kv_step(m)
a(f"""
v_and_b32 v{t0}, 31, v{L}
v_lshlrev_b32 v{t0}, 2, v{t0}
s_lshl_b32 s{sT[1]}, s{sT[1]}, 7
s_add_u32 s{sT[1]}, s{sT[1]}, {WS_G}
buffer_load_dword v{vG}, v{t0}, {srd(SWS)}, s{sT[1]} offen sc1
""")
a(f"""
v_mov_b32 v24, 0x3f803f80
v_mov_b32 v25, 0x3f803f80
v_mov_b32 v26, 0x3f803f80
v_mov_b32 v27, 0x3f803f80
v_mul_u32_u24 v{t3}, {REC}, v{L}
ds_write_b128 v{t3}, v[24:27] offset:2048
s_mul_i32 s{sT[3]}, s{sT[3]}, {HALF}
v_add_u32 v{vAK}, s{sT[3]}, v{vL16}
v_and_b32 v{t0}, 15, v{L}
v_lshrrev_b32 v{t1}, 5, v{L}
v_lshlrev_b32 v{t0}, 4, v{t0}
v_lshl_add_u32 v{t0}, v{t1}, 8, v{t0}
v_add_u32 v{t1}, 1024, v{t0}
v_add_u32 v{t2}, 1536, v{t0}
v_mov_b32 v{t3}, 2048
s_mov_b32 vcc_lo, 0xffff0000
s_mov_b32 vcc_hi, 0xffff0000
v_cndmask_b32 v{t1}, v{t1}, v{t3}, vcc
v_cndmask_b32 v{t2}, v{t2}, v{t3}, vcc
v_add_u32 v{vAV1}, s{sT[3]}, v{t1}
v_add_u32 v{vAV2}, s{sT[3]}, v{t2}
v_mov_b32 v{vIDX}, 0xdddddddd
""")
for r in range(0, 16, 2): a(f"v_mov_b64 {vr(OA+r,2)}, 0\nv_mov_b64 {vr(OB+r,2)}, 0")
for b in range(2):
    for jp in range(2):
        g0 = gelu_pair(ACC[1] + 16 * b, 2 * jp, vGT, pk=OPT.get('pk2', 1)); g1 = gelu_pair(ACC[1] + 16 * b, 2 * jp + 1, 30, pk=OPT.get('pk2', 1))
        for k, (x, y) in enumerate(zip(g0, g1)):
            a(x); a(y)
tokbox = {}
def h_store(k):
    if k == 0:
        a(f"""
        s_cmp_eq_u32 s{sU}, 0
        s_cbranch_scc1 L_noh1
        s_sub_u32 s{sT[1]}, s{sHO}, 4096
        buffer_store_dwordx4 {vr(ACC[0]+16,4)}, v{vL16}, {srd(SWS)}, s{sT[1]} offen offset:1024 sc1
        L_noh1:
        """)
        a.vm -= 1
    else:
        tokbox['h'] = a(f"buffer_store_dwordx4 {vr(ACC[1]+16*(k-1),4)}, v{vL16}, {srd(SWS)}, s{sHO} offen offset:{1024*(k-1)} sc1")

DACC = 64
HF = [32, 40, 48, 56]
WF = [224, 232]
vDS, vDR0, vDR1, vH0, vH1, vTCH, vF2 = 1, 2, 3, 4, 5, 6, 7
def ring_base(dst, w, tmp):
    a(f"""
    s_lshl_b32 s{dst}, s{w}, 13
    s_cmp_ge_u32 s{w}, 3
    s_cselect_b32 s{tmp}, {HALF - 3*8192}, 0
    s_add_u32 s{dst}, s{dst}, s{tmp}
    s_cmp_ge_u32 s{w}, 6
    s_cselect_b32 s{tmp}, {HALF - 3*8192}, 0
    s_add_u32 s{dst}, s{dst}, s{tmp}
    """)
assert B2 * REC >= 3 * 8192 + 2048
vTRP = 8
ring_base(sRING, sW, sT[1])
a(f"""
v_lshrrev_b32 v{t0}, 3, v{L}
v_and_b32 v{t1}, 7, v{L}
v_bfe_u32 v{t2}, v{L}, 4, 1
v_lshlrev_b32 v{t3}, 2, v{t2}
v_xor_b32 v{t1}, v{t1}, v{t3}
v_lshlrev_b32 v{t1}, 4, v{t1}
v_lshl_add_u32 v{t0}, v{t0}, 10, v{t1}
s_lshl_b32 s{sT[1]}, s{sJ}, 7
v_add_u32 v{vDS}, s{sT[1]}, v{t0}
v_bfe_u32 v{t0}, v{L}, 2, 2
v_lshrrev_b32 v{t1}, 5, v{L}
v_lshl_add_u32 v{t1}, v{t1}, 3, v{t0}
v_lshlrev_b32 v{t1}, 7, v{t1}
v_lshrrev_b32 v{t0}, 1, v{t0}
v_lshl_add_u32 v{t1}, v{t0}, 6, v{t1}
v_lshl_add_u32 v{t1}, v{t2}, 5, v{t1}
v_and_b32 v{t0}, 3, v{L}
v_lshl_add_u32 v{vTRP}, v{t0}, 3, v{t1}
v_add_u32 v{vDR0}, s{sRING}, v{vTRP}
v_xor_b32 v{vDR1}, 64, v{vDR0}
s_and_b32 s{sT[1]}, s{sW}, 1
s_mul_i32 s{sT[1]}, s{sT[1]}, {112*1024}
s_mul_i32 s{sT[2]}, s{sI}, 224
s_mul_i32 s{sT[3]}, s{sW}, 14
s_add_u32 s{sT[2]}, s{sT[2]}, s{sT[3]}
s_lshl_b32 s{sT[2]}, s{sT[2]}, 10
s_add_u32 s{sT[2]}, s{sT[2]}, {WS_H}
s_add_u32 s{sT[4]}, s{sT[2]}, s{sT[1]}
v_add_u32 v{vH0}, s{sT[4]}, v{vL16}
s_sub_u32 s{sT[4]}, s{sT[2]}, s{sT[1]}
s_add_u32 s{sT[4]}, s{sT[4]}, {112*1024}
v_add_u32 v{vH1}, s{sT[4]}, v{vL16}
s_lshl_b32 s{sMW}, s{sT[3]}, 14
v_lshlrev_b32 v{vTCH}, 7, v{L}
v_and_b32 v{vF2}, 0x7ff, v{vTCH}
s_mul_i32 s{sROT}, s{sJ}, 7
s_lshr_b32 s{sROT}, s{sROT}, 2
s_mul_i32 s{sT[1]}, s{sU}, 7
s_lshr_b32 s{sT[1]}, s{sT[1]}, 1
s_add_u32 s{sROT}, s{sROT}, s{sT[1]}
s_cmp_ge_u32 s{sROT}, 14
s_cselect_b32 s{sT[1]}, 14, 0
s_sub_u32 s{sROT}, s{sROT}, s{sT[1]}
s_lshl_b32 s{sROT}, s{sROT}, 10
""")
a.wait(kvtok[KV_FIRST - 1], a.lastlg())
a("s_barrier")
stamp(5)

def qk(S, Q): return f"v_mfma_f32_32x32x16_bf16 {vr(S,16)}, {vr(KF,4)}, {vr(Q,4)}, 0"
def pv(O, V, S): return f"v_smfmac_f32_32x32x32_bf16 {vr(O,16)}, {vr(V,4)}, {vr(S,8)}, v{vIDX}"
def rdK(t): return a(f"ds_read_b128 {vr(KF,4)}, v{vAK} offset:{t*REC}")
def rdV1(t): return a(f"ds_read_b128 {vr(V1,4)}, v{vAV1} offset:{t*REC}")
def rdV2(t): return a(f"ds_read_b128 {vr(V2,4)}, v{vAV2} offset:{t*REC}")
NT = 32
wtok, htok, rtok = {}, {}, {}
def w_load_a(u):
    slot = (u & 3) * 2048
    if u < 14:
        a(f"s_lshl4_add_u32 s{sWOF}, s{sROT}, s{sMW}\ns_add_u32 m0, s{sRING}, {slot}\ns_add_u32 s{sT[1]}, s{sWOF}, 8192")
    else:
        if u == 14: a(f"s_lshl_b32 s{sWOF}, s{sW}, 16")
        else: a(f"s_add_u32 s{sWOF}, s{sWOF}, 16384")
        a(f"s_add_u32 m0, s{sRING}, {slot}\ns_add_u32 s{sT[1]}, s{sWOF}, 8192")
    a(f"buffer_load_dwordx4 v{vDS}, {srd(SWD if u < 14 else SWO)}, s{sWOF} offen lds")
def w_load_b(u):
    slot = (u & 3) * 2048
    a(f"s_add_u32 m0, s{sRING}, {slot+1024}")
    if u < 14:
        a(f"buffer_load_dwordx4 {vr(HF[u&3],4)}, v{vH0}, {srd(SWS)}, s{sROT} offen sc1")
    wtok[u] = a(f"buffer_load_dwordx4 v{vDS}, {srd(SWD if u < 14 else SWO)}, s{sT[1]} offen lds")
def h_load_b(u):
    htok[u] = a(f"buffer_load_dwordx4 {vr(HF[u&3]+4,4)}, v{vH1}, {srd(SWS)}, s{sROT} offen sc1")
    if u < 13:
        a(f"s_add_u32 s{sROT}, s{sROT}, 1024\ns_cmp_eq_u32 s{sROT}, {14*1024}\ns_cselect_b32 s{sROT}, 0, s{sROT}")
def w_read(u, b):
    if b == 0: a.wait(wtok[u], htok[u])
    slot = (u & 3) * 2048
    for e in range(2):
        rtok[u, b] = a(f"ds_read_b64_tr_b16 {vr(WF[u&1] + 4*b + 2*e, 2)}, v{(vDR0, vDR1)[b]} offset:{slot + e*512}")
def d_mfma(u, k):
    tb, b = k >> 1, k & 1
    a.wait(rtok[u, 1])
    d = vr(DACC + 32 * tb + 16 * b, 16)
    if OPT.get('x_nomfma'): return
    a(f"v_mfma_f32_32x32x16_bf16 {d}, {vr(WF[u&1]+4*b,4)}, {vr(HF[u&3]+4*tb,4)}, {'0' if u == 0 else d}")
if OPT.get('x_noload'):
    def w_load_a(u): pass
    def w_load_b(u): wtok[u] = None
    def h_load_b(u): htok[u] = None
if OPT.get('x_noread'):
    def w_read(u, b): rtok[u, b] = None

ev = {}
def at(pos, f):
    ev.setdefault(pos, []).append(f)
p = 3
VS = OPT.get('vs', 8)
for k in range(3):
    at(p, lambda k=k: h_store(k)); p += VS // 2
for m in range(KV_FIRST, 16):
    at(p, lambda m=m: kv_step(m)); p += VS
p = max(p, 32 * B1 + 3)
def touch():
    a(f"""
    s_cmp_ge_u32 s{sW}, 4
    s_cbranch_scc1 L_notouch
    s_lshr_b32 s{sT[0]}, s2, 3
    s_mul_i32 s{sT[1]}, s{sT[0]}, 57344
    s_lshl_b32 s{sT[2]}, s{sW}, 14
    s_add_u32 s{sT[1]}, s{sT[1]}, s{sT[2]}
    buffer_load_dword v9, v{vTCH}, {srd(SWD)}, s{sT[1]} offen
    s_add_u32 s{sT[1]}, s{sT[1]}, 8192
    s_lshl_b32 s{sT[0]}, s{sT[0]}, 14
    s_lshl_b32 s{sT[2]}, s{sW}, 12
    buffer_load_dword v10, v{vTCH}, {srd(SWD)}, s{sT[1]} offen
    s_add_u32 s{sT[0]}, s{sT[0]}, s{sT[2]}
    s_mov_b32 exec_hi, 0
    buffer_load_dword v11, v{vTCH}, {srd(SWO)}, s{sT[0]} offen
    s_mov_b32 exec_hi, -1
    L_notouch:
    """)
    a.vm -= 3
if OPT['touch']: at(p, touch)
f2tok = {}
def f2_load():
    a(f"s_lshr_b32 s{sT[0]}, s{sI}, 1\ns_lshl_b32 s{sT[0]}, s{sT[0]}, 11\ns_add_u32 s{sT[0]}, s{sT[0]}, {WS_F2}")
    f2tok[0] = a(f"buffer_load_dword v12, v{vF2}, {srd(SWS)}, s{sT[0]} offen sc1")
at(32 * (B2 - 2) + 7, f2_load)
def f2_check():
    a(f"""
    s_mov_b32 s{sT[1]}, 0
    L_s2poll:
    v_cmp_ne_u32 vcc, 1, v12
    s_cbranch_vccz L_s2done
    buffer_load_dword v12, v{vF2}, {srd(SWS)}, s{sT[0]} offen sc1
    s_add_u32 s{sT[1]}, s{sT[1]}, 1
    s_cmp_lt_u32 s{sT[1]}, {SPIN}
    s_waitcnt vmcnt(0)
    s_cbranch_scc1 L_s2poll
    L_s2done:
    """)
    a.vm -= 1
D0 = B2 + OPT.get('dlag', 2)
slots = []
for t in range(D0, NT):
    sl = [32 * t + 8, 32 * t + 14, 32 * t + 24, 32 * t + 30]
    dens = OPT.get('dens', 3)
    if dens == 3 or (dens == 0 and len(slots) + 4 > 56 - 3 * (NT - 1 - t) and (len(slots) + 3) * (NT - D0) >= 56 * (t + 1 - D0)): sl.pop(2)
    slots += sl
nfused = min(14, len(slots) // 4)
loadpos = {}
for u in range(18):
    if u < 3: loadpos[u] = 32 * B2 + 3 + 10 * u
    elif u < 14 and u - 3 < nfused: loadpos[u] = slots[4 * (u - 3)] + 1
    elif u >= 14 and u - 4 < nfused and loadpos[u - 1] is not None: loadpos[u] = slots[4 * (u - 4)] + 10
    else: loadpos[u] = None
for u in range(18):
    if loadpos[u] is None: continue
    at(loadpos[u], lambda u=u: w_load_a(u))
    at(loadpos[u] + 3, lambda u=u: w_load_b(u))
    if u < 14: at(loadpos[u] + 6 + (1 if u >= 3 else 0), lambda u=u: h_load_b(u))
for u in range(nfused):
    rp = slots[4 * u] - 14 if u == 0 else slots[4 * u - 2] + 1
    at(rp, lambda u=u: w_read(u, 0)); at(rp + 2, lambda u=u: w_read(u, 1))
    for k in range(4): at(slots[4 * u + k], lambda u=u, k=k: d_mfma(u, k))
if OPT['prio']:
    lad = [OPT.get('l1', 70), OPT.get('l2', 92), OPT.get('l3', 98)]
    for lo, hi, fr in ((0, B1, (30, 60, 88)), (B1, B2, (60, 87, 96)), (B2, NT, lad)):
        at(32 * lo + 1, lambda: a("s_setprio 3"))
        for k in range(3): at(32 * lo + (32 * (hi - lo) * fr[k]) // 100, lambda k=k: a(f"s_setprio {2-k}"))

tK = rdK(0); tV1 = rdV1(0); tV2 = None
a.wait(tK)
a(qk(SA, QA))
EPV1 = OPT.get('epv1', 11)
for t in range(NT):
    if t == B1:
        a.wait(tokbox['h'], kvtok[KV_PRE - 1])
        a("s_barrier")
        a(f"""
        s_cmp_lg_u32 s{sW}, 0
        s_cbranch_scc1 L_noflag2
        s_lshl_b32 s{sT[9]}, s{sT[9]}, 7
        s_add_u32 s{sT[9]}, s{sT[9]}, {WS_F2}
        v_mov_b32 v{t0}, 1
        s_mov_b64 exec, 1
        buffer_store_dword v{t0}, v{vZ}, {srd(SWS)}, s{sT[9]} offen sc1
        s_mov_b64 exec, -1
        L_noflag2:
        """)
        a.vm -= 1
        stamp(6)
    if t == B2:
        a.wait(kvtok[15], f2tok[0], tV2)
        f2_check()
        a("s_barrier")
        stamp(9)
    for ph, (S, So, O, Oo, Qo) in enumerate(((SA, SB, OA, OB, QB), (SB, SA, OB, OA, QA))):
        for e in range(16):
            if e == 2:
                if ph == 0:
                    if t > 0: a(pv(Oo, V2, So + 8))
                    tV2 = rdV2(t)
                else:
                    a.wait(tV2, tK); a(pv(Oo, V2, So + 8))
            if (e == 5 and not (t == 0 and ph == 0)) or (t == 0 and ph == 0 and e == 0):
                if ph == 0:
                    a(qk(So, Qo))
                    if t + 1 < NT: tK = rdK(t + 1)
                elif t + 1 < NT: a(qk(So, Qo))
            if e == EPV1:
                if ph == 0: a.wait(tV1)
                a(pv(O, V1, S))
                if ph == 1 and t + 1 < NT: tV1 = rdV1(t + 1)
            for f in ev.pop(32 * t + 16 * ph + e, []): f()
            a(f"v_exp_f32 v{S+e}, v{S+e}")
assert not ev, sorted(ev)
a(pv(OB, V2, SB + 8))
stamp(7)
MO = TOP + 2 * 8192
ML = HALF + 3 * 8192
def merge_base(dst, w):
    a(f"s_lshl_b32 s{dst}, s{w}, 11\ns_add_u32 s{dst}, s{dst}, {MO}\ns_cmp_eq_u32 s{w}, 7\ns_cselect_b32 s{dst}, {3*8192}, s{dst}")
a(f"s_xor_b32 s{sT[2]}, s{sW}, 4")
merge_base(sT[0], sW); merge_base(sT[3], sT[2])
a(f"""
v_add_u32 v{t0}, s{sT[0]}, v{vL16}
v_add_u32 v{t1}, s{sT[3]}, v{vL16}
s_lshl_b32 s{sT[0]}, s{sW}, 8
s_add_u32 s{sT[0]}, s{sT[0]}, {ML}
v_lshl_add_u32 v{t2}, v{L}, 2, s{sT[0]}
s_lshl_b32 s{sT[2]}, s{sT[2]}, 8
s_add_u32 s{sT[2]}, s{sT[2]}, {ML}
v_lshl_add_u32 v{t3}, v{L}, 2, s{sT[2]}
ds_write_b128 v{t0}, {vr(OB,4)}
ds_write_b128 v{t0}, {vr(OB+4,4)} offset:1024
ds_write_b32 v{t2}, v{OB+8}
""")
a.wait_lg0()
a("s_barrier")
a(f"""
ds_read_b32 v{SB+8}, v{t3}
ds_read_b128 {vr(SB,4)}, v{t1}
ds_read_b128 {vr(SB+4,4)}, v{t1} offset:1024
s_add_u32 s{sT[4]}, s{sOO}, {WS_O}
s_mov_b32 s{sT[6]}, {fbits(2.0**-60):#x}
s_mov_b32 s{sT[7]}, {fbits(2.0**60):#x}
""")
a.wait_lg0()
a(f"v_add_f32 v{OA+8}, v{OA+8}, v{SB+8}")
for j in range(4): a(f"v_pk_add_f32 {vr(OA+2*j,2)}, {vr(OA+2*j,2)}, {vr(SB+2*j,2)}")
a(f"v_pk_mul_f32 {vr(t2,2)}, {vr(OA,2)}, 0 op_sel_hi:[1,0]")
for j in range(1, 4): a(f"v_pk_fma_f32 {vr(t2,2)}, {vr(OA+2*j,2)}, 0, {vr(t2,2)} op_sel_hi:[1,0,1]")
a(f"""
v_add_f32 v{t2}, v{t2}, v{t3}
v_add_f32 v{t2}, v{t2}, v{OA+8}
v_cmp_nle_f32 vcc, s{sT[6]}, v{t2}
v_cmp_nge_f32 s[{sT[2]}:{sT[3]}], s{sT[7]}, v{t2}
s_or_b64 vcc, vcc, s[{sT[2]}:{sT[3]}]
""")
if OPT['force_fb']: a("s_mov_b64 vcc, -1")
a("""
s_cbranch_vccnz L_true_max
L_norm:
""")
a(f"""
v_rcp_f32 v{t0}, v{OA+8}
s_nop 0
v_mul_f32 v{t0}, v{t0}, v{vG}
""")
for j in range(4): a(f"v_pk_mul_f32 {vr(OA+2*j,2)}, {vr(OA+2*j,2)}, {vr(t0,2)} op_sel_hi:[1,0]")
for j in range(4): a(f"v_cvt_pk_bf16_f32 v{OA+j}, v{OA+2*j}, v{OA+2*j+1}")
for j in range(4): a(f"v_min_u32 v{OA+j}, -2, v{OA+j}")
a(f"buffer_store_dwordx4 {vr(OA,4)}, v{vL16}, {srd(SWS)}, s{sT[4]} offen sc1")
stamp(8)

pending = [u for u in range(18) if loadpos[u] is None]
for u in range(nfused, 14):
    w_read(u, 0); w_read(u, 1)
    for k in range(4): d_mfma(u, k)
    while pending and pending[0] - 4 <= u:
        v = pending.pop(0)
        w_load_a(v); w_load_b(v)
        if v < 14: h_load_b(v)
for v in pending:
    w_load_a(v); w_load_b(v)
XB0 = ((B2 * REC + 255) // 256) * 256
assert XB0 + 4 * 8192 <= HALF
def inbox(dst, w, tmp):
    a(f"s_and_b32 s{dst}, s{w}, 3\ns_lshl_b32 s{dst}, s{dst}, 13\ns_cmp_ge_u32 s{w}, 4\ns_cselect_b32 s{tmp}, {HALF}, 0\ns_add_u32 s{dst}, s{dst}, s{tmp}\ns_add_u32 s{dst}, s{dst}, {XB0}")
a(f"s_xor_b32 s{sT[2]}, s{sW}, 1")
inbox(sT[8], sW, sT[0]); inbox(sT[3], sT[2], sT[0])
a(f"v_add_u32 v{t0}, s{sT[3]}, v{vL16}\nv_add_u32 v{t1}, s{sT[8]}, v{vL16}")
for j in range(8): a(f"ds_write_b128 v{t0}, {vr(DACC+32+4*j,4)} offset:{1024*j}")
a(f"s_and_b32 s{sT[2]}, s{sW}, 6")
ring_base(sT[3], sT[2], sT[0])
a(f"s_or_b32 s{sT[2]}, s{sW}, 1")
ring_base(sT[4], sT[2], sT[0])
a(f"""
v_add_u32 v24, s{sT[3]}, v{vTRP}
v_add_u32 v26, s{sT[4]}, v{vTRP}
v_xor_b32 v25, 64, v24
v_xor_b32 v27, 64, v26
v_sub_f32 v{vG}, 1.0, v{vG}
s_lshl_b32 s{sT[0]}, s{sI}, 1
s_and_b32 s{sT[1]}, s{sW}, 1
s_add_u32 s{sT[0]}, s{sT[0]}, s{sT[1]}
s_lshl_b32 s{sT[0]}, s{sT[0]}, 15
s_lshr_b32 s{sT[1]}, s{sW}, 1
s_lshl_b32 s{sT[1]}, s{sT[1]}, 13
s_add_u32 s{sT[0]}, s{sT[0]}, s{sT[1]}
s_add_u32 s{sT[0]}, s{sT[0]}, {WS_O}
s_add_u32 s{sT[1]}, s{sT[0]}, 4096
""")
a.wait(wtok[17], a.lastlg())
a("s_barrier")
OF, WOF, XT = 32, 160, 96
def o_loads():
    for v in range(8):
        a(f"buffer_load_dwordx4 {vr(OF + 4*v, 4)}, v{vL16}, {srd(SWS)}, s{sT[v>>2]} offen offset:{1024*(v&3)} sc1")
o_loads()
xt = [a(f"ds_read_b128 {vr(XT+4*j,4)}, v{t1} offset:{1024*j}") for j in range(8)]
def wo_read(v):
    slot = ((14 + (v & 3)) & 3) * 2048
    for b in range(2):
        for e in range(2):
            a(f"ds_read_b64_tr_b16 {vr(WOF + 8*v + 4*b + 2*e, 2)}, v{24 + 2*(v>>2) + b} offset:{slot + e*512}")
for j in range(8):
    a.wait(xt[j])
    wo_read(j)
    for i in range(2):
        r = 4 * j + 2 * i
        a(f"v_pk_add_f32 {vr(DACC+r,2)}, {vr(DACC+r,2)}, {vr(XT+r,2)}")
    for i in range(2):
        r = 4 * j + 2 * i
        a(f"v_pk_mul_f32 {vr(DACC+r,2)}, {vr(DACC+r,2)}, {vr(vG,2)} op_sel_hi:[1,0]")
a(f"""
v_and_b32 v{t0}, 31, v{L}
v_lshrrev_b32 v{t1}, 5, v{L}
v_and_b32 v{t2}, 7, v{L}
v_xor_b32 v{t1}, v{t1}, v{t2}
v_lshlrev_b32 v{t1}, 4, v{t1}
v_lshl_add_u32 v{t0}, v{t0}, 8, v{t1}
v_add_u32 v9, s{sT[8]}, v{t0}
v_xor_b32 v10, 32, v9
v_xor_b32 v11, 64, v9
v_xor_b32 v12, 0x60, v9
v_lshrrev_b32 v{t0}, 3, v{L}
v_lshlrev_b32 v{t1}, 1, v{t2}
v_xor_b32 v{t1}, v{t1}, v{t0}
v_lshlrev_b32 v{t1}, 4, v{t1}
v_lshl_add_u32 v{t1}, v{t0}, 8, v{t1}
s_lshl_b32 s{sT[3]}, s{sW}, 11
s_add_u32 s{sT[3]}, s{sT[3]}, {XB0}
v_add_u32 v1, s{sT[3]}, v{t1}
v_xor_b32 v2, 16, v1
v_add_u32 v3, {HALF}, v1
v_add_u32 v4, {HALF}, v2
s_lshl_b32 s{sT[4]}, s{sI}, 3
s_add_u32 s{sT[4]}, s{sT[4]}, s{sW}
s_lshl_b32 s{sT[4]}, s{sT[4]}, 13
s_lshl_b32 s{sT[5]}, s{sJ}, 7
s_add_u32 s{sT[4]}, s{sT[4]}, s{sT[5]}
v_lshlrev_b32 v{t2}, 4, v{t2}
v_lshl_add_u32 v5, v{t0}, 10, v{t2}
s_mov_b32 s{sT[2]}, 0
L_s3poll:
""")
a.wait_vm0()
a(f"v_max_u32 v{t0}, v{OF}, v{OF+1}\nv_max_u32 v{t1}, v{OF+2}, v{OF+3}")
for j in range(2, 16): a(f"v_max3_u32 v{t0 + (j&1)}, v{t0 + (j&1)}, v{OF+2*j}, v{OF+2*j+1}")
a(f"""
v_max_u32 v{t0}, v{t0}, v{t1}
v_cmp_eq_u32 vcc, -1, v{t0}
s_cbranch_vccnz L_s3retry
L_s3done:
""")
stamp(10)
a.wait_lg0()
for v in range(8):
    for b in range(2):
        d = vr(DACC + 16 * b, 16)
        a(f"v_mfma_f32_32x32x16_bf16 {d}, {vr(WOF+8*v+4*b,4)}, {vr(OF+4*v,4)}, {d}")
for b in range(2):
    for qd in range(4):
        a(f"ds_write_b128 v{9+qd}, {vr(DACC + 16*b + 4*qd, 4)} offset:{b*128}")
a.wait_lg0()
a("s_barrier")
RD = 128
rt = []
for p in range(4):
    for e in range(2):
        rt.append(a(f"ds_read_b128 {vr(RD + 8*p + 4*e, 4)}, v{1 + e + 2*(p>>1)} offset:{(p&1)*16384}"))
for p in range(1, 4):
    a.wait(rt[2 * p + 1])
    for j in range(4):
        a(f"v_pk_add_f32 {vr(RD+2*j,2)}, {vr(RD+2*j,2)}, {vr(RD+8*p+2*j,2)}")
for j in range(4): a(f"v_cvt_pk_bf16_f32 v{RD+j}, v{RD+2*j}, v{RD+2*j+1}")
a(f"buffer_store_dwordx4 {vr(RD,4)}, v5, {srd(SOUT)}, s{sT[4]} offen {['', 'sc1', 'nt', 'sc0 sc1', 'sc0 sc1 nt'][OPT.get('outm', 0)]}")
if OPT['stamp']:
    a("s_waitcnt vmcnt(0)")
    stamp(11)
    a("s_waitcnt lgkmcnt(0)")
    a(f"s_mov_b32 s28, s{sT[2]}")
    if 'pad' in OPT:
        K = OPT['pad']
        if K >= 0: a(f"s_sub_u32 s{sT[0]}, s{4+2*K}, s30\ns_mul_i32 s{sT[0]}, s{sT[0]}, 4")
        else: a(f"s_mov_b32 s{sT[0]}, 0")
        a(f"""
        s_add_u32 s{sT[0]}, s{sT[0]}, 6000
        L_pad:
        s_memrealtime s[{sT[2]}:{sT[3]}]
        s_waitcnt lgkmcnt(0)
        s_sub_u32 s{sT[2]}, s{sT[2]}, s30
        s_cmp_lt_u32 s{sT[2]}, s{sT[0]}
        s_cbranch_scc1 L_pad
        """)
        a(f"""
        s_lshl_b32 s{sT[0]}, s{sW}, 8
        s_or_b32 s{sT[0]}, s{sT[0]}, s2
        s_cmp_lg_u32 s{sT[0]}, 100
        s_cbranch_scc1 L_end
        """)
        a("v_mov_b32 v1, 0\ns_mov_b64 exec, 1")
        for k in range(12):
            a(f"s_sub_u32 s{sT[0]}, s{4+2*k}, s30\nv_mov_b32 v2, s{sT[0]}\nbuffer_store_dword v2, v1, {srd(SDBG)}, 0 offen offset:{4+4*k}")
    else:
        a(f"s_lshl_b32 s{sT[0]}, s2, 3\ns_add_u32 s{sT[0]}, s{sT[0]}, s{sW}\ns_lshl_b32 s{sT[0]}, s{sT[0]}, 6\ns_add_u32 s{sT[0]}, s{sT[0]}, {WS_STAMP}")
        a("v_mov_b32 v1, 0\ns_mov_b64 exec, 1")
        for k in range(14):
            a(f"v_mov_b32 v2, s{4+2*k}\nbuffer_store_dword v2, v1, {srd(SWS)}, s{sT[0]} offen offset:{4*k}")
a("L_end:\ns_endpgm")
a("L_s3retry:")
o_loads()
a(f"""
s_add_u32 s{sT[2]}, s{sT[2]}, 1
s_cmp_lt_u32 s{sT[2]}, {SPIN}
s_cbranch_scc1 L_s3poll
s_waitcnt vmcnt(0)
s_branch L_s3done
""")

a("L_pathQ:")
a.forget()
proj_path('Q')
a("s_branch L_join")

CM = SB
a(f"""
L_true_max:
s_waitcnt vmcnt(0) lgkmcnt(0)
v_mov_b32 v{t0}, 0xff800000
s_mov_b32 s{sT[0]}, {WS_KV}
L_tm1:
buffer_load_dwordx4 {vr(KF,4)}, v{vL16}, {srd(SWS)}, s{sT[0]} offen sc1
s_waitcnt vmcnt(0)
{qk(SA, QA)}
""")
for j in range(8): a(f"v_max3_f32 v{t0}, v{t0}, v{SA+2*j}, v{SA+2*j+1}")
a(f"""
s_add_u32 s{sT[0]}, s{sT[0]}, 2048
s_cmp_lt_u32 s{sT[0]}, {WS_KV + 64*2048}
s_cbranch_scc1 L_tm1
v_mov_b32 v{t1}, v{t0}
v_permlane32_swap_b32 v{t0}, v{t1}
v_max_f32 v{t0}, v{t0}, v{t1}
""")
for r in range(16): a(f"v_sub_f32 v{CM+r}, 0, v{t0}\nv_mov_b32 v{OA+r}, 0")
for r in range(8): a(f"v_mov_b32 v{V1+r}, 0x3f803f80")
a(f"""
v_and_b32 v{t1}, 15, v{L}
v_lshrrev_b32 v{t2}, 5, v{L}
v_lshlrev_b32 v{t1}, 4, v{t1}
v_lshl_add_u32 v{t1}, v{t2}, 8, v{t1}
s_mov_b32 s{sT[0]}, {WS_KV}
s_mov_b32 s{sT[2]}, 0xffff
s_mov_b32 s{sT[3]}, 0xffff
L_tm2:
buffer_load_dwordx4 {vr(KF,4)}, v{vL16}, {srd(SWS)}, s{sT[0]} offen sc1
s_mov_b64 exec, s[{sT[2]}:{sT[3]}]
buffer_load_dwordx4 {vr(V1,4)}, v{t1}, {srd(SWS)}, s{sT[0]} offen offset:1024 sc1
buffer_load_dwordx4 {vr(V2,4)}, v{t1}, {srd(SWS)}, s{sT[0]} offen offset:1536 sc1
s_mov_b64 exec, -1
s_waitcnt vmcnt(0)
v_mfma_f32_32x32x16_bf16 {vr(SA,16)}, {vr(KF,4)}, {vr(QA,4)}, {vr(CM,16)}
""")
for e in range(16): a(f"v_exp_f32 v{SA+e}, v{SA+e}")
a(pv(OA, V1, SA)); a(pv(OA, V2, SA + 8))
a(f"""
s_add_u32 s{sT[0]}, s{sT[0]}, 2048
s_cmp_lt_u32 s{sT[0]}, {WS_KV + 64*2048}
s_nop 7
s_cbranch_scc1 L_tm2
s_nop 7
s_branch L_norm
""")

bad = a.check_branches()
assert not bad, bad

hdr = open(f'cdna_kernels/{NAME}.s.ref').read().split('\n')
head = [l for l in hdr if l.startswith(';') and '@launch' not in l]
out = "\n".join(head) + f"\n; @launch grid=(256,1,1) block=(512,1,1) lds={LDS_BYTES}\n"
out += f""".amdgcn_target "amdgcn-amd-amdhsa--gfx950"
.text
.globl {NAME}_kernel
.p2align 8
.type {NAME}_kernel,@function
{NAME}_kernel:
{a.text()}
.section .rodata,"a"
.p2align 6
.amdhsa_kernel {NAME}_kernel
  .amdhsa_next_free_vgpr 256
  .amdhsa_next_free_sgpr 102
  .amdhsa_accum_offset 256
  .amdhsa_group_segment_fixed_size 0
  .amdhsa_kernarg_size 104
  .amdhsa_user_sgpr_count 2
  .amdhsa_user_sgpr_kernarg_segment_ptr 1
  .amdhsa_system_sgpr_workgroup_id_x 1
.end_amdhsa_kernel
"""
open(sys.argv[1], 'w').write(out)
print("fused k-steps", nfused, "instructions:", sum(1 for i in a.ins if i.ws), "auto nops:", a.nnop, file=sys.stderr)
```

```python
import sys, math, struct
sys.path.insert(0, 'gen')
from asmlib import Asm

NAME = 'gated_mix__grouped_kv_mqa__geglu_ffn__prompt'
OPT = dict(stamp=0, grp=0, force_fb=0, qflag=11, s1=16, b2=22, outm=1, ofast=0,
           p_kv=40, p_kvs=10, p_flag=112, p_fill=120, p_fills=40, p_kv2=272, p_f2=300, p_chk=340, d0=12, dend=32,
           late=1, pk2=1, nearly=2, h0st=11, clst=10)
for x in sys.argv[2:]:
    k, v = x.split('='); OPT[k] = int(v)

def fbits(x): return struct.unpack('<I', struct.pack('<f', x))[0]

WS_KV, WS_G, WS_F1, WS_Q, WS_O, WS_H, WS_STAMP = 0, 0x20000, 0x30000, 0x100000, 0x300000, 0x500000, 0xC00000
WS_F2 = WS_F1 + 8192
WS_SIZE = 0x1000000
CLEAR_WG = 64
WR, EX = 65536, 131072
NSLOT, HALF, RING = 24, 49152, 98304
MERGE = 65536
LDS_BYTES = 163840
SPIN = 0x40000
SX, SWG, SWU, SWQ, SEX, SWS, SDBG, SWD, SWO, SOUT = 32, 36, 40, 44, 48, 52, 56, 60, 64, 92
sW, sTI, sQ, sU, sROT, sXO, sWOF, sMX, sMW, sI, sJ, sROT0 = range(68, 80)
sT = list(range(80, 90))
sEXW, sEXO = 90, 91
sC1 = 96
sF2, sRH, sRING, sOO = 98, 99, 100, 101
sHO = 3
sKVM, sKVO, sQA, sGA = 32, 33, 34, 35
sRW, sWB, sF2R = 44, 45, 46
def srd(n): return f"s[{n}:{n+3}]"
def vr(b, n): return f"v[{b}:{b+n-1}]"

vXS0, vXS1, vWS = 1, 2, 3
vST = 4
vXR = [5, 6, 7, 8]
vWR = [9, 10]
vES, vER = 11, [12, 13]
vL16, vLANE = 14, 15
vC0 = 16
vZ = 17
vGT = 18
t0, t1, t2, t3 = 20, 21, 22, 23
vS0 = 28
vPV, vPD, vTRP = 29, 0, 31
F = [32, 48]
ACC = [64, 96]
XF = 128
ACCE, WE = 96, [100, 104]
L = vLANE
QA, QB, KF, V2, V1 = 128, 132, 136, 140, [144, 148]
vG, vIDX, vAK, vAV, vKVS = 152, 154, 155, 156, 157
vDS, vDR0, vDR1, vH0, vH1, vF2 = 158, 159, 160, 161, 162, 163
F2D = 164
OA, OB, SA, SB = 176, 192, 208, 224
WF = [240, 248]
HF = [32, 40, 48, 56]
DACC = 64

a = Asm()
CLK = 's_memtime' if OPT['stamp'] == 2 else 's_memrealtime'
def stamp(k, grp=0):
    if grp != OPT['grp'] and k != 11: return
    if OPT['stamp']: a(f"{CLK} s[{4+2*k}:{5+2*k}]")
def mk_srd(n, p, size):
    a(f"s_mov_b32 s{n}, s{p}\ns_mov_b32 s{n+1}, s{p+1}\ns_mov_b32 s{n+2}, {size}\ns_mov_b32 s{n+3}, 0x20000")

PG = 3584
C0 = -2.0 * math.sqrt(2.0 / math.pi) * math.log2(math.e)
C1 = C0 * 0.044715
QS = 0.25 * math.log2(math.e)

a("s_cmp_ge_u32 s2, 256\ns_cbranch_scc1 L_end")
a("s_load_dwordx16 s[4:19], s[0:1], 0\ns_load_dwordx8 s[20:27], s[0:1], 64\ns_load_dwordx2 s[28:29], s[0:1], 96")
if OPT['stamp']: a(f"{CLK} s[30:31]")
a(f"v_lshrrev_b32 v1, 6, v0\nv_and_b32 v{L}, 63, v0\nv_readfirstlane_b32 s{sW}, v1")
a(f"""
s_and_b32 s{sT[0]}, s2, 7
s_lshr_b32 s{sT[1]}, s2, 3
s_and_b32 s{sJ}, s{sT[1]}, 7
s_lshr_b32 s{sU}, s{sT[1]}, 3
s_lshr_b32 s{sQ}, s{sT[0]}, 1
s_and_b32 s{sT[2]}, s{sT[0]}, 1
s_lshl_b32 s{sT[2]}, s{sT[2]}, 3
s_add_u32 s{sTI}, s{sT[2]}, s{sJ}
s_lshl2_add_u32 s{sI}, s{sT[0]}, s{sU}
s_lshl1_add_u32 s{sROT}, s{sU}, s{sJ}
s_and_b32 s{sROT}, s{sROT}, 7
s_mov_b32 s{sROT0}, s{sROT}
s_lshl_b32 s{sMX}, s{sW}, 11
s_lshl_b32 s{sMW}, s{sW}, 10
""")
a(f"""
v_lshlrev_b32 v{vL16}, 4, v{L}
v_lshrrev_b32 v{t0}, 3, v{L}
v_and_b32 v{t1}, 7, v{L}
v_lshrrev_b32 v{t2}, 4, v{L}
s_lshl3_add_u32 s{sT[0]}, s{sTI}, s{sW}
s_lshl_b32 s{sT[0]}, s{sT[0]}, 14
v_xor_b32 v{t3}, v{t1}, v{t2}
v_lshlrev_b32 v{t3}, 4, v{t3}
v_lshl_add_u32 v{vXS0}, v{t0}, 10, v{t3}
v_add_u32 v{vXS0}, s{sT[0]}, v{vXS0}
v_xor_b32 v{vXS1}, 64, v{vXS0}
v_add_u32 v{vXS1}, 8192, v{vXS1}
""")
def w_src(pitch, col):
    return f"""
    v_lshrrev_b32 v{t0}, 3, v{L}
    s_lshl_b32 s{sT[0]}, s{sW}, 3
    v_add_u32 v{t0}, s{sT[0]}, v{t0}
    v_mul_u32_u24 v{t0}, s{pitch}, v{t0}
    v_and_b32 v{t1}, 7, v{L}
    v_bfe_u32 v{t2}, v{L}, 4, 1
    v_lshlrev_b32 v{t2}, 1, v{t2}
    v_xor_b32 v{t1}, v{t1}, v{t2}
    s_and_b32 s{sT[0]}, s{sW}, 1
    s_lshl_b32 s{sT[0]}, s{sT[0]}, 2
    v_xor_b32 v{t1}, s{sT[0]}, v{t1}
    v_lshl_add_u32 v{t0}, v{t1}, 4, v{t0}
    v_add_u32 v{vWS}, s{col}, v{t0}
    """
a(f"""
s_mul_i32 s{sT[1]}, s{sQ}, 7
s_lshl1_add_u32 s{sT[1]}, s{sU}, s{sT[1]}
s_sub_u32 s{sT[1]}, s{sT[1]}, 1
s_lshl_b32 s{sT[1]}, s{sT[1]}, 7
s_lshl_b32 s{sT[2]}, s{sQ}, 8
s_movk_i32 s{sT[3]}, {PG}
s_cmp_eq_u32 s{sU}, 0
s_cselect_b32 s{sT[1]}, s{sT[2]}, s{sT[1]}
s_cselect_b32 s{sT[3]}, 1024, s{sT[3]}
""")
a(w_src(sT[3], sT[1]))
a(f"""
s_mov_b32 s{SX+2}, {2048*1024}
s_mov_b32 s{SX+3}, 0x20000
s_mov_b32 s{SWG+2}, {512*PG}
s_mov_b32 s{SWG+3}, 0x20000
s_mov_b32 s{SWU+2}, {512*PG}
s_mov_b32 s{SWU+3}, 0x20000
s_mov_b32 s{SWQ+2}, {512*1024}
s_mov_b32 s{SWQ+3}, 0x20000
s_cmp_eq_u32 s{sU}, 0
s_waitcnt lgkmcnt(0)
s_mov_b64 s[{SX}:{SX+1}], s[4:5]
s_mov_b64 s[{SWG}:{SWG+1}], s[16:17]
s_mov_b64 s[{SWU}:{SWU+1}], s[18:19]
s_mov_b64 s[{SWQ}:{SWQ+1}], s[6:7]
s_cbranch_scc1 L_pathQ
""")

def wslot(sig):
    if sig < 10: return WR + (sig & 3) * 16384
    if sig < 14: return (sig - 10) * 16384
    return WR + (sig - 12) * 16384

def dma_ops(sig, path):
    p = sig >> 3
    isq = (path == 'Q' and p == 0)
    pitch = 1024 if isq else PG
    sa, sb = (SWQ, SWQ) if isq else (SWG, SWU)
    xs, ws = (sig & 3) * 16384, wslot(sig)
    pre = f"s_mul_i32 s{sWOF}, s{sROT}, {64*pitch}\n"
    if path == 'G' and p == 1: pre += f"s_add_u32 s{sWOF}, s{sWOF}, 128\n"
    mid = f"s_add_u32 s{sWOF}, s{sWOF}, 128\n" if isq else ""
    inc, wrap = f"s_add_u32 s{sROT}, s{sROT}, 1\n", f"s_and_b32 s{sROT}, s{sROT}, 7\n"
    wa = f"s_add_u32 m0, s{sMW}, {ws}\n{{}}buffer_load_dwordx4 v{vWS}, {srd(sa)}, s{sWOF} offen lds"
    wb = f"s_add_u32 m0, s{sMW}, {ws+8192}\n{{}}buffer_load_dwordx4 v{vWS}, {srd(sb)}, s{sWOF} offen lds"
    if p == 0:
        return [f"s_add_u32 m0, s{sMX}, {xs}\ns_lshl_b32 s{sXO}, s{sROT}, 7\nbuffer_load_dwordx4 v{vXS0}, {srd(SX)}, s{sXO} offen lds",
                wa.format(pre), wb.format(mid + inc),
                f"s_add_u32 m0, s{sMX}, {xs+1024}\n{wrap}buffer_load_dwordx4 v{vXS1}, {srd(SX)}, s{sXO} offen lds"]
    return [wa.format(pre), wb.format(inc + wrap)]

def setup_while_waiting(P):
    mk_srd(SWS, 28, WS_SIZE); mk_srd(SDBG, 26, 256); mk_srd(SWD, 20, 1792 * 1024); mk_srd(SWO, 12, 512 * 1024); mk_srd(SOUT, 24, 2048 * 1024)
    a(f"""
    s_and_b32 s{sT[0]}, s{sW}, 3
    s_lshr_b32 s{sT[1]}, s{sW}, 2
    s_lshl1_add_u32 s{sT[0]}, s{sT[0]}, s{sT[1]}
    s_lshl_b32 s{sT[0]}, s{sT[0]}, 11
    v_and_b32 v{t0}, 15, v{L}
    v_bfe_u32 v{t1}, v{L}, 1, 3
    v_lshrrev_b32 v{t2}, 4, v{L}
    v_xor_b32 v{t1}, v{t1}, v{t2}
    v_lshlrev_b32 v{t1}, 4, v{t1}
    v_lshl_add_u32 v{t1}, v{t0}, 7, v{t1}
    v_add_u32 v{vXR[0]}, s{sT[0]}, v{t1}
    v_xor_b32 v{vXR[1]}, 0x800, v{vXR[0]}
    v_xor_b32 v{vXR[2]}, 64, v{vXR[0]}
    v_xor_b32 v{vXR[3]}, 64, v{vXR[1]}
    s_lshl_b32 s{sT[2]}, s{sT[1]}, 8
    v_xor_b32 v{vST}, s{sT[2]}, v{vL16}
    """)
    a(f"""
    v_lshrrev_b32 v{t3}, 5, v{L}
    v_lshlrev_b32 v{t0}, 4, v{t0}
    v_lshl_add_u32 v{vPV}, v{t3}, 8, v{t0}
    """)
    a(f"""
    v_bfe_u32 v{t0}, v{L}, 2, 2
    v_lshl_add_u32 v{t1}, v{t2}, 3, v{t0}
    v_lshlrev_b32 v{t1}, 7, v{t1}
    v_bfe_u32 v{t2}, v{L}, 3, 2
    s_lshl_b32 s{sT[1]}, s{sT[1]}, 1
    v_xor_b32 v{t2}, s{sT[1]}, v{t2}
    v_lshl_add_u32 v{t1}, v{t2}, 5, v{t1}
    v_and_b32 v{t2}, 3, v{L}
    v_lshl_add_u32 v{t1}, v{t2}, 3, v{t1}
    v_add_u32 v{vWR[0]}, {WR}, v{t1}
    v_xor_b32 v{vWR[1]}, 32, v{vWR[0]}
    """)
    a(f"""
    v_lshl_add_u32 v{t3}, v{t3}, 3, v{t0}
    v_lshlrev_b32 v{t3}, 7, v{t3}
    v_lshrrev_b32 v{t0}, 1, v{t0}
    v_lshl_add_u32 v{t3}, v{t0}, 6, v{t3}
    v_lshl_add_u32 v{t3}, v{t2}, 3, v{t3}
    v_bfe_u32 v{t2}, v{L}, 4, 1
    v_lshl_add_u32 v{vTRP}, v{t2}, 5, v{t3}
    v_lshlrev_b32 v{t2}, 2, v{t2}
    v_and_b32 v{t1}, 7, v{L}
    v_xor_b32 v{t1}, v{t1}, v{t2}
    v_lshlrev_b32 v{t1}, 4, v{t1}
    v_lshrrev_b32 v{t0}, 3, v{L}
    v_lshl_add_u32 v{t0}, v{t0}, 10, v{t1}
    s_lshl_b32 s{sT[0]}, s{sJ}, 7
    v_add_u32 v{vPD}, s{sT[0]}, v{t0}
    v_mov_b32 v{vZ}, 0
    v_mov_b32 v{vC0}, {fbits(C0):#x}
    s_mov_b32 s{sC1}, {fbits(C1):#x}
    s_mov_b32 s{sC1+1}, {fbits(C1):#x}
    """)
    a(f"""
    s_lshr_b32 s{sT[3]}, s{sW}, 2
    s_and_b32 s{sT[1]}, s{sW}, 3
    s_lshl2_add_u32 s{sT[0]}, s{sTI}, s{sT[1]}
    s_lshl_b32 s{sT[8]}, s{sT[0]}, 5
    s_mul_i32 s{sT[0]}, s{sT[0]}, 112
    s_mul_i32 s{sT[1]}, s{sQ}, 28
    s_add_u32 s{sT[0]}, s{sT[0]}, s{sT[1]}
    s_lshl3_add_u32 s{sT[0]}, s{sU}, s{sT[0]}
    s_lshl1_add_u32 s{sT[0]}, s{sT[3]}, s{sT[0]}
    s_lshl_b32 s{sT[0]}, s{sT[0]}, 10
    s_add_u32 s{sHO}, s{sT[0]}, {WS_H}
    s_lshl3_add_u32 s{sT[4]}, s{sQ}, s{sT[8]}
    s_lshl1_add_u32 s{sT[4]}, s{sT[3]}, s{sT[4]}
    s_lshl_b32 s{sT[4]}, s{sT[4]}, 10
    s_lshl2_add_u32 s{sT[1]}, s{sQ}, s{sU}
    s_lshl4_add_u32 s{sF2}, s{sTI}, s{sT[1]}
    s_lshl_b32 s{sF2}, s{sF2}, 5
    s_add_u32 s{sF2}, s{sF2}, s{sW}
    s_lshl_b32 s{sF2}, s{sF2}, 2
    s_add_u32 s{sF2}, s{sF2}, {WS_F2}
    s_lshl1_add_u32 s{sT[9]}, s{sT[1]}, s{sT[8]}
    s_add_u32 s{sT[9]}, s{sT[9]}, s{sT[3]}
    s_lshl_b32 s{sT[9]}, s{sT[9]}, 10
    s_add_u32 s{sT[9]}, s{sT[9]}, {WS_O}
    s_and_b32 s{sT[1]}, s{sW}, 1
    s_lshl1_add_u32 s{sT[1]}, s{sI}, s{sT[1]}
    s_lshl3_add_u32 s{sT[2]}, s{sT[1]}, s{sJ}
    s_lshl_b32 s{sT[2]}, s{sT[2]}, 2
    s_and_b32 s{sT[1]}, s{sW}, 2
    s_add_u32 s{sT[2]}, s{sT[2]}, s{sT[1]}
    s_add_u32 s{sT[2]}, s{sT[2]}, s{sT[3]}
    s_lshl_b32 s{sOO}, s{sT[2]}, 10
    s_lshl_b32 s{sRING}, s{sW}, 13
    s_add_u32 s{sRING}, s{sRING}, {RING}
    s_mul_i32 s{sRH}, s{sJ}, 7
    s_lshr_b32 s{sRH}, s{sRH}, 2
    s_mul_i32 s{sT[1]}, s{sU}, 7
    s_lshr_b32 s{sT[1]}, s{sT[1]}, 1
    s_add_u32 s{sRH}, s{sRH}, s{sT[1]}
    s_cmp_ge_u32 s{sRH}, 14
    s_cselect_b32 s{sT[1]}, 14, 0
    s_sub_u32 s{sRH}, s{sRH}, s{sT[1]}
    s_lshl_b32 s{sRH}, s{sRH}, 10
    """)
    if P == 'Q':
        a(f"""
        v_lshrrev_b32 v{t2}, 4, v{L}
        v_and_b32 v{t0}, 15, v{L}
        v_lshlrev_b32 v{t0}, 3, v{t0}
        v_lshl_add_u32 v{t0}, v{t2}, 8, v{t0}
        v_and_b32 v{t2}, 1, v{t2}
        v_lshl_add_u32 v{t0}, v{t2}, 7, v{t0}
        v_add_u32 v{vER[0]}, {EX}, v{t0}
        v_xor_b32 v{vER[1]}, 0x80, v{vER[0]}
        """)

def x_reads(sig, j):
    return [f"ds_read_b128 {vr(XF + 16*sig + 8*j + 4*tq, 4)}, v{vXR[2*j+tq]} offset:{(sig & 3) * 16384}" for tq in range(2)]
def w_reads(sig, j, i):
    b, part = i >> 1, i & 1
    off = (wslot(sig) & 0xffff) + part * 8192 + j * 4096
    return [f"ds_read_b64_tr_b16 {vr(F[j] + 4*i + 2*e, 2)}, v{vWR[b]} offset:{off + e*512}" for e in range(2)]
def e_reads(sig, j):
    return [f"ds_read_b64_tr_b16 {vr(WE[j] + 2*e, 2)}, v{vER[e]} offset:{sig*2048 + j*1024}" for e in range(2)]
def mfmas(sig, j):
    out = []
    for i in range(4):
        for tq in range(2):
            d = vr(ACC[sig >> 3] + 8 * i + 4 * tq, 4)
            c = "0" if ((sig & 7) == 0 and j == 0) else d
            out.append(f"v_mfma_f32_16x16x32_bf16 {d}, {vr(F[j] + 4*i, 4)}, {vr(XF + 16*(sig&7) + 8*j + 4*tq, 4)}, {c}")
    return out
def e_mfma(sig, j):
    return f"v_mfma_f32_16x16x32_bf16 {vr(ACCE,4)}, {vr(WE[j],4)}, {vr(XF + 16*sig + 8*j, 4)}, {'0' if (sig==0 and j==0) else vr(ACCE,4)}"

def gelu_pair(base, j, T=vGT, pk=False):
    G = vr(base + 2 * j, 2); U = vr(base + 8 + 2 * j, 2); TT = vr(T, 2)
    g0, g1, u0, u1 = base + 2 * j, base + 2 * j + 1, base + 8 + 2 * j, base + 9 + 2 * j
    if pk:
        return [f"v_pk_mul_f32 {TT}, {G}, {G}",
                f"v_pk_fma_f32 {TT}, {TT}, s[{sC1}:{sC1+1}], {vr(vC0,2)} op_sel_hi:[1,1,0]",
                f"v_pk_mul_f32 {TT}, {TT}, {G}",
                f"v_exp_f32 v{T}, v{T}", f"v_exp_f32 v{T+1}, v{T+1}",
                f"v_pk_mul_f32 {G}, {G}, {U}",
                f"v_pk_add_f32 {TT}, {TT}, 1.0 op_sel_hi:[1,0]",
                f"v_rcp_f32 v{T}, v{T}", f"v_rcp_f32 v{T+1}, v{T+1}",
                f"v_pk_mul_f32 {G}, {G}, {TT}",
                f"v_cvt_pk_bf16_f32 v{base+j}, v{g0}, v{g1}"]
    return [f"v_mul_f32 v{T}, v{g0}, v{g0}", f"v_mul_f32 v{T+1}, v{g1}, v{g1}",
            f"v_fma_f32 v{T}, v{T}, s{sC1}, v{vC0}", f"v_fma_f32 v{T+1}, v{T+1}, s{sC1}, v{vC0}",
            f"v_mul_f32 v{T}, v{T}, v{g0}", f"v_mul_f32 v{T+1}, v{T+1}, v{g1}",
            f"v_exp_f32 v{T}, v{T}", f"v_exp_f32 v{T+1}, v{T+1}",
            f"v_mul_f32 v{g0}, v{g0}, v{u0}", f"v_add_f32 v{T}, 1.0, v{T}", f"v_add_f32 v{T+1}, 1.0, v{T+1}",
            f"v_rcp_f32 v{T}, v{T}", f"v_rcp_f32 v{T+1}, v{T+1}",
            f"v_mul_f32 v{g1}, v{g1}, v{u1}",
            f"v_mul_f32 v{g0}, v{g0}, v{T}", f"v_mul_f32 v{g1}, v{g1}, v{T+1}",
            f"v_cvt_pk_bf16_f32 v{base+j}, v{g0}, v{g1}"]
def to_frag(base):
    return [f"v_permlane16_swap_b32 v{base}, v{base+2}", f"v_permlane16_swap_b32 v{base+1}, v{base+3}"]

def cost(x):
    c = 0
    for l in x.strip().split('\n'):
        l = l.strip()
        if not l or l.startswith(';') or l.endswith(':'): continue
        c += 8 if l.startswith(('v_exp', 'v_rcp')) else (OPT.get('vmc', 16) if l.startswith('buffer_') else 4)
    return c

kvtok = {}
def kv_step(m):
    slot = (2 * m % NSLOT) * 2048
    if m == 0: x = f"s_mov_b32 m0, s{sKVM}\ns_nop 0\n"
    else: x = f"s_add_u32 s{sKVO}, s{sKVO}, 4096\ns_add_u32 m0, s{sKVM}, {slot}\ns_and_b32 s{sKVO}, s{sKVO}, 0xffff\n"
    return x + f"buffer_load_dwordx4 v{vKVS}, {srd(SWS)}, s{sKVO} offen sc1 lds"
KV_FIRST = 5
def first_loads():
    l = [f"buffer_load_dwordx4 {vr(QA,4)}, v{vL16}, {srd(SWS)}, s{sQA} offen sc1", kv_step(0),
         f"s_xor_b32 s{sQA}, s{sQA}, 1024\nbuffer_load_dwordx4 {vr(QB,4)}, v{vL16}, {srd(SWS)}, s{sQA} offen sc1",
         f"buffer_load_dword v{vG}, v{vG}, {srd(SWS)}, s{sGA} offen sc1"]
    return l + [kv_step(m) for m in range(1, KV_FIRST)]

def setup_queue():
    q = []
    def add(st, txt):
        for l in txt.strip().split('\n'): q.append((st, l.strip().replace('|', '\n')))
    add(11, f"""
    s_lshr_b32 s{sT[3]}, s{sW}, 2
    s_and_b32 s{sT[5]}, s{sW}, 1
    s_lshl_b32 s{sT[6]}, s{sT[3]}, 16
    s_lshl_b32 s{sT[7]}, s{sT[5]}, 10
    s_add_u32 s{sT[6]}, s{sT[6]}, s{sT[7]}
    v_add_u32 v{vKVS}, s{sT[6]}, v{vL16}
    s_mul_i32 s{sT[3]}, s{sT[3]}, {HALF}
    v_add_u32 v{vAK}, s{sT[3]}, v{vL16}
    v_add_u32 v{vAV}, s{sT[3]}, v{vPV}
    s_and_b32 s{sT[6]}, s{sW}, 3
    s_lshl_b32 s{sT[6]}, s{sT[6]}, 10
    s_add_u32 s{sKVM}, s{sT[6]}, s{sT[3]}
    s_bfe_u32 s{sT[6]}, s{sW}, 0x10001
    s_lshr_b32 s{sT[7]}, s2, 3
    s_add_u32 s{sT[6]}, s{sT[6]}, s{sT[7]}
    s_and_b32 s{sT[6]}, s{sT[6]}, 31
    s_lshl_b32 s{sKVO}, s{sT[6]}, 11
    s_add_u32 s{sQA}, s{sOO}, {WS_Q}
    s_lshl1_add_u32 s{sGA}, s{sI}, s{sT[5]}
    s_lshl_b32 s{sGA}, s{sGA}, 7
    s_add_u32 s{sGA}, s{sGA}, {WS_G}
    v_and_b32 v{vG}, 31, v{L}
    v_lshlrev_b32 v{vG}, 2, v{vG}
    v_mov_b32 v{vIDX}, 0xdddddddd
    v_mov_b32 v{V2+1}, 0x3f803f80
    s_mov_b32 vcc_lo, 0x110000|s_mov_b32 vcc_hi, 0x110000|v_cndmask_b32 v{V2}, 0, v{V2+1}, vcc
    """)
    for r in range(V2 + 1, V2 + 12): add(11, f"v_mov_b32 v{r}, v{V2}")
    add(12, f"""
    v_mov_b32 v{vDS}, v{vPD}
    v_add_u32 v{vDR0}, s{sRING}, v{vTRP}
    v_xor_b32 v{vDR1}, 64, v{vDR0}
    s_mul_i32 s{sT[6]}, s{sT[5]}, {112*1024}
    s_mul_i32 s{sT[7]}, s{sI}, 224
    s_mul_i32 s{sWB}, s{sW}, 14
    s_add_u32 s{sT[7]}, s{sT[7]}, s{sWB}
    s_lshl_b32 s{sT[7]}, s{sT[7]}, 10
    s_add_u32 s{sT[7]}, s{sT[7]}, {WS_H}
    s_add_u32 s{sT[3]}, s{sT[7]}, s{sT[6]}
    v_add_u32 v{vH0}, s{sT[3]}, v{vL16}
    s_sub_u32 s{sT[3]}, s{sT[7]}, s{sT[6]}
    s_add_u32 s{sT[3]}, s{sT[3]}, {112*1024}
    v_add_u32 v{vH1}, s{sT[3]}, v{vL16}
    s_lshl_b32 s{sWB}, s{sWB}, 14
    s_mov_b32 s{sRW}, s{sRH}
    v_bfe_u32 v{vF2}, v{L}, 1, 4
    v_and_b32 v{F2D}, 16, v{vL16}
    v_lshl_add_u32 v{vF2}, v{vF2}, 7, v{F2D}
    s_lshr_b32 s{sF2R}, s{sI}, 1
    s_lshl_b32 s{sF2R}, s{sF2R}, 11
    s_add_u32 s{sF2R}, s{sF2R}, {WS_F2}
    """)
    for r in range(9): add(13, f"v_mov_b32 v{OA+r}, 0")
    for r in range(9): add(14, f"v_mov_b32 v{OB+r}, 0")
    return q

def s1_issue(P):
    a(f"""
    s_cmp_lg_u32 s{sW}, 0
    s_cbranch_scc1 L_nopoll0{P}
    s_lshr_b32 s{sT[0]}, s{sI}, 1
    s_lshl_b32 s{sT[0]}, 0x10001, s{sT[0]}
    s_mov_b32 s{sT[1]}, {WS_F1}
    v_lshlrev_b32 v{t1}, 7, v{L}
    v_mov_b32 v{t0}, 1
    s_mov_b32 exec_hi, s{sT[0]}
    buffer_load_dword v{t0}, v{t1}, {srd(SWS)}, s{sT[1]} offen sc1
    s_mov_b32 exec_hi, -1
    L_nopoll0{P}:
    """)
    a.vm -= 1
def s1_check(P):
    a(f"""
    s_cmp_lg_u32 s{sW}, 0
    s_cbranch_scc1 L_s1done{P}
    s_mov_b32 s{sT[0]}, 0
    L_s1poll{P}:
    s_waitcnt vmcnt(0)
    v_cmp_ne_u32 vcc, 1, v{t0}
    s_cbranch_vccz L_s1done{P}
    s_mov_b64 exec, vcc
    buffer_load_dword v{t0}, v{t1}, {srd(SWS)}, s{sT[1]} offen sc1
    s_mov_b64 exec, -1
    s_add_u32 s{sT[0]}, s{sT[0]}, 1
    s_cmp_lt_u32 s{sT[0]}, {SPIN}
    s_cbranch_scc1 L_s1poll{P}
    s_waitcnt vmcnt(0)
    L_s1done{P}:
    """)
    a.vm -= 1

def proj_path(P):
    tok = {}
    S1 = OPT['s1']; QF = OPT['qflag']
    sched = {s: [s + 2] for s in range(6)}
    if P == 'G': sched.update({6: [8, 9], 7: [10, 11], 8: [12, 13], 9: [14, 15]}); cover = {12: 15}; nobar = {13, 14, 15}
    else: sched.update({6: [8, 9], 7: [10, 11], 9: [12, 13], 10: [14, 15]}); cover = {12: 13, 14: 15}; nobar = {13, 15}
    nobar -= {S1}
    def dma_groups(sg):
        d = dma_ops(sg, P)
        if P == 'Q' and sg < 8:
            d[0] = f"""
            s_cmp_lg_u32 s{sEXW}, {sg}
            s_cbranch_scc1 L_noex{sg}
            s_add_u32 m0, s{sMX}, {EX}
            s_nop 0
            buffer_load_dwordx4 v{vES}, {srd(SEX)}, s{sEXO} offen lds
            buffer_load_dwordx4 v{vES}, {srd(SEX)}, s{sEXO} offen offset:1024 lds
            L_noex{sg}:
            ;uncount
            """ + d[0]
        return [(x, sg if k == len(d) - 1 else None) for k, x in enumerate(d)]
    def emit(it):
        parts = it[0].split(";uncount")
        for k, part in enumerate(parts):
            a(part)
            if k < len(parts) - 1: a.vm -= 2
        if it[1] is not None: tok[it[1]] = a.lastvm()
    if P == 'G':
        a(f"s_cmp_lg_u32 s2, {CLEAR_WG}\ns_cbranch_scc1 L_noclear")
        mk_srd(SWS, 28, WS_SIZE)
        a(f"""
        s_lshl_b32 s{sT[1]}, s{sW}, 13
        s_add_u32 s{sT[1]}, s{sT[1]}, {WS_F1}
        v_lshlrev_b32 v{t0}, 7, v{L}
        v_mov_b32 v24, 0
        v_mov_b32 v25, 0
        v_mov_b32 v26, 0
        v_mov_b32 v27, 0
        buffer_store_dwordx4 v[24:27], v{t0}, {srd(SWS)}, s{sT[1]} offen sc1
        buffer_store_dwordx4 v[24:27], v{t0}, {srd(SWS)}, s{sT[1]} offen offset:16 sc1
        L_noclear:
        """)
    else:
        a(f"""
        s_cmp_eq_u32 s{sQ}, 1
        s_cselect_b64 s[{SEX}:{SEX+1}], s[10:11], s[8:9]
        s_mov_b32 s{SEX+2}, 16384
        s_mov_b32 s{SEX+3}, 0x20000
        s_add_u32 s{sT[3]}, s{sW}, s{sROT0}
        s_and_b32 s{sT[3]}, s{sT[3]}, 7
        s_lshl_b32 s{sEXO}, s{sT[3]}, 11
        v_bfe_u32 v{t0}, v{L}, 4, 1
        v_lshlrev_b32 v{t0}, 7, v{t0}
        v_xor_b32 v{vES}, v{t0}, v{vL16}
        s_cmp_lt_u32 s{sQ}, 2
        s_cselect_b32 s{sEXW}, s{sW}, 64
        s_cmp_lg_u32 s{sQ}, 2
        s_cbranch_scc1 L_exdone
        s_mov_b32 s{SEX}, s22
        s_mov_b32 s{SEX+1}, s23
        s_mov_b32 s{SEX+2}, 1024
        s_lshl_b32 s{sT[3]}, s{sT[3]}, 7
        v_lshlrev_b32 v{t0}, 1, v{L}
        buffer_load_ushort v{vS0}, v{t0}, {srd(SEX)}, s{sT[3]} offen
        L_exdone:
        """)
    for it in dma_groups(0): emit(it)
    if OPT.get('cpf'):
        a(f"""
        s_cmp_lg_u32 s{sW}, 7
        s_cbranch_scc1 L_nocpf{P}
        s_getpc_b64 s[{sT[0]}:{sT[1]}]
        L_pc{P}:
        s_sub_u32 s{sT[0]}, s{sT[0]}, L_pc{P}-{NAME}_kernel
        s_subb_u32 s{sT[1]}, s{sT[1]}, 0
        s_lshr_b32 s{sT[2]}, s2, 3
        s_mul_i32 s{sT[2]}, s{sT[2]}, {OPT['cpf']*128}
        v_lshl_add_u32 v{t0}, v{L}, 7, s{sT[2]}
        v_min_u32 v{t0}, L_last-{NAME}_kernel-4, v{t0}
        s_mov_b64 exec, {(1 << OPT['cpf']) - 1}
        global_load_dword v{t1}, v{t0}, s[{sT[0]}:{sT[1]}]
        s_mov_b64 exec, -1
        L_nocpf{P}:
        """.replace(f"global_load_dword v{t1}", "global_load_dword v30"))
        a.vm -= 1
    setup_while_waiting(P)
    for it in dma_groups(1): emit(it)
    stamp(0)
    qtok = None
    queue = setup_queue()
    gq = []
    hold = []
    if P == 'G':
        for b in range(2):
            for j in range(4): gq += gelu_pair(ACC[0] + 16 * b, j)
            gq += to_frag(ACC[0] + 16 * b)
            if b >= OPT['nearly']: continue
            st = f"s_sub_u32 s{sT[2]}, s{sHO}, 4096\nbuffer_store_dwordx4 {vr(ACC[0]+16*b,4)}, v{vST}, {srd(SWS)}, s{sT[2]} offen offset:{1024*b} sc1"
            if b == 0 and OPT['h0st'] > 11: hold.append(st)
            else: gq.append(st)
    gend = OPT.get('gend', 14)
    clear = f"v_mov_b32 v24, -1\nv_mov_b32 v25, -1\nv_mov_b32 v26, -1\nv_mov_b32 v27, -1\nbuffer_store_dwordx4 v[24:27], v{vL16}, {srd(SWS)}, s{sT[9]} offen sc1"
    for sig in range(16):
        if sig not in nobar:
            a.wait(tok[cover.get(sig, sig)])
            if P == 'Q' and sig == 0:
                a(f"""
                s_cmp_lg_u32 s{sQ}, 2
                s_cbranch_scc1 L_nogw
                v_lshlrev_b32 v{t0}, 5, v{L}
                v_bfe_u32 v{t1}, v{L}, 3, 1
                v_lshlrev_b32 v{t1}, 7, v{t1}
                v_xor_b32 v{t0}, v{t0}, v{t1}
                v_add_u32 v{t0}, s{sMX}, v{t0}
                v_add_u32 v{t0}, {EX}, v{t0}
                ds_write_b16 v{t0}, v{vS0}
                s_waitcnt lgkmcnt(0)
                L_nogw:
                """)
            if P == 'Q' and sig == QF: a.wait(qtok)
            if sig == S1: s1_check(P)
            a("s_barrier")
        if sig == 1: stamp(1)
        if sig == 8: stamp(2)
        if sig < 11: stamp(sig, 1)
        if sig >= 6: stamp(sig - 6, 2)
        if P == 'G' and sig == 0:
            a(f"""
            s_lshl_b32 s{sT[1]}, s{sW}, 8
            s_or_b32 s{sT[1]}, s{sT[1]}, s2
            s_cmp_lg_u32 s{sT[1]}, {CLEAR_WG}
            s_cbranch_scc1 L_nos0
            v_mov_b32 v{t0}, 1
            s_mov_b64 exec, 1
            buffer_store_dword v{t0}, v{vZ}, {srd(SDBG)}, 0 offen sc1
            s_mov_b64 exec, -1
            L_nos0:
            """)
            a.vm -= 1
        if sig == 7:
            a(f"""
            s_cmp_lg_u32 s{sW}, 0
            s_cbranch_scc1 L_nos0l{P}
            buffer_load_dword v{vS0}, v{vZ}, {srd(SDBG)}, 0 offen sc1
            L_nos0l{P}:
            """)
            a.vm -= 1; s0pos = a.vm
        if sig == QF:
            assert a.vm_done > s0pos
            a(f"""
            s_cmp_lg_u32 s{sW}, 0
            s_cbranch_scc1 L_noflag1{P}
            s_mov_b32 s{sT[1]}, 0
            L_s0poll{P}:
            v_cmp_eq_u32 vcc, 0, v{vS0}
            s_cbranch_vccz L_s0done{P}
            buffer_load_dword v{vS0}, v{vZ}, {srd(SDBG)}, 0 offen sc1
            s_add_u32 s{sT[1]}, s{sT[1]}, 1
            s_cmp_lt_u32 s{sT[1]}, {SPIN}
            s_waitcnt vmcnt(0)
            s_cbranch_scc1 L_s0poll{P}
            L_s0done{P}:
            """)
            a.vm -= 1
            if P == 'Q':
                a(f"""
                s_lshl4_add_u32 s{sT[1]}, s{sQ}, s{sTI}
                s_lshl_b32 s{sT[1]}, s{sT[1]}, 7
                s_add_u32 s{sT[1]}, s{sT[1]}, {WS_F1}
                v_mov_b32 v{t0}, 1
                s_mov_b64 exec, 1
                buffer_store_dword v{t0}, v{vZ}, {srd(SWS)}, s{sT[1]} offen sc1
                s_mov_b64 exec, -1
                """)
                a.vm -= 1
            a(f"L_noflag1{P}:")
        if sig == S1 - 1: s1_issue(P)
        if sig in (10, 14):
            for b in range(2): a(f"v_xor_b32 v{vWR[b]}, {WR}, v{vWR[b]}")
        ex = (P == 'Q')
        M = []
        if sig > 0:
            M += mfmas(sig - 1, 1)
            if ex and sig <= 8: M.insert(0, e_mfma(sig - 1, 1))
        n1 = len(M)
        M += mfmas(sig, 0)
        if ex and sig < 8: M.append(M.pop()); M.insert(n1 + 4, e_mfma(sig, 0))
        off = n1 - 8 if sig > 0 else 0
        R = []
        if sig < 8: R += [(0, x, 0) for x in x_reads(sig, 0)]
        for i in range(4): R += [(0, x, 0) for x in w_reads(sig, 0, i)]
        if ex and sig < 8: R += [(0, x, 0) for x in e_reads(sig, 0)]
        nh0 = len(R)
        if sig < 8: R += [(0, x, 1) for x in x_reads(sig, 1)]
        if ex and sig < 8: R += [(0, x, 1) for x in e_reads(sig, 1)]
        for i in range(4): R += [((off + 2 * i + 1) if sig > 0 else 0, x, 1) for x in w_reads(sig, 1, i)]
        D = []
        if P == 'Q' and 8 in sched.get(sig, []):
            D.append((f"s_mul_i32 s{sT[1]}, s{sQ}, {7*128}\ns_movk_i32 s{sT[2]}, {PG}\n" + w_src(sT[2], sT[1]), None))
        for sg in sched.get(sig, []): D += dma_groups(sg)
        if sig == max(OPT['clst'], 0 if P == 'G' else 12): D.append((clear, None))
        if sig == OPT['h0st'] and hold: D.append((hold.pop(), None))
        if sig == S1: D += [(x, None) for x in first_loads()]
        V = []
        if gq and sig >= 8:
            share = len(gq) if sig >= gend else int(round(len(gq) * (0.5 if sig == 8 else 1.0) / (gend - sig + (0.5 if sig == 8 else 1.0))))
            V += gq[:share]; gq = gq[share:]
        VQ = []
        if sig >= 11:
            left = [x for x in queue if x[0] <= sig]
            nst = (S1 - sig) if any(x[0] == 11 for x in left) and sig < S1 else 16 - sig
            take = len(left) if sig == 15 else min(len(left), max(-(-len(queue) // (16 - sig)), -(-sum(x[0] == 11 for x in left) // max(nst, 1))))
            VQ = [x[1] for x in left[:take]]; queue = queue[take:]
        late = sig < OPT['late']
        ng = len(M)
        rend = OPT.get('rend', 10) + off
        h0tok = None; ri = di = vi = qi = 0
        nD = 0 if late else len(D)
        vstart = n1 + 1 if sig == 8 else 0
        for gi in range(ng):
            if gi == n1:
                if sig == 0:
                    while ri < len(R):
                        a(R[ri][1]); ri += 1
                        if ri == nh0: h0tok = a.lastlg()
                if P == 'Q' and sig == 8:
                    q_epilogue(); qtok = a.lastvm()
                a.wait(h0tok)
            a(M[gi])
            if gi == ng - 1: break
            want = -(-len(R) * (gi + 1) // (rend + 1))
            while ri < min(len(R), want) and R[ri][0] <= gi:
                a(R[ri][1]); ri += 1
                if ri == nh0: h0tok = a.lastlg()
            while di < nD and (di + OPT.get('dph', 50) / 100) * (ng - 1) / nD <= gi + 1:
                emit(D[di]); di += 1
            if gi >= vstart:
                while vi < len(V) and vi < len(V) * (gi + 1 - vstart) / (ng - 1 - vstart): a(V[vi]); vi += 1
            while qi < len(VQ) and qi < len(VQ) * (gi + 1) / (ng - 1): a(VQ[qi]); qi += 1
        assert ri == len(R) and vi == len(V) and qi == len(VQ)
        while di < len(D): emit(D[di]); di += 1
        a.wait(a.lastlg())
    assert not gq and not queue

def q_epilogue():
    tq, tn, ta = 24, 25, 26
    XE = WE[0]
    lg0 = a.lg
    a(f"""
    s_add_u32 s{sT[5]}, s{sT[4]}, {WS_Q}
    s_add_u32 s{sT[6]}, s{sT[4]}, {WS_Q + 4096}
    v_lshrrev_b32 v{tq}, 4, v{L}
    v_and_b32 v{tn}, 15, v{L}
    s_lshr_b32 s{sT[7]}, s{sT[4]}, 15
    s_lshr_b32 s{sT[8]}, s{sW}, 2
    s_cmp_eq_u32 s{sQ}, 0
    s_cselect_b32 s{sT[0]}, {fbits(QS):#x}, 1.0
    v_mul_f32 v{XE}, s{sT[0]}, v{ACCE}
    v_mul_f32 v{XE+1}, s{sT[0]}, v{ACCE+1}
    v_mul_f32 v{XE+2}, s{sT[0]}, v{ACCE+2}
    v_mul_f32 v{XE+3}, s{sT[0]}, v{ACCE+3}
    v_cvt_pk_bf16_f32 v{XE}, v{XE}, v{XE+1}
    v_cvt_pk_bf16_f32 v{XE+1}, v{XE+2}, v{XE+3}
    s_cmp_eq_u32 s{sQ}, 1
    s_cbranch_scc1 L_pubV
    s_cmp_eq_u32 s{sQ}, 2
    s_cbranch_scc1 L_pubG
    s_cmp_eq_u32 s{sQ}, 3
    s_cbranch_scc1 L_pubE
    s_lshl3_add_u32 s{sT[7]}, s{sT[7]}, s{sT[8]}
    s_lshl_b32 s{sT[7]}, s{sT[7]}, 8
    v_lshrrev_b32 v{ta}, 1, v{tq}
    v_lshlrev_b32 v{ta}, 9, v{ta}
    v_lshl_add_u32 v{ta}, v{tn}, 4, v{ta}
    v_and_b32 v{tq}, 1, v{tq}
    v_lshl_add_u32 v{ta}, v{tq}, 3, v{ta}
    buffer_store_dwordx2 {vr(XE,2)}, v{ta}, {srd(SWS)}, s{sT[7]} offen sc1
    s_branch L_pubE
    L_pubV:
    s_lshl2_add_u32 s{sT[7]}, s{sT[7]}, s{sT[8]}
    s_lshl_b32 s{sT[7]}, s{sT[7]}, 9
    s_add_u32 s{sT[8]}, s{sMX}, {EX}
    v_lshlrev_b32 v{ta}, 5, v{tn}
    v_lshl_add_u32 v{ta}, v{tq}, 3, v{ta}
    v_add_u32 v{ta}, s{sT[8]}, v{ta}
    ds_write_b64 v{ta}, {vr(XE,2)}
    v_lshrrev_b32 v{ta}, 2, v{L}
    v_lshlrev_b32 v{ta}, 5, v{ta}
    v_and_b32 v{XE+2}, 1, v{L}
    v_lshl_add_u32 v{ta}, v{XE+2}, 4, v{ta}
    v_bfe_u32 v{XE+2}, v{L}, 1, 1
    v_lshl_add_u32 v{ta}, v{XE+2}, 3, v{ta}
    v_add_u32 v{ta}, s{sT[8]}, v{ta}
    s_waitcnt lgkmcnt(0)
    ds_read_b64_tr_b16 {vr(XE,2)}, v{ta}
    v_lshrrev_b32 v{ta}, 1, v{tq}
    v_lshlrev_b32 v{ta}, 8, v{ta}
    v_lshl_add_u32 v{ta}, v{tn}, 4, v{ta}
    v_and_b32 v{tq}, 1, v{tq}
    v_lshl_add_u32 v{ta}, v{tq}, 3, v{ta}
    s_waitcnt lgkmcnt(0)
    buffer_store_dwordx2 {vr(XE,2)}, v{ta}, {srd(SWS)}, s{sT[7]} offen offset:1024 sc1
    s_branch L_pubE
    L_pubG:
    v_mul_f32 v{ta}, {fbits(-math.log2(math.e)):#x}, v{ACCE}
    v_exp_f32 v{ta}, v{ta}
    s_lshl1_add_u32 s{sT[7]}, s{sT[7]}, s{sT[8]}
    v_add_f32 v{ta}, 1.0, v{ta}
    v_rcp_f32 v{ta}, v{ta}
    s_lshl_b32 s{sT[7]}, s{sT[7]}, 6
    s_add_u32 s{sT[7]}, s{sT[7]}, {WS_G}
    v_lshlrev_b32 v{tn}, 2, v{tn}
    s_mov_b64 exec, 0xffff
    buffer_store_dword v{ta}, v{tn}, {srd(SWS)}, s{sT[7]} offen sc1
    s_mov_b64 exec, -1
    L_pubE:
    """)
    a.vm -= 3
    a.lg = lg0
    bases = [ACC[0] + 8 * i for i in range(4)]
    for i, base in enumerate(bases):
        for j in range(4):
            a(f"v_cvt_pk_bf16_f32 v{base+j}, v{base+2*j}, v{base+2*j+1}")
        if i > 0:
            for x in to_frag(bases[i - 1]): a(x)
            a(f"buffer_store_dwordx4 {vr(bases[i-1],4)}, v{vST}, {srd(SWS)}, s{sT[5+((i-1)&1)]} offen offset:{1024*((i-1)>>1)} sc1")
    for x in to_frag(bases[3]): a(x)
    a(f"buffer_store_dwordx4 {vr(bases[3],4)}, v{vST}, {srd(SWS)}, s{sT[6]} offen offset:1024 sc1")

proj_path('G')
a("L_join:")
a.forget()

for m in mfmas(15, 1): a(m)
stamp(3); stamp(10, 2)
if OPT['s1'] == 16:
    s1_check('J')
    a("s_barrier")
    for x in first_loads(): a(x)
stamp(4)
for b in range(2):
    for jp in range(2):
        g0 = gelu_pair(ACC[1] + 16 * b, 2 * jp, vGT, pk=OPT['pk2']); g1 = gelu_pair(ACC[1] + 16 * b, 2 * jp + 1, t0, pk=OPT['pk2'])
        for x, y in zip(g0, g1):
            a(x); a(y)
        if b == 1 and jp == 0:
            for x in to_frag(ACC[1]): a(x)
a(f"s_mov_b32 s{sT[7]}, s{sT[9]}\ns_mov_b32 s{sT[8]}, 0xffff\ns_mov_b32 s{sT[9]}, 0xffff")
for x in to_frag(ACC[1] + 16): a(x)
a.wait_vm0()
a("s_barrier")
stamp(5)

def qk(S, Q): return f"v_mfma_f32_32x32x16_bf16 {vr(S,16)}, {vr(KF,4)}, {vr(Q,4)}, 0"
def pv(O, V, S): return f"v_smfmac_f32_32x32x32_bf16 {vr(O,16)}, {vr(V,4)}, {vr(S,8)}, v{vIDX}"
NT, B1, B2 = 32, 8, OPT['b2']
def rec(t): return (t % NSLOT) * 2048
def rdK(t): return a(f"ds_read_b128 {vr(KF,4)}, v{vAK} offset:{rec(t)}")
def rdV(t2, t1):
    a(f"s_mov_b64 exec, s[{sT[8]}:{sT[9]}]")
    if t2 is not None: a(f"ds_read_b128 {vr(V2,4)}, v{vAV} offset:{rec(t2) + 1536}")
    if t1 is not None: a(f"ds_read_b128 {vr(V1[t1&1],4)}, v{vAV} offset:{rec(t1) + 1024}")
    a("s_mov_b64 exec, -1")
    return a.lastlg()
wtok, htok, rtok, box = {}, {}, {}, {}
def w_load_a(u):
    slot = (u & 3) * 2048
    if u < 14:
        a(f"s_lshl4_add_u32 s{sWOF}, s{sRW}, s{sWB}\ns_add_u32 m0, s{sRING}, {slot}\ns_add_u32 s{sRW}, s{sRW}, 1024")
    else:
        if u == 14: a(f"s_lshl_b32 s{sWB}, s{sW}, 16\ns_lshl_b32 s{sRW}, s{sU}, 10")
        a(f"s_lshl4_add_u32 s{sWOF}, s{sRW}, s{sWB}\ns_add_u32 m0, s{sRING}, {slot}\ns_add_u32 s{sRW}, s{sRW}, 1024")
    a(f"buffer_load_dwordx4 v{vDS}, {srd(SWD if u < 14 else SWO)}, s{sWOF} offen lds")
def w_load_b(u):
    slot = (u & 3) * 2048
    a(f"s_add_u32 m0, s{sRING}, {slot+1024}\ns_add_u32 s{sWOF}, s{sWOF}, 8192")
    wtok[u] = a(f"buffer_load_dwordx4 v{vDS}, {srd(SWD if u < 14 else SWO)}, s{sWOF} offen lds")
    if u < 13: a(f"s_cmp_eq_u32 s{sRW}, {14*1024}\ns_cselect_b32 s{sRW}, 0, s{sRW}")
    elif 14 <= u < 17: a(f"s_and_b32 s{sRW}, s{sRW}, 0xfff")
def h_load_a(u):
    a(f"buffer_load_dwordx4 {vr(HF[u&3],4)}, v{vH0}, {srd(SWS)}, s{sRH} offen sc1")
def h_load_b(u):
    htok[u] = a(f"buffer_load_dwordx4 {vr(HF[u&3]+4,4)}, v{vH1}, {srd(SWS)}, s{sRH} offen sc1")
    if u < 13: a(f"s_add_u32 s{sRH}, s{sRH}, 1024\ns_cmp_eq_u32 s{sRH}, {14*1024}\ns_cselect_b32 s{sRH}, 0, s{sRH}")
def w_read(u, b):
    if b == 0: a.wait(wtok[u], htok[u])
    for e in range(2):
        rtok[u, b] = a(f"ds_read_b64_tr_b16 {vr(WF[u&1] + 4*b + 2*e, 2)}, v{(vDR0, vDR1)[b]} offset:{(u & 3) * 2048 + e*512}")
def d_mfma(u, k):
    tb, b = k >> 1, k & 1
    a.wait(rtok[u, 1])
    d = vr(DACC + 32 * tb + 16 * b, 16)
    a(f"v_mfma_f32_32x32x16_bf16 {d}, {vr(WF[u&1]+4*b,4)}, {vr(HF[u&3]+4*tb,4)}, {'0' if u == 0 else d}")

ev = {}
def at(pos, f):
    ev.setdefault(pos, []).append(f)
def h_store(b): box['h'] = a(f"buffer_store_dwordx4 {vr(ACC[1]+16*b,4)}, v{vST}, {srd(SWS)}, s{sHO} offen offset:{1024*b} sc1")
def late_store(k):
    if k == 2:
        a(f"v_mov_b32 v24, -1\nv_mov_b32 v25, -1\nv_mov_b32 v26, -1\nv_mov_b32 v27, -1\nbuffer_store_dwordx4 v[24:27], v{vL16}, {srd(SWS)}, s{sT[7]} offen sc1")
        return
    a(f"""
    s_cmp_eq_u32 s{sU}, 0
    s_cbranch_scc1 L_nols{k}
    s_sub_u32 s{sT[2]}, s{sHO}, 4096
    buffer_store_dwordx4 {vr(ACC[0]+16*k,4)}, v{vST}, {srd(SWS)}, s{sT[2]} offen offset:{1024*k} sc1
    L_nols{k}:
    """)
    a.vm -= 1
pp = 1
for k in list(range(OPT['nearly'], 2)) + ([2] if OPT['clst'] > 15 else []):
    at(pp, lambda k=k: late_store(k)); pp += OPT.get('p_sts', 3)
at(pp, lambda: h_store(0)); at(pp + OPT.get('p_sts', 3), lambda: h_store(1))
def kv_emit(m): kvtok[m] = a(kv_step(m))
for m in range(KV_FIRST, 12): at(OPT['p_kv'] + OPT['p_kvs'] * (m - KV_FIRST), lambda m=m: kv_emit(m))
for m in range(12, 16): at(OPT['p_kv2'] + 12 * (m - 12), lambda m=m: kv_emit(m))
assert OPT['p_kv2'] >= 32 * B1
def h_flag():
    a.wait(box['h'])
    a(f"v_mov_b32 v{t0}, 1\ns_mov_b64 exec, 1\nbuffer_store_dword v{t0}, v{vZ}, {srd(SWS)}, s{sF2} offen sc1\ns_mov_b64 exec, -1")
at(OPT['p_flag'], h_flag)
def f2_load():
    box['f2'] = a(f"s_mov_b32 exec_hi, 0\nbuffer_load_dwordx4 {vr(F2D,4)}, v{vF2}, {srd(SWS)}, s{sF2R} offen sc1")
    a("s_mov_b32 exec_hi, -1")
at(OPT['p_f2'], f2_load)
def f2_check():
    a.wait(box['f2'])
    a(f"""
    s_mov_b32 s{sT[1]}, 0
    s_mov_b32 exec_hi, 0
    L_s2poll:
    v_min3_u32 v{F2D}, v{F2D}, v{F2D+1}, v{F2D+2}
    v_min_u32 v{F2D}, v{F2D}, v{F2D+3}
    v_cmp_ne_u32 vcc, 1, v{F2D}
    s_cbranch_vccz L_s2done
    buffer_load_dwordx4 {vr(F2D,4)}, v{vF2}, {srd(SWS)}, s{sF2R} offen sc1
    s_add_u32 s{sT[1]}, s{sT[1]}, 1
    s_cmp_lt_u32 s{sT[1]}, {SPIN}
    s_waitcnt vmcnt(0)
    s_cbranch_scc1 L_s2poll
    L_s2done:
    s_mov_b32 exec_hi, -1
    """)
    a.vm -= 1
    stamp(9)
at(OPT['p_chk'], f2_check)
D0, DE = OPT['d0'], OPT['dend']
allsl = [32 * t + o for t in range(D0, DE) for o in (8, 14, 24, 30)]
assert len(allsl) >= 56
slots = [allsl[(i * len(allsl)) // 56] for i in range(56)]
for u in range(18):
    pw = OPT['p_fill'] + OPT['p_fills'] * u if u < 4 else slots[4 * (u - 4)] + 1
    at(pw, lambda u=u: w_load_a(u)); at(pw + 3, lambda u=u: w_load_b(u))
    if u < 14:
        ph = OPT['p_chk'] + 2 + OPT.get('p_hs', 14) * u if u < 3 else slots[4 * (u - 3)] + 7
        at(ph, lambda u=u: h_load_a(u)); at(ph + 3, lambda u=u: h_load_b(u))
for u in range(14):
    rp = slots[0] - 14 if u == 0 else slots[4 * u - 2] + 1
    at(rp, lambda u=u: w_read(u, 0)); at(rp + 2, lambda u=u: w_read(u, 1))
    for k in range(4): at(slots[4 * u + k], lambda u=u, k=k: d_mfma(u, k))
for lo, hi, fr in ((0, B1, (OPT.get('la1', 30), OPT.get('la2', 70), OPT.get('la3', 94))), (B1, B2, (OPT.get('lb1', 35), OPT.get('lb2', 80), OPT.get('lb3', 96))),
                   (B2, NT, (OPT.get('lc1', 60), OPT.get('lc2', 87), OPT.get('lc3', 96)))):
    at(32 * lo + 1, lambda: a("s_setprio 3"))
    for k in range(3): at(32 * lo + (32 * (hi - lo) * fr[k]) // 100, lambda k=k: a(f"s_setprio {2-k}"))

tK = rdK(0); tV = rdV(None, 0)
a.wait(tK)
a(qk(SA, QA))
for t in range(NT):
    if t == B1:
        a.wait(kvtok[11]); a("s_barrier"); stamp(6)
    if t == B2:
        a.wait(kvtok[15]); a("s_barrier")
    for ph, (S, So, O, Oo, Qo) in enumerate(((SA, SB, OA, OB, QB), (SB, SA, OB, OA, QA))):
        for e in range(16):
            if e == 2:
                if ph == 0:
                    if t > 0: a(pv(Oo, V2, So + 8))
                    else: a.wait(tV)
                    tV = rdV(t, t + 1 if t + 1 < NT else None)
                else:
                    a.wait(tV, tK); a(pv(Oo, V2, So + 8))
            if (e == 5 and not (t == 0 and ph == 0)) or (t == 0 and ph == 0 and e == 0):
                if ph == 0:
                    a(qk(So, Qo))
                    if t + 1 < NT: tK = rdK(t + 1)
                elif t + 1 < NT: a(qk(So, Qo))
            if e == 11: a(pv(O, V1[t & 1], S))
            for f in ev.pop(32 * t + 16 * ph + e, []): f()
            a(f"v_exp_f32 v{S+e}, v{S+e}")
assert not ev, sorted(ev)
a(f"""
s_mul_i32 s{sT[0]}, s{sW}, 2304
s_add_u32 s{sT[0]}, s{sT[0]}, {MERGE}
""")
a(pv(OB, V2, SB + 8))
stamp(7)
a(f"""
s_xor_b32 s{sT[1]}, s{sW}, 4
s_mul_i32 s{sT[1]}, s{sT[1]}, 2304
s_add_u32 s{sT[1]}, s{sT[1]}, {MERGE}
v_add_u32 v{t0}, s{sT[0]}, v{vL16}
v_add_u32 v{t1}, s{sT[1]}, v{vL16}
v_lshl_add_u32 v{t2}, v{L}, 2, s{sT[0]}
v_lshl_add_u32 v{t3}, v{L}, 2, s{sT[1]}
s_add_u32 s{sOO}, s{sOO}, {WS_O}
s_mov_b32 s{sT[6]}, {fbits(2.0**-60):#x}
s_mov_b32 s{sT[7]}, {fbits(2.0**60):#x}
ds_write_b128 v{t0}, {vr(OB,4)}
ds_write_b128 v{t0}, {vr(OB+4,4)} offset:1024
ds_write_b32 v{t2}, v{OB+8} offset:2048
""")
a.wait_lg0()
a("s_barrier")
a(f"""
ds_read_b32 v{SB+8}, v{t3} offset:2048
ds_read_b128 {vr(SB,4)}, v{t1}
ds_read_b128 {vr(SB+4,4)}, v{t1} offset:1024
""")
a.wait_lg0()
a(f"v_add_f32 v{OA+8}, v{OA+8}, v{SB+8}")
for j in range(4): a(f"v_pk_add_f32 {vr(OA+2*j,2)}, {vr(OA+2*j,2)}, {vr(SB+2*j,2)}")
a(f"v_pk_mul_f32 {vr(t2,2)}, {vr(OA,2)}, 0 op_sel_hi:[1,0]")
for j in range(1, 4): a(f"v_pk_fma_f32 {vr(t2,2)}, {vr(OA+2*j,2)}, 0, {vr(t2,2)} op_sel_hi:[1,0,1]")
a(f"""
v_add_f32 v{t2}, v{t2}, v{t3}
v_add_f32 v{t2}, v{t2}, v{OA+8}
v_cmp_nle_f32 vcc, s{sT[6]}, v{t2}
v_cmp_nge_f32 s[{sT[2]}:{sT[3]}], s{sT[7]}, v{t2}
s_or_b64 vcc, vcc, s[{sT[2]}:{sT[3]}]
""")
if OPT['force_fb']: a("s_mov_b64 vcc, -1")
a("""
s_cbranch_vccnz L_true_max
L_norm:
""")
OS = 128
a(f"""
v_rcp_f32 v{t0}, v{OA+8}
s_nop 0
v_mul_f32 v{t0}, v{t0}, v{vG}
""")
for j in range(4): a(f"v_pk_mul_f32 {vr(OA+2*j,2)}, {vr(OA+2*j,2)}, {vr(t0,2)} op_sel_hi:[1,0]")
for j in range(4): a(f"v_cvt_pk_bf16_f32 v{OS+j}, v{OA+2*j}, v{OA+2*j+1}")
for j in range(4): a(f"v_min_u32 v{OS+j}, -2, v{OS+j}")
a(f"buffer_store_dwordx4 {vr(OS,4)}, v{vL16}, {srd(SWS)}, s{sOO} offen {'' if OPT['ofast'] else 'sc1'}")
stamp(8)

a(f"""
s_lshl_b32 s{sT[8]}, s{sW}, 13
s_xor_b32 s{sT[3]}, s{sT[8]}, 8192
v_add_u32 v{t0}, s{sT[3]}, v{vL16}
v_add_u32 v{t1}, s{sT[8]}, v{vL16}
""")
for j in range(8): a(f"ds_write_b128 v{t0}, {vr(DACC+32+4*j,4)} offset:{1024*j}")
OF, WOF, XT = 32, 176, 96
vO1 = 27
a(f"""
s_andn2_b32 s{sT[3]}, s{sRING}, 8192
v_add_u32 v24, s{sT[3]}, v{vTRP}
v_xor_b32 v25, 64, v24
v_sub_f32 v{vG}, 1.0, v{vG}
v_add_u32 v{vO1}, 4096, v{vL16}
s_and_b32 s{sT[1]}, s{sW}, 1
s_lshl1_add_u32 s{sT[0]}, s{sI}, s{sT[1]}
s_lshr_b32 s{sT[1]}, s{sW}, 1
s_lshl2_add_u32 s{sT[0]}, s{sT[0]}, s{sT[1]}
s_lshl_b32 s{sT[0]}, s{sT[0]}, 13
s_add_u32 s{sT[0]}, s{sT[0]}, {WS_O}
""")
for v in range(4):
    a(f"s_add_u32 s{sT[1]}, s{sU}, {v}\ns_and_b32 s{sT[1]}, s{sT[1]}, 3\ns_lshl_b32 s{sT[1]}, s{sT[1]}, 10\ns_add_u32 s{sT[4+v]}, s{sT[0]}, s{sT[1]}")
def o_loads():
    for v in range(8):
        a(f"buffer_load_dwordx4 {vr(OF + 4*v, 4)}, v{vO1 if v >> 2 else vL16}, {srd(SWS)}, s{sT[4 + (v&3)]} offen sc1")
a.wait(wtok[17])
if OPT.get('oearly'): o_loads()
a.wait(a.lastlg())
a("s_barrier")
if not OPT.get('oearly'): o_loads()
xt = [a(f"ds_read_b128 {vr(XT+4*j,4)}, v{t1} offset:{1024*j}") for j in range(8)]
def wo_read(v):
    slot = ((14 + v) & 3) * 2048 + (v >> 2) * 8192
    for b in range(2):
        for e in range(2):
            a(f"ds_read_b64_tr_b16 {vr(WOF + 8*v + 4*b + 2*e, 2)}, v{24 + b} offset:{slot + e*512}")
for j in range(8):
    a.wait(xt[j])
    wo_read(j)
    for i in range(2):
        r = 4 * j + 2 * i
        a(f"v_pk_add_f32 {vr(DACC+r,2)}, {vr(DACC+r,2)}, {vr(XT+r,2)}")
    for i in range(2):
        r = 4 * j + 2 * i
        a(f"v_pk_mul_f32 {vr(DACC+r,2)}, {vr(DACC+r,2)}, {vr(vG,2)} op_sel_hi:[1,0]")
a(f"""
v_and_b32 v{t0}, 31, v{L}
v_lshrrev_b32 v{t1}, 5, v{L}
v_and_b32 v{t2}, 7, v{L}
v_xor_b32 v{t1}, v{t1}, v{t2}
v_lshlrev_b32 v{t1}, 4, v{t1}
v_lshl_add_u32 v{t0}, v{t0}, 8, v{t1}
v_add_u32 v9, s{sT[8]}, v{t0}
v_xor_b32 v10, 32, v9
v_xor_b32 v11, 64, v9
v_xor_b32 v12, 0x60, v9
v_lshrrev_b32 v{t0}, 3, v{L}
v_lshlrev_b32 v{t1}, 1, v{t2}
v_xor_b32 v{t1}, v{t1}, v{t0}
v_lshlrev_b32 v{t1}, 4, v{t1}
v_lshl_add_u32 v{t1}, v{t0}, 8, v{t1}
v_add_u32 v1, s{sMX}, v{t1}
v_xor_b32 v2, 16, v1
s_lshl3_add_u32 s{sT[3]}, s{sI}, s{sW}
s_lshl_b32 s{sT[3]}, s{sT[3]}, 6
s_add_u32 s{sT[3]}, s{sT[3]}, s{sJ}
s_lshl_b32 s{sT[3]}, s{sT[3]}, 7
v_lshlrev_b32 v{t2}, 4, v{t2}
v_lshl_add_u32 v5, v{t0}, 10, v{t2}
s_mov_b32 s{sT[2]}, 0
L_s3poll:
""")
a.wait_vm0()
a(f"v_max_u32 v{t0}, v{OF}, v{OF+1}\nv_max_u32 v{t1}, v{OF+2}, v{OF+3}")
for j in range(2, 16): a(f"v_max3_u32 v{t0 + (j&1)}, v{t0 + (j&1)}, v{OF+2*j}, v{OF+2*j+1}")
a(f"""
v_max_u32 v{t0}, v{t0}, v{t1}
v_cmp_eq_u32 vcc, -1, v{t0}
s_cbranch_vccnz L_s3retry
L_s3done:
""")
stamp(10)
a.wait_lg0()
for v in range(8):
    for b in range(2):
        d = vr(DACC + 16 * b, 16)
        a(f"v_mfma_f32_32x32x16_bf16 {d}, {vr(WOF+8*v+4*b,4)}, {vr(OF+4*v,4)}, {d}")
if OPT['ofast']:
    a(f"buffer_store_dwordx4 {vr(OS,4)}, v{vL16}, {srd(SWS)}, s{sOO} offen sc1")
for b in range(2):
    for qd in range(4):
        a(f"ds_write_b128 v{9+qd}, {vr(DACC + 16*b + 4*qd, 4)} offset:{b*128}")
a.wait_lg0()
a("s_barrier")
RD = 176
rt = []
for p in range(4):
    for e in range(2):
        rt.append(a(f"ds_read_b128 {vr(RD + 8*p + 4*e, 4)}, v{1 + e} offset:{p*16384}"))
for p in range(1, 4):
    a.wait(rt[2 * p + 1])
    for j in range(4):
        a(f"v_pk_add_f32 {vr(RD+2*j,2)}, {vr(RD+2*j,2)}, {vr(RD+8*p+2*j,2)}")
for j in range(4): a(f"v_cvt_pk_bf16_f32 v{RD+j}, v{RD+2*j}, v{RD+2*j+1}")
a(f"buffer_store_dwordx4 {vr(RD,4)}, v5, {srd(SOUT)}, s{sT[3]} offen {['', 'sc1'][OPT['outm']]}")
if OPT['stamp']:
    a("s_waitcnt vmcnt(0)")
    stamp(11)
    a("s_waitcnt lgkmcnt(0)")
    a(f"s_mov_b32 s28, s{sT[2]}")
    a(f"s_lshl3_add_u32 s{sT[0]}, s2, s{sW}\ns_lshl_b32 s{sT[0]}, s{sT[0]}, 6\ns_add_u32 s{sT[0]}, s{sT[0]}, {WS_STAMP}")
    a("v_mov_b32 v1, 0\ns_mov_b64 exec, 1")
    for k in range(14):
        a(f"v_mov_b32 v2, s{4+2*k}\nbuffer_store_dword v2, v1, {srd(SWS)}, s{sT[0]} offen offset:{4*k}")
a("L_end:\ns_endpgm")
a("L_s3retry:")
if OPT['ofast']:
    a(f"""
    s_cmp_lg_u32 s{sT[2]}, 2
    s_cbranch_scc1 L_s3nowt
    buffer_store_dwordx4 {vr(OS,4)}, v{vL16}, {srd(SWS)}, s{sOO} offen sc1
    L_s3nowt:
    """)
o_loads()
a(f"""
s_add_u32 s{sT[2]}, s{sT[2]}, 1
s_cmp_lt_u32 s{sT[2]}, {SPIN}
s_cbranch_scc1 L_s3poll
s_waitcnt vmcnt(0)
s_branch L_s3done
""")

a("L_pathQ:")
a.forget()
proj_path('Q')
a("s_branch L_join")

CM = SB
a(f"""
L_true_max:
s_waitcnt vmcnt(0) lgkmcnt(0)
v_mov_b32 v{t0}, 0xff800000
s_mov_b32 s{sT[0]}, {WS_KV}
L_tm1:
buffer_load_dwordx4 {vr(KF,4)}, v{vL16}, {srd(SWS)}, s{sT[0]} offen sc1
s_waitcnt vmcnt(0)
{qk(SA, QA)}
""")
for j in range(8): a(f"v_max3_f32 v{t0}, v{t0}, v{SA+2*j}, v{SA+2*j+1}")
a(f"""
s_add_u32 s{sT[0]}, s{sT[0]}, 2048
s_cmp_lt_u32 s{sT[0]}, {WS_KV + 64*2048}
s_cbranch_scc1 L_tm1
v_mov_b32 v{t1}, v{t0}
v_permlane32_swap_b32 v{t0}, v{t1}
v_max_f32 v{t0}, v{t0}, v{t1}
""")
for r in range(16): a(f"v_sub_f32 v{CM+r}, 0, v{t0}\nv_mov_b32 v{OA+r}, 0")
a(f"""
s_mov_b32 s{sT[0]}, {WS_KV}
L_tm2:
buffer_load_dwordx4 {vr(KF,4)}, v{vL16}, {srd(SWS)}, s{sT[0]} offen sc1
s_mov_b64 exec, s[{sT[8]}:{sT[9]}]
buffer_load_dwordx4 {vr(V1[0],4)}, v{vPV}, {srd(SWS)}, s{sT[0]} offen offset:1024 sc1
buffer_load_dwordx4 {vr(V2,4)}, v{vPV}, {srd(SWS)}, s{sT[0]} offen offset:1536 sc1
s_mov_b64 exec, -1
s_waitcnt vmcnt(0)
v_mfma_f32_32x32x16_bf16 {vr(SA,16)}, {vr(KF,4)}, {vr(QA,4)}, {vr(CM,16)}
""")
for e in range(16): a(f"v_exp_f32 v{SA+e}, v{SA+e}")
a(pv(OA, V1[0], SA)); a(pv(OA, V2, SA + 8))
a(f"""
s_add_u32 s{sT[0]}, s{sT[0]}, 2048
s_cmp_lt_u32 s{sT[0]}, {WS_KV + 64*2048}
s_nop 7
s_cbranch_scc1 L_tm2
s_nop 7
s_branch L_norm
L_last:
""")

bad = a.check_branches()
assert not bad, bad

hdr = open(f'cdna_kernels/{NAME}.s.ref').read().split('\n')
head = [l for l in hdr if l.startswith(';') and '@launch' not in l]
out = "\n".join(head) + f"\n; @launch grid=(256,1,1) block=(512,1,1) lds={LDS_BYTES}\n"
out += f""".amdgcn_target "amdgcn-amd-amdhsa--gfx950"
.text
.globl {NAME}_kernel
.p2align 8
.type {NAME}_kernel,@function
{NAME}_kernel:
{a.text()}
.section .rodata,"a"
.p2align 6
.amdhsa_kernel {NAME}_kernel
  .amdhsa_next_free_vgpr 256
  .amdhsa_next_free_sgpr 102
  .amdhsa_accum_offset 256
  .amdhsa_group_segment_fixed_size 0
  .amdhsa_kernarg_size 104
  .amdhsa_user_sgpr_count 2
  .amdhsa_user_sgpr_kernarg_segment_ptr 1
  .amdhsa_system_sgpr_workgroup_id_x 1
.end_amdhsa_kernel
"""
open(sys.argv[1], 'w').write(out)
print("instructions:", sum(1 for i in a.ins if i.ws), "auto nops:", a.nnop, file=sys.stderr)
```

```python
import sys, math, struct
sys.path.insert(0, 'gen')
from asmlib import Asm

NAME = 'gated_mix__grouped_kv_mqa__geglu_ffn__prompt'
OPT = dict(stamp=0, grp=0, force_fb=0, qflag=11, s1=16, b2=22, outm=1, ofast=0,
           p_kv=40, p_kvs=10, p_flag=112, p_fill=120, p_fills=40, p_kv2=272, p_f2=300, p_chk=340, d0=12, dend=32,
           late=1, pk2=1, nearly=1, h0w=27, h1w=30, clw=25, qw=20, na=1, gend=30, q12=10, q14=11, qc=14, qin=0, dwt=4, qbar=0)
for x in sys.argv[2:]:
    k, v = x.split('='); OPT[k] = int(v)

def fbits(x): return struct.unpack('<I', struct.pack('<f', x))[0]

WS_KV, WS_G, WS_F1, WS_Q, WS_O, WS_H, WS_STAMP = 0, 0x20000, 0x30000, 0x100000, 0x300000, 0x500000, 0xC00000
WS_F2 = WS_F1 + 8192
WS_SIZE = 0x1000000
CLEAR_WG = 64
WR, EX = 65536, 131072
NSLOT, HALF, RING = 24, 49152, 98304
MERGE = 65536
LDS_BYTES = 163840
SPIN = 0x40000
SX, SWG, SWU, SWQ, SEX, SWS, SDBG, SWD, SWO, SOUT = 32, 36, 40, 44, 48, 52, 56, 60, 64, 92
sW, sTI, sQ, sU, sROT, sXO, sWOF, sMX, sMW, sI, sJ, sROT0 = range(68, 80)
sT = list(range(80, 90))
sEXW, sEXO = 90, 91
sC1 = 96
sF2, sRH, sRING, sOO = 98, 99, 100, 101
sHO = 3
sKVM, sKVO, sQA, sGA = 32, 33, 34, 35
sRW, sWB, sF2R = 44, 45, 46
def srd(n): return f"s[{n}:{n+3}]"
def vr(b, n): return f"v[{b}:{b+n-1}]"

vXS0, vXS1, vWS = 1, 2, 3
vST = 4
vXR = [5, 6, 7, 8]
vWR = [9, 10]
vES, vER, vSA = 11, [12, 13], 30
vL16, vLANE = 14, 15
vC0 = 16
vZ = 17
vGT = 18
t0, t1, t2, t3 = 20, 21, 22, 23
vS0 = 28
vPV, vPD, vTRP = 29, 0, 31
F = [32, 48]
ACC = [64, 96]
XF = 128
ACCE, WE = 96, 100
CNT = 147456
GW = CNT + 1024
ACCG, WG = 64, 68
L = vLANE
QA, QB, KF, V2, V1 = 128, 132, 136, 140, [144, 148]
vG, vIDX, vAK, vAV, vKVS = 152, 154, 155, 156, 157
vDR0, vDR1, vH0, vH1 = 159, 160, 161, 162
vDS, vF2 = vPD, vL16
F2D = 164
OA, OB, SA, SB = 176, 192, 208, 224
WF = [240, 248]
HF = [32, 40, 48, 56]
DACC = 64

a = Asm()
CLK = 's_memtime' if OPT['stamp'] == 2 else 's_memrealtime'
def stamp(k, grp=0):
    if grp != OPT['grp'] and k != 11: return
    if OPT['stamp']: a(f"{CLK} s[{4+2*k}:{5+2*k}]")
def mk_srd(n, p, size):
    a(f"s_mov_b32 s{n}, s{p}\ns_mov_b32 s{n+1}, s{p+1}\ns_mov_b32 s{n+2}, {size}\ns_mov_b32 s{n+3}, 0x20000")

PG = 3584
C0 = -2.0 * math.sqrt(2.0 / math.pi) * math.log2(math.e)
C1 = C0 * 0.044715
QS = 0.25 * math.log2(math.e)

a("s_cmp_ge_u32 s2, 256\ns_cbranch_scc1 L_end")
a("s_load_dwordx16 s[4:19], s[0:1], 0\ns_load_dwordx8 s[20:27], s[0:1], 64\ns_load_dwordx2 s[28:29], s[0:1], 96")
if OPT['stamp']: a(f"{CLK} s[30:31]")
a(f"v_lshrrev_b32 v1, 6, v0\nv_and_b32 v{L}, 63, v0\nv_readfirstlane_b32 s{sW}, v1")
a(f"""
s_and_b32 s{sT[0]}, s2, 7
s_lshr_b32 s{sT[1]}, s2, 3
s_and_b32 s{sJ}, s{sT[1]}, 7
s_lshr_b32 s{sU}, s{sT[1]}, 3
s_lshr_b32 s{sQ}, s{sT[0]}, 1
s_and_b32 s{sT[2]}, s{sT[0]}, 1
s_lshl_b32 s{sT[2]}, s{sT[2]}, 3
s_add_u32 s{sTI}, s{sT[2]}, s{sJ}
s_lshl2_add_u32 s{sI}, s{sT[0]}, s{sU}
s_lshl1_add_u32 s{sROT}, s{sU}, s{sJ}
s_and_b32 s{sROT}, s{sROT}, 7
s_mov_b32 s{sROT0}, s{sROT}
s_lshl_b32 s{sMX}, s{sW}, 11
s_lshl_b32 s{sMW}, s{sW}, 10
""")
a(f"""
v_lshlrev_b32 v{vL16}, 4, v{L}
v_lshrrev_b32 v{t0}, 3, v{L}
v_and_b32 v{t1}, 7, v{L}
v_lshrrev_b32 v{t2}, 4, v{L}
s_lshl3_add_u32 s{sT[0]}, s{sTI}, s{sW}
s_lshl_b32 s{sT[0]}, s{sT[0]}, 14
v_xor_b32 v{t3}, v{t1}, v{t2}
v_lshlrev_b32 v{t3}, 4, v{t3}
v_lshl_add_u32 v{vXS0}, v{t0}, 10, v{t3}
v_add_u32 v{vXS0}, s{sT[0]}, v{vXS0}
v_xor_b32 v{vXS1}, 64, v{vXS0}
v_add_u32 v{vXS1}, 8192, v{vXS1}
""")
def w_src(pitch, col):
    return f"""
    v_lshrrev_b32 v{t0}, 3, v{L}
    s_lshl_b32 s{sT[0]}, s{sW}, 3
    v_add_u32 v{t0}, s{sT[0]}, v{t0}
    v_mul_u32_u24 v{t0}, s{pitch}, v{t0}
    v_and_b32 v{t1}, 7, v{L}
    v_bfe_u32 v{t2}, v{L}, 4, 1
    v_lshlrev_b32 v{t2}, 1, v{t2}
    v_xor_b32 v{t1}, v{t1}, v{t2}
    s_and_b32 s{sT[0]}, s{sW}, 1
    s_lshl_b32 s{sT[0]}, s{sT[0]}, 2
    v_xor_b32 v{t1}, s{sT[0]}, v{t1}
    v_lshl_add_u32 v{t0}, v{t1}, 4, v{t0}
    v_add_u32 v{vWS}, s{col}, v{t0}
    """
a(f"""
s_mul_i32 s{sT[1]}, s{sQ}, 7
s_lshl1_add_u32 s{sT[1]}, s{sU}, s{sT[1]}
s_sub_u32 s{sT[1]}, s{sT[1]}, 1
s_lshl_b32 s{sT[1]}, s{sT[1]}, 7
s_lshl_b32 s{sT[2]}, s{sQ}, 8
s_movk_i32 s{sT[3]}, {PG}
s_cmp_eq_u32 s{sU}, 0
s_cselect_b32 s{sT[1]}, s{sT[2]}, s{sT[1]}
s_cselect_b32 s{sT[3]}, 1024, s{sT[3]}
""")
a(w_src(sT[3], sT[1]))
a(f"""
s_mov_b32 s{SX+2}, {2048*1024}
s_mov_b32 s{SX+3}, 0x20000
s_mov_b32 s{SWG+2}, {512*PG}
s_mov_b32 s{SWG+3}, 0x20000
s_mov_b32 s{SWU+2}, {512*PG}
s_mov_b32 s{SWU+3}, 0x20000
s_mov_b32 s{SWQ+2}, {512*1024}
s_mov_b32 s{SWQ+3}, 0x20000
s_cmp_eq_u32 s{sU}, 0
s_waitcnt lgkmcnt(0)
s_mov_b64 s[{SX}:{SX+1}], s[4:5]
s_mov_b64 s[{SWG}:{SWG+1}], s[16:17]
s_mov_b64 s[{SWU}:{SWU+1}], s[18:19]
s_mov_b64 s[{SWQ}:{SWQ+1}], s[6:7]
s_cbranch_scc1 L_pathQ
""")

PATH = ['G']
def wslot(sig):
    if sig < 8: return WR + (sig & 3) * 16384
    if sig >= 14: return EX + (sig - (14 if PATH[0] == 'G' else 15)) * 16384
    return (0 if sig & 1 else WR) + ((sig - 8) >> 1) * 16384
def waddr(sig, b):
    return {0: vXR[b], 1: vWR[b], 2: vXR[2 + b]}[wslot(sig) >> 16]

def dma_ops(sig, path):
    p = sig >> 3
    isq = (path != 'G' and p == 0)
    pitch = 1024 if isq else PG
    sa, sb = (SWQ, SWQ) if isq else (SWG, SWU)
    xs, ws = (sig & 3) * 16384, wslot(sig)
    pre = f"s_mul_i32 s{sWOF}, s{sROT}, {64*pitch}\n"
    if path == 'G' and p == 1: pre += f"s_add_u32 s{sWOF}, s{sWOF}, 128\n"
    mid = f"s_add_u32 s{sWOF}, s{sWOF}, 128\n" if isq else ""
    inc, wrap = f"s_add_u32 s{sROT}, s{sROT}, 1\n", f"s_and_b32 s{sROT}, s{sROT}, 7\n"
    wa = f"s_add_u32 m0, s{sMW}, {ws}\n{{}}buffer_load_dwordx4 v{vWS}, {srd(sa)}, s{sWOF} offen lds"
    wb = f"s_add_u32 m0, s{sMW}, {ws+8192}\n{{}}buffer_load_dwordx4 v{vWS}, {srd(sb)}, s{sWOF} offen lds"
    if p == 0:
        return [f"s_add_u32 m0, s{sMX}, {xs}\ns_lshl_b32 s{sXO}, s{sROT}, 7\nbuffer_load_dwordx4 v{vXS0}, {srd(SX)}, s{sXO} offen lds",
                wa.format(pre), wb.format(mid + inc),
                f"s_add_u32 m0, s{sMX}, {xs+1024}\n{wrap}buffer_load_dwordx4 v{vXS1}, {srd(SX)}, s{sXO} offen lds"]
    return [wa.format(pre), wb.format(inc + wrap)]

def setup_while_waiting(P):
    mk_srd(SWS, 28, WS_SIZE); mk_srd(SDBG, 26, 256); mk_srd(SWD, 20, 1792 * 1024); mk_srd(SWO, 12, 512 * 1024); mk_srd(SOUT, 24, 2048 * 1024)
    a(f"""
    s_and_b32 s{sT[0]}, s{sW}, 3
    s_lshr_b32 s{sT[1]}, s{sW}, 2
    s_lshl1_add_u32 s{sT[0]}, s{sT[0]}, s{sT[1]}
    s_lshl_b32 s{sT[0]}, s{sT[0]}, 11
    v_and_b32 v{t0}, 15, v{L}
    v_bfe_u32 v{t1}, v{L}, 1, 3
    v_lshrrev_b32 v{t2}, 4, v{L}
    v_xor_b32 v{t1}, v{t1}, v{t2}
    v_lshlrev_b32 v{t1}, 4, v{t1}
    v_lshl_add_u32 v{t1}, v{t0}, 7, v{t1}
    v_add_u32 v{vXR[0]}, s{sT[0]}, v{t1}
    v_xor_b32 v{vXR[1]}, 0x800, v{vXR[0]}
    v_xor_b32 v{vXR[2]}, 64, v{vXR[0]}
    v_xor_b32 v{vXR[3]}, 64, v{vXR[1]}
    s_lshl_b32 s{sT[2]}, s{sT[1]}, 8
    v_xor_b32 v{vST}, s{sT[2]}, v{vL16}
    """)
    a(f"""
    v_lshrrev_b32 v{t3}, 5, v{L}
    v_lshlrev_b32 v{t0}, 4, v{t0}
    v_lshl_add_u32 v{vPV}, v{t3}, 8, v{t0}
    """)
    a(f"""
    v_bfe_u32 v{t0}, v{L}, 2, 2
    v_lshl_add_u32 v{t1}, v{t2}, 3, v{t0}
    v_lshlrev_b32 v{t1}, 7, v{t1}
    v_bfe_u32 v{t2}, v{L}, 3, 2
    s_lshl_b32 s{sT[1]}, s{sT[1]}, 1
    v_xor_b32 v{t2}, s{sT[1]}, v{t2}
    v_lshl_add_u32 v{t1}, v{t2}, 5, v{t1}
    v_and_b32 v{t2}, 3, v{L}
    v_lshl_add_u32 v{t1}, v{t2}, 3, v{t1}
    v_add_u32 v{vWR[0]}, {WR}, v{t1}
    v_xor_b32 v{vWR[1]}, 32, v{vWR[0]}
    """)
    a(f"""
    v_lshl_add_u32 v{t3}, v{t3}, 3, v{t0}
    v_lshlrev_b32 v{t3}, 7, v{t3}
    v_lshrrev_b32 v{t0}, 1, v{t0}
    v_lshl_add_u32 v{t3}, v{t0}, 6, v{t3}
    v_lshl_add_u32 v{t3}, v{t2}, 3, v{t3}
    v_bfe_u32 v{t2}, v{L}, 4, 1
    v_lshl_add_u32 v{vTRP}, v{t2}, 5, v{t3}
    v_lshlrev_b32 v{t2}, 2, v{t2}
    v_and_b32 v{t1}, 7, v{L}
    v_xor_b32 v{t1}, v{t1}, v{t2}
    v_lshlrev_b32 v{t1}, 4, v{t1}
    v_lshrrev_b32 v{t0}, 3, v{L}
    v_lshl_add_u32 v{t0}, v{t0}, 10, v{t1}
    s_lshl_b32 s{sT[0]}, s{sJ}, 7
    v_add_u32 v{vPD}, s{sT[0]}, v{t0}
    v_mov_b32 v{vZ}, 0
    v_mov_b32 v{vC0}, {fbits(C0):#x}
    s_mov_b32 s{sC1}, {fbits(C1):#x}
    s_mov_b32 s{sC1+1}, {fbits(C1):#x}
    """)
    a(f"""
    s_lshr_b32 s{sT[3]}, s{sW}, 2
    s_and_b32 s{sT[1]}, s{sW}, 3
    s_lshl2_add_u32 s{sT[0]}, s{sTI}, s{sT[1]}
    s_lshl_b32 s{sT[8]}, s{sT[0]}, 5
    s_mul_i32 s{sT[0]}, s{sT[0]}, 112
    s_mul_i32 s{sT[1]}, s{sQ}, 28
    s_add_u32 s{sT[0]}, s{sT[0]}, s{sT[1]}
    s_lshl3_add_u32 s{sT[0]}, s{sU}, s{sT[0]}
    s_lshl1_add_u32 s{sT[0]}, s{sT[3]}, s{sT[0]}
    s_lshl_b32 s{sT[0]}, s{sT[0]}, 10
    s_add_u32 s{sHO}, s{sT[0]}, {WS_H}
    s_lshl3_add_u32 s{sT[4]}, s{sQ}, s{sT[8]}
    s_lshl1_add_u32 s{sT[4]}, s{sT[3]}, s{sT[4]}
    s_lshl_b32 s{sT[4]}, s{sT[4]}, 10
    s_lshl2_add_u32 s{sT[1]}, s{sQ}, s{sU}
    s_lshl4_add_u32 s{sF2}, s{sTI}, s{sT[1]}
    s_lshl3_add_u32 s{sF2}, s{sF2}, s{sW}
    s_lshl_b32 s{sF2}, s{sF2}, 2
    s_add_u32 s{sF2}, s{sF2}, {WS_F2}
    s_lshl1_add_u32 s{sT[9]}, s{sT[1]}, s{sT[8]}
    s_add_u32 s{sT[9]}, s{sT[9]}, s{sT[3]}
    s_lshl_b32 s{sT[9]}, s{sT[9]}, 10
    s_add_u32 s{sT[9]}, s{sT[9]}, {WS_O}
    s_and_b32 s{sT[1]}, s{sW}, 1
    s_lshl1_add_u32 s{sT[1]}, s{sI}, s{sT[1]}
    s_lshl3_add_u32 s{sT[2]}, s{sT[1]}, s{sJ}
    s_lshl_b32 s{sT[2]}, s{sT[2]}, 2
    s_and_b32 s{sT[1]}, s{sW}, 2
    s_add_u32 s{sT[2]}, s{sT[2]}, s{sT[1]}
    s_add_u32 s{sT[2]}, s{sT[2]}, s{sT[3]}
    s_lshl_b32 s{sOO}, s{sT[2]}, 10
    s_lshl_b32 s{sRING}, s{sW}, 13
    s_add_u32 s{sRING}, s{sRING}, {RING}
    s_mul_i32 s{sRH}, s{sJ}, 7
    s_lshr_b32 s{sRH}, s{sRH}, 2
    s_mul_i32 s{sT[1]}, s{sU}, 7
    s_lshr_b32 s{sT[1]}, s{sT[1]}, 1
    s_add_u32 s{sRH}, s{sRH}, s{sT[1]}
    s_cmp_ge_u32 s{sRH}, 14
    s_cselect_b32 s{sT[1]}, 14, 0
    s_sub_u32 s{sRH}, s{sRH}, s{sT[1]}
    s_lshl_b32 s{sRH}, s{sRH}, 10
    """)
    if P in 'KV':
        a(f"""
        v_lshrrev_b32 v{t2}, 4, v{L}
        v_and_b32 v{t0}, 15, v{L}
        v_lshlrev_b32 v{t1}, 3, v{t0}
        v_lshl_add_u32 v{t1}, v{t2}, 8, v{t1}
        v_and_b32 v{t3}, 1, v{t2}
        v_lshl_add_u32 v{t1}, v{t3}, 7, v{t1}
        v_add_u32 v{vER[0]}, {EX}, v{t1}
        v_xor_b32 v{vER[1]}, 0x80, v{vER[0]}
        v_lshlrev_b32 v{t1}, 7, v{t3}
        v_xor_b32 v{vES}, v{t1}, v{vL16}
        s_add_u32 s{sEXO}, s{sW}, s{sROT0}
        s_and_b32 s{sEXO}, s{sEXO}, 7
        s_lshl_b32 s{sEXO}, s{sEXO}, 11
        s_lshr_b32 s{sEXW}, s{sT[4]}, 15
        v_lshrrev_b32 v{t2}, 1, v{t2}
        """)
        if P == 'K':
            a(f"""
            s_lshl3_add_u32 s{sEXW}, s{sEXW}, s{sT[3]}
            s_lshl_b32 s{sEXW}, s{sEXW}, 8
            v_lshlrev_b32 v{t2}, 9, v{t2}
            """)
        else:
            a(f"""
            s_lshl2_add_u32 s{sEXW}, s{sEXW}, s{sT[3]}
            s_lshl_b32 s{sEXW}, s{sEXW}, 9
            s_add_u32 s{sEXW}, s{sEXW}, 1024
            v_lshlrev_b32 v{t2}, 8, v{t2}
            v_and_b32 v{t0}, 3, v{L}
            v_bfe_u32 v{t1}, v{L}, 2, 1
            v_lshl_add_u32 v{t0}, v{t1}, 3, v{t0}
            v_bfe_u32 v{t1}, v{L}, 3, 1
            v_lshl_add_u32 v{t0}, v{t1}, 2, v{t0}
            """)
        a(f"""
        v_lshl_add_u32 v{t2}, v{t0}, 4, v{t2}
        v_lshl_add_u32 v{vSA}, v{t3}, 3, v{t2}
        """)
    if P == 'S':
        a(f"""
        s_lshl_b32 s{sEXO}, s{sROT0}, 7
        v_add_u32 v{vES}, s{sEXO}, v{vL16}
        v_and_b32 v{vES}, 0x3ff, v{vES}
        v_and_b32 v{t0}, 48, v{L}
        v_add_u32 v{vER[0]}, {GW}, v{t0}
        v_and_b32 v{t0}, 15, v{L}
        v_lshlrev_b32 v{vSA}, 2, v{t0}
        s_lshr_b32 s{sEXW}, s{sT[4]}, 15
        s_lshl1_add_u32 s{sEXW}, s{sEXW}, s{sT[3]}
        s_lshl_b32 s{sEXW}, s{sEXW}, 6
        s_add_u32 s{sEXW}, s{sEXW}, {WS_G}
        """)

def x_reads(sig, j):
    return [f"ds_read_b128 {vr(XF + 16*sig + 8*j + 4*tq, 4)}, v{vXR[2*j+tq]} offset:{(sig & 3) * 16384}" for tq in range(2)]
def w_reads(sig, j, i):
    b, part = i >> 1, i & 1
    off = (wslot(sig) & 0xffff) + part * 8192 + j * 4096
    return [f"ds_read_b64_tr_b16 {vr(F[j] + 4*i + 2*e, 2)}, v{waddr(sig, b)} offset:{off + e*512}" for e in range(2)]
def e_steps(c):
    if PATH[0] in 'KV': return [2 * (c - 6), 2 * (c - 6) + 1] if 6 <= c < 12 else ([c] if 12 <= c < 16 else [])
    if PATH[0] == 'S': return {18: [0, 1, 2, 3], 19: [4, 5], 20: [6, 7], 21: [8], 22: [9, 10], 23: [11], 24: [12, 13], 25: [14], 26: [15]}.get(c, [])
    return []
def e_reads(c):
    if PATH[0] == 'S':
        return [f"ds_read_b128 {vr(WG + (0 if c == 18 else 16 if c & 1 else 0) + 4*i, 4)}, v{vER[0]} offset:{k*64}" for i, k in enumerate(e_steps(c))]
    return [f"ds_read_b64_tr_b16 {vr(WE + 8*(c&1) + 4*i + 2*e, 2)}, v{vER[e]} offset:{k*1024}" for i, k in enumerate(e_steps(c)) for e in range(2)]
def e_mfmas(c):
    out = []
    for i, k in enumerate(e_steps(c)):
        acc = vr(ACCG if PATH[0] == 'S' else ACCE, 4)
        w = vr(WG + (16 if c & 1 else 0) + 4 * i, 4) if PATH[0] == 'S' else vr(WE + 8 * (c & 1) + 4 * i, 4)
        x = vr(XF + 8 * k, 4)
        A, B = (x, w) if PATH[0] == 'V' else (w, x)
        out.append(f"v_mfma_f32_16x16x32_bf16 {acc}, {A}, {B}, {'0' if k == 0 else acc}")
    return out
def mfmas(sig, j):
    out = []
    for i in range(4):
        for tq in range(2):
            d = vr(ACC[sig >> 3] + 8 * i + 4 * tq, 4)
            c = "0" if ((sig & 7) == 0 and j == 0) else d
            out.append(f"v_mfma_f32_16x16x32_bf16 {d}, {vr(F[j] + 4*i, 4)}, {vr(XF + 16*(sig&7) + 8*j + 4*tq, 4)}, {c}")
    return out

def gelu_pair(base, j, T=vGT, pk=False):
    G = vr(base + 2 * j, 2); U = vr(base + 8 + 2 * j, 2); TT = vr(T, 2)
    g0, g1, u0, u1 = base + 2 * j, base + 2 * j + 1, base + 8 + 2 * j, base + 9 + 2 * j
    if pk:
        return [f"v_pk_mul_f32 {TT}, {G}, {G}",
                f"v_pk_fma_f32 {TT}, {TT}, s[{sC1}:{sC1+1}], {vr(vC0,2)} op_sel_hi:[1,1,0]",
                f"v_pk_mul_f32 {TT}, {TT}, {G}",
                f"v_exp_f32 v{T}, v{T}", f"v_exp_f32 v{T+1}, v{T+1}",
                f"v_pk_mul_f32 {G}, {G}, {U}",
                f"v_pk_add_f32 {TT}, {TT}, 1.0 op_sel_hi:[1,0]",
                f"v_rcp_f32 v{T}, v{T}", f"v_rcp_f32 v{T+1}, v{T+1}",
                f"v_pk_mul_f32 {G}, {G}, {TT}",
                f"v_cvt_pk_bf16_f32 v{base+j}, v{g0}, v{g1}"]
    return [f"v_mul_f32 v{T}, v{g0}, v{g0}", f"v_mul_f32 v{T+1}, v{g1}, v{g1}",
            f"v_fma_f32 v{T}, v{T}, s{sC1}, v{vC0}", f"v_fma_f32 v{T+1}, v{T+1}, s{sC1}, v{vC0}",
            f"v_mul_f32 v{T}, v{T}, v{g0}", f"v_mul_f32 v{T+1}, v{T+1}, v{g1}",
            f"v_exp_f32 v{T}, v{T}", f"v_exp_f32 v{T+1}, v{T+1}",
            f"v_mul_f32 v{g0}, v{g0}, v{u0}", f"v_add_f32 v{T}, 1.0, v{T}", f"v_add_f32 v{T+1}, 1.0, v{T+1}",
            f"v_rcp_f32 v{T}, v{T}", f"v_rcp_f32 v{T+1}, v{T+1}",
            f"v_mul_f32 v{g1}, v{g1}, v{u1}",
            f"v_mul_f32 v{g0}, v{g0}, v{T}", f"v_mul_f32 v{g1}, v{g1}, v{T+1}",
            f"v_cvt_pk_bf16_f32 v{base+j}, v{g0}, v{g1}"]
def to_frag(base):
    return [f"v_permlane16_swap_b32 v{base}, v{base+2}", f"v_permlane16_swap_b32 v{base+1}, v{base+3}"]

def cost(x):
    c = 0
    for l in x.strip().split('\n'):
        l = l.strip()
        if not l or l.startswith(';') or l.endswith(':'): continue
        c += 8 if l.startswith(('v_exp', 'v_rcp')) else (OPT.get('vmc', 16) if l.startswith('buffer_') else 4)
    return c

kvtok = {}
def kv_step(m):
    slot = (2 * m % NSLOT) * 2048
    if m == 0: x = f"s_mov_b32 m0, s{sKVM}\ns_nop 0\n"
    else: x = f"s_add_u32 s{sKVO}, s{sKVO}, 4096\ns_add_u32 m0, s{sKVM}, {slot}\ns_and_b32 s{sKVO}, s{sKVO}, 0xffff\n"
    return x + f"buffer_load_dwordx4 v{vKVS}, {srd(SWS)}, s{sKVO} offen sc1 lds"
KV_FIRST = 5
def first_loads():
    l = [f"buffer_load_dwordx4 {vr(QA,4)}, v{vL16}, {srd(SWS)}, s{sQA} offen sc1", kv_step(0),
         f"s_xor_b32 s{sQA}, s{sQA}, 1024\nbuffer_load_dwordx4 {vr(QB,4)}, v{vL16}, {srd(SWS)}, s{sQA} offen sc1"]
    return l + [kv_step(m) for m in range(1, KV_FIRST)]

def setup_queue():
    q = []
    def add(st, txt):
        for l in txt.strip().split('\n'): q.append((st, l.strip().replace('|', '\n')))
    add(11, f"""
    s_lshr_b32 s{sT[3]}, s{sW}, 2
    s_and_b32 s{sT[5]}, s{sW}, 1
    s_lshl_b32 s{sT[6]}, s{sT[3]}, 16
    s_lshl_b32 s{sT[7]}, s{sT[5]}, 10
    s_add_u32 s{sT[6]}, s{sT[6]}, s{sT[7]}
    v_add_u32 v{vKVS}, s{sT[6]}, v{vL16}
    s_mul_i32 s{sT[3]}, s{sT[3]}, {HALF}
    v_add_u32 v{vAK}, s{sT[3]}, v{vL16}
    v_add_u32 v{vAV}, s{sT[3]}, v{vPV}
    s_and_b32 s{sT[6]}, s{sW}, 3
    s_lshl_b32 s{sT[6]}, s{sT[6]}, 10
    s_add_u32 s{sKVM}, s{sT[6]}, s{sT[3]}
    s_bfe_u32 s{sT[6]}, s{sW}, 0x10001
    s_lshr_b32 s{sT[7]}, s2, 3
    s_add_u32 s{sT[6]}, s{sT[6]}, s{sT[7]}
    s_and_b32 s{sT[6]}, s{sT[6]}, 31
    s_lshl_b32 s{sKVO}, s{sT[6]}, 11
    s_add_u32 s{sQA}, s{sOO}, {WS_Q}
    s_lshl1_add_u32 s{sGA}, s{sI}, s{sT[5]}
    s_lshl_b32 s{sGA}, s{sGA}, 7
    s_add_u32 s{sGA}, s{sGA}, {WS_G}
    v_and_b32 v{vG}, 31, v{L}
    v_lshlrev_b32 v{vG}, 2, v{vG}
    v_mov_b32 v{vIDX}, 0xdddddddd
    v_mov_b32 v{V2+1}, 0x3f803f80
    s_mov_b32 vcc_lo, 0x110000|s_mov_b32 vcc_hi, 0x110000|v_cndmask_b32 v{V2}, 0, v{V2+1}, vcc
    """)
    for r in range(V2 + 1, V2 + 12): add(11, f"v_mov_b32 v{r}, v{V2}")
    add(12, f"""
    v_add_u32 v{vDR0}, s{sRING}, v{vTRP}
    v_xor_b32 v{vDR1}, 64, v{vDR0}
    s_mul_i32 s{sT[6]}, s{sT[5]}, {112*1024}
    s_mul_i32 s{sT[7]}, s{sI}, 224
    s_mul_i32 s{sWB}, s{sW}, 14
    s_add_u32 s{sT[7]}, s{sT[7]}, s{sWB}
    s_lshl_b32 s{sT[7]}, s{sT[7]}, 10
    s_add_u32 s{sT[7]}, s{sT[7]}, {WS_H}
    s_add_u32 s{sT[3]}, s{sT[7]}, s{sT[6]}
    v_add_u32 v{vH0}, s{sT[3]}, v{vL16}
    s_sub_u32 s{sT[3]}, s{sT[7]}, s{sT[6]}
    s_add_u32 s{sT[3]}, s{sT[3]}, {112*1024}
    v_add_u32 v{vH1}, s{sT[3]}, v{vL16}
    s_lshl_b32 s{sWB}, s{sWB}, 14
    s_mov_b32 s{sRW}, s{sRH}
    s_lshr_b32 s{sF2R}, s{sI}, 1
    s_lshl_b32 s{sF2R}, s{sF2R}, 9
    s_add_u32 s{sF2R}, s{sF2R}, {WS_F2}
    """)
    for r in range(9): add(13, f"v_mov_b32 v{OA+r}, 0")
    for r in range(9): add(14, f"v_mov_b32 v{OB+r}, 0")
    return q

cold = []
def s0_check(P):
    a(f"v_cmp_eq_u32 vcc, 0, v{vS0}\ns_cbranch_vccnz L_s0retry{P}\nL_s0done{P}:")
    cold.append(f"""
    L_s0retry{P}:
    s_mov_b32 s{sT[1]}, 0
    L_s0poll{P}:
    buffer_load_dword v{vS0}, v{vZ}, {srd(SDBG)}, 0 offen sc1
    s_add_u32 s{sT[1]}, s{sT[1]}, 1
    s_waitcnt vmcnt(0)
    v_cmp_eq_u32 vcc, 0, v{vS0}
    s_cbranch_vccz L_s0done{P}
    s_cmp_lt_u32 s{sT[1]}, {SPIN}
    s_cbranch_scc1 L_s0poll{P}
    s_branch L_s0done{P}
    """)
def s1_issue(P):
    a(f"s_cmp_lg_u32 s{sW}, 0\ns_cbranch_scc1 L_nopoll0{P}")
    if P == 'G': s0_check(P)
    a(f"""
    s_lshr_b32 s{sT[0]}, s{sI}, 1
    s_lshr_b32 s{sT[1]}, s{sJ}, 1
    s_lshl4_add_u32 s{sT[0]}, s{sT[1]}, s{sT[0]}
    s_lshl_b64 s[{sT[0]}:{sT[1]}], 1, s{sT[0]}
    s_mov_b32 s{sT[0]}, s{sT[1]}
    s_mov_b32 s{sT[1]}, {WS_F1}
    v_lshlrev_b32 v{t1}, 7, v{L}
    v_mov_b32 v{t0}, 1
    s_mov_b32 exec_hi, s{sT[0]}
    buffer_load_dword v{t0}, v{t1}, {srd(SWS)}, s{sT[1]} offen sc1
    s_mov_b32 exec_hi, -1
    L_nopoll0{P}:
    """)
    a.vm -= 1
def s1_check(P):
    a(f"""
    s_cmp_lg_u32 s{sW}, 0
    s_cbranch_scc1 L_s1done{P}
    s_mov_b32 s{sT[0]}, 0
    L_s1poll{P}:
    s_waitcnt vmcnt(0)
    v_cmp_ne_u32 vcc, 1, v{t0}
    s_cbranch_vccz L_s1done{P}
    s_mov_b64 exec, vcc
    buffer_load_dword v{t0}, v{t1}, {srd(SWS)}, s{sT[1]} offen sc1
    s_mov_b64 exec, -1
    s_add_u32 s{sT[0]}, s{sT[0]}, 1
    s_cmp_lt_u32 s{sT[0]}, {SPIN}
    s_cbranch_scc1 L_s1poll{P}
    s_waitcnt vmcnt(0)
    L_s1done{P}:
    """)
    a.vm -= 1

def proj_path(P):
    tok = {}
    PATH[0] = P
    S1 = OPT['s1']
    sched = {s: [s + 2] for s in range(6)}
    if P == 'G': sched.update({6: [8, 9], 7: [10, 11], 8: [12, 13], 9: [14, 15]}); cover = {8: 9, 10: 11, 12: 15}
    else: sched.update({6: [8, 9], 7: [10, 11], OPT['q12']: [12, 13], OPT['q14']: [14, 15]}); cover = {8: 9, 10: 11, 12: 13, OPT['qc']: 15}
    bars = set(range(8)) | set(cover) | {S1}
    if OPT['qbar'] and P != 'G': bars |= set(range(10, 16))
    def dma_groups(sg):
        d = dma_ops(sg, P)
        if P in 'KV' and sg == 3:
            d.insert(1, f"""
            s_add_u32 m0, s{sMX}, {EX}
            s_nop 0
            buffer_load_dwordx4 v{vES}, {srd(SEX)}, s{sEXO} offen lds
            buffer_load_dwordx4 v{vES}, {srd(SEX)}, s{sEXO} offen offset:1024 lds
            """)
        if P == 'S' and sg == 3:
            d.insert(1, f"s_mov_b32 m0, {GW}\ns_nop 0\nbuffer_load_dwordx4 v{vES}, {srd(SEX)}, 0 offen lds")
        return [(x, sg if k == len(d) - 1 else None) for k, x in enumerate(d)]
    def emit(it):
        if callable(it): return it()
        a(it[0])
        if it[1] is not None: tok[it[1]] = a.lastvm()
    if P == 'G':
        a(f"s_cmp_lg_u32 s2, {CLEAR_WG}\ns_cbranch_scc1 L_noclear")
        mk_srd(SWS, 28, WS_SIZE)
        a(f"""
        s_add_u32 s{sT[1]}, s{sMX}, {WS_F1}
        v_mov_b32 v24, 0
        v_mov_b32 v25, 0
        v_mov_b32 v26, 0
        v_mov_b32 v27, 0
        buffer_store_dwordx4 v[24:27], v{vL16}, {srd(SWS)}, s{sT[1]} offen sc1
        buffer_store_dwordx4 v[24:27], v{vL16}, {srd(SWS)}, s{sT[1]} offen offset:1024 sc1
        L_noclear:
        """)
    for it in dma_groups(0): emit(it)
    if P in 'KVS': mk_srd(SEX, {'K': 8, 'V': 10, 'S': 22}[P], 1024 if P == 'S' else 16384)
    setup_while_waiting(P)
    if P != 'G': a(f"v_mov_b32 v{t0}, {CNT}\nds_write_b32 v{t0}, v{vZ}")
    for it in dma_groups(1): emit(it)
    stamp(0)
    win = {c: [] for c in range(33)}
    box = {}; inside = {}; front = {}
    def usable(c):
        return c % 2 == 0 or ((c + 1) // 2) not in bars
    def nxt(c):
        while not usable(c): c += 1
        return c
    if P == 'G':
        gq = []
        for b in range(2):
            for j in range(4): gq += gelu_pair(ACC[0] + 16 * b, j)
            gq += to_frag(ACC[0] + 16 * b)
            if b == 0: n0 = len(gq)
        ws = [c for c in range(16, OPT['gend'] + 1) if usable(c)]
        ndma = {16: 2, 17: 2, 18: 4}
        tot = len(gq) + OPT['dwt'] * 8
        done = 0; accw = 0
        for k, c in enumerate(ws):
            accw += OPT['dwt'] * ndma.get(c, 0)
            upto = max(done, tot * (k + 1) // len(ws) - accw)
            win[c] += [(x, None) for x in gq[done:upto]]
            if done < n0 <= upto: c0 = c
            done = upto
        assert done == len(gq)
        for b in range(OPT['nearly']):
            c = nxt(max(OPT[f'h{b}w'], c0 if b == 0 else ws[-1]))
            win[c].append((f"s_sub_u32 s{sT[2]}, s{sHO}, 4096\nbuffer_store_dwordx4 {vr(ACC[0]+16*b,4)}, v{vST}, {srd(SWS)}, s{sT[2]} offen offset:{1024*b} sc1", None))
    else:
        qa = [f"s_add_u32 s{sT[5]}, s{sT[4]}, {WS_Q}\ns_add_u32 s{sT[6]}, s{sT[4]}, {WS_Q + 4096}"]
        if P == 'K': qa += [f"v_mul_f32 v{ACCE+r}, {fbits(QS):#x}, v{ACCE+r}" for r in range(4)]
        if P in 'KV':
            qa += [f"v_cvt_pk_bf16_f32 v24, v{ACCE}, v{ACCE+1}", f"v_cvt_pk_bf16_f32 v25, v{ACCE+2}, v{ACCE+3}",
                   f"buffer_store_dwordx2 v[24:25], v{vSA}, {srd(SWS)}, s{sEXW} offen sc1"]
        def qfr(i0):
            o = []
            for i in (i0, i0 + 1):
                o += [f"v_cvt_pk_bf16_f32 v{ACC[0]+8*i+j}, v{ACC[0]+8*i+2*j}, v{ACC[0]+8*i+2*j+1}" for j in range(4)]
            for i in (i0, i0 + 1):
                o += to_frag(ACC[0] + 8 * i)
                o.append(f"buffer_store_dwordx4 {vr(ACC[0]+8*i,4)}, v{vST}, {srd(SWS)}, s{sT[5+(i&1)]} offen offset:{1024*(i>>1)} sc1")
            return o
        win[16] += [lambda: stamp(0, 3)] + [(x, None) for x in qa + qfr(0)]
        win[17 if OPT.get('qsp', 1) else 16] += [(x, None) for x in qfr(2)] + [lambda: (box.update(q=a.lastvm()), stamp(1, 3))]
        def qflag():
            stamp(2, 3)
            a(f"""
            v_mov_b32 v{t0}, {CNT}
            v_mov_b32 v{t1}, 1
            s_lshl4_add_u32 s{sT[0]}, s{sQ}, s{sTI}
            s_lshl_b32 s{sT[0]}, s{sT[0]}, 7
            s_add_u32 s{sT[0]}, s{sT[0]}, {WS_F1}
            """)
            a.wait(box['q'])
            stamp(3, 3)
            assert a.vm_done > box['s0']
            s0_check(P)
            a(f"s_mov_b64 exec, 1\nds_add_rtn_u32 v{t0}, v{t0}, v{t1}\ns_mov_b64 exec, -1")
        def qflag2():
            a(f"""
            s_mov_b64 exec, 1
            v_sub_u32 v{t0}, 7, v{t0}
            v_lshlrev_b32 v{t0}, 24, v{t0}
            buffer_store_dword v{t1}, v{t0}, {srd(SWS)}, s{sT[0]} offen sc1
            s_mov_b64 exec, -1
            """)
            stamp(4, 3)
        if OPT['qin']:
            win[OPT['qw']].append(qflag)
            inside[OPT['qw']] = qflag2
        else:
            front[OPT['qw']] = [qflag, lambda: a.wait(a.lastlg()), qflag2]
        if P == 'S':
            win[nxt(27)] += [(x, None) for x in (f"v_mul_f32 v{ACCG}, {fbits(-math.log2(math.e)):#x}, v{ACCG}", f"v_exp_f32 v{ACCG}, v{ACCG}", f"v_add_f32 v{ACCG}, 1.0, v{ACCG}",
                              f"v_rcp_f32 v{ACCG}, v{ACCG}", f"s_mov_b64 exec, 0xffff\nbuffer_store_dword v{ACCG}, v{vSA}, {srd(SWS)}, s{sEXW} offen sc1\ns_mov_b64 exec, -1")]
    if OPT['clw'] <= 32:
        win[nxt(max(OPT['clw'], 0 if P == 'G' else OPT['qw'] + 1))].append(
            (f"v_mov_b32 v24, -1\nv_mov_b32 v25, -1\nv_mov_b32 v26, -1\nv_mov_b32 v27, -1\nbuffer_store_dwordx4 v[24:27], v{vL16}, {srd(SWS)}, s{sT[9]} offen sc1", None))
    queue = setup_queue()
    ws = [c for c in range(OPT.get('qs', 20), 2 * S1 - 1) if usable(c)]
    for k, c in enumerate(ws):
        left = [x for x in queue if 2 * x[0] - 2 <= c]
        take = min(len(left), -(-len(queue) // (len(ws) - k)))
        win[c] += [(x[1], None) for x in left[:take]]; queue = queue[take:]
    assert not queue
    win[16].insert(0, (f"v_subrev_u32 v{vXR[0]}, {WR}, v{vWR[0]}\nv_subrev_u32 v{vXR[1]}, {WR}, v{vWR[1]}\nv_add_u32 v{vXR[2]}, {WR}, v{vWR[0]}\nv_add_u32 v{vXR[3]}, {WR}, v{vWR[1]}", None))

    def cluster(c):
        M = mfmas(c >> 1, c & 1) if c >= 0 else []
        em = e_mfmas(c)
        for i, x in enumerate(em): M.insert(1 + (8 // len(em) + 1) * i, x)
        d = c + 1
        R = []
        if d < 32:
            if d < 16: R += x_reads(d >> 1, d & 1)
            for i in range(4): R += w_reads(d >> 1, d & 1, i)
            R += e_reads(d)
        a.wait(a.lastlg())
        if M: a("s_setprio 2")
        n = max(len(M), 1); k = 0
        last = n - 1 if (c & 1 or ((c >> 1) + 1) not in bars) else n - 2
        for i in range(n):
            if M: a(M[i])
            if i == 0 and c in inside: inside.pop(c)()
            want = len(R) if i >= last else -(-len(R) * (i + 1) // (last + 1))
            while k < want: a(R[k]); k += 1
        if M: a("s_setprio 0")

    for sig in range(16):
        if sig in bars:
            if sig in cover or sig < 8: a.wait(tok[cover.get(sig, sig)])
            if sig == S1: s1_check(P)
            a("s_barrier")
        if sig == 1: stamp(1)
        if sig == 8: stamp(2)
        if sig < 11: stamp(sig, 1)
        if sig >= 6: stamp(sig - 6, 2)
        D = []
        if P == 'G' and sig == 0:
            def s0_set():
                a(f"""
                s_lshl_b32 s{sT[1]}, s{sW}, 8
                s_or_b32 s{sT[1]}, s{sT[1]}, s2
                s_cmp_lg_u32 s{sT[1]}, {CLEAR_WG}
                s_cbranch_scc1 L_nos0
                v_mov_b32 v{t0}, 1
                s_mov_b64 exec, 1
                buffer_store_dword v{t0}, v{vZ}, {srd(SDBG)}, 0 offen sc1
                s_mov_b64 exec, -1
                L_nos0:
                """)
                a.vm -= 1
            win[0].append(s0_set)
        for sg in sched.get(sig, []): D += dma_groups(sg)
        if P != 'G' and sig == 5:
            D.append((f"s_mul_i32 s{sT[1]}, s{sQ}, {7*128}\ns_movk_i32 s{sT[2]}, {PG}\n" + w_src(sT[2], sT[1]), None))
        if sig == S1: D += [(x, None) for x in first_loads()]
        if sig == (9 if P == 'G' else 7):
            def s0_load():
                if P == 'G':
                    a(f"s_cmp_lg_u32 s{sW}, 0\ns_cbranch_scc1 L_nos0l{P}\nbuffer_load_dword v{vS0}, v{vZ}, {srd(SDBG)}, 0 offen sc1\nL_nos0l{P}:")
                    a.vm -= 1
                else:
                    a(f"buffer_load_dword v{vS0}, v{vZ}, {srd(SDBG)}, 0 offen sc1")
                box['s0'] = a.vm
            D.insert(len(D) - 1, s0_load)
        head, mid, tail = [], D, []
        if sig < OPT['late']: mid, tail = [], D
        elif (sig + 1) not in bars: mid, tail = D[:len(D)//2], D[len(D)//2:]
        elif sig in bars and len(D) >= 4: head, mid = D[:OPT['na']], D[OPT['na']:]
        for it in head: emit(it)
        cluster(2 * sig - 1)
        if sig == S1 - 1:
            assert a.vm_done > box['s0']
            s1_issue(P)
        for it in front.get(2 * sig, []) + mid + win[2 * sig]: emit(it)
        cluster(2 * sig)
        for it in front.get(2 * sig + 1, []) + tail + win[2 * sig + 1]: emit(it)
    a.wait(a.lastlg())
    assert not win[32]

proj_path('G')
a("L_join:")
a.forget()

for m in mfmas(15, 1): a(m)
stamp(3); stamp(10, 2)
stamp(5, 3)
if OPT['s1'] == 16:
    s1_check('J')
    stamp(6, 3)
    a("s_barrier")
    stamp(7, 3)
    for x in first_loads(): a(x)
stamp(4); stamp(8, 3)
for b in range(2):
    for jp in range(2):
        g0 = gelu_pair(ACC[1] + 16 * b, 2 * jp, vGT, pk=OPT['pk2']); g1 = gelu_pair(ACC[1] + 16 * b, 2 * jp + 1, t0, pk=OPT['pk2'])
        for x, y in zip(g0, g1):
            a(x); a(y)
        if b == 1 and jp == 0:
            for x in to_frag(ACC[1]): a(x)
a(f"s_mov_b32 s{sT[7]}, s{sT[9]}\ns_mov_b32 s{sT[8]}, 0xffff\ns_mov_b32 s{sT[9]}, 0xffff")
for x in to_frag(ACC[1] + 16): a(x)
stamp(9, 3)
a.wait_vm0()
a("s_barrier")
stamp(5); stamp(10, 3)

def qk(S, Q): return f"v_mfma_f32_32x32x16_bf16 {vr(S,16)}, {vr(KF,4)}, {vr(Q,4)}, 0"
def pv(O, V, S): return f"v_smfmac_f32_32x32x32_bf16 {vr(O,16)}, {vr(V,4)}, {vr(S,8)}, v{vIDX}"
NT, B1, B2 = 32, 8, OPT['b2']
def rec(t): return (t % NSLOT) * 2048
def rdK(t): return a(f"ds_read_b128 {vr(KF,4)}, v{vAK} offset:{rec(t)}")
def rdV(t2, t1):
    a(f"s_mov_b64 exec, s[{sT[8]}:{sT[9]}]")
    if t2 is not None: a(f"ds_read_b128 {vr(V2,4)}, v{vAV} offset:{rec(t2) + 1536}")
    if t1 is not None: a(f"ds_read_b128 {vr(V1[t1&1],4)}, v{vAV} offset:{rec(t1) + 1024}")
    a("s_mov_b64 exec, -1")
    return a.lastlg()
wtok, htok, rtok, box = {}, {}, {}, {}
def w_load_a(u):
    slot = (u & 3) * 2048
    if u < 14:
        a(f"s_lshl4_add_u32 s{sWOF}, s{sRW}, s{sWB}\ns_add_u32 m0, s{sRING}, {slot}\ns_add_u32 s{sRW}, s{sRW}, 1024")
    else:
        if u == 14: a(f"s_lshl_b32 s{sWB}, s{sW}, 16\ns_lshl_b32 s{sRW}, s{sU}, 10")
        a(f"s_lshl4_add_u32 s{sWOF}, s{sRW}, s{sWB}\ns_add_u32 m0, s{sRING}, {slot}\ns_add_u32 s{sRW}, s{sRW}, 1024")
    a(f"buffer_load_dwordx4 v{vDS}, {srd(SWD if u < 14 else SWO)}, s{sWOF} offen lds")
def w_load_b(u):
    slot = (u & 3) * 2048
    a(f"s_add_u32 m0, s{sRING}, {slot+1024}\ns_add_u32 s{sWOF}, s{sWOF}, 8192")
    wtok[u] = a(f"buffer_load_dwordx4 v{vDS}, {srd(SWD if u < 14 else SWO)}, s{sWOF} offen lds")
    if u < 13: a(f"s_cmp_eq_u32 s{sRW}, {14*1024}\ns_cselect_b32 s{sRW}, 0, s{sRW}")
    elif 14 <= u < 17: a(f"s_and_b32 s{sRW}, s{sRW}, 0xfff")
def h_load_a(u):
    a(f"buffer_load_dwordx4 {vr(HF[u&3],4)}, v{vH0}, {srd(SWS)}, s{sRH} offen sc1")
def h_load_b(u):
    htok[u] = a(f"buffer_load_dwordx4 {vr(HF[u&3]+4,4)}, v{vH1}, {srd(SWS)}, s{sRH} offen sc1")
    if u < 13: a(f"s_add_u32 s{sRH}, s{sRH}, 1024\ns_cmp_eq_u32 s{sRH}, {14*1024}\ns_cselect_b32 s{sRH}, 0, s{sRH}")
def w_read(u, b):
    if b == 0: a.wait(wtok[u], htok[u])
    for e in range(2):
        rtok[u, b] = a(f"ds_read_b64_tr_b16 {vr(WF[u&1] + 4*b + 2*e, 2)}, v{(vDR0, vDR1)[b]} offset:{(u & 3) * 2048 + e*512}")
def d_mfma(u, k):
    tb, b = k >> 1, k & 1
    a.wait(rtok[u, 1])
    d = vr(DACC + 32 * tb + 16 * b, 16)
    a(f"v_mfma_f32_32x32x16_bf16 {d}, {vr(WF[u&1]+4*b,4)}, {vr(HF[u&3]+4*tb,4)}, {'0' if u == 0 else d}")

ev = {}
def at(pos, f):
    ev.setdefault(pos, []).append(f)
def h_store(b): box['h'] = a(f"buffer_store_dwordx4 {vr(ACC[1]+16*b,4)}, v{vST}, {srd(SWS)}, s{sHO} offen offset:{1024*b} sc1")
def late_store(k):
    if k == 2:
        a(f"v_mov_b32 v24, -1\nv_mov_b32 v25, -1\nv_mov_b32 v26, -1\nv_mov_b32 v27, -1\nbuffer_store_dwordx4 v[24:27], v{vL16}, {srd(SWS)}, s{sT[7]} offen sc1")
        return
    a(f"""
    s_cmp_eq_u32 s{sU}, 0
    s_cbranch_scc1 L_nols{k}
    s_sub_u32 s{sT[2]}, s{sHO}, 4096
    buffer_store_dwordx4 {vr(ACC[0]+16*k,4)}, v{vST}, {srd(SWS)}, s{sT[2]} offen offset:{1024*k} sc1
    L_nols{k}:
    """)
    a.vm -= 1
pp = 1
for k in list(range(OPT['nearly'], 2)) + ([2] if OPT['clw'] > 32 else []):
    at(pp, lambda k=k: late_store(k)); pp += OPT.get('p_sts', 3)
at(pp, lambda: h_store(0)); at(pp + OPT.get('p_sts', 3), lambda: h_store(1))
def kv_emit(m): kvtok[m] = a(kv_step(m))
for m in range(KV_FIRST, 12): at(OPT['p_kv'] + OPT['p_kvs'] * (m - KV_FIRST), lambda m=m: kv_emit(m))
for m in range(12, 16): at(OPT['p_kv2'] + 12 * (m - 12), lambda m=m: kv_emit(m))
assert OPT['p_kv2'] >= 32 * B1
def h_flag():
    a.wait(box['h'])
    a(f"v_mov_b32 v{t0}, 1\ns_mov_b64 exec, 1\nbuffer_store_dword v{t0}, v{vZ}, {srd(SWS)}, s{sF2} offen sc1\ns_mov_b64 exec, -1")
at(OPT['p_flag'], h_flag)
def f2_load():
    box['f2'] = a(f"s_mov_b32 exec_hi, 0\nbuffer_load_dwordx4 {vr(F2D,4)}, v{vF2}, {srd(SWS)}, s{sF2R} offen sc1")
    a("s_mov_b32 exec_hi, -1")
at(OPT['p_f2'], f2_load)
def f2_check():
    a.wait(box['f2'])
    a(f"""
    s_mov_b32 s{sT[1]}, 0
    s_mov_b32 exec_hi, 0
    L_s2poll:
    v_min3_u32 v{F2D}, v{F2D}, v{F2D+1}, v{F2D+2}
    v_min_u32 v{F2D}, v{F2D}, v{F2D+3}
    v_cmp_ne_u32 vcc, 1, v{F2D}
    s_cbranch_vccz L_s2done
    buffer_load_dwordx4 {vr(F2D,4)}, v{vF2}, {srd(SWS)}, s{sF2R} offen sc1
    s_add_u32 s{sT[1]}, s{sT[1]}, 1
    s_cmp_lt_u32 s{sT[1]}, {SPIN}
    s_waitcnt vmcnt(0)
    s_cbranch_scc1 L_s2poll
    L_s2done:
    s_mov_b32 exec_hi, -1
    """)
    a.vm -= 1
    a(f"buffer_load_dword v{vG}, v{vG}, {srd(SWS)}, s{sGA} offen sc1")
    stamp(9)
at(OPT['p_chk'], f2_check)
D0, DE = OPT['d0'], OPT['dend']
allsl = [32 * t + o for t in range(D0, DE) for o in (8, 14, 24, 30)]
assert len(allsl) >= 56
slots = [allsl[(i * len(allsl)) // 56] for i in range(56)]
for u in range(18):
    pw = OPT['p_fill'] + OPT['p_fills'] * u if u < 4 else slots[4 * (u - 4)] + 1
    at(pw, lambda u=u: w_load_a(u)); at(pw + 3, lambda u=u: w_load_b(u))
    if u < 14:
        ph = OPT['p_chk'] + 2 + OPT.get('p_hs', 14) * u if u < 3 else slots[4 * (u - 3)] + 7
        at(ph, lambda u=u: h_load_a(u)); at(ph + 3, lambda u=u: h_load_b(u))
for u in range(14):
    rp = slots[0] - 14 if u == 0 else slots[4 * u - 2] + 1
    at(rp, lambda u=u: w_read(u, 0)); at(rp + 2, lambda u=u: w_read(u, 1))
    for k in range(4): at(slots[4 * u + k], lambda u=u, k=k: d_mfma(u, k))
for lo, hi, fr in ((0, B1, (OPT.get('la1', 30), OPT.get('la2', 70), OPT.get('la3', 94))), (B1, B2, (OPT.get('lb1', 35), OPT.get('lb2', 80), OPT.get('lb3', 96))),
                   (B2, NT, (OPT.get('lc1', 60), OPT.get('lc2', 87), OPT.get('lc3', 96)))):
    at(32 * lo + 1, lambda: a("s_setprio 3"))
    for k in range(3): at(32 * lo + (32 * (hi - lo) * fr[k]) // 100, lambda k=k: a(f"s_setprio {2-k}"))

tK = rdK(0); tV = rdV(None, 0)
a.wait(tK)
a(qk(SA, QA))
for t in range(NT):
    if t == B1:
        a.wait(kvtok[11]); a("s_barrier"); stamp(6)
    if t == B2:
        a.wait(kvtok[15]); a("s_barrier")
    for ph, (S, So, O, Oo, Qo) in enumerate(((SA, SB, OA, OB, QB), (SB, SA, OB, OA, QA))):
        for e in range(16):
            if e == 2:
                if ph == 0:
                    if t > 0: a(pv(Oo, V2, So + 8))
                    else: a.wait(tV)
                    tV = rdV(t, t + 1 if t + 1 < NT else None)
                else:
                    a.wait(tV, tK); a(pv(Oo, V2, So + 8))
            if (e == 5 and not (t == 0 and ph == 0)) or (t == 0 and ph == 0 and e == 0):
                if ph == 0:
                    a(qk(So, Qo))
                    if t + 1 < NT: tK = rdK(t + 1)
                elif t + 1 < NT: a(qk(So, Qo))
            if e == 11: a(pv(O, V1[t & 1], S))
            for f in ev.pop(32 * t + 16 * ph + e, []): f()
            a(f"v_exp_f32 v{S+e}, v{S+e}")
assert not ev, sorted(ev)
a(f"""
s_mul_i32 s{sT[0]}, s{sW}, 2304
s_add_u32 s{sT[0]}, s{sT[0]}, {MERGE}
""")
a(pv(OB, V2, SB + 8))
stamp(7)
a(f"""
s_xor_b32 s{sT[1]}, s{sW}, 4
s_mul_i32 s{sT[1]}, s{sT[1]}, 2304
s_add_u32 s{sT[1]}, s{sT[1]}, {MERGE}
v_add_u32 v{t0}, s{sT[0]}, v{vL16}
v_add_u32 v{t1}, s{sT[1]}, v{vL16}
v_lshl_add_u32 v{t2}, v{L}, 2, s{sT[0]}
v_lshl_add_u32 v{t3}, v{L}, 2, s{sT[1]}
s_add_u32 s{sOO}, s{sOO}, {WS_O}
s_mov_b32 s{sT[6]}, {fbits(2.0**-60):#x}
s_mov_b32 s{sT[7]}, {fbits(2.0**60):#x}
ds_write_b128 v{t0}, {vr(OB,4)}
ds_write_b128 v{t0}, {vr(OB+4,4)} offset:1024
ds_write_b32 v{t2}, v{OB+8} offset:2048
""")
a.wait_lg0()
a("s_barrier")
a(f"""
ds_read_b32 v{SB+8}, v{t3} offset:2048
ds_read_b128 {vr(SB,4)}, v{t1}
ds_read_b128 {vr(SB+4,4)}, v{t1} offset:1024
""")
a.wait_lg0()
a(f"v_add_f32 v{OA+8}, v{OA+8}, v{SB+8}")
for j in range(4): a(f"v_pk_add_f32 {vr(OA+2*j,2)}, {vr(OA+2*j,2)}, {vr(SB+2*j,2)}")
a(f"v_pk_mul_f32 {vr(t2,2)}, {vr(OA,2)}, 0 op_sel_hi:[1,0]")
for j in range(1, 4): a(f"v_pk_fma_f32 {vr(t2,2)}, {vr(OA+2*j,2)}, 0, {vr(t2,2)} op_sel_hi:[1,0,1]")
a(f"""
v_add_f32 v{t2}, v{t2}, v{t3}
v_add_f32 v{t2}, v{t2}, v{OA+8}
v_cmp_nle_f32 vcc, s{sT[6]}, v{t2}
v_cmp_nge_f32 s[{sT[2]}:{sT[3]}], s{sT[7]}, v{t2}
s_or_b64 vcc, vcc, s[{sT[2]}:{sT[3]}]
""")
if OPT['force_fb']: a("s_mov_b64 vcc, -1")
a("""
s_cbranch_vccnz L_true_max
L_norm:
""")
OS = 128
a(f"""
v_rcp_f32 v{t0}, v{OA+8}
s_nop 0
v_mul_f32 v{t0}, v{t0}, v{vG}
""")
for j in range(4): a(f"v_pk_mul_f32 {vr(OA+2*j,2)}, {vr(OA+2*j,2)}, {vr(t0,2)} op_sel_hi:[1,0]")
for j in range(4): a(f"v_cvt_pk_bf16_f32 v{OS+j}, v{OA+2*j}, v{OA+2*j+1}")
for j in range(4): a(f"v_min_u32 v{OS+j}, -2, v{OS+j}")
a(f"buffer_store_dwordx4 {vr(OS,4)}, v{vL16}, {srd(SWS)}, s{sOO} offen {'' if OPT['ofast'] else 'sc1'}")
stamp(8)

a(f"""
s_lshl_b32 s{sT[8]}, s{sW}, 13
s_xor_b32 s{sT[3]}, s{sT[8]}, 8192
v_add_u32 v{t0}, s{sT[3]}, v{vL16}
v_add_u32 v{t1}, s{sT[8]}, v{vL16}
""")
for j in range(8): a(f"ds_write_b128 v{t0}, {vr(DACC+32+4*j,4)} offset:{1024*j}")
OF, WOF, XT = 32, 176, 96
vO1 = 27
a(f"""
s_andn2_b32 s{sT[3]}, s{sRING}, 8192
v_add_u32 v24, s{sT[3]}, v{vTRP}
v_xor_b32 v25, 64, v24
v_sub_f32 v{vG}, 1.0, v{vG}
v_add_u32 v{vO1}, 4096, v{vL16}
s_and_b32 s{sT[1]}, s{sW}, 1
s_lshl1_add_u32 s{sT[0]}, s{sI}, s{sT[1]}
s_lshr_b32 s{sT[1]}, s{sW}, 1
s_lshl2_add_u32 s{sT[0]}, s{sT[0]}, s{sT[1]}
s_lshl_b32 s{sT[0]}, s{sT[0]}, 13
s_add_u32 s{sT[0]}, s{sT[0]}, {WS_O}
""")
for v in range(4):
    a(f"s_add_u32 s{sT[1]}, s{sU}, {v}\ns_and_b32 s{sT[1]}, s{sT[1]}, 3\ns_lshl_b32 s{sT[1]}, s{sT[1]}, 10\ns_add_u32 s{sT[4+v]}, s{sT[0]}, s{sT[1]}")
def o_loads():
    for v in range(8):
        a(f"buffer_load_dwordx4 {vr(OF + 4*v, 4)}, v{vO1 if v >> 2 else vL16}, {srd(SWS)}, s{sT[4 + (v&3)]} offen sc1")
a.wait(wtok[17])
if OPT.get('oearly'): o_loads()
a.wait(a.lastlg())
a("s_barrier")
if not OPT.get('oearly'): o_loads()
xt = [a(f"ds_read_b128 {vr(XT+4*j,4)}, v{t1} offset:{1024*j}") for j in range(8)]
def wo_read(v):
    slot = ((14 + v) & 3) * 2048 + (v >> 2) * 8192
    for b in range(2):
        for e in range(2):
            a(f"ds_read_b64_tr_b16 {vr(WOF + 8*v + 4*b + 2*e, 2)}, v{24 + b} offset:{slot + e*512}")
for j in range(8):
    a.wait(xt[j])
    wo_read(j)
    for i in range(2):
        r = 4 * j + 2 * i
        a(f"v_pk_add_f32 {vr(DACC+r,2)}, {vr(DACC+r,2)}, {vr(XT+r,2)}")
    for i in range(2):
        r = 4 * j + 2 * i
        a(f"v_pk_mul_f32 {vr(DACC+r,2)}, {vr(DACC+r,2)}, {vr(vG,2)} op_sel_hi:[1,0]")
a(f"""
v_and_b32 v{t0}, 31, v{L}
v_lshrrev_b32 v{t1}, 5, v{L}
v_and_b32 v{t2}, 7, v{L}
v_xor_b32 v{t1}, v{t1}, v{t2}
v_lshlrev_b32 v{t1}, 4, v{t1}
v_lshl_add_u32 v{t0}, v{t0}, 8, v{t1}
v_add_u32 v9, s{sT[8]}, v{t0}
v_xor_b32 v10, 32, v9
v_xor_b32 v11, 64, v9
v_xor_b32 v12, 0x60, v9
v_lshrrev_b32 v{t0}, 3, v{L}
v_lshlrev_b32 v{t1}, 1, v{t2}
v_xor_b32 v{t1}, v{t1}, v{t0}
v_lshlrev_b32 v{t1}, 4, v{t1}
v_lshl_add_u32 v{t1}, v{t0}, 8, v{t1}
v_add_u32 v1, s{sMX}, v{t1}
v_xor_b32 v2, 16, v1
s_lshl3_add_u32 s{sT[3]}, s{sI}, s{sW}
s_lshl_b32 s{sT[3]}, s{sT[3]}, 6
s_add_u32 s{sT[3]}, s{sT[3]}, s{sJ}
s_lshl_b32 s{sT[3]}, s{sT[3]}, 7
v_lshlrev_b32 v{t2}, 4, v{t2}
v_lshl_add_u32 v5, v{t0}, 10, v{t2}
s_mov_b32 s{sT[2]}, 0
L_s3poll:
""")
a.wait_vm0()
a(f"v_max_u32 v{t0}, v{OF}, v{OF+1}\nv_max_u32 v{t1}, v{OF+2}, v{OF+3}")
for j in range(2, 16): a(f"v_max3_u32 v{t0 + (j&1)}, v{t0 + (j&1)}, v{OF+2*j}, v{OF+2*j+1}")
a(f"""
v_max_u32 v{t0}, v{t0}, v{t1}
v_cmp_eq_u32 vcc, -1, v{t0}
s_cbranch_vccnz L_s3retry
L_s3done:
""")
stamp(10)
a.wait_lg0()
for v in range(8):
    for b in range(2):
        d = vr(DACC + 16 * b, 16)
        a(f"v_mfma_f32_32x32x16_bf16 {d}, {vr(WOF+8*v+4*b,4)}, {vr(OF+4*v,4)}, {d}")
if OPT['ofast']:
    a(f"buffer_store_dwordx4 {vr(OS,4)}, v{vL16}, {srd(SWS)}, s{sOO} offen sc1")
for b in range(2):
    for qd in range(4):
        a(f"ds_write_b128 v{9+qd}, {vr(DACC + 16*b + 4*qd, 4)} offset:{b*128}")
a.wait_lg0()
a("s_barrier")
RD = 176
rt = []
for p in range(4):
    for e in range(2):
        rt.append(a(f"ds_read_b128 {vr(RD + 8*p + 4*e, 4)}, v{1 + e} offset:{p*16384}"))
for p in range(1, 4):
    a.wait(rt[2 * p + 1])
    for j in range(4):
        a(f"v_pk_add_f32 {vr(RD+2*j,2)}, {vr(RD+2*j,2)}, {vr(RD+8*p+2*j,2)}")
for j in range(4): a(f"v_cvt_pk_bf16_f32 v{RD+j}, v{RD+2*j}, v{RD+2*j+1}")
a(f"buffer_store_dwordx4 {vr(RD,4)}, v5, {srd(SOUT)}, s{sT[3]} offen {['', 'sc1'][OPT['outm']]}")
if OPT['stamp']:
    a("s_waitcnt vmcnt(0)")
    stamp(11)
    a("s_waitcnt lgkmcnt(0)")
    a(f"s_mov_b32 s28, s{sT[2]}")
    a(f"s_lshl3_add_u32 s{sT[0]}, s2, s{sW}\ns_lshl_b32 s{sT[0]}, s{sT[0]}, 6\ns_add_u32 s{sT[0]}, s{sT[0]}, {WS_STAMP}")
    a("v_mov_b32 v1, 0\ns_mov_b64 exec, 1")
    for k in range(14):
        a(f"v_mov_b32 v2, s{4+2*k}\nbuffer_store_dword v2, v1, {srd(SWS)}, s{sT[0]} offen offset:{4*k}")
a("L_end:\ns_endpgm")
a("L_s3retry:")
if OPT['ofast']:
    a(f"""
    s_cmp_lg_u32 s{sT[2]}, 2
    s_cbranch_scc1 L_s3nowt
    buffer_store_dwordx4 {vr(OS,4)}, v{vL16}, {srd(SWS)}, s{sOO} offen sc1
    L_s3nowt:
    """)
o_loads()
a(f"""
s_add_u32 s{sT[2]}, s{sT[2]}, 1
s_cmp_lt_u32 s{sT[2]}, {SPIN}
s_cbranch_scc1 L_s3poll
s_waitcnt vmcnt(0)
s_branch L_s3done
""")

a(f"""
L_pathQ:
s_cmp_eq_u32 s{sQ}, 1
s_cbranch_scc1 L_pathV
s_cmp_eq_u32 s{sQ}, 2
s_cbranch_scc1 L_pathP
s_cmp_eq_u32 s{sQ}, 3
s_cbranch_scc1 L_pathS
""")
for P in 'KVPS':
    a(f"L_path{P}:")
    a.forget()
    proj_path(P)
    a("s_branch L_join")
for x in cold: a(x)

CM = SB
a(f"""
L_true_max:
s_waitcnt vmcnt(0) lgkmcnt(0)
v_mov_b32 v{t0}, 0xff800000
s_mov_b32 s{sT[0]}, {WS_KV}
L_tm1:
buffer_load_dwordx4 {vr(KF,4)}, v{vL16}, {srd(SWS)}, s{sT[0]} offen sc1
s_waitcnt vmcnt(0)
{qk(SA, QA)}
""")
for j in range(8): a(f"v_max3_f32 v{t0}, v{t0}, v{SA+2*j}, v{SA+2*j+1}")
a(f"""
s_add_u32 s{sT[0]}, s{sT[0]}, 2048
s_cmp_lt_u32 s{sT[0]}, {WS_KV + 64*2048}
s_cbranch_scc1 L_tm1
v_mov_b32 v{t1}, v{t0}
v_permlane32_swap_b32 v{t0}, v{t1}
v_max_f32 v{t0}, v{t0}, v{t1}
""")
for r in range(16): a(f"v_sub_f32 v{CM+r}, 0, v{t0}\nv_mov_b32 v{OA+r}, 0")
a(f"""
s_mov_b32 s{sT[0]}, {WS_KV}
L_tm2:
buffer_load_dwordx4 {vr(KF,4)}, v{vL16}, {srd(SWS)}, s{sT[0]} offen sc1
s_mov_b64 exec, s[{sT[8]}:{sT[9]}]
buffer_load_dwordx4 {vr(V1[0],4)}, v{vPV}, {srd(SWS)}, s{sT[0]} offen offset:1024 sc1
buffer_load_dwordx4 {vr(V2,4)}, v{vPV}, {srd(SWS)}, s{sT[0]} offen offset:1536 sc1
s_mov_b64 exec, -1
s_waitcnt vmcnt(0)
v_mfma_f32_32x32x16_bf16 {vr(SA,16)}, {vr(KF,4)}, {vr(QA,4)}, {vr(CM,16)}
""")
for e in range(16): a(f"v_exp_f32 v{SA+e}, v{SA+e}")
a(pv(OA, V1[0], SA)); a(pv(OA, V2, SA + 8))
a(f"""
s_add_u32 s{sT[0]}, s{sT[0]}, 2048
s_cmp_lt_u32 s{sT[0]}, {WS_KV + 64*2048}
s_nop 7
s_cbranch_scc1 L_tm2
s_nop 7
s_branch L_norm
L_last:
""")

bad = a.check_branches()
assert not bad, bad

hdr = open(f'cdna_kernels/{NAME}.s.ref').read().split('\n')
head = [l for l in hdr if l.startswith(';') and '@launch' not in l]
out = "\n".join(head) + f"\n; @launch grid=(256,1,1) block=(512,1,1) lds={LDS_BYTES}\n"
out += f""".amdgcn_target "amdgcn-amd-amdhsa--gfx950"
.text
.globl {NAME}_kernel
.p2align 8
.type {NAME}_kernel,@function
{NAME}_kernel:
{a.text()}
.section .rodata,"a"
.p2align 6
.amdhsa_kernel {NAME}_kernel
  .amdhsa_next_free_vgpr 256
  .amdhsa_next_free_sgpr 102
  .amdhsa_accum_offset 256
  .amdhsa_group_segment_fixed_size 0
  .amdhsa_kernarg_size 104
  .amdhsa_user_sgpr_count 2
  .amdhsa_user_sgpr_kernarg_segment_ptr 1
  .amdhsa_system_sgpr_workgroup_id_x 1
.end_amdhsa_kernel
"""
open(sys.argv[1], 'w').write(out)
print("instructions:", sum(1 for i in a.ins if i.ws), "auto nops:", a.nnop, file=sys.stderr)
```

```python
import sys, math, struct
sys.path.insert(0, 'gen')
from asmlib import Asm

NAME = 'gated_mix__grouped_kv_mqa__geglu_ffn__prompt'
OPT = dict(stamp=0, grp=0, force_fb=0, qflag=11, s1=16, b2=22, outm=1, ofast=0,
           p_kv=40, p_kvs=10, p_flag=112, p_fill=120, p_fills=40, p_kv2=272, p_f2=300, p_chk=340, d0=12, dend=32,
           late=1, pk2=1, nearly=1, h0w=27, h1w=30, clw=25, qw=20, na=1, gend=30, q12=10, q14=11, qc=14, qin=0, dwt=4, qbar=0, cpf=1)
for x in sys.argv[2:]:
    k, v = x.split('='); OPT[k] = int(v)

def fbits(x): return struct.unpack('<I', struct.pack('<f', x))[0]

WS_KV, WS_G, WS_F1, WS_Q, WS_O, WS_H, WS_STAMP = 0, 0x20000, 0x30000, 0x100000, 0x300000, 0x500000, 0xC00000
WS_F2 = WS_F1 + 8192
WS_SIZE = 0x1000000
CLEAR_WG = 64
WR, EX = 65536, 131072
NSLOT, HALF, RING = 24, 49152, 98304
MERGE = 65536
LDS_BYTES = 163840
SPIN = 0x40000
SX, SWG, SWU, SWQ, SEX, SWS, SDBG, SWD, SWO, SOUT = 32, 36, 40, 44, 48, 52, 56, 60, 64, 92
sW, sTI, sQ, sU, sROT, sXO, sWOF, sMX, sMW, sI, sJ, sROT0 = range(68, 80)
sT = list(range(80, 90))
sEXW, sEXO = 90, 91
sC1 = 96
sF2, sRH, sRING, sOO = 98, 99, 100, 101
sHO = 3
sKVM, sKVO, sQA, sGA = 32, 33, 34, 35
sRW, sWB, sF2R = 44, 45, 46
def srd(n): return f"s[{n}:{n+3}]"
def vr(b, n): return f"v[{b}:{b+n-1}]"

vXS0, vXS1, vWS = 1, 2, 3
vST = 4
vXR = [5, 6, 7, 8]
vWR = [9, 10]
vES, vER, vSA = 11, [12, 13], 30
vL16, vLANE = 14, 15
vC0 = 16
vZ = 17
vGT = 18
t0, t1, t2, t3 = 20, 21, 22, 23
vS0 = 28
vPV, vPD, vTRP = 29, 0, 31
F = [32, 48]
ACC = [64, 96]
XF = 128
ACCE, WE = 96, 100
CNT = 147456
GW = CNT + 1024
ACCG, WG = 64, 68
L = vLANE
QA, QB, KF, V2, V1 = 128, 132, 136, 140, [144, 148]
vG, vIDX, vAK, vAV, vKVS = 152, 154, 155, 156, 157
vDR0, vDR1, vH0, vH1 = 159, 160, 161, 162
vDS, vF2 = vPD, vL16
F2D = 164
OA, OB, SA, SB = 176, 192, 208, 224
WF = [240, 248]
HF = [32, 40, 48, 56]
DACC = 64

a = Asm()
CLK = 's_memtime' if OPT['stamp'] == 2 else 's_memrealtime'
def stamp(k, grp=0):
    if grp != OPT['grp'] and k != 11: return
    if OPT['stamp']: a(f"{CLK} s[{4+2*k}:{5+2*k}]")
def mk_srd(n, p, size):
    a(f"s_mov_b32 s{n}, s{p}\ns_mov_b32 s{n+1}, s{p+1}\ns_mov_b32 s{n+2}, {size}\ns_mov_b32 s{n+3}, 0x20000")

PG = 3584
C0 = -2.0 * math.sqrt(2.0 / math.pi) * math.log2(math.e)
C1 = C0 * 0.044715
QS = 0.25 * math.log2(math.e)

a("s_cmp_ge_u32 s2, 256\ns_cbranch_scc1 L_end")
a("s_load_dwordx16 s[4:19], s[0:1], 0\ns_load_dwordx8 s[20:27], s[0:1], 64\ns_load_dwordx2 s[28:29], s[0:1], 96")
if OPT['stamp']: a(f"{CLK} s[30:31]")
a(f"v_lshrrev_b32 v1, 6, v0\nv_and_b32 v{L}, 63, v0\nv_readfirstlane_b32 s{sW}, v1")
a(f"""
s_and_b32 s{sT[0]}, s2, 7
s_lshr_b32 s{sT[1]}, s2, 3
s_and_b32 s{sJ}, s{sT[1]}, 7
s_lshr_b32 s{sU}, s{sT[1]}, 3
s_lshr_b32 s{sQ}, s{sT[0]}, 1
s_and_b32 s{sT[2]}, s{sT[0]}, 1
s_lshl_b32 s{sT[2]}, s{sT[2]}, 3
s_add_u32 s{sTI}, s{sT[2]}, s{sJ}
s_lshl2_add_u32 s{sI}, s{sT[0]}, s{sU}
s_lshl1_add_u32 s{sROT}, s{sU}, s{sJ}
s_and_b32 s{sROT}, s{sROT}, 7
s_mov_b32 s{sROT0}, s{sROT}
s_lshl_b32 s{sMX}, s{sW}, 11
s_lshl_b32 s{sMW}, s{sW}, 10
""")
a(f"""
v_lshlrev_b32 v{vL16}, 4, v{L}
v_lshrrev_b32 v{t0}, 3, v{L}
v_and_b32 v{t1}, 7, v{L}
v_lshrrev_b32 v{t2}, 4, v{L}
s_lshl3_add_u32 s{sT[0]}, s{sTI}, s{sW}
s_lshl_b32 s{sT[0]}, s{sT[0]}, 14
v_xor_b32 v{t3}, v{t1}, v{t2}
v_lshlrev_b32 v{t3}, 4, v{t3}
v_lshl_add_u32 v{vXS0}, v{t0}, 10, v{t3}
v_add_u32 v{vXS0}, s{sT[0]}, v{vXS0}
v_xor_b32 v{vXS1}, 64, v{vXS0}
v_add_u32 v{vXS1}, 8192, v{vXS1}
""")
def w_src(pitch, col):
    return f"""
    v_lshrrev_b32 v{t0}, 3, v{L}
    s_lshl_b32 s{sT[0]}, s{sW}, 3
    v_add_u32 v{t0}, s{sT[0]}, v{t0}
    v_mul_u32_u24 v{t0}, s{pitch}, v{t0}
    v_and_b32 v{t1}, 7, v{L}
    v_bfe_u32 v{t2}, v{L}, 4, 1
    v_lshlrev_b32 v{t2}, 1, v{t2}
    v_xor_b32 v{t1}, v{t1}, v{t2}
    s_and_b32 s{sT[0]}, s{sW}, 1
    s_lshl_b32 s{sT[0]}, s{sT[0]}, 2
    v_xor_b32 v{t1}, s{sT[0]}, v{t1}
    v_lshl_add_u32 v{t0}, v{t1}, 4, v{t0}
    v_add_u32 v{vWS}, s{col}, v{t0}
    """
a(f"""
s_mul_i32 s{sT[1]}, s{sQ}, 7
s_lshl1_add_u32 s{sT[1]}, s{sU}, s{sT[1]}
s_sub_u32 s{sT[1]}, s{sT[1]}, 1
s_lshl_b32 s{sT[1]}, s{sT[1]}, 7
s_lshl_b32 s{sT[2]}, s{sQ}, 8
s_movk_i32 s{sT[3]}, {PG}
s_cmp_eq_u32 s{sU}, 0
s_cselect_b32 s{sT[1]}, s{sT[2]}, s{sT[1]}
s_cselect_b32 s{sT[3]}, 1024, s{sT[3]}
""")
a(w_src(sT[3], sT[1]))
a(f"""
s_mov_b32 s{SX+2}, {2048*1024}
s_mov_b32 s{SX+3}, 0x20000
s_lshl_b32 s{SWG+2}, s{sT[3]}, 9
s_mov_b32 s{SWG+3}, 0x20000
s_mov_b32 s{SWU+2}, s{SWG+2}
s_mov_b32 s{SWU+3}, 0x20000
s_lshl_b32 s{sXO}, s{sROT}, 7
s_mul_i32 s{sWOF}, s{sROT}, s{sT[3]}
s_lshl_b32 s{sWOF}, s{sWOF}, 6
s_add_u32 s{sT[1]}, s{sWOF}, 128
s_add_u32 s{sROT}, s{sROT}, 1
s_and_b32 s{sROT}, s{sROT}, 7
s_mov_b32 m0, s{sMX}
s_cmp_eq_u32 s{sU}, 0
s_cselect_b32 s{sT[1]}, s{sT[1]}, s{sWOF}
s_waitcnt lgkmcnt(0)
s_mov_b64 s[{SX}:{SX+1}], s[4:5]
s_cselect_b64 s[{SWG}:{SWG+1}], s[6:7], s[16:17]
s_cselect_b64 s[{SWU}:{SWU+1}], s[6:7], s[18:19]
buffer_load_dwordx4 v{vXS0}, {srd(SX)}, s{sXO} offen lds
s_add_u32 m0, s{sMW}, {WR}
s_nop 0
buffer_load_dwordx4 v{vWS}, {srd(SWG)}, s{sWOF} offen lds
s_add_u32 m0, s{sMW}, {WR + 8192}
s_nop 0
buffer_load_dwordx4 v{vWS}, {srd(SWU)}, s{sT[1]} offen lds
s_add_u32 m0, s{sMX}, 1024
s_nop 0
buffer_load_dwordx4 v{vXS1}, {srd(SX)}, s{sXO} offen lds
""")
if OPT['cpf']:
    a(f"""
    s_getpc_b64 s[{sT[0]}:{sT[1]}]
    L_pc:
    s_sub_u32 s{sT[0]}, s{sT[0]}, L_pc-{NAME}_kernel
    s_subb_u32 s{sT[1]}, s{sT[1]}, 0
    s_andn2_b32 s{sT[2]}, s2, 7
    s_add_u32 s{sT[2]}, s{sT[2]}, s{sW}
    s_lshl_b32 s{sT[2]}, s{sT[2]}, 7
    v_lshl_add_u32 v{t0}, v{L}, 15, s{sT[2]}
    v_min_u32 v{t0}, L_last-{NAME}_kernel-4, v{t0}
    s_mov_b64 exec, 3
    global_load_dword v{vS0}, v{t0}, s[{sT[0]}:{sT[1]}]
    s_mov_b64 exec, -1
    """)
a(f"""
s_lshl2_add_u32 s{sT[0]}, s{sU}, s{sQ}
s_cmp_eq_u32 s{sT[0]}, 0
s_cbranch_scc1 L_pathK
s_cmp_eq_u32 s{sT[0]}, 1
s_cbranch_scc1 L_pathV
s_cmp_eq_u32 s{sT[0]}, 2
s_cbranch_scc1 L_pathP
s_cmp_eq_u32 s{sT[0]}, 3
s_cbranch_scc1 L_pathS
""")

PATH = ['G']
def wslot(sig):
    if sig < 8: return WR + (sig & 3) * 16384
    if sig >= 14: return EX + (sig - (14 if PATH[0] == 'G' else 15)) * 16384
    return (0 if sig & 1 else WR) + ((sig - 8) >> 1) * 16384
def waddr(sig, b):
    return {0: vXR[b], 1: vWR[b], 2: vXR[2 + b]}[wslot(sig) >> 16]

def dma_ops(sig, path):
    p = sig >> 3
    isq = (path != 'G' and p == 0)
    pitch = 1024 if isq else PG
    sa, sb = (SWQ, SWQ) if isq else (SWG, SWU)
    xs, ws = (sig & 3) * 16384, wslot(sig)
    pre = f"s_mul_i32 s{sWOF}, s{sROT}, {64*pitch}\n"
    if path == 'G' and p == 1: pre += f"s_add_u32 s{sWOF}, s{sWOF}, 128\n"
    mid = f"s_add_u32 s{sWOF}, s{sWOF}, 128\n" if isq else ""
    inc, wrap = f"s_add_u32 s{sROT}, s{sROT}, 1\n", f"s_and_b32 s{sROT}, s{sROT}, 7\n"
    wa = f"s_add_u32 m0, s{sMW}, {ws}\n{{}}buffer_load_dwordx4 v{vWS}, {srd(sa)}, s{sWOF} offen lds"
    wb = f"s_add_u32 m0, s{sMW}, {ws+8192}\n{{}}buffer_load_dwordx4 v{vWS}, {srd(sb)}, s{sWOF} offen lds"
    if p == 0:
        return [f"s_add_u32 m0, s{sMX}, {xs}\ns_lshl_b32 s{sXO}, s{sROT}, 7\nbuffer_load_dwordx4 v{vXS0}, {srd(SX)}, s{sXO} offen lds",
                wa.format(pre), wb.format(mid + inc),
                f"s_add_u32 m0, s{sMX}, {xs+1024}\n{wrap}buffer_load_dwordx4 v{vXS1}, {srd(SX)}, s{sXO} offen lds"]
    return [wa.format(pre), wb.format(inc + wrap)]

def setup_while_waiting(P):
    mk_srd(SWS, 28, WS_SIZE); mk_srd(SDBG, 26, 256); mk_srd(SWD, 20, 1792 * 1024); mk_srd(SWO, 12, 512 * 1024); mk_srd(SOUT, 24, 2048 * 1024)
    a(f"""
    s_and_b32 s{sT[0]}, s{sW}, 3
    s_lshr_b32 s{sT[1]}, s{sW}, 2
    s_lshl1_add_u32 s{sT[0]}, s{sT[0]}, s{sT[1]}
    s_lshl_b32 s{sT[0]}, s{sT[0]}, 11
    v_and_b32 v{t0}, 15, v{L}
    v_bfe_u32 v{t1}, v{L}, 1, 3
    v_lshrrev_b32 v{t2}, 4, v{L}
    v_xor_b32 v{t1}, v{t1}, v{t2}
    v_lshlrev_b32 v{t1}, 4, v{t1}
    v_lshl_add_u32 v{t1}, v{t0}, 7, v{t1}
    v_add_u32 v{vXR[0]}, s{sT[0]}, v{t1}
    v_xor_b32 v{vXR[1]}, 0x800, v{vXR[0]}
    v_xor_b32 v{vXR[2]}, 64, v{vXR[0]}
    v_xor_b32 v{vXR[3]}, 64, v{vXR[1]}
    s_lshl_b32 s{sT[2]}, s{sT[1]}, 8
    v_xor_b32 v{vST}, s{sT[2]}, v{vL16}
    """)
    a(f"""
    v_lshrrev_b32 v{t3}, 5, v{L}
    v_lshlrev_b32 v{t0}, 4, v{t0}
    v_lshl_add_u32 v{vPV}, v{t3}, 8, v{t0}
    """)
    a(f"""
    v_bfe_u32 v{t0}, v{L}, 2, 2
    v_lshl_add_u32 v{t1}, v{t2}, 3, v{t0}
    v_lshlrev_b32 v{t1}, 7, v{t1}
    v_bfe_u32 v{t2}, v{L}, 3, 2
    s_lshl_b32 s{sT[1]}, s{sT[1]}, 1
    v_xor_b32 v{t2}, s{sT[1]}, v{t2}
    v_lshl_add_u32 v{t1}, v{t2}, 5, v{t1}
    v_and_b32 v{t2}, 3, v{L}
    v_lshl_add_u32 v{t1}, v{t2}, 3, v{t1}
    v_add_u32 v{vWR[0]}, {WR}, v{t1}
    v_xor_b32 v{vWR[1]}, 32, v{vWR[0]}
    """)
    a(f"""
    v_lshl_add_u32 v{t3}, v{t3}, 3, v{t0}
    v_lshlrev_b32 v{t3}, 7, v{t3}
    v_lshrrev_b32 v{t0}, 1, v{t0}
    v_lshl_add_u32 v{t3}, v{t0}, 6, v{t3}
    v_lshl_add_u32 v{t3}, v{t2}, 3, v{t3}
    v_bfe_u32 v{t2}, v{L}, 4, 1
    v_lshl_add_u32 v{vTRP}, v{t2}, 5, v{t3}
    v_lshlrev_b32 v{t2}, 2, v{t2}
    v_and_b32 v{t1}, 7, v{L}
    v_xor_b32 v{t1}, v{t1}, v{t2}
    v_lshlrev_b32 v{t1}, 4, v{t1}
    v_lshrrev_b32 v{t0}, 3, v{L}
    v_lshl_add_u32 v{t0}, v{t0}, 10, v{t1}
    s_lshl_b32 s{sT[0]}, s{sJ}, 7
    v_add_u32 v{vPD}, s{sT[0]}, v{t0}
    v_mov_b32 v{vZ}, 0
    v_mov_b32 v{vC0}, {fbits(C0):#x}
    s_mov_b32 s{sC1}, {fbits(C1):#x}
    s_mov_b32 s{sC1+1}, {fbits(C1):#x}
    """)
    a(f"""
    s_lshr_b32 s{sT[3]}, s{sW}, 2
    s_and_b32 s{sT[1]}, s{sW}, 3
    s_lshl2_add_u32 s{sT[0]}, s{sTI}, s{sT[1]}
    s_lshl_b32 s{sT[8]}, s{sT[0]}, 5
    s_mul_i32 s{sT[0]}, s{sT[0]}, 112
    s_mul_i32 s{sT[1]}, s{sQ}, 28
    s_add_u32 s{sT[0]}, s{sT[0]}, s{sT[1]}
    s_lshl3_add_u32 s{sT[0]}, s{sU}, s{sT[0]}
    s_lshl1_add_u32 s{sT[0]}, s{sT[3]}, s{sT[0]}
    s_lshl_b32 s{sT[0]}, s{sT[0]}, 10
    s_add_u32 s{sHO}, s{sT[0]}, {WS_H}
    s_lshl3_add_u32 s{sT[4]}, s{sQ}, s{sT[8]}
    s_lshl1_add_u32 s{sT[4]}, s{sT[3]}, s{sT[4]}
    s_lshl_b32 s{sT[4]}, s{sT[4]}, 10
    s_lshl2_add_u32 s{sT[1]}, s{sQ}, s{sU}
    s_lshl4_add_u32 s{sF2}, s{sTI}, s{sT[1]}
    s_lshl3_add_u32 s{sF2}, s{sF2}, s{sW}
    s_lshl_b32 s{sF2}, s{sF2}, 2
    s_add_u32 s{sF2}, s{sF2}, {WS_F2}
    s_lshl1_add_u32 s{sT[9]}, s{sT[1]}, s{sT[8]}
    s_add_u32 s{sT[9]}, s{sT[9]}, s{sT[3]}
    s_lshl_b32 s{sT[9]}, s{sT[9]}, 10
    s_add_u32 s{sT[9]}, s{sT[9]}, {WS_O}
    s_and_b32 s{sT[1]}, s{sW}, 1
    s_lshl1_add_u32 s{sT[1]}, s{sI}, s{sT[1]}
    s_lshl3_add_u32 s{sT[2]}, s{sT[1]}, s{sJ}
    s_lshl_b32 s{sT[2]}, s{sT[2]}, 2
    s_and_b32 s{sT[1]}, s{sW}, 2
    s_add_u32 s{sT[2]}, s{sT[2]}, s{sT[1]}
    s_add_u32 s{sT[2]}, s{sT[2]}, s{sT[3]}
    s_lshl_b32 s{sOO}, s{sT[2]}, 10
    s_lshl_b32 s{sRING}, s{sW}, 13
    s_add_u32 s{sRING}, s{sRING}, {RING}
    s_mul_i32 s{sRH}, s{sJ}, 7
    s_lshr_b32 s{sRH}, s{sRH}, 2
    s_mul_i32 s{sT[1]}, s{sU}, 7
    s_lshr_b32 s{sT[1]}, s{sT[1]}, 1
    s_add_u32 s{sRH}, s{sRH}, s{sT[1]}
    s_cmp_ge_u32 s{sRH}, 14
    s_cselect_b32 s{sT[1]}, 14, 0
    s_sub_u32 s{sRH}, s{sRH}, s{sT[1]}
    s_lshl_b32 s{sRH}, s{sRH}, 10
    """)
    if P in 'KV':
        a(f"""
        v_lshrrev_b32 v{t2}, 4, v{L}
        v_and_b32 v{t0}, 15, v{L}
        v_lshlrev_b32 v{t1}, 3, v{t0}
        v_lshl_add_u32 v{t1}, v{t2}, 8, v{t1}
        v_and_b32 v{t3}, 1, v{t2}
        v_lshl_add_u32 v{t1}, v{t3}, 7, v{t1}
        v_add_u32 v{vER[0]}, {EX}, v{t1}
        v_xor_b32 v{vER[1]}, 0x80, v{vER[0]}
        v_lshlrev_b32 v{t1}, 7, v{t3}
        v_xor_b32 v{vES}, v{t1}, v{vL16}
        s_add_u32 s{sEXO}, s{sW}, s{sROT0}
        s_and_b32 s{sEXO}, s{sEXO}, 7
        s_lshl_b32 s{sEXO}, s{sEXO}, 11
        s_lshr_b32 s{sEXW}, s{sT[4]}, 15
        v_lshrrev_b32 v{t2}, 1, v{t2}
        """)
        if P == 'K':
            a(f"""
            s_lshl3_add_u32 s{sEXW}, s{sEXW}, s{sT[3]}
            s_lshl_b32 s{sEXW}, s{sEXW}, 8
            v_lshlrev_b32 v{t2}, 9, v{t2}
            """)
        else:
            a(f"""
            s_lshl2_add_u32 s{sEXW}, s{sEXW}, s{sT[3]}
            s_lshl_b32 s{sEXW}, s{sEXW}, 9
            s_add_u32 s{sEXW}, s{sEXW}, 1024
            v_lshlrev_b32 v{t2}, 8, v{t2}
            v_and_b32 v{t0}, 3, v{L}
            v_bfe_u32 v{t1}, v{L}, 2, 1
            v_lshl_add_u32 v{t0}, v{t1}, 3, v{t0}
            v_bfe_u32 v{t1}, v{L}, 3, 1
            v_lshl_add_u32 v{t0}, v{t1}, 2, v{t0}
            """)
        a(f"""
        v_lshl_add_u32 v{t2}, v{t0}, 4, v{t2}
        v_lshl_add_u32 v{vSA}, v{t3}, 3, v{t2}
        """)
    if P == 'S':
        a(f"""
        s_lshl_b32 s{sEXO}, s{sROT0}, 7
        v_add_u32 v{vES}, s{sEXO}, v{vL16}
        v_and_b32 v{vES}, 0x3ff, v{vES}
        v_and_b32 v{t0}, 48, v{L}
        v_add_u32 v{vER[0]}, {GW}, v{t0}
        v_and_b32 v{t0}, 15, v{L}
        v_lshlrev_b32 v{vSA}, 2, v{t0}
        s_lshr_b32 s{sEXW}, s{sT[4]}, 15
        s_lshl1_add_u32 s{sEXW}, s{sEXW}, s{sT[3]}
        s_lshl_b32 s{sEXW}, s{sEXW}, 6
        s_add_u32 s{sEXW}, s{sEXW}, {WS_G}
        """)

def x_reads(sig, j):
    return [f"ds_read_b128 {vr(XF + 16*sig + 8*j + 4*tq, 4)}, v{vXR[2*j+tq]} offset:{(sig & 3) * 16384}" for tq in range(2)]
def w_reads(sig, j, i):
    b, part = i >> 1, i & 1
    off = (wslot(sig) & 0xffff) + part * 8192 + j * 4096
    return [f"ds_read_b64_tr_b16 {vr(F[j] + 4*i + 2*e, 2)}, v{waddr(sig, b)} offset:{off + e*512}" for e in range(2)]
def e_steps(c):
    if PATH[0] in 'KV': return [2 * (c - 6), 2 * (c - 6) + 1] if 6 <= c < 12 else ([c] if 12 <= c < 16 else [])
    if PATH[0] == 'S': return {18: [0, 1, 2, 3], 19: [4, 5], 20: [6, 7], 21: [8], 22: [9, 10], 23: [11], 24: [12, 13], 25: [14], 26: [15]}.get(c, [])
    return []
def e_reads(c):
    if PATH[0] == 'S':
        return [f"ds_read_b128 {vr(WG + (0 if c == 18 else 16 if c & 1 else 0) + 4*i, 4)}, v{vER[0]} offset:{k*64}" for i, k in enumerate(e_steps(c))]
    return [f"ds_read_b64_tr_b16 {vr(WE + 8*(c&1) + 4*i + 2*e, 2)}, v{vER[e]} offset:{k*1024}" for i, k in enumerate(e_steps(c)) for e in range(2)]
def e_mfmas(c):
    out = []
    for i, k in enumerate(e_steps(c)):
        acc = vr(ACCG if PATH[0] == 'S' else ACCE, 4)
        w = vr(WG + (16 if c & 1 else 0) + 4 * i, 4) if PATH[0] == 'S' else vr(WE + 8 * (c & 1) + 4 * i, 4)
        x = vr(XF + 8 * k, 4)
        A, B = (x, w) if PATH[0] == 'V' else (w, x)
        out.append(f"v_mfma_f32_16x16x32_bf16 {acc}, {A}, {B}, {'0' if k == 0 else acc}")
    return out
def mfmas(sig, j):
    out = []
    for i in range(4):
        for tq in range(2):
            d = vr(ACC[sig >> 3] + 8 * i + 4 * tq, 4)
            c = "0" if ((sig & 7) == 0 and j == 0) else d
            out.append(f"v_mfma_f32_16x16x32_bf16 {d}, {vr(F[j] + 4*i, 4)}, {vr(XF + 16*(sig&7) + 8*j + 4*tq, 4)}, {c}")
    return out

def gelu_pair(base, j, T=vGT, pk=False):
    G = vr(base + 2 * j, 2); U = vr(base + 8 + 2 * j, 2); TT = vr(T, 2)
    g0, g1, u0, u1 = base + 2 * j, base + 2 * j + 1, base + 8 + 2 * j, base + 9 + 2 * j
    if pk:
        return [f"v_pk_mul_f32 {TT}, {G}, {G}",
                f"v_pk_fma_f32 {TT}, {TT}, s[{sC1}:{sC1+1}], {vr(vC0,2)} op_sel_hi:[1,1,0]",
                f"v_pk_mul_f32 {TT}, {TT}, {G}",
                f"v_exp_f32 v{T}, v{T}", f"v_exp_f32 v{T+1}, v{T+1}",
                f"v_pk_mul_f32 {G}, {G}, {U}",
                f"v_pk_add_f32 {TT}, {TT}, 1.0 op_sel_hi:[1,0]",
                f"v_rcp_f32 v{T}, v{T}", f"v_rcp_f32 v{T+1}, v{T+1}",
                f"v_pk_mul_f32 {G}, {G}, {TT}",
                f"v_cvt_pk_bf16_f32 v{base+j}, v{g0}, v{g1}"]
    return [f"v_mul_f32 v{T}, v{g0}, v{g0}", f"v_mul_f32 v{T+1}, v{g1}, v{g1}",
            f"v_fma_f32 v{T}, v{T}, s{sC1}, v{vC0}", f"v_fma_f32 v{T+1}, v{T+1}, s{sC1}, v{vC0}",
            f"v_mul_f32 v{T}, v{T}, v{g0}", f"v_mul_f32 v{T+1}, v{T+1}, v{g1}",
            f"v_exp_f32 v{T}, v{T}", f"v_exp_f32 v{T+1}, v{T+1}",
            f"v_mul_f32 v{g0}, v{g0}, v{u0}", f"v_add_f32 v{T}, 1.0, v{T}", f"v_add_f32 v{T+1}, 1.0, v{T+1}",
            f"v_rcp_f32 v{T}, v{T}", f"v_rcp_f32 v{T+1}, v{T+1}",
            f"v_mul_f32 v{g1}, v{g1}, v{u1}",
            f"v_mul_f32 v{g0}, v{g0}, v{T}", f"v_mul_f32 v{g1}, v{g1}, v{T+1}",
            f"v_cvt_pk_bf16_f32 v{base+j}, v{g0}, v{g1}"]
def to_frag(base):
    return [f"v_permlane16_swap_b32 v{base}, v{base+2}", f"v_permlane16_swap_b32 v{base+1}, v{base+3}"]

def cost(x):
    c = 0
    for l in x.strip().split('\n'):
        l = l.strip()
        if not l or l.startswith(';') or l.endswith(':'): continue
        c += 8 if l.startswith(('v_exp', 'v_rcp')) else (OPT.get('vmc', 16) if l.startswith('buffer_') else 4)
    return c

kvtok = {}
def kv_step(m):
    slot = (2 * m % NSLOT) * 2048
    if m == 0: x = f"s_mov_b32 m0, s{sKVM}\ns_nop 0\n"
    else: x = f"s_add_u32 s{sKVO}, s{sKVO}, 4096\ns_add_u32 m0, s{sKVM}, {slot}\ns_and_b32 s{sKVO}, s{sKVO}, 0xffff\n"
    return x + f"buffer_load_dwordx4 v{vKVS}, {srd(SWS)}, s{sKVO} offen sc1 lds"
KV_FIRST = 5
def first_loads():
    l = [f"buffer_load_dwordx4 {vr(QA,4)}, v{vL16}, {srd(SWS)}, s{sQA} offen sc1", kv_step(0),
         f"s_xor_b32 s{sQA}, s{sQA}, 1024\nbuffer_load_dwordx4 {vr(QB,4)}, v{vL16}, {srd(SWS)}, s{sQA} offen sc1"]
    return l + [kv_step(m) for m in range(1, KV_FIRST)]

def setup_queue():
    q = []
    def add(st, txt):
        for l in txt.strip().split('\n'): q.append((st, l.strip().replace('|', '\n')))
    add(11, f"""
    s_lshr_b32 s{sT[3]}, s{sW}, 2
    s_and_b32 s{sT[5]}, s{sW}, 1
    s_lshl_b32 s{sT[6]}, s{sT[3]}, 16
    s_lshl_b32 s{sT[7]}, s{sT[5]}, 10
    s_add_u32 s{sT[6]}, s{sT[6]}, s{sT[7]}
    v_add_u32 v{vKVS}, s{sT[6]}, v{vL16}
    s_mul_i32 s{sT[3]}, s{sT[3]}, {HALF}
    v_add_u32 v{vAK}, s{sT[3]}, v{vL16}
    v_add_u32 v{vAV}, s{sT[3]}, v{vPV}
    s_and_b32 s{sT[6]}, s{sW}, 3
    s_lshl_b32 s{sT[6]}, s{sT[6]}, 10
    s_add_u32 s{sKVM}, s{sT[6]}, s{sT[3]}
    s_bfe_u32 s{sT[6]}, s{sW}, 0x10001
    s_lshr_b32 s{sT[7]}, s2, 3
    s_add_u32 s{sT[6]}, s{sT[6]}, s{sT[7]}
    s_and_b32 s{sT[6]}, s{sT[6]}, 31
    s_lshl_b32 s{sKVO}, s{sT[6]}, 11
    s_add_u32 s{sQA}, s{sOO}, {WS_Q}
    s_lshl1_add_u32 s{sGA}, s{sI}, s{sT[5]}
    s_lshl_b32 s{sGA}, s{sGA}, 7
    s_add_u32 s{sGA}, s{sGA}, {WS_G}
    v_and_b32 v{vG}, 31, v{L}
    v_lshlrev_b32 v{vG}, 2, v{vG}
    v_mov_b32 v{vIDX}, 0xdddddddd
    v_mov_b32 v{V2+1}, 0x3f803f80
    s_mov_b32 vcc_lo, 0x110000|s_mov_b32 vcc_hi, 0x110000|v_cndmask_b32 v{V2}, 0, v{V2+1}, vcc
    """)
    for r in range(V2 + 1, V2 + 12): add(11, f"v_mov_b32 v{r}, v{V2}")
    add(12, f"""
    v_add_u32 v{vDR0}, s{sRING}, v{vTRP}
    v_xor_b32 v{vDR1}, 64, v{vDR0}
    s_mul_i32 s{sT[6]}, s{sT[5]}, {112*1024}
    s_mul_i32 s{sT[7]}, s{sI}, 224
    s_mul_i32 s{sWB}, s{sW}, 14
    s_add_u32 s{sT[7]}, s{sT[7]}, s{sWB}
    s_lshl_b32 s{sT[7]}, s{sT[7]}, 10
    s_add_u32 s{sT[7]}, s{sT[7]}, {WS_H}
    s_add_u32 s{sT[3]}, s{sT[7]}, s{sT[6]}
    v_add_u32 v{vH0}, s{sT[3]}, v{vL16}
    s_sub_u32 s{sT[3]}, s{sT[7]}, s{sT[6]}
    s_add_u32 s{sT[3]}, s{sT[3]}, {112*1024}
    v_add_u32 v{vH1}, s{sT[3]}, v{vL16}
    s_lshl_b32 s{sWB}, s{sWB}, 14
    s_mov_b32 s{sRW}, s{sRH}
    s_lshr_b32 s{sF2R}, s{sI}, 1
    s_lshl_b32 s{sF2R}, s{sF2R}, 9
    s_add_u32 s{sF2R}, s{sF2R}, {WS_F2}
    """)
    for r in range(9): add(13, f"v_mov_b32 v{OA+r}, 0")
    for r in range(9): add(14, f"v_mov_b32 v{OB+r}, 0")
    return q

cold = []
def s0_check(P):
    a(f"v_cmp_eq_u32 vcc, 0, v{vS0}\ns_cbranch_vccnz L_s0retry{P}\nL_s0done{P}:")
    cold.append(f"""
    L_s0retry{P}:
    s_mov_b32 s{sT[1]}, 0
    L_s0poll{P}:
    buffer_load_dword v{vS0}, v{vZ}, {srd(SDBG)}, 0 offen sc1
    s_add_u32 s{sT[1]}, s{sT[1]}, 1
    s_waitcnt vmcnt(0)
    v_cmp_eq_u32 vcc, 0, v{vS0}
    s_cbranch_vccz L_s0done{P}
    s_cmp_lt_u32 s{sT[1]}, {SPIN}
    s_cbranch_scc1 L_s0poll{P}
    s_branch L_s0done{P}
    """)
def s1_issue(P):
    a(f"s_cmp_lg_u32 s{sW}, 0\ns_cbranch_scc1 L_nopoll0{P}")
    if P == 'G': s0_check(P)
    a(f"""
    s_lshr_b32 s{sT[0]}, s{sI}, 1
    s_lshr_b32 s{sT[1]}, s{sJ}, 1
    s_lshl4_add_u32 s{sT[0]}, s{sT[1]}, s{sT[0]}
    s_lshl_b64 s[{sT[0]}:{sT[1]}], 1, s{sT[0]}
    s_mov_b32 s{sT[0]}, s{sT[1]}
    s_mov_b32 s{sT[1]}, {WS_F1}
    v_lshlrev_b32 v{t1}, 7, v{L}
    v_mov_b32 v{t0}, 1
    s_mov_b32 exec_hi, s{sT[0]}
    buffer_load_dword v{t0}, v{t1}, {srd(SWS)}, s{sT[1]} offen sc1
    s_mov_b32 exec_hi, -1
    L_nopoll0{P}:
    """)
    a.vm -= 1
def s1_check(P):
    a(f"""
    s_cmp_lg_u32 s{sW}, 0
    s_cbranch_scc1 L_s1done{P}
    s_mov_b32 s{sT[0]}, 0
    L_s1poll{P}:
    s_waitcnt vmcnt(0)
    v_cmp_ne_u32 vcc, 1, v{t0}
    s_cbranch_vccz L_s1done{P}
    s_mov_b64 exec, vcc
    buffer_load_dword v{t0}, v{t1}, {srd(SWS)}, s{sT[1]} offen sc1
    s_mov_b64 exec, -1
    s_add_u32 s{sT[0]}, s{sT[0]}, 1
    s_cmp_lt_u32 s{sT[0]}, {SPIN}
    s_cbranch_scc1 L_s1poll{P}
    s_waitcnt vmcnt(0)
    L_s1done{P}:
    """)
    a.vm -= 1

def proj_path(P):
    tok = {}
    PATH[0] = P
    S1 = OPT['s1']
    sched = {s: [s + 2] for s in range(6)}
    if P == 'G': sched.update({6: [8, 9], 7: [10, 11], 8: [12, 13], 9: [14, 15]}); cover = {8: 9, 10: 11, 12: 15}
    else: sched.update({6: [8, 9], 7: [10, 11], OPT['q12']: [12, 13], OPT['q14']: [14, 15]}); cover = {8: 9, 10: 11, 12: 13, OPT['qc']: 15}
    bars = set(range(8)) | set(cover) | {S1}
    if OPT['qbar'] and P != 'G': bars |= set(range(10, 16))
    def dma_groups(sg):
        d = dma_ops(sg, P)
        if P in 'KV' and sg == 3:
            d.insert(1, f"""
            s_add_u32 m0, s{sMX}, {EX}
            s_nop 0
            buffer_load_dwordx4 v{vES}, {srd(SEX)}, s{sEXO} offen lds
            buffer_load_dwordx4 v{vES}, {srd(SEX)}, s{sEXO} offen offset:1024 lds
            """)
        if P == 'S' and sg == 3:
            d.insert(1, f"s_mov_b32 m0, {GW}\ns_nop 0\nbuffer_load_dwordx4 v{vES}, {srd(SEX)}, 0 offen lds")
        return [(x, sg if k == len(d) - 1 else None) for k, x in enumerate(d)]
    def emit(it):
        if callable(it): return it()
        a(it[0])
        if it[1] is not None: tok[it[1]] = a.lastvm()
    if P == 'G':
        a(f"s_cmp_lg_u32 s2, {CLEAR_WG}\ns_cbranch_scc1 L_noclear")
        mk_srd(SWS, 28, WS_SIZE)
        a(f"""
        s_add_u32 s{sT[1]}, s{sMX}, {WS_F1}
        v_mov_b32 v24, 0
        v_mov_b32 v25, 0
        v_mov_b32 v26, 0
        v_mov_b32 v27, 0
        buffer_store_dwordx4 v[24:27], v{vL16}, {srd(SWS)}, s{sT[1]} offen sc1
        buffer_store_dwordx4 v[24:27], v{vL16}, {srd(SWS)}, s{sT[1]} offen offset:1024 sc1
        L_noclear:
        """)
    tok[0] = a.lastvm()
    if P != 'G':
        mk_srd(SWQ, 6, 512 * 1024); mk_srd(SWG, 16, 512 * PG); mk_srd(SWU, 18, 512 * PG)
    if P in 'KVS': mk_srd(SEX, {'K': 8, 'V': 10, 'S': 22}[P], 1024 if P == 'S' else 16384)
    setup_while_waiting(P)
    if P != 'G': a(f"v_mov_b32 v{t0}, {CNT}\nds_write_b32 v{t0}, v{vZ}")
    for it in dma_groups(1): emit(it)
    stamp(0)
    win = {c: [] for c in range(33)}
    box = {}; inside = {}; front = {}
    def usable(c):
        return c % 2 == 0 or ((c + 1) // 2) not in bars
    def nxt(c):
        while not usable(c): c += 1
        return c
    if P == 'G':
        gq = []
        for b in range(2):
            for j in range(4): gq += gelu_pair(ACC[0] + 16 * b, j)
            gq += to_frag(ACC[0] + 16 * b)
            if b == 0: n0 = len(gq)
        ws = [c for c in range(16, OPT['gend'] + 1) if usable(c)]
        ndma = {16: 2, 17: 2, 18: 4}
        tot = len(gq) + OPT['dwt'] * 8
        done = 0; accw = 0
        for k, c in enumerate(ws):
            accw += OPT['dwt'] * ndma.get(c, 0)
            upto = max(done, tot * (k + 1) // len(ws) - accw)
            win[c] += [(x, None) for x in gq[done:upto]]
            if done < n0 <= upto: c0 = c
            done = upto
        assert done == len(gq)
        for b in range(OPT['nearly']):
            c = nxt(max(OPT[f'h{b}w'], c0 if b == 0 else ws[-1]))
            win[c].append((f"s_sub_u32 s{sT[2]}, s{sHO}, 4096\nbuffer_store_dwordx4 {vr(ACC[0]+16*b,4)}, v{vST}, {srd(SWS)}, s{sT[2]} offen offset:{1024*b} sc1", None))
    else:
        qa = [f"s_add_u32 s{sT[5]}, s{sT[4]}, {WS_Q}\ns_add_u32 s{sT[6]}, s{sT[4]}, {WS_Q + 4096}"]
        if P == 'K': qa += [f"v_mul_f32 v{ACCE+r}, {fbits(QS):#x}, v{ACCE+r}" for r in range(4)]
        if P in 'KV':
            qa += [f"v_cvt_pk_bf16_f32 v24, v{ACCE}, v{ACCE+1}", f"v_cvt_pk_bf16_f32 v25, v{ACCE+2}, v{ACCE+3}",
                   f"buffer_store_dwordx2 v[24:25], v{vSA}, {srd(SWS)}, s{sEXW} offen sc1"]
        def qfr(i0):
            o = []
            for i in (i0, i0 + 1):
                o += [f"v_cvt_pk_bf16_f32 v{ACC[0]+8*i+j}, v{ACC[0]+8*i+2*j}, v{ACC[0]+8*i+2*j+1}" for j in range(4)]
            for i in (i0, i0 + 1):
                o += to_frag(ACC[0] + 8 * i)
                o.append(f"buffer_store_dwordx4 {vr(ACC[0]+8*i,4)}, v{vST}, {srd(SWS)}, s{sT[5+(i&1)]} offen offset:{1024*(i>>1)} sc1")
            return o
        win[16] += [lambda: stamp(0, 3)] + [(x, None) for x in qa + qfr(0)]
        win[17 if OPT.get('qsp', 1) else 16] += [(x, None) for x in qfr(2)] + [lambda: (box.update(q=a.lastvm()), stamp(1, 3))]
        def qflag():
            stamp(2, 3)
            a(f"""
            v_mov_b32 v{t0}, {CNT}
            v_mov_b32 v{t1}, 1
            s_lshl4_add_u32 s{sT[0]}, s{sQ}, s{sTI}
            s_lshl_b32 s{sT[0]}, s{sT[0]}, 7
            s_add_u32 s{sT[0]}, s{sT[0]}, {WS_F1}
            """)
            a.wait(box['q'])
            stamp(3, 3)
            assert a.vm_done > box['s0']
            s0_check(P)
            a(f"s_mov_b64 exec, 1\nds_add_rtn_u32 v{t0}, v{t0}, v{t1}\ns_mov_b64 exec, -1")
        def qflag2():
            a(f"""
            s_mov_b64 exec, 1
            v_sub_u32 v{t0}, 7, v{t0}
            v_lshlrev_b32 v{t0}, 24, v{t0}
            buffer_store_dword v{t1}, v{t0}, {srd(SWS)}, s{sT[0]} offen sc1
            s_mov_b64 exec, -1
            """)
            stamp(4, 3)
        if OPT['qin']:
            win[OPT['qw']].append(qflag)
            inside[OPT['qw']] = qflag2
        else:
            front[OPT['qw']] = [qflag, lambda: a.wait(a.lastlg()), qflag2]
        if P == 'S':
            win[nxt(27)] += [(x, None) for x in (f"v_mul_f32 v{ACCG}, {fbits(-math.log2(math.e)):#x}, v{ACCG}", f"v_exp_f32 v{ACCG}, v{ACCG}", f"v_add_f32 v{ACCG}, 1.0, v{ACCG}",
                              f"v_rcp_f32 v{ACCG}, v{ACCG}", f"s_mov_b64 exec, 0xffff\nbuffer_store_dword v{ACCG}, v{vSA}, {srd(SWS)}, s{sEXW} offen sc1\ns_mov_b64 exec, -1")]
    if OPT['clw'] <= 32:
        win[nxt(max(OPT['clw'], 0 if P == 'G' else OPT['qw'] + 1))].append(
            (f"v_mov_b32 v24, -1\nv_mov_b32 v25, -1\nv_mov_b32 v26, -1\nv_mov_b32 v27, -1\nbuffer_store_dwordx4 v[24:27], v{vL16}, {srd(SWS)}, s{sT[9]} offen sc1", None))
    queue = setup_queue()
    ws = [c for c in range(OPT.get('qs', 20), 2 * S1 - 1) if usable(c)]
    for k, c in enumerate(ws):
        left = [x for x in queue if 2 * x[0] - 2 <= c]
        take = min(len(left), -(-len(queue) // (len(ws) - k)))
        win[c] += [(x[1], None) for x in left[:take]]; queue = queue[take:]
    assert not queue
    win[16].insert(0, (f"v_subrev_u32 v{vXR[0]}, {WR}, v{vWR[0]}\nv_subrev_u32 v{vXR[1]}, {WR}, v{vWR[1]}\nv_add_u32 v{vXR[2]}, {WR}, v{vWR[0]}\nv_add_u32 v{vXR[3]}, {WR}, v{vWR[1]}", None))

    def cluster(c):
        M = mfmas(c >> 1, c & 1) if c >= 0 else []
        em = e_mfmas(c)
        for i, x in enumerate(em): M.insert(1 + (8 // len(em) + 1) * i, x)
        d = c + 1
        R = []
        if d < 32:
            if d < 16: R += x_reads(d >> 1, d & 1)
            for i in range(4): R += w_reads(d >> 1, d & 1, i)
            R += e_reads(d)
        a.wait(a.lastlg())
        if M: a("s_setprio 2")
        n = max(len(M), 1); k = 0
        last = n - 1 if (c & 1 or ((c >> 1) + 1) not in bars) else n - 2
        for i in range(n):
            if M: a(M[i])
            if i == 0 and c in inside: inside.pop(c)()
            want = len(R) if i >= last else -(-len(R) * (i + 1) // (last + 1))
            while k < want: a(R[k]); k += 1
        if M: a("s_setprio 0")

    for sig in range(16):
        if sig in bars:
            if sig in cover or sig < 8: a.wait(tok[cover.get(sig, sig)])
            if sig == S1: s1_check(P)
            a("s_barrier")
        if sig == 1: stamp(1)
        if sig == 8: stamp(2)
        if sig < 11: stamp(sig, 1)
        if sig >= 6: stamp(sig - 6, 2)
        D = []
        if P == 'G' and sig == 0:
            def s0_set():
                a(f"""
                s_lshl_b32 s{sT[1]}, s{sW}, 8
                s_or_b32 s{sT[1]}, s{sT[1]}, s2
                s_cmp_lg_u32 s{sT[1]}, {CLEAR_WG}
                s_cbranch_scc1 L_nos0
                v_mov_b32 v{t0}, 1
                s_mov_b64 exec, 1
                buffer_store_dword v{t0}, v{vZ}, {srd(SDBG)}, 0 offen sc1
                s_mov_b64 exec, -1
                L_nos0:
                """)
                a.vm -= 1
            win[0].append(s0_set)
        for sg in sched.get(sig, []): D += dma_groups(sg)
        if P != 'G' and sig == 5:
            D.append((f"s_mul_i32 s{sT[1]}, s{sQ}, {7*128}\ns_movk_i32 s{sT[2]}, {PG}\n" + w_src(sT[2], sT[1]), None))
        if sig == S1: D += [(x, None) for x in first_loads()]
        if sig == (9 if P == 'G' else 7):
            def s0_load():
                if P == 'G':
                    a(f"s_cmp_lg_u32 s{sW}, 0\ns_cbranch_scc1 L_nos0l{P}\nbuffer_load_dword v{vS0}, v{vZ}, {srd(SDBG)}, 0 offen sc1\nL_nos0l{P}:")
                    a.vm -= 1
                else:
                    a(f"buffer_load_dword v{vS0}, v{vZ}, {srd(SDBG)}, 0 offen sc1")
                box['s0'] = a.vm
            D.insert(len(D) - 1, s0_load)
        head, mid, tail = [], D, []
        if sig < OPT['late']: mid, tail = [], D
        elif (sig + 1) not in bars: mid, tail = D[:len(D)//2], D[len(D)//2:]
        elif sig in bars and len(D) >= 4: head, mid = D[:OPT['na']], D[OPT['na']:]
        for it in head: emit(it)
        cluster(2 * sig - 1)
        if sig == S1 - 1:
            assert a.vm_done > box['s0']
            s1_issue(P)
        for it in front.get(2 * sig, []) + mid + win[2 * sig]: emit(it)
        cluster(2 * sig)
        for it in front.get(2 * sig + 1, []) + tail + win[2 * sig + 1]: emit(it)
    a.wait(a.lastlg())
    assert not win[32]

proj_path('G')
a("L_join:")
a.forget()

for m in mfmas(15, 1): a(m)
stamp(3); stamp(10, 2)
stamp(5, 3)
if OPT['s1'] == 16:
    s1_check('J')
    stamp(6, 3)
    a("s_barrier")
    stamp(7, 3)
    for x in first_loads(): a(x)
stamp(4); stamp(8, 3)
for b in range(2):
    for jp in range(2):
        g0 = gelu_pair(ACC[1] + 16 * b, 2 * jp, vGT, pk=OPT['pk2']); g1 = gelu_pair(ACC[1] + 16 * b, 2 * jp + 1, t0, pk=OPT['pk2'])
        for x, y in zip(g0, g1):
            a(x); a(y)
        if b == 1 and jp == 0:
            for x in to_frag(ACC[1]): a(x)
a(f"s_mov_b32 s{sT[7]}, s{sT[9]}\ns_mov_b32 s{sT[8]}, 0xffff\ns_mov_b32 s{sT[9]}, 0xffff")
for x in to_frag(ACC[1] + 16): a(x)
stamp(9, 3)
a.wait_vm0()
a("s_barrier")
stamp(5); stamp(10, 3)

def qk(S, Q): return f"v_mfma_f32_32x32x16_bf16 {vr(S,16)}, {vr(KF,4)}, {vr(Q,4)}, 0"
def pv(O, V, S): return f"v_smfmac_f32_32x32x32_bf16 {vr(O,16)}, {vr(V,4)}, {vr(S,8)}, v{vIDX}"
NT, B1, B2 = 32, 8, OPT['b2']
def rec(t): return (t % NSLOT) * 2048
def rdK(t): return a(f"ds_read_b128 {vr(KF,4)}, v{vAK} offset:{rec(t)}")
def rdV(t2, t1):
    a(f"s_mov_b64 exec, s[{sT[8]}:{sT[9]}]")
    if t2 is not None: a(f"ds_read_b128 {vr(V2,4)}, v{vAV} offset:{rec(t2) + 1536}")
    if t1 is not None: a(f"ds_read_b128 {vr(V1[t1&1],4)}, v{vAV} offset:{rec(t1) + 1024}")
    a("s_mov_b64 exec, -1")
    return a.lastlg()
wtok, htok, rtok, box = {}, {}, {}, {}
def w_load_a(u):
    slot = (u & 3) * 2048
    if u < 14:
        a(f"s_lshl4_add_u32 s{sWOF}, s{sRW}, s{sWB}\ns_add_u32 m0, s{sRING}, {slot}\ns_add_u32 s{sRW}, s{sRW}, 1024")
    else:
        if u == 14: a(f"s_lshl_b32 s{sWB}, s{sW}, 16\ns_lshl_b32 s{sRW}, s{sU}, 10")
        a(f"s_lshl4_add_u32 s{sWOF}, s{sRW}, s{sWB}\ns_add_u32 m0, s{sRING}, {slot}\ns_add_u32 s{sRW}, s{sRW}, 1024")
    a(f"buffer_load_dwordx4 v{vDS}, {srd(SWD if u < 14 else SWO)}, s{sWOF} offen lds")
def w_load_b(u):
    slot = (u & 3) * 2048
    a(f"s_add_u32 m0, s{sRING}, {slot+1024}\ns_add_u32 s{sWOF}, s{sWOF}, 8192")
    wtok[u] = a(f"buffer_load_dwordx4 v{vDS}, {srd(SWD if u < 14 else SWO)}, s{sWOF} offen lds")
    if u < 13: a(f"s_cmp_eq_u32 s{sRW}, {14*1024}\ns_cselect_b32 s{sRW}, 0, s{sRW}")
    elif 14 <= u < 17: a(f"s_and_b32 s{sRW}, s{sRW}, 0xfff")
def h_load_a(u):
    a(f"buffer_load_dwordx4 {vr(HF[u&3],4)}, v{vH0}, {srd(SWS)}, s{sRH} offen sc1")
def h_load_b(u):
    htok[u] = a(f"buffer_load_dwordx4 {vr(HF[u&3]+4,4)}, v{vH1}, {srd(SWS)}, s{sRH} offen sc1")
    if u < 13: a(f"s_add_u32 s{sRH}, s{sRH}, 1024\ns_cmp_eq_u32 s{sRH}, {14*1024}\ns_cselect_b32 s{sRH}, 0, s{sRH}")
def w_read(u, b):
    if b == 0: a.wait(wtok[u], htok[u])
    for e in range(2):
        rtok[u, b] = a(f"ds_read_b64_tr_b16 {vr(WF[u&1] + 4*b + 2*e, 2)}, v{(vDR0, vDR1)[b]} offset:{(u & 3) * 2048 + e*512}")
def d_mfma(u, k):
    tb, b = k >> 1, k & 1
    a.wait(rtok[u, 1])
    d = vr(DACC + 32 * tb + 16 * b, 16)
    a(f"v_mfma_f32_32x32x16_bf16 {d}, {vr(WF[u&1]+4*b,4)}, {vr(HF[u&3]+4*tb,4)}, {'0' if u == 0 else d}")

ev = {}
def at(pos, f):
    ev.setdefault(pos, []).append(f)
def h_store(b): box['h'] = a(f"buffer_store_dwordx4 {vr(ACC[1]+16*b,4)}, v{vST}, {srd(SWS)}, s{sHO} offen offset:{1024*b} sc1")
def late_store(k):
    if k == 2:
        a(f"v_mov_b32 v24, -1\nv_mov_b32 v25, -1\nv_mov_b32 v26, -1\nv_mov_b32 v27, -1\nbuffer_store_dwordx4 v[24:27], v{vL16}, {srd(SWS)}, s{sT[7]} offen sc1")
        return
    a(f"""
    s_cmp_eq_u32 s{sU}, 0
    s_cbranch_scc1 L_nols{k}
    s_sub_u32 s{sT[2]}, s{sHO}, 4096
    buffer_store_dwordx4 {vr(ACC[0]+16*k,4)}, v{vST}, {srd(SWS)}, s{sT[2]} offen offset:{1024*k} sc1
    L_nols{k}:
    """)
    a.vm -= 1
pp = 1
for k in list(range(OPT['nearly'], 2)) + ([2] if OPT['clw'] > 32 else []):
    at(pp, lambda k=k: late_store(k)); pp += OPT.get('p_sts', 3)
at(pp, lambda: h_store(0)); at(pp + OPT.get('p_sts', 3), lambda: h_store(1))
def kv_emit(m): kvtok[m] = a(kv_step(m))
for m in range(KV_FIRST, 12): at(OPT['p_kv'] + OPT['p_kvs'] * (m - KV_FIRST), lambda m=m: kv_emit(m))
for m in range(12, 16): at(OPT['p_kv2'] + 12 * (m - 12), lambda m=m: kv_emit(m))
assert OPT['p_kv2'] >= 32 * B1
def h_flag():
    a.wait(box['h'])
    a(f"v_mov_b32 v{t0}, 1\ns_mov_b64 exec, 1\nbuffer_store_dword v{t0}, v{vZ}, {srd(SWS)}, s{sF2} offen sc1\ns_mov_b64 exec, -1")
at(OPT['p_flag'], h_flag)
def f2_load():
    box['f2'] = a(f"s_mov_b32 exec_hi, 0\nbuffer_load_dwordx4 {vr(F2D,4)}, v{vF2}, {srd(SWS)}, s{sF2R} offen sc1")
    a("s_mov_b32 exec_hi, -1")
at(OPT['p_f2'], f2_load)
def f2_check():
    a.wait(box['f2'])
    a(f"""
    s_mov_b32 s{sT[1]}, 0
    s_mov_b32 exec_hi, 0
    L_s2poll:
    v_min3_u32 v{F2D}, v{F2D}, v{F2D+1}, v{F2D+2}
    v_min_u32 v{F2D}, v{F2D}, v{F2D+3}
    v_cmp_ne_u32 vcc, 1, v{F2D}
    s_cbranch_vccz L_s2done
    buffer_load_dwordx4 {vr(F2D,4)}, v{vF2}, {srd(SWS)}, s{sF2R} offen sc1
    s_add_u32 s{sT[1]}, s{sT[1]}, 1
    s_cmp_lt_u32 s{sT[1]}, {SPIN}
    s_waitcnt vmcnt(0)
    s_cbranch_scc1 L_s2poll
    L_s2done:
    s_mov_b32 exec_hi, -1
    """)
    a.vm -= 1
    a(f"buffer_load_dword v{vG}, v{vG}, {srd(SWS)}, s{sGA} offen sc1")
    stamp(9)
at(OPT['p_chk'], f2_check)
D0, DE = OPT['d0'], OPT['dend']
allsl = [32 * t + o for t in range(D0, DE) for o in (8, 14, 24, 30)]
assert len(allsl) >= 56
slots = [allsl[(i * len(allsl)) // 56] for i in range(56)]
for u in range(18):
    pw = OPT['p_fill'] + OPT['p_fills'] * u if u < 4 else slots[4 * (u - 4)] + 1
    at(pw, lambda u=u: w_load_a(u)); at(pw + 3, lambda u=u: w_load_b(u))
    if u < 14:
        ph = OPT['p_chk'] + 2 + OPT.get('p_hs', 14) * u if u < 3 else slots[4 * (u - 3)] + 7
        at(ph, lambda u=u: h_load_a(u)); at(ph + 3, lambda u=u: h_load_b(u))
for u in range(14):
    rp = slots[0] - 14 if u == 0 else slots[4 * u - 2] + 1
    at(rp, lambda u=u: w_read(u, 0)); at(rp + 2, lambda u=u: w_read(u, 1))
    for k in range(4): at(slots[4 * u + k], lambda u=u, k=k: d_mfma(u, k))
for lo, hi, fr in ((0, B1, (OPT.get('la1', 30), OPT.get('la2', 70), OPT.get('la3', 94))), (B1, B2, (OPT.get('lb1', 35), OPT.get('lb2', 80), OPT.get('lb3', 96))),
                   (B2, NT, (OPT.get('lc1', 60), OPT.get('lc2', 87), OPT.get('lc3', 96)))):
    at(32 * lo + 1, lambda: a("s_setprio 3"))
    for k in range(3): at(32 * lo + (32 * (hi - lo) * fr[k]) // 100, lambda k=k: a(f"s_setprio {2-k}"))

tK = rdK(0); tV = rdV(None, 0)
a.wait(tK)
a(qk(SA, QA))
for t in range(NT):
    if t == B1:
        a.wait(kvtok[11]); a("s_barrier"); stamp(6)
    if t == B2:
        a.wait(kvtok[15]); a("s_barrier")
    for ph, (S, So, O, Oo, Qo) in enumerate(((SA, SB, OA, OB, QB), (SB, SA, OB, OA, QA))):
        for e in range(16):
            if e == 2:
                if ph == 0:
                    if t > 0: a(pv(Oo, V2, So + 8))
                    else: a.wait(tV)
                    tV = rdV(t, t + 1 if t + 1 < NT else None)
                else:
                    a.wait(tV, tK); a(pv(Oo, V2, So + 8))
            if (e == 5 and not (t == 0 and ph == 0)) or (t == 0 and ph == 0 and e == 0):
                if ph == 0:
                    a(qk(So, Qo))
                    if t + 1 < NT: tK = rdK(t + 1)
                elif t + 1 < NT: a(qk(So, Qo))
            if e == 11: a(pv(O, V1[t & 1], S))
            for f in ev.pop(32 * t + 16 * ph + e, []): f()
            a(f"v_exp_f32 v{S+e}, v{S+e}")
assert not ev, sorted(ev)
a(f"""
s_mul_i32 s{sT[0]}, s{sW}, 2304
s_add_u32 s{sT[0]}, s{sT[0]}, {MERGE}
""")
a(pv(OB, V2, SB + 8))
stamp(7)
a(f"""
s_xor_b32 s{sT[1]}, s{sW}, 4
s_mul_i32 s{sT[1]}, s{sT[1]}, 2304
s_add_u32 s{sT[1]}, s{sT[1]}, {MERGE}
v_add_u32 v{t0}, s{sT[0]}, v{vL16}
v_add_u32 v{t1}, s{sT[1]}, v{vL16}
v_lshl_add_u32 v{t2}, v{L}, 2, s{sT[0]}
v_lshl_add_u32 v{t3}, v{L}, 2, s{sT[1]}
s_add_u32 s{sOO}, s{sOO}, {WS_O}
s_mov_b32 s{sT[6]}, {fbits(2.0**-60):#x}
s_mov_b32 s{sT[7]}, {fbits(2.0**60):#x}
ds_write_b128 v{t0}, {vr(OB,4)}
ds_write_b128 v{t0}, {vr(OB+4,4)} offset:1024
ds_write_b32 v{t2}, v{OB+8} offset:2048
""")
a.wait_lg0()
a("s_barrier")
a(f"""
ds_read_b32 v{SB+8}, v{t3} offset:2048
ds_read_b128 {vr(SB,4)}, v{t1}
ds_read_b128 {vr(SB+4,4)}, v{t1} offset:1024
""")
a.wait_lg0()
a(f"v_add_f32 v{OA+8}, v{OA+8}, v{SB+8}")
for j in range(4): a(f"v_pk_add_f32 {vr(OA+2*j,2)}, {vr(OA+2*j,2)}, {vr(SB+2*j,2)}")
a(f"v_pk_mul_f32 {vr(t2,2)}, {vr(OA,2)}, 0 op_sel_hi:[1,0]")
for j in range(1, 4): a(f"v_pk_fma_f32 {vr(t2,2)}, {vr(OA+2*j,2)}, 0, {vr(t2,2)} op_sel_hi:[1,0,1]")
a(f"""
v_add_f32 v{t2}, v{t2}, v{t3}
v_add_f32 v{t2}, v{t2}, v{OA+8}
v_cmp_nle_f32 vcc, s{sT[6]}, v{t2}
v_cmp_nge_f32 s[{sT[2]}:{sT[3]}], s{sT[7]}, v{t2}
s_or_b64 vcc, vcc, s[{sT[2]}:{sT[3]}]
""")
if OPT['force_fb']: a("s_mov_b64 vcc, -1")
a("""
s_cbranch_vccnz L_true_max
L_norm:
""")
OS = 128
a(f"""
v_rcp_f32 v{t0}, v{OA+8}
s_nop 0
v_mul_f32 v{t0}, v{t0}, v{vG}
""")
for j in range(4): a(f"v_pk_mul_f32 {vr(OA+2*j,2)}, {vr(OA+2*j,2)}, {vr(t0,2)} op_sel_hi:[1,0]")
for j in range(4): a(f"v_cvt_pk_bf16_f32 v{OS+j}, v{OA+2*j}, v{OA+2*j+1}")
for j in range(4): a(f"v_min_u32 v{OS+j}, -2, v{OS+j}")
a(f"buffer_store_dwordx4 {vr(OS,4)}, v{vL16}, {srd(SWS)}, s{sOO} offen {'' if OPT['ofast'] else 'sc1'}")
stamp(8)

a(f"""
s_lshl_b32 s{sT[8]}, s{sW}, 13
s_xor_b32 s{sT[3]}, s{sT[8]}, 8192
v_add_u32 v{t0}, s{sT[3]}, v{vL16}
v_add_u32 v{t1}, s{sT[8]}, v{vL16}
""")
for j in range(8): a(f"ds_write_b128 v{t0}, {vr(DACC+32+4*j,4)} offset:{1024*j}")
OF, WOF, XT = 32, 176, 96
vO1 = 27
a(f"""
s_andn2_b32 s{sT[3]}, s{sRING}, 8192
v_add_u32 v24, s{sT[3]}, v{vTRP}
v_xor_b32 v25, 64, v24
v_sub_f32 v{vG}, 1.0, v{vG}
v_add_u32 v{vO1}, 4096, v{vL16}
s_and_b32 s{sT[1]}, s{sW}, 1
s_lshl1_add_u32 s{sT[0]}, s{sI}, s{sT[1]}
s_lshr_b32 s{sT[1]}, s{sW}, 1
s_lshl2_add_u32 s{sT[0]}, s{sT[0]}, s{sT[1]}
s_lshl_b32 s{sT[0]}, s{sT[0]}, 13
s_add_u32 s{sT[0]}, s{sT[0]}, {WS_O}
""")
for v in range(4):
    a(f"s_add_u32 s{sT[1]}, s{sU}, {v}\ns_and_b32 s{sT[1]}, s{sT[1]}, 3\ns_lshl_b32 s{sT[1]}, s{sT[1]}, 10\ns_add_u32 s{sT[4+v]}, s{sT[0]}, s{sT[1]}")
def o_loads():
    for v in range(8):
        a(f"buffer_load_dwordx4 {vr(OF + 4*v, 4)}, v{vO1 if v >> 2 else vL16}, {srd(SWS)}, s{sT[4 + (v&3)]} offen sc1")
a.wait(wtok[17])
if OPT.get('oearly'): o_loads()
a.wait(a.lastlg())
a("s_barrier")
if not OPT.get('oearly'): o_loads()
xt = [a(f"ds_read_b128 {vr(XT+4*j,4)}, v{t1} offset:{1024*j}") for j in range(8)]
def wo_read(v):
    slot = ((14 + v) & 3) * 2048 + (v >> 2) * 8192
    for b in range(2):
        for e in range(2):
            a(f"ds_read_b64_tr_b16 {vr(WOF + 8*v + 4*b + 2*e, 2)}, v{24 + b} offset:{slot + e*512}")
for j in range(8):
    a.wait(xt[j])
    wo_read(j)
    for i in range(2):
        r = 4 * j + 2 * i
        a(f"v_pk_add_f32 {vr(DACC+r,2)}, {vr(DACC+r,2)}, {vr(XT+r,2)}")
    for i in range(2):
        r = 4 * j + 2 * i
        a(f"v_pk_mul_f32 {vr(DACC+r,2)}, {vr(DACC+r,2)}, {vr(vG,2)} op_sel_hi:[1,0]")
a(f"""
v_and_b32 v{t0}, 31, v{L}
v_lshrrev_b32 v{t1}, 5, v{L}
v_and_b32 v{t2}, 7, v{L}
v_xor_b32 v{t1}, v{t1}, v{t2}
v_lshlrev_b32 v{t1}, 4, v{t1}
v_lshl_add_u32 v{t0}, v{t0}, 8, v{t1}
v_add_u32 v9, s{sT[8]}, v{t0}
v_xor_b32 v10, 32, v9
v_xor_b32 v11, 64, v9
v_xor_b32 v12, 0x60, v9
v_lshrrev_b32 v{t0}, 3, v{L}
v_lshlrev_b32 v{t1}, 1, v{t2}
v_xor_b32 v{t1}, v{t1}, v{t0}
v_lshlrev_b32 v{t1}, 4, v{t1}
v_lshl_add_u32 v{t1}, v{t0}, 8, v{t1}
v_add_u32 v1, s{sMX}, v{t1}
v_xor_b32 v2, 16, v1
s_lshl3_add_u32 s{sT[3]}, s{sI}, s{sW}
s_lshl_b32 s{sT[3]}, s{sT[3]}, 6
s_add_u32 s{sT[3]}, s{sT[3]}, s{sJ}
s_lshl_b32 s{sT[3]}, s{sT[3]}, 7
v_lshlrev_b32 v{t2}, 4, v{t2}
v_lshl_add_u32 v5, v{t0}, 10, v{t2}
s_mov_b32 s{sT[2]}, 0
L_s3poll:
""")
a.wait_vm0()
a(f"v_max_u32 v{t0}, v{OF}, v{OF+1}\nv_max_u32 v{t1}, v{OF+2}, v{OF+3}")
for j in range(2, 16): a(f"v_max3_u32 v{t0 + (j&1)}, v{t0 + (j&1)}, v{OF+2*j}, v{OF+2*j+1}")
a(f"""
v_max_u32 v{t0}, v{t0}, v{t1}
v_cmp_eq_u32 vcc, -1, v{t0}
s_cbranch_vccnz L_s3retry
L_s3done:
""")
stamp(10)
a.wait_lg0()
for v in range(8):
    for b in range(2):
        d = vr(DACC + 16 * b, 16)
        a(f"v_mfma_f32_32x32x16_bf16 {d}, {vr(WOF+8*v+4*b,4)}, {vr(OF+4*v,4)}, {d}")
if OPT['ofast']:
    a(f"buffer_store_dwordx4 {vr(OS,4)}, v{vL16}, {srd(SWS)}, s{sOO} offen sc1")
for b in range(2):
    for qd in range(4):
        a(f"ds_write_b128 v{9+qd}, {vr(DACC + 16*b + 4*qd, 4)} offset:{b*128}")
a.wait_lg0()
a("s_barrier")
RD = 176
rt = []
for p in range(4):
    for e in range(2):
        rt.append(a(f"ds_read_b128 {vr(RD + 8*p + 4*e, 4)}, v{1 + e} offset:{p*16384}"))
for p in range(1, 4):
    a.wait(rt[2 * p + 1])
    for j in range(4):
        a(f"v_pk_add_f32 {vr(RD+2*j,2)}, {vr(RD+2*j,2)}, {vr(RD+8*p+2*j,2)}")
for j in range(4): a(f"v_cvt_pk_bf16_f32 v{RD+j}, v{RD+2*j}, v{RD+2*j+1}")
a(f"buffer_store_dwordx4 {vr(RD,4)}, v5, {srd(SOUT)}, s{sT[3]} offen {['', 'sc1'][OPT['outm']]}")
if OPT['stamp']:
    a("s_waitcnt vmcnt(0)")
    stamp(11)
    a("s_waitcnt lgkmcnt(0)")
    a(f"s_mov_b32 s28, s{sT[2]}")
    if 'pad' in OPT:
        K = OPT['pad']
        a(f"s_and_b32 s{sT[0]}, s2, {OPT.get('padm', 0)}\ns_cmp_lg_u32 s{sT[0]}, {OPT.get('padv', 0)}\ns_cbranch_scc1 L_end")
        if K >= 0: a(f"s_sub_u32 s{sT[0]}, s{4+2*K}, s30\ns_mul_i32 s{sT[0]}, s{sT[0]}, 4")
        else: a(f"s_mov_b32 s{sT[0]}, 0")
        a(f"""
        s_add_u32 s{sT[0]}, s{sT[0]}, 6000
        L_pad:
        s_memrealtime s[{sT[2]}:{sT[3]}]
        s_waitcnt lgkmcnt(0)
        s_sub_u32 s{sT[2]}, s{sT[2]}, s30
        s_cmp_lt_u32 s{sT[2]}, s{sT[0]}
        s_cbranch_scc1 L_pad
        """)
    else:
        a(f"s_lshl3_add_u32 s{sT[0]}, s2, s{sW}\ns_lshl_b32 s{sT[0]}, s{sT[0]}, 6\ns_add_u32 s{sT[0]}, s{sT[0]}, {WS_STAMP}")
        a("v_mov_b32 v1, 0\ns_mov_b64 exec, 1")
        for k in range(14):
            a(f"v_mov_b32 v2, s{4+2*k}\nbuffer_store_dword v2, v1, {srd(SWS)}, s{sT[0]} offen offset:{4*k}")
a("L_end:\ns_endpgm")
a("L_s3retry:")
if OPT['ofast']:
    a(f"""
    s_cmp_lg_u32 s{sT[2]}, 2
    s_cbranch_scc1 L_s3nowt
    buffer_store_dwordx4 {vr(OS,4)}, v{vL16}, {srd(SWS)}, s{sOO} offen sc1
    L_s3nowt:
    """)
o_loads()
a(f"""
s_add_u32 s{sT[2]}, s{sT[2]}, 1
s_cmp_lt_u32 s{sT[2]}, {SPIN}
s_cbranch_scc1 L_s3poll
s_waitcnt vmcnt(0)
s_branch L_s3done
""")

for P in 'KVPS':
    a(f"L_path{P}:")
    a.forget()
    proj_path(P)
    a("s_branch L_join")
for x in cold: a(x)

CM = SB
a(f"""
L_true_max:
s_waitcnt vmcnt(0) lgkmcnt(0)
v_mov_b32 v{t0}, 0xff800000
s_mov_b32 s{sT[0]}, {WS_KV}
L_tm1:
buffer_load_dwordx4 {vr(KF,4)}, v{vL16}, {srd(SWS)}, s{sT[0]} offen sc1
s_waitcnt vmcnt(0)
{qk(SA, QA)}
""")
for j in range(8): a(f"v_max3_f32 v{t0}, v{t0}, v{SA+2*j}, v{SA+2*j+1}")
a(f"""
s_add_u32 s{sT[0]}, s{sT[0]}, 2048
s_cmp_lt_u32 s{sT[0]}, {WS_KV + 64*2048}
s_cbranch_scc1 L_tm1
v_mov_b32 v{t1}, v{t0}
v_permlane32_swap_b32 v{t0}, v{t1}
v_max_f32 v{t0}, v{t0}, v{t1}
""")
for r in range(16): a(f"v_sub_f32 v{CM+r}, 0, v{t0}\nv_mov_b32 v{OA+r}, 0")
a(f"""
s_mov_b32 s{sT[0]}, {WS_KV}
L_tm2:
buffer_load_dwordx4 {vr(KF,4)}, v{vL16}, {srd(SWS)}, s{sT[0]} offen sc1
s_mov_b64 exec, s[{sT[8]}:{sT[9]}]
buffer_load_dwordx4 {vr(V1[0],4)}, v{vPV}, {srd(SWS)}, s{sT[0]} offen offset:1024 sc1
buffer_load_dwordx4 {vr(V2,4)}, v{vPV}, {srd(SWS)}, s{sT[0]} offen offset:1536 sc1
s_mov_b64 exec, -1
s_waitcnt vmcnt(0)
v_mfma_f32_32x32x16_bf16 {vr(SA,16)}, {vr(KF,4)}, {vr(QA,4)}, {vr(CM,16)}
""")
for e in range(16): a(f"v_exp_f32 v{SA+e}, v{SA+e}")
a(pv(OA, V1[0], SA)); a(pv(OA, V2, SA + 8))
a(f"""
s_add_u32 s{sT[0]}, s{sT[0]}, 2048
s_cmp_lt_u32 s{sT[0]}, {WS_KV + 64*2048}
s_nop 7
s_cbranch_scc1 L_tm2
s_nop 7
s_branch L_norm
L_last:
""")

bad = a.check_branches()
assert not bad, bad

hdr = open(f'cdna_kernels/{NAME}.s.ref').read().split('\n')
head = [l for l in hdr if l.startswith(';') and '@launch' not in l]
out = "\n".join(head) + f"\n; @launch grid=(256,1,1) block=(512,1,1) lds={LDS_BYTES}\n"
out += f""".amdgcn_target "amdgcn-amd-amdhsa--gfx950"
.text
.globl {NAME}_kernel
.p2align 8
.type {NAME}_kernel,@function
{NAME}_kernel:
{a.text()}
.section .rodata,"a"
.p2align 6
.amdhsa_kernel {NAME}_kernel
  .amdhsa_next_free_vgpr 256
  .amdhsa_next_free_sgpr 102
  .amdhsa_accum_offset 256
  .amdhsa_group_segment_fixed_size 0
  .amdhsa_kernarg_size 104
  .amdhsa_user_sgpr_count 2
  .amdhsa_user_sgpr_kernarg_segment_ptr 1
  .amdhsa_system_sgpr_workgroup_id_x 1
.end_amdhsa_kernel
"""
open(sys.argv[1], 'w').write(out)
print("instructions:", sum(1 for i in a.ins if i.ws), "auto nops:", a.nnop, file=sys.stderr)
```

```python
import sys, math, struct
sys.path.insert(0, 'gen')
from asmlib import Asm

NAME = 'gated_mix__grouped_kv_mqa__geglu_ffn__prompt'
OPT = dict(stamp=0, grp=0, force_fb=0, qflag=11, s1=16, b2=22, outm=1, ofast=0,
           p_kv=40, p_kvs=10, p_flag=112, p_fill=120, p_fills=40, p_kv2=272, p_f2=300, p_chk=340, d0=12, dend=32,
           late=1, pk2=1, nearly=1, h0w=27, h1w=30, clw=22, na=1, gend=30, dwt=4, qbar=0, cpf=1, qmode=0, qf=11, hyb=1, exs=3)
for x in sys.argv[2:]:
    k, v = x.split('='); OPT[k] = int(v)

def fbits(x): return struct.unpack('<I', struct.pack('<f', x))[0]

WS_KV, WS_G, WS_F1, WS_Q, WS_O, WS_H, WS_STAMP = 0, 0x20000, 0x30000, 0x100000, 0x300000, 0x500000, 0xC00000
WS_F2 = WS_F1 + 8192
WS_SIZE = 0x1000000
CLEAR_WG = 128
WR, EX = 65536, 131072
NSLOT, HALF, RING = 24, 49152, 98304
MERGE = 65536
LDS_BYTES = 163840
SPIN = 0x40000
SX, SWG, SWU, SWQ, SEX, SWS, SDBG, SWD, SWO, SOUT = 32, 36, 40, 44, 48, 52, 56, 60, 64, 92
sW, sTI, sQ, sU, sROT, sXO, sWOF, sMX, sMW, sI, sJ, sROT0 = range(68, 80)
sT = list(range(80, 90))
sEXW, sEXO = 90, 91
sC1 = 96
sF2, sRH, sRING, sOO = 98, 99, 100, 101
sHO = 3
sKVM, sKVO, sQA, sGA = 32, 33, 34, 35
sRW, sWB, sF2R = 44, 45, 46
def srd(n): return f"s[{n}:{n+3}]"
def vr(b, n): return f"v[{b}:{b+n-1}]"

vXS0, vXS1, vWS = 1, 2, 3
vST = 4
vXR = [5, 6, 7, 8]
vWR = [9, 10]
vES, vER, vSA = 11, [12, 13], 30
vL16, vLANE = 14, 15
vC0 = 16
vZ = 17
vGT = 18
t0, t1, t2, t3 = 20, 21, 22, 23
vS0, vWS2 = 28, 27
vPV, vPD, vTRP = 29, 0, 31
F = [32, 48]
ACC = [64, 96]
XF = 128
ACCE, WE = 96, 100
GW = 147456
L = vLANE
QA, QB, KF, V2, V1 = 128, 132, 136, 140, [144, 148]
vG, vIDX, vAK, vAV, vKVS = 152, 154, 155, 156, 157
vDR0, vDR1, vH0, vH1 = 159, 160, 161, 162
vDS, vF2 = vPD, vL16
F2D = 164
OA, OB, SA, SB = 176, 192, 208, 224
WF = [240, 248]
HF = [32, 40, 48, 56]
DACC = 64

a = Asm()
CLK = 's_memtime' if OPT['stamp'] == 2 else 's_memrealtime'
def stamp(k, grp=0):
    if grp != OPT['grp'] and k != 11: return
    if OPT['stamp']: a(f"{CLK} s[{4+2*k}:{5+2*k}]")
def mk_srd(n, p, size):
    a(f"s_mov_b32 s{n}, s{p}\ns_mov_b32 s{n+1}, s{p+1}\ns_mov_b32 s{n+2}, {size}\ns_mov_b32 s{n+3}, 0x20000")

PG = 3584
C0 = -2.0 * math.sqrt(2.0 / math.pi) * math.log2(math.e)
C1 = C0 * 0.044715
QS = 0.25 * math.log2(math.e)

a("s_cmp_ge_u32 s2, 256\ns_cbranch_scc1 L_end")
a("s_load_dwordx16 s[4:19], s[0:1], 0\ns_load_dwordx8 s[20:27], s[0:1], 64\ns_load_dwordx2 s[28:29], s[0:1], 96")
if OPT['stamp']: a(f"{CLK} s[30:31]")
if OPT['cpf']:
    a(f"""
    s_getpc_b64 s[{sT[0]}:{sT[1]}]
    L_pc:
    s_andn2_b32 s{sT[2]}, s2, 7
    s_lshl_b32 s{sT[2]}, s{sT[2]}, 8
    v_lshl_add_u32 v{t0}, v0, 2, s{sT[2]}
    v_min_u32 v{t0}, L_last-L_pc-4, v{t0}
    s_mov_b32 exec_lo, 1
    s_mov_b32 exec_hi, 1
    global_load_dword v{vS0}, v{t0}, s[{sT[0]}:{sT[1]}]
    s_mov_b64 exec, -1
    """)
a(f"""
v_readfirstlane_b32 s{sW}, v0
s_lshr_b32 s{sU}, s2, 6
s_bfe_u32 s{sQ}, s2, 0x20001
s_lshr_b32 s{sW}, s{sW}, 6
""")
def dispatch():
    a(f"""
    s_lshr_b32 s{sT[1]}, s{sW}, 2
    s_lshl1_add_u32 s{sT[0]}, s{sU}, s{sT[1]}
    s_lshr_b32 s{sT[1]}, s{sQ}, 1
    s_lshl1_add_u32 s{sT[0]}, s{sT[0]}, s{sT[1]}
    s_cmp_eq_u32 s{sT[0]}, 0
    s_cbranch_scc1 L_pathK
    s_cmp_eq_u32 s{sT[0]}, 1
    s_cbranch_scc1 L_pathV
    s_cmp_lt_u32 s{sT[0]}, 4
    s_cbranch_scc1 L_pathP
    s_cmp_eq_u32 s{sT[0]}, 4
    s_cbranch_scc1 L_pathS
    """)
def w_src(pitch, col, dst=vWS):
    return f"""
    v_lshrrev_b32 v{t0}, 3, v{L}
    s_lshl_b32 s{sT[0]}, s{sW}, 3
    v_add_u32 v{t0}, s{sT[0]}, v{t0}
    v_mul_u32_u24 v{t0}, {pitch}, v{t0}
    v_and_b32 v{t1}, 7, v{L}
    v_bfe_u32 v{t2}, v{L}, 4, 1
    v_lshlrev_b32 v{t2}, 1, v{t2}
    v_xor_b32 v{t1}, v{t1}, v{t2}
    s_and_b32 s{sT[0]}, s{sW}, 1
    s_lshl_b32 s{sT[0]}, s{sT[0]}, 2
    v_xor_b32 v{t1}, s{sT[0]}, v{t1}
    v_lshl_add_u32 v{t0}, v{t1}, 4, v{t0}
    v_add_u32 v{dst}, s{col}, v{t0}
    """
def prologue(P):
    a(f"""
    v_and_b32 v{L}, 63, v0
    s_and_b32 s{sT[0]}, s2, 7
    s_bfe_u32 s{sJ}, s2, 0x30003
    s_and_b32 s{sT[2]}, s2, 1
    s_lshl3_add_u32 s{sTI}, s{sT[2]}, s{sJ}
    s_lshl2_add_u32 s{sI}, s{sT[0]}, s{sU}
    s_lshl1_add_u32 s{sROT}, s{sU}, s{sJ}
    s_and_b32 s{sROT}, s{sROT}, 7
    s_mov_b32 s{sROT0}, s{sROT}
    s_lshl_b32 s{sMX}, s{sW}, 11
    s_lshl_b32 s{sMW}, s{sW}, 10
    """)
    a(f"""
    v_lshlrev_b32 v{vL16}, 4, v{L}
    v_lshrrev_b32 v{t0}, 3, v{L}
    v_and_b32 v{t1}, 7, v{L}
    v_lshrrev_b32 v{t2}, 4, v{L}
    s_lshl3_add_u32 s{sT[0]}, s{sTI}, s{sW}
    s_lshl_b32 s{sT[0]}, s{sT[0]}, 14
    v_xor_b32 v{t3}, v{t1}, v{t2}
    v_lshlrev_b32 v{t3}, 4, v{t3}
    v_lshl_add_u32 v{vXS0}, v{t0}, 10, v{t3}
    v_add_u32 v{vXS0}, s{sT[0]}, v{vXS0}
    v_xor_b32 v{vXS1}, 64, v{vXS0}
    v_add_u32 v{vXS1}, 8192, v{vXS1}
    """)
    if P == '*':
        a(f"""
        s_mul_i32 s{sT[1]}, s{sQ}, 7
        s_lshl1_add_u32 s{sT[1]}, s{sU}, s{sT[1]}
        s_sub_u32 s{sT[1]}, s{sT[1]}, 1
        s_lshl_b32 s{sT[1]}, s{sT[1]}, 7
        s_lshl_b32 s{sT[2]}, s{sQ}, 8
        s_movk_i32 s{sT[3]}, {PG}
        s_cmp_eq_u32 s{sU}, 0
        s_cselect_b32 s{sT[1]}, s{sT[2]}, s{sT[1]}
        s_cselect_b32 s{sT[3]}, 1024, s{sT[3]}
        """)
        a(w_src(f"s{sT[3]}", sT[1]))
        a(f"""
        s_mov_b32 s{SX+2}, {2048*1024}
        s_mov_b32 s{SX+3}, 0x20000
        s_lshl_b32 s{SWG+2}, s{sT[3]}, 9
        s_mov_b32 s{SWG+3}, 0x20000
        s_mov_b32 s{SWU+2}, s{SWG+2}
        s_mov_b32 s{SWU+3}, 0x20000
        s_lshl_b32 s{sXO}, s{sROT}, 7
        s_mul_i32 s{sWOF}, s{sROT}, s{sT[3]}
        s_lshl_b32 s{sWOF}, s{sWOF}, 6
        s_add_u32 s{sT[1]}, s{sWOF}, 128
        s_add_u32 s{sROT}, s{sROT}, 1
        s_and_b32 s{sROT}, s{sROT}, 7
        s_mov_b32 m0, s{sMX}
        s_cmp_eq_u32 s{sU}, 0
        s_cselect_b32 s{sT[1]}, s{sT[1]}, s{sWOF}
        s_waitcnt lgkmcnt(0)
        s_mov_b64 s[{SX}:{SX+1}], s[4:5]
        s_cselect_b64 s[{SWG}:{SWG+1}], s[6:7], s[16:17]
        s_cselect_b64 s[{SWU}:{SWU+1}], s[6:7], s[18:19]
        buffer_load_dwordx4 v{vXS0}, {srd(SX)}, s{sXO} offen lds
        s_add_u32 m0, s{sMW}, {WR}
        s_nop 0
        buffer_load_dwordx4 v{vWS}, {srd(SWG)}, s{sWOF} offen lds
        s_add_u32 m0, s{sMW}, {WR + 8192}
        s_nop 0
        buffer_load_dwordx4 v{vWS}, {srd(SWU)}, s{sT[1]} offen lds
        s_add_u32 m0, s{sMX}, 1024
        s_nop 0
        buffer_load_dwordx4 v{vXS1}, {srd(SX)}, s{sXO} offen lds
        """)
        return
    if P in 'KVP':
        a(f"s_lshl_b32 s{sT[1]}, s{sQ}, 8"); a(w_src(1024, sT[1]))
        first = [(SX, 4, 2048 * 1024), (SWQ, 6, 512 * 1024)]
    else:
        a(f"s_mul_i32 s{sT[1]}, s{sQ}, 7\ns_lshl1_add_u32 s{sT[1]}, s{sU}, s{sT[1]}\ns_sub_u32 s{sT[1]}, s{sT[1]}, 1\ns_lshl_b32 s{sT[1]}, s{sT[1]}, 7")
        a(w_src(PG, sT[1]))
        first = [(SX, 4, 2048 * 1024), (SWG, 16, 512 * PG), (SWU, 18, 512 * PG)]
    for n, p, size in first: a(f"s_mov_b32 s{n+2}, {size}\ns_mov_b32 s{n+3}, 0x20000")
    a("s_waitcnt lgkmcnt(0)")
    for n, p, size in first: a(f"s_mov_b64 s[{n}:{n+1}], s[{p}:{p+1}]")

if OPT['hyb']: prologue('*')
dispatch()

PATH = ['G']
def wslot(sig):
    if sig < 8: return WR + (sig & 3) * 16384
    if sig >= 14: return EX + (sig - 14) * 16384
    return (0 if sig & 1 else WR) + ((sig - 8) >> 1) * 16384
def waddr(sig, b):
    return {0: vXR[b], 1: vWR[b], 2: vXR[2 + b]}[wslot(sig) >> 16]

def dma_ops(sig, path):
    p = sig >> 3
    isq = (path in 'KVP' and p == 0)
    pitch = 1024 if isq else PG
    sa, sb = (SWQ, SWQ) if isq else (SWG, SWU)
    xs, ws = (sig & 3) * 16384, wslot(sig)
    pre = f"s_mul_i32 s{sWOF}, s{sROT}, {64*pitch}\n"
    if path in 'GS' and p == 1: pre += f"s_add_u32 s{sWOF}, s{sWOF}, 128\n"
    mid = f"s_add_u32 s{sWOF}, s{sWOF}, 128\n" if isq else ""
    inc, wrap = f"s_add_u32 s{sROT}, s{sROT}, 1\n", f"s_and_b32 s{sROT}, s{sROT}, 7\n"
    vw = vWS2 if (path in 'KVP' and p == 1) else vWS
    wa = f"s_add_u32 m0, s{sMW}, {ws}\n{{}}buffer_load_dwordx4 v{vw}, {srd(sa)}, s{sWOF} offen lds"
    wb = f"s_add_u32 m0, s{sMW}, {ws+8192}\n{{}}buffer_load_dwordx4 v{vw}, {srd(sb)}, s{sWOF} offen lds"
    if p == 0:
        return [f"s_add_u32 m0, s{sMX}, {xs}\ns_lshl_b32 s{sXO}, s{sROT}, 7\nbuffer_load_dwordx4 v{vXS0}, {srd(SX)}, s{sXO} offen lds",
                wa.format(pre), wb.format(mid + inc),
                f"s_add_u32 m0, s{sMX}, {xs+1024}\n{wrap}buffer_load_dwordx4 v{vXS1}, {srd(SX)}, s{sXO} offen lds"]
    return [wa.format(pre), wb.format(inc + wrap)]

def setup_while_waiting(P):
    mk_srd(SWS, 28, WS_SIZE); mk_srd(SDBG, 26, 256); mk_srd(SWD, 20, 1792 * 1024); mk_srd(SWO, 12, 512 * 1024); mk_srd(SOUT, 24, 2048 * 1024)
    a(f"""
    s_and_b32 s{sT[0]}, s{sW}, 3
    s_lshr_b32 s{sT[1]}, s{sW}, 2
    s_xor_b32 s{sT[5]}, s{sT[1]}, s{sQ}
    s_and_b32 s{sT[5]}, s{sT[5]}, 1
    s_lshl1_add_u32 s{sT[0]}, s{sT[0]}, s{sT[5]}
    s_lshl_b32 s{sT[0]}, s{sT[0]}, 11
    v_and_b32 v{t0}, 15, v{L}
    v_bfe_u32 v{t1}, v{L}, 1, 3
    v_lshrrev_b32 v{t2}, 4, v{L}
    v_xor_b32 v{t1}, v{t1}, v{t2}
    v_lshlrev_b32 v{t1}, 4, v{t1}
    v_lshl_add_u32 v{t1}, v{t0}, 7, v{t1}
    v_add_u32 v{vXR[0]}, s{sT[0]}, v{t1}
    v_xor_b32 v{vXR[1]}, 0x800, v{vXR[0]}
    v_xor_b32 v{vXR[2]}, 64, v{vXR[0]}
    v_xor_b32 v{vXR[3]}, 64, v{vXR[1]}
    s_lshl_b32 s{sT[2]}, s{sT[5]}, 8
    v_xor_b32 v{vST}, s{sT[2]}, v{vL16}
    """)
    a(f"""
    v_lshrrev_b32 v{t3}, 5, v{L}
    v_lshlrev_b32 v{t0}, 4, v{t0}
    v_lshl_add_u32 v{vPV}, v{t3}, 8, v{t0}
    """)
    a(f"""
    v_bfe_u32 v{t0}, v{L}, 2, 2
    v_lshl_add_u32 v{t1}, v{t2}, 3, v{t0}
    v_lshlrev_b32 v{t1}, 7, v{t1}
    v_bfe_u32 v{t2}, v{L}, 3, 2
    s_lshl_b32 s{sT[1]}, s{sT[1]}, 1
    v_xor_b32 v{t2}, s{sT[1]}, v{t2}
    v_lshl_add_u32 v{t1}, v{t2}, 5, v{t1}
    v_and_b32 v{t2}, 3, v{L}
    v_lshl_add_u32 v{t1}, v{t2}, 3, v{t1}
    v_add_u32 v{vWR[0]}, {WR}, v{t1}
    v_xor_b32 v{vWR[1]}, 32, v{vWR[0]}
    """)
    a(f"""
    v_lshl_add_u32 v{t3}, v{t3}, 3, v{t0}
    v_lshlrev_b32 v{t3}, 7, v{t3}
    v_lshrrev_b32 v{t0}, 1, v{t0}
    v_lshl_add_u32 v{t3}, v{t0}, 6, v{t3}
    v_lshl_add_u32 v{t3}, v{t2}, 3, v{t3}
    v_bfe_u32 v{t2}, v{L}, 4, 1
    v_lshl_add_u32 v{vTRP}, v{t2}, 5, v{t3}
    v_lshlrev_b32 v{t2}, 2, v{t2}
    v_and_b32 v{t1}, 7, v{L}
    v_xor_b32 v{t1}, v{t1}, v{t2}
    v_lshlrev_b32 v{t1}, 4, v{t1}
    v_lshrrev_b32 v{t0}, 3, v{L}
    v_lshl_add_u32 v{t0}, v{t0}, 10, v{t1}
    s_lshl_b32 s{sT[0]}, s{sJ}, 7
    v_add_u32 v{vPD}, s{sT[0]}, v{t0}
    v_mov_b32 v{vZ}, 0
    v_mov_b32 v{vC0}, {fbits(C0):#x}
    s_mov_b32 s{sC1}, {fbits(C1):#x}
    s_mov_b32 s{sC1+1}, {fbits(C1):#x}
    """)
    a(f"""
    s_lshr_b32 s{sT[3]}, s{sW}, 2
    s_and_b32 s{sT[1]}, s{sW}, 3
    s_lshl2_add_u32 s{sT[0]}, s{sTI}, s{sT[1]}
    s_lshl_b32 s{sT[8]}, s{sT[0]}, 5
    s_mul_i32 s{sT[0]}, s{sT[0]}, 112
    s_mul_i32 s{sT[1]}, s{sQ}, 28
    s_add_u32 s{sT[0]}, s{sT[0]}, s{sT[1]}
    s_lshl3_add_u32 s{sT[0]}, s{sU}, s{sT[0]}
    s_lshl1_add_u32 s{sT[0]}, s{sT[3]}, s{sT[0]}
    s_lshl_b32 s{sT[0]}, s{sT[0]}, 10
    s_add_u32 s{sHO}, s{sT[0]}, {WS_H}
    s_lshl3_add_u32 s{sT[4]}, s{sQ}, s{sT[8]}
    s_lshl1_add_u32 s{sT[4]}, s{sT[3]}, s{sT[4]}
    s_lshl_b32 s{sT[4]}, s{sT[4]}, 10
    s_lshl2_add_u32 s{sT[1]}, s{sQ}, s{sU}
    s_lshl4_add_u32 s{sF2}, s{sTI}, s{sT[1]}
    s_lshl3_add_u32 s{sF2}, s{sF2}, s{sW}
    s_lshl_b32 s{sF2}, s{sF2}, 2
    s_add_u32 s{sF2}, s{sF2}, {WS_F2}
    s_lshl1_add_u32 s{sT[9]}, s{sT[1]}, s{sT[8]}
    s_add_u32 s{sT[9]}, s{sT[9]}, s{sT[3]}
    s_lshl_b32 s{sT[9]}, s{sT[9]}, 10
    s_add_u32 s{sT[9]}, s{sT[9]}, {WS_O}
    s_and_b32 s{sT[1]}, s{sW}, 1
    s_lshl1_add_u32 s{sT[1]}, s{sI}, s{sT[1]}
    s_lshl3_add_u32 s{sT[2]}, s{sT[1]}, s{sJ}
    s_lshl_b32 s{sT[2]}, s{sT[2]}, 2
    s_and_b32 s{sT[1]}, s{sW}, 2
    s_add_u32 s{sT[2]}, s{sT[2]}, s{sT[1]}
    s_add_u32 s{sT[2]}, s{sT[2]}, s{sT[3]}
    s_lshl_b32 s{sOO}, s{sT[2]}, 10
    s_lshl_b32 s{sRING}, s{sW}, 13
    s_add_u32 s{sRING}, s{sRING}, {RING}
    s_mul_i32 s{sRH}, s{sJ}, 7
    s_lshr_b32 s{sRH}, s{sRH}, 2
    s_mul_i32 s{sT[1]}, s{sU}, 7
    s_lshr_b32 s{sT[1]}, s{sT[1]}, 1
    s_add_u32 s{sRH}, s{sRH}, s{sT[1]}
    s_cmp_ge_u32 s{sRH}, 14
    s_cselect_b32 s{sT[1]}, 14, 0
    s_sub_u32 s{sRH}, s{sRH}, s{sT[1]}
    s_lshl_b32 s{sRH}, s{sRH}, 10
    """)
    if P in 'KV':
        a(f"""
        v_lshrrev_b32 v{t2}, 4, v{L}
        v_and_b32 v{t0}, 15, v{L}
        v_lshlrev_b32 v{t1}, 3, v{t0}
        v_lshl_add_u32 v{t1}, v{t2}, 8, v{t1}
        v_and_b32 v{t3}, 1, v{t2}
        v_lshl_add_u32 v{t1}, v{t3}, 7, v{t1}
        v_add_u32 v{vER[0]}, {EX}, v{t1}
        v_xor_b32 v{vER[1]}, 0x80, v{vER[0]}
        v_lshlrev_b32 v{t1}, 7, v{t3}
        v_xor_b32 v{vES}, v{t1}, v{vL16}
        s_add_u32 s{sEXO}, s{sW}, s{sROT0}
        s_and_b32 s{sEXO}, s{sEXO}, 7
        s_lshl_b32 s{sEXO}, s{sEXO}, 11
        s_lshr_b32 s{sEXW}, s{sT[4]}, 15
        v_lshrrev_b32 v{t2}, 1, v{t2}
        """)
        if P == 'K':
            a(f"""
            s_lshl3_add_u32 s{sEXW}, s{sEXW}, s{sT[5]}
            s_lshl_b32 s{sEXW}, s{sEXW}, 8
            v_lshlrev_b32 v{t2}, 9, v{t2}
            """)
        else:
            a(f"""
            s_lshl2_add_u32 s{sEXW}, s{sEXW}, s{sT[5]}
            s_lshl_b32 s{sEXW}, s{sEXW}, 9
            s_add_u32 s{sEXW}, s{sEXW}, 1024
            v_lshlrev_b32 v{t2}, 8, v{t2}
            v_and_b32 v{t0}, 3, v{L}
            v_bfe_u32 v{t1}, v{L}, 2, 1
            v_lshl_add_u32 v{t0}, v{t1}, 3, v{t0}
            v_bfe_u32 v{t1}, v{L}, 3, 1
            v_lshl_add_u32 v{t0}, v{t1}, 2, v{t0}
            """)
        a(f"""
        v_lshl_add_u32 v{t2}, v{t0}, 4, v{t2}
        v_lshl_add_u32 v{vSA}, v{t3}, 3, v{t2}
        """)
    if P == 'P':
        a(f"""
        v_bfe_u32 v{t1}, v{L}, 4, 1
        v_lshlrev_b32 v{t1}, 7, v{t1}
        v_xor_b32 v{vES}, v{t1}, v{vL16}
        s_add_u32 s{sEXO}, s{sW}, s{sROT0}
        s_and_b32 s{sEXO}, s{sEXO}, 7
        s_lshl_b32 s{sEXO}, s{sEXO}, 11
        """)
    if P == 'S':
        a(f"""
        s_lshl_b32 s{sEXO}, s{sROT0}, 7
        v_add_u32 v{vES}, s{sEXO}, v{vL16}
        v_and_b32 v{vES}, 0x3ff, v{vES}
        v_and_b32 v{t0}, 48, v{L}
        v_add_u32 v{vER[0]}, {GW}, v{t0}
        v_and_b32 v{t0}, 15, v{L}
        v_lshlrev_b32 v{vSA}, 2, v{t0}
        s_lshr_b32 s{sEXW}, s{sT[4]}, 15
        s_lshl1_add_u32 s{sEXW}, s{sEXW}, s{sT[5]}
        s_lshl_b32 s{sEXW}, s{sEXW}, 6
        s_add_u32 s{sEXW}, s{sEXW}, {WS_G}
        """)

def x_reads(sig, j):
    return [f"ds_read_b128 {vr(XF + 16*sig + 8*j + 4*tq, 4)}, v{vXR[2*j+tq]} offset:{(sig & 3) * 16384}" for tq in range(2)]
def w_reads(sig, j, i):
    b, part = i >> 1, i & 1
    off = (wslot(sig) & 0xffff) + part * 8192 + j * 4096
    return [f"ds_read_b64_tr_b16 {vr(F[j] + 4*i + 2*e, 2)}, v{waddr(sig, b)} offset:{off + e*512}" for e in range(2)]
def e_steps(c):
    c0 = 2 * OPT['exs']
    if PATH[0] in 'KVS': return [2 * (c - c0), 2 * (c - c0) + 1] if c0 <= c < 2 * c0 else ([c] if 2 * c0 <= c < 16 else [])
    return []
def e_buf(c, i): return WE + 16 if (PATH[0] == 'S' and c == 15) else WE + 8 * (c & 1) + 4 * i
def e_reads(c):
    if PATH[0] == 'S':
        cs = [] if c == 15 else ([14, 15] if c == 14 else [c])
        return [f"ds_read_b128 {vr(e_buf(x, i), 4)}, v{vER[0]} offset:{k*64}" for x in cs for i, k in enumerate(e_steps(x))]
    return [f"ds_read_b64_tr_b16 {vr(e_buf(c, i) + 2*e, 2)}, v{vER[e]} offset:{k*1024}" for i, k in enumerate(e_steps(c)) for e in range(2)]
def e_mfmas(c):
    out = []
    for i, k in enumerate(e_steps(c)):
        acc, w, x = vr(ACCE, 4), vr(e_buf(c, i), 4), vr(XF + 8 * k, 4)
        A, B = (x, w) if PATH[0] == 'V' else (w, x)
        out.append(f"v_mfma_f32_16x16x32_bf16 {acc}, {A}, {B}, {'0' if k == 0 else acc}")
    return out
def mfmas(sig, j):
    out = []
    for i in range(4):
        for tq in range(2):
            d = vr(ACC[sig >> 3] + 8 * i + 4 * tq, 4)
            c = "0" if ((sig & 7) == 0 and j == 0) else d
            out.append(f"v_mfma_f32_16x16x32_bf16 {d}, {vr(F[j] + 4*i, 4)}, {vr(XF + 16*(sig&7) + 8*j + 4*tq, 4)}, {c}")
    return out

def gelu_pair(base, j, T=vGT, pk=False):
    G = vr(base + 2 * j, 2); U = vr(base + 8 + 2 * j, 2); TT = vr(T, 2)
    g0, g1, u0, u1 = base + 2 * j, base + 2 * j + 1, base + 8 + 2 * j, base + 9 + 2 * j
    if pk:
        return [f"v_pk_mul_f32 {TT}, {G}, {G}",
                f"v_pk_fma_f32 {TT}, {TT}, s[{sC1}:{sC1+1}], {vr(vC0,2)} op_sel_hi:[1,1,0]",
                f"v_pk_mul_f32 {TT}, {TT}, {G}",
                f"v_exp_f32 v{T}, v{T}", f"v_exp_f32 v{T+1}, v{T+1}",
                f"v_pk_mul_f32 {G}, {G}, {U}",
                f"v_pk_add_f32 {TT}, {TT}, 1.0 op_sel_hi:[1,0]",
                f"v_rcp_f32 v{T}, v{T}", f"v_rcp_f32 v{T+1}, v{T+1}",
                f"v_pk_mul_f32 {G}, {G}, {TT}",
                f"v_cvt_pk_bf16_f32 v{base+j}, v{g0}, v{g1}"]
    return [f"v_mul_f32 v{T}, v{g0}, v{g0}", f"v_mul_f32 v{T+1}, v{g1}, v{g1}",
            f"v_fma_f32 v{T}, v{T}, s{sC1}, v{vC0}", f"v_fma_f32 v{T+1}, v{T+1}, s{sC1}, v{vC0}",
            f"v_mul_f32 v{T}, v{T}, v{g0}", f"v_mul_f32 v{T+1}, v{T+1}, v{g1}",
            f"v_exp_f32 v{T}, v{T}", f"v_exp_f32 v{T+1}, v{T+1}",
            f"v_mul_f32 v{g0}, v{g0}, v{u0}", f"v_add_f32 v{T}, 1.0, v{T}", f"v_add_f32 v{T+1}, 1.0, v{T+1}",
            f"v_rcp_f32 v{T}, v{T}", f"v_rcp_f32 v{T+1}, v{T+1}",
            f"v_mul_f32 v{g1}, v{g1}, v{u1}",
            f"v_mul_f32 v{g0}, v{g0}, v{T}", f"v_mul_f32 v{g1}, v{g1}, v{T+1}",
            f"v_cvt_pk_bf16_f32 v{base+j}, v{g0}, v{g1}"]
def to_frag(base):
    return [f"v_permlane16_swap_b32 v{base}, v{base+2}", f"v_permlane16_swap_b32 v{base+1}, v{base+3}"]

def cost(x):
    c = 0
    for l in x.strip().split('\n'):
        l = l.strip()
        if not l or l.startswith(';') or l.endswith(':'): continue
        c += 8 if l.startswith(('v_exp', 'v_rcp')) else (OPT.get('vmc', 16) if l.startswith('buffer_') else 4)
    return c

kvtok = {}
def kv_step(m):
    slot = (2 * m % NSLOT) * 2048
    if m == 0: x = f"s_mov_b32 m0, s{sKVM}\ns_nop 0\n"
    else: x = f"s_add_u32 s{sKVO}, s{sKVO}, 4096\ns_add_u32 m0, s{sKVM}, {slot}\ns_and_b32 s{sKVO}, s{sKVO}, 0xffff\n"
    return x + f"buffer_load_dwordx4 v{vKVS}, {srd(SWS)}, s{sKVO} offen sc1 lds"
KV_FIRST = 5
def first_loads():
    l = [f"buffer_load_dwordx4 {vr(QA,4)}, v{vL16}, {srd(SWS)}, s{sQA} offen sc1", kv_step(0),
         f"s_xor_b32 s{sQA}, s{sQA}, 1024\nbuffer_load_dwordx4 {vr(QB,4)}, v{vL16}, {srd(SWS)}, s{sQA} offen sc1"]
    return l + [kv_step(m) for m in range(1, KV_FIRST)]

def setup_queue():
    q = []
    def add(st, txt):
        for l in txt.strip().split('\n'): q.append((st, l.strip().replace('|', '\n')))
    add(11, f"""
    s_lshr_b32 s{sT[3]}, s{sW}, 2
    s_and_b32 s{sT[5]}, s{sW}, 1
    s_lshl_b32 s{sT[6]}, s{sT[3]}, 16
    s_lshl_b32 s{sT[7]}, s{sT[5]}, 10
    s_add_u32 s{sT[6]}, s{sT[6]}, s{sT[7]}
    v_add_u32 v{vKVS}, s{sT[6]}, v{vL16}
    s_mul_i32 s{sT[3]}, s{sT[3]}, {HALF}
    v_add_u32 v{vAK}, s{sT[3]}, v{vL16}
    v_add_u32 v{vAV}, s{sT[3]}, v{vPV}
    s_and_b32 s{sT[6]}, s{sW}, 3
    s_lshl_b32 s{sT[6]}, s{sT[6]}, 10
    s_add_u32 s{sKVM}, s{sT[6]}, s{sT[3]}
    s_bfe_u32 s{sT[6]}, s{sW}, 0x10001
    s_lshr_b32 s{sT[7]}, s2, 3
    s_add_u32 s{sT[6]}, s{sT[6]}, s{sT[7]}
    s_and_b32 s{sT[6]}, s{sT[6]}, 31
    s_lshl_b32 s{sKVO}, s{sT[6]}, 11
    s_add_u32 s{sQA}, s{sOO}, {WS_Q}
    s_lshl1_add_u32 s{sGA}, s{sI}, s{sT[5]}
    s_lshl_b32 s{sGA}, s{sGA}, 7
    s_add_u32 s{sGA}, s{sGA}, {WS_G}
    v_and_b32 v{vG}, 31, v{L}
    v_lshlrev_b32 v{vG}, 2, v{vG}
    v_mov_b32 v{vIDX}, 0xdddddddd
    v_mov_b32 v{V2+1}, 0x3f803f80
    s_mov_b32 vcc_lo, 0x110000|s_mov_b32 vcc_hi, 0x110000|v_cndmask_b32 v{V2}, 0, v{V2+1}, vcc
    """)
    for r in range(V2 + 1, V2 + 12): add(11, f"v_mov_b32 v{r}, v{V2}")
    add(12, f"""
    v_add_u32 v{vDR0}, s{sRING}, v{vTRP}
    v_xor_b32 v{vDR1}, 64, v{vDR0}
    s_mul_i32 s{sT[6]}, s{sT[5]}, {112*1024}
    s_mul_i32 s{sT[7]}, s{sI}, 224
    s_mul_i32 s{sWB}, s{sW}, 14
    s_add_u32 s{sT[7]}, s{sT[7]}, s{sWB}
    s_lshl_b32 s{sT[7]}, s{sT[7]}, 10
    s_add_u32 s{sT[7]}, s{sT[7]}, {WS_H}
    s_add_u32 s{sT[3]}, s{sT[7]}, s{sT[6]}
    v_add_u32 v{vH0}, s{sT[3]}, v{vL16}
    s_sub_u32 s{sT[3]}, s{sT[7]}, s{sT[6]}
    s_add_u32 s{sT[3]}, s{sT[3]}, {112*1024}
    v_add_u32 v{vH1}, s{sT[3]}, v{vL16}
    s_lshl_b32 s{sWB}, s{sWB}, 14
    s_mov_b32 s{sRW}, s{sRH}
    s_lshr_b32 s{sF2R}, s{sI}, 1
    s_lshl_b32 s{sF2R}, s{sF2R}, 9
    s_add_u32 s{sF2R}, s{sF2R}, {WS_F2}
    """)
    for r in range(9): add(13, f"v_mov_b32 v{OA+r}, 0")
    for r in range(9): add(14, f"v_mov_b32 v{OB+r}, 0")
    return q

cold = []
def s0_check(P):
    a(f"v_cmp_eq_u32 vcc, 0, v{vS0}\ns_cbranch_vccnz L_s0retry{P}\nL_s0done{P}:")
    cold.append(f"""
    L_s0retry{P}:
    s_mov_b32 s{sT[1]}, 0
    L_s0poll{P}:
    buffer_load_dword v{vS0}, v{vZ}, {srd(SDBG)}, 0 offen sc1
    s_add_u32 s{sT[1]}, s{sT[1]}, 1
    s_waitcnt vmcnt(0)
    v_cmp_eq_u32 vcc, 0, v{vS0}
    s_cbranch_vccz L_s0done{P}
    s_cmp_lt_u32 s{sT[1]}, {SPIN}
    s_cbranch_scc1 L_s0poll{P}
    s_branch L_s0done{P}
    """)
def s1_issue(P):
    a(f"s_cmp_lg_u32 s{sW}, 0\ns_cbranch_scc1 L_nopoll0{P}")
    if P in 'GS': s0_check(P)
    a(f"""
    s_mov_b32 s{sT[1]}, {WS_F1}
    v_lshlrev_b32 v{t1}, 7, v{L}
    buffer_load_dword v{t0}, v{t1}, {srd(SWS)}, s{sT[1]} offen sc1
    L_nopoll0{P}:
    """)
    a.vm -= 1
def s1_check(P):
    a(f"""
    s_cmp_lg_u32 s{sW}, 0
    s_cbranch_scc1 L_s1done{P}
    s_mov_b32 s{sT[0]}, 0
    L_s1poll{P}:
    s_waitcnt vmcnt(0)
    v_cmp_ne_u32 vcc, 1, v{t0}
    s_cbranch_vccz L_s1done{P}
    s_mov_b64 exec, vcc
    buffer_load_dword v{t0}, v{t1}, {srd(SWS)}, s{sT[1]} offen sc1
    s_mov_b64 exec, -1
    s_add_u32 s{sT[0]}, s{sT[0]}, 1
    s_cmp_lt_u32 s{sT[0]}, {SPIN}
    s_cbranch_scc1 L_s1poll{P}
    s_waitcnt vmcnt(0)
    L_s1done{P}:
    """)
    a.vm -= 1

def proj_path(P):
    tok = {}
    PATH[0] = P
    S1 = OPT['s1']
    sched = {s: [s + 2] for s in range(6)}
    ISQ = P in 'KVP'
    QF = OPT['qf']
    sched.update({6: [8, 9], 7: [10, 11], 8: [12, 13], 9: [14, 15]}); cover = {8: 9, 10: 11, 12: 15}
    if ISQ and OPT['qmode'] == 0:
        del sched[8], sched[9]
        sched.update({10: [12, 13], 11: [14, 15]}); cover = {8: 9, 10: 11, 12: 13, 14: 15}
    bars = set(range(8)) | set(cover) | {S1}
    if ISQ: bars |= {QF} | ({9} if OPT['qmode'] else set()) | (set(range(10, 16)) if OPT['qbar'] else set())
    def dma_groups(sg):
        d = dma_ops(sg, P)
        if ISQ and sg == OPT['exs']:
            d.insert(1, f"""
            s_add_u32 m0, s{sMX}, {EX}
            s_nop 0
            buffer_load_dwordx4 v{vES}, {srd(SEX)}, s{sEXO} offen lds
            buffer_load_dwordx4 v{vES}, {srd(SEX)}, s{sEXO} offen offset:1024 lds
            """)
        if P == 'S' and sg == OPT['exs']:
            d.insert(1, f"s_mov_b32 m0, {GW}\ns_nop 0\nbuffer_load_dwordx4 v{vES}, {srd(SEX)}, 0 offen lds")
        return [(x, sg if k == len(d) - 1 else None) for k, x in enumerate(d)]
    def emit(it):
        if callable(it): return it()
        a(it[0])
        if it[1] is not None: tok[it[1]] = a.lastvm()
    if not OPT['hyb']:
        prologue(P)
        for it in dma_groups(0): emit(it)
    if P == 'G':
        a(f"s_cmp_lg_u32 s2, {CLEAR_WG}\ns_cbranch_scc1 L_noclear")
        mk_srd(SWS, 28, WS_SIZE)
        a(f"""
        s_add_u32 s{sT[1]}, s{sMX}, {WS_F1}
        v_mov_b32 v24, 0
        v_mov_b32 v25, 0
        v_mov_b32 v26, 0
        v_mov_b32 v27, 0
        buffer_store_dwordx4 v[24:27], v{vL16}, {srd(SWS)}, s{sT[1]} offen sc1
        buffer_store_dwordx4 v[24:27], v{vL16}, {srd(SWS)}, s{sT[1]} offen offset:1024 sc1
        L_noclear:
        """)
    tok[0] = a.lastvm()
    if ISQ:
        if OPT['hyb']: mk_srd(SWQ, 6, 512 * 1024)
        mk_srd(SWG, 16, 512 * PG); mk_srd(SWU, 18, 512 * PG)
        a(f"s_mul_i32 s{sT[1]}, s{sQ}, {7*128}\n" + w_src(PG, sT[1], vWS2))
    if P in 'KVS': mk_srd(SEX, {'K': 8, 'V': 10, 'S': 22}[P], 1024 if P == 'S' else 16384)
    if P == 'P': a(f"s_cmp_lt_u32 s{sQ}, 2\ns_cselect_b64 s[{SEX}:{SEX+1}], s[8:9], s[10:11]\ns_mov_b32 s{SEX+2}, 16384\ns_mov_b32 s{SEX+3}, 0x20000")
    setup_while_waiting(P)
    for it in dma_groups(1): emit(it)
    stamp(0)
    win = {c: [] for c in range(33)}
    box = {}; inside = {}; front = {}
    def usable(c):
        return c % 2 == 0 or ((c + 1) // 2) not in bars
    def nxt(c):
        while not usable(c): c += 1
        return c
    if not ISQ:
        gq = []
        for b in range(2):
            for j in range(4): gq += gelu_pair(ACC[0] + 16 * b, j)
            gq += to_frag(ACC[0] + 16 * b)
            if b == 0: n0 = len(gq)
        ws = [c for c in range(16, OPT['gend'] + 1) if usable(c)]
        ndma = {16: 2, 17: 2, 18: 4}
        tot = len(gq) + OPT['dwt'] * 8
        done = 0; accw = 0
        for k, c in enumerate(ws):
            accw += OPT['dwt'] * ndma.get(c, 0)
            upto = max(done, tot * (k + 1) // len(ws) - accw)
            win[c] += [(x, None) for x in gq[done:upto]]
            if done < n0 <= upto: c0 = c
            done = upto
        assert done == len(gq)
        for b in range(OPT['nearly']):
            c = nxt(max(OPT[f'h{b}w'], c0 if b == 0 else ws[-1]))
            win[c].append((f"s_sub_u32 s{sT[2]}, s{sHO}, 4096\nbuffer_store_dwordx4 {vr(ACC[0]+16*b,4)}, v{vST}, {srd(SWS)}, s{sT[2]} offen offset:{1024*b} sc1", None))
    else:
        qa = [f"s_add_u32 s{sT[8]}, s{sT[4]}, {WS_Q + 4096}\ns_add_u32 s{sT[4]}, s{sT[4]}, {WS_Q}"]
        if P == 'K': qa += [f"v_mul_f32 v{ACCE+r}, {fbits(QS):#x}, v{ACCE+r}" for r in range(4)]
        sts = []
        if P in 'KV':
            qa += [f"v_cvt_pk_bf16_f32 v{vGT}, v{ACCE}, v{ACCE+1}", f"v_cvt_pk_bf16_f32 v{vGT+1}, v{ACCE+2}, v{ACCE+3}"]
            sts.append(f"buffer_store_dwordx2 {vr(vGT,2)}, v{vSA}, {srd(SWS)}, s{sEXW} offen sc1")
        def qcv(i): return [f"v_cvt_pk_bf16_f32 v{ACC[0]+8*i+j}, v{ACC[0]+8*i+2*j}, v{ACC[0]+8*i+2*j+1}" for j in range(4)]
        def qst(i): return to_frag(ACC[0] + 8 * i) + [f"buffer_store_dwordx4 {vr(ACC[0]+8*i,4)}, v{vST}, {srd(SWS)}, s{sT[8 if i & 1 else 4]} offen offset:{1024*(i>>1)} sc1"]
        mark = [lambda: box.update(q=a.lastvm())]
        T = lambda l: [(x, None) for x in l]
        if OPT['qmode'] == 0:
            win[16] += T(qa + sts + qcv(0) + qcv(1) + qst(0) + qst(1)); win[17] += T(qcv(2) + qcv(3) + qst(2) + qst(3)) + mark
        elif OPT['qmode'] == 1:
            win[16] += T(qa + qcv(0) + qcv(1)); win[18] += T(sts + qst(0) + qcv(2)); win[20] += T(qcv(3) + qst(1) + qst(2) + qst(3)) + mark
        else:
            win[16] += T(qa + qcv(0) + qcv(1) + qcv(2) + qcv(3)); win[18] += T(sts + qst(0) + qst(1) + qst(2) + qst(3)) + mark
        def qflag():
            assert a.vm_done > box['s0']
            if P != 'P': s0_check(P)
            a(f"""
            s_lshl4_add_u32 s{sT[0]}, s{sQ}, s{sTI}
            s_lshl_b32 s{sT[0]}, s{sT[0]}, 7
            s_add_u32 s{sT[0]}, s{sT[0]}, {WS_F1}
            s_lshl_b32 s{sT[1]}, s{sW}, 24
            s_add_u32 s{sT[0]}, s{sT[0]}, s{sT[1]}
            v_mov_b32 v{t1}, 1
            s_mov_b64 exec, 1
            buffer_store_dword v{t1}, v{vZ}, {srd(SWS)}, s{sT[0]} offen sc1
            s_mov_b64 exec, -1
            """)
        if P != 'P': box['flag'] = qflag
    if P == 'S':
        win[16] = [(x, None) for x in (f"v_mul_f32 v{t2}, {fbits(-math.log2(math.e)):#x}, v{ACCE}", f"v_exp_f32 v{t2}, v{t2}", f"v_add_f32 v{t2}, 1.0, v{t2}", f"v_rcp_f32 v{t2}, v{t2}")] + win[16]
        win[20].append((f"s_mov_b64 exec, 0xffff\nbuffer_store_dword v{t2}, v{vSA}, {srd(SWS)}, s{sEXW} offen sc1\ns_mov_b64 exec, -1", None))
    if OPT['clw'] <= 32:
        win[nxt(max(OPT['clw'], max(24, 2 * QF + 1) if ISQ else 0))].append(
            (f"v_mov_b32 v24, -1\nv_mov_b32 v25, -1\nv_mov_b32 v26, -1\nv_mov_b32 v27, -1\nbuffer_store_dwordx4 v[24:27], v{vL16}, {srd(SWS)}, s{sT[9]} offen sc1", None))
    queue = setup_queue()
    ws = [c for c in range(21 if ISQ else 20, 2 * S1 - 1) if usable(c)]
    for k, c in enumerate(ws):
        left = [x for x in queue if 2 * x[0] - 2 <= c]
        take = min(len(left), -(-len(queue) // (len(ws) - k)))
        win[c] += [(x[1], None) for x in left[:take]]; queue = queue[take:]
    assert not queue
    win[16].insert(0, (f"v_subrev_u32 v{vXR[0]}, {WR}, v{vWR[0]}\nv_subrev_u32 v{vXR[1]}, {WR}, v{vWR[1]}\nv_add_u32 v{vXR[2]}, {WR}, v{vWR[0]}\nv_add_u32 v{vXR[3]}, {WR}, v{vWR[1]}", None))

    def cluster(c):
        M = mfmas(c >> 1, c & 1) if c >= 0 else []
        em = e_mfmas(c)
        for i, x in enumerate(em): M.insert(1 + (8 // len(em) + 1) * i, x)
        d = c + 1
        R = []
        if d < 32:
            if d < 16: R += x_reads(d >> 1, d & 1)
            for i in range(4): R += w_reads(d >> 1, d & 1, i)
            R += e_reads(d)
        a.wait(a.lastlg())
        if M: a("s_setprio 2")
        n = max(len(M), 1); k = 0
        last = n - 1 if (c & 1 or ((c >> 1) + 1) not in bars) else n - 2
        for i in range(n):
            if M: a(M[i])
            if i == 0 and c in inside: inside.pop(c)()
            want = len(R) if i >= last else -(-len(R) * (i + 1) // (last + 1))
            while k < want: a(R[k]); k += 1
        if M: a("s_setprio 0")

    for sig in range(16):
        if sig in bars:
            if sig in cover or sig < 8: a.wait(tok[cover.get(sig, sig)])
            if ISQ and sig == QF: a.wait(box['q'])
            if sig == S1 and P != 'P': s1_check(P)
            a("s_barrier")
            if sig == QF and 'flag' in box: box['flag']()
        if sig == 1: stamp(1)
        if sig == 8: stamp(2)
        if sig < 11: stamp(sig, 1)
        if sig >= 6: stamp(sig - 6, 2)
        D = []
        if P == 'G' and sig == 0:
            def s0_set():
                a(f"""
                s_lshl_b32 s{sT[1]}, s{sW}, 8
                s_or_b32 s{sT[1]}, s{sT[1]}, s2
                s_cmp_lg_u32 s{sT[1]}, {CLEAR_WG}
                s_cbranch_scc1 L_nos0
                v_mov_b32 v{t0}, 1
                s_mov_b64 exec, 1
                buffer_store_dword v{t0}, v{vZ}, {srd(SDBG)}, 0 offen sc1
                s_mov_b64 exec, -1
                L_nos0:
                """)
                a.vm -= 1
            win[0].append(s0_set)
        for sg in sched.get(sig, []): D += dma_groups(sg)
        if sig == S1: D += [(x, None) for x in first_loads()]
        if sig == (7 if ISQ else 9) and P != 'P':
            def s0_load():
                if not ISQ:
                    a(f"s_cmp_lg_u32 s{sW}, 0\ns_cbranch_scc1 L_nos0l{P}\nbuffer_load_dword v{vS0}, v{vZ}, {srd(SDBG)}, 0 offen sc1\nL_nos0l{P}:")
                    a.vm -= 1
                else:
                    a(f"buffer_load_dword v{vS0}, v{vZ}, {srd(SDBG)}, 0 offen sc1")
                box['s0'] = a.vm
            D.insert(len(D) - 1, s0_load)
        head, mid, tail = [], D, []
        if sig < OPT['late']: mid, tail = [], D
        elif (sig + 1) not in bars: mid, tail = D[:len(D)//2], D[len(D)//2:]
        elif sig in bars and len(D) >= 4: head, mid = D[:OPT['na']], D[OPT['na']:]
        for it in head: emit(it)
        cluster(2 * sig - 1)
        if sig == S1 - 1 and P != 'P':
            assert a.vm_done > box['s0']
            s1_issue(P)
        for it in front.get(2 * sig, []) + mid + win[2 * sig]: emit(it)
        cluster(2 * sig)
        for it in front.get(2 * sig + 1, []) + tail + win[2 * sig + 1]: emit(it)
    a.wait(a.lastlg())
    assert not win[32]

proj_path('G')
a("L_join:")
a.forget()

for m in mfmas(15, 1): a(m)
stamp(3); stamp(10, 2)
stamp(5, 3)
if OPT['s1'] == 16:
    s1_check('J')
    stamp(6, 3)
    a("s_barrier")
    stamp(7, 3)
    for x in first_loads(): a(x)
stamp(4); stamp(8, 3)
for b in range(2):
    for jp in range(2):
        g0 = gelu_pair(ACC[1] + 16 * b, 2 * jp, vGT, pk=OPT['pk2']); g1 = gelu_pair(ACC[1] + 16 * b, 2 * jp + 1, t0, pk=OPT['pk2'])
        for x, y in zip(g0, g1):
            a(x); a(y)
        if b == 1 and jp == 0:
            for x in to_frag(ACC[1]): a(x)
a(f"s_mov_b32 s{sT[7]}, s{sT[9]}\ns_mov_b32 s{sT[8]}, 0xffff\ns_mov_b32 s{sT[9]}, 0xffff")
for x in to_frag(ACC[1] + 16): a(x)
stamp(9, 3)
a.wait_vm0()
a("s_barrier")
stamp(5); stamp(10, 3)

def qk(S, Q): return f"v_mfma_f32_32x32x16_bf16 {vr(S,16)}, {vr(KF,4)}, {vr(Q,4)}, 0"
def pv(O, V, S): return f"v_smfmac_f32_32x32x32_bf16 {vr(O,16)}, {vr(V,4)}, {vr(S,8)}, v{vIDX}"
NT, B1, B2 = 32, 8, OPT['b2']
def rec(t): return (t % NSLOT) * 2048
def rdK(t): return a(f"ds_read_b128 {vr(KF,4)}, v{vAK} offset:{rec(t)}")
def rdV(t2, t1):
    a(f"s_mov_b64 exec, s[{sT[8]}:{sT[9]}]")
    if t2 is not None: a(f"ds_read_b128 {vr(V2,4)}, v{vAV} offset:{rec(t2) + 1536}")
    if t1 is not None: a(f"ds_read_b128 {vr(V1[t1&1],4)}, v{vAV} offset:{rec(t1) + 1024}")
    a("s_mov_b64 exec, -1")
    return a.lastlg()
wtok, htok, rtok, box = {}, {}, {}, {}
def w_load_a(u):
    slot = (u & 3) * 2048
    if u < 14:
        a(f"s_lshl4_add_u32 s{sWOF}, s{sRW}, s{sWB}\ns_add_u32 m0, s{sRING}, {slot}\ns_add_u32 s{sRW}, s{sRW}, 1024")
    else:
        if u == 14: a(f"s_lshl_b32 s{sWB}, s{sW}, 16\ns_lshl_b32 s{sRW}, s{sU}, 10")
        a(f"s_lshl4_add_u32 s{sWOF}, s{sRW}, s{sWB}\ns_add_u32 m0, s{sRING}, {slot}\ns_add_u32 s{sRW}, s{sRW}, 1024")
    a(f"buffer_load_dwordx4 v{vDS}, {srd(SWD if u < 14 else SWO)}, s{sWOF} offen lds")
def w_load_b(u):
    slot = (u & 3) * 2048
    a(f"s_add_u32 m0, s{sRING}, {slot+1024}\ns_add_u32 s{sWOF}, s{sWOF}, 8192")
    wtok[u] = a(f"buffer_load_dwordx4 v{vDS}, {srd(SWD if u < 14 else SWO)}, s{sWOF} offen lds")
    if u < 13: a(f"s_cmp_eq_u32 s{sRW}, {14*1024}\ns_cselect_b32 s{sRW}, 0, s{sRW}")
    elif 14 <= u < 17: a(f"s_and_b32 s{sRW}, s{sRW}, 0xfff")
def h_load_a(u):
    a(f"buffer_load_dwordx4 {vr(HF[u&3],4)}, v{vH0}, {srd(SWS)}, s{sRH} offen sc1")
def h_load_b(u):
    htok[u] = a(f"buffer_load_dwordx4 {vr(HF[u&3]+4,4)}, v{vH1}, {srd(SWS)}, s{sRH} offen sc1")
    if u < 13: a(f"s_add_u32 s{sRH}, s{sRH}, 1024\ns_cmp_eq_u32 s{sRH}, {14*1024}\ns_cselect_b32 s{sRH}, 0, s{sRH}")
def w_read(u, b):
    if b == 0: a.wait(wtok[u], htok[u])
    for e in range(2):
        rtok[u, b] = a(f"ds_read_b64_tr_b16 {vr(WF[u&1] + 4*b + 2*e, 2)}, v{(vDR0, vDR1)[b]} offset:{(u & 3) * 2048 + e*512}")
def d_mfma(u, k):
    tb, b = k >> 1, k & 1
    a.wait(rtok[u, 1])
    d = vr(DACC + 32 * tb + 16 * b, 16)
    a(f"v_mfma_f32_32x32x16_bf16 {d}, {vr(WF[u&1]+4*b,4)}, {vr(HF[u&3]+4*tb,4)}, {'0' if u == 0 else d}")

ev = {}
def at(pos, f):
    ev.setdefault(pos, []).append(f)
def h_store(b): box['h'] = a(f"buffer_store_dwordx4 {vr(ACC[1]+16*b,4)}, v{vST}, {srd(SWS)}, s{sHO} offen offset:{1024*b} sc1")
def late_store(k):
    if k == 2:
        a(f"v_mov_b32 v24, -1\nv_mov_b32 v25, -1\nv_mov_b32 v26, -1\nv_mov_b32 v27, -1\nbuffer_store_dwordx4 v[24:27], v{vL16}, {srd(SWS)}, s{sT[7]} offen sc1")
        return
    a(f"""
    s_cmp_eq_u32 s{sU}, 0
    s_cbranch_scc1 L_nols{k}
    s_sub_u32 s{sT[2]}, s{sHO}, 4096
    buffer_store_dwordx4 {vr(ACC[0]+16*k,4)}, v{vST}, {srd(SWS)}, s{sT[2]} offen offset:{1024*k} sc1
    L_nols{k}:
    """)
    a.vm -= 1
pp = 1
for k in list(range(OPT['nearly'], 2)) + ([2] if OPT['clw'] > 32 else []):
    at(pp, lambda k=k: late_store(k)); pp += OPT.get('p_sts', 3)
at(pp, lambda: h_store(0)); at(pp + OPT.get('p_sts', 3), lambda: h_store(1))
def kv_emit(m): kvtok[m] = a(kv_step(m))
for m in range(KV_FIRST, 12): at(OPT['p_kv'] + OPT['p_kvs'] * (m - KV_FIRST), lambda m=m: kv_emit(m))
for m in range(12, 16): at(OPT['p_kv2'] + 12 * (m - 12), lambda m=m: kv_emit(m))
assert OPT['p_kv2'] >= 32 * B1
def h_flag():
    a.wait(box['h'])
    a(f"v_mov_b32 v{t0}, 1\ns_mov_b64 exec, 1\nbuffer_store_dword v{t0}, v{vZ}, {srd(SWS)}, s{sF2} offen sc1\ns_mov_b64 exec, -1")
at(OPT['p_flag'], h_flag)
def f2_load():
    box['f2'] = a(f"s_mov_b32 exec_hi, 0\nbuffer_load_dwordx4 {vr(F2D,4)}, v{vF2}, {srd(SWS)}, s{sF2R} offen sc1")
    a("s_mov_b32 exec_hi, -1")
at(OPT['p_f2'], f2_load)
def f2_check():
    a.wait(box['f2'])
    a(f"""
    s_mov_b32 s{sT[1]}, 0
    s_mov_b32 exec_hi, 0
    L_s2poll:
    v_min3_u32 v{F2D}, v{F2D}, v{F2D+1}, v{F2D+2}
    v_min_u32 v{F2D}, v{F2D}, v{F2D+3}
    v_cmp_ne_u32 vcc, 1, v{F2D}
    s_cbranch_vccz L_s2done
    buffer_load_dwordx4 {vr(F2D,4)}, v{vF2}, {srd(SWS)}, s{sF2R} offen sc1
    s_add_u32 s{sT[1]}, s{sT[1]}, 1
    s_cmp_lt_u32 s{sT[1]}, {SPIN}
    s_waitcnt vmcnt(0)
    s_cbranch_scc1 L_s2poll
    L_s2done:
    s_mov_b32 exec_hi, -1
    """)
    a.vm -= 1
    a(f"buffer_load_dword v{vG}, v{vG}, {srd(SWS)}, s{sGA} offen sc1")
    stamp(9)
at(OPT['p_chk'], f2_check)
D0, DE = OPT['d0'], OPT['dend']
allsl = [32 * t + o for t in range(D0, DE) for o in (8, 14, 24, 30)]
assert len(allsl) >= 56
slots = [allsl[(i * len(allsl)) // 56] for i in range(56)]
for u in range(18):
    pw = OPT['p_fill'] + OPT['p_fills'] * u if u < 4 else slots[4 * (u - 4)] + 1
    at(pw, lambda u=u: w_load_a(u)); at(pw + 3, lambda u=u: w_load_b(u))
    if u < 14:
        ph = OPT['p_chk'] + 2 + OPT.get('p_hs', 14) * u if u < 3 else slots[4 * (u - 3)] + 7
        at(ph, lambda u=u: h_load_a(u)); at(ph + 3, lambda u=u: h_load_b(u))
for u in range(14):
    rp = slots[0] - 14 if u == 0 else slots[4 * u - 2] + 1
    at(rp, lambda u=u: w_read(u, 0)); at(rp + 2, lambda u=u: w_read(u, 1))
    for k in range(4): at(slots[4 * u + k], lambda u=u, k=k: d_mfma(u, k))
for lo, hi, fr in ((0, B1, (OPT.get('la1', 30), OPT.get('la2', 70), OPT.get('la3', 94))), (B1, B2, (OPT.get('lb1', 35), OPT.get('lb2', 80), OPT.get('lb3', 96))),
                   (B2, NT, (OPT.get('lc1', 60), OPT.get('lc2', 87), OPT.get('lc3', 96)))):
    at(32 * lo + 1, lambda: a("s_setprio 3"))
    for k in range(3): at(32 * lo + (32 * (hi - lo) * fr[k]) // 100, lambda k=k: a(f"s_setprio {2-k}"))

tK = rdK(0); tV = rdV(None, 0)
a.wait(tK)
a(qk(SA, QA))
for t in range(NT):
    if t == B1:
        a.wait(kvtok[11]); a("s_barrier"); stamp(6)
    if t == B2:
        a.wait(kvtok[15]); a("s_barrier")
    for ph, (S, So, O, Oo, Qo) in enumerate(((SA, SB, OA, OB, QB), (SB, SA, OB, OA, QA))):
        for e in range(16):
            if e == 2:
                if ph == 0:
                    if t > 0: a(pv(Oo, V2, So + 8))
                    else: a.wait(tV)
                    tV = rdV(t, t + 1 if t + 1 < NT else None)
                else:
                    a.wait(tV, tK); a(pv(Oo, V2, So + 8))
            if (e == 5 and not (t == 0 and ph == 0)) or (t == 0 and ph == 0 and e == 0):
                if ph == 0:
                    a(qk(So, Qo))
                    if t + 1 < NT: tK = rdK(t + 1)
                elif t + 1 < NT: a(qk(So, Qo))
            if e == 11: a(pv(O, V1[t & 1], S))
            for f in ev.pop(32 * t + 16 * ph + e, []): f()
            a(f"v_exp_f32 v{S+e}, v{S+e}")
assert not ev, sorted(ev)
a(f"""
s_mul_i32 s{sT[0]}, s{sW}, 2304
s_add_u32 s{sT[0]}, s{sT[0]}, {MERGE}
""")
a(pv(OB, V2, SB + 8))
stamp(7)
a(f"""
s_xor_b32 s{sT[1]}, s{sW}, 4
s_mul_i32 s{sT[1]}, s{sT[1]}, 2304
s_add_u32 s{sT[1]}, s{sT[1]}, {MERGE}
v_add_u32 v{t0}, s{sT[0]}, v{vL16}
v_add_u32 v{t1}, s{sT[1]}, v{vL16}
v_lshl_add_u32 v{t2}, v{L}, 2, s{sT[0]}
v_lshl_add_u32 v{t3}, v{L}, 2, s{sT[1]}
s_add_u32 s{sOO}, s{sOO}, {WS_O}
s_mov_b32 s{sT[6]}, {fbits(2.0**-60):#x}
s_mov_b32 s{sT[7]}, {fbits(2.0**60):#x}
ds_write_b128 v{t0}, {vr(OB,4)}
ds_write_b128 v{t0}, {vr(OB+4,4)} offset:1024
ds_write_b32 v{t2}, v{OB+8} offset:2048
""")
a.wait_lg0()
a("s_barrier")
a(f"""
ds_read_b32 v{SB+8}, v{t3} offset:2048
ds_read_b128 {vr(SB,4)}, v{t1}
ds_read_b128 {vr(SB+4,4)}, v{t1} offset:1024
""")
a.wait_lg0()
a(f"v_add_f32 v{OA+8}, v{OA+8}, v{SB+8}")
for j in range(4): a(f"v_pk_add_f32 {vr(OA+2*j,2)}, {vr(OA+2*j,2)}, {vr(SB+2*j,2)}")
a(f"v_pk_mul_f32 {vr(t2,2)}, {vr(OA,2)}, 0 op_sel_hi:[1,0]")
for j in range(1, 4): a(f"v_pk_fma_f32 {vr(t2,2)}, {vr(OA+2*j,2)}, 0, {vr(t2,2)} op_sel_hi:[1,0,1]")
a(f"""
v_add_f32 v{t2}, v{t2}, v{t3}
v_add_f32 v{t2}, v{t2}, v{OA+8}
v_cmp_nle_f32 vcc, s{sT[6]}, v{t2}
v_cmp_nge_f32 s[{sT[2]}:{sT[3]}], s{sT[7]}, v{t2}
s_or_b64 vcc, vcc, s[{sT[2]}:{sT[3]}]
""")
if OPT['force_fb']: a("s_mov_b64 vcc, -1")
a("""
s_cbranch_vccnz L_true_max
L_norm:
""")
OS = 128
a(f"""
v_rcp_f32 v{t0}, v{OA+8}
s_nop 0
v_mul_f32 v{t0}, v{t0}, v{vG}
""")
for j in range(4): a(f"v_pk_mul_f32 {vr(OA+2*j,2)}, {vr(OA+2*j,2)}, {vr(t0,2)} op_sel_hi:[1,0]")
for j in range(4): a(f"v_cvt_pk_bf16_f32 v{OS+j}, v{OA+2*j}, v{OA+2*j+1}")
for j in range(4): a(f"v_min_u32 v{OS+j}, -2, v{OS+j}")
a(f"buffer_store_dwordx4 {vr(OS,4)}, v{vL16}, {srd(SWS)}, s{sOO} offen {'' if OPT['ofast'] else 'sc1'}")
stamp(8)

a(f"""
s_lshl_b32 s{sT[8]}, s{sW}, 13
s_xor_b32 s{sT[3]}, s{sT[8]}, 8192
v_add_u32 v{t0}, s{sT[3]}, v{vL16}
v_add_u32 v{t1}, s{sT[8]}, v{vL16}
""")
for j in range(8): a(f"ds_write_b128 v{t0}, {vr(DACC+32+4*j,4)} offset:{1024*j}")
OF, WOF, XT = 32, 176, 96
vO1 = 27
a(f"""
s_andn2_b32 s{sT[3]}, s{sRING}, 8192
v_add_u32 v24, s{sT[3]}, v{vTRP}
v_xor_b32 v25, 64, v24
v_sub_f32 v{vG}, 1.0, v{vG}
v_add_u32 v{vO1}, 4096, v{vL16}
s_and_b32 s{sT[1]}, s{sW}, 1
s_lshl1_add_u32 s{sT[0]}, s{sI}, s{sT[1]}
s_lshr_b32 s{sT[1]}, s{sW}, 1
s_lshl2_add_u32 s{sT[0]}, s{sT[0]}, s{sT[1]}
s_lshl_b32 s{sT[0]}, s{sT[0]}, 13
s_add_u32 s{sT[0]}, s{sT[0]}, {WS_O}
""")
for v in range(4):
    a(f"s_add_u32 s{sT[1]}, s{sU}, {v}\ns_and_b32 s{sT[1]}, s{sT[1]}, 3\ns_lshl_b32 s{sT[1]}, s{sT[1]}, 10\ns_add_u32 s{sT[4+v]}, s{sT[0]}, s{sT[1]}")
def o_loads():
    for v in range(8):
        a(f"buffer_load_dwordx4 {vr(OF + 4*v, 4)}, v{vO1 if v >> 2 else vL16}, {srd(SWS)}, s{sT[4 + (v&3)]} offen sc1")
a.wait(wtok[17])
if OPT.get('oearly'): o_loads()
a.wait(a.lastlg())
a("s_barrier")
if not OPT.get('oearly'): o_loads()
xt = [a(f"ds_read_b128 {vr(XT+4*j,4)}, v{t1} offset:{1024*j}") for j in range(8)]
def wo_read(v):
    slot = ((14 + v) & 3) * 2048 + (v >> 2) * 8192
    for b in range(2):
        for e in range(2):
            a(f"ds_read_b64_tr_b16 {vr(WOF + 8*v + 4*b + 2*e, 2)}, v{24 + b} offset:{slot + e*512}")
for j in range(8):
    a.wait(xt[j])
    wo_read(j)
    for i in range(2):
        r = 4 * j + 2 * i
        a(f"v_pk_add_f32 {vr(DACC+r,2)}, {vr(DACC+r,2)}, {vr(XT+r,2)}")
    for i in range(2):
        r = 4 * j + 2 * i
        a(f"v_pk_mul_f32 {vr(DACC+r,2)}, {vr(DACC+r,2)}, {vr(vG,2)} op_sel_hi:[1,0]")
a(f"""
v_and_b32 v{t0}, 31, v{L}
v_lshrrev_b32 v{t1}, 5, v{L}
v_and_b32 v{t2}, 7, v{L}
v_xor_b32 v{t1}, v{t1}, v{t2}
v_lshlrev_b32 v{t1}, 4, v{t1}
v_lshl_add_u32 v{t0}, v{t0}, 8, v{t1}
v_add_u32 v9, s{sT[8]}, v{t0}
v_xor_b32 v10, 32, v9
v_xor_b32 v11, 64, v9
v_xor_b32 v12, 0x60, v9
v_lshrrev_b32 v{t0}, 3, v{L}
v_lshlrev_b32 v{t1}, 1, v{t2}
v_xor_b32 v{t1}, v{t1}, v{t0}
v_lshlrev_b32 v{t1}, 4, v{t1}
v_lshl_add_u32 v{t1}, v{t0}, 8, v{t1}
v_add_u32 v1, s{sMX}, v{t1}
v_xor_b32 v2, 16, v1
s_lshl3_add_u32 s{sT[3]}, s{sI}, s{sW}
s_lshl_b32 s{sT[3]}, s{sT[3]}, 6
s_add_u32 s{sT[3]}, s{sT[3]}, s{sJ}
s_lshl_b32 s{sT[3]}, s{sT[3]}, 7
v_lshlrev_b32 v{t2}, 4, v{t2}
v_lshl_add_u32 v5, v{t0}, 10, v{t2}
s_mov_b32 s{sT[2]}, 0
L_s3poll:
""")
a.wait_vm0()
a(f"v_max_u32 v{t0}, v{OF}, v{OF+1}\nv_max_u32 v{t1}, v{OF+2}, v{OF+3}")
for j in range(2, 16): a(f"v_max3_u32 v{t0 + (j&1)}, v{t0 + (j&1)}, v{OF+2*j}, v{OF+2*j+1}")
a(f"""
v_max_u32 v{t0}, v{t0}, v{t1}
v_cmp_eq_u32 vcc, -1, v{t0}
s_cbranch_vccnz L_s3retry
L_s3done:
""")
stamp(10)
a.wait_lg0()
for v in range(8):
    for b in range(2):
        d = vr(DACC + 16 * b, 16)
        a(f"v_mfma_f32_32x32x16_bf16 {d}, {vr(WOF+8*v+4*b,4)}, {vr(OF+4*v,4)}, {d}")
if OPT['ofast']:
    a(f"buffer_store_dwordx4 {vr(OS,4)}, v{vL16}, {srd(SWS)}, s{sOO} offen sc1")
for b in range(2):
    for qd in range(4):
        a(f"ds_write_b128 v{9+qd}, {vr(DACC + 16*b + 4*qd, 4)} offset:{b*128}")
a.wait_lg0()
a("s_barrier")
RD = 176
rt = []
for p in range(4):
    for e in range(2):
        rt.append(a(f"ds_read_b128 {vr(RD + 8*p + 4*e, 4)}, v{1 + e} offset:{p*16384}"))
for p in range(1, 4):
    a.wait(rt[2 * p + 1])
    for j in range(4):
        a(f"v_pk_add_f32 {vr(RD+2*j,2)}, {vr(RD+2*j,2)}, {vr(RD+8*p+2*j,2)}")
for j in range(4): a(f"v_cvt_pk_bf16_f32 v{RD+j}, v{RD+2*j}, v{RD+2*j+1}")
a(f"buffer_store_dwordx4 {vr(RD,4)}, v5, {srd(SOUT)}, s{sT[3]} offen {['', 'sc1'][OPT['outm']]}")
if OPT['stamp']:
    a("s_waitcnt vmcnt(0)")
    stamp(11)
    a("s_waitcnt lgkmcnt(0)")
    a(f"s_mov_b32 s28, s{sT[2]}")
    if 'pad' in OPT:
        K = OPT['pad']
        a(f"s_and_b32 s{sT[0]}, s2, {OPT.get('padm', 0)}\ns_cmp_lg_u32 s{sT[0]}, {OPT.get('padv', 0)}\ns_cbranch_scc1 L_end")
        if K >= 0: a(f"s_sub_u32 s{sT[0]}, s{4+2*K}, s30\ns_mul_i32 s{sT[0]}, s{sT[0]}, 4")
        else: a(f"s_mov_b32 s{sT[0]}, 0")
        a(f"""
        s_add_u32 s{sT[0]}, s{sT[0]}, 6000
        L_pad:
        s_memrealtime s[{sT[2]}:{sT[3]}]
        s_waitcnt lgkmcnt(0)
        s_sub_u32 s{sT[2]}, s{sT[2]}, s30
        s_cmp_lt_u32 s{sT[2]}, s{sT[0]}
        s_cbranch_scc1 L_pad
        """)
    else:
        a(f"s_lshl3_add_u32 s{sT[0]}, s2, s{sW}\ns_lshl_b32 s{sT[0]}, s{sT[0]}, 6\ns_add_u32 s{sT[0]}, s{sT[0]}, {WS_STAMP}")
        a("v_mov_b32 v1, 0\ns_mov_b64 exec, 1")
        for k in range(14):
            a(f"v_mov_b32 v2, s{4+2*k}\nbuffer_store_dword v2, v1, {srd(SWS)}, s{sT[0]} offen offset:{4*k}")
a("L_end:\ns_endpgm")
a("L_s3retry:")
if OPT['ofast']:
    a(f"""
    s_cmp_lg_u32 s{sT[2]}, 2
    s_cbranch_scc1 L_s3nowt
    buffer_store_dwordx4 {vr(OS,4)}, v{vL16}, {srd(SWS)}, s{sOO} offen sc1
    L_s3nowt:
    """)
o_loads()
a(f"""
s_add_u32 s{sT[2]}, s{sT[2]}, 1
s_cmp_lt_u32 s{sT[2]}, {SPIN}
s_cbranch_scc1 L_s3poll
s_waitcnt vmcnt(0)
s_branch L_s3done
""")

for P in 'KVPS':
    a(f".p2align 6\nL_path{P}:")
    a.forget()
    proj_path(P)
    a("s_branch L_join")
for x in cold: a(x)

CM = SB
a(f"""
L_true_max:
s_waitcnt vmcnt(0) lgkmcnt(0)
v_mov_b32 v{t0}, 0xff800000
s_mov_b32 s{sT[0]}, {WS_KV}
L_tm1:
buffer_load_dwordx4 {vr(KF,4)}, v{vL16}, {srd(SWS)}, s{sT[0]} offen sc1
s_waitcnt vmcnt(0)
{qk(SA, QA)}
""")
for j in range(8): a(f"v_max3_f32 v{t0}, v{t0}, v{SA+2*j}, v{SA+2*j+1}")
a(f"""
s_add_u32 s{sT[0]}, s{sT[0]}, 2048
s_cmp_lt_u32 s{sT[0]}, {WS_KV + 64*2048}
s_cbranch_scc1 L_tm1
v_mov_b32 v{t1}, v{t0}
v_permlane32_swap_b32 v{t0}, v{t1}
v_max_f32 v{t0}, v{t0}, v{t1}
""")
for r in range(16): a(f"v_sub_f32 v{CM+r}, 0, v{t0}\nv_mov_b32 v{OA+r}, 0")
a(f"""
s_mov_b32 s{sT[0]}, {WS_KV}
L_tm2:
buffer_load_dwordx4 {vr(KF,4)}, v{vL16}, {srd(SWS)}, s{sT[0]} offen sc1
s_mov_b64 exec, s[{sT[8]}:{sT[9]}]
buffer_load_dwordx4 {vr(V1[0],4)}, v{vPV}, {srd(SWS)}, s{sT[0]} offen offset:1024 sc1
buffer_load_dwordx4 {vr(V2,4)}, v{vPV}, {srd(SWS)}, s{sT[0]} offen offset:1536 sc1
s_mov_b64 exec, -1
s_waitcnt vmcnt(0)
v_mfma_f32_32x32x16_bf16 {vr(SA,16)}, {vr(KF,4)}, {vr(QA,4)}, {vr(CM,16)}
""")
for e in range(16): a(f"v_exp_f32 v{SA+e}, v{SA+e}")
a(pv(OA, V1[0], SA)); a(pv(OA, V2, SA + 8))
a(f"""
s_add_u32 s{sT[0]}, s{sT[0]}, 2048
s_cmp_lt_u32 s{sT[0]}, {WS_KV + 64*2048}
s_nop 7
s_cbranch_scc1 L_tm2
s_nop 7
s_branch L_norm
L_last:
""")

bad = a.check_branches()
assert not bad, bad

hdr = open(f'cdna_kernels/{NAME}.s.ref').read().split('\n')
head = [l for l in hdr if l.startswith(';') and '@launch' not in l]
out = "\n".join(head) + f"\n; @launch grid=(256,1,1) block=(512,1,1) lds={LDS_BYTES}\n"
out += f""".amdgcn_target "amdgcn-amd-amdhsa--gfx950"
.text
.globl {NAME}_kernel
.p2align 8
.type {NAME}_kernel,@function
{NAME}_kernel:
{a.text()}
.section .rodata,"a"
.p2align 6
.amdhsa_kernel {NAME}_kernel
  .amdhsa_next_free_vgpr 256
  .amdhsa_next_free_sgpr 102
  .amdhsa_accum_offset 256
  .amdhsa_group_segment_fixed_size 0
  .amdhsa_kernarg_size 104
  .amdhsa_user_sgpr_count 2
  .amdhsa_user_sgpr_kernarg_segment_ptr 1
  .amdhsa_system_sgpr_workgroup_id_x 1
.end_amdhsa_kernel
"""
open(sys.argv[1], 'w').write(out)
print("instructions:", sum(1 for i in a.ins if i.ws), "auto nops:", a.nnop, file=sys.stderr)
```

```python
import sys, math, struct
sys.path.insert(0, 'gen')
from asmlib import Asm

NAME = 'gated_mix__grouped_kv_mqa__geglu_ffn__prompt'
OPT = dict(stamp=0, grp=0, force_fb=0, qflag=11, s1=16, b2=22, outm=1, ofast=0,
           p_kv=40, p_kvs=18, p_flag=112, p_fill=120, p_fills=40, p_kv2=272, p_f2=300, p_chk=340, d0=12, dend=32,
           late=1, pk2=1, nearly=1, h0w=27, h1w=30, clw=22, na=1, gend=30, dwt=4, qbar=0, cpf=1, qmode=0, qf=11, exs=3, spf=0, pb=2)
for x in sys.argv[2:]:
    k, v = x.split('='); OPT[k] = int(v)

def fbits(x): return struct.unpack('<I', struct.pack('<f', x))[0]

WS_KV, WS_G, WS_F1, WS_Q, WS_O, WS_H, WS_STAMP = 0, 0x20000, 0x30000, 0x100000, 0x300000, 0x500000, 0xC00000
WS_F2 = WS_F1 + 8192
WS_SIZE = 0x1000000
CLEAR_WG = 128
WR, EX = 65536, 131072
NSLOT, HALF, RING = 24, 49152, 98304
MERGE = 65536
LDS_BYTES = 163840
SPIN = 0x40000
SX, SWG, SWU, SWQ, SEX, SWS, SDBG, SWD, SWO, SOUT = 32, 36, 40, 44, 48, 52, 56, 60, 64, 92
sW, sTI, sQ, sU, sROT, sXO, sWOF, sMX, sMW, sI, sJ, sROT0 = range(68, 80)
sT = list(range(80, 90))
sEXW, sEXO = 90, 91
sC1 = 96
sF2, sRH, sRING, sOO = 98, 99, 100, 101
sHO = 3
sKVM, sKVO, sQA, sGA = 32, 33, 34, 35
sF2R = 46
sR = [sRH, 44, 45, 47]
def srd(n): return f"s[{n}:{n+3}]"
def vr(b, n): return f"v[{b}:{b+n-1}]"

vXS0, vXS1, vWS = 1, 2, 3
vST = 4
vXR = [5, 6, 7, 8]
vWR = [9, 10]
vES, vER, vSA = 11, [12, 13], 30
vL16, vLANE = 14, 15
vC0 = 16
vZ = 17
vGT = 18
t0, t1, t2, t3 = 20, 21, 22, 23
vS0, vWS2 = 28, 27
vPV, vPD, vTRP = 29, 0, 31
F = [32, 48]
ACC = [64, 96]
XF = 128
ACCE, WE = 96, 100
GW = 147456
L = vLANE
QA, QB, KF, V2, V1 = 128, 132, 136, 140, [144, 148]
vG, vIDX, vAK, vAV, vKVS = 152, 154, 155, 156, 157
vDR0, vDR1, vH0, vH1 = 159, 160, 161, 162
vDS, vDS1, vF2 = vPD, 158, vL16
F2D = 164
OA, OB, SA, SB = 176, 192, 208, 224
WF = [240, 248]
HF = [32, 40, 48, 56]
DACC = 64

a = Asm()
CLK = 's_memtime' if OPT['stamp'] == 2 else 's_memrealtime'
def stamp(k, grp=0):
    if grp != OPT['grp'] and k != 11: return
    if OPT['stamp']: a(f"{CLK} s[{4+2*k}:{5+2*k}]")
def mk_srd(n, p, size):
    a(f"s_mov_b32 s{n}, s{p}\ns_mov_b32 s{n+1}, s{p+1}\ns_mov_b32 s{n+2}, {size}\ns_mov_b32 s{n+3}, 0x20000")

PG = 3584
C0 = -2.0 * math.sqrt(2.0 / math.pi) * math.log2(math.e)
C1 = C0 * 0.044715
QS = 0.25 * math.log2(math.e)

a("s_cmp_ge_u32 s2, 256\ns_cbranch_scc1 L_end")
a("s_load_dwordx16 s[4:19], s[0:1], 0\ns_load_dwordx8 s[20:27], s[0:1], 64\ns_load_dwordx2 s[28:29], s[0:1], 96")
if OPT['stamp']: a(f"{CLK} s[30:31]")
def code_prefetch():
    a(f"""
    s_getpc_b64 s[{sT[8]}:{sT[9]}]
    L_pc:
    s_andn2_b32 s{sT[7]}, s2, 7
    s_lshl_b32 s{sT[7]}, s{sT[7]}, 8
    v_lshl_add_u32 v{t3}, v0, 2, s{sT[7]}
    v_min_u32 v{t3}, L_last-L_pc-4, v{t3}
    s_mov_b32 exec_lo, 1
    s_mov_b32 exec_hi, 1
    global_load_dword v{vS0}, v{t3}, s[{sT[8]}:{sT[9]}]
    s_mov_b64 exec, -1
    """)
if OPT['cpf'] == 1: code_prefetch()
a(f"""
v_readfirstlane_b32 s{sW}, v0
v_lshrrev_b32 v{t1}, 4, v0
v_lshrrev_b32 v{t0}, 3, v0
v_xor_b32 v{t1}, v0, v{t1}
s_lshr_b32 s{sU}, s2, 6
s_bfe_u32 s{sJ}, s2, 0x30003
v_and_b32 v{t1}, 7, v{t1}
s_and_b32 s{sT[2]}, s2, 1
s_lshl3_add_u32 s{sTI}, s{sT[2]}, s{sJ}
v_lshlrev_b32 v{t1}, 4, v{t1}
s_lshl1_add_u32 s{sROT0}, s{sU}, s{sJ}
s_and_b32 s{sROT0}, s{sROT0}, 7
v_lshl_add_u32 v{vXS0}, v{t0}, 10, v{t1}
s_lshl_b32 s{sT[0]}, s{sTI}, 17
s_lshl_b32 s{sXO}, s{sROT0}, 7
s_add_u32 s{sXO}, s{sXO}, s{sT[0]}
s_lshl_b32 s{sMW}, s{sW}, 4
s_mov_b32 m0, s{sMW}
s_mov_b32 s{SX+2}, {2048*1024}
s_mov_b32 s{SX+3}, 0x20000
""")
a(f"""
s_bfe_u32 s{sT[1]}, s{sW}, 0x10006
s_lshl_b32 s{sT[1]}, s{sT[1]}, 2
v_and_or_b32 v{t1}, v{t0}, 2, s{sT[1]}
s_bfe_u32 s{sQ}, s2, 0x20001
s_mul_i32 s{sT[1]}, s{sQ}, 7
v_xor_b32 v{t1}, v0, v{t1}
s_lshl1_add_u32 s{sT[1]}, s{sU}, s{sT[1]}
s_sub_u32 s{sT[1]}, s{sT[1]}, 1
v_and_b32 v{t1}, 7, v{t1}
s_lshl_b32 s{sT[2]}, s{sQ}, 1
s_movk_i32 s{sT[3]}, {PG}
v_lshlrev_b32 v{vWS2}, 4, v{t1}
s_mov_b32 s{SWG+3}, 0x20000
s_mov_b32 s{SWU+3}, 0x20000
s_cmp_eq_u32 s{sU}, 0
s_cselect_b32 s{sT[1]}, s{sT[2]}, s{sT[1]}
s_cselect_b32 s{sT[3]}, 1024, s{sT[3]}
s_cselect_b32 s{sT[2]}, 128, 0
v_mad_u32_u24 v{vWS}, v{t0}, s{sT[3]}, v{vWS2}
s_lshl_b32 s{SWG+2}, s{sT[3]}, 9
s_mov_b32 s{SWU+2}, s{SWG+2}
s_mul_i32 s{sWOF}, s{sROT0}, s{sT[3]}
s_lshl1_add_u32 s{sWOF}, s{sT[1]}, s{sWOF}
s_lshl_b32 s{sWOF}, s{sWOF}, 6
s_cmp_eq_u32 s{sU}, 0
{CLK + ' s[84:85]' if OPT['grp'] == 5 else ''}
s_waitcnt lgkmcnt(0)
{CLK + ' s[86:87]' if OPT['grp'] == 5 else ''}
s_mov_b64 s[{SX}:{SX+1}], s[4:5]
buffer_load_dwordx4 v{vXS0}, {srd(SX)}, s{sXO} offen lds
s_cselect_b64 s[{SWG}:{SWG+1}], s[6:7], s[16:17]
s_cselect_b64 s[{SWU}:{SWU+1}], s[6:7], s[18:19]
s_add_u32 m0, s{sMW}, {WR}
s_add_u32 s{sXO}, s{sXO}, 65536
buffer_load_dwordx4 v{vWS}, {srd(SWG)}, s{sWOF} offen lds
s_add_u32 m0, s{sMW}, {WR + 8192}
s_add_u32 s{sWOF}, s{sWOF}, s{sT[2]}
buffer_load_dwordx4 v{vWS}, {srd(SWU)}, s{sWOF} offen lds
s_add_u32 m0, s{sMW}, 8192
s_nop 0
buffer_load_dwordx4 v{vXS0}, {srd(SX)}, s{sXO} offen lds
""")
if OPT['grp'] == 5: a(f"{CLK} s[88:89]\ns_waitcnt lgkmcnt(0)\ns_mov_b32 s4, s84\ns_mov_b32 s14, s86\ns_mov_b32 s5, s88")
a(f"""
s_lshr_b32 s{sW}, s{sW}, 6
v_add_u32 v{vXS0}, s{sT[0]}, v{vXS0}
v_add_u32 v{vXS1}, 0x10000, v{vXS0}
s_lshl_b32 s{sT[1]}, s{sT[1]}, 7
v_add_u32 v{vWS}, s{sT[1]}, v{vWS}
s_movk_i32 s{sT[3]}, {PG}
v_mad_u32_u24 v{vWS2}, v{t0}, s{sT[3]}, v{vWS2}
s_mul_i32 s{sT[1]}, s{sQ}, {7*128}
v_add_u32 v{vWS2}, s{sT[1]}, v{vWS2}
v_and_b32 v{L}, 63, v0
v_lshlrev_b32 v{vL16}, 4, v{L}
s_and_b32 s{sT[0]}, s2, 7
s_lshl2_add_u32 s{sI}, s{sT[0]}, s{sU}
s_add_u32 s{sROT}, s{sROT0}, 1
s_and_b32 s{sROT}, s{sROT}, 7
s_lshl_b32 s{sMX}, s{sW}, 11
""")
def dispatch():
    a(f"""
    s_lshr_b32 s{sT[1]}, s{sW}, 2
    s_lshl1_add_u32 s{sT[0]}, s{sU}, s{sT[1]}
    s_lshr_b32 s{sT[1]}, s{sQ}, 1
    s_lshl1_add_u32 s{sT[0]}, s{sT[0]}, s{sT[1]}
    s_cmp_eq_u32 s{sT[0]}, 0
    s_cbranch_scc1 L_pathK
    s_cmp_eq_u32 s{sT[0]}, 1
    s_cbranch_scc1 L_pathV
    s_cmp_lt_u32 s{sT[0]}, 4
    s_cbranch_scc1 L_pathP
    s_cmp_eq_u32 s{sT[0]}, 4
    s_cbranch_scc1 L_pathS
    """)

PATH = ['G']
def wslot(sig):
    if sig < 8: return WR + (sig & 3) * 16384
    if sig >= 14: return EX + (sig - 14) * 16384
    return (0 if sig & 1 else WR) + ((sig - 8) >> 1) * 16384
def waddr(sig, b):
    return {0: vXR[b], 1: vWR[b], 2: vXR[2 + b]}[wslot(sig) >> 16]

def dma_ops(sig, path):
    p = sig >> 3
    isq = (path in 'KVP' and p == 0)
    pitch = 1024 if isq else PG
    sa, sb = (SWQ, SWQ) if isq else (SWG, SWU)
    xs, ws = (sig & 3) * 16384, wslot(sig)
    pre = f"s_mul_i32 s{sWOF}, s{sROT}, {64*pitch}\n"
    if path in 'GS' and p == 1: pre += f"s_add_u32 s{sWOF}, s{sWOF}, 128\n"
    mid = f"s_add_u32 s{sWOF}, s{sWOF}, 128\n" if isq else ""
    inc, wrap = f"s_add_u32 s{sROT}, s{sROT}, 1\n", f"s_and_b32 s{sROT}, s{sROT}, 7\n"
    vw = vWS2 if (path in 'KVP' and p == 1) else vWS
    wa = f"s_add_u32 m0, s{sMW}, {ws}\n{{}}buffer_load_dwordx4 v{vw}, {srd(sa)}, s{sWOF} offen lds"
    wb = f"s_add_u32 m0, s{sMW}, {ws+8192}\n{{}}buffer_load_dwordx4 v{vw}, {srd(sb)}, s{sWOF} offen lds"
    if p == 0:
        return [f"s_add_u32 m0, s{sMW}, {xs}\ns_lshl_b32 s{sXO}, s{sROT}, 7\nbuffer_load_dwordx4 v{vXS0}, {srd(SX)}, s{sXO} offen lds",
                wa.format(pre), wb.format(mid + inc),
                f"s_add_u32 m0, s{sMW}, {xs+8192}\n{wrap}buffer_load_dwordx4 v{vXS1}, {srd(SX)}, s{sXO} offen lds"]
    return [wa.format(pre), wb.format(inc + wrap)]

def setup_common():
    mk_srd(SWS, 28, WS_SIZE); mk_srd(SDBG, 26, 256); mk_srd(SWD, 20, 1792 * 1024); mk_srd(SWO, 12, 512 * 1024); mk_srd(SOUT, 24, 2048 * 1024)
    a(f"""
    s_and_b32 s{sT[0]}, s{sW}, 3
    s_lshr_b32 s{sT[1]}, s{sW}, 2
    s_xor_b32 s{sT[5]}, s{sT[1]}, s{sQ}
    s_and_b32 s{sT[5]}, s{sT[5]}, 1
    s_lshl1_add_u32 s{sT[0]}, s{sT[0]}, s{sT[5]}
    s_lshl_b32 s{sT[0]}, s{sT[0]}, 11
    v_and_b32 v{t0}, 15, v{L}
    v_bfe_u32 v{t1}, v{L}, 1, 3
    v_lshrrev_b32 v{t2}, 4, v{L}
    v_xor_b32 v{t1}, v{t1}, v{t2}
    v_lshlrev_b32 v{t1}, 4, v{t1}
    v_lshl_add_u32 v{t1}, v{t0}, 7, v{t1}
    v_add_u32 v{vXR[0]}, s{sT[0]}, v{t1}
    v_xor_b32 v{vXR[1]}, 0x800, v{vXR[0]}
    v_xor_b32 v{vXR[2]}, 64, v{vXR[0]}
    v_xor_b32 v{vXR[3]}, 64, v{vXR[1]}
    s_lshl_b32 s{sT[2]}, s{sT[5]}, 8
    v_xor_b32 v{vST}, s{sT[2]}, v{vL16}
    """)
    a(f"""
    v_lshrrev_b32 v{t3}, 5, v{L}
    v_lshlrev_b32 v{t0}, 4, v{t0}
    v_lshl_add_u32 v{vPV}, v{t3}, 8, v{t0}
    """)
    a(f"""
    v_bfe_u32 v{t0}, v{L}, 2, 2
    v_lshl_add_u32 v{t1}, v{t2}, 3, v{t0}
    v_lshlrev_b32 v{t1}, 7, v{t1}
    v_bfe_u32 v{t2}, v{L}, 3, 2
    s_lshl_b32 s{sT[1]}, s{sT[1]}, 1
    v_xor_b32 v{t2}, s{sT[1]}, v{t2}
    v_lshl_add_u32 v{t1}, v{t2}, 5, v{t1}
    v_and_b32 v{t2}, 3, v{L}
    v_lshl_add_u32 v{t1}, v{t2}, 3, v{t1}
    v_add_u32 v{vWR[0]}, {WR}, v{t1}
    v_xor_b32 v{vWR[1]}, 32, v{vWR[0]}
    """)
    a(f"""
    v_lshl_add_u32 v{t3}, v{t3}, 3, v{t0}
    v_lshlrev_b32 v{t3}, 7, v{t3}
    v_lshrrev_b32 v{t0}, 1, v{t0}
    v_lshl_add_u32 v{t3}, v{t0}, 6, v{t3}
    v_lshl_add_u32 v{t3}, v{t2}, 3, v{t3}
    v_bfe_u32 v{t2}, v{L}, 4, 1
    v_lshl_add_u32 v{vTRP}, v{t2}, 5, v{t3}
    v_lshlrev_b32 v{t2}, 2, v{t2}
    v_and_b32 v{t1}, 7, v{L}
    v_xor_b32 v{t1}, v{t1}, v{t2}
    v_lshlrev_b32 v{t1}, 4, v{t1}
    v_lshrrev_b32 v{t0}, 3, v{L}
    v_lshl_add_u32 v{t0}, v{t0}, 10, v{t1}
    s_lshl_b32 s{sT[0]}, s{sJ}, 7
    v_add_u32 v{vPD}, s{sT[0]}, v{t0}
    v_mov_b32 v{vZ}, 0
    v_mov_b32 v{vC0}, {fbits(C0):#x}
    s_mov_b32 s{sC1}, {fbits(C1):#x}
    s_mov_b32 s{sC1+1}, {fbits(C1):#x}
    """)
    a(f"""
    s_lshr_b32 s{sT[3]}, s{sW}, 2
    s_and_b32 s{sT[1]}, s{sW}, 3
    s_lshl2_add_u32 s{sT[0]}, s{sTI}, s{sT[1]}
    s_lshl_b32 s{sT[8]}, s{sT[0]}, 5
    s_and_b32 s{sT[2]}, s{sT[0]}, 15
    s_lshr_b32 s{sT[0]}, s{sT[0]}, 4
    s_mul_i32 s{sT[0]}, s{sT[0]}, 112
    s_mul_i32 s{sT[1]}, s{sQ}, 28
    s_add_u32 s{sT[0]}, s{sT[0]}, s{sT[1]}
    s_lshl3_add_u32 s{sT[0]}, s{sU}, s{sT[0]}
    s_lshl1_add_u32 s{sT[0]}, s{sT[3]}, s{sT[0]}
    s_lshl4_add_u32 s{sT[0]}, s{sT[0]}, s{sT[2]}
    s_lshl_b32 s{sT[0]}, s{sT[0]}, 10
    s_add_u32 s{sHO}, s{sT[0]}, {WS_H}
    s_lshl3_add_u32 s{sT[4]}, s{sQ}, s{sT[8]}
    s_lshl1_add_u32 s{sT[4]}, s{sT[3]}, s{sT[4]}
    s_lshl_b32 s{sT[4]}, s{sT[4]}, 10
    s_lshl2_add_u32 s{sT[1]}, s{sQ}, s{sU}
    s_lshl4_add_u32 s{sF2}, s{sTI}, s{sT[1]}
    s_lshl3_add_u32 s{sF2}, s{sF2}, s{sW}
    s_lshl_b32 s{sF2}, s{sF2}, 2
    s_add_u32 s{sF2}, s{sF2}, {WS_F2}
    s_lshl1_add_u32 s{sT[9]}, s{sT[1]}, s{sT[8]}
    s_add_u32 s{sT[9]}, s{sT[9]}, s{sT[3]}
    s_lshl_b32 s{sT[9]}, s{sT[9]}, 10
    s_add_u32 s{sT[9]}, s{sT[9]}, {WS_O}
    s_and_b32 s{sT[1]}, s{sW}, 1
    s_lshl1_add_u32 s{sT[1]}, s{sI}, s{sT[1]}
    s_lshl3_add_u32 s{sT[2]}, s{sT[1]}, s{sJ}
    s_lshl_b32 s{sT[2]}, s{sT[2]}, 2
    s_and_b32 s{sT[1]}, s{sW}, 2
    s_add_u32 s{sT[2]}, s{sT[2]}, s{sT[1]}
    s_add_u32 s{sT[2]}, s{sT[2]}, s{sT[3]}
    s_lshl_b32 s{sOO}, s{sT[2]}, 10
    s_lshl_b32 s{sRING}, s{sW}, 13
    s_add_u32 s{sRING}, s{sRING}, {RING}
    s_mul_i32 s{sRH}, s{sJ}, 7
    s_lshr_b32 s{sRH}, s{sRH}, 2
    s_mul_i32 s{sT[1]}, s{sU}, 7
    s_lshr_b32 s{sT[1]}, s{sT[1]}, 1
    s_add_u32 s{sRH}, s{sRH}, s{sT[1]}
    s_cmp_ge_u32 s{sRH}, 14
    s_cselect_b32 s{sT[1]}, 14, 0
    s_sub_u32 s{sRH}, s{sRH}, s{sT[1]}
    s_lshl_b32 s{sRH}, s{sRH}, 14
    s_mul_i32 s{sT[1]}, s{sW}, {14*16384}
    s_add_u32 s{SWD}, s{SWD}, s{sT[1]}
    s_addc_u32 s{SWD+1}, s{SWD+1}, 0
    s_sub_u32 s{SWD+2}, s{SWD+2}, s{sT[1]}
    s_lshl_b32 s{sT[1]}, s{sW}, 16
    s_add_u32 s{SWO}, s{SWO}, s{sT[1]}
    s_addc_u32 s{SWO+1}, s{SWO+1}, 0
    s_sub_u32 s{SWO+2}, s{SWO+2}, s{sT[1]}
    """)

def setup_path(P):
    if P in 'KV':
        a(f"""
        v_lshrrev_b32 v{t2}, 4, v{L}
        v_and_b32 v{t0}, 15, v{L}
        v_lshlrev_b32 v{t1}, 3, v{t0}
        v_lshl_add_u32 v{t1}, v{t2}, 8, v{t1}
        v_and_b32 v{t3}, 1, v{t2}
        v_lshl_add_u32 v{t1}, v{t3}, 7, v{t1}
        v_add_u32 v{vER[0]}, {EX}, v{t1}
        v_xor_b32 v{vER[1]}, 0x80, v{vER[0]}
        v_lshlrev_b32 v{t1}, 7, v{t3}
        v_xor_b32 v{vES}, v{t1}, v{vL16}
        s_add_u32 s{sEXO}, s{sW}, s{sROT0}
        s_and_b32 s{sEXO}, s{sEXO}, 7
        s_lshl_b32 s{sEXO}, s{sEXO}, 11
        s_lshr_b32 s{sEXW}, s{sT[4]}, 15
        v_lshrrev_b32 v{t2}, 1, v{t2}
        """)
        if P == 'K':
            a(f"""
            s_lshl3_add_u32 s{sEXW}, s{sEXW}, s{sT[5]}
            s_lshl_b32 s{sEXW}, s{sEXW}, 8
            v_lshlrev_b32 v{t2}, 9, v{t2}
            """)
        else:
            a(f"""
            s_lshl2_add_u32 s{sEXW}, s{sEXW}, s{sT[5]}
            s_lshl_b32 s{sEXW}, s{sEXW}, 9
            s_add_u32 s{sEXW}, s{sEXW}, 1024
            v_lshlrev_b32 v{t2}, 8, v{t2}
            v_and_b32 v{t0}, 3, v{L}
            v_bfe_u32 v{t1}, v{L}, 2, 1
            v_lshl_add_u32 v{t0}, v{t1}, 3, v{t0}
            v_bfe_u32 v{t1}, v{L}, 3, 1
            v_lshl_add_u32 v{t0}, v{t1}, 2, v{t0}
            """)
        a(f"""
        v_lshl_add_u32 v{t2}, v{t0}, 4, v{t2}
        v_lshl_add_u32 v{vSA}, v{t3}, 3, v{t2}
        """)
    if P == 'P':
        a(f"""
        v_bfe_u32 v{t1}, v{L}, 4, 1
        v_lshlrev_b32 v{t1}, 7, v{t1}
        v_xor_b32 v{vES}, v{t1}, v{vL16}
        s_add_u32 s{sEXO}, s{sW}, s{sROT0}
        s_and_b32 s{sEXO}, s{sEXO}, 7
        s_lshl_b32 s{sEXO}, s{sEXO}, 11
        """)
    if P == 'S':
        a(f"""
        s_lshl_b32 s{sEXO}, s{sROT0}, 7
        v_add_u32 v{vES}, s{sEXO}, v{vL16}
        v_and_b32 v{vES}, 0x3ff, v{vES}
        v_and_b32 v{t0}, 48, v{L}
        v_add_u32 v{vER[0]}, {GW}, v{t0}
        v_and_b32 v{t0}, 15, v{L}
        v_lshlrev_b32 v{vSA}, 2, v{t0}
        s_lshr_b32 s{sEXW}, s{sT[4]}, 15
        s_lshl1_add_u32 s{sEXW}, s{sEXW}, s{sT[5]}
        s_lshl_b32 s{sEXW}, s{sEXW}, 6
        s_add_u32 s{sEXW}, s{sEXW}, {WS_G}
        """)

def x_reads(sig, j):
    return [f"ds_read_b128 {vr(XF + 16*sig + 8*j + 4*tq, 4)}, v{vXR[2*j+tq]} offset:{(sig & 3) * 16384}" for tq in range(2)]
def w_reads(sig, j, i):
    b, part = i >> 1, i & 1
    off = (wslot(sig) & 0xffff) + part * 8192 + j * 4096
    return [f"ds_read_b64_tr_b16 {vr(F[j] + 4*i + 2*e, 2)}, v{waddr(sig, b)} offset:{off + e*512}" for e in range(2)]
def e_steps(c):
    c0 = 2 * OPT['exs']
    if PATH[0] in 'KVS': return [2 * (c - c0), 2 * (c - c0) + 1] if c0 <= c < 2 * c0 else ([c] if 2 * c0 <= c < 16 else [])
    return []
def e_buf(c, i): return WE + 16 if (PATH[0] == 'S' and c == 15) else WE + 8 * (c & 1) + 4 * i
def e_reads(c):
    if PATH[0] == 'S':
        cs = [] if c == 15 else ([14, 15] if c == 14 else [c])
        return [f"ds_read_b128 {vr(e_buf(x, i), 4)}, v{vER[0]} offset:{k*64}" for x in cs for i, k in enumerate(e_steps(x))]
    return [f"ds_read_b64_tr_b16 {vr(e_buf(c, i) + 2*e, 2)}, v{vER[e]} offset:{k*1024}" for i, k in enumerate(e_steps(c)) for e in range(2)]
def e_mfmas(c):
    out = []
    for i, k in enumerate(e_steps(c)):
        acc, w, x = vr(ACCE, 4), vr(e_buf(c, i), 4), vr(XF + 8 * k, 4)
        A, B = (x, w) if PATH[0] == 'V' else (w, x)
        out.append(f"v_mfma_f32_16x16x32_bf16 {acc}, {A}, {B}, {'0' if k == 0 else acc}")
    return out
def mfmas(sig, j):
    out = []
    for i in range(4):
        for tq in range(2):
            d = vr(ACC[sig >> 3] + 8 * i + 4 * tq, 4)
            c = "0" if ((sig & 7) == 0 and j == 0) else d
            out.append(f"v_mfma_f32_16x16x32_bf16 {d}, {vr(F[j] + 4*i, 4)}, {vr(XF + 16*(sig&7) + 8*j + 4*tq, 4)}, {c}")
    return out

def gelu_pair(base, j, T=vGT, pk=False):
    G = vr(base + 2 * j, 2); U = vr(base + 8 + 2 * j, 2); TT = vr(T, 2)
    g0, g1, u0, u1 = base + 2 * j, base + 2 * j + 1, base + 8 + 2 * j, base + 9 + 2 * j
    if pk:
        return [f"v_pk_mul_f32 {TT}, {G}, {G}",
                f"v_pk_fma_f32 {TT}, {TT}, s[{sC1}:{sC1+1}], {vr(vC0,2)} op_sel_hi:[1,1,0]",
                f"v_pk_mul_f32 {TT}, {TT}, {G}",
                f"v_exp_f32 v{T}, v{T}", f"v_exp_f32 v{T+1}, v{T+1}",
                f"v_pk_mul_f32 {G}, {G}, {U}",
                f"v_pk_add_f32 {TT}, {TT}, 1.0 op_sel_hi:[1,0]",
                f"v_rcp_f32 v{T}, v{T}", f"v_rcp_f32 v{T+1}, v{T+1}",
                f"v_pk_mul_f32 {G}, {G}, {TT}",
                f"v_cvt_pk_bf16_f32 v{base+j}, v{g0}, v{g1}"]
    return [f"v_mul_f32 v{T}, v{g0}, v{g0}", f"v_mul_f32 v{T+1}, v{g1}, v{g1}",
            f"v_fma_f32 v{T}, v{T}, s{sC1}, v{vC0}", f"v_fma_f32 v{T+1}, v{T+1}, s{sC1}, v{vC0}",
            f"v_mul_f32 v{T}, v{T}, v{g0}", f"v_mul_f32 v{T+1}, v{T+1}, v{g1}",
            f"v_exp_f32 v{T}, v{T}", f"v_exp_f32 v{T+1}, v{T+1}",
            f"v_mul_f32 v{g0}, v{g0}, v{u0}", f"v_add_f32 v{T}, 1.0, v{T}", f"v_add_f32 v{T+1}, 1.0, v{T+1}",
            f"v_rcp_f32 v{T}, v{T}", f"v_rcp_f32 v{T+1}, v{T+1}",
            f"v_mul_f32 v{g1}, v{g1}, v{u1}",
            f"v_mul_f32 v{g0}, v{g0}, v{T}", f"v_mul_f32 v{g1}, v{g1}, v{T+1}",
            f"v_cvt_pk_bf16_f32 v{base+j}, v{g0}, v{g1}"]
def to_frag(base):
    return [f"v_permlane16_swap_b32 v{base}, v{base+2}", f"v_permlane16_swap_b32 v{base+1}, v{base+3}"]

def cost(x):
    c = 0
    for l in x.strip().split('\n'):
        l = l.strip()
        if not l or l.startswith(';') or l.endswith(':'): continue
        c += 8 if l.startswith(('v_exp', 'v_rcp')) else (OPT.get('vmc', 16) if l.startswith('buffer_') else 4)
    return c

kvtok = {}
def kv_step(m):
    slot = (4 * m % NSLOT) * 2048
    if m == 0: x = f"s_mov_b32 m0, s{sKVM}\ns_nop 0\n"
    else: x = f"s_add_u32 s{sKVO}, s{sKVO}, 8192\ns_add_u32 m0, s{sKVM}, {slot}\ns_and_b32 s{sKVO}, s{sKVO}, 0xffff\n"
    return [x + f"buffer_load_dwordx4 v{vKVS}, {srd(SWS)}, s{sKVO} offen sc1 lds", f"buffer_load_dwordx4 v{vKVS}, {srd(SWS)}, s{sKVO} offen offset:1024 sc1 lds"]
KV_FIRST = 2
def first_loads():
    return [f"buffer_load_dwordx4 {vr(QA,4)}, v{vL16}, {srd(SWS)}, s{sQA} offen sc1\ns_xor_b32 s{sQA}, s{sQA}, 1024"] + kv_step(0) + \
           [f"buffer_load_dwordx4 {vr(QB,4)}, v{vL16}, {srd(SWS)}, s{sQA} offen sc1"] + kv_step(1)

def setup_queue():
    q = []
    def add(st, txt):
        for l in txt.strip().split('\n'): q.append((st, l.strip().replace('|', '\n')))
    add(11, f"""
    s_lshr_b32 s{sT[3]}, s{sW}, 2
    s_and_b32 s{sT[5]}, s{sW}, 1
    s_lshl_b32 s{sT[6]}, s{sT[3]}, 16
    v_add_u32 v{vKVS}, s{sT[6]}, v{vL16}
    s_mul_i32 s{sT[3]}, s{sT[3]}, {HALF}
    v_add_u32 v{vAK}, s{sT[3]}, v{vL16}
    v_add_u32 v{vAV}, s{sT[3]}, v{vPV}
    s_and_b32 s{sT[6]}, s{sW}, 3
    s_lshl_b32 s{sT[7]}, s{sT[6]}, 11
    s_add_u32 s{sKVM}, s{sT[7]}, s{sT[3]}
    s_lshr_b32 s{sT[7]}, s2, 3
    s_add_u32 s{sT[6]}, s{sT[6]}, s{sT[7]}
    s_and_b32 s{sT[6]}, s{sT[6]}, 31
    s_lshl_b32 s{sKVO}, s{sT[6]}, 11
    s_add_u32 s{sQA}, s{sOO}, {WS_Q}
    s_xor_b32 s{sQA}, s{sQA}, 1024
    s_lshl1_add_u32 s{sGA}, s{sI}, s{sT[5]}
    s_lshl_b32 s{sGA}, s{sGA}, 7
    s_add_u32 s{sGA}, s{sGA}, {WS_G}
    v_and_b32 v{vG}, 31, v{L}
    v_lshlrev_b32 v{vG}, 2, v{vG}
    v_mov_b32 v{vIDX}, 0xdddddddd
    v_mov_b32 v{V2+1}, 0x3f803f80
    s_mov_b32 vcc_lo, 0x110000|s_mov_b32 vcc_hi, 0x110000|v_cndmask_b32 v{V2}, 0, v{V2+1}, vcc
    """)
    for r in range(V2 + 1, V2 + 12): add(11, f"v_mov_b32 v{r}, v{V2}")
    add(12, f"""
    v_add_u32 v{vDR0}, s{sRING}, v{vTRP}
    v_xor_b32 v{vDR1}, 64, v{vDR0}
    v_add_u32 v{vDS1}, 7168, v{vDS}
    s_lshr_b32 s{sT[6]}, s{sI}, 3
    s_lshl3_add_u32 s{sT[6]}, s{sT[6]}, s{sW}
    s_mul_i32 s{sT[6]}, s{sT[6]}, {14*16}
    s_and_b32 s{sT[7]}, s{sI}, 7
    s_lshl1_add_u32 s{sT[7]}, s{sT[7]}, s{sT[5]}
    s_add_u32 s{sT[6]}, s{sT[6]}, s{sT[7]}
    s_lshl_b32 s{sT[6]}, s{sT[6]}, 10
    s_add_u32 s{sT[6]}, s{sT[6]}, {WS_H}
    v_add_u32 v{vH0}, s{sT[6]}, v{vL16}
    v_xor_b32 v{vH1}, 0x400, v{vH0}
    s_lshr_b32 s{sF2R}, s{sI}, 1
    s_lshl_b32 s{sF2R}, s{sF2R}, 9
    s_add_u32 s{sF2R}, s{sF2R}, {WS_F2}
    """)
    for r in range(9): add(13, f"v_mov_b32 v{OA+r}, 0")
    for r in range(9): add(14, f"v_mov_b32 v{OB+r}, 0")
    return q

cold = []
def s0_check(P):
    a(f"v_cmp_eq_u32 vcc, 0, v{vS0}\ns_cbranch_vccnz L_s0retry{P}\nL_s0done{P}:")
    cold.append(f"""
    L_s0retry{P}:
    s_mov_b32 s{sT[1]}, 0
    L_s0poll{P}:
    buffer_load_dword v{vS0}, v{vZ}, {srd(SDBG)}, 0 offen sc1
    s_add_u32 s{sT[1]}, s{sT[1]}, 1
    s_waitcnt vmcnt(0)
    v_cmp_eq_u32 vcc, 0, v{vS0}
    s_cbranch_vccz L_s0done{P}
    s_cmp_lt_u32 s{sT[1]}, {SPIN}
    s_cbranch_scc1 L_s0poll{P}
    s_branch L_s0done{P}
    """)
def s1_issue(P):
    a(f"s_cmp_lg_u32 s{sW}, 0\ns_cbranch_scc1 L_nopoll0{P}")
    if P in 'GS': s0_check(P)
    a(f"""
    s_mov_b32 s{sT[1]}, {WS_F1}
    v_lshlrev_b32 v{t1}, 7, v{L}
    buffer_load_dword v{t0}, v{t1}, {srd(SWS)}, s{sT[1]} offen sc1
    L_nopoll0{P}:
    """)
    a.vm -= 1
def s1_check(P):
    a(f"""
    s_cmp_lg_u32 s{sW}, 0
    s_cbranch_scc1 L_s1done{P}
    s_mov_b32 s{sT[0]}, 0
    L_s1poll{P}:
    s_waitcnt vmcnt(0)
    v_cmp_ne_u32 vcc, 1, v{t0}
    s_cbranch_vccz L_s1done{P}
    s_mov_b64 exec, vcc
    buffer_load_dword v{t0}, v{t1}, {srd(SWS)}, s{sT[1]} offen sc1
    s_mov_b64 exec, -1
    s_add_u32 s{sT[0]}, s{sT[0]}, 1
    s_cmp_lt_u32 s{sT[0]}, {SPIN}
    s_cbranch_scc1 L_s1poll{P}
    s_waitcnt vmcnt(0)
    L_s1done{P}:
    """)
    a.vm -= 1

def proj_path(P):
    tok = {}
    PATH[0] = P
    S1 = OPT['s1']
    sched = {s: [s + 2] for s in range(6)}
    ISQ = P in 'KVP'
    QF = OPT['qf']
    sched.update({6: [8, 9], 7: [10, 11], 8: [12, 13], 9: [14, 15]}); cover = {8: 9, 10: 11, 12: 15}
    if ISQ and OPT['qmode'] == 0:
        del sched[8], sched[9]
        sched.update({10: [12, 13], 11: [14, 15]}); cover = {8: 9, 10: 11, 12: 13, 14: 15}
    bars = set(range(8)) | set(cover) | {S1}
    if ISQ: bars |= {QF} | ({9} if OPT['qmode'] else set()) | (set(range(10, 16)) if OPT['qbar'] else set())
    def dma_groups(sg):
        d = dma_ops(sg, P)
        if ISQ and sg == OPT['exs']:
            d.insert(1, f"""
            s_add_u32 m0, s{sMX}, {EX}
            s_nop 0
            buffer_load_dwordx4 v{vES}, {srd(SEX)}, s{sEXO} offen lds
            buffer_load_dwordx4 v{vES}, {srd(SEX)}, s{sEXO} offen offset:1024 lds
            """)
        if P == 'S' and sg == OPT['exs']:
            d.insert(1, f"s_mov_b32 m0, {GW}\ns_nop 0\nbuffer_load_dwordx4 v{vES}, {srd(SEX)}, 0 offen lds")
        return [(x, sg if k == len(d) - 1 else None) for k, x in enumerate(d)]
    def emit(it):
        if callable(it): return it()
        a(it[0])
        if it[1] is not None: tok[it[1]] = a.lastvm()
    if P == 'G':
        a(f"s_cmp_eq_u32 s2, {CLEAR_WG}\ns_cbranch_scc1 L_clear\nL_noclear:")
        cold.append(f"""
        L_clear:
        s_add_u32 s{sT[1]}, s{sMX}, {WS_F1}
        v_mov_b32 v32, 0
        v_mov_b32 v33, 0
        v_mov_b32 v34, 0
        v_mov_b32 v35, 0
        buffer_store_dwordx4 v[32:35], v{vL16}, {srd(SWS)}, s{sT[1]} offen sc1
        buffer_store_dwordx4 v[32:35], v{vL16}, {srd(SWS)}, s{sT[1]} offen offset:1024 sc1
        s_branch L_noclear
        """)
    tok[0] = a.lastvm()
    if ISQ: mk_srd(SWQ, 6, 512 * 1024)
    if not OPT['spf']:
        for it in dma_groups(1): emit(it)
    if ISQ: mk_srd(SWG, 16, 512 * PG); mk_srd(SWU, 18, 512 * PG)
    if P in 'KVS': mk_srd(SEX, {'K': 8, 'V': 10, 'S': 22}[P], 1024 if P == 'S' else 16384)
    if P == 'P': a(f"s_cmp_lt_u32 s{sQ}, 2\ns_cselect_b64 s[{SEX}:{SEX+1}], s[8:9], s[10:11]\ns_mov_b32 s{SEX+2}, 16384\ns_mov_b32 s{SEX+3}, 0x20000")
    setup_path(P)
    if OPT['grp'] == 5: a("s_mov_b32 s6, s14\ns_mov_b32 s8, s5")
    stamp(3, 5)
    if OPT['spf']:
        for it in dma_groups(1): emit(it)
    stamp(4, 5)
    win = {c: [] for c in range(33)}
    box = {}; front = {}; pre8 = []
    def usable(c):
        return c % 2 == 0 or ((c + 1) // 2) not in bars
    def nxt(c):
        while not usable(c): c += 1
        return c
    if not ISQ:
        gq = []
        for b in range(2):
            for j in range(4): gq += gelu_pair(ACC[0] + 16 * b, j)
            gq += to_frag(ACC[0] + 16 * b)
            if b == 0: n0 = len(gq)
        npre = 17 * (OPT['pb'] - 1) if OPT['pb'] else 0
        pre8 += [(x, None) for j in range(max(OPT['pb'] - 1, 0)) for x in gelu_pair(ACC[0], j, pk=OPT.get('pbk', 0))]
        gq = gq[npre:]; n0 -= npre
        ws = [c for c in range(16, OPT['gend'] + 1) if usable(c)]
        ndma = {16: 2, 17: 2, 18: 4}
        tot = len(gq) + OPT['dwt'] * 8
        done = 0; accw = 0
        for k, c in enumerate(ws):
            accw += OPT['dwt'] * ndma.get(c, 0)
            upto = max(done, tot * (k + 1) // len(ws) - accw)
            win[c] += [(x, None) for x in gq[done:upto]]
            if done < n0 <= upto: c0 = c
            done = upto
        assert done == len(gq)
        for b in range(OPT['nearly']):
            c = nxt(max(OPT[f'h{b}w'], c0 if b == 0 else ws[-1]))
            win[c].append((f"s_sub_u32 s{sT[2]}, s{sHO}, {65536 - 16384*b}\nbuffer_store_dwordx4 {vr(ACC[0]+16*b,4)}, v{vST}, {srd(SWS)}, s{sT[2]} offen sc1", None))
    else:
        qa = [f"s_add_u32 s{sT[8]}, s{sT[4]}, {WS_Q + 4096}\ns_add_u32 s{sT[4]}, s{sT[4]}, {WS_Q}"]
        if P == 'K': qa += [f"v_mul_f32 v{ACCE+r}, {fbits(QS):#x}, v{ACCE+r}" for r in range(4)]
        sts = []
        if P in 'KV':
            qa += [f"v_cvt_pk_bf16_f32 v{vGT}, v{ACCE}, v{ACCE+1}", f"v_cvt_pk_bf16_f32 v{vGT+1}, v{ACCE+2}, v{ACCE+3}"]
            sts.append(f"buffer_store_dwordx2 {vr(vGT,2)}, v{vSA}, {srd(SWS)}, s{sEXW} offen sc1")
        def qcv(i): return [f"v_cvt_pk_bf16_f32 v{ACC[0]+8*i+j}, v{ACC[0]+8*i+2*j}, v{ACC[0]+8*i+2*j+1}" for j in range(4)]
        def qst(i): return to_frag(ACC[0] + 8 * i) + [f"buffer_store_dwordx4 {vr(ACC[0]+8*i,4)}, v{vST}, {srd(SWS)}, s{sT[8 if i & 1 else 4]} offen offset:{1024*(i>>1)} sc1"]
        mark = [lambda: box.update(q=a.lastvm())]
        T = lambda l: [(x, None) for x in l]
        if OPT['qmode'] == 0 and OPT['pb']:
            pre8 += T(qa + qcv(0) + qcv(1) + qcv(2) + qcv(3) + [x for i in range(4) for x in qst(i)[:2]])
            if OPT.get('pbq'): pre8 += T(sts + [qst(i)[2] for i in range(4)]) + mark
            else: win[16] += T(sts + [qst(i)[2] for i in range(2)]); win[17] += T([qst(i)[2] for i in range(2, 4)]) + mark
        elif OPT['qmode'] == 0:
            win[16] += T(qa + sts + qcv(0) + qcv(1) + qst(0) + qst(1)); win[17] += T(qcv(2) + qcv(3) + qst(2) + qst(3)) + mark
        elif OPT['qmode'] == 1:
            win[16] += T(qa + qcv(0) + qcv(1)); win[18] += T(sts + qst(0) + qcv(2)); win[20] += T(qcv(3) + qst(1) + qst(2) + qst(3)) + mark
        else:
            win[16] += T(qa + qcv(0) + qcv(1) + qcv(2) + qcv(3)); win[18] += T(sts + qst(0) + qst(1) + qst(2) + qst(3)) + mark
        def qflag():
            assert a.vm_done > box['s0']
            if P != 'P': s0_check(P)
            a(f"""
            s_lshl4_add_u32 s{sT[0]}, s{sQ}, s{sTI}
            s_lshl_b32 s{sT[0]}, s{sT[0]}, 7
            s_add_u32 s{sT[0]}, s{sT[0]}, {WS_F1}
            s_lshl_b32 s{sT[1]}, s{sW}, 24
            s_add_u32 s{sT[0]}, s{sT[0]}, s{sT[1]}
            v_mov_b32 v{t1}, 1
            s_mov_b64 exec, 1
            buffer_store_dword v{t1}, v{vZ}, {srd(SWS)}, s{sT[0]} offen sc1
            s_mov_b64 exec, -1
            """)
        if P != 'P': box['flag'] = qflag
    if P == 'S':
        win[16] = [(x, None) for x in (f"v_mul_f32 v{t2}, {fbits(-math.log2(math.e)):#x}, v{ACCE}", f"v_exp_f32 v{t2}, v{t2}", f"v_add_f32 v{t2}, 1.0, v{t2}", f"v_rcp_f32 v{t2}, v{t2}")] + win[16]
        win[20].append((f"s_mov_b64 exec, 0xffff\nbuffer_store_dword v{t2}, v{vSA}, {srd(SWS)}, s{sEXW} offen sc1\ns_mov_b64 exec, -1", None))
    if OPT['clw'] <= 32:
        win[nxt(max(OPT['clw'], max(24, 2 * QF + 1) if ISQ else 0))].append(
            (f"v_mov_b32 v24, -1\nv_mov_b32 v25, -1\nv_mov_b32 v26, -1\nv_mov_b32 v27, -1\nbuffer_store_dwordx4 v[24:27], v{vL16}, {srd(SWS)}, s{sT[9]} offen sc1", None))
    queue = setup_queue()
    ws = [c for c in range(21 if ISQ else 20, 2 * S1 - 1) if usable(c)]
    for k, c in enumerate(ws):
        left = [x for x in queue if 2 * x[0] - 2 <= c]
        take = min(len(left), -(-len(queue) // (len(ws) - k)))
        win[c] += [(x[1], None) for x in left[:take]]; queue = queue[take:]
    assert not queue
    win[16].insert(0, (f"v_subrev_u32 v{vXR[0]}, {WR}, v{vWR[0]}\nv_subrev_u32 v{vXR[1]}, {WR}, v{vWR[1]}\nv_add_u32 v{vXR[2]}, {WR}, v{vWR[0]}\nv_add_u32 v{vXR[3]}, {WR}, v{vWR[1]}", None))

    def cluster(c, what='mr'):
        M = mfmas(c >> 1, c & 1) if (c >= 0 and 'm' in what) else []
        em = e_mfmas(c) if M else []
        for i, x in enumerate(em): M.insert(1 + (8 // len(em) + 1) * i, x)
        d = c + 1
        R = []
        if d < 32 and 'r' in what:
            if d < 16: R += x_reads(d >> 1, d & 1)
            for i in range(4): R += w_reads(d >> 1, d & 1, i)
            R += e_reads(d)
        a.wait(a.lastlg())
        if M: a("s_setprio 2")
        n = max(len(M), 1); k = 0
        last = n - 1 if (c & 1 or ((c >> 1) + 1) not in bars) else n - 2
        for i in range(n):
            if M: a(M[i])
            want = len(R) if i >= last else -(-len(R) * (i + 1) // (last + 1))
            while k < want: a(R[k]); k += 1
        if M: a("s_setprio 0")

    for sig in range(16):
        if sig == 8 and OPT['pb']:
            cluster(15, 'm')
            for it in pre8: emit(it)
        if sig in bars:
            if sig in cover or sig < 8: a.wait(tok[cover.get(sig, sig)])
            if ISQ and sig == QF: a.wait(box['q'])
            if sig == S1 and P != 'P': s1_check(P)
            a("s_barrier")
            if sig == QF and 'flag' in box: box['flag']()
        if sig == 1: stamp(1)
        if sig == 8: stamp(2)
        if sig < 11: stamp(sig, 1)
        if sig < 5: stamp(5 + sig, 5)
        if sig >= 6: stamp(sig - 6, 2)
        D = []
        if P == 'G' and sig == 0:
            def s0_set():
                a(f"""
                s_lshl_b32 s{sT[1]}, s{sW}, 8
                s_or_b32 s{sT[1]}, s{sT[1]}, s2
                s_cmp_lg_u32 s{sT[1]}, {CLEAR_WG}
                s_cbranch_scc1 L_nos0
                v_mov_b32 v{t0}, 1
                s_mov_b64 exec, 1
                buffer_store_dword v{t0}, v{vZ}, {srd(SDBG)}, 0 offen sc1
                s_mov_b64 exec, -1
                L_nos0:
                """)
                a.vm -= 1
            win[0].append(s0_set)
        for sg in sched.get(sig, []): D += dma_groups(sg)
        if sig == S1: D += [(x, None) for x in first_loads()]
        if sig == (7 if ISQ else 9) and P != 'P':
            def s0_load():
                if not ISQ:
                    a(f"s_cmp_lg_u32 s{sW}, 0\ns_cbranch_scc1 L_nos0l{P}\nbuffer_load_dword v{vS0}, v{vZ}, {srd(SDBG)}, 0 offen sc1\nL_nos0l{P}:")
                    a.vm -= 1
                else:
                    a(f"buffer_load_dword v{vS0}, v{vZ}, {srd(SDBG)}, 0 offen sc1")
                box['s0'] = a.vm
            D.insert(len(D) - 1, s0_load)
        head, mid, tail = [], D, []
        if sig < OPT['late']: mid, tail = [], D
        elif (sig + 1) not in bars: mid, tail = D[:len(D)//2], D[len(D)//2:]
        elif sig in bars and len(D) >= 4: head, mid = D[:OPT['na']], D[OPT['na']:]
        for it in head: emit(it)
        cluster(2 * sig - 1, 'r' if (sig == 8 and OPT['pb']) else 'mr')
        if sig == S1 - 1 and P != 'P':
            assert a.vm_done > box['s0']
            s1_issue(P)
        for it in front.get(2 * sig, []) + mid + win[2 * sig]: emit(it)
        cluster(2 * sig)
        for it in front.get(2 * sig + 1, []) + tail + win[2 * sig + 1]: emit(it)
    a.wait(a.lastlg())
    assert not win[32]

setup_common()
dispatch()
proj_path('G')
a("L_join:")
a.forget()

for m in mfmas(15, 1): a(m)
stamp(3); stamp(10, 2)
stamp(5, 3)
if OPT['s1'] == 16:
    s1_check('J')
    stamp(6, 3)
    a("s_barrier")
    stamp(7, 3)
    for x in first_loads(): a(x)
stamp(4); stamp(8, 3)
for b in range(2):
    for jp in range(2):
        g0 = gelu_pair(ACC[1] + 16 * b, 2 * jp, vGT, pk=OPT['pk2']); g1 = gelu_pair(ACC[1] + 16 * b, 2 * jp + 1, t0, pk=OPT['pk2'])
        for x, y in zip(g0, g1):
            a(x); a(y)
        if b == 1 and jp == 0:
            for x in to_frag(ACC[1]): a(x)
a(f"s_mov_b32 s{sT[7]}, s{sT[9]}\ns_mov_b32 s{sT[8]}, 0xffff\ns_mov_b32 s{sT[9]}, 0xffff")
for x in to_frag(ACC[1] + 16): a(x)
stamp(9, 3)
a.wait_vm0()
a("s_barrier")
stamp(5); stamp(10, 3)

def qk(S, Q): return f"v_mfma_f32_32x32x16_bf16 {vr(S,16)}, {vr(KF,4)}, {vr(Q,4)}, 0"
def pv(O, V, S): return f"v_smfmac_f32_32x32x32_bf16 {vr(O,16)}, {vr(V,4)}, {vr(S,8)}, v{vIDX}"
NT, B1, B2 = 32, 8, OPT['b2']
def rec(t): return (t % NSLOT) * 2048
def rdK(t): return a(f"ds_read_b128 {vr(KF,4)}, v{vAK} offset:{rec(t)}")
def rdV(t2, t1):
    a(f"s_mov_b64 exec, s[{sT[8]}:{sT[9]}]")
    if t2 is not None: a(f"ds_read_b128 {vr(V2,4)}, v{vAV} offset:{rec(t2) + 1536}")
    if t1 is not None: a(f"ds_read_b128 {vr(V1[t1&1],4)}, v{vAV} offset:{rec(t1) + 1024}")
    a("s_mov_b64 exec, -1")
    return a.lastlg()
wtok, htok, rtok, box = {}, {}, {}, {}
m0own = [None]
def w_off(u): return sR[u & 3] if u < 14 else sWOF
def w_load_a(u):
    a(f"s_add_u32 m0, s{sRING}, {(u & 3) * 2048}"); m0own[0] = ('w', u)
    if 0 < u < 14: a(f"s_sub_u32 s{sR[u&3]}, s{sR[(u-1)&3]}, 16384\ns_cselect_b32 s{sR[u&3]}, {13*16384}, s{sR[u&3]}")
    elif u == 14: a(f"s_lshl_b32 s{sWOF}, s{sU}, 14")
    elif u > 14: a(f"s_add_u32 s{sWOF}, s{sWOF}, 16384\ns_and_b32 s{sWOF}, s{sWOF}, 0xffff")
    a(f"buffer_load_dwordx4 v{vDS}, {srd(SWD if u < 14 else SWO)}, s{w_off(u)} offen lds")
def w_load_b(u):
    assert m0own[0] == ('w', u)
    wtok[u] = a(f"buffer_load_dwordx4 v{vDS1}, {srd(SWD if u < 14 else SWO)}, s{w_off(u)} offen offset:1024 lds")
def h_load_a(u):
    assert u in wtok and (u + 4) not in wtok
    a(f"buffer_load_dwordx4 {vr(HF[u&3],4)}, v{vH0}, {srd(SWS)}, s{sR[u&3]} offen sc1")
def h_load_b(u):
    assert m0own[0] != ('w', u + 4) and (u + 4) not in wtok
    htok[u] = a(f"buffer_load_dwordx4 {vr(HF[u&3]+4,4)}, v{vH1}, {srd(SWS)}, s{sR[u&3]} offen sc1")
def w_read(u, b):
    if b == 0: a.wait(wtok[u], htok[u])
    for e in range(2):
        rtok[u, b] = a(f"ds_read_b64_tr_b16 {vr(WF[u&1] + 4*b + 2*e, 2)}, v{(vDR0, vDR1)[b]} offset:{(u & 3) * 2048 + e*512}")
def d_mfma(u, k):
    tb, b = k >> 1, k & 1
    a.wait(rtok[u, 1])
    d = vr(DACC + 32 * tb + 16 * b, 16)
    a(f"v_mfma_f32_32x32x16_bf16 {d}, {vr(WF[u&1]+4*b,4)}, {vr(HF[u&3]+4*tb,4)}, {'0' if u == 0 else d}")

if OPT.get('x_now'):
    def w_load_a(u): pass
    def w_load_b(u): wtok[u] = None
if OPT.get('x_noh'):
    def h_load_a(u): pass
    def h_load_b(u): htok[u] = None
if OPT.get('x_noread'):
    def w_read(u, b): rtok[u, b] = None
ev, mf = {}, {}
SNAP = OPT.get('snap', 1)
B1P = 32 * (B1 - 1) + 11
EV, EVA, EK, EKA = OPT.get('ev', 5), OPT.get('eva', 0), OPT.get('ek', 11), OPT.get('eka', 0)
busy = {32 * t + o for t in range(NT) for o in (EV, EK, 18)}
def nextpos(p):
    while SNAP and (p & 15) not in (2, 5, 8, 11, 14): p += 1
    return p
def at(pos, f, limit=None):
    p = nextpos(pos)
    while SNAP and limit is not None and p in busy and nextpos(p + 1) <= limit: p = nextpos(p + 1)
    busy.add(p)
    ev.setdefault(p, []).append(f)
    return p
def h_store(b): box['h'] = a((f"s_add_u32 s{sHO}, s{sHO}, 16384\n" if b else "") + f"buffer_store_dwordx4 {vr(ACC[1]+16*b,4)}, v{vST}, {srd(SWS)}, s{sHO} offen sc1")
def late_store(k):
    if k == 2:
        a(f"v_mov_b32 v24, -1\nv_mov_b32 v25, -1\nv_mov_b32 v26, -1\nv_mov_b32 v27, -1\nbuffer_store_dwordx4 v[24:27], v{vL16}, {srd(SWS)}, s{sT[7]} offen sc1")
        return
    a(f"""
    s_cmp_eq_u32 s{sU}, 0
    s_cbranch_scc1 L_nols{k}
    s_sub_u32 s{sT[2]}, s{sHO}, {65536 - 16384*k}
    buffer_store_dwordx4 {vr(ACC[0]+16*k,4)}, v{vST}, {srd(SWS)}, s{sT[2]} offen sc1
    L_nols{k}:
    """)
    a.vm -= 1
pp = 1
for k in list(range(OPT['nearly'], 2)) + ([2] if OPT['clw'] > 32 else []):
    pp = at(pp, lambda k=k: late_store(k), pp + 12) + 1
pp = at(pp, lambda: h_store(0), pp + 12) + 1
at(pp, lambda: h_store(1), pp + 12)
def kv_emit(m, i):
    if i == 0: m0own[0] = ('kv', m)
    assert m0own[0] == ('kv', m)
    kvtok[m] = a(kv_step(m)[i])
for m in range(KV_FIRST, 8):
    p = OPT['p_kv'] + OPT['p_kvs'] * (m - KV_FIRST) if m < 6 else OPT['p_kv2'] + 20 * (m - 6)
    p = at(p, lambda m=m: kv_emit(m, 0), p + 8)
    at(p + 1, lambda m=m: kv_emit(m, 1), p + 9)
assert OPT['p_kv2'] > B1P
def h_flag():
    a.wait(box['h'])
    a(f"v_mov_b32 v{t0}, 1\ns_mov_b64 exec, 1\nbuffer_store_dword v{t0}, v{vZ}, {srd(SWS)}, s{sF2} offen sc1\ns_mov_b64 exec, -1")
at(OPT['p_flag'], h_flag, OPT['p_flag'] + 8)
def f2_load():
    box['f2'] = a(f"s_mov_b32 exec_hi, 0\nbuffer_load_dwordx4 {vr(F2D,4)}, v{vF2}, {srd(SWS)}, s{sF2R} offen sc1")
    a("s_mov_b32 exec_hi, -1")
at(OPT['p_f2'], f2_load, OPT['p_f2'] + 8)
def f2_check():
    a.wait(box['f2'])
    a(f"""
    s_mov_b32 s{sT[1]}, 0
    s_mov_b32 exec_hi, 0
    L_s2poll:
    v_min3_u32 v{F2D}, v{F2D}, v{F2D+1}, v{F2D+2}
    v_min_u32 v{F2D}, v{F2D}, v{F2D+3}
    v_cmp_ne_u32 vcc, 1, v{F2D}
    s_cbranch_vccz L_s2done
    buffer_load_dwordx4 {vr(F2D,4)}, v{vF2}, {srd(SWS)}, s{sF2R} offen sc1
    s_add_u32 s{sT[1]}, s{sT[1]}, 1
    s_cmp_lt_u32 s{sT[1]}, {SPIN}
    s_waitcnt vmcnt(0)
    s_cbranch_scc1 L_s2poll
    L_s2done:
    s_mov_b32 exec_hi, -1
    """)
    a.vm -= 1
    a(f"buffer_load_dword v{vG}, v{vG}, {srd(SWS)}, s{sGA} offen sc1")
    stamp(9)
PCHK = at(OPT['p_chk'], f2_check, OPT['p_chk'] + 8)
D0, DE = OPT['d0'], OPT['dend']
allsl = [32 * t + o for t in range(D0, DE) for o in (8, 14, 24, 30)]
assert len(allsl) >= 56
slots = [allsl[(i * len(allsl)) // 56] for i in range(56)]
for u in range(14):
    rp = slots[0] - 16 if u == 0 else slots[4 * u - 2] + 1
    lim = slots[4 * u] - 9
    p = at(rp, lambda u=u: w_read(u, 0), lim - 3); at(p + 1, lambda u=u: w_read(u, 1), lim)
    for k in range(4): mf[slots[4 * u + k]] = (lambda u=u, k=k: d_mfma(u, k))
for u in range(18):
    pw = OPT['p_fill'] + OPT['p_fills'] * u if u < 4 else slots[4 * (u - 4)] + 1
    p = at(pw, lambda u=u: w_load_a(u), pw + 8); p = at(p + 1, lambda u=u: w_load_b(u), p + 8)
    if u < 3:
        ph = PCHK + 1 + OPT.get('p_hs', 13) * u
        p = at(ph, lambda u=u: h_load_a(u), ph + 4); at(p + 1, lambda u=u: h_load_b(u), p + 5)
    if 4 <= u < 15:
        p = at(p + 1, lambda u=u: h_load_a(u - 1), p + 8); at(p + 1, lambda u=u: h_load_b(u - 1), p + 8)
for lo, hi, fr in ((0, B1P, (OPT.get('la1', 30), OPT.get('la2', 70), OPT.get('la3', 94))), (B1P, 32 * B2, (OPT.get('lb1', 35), OPT.get('lb2', 80), OPT.get('lb3', 96))),
                   (32 * B2, 32 * NT, (OPT.get('lc1', 60), OPT.get('lc2', 87), OPT.get('lc3', 96)))):
    for k in range(3): at(lo + ((hi - lo) * fr[k]) // 100, lambda k=k: a(f"s_setprio {2-k}"))

def merge_addr():
    a(f"""
    s_mul_i32 s{sT[0]}, s{sW}, 2304
    s_add_u32 s{sT[0]}, s{sT[0]}, {MERGE}
    s_xor_b32 s{sT[1]}, s{sW}, 4
    s_mul_i32 s{sT[1]}, s{sT[1]}, 2304
    s_add_u32 s{sT[1]}, s{sT[1]}, {MERGE}
    v_add_u32 v{t0}, s{sT[0]}, v{vL16}
    v_add_u32 v{t1}, s{sT[1]}, v{vL16}
    v_lshl_add_u32 v{t2}, v{L}, 2, s{sT[0]}
    v_lshl_add_u32 v{t3}, v{L}, 2, s{sT[1]}
    s_add_u32 s{sOO}, s{sOO}, {WS_O}
    s_mov_b32 s{sT[6]}, {fbits(2.0**-60):#x}
    s_mov_b32 s{sT[7]}, {fbits(2.0**60) - fbits(2.0**-60):#x}
    """)
at(32 * NT - 11, merge_addr)
at(32 * NT - 8, lambda: a(f"ds_write_b128 v{t0}, {vr(OA,4)}\nds_write_b128 v{t0}, {vr(OA+4,4)} offset:1024\nds_write_b32 v{t2}, v{OA+8} offset:2048"))

a("s_setprio 3")
tK = rdK(0); tV = rdV(None, 0)
a.wait(tK)
a(qk(SA, QA))
for t in range(NT):
    if t == B2:
        a.wait(kvtok[7]); a("s_barrier\ns_setprio 3"); stamp(0)
    nx = t + 1 if t + 1 < NT else None
    for ph, (S, So, O, Oo, Qo) in enumerate(((SA, SB, OA, OB, QB), (SB, SA, OB, OA, QA))):
        for e in range(16):
            pos = 32 * t + 16 * ph + e
            def own(after):
                global tV, tK
                if ph == 0 and (e, after) == (EV, EVA):
                    if t == 0: a.wait(tV)
                    tV = rdV(t, nx if t != B1 - 1 else None)
                if ph == 0 and (e, after) == (EK, EKA) and nx and t != B1 - 1: tK = rdK(nx)
            for f in ev.pop(pos, []): f()
            own(0)
            if pos == B1P:
                a.wait(kvtok[5], tV); a("s_barrier\ns_setprio 3"); stamp(6)
                tK = rdK(nx); tV = rdV(None, nx)
            if e == 2:
                if ph == 1: a.wait(tV, None if OPT.get('w2') else tK)
                if t > 0 or ph == 1: a(pv(Oo, V2, So + 8))
            if (e == 5 and not (t == 0 and ph == 0)) or (t == 0 and ph == 0 and e == 0):
                if ph == 1: a.wait(tK)
                if ph == 0 or nx: a(qk(So, Qo))
            if e == 11: a(pv(O, V1[t & 1], S))
            if pos in mf: mf.pop(pos)()
            own(1)
            a(f"v_exp_f32 v{S+e}, v{S+e}")
assert not mf
assert not ev, sorted(ev)
a.wait_lg0()
a(pv(OB, V2, SB + 8))
stamp(7); stamp(0, 4)
a("s_barrier")
stamp(1, 4)
a(f"""
ds_read_b32 v{SA+8}, v{t3} offset:2048
ds_read_b128 {vr(SA,4)}, v{t1}
ds_read_b128 {vr(SA+4,4)}, v{t1} offset:1024
s_lshl_b32 s{sT[3]}, s{sW}, 13
s_xor_b32 s{sT[2]}, s{sT[3]}, 8192
v_add_u32 v24, s{sT[2]}, v{vL16}
v_add_u32 v26, s{sT[3]}, v{vL16}
s_waitcnt lgkmcnt(2)
v_add_f32 v{OB+8}, v{OB+8}, v{SA+8}
v_rcp_f32 v{t0}, v{OB+8}
""")
a.wait_lg0()
OS = 128
for j in range(2): a(f"v_pk_add_f32 {vr(OB+2*j,2)}, {vr(OB+2*j,2)}, {vr(SA+2*j,2)}")
a(f"v_mul_f32 v{t0}, v{t0}, v{vG}")
for j in range(2, 4): a(f"v_pk_add_f32 {vr(OB+2*j,2)}, {vr(OB+2*j,2)}, {vr(SA+2*j,2)}")
for j in range(4): a(f"v_pk_mul_f32 {vr(OB+2*j,2)}, {vr(OB+2*j,2)}, {vr(t0,2)} op_sel_hi:[1,0]")
a(f"""
v_pk_add_f32 {vr(t2,2)}, {vr(OB,2)}, {vr(OB+2,2)}
v_pk_add_f32 {vr(t0,2)}, {vr(OB+4,2)}, {vr(OB+6,2)}
v_cvt_pk_bf16_f32 v{OS}, v{OB}, v{OB+1}
v_pk_add_f32 {vr(t2,2)}, {vr(t2,2)}, {vr(t0,2)}
v_cvt_pk_bf16_f32 v{OS+1}, v{OB+2}, v{OB+3}
v_add_f32 v{t2}, v{t2}, v{t3}
v_cvt_pk_bf16_f32 v{OS+2}, v{OB+4}, v{OB+5}
v_fma_f32 v{t2}, v{t2}, 0, v{OB+8}
v_cvt_pk_bf16_f32 v{OS+3}, v{OB+6}, v{OB+7}
v_subrev_u32 v{t2}, s{sT[6]}, v{t2}
v_cmp_lt_u32 vcc, s{sT[7]}, v{t2}
""")
if OPT['force_fb']: a("s_mov_b64 vcc, -1")
a(f"""
s_cbranch_vccnz L_true_max
L_norm:
buffer_store_dwordx4 {vr(OS,4)}, v{vL16}, {srd(SWS)}, s{sOO} offen sc1
""")
stamp(8); stamp(2, 4)

OF, WOF, XT = 32, 176, 96
vO1 = 27
fill = f"""
s_andn2_b32 s{sT[2]}, s{sRING}, 8192
v_add_u32 v28, s{sT[2]}, v{vTRP}
v_xor_b32 v29, 64, v28
v_sub_f32 v{vG}, 1.0, v{vG}
v_add_u32 v{vO1}, 4096, v{vL16}
s_and_b32 s{sT[1]}, s{sW}, 1
s_lshl1_add_u32 s{sT[0]}, s{sI}, s{sT[1]}
s_lshr_b32 s{sT[1]}, s{sW}, 1
s_lshl2_add_u32 s{sT[0]}, s{sT[0]}, s{sT[1]}
s_lshl_b32 s{sT[0]}, s{sT[0]}, 13
s_add_u32 s{sT[0]}, s{sT[0]}, {WS_O}
""".strip().split('\n')
for v in range(4):
    fill += f"s_add_u32 s{sT[1]}, s{sU}, {v}\ns_and_b32 s{sT[1]}, s{sT[1]}, 3\ns_lshl_b32 s{sT[1]}, s{sT[1]}, 10\ns_add_u32 s{sT[4+v]}, s{sT[0]}, s{sT[1]}".split('\n')
fill += f"""
v_and_b32 v{t0}, 31, v{L}
v_lshrrev_b32 v{t1}, 5, v{L}
v_and_b32 v{t2}, 7, v{L}
v_xor_b32 v{t1}, v{t1}, v{t2}
v_lshlrev_b32 v{t1}, 4, v{t1}
v_lshl_add_u32 v{t0}, v{t0}, 8, v{t1}
v_add_u32 v9, s{sT[3]}, v{t0}
v_xor_b32 v10, 32, v9
v_xor_b32 v11, 64, v9
v_xor_b32 v12, 0x60, v9
v_lshrrev_b32 v{t0}, 3, v{L}
v_lshlrev_b32 v{t1}, 1, v{t2}
v_xor_b32 v{t1}, v{t1}, v{t0}
v_lshlrev_b32 v{t1}, 4, v{t1}
v_lshl_add_u32 v{t1}, v{t0}, 8, v{t1}
v_add_u32 v1, s{sMX}, v{t1}
v_xor_b32 v2, 16, v1
s_lshl3_add_u32 s{sT[3]}, s{sI}, s{sW}
s_lshl_b32 s{sT[3]}, s{sT[3]}, 6
s_add_u32 s{sT[3]}, s{sT[3]}, s{sJ}
s_lshl_b32 s{sT[3]}, s{sT[3]}, 7
v_lshlrev_b32 v{t2}, 4, v{t2}
v_lshl_add_u32 v5, v{t0}, 10, v{t2}
s_mov_b32 s{sT[2]}, 0
""".strip().split('\n')
for j in range(8):
    a(f"ds_write_b128 v24, {vr(DACC+32+4*j,4)} offset:{1024*j}")
    for x in fill[len(fill) * j // 8: len(fill) * (j + 1) // 8]: a(x)
def o_loads():
    for v in range(8):
        a(f"buffer_load_dwordx4 {vr(OF + 4*v, 4)}, v{vO1 if v >> 2 else vL16}, {srd(SWS)}, s{sT[4 + (v&3)]} offen sc1")
stamp(3, 4)
a.wait(wtok[17], a.lastlg())
a(f"s_cmp_ge_u32 s{sW}, 4")
a("s_barrier")
stamp(4, 4)
a("s_setprio 1\ns_cbranch_scc1 L_ol1\ns_setprio 0")
o_loads()
a("L_ol1:")
xt = [a(f"ds_read_b128 {vr(XT+4*j,4)}, v26 offset:{1024*j}") for j in range(8)]
def wo_read(v):
    slot = ((14 + v) & 3) * 2048 + (v >> 2) * 8192
    for b in range(2):
        for e in range(2):
            a(f"ds_read_b64_tr_b16 {vr(WOF + 8*v + 4*b + 2*e, 2)}, v{28 + b} offset:{slot + e*512}")
for j in range(8):
    a.wait(xt[j])
    for i in range(2):
        r = 4 * j + 2 * i
        a(f"v_pk_add_f32 {vr(DACC+r,2)}, {vr(DACC+r,2)}, {vr(XT+r,2)}")
    for i in range(2):
        r = 4 * j + 2 * i
        a(f"v_pk_mul_f32 {vr(DACC+r,2)}, {vr(DACC+r,2)}, {vr(vG,2)} op_sel_hi:[1,0]")
stamp(5, 4)
a("s_setprio 0\ns_cbranch_scc0 L_ol2")
o_loads()
a("L_ol2:")
for j in range(8): wo_read(j)
stamp(6, 4)
a("L_s3poll:")
a.wait_vm0()
a(f"v_max_u32 v{t0}, v{OF}, v{OF+1}\nv_max_u32 v{t1}, v{OF+2}, v{OF+3}")
for j in range(2, 16): a(f"v_max3_u32 v{t0 + (j&1)}, v{t0 + (j&1)}, v{OF+2*j}, v{OF+2*j+1}")
a(f"""
v_max_u32 v{t0}, v{t0}, v{t1}
v_cmp_eq_u32 vcc, -1, v{t0}
s_cbranch_vccnz L_s3retry
L_s3done:
""")
stamp(10); stamp(7, 4)
a.wait_lg0()
def fin_write(b, qd): a(f"ds_write_b128 v{9+qd}, {vr(DACC + 16*b + 4*qd, 4)} offset:{b*128}")
for b in range(2):
    for v in range(8):
        d = vr(DACC + 16 * b, 16)
        a(f"v_mfma_f32_32x32x16_bf16 {d}, {vr(WOF+8*v+4*b,4)}, {vr(OF+4*v,4)}, {d}")
        if b == 1 and v < 3: a("s_nop 2")
        if b == 1 and 3 <= v < 7: fin_write(0, v - 3)
stamp(8, 4)
for qd in range(4): fin_write(1, qd)
a.wait_lg0()
a("s_barrier")
stamp(9, 4)
RD = 176
rt = []
for p in range(4):
    for e in range(2):
        rt.append(a(f"ds_read_b128 {vr(RD + 8*p + 4*e, 4)}, v{1 + e} offset:{p*16384}"))
for p in range(1, 4):
    a.wait(rt[2 * p + 1])
    for j in range(4):
        a(f"v_pk_add_f32 {vr(RD+2*j,2)}, {vr(RD+2*j,2)}, {vr(RD+8*p+2*j,2)}")
for j in range(4): a(f"v_cvt_pk_bf16_f32 v{RD+j}, v{RD+2*j}, v{RD+2*j+1}")
a(f"buffer_store_dwordx4 {vr(RD,4)}, v5, {srd(SOUT)}, s{sT[3]} offen {['', 'sc1'][OPT['outm']]}")
stamp(10, 4)
if OPT['stamp']:
    a("s_waitcnt vmcnt(0)")
    stamp(11)
    a("s_waitcnt lgkmcnt(0)")
    a(f"s_mov_b32 s28, s{sT[2]}")
    if 'pad' in OPT:
        K = OPT['pad']
        a(f"s_and_b32 s{sT[0]}, s2, {OPT.get('padm', 0)}\ns_cmp_lg_u32 s{sT[0]}, {OPT.get('padv', 0)}\ns_cbranch_scc1 L_end")
        if K >= 0: a(f"s_sub_u32 s{sT[0]}, s{4+2*K}, s{4+2*OPT.get('padb', 13)}\ns_mul_i32 s{sT[0]}, s{sT[0]}, {OPT.get('padx', 4)}")
        else: a(f"s_mov_b32 s{sT[0]}, 0")
        a(f"""
        s_add_u32 s{sT[0]}, s{sT[0]}, 6000
        L_pad:
        s_memrealtime s[{sT[2]}:{sT[3]}]
        s_waitcnt lgkmcnt(0)
        s_sub_u32 s{sT[2]}, s{sT[2]}, s30
        s_cmp_lt_u32 s{sT[2]}, s{sT[0]}
        s_cbranch_scc1 L_pad
        """)
    else:
        a(f"s_lshl3_add_u32 s{sT[0]}, s2, s{sW}\ns_lshl_b32 s{sT[0]}, s{sT[0]}, 6\ns_add_u32 s{sT[0]}, s{sT[0]}, {WS_STAMP}")
        a("v_mov_b32 v1, 0\ns_mov_b64 exec, 1")
        for k in range(14):
            a(f"v_mov_b32 v2, s{4+2*k}\nbuffer_store_dword v2, v1, {srd(SWS)}, s{sT[0]} offen offset:{4*k}")
a("L_end:\ns_endpgm")
a("L_s3retry:")
o_loads()
a(f"""
s_add_u32 s{sT[2]}, s{sT[2]}, 1
s_cmp_lt_u32 s{sT[2]}, {SPIN}
s_cbranch_scc1 L_s3poll
s_waitcnt vmcnt(0)
s_branch L_s3done
""")

for P in 'KVPS':
    a(f".p2align 6\nL_path{P}:")
    a.forget()
    proj_path(P)
    a("s_branch L_join")
for x in cold: a(x)

CM = SB
a(f"""
L_true_max:
s_waitcnt vmcnt(0) lgkmcnt(0)
v_mov_b32 v{t0}, 0xff800000
s_mov_b32 s{sT[0]}, {WS_KV}
L_tm1:
buffer_load_dwordx4 {vr(KF,4)}, v{vL16}, {srd(SWS)}, s{sT[0]} offen sc1
s_waitcnt vmcnt(0)
{qk(SA, QB)}
""")
for j in range(8): a(f"v_max3_f32 v{t0}, v{t0}, v{SA+2*j}, v{SA+2*j+1}")
a(f"""
s_add_u32 s{sT[0]}, s{sT[0]}, 2048
s_cmp_lt_u32 s{sT[0]}, {WS_KV + 64*2048}
s_cbranch_scc1 L_tm1
v_mov_b32 v{t1}, v{t0}
v_permlane32_swap_b32 v{t0}, v{t1}
v_max_f32 v{t0}, v{t0}, v{t1}
""")
for r in range(16): a(f"v_sub_f32 v{CM+r}, 0, v{t0}\nv_mov_b32 v{OB+r}, 0")
a(f"""
s_mov_b32 s{sT[0]}, {WS_KV}
L_tm2:
buffer_load_dwordx4 {vr(KF,4)}, v{vL16}, {srd(SWS)}, s{sT[0]} offen sc1
s_mov_b64 exec, s[{sT[8]}:{sT[9]}]
buffer_load_dwordx4 {vr(V1[0],4)}, v{vPV}, {srd(SWS)}, s{sT[0]} offen offset:1024 sc1
buffer_load_dwordx4 {vr(V2,4)}, v{vPV}, {srd(SWS)}, s{sT[0]} offen offset:1536 sc1
s_mov_b64 exec, -1
s_waitcnt vmcnt(0)
v_mfma_f32_32x32x16_bf16 {vr(SA,16)}, {vr(KF,4)}, {vr(QB,4)}, {vr(CM,16)}
""")
for e in range(16): a(f"v_exp_f32 v{SA+e}, v{SA+e}")
a(pv(OB, V1[0], SA)); a(pv(OB, V2, SA + 8))
a(f"""
s_add_u32 s{sT[0]}, s{sT[0]}, 2048
s_cmp_lt_u32 s{sT[0]}, {WS_KV + 64*2048}
s_nop 7
s_cbranch_scc1 L_tm2
s_nop 7
v_rcp_f32 v{t0}, v{OB+8}
s_nop 0
v_mul_f32 v{t0}, v{t0}, v{vG}
""")
for j in range(4): a(f"v_pk_mul_f32 {vr(OB+2*j,2)}, {vr(OB+2*j,2)}, {vr(t0,2)} op_sel_hi:[1,0]")
for j in range(4): a(f"v_cvt_pk_bf16_f32 v{OS+j}, v{OB+2*j}, v{OB+2*j+1}")
for j in range(4): a(f"v_min_u32 v{OS+j}, -2, v{OS+j}")
a("s_branch L_norm\nL_last:")

bad = a.check_branches()
assert not bad, bad

hdr = open(f'cdna_kernels/{NAME}.s.ref').read().split('\n')
head = [l for l in hdr if l.startswith(';') and '@launch' not in l]
out = "\n".join(head) + f"\n; @launch grid=(256,1,1) block=(512,1,1) lds={LDS_BYTES}\n"
out += f""".amdgcn_target "amdgcn-amd-amdhsa--gfx950"
.text
.globl {NAME}_kernel
.p2align 8
.type {NAME}_kernel,@function
{NAME}_kernel:
{a.text()}
.section .rodata,"a"
.p2align 6
.amdhsa_kernel {NAME}_kernel
  .amdhsa_next_free_vgpr 256
  .amdhsa_next_free_sgpr 102
  .amdhsa_accum_offset 256
  .amdhsa_group_segment_fixed_size 0
  .amdhsa_kernarg_size 104
  .amdhsa_user_sgpr_count 2
  .amdhsa_user_sgpr_kernarg_segment_ptr 1
  .amdhsa_system_sgpr_workgroup_id_x 1
.end_amdhsa_kernel
"""
open(sys.argv[1], 'w').write(out)
print("instructions:", sum(1 for i in a.ins if i.ws), "auto nops:", a.nnop, file=sys.stderr)
```

```python
import sys, math, struct
sys.path.insert(0, 'gen')
from asmlib import Asm

NAME = 'gated_mix__grouped_kv_mqa__geglu_ffn__prompt'
OPT = dict(stamp=0, grp=0, force_fb=0, qflag=11, s1=16, b2=22, outm=1, ofast=0,
           p_kv=40, p_kvs=18, p_flag=112, p_fill=120, p_fills=40, p_kv2=272, p_f2=300, p_chk=340, d0=12, dend=32,
           late=1, pk2=1, nearly=1, h0w=27, h1w=30, clw=22, na=1, gend=30, dwt=4, qbar=0, cpf=1, qmode=0, qf=11, exs=3, spf=0, pb=2)
for x in sys.argv[2:]:
    k, v = x.split('='); OPT[k] = int(v)

def fbits(x): return struct.unpack('<I', struct.pack('<f', x))[0]

WS_KV, WS_G, WS_F1, WS_Q, WS_O, WS_H, WS_STAMP = 0, 0x20000, 0x30000, 0x100000, 0x300000, 0x500000, 0xC00000
WS_F2 = WS_F1 + 8192
WS_SIZE = 0x1000000
CLEAR_WG = 128
WR, EX = 65536, 131072
NSLOT, HALF, RING = 24, 49152, 98304
MERGE = 65536
LDS_BYTES = 163840
SPIN = 0x40000
SX, SWG, SWU, SWQ, SEX, SWS, SDBG, SWD, SWO, SOUT = 32, 36, 40, 44, 48, 52, 56, 60, 64, 92
sW, sTI, sQ, sU, sROT, sXO, sWOF, sMX, sMW, sI, sJ, sROT0 = range(68, 80)
sT = list(range(80, 90))
sEXW, sEXO = 90, 91
sC1 = 96
sF2, sRH, sRING, sOO = 98, 99, 100, 101
sHO = 3
sKVM, sKVO, sQA, sGA = 32, 33, 34, 35
sF2R = 46
sR = [sRH, 44, 45, 47]
def srd(n): return f"s[{n}:{n+3}]"
def vr(b, n): return f"v[{b}:{b+n-1}]"

vXS0, vXS1, vWS = 1, 2, 3
vST = 4
vXR = [5, 6, 7, 8]
vWR = [9, 10]
vES, vER, vSA = 11, [12, 13], 30
vL16, vLANE = 14, 15
vC0 = 16
vZ = 17
vGT = 18
t0, t1, t2, t3 = 20, 21, 22, 23
vS0, vWS2 = 28, 27
vPV, vPD, vTRP = 29, 0, 31
F = [32, 48]
ACC = [64, 96]
XF = 128
ACCE, WE = 96, 100
GW = 147456
L = vLANE
QA, QB, KF, V2, V1 = 128, 132, 136, 140, [144, 148]
vG, vIDX, vAK, vAV, vKVS = 152, 154, 155, 156, 157
vDR0, vDR1, vH0, vH1 = 159, 160, 161, 162
vDS, vDS1, vF2 = vPD, 158, vL16
F2D = 164
OA, OB, SA, SB = 176, 192, 208, 224
WF = [240, 248]
HF = [32, 40, 48, 56]
DACC = 64

a = Asm()
CLK = 's_memtime' if OPT['stamp'] == 2 else 's_memrealtime'
def stamp(k, grp=0):
    if grp != OPT['grp'] and k != 11: return
    if OPT['stamp']: a(f"{CLK} s[{4+2*k}:{5+2*k}]")
def mk_srd(n, p, size):
    a(f"s_mov_b32 s{n}, s{p}\ns_mov_b32 s{n+1}, s{p+1}\ns_mov_b32 s{n+2}, {size}\ns_mov_b32 s{n+3}, 0x20000")

PG = 3584
C0 = -2.0 * math.sqrt(2.0 / math.pi) * math.log2(math.e)
C1 = C0 * 0.044715
QS = 0.25 * math.log2(math.e)

a("s_cmp_ge_u32 s2, 256\ns_cbranch_scc1 L_end")
a("s_load_dwordx16 s[4:19], s[0:1], 0\ns_load_dwordx8 s[20:27], s[0:1], 64\ns_load_dwordx2 s[28:29], s[0:1], 96")
if OPT['stamp']: a(f"{CLK} s[30:31]")
def code_prefetch():
    a(f"""
    s_getpc_b64 s[{sT[8]}:{sT[9]}]
    L_pc:
    s_andn2_b32 s{sT[7]}, s2, 7
    s_lshl_b32 s{sT[7]}, s{sT[7]}, 8
    v_lshl_add_u32 v{t3}, v0, 2, s{sT[7]}
    v_min_u32 v{t3}, L_last-L_pc-4, v{t3}
    s_mov_b32 exec_lo, 1
    s_mov_b32 exec_hi, 1
    global_load_dword v{vS0}, v{t3}, s[{sT[8]}:{sT[9]}]
    s_mov_b64 exec, -1
    """)
if OPT['cpf'] == 1: code_prefetch()
a(f"""
v_readfirstlane_b32 s{sW}, v0
v_lshrrev_b32 v{t1}, 4, v0
v_lshrrev_b32 v{t0}, 3, v0
v_xor_b32 v{t1}, v0, v{t1}
s_lshr_b32 s{sU}, s2, 6
s_bfe_u32 s{sJ}, s2, 0x30003
v_and_b32 v{t1}, 7, v{t1}
s_and_b32 s{sT[2]}, s2, 1
s_lshl3_add_u32 s{sTI}, s{sT[2]}, s{sJ}
v_lshlrev_b32 v{t1}, 4, v{t1}
s_lshl1_add_u32 s{sROT0}, s{sU}, s{sJ}
s_and_b32 s{sROT0}, s{sROT0}, 7
v_lshl_add_u32 v{vXS0}, v{t0}, 10, v{t1}
s_lshl_b32 s{sT[0]}, s{sTI}, 17
s_lshl_b32 s{sXO}, s{sROT0}, 7
s_add_u32 s{sXO}, s{sXO}, s{sT[0]}
s_lshl_b32 s{sMW}, s{sW}, 4
s_mov_b32 m0, s{sMW}
s_mov_b32 s{SX+2}, {2048*1024}
s_mov_b32 s{SX+3}, 0x20000
""")
a(f"""
s_bfe_u32 s{sT[1]}, s{sW}, 0x10006
s_lshl_b32 s{sT[1]}, s{sT[1]}, 2
v_and_or_b32 v{t1}, v{t0}, 2, s{sT[1]}
s_bfe_u32 s{sQ}, s2, 0x20001
s_mul_i32 s{sT[1]}, s{sQ}, 7
v_xor_b32 v{t1}, v0, v{t1}
s_lshl1_add_u32 s{sT[1]}, s{sU}, s{sT[1]}
s_sub_u32 s{sT[1]}, s{sT[1]}, 1
v_and_b32 v{t1}, 7, v{t1}
s_lshl_b32 s{sT[2]}, s{sQ}, 1
s_movk_i32 s{sT[3]}, {PG}
v_lshlrev_b32 v{vWS2}, 4, v{t1}
s_mov_b32 s{SWG+3}, 0x20000
s_mov_b32 s{SWU+3}, 0x20000
s_cmp_eq_u32 s{sU}, 0
s_cselect_b32 s{sT[1]}, s{sT[2]}, s{sT[1]}
s_cselect_b32 s{sT[3]}, 1024, s{sT[3]}
s_cselect_b32 s{sT[2]}, 128, 0
v_mad_u32_u24 v{vWS}, v{t0}, s{sT[3]}, v{vWS2}
s_lshl_b32 s{SWG+2}, s{sT[3]}, 9
s_mov_b32 s{SWU+2}, s{SWG+2}
s_mul_i32 s{sWOF}, s{sROT0}, s{sT[3]}
s_lshl1_add_u32 s{sWOF}, s{sT[1]}, s{sWOF}
s_lshl_b32 s{sWOF}, s{sWOF}, 6
s_cmp_eq_u32 s{sU}, 0
{CLK + ' s[84:85]' if OPT['grp'] == 5 else ''}
s_waitcnt lgkmcnt(0)
{CLK + ' s[86:87]' if OPT['grp'] == 5 else ''}
s_mov_b64 s[{SX}:{SX+1}], s[4:5]
buffer_load_dwordx4 v{vXS0}, {srd(SX)}, s{sXO} offen lds
s_cselect_b64 s[{SWG}:{SWG+1}], s[6:7], s[16:17]
s_cselect_b64 s[{SWU}:{SWU+1}], s[6:7], s[18:19]
s_add_u32 m0, s{sMW}, {WR}
s_add_u32 s{sXO}, s{sXO}, 65536
buffer_load_dwordx4 v{vWS}, {srd(SWG)}, s{sWOF} offen lds
s_add_u32 m0, s{sMW}, {WR + 8192}
s_add_u32 s{sWOF}, s{sWOF}, s{sT[2]}
buffer_load_dwordx4 v{vWS}, {srd(SWU)}, s{sWOF} offen lds
s_add_u32 m0, s{sMW}, 8192
s_nop 0
buffer_load_dwordx4 v{vXS0}, {srd(SX)}, s{sXO} offen lds
""")
if OPT['grp'] == 5: a(f"{CLK} s[88:89]\ns_waitcnt lgkmcnt(0)\ns_mov_b32 s4, s84\ns_mov_b32 s14, s86\ns_mov_b32 s5, s88")
a(f"""
s_lshr_b32 s{sW}, s{sW}, 6
v_add_u32 v{vXS0}, s{sT[0]}, v{vXS0}
v_add_u32 v{vXS1}, 0x10000, v{vXS0}
s_lshl_b32 s{sT[1]}, s{sT[1]}, 7
v_add_u32 v{vWS}, s{sT[1]}, v{vWS}
s_movk_i32 s{sT[3]}, {PG}
v_mad_u32_u24 v{vWS2}, v{t0}, s{sT[3]}, v{vWS2}
s_mul_i32 s{sT[1]}, s{sQ}, {7*128}
v_add_u32 v{vWS2}, s{sT[1]}, v{vWS2}
v_and_b32 v{L}, 63, v0
v_lshlrev_b32 v{vL16}, 4, v{L}
s_and_b32 s{sT[0]}, s2, 7
s_lshl2_add_u32 s{sI}, s{sT[0]}, s{sU}
s_add_u32 s{sROT}, s{sROT0}, 1
s_and_b32 s{sROT}, s{sROT}, 7
s_lshl_b32 s{sMX}, s{sW}, 11
""")
def dispatch():
    a(f"""
    s_lshr_b32 s{sT[1]}, s{sW}, 2
    s_lshl1_add_u32 s{sT[0]}, s{sU}, s{sT[1]}
    s_lshr_b32 s{sT[1]}, s{sQ}, 1
    s_lshl1_add_u32 s{sT[0]}, s{sT[0]}, s{sT[1]}
    s_cmp_eq_u32 s{sT[0]}, 0
    s_cbranch_scc1 L_pathK
    s_cmp_eq_u32 s{sT[0]}, 1
    s_cbranch_scc1 L_pathV
    s_cmp_lt_u32 s{sT[0]}, 4
    s_cbranch_scc1 L_pathP
    s_cmp_eq_u32 s{sT[0]}, 4
    s_cbranch_scc1 L_pathS
    s_add_u32 s{sT[0]}, s{sMW}, s2
    s_cmp_eq_u32 s{sT[0]}, {CLEAR_WG + 1024}
    s_cbranch_scc1 L_pathC
    """)

PATH = ['G']
def wslot(sig):
    if sig < 8: return WR + (sig & 3) * 16384
    if sig >= 14: return EX + (sig - 14) * 16384
    return (0 if sig & 1 else WR) + ((sig - 8) >> 1) * 16384
def waddr(sig, b):
    return {0: vXR[b], 1: vWR[b], 2: vXR[2 + b]}[wslot(sig) >> 16]

def dma_ops(sig, path):
    p = sig >> 3
    isq = (path in 'KVP' and p == 0)
    pitch = 1024 if isq else PG
    sa, sb = (SWQ, SWQ) if isq else (SWG, SWU)
    xs, ws = (sig & 3) * 16384, wslot(sig)
    pre = f"s_mul_i32 s{sWOF}, s{sROT}, {64*pitch}\n"
    if path in 'GSC' and p == 1: pre += f"s_add_u32 s{sWOF}, s{sWOF}, 128\n"
    mid = f"s_add_u32 s{sWOF}, s{sWOF}, 128\n" if isq else ""
    inc, wrap = f"s_add_u32 s{sROT}, s{sROT}, 1\n", f"s_and_b32 s{sROT}, s{sROT}, 7\n"
    vw = vWS2 if (path in 'KVP' and p == 1) else vWS
    wa = f"s_add_u32 m0, s{sMW}, {ws}\n{{}}buffer_load_dwordx4 v{vw}, {srd(sa)}, s{sWOF} offen lds"
    wb = f"s_add_u32 m0, s{sMW}, {ws+8192}\n{{}}buffer_load_dwordx4 v{vw}, {srd(sb)}, s{sWOF} offen lds"
    if p == 0:
        return [f"s_add_u32 m0, s{sMW}, {xs}\ns_lshl_b32 s{sXO}, s{sROT}, 7\nbuffer_load_dwordx4 v{vXS0}, {srd(SX)}, s{sXO} offen lds",
                wa.format(pre), wb.format(mid + inc),
                f"s_add_u32 m0, s{sMW}, {xs+8192}\n{wrap}buffer_load_dwordx4 v{vXS1}, {srd(SX)}, s{sXO} offen lds"]
    return [wa.format(pre), wb.format(inc + wrap)]

def setup_common():
    mk_srd(SWS, 28, WS_SIZE); mk_srd(SDBG, 26, 256); mk_srd(SWD, 20, 1792 * 1024); mk_srd(SWO, 12, 512 * 1024); mk_srd(SOUT, 24, 2048 * 1024)
    a(f"""
    s_and_b32 s{sT[0]}, s{sW}, 3
    s_lshr_b32 s{sT[1]}, s{sW}, 2
    s_xor_b32 s{sT[5]}, s{sT[1]}, s{sQ}
    s_and_b32 s{sT[5]}, s{sT[5]}, 1
    s_lshl1_add_u32 s{sT[0]}, s{sT[0]}, s{sT[5]}
    s_lshl_b32 s{sT[0]}, s{sT[0]}, 11
    v_and_b32 v{t0}, 15, v{L}
    v_bfe_u32 v{t1}, v{L}, 1, 3
    v_lshrrev_b32 v{t2}, 4, v{L}
    v_xor_b32 v{t1}, v{t1}, v{t2}
    v_lshlrev_b32 v{t1}, 4, v{t1}
    v_lshl_add_u32 v{t1}, v{t0}, 7, v{t1}
    v_add_u32 v{vXR[0]}, s{sT[0]}, v{t1}
    v_xor_b32 v{vXR[1]}, 0x800, v{vXR[0]}
    v_xor_b32 v{vXR[2]}, 64, v{vXR[0]}
    v_xor_b32 v{vXR[3]}, 64, v{vXR[1]}
    s_lshl_b32 s{sT[2]}, s{sT[5]}, 8
    v_xor_b32 v{vST}, s{sT[2]}, v{vL16}
    """)
    a(f"""
    v_lshrrev_b32 v{t3}, 5, v{L}
    v_lshlrev_b32 v{t0}, 4, v{t0}
    v_lshl_add_u32 v{vPV}, v{t3}, 8, v{t0}
    """)
    a(f"""
    v_bfe_u32 v{t0}, v{L}, 2, 2
    v_lshl_add_u32 v{t1}, v{t2}, 3, v{t0}
    v_lshlrev_b32 v{t1}, 7, v{t1}
    v_bfe_u32 v{t2}, v{L}, 3, 2
    s_lshl_b32 s{sT[1]}, s{sT[1]}, 1
    v_xor_b32 v{t2}, s{sT[1]}, v{t2}
    v_lshl_add_u32 v{t1}, v{t2}, 5, v{t1}
    v_and_b32 v{t2}, 3, v{L}
    v_lshl_add_u32 v{t1}, v{t2}, 3, v{t1}
    v_add_u32 v{vWR[0]}, {WR}, v{t1}
    v_xor_b32 v{vWR[1]}, 32, v{vWR[0]}
    """)
    a(f"""
    v_lshl_add_u32 v{t3}, v{t3}, 3, v{t0}
    v_lshlrev_b32 v{t3}, 7, v{t3}
    v_lshrrev_b32 v{t0}, 1, v{t0}
    v_lshl_add_u32 v{t3}, v{t0}, 6, v{t3}
    v_lshl_add_u32 v{t3}, v{t2}, 3, v{t3}
    v_bfe_u32 v{t2}, v{L}, 4, 1
    v_lshl_add_u32 v{vTRP}, v{t2}, 5, v{t3}
    v_lshlrev_b32 v{t2}, 2, v{t2}
    v_and_b32 v{t1}, 7, v{L}
    v_xor_b32 v{t1}, v{t1}, v{t2}
    v_lshlrev_b32 v{t1}, 4, v{t1}
    v_lshrrev_b32 v{t0}, 3, v{L}
    v_lshl_add_u32 v{t0}, v{t0}, 10, v{t1}
    s_lshl_b32 s{sT[0]}, s{sJ}, 7
    v_add_u32 v{vPD}, s{sT[0]}, v{t0}
    v_mov_b32 v{vZ}, 0
    v_mov_b32 v{vC0}, {fbits(C0):#x}
    s_mov_b32 s{sC1}, {fbits(C1):#x}
    s_mov_b32 s{sC1+1}, {fbits(C1):#x}
    """)
    a(f"""
    s_lshr_b32 s{sT[3]}, s{sW}, 2
    s_and_b32 s{sT[1]}, s{sW}, 3
    s_lshl2_add_u32 s{sT[0]}, s{sTI}, s{sT[1]}
    s_lshl_b32 s{sT[8]}, s{sT[0]}, 5
    s_and_b32 s{sT[2]}, s{sT[0]}, 15
    s_lshr_b32 s{sT[0]}, s{sT[0]}, 4
    s_mul_i32 s{sT[0]}, s{sT[0]}, 112
    s_mul_i32 s{sT[1]}, s{sQ}, 28
    s_add_u32 s{sT[0]}, s{sT[0]}, s{sT[1]}
    s_lshl3_add_u32 s{sT[0]}, s{sU}, s{sT[0]}
    s_lshl1_add_u32 s{sT[0]}, s{sT[3]}, s{sT[0]}
    s_lshl4_add_u32 s{sT[0]}, s{sT[0]}, s{sT[2]}
    s_lshl_b32 s{sT[0]}, s{sT[0]}, 10
    s_add_u32 s{sHO}, s{sT[0]}, {WS_H}
    s_lshl3_add_u32 s{sT[4]}, s{sQ}, s{sT[8]}
    s_lshl1_add_u32 s{sT[4]}, s{sT[3]}, s{sT[4]}
    s_lshl_b32 s{sT[4]}, s{sT[4]}, 10
    s_lshl2_add_u32 s{sT[1]}, s{sQ}, s{sU}
    s_lshl4_add_u32 s{sF2}, s{sTI}, s{sT[1]}
    s_lshl3_add_u32 s{sF2}, s{sF2}, s{sW}
    s_lshl_b32 s{sF2}, s{sF2}, 2
    s_add_u32 s{sF2}, s{sF2}, {WS_F2}
    s_lshl1_add_u32 s{sT[9]}, s{sT[1]}, s{sT[8]}
    s_add_u32 s{sT[9]}, s{sT[9]}, s{sT[3]}
    s_lshl_b32 s{sT[9]}, s{sT[9]}, 10
    s_add_u32 s{sT[9]}, s{sT[9]}, {WS_O}
    s_and_b32 s{sT[1]}, s{sW}, 1
    s_lshl1_add_u32 s{sT[1]}, s{sI}, s{sT[1]}
    s_lshl3_add_u32 s{sT[2]}, s{sT[1]}, s{sJ}
    s_lshl_b32 s{sT[2]}, s{sT[2]}, 2
    s_and_b32 s{sT[1]}, s{sW}, 2
    s_add_u32 s{sT[2]}, s{sT[2]}, s{sT[1]}
    s_add_u32 s{sT[2]}, s{sT[2]}, s{sT[3]}
    s_lshl_b32 s{sOO}, s{sT[2]}, 10
    s_lshl_b32 s{sRING}, s{sW}, 13
    s_add_u32 s{sRING}, s{sRING}, {RING}
    s_mul_i32 s{sRH}, s{sJ}, 7
    s_lshr_b32 s{sRH}, s{sRH}, 2
    s_mul_i32 s{sT[1]}, s{sU}, 7
    s_lshr_b32 s{sT[1]}, s{sT[1]}, 1
    s_add_u32 s{sRH}, s{sRH}, s{sT[1]}
    s_cmp_ge_u32 s{sRH}, 14
    s_cselect_b32 s{sT[1]}, 14, 0
    s_sub_u32 s{sRH}, s{sRH}, s{sT[1]}
    s_lshl_b32 s{sRH}, s{sRH}, 14
    s_mul_i32 s{sT[1]}, s{sW}, {14*16384}
    s_add_u32 s{SWD}, s{SWD}, s{sT[1]}
    s_addc_u32 s{SWD+1}, s{SWD+1}, 0
    s_sub_u32 s{SWD+2}, s{SWD+2}, s{sT[1]}
    s_lshl_b32 s{sT[1]}, s{sW}, 16
    s_add_u32 s{SWO}, s{SWO}, s{sT[1]}
    s_addc_u32 s{SWO+1}, s{SWO+1}, 0
    s_sub_u32 s{SWO+2}, s{SWO+2}, s{sT[1]}
    """)

def setup_path(P):
    if P in 'KV':
        a(f"""
        v_lshrrev_b32 v{t2}, 4, v{L}
        v_and_b32 v{t0}, 15, v{L}
        v_lshlrev_b32 v{t1}, 3, v{t0}
        v_lshl_add_u32 v{t1}, v{t2}, 8, v{t1}
        v_and_b32 v{t3}, 1, v{t2}
        v_lshl_add_u32 v{t1}, v{t3}, 7, v{t1}
        v_add_u32 v{vER[0]}, {EX}, v{t1}
        v_xor_b32 v{vER[1]}, 0x80, v{vER[0]}
        v_lshlrev_b32 v{t1}, 7, v{t3}
        v_xor_b32 v{vES}, v{t1}, v{vL16}
        s_add_u32 s{sEXO}, s{sW}, s{sROT0}
        s_and_b32 s{sEXO}, s{sEXO}, 7
        s_lshl_b32 s{sEXO}, s{sEXO}, 11
        s_lshr_b32 s{sEXW}, s{sT[4]}, 15
        v_lshrrev_b32 v{t2}, 1, v{t2}
        """)
        if P == 'K':
            a(f"""
            s_lshl3_add_u32 s{sEXW}, s{sEXW}, s{sT[5]}
            s_lshl_b32 s{sEXW}, s{sEXW}, 8
            v_lshlrev_b32 v{t2}, 9, v{t2}
            """)
        else:
            a(f"""
            s_lshl2_add_u32 s{sEXW}, s{sEXW}, s{sT[5]}
            s_lshl_b32 s{sEXW}, s{sEXW}, 9
            s_add_u32 s{sEXW}, s{sEXW}, 1024
            v_lshlrev_b32 v{t2}, 8, v{t2}
            v_and_b32 v{t0}, 3, v{L}
            v_bfe_u32 v{t1}, v{L}, 2, 1
            v_lshl_add_u32 v{t0}, v{t1}, 3, v{t0}
            v_bfe_u32 v{t1}, v{L}, 3, 1
            v_lshl_add_u32 v{t0}, v{t1}, 2, v{t0}
            """)
        a(f"""
        v_lshl_add_u32 v{t2}, v{t0}, 4, v{t2}
        v_lshl_add_u32 v{vSA}, v{t3}, 3, v{t2}
        """)
    if P == 'P':
        a(f"""
        v_bfe_u32 v{t1}, v{L}, 4, 1
        v_lshlrev_b32 v{t1}, 7, v{t1}
        v_xor_b32 v{vES}, v{t1}, v{vL16}
        s_add_u32 s{sEXO}, s{sW}, s{sROT0}
        s_and_b32 s{sEXO}, s{sEXO}, 7
        s_lshl_b32 s{sEXO}, s{sEXO}, 11
        """)
    if P == 'S':
        a(f"""
        s_lshl_b32 s{sEXO}, s{sROT0}, 7
        v_add_u32 v{vES}, s{sEXO}, v{vL16}
        v_and_b32 v{vES}, 0x3ff, v{vES}
        v_and_b32 v{t0}, 48, v{L}
        v_add_u32 v{vER[0]}, {GW}, v{t0}
        v_and_b32 v{t0}, 15, v{L}
        v_lshlrev_b32 v{vSA}, 2, v{t0}
        s_lshr_b32 s{sEXW}, s{sT[4]}, 15
        s_lshl1_add_u32 s{sEXW}, s{sEXW}, s{sT[5]}
        s_lshl_b32 s{sEXW}, s{sEXW}, 6
        s_add_u32 s{sEXW}, s{sEXW}, {WS_G}
        """)

def x_reads(sig, j):
    return [f"ds_read_b128 {vr(XF + 16*sig + 8*j + 4*tq, 4)}, v{vXR[2*j+tq]} offset:{(sig & 3) * 16384}" for tq in range(2)]
def w_reads(sig, j, i):
    b, part = i >> 1, i & 1
    off = (wslot(sig) & 0xffff) + part * 8192 + j * 4096
    return [f"ds_read_b64_tr_b16 {vr(F[j] + 4*i + 2*e, 2)}, v{waddr(sig, b)} offset:{off + e*512}" for e in range(2)]
def e_steps(c):
    c0 = 2 * OPT['exs']
    if PATH[0] in 'KVS': return [2 * (c - c0), 2 * (c - c0) + 1] if c0 <= c < 2 * c0 else ([c] if 2 * c0 <= c < 16 else [])
    return []
def e_buf(c, i): return WE + 16 if (PATH[0] == 'S' and c == 15) else WE + 8 * (c & 1) + 4 * i
def e_reads(c):
    if PATH[0] == 'S':
        cs = [] if c == 15 else ([14, 15] if c == 14 else [c])
        return [f"ds_read_b128 {vr(e_buf(x, i), 4)}, v{vER[0]} offset:{k*64}" for x in cs for i, k in enumerate(e_steps(x))]
    return [f"ds_read_b64_tr_b16 {vr(e_buf(c, i) + 2*e, 2)}, v{vER[e]} offset:{k*1024}" for i, k in enumerate(e_steps(c)) for e in range(2)]
def e_mfmas(c):
    out = []
    for i, k in enumerate(e_steps(c)):
        acc, w, x = vr(ACCE, 4), vr(e_buf(c, i), 4), vr(XF + 8 * k, 4)
        A, B = (x, w) if PATH[0] == 'V' else (w, x)
        out.append(f"v_mfma_f32_16x16x32_bf16 {acc}, {A}, {B}, {'0' if k == 0 else acc}")
    return out
def mfmas(sig, j):
    out = []
    for i in range(4):
        for tq in range(2):
            d = vr(ACC[sig >> 3] + 8 * i + 4 * tq, 4)
            c = "0" if ((sig & 7) == 0 and j == 0) else d
            out.append(f"v_mfma_f32_16x16x32_bf16 {d}, {vr(F[j] + 4*i, 4)}, {vr(XF + 16*(sig&7) + 8*j + 4*tq, 4)}, {c}")
    return out

def gelu_pair(base, j, T=vGT, pk=False):
    G = vr(base + 2 * j, 2); U = vr(base + 8 + 2 * j, 2); TT = vr(T, 2)
    g0, g1, u0, u1 = base + 2 * j, base + 2 * j + 1, base + 8 + 2 * j, base + 9 + 2 * j
    if pk:
        return [f"v_pk_mul_f32 {TT}, {G}, {G}",
                f"v_pk_fma_f32 {TT}, {TT}, s[{sC1}:{sC1+1}], {vr(vC0,2)} op_sel_hi:[1,1,0]",
                f"v_pk_mul_f32 {TT}, {TT}, {G}",
                f"v_exp_f32 v{T}, v{T}", f"v_exp_f32 v{T+1}, v{T+1}",
                f"v_pk_mul_f32 {G}, {G}, {U}",
                f"v_pk_add_f32 {TT}, {TT}, 1.0 op_sel_hi:[1,0]",
                f"v_rcp_f32 v{T}, v{T}", f"v_rcp_f32 v{T+1}, v{T+1}",
                f"v_pk_mul_f32 {G}, {G}, {TT}",
                f"v_cvt_pk_bf16_f32 v{base+j}, v{g0}, v{g1}"]
    return [f"v_mul_f32 v{T}, v{g0}, v{g0}", f"v_mul_f32 v{T+1}, v{g1}, v{g1}",
            f"v_fma_f32 v{T}, v{T}, s{sC1}, v{vC0}", f"v_fma_f32 v{T+1}, v{T+1}, s{sC1}, v{vC0}",
            f"v_mul_f32 v{T}, v{T}, v{g0}", f"v_mul_f32 v{T+1}, v{T+1}, v{g1}",
            f"v_exp_f32 v{T}, v{T}", f"v_exp_f32 v{T+1}, v{T+1}",
            f"v_mul_f32 v{g0}, v{g0}, v{u0}", f"v_add_f32 v{T}, 1.0, v{T}", f"v_add_f32 v{T+1}, 1.0, v{T+1}",
            f"v_rcp_f32 v{T}, v{T}", f"v_rcp_f32 v{T+1}, v{T+1}",
            f"v_mul_f32 v{g1}, v{g1}, v{u1}",
            f"v_mul_f32 v{g0}, v{g0}, v{T}", f"v_mul_f32 v{g1}, v{g1}, v{T+1}",
            f"v_cvt_pk_bf16_f32 v{base+j}, v{g0}, v{g1}"]
def to_frag(base):
    return [f"v_permlane16_swap_b32 v{base}, v{base+2}", f"v_permlane16_swap_b32 v{base+1}, v{base+3}"]

def cost(x):
    c = 0
    for l in x.strip().split('\n'):
        l = l.strip()
        if not l or l.startswith(';') or l.endswith(':'): continue
        c += 8 if l.startswith(('v_exp', 'v_rcp')) else (OPT.get('vmc', 16) if l.startswith('buffer_') else 4)
    return c

kvtok = {}
def kv_step(m):
    slot = (4 * m % NSLOT) * 2048
    if m == 0: x = f"s_mov_b32 m0, s{sKVM}\ns_nop 0\n"
    else: x = f"s_add_u32 s{sKVO}, s{sKVO}, 8192\ns_add_u32 m0, s{sKVM}, {slot}\ns_and_b32 s{sKVO}, s{sKVO}, 0xffff\n"
    return [x + f"buffer_load_dwordx4 v{vKVS}, {srd(SWS)}, s{sKVO} offen sc1 lds", f"buffer_load_dwordx4 v{vKVS}, {srd(SWS)}, s{sKVO} offen offset:1024 sc1 lds"]
KV_FIRST = 2
def first_loads():
    return [f"buffer_load_dwordx4 {vr(QA,4)}, v{vL16}, {srd(SWS)}, s{sQA} offen sc1\ns_xor_b32 s{sQA}, s{sQA}, 1024"] + kv_step(0) + \
           [f"buffer_load_dwordx4 {vr(QB,4)}, v{vL16}, {srd(SWS)}, s{sQA} offen sc1"] + kv_step(1)

def setup_queue():
    q = []
    def add(st, txt):
        for l in txt.strip().split('\n'): q.append((st, l.strip().replace('|', '\n')))
    add(11, f"""
    s_lshr_b32 s{sT[3]}, s{sW}, 2
    s_and_b32 s{sT[5]}, s{sW}, 1
    s_lshl_b32 s{sT[6]}, s{sT[3]}, 16
    v_add_u32 v{vKVS}, s{sT[6]}, v{vL16}
    s_mul_i32 s{sT[3]}, s{sT[3]}, {HALF}
    v_add_u32 v{vAK}, s{sT[3]}, v{vL16}
    v_add_u32 v{vAV}, s{sT[3]}, v{vPV}
    s_and_b32 s{sT[6]}, s{sW}, 3
    s_lshl_b32 s{sT[7]}, s{sT[6]}, 11
    s_add_u32 s{sKVM}, s{sT[7]}, s{sT[3]}
    s_lshr_b32 s{sT[7]}, s2, 3
    s_add_u32 s{sT[6]}, s{sT[6]}, s{sT[7]}
    s_and_b32 s{sT[6]}, s{sT[6]}, 31
    s_lshl_b32 s{sKVO}, s{sT[6]}, 11
    s_add_u32 s{sQA}, s{sOO}, {WS_Q}
    s_xor_b32 s{sQA}, s{sQA}, 1024
    s_lshl1_add_u32 s{sGA}, s{sI}, s{sT[5]}
    s_lshl_b32 s{sGA}, s{sGA}, 7
    s_add_u32 s{sGA}, s{sGA}, {WS_G}
    v_and_b32 v{vG}, 31, v{L}
    v_lshlrev_b32 v{vG}, 2, v{vG}
    v_mov_b32 v{vIDX}, 0xdddddddd
    v_mov_b32 v{V2+1}, 0x3f803f80
    s_mov_b32 vcc_lo, 0x110000|s_mov_b32 vcc_hi, 0x110000|v_cndmask_b32 v{V2}, 0, v{V2+1}, vcc
    """)
    for r in range(V2 + 1, V2 + 12): add(11, f"v_mov_b32 v{r}, v{V2}")
    add(12, f"""
    v_add_u32 v{vDR0}, s{sRING}, v{vTRP}
    v_xor_b32 v{vDR1}, 64, v{vDR0}
    v_add_u32 v{vDS1}, 7168, v{vDS}
    s_lshr_b32 s{sT[6]}, s{sI}, 3
    s_lshl3_add_u32 s{sT[6]}, s{sT[6]}, s{sW}
    s_mul_i32 s{sT[6]}, s{sT[6]}, {14*16}
    s_and_b32 s{sT[7]}, s{sI}, 7
    s_lshl1_add_u32 s{sT[7]}, s{sT[7]}, s{sT[5]}
    s_add_u32 s{sT[6]}, s{sT[6]}, s{sT[7]}
    s_lshl_b32 s{sT[6]}, s{sT[6]}, 10
    s_add_u32 s{sT[6]}, s{sT[6]}, {WS_H}
    v_add_u32 v{vH0}, s{sT[6]}, v{vL16}
    v_xor_b32 v{vH1}, 0x400, v{vH0}
    s_lshr_b32 s{sF2R}, s{sI}, 1
    s_lshl_b32 s{sF2R}, s{sF2R}, 9
    s_add_u32 s{sF2R}, s{sF2R}, {WS_F2}
    """)
    for r in range(9): add(13, f"v_mov_b32 v{OA+r}, 0")
    for r in range(9): add(14, f"v_mov_b32 v{OB+r}, 0")
    return q

cold = []
def s0_check(P):
    a(f"v_cmp_eq_u32 vcc, 0, v{vS0}\ns_cbranch_vccnz L_s0retry{P}\nL_s0done{P}:")
    cold.append(f"""
    L_s0retry{P}:
    s_mov_b32 s{sT[1]}, 0
    L_s0poll{P}:
    buffer_load_dword v{vS0}, v{vZ}, {srd(SDBG)}, 0 offen sc1
    s_add_u32 s{sT[1]}, s{sT[1]}, 1
    s_waitcnt vmcnt(0)
    v_cmp_eq_u32 vcc, 0, v{vS0}
    s_cbranch_vccz L_s0done{P}
    s_cmp_lt_u32 s{sT[1]}, {SPIN}
    s_cbranch_scc1 L_s0poll{P}
    s_branch L_s0done{P}
    """)
def s1_issue(P):
    a(f"s_cmp_lg_u32 s{sW}, 0\ns_cbranch_scc1 L_nopoll0{P}")
    if P in 'GSC': s0_check(P)
    a(f"""
    s_mov_b32 s{sT[1]}, {WS_F1}
    v_lshlrev_b32 v{t1}, 7, v{L}
    buffer_load_dword v{t0}, v{t1}, {srd(SWS)}, s{sT[1]} offen sc1
    L_nopoll0{P}:
    """)
    a.vm -= 1
def s1_check(P):
    a(f"""
    s_cmp_lg_u32 s{sW}, 0
    s_cbranch_scc1 L_s1done{P}
    s_mov_b32 s{sT[0]}, 0
    L_s1poll{P}:
    s_waitcnt vmcnt(0)
    v_cmp_ne_u32 vcc, 1, v{t0}
    s_cbranch_vccz L_s1done{P}
    s_mov_b64 exec, vcc
    buffer_load_dword v{t0}, v{t1}, {srd(SWS)}, s{sT[1]} offen sc1
    s_mov_b64 exec, -1
    s_add_u32 s{sT[0]}, s{sT[0]}, 1
    s_cmp_lt_u32 s{sT[0]}, {SPIN}
    s_cbranch_scc1 L_s1poll{P}
    s_waitcnt vmcnt(0)
    L_s1done{P}:
    """)
    a.vm -= 1

def proj_path(P):
    tok = {}
    PATH[0] = P
    S1 = OPT['s1']
    sched = {s: [s + 2] for s in range(6)}
    ISQ = P in 'KVP'
    QF = OPT['qf']
    sched.update({6: [8, 9], 7: [10, 11], 8: [12, 13], 9: [14, 15]}); cover = {8: 9, 10: 11, 12: 15}
    if ISQ and OPT['qmode'] == 0:
        del sched[8], sched[9]
        sched.update({10: [12, 13], 11: [14, 15]}); cover = {8: 9, 10: 11, 12: 13, 14: 15}
    bars = set(range(8)) | set(cover) | {S1}
    if ISQ: bars |= {QF} | ({9} if OPT['qmode'] else set()) | (set(range(10, 16)) if OPT['qbar'] else set())
    def dma_groups(sg):
        d = dma_ops(sg, P)
        if ISQ and sg == OPT['exs']:
            d.insert(1, f"""
            s_add_u32 m0, s{sMX}, {EX}
            s_nop 0
            buffer_load_dwordx4 v{vES}, {srd(SEX)}, s{sEXO} offen lds
            buffer_load_dwordx4 v{vES}, {srd(SEX)}, s{sEXO} offen offset:1024 lds
            """)
        if P == 'S' and sg == OPT['exs']:
            d.insert(1, f"s_mov_b32 m0, {GW}\ns_nop 0\nbuffer_load_dwordx4 v{vES}, {srd(SEX)}, 0 offen lds")
        return [(x, sg if k == len(d) - 1 else None) for k, x in enumerate(d)]
    def emit(it):
        if callable(it): return it()
        a(it[0])
        if it[1] is not None: tok[it[1]] = a.lastvm()
    tok[0] = a.lastvm()
    if ISQ: mk_srd(SWQ, 6, 512 * 1024)
    if not OPT['spf']:
        for it in dma_groups(1): emit(it)
    if ISQ: mk_srd(SWG, 16, 512 * PG); mk_srd(SWU, 18, 512 * PG)
    if P in 'KVS': mk_srd(SEX, {'K': 8, 'V': 10, 'S': 22}[P], 1024 if P == 'S' else 16384)
    if P == 'P': a(f"s_cmp_lt_u32 s{sQ}, 2\ns_cselect_b64 s[{SEX}:{SEX+1}], s[8:9], s[10:11]\ns_mov_b32 s{SEX+2}, 16384\ns_mov_b32 s{SEX+3}, 0x20000")
    setup_path(P)
    if OPT['grp'] == 5: a("s_mov_b32 s6, s14\ns_mov_b32 s8, s5")
    stamp(3, 5)
    if OPT['spf']:
        for it in dma_groups(1): emit(it)
    stamp(4, 5)
    if P == 'C':
        ctok = a(f"v_lshlrev_b32 v{t0}, 7, v{L}\ns_mov_b32 s{sT[1]}, {WS_F1}\nbuffer_store_dword v{vZ}, v{t0}, {srd(SWS)}, s{sT[1]} offen sc1")
    win = {c: [] for c in range(33)}
    box = {}; front = {}; pre8 = []
    def usable(c):
        return c % 2 == 0 or ((c + 1) // 2) not in bars
    def nxt(c):
        while not usable(c): c += 1
        return c
    if not ISQ:
        gq = []
        for b in range(2):
            for j in range(4): gq += gelu_pair(ACC[0] + 16 * b, j)
            gq += to_frag(ACC[0] + 16 * b)
            if b == 0: n0 = len(gq)
        npre = 17 * (OPT['pb'] - 1) if OPT['pb'] else 0
        pre8 += [(x, None) for j in range(max(OPT['pb'] - 1, 0)) for x in gelu_pair(ACC[0], j, pk=OPT.get('pbk', 0))]
        gq = gq[npre:]; n0 -= npre
        ws = [c for c in range(16, OPT['gend'] + 1) if usable(c)]
        ndma = {16: 2, 17: 2, 18: 4}
        tot = len(gq) + OPT['dwt'] * 8
        done = 0; accw = 0
        for k, c in enumerate(ws):
            accw += OPT['dwt'] * ndma.get(c, 0)
            upto = max(done, tot * (k + 1) // len(ws) - accw)
            win[c] += [(x, None) for x in gq[done:upto]]
            if done < n0 <= upto: c0 = c
            done = upto
        assert done == len(gq)
        for b in range(OPT['nearly']):
            c = nxt(max(OPT[f'h{b}w'], c0 if b == 0 else ws[-1]))
            win[c].append((f"s_sub_u32 s{sT[2]}, s{sHO}, {65536 - 16384*b}\nbuffer_store_dwordx4 {vr(ACC[0]+16*b,4)}, v{vST}, {srd(SWS)}, s{sT[2]} offen sc1", None))
    else:
        qa = [f"s_add_u32 s{sT[8]}, s{sT[4]}, {WS_Q + 4096}\ns_add_u32 s{sT[4]}, s{sT[4]}, {WS_Q}"]
        if P == 'K': qa += [f"v_mul_f32 v{ACCE+r}, {fbits(QS):#x}, v{ACCE+r}" for r in range(4)]
        sts = []
        if P in 'KV':
            qa += [f"v_cvt_pk_bf16_f32 v{vGT}, v{ACCE}, v{ACCE+1}", f"v_cvt_pk_bf16_f32 v{vGT+1}, v{ACCE+2}, v{ACCE+3}"]
            sts.append(f"buffer_store_dwordx2 {vr(vGT,2)}, v{vSA}, {srd(SWS)}, s{sEXW} offen sc1")
        if P == 'P':
            sts.append(f"s_andn2_b32 s{sT[0]}, s{sF2}, 127\nv_lshlrev_b32 v{t2}, 2, v{L}\ns_mov_b32 exec_hi, 0\nbuffer_store_dword v{vZ}, v{t2}, {srd(SWS)}, s{sT[0]} offen sc1\ns_mov_b32 exec_hi, -1")
        def qcv(i): return [f"v_cvt_pk_bf16_f32 v{ACC[0]+8*i+j}, v{ACC[0]+8*i+2*j}, v{ACC[0]+8*i+2*j+1}" for j in range(4)]
        def qst(i): return to_frag(ACC[0] + 8 * i) + [f"buffer_store_dwordx4 {vr(ACC[0]+8*i,4)}, v{vST}, {srd(SWS)}, s{sT[8 if i & 1 else 4]} offen offset:{1024*(i>>1)} sc1"]
        mark = [lambda: box.update(q=a.lastvm())]
        T = lambda l: [(x, None) for x in l]
        if OPT['qmode'] == 0 and OPT['pb']:
            pre8 += T(qa + qcv(0) + qcv(1) + qcv(2) + qcv(3) + [x for i in range(4) for x in qst(i)[:2]])
            if OPT.get('pbq'): pre8 += T(sts + [qst(i)[2] for i in range(4)]) + mark
            else: win[16] += T(sts + [qst(i)[2] for i in range(2)]); win[17] += T([qst(i)[2] for i in range(2, 4)]) + mark
        elif OPT['qmode'] == 0:
            win[16] += T(qa + sts + qcv(0) + qcv(1) + qst(0) + qst(1)); win[17] += T(qcv(2) + qcv(3) + qst(2) + qst(3)) + mark
        elif OPT['qmode'] == 1:
            win[16] += T(qa + qcv(0) + qcv(1)); win[18] += T(sts + qst(0) + qcv(2)); win[20] += T(qcv(3) + qst(1) + qst(2) + qst(3)) + mark
        else:
            win[16] += T(qa + qcv(0) + qcv(1) + qcv(2) + qcv(3)); win[18] += T(sts + qst(0) + qst(1) + qst(2) + qst(3)) + mark
        def qflag():
            assert a.vm_done > box['s0']
            if P != 'P': s0_check(P)
            a(f"""
            s_lshl4_add_u32 s{sT[0]}, s{sQ}, s{sTI}
            s_lshl_b32 s{sT[0]}, s{sT[0]}, 7
            s_add_u32 s{sT[0]}, s{sT[0]}, {WS_F1}
            s_lshl_b32 s{sT[1]}, s{sW}, 24
            s_add_u32 s{sT[0]}, s{sT[0]}, s{sT[1]}
            v_mov_b32 v{t1}, 1
            s_mov_b64 exec, 1
            buffer_store_dword v{t1}, v{vZ}, {srd(SWS)}, s{sT[0]} offen sc1
            s_mov_b64 exec, -1
            """)
        if P != 'P': box['flag'] = qflag
    if P == 'S':
        win[16] = [(x, None) for x in (f"v_mul_f32 v{t2}, {fbits(-math.log2(math.e)):#x}, v{ACCE}", f"v_exp_f32 v{t2}, v{t2}", f"v_add_f32 v{t2}, 1.0, v{t2}", f"v_rcp_f32 v{t2}, v{t2}")] + win[16]
        win[20].append((f"s_mov_b64 exec, 0xffff\nbuffer_store_dword v{t2}, v{vSA}, {srd(SWS)}, s{sEXW} offen sc1\ns_mov_b64 exec, -1", None))
    if OPT['clw'] <= 32:
        win[nxt(max(OPT['clw'], max(24, 2 * QF + 1) if ISQ else 0))].append(
            (f"v_mov_b32 v24, -1\nv_mov_b32 v25, -1\nv_mov_b32 v26, -1\nv_mov_b32 v27, -1\nbuffer_store_dwordx4 v[24:27], v{vL16}, {srd(SWS)}, s{sT[9]} offen sc1", None))
    queue = setup_queue()
    ws = [c for c in range(21 if ISQ else 20, 2 * S1 - 1) if usable(c)]
    for k, c in enumerate(ws):
        left = [x for x in queue if 2 * x[0] - 2 <= c]
        take = min(len(left), -(-len(queue) // (len(ws) - k)))
        win[c] += [(x[1], None) for x in left[:take]]; queue = queue[take:]
    assert not queue
    win[16].insert(0, (f"v_subrev_u32 v{vXR[0]}, {WR}, v{vWR[0]}\nv_subrev_u32 v{vXR[1]}, {WR}, v{vWR[1]}\nv_add_u32 v{vXR[2]}, {WR}, v{vWR[0]}\nv_add_u32 v{vXR[3]}, {WR}, v{vWR[1]}", None))

    def cluster(c, what='mr'):
        M = mfmas(c >> 1, c & 1) if (c >= 0 and 'm' in what) else []
        em = e_mfmas(c) if M else []
        for i, x in enumerate(em): M.insert(1 + (8 // len(em) + 1) * i, x)
        d = c + 1
        R = []
        if d < 32 and 'r' in what:
            if d < 16: R += x_reads(d >> 1, d & 1)
            for i in range(4): R += w_reads(d >> 1, d & 1, i)
            R += e_reads(d)
        a.wait(a.lastlg())
        if M: a("s_setprio 2")
        n = max(len(M), 1); k = 0
        last = n - 1 if (c & 1 or ((c >> 1) + 1) not in bars) else n - 2
        for i in range(n):
            if M: a(M[i])
            want = len(R) if i >= last else -(-len(R) * (i + 1) // (last + 1))
            while k < want: a(R[k]); k += 1
        if M: a("s_setprio 0")

    for sig in range(16):
        if sig == 8 and OPT['pb']:
            cluster(15, 'm')
            for it in pre8: emit(it)
        if sig in bars:
            if sig in cover or sig < 8: a.wait(tok[cover.get(sig, sig)])
            if ISQ and sig == QF: a.wait(box['q'])
            if sig == S1 and P != 'P': s1_check(P)
            a("s_barrier")
            if sig == QF and 'flag' in box: box['flag']()
        if sig == 1: stamp(1)
        if sig == 8: stamp(2)
        if sig < 11: stamp(sig, 1)
        if sig < 5: stamp(5 + sig, 5)
        if sig >= 6: stamp(sig - 6, 2)
        D = []
        if P == 'C' and sig == 2:
            assert a.vm_done >= ctok[1]
            win[4].append((f"v_mov_b32 v{t0}, 1\ns_mov_b64 exec, 1\nbuffer_store_dword v{t0}, v{vZ}, {srd(SDBG)}, 0 offen sc1\ns_mov_b64 exec, -1", None))
        for sg in sched.get(sig, []): D += dma_groups(sg)
        if sig == S1: D += [(x, None) for x in first_loads()]
        if sig == (7 if ISQ else 9) and P != 'P':
            def s0_load():
                if not ISQ:
                    a(f"s_cmp_lg_u32 s{sW}, 0\ns_cbranch_scc1 L_nos0l{P}\nbuffer_load_dword v{vS0}, v{vZ}, {srd(SDBG)}, 0 offen sc1\nL_nos0l{P}:")
                    a.vm -= 1
                else:
                    a(f"buffer_load_dword v{vS0}, v{vZ}, {srd(SDBG)}, 0 offen sc1")
                box['s0'] = a.vm
            D.insert(len(D) - 1, s0_load)
        head, mid, tail = [], D, []
        if sig < OPT['late']: mid, tail = [], D
        elif (sig + 1) not in bars: mid, tail = D[:len(D)//2], D[len(D)//2:]
        elif sig in bars and len(D) >= 4: head, mid = D[:OPT['na']], D[OPT['na']:]
        for it in head: emit(it)
        cluster(2 * sig - 1, 'r' if (sig == 8 and OPT['pb']) else 'mr')
        if sig == S1 - 1 and P != 'P':
            assert a.vm_done > box['s0']
            s1_issue(P)
        for it in front.get(2 * sig, []) + mid + win[2 * sig]: emit(it)
        cluster(2 * sig)
        for it in front.get(2 * sig + 1, []) + tail + win[2 * sig + 1]: emit(it)
    a.wait(a.lastlg())
    assert not win[32]

setup_common()
dispatch()
proj_path('G')
a("L_join:")
a.forget()

for m in mfmas(15, 1): a(m)
stamp(3); stamp(10, 2)
stamp(5, 3)
if OPT['s1'] == 16:
    s1_check('J')
    stamp(6, 3)
    a("s_barrier")
    stamp(7, 3)
    for x in first_loads(): a(x)
stamp(4); stamp(8, 3)
for b in range(2):
    for jp in range(2):
        g0 = gelu_pair(ACC[1] + 16 * b, 2 * jp, vGT, pk=OPT['pk2']); g1 = gelu_pair(ACC[1] + 16 * b, 2 * jp + 1, t0, pk=OPT['pk2'])
        for x, y in zip(g0, g1):
            a(x); a(y)
        if b == 1 and jp == 0:
            for x in to_frag(ACC[1]): a(x)
a(f"s_mov_b32 s{sT[7]}, s{sT[9]}\ns_mov_b32 s{sT[8]}, 0xffff\ns_mov_b32 s{sT[9]}, 0xffff")
for x in to_frag(ACC[1] + 16): a(x)
stamp(9, 3)
a.wait_vm0()
a("s_barrier")
stamp(5); stamp(10, 3)

def qk(S, Q): return f"v_mfma_f32_32x32x16_bf16 {vr(S,16)}, {vr(KF,4)}, {vr(Q,4)}, 0"
def pv(O, V, S): return f"v_smfmac_f32_32x32x32_bf16 {vr(O,16)}, {vr(V,4)}, {vr(S,8)}, v{vIDX}"
NT, B1, B2 = 32, 8, OPT['b2']
def rec(t): return (t % NSLOT) * 2048
def rdK(t): return a(f"ds_read_b128 {vr(KF,4)}, v{vAK} offset:{rec(t)}")
def rdV(t2, t1):
    a(f"s_mov_b64 exec, s[{sT[8]}:{sT[9]}]")
    if t2 is not None: a(f"ds_read_b128 {vr(V2,4)}, v{vAV} offset:{rec(t2) + 1536}")
    if t1 is not None: a(f"ds_read_b128 {vr(V1[t1&1],4)}, v{vAV} offset:{rec(t1) + 1024}")
    a("s_mov_b64 exec, -1")
    return a.lastlg()
wtok, htok, rtok, box = {}, {}, {}, {}
m0own = [None]
def w_off(u): return sR[u & 3] if u < 14 else sWOF
def w_load_a(u):
    a(f"s_add_u32 m0, s{sRING}, {(u & 3) * 2048}"); m0own[0] = ('w', u)
    if 0 < u < 14: a(f"s_sub_u32 s{sR[u&3]}, s{sR[(u-1)&3]}, 16384\ns_cselect_b32 s{sR[u&3]}, {13*16384}, s{sR[u&3]}")
    elif u == 14: a(f"s_lshl_b32 s{sWOF}, s{sU}, 14")
    elif u > 14: a(f"s_add_u32 s{sWOF}, s{sWOF}, 16384\ns_and_b32 s{sWOF}, s{sWOF}, 0xffff")
    a(f"buffer_load_dwordx4 v{vDS}, {srd(SWD if u < 14 else SWO)}, s{w_off(u)} offen lds")
def w_load_b(u):
    assert m0own[0] == ('w', u)
    wtok[u] = a(f"buffer_load_dwordx4 v{vDS1}, {srd(SWD if u < 14 else SWO)}, s{w_off(u)} offen offset:1024 lds")
def h_load_a(u):
    assert u in wtok and (u + 4) not in wtok
    a(f"buffer_load_dwordx4 {vr(HF[u&3],4)}, v{vH0}, {srd(SWS)}, s{sR[u&3]} offen sc1")
def h_load_b(u):
    assert m0own[0] != ('w', u + 4) and (u + 4) not in wtok
    htok[u] = a(f"buffer_load_dwordx4 {vr(HF[u&3]+4,4)}, v{vH1}, {srd(SWS)}, s{sR[u&3]} offen sc1")
def w_read(u, b):
    if b == 0: a.wait(wtok[u], htok[u])
    for e in range(2):
        rtok[u, b] = a(f"ds_read_b64_tr_b16 {vr(WF[u&1] + 4*b + 2*e, 2)}, v{(vDR0, vDR1)[b]} offset:{(u & 3) * 2048 + e*512}")
def d_mfma(u, k):
    tb, b = k >> 1, k & 1
    a.wait(rtok[u, 1])
    d = vr(DACC + 32 * tb + 16 * b, 16)
    a(f"v_mfma_f32_32x32x16_bf16 {d}, {vr(WF[u&1]+4*b,4)}, {vr(HF[u&3]+4*tb,4)}, {'0' if u == 0 else d}")

if OPT.get('x_now'):
    def w_load_a(u): pass
    def w_load_b(u): wtok[u] = None
if OPT.get('x_noh'):
    def h_load_a(u): pass
    def h_load_b(u): htok[u] = None
if OPT.get('x_noread'):
    def w_read(u, b): rtok[u, b] = None
ev, mf = {}, {}
SNAP = OPT.get('snap', 1)
B1P = 32 * (B1 - 1) + 11
EV, EVA, EK, EKA = OPT.get('ev', 5), OPT.get('eva', 0), OPT.get('ek', 11), OPT.get('eka', 0)
busy = {32 * t + o for t in range(NT) for o in (EV, EK, 18)}
def nextpos(p):
    while SNAP and (p & 15) not in (2, 5, 8, 11, 14): p += 1
    return p
def at(pos, f, limit=None):
    p = nextpos(pos)
    while SNAP and limit is not None and p in busy and nextpos(p + 1) <= limit: p = nextpos(p + 1)
    busy.add(p)
    ev.setdefault(p, []).append(f)
    return p
def h_store(b): box['h'] = a((f"s_add_u32 s{sHO}, s{sHO}, 16384\n" if b else "") + f"buffer_store_dwordx4 {vr(ACC[1]+16*b,4)}, v{vST}, {srd(SWS)}, s{sHO} offen sc1")
def late_store(k):
    if k == 2:
        a(f"v_mov_b32 v24, -1\nv_mov_b32 v25, -1\nv_mov_b32 v26, -1\nv_mov_b32 v27, -1\nbuffer_store_dwordx4 v[24:27], v{vL16}, {srd(SWS)}, s{sT[7]} offen sc1")
        return
    a(f"""
    s_cmp_eq_u32 s{sU}, 0
    s_cbranch_scc1 L_nols{k}
    s_sub_u32 s{sT[2]}, s{sHO}, {65536 - 16384*k}
    buffer_store_dwordx4 {vr(ACC[0]+16*k,4)}, v{vST}, {srd(SWS)}, s{sT[2]} offen sc1
    L_nols{k}:
    """)
    a.vm -= 1
pp = 1
for k in list(range(OPT['nearly'], 2)) + ([2] if OPT['clw'] > 32 else []):
    pp = at(pp, lambda k=k: late_store(k), pp + 12) + 1
pp = at(pp, lambda: h_store(0), pp + 12) + 1
at(pp, lambda: h_store(1), pp + 12)
def kv_emit(m, i):
    if i == 0: m0own[0] = ('kv', m)
    assert m0own[0] == ('kv', m)
    kvtok[m] = a(kv_step(m)[i])
for m in range(KV_FIRST, 8):
    p = OPT['p_kv'] + OPT['p_kvs'] * (m - KV_FIRST) if m < 6 else OPT['p_kv2'] + 20 * (m - 6)
    p = at(p, lambda m=m: kv_emit(m, 0), p + 8)
    at(p + 1, lambda m=m: kv_emit(m, 1), p + 9)
assert OPT['p_kv2'] > B1P
def h_flag():
    a.wait(box['h'])
    a(f"v_mov_b32 v{t0}, 1\ns_mov_b64 exec, 1\nbuffer_store_dword v{t0}, v{vZ}, {srd(SWS)}, s{sF2} offen sc1\ns_mov_b64 exec, -1")
at(OPT['p_flag'], h_flag, OPT['p_flag'] + 8)
def f2_load():
    box['f2'] = a(f"s_mov_b32 exec_hi, 0\nbuffer_load_dwordx4 {vr(F2D,4)}, v{vF2}, {srd(SWS)}, s{sF2R} offen sc1")
    a("s_mov_b32 exec_hi, -1")
at(OPT['p_f2'], f2_load, OPT['p_f2'] + 8)
def f2_check():
    a.wait(box['f2'])
    a(f"""
    s_mov_b32 s{sT[1]}, 0
    s_mov_b32 exec_hi, 0
    L_s2poll:
    v_min3_u32 v{F2D}, v{F2D}, v{F2D+1}, v{F2D+2}
    v_min_u32 v{F2D}, v{F2D}, v{F2D+3}
    v_cmp_ne_u32 vcc, 1, v{F2D}
    s_cbranch_vccz L_s2done
    buffer_load_dwordx4 {vr(F2D,4)}, v{vF2}, {srd(SWS)}, s{sF2R} offen sc1
    s_add_u32 s{sT[1]}, s{sT[1]}, 1
    s_cmp_lt_u32 s{sT[1]}, {SPIN}
    s_waitcnt vmcnt(0)
    s_cbranch_scc1 L_s2poll
    L_s2done:
    s_mov_b32 exec_hi, -1
    """)
    a.vm -= 1
    a(f"buffer_load_dword v{vG}, v{vG}, {srd(SWS)}, s{sGA} offen sc1")
    stamp(9)
PCHK = at(OPT['p_chk'], f2_check, OPT['p_chk'] + 8)
D0, DE = OPT['d0'], OPT['dend']
allsl = [32 * t + o for t in range(D0, DE) for o in (8, 14, 24, 30)]
assert len(allsl) >= 56
slots = [allsl[(i * len(allsl)) // 56] for i in range(56)]
for u in range(14):
    rp = slots[0] - 16 if u == 0 else slots[4 * u - 2] + 1
    lim = slots[4 * u] - 9
    p = at(rp, lambda u=u: w_read(u, 0), lim - 3); at(p + 1, lambda u=u: w_read(u, 1), lim)
    for k in range(4): mf[slots[4 * u + k]] = (lambda u=u, k=k: d_mfma(u, k))
for u in range(18):
    pw = OPT['p_fill'] + OPT['p_fills'] * u if u < 4 else slots[4 * (u - 4)] + 1
    p = at(pw, lambda u=u: w_load_a(u), pw + 8); p = at(p + 1, lambda u=u: w_load_b(u), p + 8)
    if u < 3:
        ph = PCHK + 1 + OPT.get('p_hs', 13) * u
        p = at(ph, lambda u=u: h_load_a(u), ph + 4); at(p + 1, lambda u=u: h_load_b(u), p + 5)
    if 4 <= u < 15:
        p = at(p + 1, lambda u=u: h_load_a(u - 1), p + 8); at(p + 1, lambda u=u: h_load_b(u - 1), p + 8)
for lo, hi, fr in ((0, B1P, (OPT.get('la1', 30), OPT.get('la2', 70), OPT.get('la3', 94))), (B1P, 32 * B2, (OPT.get('lb1', 35), OPT.get('lb2', 80), OPT.get('lb3', 96))),
                   (32 * B2, 32 * NT, (OPT.get('lc1', 60), OPT.get('lc2', 87), OPT.get('lc3', 96)))):
    for k in range(3): at(lo + ((hi - lo) * fr[k]) // 100, lambda k=k: a(f"s_setprio {2-k}"))

def merge_addr():
    a(f"""
    s_mul_i32 s{sT[0]}, s{sW}, 2304
    s_add_u32 s{sT[0]}, s{sT[0]}, {MERGE}
    s_xor_b32 s{sT[1]}, s{sW}, 4
    s_mul_i32 s{sT[1]}, s{sT[1]}, 2304
    s_add_u32 s{sT[1]}, s{sT[1]}, {MERGE}
    v_add_u32 v{t0}, s{sT[0]}, v{vL16}
    v_add_u32 v{t1}, s{sT[1]}, v{vL16}
    v_lshl_add_u32 v{t2}, v{L}, 2, s{sT[0]}
    v_lshl_add_u32 v{t3}, v{L}, 2, s{sT[1]}
    s_add_u32 s{sOO}, s{sOO}, {WS_O}
    s_mov_b32 s{sT[6]}, {fbits(2.0**-60):#x}
    s_mov_b32 s{sT[7]}, {fbits(2.0**60) - fbits(2.0**-60):#x}
    """)
at(32 * NT - 11, merge_addr)
at(32 * NT - 8, lambda: a(f"ds_write_b128 v{t0}, {vr(OA,4)}\nds_write_b128 v{t0}, {vr(OA+4,4)} offset:1024\nds_write_b32 v{t2}, v{OA+8} offset:2048"))

a("s_setprio 3")
tK = rdK(0); tV = rdV(None, 0)
a.wait(tK)
a(qk(SA, QA))
for t in range(NT):
    if t == B2:
        a.wait(kvtok[7]); a("s_barrier\ns_setprio 3"); stamp(0)
    nx = t + 1 if t + 1 < NT else None
    for ph, (S, So, O, Oo, Qo) in enumerate(((SA, SB, OA, OB, QB), (SB, SA, OB, OA, QA))):
        for e in range(16):
            pos = 32 * t + 16 * ph + e
            def own(after):
                global tV, tK
                if ph == 0 and (e, after) == (EV, EVA):
                    if t == 0: a.wait(tV)
                    tV = rdV(t, nx if t != B1 - 1 else None)
                if ph == 0 and (e, after) == (EK, EKA) and nx and t != B1 - 1: tK = rdK(nx)
            for f in ev.pop(pos, []): f()
            own(0)
            if pos == B1P:
                a.wait(kvtok[5], tV); a("s_barrier\ns_setprio 3"); stamp(6)
                tK = rdK(nx); tV = rdV(None, nx)
            if e == 2:
                if ph == 1: a.wait(tV, None if OPT.get('w2') else tK)
                if t > 0 or ph == 1: a(pv(Oo, V2, So + 8))
            if (e == 5 and not (t == 0 and ph == 0)) or (t == 0 and ph == 0 and e == 0):
                if ph == 1: a.wait(tK)
                if ph == 0 or nx: a(qk(So, Qo))
            if e == 11: a(pv(O, V1[t & 1], S))
            if pos in mf: mf.pop(pos)()
            own(1)
            a(f"v_exp_f32 v{S+e}, v{S+e}")
assert not mf
assert not ev, sorted(ev)
a.wait_lg0()
a(pv(OB, V2, SB + 8))
stamp(7); stamp(0, 4)
a("s_barrier")
stamp(1, 4)
a(f"""
ds_read_b32 v{SA+8}, v{t3} offset:2048
ds_read_b128 {vr(SA,4)}, v{t1}
ds_read_b128 {vr(SA+4,4)}, v{t1} offset:1024
s_lshl_b32 s{sT[3]}, s{sW}, 13
s_xor_b32 s{sT[2]}, s{sT[3]}, 8192
v_add_u32 v24, s{sT[2]}, v{vL16}
v_add_u32 v26, s{sT[3]}, v{vL16}
s_waitcnt lgkmcnt(2)
v_add_f32 v{OB+8}, v{OB+8}, v{SA+8}
v_rcp_f32 v{t0}, v{OB+8}
""")
a.wait_lg0()
OS = 128
for j in range(2): a(f"v_pk_add_f32 {vr(OB+2*j,2)}, {vr(OB+2*j,2)}, {vr(SA+2*j,2)}")
a(f"v_mul_f32 v{t0}, v{t0}, v{vG}")
for j in range(2, 4): a(f"v_pk_add_f32 {vr(OB+2*j,2)}, {vr(OB+2*j,2)}, {vr(SA+2*j,2)}")
for j in range(4): a(f"v_pk_mul_f32 {vr(OB+2*j,2)}, {vr(OB+2*j,2)}, {vr(t0,2)} op_sel_hi:[1,0]")
a(f"""
v_pk_add_f32 {vr(t2,2)}, {vr(OB,2)}, {vr(OB+2,2)}
v_pk_add_f32 {vr(t0,2)}, {vr(OB+4,2)}, {vr(OB+6,2)}
v_cvt_pk_bf16_f32 v{OS}, v{OB}, v{OB+1}
v_pk_add_f32 {vr(t2,2)}, {vr(t2,2)}, {vr(t0,2)}
v_cvt_pk_bf16_f32 v{OS+1}, v{OB+2}, v{OB+3}
v_add_f32 v{t2}, v{t2}, v{t3}
v_cvt_pk_bf16_f32 v{OS+2}, v{OB+4}, v{OB+5}
v_fma_f32 v{t2}, v{t2}, 0, v{OB+8}
v_cvt_pk_bf16_f32 v{OS+3}, v{OB+6}, v{OB+7}
v_subrev_u32 v{t2}, s{sT[6]}, v{t2}
v_cmp_lt_u32 vcc, s{sT[7]}, v{t2}
""")
if OPT['force_fb']: a("s_mov_b64 vcc, -1")
a(f"""
s_cbranch_vccnz L_true_max
L_norm:
buffer_store_dwordx4 {vr(OS,4)}, v{vL16}, {srd(SWS)}, s{sOO} offen sc1
""")
stamp(8); stamp(2, 4)

OF, WOF, XT = 32, 176, 96
vO1 = 27
fill = f"""
s_andn2_b32 s{sT[2]}, s{sRING}, 8192
v_add_u32 v28, s{sT[2]}, v{vTRP}
v_xor_b32 v29, 64, v28
v_sub_f32 v{vG}, 1.0, v{vG}
v_add_u32 v{vO1}, 4096, v{vL16}
s_and_b32 s{sT[1]}, s{sW}, 1
s_lshl1_add_u32 s{sT[0]}, s{sI}, s{sT[1]}
s_lshr_b32 s{sT[1]}, s{sW}, 1
s_lshl2_add_u32 s{sT[0]}, s{sT[0]}, s{sT[1]}
s_lshl_b32 s{sT[0]}, s{sT[0]}, 13
s_add_u32 s{sT[0]}, s{sT[0]}, {WS_O}
""".strip().split('\n')
for v in range(4):
    fill += f"s_add_u32 s{sT[1]}, s{sU}, {v}\ns_and_b32 s{sT[1]}, s{sT[1]}, 3\ns_lshl_b32 s{sT[1]}, s{sT[1]}, 10\ns_add_u32 s{sT[4+v]}, s{sT[0]}, s{sT[1]}".split('\n')
fill += f"""
v_and_b32 v{t0}, 31, v{L}
v_lshrrev_b32 v{t1}, 5, v{L}
v_and_b32 v{t2}, 7, v{L}
v_xor_b32 v{t1}, v{t1}, v{t2}
v_lshlrev_b32 v{t1}, 4, v{t1}
v_lshl_add_u32 v{t0}, v{t0}, 8, v{t1}
v_add_u32 v9, s{sT[3]}, v{t0}
v_xor_b32 v10, 32, v9
v_xor_b32 v11, 64, v9
v_xor_b32 v12, 0x60, v9
v_lshrrev_b32 v{t0}, 3, v{L}
v_lshlrev_b32 v{t1}, 1, v{t2}
v_xor_b32 v{t1}, v{t1}, v{t0}
v_lshlrev_b32 v{t1}, 4, v{t1}
v_lshl_add_u32 v{t1}, v{t0}, 8, v{t1}
v_add_u32 v1, s{sMX}, v{t1}
v_xor_b32 v2, 16, v1
s_lshl3_add_u32 s{sT[3]}, s{sI}, s{sW}
s_lshl_b32 s{sT[3]}, s{sT[3]}, 6
s_add_u32 s{sT[3]}, s{sT[3]}, s{sJ}
s_lshl_b32 s{sT[3]}, s{sT[3]}, 7
v_lshlrev_b32 v{t2}, 4, v{t2}
v_lshl_add_u32 v5, v{t0}, 10, v{t2}
s_mov_b32 s{sT[2]}, 0
""".strip().split('\n')
for j in range(8):
    a(f"ds_write_b128 v24, {vr(DACC+32+4*j,4)} offset:{1024*j}")
    for x in fill[len(fill) * j // 8: len(fill) * (j + 1) // 8]: a(x)
def o_loads():
    for v in range(8):
        a(f"buffer_load_dwordx4 {vr(OF + 4*v, 4)}, v{vO1 if v >> 2 else vL16}, {srd(SWS)}, s{sT[4 + (v&3)]} offen sc1")
stamp(3, 4)
a.wait(wtok[17], a.lastlg())
a(f"s_cmp_ge_u32 s{sW}, 4")
a("s_barrier")
stamp(4, 4)
a("s_setprio 1\ns_cbranch_scc1 L_ol1\ns_setprio 0")
o_loads()
a("L_ol1:")
xt = [a(f"ds_read_b128 {vr(XT+4*j,4)}, v26 offset:{1024*j}") for j in range(8)]
def wo_read(v):
    slot = ((14 + v) & 3) * 2048 + (v >> 2) * 8192
    for b in range(2):
        for e in range(2):
            a(f"ds_read_b64_tr_b16 {vr(WOF + 8*v + 4*b + 2*e, 2)}, v{28 + b} offset:{slot + e*512}")
for j in range(8):
    a.wait(xt[j])
    for i in range(2):
        r = 4 * j + 2 * i
        a(f"v_pk_add_f32 {vr(DACC+r,2)}, {vr(DACC+r,2)}, {vr(XT+r,2)}")
    for i in range(2):
        r = 4 * j + 2 * i
        a(f"v_pk_mul_f32 {vr(DACC+r,2)}, {vr(DACC+r,2)}, {vr(vG,2)} op_sel_hi:[1,0]")
stamp(5, 4)
a("s_setprio 0\ns_cbranch_scc0 L_ol2")
o_loads()
a("L_ol2:")
for j in range(8): wo_read(j)
stamp(6, 4)
a("L_s3poll:")
a.wait_vm0()
a(f"v_max_u32 v{t0}, v{OF}, v{OF+1}\nv_max_u32 v{t1}, v{OF+2}, v{OF+3}")
for j in range(2, 16): a(f"v_max3_u32 v{t0 + (j&1)}, v{t0 + (j&1)}, v{OF+2*j}, v{OF+2*j+1}")
a(f"""
v_max_u32 v{t0}, v{t0}, v{t1}
v_cmp_eq_u32 vcc, -1, v{t0}
s_cbranch_vccnz L_s3retry
L_s3done:
""")
stamp(10); stamp(7, 4)
a.wait_lg0()
def fin_write(b, qd): a(f"ds_write_b128 v{9+qd}, {vr(DACC + 16*b + 4*qd, 4)} offset:{b*128}")
for b in range(2):
    for v in range(8):
        d = vr(DACC + 16 * b, 16)
        a(f"v_mfma_f32_32x32x16_bf16 {d}, {vr(WOF+8*v+4*b,4)}, {vr(OF+4*v,4)}, {d}")
        if b == 1 and v < 3: a("s_nop 2")
        if b == 1 and 3 <= v < 7: fin_write(0, v - 3)
stamp(8, 4)
for qd in range(4): fin_write(1, qd)
a.wait_lg0()
a("s_barrier")
stamp(9, 4)
RD = 176
rt = []
for p in range(4):
    for e in range(2):
        rt.append(a(f"ds_read_b128 {vr(RD + 8*p + 4*e, 4)}, v{1 + e} offset:{p*16384}"))
for p in range(1, 4):
    a.wait(rt[2 * p + 1])
    for j in range(4):
        a(f"v_pk_add_f32 {vr(RD+2*j,2)}, {vr(RD+2*j,2)}, {vr(RD+8*p+2*j,2)}")
for j in range(4): a(f"v_cvt_pk_bf16_f32 v{RD+j}, v{RD+2*j}, v{RD+2*j+1}")
a(f"buffer_store_dwordx4 {vr(RD,4)}, v5, {srd(SOUT)}, s{sT[3]} offen {['', 'sc1'][OPT['outm']]}")
stamp(10, 4)
if OPT['stamp']:
    a("s_waitcnt vmcnt(0)")
    stamp(11)
    a("s_waitcnt lgkmcnt(0)")
    a(f"s_mov_b32 s28, s{sT[2]}")
    if 'pad' in OPT:
        K = OPT['pad']
        a(f"s_and_b32 s{sT[0]}, s2, {OPT.get('padm', 0)}\ns_cmp_lg_u32 s{sT[0]}, {OPT.get('padv', 0)}\ns_cbranch_scc1 L_end")
        if K >= 0: a(f"s_sub_u32 s{sT[0]}, s{4+2*K}, s{4+2*OPT.get('padb', 13)}\ns_mul_i32 s{sT[0]}, s{sT[0]}, {OPT.get('padx', 4)}")
        else: a(f"s_mov_b32 s{sT[0]}, 0")
        a(f"""
        s_add_u32 s{sT[0]}, s{sT[0]}, 6000
        L_pad:
        s_memrealtime s[{sT[2]}:{sT[3]}]
        s_waitcnt lgkmcnt(0)
        s_sub_u32 s{sT[2]}, s{sT[2]}, s30
        s_cmp_lt_u32 s{sT[2]}, s{sT[0]}
        s_cbranch_scc1 L_pad
        """)
    else:
        a(f"s_lshl3_add_u32 s{sT[0]}, s2, s{sW}\ns_lshl_b32 s{sT[0]}, s{sT[0]}, 6\ns_add_u32 s{sT[0]}, s{sT[0]}, {WS_STAMP}")
        a("v_mov_b32 v1, 0\ns_mov_b64 exec, 1")
        for k in range(14):
            a(f"v_mov_b32 v2, s{4+2*k}\nbuffer_store_dword v2, v1, {srd(SWS)}, s{sT[0]} offen offset:{4*k}")
a("L_end:\ns_endpgm")
a("L_s3retry:")
o_loads()
a(f"""
s_add_u32 s{sT[2]}, s{sT[2]}, 1
s_cmp_lt_u32 s{sT[2]}, {SPIN}
s_cbranch_scc1 L_s3poll
s_waitcnt vmcnt(0)
s_branch L_s3done
""")

for P in 'KVPSC':
    a(f".p2align 6\nL_path{P}:")
    a.forget()
    proj_path(P)
    a("s_branch L_join")
for x in cold: a(x)

CM = SB
a(f"""
L_true_max:
s_waitcnt vmcnt(0) lgkmcnt(0)
v_mov_b32 v{t0}, 0xff800000
s_mov_b32 s{sT[0]}, {WS_KV}
L_tm1:
buffer_load_dwordx4 {vr(KF,4)}, v{vL16}, {srd(SWS)}, s{sT[0]} offen sc1
s_waitcnt vmcnt(0)
{qk(SA, QB)}
""")
for j in range(8): a(f"v_max3_f32 v{t0}, v{t0}, v{SA+2*j}, v{SA+2*j+1}")
a(f"""
s_add_u32 s{sT[0]}, s{sT[0]}, 2048
s_cmp_lt_u32 s{sT[0]}, {WS_KV + 64*2048}
s_cbranch_scc1 L_tm1
v_mov_b32 v{t1}, v{t0}
v_permlane32_swap_b32 v{t0}, v{t1}
v_max_f32 v{t0}, v{t0}, v{t1}
""")
for r in range(16): a(f"v_sub_f32 v{CM+r}, 0, v{t0}\nv_mov_b32 v{OB+r}, 0")
a(f"""
s_mov_b32 s{sT[0]}, {WS_KV}
L_tm2:
buffer_load_dwordx4 {vr(KF,4)}, v{vL16}, {srd(SWS)}, s{sT[0]} offen sc1
s_mov_b64 exec, s[{sT[8]}:{sT[9]}]
buffer_load_dwordx4 {vr(V1[0],4)}, v{vPV}, {srd(SWS)}, s{sT[0]} offen offset:1024 sc1
buffer_load_dwordx4 {vr(V2,4)}, v{vPV}, {srd(SWS)}, s{sT[0]} offen offset:1536 sc1
s_mov_b64 exec, -1
s_waitcnt vmcnt(0)
v_mfma_f32_32x32x16_bf16 {vr(SA,16)}, {vr(KF,4)}, {vr(QB,4)}, {vr(CM,16)}
""")
for e in range(16): a(f"v_exp_f32 v{SA+e}, v{SA+e}")
a(pv(OB, V1[0], SA)); a(pv(OB, V2, SA + 8))
a(f"""
s_add_u32 s{sT[0]}, s{sT[0]}, 2048
s_cmp_lt_u32 s{sT[0]}, {WS_KV + 64*2048}
s_nop 7
s_cbranch_scc1 L_tm2
s_nop 7
v_rcp_f32 v{t0}, v{OB+8}
s_nop 0
v_mul_f32 v{t0}, v{t0}, v{vG}
""")
for j in range(4): a(f"v_pk_mul_f32 {vr(OB+2*j,2)}, {vr(OB+2*j,2)}, {vr(t0,2)} op_sel_hi:[1,0]")
for j in range(4): a(f"v_cvt_pk_bf16_f32 v{OS+j}, v{OB+2*j}, v{OB+2*j+1}")
for j in range(4): a(f"v_min_u32 v{OS+j}, -2, v{OS+j}")
a("s_branch L_norm\nL_last:")

bad = a.check_branches()
assert not bad, bad

hdr = open(f'cdna_kernels/{NAME}.s.ref').read().split('\n')
head = [l for l in hdr if l.startswith(';') and '@launch' not in l]
out = "\n".join(head) + f"\n; @launch grid=(256,1,1) block=(512,1,1) lds={LDS_BYTES}\n"
out += f""".amdgcn_target "amdgcn-amd-amdhsa--gfx950"
.text
.globl {NAME}_kernel
.p2align 8
.type {NAME}_kernel,@function
{NAME}_kernel:
{a.text()}
.section .rodata,"a"
.p2align 6
.amdhsa_kernel {NAME}_kernel
  .amdhsa_next_free_vgpr 256
  .amdhsa_next_free_sgpr 102
  .amdhsa_accum_offset 256
  .amdhsa_group_segment_fixed_size 0
  .amdhsa_kernarg_size 104
  .amdhsa_user_sgpr_count 2
  .amdhsa_user_sgpr_kernarg_segment_ptr 1
  .amdhsa_system_sgpr_workgroup_id_x 1
.end_amdhsa_kernel
"""
open(sys.argv[1], 'w').write(out)
print("instructions:", sum(1 for i in a.ins if i.ws), "auto nops:", a.nnop, file=sys.stderr)
```

```python
import sys, math, struct
sys.path.insert(0, 'gen')
from asmlib import Asm

NAME = 'gated_mix__grouped_kv_mqa__geglu_ffn__prompt'
OPT = dict(stamp=0, grp=0, force_fb=0, qflag=11, s1=16, b2=22, outm=1, ofast=0,
           p_kv=40, p_kvs=18, p_flag=112, p_fill=120, p_fills=40, p_kv2=272, p_f2=300, p_chk=340, d0=12, dend=32,
           late=1, pk2=1, nearly=1, h0w=27, h1w=30, clw=22, na=1, gend=30, dwt=4, qbar=0, cpf=1, qmode=0, qf=11, exs=3, spf=0, pb=2)
for x in sys.argv[2:]:
    k, v = x.split('='); OPT[k] = int(v)

def fbits(x): return struct.unpack('<I', struct.pack('<f', x))[0]

WS_KV, WS_G, WS_F1, WS_Q, WS_O, WS_H, WS_STAMP = 0, 0x20000, 0x30000, 0x100000, 0x300000, 0x500000, 0xC00000
WS_F2 = WS_F1 + 8192
WS_SIZE = 0x1000000
CLEAR_WG = 128
WR, EX = 65536, 131072
NSLOT, HALF, RING = 24, 49152, 98304
MERGE = 65536
LDS_BYTES = 163840
SPIN = 0x40000
SX, SWG, SWU, SWQ, SEX, SWS, SDBG, SWD, SWO, SOUT = 32, 36, 40, 44, 48, 52, 56, 60, 64, 92
sW, sTI, sQ, sU, sROT, sXO, sWOF, sMX, sMW, sI, sJ, sROT0 = range(68, 80)
sT = list(range(80, 90))
sEXW, sEXO = 90, 91
sC1 = 96
sF2, sRH, sRING, sOO = 98, 99, 100, 101
sHO = 3
sKVM, sKVO, sQA, sGA = 32, 33, 34, 35
sF2R = 46
sR = [sRH, 44, 45, 47]
def srd(n): return f"s[{n}:{n+3}]"
def vr(b, n): return f"v[{b}:{b+n-1}]"

vXS0, vXS1, vWS = 1, 2, 3
vST = 4
vXR = [5, 6, 7, 8]
vWR = [9, 10]
vES, vER, vSA = 11, [12, 13], 30
vL16, vLANE = 14, 15
vC0 = 16
vZ = 17
vGT = 18
t0, t1, t2, t3 = 20, 21, 22, 23
vS0, vWS2 = 28, 27
vPV, vPD, vTRP = 29, 0, 31
F = [32, 48]
ACC = [64, 96]
XF = 128
ACCE, WE = 96, 100
GW = 147456
L = vLANE
QA, QB, KF, V2, V1 = 128, 132, 136, 140, [144, 148]
vG, vIDX, vAK, vAV, vKVS = 152, 154, 155, 156, 157
vDR0, vDR1, vH0, vH1 = 159, 160, 161, 162
vDS, vDS1, vF2 = vPD, 158, vL16
F2D = 164
OA, OB, SA, SB = 176, 192, 208, 224
WF = [240, 248]
HF = [32, 40, 48, 56]
DACC = 64

a = Asm()
CLK = 's_memtime' if OPT['stamp'] == 2 else 's_memrealtime'
def stamp(k, grp=0):
    if grp != OPT['grp'] and k != 11: return
    if OPT['stamp']: a(f"{CLK} s[{4+2*k}:{5+2*k}]")
def mk_srd(n, p, size):
    a(f"s_mov_b32 s{n}, s{p}\ns_mov_b32 s{n+1}, s{p+1}\ns_mov_b32 s{n+2}, {size}\ns_mov_b32 s{n+3}, 0x20000")

PG = 3584
C0 = -2.0 * math.sqrt(2.0 / math.pi) * math.log2(math.e)
C1 = C0 * 0.044715
QS = 0.25 * math.log2(math.e)

a("s_cmp_ge_u32 s2, 256\ns_cbranch_scc1 L_end")
a("s_load_dwordx16 s[4:19], s[0:1], 0\ns_load_dwordx8 s[20:27], s[0:1], 64\ns_load_dwordx2 s[28:29], s[0:1], 96")
if OPT['stamp']: a(f"{CLK} s[30:31]")
def code_prefetch():
    a(f"""
    s_getpc_b64 s[{sT[8]}:{sT[9]}]
    L_pc:
    s_andn2_b32 s{sT[7]}, s2, 7
    s_lshl_b32 s{sT[7]}, s{sT[7]}, 8
    v_lshl_add_u32 v{t3}, v0, 2, s{sT[7]}
    v_min_u32 v{t3}, L_last-L_pc-4, v{t3}
    s_mov_b32 exec_lo, 1
    s_mov_b32 exec_hi, 1
    global_load_dword v{vS0}, v{t3}, s[{sT[8]}:{sT[9]}]
    s_mov_b64 exec, -1
    """)
if OPT['cpf'] == 1: code_prefetch()
a(f"""
v_readfirstlane_b32 s{sW}, v0
v_lshrrev_b32 v{t1}, 4, v0
v_lshrrev_b32 v{t0}, 3, v0
v_xor_b32 v{t1}, v0, v{t1}
s_lshr_b32 s{sU}, s2, 6
s_bfe_u32 s{sJ}, s2, 0x30003
v_and_b32 v{t1}, 7, v{t1}
s_and_b32 s{sT[2]}, s2, 1
s_lshl3_add_u32 s{sTI}, s{sT[2]}, s{sJ}
v_lshlrev_b32 v{t1}, 4, v{t1}
s_lshl1_add_u32 s{sROT0}, s{sU}, s{sJ}
s_and_b32 s{sROT0}, s{sROT0}, 7
v_lshl_add_u32 v{vXS0}, v{t0}, 10, v{t1}
s_lshl_b32 s{sT[0]}, s{sTI}, 17
s_lshl_b32 s{sXO}, s{sROT0}, 7
s_add_u32 s{sXO}, s{sXO}, s{sT[0]}
s_lshl_b32 s{sMW}, s{sW}, 4
s_mov_b32 m0, s{sMW}
s_mov_b32 s{SX+2}, {2048*1024}
s_mov_b32 s{SX+3}, 0x20000
""")
a(f"""
s_bfe_u32 s{sT[1]}, s{sW}, 0x10006
s_lshl_b32 s{sT[1]}, s{sT[1]}, 2
v_and_or_b32 v{t1}, v{t0}, 2, s{sT[1]}
s_bfe_u32 s{sQ}, s2, 0x20001
s_mul_i32 s{sT[1]}, s{sQ}, 7
v_xor_b32 v{t1}, v0, v{t1}
s_lshl1_add_u32 s{sT[1]}, s{sU}, s{sT[1]}
s_sub_u32 s{sT[1]}, s{sT[1]}, 1
v_and_b32 v{t1}, 7, v{t1}
s_lshl_b32 s{sT[2]}, s{sQ}, 1
s_movk_i32 s{sT[3]}, {PG}
v_lshlrev_b32 v{vWS2}, 4, v{t1}
s_mov_b32 s{SWG+3}, 0x20000
s_mov_b32 s{SWU+3}, 0x20000
s_cmp_eq_u32 s{sU}, 0
s_cselect_b32 s{sT[1]}, s{sT[2]}, s{sT[1]}
s_cselect_b32 s{sT[3]}, 1024, s{sT[3]}
s_cselect_b32 s{sT[2]}, 128, 0
v_mad_u32_u24 v{vWS}, v{t0}, s{sT[3]}, v{vWS2}
s_lshl_b32 s{SWG+2}, s{sT[3]}, 9
s_mov_b32 s{SWU+2}, s{SWG+2}
s_mul_i32 s{sWOF}, s{sROT0}, s{sT[3]}
s_lshl1_add_u32 s{sWOF}, s{sT[1]}, s{sWOF}
s_lshl_b32 s{sWOF}, s{sWOF}, 6
s_cmp_eq_u32 s{sU}, 0
{CLK + ' s[84:85]' if OPT['grp'] == 5 else ''}
s_waitcnt lgkmcnt(0)
{CLK + ' s[86:87]' if OPT['grp'] == 5 else ''}
s_mov_b64 s[{SX}:{SX+1}], s[4:5]
buffer_load_dwordx4 v{vXS0}, {srd(SX)}, s{sXO} offen lds
s_cselect_b64 s[{SWG}:{SWG+1}], s[6:7], s[16:17]
s_cselect_b64 s[{SWU}:{SWU+1}], s[6:7], s[18:19]
s_add_u32 m0, s{sMW}, {WR}
s_add_u32 s{sXO}, s{sXO}, 65536
buffer_load_dwordx4 v{vWS}, {srd(SWG)}, s{sWOF} offen lds
s_add_u32 m0, s{sMW}, {WR + 8192}
s_add_u32 s{sWOF}, s{sWOF}, s{sT[2]}
buffer_load_dwordx4 v{vWS}, {srd(SWU)}, s{sWOF} offen lds
s_add_u32 m0, s{sMW}, 8192
s_nop 0
buffer_load_dwordx4 v{vXS0}, {srd(SX)}, s{sXO} offen lds
""")
if OPT['grp'] == 5: a(f"{CLK} s[88:89]\ns_waitcnt lgkmcnt(0)\ns_mov_b32 s4, s84\ns_mov_b32 s14, s86\ns_mov_b32 s5, s88")
a(f"""
s_lshr_b32 s{sW}, s{sW}, 6
v_add_u32 v{vXS0}, s{sT[0]}, v{vXS0}
v_add_u32 v{vXS1}, 0x10000, v{vXS0}
s_lshl_b32 s{sT[1]}, s{sT[1]}, 7
v_add_u32 v{vWS}, s{sT[1]}, v{vWS}
s_movk_i32 s{sT[3]}, {PG}
v_mad_u32_u24 v{vWS2}, v{t0}, s{sT[3]}, v{vWS2}
s_mul_i32 s{sT[1]}, s{sQ}, {7*128}
v_add_u32 v{vWS2}, s{sT[1]}, v{vWS2}
v_and_b32 v{L}, 63, v0
v_lshlrev_b32 v{vL16}, 4, v{L}
s_and_b32 s{sT[0]}, s2, 7
s_lshl2_add_u32 s{sI}, s{sT[0]}, s{sU}
s_add_u32 s{sROT}, s{sROT0}, 1
s_and_b32 s{sROT}, s{sROT}, 7
s_lshl_b32 s{sMX}, s{sW}, 11
""")
def dispatch():
    a(f"""
    s_lshr_b32 s{sT[1]}, s{sW}, 2
    s_lshl1_add_u32 s{sT[0]}, s{sU}, s{sT[1]}
    s_lshr_b32 s{sT[1]}, s{sQ}, 1
    s_lshl1_add_u32 s{sT[0]}, s{sT[0]}, s{sT[1]}
    s_cmp_eq_u32 s{sT[0]}, 0
    s_cbranch_scc1 L_pathK
    s_cmp_eq_u32 s{sT[0]}, 1
    s_cbranch_scc1 L_pathV
    s_cmp_lt_u32 s{sT[0]}, 4
    s_cbranch_scc1 L_pathP
    s_cmp_eq_u32 s{sT[0]}, 4
    s_cbranch_scc1 L_pathS
    s_add_u32 s{sT[0]}, s{sMW}, s2
    s_cmp_eq_u32 s{sT[0]}, {CLEAR_WG + 1024}
    s_cbranch_scc1 L_pathC
    """)

PATH = ['G']
def wslot(sig):
    if sig < 8: return WR + (sig & 3) * 16384
    if sig >= 14: return EX + (sig - 14) * 16384
    return (0 if sig & 1 else WR) + ((sig - 8) >> 1) * 16384
def waddr(sig, b):
    return {0: vXR[b], 1: vWR[b], 2: vXR[2 + b]}[wslot(sig) >> 16]

def dma_ops(sig, path):
    p = sig >> 3
    isq = (path in 'KVP' and p == 0)
    pitch = 1024 if isq else PG
    sa, sb = (SWQ, SWQ) if isq else (SWG, SWU)
    xs, ws = (sig & 3) * 16384, wslot(sig)
    pre = f"s_mul_i32 s{sWOF}, s{sROT}, {64*pitch}\n"
    if path in 'GSC' and p == 1: pre += f"s_add_u32 s{sWOF}, s{sWOF}, 128\n"
    mid = f"s_add_u32 s{sWOF}, s{sWOF}, 128\n" if isq else ""
    inc, wrap = f"s_add_u32 s{sROT}, s{sROT}, 1\n", f"s_and_b32 s{sROT}, s{sROT}, 7\n"
    vw = vWS2 if (path in 'KVP' and p == 1) else vWS
    wa = f"s_add_u32 m0, s{sMW}, {ws}\n{{}}buffer_load_dwordx4 v{vw}, {srd(sa)}, s{sWOF} offen lds"
    wb = f"s_add_u32 m0, s{sMW}, {ws+8192}\n{{}}buffer_load_dwordx4 v{vw}, {srd(sb)}, s{sWOF} offen lds"
    if p == 0:
        return [f"s_add_u32 m0, s{sMW}, {xs}\ns_lshl_b32 s{sXO}, s{sROT}, 7\nbuffer_load_dwordx4 v{vXS0}, {srd(SX)}, s{sXO} offen lds",
                wa.format(pre), wb.format(mid + inc),
                f"s_add_u32 m0, s{sMW}, {xs+8192}\n{wrap}buffer_load_dwordx4 v{vXS1}, {srd(SX)}, s{sXO} offen lds"]
    return [wa.format(pre), wb.format(inc + wrap)]

def setup_common():
    mk_srd(SWS, 28, WS_SIZE)
    if OPT.get('wso'): a(f"s_add_u32 s{SWS}, s{SWS}, {OPT['wso'] << 20}\ns_addc_u32 s{SWS+1}, s{SWS+1}, 0")
    mk_srd(SDBG, 26, 256); mk_srd(SWD, 20, 1792 * 1024); mk_srd(SWO, 12, 512 * 1024); mk_srd(SOUT, 24, 2048 * 1024)
    a(f"""
    s_and_b32 s{sT[0]}, s{sW}, 3
    s_lshr_b32 s{sT[1]}, s{sW}, 2
    s_xor_b32 s{sT[5]}, s{sT[1]}, s{sQ}
    s_and_b32 s{sT[5]}, s{sT[5]}, 1
    s_lshl1_add_u32 s{sT[0]}, s{sT[0]}, s{sT[5]}
    s_lshl_b32 s{sT[0]}, s{sT[0]}, 11
    v_and_b32 v{t0}, 15, v{L}
    v_bfe_u32 v{t1}, v{L}, 1, 3
    v_lshrrev_b32 v{t2}, 4, v{L}
    v_xor_b32 v{t1}, v{t1}, v{t2}
    v_lshlrev_b32 v{t1}, 4, v{t1}
    v_lshl_add_u32 v{t1}, v{t0}, 7, v{t1}
    v_add_u32 v{vXR[0]}, s{sT[0]}, v{t1}
    v_xor_b32 v{vXR[1]}, 0x800, v{vXR[0]}
    v_xor_b32 v{vXR[2]}, 64, v{vXR[0]}
    v_xor_b32 v{vXR[3]}, 64, v{vXR[1]}
    s_lshl_b32 s{sT[2]}, s{sT[5]}, 8
    v_xor_b32 v{vST}, s{sT[2]}, v{vL16}
    """)
    a(f"""
    v_lshrrev_b32 v{t3}, 5, v{L}
    v_lshlrev_b32 v{t0}, 4, v{t0}
    v_lshl_add_u32 v{vPV}, v{t3}, 8, v{t0}
    """)
    a(f"""
    v_bfe_u32 v{t0}, v{L}, 2, 2
    v_lshl_add_u32 v{t1}, v{t2}, 3, v{t0}
    v_lshlrev_b32 v{t1}, 7, v{t1}
    v_bfe_u32 v{t2}, v{L}, 3, 2
    s_lshl_b32 s{sT[1]}, s{sT[1]}, 1
    v_xor_b32 v{t2}, s{sT[1]}, v{t2}
    v_lshl_add_u32 v{t1}, v{t2}, 5, v{t1}
    v_and_b32 v{t2}, 3, v{L}
    v_lshl_add_u32 v{t1}, v{t2}, 3, v{t1}
    v_add_u32 v{vWR[0]}, {WR}, v{t1}
    v_xor_b32 v{vWR[1]}, 32, v{vWR[0]}
    """)
    a(f"""
    v_lshl_add_u32 v{t3}, v{t3}, 3, v{t0}
    v_lshlrev_b32 v{t3}, 7, v{t3}
    v_lshrrev_b32 v{t0}, 1, v{t0}
    v_lshl_add_u32 v{t3}, v{t0}, 6, v{t3}
    v_lshl_add_u32 v{t3}, v{t2}, 3, v{t3}
    v_bfe_u32 v{t2}, v{L}, 4, 1
    v_lshl_add_u32 v{vTRP}, v{t2}, 5, v{t3}
    v_lshlrev_b32 v{t2}, 2, v{t2}
    v_and_b32 v{t1}, 7, v{L}
    v_xor_b32 v{t1}, v{t1}, v{t2}
    v_lshlrev_b32 v{t1}, 4, v{t1}
    v_lshrrev_b32 v{t0}, 3, v{L}
    v_lshl_add_u32 v{t0}, v{t0}, 10, v{t1}
    s_lshl_b32 s{sT[0]}, s{sJ}, 7
    v_add_u32 v{vPD}, s{sT[0]}, v{t0}
    v_mov_b32 v{vZ}, 0
    v_mov_b32 v{vC0}, {fbits(C0):#x}
    s_mov_b32 s{sC1}, {fbits(C1):#x}
    s_mov_b32 s{sC1+1}, {fbits(C1):#x}
    """)
    a(f"""
    s_lshr_b32 s{sT[3]}, s{sW}, 2
    s_and_b32 s{sT[1]}, s{sW}, 3
    s_lshl2_add_u32 s{sT[0]}, s{sTI}, s{sT[1]}
    s_lshl_b32 s{sT[8]}, s{sT[0]}, 5
    s_and_b32 s{sT[2]}, s{sT[0]}, 15
    s_lshr_b32 s{sT[0]}, s{sT[0]}, 4
    s_mul_i32 s{sT[0]}, s{sT[0]}, 112
    s_mul_i32 s{sT[1]}, s{sQ}, 28
    s_add_u32 s{sT[0]}, s{sT[0]}, s{sT[1]}
    s_lshl3_add_u32 s{sT[0]}, s{sU}, s{sT[0]}
    s_lshl1_add_u32 s{sT[0]}, s{sT[3]}, s{sT[0]}
    s_lshl4_add_u32 s{sT[0]}, s{sT[0]}, s{sT[2]}
    s_lshl_b32 s{sT[0]}, s{sT[0]}, 10
    s_add_u32 s{sHO}, s{sT[0]}, {WS_H}
    s_lshl3_add_u32 s{sT[4]}, s{sQ}, s{sT[8]}
    s_lshl1_add_u32 s{sT[4]}, s{sT[3]}, s{sT[4]}
    s_lshl_b32 s{sT[4]}, s{sT[4]}, 10
    s_lshl2_add_u32 s{sT[1]}, s{sQ}, s{sU}
    s_lshl4_add_u32 s{sF2}, s{sTI}, s{sT[1]}
    s_lshl3_add_u32 s{sF2}, s{sF2}, s{sW}
    s_lshl_b32 s{sF2}, s{sF2}, 2
    s_add_u32 s{sF2}, s{sF2}, {WS_F2}
    s_lshl1_add_u32 s{sT[9]}, s{sT[1]}, s{sT[8]}
    s_add_u32 s{sT[9]}, s{sT[9]}, s{sT[3]}
    s_lshl_b32 s{sT[9]}, s{sT[9]}, 10
    s_add_u32 s{sT[9]}, s{sT[9]}, {WS_O}
    s_and_b32 s{sT[1]}, s{sW}, 1
    s_lshl1_add_u32 s{sT[1]}, s{sI}, s{sT[1]}
    s_lshl3_add_u32 s{sT[2]}, s{sT[1]}, s{sJ}
    s_lshl_b32 s{sT[2]}, s{sT[2]}, 2
    s_and_b32 s{sT[1]}, s{sW}, 2
    s_add_u32 s{sT[2]}, s{sT[2]}, s{sT[1]}
    s_add_u32 s{sT[2]}, s{sT[2]}, s{sT[3]}
    s_lshl_b32 s{sOO}, s{sT[2]}, 10
    s_lshl_b32 s{sRING}, s{sW}, 13
    s_add_u32 s{sRING}, s{sRING}, {RING}
    s_mul_i32 s{sRH}, s{sJ}, 7
    s_lshr_b32 s{sRH}, s{sRH}, 2
    s_mul_i32 s{sT[1]}, s{sU}, 7
    s_lshr_b32 s{sT[1]}, s{sT[1]}, 1
    s_add_u32 s{sRH}, s{sRH}, s{sT[1]}
    s_cmp_ge_u32 s{sRH}, 14
    s_cselect_b32 s{sT[1]}, 14, 0
    s_sub_u32 s{sRH}, s{sRH}, s{sT[1]}
    s_lshl_b32 s{sRH}, s{sRH}, 14
    s_mul_i32 s{sT[1]}, s{sW}, {14*16384}
    s_add_u32 s{SWD}, s{SWD}, s{sT[1]}
    s_addc_u32 s{SWD+1}, s{SWD+1}, 0
    s_sub_u32 s{SWD+2}, s{SWD+2}, s{sT[1]}
    s_lshl_b32 s{sT[1]}, s{sW}, 16
    s_add_u32 s{SWO}, s{SWO}, s{sT[1]}
    s_addc_u32 s{SWO+1}, s{SWO+1}, 0
    s_sub_u32 s{SWO+2}, s{SWO+2}, s{sT[1]}
    """)

def setup_path(P):
    if P in 'KV':
        a(f"""
        v_lshrrev_b32 v{t2}, 4, v{L}
        v_and_b32 v{t0}, 15, v{L}
        v_lshlrev_b32 v{t1}, 3, v{t0}
        v_lshl_add_u32 v{t1}, v{t2}, 8, v{t1}
        v_and_b32 v{t3}, 1, v{t2}
        v_lshl_add_u32 v{t1}, v{t3}, 7, v{t1}
        v_add_u32 v{vER[0]}, {EX}, v{t1}
        v_xor_b32 v{vER[1]}, 0x80, v{vER[0]}
        v_lshlrev_b32 v{t1}, 7, v{t3}
        v_xor_b32 v{vES}, v{t1}, v{vL16}
        s_add_u32 s{sEXO}, s{sW}, s{sROT0}
        s_and_b32 s{sEXO}, s{sEXO}, 7
        s_lshl_b32 s{sEXO}, s{sEXO}, 11
        s_lshr_b32 s{sEXW}, s{sT[4]}, 15
        v_lshrrev_b32 v{t2}, 1, v{t2}
        """)
        if P == 'K':
            a(f"""
            s_lshl3_add_u32 s{sEXW}, s{sEXW}, s{sT[5]}
            s_lshl_b32 s{sEXW}, s{sEXW}, 8
            v_lshlrev_b32 v{t2}, 9, v{t2}
            """)
        else:
            a(f"""
            s_lshl2_add_u32 s{sEXW}, s{sEXW}, s{sT[5]}
            s_lshl_b32 s{sEXW}, s{sEXW}, 9
            s_add_u32 s{sEXW}, s{sEXW}, 1024
            v_lshlrev_b32 v{t2}, 8, v{t2}
            v_and_b32 v{t0}, 3, v{L}
            v_bfe_u32 v{t1}, v{L}, 2, 1
            v_lshl_add_u32 v{t0}, v{t1}, 3, v{t0}
            v_bfe_u32 v{t1}, v{L}, 3, 1
            v_lshl_add_u32 v{t0}, v{t1}, 2, v{t0}
            """)
        a(f"""
        v_lshl_add_u32 v{t2}, v{t0}, 4, v{t2}
        v_lshl_add_u32 v{vSA}, v{t3}, 3, v{t2}
        """)
    if P == 'P':
        a(f"""
        v_bfe_u32 v{t1}, v{L}, 4, 1
        v_lshlrev_b32 v{t1}, 7, v{t1}
        v_xor_b32 v{vES}, v{t1}, v{vL16}
        s_add_u32 s{sEXO}, s{sW}, s{sROT0}
        s_and_b32 s{sEXO}, s{sEXO}, 7
        s_lshl_b32 s{sEXO}, s{sEXO}, 11
        """)
    if P == 'S':
        a(f"""
        s_lshl_b32 s{sEXO}, s{sROT0}, 7
        v_add_u32 v{vES}, s{sEXO}, v{vL16}
        v_and_b32 v{vES}, 0x3ff, v{vES}
        v_and_b32 v{t0}, 48, v{L}
        v_add_u32 v{vER[0]}, {GW}, v{t0}
        v_and_b32 v{t0}, 15, v{L}
        v_lshlrev_b32 v{vSA}, 2, v{t0}
        s_lshr_b32 s{sEXW}, s{sT[4]}, 15
        s_lshl1_add_u32 s{sEXW}, s{sEXW}, s{sT[5]}
        s_lshl_b32 s{sEXW}, s{sEXW}, 6
        s_add_u32 s{sEXW}, s{sEXW}, {WS_G}
        """)

def x_reads(sig, j):
    return [f"ds_read_b128 {vr(XF + 16*sig + 8*j + 4*tq, 4)}, v{vXR[2*j+tq]} offset:{(sig & 3) * 16384}" for tq in range(2)]
def w_reads(sig, j, i):
    b, part = i >> 1, i & 1
    off = (wslot(sig) & 0xffff) + part * 8192 + j * 4096
    return [f"ds_read_b64_tr_b16 {vr(F[j] + 4*i + 2*e, 2)}, v{waddr(sig, b)} offset:{off + e*512}" for e in range(2)]
def e_steps(c):
    c0 = 2 * OPT['exs']
    if PATH[0] in 'KVS': return [2 * (c - c0), 2 * (c - c0) + 1] if c0 <= c < 2 * c0 else ([c] if 2 * c0 <= c < 16 else [])
    return []
def e_buf(c, i): return WE + 16 if (PATH[0] == 'S' and c == 15) else WE + 8 * (c & 1) + 4 * i
def e_reads(c):
    if PATH[0] == 'S':
        cs = [] if c == 15 else ([14, 15] if c == 14 else [c])
        return [f"ds_read_b128 {vr(e_buf(x, i), 4)}, v{vER[0]} offset:{k*64}" for x in cs for i, k in enumerate(e_steps(x))]
    return [f"ds_read_b64_tr_b16 {vr(e_buf(c, i) + 2*e, 2)}, v{vER[e]} offset:{k*1024}" for i, k in enumerate(e_steps(c)) for e in range(2)]
def e_mfmas(c):
    out = []
    for i, k in enumerate(e_steps(c)):
        acc, w, x = vr(ACCE, 4), vr(e_buf(c, i), 4), vr(XF + 8 * k, 4)
        A, B = (x, w) if PATH[0] == 'V' else (w, x)
        out.append(f"v_mfma_f32_16x16x32_bf16 {acc}, {A}, {B}, {'0' if k == 0 else acc}")
    return out
def mfmas(sig, j):
    out = []
    for i in range(4):
        for tq in range(2):
            d = vr(ACC[sig >> 3] + 8 * i + 4 * tq, 4)
            c = "0" if ((sig & 7) == 0 and j == 0) else d
            out.append(f"v_mfma_f32_16x16x32_bf16 {d}, {vr(F[j] + 4*i, 4)}, {vr(XF + 16*(sig&7) + 8*j + 4*tq, 4)}, {c}")
    return out

def gelu_pair(base, j, T=vGT, pk=False):
    G = vr(base + 2 * j, 2); U = vr(base + 8 + 2 * j, 2); TT = vr(T, 2)
    g0, g1, u0, u1 = base + 2 * j, base + 2 * j + 1, base + 8 + 2 * j, base + 9 + 2 * j
    if pk:
        return [f"v_pk_mul_f32 {TT}, {G}, {G}",
                f"v_pk_fma_f32 {TT}, {TT}, s[{sC1}:{sC1+1}], {vr(vC0,2)} op_sel_hi:[1,1,0]",
                f"v_pk_mul_f32 {TT}, {TT}, {G}",
                f"v_exp_f32 v{T}, v{T}", f"v_exp_f32 v{T+1}, v{T+1}",
                f"v_pk_mul_f32 {G}, {G}, {U}",
                f"v_pk_add_f32 {TT}, {TT}, 1.0 op_sel_hi:[1,0]",
                f"v_rcp_f32 v{T}, v{T}", f"v_rcp_f32 v{T+1}, v{T+1}",
                f"v_pk_mul_f32 {G}, {G}, {TT}",
                f"v_cvt_pk_bf16_f32 v{base+j}, v{g0}, v{g1}"]
    return [f"v_mul_f32 v{T}, v{g0}, v{g0}", f"v_mul_f32 v{T+1}, v{g1}, v{g1}",
            f"v_fma_f32 v{T}, v{T}, s{sC1}, v{vC0}", f"v_fma_f32 v{T+1}, v{T+1}, s{sC1}, v{vC0}",
            f"v_mul_f32 v{T}, v{T}, v{g0}", f"v_mul_f32 v{T+1}, v{T+1}, v{g1}",
            f"v_exp_f32 v{T}, v{T}", f"v_exp_f32 v{T+1}, v{T+1}",
            f"v_mul_f32 v{g0}, v{g0}, v{u0}", f"v_add_f32 v{T}, 1.0, v{T}", f"v_add_f32 v{T+1}, 1.0, v{T+1}",
            f"v_rcp_f32 v{T}, v{T}", f"v_rcp_f32 v{T+1}, v{T+1}",
            f"v_mul_f32 v{g1}, v{g1}, v{u1}",
            f"v_mul_f32 v{g0}, v{g0}, v{T}", f"v_mul_f32 v{g1}, v{g1}, v{T+1}",
            f"v_cvt_pk_bf16_f32 v{base+j}, v{g0}, v{g1}"]
def to_frag(base):
    return [f"v_permlane16_swap_b32 v{base}, v{base+2}", f"v_permlane16_swap_b32 v{base+1}, v{base+3}"]

def cost(x):
    c = 0
    for l in x.strip().split('\n'):
        l = l.strip()
        if not l or l.startswith(';') or l.endswith(':'): continue
        c += 8 if l.startswith(('v_exp', 'v_rcp')) else (OPT.get('vmc', 16) if l.startswith('buffer_') else 4)
    return c

kvtok = {}
def kv_step(m):
    slot = (4 * m % NSLOT) * 2048
    if m == 0: x = f"s_mov_b32 m0, s{sKVM}\ns_nop 0\n"
    else: x = f"s_add_u32 s{sKVO}, s{sKVO}, 8192\ns_add_u32 m0, s{sKVM}, {slot}\ns_and_b32 s{sKVO}, s{sKVO}, 0xffff\n"
    return [x + f"buffer_load_dwordx4 v{vKVS}, {srd(SWS)}, s{sKVO} offen sc1 lds", f"buffer_load_dwordx4 v{vKVS}, {srd(SWS)}, s{sKVO} offen offset:1024 sc1 lds"]
KV_FIRST = 2
def first_loads():
    return [f"buffer_load_dwordx4 {vr(QA,4)}, v{vL16}, {srd(SWS)}, s{sQA} offen sc1\ns_xor_b32 s{sQA}, s{sQA}, 1024"] + kv_step(0) + \
           [f"buffer_load_dwordx4 {vr(QB,4)}, v{vL16}, {srd(SWS)}, s{sQA} offen sc1"] + kv_step(1)

def setup_queue():
    q = []
    def add(st, txt):
        for l in txt.strip().split('\n'): q.append((st, l.strip().replace('|', '\n')))
    add(11, f"""
    s_lshr_b32 s{sT[3]}, s{sW}, 2
    s_and_b32 s{sT[5]}, s{sW}, 1
    s_lshl_b32 s{sT[6]}, s{sT[3]}, 16
    v_add_u32 v{vKVS}, s{sT[6]}, v{vL16}
    s_mul_i32 s{sT[3]}, s{sT[3]}, {HALF}
    v_add_u32 v{vAK}, s{sT[3]}, v{vL16}
    v_add_u32 v{vAV}, s{sT[3]}, v{vPV}
    s_and_b32 s{sT[6]}, s{sW}, 3
    s_lshl_b32 s{sT[7]}, s{sT[6]}, 11
    s_add_u32 s{sKVM}, s{sT[7]}, s{sT[3]}
    s_lshr_b32 s{sT[7]}, s2, 3
    s_add_u32 s{sT[6]}, s{sT[6]}, s{sT[7]}
    s_and_b32 s{sT[6]}, s{sT[6]}, 31
    s_lshl_b32 s{sKVO}, s{sT[6]}, 11
    s_add_u32 s{sQA}, s{sOO}, {WS_Q}
    s_xor_b32 s{sQA}, s{sQA}, 1024
    s_lshl1_add_u32 s{sGA}, s{sI}, s{sT[5]}
    s_lshl_b32 s{sGA}, s{sGA}, 7
    s_add_u32 s{sGA}, s{sGA}, {WS_G}
    v_and_b32 v{vG}, 31, v{L}
    v_lshlrev_b32 v{vG}, 2, v{vG}
    v_mov_b32 v{vIDX}, 0xdddddddd
    v_mov_b32 v{V2+1}, 0x3f803f80
    s_mov_b32 vcc_lo, 0x110000|s_mov_b32 vcc_hi, 0x110000|v_cndmask_b32 v{V2}, 0, v{V2+1}, vcc
    """)
    for r in range(V2 + 1, V2 + 12): add(11, f"v_mov_b32 v{r}, v{V2}")
    add(12, f"""
    v_add_u32 v{vDR0}, s{sRING}, v{vTRP}
    v_xor_b32 v{vDR1}, 64, v{vDR0}
    v_add_u32 v{vDS1}, 7168, v{vDS}
    s_lshr_b32 s{sT[6]}, s{sI}, 3
    s_lshl3_add_u32 s{sT[6]}, s{sT[6]}, s{sW}
    s_mul_i32 s{sT[6]}, s{sT[6]}, {14*16}
    s_and_b32 s{sT[7]}, s{sI}, 7
    s_lshl1_add_u32 s{sT[7]}, s{sT[7]}, s{sT[5]}
    s_add_u32 s{sT[6]}, s{sT[6]}, s{sT[7]}
    s_lshl_b32 s{sT[6]}, s{sT[6]}, 10
    s_add_u32 s{sT[6]}, s{sT[6]}, {WS_H}
    v_add_u32 v{vH0}, s{sT[6]}, v{vL16}
    v_xor_b32 v{vH1}, 0x400, v{vH0}
    s_lshr_b32 s{sF2R}, s{sI}, 1
    s_lshl_b32 s{sF2R}, s{sF2R}, 9
    s_add_u32 s{sF2R}, s{sF2R}, {WS_F2}
    """)
    for r in range(9): add(13, f"v_mov_b32 v{OA+r}, 0")
    for r in range(9): add(14, f"v_mov_b32 v{OB+r}, 0")
    return q

cold = []
def s0_check(P):
    a(f"v_cmp_eq_u32 vcc, 0, v{vS0}\ns_cbranch_vccnz L_s0retry{P}\nL_s0done{P}:")
    cold.append(f"""
    L_s0retry{P}:
    s_mov_b32 s{sT[1]}, 0
    L_s0poll{P}:
    buffer_load_dword v{vS0}, v{vZ}, {srd(SDBG)}, 0 offen sc1
    s_add_u32 s{sT[1]}, s{sT[1]}, 1
    s_waitcnt vmcnt(0)
    v_cmp_eq_u32 vcc, 0, v{vS0}
    s_cbranch_vccz L_s0done{P}
    s_cmp_lt_u32 s{sT[1]}, {SPIN}
    s_cbranch_scc1 L_s0poll{P}
    s_branch L_s0done{P}
    """)
def s1_issue(P):
    a(f"s_cmp_lg_u32 s{sW}, 0\ns_cbranch_scc1 L_nopoll0{P}")
    if P in 'GSC': s0_check(P)
    a(f"""
    s_mov_b32 s{sT[1]}, {WS_F1}
    v_lshlrev_b32 v{t1}, 7, v{L}
    buffer_load_dword v{t0}, v{t1}, {srd(SWS)}, s{sT[1]} offen sc1
    L_nopoll0{P}:
    """)
    a.vm -= 1
def s1_check(P):
    a(f"""
    s_cmp_lg_u32 s{sW}, 0
    s_cbranch_scc1 L_s1done{P}
    s_mov_b32 s{sT[0]}, 0
    L_s1poll{P}:
    s_waitcnt vmcnt(0)
    v_cmp_ne_u32 vcc, 1, v{t0}
    s_cbranch_vccz L_s1done{P}
    s_mov_b64 exec, vcc
    buffer_load_dword v{t0}, v{t1}, {srd(SWS)}, s{sT[1]} offen sc1
    s_mov_b64 exec, -1
    s_add_u32 s{sT[0]}, s{sT[0]}, 1
    s_cmp_lt_u32 s{sT[0]}, {SPIN}
    s_cbranch_scc1 L_s1poll{P}
    s_waitcnt vmcnt(0)
    L_s1done{P}:
    """)
    a.vm -= 1

def proj_path(P):
    tok = {}
    PATH[0] = P
    S1 = OPT['s1']
    sched = {s: [s + 2] for s in range(6)}
    ISQ = P in 'KVP'
    QF = OPT['qf']
    sched.update({6: [8, 9], 7: [10, 11], 8: [12, 13], 9: [14, 15]}); cover = {8: 9, 10: 11, 12: 15}
    if ISQ and OPT['qmode'] == 0:
        del sched[8], sched[9]
        sched.update({10: [12, 13], 11: [14, 15]}); cover = {8: 9, 10: 11, 12: 13, 14: 15}
    bars = set(range(8)) | set(cover) | {S1}
    if ISQ: bars |= {QF} | ({9} if OPT['qmode'] else set()) | (set(range(10, 16)) if OPT['qbar'] else set())
    def dma_groups(sg):
        d = dma_ops(sg, P)
        if ISQ and sg == OPT['exs']:
            d.insert(1, f"""
            s_add_u32 m0, s{sMX}, {EX}
            s_nop 0
            buffer_load_dwordx4 v{vES}, {srd(SEX)}, s{sEXO} offen lds
            buffer_load_dwordx4 v{vES}, {srd(SEX)}, s{sEXO} offen offset:1024 lds
            """)
        if P == 'S' and sg == OPT['exs']:
            d.insert(1, f"s_mov_b32 m0, {GW}\ns_nop 0\nbuffer_load_dwordx4 v{vES}, {srd(SEX)}, 0 offen lds")
        return [(x, sg if k == len(d) - 1 else None) for k, x in enumerate(d)]
    def emit(it):
        if callable(it): return it()
        a(it[0])
        if it[1] is not None: tok[it[1]] = a.lastvm()
    tok[0] = a.lastvm()
    if ISQ: mk_srd(SWQ, 6, 512 * 1024)
    if not OPT['spf']:
        for it in dma_groups(1): emit(it)
    if ISQ: mk_srd(SWG, 16, 512 * PG); mk_srd(SWU, 18, 512 * PG)
    if P in 'KVS': mk_srd(SEX, {'K': 8, 'V': 10, 'S': 22}[P], 1024 if P == 'S' else 16384)
    if P == 'P': a(f"s_cmp_lt_u32 s{sQ}, 2\ns_cselect_b64 s[{SEX}:{SEX+1}], s[8:9], s[10:11]\ns_mov_b32 s{SEX+2}, 16384\ns_mov_b32 s{SEX+3}, 0x20000")
    setup_path(P)
    if OPT['grp'] == 5: a("s_mov_b32 s6, s14\ns_mov_b32 s8, s5")
    stamp(3, 5)
    if OPT['spf']:
        for it in dma_groups(1): emit(it)
    stamp(4, 5)
    if P == 'C':
        ctok = a(f"v_lshlrev_b32 v{t0}, 7, v{L}\ns_mov_b32 s{sT[1]}, {WS_F1}\nbuffer_store_dword v{vZ}, v{t0}, {srd(SWS)}, s{sT[1]} offen sc1")
    win = {c: [] for c in range(33)}
    box = {}; front = {}; pre8 = []
    def usable(c):
        return c % 2 == 0 or ((c + 1) // 2) not in bars
    def nxt(c):
        while not usable(c): c += 1
        return c
    if not ISQ:
        gq = []
        for b in range(2):
            for j in range(4): gq += gelu_pair(ACC[0] + 16 * b, j)
            gq += to_frag(ACC[0] + 16 * b)
            if b == 0: n0 = len(gq)
        npre = 17 * (OPT['pb'] - 1) if OPT['pb'] else 0
        pre8 += [(x, None) for j in range(max(OPT['pb'] - 1, 0)) for x in gelu_pair(ACC[0], j, pk=OPT.get('pbk', 0))]
        gq = gq[npre:]; n0 -= npre
        ws = [c for c in range(16, OPT['gend'] + 1) if usable(c)]
        ndma = {16: 2, 17: 2, 18: 4}
        tot = len(gq) + OPT['dwt'] * 8
        done = 0; accw = 0
        for k, c in enumerate(ws):
            accw += OPT['dwt'] * ndma.get(c, 0)
            upto = max(done, tot * (k + 1) // len(ws) - accw)
            win[c] += [(x, None) for x in gq[done:upto]]
            if done < n0 <= upto: c0 = c
            done = upto
        assert done == len(gq)
        for b in range(OPT['nearly']):
            c = nxt(max(OPT[f'h{b}w'], c0 if b == 0 else ws[-1]))
            win[c].append((f"s_sub_u32 s{sT[2]}, s{sHO}, {65536 - 16384*b}\nbuffer_store_dwordx4 {vr(ACC[0]+16*b,4)}, v{vST}, {srd(SWS)}, s{sT[2]} offen sc1", None))
    else:
        qa = [f"s_add_u32 s{sT[8]}, s{sT[4]}, {WS_Q + 4096}\ns_add_u32 s{sT[4]}, s{sT[4]}, {WS_Q}"]
        if P == 'K': qa += [f"v_mul_f32 v{ACCE+r}, {fbits(QS):#x}, v{ACCE+r}" for r in range(4)]
        sts = []
        if P in 'KV':
            qa += [f"v_cvt_pk_bf16_f32 v{vGT}, v{ACCE}, v{ACCE+1}", f"v_cvt_pk_bf16_f32 v{vGT+1}, v{ACCE+2}, v{ACCE+3}"]
            sts.append(f"buffer_store_dwordx2 {vr(vGT,2)}, v{vSA}, {srd(SWS)}, s{sEXW} offen sc1")
        if P == 'P':
            sts.append(f"s_andn2_b32 s{sT[0]}, s{sF2}, 127\nv_lshlrev_b32 v{t2}, 2, v{L}\ns_mov_b32 exec_hi, 0\nbuffer_store_dword v{vZ}, v{t2}, {srd(SWS)}, s{sT[0]} offen sc1\ns_mov_b32 exec_hi, -1")
        def qcv(i): return [f"v_cvt_pk_bf16_f32 v{ACC[0]+8*i+j}, v{ACC[0]+8*i+2*j}, v{ACC[0]+8*i+2*j+1}" for j in range(4)]
        def qst(i): return to_frag(ACC[0] + 8 * i) + [f"buffer_store_dwordx4 {vr(ACC[0]+8*i,4)}, v{vST}, {srd(SWS)}, s{sT[8 if i & 1 else 4]} offen offset:{1024*(i>>1)} sc1"]
        mark = [lambda: box.update(q=a.lastvm())]
        T = lambda l: [(x, None) for x in l]
        if OPT['qmode'] == 0 and OPT['pb']:
            pre8 += T(qa + qcv(0) + qcv(1) + qcv(2) + qcv(3) + [x for i in range(4) for x in qst(i)[:2]])
            if OPT.get('pbq'): pre8 += T(sts + [qst(i)[2] for i in range(4)]) + mark
            else: win[16] += T(sts + [qst(i)[2] for i in range(2)]); win[17] += T([qst(i)[2] for i in range(2, 4)]) + mark
        elif OPT['qmode'] == 0:
            win[16] += T(qa + sts + qcv(0) + qcv(1) + qst(0) + qst(1)); win[17] += T(qcv(2) + qcv(3) + qst(2) + qst(3)) + mark
        elif OPT['qmode'] == 1:
            win[16] += T(qa + qcv(0) + qcv(1)); win[18] += T(sts + qst(0) + qcv(2)); win[20] += T(qcv(3) + qst(1) + qst(2) + qst(3)) + mark
        else:
            win[16] += T(qa + qcv(0) + qcv(1) + qcv(2) + qcv(3)); win[18] += T(sts + qst(0) + qst(1) + qst(2) + qst(3)) + mark
        def qflag():
            assert a.vm_done > box['s0']
            if P != 'P': s0_check(P)
            a(f"""
            s_lshl4_add_u32 s{sT[0]}, s{sQ}, s{sTI}
            s_lshl_b32 s{sT[0]}, s{sT[0]}, 7
            s_add_u32 s{sT[0]}, s{sT[0]}, {WS_F1}
            s_lshl_b32 s{sT[1]}, s{sW}, 24
            s_add_u32 s{sT[0]}, s{sT[0]}, s{sT[1]}
            v_mov_b32 v{t1}, 1
            s_mov_b64 exec, 1
            buffer_store_dword v{t1}, v{vZ}, {srd(SWS)}, s{sT[0]} offen sc1
            s_mov_b64 exec, -1
            """)
        if P != 'P': box['flag'] = qflag
    if P == 'S':
        win[16] = [(x, None) for x in (f"v_mul_f32 v{t2}, {fbits(-math.log2(math.e)):#x}, v{ACCE}", f"v_exp_f32 v{t2}, v{t2}", f"v_add_f32 v{t2}, 1.0, v{t2}", f"v_rcp_f32 v{t2}, v{t2}")] + win[16]
        win[20].append((f"s_mov_b64 exec, 0xffff\nbuffer_store_dword v{t2}, v{vSA}, {srd(SWS)}, s{sEXW} offen sc1\ns_mov_b64 exec, -1", None))
    if OPT['clw'] <= 32:
        win[nxt(max(OPT['clw'], max(24, 2 * QF + 1) if ISQ else 0))].append(
            (f"v_mov_b32 v24, -1\nv_mov_b32 v25, -1\nv_mov_b32 v26, -1\nv_mov_b32 v27, -1\nbuffer_store_dwordx4 v[24:27], v{vL16}, {srd(SWS)}, s{sT[9]} offen sc1", None))
    queue = setup_queue()
    ws = [c for c in range(21 if ISQ else 20, 2 * S1 - 1) if usable(c)]
    for k, c in enumerate(ws):
        left = [x for x in queue if 2 * x[0] - 2 <= c]
        take = min(len(left), -(-len(queue) // (len(ws) - k)))
        win[c] += [(x[1], None) for x in left[:take]]; queue = queue[take:]
    assert not queue
    win[16].insert(0, (f"v_subrev_u32 v{vXR[0]}, {WR}, v{vWR[0]}\nv_subrev_u32 v{vXR[1]}, {WR}, v{vWR[1]}\nv_add_u32 v{vXR[2]}, {WR}, v{vWR[0]}\nv_add_u32 v{vXR[3]}, {WR}, v{vWR[1]}", None))

    def cluster(c, what='mr'):
        M = mfmas(c >> 1, c & 1) if (c >= 0 and 'm' in what) else []
        em = e_mfmas(c) if M else []
        for i, x in enumerate(em): M.insert(1 + (8 // len(em) + 1) * i, x)
        d = c + 1
        R = []
        if d < 32 and 'r' in what:
            if d < 16: R += x_reads(d >> 1, d & 1)
            for i in range(4): R += w_reads(d >> 1, d & 1, i)
            R += e_reads(d)
        a.wait(a.lastlg())
        if M: a("s_setprio 2")
        n = max(len(M), 1); k = 0
        last = n - 1 if (c & 1 or ((c >> 1) + 1) not in bars) else n - 2
        for i in range(n):
            if M: a(M[i])
            want = len(R) if i >= last else -(-len(R) * (i + 1) // (last + 1))
            while k < want: a(R[k]); k += 1
        if M: a("s_setprio 0")

    for sig in range(16):
        if sig == 8 and OPT['pb']:
            cluster(15, 'm')
            for it in pre8: emit(it)
        if sig in bars:
            if sig in cover or sig < 8: a.wait(tok[cover.get(sig, sig)])
            if ISQ and sig == QF: a.wait(box['q'])
            if sig == S1 and P != 'P': s1_check(P)
            a("s_barrier")
            if sig == QF and 'flag' in box: box['flag']()
        if sig == 1: stamp(1)
        if sig == 8: stamp(2)
        if sig < 11: stamp(sig, 1)
        if sig < 5: stamp(5 + sig, 5)
        if sig >= 6: stamp(sig - 6, 2)
        D = []
        if P == 'C' and sig == 2:
            assert a.vm_done >= ctok[1]
            win[4].append((f"v_mov_b32 v{t0}, 1\ns_mov_b64 exec, 1\nbuffer_store_dword v{t0}, v{vZ}, {srd(SDBG)}, 0 offen sc1\ns_mov_b64 exec, -1", None))
        for sg in sched.get(sig, []): D += dma_groups(sg)
        if sig == S1: D += [(x, None) for x in first_loads()]
        if sig == (7 if ISQ else 9) and P != 'P':
            def s0_load():
                if not ISQ:
                    a(f"s_cmp_lg_u32 s{sW}, 0\ns_cbranch_scc1 L_nos0l{P}\nbuffer_load_dword v{vS0}, v{vZ}, {srd(SDBG)}, 0 offen sc1\nL_nos0l{P}:")
                    a.vm -= 1
                else:
                    a(f"buffer_load_dword v{vS0}, v{vZ}, {srd(SDBG)}, 0 offen sc1")
                box['s0'] = a.vm
            D.insert(len(D) - 1, s0_load)
        head, mid, tail = [], D, []
        if sig < OPT['late']: mid, tail = [], D
        elif (sig + 1) not in bars: mid, tail = D[:len(D)//2], D[len(D)//2:]
        elif sig in bars and len(D) >= 4: head, mid = D[:OPT['na']], D[OPT['na']:]
        for it in head: emit(it)
        cluster(2 * sig - 1, 'r' if (sig == 8 and OPT['pb']) else 'mr')
        if sig == S1 - 1 and P != 'P':
            assert a.vm_done > box['s0']
            s1_issue(P)
        for it in front.get(2 * sig, []) + mid + win[2 * sig]: emit(it)
        cluster(2 * sig)
        for it in front.get(2 * sig + 1, []) + tail + win[2 * sig + 1]: emit(it)
    a.wait(a.lastlg())
    assert not win[32]

setup_common()
dispatch()
proj_path('G')
a("L_join:")
a.forget()

for m in mfmas(15, 1): a(m)
stamp(3); stamp(10, 2)
stamp(5, 3)
if OPT['s1'] == 16:
    s1_check('J')
    stamp(6, 3)
    a("s_barrier")
    stamp(7, 3)
    for x in first_loads(): a(x)
stamp(4); stamp(8, 3)
for b in range(2):
    for jp in range(2):
        g0 = gelu_pair(ACC[1] + 16 * b, 2 * jp, vGT, pk=OPT['pk2']); g1 = gelu_pair(ACC[1] + 16 * b, 2 * jp + 1, t0, pk=OPT['pk2'])
        for x, y in zip(g0, g1):
            a(x); a(y)
        if b == 1 and jp == 0:
            for x in to_frag(ACC[1]): a(x)
a(f"s_mov_b32 s{sT[7]}, s{sT[9]}\ns_mov_b32 s{sT[8]}, 0xffff\ns_mov_b32 s{sT[9]}, 0xffff")
for x in to_frag(ACC[1] + 16): a(x)
stamp(9, 3)
a.wait_vm0()
a("s_barrier")
stamp(5); stamp(10, 3)

def qk(S, Q): return f"v_mfma_f32_32x32x16_bf16 {vr(S,16)}, {vr(KF,4)}, {vr(Q,4)}, 0"
def pv(O, V, S): return f"v_smfmac_f32_32x32x32_bf16 {vr(O,16)}, {vr(V,4)}, {vr(S,8)}, v{vIDX}"
NT, B1, B2 = 32, 8, OPT['b2']
def rec(t): return (t % NSLOT) * 2048
def rdK(t): return a(f"ds_read_b128 {vr(KF,4)}, v{vAK} offset:{rec(t)}")
def rdV(t2, t1):
    a(f"s_mov_b64 exec, s[{sT[8]}:{sT[9]}]")
    if t2 is not None: a(f"ds_read_b128 {vr(V2,4)}, v{vAV} offset:{rec(t2) + 1536}")
    if t1 is not None: a(f"ds_read_b128 {vr(V1[t1&1],4)}, v{vAV} offset:{rec(t1) + 1024}")
    a("s_mov_b64 exec, -1")
    return a.lastlg()
wtok, htok, rtok, box = {}, {}, {}, {}
m0own = [None]
def w_off(u): return sR[u & 3] if u < 14 else sWOF
def w_load_a(u):
    a(f"s_add_u32 m0, s{sRING}, {(u & 3) * 2048}"); m0own[0] = ('w', u)
    if 0 < u < 14: a(f"s_sub_u32 s{sR[u&3]}, s{sR[(u-1)&3]}, 16384\ns_cselect_b32 s{sR[u&3]}, {13*16384}, s{sR[u&3]}")
    elif u == 14: a(f"s_lshl_b32 s{sWOF}, s{sU}, 14")
    elif u > 14: a(f"s_add_u32 s{sWOF}, s{sWOF}, 16384\ns_and_b32 s{sWOF}, s{sWOF}, 0xffff")
    a(f"buffer_load_dwordx4 v{vDS}, {srd(SWD if u < 14 else SWO)}, s{w_off(u)} offen lds")
def w_load_b(u):
    assert m0own[0] == ('w', u)
    wtok[u] = a(f"buffer_load_dwordx4 v{vDS1}, {srd(SWD if u < 14 else SWO)}, s{w_off(u)} offen offset:1024 lds")
def h_load_a(u):
    assert u in wtok and (u + 4) not in wtok
    a(f"buffer_load_dwordx4 {vr(HF[u&3],4)}, v{vH0}, {srd(SWS)}, s{sR[u&3]} offen sc1")
def h_load_b(u):
    assert m0own[0] != ('w', u + 4) and (u + 4) not in wtok
    htok[u] = a(f"buffer_load_dwordx4 {vr(HF[u&3]+4,4)}, v{vH1}, {srd(SWS)}, s{sR[u&3]} offen sc1")
def w_read(u, b):
    if b == 0: a.wait(wtok[u], htok[u])
    for e in range(2):
        rtok[u, b] = a(f"ds_read_b64_tr_b16 {vr(WF[u&1] + 4*b + 2*e, 2)}, v{(vDR0, vDR1)[b]} offset:{(u & 3) * 2048 + e*512}")
def d_mfma(u, k):
    tb, b = k >> 1, k & 1
    a.wait(rtok[u, 1])
    d = vr(DACC + 32 * tb + 16 * b, 16)
    a(f"v_mfma_f32_32x32x16_bf16 {d}, {vr(WF[u&1]+4*b,4)}, {vr(HF[u&3]+4*tb,4)}, {'0' if u == 0 else d}")

if OPT.get('x_now'):
    def w_load_a(u): pass
    def w_load_b(u): wtok[u] = None
if OPT.get('x_noh'):
    def h_load_a(u): pass
    def h_load_b(u): htok[u] = None
if OPT.get('x_noread'):
    def w_read(u, b): rtok[u, b] = None
ev, mf = {}, {}
SNAP = OPT.get('snap', 1)
B1P = 32 * (B1 - 1) + 11
EV, EVA, EK, EKA = OPT.get('ev', 5), OPT.get('eva', 0), OPT.get('ek', 11), OPT.get('eka', 0)
busy = {32 * t + o for t in range(NT) for o in (EV, EK, 18)}
def nextpos(p):
    while SNAP and (p & 15) not in (2, 5, 8, 11, 14): p += 1
    return p
def at(pos, f, limit=None):
    p = nextpos(pos)
    while SNAP and limit is not None and p in busy and nextpos(p + 1) <= limit: p = nextpos(p + 1)
    busy.add(p)
    ev.setdefault(p, []).append(f)
    return p
def h_store(b): box['h'] = a((f"s_add_u32 s{sHO}, s{sHO}, 16384\n" if b else "") + f"buffer_store_dwordx4 {vr(ACC[1]+16*b,4)}, v{vST}, {srd(SWS)}, s{sHO} offen sc1")
def late_store(k):
    if k == 2:
        a(f"v_mov_b32 v24, -1\nv_mov_b32 v25, -1\nv_mov_b32 v26, -1\nv_mov_b32 v27, -1\nbuffer_store_dwordx4 v[24:27], v{vL16}, {srd(SWS)}, s{sT[7]} offen sc1")
        return
    a(f"""
    s_cmp_eq_u32 s{sU}, 0
    s_cbranch_scc1 L_nols{k}
    s_sub_u32 s{sT[2]}, s{sHO}, {65536 - 16384*k}
    buffer_store_dwordx4 {vr(ACC[0]+16*k,4)}, v{vST}, {srd(SWS)}, s{sT[2]} offen sc1
    L_nols{k}:
    """)
    a.vm -= 1
pp = 1
for k in list(range(OPT['nearly'], 2)) + ([2] if OPT['clw'] > 32 else []):
    pp = at(pp, lambda k=k: late_store(k), pp + 12) + 1
pp = at(pp, lambda: h_store(0), pp + 12) + 1
at(pp, lambda: h_store(1), pp + 12)
def kv_emit(m, i):
    if i == 0: m0own[0] = ('kv', m)
    assert m0own[0] == ('kv', m)
    kvtok[m] = a(kv_step(m)[i])
for m in range(KV_FIRST, 8):
    p = OPT['p_kv'] + OPT['p_kvs'] * (m - KV_FIRST) if m < 6 else OPT['p_kv2'] + 20 * (m - 6)
    p = at(p, lambda m=m: kv_emit(m, 0), p + 8)
    at(p + 1, lambda m=m: kv_emit(m, 1), p + 9)
assert OPT['p_kv2'] > B1P
def h_flag():
    a.wait(box['h'])
    a(f"v_mov_b32 v{t0}, 1\ns_mov_b64 exec, 1\nbuffer_store_dword v{t0}, v{vZ}, {srd(SWS)}, s{sF2} offen sc1\ns_mov_b64 exec, -1")
at(OPT['p_flag'], h_flag, OPT['p_flag'] + 8)
def f2_load():
    box['f2'] = a(f"s_mov_b32 exec_hi, 0\nbuffer_load_dwordx4 {vr(F2D,4)}, v{vF2}, {srd(SWS)}, s{sF2R} offen sc1")
    a("s_mov_b32 exec_hi, -1")
at(OPT['p_f2'], f2_load, OPT['p_f2'] + 8)
def f2_check():
    a.wait(box['f2'])
    a(f"""
    s_mov_b32 s{sT[1]}, 0
    s_mov_b32 exec_hi, 0
    L_s2poll:
    v_min3_u32 v{F2D}, v{F2D}, v{F2D+1}, v{F2D+2}
    v_min_u32 v{F2D}, v{F2D}, v{F2D+3}
    v_cmp_ne_u32 vcc, 1, v{F2D}
    s_cbranch_vccz L_s2done
    buffer_load_dwordx4 {vr(F2D,4)}, v{vF2}, {srd(SWS)}, s{sF2R} offen sc1
    s_add_u32 s{sT[1]}, s{sT[1]}, 1
    s_cmp_lt_u32 s{sT[1]}, {SPIN}
    s_waitcnt vmcnt(0)
    s_cbranch_scc1 L_s2poll
    L_s2done:
    s_mov_b32 exec_hi, -1
    """)
    a.vm -= 1
    a(f"buffer_load_dword v{vG}, v{vG}, {srd(SWS)}, s{sGA} offen sc1")
    stamp(9)
PCHK = at(OPT['p_chk'], f2_check, OPT['p_chk'] + 8)
D0, DE = OPT['d0'], OPT['dend']
allsl = [32 * t + o for t in range(D0, DE) for o in (8, 14, 24, 30)]
assert len(allsl) >= 56
slots = [allsl[(i * len(allsl)) // 56] for i in range(56)]
for u in range(14):
    rp = slots[0] - 16 if u == 0 else slots[4 * u - 2] + 1
    lim = slots[4 * u] - 9
    p = at(rp, lambda u=u: w_read(u, 0), lim - 3); at(p + 1, lambda u=u: w_read(u, 1), lim)
    for k in range(4): mf[slots[4 * u + k]] = (lambda u=u, k=k: d_mfma(u, k))
for u in range(18):
    pw = OPT['p_fill'] + OPT['p_fills'] * u if u < 4 else slots[4 * (u - 4)] + 1
    p = at(pw, lambda u=u: w_load_a(u), pw + 8); p = at(p + 1, lambda u=u: w_load_b(u), p + 8)
    if u < 3:
        ph = PCHK + 1 + OPT.get('p_hs', 13) * u
        p = at(ph, lambda u=u: h_load_a(u), ph + 4); at(p + 1, lambda u=u: h_load_b(u), p + 5)
    if 4 <= u < 15:
        p = at(p + 1, lambda u=u: h_load_a(u - 1), p + 8); at(p + 1, lambda u=u: h_load_b(u - 1), p + 8)
for lo, hi, fr in ((0, B1P, (OPT.get('la1', 30), OPT.get('la2', 70), OPT.get('la3', 94))), (B1P, 32 * B2, (OPT.get('lb1', 35), OPT.get('lb2', 80), OPT.get('lb3', 96))),
                   (32 * B2, 32 * NT, (OPT.get('lc1', 60), OPT.get('lc2', 87), OPT.get('lc3', 96)))):
    for k in range(3): at(lo + ((hi - lo) * fr[k]) // 100, lambda k=k: a(f"s_setprio {2-k}"))

def merge_addr():
    a(f"""
    s_mul_i32 s{sT[0]}, s{sW}, 2304
    s_add_u32 s{sT[0]}, s{sT[0]}, {MERGE}
    s_xor_b32 s{sT[1]}, s{sW}, 4
    s_mul_i32 s{sT[1]}, s{sT[1]}, 2304
    s_add_u32 s{sT[1]}, s{sT[1]}, {MERGE}
    v_add_u32 v{t0}, s{sT[0]}, v{vL16}
    v_add_u32 v{t1}, s{sT[1]}, v{vL16}
    v_lshl_add_u32 v{t2}, v{L}, 2, s{sT[0]}
    v_lshl_add_u32 v{t3}, v{L}, 2, s{sT[1]}
    s_add_u32 s{sOO}, s{sOO}, {WS_O}
    s_mov_b32 s{sT[6]}, {fbits(2.0**-60):#x}
    s_mov_b32 s{sT[7]}, {fbits(2.0**60) - fbits(2.0**-60):#x}
    """)
at(32 * NT - 11, merge_addr)
at(32 * NT - 8, lambda: a(f"ds_write_b128 v{t0}, {vr(OA,4)}\nds_write_b128 v{t0}, {vr(OA+4,4)} offset:1024\nds_write_b32 v{t2}, v{OA+8} offset:2048"))

a("s_setprio 3")
tK = rdK(0); tV = rdV(None, 0)
a.wait(tK)
a(qk(SA, QA))
for t in range(NT):
    if t == B2:
        a.wait(kvtok[7]); a("s_barrier\ns_setprio 3"); stamp(0)
    nx = t + 1 if t + 1 < NT else None
    for ph, (S, So, O, Oo, Qo) in enumerate(((SA, SB, OA, OB, QB), (SB, SA, OB, OA, QA))):
        for e in range(16):
            pos = 32 * t + 16 * ph + e
            def own(after):
                global tV, tK
                if ph == 0 and (e, after) == (EV, EVA):
                    if t == 0: a.wait(tV)
                    tV = rdV(t, nx if t != B1 - 1 else None)
                if ph == 0 and (e, after) == (EK, EKA) and nx and t != B1 - 1: tK = rdK(nx)
            for f in ev.pop(pos, []): f()
            own(0)
            if pos == B1P:
                a.wait(kvtok[5], tV); a("s_barrier\ns_setprio 3"); stamp(6)
                tK = rdK(nx); tV = rdV(None, nx)
            if e == 2:
                if ph == 1: a.wait(tV, None if OPT.get('w2') else tK)
                if t > 0 or ph == 1: a(pv(Oo, V2, So + 8))
            if (e == 5 and not (t == 0 and ph == 0)) or (t == 0 and ph == 0 and e == 0):
                if ph == 1: a.wait(tK)
                if ph == 0 or nx: a(qk(So, Qo))
            if e == 11: a(pv(O, V1[t & 1], S))
            if pos in mf: mf.pop(pos)()
            own(1)
            a(f"v_exp_f32 v{S+e}, v{S+e}")
assert not mf
assert not ev, sorted(ev)
a.wait_lg0()
a(pv(OB, V2, SB + 8))
stamp(7); stamp(0, 4)
a("s_barrier")
stamp(1, 4)
a(f"""
ds_read_b32 v{SA+8}, v{t3} offset:2048
ds_read_b128 {vr(SA,4)}, v{t1}
ds_read_b128 {vr(SA+4,4)}, v{t1} offset:1024
s_lshl_b32 s{sT[3]}, s{sW}, 13
s_xor_b32 s{sT[2]}, s{sT[3]}, 8192
v_add_u32 v24, s{sT[2]}, v{vL16}
v_add_u32 v26, s{sT[3]}, v{vL16}
s_waitcnt lgkmcnt(2)
v_add_f32 v{OB+8}, v{OB+8}, v{SA+8}
v_rcp_f32 v{t0}, v{OB+8}
""")
a.wait_lg0()
OS = 128
for j in range(2): a(f"v_pk_add_f32 {vr(OB+2*j,2)}, {vr(OB+2*j,2)}, {vr(SA+2*j,2)}")
a(f"v_mul_f32 v{t0}, v{t0}, v{vG}")
for j in range(2, 4): a(f"v_pk_add_f32 {vr(OB+2*j,2)}, {vr(OB+2*j,2)}, {vr(SA+2*j,2)}")
for j in range(4): a(f"v_pk_mul_f32 {vr(OB+2*j,2)}, {vr(OB+2*j,2)}, {vr(t0,2)} op_sel_hi:[1,0]")
a(f"""
v_pk_add_f32 {vr(t2,2)}, {vr(OB,2)}, {vr(OB+2,2)}
v_pk_add_f32 {vr(t0,2)}, {vr(OB+4,2)}, {vr(OB+6,2)}
v_cvt_pk_bf16_f32 v{OS}, v{OB}, v{OB+1}
v_pk_add_f32 {vr(t2,2)}, {vr(t2,2)}, {vr(t0,2)}
v_cvt_pk_bf16_f32 v{OS+1}, v{OB+2}, v{OB+3}
v_add_f32 v{t2}, v{t2}, v{t3}
v_cvt_pk_bf16_f32 v{OS+2}, v{OB+4}, v{OB+5}
v_fma_f32 v{t2}, v{t2}, 0, v{OB+8}
v_cvt_pk_bf16_f32 v{OS+3}, v{OB+6}, v{OB+7}
v_subrev_u32 v{t2}, s{sT[6]}, v{t2}
v_cmp_lt_u32 vcc, s{sT[7]}, v{t2}
""")
if OPT['force_fb']: a("s_mov_b64 vcc, -1")
a(f"""
s_cbranch_vccnz L_true_max
L_norm:
buffer_store_dwordx4 {vr(OS,4)}, v{vL16}, {srd(SWS)}, s{sOO} offen sc1
""")
stamp(8); stamp(2, 4)

OF, WOF, XT = 32, 176, 96
vO1 = 27
fill = f"""
s_andn2_b32 s{sT[2]}, s{sRING}, 8192
v_add_u32 v28, s{sT[2]}, v{vTRP}
v_xor_b32 v29, 64, v28
v_sub_f32 v{vG}, 1.0, v{vG}
v_add_u32 v{vO1}, 4096, v{vL16}
s_and_b32 s{sT[1]}, s{sW}, 1
s_lshl1_add_u32 s{sT[0]}, s{sI}, s{sT[1]}
s_lshr_b32 s{sT[1]}, s{sW}, 1
s_lshl2_add_u32 s{sT[0]}, s{sT[0]}, s{sT[1]}
s_lshl_b32 s{sT[0]}, s{sT[0]}, 13
s_add_u32 s{sT[0]}, s{sT[0]}, {WS_O}
""".strip().split('\n')
for v in range(4):
    fill += f"s_add_u32 s{sT[1]}, s{sU}, {v}\ns_and_b32 s{sT[1]}, s{sT[1]}, 3\ns_lshl_b32 s{sT[1]}, s{sT[1]}, 10\ns_add_u32 s{sT[4+v]}, s{sT[0]}, s{sT[1]}".split('\n')
fill += f"""
v_and_b32 v{t0}, 31, v{L}
v_lshrrev_b32 v{t1}, 5, v{L}
v_and_b32 v{t2}, 7, v{L}
v_xor_b32 v{t1}, v{t1}, v{t2}
v_lshlrev_b32 v{t1}, 4, v{t1}
v_lshl_add_u32 v{t0}, v{t0}, 8, v{t1}
v_add_u32 v9, s{sT[3]}, v{t0}
v_xor_b32 v10, 32, v9
v_xor_b32 v11, 64, v9
v_xor_b32 v12, 0x60, v9
v_lshrrev_b32 v{t0}, 3, v{L}
v_lshlrev_b32 v{t1}, 1, v{t2}
v_xor_b32 v{t1}, v{t1}, v{t0}
v_lshlrev_b32 v{t1}, 4, v{t1}
v_lshl_add_u32 v{t1}, v{t0}, 8, v{t1}
v_add_u32 v1, s{sMX}, v{t1}
v_xor_b32 v2, 16, v1
s_lshl3_add_u32 s{sT[3]}, s{sI}, s{sW}
s_lshl_b32 s{sT[3]}, s{sT[3]}, 6
s_add_u32 s{sT[3]}, s{sT[3]}, s{sJ}
s_lshl_b32 s{sT[3]}, s{sT[3]}, 7
v_lshlrev_b32 v{t2}, 4, v{t2}
v_lshl_add_u32 v5, v{t0}, 10, v{t2}
s_mov_b32 s{sT[2]}, 0
""".strip().split('\n')
for j in range(8):
    a(f"ds_write_b128 v24, {vr(DACC+32+4*j,4)} offset:{1024*j}")
    for x in fill[len(fill) * j // 8: len(fill) * (j + 1) // 8]: a(x)
def o_loads():
    for v in range(8):
        a(f"buffer_load_dwordx4 {vr(OF + 4*v, 4)}, v{vO1 if v >> 2 else vL16}, {srd(SWS)}, s{sT[4 + (v&3)]} offen sc1")
stamp(3, 4)
a.wait(wtok[17], a.lastlg())
a(f"s_cmp_ge_u32 s{sW}, 4")
a("s_barrier")
stamp(4, 4)
a("s_setprio 1\ns_cbranch_scc1 L_ol1\ns_setprio 0")
o_loads()
a("L_ol1:")
xt = [a(f"ds_read_b128 {vr(XT+4*j,4)}, v26 offset:{1024*j}") for j in range(8)]
def wo_read(v):
    slot = ((14 + v) & 3) * 2048 + (v >> 2) * 8192
    for b in range(2):
        for e in range(2):
            a(f"ds_read_b64_tr_b16 {vr(WOF + 8*v + 4*b + 2*e, 2)}, v{28 + b} offset:{slot + e*512}")
for j in range(8):
    a.wait(xt[j])
    for i in range(2):
        r = 4 * j + 2 * i
        a(f"v_pk_add_f32 {vr(DACC+r,2)}, {vr(DACC+r,2)}, {vr(XT+r,2)}")
    for i in range(2):
        r = 4 * j + 2 * i
        a(f"v_pk_mul_f32 {vr(DACC+r,2)}, {vr(DACC+r,2)}, {vr(vG,2)} op_sel_hi:[1,0]")
stamp(5, 4)
a("s_setprio 0\ns_cbranch_scc0 L_ol2")
o_loads()
a("L_ol2:")
for j in range(8): wo_read(j)
stamp(6, 4)
a("L_s3poll:")
a.wait_vm0()
a(f"v_max_u32 v{t0}, v{OF}, v{OF+1}\nv_max_u32 v{t1}, v{OF+2}, v{OF+3}")
for j in range(2, 16): a(f"v_max3_u32 v{t0 + (j&1)}, v{t0 + (j&1)}, v{OF+2*j}, v{OF+2*j+1}")
a(f"""
v_max_u32 v{t0}, v{t0}, v{t1}
v_cmp_eq_u32 vcc, -1, v{t0}
s_cbranch_vccnz L_s3retry
L_s3done:
""")
stamp(10); stamp(7, 4)
a.wait_lg0()
def fin_write(b, qd): a(f"ds_write_b128 v{9+qd}, {vr(DACC + 16*b + 4*qd, 4)} offset:{b*128}")
for b in range(2):
    for v in range(8):
        d = vr(DACC + 16 * b, 16)
        a(f"v_mfma_f32_32x32x16_bf16 {d}, {vr(WOF+8*v+4*b,4)}, {vr(OF+4*v,4)}, {d}")
        if b == 1 and v < 3: a("s_nop 2")
        if b == 1 and 3 <= v < 7: fin_write(0, v - 3)
stamp(8, 4)
for qd in range(4): fin_write(1, qd)
a.wait_lg0()
a("s_barrier")
stamp(9, 4)
RD = 176
rt = []
for p in range(4):
    for e in range(2):
        rt.append(a(f"ds_read_b128 {vr(RD + 8*p + 4*e, 4)}, v{1 + e} offset:{p*16384}"))
for p in range(1, 4):
    a.wait(rt[2 * p + 1])
    for j in range(4):
        a(f"v_pk_add_f32 {vr(RD+2*j,2)}, {vr(RD+2*j,2)}, {vr(RD+8*p+2*j,2)}")
for j in range(4): a(f"v_cvt_pk_bf16_f32 v{RD+j}, v{RD+2*j}, v{RD+2*j+1}")
a(f"buffer_store_dwordx4 {vr(RD,4)}, v5, {srd(SOUT)}, s{sT[3]} offen {['', 'sc1'][OPT['outm']]}")
stamp(10, 4)
if OPT['stamp']:
    a("s_waitcnt vmcnt(0)")
    stamp(11)
    a("s_waitcnt lgkmcnt(0)")
    a(f"s_mov_b32 s28, s{sT[2]}")
    if 'dk' in OPT:
        a(f"""
        s_cmp_lg_u32 s{sW}, {OPT.get('dw', 7)}
        s_cbranch_scc1 L_end
        s_lshl_b32 s{sT[0]}, s2, 2
        s_add_u32 s{sT[0]}, s{sT[0]}, {WS_STAMP}
        v_mov_b32 v2, s{4+2*OPT['dk']}
        v_mov_b32 v1, 0
        buffer_store_dword v2, v1, {srd(SWS)}, s{sT[0]} offen sc1
        s_cmp_lg_u32 s2, 0
        s_cbranch_scc1 L_end
        L_pad0:
        s_memrealtime s[{sT[2]}:{sT[3]}]
        s_waitcnt lgkmcnt(0)
        s_sub_u32 s{sT[2]}, s{sT[2]}, s30
        s_cmp_lt_u32 s{sT[2]}, 5000
        s_cbranch_scc1 L_pad0
        v_mul_u32_u24 v1, {4*OPT['dstride']}, v{L}
        s_mov_b32 s{sT[0]}, {WS_STAMP + 4*OPT['dbase']}
        buffer_load_dword v2, v1, {srd(SWS)}, s{sT[0]} offen sc1
        s_waitcnt vmcnt(0)
        v_subrev_u32 v2, s30, v2
        v_add_u32 v2, 100000, v2
        s_mov_b32 s{sT[4]}, 0
        s_mov_b32 s{sT[5]}, -1
        """)
        for i in range(OPT['dn']): a(f"v_readlane_b32 s{sT[6]}, v2, {i}\ns_nop 1\ns_max_u32 s{sT[4]}, s{sT[4]}, s{sT[6]}\ns_min_u32 s{sT[5]}, s{sT[5]}, s{sT[6]}")
        a(f"""
        s_sub_u32 s{sT[0]}, s{sT[4]}, s{sT[5]}
        s_min_u32 s{sT[0]}, s{sT[0]}, 2000
        s_mul_i32 s{sT[0]}, s{sT[0]}, 10
        s_add_u32 s{sT[0]}, s{sT[0]}, 6000
        L_pad:
        s_memrealtime s[{sT[2]}:{sT[3]}]
        s_waitcnt lgkmcnt(0)
        s_sub_u32 s{sT[2]}, s{sT[2]}, s30
        s_cmp_lt_u32 s{sT[2]}, s{sT[0]}
        s_cbranch_scc1 L_pad
        """)
    elif 'pad' in OPT:
        K = OPT['pad']
        a(f"s_and_b32 s{sT[0]}, s2, {OPT.get('padm', 0)}\ns_cmp_lg_u32 s{sT[0]}, {OPT.get('padv', 0)}\ns_cbranch_scc1 L_end")
        if K >= 0: a(f"s_sub_u32 s{sT[0]}, s{4+2*K}, s{4+2*OPT.get('padb', 13)}\ns_mul_i32 s{sT[0]}, s{sT[0]}, {OPT.get('padx', 4)}")
        else: a(f"s_mov_b32 s{sT[0]}, 0")
        a(f"""
        s_add_u32 s{sT[0]}, s{sT[0]}, 6000
        L_pad:
        s_memrealtime s[{sT[2]}:{sT[3]}]
        s_waitcnt lgkmcnt(0)
        s_sub_u32 s{sT[2]}, s{sT[2]}, s30
        s_cmp_lt_u32 s{sT[2]}, s{sT[0]}
        s_cbranch_scc1 L_pad
        """)
    else:
        a(f"s_lshl3_add_u32 s{sT[0]}, s2, s{sW}\ns_lshl_b32 s{sT[0]}, s{sT[0]}, 6\ns_add_u32 s{sT[0]}, s{sT[0]}, {WS_STAMP}")
        a("v_mov_b32 v1, 0\ns_mov_b64 exec, 1")
        for k in range(14):
            a(f"v_mov_b32 v2, s{4+2*k}\nbuffer_store_dword v2, v1, {srd(SWS)}, s{sT[0]} offen offset:{4*k}")
a("L_end:\ns_endpgm")
a("L_s3retry:")
o_loads()
a(f"""
s_add_u32 s{sT[2]}, s{sT[2]}, 1
s_cmp_lt_u32 s{sT[2]}, {SPIN}
s_cbranch_scc1 L_s3poll
s_waitcnt vmcnt(0)
s_branch L_s3done
""")

for P in 'KVPSC':
    a(f".p2align 6\nL_path{P}:")
    a.forget()
    proj_path(P)
    a("s_branch L_join")
for x in cold: a(x)

CM = SB
a(f"""
L_true_max:
s_waitcnt vmcnt(0) lgkmcnt(0)
v_mov_b32 v{t0}, 0xff800000
s_mov_b32 s{sT[0]}, {WS_KV}
L_tm1:
buffer_load_dwordx4 {vr(KF,4)}, v{vL16}, {srd(SWS)}, s{sT[0]} offen sc1
s_waitcnt vmcnt(0)
{qk(SA, QB)}
""")
for j in range(8): a(f"v_max3_f32 v{t0}, v{t0}, v{SA+2*j}, v{SA+2*j+1}")
a(f"""
s_add_u32 s{sT[0]}, s{sT[0]}, 2048
s_cmp_lt_u32 s{sT[0]}, {WS_KV + 64*2048}
s_cbranch_scc1 L_tm1
v_mov_b32 v{t1}, v{t0}
v_permlane32_swap_b32 v{t0}, v{t1}
v_max_f32 v{t0}, v{t0}, v{t1}
""")
for r in range(16): a(f"v_sub_f32 v{CM+r}, 0, v{t0}\nv_mov_b32 v{OB+r}, 0")
a(f"""
s_mov_b32 s{sT[0]}, {WS_KV}
L_tm2:
buffer_load_dwordx4 {vr(KF,4)}, v{vL16}, {srd(SWS)}, s{sT[0]} offen sc1
s_mov_b64 exec, s[{sT[8]}:{sT[9]}]
buffer_load_dwordx4 {vr(V1[0],4)}, v{vPV}, {srd(SWS)}, s{sT[0]} offen offset:1024 sc1
buffer_load_dwordx4 {vr(V2,4)}, v{vPV}, {srd(SWS)}, s{sT[0]} offen offset:1536 sc1
s_mov_b64 exec, -1
s_waitcnt vmcnt(0)
v_mfma_f32_32x32x16_bf16 {vr(SA,16)}, {vr(KF,4)}, {vr(QB,4)}, {vr(CM,16)}
""")
for e in range(16): a(f"v_exp_f32 v{SA+e}, v{SA+e}")
a(pv(OB, V1[0], SA)); a(pv(OB, V2, SA + 8))
a(f"""
s_add_u32 s{sT[0]}, s{sT[0]}, 2048
s_cmp_lt_u32 s{sT[0]}, {WS_KV + 64*2048}
s_nop 7
s_cbranch_scc1 L_tm2
s_nop 7
v_rcp_f32 v{t0}, v{OB+8}
s_nop 0
v_mul_f32 v{t0}, v{t0}, v{vG}
""")
for j in range(4): a(f"v_pk_mul_f32 {vr(OB+2*j,2)}, {vr(OB+2*j,2)}, {vr(t0,2)} op_sel_hi:[1,0]")
for j in range(4): a(f"v_cvt_pk_bf16_f32 v{OS+j}, v{OB+2*j}, v{OB+2*j+1}")
for j in range(4): a(f"v_min_u32 v{OS+j}, -2, v{OS+j}")
a("s_branch L_norm\nL_last:")

bad = a.check_branches()
assert not bad, bad

hdr = open(f'cdna_kernels/{NAME}.s.ref').read().split('\n')
head = [l for l in hdr if l.startswith(';') and '@launch' not in l]
out = "\n".join(head) + f"\n; @launch grid=(256,1,1) block=(512,1,1) lds={LDS_BYTES}\n"
out += f""".amdgcn_target "amdgcn-amd-amdhsa--gfx950"
.text
.globl {NAME}_kernel
.p2align 8
.type {NAME}_kernel,@function
{NAME}_kernel:
{a.text()}
.section .rodata,"a"
.p2align 6
.amdhsa_kernel {NAME}_kernel
  .amdhsa_next_free_vgpr 256
  .amdhsa_next_free_sgpr 102
  .amdhsa_accum_offset 256
  .amdhsa_group_segment_fixed_size 0
  .amdhsa_kernarg_size 104
  .amdhsa_user_sgpr_count 2
  .amdhsa_user_sgpr_kernarg_segment_ptr 1
  .amdhsa_system_sgpr_workgroup_id_x 1
.end_amdhsa_kernel
"""
open(sys.argv[1], 'w').write(out)
print("instructions:", sum(1 for i in a.ins if i.ws), "auto nops:", a.nnop, file=sys.stderr)
```

```python
import sys, math, struct
sys.path.insert(0, 'gen')
from asmlib import Asm

NAME = 'gated_mix__grouped_kv_mqa__geglu_ffn__prompt'
OPT = dict(stamp=0, grp=0, force_fb=0, qflag=11, s1=16, b2=22, outm=1, ofast=0,
           p_kv=40, p_kvs=18, p_flag=112, p_fill=120, p_fills=40, p_kv2=272, p_f2=300, p_chk=340, d0=12, dend=32,
           late=1, pk2=1, nearly=1, h0w=27, h1w=30, clw=22, na=1, gend=30, dwt=4, qbar=0, cpf=1, qmode=0, qf=11, exs=3, spf=0, pb=2)
for x in sys.argv[2:]:
    k, v = x.split('='); OPT[k] = int(v)

def fbits(x): return struct.unpack('<I', struct.pack('<f', x))[0]

WS_KV, WS_G, WS_F1, WS_Q, WS_O, WS_H, WS_STAMP = 0, 0x20000, 0x30000, 0x100000, 0x300000, 0x500000, 0xC00000
WS_F2 = WS_F1 + 8192
WS_SIZE = 0x1000000
CLEAR_WG = 128
WR, EX = 65536, 131072
NSLOT, HALF, RING = 24, 49152, 98304
MERGE = 65536
LDS_BYTES = 163840
SPIN = 0x40000
SX, SWG, SWU, SWQ, SEX, SWS, SDBG, SWD, SWO, SOUT = 32, 36, 40, 44, 48, 52, 56, 60, 64, 92
sW, sTI, sQ, sU, sROT, sXO, sWOF, sMX, sMW, sI, sJ, sROT0 = range(68, 80)
sT = list(range(80, 90))
sEXW, sEXO = 90, 91
sC1 = 96
sF2, sRH, sRING, sOO = 98, 99, 100, 101
sHO = 3
sKVM, sKVO, sQA, sGA = 32, 33, 34, 35
sF2R = 46
sR = [sRH, 44, 45, 47]
def srd(n): return f"s[{n}:{n+3}]"
def vr(b, n): return f"v[{b}:{b+n-1}]"

vXS0, vXS1, vWS = 1, 2, 3
vST = 4
vXR = [5, 6, 7, 8]
vWR = [9, 10]
vES, vER, vSA = 11, [12, 13], 30
vL16, vLANE = 14, 15
vC0 = 16
vZ = 17
vGT = 18
t0, t1, t2, t3 = 20, 21, 22, 23
vS0, vWS2 = 28, 27
vPV, vPD, vTRP = 29, 0, 31
F = [32, 48]
ACC = [64, 96]
XF = 128
ACCE, WE = 96, 100
GW = 147456
L = vLANE
QA, QB, KF, V2, V1 = 128, 132, 136, 140, [144, 148]
vG, vIDX, vAK, vAV, vKVS = 152, 154, 155, 156, 157
vDR0, vDR1, vH0, vH1 = 159, 160, 161, 162
vDS, vDS1, vF2 = vPD, 158, vL16
F2D = 164
OA, OB, SA, SB = 176, 192, 208, 224
WF = [240, 248]
HF = [32, 40, 48, 56]
DACC = 64

a = Asm()
CLK = 's_memtime' if OPT['stamp'] == 2 else 's_memrealtime'
def stamp(k, grp=0):
    if grp != OPT['grp'] and k != 11: return
    if OPT['stamp']: a(f"{CLK} s[{4+2*k}:{5+2*k}]")
def mk_srd(n, p, size):
    a(f"s_mov_b32 s{n}, s{p}\ns_mov_b32 s{n+1}, s{p+1}\ns_mov_b32 s{n+2}, {size}\ns_mov_b32 s{n+3}, 0x20000")

PG = 3584
C0 = -2.0 * math.sqrt(2.0 / math.pi) * math.log2(math.e)
C1 = C0 * 0.044715
QS = 0.25 * math.log2(math.e)

a("s_cmp_ge_u32 s2, 256\ns_cbranch_scc1 L_end")
a("s_load_dwordx16 s[4:19], s[0:1], 0\ns_load_dwordx8 s[20:27], s[0:1], 64\ns_load_dwordx2 s[28:29], s[0:1], 96")
if OPT['stamp']: a(f"{CLK} s[30:31]")
def code_prefetch():
    a(f"""
    s_getpc_b64 s[{sT[8]}:{sT[9]}]
    L_pc:
    s_andn2_b32 s{sT[7]}, s2, 7
    s_lshl_b32 s{sT[7]}, s{sT[7]}, 8
    v_lshl_add_u32 v{t3}, v0, 2, s{sT[7]}
    v_min_u32 v{t3}, L_last-L_pc-4, v{t3}
    s_mov_b32 exec_lo, 1
    s_mov_b32 exec_hi, 1
    global_load_dword v{vS0}, v{t3}, s[{sT[8]}:{sT[9]}]
    s_mov_b64 exec, -1
    """)
if OPT['cpf'] == 1: code_prefetch()
a(f"""
v_readfirstlane_b32 s{sW}, v0
v_lshrrev_b32 v{t1}, 4, v0
v_lshrrev_b32 v{t0}, 3, v0
v_xor_b32 v{t1}, v0, v{t1}
s_lshr_b32 s{sU}, s2, 6
s_bfe_u32 s{sJ}, s2, 0x30003
v_and_b32 v{t1}, 7, v{t1}
s_and_b32 s{sT[2]}, s2, 1
s_lshl3_add_u32 s{sTI}, s{sT[2]}, s{sJ}
v_lshlrev_b32 v{t1}, 4, v{t1}
s_lshl1_add_u32 s{sROT0}, s{sU}, s{sJ}
s_and_b32 s{sROT0}, s{sROT0}, 7
v_lshl_add_u32 v{vXS0}, v{t0}, 10, v{t1}
s_lshl_b32 s{sT[0]}, s{sTI}, 17
s_lshl_b32 s{sXO}, s{sROT0}, 7
s_add_u32 s{sXO}, s{sXO}, s{sT[0]}
s_lshl_b32 s{sMW}, s{sW}, 4
s_mov_b32 m0, s{sMW}
s_mov_b32 s{SX+2}, {2048*1024}
s_mov_b32 s{SX+3}, 0x20000
""")
a(f"""
s_bfe_u32 s{sT[1]}, s{sW}, 0x10006
s_lshl_b32 s{sT[1]}, s{sT[1]}, 2
v_and_or_b32 v{t1}, v{t0}, 2, s{sT[1]}
s_bfe_u32 s{sQ}, s2, 0x20001
s_mul_i32 s{sT[1]}, s{sQ}, 7
v_xor_b32 v{t1}, v0, v{t1}
s_lshl1_add_u32 s{sT[1]}, s{sU}, s{sT[1]}
s_sub_u32 s{sT[1]}, s{sT[1]}, 1
v_and_b32 v{t1}, 7, v{t1}
s_lshl_b32 s{sT[2]}, s{sQ}, 1
s_movk_i32 s{sT[3]}, {PG}
v_lshlrev_b32 v{vWS2}, 4, v{t1}
s_mov_b32 s{SWG+3}, 0x20000
s_mov_b32 s{SWU+3}, 0x20000
s_cmp_eq_u32 s{sU}, 0
s_cselect_b32 s{sT[1]}, s{sT[2]}, s{sT[1]}
s_cselect_b32 s{sT[3]}, 1024, s{sT[3]}
s_cselect_b32 s{sT[2]}, 128, 0
v_mad_u32_u24 v{vWS}, v{t0}, s{sT[3]}, v{vWS2}
s_lshl_b32 s{SWG+2}, s{sT[3]}, 9
s_mov_b32 s{SWU+2}, s{SWG+2}
s_mul_i32 s{sWOF}, s{sROT0}, s{sT[3]}
s_lshl1_add_u32 s{sWOF}, s{sT[1]}, s{sWOF}
s_lshl_b32 s{sWOF}, s{sWOF}, 6
s_cmp_eq_u32 s{sU}, 0
{CLK + ' s[84:85]' if OPT['grp'] == 5 else ''}
s_waitcnt lgkmcnt(0)
{CLK + ' s[86:87]' if OPT['grp'] == 5 else ''}
s_mov_b64 s[{SX}:{SX+1}], s[4:5]
buffer_load_dwordx4 v{vXS0}, {srd(SX)}, s{sXO} offen lds
s_cselect_b64 s[{SWG}:{SWG+1}], s[6:7], s[16:17]
s_cselect_b64 s[{SWU}:{SWU+1}], s[6:7], s[18:19]
s_add_u32 m0, s{sMW}, {WR}
s_add_u32 s{sXO}, s{sXO}, 65536
buffer_load_dwordx4 v{vWS}, {srd(SWG)}, s{sWOF} offen lds
s_add_u32 m0, s{sMW}, {WR + 8192}
s_add_u32 s{sWOF}, s{sWOF}, s{sT[2]}
buffer_load_dwordx4 v{vWS}, {srd(SWU)}, s{sWOF} offen lds
s_add_u32 m0, s{sMW}, 8192
s_nop 0
buffer_load_dwordx4 v{vXS0}, {srd(SX)}, s{sXO} offen lds
""")
if OPT['grp'] == 5: a(f"{CLK} s[88:89]\ns_waitcnt lgkmcnt(0)\ns_mov_b32 s4, s84\ns_mov_b32 s14, s86\ns_mov_b32 s5, s88")
a(f"""
s_lshr_b32 s{sW}, s{sW}, 6
v_add_u32 v{vXS0}, s{sT[0]}, v{vXS0}
v_add_u32 v{vXS1}, 0x10000, v{vXS0}
s_lshl_b32 s{sT[1]}, s{sT[1]}, 7
v_add_u32 v{vWS}, s{sT[1]}, v{vWS}
s_movk_i32 s{sT[3]}, {PG}
v_mad_u32_u24 v{vWS2}, v{t0}, s{sT[3]}, v{vWS2}
s_mul_i32 s{sT[1]}, s{sQ}, {7*128}
v_add_u32 v{vWS2}, s{sT[1]}, v{vWS2}
v_and_b32 v{L}, 63, v0
v_lshlrev_b32 v{vL16}, 4, v{L}
s_and_b32 s{sT[0]}, s2, 7
s_lshl2_add_u32 s{sI}, s{sT[0]}, s{sU}
s_add_u32 s{sROT}, s{sROT0}, 1
s_and_b32 s{sROT}, s{sROT}, 7
s_lshl_b32 s{sMX}, s{sW}, 11
""")
def dispatch():
    a(f"""
    s_lshr_b32 s{sT[1]}, s{sW}, 2
    s_lshl1_add_u32 s{sT[0]}, s{sU}, s{sT[1]}
    s_lshr_b32 s{sT[1]}, s{sQ}, 1
    s_lshl1_add_u32 s{sT[0]}, s{sT[0]}, s{sT[1]}
    s_cmp_eq_u32 s{sT[0]}, 0
    s_cbranch_scc1 L_pathK
    s_cmp_eq_u32 s{sT[0]}, 1
    s_cbranch_scc1 L_pathV
    s_cmp_lt_u32 s{sT[0]}, 4
    s_cbranch_scc1 L_pathP
    s_cmp_eq_u32 s{sT[0]}, 4
    s_cbranch_scc1 L_pathS
    s_add_u32 s{sT[0]}, s{sMW}, s2
    s_cmp_eq_u32 s{sT[0]}, {CLEAR_WG + 1024}
    s_cbranch_scc1 L_pathC
    """)

PATH = ['G']
def wslot(sig):
    if sig < 8: return WR + (sig & 3) * 16384
    if sig >= 14: return EX + (sig - 14) * 16384
    return (0 if sig & 1 else WR) + ((sig - 8) >> 1) * 16384
def waddr(sig, b):
    return {0: vXR[b], 1: vWR[b], 2: vXR[2 + b]}[wslot(sig) >> 16]

def dma_ops(sig, path):
    p = sig >> 3
    isq = (path in 'KVP' and p == 0)
    pitch = 1024 if isq else PG
    sa, sb = (SWQ, SWQ) if isq else (SWG, SWU)
    xs, ws = (sig & 3) * 16384, wslot(sig)
    pre = f"s_mul_i32 s{sWOF}, s{sROT}, {64*pitch}\n"
    if path in 'GSC' and p == 1: pre += f"s_add_u32 s{sWOF}, s{sWOF}, 128\n"
    mid = f"s_add_u32 s{sWOF}, s{sWOF}, 128\n" if isq else ""
    inc, wrap = f"s_add_u32 s{sROT}, s{sROT}, 1\n", f"s_and_b32 s{sROT}, s{sROT}, 7\n"
    vw = vWS2 if (path in 'KVP' and p == 1) else vWS
    wa = f"s_add_u32 m0, s{sMW}, {ws}\n{{}}buffer_load_dwordx4 v{vw}, {srd(sa)}, s{sWOF} offen lds"
    wb = f"s_add_u32 m0, s{sMW}, {ws+8192}\n{{}}buffer_load_dwordx4 v{vw}, {srd(sb)}, s{sWOF} offen lds"
    if p == 0:
        return [f"s_add_u32 m0, s{sMW}, {xs}\ns_lshl_b32 s{sXO}, s{sROT}, 7\nbuffer_load_dwordx4 v{vXS0}, {srd(SX)}, s{sXO} offen lds",
                wa.format(pre), wb.format(mid + inc),
                f"s_add_u32 m0, s{sMW}, {xs+8192}\n{wrap}buffer_load_dwordx4 v{vXS1}, {srd(SX)}, s{sXO} offen lds"]
    return [wa.format(pre), wb.format(inc + wrap)]

def setup_common():
    mk_srd(SWS, 28, WS_SIZE)
    if OPT.get('wso'): a(f"s_add_u32 s{SWS}, s{SWS}, {OPT['wso'] << 20}\ns_addc_u32 s{SWS+1}, s{SWS+1}, 0")
    mk_srd(SDBG, 26, 256); mk_srd(SWD, 20, 1792 * 1024); mk_srd(SWO, 12, 512 * 1024); mk_srd(SOUT, 24, 2048 * 1024)
    a(f"""
    s_and_b32 s{sT[0]}, s{sW}, 3
    s_lshr_b32 s{sT[1]}, s{sW}, 2
    s_xor_b32 s{sT[5]}, s{sT[1]}, s{sQ}
    s_and_b32 s{sT[5]}, s{sT[5]}, 1
    s_lshl1_add_u32 s{sT[0]}, s{sT[0]}, s{sT[5]}
    s_lshl_b32 s{sT[0]}, s{sT[0]}, 11
    v_and_b32 v{t0}, 15, v{L}
    v_bfe_u32 v{t1}, v{L}, 1, 3
    v_lshrrev_b32 v{t2}, 4, v{L}
    v_xor_b32 v{t1}, v{t1}, v{t2}
    v_lshlrev_b32 v{t1}, 4, v{t1}
    v_lshl_add_u32 v{t1}, v{t0}, 7, v{t1}
    v_add_u32 v{vXR[0]}, s{sT[0]}, v{t1}
    v_xor_b32 v{vXR[1]}, 0x800, v{vXR[0]}
    v_xor_b32 v{vXR[2]}, 64, v{vXR[0]}
    v_xor_b32 v{vXR[3]}, 64, v{vXR[1]}
    s_lshl_b32 s{sT[2]}, s{sT[5]}, 8
    v_xor_b32 v{vST}, s{sT[2]}, v{vL16}
    """)
    a(f"""
    v_lshrrev_b32 v{t3}, 5, v{L}
    v_lshlrev_b32 v{t0}, 4, v{t0}
    v_lshl_add_u32 v{vPV}, v{t3}, 8, v{t0}
    """)
    a(f"""
    v_bfe_u32 v{t0}, v{L}, 2, 2
    v_lshl_add_u32 v{t1}, v{t2}, 3, v{t0}
    v_lshlrev_b32 v{t1}, 7, v{t1}
    v_bfe_u32 v{t2}, v{L}, 3, 2
    s_lshl_b32 s{sT[1]}, s{sT[1]}, 1
    v_xor_b32 v{t2}, s{sT[1]}, v{t2}
    v_lshl_add_u32 v{t1}, v{t2}, 5, v{t1}
    v_and_b32 v{t2}, 3, v{L}
    v_lshl_add_u32 v{t1}, v{t2}, 3, v{t1}
    v_add_u32 v{vWR[0]}, {WR}, v{t1}
    v_xor_b32 v{vWR[1]}, 32, v{vWR[0]}
    """)
    a(f"""
    v_lshl_add_u32 v{t3}, v{t3}, 3, v{t0}
    v_lshlrev_b32 v{t3}, 7, v{t3}
    v_lshrrev_b32 v{t0}, 1, v{t0}
    v_lshl_add_u32 v{t3}, v{t0}, 6, v{t3}
    v_lshl_add_u32 v{t3}, v{t2}, 3, v{t3}
    v_bfe_u32 v{t2}, v{L}, 4, 1
    v_lshl_add_u32 v{vTRP}, v{t2}, 5, v{t3}
    v_lshlrev_b32 v{t2}, 2, v{t2}
    v_and_b32 v{t1}, 7, v{L}
    v_xor_b32 v{t1}, v{t1}, v{t2}
    v_lshlrev_b32 v{t1}, 4, v{t1}
    v_lshrrev_b32 v{t0}, 3, v{L}
    v_lshl_add_u32 v{t0}, v{t0}, 10, v{t1}
    s_lshl_b32 s{sT[0]}, s{sJ}, 7
    v_add_u32 v{vPD}, s{sT[0]}, v{t0}
    v_mov_b32 v{vZ}, 0
    v_mov_b32 v{vC0}, {fbits(C0):#x}
    s_mov_b32 s{sC1}, {fbits(C1):#x}
    s_mov_b32 s{sC1+1}, {fbits(C1):#x}
    """)
    a(f"""
    s_lshr_b32 s{sT[3]}, s{sW}, 2
    s_and_b32 s{sT[1]}, s{sW}, 3
    s_lshl2_add_u32 s{sT[0]}, s{sTI}, s{sT[1]}
    s_lshl_b32 s{sT[8]}, s{sT[0]}, 5
    s_and_b32 s{sT[2]}, s{sT[0]}, 15
    s_lshr_b32 s{sT[0]}, s{sT[0]}, 4
    s_mul_i32 s{sT[0]}, s{sT[0]}, 112
    s_mul_i32 s{sT[1]}, s{sQ}, 28
    s_add_u32 s{sT[0]}, s{sT[0]}, s{sT[1]}
    s_lshl3_add_u32 s{sT[0]}, s{sU}, s{sT[0]}
    s_lshl1_add_u32 s{sT[0]}, s{sT[3]}, s{sT[0]}
    s_lshl4_add_u32 s{sT[0]}, s{sT[0]}, s{sT[2]}
    s_lshl_b32 s{sT[0]}, s{sT[0]}, 10
    s_add_u32 s{sHO}, s{sT[0]}, {WS_H}
    s_lshl3_add_u32 s{sT[4]}, s{sQ}, s{sT[8]}
    s_lshl1_add_u32 s{sT[4]}, s{sT[3]}, s{sT[4]}
    s_lshl_b32 s{sT[4]}, s{sT[4]}, 10
    s_lshl2_add_u32 s{sT[1]}, s{sQ}, s{sU}
    s_lshl4_add_u32 s{sF2}, s{sTI}, s{sT[1]}
    s_lshl3_add_u32 s{sF2}, s{sF2}, s{sW}
    s_lshl_b32 s{sF2}, s{sF2}, 2
    s_add_u32 s{sF2}, s{sF2}, {WS_F2}
    s_lshl1_add_u32 s{sT[9]}, s{sT[1]}, s{sT[8]}
    s_add_u32 s{sT[9]}, s{sT[9]}, s{sT[3]}
    s_lshl_b32 s{sT[9]}, s{sT[9]}, 10
    s_add_u32 s{sT[9]}, s{sT[9]}, {WS_O}
    s_and_b32 s{sT[1]}, s{sW}, 1
    s_lshl1_add_u32 s{sT[1]}, s{sI}, s{sT[1]}
    s_lshl3_add_u32 s{sT[2]}, s{sT[1]}, s{sJ}
    s_lshl_b32 s{sT[2]}, s{sT[2]}, 2
    s_and_b32 s{sT[1]}, s{sW}, 2
    s_add_u32 s{sT[2]}, s{sT[2]}, s{sT[1]}
    s_add_u32 s{sT[2]}, s{sT[2]}, s{sT[3]}
    s_lshl_b32 s{sOO}, s{sT[2]}, 10
    s_lshl_b32 s{sRING}, s{sW}, 13
    s_add_u32 s{sRING}, s{sRING}, {RING}
    s_mul_i32 s{sRH}, s{sJ}, 7
    s_lshr_b32 s{sRH}, s{sRH}, 2
    s_mul_i32 s{sT[1]}, s{sU}, 7
    s_lshr_b32 s{sT[1]}, s{sT[1]}, 1
    s_add_u32 s{sRH}, s{sRH}, s{sT[1]}
    s_cmp_ge_u32 s{sRH}, 14
    s_cselect_b32 s{sT[1]}, 14, 0
    s_sub_u32 s{sRH}, s{sRH}, s{sT[1]}
    s_lshl_b32 s{sRH}, s{sRH}, 14
    s_mul_i32 s{sT[1]}, s{sW}, {14*16384}
    s_add_u32 s{SWD}, s{SWD}, s{sT[1]}
    s_addc_u32 s{SWD+1}, s{SWD+1}, 0
    s_sub_u32 s{SWD+2}, s{SWD+2}, s{sT[1]}
    s_lshl_b32 s{sT[1]}, s{sW}, 16
    s_add_u32 s{SWO}, s{SWO}, s{sT[1]}
    s_addc_u32 s{SWO+1}, s{SWO+1}, 0
    s_sub_u32 s{SWO+2}, s{SWO+2}, s{sT[1]}
    """)

def setup_path(P):
    if P in 'KV':
        a(f"""
        v_lshrrev_b32 v{t2}, 4, v{L}
        v_and_b32 v{t0}, 15, v{L}
        v_lshlrev_b32 v{t1}, 3, v{t0}
        v_lshl_add_u32 v{t1}, v{t2}, 8, v{t1}
        v_and_b32 v{t3}, 1, v{t2}
        v_lshl_add_u32 v{t1}, v{t3}, 7, v{t1}
        v_add_u32 v{vER[0]}, {EX}, v{t1}
        v_xor_b32 v{vER[1]}, 0x80, v{vER[0]}
        v_lshlrev_b32 v{t1}, 7, v{t3}
        v_xor_b32 v{vES}, v{t1}, v{vL16}
        s_add_u32 s{sEXO}, s{sW}, s{sROT0}
        s_and_b32 s{sEXO}, s{sEXO}, 7
        s_lshl_b32 s{sEXO}, s{sEXO}, 11
        s_lshr_b32 s{sEXW}, s{sT[4]}, 15
        v_lshrrev_b32 v{t2}, 1, v{t2}
        """)
        if P == 'K':
            a(f"""
            s_lshl3_add_u32 s{sEXW}, s{sEXW}, s{sT[5]}
            s_lshl_b32 s{sEXW}, s{sEXW}, 8
            v_lshlrev_b32 v{t2}, 9, v{t2}
            """)
        else:
            a(f"""
            s_lshl2_add_u32 s{sEXW}, s{sEXW}, s{sT[5]}
            s_lshl_b32 s{sEXW}, s{sEXW}, 9
            s_add_u32 s{sEXW}, s{sEXW}, 1024
            v_lshlrev_b32 v{t2}, 8, v{t2}
            v_and_b32 v{t0}, 3, v{L}
            v_bfe_u32 v{t1}, v{L}, 2, 1
            v_lshl_add_u32 v{t0}, v{t1}, 3, v{t0}
            v_bfe_u32 v{t1}, v{L}, 3, 1
            v_lshl_add_u32 v{t0}, v{t1}, 2, v{t0}
            """)
        a(f"""
        v_lshl_add_u32 v{t2}, v{t0}, 4, v{t2}
        v_lshl_add_u32 v{vSA}, v{t3}, 3, v{t2}
        """)
    if P == 'P':
        a(f"""
        v_bfe_u32 v{t1}, v{L}, 4, 1
        v_lshlrev_b32 v{t1}, 7, v{t1}
        v_xor_b32 v{vES}, v{t1}, v{vL16}
        s_add_u32 s{sEXO}, s{sW}, s{sROT0}
        s_and_b32 s{sEXO}, s{sEXO}, 7
        s_lshl_b32 s{sEXO}, s{sEXO}, 11
        """)
    if P == 'S':
        a(f"""
        s_lshl_b32 s{sEXO}, s{sROT0}, 7
        v_add_u32 v{vES}, s{sEXO}, v{vL16}
        v_and_b32 v{vES}, 0x3ff, v{vES}
        v_and_b32 v{t0}, 48, v{L}
        v_add_u32 v{vER[0]}, {GW}, v{t0}
        v_and_b32 v{t0}, 15, v{L}
        v_lshlrev_b32 v{vSA}, 2, v{t0}
        s_lshr_b32 s{sEXW}, s{sT[4]}, 15
        s_lshl1_add_u32 s{sEXW}, s{sEXW}, s{sT[5]}
        s_lshl_b32 s{sEXW}, s{sEXW}, 6
        s_add_u32 s{sEXW}, s{sEXW}, {WS_G}
        """)

def x_reads(sig, j):
    return [f"ds_read_b128 {vr(XF + 16*sig + 8*j + 4*tq, 4)}, v{vXR[2*j+tq]} offset:{(sig & 3) * 16384}" for tq in range(2)]
def w_reads(sig, j, i):
    b, part = i >> 1, i & 1
    off = (wslot(sig) & 0xffff) + part * 8192 + j * 4096
    return [f"ds_read_b64_tr_b16 {vr(F[j] + 4*i + 2*e, 2)}, v{waddr(sig, b)} offset:{off + e*512}" for e in range(2)]
def e_steps(c):
    c0 = 2 * OPT['exs']
    if PATH[0] in 'KVS': return [2 * (c - c0), 2 * (c - c0) + 1] if c0 <= c < 2 * c0 else ([c] if 2 * c0 <= c < 16 else [])
    return []
def e_buf(c, i): return WE + 16 if (PATH[0] == 'S' and c == 15) else WE + 8 * (c & 1) + 4 * i
def e_reads(c):
    if PATH[0] == 'S':
        cs = [] if c == 15 else ([14, 15] if c == 14 else [c])
        return [f"ds_read_b128 {vr(e_buf(x, i), 4)}, v{vER[0]} offset:{k*64}" for x in cs for i, k in enumerate(e_steps(x))]
    return [f"ds_read_b64_tr_b16 {vr(e_buf(c, i) + 2*e, 2)}, v{vER[e]} offset:{k*1024}" for i, k in enumerate(e_steps(c)) for e in range(2)]
def e_mfmas(c):
    out = []
    for i, k in enumerate(e_steps(c)):
        acc, w, x = vr(ACCE, 4), vr(e_buf(c, i), 4), vr(XF + 8 * k, 4)
        A, B = (x, w) if PATH[0] == 'V' else (w, x)
        out.append(f"v_mfma_f32_16x16x32_bf16 {acc}, {A}, {B}, {'0' if k == 0 else acc}")
    return out
def mfmas(sig, j):
    out = []
    for i in range(4):
        for tq in range(2):
            d = vr(ACC[sig >> 3] + 8 * i + 4 * tq, 4)
            c = "0" if ((sig & 7) == 0 and j == 0) else d
            out.append(f"v_mfma_f32_16x16x32_bf16 {d}, {vr(F[j] + 4*i, 4)}, {vr(XF + 16*(sig&7) + 8*j + 4*tq, 4)}, {c}")
    return out

def gelu_pair(base, j, T=vGT, pk=False):
    G = vr(base + 2 * j, 2); U = vr(base + 8 + 2 * j, 2); TT = vr(T, 2)
    g0, g1, u0, u1 = base + 2 * j, base + 2 * j + 1, base + 8 + 2 * j, base + 9 + 2 * j
    if pk:
        return [f"v_pk_mul_f32 {TT}, {G}, {G}",
                f"v_pk_fma_f32 {TT}, {TT}, s[{sC1}:{sC1+1}], {vr(vC0,2)} op_sel_hi:[1,1,0]",
                f"v_pk_mul_f32 {TT}, {TT}, {G}",
                f"v_exp_f32 v{T}, v{T}", f"v_exp_f32 v{T+1}, v{T+1}",
                f"v_pk_mul_f32 {G}, {G}, {U}",
                f"v_pk_add_f32 {TT}, {TT}, 1.0 op_sel_hi:[1,0]",
                f"v_rcp_f32 v{T}, v{T}", f"v_rcp_f32 v{T+1}, v{T+1}",
                f"v_pk_mul_f32 {G}, {G}, {TT}",
                f"v_cvt_pk_bf16_f32 v{base+j}, v{g0}, v{g1}"]
    return [f"v_mul_f32 v{T}, v{g0}, v{g0}", f"v_mul_f32 v{T+1}, v{g1}, v{g1}",
            f"v_fma_f32 v{T}, v{T}, s{sC1}, v{vC0}", f"v_fma_f32 v{T+1}, v{T+1}, s{sC1}, v{vC0}",
            f"v_mul_f32 v{T}, v{T}, v{g0}", f"v_mul_f32 v{T+1}, v{T+1}, v{g1}",
            f"v_exp_f32 v{T}, v{T}", f"v_exp_f32 v{T+1}, v{T+1}",
            f"v_mul_f32 v{g0}, v{g0}, v{u0}", f"v_add_f32 v{T}, 1.0, v{T}", f"v_add_f32 v{T+1}, 1.0, v{T+1}",
            f"v_rcp_f32 v{T}, v{T}", f"v_rcp_f32 v{T+1}, v{T+1}",
            f"v_mul_f32 v{g1}, v{g1}, v{u1}",
            f"v_mul_f32 v{g0}, v{g0}, v{T}", f"v_mul_f32 v{g1}, v{g1}, v{T+1}",
            f"v_cvt_pk_bf16_f32 v{base+j}, v{g0}, v{g1}"]
def to_frag(base):
    return [f"v_permlane16_swap_b32 v{base}, v{base+2}", f"v_permlane16_swap_b32 v{base+1}, v{base+3}"]

def cost(x):
    c = 0
    for l in x.strip().split('\n'):
        l = l.strip()
        if not l or l.startswith(';') or l.endswith(':'): continue
        c += 8 if l.startswith(('v_exp', 'v_rcp')) else (OPT.get('vmc', 16) if l.startswith('buffer_') else 4)
    return c

kvtok = {}
def kv_step(m):
    slot = (4 * m % NSLOT) * 2048
    if m == 0: x = f"s_mov_b32 m0, s{sKVM}\ns_nop 0\n"
    else: x = f"s_add_u32 s{sKVO}, s{sKVO}, 8192\ns_add_u32 m0, s{sKVM}, {slot}\ns_and_b32 s{sKVO}, s{sKVO}, 0xffff\n"
    return [x + f"buffer_load_dwordx4 v{vKVS}, {srd(SWS)}, s{sKVO} offen sc1 lds", f"buffer_load_dwordx4 v{vKVS}, {srd(SWS)}, s{sKVO} offen offset:1024 sc1 lds"]
KV_FIRST = 2
def first_loads():
    return [f"buffer_load_dwordx4 {vr(QA,4)}, v{vL16}, {srd(SWS)}, s{sQA} offen sc1\ns_xor_b32 s{sQA}, s{sQA}, 1024"] + kv_step(0) + \
           [f"buffer_load_dwordx4 {vr(QB,4)}, v{vL16}, {srd(SWS)}, s{sQA} offen sc1"] + kv_step(1)

def setup_queue():
    q = []
    def add(st, txt):
        for l in txt.strip().split('\n'): q.append((st, l.strip().replace('|', '\n')))
    add(11, f"""
    s_lshr_b32 s{sT[3]}, s{sW}, 2
    s_and_b32 s{sT[5]}, s{sW}, 1
    s_lshl_b32 s{sT[6]}, s{sT[3]}, 16
    v_add_u32 v{vKVS}, s{sT[6]}, v{vL16}
    s_mul_i32 s{sT[3]}, s{sT[3]}, {HALF}
    v_add_u32 v{vAK}, s{sT[3]}, v{vL16}
    v_add_u32 v{vAV}, s{sT[3]}, v{vPV}
    s_and_b32 s{sT[6]}, s{sW}, 3
    s_lshl_b32 s{sT[7]}, s{sT[6]}, 11
    s_add_u32 s{sKVM}, s{sT[7]}, s{sT[3]}
    s_lshr_b32 s{sT[7]}, s2, 3
    s_add_u32 s{sT[6]}, s{sT[6]}, s{sT[7]}
    s_and_b32 s{sT[6]}, s{sT[6]}, 31
    s_lshl_b32 s{sKVO}, s{sT[6]}, 11
    s_add_u32 s{sQA}, s{sOO}, {WS_Q}
    s_xor_b32 s{sQA}, s{sQA}, 1024
    s_lshl1_add_u32 s{sGA}, s{sI}, s{sT[5]}
    s_lshl_b32 s{sGA}, s{sGA}, 7
    s_add_u32 s{sGA}, s{sGA}, {WS_G}
    v_and_b32 v{vG}, 31, v{L}
    v_lshlrev_b32 v{vG}, 2, v{vG}
    v_mov_b32 v{vIDX}, 0xdddddddd
    v_mov_b32 v{V2+1}, 0x3f803f80
    s_mov_b32 vcc_lo, 0x110000|s_mov_b32 vcc_hi, 0x110000|v_cndmask_b32 v{V2}, 0, v{V2+1}, vcc
    """)
    for r in range(V2 + 1, V2 + 12): add(11, f"v_mov_b32 v{r}, v{V2}")
    add(12, f"""
    v_add_u32 v{vDR0}, s{sRING}, v{vTRP}
    v_xor_b32 v{vDR1}, 64, v{vDR0}
    v_add_u32 v{vDS1}, 7168, v{vDS}
    s_lshr_b32 s{sT[6]}, s{sI}, 3
    s_lshl3_add_u32 s{sT[6]}, s{sT[6]}, s{sW}
    s_mul_i32 s{sT[6]}, s{sT[6]}, {14*16}
    s_and_b32 s{sT[7]}, s{sI}, 7
    s_lshl1_add_u32 s{sT[7]}, s{sT[7]}, s{sT[5]}
    s_add_u32 s{sT[6]}, s{sT[6]}, s{sT[7]}
    s_lshl_b32 s{sT[6]}, s{sT[6]}, 10
    s_add_u32 s{sT[6]}, s{sT[6]}, {WS_H}
    v_add_u32 v{vH0}, s{sT[6]}, v{vL16}
    v_xor_b32 v{vH1}, 0x400, v{vH0}
    s_lshr_b32 s{sF2R}, s{sI}, 1
    s_lshl_b32 s{sF2R}, s{sF2R}, 9
    s_add_u32 s{sF2R}, s{sF2R}, {WS_F2}
    """)
    for r in range(9): add(13, f"v_mov_b32 v{OA+r}, 0")
    for r in range(9): add(14, f"v_mov_b32 v{OB+r}, 0")
    return q

cold = []
def s0_check(P):
    a(f"v_cmp_eq_u32 vcc, 0, v{vS0}\ns_cbranch_vccnz L_s0retry{P}\nL_s0done{P}:")
    cold.append(f"""
    L_s0retry{P}:
    s_mov_b32 s{sT[1]}, 0
    L_s0poll{P}:
    buffer_load_dword v{vS0}, v{vZ}, {srd(SDBG)}, 0 offen sc1
    s_add_u32 s{sT[1]}, s{sT[1]}, 1
    s_waitcnt vmcnt(0)
    v_cmp_eq_u32 vcc, 0, v{vS0}
    s_cbranch_vccz L_s0done{P}
    s_cmp_lt_u32 s{sT[1]}, {SPIN}
    s_cbranch_scc1 L_s0poll{P}
    s_branch L_s0done{P}
    """)
def s1_issue(P):
    a(f"s_cmp_lg_u32 s{sW}, 0\ns_cbranch_scc1 L_nopoll0{P}")
    if P in 'GSC': s0_check(P)
    a(f"""
    s_mov_b32 s{sT[1]}, {WS_F1}
    v_lshlrev_b32 v{t1}, 7, v{L}
    buffer_load_dword v{t0}, v{t1}, {srd(SWS)}, s{sT[1]} offen sc1
    L_nopoll0{P}:
    """)
    a.vm -= 1
def s1_check(P):
    a(f"""
    s_cmp_lg_u32 s{sW}, 0
    s_cbranch_scc1 L_s1done{P}
    s_mov_b32 s{sT[0]}, 0
    L_s1poll{P}:
    s_waitcnt vmcnt(0)
    v_cmp_ne_u32 vcc, 1, v{t0}
    s_cbranch_vccz L_s1done{P}
    s_mov_b64 exec, vcc
    buffer_load_dword v{t0}, v{t1}, {srd(SWS)}, s{sT[1]} offen sc1
    s_mov_b64 exec, -1
    s_add_u32 s{sT[0]}, s{sT[0]}, 1
    s_cmp_lt_u32 s{sT[0]}, {SPIN}
    s_cbranch_scc1 L_s1poll{P}
    s_waitcnt vmcnt(0)
    L_s1done{P}:
    """)
    a.vm -= 1

def proj_path(P):
    tok = {}
    PATH[0] = P
    S1 = OPT['s1']
    sched = {s: [s + 2] for s in range(6)}
    ISQ = P in 'KVP'
    QF = OPT['qf']
    sched.update({6: [8, 9], 7: [10, 11], 8: [12, 13], 9: [14, 15]}); cover = {8: 9, 10: 11, 12: 15}
    if ISQ and OPT['qmode'] == 0:
        del sched[8], sched[9]
        sched.update({10: [12, 13], 11: [14, 15]}); cover = {8: 9, 10: 11, 12: 13, 14: 15}
    bars = set(range(8)) | set(cover) | {S1}
    if ISQ: bars |= {QF} | ({9} if OPT['qmode'] else set()) | (set(range(10, 16)) if OPT['qbar'] else set())
    def dma_groups(sg):
        d = dma_ops(sg, P)
        if ISQ and sg == OPT['exs']:
            d.insert(1, f"""
            s_add_u32 m0, s{sMX}, {EX}
            s_nop 0
            buffer_load_dwordx4 v{vES}, {srd(SEX)}, s{sEXO} offen lds
            buffer_load_dwordx4 v{vES}, {srd(SEX)}, s{sEXO} offen offset:1024 lds
            """)
        if P == 'S' and sg == OPT['exs']:
            d.insert(1, f"s_mov_b32 m0, {GW}\ns_nop 0\nbuffer_load_dwordx4 v{vES}, {srd(SEX)}, 0 offen lds")
        return [(x, sg if k == len(d) - 1 else None) for k, x in enumerate(d)]
    def emit(it):
        if callable(it): return it()
        a(it[0])
        if it[1] is not None: tok[it[1]] = a.lastvm()
    tok[0] = a.lastvm()
    if ISQ: mk_srd(SWQ, 6, 512 * 1024)
    if not OPT['spf']:
        for it in dma_groups(1): emit(it)
    if ISQ: mk_srd(SWG, 16, 512 * PG); mk_srd(SWU, 18, 512 * PG)
    if P in 'KVS': mk_srd(SEX, {'K': 8, 'V': 10, 'S': 22}[P], 1024 if P == 'S' else 16384)
    if P == 'P': a(f"s_cmp_lt_u32 s{sQ}, 2\ns_cselect_b64 s[{SEX}:{SEX+1}], s[8:9], s[10:11]\ns_mov_b32 s{SEX+2}, 16384\ns_mov_b32 s{SEX+3}, 0x20000")
    setup_path(P)
    if OPT['grp'] == 5: a("s_mov_b32 s6, s14\ns_mov_b32 s8, s5")
    stamp(3, 5)
    if OPT['spf']:
        for it in dma_groups(1): emit(it)
    stamp(4, 5)
    if P == 'C':
        ctok = a(f"v_lshlrev_b32 v{t0}, 7, v{L}\ns_mov_b32 s{sT[1]}, {WS_F1}\nbuffer_store_dword v{vZ}, v{t0}, {srd(SWS)}, s{sT[1]} offen sc1")
    win = {c: [] for c in range(33)}
    box = {}; front = {}; pre8 = []
    def usable(c):
        return c % 2 == 0 or ((c + 1) // 2) not in bars
    def nxt(c):
        while not usable(c): c += 1
        return c
    if not ISQ:
        gq = []
        for b in range(2):
            for j in range(4): gq += gelu_pair(ACC[0] + 16 * b, j)
            gq += to_frag(ACC[0] + 16 * b)
            if b == 0: n0 = len(gq)
        npre = 17 * (OPT['pb'] - 1) if OPT['pb'] else 0
        pre8 += [(x, None) for j in range(max(OPT['pb'] - 1, 0)) for x in gelu_pair(ACC[0], j, pk=OPT.get('pbk', 0))]
        gq = gq[npre:]; n0 -= npre
        ws = [c for c in range(16, OPT['gend'] + 1) if usable(c)]
        ndma = {16: 2, 17: 2, 18: 4}
        tot = len(gq) + OPT['dwt'] * 8
        done = 0; accw = 0
        for k, c in enumerate(ws):
            accw += OPT['dwt'] * ndma.get(c, 0)
            upto = max(done, tot * (k + 1) // len(ws) - accw)
            win[c] += [(x, None) for x in gq[done:upto]]
            if done < n0 <= upto: c0 = c
            done = upto
        assert done == len(gq)
        for b in range(OPT['nearly']):
            c = nxt(max(OPT[f'h{b}w'], c0 if b == 0 else ws[-1]))
            win[c].append((f"s_sub_u32 s{sT[2]}, s{sHO}, {65536 - 16384*b}\nbuffer_store_dwordx4 {vr(ACC[0]+16*b,4)}, v{vST}, {srd(SWS)}, s{sT[2]} offen sc1", None))
    else:
        qa = [f"s_add_u32 s{sT[8]}, s{sT[4]}, {WS_Q + 4096}\ns_add_u32 s{sT[4]}, s{sT[4]}, {WS_Q}"]
        if P == 'K': qa += [f"v_mul_f32 v{ACCE+r}, {fbits(QS):#x}, v{ACCE+r}" for r in range(4)]
        sts = []
        if P in 'KV':
            qa += [f"v_cvt_pk_bf16_f32 v{vGT}, v{ACCE}, v{ACCE+1}", f"v_cvt_pk_bf16_f32 v{vGT+1}, v{ACCE+2}, v{ACCE+3}"]
            sts.append(f"buffer_store_dwordx2 {vr(vGT,2)}, v{vSA}, {srd(SWS)}, s{sEXW} offen sc1")
        if P == 'P':
            sts.append(f"s_andn2_b32 s{sT[0]}, s{sF2}, 127\nv_lshlrev_b32 v{t2}, 2, v{L}\ns_mov_b32 exec_hi, 0\nbuffer_store_dword v{vZ}, v{t2}, {srd(SWS)}, s{sT[0]} offen sc1\ns_mov_b32 exec_hi, -1")
        def qcv(i): return [f"v_cvt_pk_bf16_f32 v{ACC[0]+8*i+j}, v{ACC[0]+8*i+2*j}, v{ACC[0]+8*i+2*j+1}" for j in range(4)]
        def qst(i): return to_frag(ACC[0] + 8 * i) + [f"buffer_store_dwordx4 {vr(ACC[0]+8*i,4)}, v{vST}, {srd(SWS)}, s{sT[8 if i & 1 else 4]} offen offset:{1024*(i>>1)} sc1"]
        mark = [lambda: box.update(q=a.lastvm())]
        T = lambda l: [(x, None) for x in l]
        if OPT['qmode'] == 0 and OPT['pb']:
            pre8 += T(qa + qcv(0) + qcv(1) + qcv(2) + qcv(3) + [x for i in range(4) for x in qst(i)[:2]])
            if OPT.get('pbq'): pre8 += T(sts + [qst(i)[2] for i in range(4)]) + mark
            else: win[16] += T(sts + [qst(i)[2] for i in range(2)]); win[17] += T([qst(i)[2] for i in range(2, 4)]) + mark
        elif OPT['qmode'] == 0:
            win[16] += T(qa + sts + qcv(0) + qcv(1) + qst(0) + qst(1)); win[17] += T(qcv(2) + qcv(3) + qst(2) + qst(3)) + mark
        elif OPT['qmode'] == 1:
            win[16] += T(qa + qcv(0) + qcv(1)); win[18] += T(sts + qst(0) + qcv(2)); win[20] += T(qcv(3) + qst(1) + qst(2) + qst(3)) + mark
        else:
            win[16] += T(qa + qcv(0) + qcv(1) + qcv(2) + qcv(3)); win[18] += T(sts + qst(0) + qst(1) + qst(2) + qst(3)) + mark
        def qflag():
            assert a.vm_done > box['s0']
            if P != 'P': s0_check(P)
            a(f"""
            s_lshl4_add_u32 s{sT[0]}, s{sQ}, s{sTI}
            s_lshl_b32 s{sT[0]}, s{sT[0]}, 7
            s_add_u32 s{sT[0]}, s{sT[0]}, {WS_F1}
            s_lshl_b32 s{sT[1]}, s{sW}, 24
            s_add_u32 s{sT[0]}, s{sT[0]}, s{sT[1]}
            v_mov_b32 v{t1}, 1
            s_mov_b64 exec, 1
            buffer_store_dword v{t1}, v{vZ}, {srd(SWS)}, s{sT[0]} offen sc1
            s_mov_b64 exec, -1
            """)
        if P != 'P': box['flag'] = qflag
    if P == 'S':
        win[16] = [(x, None) for x in (f"v_mul_f32 v{t2}, {fbits(-math.log2(math.e)):#x}, v{ACCE}", f"v_exp_f32 v{t2}, v{t2}", f"v_add_f32 v{t2}, 1.0, v{t2}", f"v_rcp_f32 v{t2}, v{t2}")] + win[16]
        win[20].append((f"s_mov_b64 exec, 0xffff\nbuffer_store_dword v{t2}, v{vSA}, {srd(SWS)}, s{sEXW} offen sc1\ns_mov_b64 exec, -1", None))
    if OPT['clw'] <= 32:
        win[nxt(max(OPT['clw'], max(24, 2 * QF + 1) if ISQ else 0))].append(
            (f"v_mov_b32 v24, -1\nv_mov_b32 v25, -1\nv_mov_b32 v26, -1\nv_mov_b32 v27, -1\nbuffer_store_dwordx4 v[24:27], v{vL16}, {srd(SWS)}, s{sT[9]} offen sc1", None))
    queue = setup_queue()
    ws = [c for c in range(21 if ISQ else 20, 2 * S1 - 1) if usable(c)]
    for k, c in enumerate(ws):
        left = [x for x in queue if 2 * x[0] - 2 <= c]
        take = min(len(left), -(-len(queue) // (len(ws) - k)))
        win[c] += [(x[1], None) for x in left[:take]]; queue = queue[take:]
    assert not queue
    win[16].insert(0, (f"v_subrev_u32 v{vXR[0]}, {WR}, v{vWR[0]}\nv_subrev_u32 v{vXR[1]}, {WR}, v{vWR[1]}\nv_add_u32 v{vXR[2]}, {WR}, v{vWR[0]}\nv_add_u32 v{vXR[3]}, {WR}, v{vWR[1]}", None))

    def cluster(c, what='mr'):
        M = mfmas(c >> 1, c & 1) if (c >= 0 and 'm' in what) else []
        em = e_mfmas(c) if M else []
        for i, x in enumerate(em): M.insert(1 + (8 // len(em) + 1) * i, x)
        d = c + 1
        R = []
        if d < 32 and 'r' in what:
            if d < 16: R += x_reads(d >> 1, d & 1)
            for i in range(4): R += w_reads(d >> 1, d & 1, i)
            R += e_reads(d)
        a.wait(a.lastlg())
        if M: a("s_setprio 2")
        n = max(len(M), 1); k = 0
        last = n - 1 if (c & 1 or ((c >> 1) + 1) not in bars) else n - 2
        for i in range(n):
            if M: a(M[i])
            want = len(R) if i >= last else -(-len(R) * (i + 1) // (last + 1))
            while k < want: a(R[k]); k += 1
        if M: a("s_setprio 0")

    for sig in range(16):
        if sig == 8 and OPT['pb']:
            cluster(15, 'm')
            for it in pre8: emit(it)
        if sig in bars:
            if sig in cover or sig < 8: a.wait(tok[cover.get(sig, sig)])
            if ISQ and sig == QF: a.wait(box['q'])
            if sig == S1 and P != 'P': s1_check(P)
            a("s_barrier")
            if sig == QF and 'flag' in box: box['flag']()
        if sig == 1: stamp(1)
        if sig == 8: stamp(2)
        if sig < 11: stamp(sig, 1)
        if sig < 5: stamp(5 + sig, 5)
        if sig >= 6: stamp(sig - 6, 2)
        D = []
        if P == 'C' and sig == 2:
            assert a.vm_done >= ctok[1]
            win[4].append((f"v_mov_b32 v{t0}, 1\ns_mov_b64 exec, 1\nbuffer_store_dword v{t0}, v{vZ}, {srd(SDBG)}, 0 offen sc1\ns_mov_b64 exec, -1", None))
        for sg in sched.get(sig, []): D += dma_groups(sg)
        if sig == S1: D += [(x, None) for x in first_loads()]
        if sig == (7 if ISQ else 9) and P != 'P':
            def s0_load():
                if not ISQ:
                    a(f"s_cmp_lg_u32 s{sW}, 0\ns_cbranch_scc1 L_nos0l{P}\nbuffer_load_dword v{vS0}, v{vZ}, {srd(SDBG)}, 0 offen sc1\nL_nos0l{P}:")
                    a.vm -= 1
                else:
                    a(f"buffer_load_dword v{vS0}, v{vZ}, {srd(SDBG)}, 0 offen sc1")
                box['s0'] = a.vm
            D.insert(len(D) - 1, s0_load)
        head, mid, tail = [], D, []
        if sig < OPT['late']: mid, tail = [], D
        elif (sig + 1) not in bars: mid, tail = D[:len(D)//2], D[len(D)//2:]
        elif sig in bars and len(D) >= 4: head, mid = D[:OPT['na']], D[OPT['na']:]
        for it in head: emit(it)
        cluster(2 * sig - 1, 'r' if (sig == 8 and OPT['pb']) else 'mr')
        if sig == S1 - 1 and P != 'P':
            assert a.vm_done > box['s0']
            s1_issue(P)
        for it in front.get(2 * sig, []) + mid + win[2 * sig]: emit(it)
        cluster(2 * sig)
        for it in front.get(2 * sig + 1, []) + tail + win[2 * sig + 1]: emit(it)
    a.wait(a.lastlg())
    assert not win[32]

setup_common()
dispatch()
proj_path('G')
a("L_join:")
a.forget()

for m in mfmas(15, 1): a(m)
stamp(3); stamp(10, 2)
stamp(5, 3)
if OPT['s1'] == 16:
    s1_check('J')
    stamp(6, 3)
    a("s_barrier")
    stamp(7, 3)
    for x in first_loads(): a(x)
stamp(4); stamp(8, 3)
for b in range(2):
    for jp in range(2):
        g0 = gelu_pair(ACC[1] + 16 * b, 2 * jp, vGT, pk=OPT['pk2']); g1 = gelu_pair(ACC[1] + 16 * b, 2 * jp + 1, t0, pk=OPT['pk2'])
        for x, y in zip(g0, g1):
            a(x); a(y)
        if b == 1 and jp == 0:
            for x in to_frag(ACC[1]): a(x)
a(f"s_mov_b32 s{sT[7]}, s{sT[9]}\ns_mov_b32 s{sT[8]}, 0xffff\ns_mov_b32 s{sT[9]}, 0xffff")
for x in to_frag(ACC[1] + 16): a(x)
stamp(9, 3)
a.wait_vm0()
a("s_barrier")
stamp(5); stamp(10, 3)

def qk(S, Q): return f"v_mfma_f32_32x32x16_bf16 {vr(S,16)}, {vr(KF,4)}, {vr(Q,4)}, 0"
def pv(O, V, S): return f"v_smfmac_f32_32x32x32_bf16 {vr(O,16)}, {vr(V,4)}, {vr(S,8)}, v{vIDX}"
NT, B1, B2 = 32, 8, OPT['b2']
def rec(t): return (t % NSLOT) * 2048
def rdK(t): return a(f"ds_read_b128 {vr(KF,4)}, v{vAK} offset:{rec(t)}")
def rdV(t2, t1):
    a(f"s_mov_b64 exec, s[{sT[8]}:{sT[9]}]")
    if t2 is not None: a(f"ds_read_b128 {vr(V2,4)}, v{vAV} offset:{rec(t2) + 1536}")
    if t1 is not None: a(f"ds_read_b128 {vr(V1[t1&1],4)}, v{vAV} offset:{rec(t1) + 1024}")
    a("s_mov_b64 exec, -1")
    return a.lastlg()
wtok, htok, rtok, box = {}, {}, {}, {}
m0own = [None]
def w_off(u): return sR[u & 3] if u < 14 else sWOF
def w_load_a(u):
    a(f"s_add_u32 m0, s{sRING}, {(u & 3) * 2048}"); m0own[0] = ('w', u)
    if 0 < u < 14: a(f"s_sub_u32 s{sR[u&3]}, s{sR[(u-1)&3]}, 16384\ns_cselect_b32 s{sR[u&3]}, {13*16384}, s{sR[u&3]}")
    elif u == 14: a(f"s_lshl_b32 s{sWOF}, s{sU}, 14")
    elif u > 14: a(f"s_add_u32 s{sWOF}, s{sWOF}, 16384\ns_and_b32 s{sWOF}, s{sWOF}, 0xffff")
    a(f"buffer_load_dwordx4 v{vDS}, {srd(SWD if u < 14 else SWO)}, s{w_off(u)} offen lds")
def w_load_b(u):
    assert m0own[0] == ('w', u)
    wtok[u] = a(f"buffer_load_dwordx4 v{vDS1}, {srd(SWD if u < 14 else SWO)}, s{w_off(u)} offen offset:1024 lds")
def h_load_a(u):
    assert u in wtok and (u + 4) not in wtok
    a(f"buffer_load_dwordx4 {vr(HF[u&3],4)}, v{vH0}, {srd(SWS)}, s{sR[u&3]} offen sc1")
def h_load_b(u):
    assert m0own[0] != ('w', u + 4) and (u + 4) not in wtok
    htok[u] = a(f"buffer_load_dwordx4 {vr(HF[u&3]+4,4)}, v{vH1}, {srd(SWS)}, s{sR[u&3]} offen sc1")
def w_read(u, b):
    if b == 0: a.wait(wtok[u], htok[u])
    for e in range(2):
        rtok[u, b] = a(f"ds_read_b64_tr_b16 {vr(WF[u&1] + 4*b + 2*e, 2)}, v{(vDR0, vDR1)[b]} offset:{(u & 3) * 2048 + e*512}")
def d_mfma(u, k):
    tb, b = k >> 1, k & 1
    a.wait(rtok[u, 1])
    d = vr(DACC + 32 * tb + 16 * b, 16)
    a(f"v_mfma_f32_32x32x16_bf16 {d}, {vr(WF[u&1]+4*b,4)}, {vr(HF[u&3]+4*tb,4)}, {'0' if u == 0 else d}")

if OPT.get('x_now'):
    def w_load_a(u): pass
    def w_load_b(u): wtok[u] = None
if OPT.get('x_noh'):
    def h_load_a(u): pass
    def h_load_b(u): htok[u] = None
if OPT.get('x_noread'):
    def w_read(u, b): rtok[u, b] = None
ev, mf = {}, {}
SNAP = OPT.get('snap', 1)
B1P = 32 * (B1 - 1) + 11
EV, EVA, EK, EKA = OPT.get('ev', 5), OPT.get('eva', 0), OPT.get('ek', 11), OPT.get('eka', 0)
busy = {32 * t + o for t in range(NT) for o in (EV, EK, 18)}
def nextpos(p):
    while SNAP and (p & 15) not in (2, 5, 8, 11, 14): p += 1
    return p
def at(pos, f, limit=None):
    p = nextpos(pos)
    while SNAP and limit is not None and p in busy and nextpos(p + 1) <= limit: p = nextpos(p + 1)
    busy.add(p)
    ev.setdefault(p, []).append(f)
    return p
def h_store(b): box['h'] = a((f"s_add_u32 s{sHO}, s{sHO}, 16384\n" if b else "") + f"buffer_store_dwordx4 {vr(ACC[1]+16*b,4)}, v{vST}, {srd(SWS)}, s{sHO} offen sc1")
def late_store(k):
    if k == 2:
        a(f"v_mov_b32 v24, -1\nv_mov_b32 v25, -1\nv_mov_b32 v26, -1\nv_mov_b32 v27, -1\nbuffer_store_dwordx4 v[24:27], v{vL16}, {srd(SWS)}, s{sT[7]} offen sc1")
        return
    a(f"""
    s_cmp_eq_u32 s{sU}, 0
    s_cbranch_scc1 L_nols{k}
    s_sub_u32 s{sT[2]}, s{sHO}, {65536 - 16384*k}
    buffer_store_dwordx4 {vr(ACC[0]+16*k,4)}, v{vST}, {srd(SWS)}, s{sT[2]} offen sc1
    L_nols{k}:
    """)
    a.vm -= 1
pp = OPT.get('p_st', 1); STS = OPT.get('p_sts', 1)
for k in list(range(OPT['nearly'], 2)) + ([2] if OPT['clw'] > 32 else []):
    pp = at(pp, lambda k=k: late_store(k), pp + 12) + STS
pp = at(pp, lambda: h_store(0), pp + 12) + STS
pp = at(pp, lambda: h_store(1), pp + 12)
assert pp < OPT['p_flag']
def kv_emit(m, i):
    if i == 0: m0own[0] = ('kv', m)
    assert m0own[0] == ('kv', m)
    kvtok[m] = a(kv_step(m)[i])
for m in range(KV_FIRST, 8):
    p = OPT['p_kv'] + OPT['p_kvs'] * (m - KV_FIRST) if m < 6 else OPT['p_kv2'] + 20 * (m - 6)
    p = at(p, lambda m=m: kv_emit(m, 0), p + 8)
    at(p + 1, lambda m=m: kv_emit(m, 1), p + 9)
assert OPT['p_kv2'] > B1P
def h_flag():
    a.wait(box['h'])
    a(f"v_mov_b32 v{t0}, 1\ns_mov_b64 exec, 1\nbuffer_store_dword v{t0}, v{vZ}, {srd(SWS)}, s{sF2} offen sc1\ns_mov_b64 exec, -1")
at(OPT['p_flag'], h_flag, OPT['p_flag'] + 8)
def f2_load():
    box['f2'] = a(f"s_mov_b32 exec_hi, 0\nbuffer_load_dwordx4 {vr(F2D,4)}, v{vF2}, {srd(SWS)}, s{sF2R} offen sc1")
    a("s_mov_b32 exec_hi, -1")
at(OPT['p_f2'], f2_load, OPT['p_f2'] + 8)
def f2_check():
    a.wait(box['f2'])
    a(f"""
    s_mov_b32 s{sT[1]}, 0
    s_mov_b32 exec_hi, 0
    L_s2poll:
    v_min3_u32 v{F2D}, v{F2D}, v{F2D+1}, v{F2D+2}
    v_min_u32 v{F2D}, v{F2D}, v{F2D+3}
    v_cmp_ne_u32 vcc, 1, v{F2D}
    s_cbranch_vccz L_s2done
    buffer_load_dwordx4 {vr(F2D,4)}, v{vF2}, {srd(SWS)}, s{sF2R} offen sc1
    s_add_u32 s{sT[1]}, s{sT[1]}, 1
    s_cmp_lt_u32 s{sT[1]}, {SPIN}
    s_waitcnt vmcnt(0)
    s_cbranch_scc1 L_s2poll
    L_s2done:
    s_mov_b32 exec_hi, -1
    """)
    a.vm -= 1
    a(f"buffer_load_dword v{vG}, v{vG}, {srd(SWS)}, s{sGA} offen sc1")
    stamp(9)
PCHK = at(OPT['p_chk'], f2_check, OPT['p_chk'] + 8)
D0, DE = OPT['d0'], OPT['dend']
allsl = [32 * t + o for t in range(D0, DE) for o in (8, 14, 24, 30)]
assert len(allsl) >= 56
slots = [allsl[(i * len(allsl)) // 56] for i in range(56)]
for u in range(14):
    rp = slots[0] - 16 if u == 0 else slots[4 * u - 2] + 1
    lim = slots[4 * u] - 9
    p = at(rp, lambda u=u: w_read(u, 0), lim - 3); at(p + 1, lambda u=u: w_read(u, 1), lim)
    for k in range(4): mf[slots[4 * u + k]] = (lambda u=u, k=k: d_mfma(u, k))
for u in range(18):
    pw = OPT['p_fill'] + OPT['p_fills'] * u if u < 4 else slots[4 * (u - 4)] + 1
    p = at(pw, lambda u=u: w_load_a(u), pw + 8); p = at(p + 1, lambda u=u: w_load_b(u), p + 8)
    if u < 3:
        ph = PCHK + 1 + OPT.get('p_hs', 13) * u
        p = at(ph, lambda u=u: h_load_a(u), ph + 4); at(p + 1, lambda u=u: h_load_b(u), p + 5)
    if 4 <= u < 15:
        p = at(p + 1, lambda u=u: h_load_a(u - 1), p + 8); at(p + 1, lambda u=u: h_load_b(u - 1), p + 8)
for lo, hi, fr in ((0, B1P, (OPT.get('la1', 30), OPT.get('la2', 70), OPT.get('la3', 94))), (B1P, 32 * B2, (OPT.get('lb1', 35), OPT.get('lb2', 80), OPT.get('lb3', 96))),
                   (32 * B2, 32 * NT, (OPT.get('lc1', 60), OPT.get('lc2', 87), OPT.get('lc3', 96)))):
    for k in range(3): at(lo + ((hi - lo) * fr[k]) // 100, lambda k=k: a(f"s_setprio {2-k}"))

def merge_addr():
    a(f"""
    s_mul_i32 s{sT[0]}, s{sW}, 2304
    s_add_u32 s{sT[0]}, s{sT[0]}, {MERGE}
    s_xor_b32 s{sT[1]}, s{sW}, 4
    s_mul_i32 s{sT[1]}, s{sT[1]}, 2304
    s_add_u32 s{sT[1]}, s{sT[1]}, {MERGE}
    v_add_u32 v{t0}, s{sT[0]}, v{vL16}
    v_add_u32 v{t1}, s{sT[1]}, v{vL16}
    v_lshl_add_u32 v{t2}, v{L}, 2, s{sT[0]}
    v_lshl_add_u32 v{t3}, v{L}, 2, s{sT[1]}
    s_add_u32 s{sOO}, s{sOO}, {WS_O}
    s_mov_b32 s{sT[6]}, {fbits(2.0**-60):#x}
    s_mov_b32 s{sT[7]}, {fbits(2.0**60) - fbits(2.0**-60):#x}
    """)
at(32 * NT - 11, merge_addr)
at(32 * NT - 8, lambda: a(f"ds_write_b128 v{t0}, {vr(OA,4)}\nds_write_b128 v{t0}, {vr(OA+4,4)} offset:1024\nds_write_b32 v{t2}, v{OA+8} offset:2048"))

a("s_setprio 3")
tK = rdK(0); tV = rdV(None, 0)
a.wait(tK)
a(qk(SA, QA))
for t in range(NT):
    if t == B2:
        a.wait(kvtok[7]); a("s_barrier\ns_setprio 3"); stamp(0)
    nx = t + 1 if t + 1 < NT else None
    for ph, (S, So, O, Oo, Qo) in enumerate(((SA, SB, OA, OB, QB), (SB, SA, OB, OA, QA))):
        for e in range(16):
            pos = 32 * t + 16 * ph + e
            def own(after):
                global tV, tK
                if ph == 0 and (e, after) == (EV, EVA):
                    if t == 0: a.wait(tV)
                    tV = rdV(t, nx if t != B1 - 1 else None)
                if ph == 0 and (e, after) == (EK, EKA) and nx and t != B1 - 1: tK = rdK(nx)
            for f in ev.pop(pos, []): f()
            own(0)
            if pos == B1P:
                a.wait(kvtok[5], tV); a("s_barrier\ns_setprio 3"); stamp(6)
                tK = rdK(nx); tV = rdV(None, nx)
            if e == 2:
                if ph == 1: a.wait(tV, None if OPT.get('w2') else tK)
                if t > 0 or ph == 1: a(pv(Oo, V2, So + 8))
            if (e == 5 and not (t == 0 and ph == 0)) or (t == 0 and ph == 0 and e == 0):
                if ph == 1: a.wait(tK)
                if ph == 0 or nx: a(qk(So, Qo))
            if e == 11: a(pv(O, V1[t & 1], S))
            if pos in mf: mf.pop(pos)()
            own(1)
            a(f"v_exp_f32 v{S+e}, v{S+e}")
assert not mf
assert not ev, sorted(ev)
a.wait_lg0()
a(pv(OB, V2, SB + 8))
stamp(7); stamp(0, 4)
a("s_barrier")
stamp(1, 4)
a(f"""
ds_read_b32 v{SA+8}, v{t3} offset:2048
ds_read_b128 {vr(SA,4)}, v{t1}
ds_read_b128 {vr(SA+4,4)}, v{t1} offset:1024
s_lshl_b32 s{sT[3]}, s{sW}, 13
s_xor_b32 s{sT[2]}, s{sT[3]}, 8192
v_add_u32 v24, s{sT[2]}, v{vL16}
v_add_u32 v26, s{sT[3]}, v{vL16}
s_waitcnt lgkmcnt(2)
v_add_f32 v{OB+8}, v{OB+8}, v{SA+8}
v_rcp_f32 v{t0}, v{OB+8}
""")
a.wait_lg0()
OS = 128
for j in range(2): a(f"v_pk_add_f32 {vr(OB+2*j,2)}, {vr(OB+2*j,2)}, {vr(SA+2*j,2)}")
a(f"v_mul_f32 v{t0}, v{t0}, v{vG}")
for j in range(2, 4): a(f"v_pk_add_f32 {vr(OB+2*j,2)}, {vr(OB+2*j,2)}, {vr(SA+2*j,2)}")
for j in range(4): a(f"v_pk_mul_f32 {vr(OB+2*j,2)}, {vr(OB+2*j,2)}, {vr(t0,2)} op_sel_hi:[1,0]")
a(f"""
v_pk_add_f32 {vr(t2,2)}, {vr(OB,2)}, {vr(OB+2,2)}
v_pk_add_f32 {vr(t0,2)}, {vr(OB+4,2)}, {vr(OB+6,2)}
v_cvt_pk_bf16_f32 v{OS}, v{OB}, v{OB+1}
v_pk_add_f32 {vr(t2,2)}, {vr(t2,2)}, {vr(t0,2)}
v_cvt_pk_bf16_f32 v{OS+1}, v{OB+2}, v{OB+3}
v_add_f32 v{t2}, v{t2}, v{t3}
v_cvt_pk_bf16_f32 v{OS+2}, v{OB+4}, v{OB+5}
v_fma_f32 v{t2}, v{t2}, 0, v{OB+8}
v_cvt_pk_bf16_f32 v{OS+3}, v{OB+6}, v{OB+7}
v_subrev_u32 v{t2}, s{sT[6]}, v{t2}
v_cmp_lt_u32 vcc, s{sT[7]}, v{t2}
""")
if OPT['force_fb']: a("s_mov_b64 vcc, -1")
a(f"""
s_cbranch_vccnz L_true_max
L_norm:
buffer_store_dwordx4 {vr(OS,4)}, v{vL16}, {srd(SWS)}, s{sOO} offen sc1
""")
stamp(8); stamp(2, 4)

OF, WOF, XT = 32, 176, 96
vO1 = 27
fill = f"""
s_andn2_b32 s{sT[2]}, s{sRING}, 8192
v_add_u32 v28, s{sT[2]}, v{vTRP}
v_xor_b32 v29, 64, v28
v_sub_f32 v{vG}, 1.0, v{vG}
v_add_u32 v{vO1}, 4096, v{vL16}
s_and_b32 s{sT[1]}, s{sW}, 1
s_lshl1_add_u32 s{sT[0]}, s{sI}, s{sT[1]}
s_lshr_b32 s{sT[1]}, s{sW}, 1
s_lshl2_add_u32 s{sT[0]}, s{sT[0]}, s{sT[1]}
s_lshl_b32 s{sT[0]}, s{sT[0]}, 13
s_add_u32 s{sT[0]}, s{sT[0]}, {WS_O}
""".strip().split('\n')
for v in range(4):
    fill += f"s_add_u32 s{sT[1]}, s{sU}, {v}\ns_and_b32 s{sT[1]}, s{sT[1]}, 3\ns_lshl_b32 s{sT[1]}, s{sT[1]}, 10\ns_add_u32 s{sT[4+v]}, s{sT[0]}, s{sT[1]}".split('\n')
fill += f"""
v_and_b32 v{t0}, 31, v{L}
v_lshrrev_b32 v{t1}, 5, v{L}
v_and_b32 v{t2}, 7, v{L}
v_xor_b32 v{t1}, v{t1}, v{t2}
v_lshlrev_b32 v{t1}, 4, v{t1}
v_lshl_add_u32 v{t0}, v{t0}, 8, v{t1}
v_add_u32 v9, s{sT[3]}, v{t0}
v_xor_b32 v10, 32, v9
v_xor_b32 v11, 64, v9
v_xor_b32 v12, 0x60, v9
v_lshrrev_b32 v{t0}, 3, v{L}
v_lshlrev_b32 v{t1}, 1, v{t2}
v_xor_b32 v{t1}, v{t1}, v{t0}
v_lshlrev_b32 v{t1}, 4, v{t1}
v_lshl_add_u32 v{t1}, v{t0}, 8, v{t1}
v_add_u32 v1, s{sMX}, v{t1}
v_xor_b32 v2, 16, v1
s_lshl3_add_u32 s{sT[3]}, s{sI}, s{sW}
s_lshl_b32 s{sT[3]}, s{sT[3]}, 6
s_add_u32 s{sT[3]}, s{sT[3]}, s{sJ}
s_lshl_b32 s{sT[3]}, s{sT[3]}, 7
v_lshlrev_b32 v{t2}, 4, v{t2}
v_lshl_add_u32 v5, v{t0}, 10, v{t2}
s_mov_b32 s{sT[2]}, 0
""".strip().split('\n')
for j in range(8):
    a(f"ds_write_b128 v24, {vr(DACC+32+4*j,4)} offset:{1024*j}")
    for x in fill[len(fill) * j // 8: len(fill) * (j + 1) // 8]: a(x)
def o_loads():
    for v in range(8):
        a(f"buffer_load_dwordx4 {vr(OF + 4*v, 4)}, v{vO1 if v >> 2 else vL16}, {srd(SWS)}, s{sT[4 + (v&3)]} offen sc1")
stamp(3, 4)
a.wait(wtok[17], a.lastlg())
a(f"s_cmp_ge_u32 s{sW}, 4")
a("s_barrier")
stamp(4, 4)
a("s_setprio 1\ns_cbranch_scc1 L_ol1\ns_setprio 0")
o_loads()
a("L_ol1:")
xt = [a(f"ds_read_b128 {vr(XT+4*j,4)}, v26 offset:{1024*j}") for j in range(8)]
def wo_read(v):
    slot = ((14 + v) & 3) * 2048 + (v >> 2) * 8192
    for b in range(2):
        for e in range(2):
            a(f"ds_read_b64_tr_b16 {vr(WOF + 8*v + 4*b + 2*e, 2)}, v{28 + b} offset:{slot + e*512}")
for j in range(8):
    a.wait(xt[j])
    for i in range(2):
        r = 4 * j + 2 * i
        a(f"v_pk_add_f32 {vr(DACC+r,2)}, {vr(DACC+r,2)}, {vr(XT+r,2)}")
    for i in range(2):
        r = 4 * j + 2 * i
        a(f"v_pk_mul_f32 {vr(DACC+r,2)}, {vr(DACC+r,2)}, {vr(vG,2)} op_sel_hi:[1,0]")
stamp(5, 4)
a("s_setprio 0\ns_cbranch_scc0 L_ol2")
o_loads()
a("L_ol2:")
for j in range(8): wo_read(j)
stamp(6, 4)
a("L_s3poll:")
a.wait_vm0()
a(f"v_max_u32 v{t0}, v{OF}, v{OF+1}\nv_max_u32 v{t1}, v{OF+2}, v{OF+3}")
for j in range(2, 16): a(f"v_max3_u32 v{t0 + (j&1)}, v{t0 + (j&1)}, v{OF+2*j}, v{OF+2*j+1}")
a(f"""
v_max_u32 v{t0}, v{t0}, v{t1}
v_cmp_eq_u32 vcc, -1, v{t0}
s_cbranch_vccnz L_s3retry
L_s3done:
""")
stamp(10); stamp(7, 4)
a.wait_lg0()
def fin_write(b, qd): a(f"ds_write_b128 v{9+qd}, {vr(DACC + 16*b + 4*qd, 4)} offset:{b*128}")
for b in range(2):
    for v in range(8):
        d = vr(DACC + 16 * b, 16)
        a(f"v_mfma_f32_32x32x16_bf16 {d}, {vr(WOF+8*v+4*b,4)}, {vr(OF+4*v,4)}, {d}")
        if b == 1 and v < 3: a("s_nop 2")
        if b == 1 and 3 <= v < 7: fin_write(0, v - 3)
stamp(8, 4)
for qd in range(4): fin_write(1, qd)
a.wait_lg0()
a("s_barrier")
stamp(9, 4)
RD = 176
rt = []
for p in range(4):
    for e in range(2):
        rt.append(a(f"ds_read_b128 {vr(RD + 8*p + 4*e, 4)}, v{1 + e} offset:{p*16384}"))
for p in range(1, 4):
    a.wait(rt[2 * p + 1])
    for j in range(4):
        a(f"v_pk_add_f32 {vr(RD+2*j,2)}, {vr(RD+2*j,2)}, {vr(RD+8*p+2*j,2)}")
for j in range(4): a(f"v_cvt_pk_bf16_f32 v{RD+j}, v{RD+2*j}, v{RD+2*j+1}")
a(f"buffer_store_dwordx4 {vr(RD,4)}, v5, {srd(SOUT)}, s{sT[3]} offen {['', 'sc1'][OPT['outm']]}")
stamp(10, 4)
if OPT['stamp']:
    a("s_waitcnt vmcnt(0)")
    stamp(11)
    a("s_waitcnt lgkmcnt(0)")
    a(f"s_mov_b32 s28, s{sT[2]}")
    if 'dk' in OPT:
        a(f"""
        s_cmp_lg_u32 s{sW}, {OPT.get('dw', 7)}
        s_cbranch_scc1 L_end
        s_lshl_b32 s{sT[0]}, s2, 2
        s_add_u32 s{sT[0]}, s{sT[0]}, {WS_STAMP}
        v_mov_b32 v2, s{4+2*OPT['dk']}
        v_mov_b32 v1, 0
        buffer_store_dword v2, v1, {srd(SWS)}, s{sT[0]} offen sc1
        s_cmp_lg_u32 s2, 0
        s_cbranch_scc1 L_end
        L_pad0:
        s_memrealtime s[{sT[2]}:{sT[3]}]
        s_waitcnt lgkmcnt(0)
        s_sub_u32 s{sT[2]}, s{sT[2]}, s30
        s_cmp_lt_u32 s{sT[2]}, 5000
        s_cbranch_scc1 L_pad0
        v_mul_u32_u24 v1, {4*OPT['dstride']}, v{L}
        s_mov_b32 s{sT[0]}, {WS_STAMP + 4*OPT['dbase']}
        buffer_load_dword v2, v1, {srd(SWS)}, s{sT[0]} offen sc1
        s_waitcnt vmcnt(0)
        v_subrev_u32 v2, s30, v2
        v_add_u32 v2, 100000, v2
        s_mov_b32 s{sT[4]}, 0
        s_mov_b32 s{sT[5]}, -1
        """)
        for i in range(OPT['dn']): a(f"v_readlane_b32 s{sT[6]}, v2, {i}\ns_nop 1\ns_max_u32 s{sT[4]}, s{sT[4]}, s{sT[6]}\ns_min_u32 s{sT[5]}, s{sT[5]}, s{sT[6]}")
        a(f"""
        s_sub_u32 s{sT[0]}, s{sT[4]}, s{sT[5]}
        s_min_u32 s{sT[0]}, s{sT[0]}, 2000
        s_mul_i32 s{sT[0]}, s{sT[0]}, 10
        s_add_u32 s{sT[0]}, s{sT[0]}, 6000
        L_pad:
        s_memrealtime s[{sT[2]}:{sT[3]}]
        s_waitcnt lgkmcnt(0)
        s_sub_u32 s{sT[2]}, s{sT[2]}, s30
        s_cmp_lt_u32 s{sT[2]}, s{sT[0]}
        s_cbranch_scc1 L_pad
        """)
    elif 'pad' in OPT:
        K = OPT['pad']
        a(f"s_and_b32 s{sT[0]}, s2, {OPT.get('padm', 0)}\ns_cmp_lg_u32 s{sT[0]}, {OPT.get('padv', 0)}\ns_cbranch_scc1 L_end")
        if K >= 0: a(f"s_sub_u32 s{sT[0]}, s{4+2*K}, s{4+2*OPT.get('padb', 13)}\ns_mul_i32 s{sT[0]}, s{sT[0]}, {OPT.get('padx', 4)}")
        else: a(f"s_mov_b32 s{sT[0]}, 0")
        a(f"""
        s_add_u32 s{sT[0]}, s{sT[0]}, 6000
        L_pad:
        s_memrealtime s[{sT[2]}:{sT[3]}]
        s_waitcnt lgkmcnt(0)
        s_sub_u32 s{sT[2]}, s{sT[2]}, s30
        s_cmp_lt_u32 s{sT[2]}, s{sT[0]}
        s_cbranch_scc1 L_pad
        """)
    else:
        a(f"s_lshl3_add_u32 s{sT[0]}, s2, s{sW}\ns_lshl_b32 s{sT[0]}, s{sT[0]}, 6\ns_add_u32 s{sT[0]}, s{sT[0]}, {WS_STAMP}")
        a("v_mov_b32 v1, 0\ns_mov_b64 exec, 1")
        for k in range(14):
            a(f"v_mov_b32 v2, s{4+2*k}\nbuffer_store_dword v2, v1, {srd(SWS)}, s{sT[0]} offen offset:{4*k}")
a("L_end:\ns_endpgm")
a("L_s3retry:")
o_loads()
a(f"""
s_add_u32 s{sT[2]}, s{sT[2]}, 1
s_cmp_lt_u32 s{sT[2]}, {SPIN}
s_cbranch_scc1 L_s3poll
s_waitcnt vmcnt(0)
s_branch L_s3done
""")

for P in 'KVPSC':
    a(f".p2align 6\nL_path{P}:")
    a.forget()
    proj_path(P)
    a("s_branch L_join")
for x in cold: a(x)

CM = SB
a(f"""
L_true_max:
s_waitcnt vmcnt(0) lgkmcnt(0)
v_mov_b32 v{t0}, 0xff800000
s_mov_b32 s{sT[0]}, {WS_KV}
L_tm1:
buffer_load_dwordx4 {vr(KF,4)}, v{vL16}, {srd(SWS)}, s{sT[0]} offen sc1
s_waitcnt vmcnt(0)
{qk(SA, QB)}
""")
for j in range(8): a(f"v_max3_f32 v{t0}, v{t0}, v{SA+2*j}, v{SA+2*j+1}")
a(f"""
s_add_u32 s{sT[0]}, s{sT[0]}, 2048
s_cmp_lt_u32 s{sT[0]}, {WS_KV + 64*2048}
s_cbranch_scc1 L_tm1
v_mov_b32 v{t1}, v{t0}
v_permlane32_swap_b32 v{t0}, v{t1}
v_max_f32 v{t0}, v{t0}, v{t1}
""")
for r in range(16): a(f"v_sub_f32 v{CM+r}, 0, v{t0}\nv_mov_b32 v{OB+r}, 0")
a(f"""
s_mov_b32 s{sT[0]}, {WS_KV}
L_tm2:
buffer_load_dwordx4 {vr(KF,4)}, v{vL16}, {srd(SWS)}, s{sT[0]} offen sc1
s_mov_b64 exec, s[{sT[8]}:{sT[9]}]
buffer_load_dwordx4 {vr(V1[0],4)}, v{vPV}, {srd(SWS)}, s{sT[0]} offen offset:1024 sc1
buffer_load_dwordx4 {vr(V2,4)}, v{vPV}, {srd(SWS)}, s{sT[0]} offen offset:1536 sc1
s_mov_b64 exec, -1
s_waitcnt vmcnt(0)
v_mfma_f32_32x32x16_bf16 {vr(SA,16)}, {vr(KF,4)}, {vr(QB,4)}, {vr(CM,16)}
""")
for e in range(16): a(f"v_exp_f32 v{SA+e}, v{SA+e}")
a(pv(OB, V1[0], SA)); a(pv(OB, V2, SA + 8))
a(f"""
s_add_u32 s{sT[0]}, s{sT[0]}, 2048
s_cmp_lt_u32 s{sT[0]}, {WS_KV + 64*2048}
s_nop 7
s_cbranch_scc1 L_tm2
s_nop 7
v_rcp_f32 v{t0}, v{OB+8}
s_nop 0
v_mul_f32 v{t0}, v{t0}, v{vG}
""")
for j in range(4): a(f"v_pk_mul_f32 {vr(OB+2*j,2)}, {vr(OB+2*j,2)}, {vr(t0,2)} op_sel_hi:[1,0]")
for j in range(4): a(f"v_cvt_pk_bf16_f32 v{OS+j}, v{OB+2*j}, v{OB+2*j+1}")
for j in range(4): a(f"v_min_u32 v{OS+j}, -2, v{OS+j}")
a("s_branch L_norm\nL_last:")

bad = a.check_branches()
assert not bad, bad

hdr = open(f'cdna_kernels/{NAME}.s.ref').read().split('\n')
head = [l for l in hdr if l.startswith(';') and '@launch' not in l]
body = a.text()
if OPT.get('stm'):
    import re
    body = re.sub(r'(buffer_store_dwordx4 .*s\[52:55\].*) sc1', lambda m: m.group(1) + [' sc1', ' sc1 nt', ' sc0 sc1', ' sc0 sc1 nt'][OPT['stm']], body)
out = "\n".join(head) + f"\n; @launch grid=(256,1,1) block=(512,1,1) lds={LDS_BYTES}\n"
out += f""".amdgcn_target "amdgcn-amd-amdhsa--gfx950"
.text
.globl {NAME}_kernel
.p2align 8
.type {NAME}_kernel,@function
{NAME}_kernel:
{body}
.section .rodata,"a"
.p2align 6
.amdhsa_kernel {NAME}_kernel
  .amdhsa_next_free_vgpr 256
  .amdhsa_next_free_sgpr 102
  .amdhsa_accum_offset 256
  .amdhsa_group_segment_fixed_size 0
  .amdhsa_kernarg_size 104
  .amdhsa_user_sgpr_count 2
  .amdhsa_user_sgpr_kernarg_segment_ptr 1
  .amdhsa_system_sgpr_workgroup_id_x 1
.end_amdhsa_kernel
"""
open(sys.argv[1], 'w').write(out)
print("instructions:", sum(1 for i in a.ins if i.ws), "auto nops:", a.nnop, file=sys.stderr)
```

```python
import sys, math, struct
sys.path.insert(0, 'gen')
from asmlib import Asm

NAME = 'gated_mix__grouped_kv_mqa__geglu_ffn__prompt'
OPT = dict(stamp=0, grp=0, force_fb=0, qflag=11, s1=16, b2=22, outm=1, ofast=0,
           p_kv=1, p_kvs=14, p_st=60, p_sts=20, p_fill=160, p_fills=60, p_kv2=366, p_f2=440, p_chk=470, d0=16, dend=32,
           late=1, pk2=1, nearly=1, h0w=24, h1w=30, clw=22, na=1, gend=30, dwt=4, qbar=0, cpf=1, qmode=0, qf=11, exs=3, spf=0, pb=2)
for x in sys.argv[2:]:
    k, v = x.split('='); OPT[k] = int(v)

def fbits(x): return struct.unpack('<I', struct.pack('<f', x))[0]

WS_KV, WS_G, WS_F1, WS_Q, WS_O, WS_H, WS_STAMP = 0, 0x20000, 0x30000, 0x100000, 0x300000, 0x500000, 0xC00000
WS_F2 = WS_F1 + 8192
WS_SIZE = 0x1000000
CLEAR_WG = 128
WR, EX = 65536, 131072
NSLOT, HALF, RING = 24, 49152, 98304
MERGE = 65536
LDS_BYTES = 163840
SPIN = 0x40000
SX, SWG, SWU, SWQ, SEX, SWS, SDBG, SWD, SWO, SOUT = 32, 36, 40, 44, 48, 52, 56, 60, 64, 92
sW, sTI, sQ, sU, sROT, sXO, sWOF, sMX, sMW, sI, sJ, sROT0 = range(68, 80)
sT = list(range(80, 90))
sEXW, sEXO = 90, 91
sC1 = 96
sF2, sRH, sRING, sOO = 98, 99, 100, 101
sHO = 3
sKVM, sKVO, sQA, sGA = 32, 33, 34, 35
sF2R = 46
sR = [sRH, 44, 45, 47]
def srd(n): return f"s[{n}:{n+3}]"
def vr(b, n): return f"v[{b}:{b+n-1}]"

vXS0, vXS1, vWS = 1, 2, 3
vST = 4
vXR = [5, 6, 7, 8]
vWR = [9, 10]
vES, vER, vSA = 11, [12, 13], 30
vL16, vLANE = 14, 15
vC0 = 16
vZ = 17
vGT = 18
t0, t1, t2, t3 = 20, 21, 22, 23
vS0, vWS2 = 28, 27
vPV, vPD, vTRP = 29, 0, 31
F = [32, 48]
ACC = [64, 96]
XF = 128
ACCE, WE = 96, 100
GW = 147456
L = vLANE
QA, QB, KF, V2, V1 = 128, 132, 136, 140, [144, 148]
vG, vIDX, vAK, vAV, vKVS = 152, 154, 155, 156, 157
vDR0, vDR1, vH0, vH1 = 159, 160, 161, 162
vDS, vDS1, vF2 = vPD, 158, 163
F2D = 164
OA, OB, SA, SB = 176, 192, 208, 224
WF = [240, 248]
HF = [32, 40, 48, 56]
DACC = 64

a = Asm()
CLK = 's_memtime' if OPT['stamp'] == 2 else 's_memrealtime'
def stamp(k, grp=0):
    if grp != OPT['grp'] and k != 11: return
    if OPT['stamp']: a(f"{CLK} s[{4+2*k}:{5+2*k}]")
def mk_srd(n, p, size):
    a(f"s_mov_b32 s{n}, s{p}\ns_mov_b32 s{n+1}, s{p+1}\ns_mov_b32 s{n+2}, {size}\ns_mov_b32 s{n+3}, 0x20000")

PG = 3584
C0 = -2.0 * math.sqrt(2.0 / math.pi) * math.log2(math.e)
C1 = C0 * 0.044715
QS = 0.25 * math.log2(math.e)

a("s_cmp_ge_u32 s2, 256\ns_cbranch_scc1 L_end")
a("s_load_dwordx16 s[4:19], s[0:1], 0\ns_load_dwordx8 s[20:27], s[0:1], 64\ns_load_dwordx2 s[28:29], s[0:1], 96")
if OPT['stamp']: a(f"{CLK} s[30:31]")
def code_prefetch():
    a(f"""
    s_getpc_b64 s[{sT[8]}:{sT[9]}]
    L_pc:
    s_andn2_b32 s{sT[7]}, s2, 7
    s_lshl_b32 s{sT[7]}, s{sT[7]}, 8
    v_lshl_add_u32 v{t3}, v0, 2, s{sT[7]}
    v_min_u32 v{t3}, L_last-L_pc-4, v{t3}
    s_mov_b32 exec_lo, 1
    s_mov_b32 exec_hi, 1
    global_load_dword v{vS0}, v{t3}, s[{sT[8]}:{sT[9]}]
    s_mov_b64 exec, -1
    """)
if OPT['cpf'] == 1: code_prefetch()
a(f"""
v_readfirstlane_b32 s{sW}, v0
v_lshrrev_b32 v{t1}, 4, v0
v_lshrrev_b32 v{t0}, 3, v0
v_xor_b32 v{t1}, v0, v{t1}
s_lshr_b32 s{sU}, s2, 6
s_bfe_u32 s{sJ}, s2, 0x30003
v_and_b32 v{t1}, 7, v{t1}
s_and_b32 s{sT[2]}, s2, 1
s_lshl3_add_u32 s{sTI}, s{sT[2]}, s{sJ}
v_lshlrev_b32 v{t1}, 4, v{t1}
s_lshl1_add_u32 s{sROT0}, s{sU}, s{sJ}
s_and_b32 s{sROT0}, s{sROT0}, 7
v_lshl_add_u32 v{vXS0}, v{t0}, 10, v{t1}
s_lshl_b32 s{sT[0]}, s{sTI}, 17
s_lshl_b32 s{sXO}, s{sROT0}, 7
s_add_u32 s{sXO}, s{sXO}, s{sT[0]}
s_lshl_b32 s{sMW}, s{sW}, 4
s_mov_b32 m0, s{sMW}
s_mov_b32 s{SX+2}, {2048*1024}
s_mov_b32 s{SX+3}, 0x20000
""")
a(f"""
s_bfe_u32 s{sT[1]}, s{sW}, 0x10006
s_lshl_b32 s{sT[1]}, s{sT[1]}, 2
v_and_or_b32 v{t1}, v{t0}, 2, s{sT[1]}
s_bfe_u32 s{sQ}, s2, 0x20001
s_mul_i32 s{sT[1]}, s{sQ}, 7
v_xor_b32 v{t1}, v0, v{t1}
s_lshl1_add_u32 s{sT[1]}, s{sU}, s{sT[1]}
s_sub_u32 s{sT[1]}, s{sT[1]}, 1
v_and_b32 v{t1}, 7, v{t1}
s_lshl_b32 s{sT[2]}, s{sQ}, 1
s_movk_i32 s{sT[3]}, {PG}
v_lshlrev_b32 v{vWS2}, 4, v{t1}
s_mov_b32 s{SWG+3}, 0x20000
s_mov_b32 s{SWU+3}, 0x20000
s_cmp_eq_u32 s{sU}, 0
s_cselect_b32 s{sT[1]}, s{sT[2]}, s{sT[1]}
s_cselect_b32 s{sT[3]}, 1024, s{sT[3]}
s_cselect_b32 s{sT[2]}, 128, 0
v_mad_u32_u24 v{vWS}, v{t0}, s{sT[3]}, v{vWS2}
s_lshl_b32 s{SWG+2}, s{sT[3]}, 9
s_mov_b32 s{SWU+2}, s{SWG+2}
s_mul_i32 s{sWOF}, s{sROT0}, s{sT[3]}
s_lshl1_add_u32 s{sWOF}, s{sT[1]}, s{sWOF}
s_lshl_b32 s{sWOF}, s{sWOF}, 6
s_cmp_eq_u32 s{sU}, 0
{CLK + ' s[84:85]' if OPT['grp'] == 5 else ''}
s_waitcnt lgkmcnt(0)
{CLK + ' s[86:87]' if OPT['grp'] == 5 else ''}
s_mov_b64 s[{SX}:{SX+1}], s[4:5]
buffer_load_dwordx4 v{vXS0}, {srd(SX)}, s{sXO} offen lds
s_cselect_b64 s[{SWG}:{SWG+1}], s[6:7], s[16:17]
s_cselect_b64 s[{SWU}:{SWU+1}], s[6:7], s[18:19]
s_add_u32 m0, s{sMW}, {WR}
s_add_u32 s{sXO}, s{sXO}, 65536
buffer_load_dwordx4 v{vWS}, {srd(SWG)}, s{sWOF} offen lds
s_add_u32 m0, s{sMW}, {WR + 8192}
s_add_u32 s{sWOF}, s{sWOF}, s{sT[2]}
buffer_load_dwordx4 v{vWS}, {srd(SWU)}, s{sWOF} offen lds
s_add_u32 m0, s{sMW}, 8192
s_nop 0
buffer_load_dwordx4 v{vXS0}, {srd(SX)}, s{sXO} offen lds
""")
if OPT['grp'] == 5: a(f"{CLK} s[88:89]\ns_waitcnt lgkmcnt(0)\ns_mov_b32 s4, s84\ns_mov_b32 s14, s86\ns_mov_b32 s5, s88")
a(f"""
s_lshr_b32 s{sW}, s{sW}, 6
v_add_u32 v{vXS0}, s{sT[0]}, v{vXS0}
v_add_u32 v{vXS1}, 0x10000, v{vXS0}
s_lshl_b32 s{sT[1]}, s{sT[1]}, 7
v_add_u32 v{vWS}, s{sT[1]}, v{vWS}
s_movk_i32 s{sT[3]}, {PG}
v_mad_u32_u24 v{vWS2}, v{t0}, s{sT[3]}, v{vWS2}
s_mul_i32 s{sT[1]}, s{sQ}, {7*128}
v_add_u32 v{vWS2}, s{sT[1]}, v{vWS2}
v_and_b32 v{L}, 63, v0
v_lshlrev_b32 v{vL16}, 4, v{L}
s_and_b32 s{sT[0]}, s2, 7
s_lshl2_add_u32 s{sI}, s{sT[0]}, s{sU}
s_add_u32 s{sROT}, s{sROT0}, 1
s_and_b32 s{sROT}, s{sROT}, 7
s_lshl_b32 s{sMX}, s{sW}, 11
""")
def dispatch():
    a(f"""
    s_lshr_b32 s{sT[1]}, s{sW}, 2
    s_lshl1_add_u32 s{sT[0]}, s{sU}, s{sT[1]}
    s_lshr_b32 s{sT[1]}, s{sQ}, 1
    s_lshl1_add_u32 s{sT[0]}, s{sT[0]}, s{sT[1]}
    s_cmp_eq_u32 s{sT[0]}, 0
    s_cbranch_scc1 L_pathK
    s_cmp_eq_u32 s{sT[0]}, 1
    s_cbranch_scc1 L_pathV
    s_cmp_lt_u32 s{sT[0]}, 4
    s_cbranch_scc1 L_pathP
    s_cmp_eq_u32 s{sT[0]}, 4
    s_cbranch_scc1 L_pathS
    s_add_u32 s{sT[0]}, s{sMW}, s2
    s_cmp_eq_u32 s{sT[0]}, {CLEAR_WG + 1024}
    s_cbranch_scc1 L_pathC
    """)

PATH = ['G']
def wslot(sig):
    if sig < 8: return WR + (sig & 3) * 16384
    if sig >= 14: return EX + (sig - 14) * 16384
    return (0 if sig & 1 else WR) + ((sig - 8) >> 1) * 16384
def waddr(sig, b):
    return {0: vXR[b], 1: vWR[b], 2: vXR[2 + b]}[wslot(sig) >> 16]

def dma_ops(sig, path):
    p = sig >> 3
    isq = (path in 'KVP' and p == 0)
    pitch = 1024 if isq else PG
    sa, sb = (SWQ, SWQ) if isq else (SWG, SWU)
    xs, ws = (sig & 3) * 16384, wslot(sig)
    pre = f"s_mul_i32 s{sWOF}, s{sROT}, {64*pitch}\n"
    if path in 'GSC' and p == 1: pre += f"s_add_u32 s{sWOF}, s{sWOF}, 128\n"
    mid = f"s_add_u32 s{sWOF}, s{sWOF}, 128\n" if isq else ""
    inc, wrap = f"s_add_u32 s{sROT}, s{sROT}, 1\n", f"s_and_b32 s{sROT}, s{sROT}, 7\n"
    vw = vWS2 if (path in 'KVP' and p == 1) else vWS
    wa = f"s_add_u32 m0, s{sMW}, {ws}\n{{}}buffer_load_dwordx4 v{vw}, {srd(sa)}, s{sWOF} offen lds"
    wb = f"s_add_u32 m0, s{sMW}, {ws+8192}\n{{}}buffer_load_dwordx4 v{vw}, {srd(sb)}, s{sWOF} offen lds"
    if p == 0:
        return [f"s_add_u32 m0, s{sMW}, {xs}\ns_lshl_b32 s{sXO}, s{sROT}, 7\nbuffer_load_dwordx4 v{vXS0}, {srd(SX)}, s{sXO} offen lds",
                wa.format(pre), wb.format(mid + inc),
                f"s_add_u32 m0, s{sMW}, {xs+8192}\n{wrap}buffer_load_dwordx4 v{vXS1}, {srd(SX)}, s{sXO} offen lds"]
    return [wa.format(pre), wb.format(inc + wrap)]

def setup_common():
    mk_srd(SWS, 28, WS_SIZE)
    if OPT.get('wso'): a(f"s_add_u32 s{SWS}, s{SWS}, {OPT['wso'] << 20}\ns_addc_u32 s{SWS+1}, s{SWS+1}, 0")
    mk_srd(SDBG, 26, 256); mk_srd(SWD, 20, 1792 * 1024); mk_srd(SWO, 12, 512 * 1024); mk_srd(SOUT, 24, 2048 * 1024)
    a(f"""
    s_and_b32 s{sT[0]}, s{sW}, 3
    s_lshr_b32 s{sT[1]}, s{sW}, 2
    s_xor_b32 s{sT[5]}, s{sT[1]}, s{sQ}
    s_and_b32 s{sT[5]}, s{sT[5]}, 1
    s_lshl1_add_u32 s{sT[0]}, s{sT[0]}, s{sT[5]}
    s_lshl_b32 s{sT[0]}, s{sT[0]}, 11
    v_and_b32 v{t0}, 15, v{L}
    v_bfe_u32 v{t1}, v{L}, 1, 3
    v_lshrrev_b32 v{t2}, 4, v{L}
    v_xor_b32 v{t1}, v{t1}, v{t2}
    v_lshlrev_b32 v{t1}, 4, v{t1}
    v_lshl_add_u32 v{t1}, v{t0}, 7, v{t1}
    v_add_u32 v{vXR[0]}, s{sT[0]}, v{t1}
    v_xor_b32 v{vXR[1]}, 0x800, v{vXR[0]}
    v_xor_b32 v{vXR[2]}, 64, v{vXR[0]}
    v_xor_b32 v{vXR[3]}, 64, v{vXR[1]}
    s_lshl_b32 s{sT[2]}, s{sT[5]}, 8
    v_xor_b32 v{vST}, s{sT[2]}, v{vL16}
    """)
    a(f"""
    v_lshrrev_b32 v{t3}, 5, v{L}
    v_lshlrev_b32 v{t0}, 4, v{t0}
    v_lshl_add_u32 v{vPV}, v{t3}, 8, v{t0}
    """)
    a(f"""
    v_bfe_u32 v{t0}, v{L}, 2, 2
    v_lshl_add_u32 v{t1}, v{t2}, 3, v{t0}
    v_lshlrev_b32 v{t1}, 7, v{t1}
    v_bfe_u32 v{t2}, v{L}, 3, 2
    s_lshl_b32 s{sT[1]}, s{sT[1]}, 1
    v_xor_b32 v{t2}, s{sT[1]}, v{t2}
    v_lshl_add_u32 v{t1}, v{t2}, 5, v{t1}
    v_and_b32 v{t2}, 3, v{L}
    v_lshl_add_u32 v{t1}, v{t2}, 3, v{t1}
    v_add_u32 v{vWR[0]}, {WR}, v{t1}
    v_xor_b32 v{vWR[1]}, 32, v{vWR[0]}
    """)
    a(f"""
    v_lshl_add_u32 v{t3}, v{t3}, 3, v{t0}
    v_lshlrev_b32 v{t3}, 7, v{t3}
    v_lshrrev_b32 v{t0}, 1, v{t0}
    v_lshl_add_u32 v{t3}, v{t0}, 6, v{t3}
    v_lshl_add_u32 v{t3}, v{t2}, 3, v{t3}
    v_bfe_u32 v{t2}, v{L}, 4, 1
    v_lshl_add_u32 v{vTRP}, v{t2}, 5, v{t3}
    v_lshlrev_b32 v{t2}, 2, v{t2}
    v_and_b32 v{t1}, 7, v{L}
    v_xor_b32 v{t1}, v{t1}, v{t2}
    v_lshlrev_b32 v{t1}, 4, v{t1}
    v_lshrrev_b32 v{t0}, 3, v{L}
    v_lshl_add_u32 v{t0}, v{t0}, 10, v{t1}
    s_lshl_b32 s{sT[0]}, s{sJ}, 7
    v_add_u32 v{vPD}, s{sT[0]}, v{t0}
    v_mov_b32 v{vZ}, 0
    v_mov_b32 v{vC0}, {fbits(C0):#x}
    s_mov_b32 s{sC1}, {fbits(C1):#x}
    s_mov_b32 s{sC1+1}, {fbits(C1):#x}
    """)
    a(f"""
    s_lshr_b32 s{sT[3]}, s{sW}, 2
    s_and_b32 s{sT[1]}, s{sW}, 3
    s_lshl2_add_u32 s{sT[0]}, s{sTI}, s{sT[1]}
    s_lshl_b32 s{sT[8]}, s{sT[0]}, 5
    s_and_b32 s{sT[2]}, s{sT[0]}, 15
    s_lshr_b32 s{sT[0]}, s{sT[0]}, 4
    s_mul_i32 s{sT[0]}, s{sT[0]}, 112
    s_mul_i32 s{sT[1]}, s{sQ}, 28
    s_add_u32 s{sT[0]}, s{sT[0]}, s{sT[1]}
    s_lshl3_add_u32 s{sT[0]}, s{sU}, s{sT[0]}
    s_lshl1_add_u32 s{sT[0]}, s{sT[3]}, s{sT[0]}
    s_lshl4_add_u32 s{sT[0]}, s{sT[0]}, s{sT[2]}
    s_lshl_b32 s{sT[0]}, s{sT[0]}, 10
    s_add_u32 s{sHO}, s{sT[0]}, {WS_H}
    s_lshl3_add_u32 s{sT[4]}, s{sQ}, s{sT[8]}
    s_lshl1_add_u32 s{sT[4]}, s{sT[3]}, s{sT[4]}
    s_lshl_b32 s{sT[4]}, s{sT[4]}, 10
    s_lshl2_add_u32 s{sT[1]}, s{sQ}, s{sU}
    s_lshl2_add_u32 s{sF2}, s{sTI}, s{sQ}
    s_lshl_b32 s{sF2}, s{sF2}, 5
    s_add_u32 s{sF2}, s{sF2}, s{sU}
    s_lshl_b32 s{sF2}, s{sF2}, 2
    s_add_u32 s{sF2}, s{sF2}, {WS_F2}
    s_lshl1_add_u32 s{sT[9]}, s{sT[1]}, s{sT[8]}
    s_add_u32 s{sT[9]}, s{sT[9]}, s{sT[3]}
    s_lshl_b32 s{sT[9]}, s{sT[9]}, 10
    s_add_u32 s{sT[9]}, s{sT[9]}, {WS_O}
    s_and_b32 s{sT[1]}, s{sW}, 1
    s_lshl1_add_u32 s{sT[1]}, s{sI}, s{sT[1]}
    s_lshl3_add_u32 s{sT[2]}, s{sT[1]}, s{sJ}
    s_lshl_b32 s{sT[2]}, s{sT[2]}, 2
    s_and_b32 s{sT[1]}, s{sW}, 2
    s_add_u32 s{sT[2]}, s{sT[2]}, s{sT[1]}
    s_add_u32 s{sT[2]}, s{sT[2]}, s{sT[3]}
    s_lshl_b32 s{sOO}, s{sT[2]}, 10
    s_lshl_b32 s{sRING}, s{sW}, 13
    s_add_u32 s{sRING}, s{sRING}, {RING}
    s_mul_i32 s{sRH}, s{sJ}, 7
    s_lshr_b32 s{sRH}, s{sRH}, 2
    s_mul_i32 s{sT[1]}, s{sU}, 7
    s_lshr_b32 s{sT[1]}, s{sT[1]}, 1
    s_add_u32 s{sRH}, s{sRH}, s{sT[1]}
    s_cmp_ge_u32 s{sRH}, 14
    s_cselect_b32 s{sT[1]}, 14, 0
    s_sub_u32 s{sRH}, s{sRH}, s{sT[1]}
    s_lshl_b32 s{sRH}, s{sRH}, 14
    s_mul_i32 s{sT[1]}, s{sW}, {14*16384}
    s_add_u32 s{SWD}, s{SWD}, s{sT[1]}
    s_addc_u32 s{SWD+1}, s{SWD+1}, 0
    s_sub_u32 s{SWD+2}, s{SWD+2}, s{sT[1]}
    s_lshl_b32 s{sT[1]}, s{sW}, 16
    s_add_u32 s{SWO}, s{SWO}, s{sT[1]}
    s_addc_u32 s{SWO+1}, s{SWO+1}, 0
    s_sub_u32 s{SWO+2}, s{SWO+2}, s{sT[1]}
    """)

def setup_path(P):
    if P in 'KV':
        a(f"""
        v_lshrrev_b32 v{t2}, 4, v{L}
        v_and_b32 v{t0}, 15, v{L}
        v_lshlrev_b32 v{t1}, 3, v{t0}
        v_lshl_add_u32 v{t1}, v{t2}, 8, v{t1}
        v_and_b32 v{t3}, 1, v{t2}
        v_lshl_add_u32 v{t1}, v{t3}, 7, v{t1}
        v_add_u32 v{vER[0]}, {EX}, v{t1}
        v_xor_b32 v{vER[1]}, 0x80, v{vER[0]}
        v_lshlrev_b32 v{t1}, 7, v{t3}
        v_xor_b32 v{vES}, v{t1}, v{vL16}
        s_add_u32 s{sEXO}, s{sW}, s{sROT0}
        s_and_b32 s{sEXO}, s{sEXO}, 7
        s_lshl_b32 s{sEXO}, s{sEXO}, 11
        s_lshr_b32 s{sEXW}, s{sT[4]}, 15
        v_lshrrev_b32 v{t2}, 1, v{t2}
        """)
        if P == 'K':
            a(f"""
            s_lshl3_add_u32 s{sEXW}, s{sEXW}, s{sT[5]}
            s_lshl_b32 s{sEXW}, s{sEXW}, 8
            v_lshlrev_b32 v{t2}, 9, v{t2}
            """)
        else:
            a(f"""
            s_lshl2_add_u32 s{sEXW}, s{sEXW}, s{sT[5]}
            s_lshl_b32 s{sEXW}, s{sEXW}, 9
            s_add_u32 s{sEXW}, s{sEXW}, 1024
            v_lshlrev_b32 v{t2}, 8, v{t2}
            v_and_b32 v{t0}, 3, v{L}
            v_bfe_u32 v{t1}, v{L}, 2, 1
            v_lshl_add_u32 v{t0}, v{t1}, 3, v{t0}
            v_bfe_u32 v{t1}, v{L}, 3, 1
            v_lshl_add_u32 v{t0}, v{t1}, 2, v{t0}
            """)
        a(f"""
        v_lshl_add_u32 v{t2}, v{t0}, 4, v{t2}
        v_lshl_add_u32 v{vSA}, v{t3}, 3, v{t2}
        """)
    if P == 'P':
        a(f"""
        v_bfe_u32 v{t1}, v{L}, 4, 1
        v_lshlrev_b32 v{t1}, 7, v{t1}
        v_xor_b32 v{vES}, v{t1}, v{vL16}
        s_add_u32 s{sEXO}, s{sW}, s{sROT0}
        s_and_b32 s{sEXO}, s{sEXO}, 7
        s_lshl_b32 s{sEXO}, s{sEXO}, 11
        """)
    if P == 'S':
        a(f"""
        s_lshl_b32 s{sEXO}, s{sROT0}, 7
        v_add_u32 v{vES}, s{sEXO}, v{vL16}
        v_and_b32 v{vES}, 0x3ff, v{vES}
        v_and_b32 v{t0}, 48, v{L}
        v_add_u32 v{vER[0]}, {GW}, v{t0}
        v_and_b32 v{t0}, 15, v{L}
        v_lshlrev_b32 v{vSA}, 2, v{t0}
        s_lshr_b32 s{sEXW}, s{sT[4]}, 15
        s_lshl1_add_u32 s{sEXW}, s{sEXW}, s{sT[5]}
        s_lshl_b32 s{sEXW}, s{sEXW}, 6
        s_add_u32 s{sEXW}, s{sEXW}, {WS_G}
        """)

def x_reads(sig, j):
    return [f"ds_read_b128 {vr(XF + 16*sig + 8*j + 4*tq, 4)}, v{vXR[2*j+tq]} offset:{(sig & 3) * 16384}" for tq in range(2)]
def w_reads(sig, j, i):
    b, part = i >> 1, i & 1
    off = (wslot(sig) & 0xffff) + part * 8192 + j * 4096
    return [f"ds_read_b64_tr_b16 {vr(F[j] + 4*i + 2*e, 2)}, v{waddr(sig, b)} offset:{off + e*512}" for e in range(2)]
def e_steps(c):
    c0 = 2 * OPT['exs']
    if PATH[0] in 'KVS': return [2 * (c - c0), 2 * (c - c0) + 1] if c0 <= c < 2 * c0 else ([c] if 2 * c0 <= c < 16 else [])
    return []
def e_buf(c, i): return WE + 16 if (PATH[0] == 'S' and c == 15) else WE + 8 * (c & 1) + 4 * i
def e_reads(c):
    if PATH[0] == 'S':
        cs = [] if c == 15 else ([14, 15] if c == 14 else [c])
        return [f"ds_read_b128 {vr(e_buf(x, i), 4)}, v{vER[0]} offset:{k*64}" for x in cs for i, k in enumerate(e_steps(x))]
    return [f"ds_read_b64_tr_b16 {vr(e_buf(c, i) + 2*e, 2)}, v{vER[e]} offset:{k*1024}" for i, k in enumerate(e_steps(c)) for e in range(2)]
def e_mfmas(c):
    out = []
    for i, k in enumerate(e_steps(c)):
        acc, w, x = vr(ACCE, 4), vr(e_buf(c, i), 4), vr(XF + 8 * k, 4)
        A, B = (x, w) if PATH[0] == 'V' else (w, x)
        out.append(f"v_mfma_f32_16x16x32_bf16 {acc}, {A}, {B}, {'0' if k == 0 else acc}")
    return out
def mfmas(sig, j):
    out = []
    for i in range(4):
        for tq in range(2):
            d = vr(ACC[sig >> 3] + 8 * i + 4 * tq, 4)
            c = "0" if ((sig & 7) == 0 and j == 0) else d
            out.append(f"v_mfma_f32_16x16x32_bf16 {d}, {vr(F[j] + 4*i, 4)}, {vr(XF + 16*(sig&7) + 8*j + 4*tq, 4)}, {c}")
    return out

def gelu_pair(base, j, T=vGT, pk=False):
    G = vr(base + 2 * j, 2); U = vr(base + 8 + 2 * j, 2); TT = vr(T, 2)
    g0, g1, u0, u1 = base + 2 * j, base + 2 * j + 1, base + 8 + 2 * j, base + 9 + 2 * j
    if pk:
        return [f"v_pk_mul_f32 {TT}, {G}, {G}",
                f"v_pk_fma_f32 {TT}, {TT}, s[{sC1}:{sC1+1}], {vr(vC0,2)} op_sel_hi:[1,1,0]",
                f"v_pk_mul_f32 {TT}, {TT}, {G}",
                f"v_exp_f32 v{T}, v{T}", f"v_exp_f32 v{T+1}, v{T+1}",
                f"v_pk_mul_f32 {G}, {G}, {U}",
                f"v_pk_add_f32 {TT}, {TT}, 1.0 op_sel_hi:[1,0]",
                f"v_rcp_f32 v{T}, v{T}", f"v_rcp_f32 v{T+1}, v{T+1}",
                f"v_pk_mul_f32 {G}, {G}, {TT}",
                f"v_cvt_pk_bf16_f32 v{base+j}, v{g0}, v{g1}"]
    return [f"v_mul_f32 v{T}, v{g0}, v{g0}", f"v_mul_f32 v{T+1}, v{g1}, v{g1}",
            f"v_fma_f32 v{T}, v{T}, s{sC1}, v{vC0}", f"v_fma_f32 v{T+1}, v{T+1}, s{sC1}, v{vC0}",
            f"v_mul_f32 v{T}, v{T}, v{g0}", f"v_mul_f32 v{T+1}, v{T+1}, v{g1}",
            f"v_exp_f32 v{T}, v{T}", f"v_exp_f32 v{T+1}, v{T+1}",
            f"v_mul_f32 v{g0}, v{g0}, v{u0}", f"v_add_f32 v{T}, 1.0, v{T}", f"v_add_f32 v{T+1}, 1.0, v{T+1}",
            f"v_rcp_f32 v{T}, v{T}", f"v_rcp_f32 v{T+1}, v{T+1}",
            f"v_mul_f32 v{g1}, v{g1}, v{u1}",
            f"v_mul_f32 v{g0}, v{g0}, v{T}", f"v_mul_f32 v{g1}, v{g1}, v{T+1}",
            f"v_cvt_pk_bf16_f32 v{base+j}, v{g0}, v{g1}"]
def to_frag(base):
    return [f"v_permlane16_swap_b32 v{base}, v{base+2}", f"v_permlane16_swap_b32 v{base+1}, v{base+3}"]

def cost(x):
    c = 0
    for l in x.strip().split('\n'):
        l = l.strip()
        if not l or l.startswith(';') or l.endswith(':'): continue
        c += 8 if l.startswith(('v_exp', 'v_rcp')) else (OPT.get('vmc', 16) if l.startswith('buffer_') else 4)
    return c

kvtok = {}
def kv_step(m):
    slot = (4 * m % NSLOT) * 2048
    if m == 0: x = f"s_mov_b32 m0, s{sKVM}\ns_nop 0\n"
    else: x = f"s_add_u32 s{sKVO}, s{sKVO}, 8192\ns_add_u32 m0, s{sKVM}, {slot}\ns_and_b32 s{sKVO}, s{sKVO}, 0xffff\n"
    return [x + f"buffer_load_dwordx4 v{vKVS}, {srd(SWS)}, s{sKVO} offen sc1 lds", f"buffer_load_dwordx4 v{vKVS}, {srd(SWS)}, s{sKVO} offen offset:1024 sc1 lds"]
KV_FIRST = 2
def first_loads():
    return [f"buffer_load_dwordx4 {vr(QA,4)}, v{vL16}, {srd(SWS)}, s{sQA} offen sc1\ns_xor_b32 s{sQA}, s{sQA}, 1024"] + kv_step(0) + \
           [f"buffer_load_dwordx4 {vr(QB,4)}, v{vL16}, {srd(SWS)}, s{sQA} offen sc1"] + kv_step(1)

def setup_queue():
    q = []
    def add(st, txt):
        for l in txt.strip().split('\n'): q.append((st, l.strip().replace('|', '\n')))
    add(11, f"""
    s_lshr_b32 s{sT[3]}, s{sW}, 2
    s_and_b32 s{sT[5]}, s{sW}, 1
    s_lshl_b32 s{sT[6]}, s{sT[3]}, 16
    v_add_u32 v{vKVS}, s{sT[6]}, v{vL16}
    s_mul_i32 s{sT[3]}, s{sT[3]}, {HALF}
    v_add_u32 v{vAK}, s{sT[3]}, v{vL16}
    v_add_u32 v{vAV}, s{sT[3]}, v{vPV}
    s_and_b32 s{sT[6]}, s{sW}, 3
    s_lshl_b32 s{sT[7]}, s{sT[6]}, 11
    s_add_u32 s{sKVM}, s{sT[7]}, s{sT[3]}
    s_lshr_b32 s{sT[7]}, s2, 3
    s_add_u32 s{sT[6]}, s{sT[6]}, s{sT[7]}
    s_and_b32 s{sT[6]}, s{sT[6]}, 31
    s_lshl_b32 s{sKVO}, s{sT[6]}, 11
    s_add_u32 s{sQA}, s{sOO}, {WS_Q}
    s_xor_b32 s{sQA}, s{sQA}, 1024
    s_lshl1_add_u32 s{sGA}, s{sI}, s{sT[5]}
    s_lshl_b32 s{sGA}, s{sGA}, 7
    s_add_u32 s{sGA}, s{sGA}, {WS_G}
    v_and_b32 v{vG}, 31, v{L}
    v_lshlrev_b32 v{vG}, 2, v{vG}
    v_mov_b32 v{vIDX}, 0xdddddddd
    v_mov_b32 v{V2+1}, 0x3f803f80
    s_mov_b32 vcc_lo, 0x110000|s_mov_b32 vcc_hi, 0x110000|v_cndmask_b32 v{V2}, 0, v{V2+1}, vcc
    """)
    for r in range(V2 + 1, V2 + 12): add(11, f"v_mov_b32 v{r}, v{V2}")
    add(12, f"""
    v_add_u32 v{vDR0}, s{sRING}, v{vTRP}
    v_xor_b32 v{vDR1}, 64, v{vDR0}
    v_add_u32 v{vDS1}, 7168, v{vDS}
    s_lshr_b32 s{sT[6]}, s{sI}, 3
    s_lshl3_add_u32 s{sT[6]}, s{sT[6]}, s{sW}
    s_mul_i32 s{sT[6]}, s{sT[6]}, {14*16}
    s_and_b32 s{sT[7]}, s{sI}, 7
    s_lshl1_add_u32 s{sT[7]}, s{sT[7]}, s{sT[5]}
    s_add_u32 s{sT[6]}, s{sT[6]}, s{sT[7]}
    s_lshl_b32 s{sT[6]}, s{sT[6]}, 10
    s_add_u32 s{sT[6]}, s{sT[6]}, {WS_H}
    v_add_u32 v{vH0}, s{sT[6]}, v{vL16}
    v_xor_b32 v{vH1}, 0x400, v{vH0}
    v_lshlrev_b32 v{vF2}, 7, v{L}
    s_lshr_b32 s{sF2R}, s{sI}, 1
    s_lshl_b32 s{sF2R}, s{sF2R}, 9
    s_add_u32 s{sF2R}, s{sF2R}, {WS_F2}
    """)
    for r in range(9): add(13, f"v_mov_b32 v{OA+r}, 0")
    for r in range(9): add(14, f"v_mov_b32 v{OB+r}, 0")
    return q

cold = []
def s0_check(P):
    a(f"v_cmp_eq_u32 vcc, 0, v{vS0}\ns_cbranch_vccnz L_s0retry{P}\nL_s0done{P}:")
    cold.append(f"""
    L_s0retry{P}:
    s_mov_b32 s{sT[1]}, 0
    L_s0poll{P}:
    buffer_load_dword v{vS0}, v{vZ}, {srd(SDBG)}, 0 offen sc1
    s_add_u32 s{sT[1]}, s{sT[1]}, 1
    s_waitcnt vmcnt(0)
    v_cmp_eq_u32 vcc, 0, v{vS0}
    s_cbranch_vccz L_s0done{P}
    s_cmp_lt_u32 s{sT[1]}, {SPIN}
    s_cbranch_scc1 L_s0poll{P}
    s_branch L_s0done{P}
    """)
def s1_issue(P):
    a(f"s_cmp_lg_u32 s{sW}, 0\ns_cbranch_scc1 L_nopoll0{P}")
    if P in 'GSC': s0_check(P)
    a(f"""
    s_mov_b32 s{sT[1]}, {WS_F1}
    v_lshlrev_b32 v{t1}, 7, v{L}
    buffer_load_dword v{t0}, v{t1}, {srd(SWS)}, s{sT[1]} offen sc1
    L_nopoll0{P}:
    """)
    a.vm -= 1
def s1_check(P):
    a(f"""
    s_cmp_lg_u32 s{sW}, 0
    s_cbranch_scc1 L_s1done{P}
    s_mov_b32 s{sT[0]}, 0
    L_s1poll{P}:
    s_waitcnt vmcnt(0)
    v_cmp_ne_u32 vcc, 1, v{t0}
    s_cbranch_vccz L_s1done{P}
    s_mov_b64 exec, vcc
    buffer_load_dword v{t0}, v{t1}, {srd(SWS)}, s{sT[1]} offen sc1
    s_mov_b64 exec, -1
    s_add_u32 s{sT[0]}, s{sT[0]}, 1
    s_cmp_lt_u32 s{sT[0]}, {SPIN}
    s_cbranch_scc1 L_s1poll{P}
    s_waitcnt vmcnt(0)
    L_s1done{P}:
    """)
    a.vm -= 1

def proj_path(P):
    tok = {}
    PATH[0] = P
    S1 = OPT['s1']
    sched = {s: [s + 2] for s in range(6)}
    ISQ = P in 'KVP'
    QF = OPT['qf']
    sched.update({6: [8, 9], 7: [10, 11], 8: [12, 13], 9: [14, 15]}); cover = {8: 9, 10: 11, 12: 15}
    if ISQ and OPT['qmode'] == 0:
        del sched[8], sched[9]
        sched.update({10: [12, 13], 11: [14, 15]}); cover = {8: 9, 10: 11, 12: 13, 14: 15}
    bars = set(range(8)) | set(cover) | {S1}
    if ISQ: bars |= {QF} | ({9} if OPT['qmode'] else set()) | (set(range(10, 16)) if OPT['qbar'] else set())
    def dma_groups(sg):
        d = dma_ops(sg, P)
        if ISQ and sg == OPT['exs']:
            d.insert(1, f"""
            s_add_u32 m0, s{sMX}, {EX}
            s_nop 0
            buffer_load_dwordx4 v{vES}, {srd(SEX)}, s{sEXO} offen lds
            buffer_load_dwordx4 v{vES}, {srd(SEX)}, s{sEXO} offen offset:1024 lds
            """)
        if P == 'S' and sg == OPT['exs']:
            d.insert(1, f"s_mov_b32 m0, {GW}\ns_nop 0\nbuffer_load_dwordx4 v{vES}, {srd(SEX)}, 0 offen lds")
        return [(x, sg if k == len(d) - 1 else None) for k, x in enumerate(d)]
    def emit(it):
        if callable(it): return it()
        a(it[0])
        if it[1] is not None: tok[it[1]] = a.lastvm()
    tok[0] = a.lastvm()
    if ISQ: mk_srd(SWQ, 6, 512 * 1024)
    if not OPT['spf']:
        for it in dma_groups(1): emit(it)
    if ISQ: mk_srd(SWG, 16, 512 * PG); mk_srd(SWU, 18, 512 * PG)
    if P in 'KVS': mk_srd(SEX, {'K': 8, 'V': 10, 'S': 22}[P], 1024 if P == 'S' else 16384)
    if P == 'P': a(f"s_cmp_lt_u32 s{sQ}, 2\ns_cselect_b64 s[{SEX}:{SEX+1}], s[8:9], s[10:11]\ns_mov_b32 s{SEX+2}, 16384\ns_mov_b32 s{SEX+3}, 0x20000")
    setup_path(P)
    if OPT['grp'] == 5: a("s_mov_b32 s6, s14\ns_mov_b32 s8, s5")
    stamp(3, 5)
    if OPT['spf']:
        for it in dma_groups(1): emit(it)
    stamp(4, 5)
    if P == 'C':
        ctok = a(f"v_lshlrev_b32 v{t0}, 7, v{L}\ns_mov_b32 s{sT[1]}, {WS_F1}\nbuffer_store_dword v{vZ}, v{t0}, {srd(SWS)}, s{sT[1]} offen sc1")
    win = {c: [] for c in range(33)}
    box = {}; front = {}; pre8 = []
    def usable(c):
        return c % 2 == 0 or ((c + 1) // 2) not in bars
    def nxt(c):
        while not usable(c): c += 1
        return c
    if not ISQ:
        gq = []
        for b in range(2):
            for j in range(4): gq += gelu_pair(ACC[0] + 16 * b, j)
            gq += to_frag(ACC[0] + 16 * b)
            if b == 0: n0 = len(gq)
        npre = 17 * (OPT['pb'] - 1) if OPT['pb'] else 0
        pre8 += [(x, None) for j in range(max(OPT['pb'] - 1, 0)) for x in gelu_pair(ACC[0], j, pk=OPT.get('pbk', 0))]
        gq = gq[npre:]; n0 -= npre
        ws = [c for c in range(16, OPT['gend'] + 1) if usable(c)]
        ndma = {16: 2, 17: 2, 18: 4}
        tot = len(gq) + OPT['dwt'] * 8
        done = 0; accw = 0
        for k, c in enumerate(ws):
            accw += OPT['dwt'] * ndma.get(c, 0)
            upto = max(done, tot * (k + 1) // len(ws) - accw)
            win[c] += [(x, None) for x in gq[done:upto]]
            if done < n0 <= upto: c0 = c
            done = upto
        assert done == len(gq)
        for b in range(OPT['nearly']):
            c = nxt(max(OPT[f'h{b}w'], c0 if b == 0 else ws[-1]))
            win[c].append((f"s_sub_u32 s{sT[2]}, s{sHO}, {65536 - 16384*b}\nbuffer_store_dwordx4 {vr(ACC[0]+16*b,4)}, v{vST}, {srd(SWS)}, s{sT[2]} offen sc1", None))
    else:
        qa = [f"s_add_u32 s{sT[8]}, s{sT[4]}, {WS_Q + 4096}\ns_add_u32 s{sT[4]}, s{sT[4]}, {WS_Q}"]
        if P == 'K': qa += [f"v_mul_f32 v{ACCE+r}, {fbits(QS):#x}, v{ACCE+r}" for r in range(4)]
        sts = []
        if P in 'KV':
            qa += [f"v_cvt_pk_bf16_f32 v{vGT}, v{ACCE}, v{ACCE+1}", f"v_cvt_pk_bf16_f32 v{vGT+1}, v{ACCE+2}, v{ACCE+3}"]
            sts.append(f"buffer_store_dwordx2 {vr(vGT,2)}, v{vSA}, {srd(SWS)}, s{sEXW} offen sc1")
        if P == 'P':
            sts.append(f"s_andn2_b32 s{sT[0]}, s{sF2}, 127\nv_lshlrev_b32 v{t2}, 2, v{L}\ns_mov_b32 exec_hi, 0\nbuffer_store_dword v{vZ}, v{t2}, {srd(SWS)}, s{sT[0]} offen sc1\ns_mov_b32 exec_hi, -1")
        def qcv(i): return [f"v_cvt_pk_bf16_f32 v{ACC[0]+8*i+j}, v{ACC[0]+8*i+2*j}, v{ACC[0]+8*i+2*j+1}" for j in range(4)]
        def qst(i): return to_frag(ACC[0] + 8 * i) + [f"buffer_store_dwordx4 {vr(ACC[0]+8*i,4)}, v{vST}, {srd(SWS)}, s{sT[8 if i & 1 else 4]} offen offset:{1024*(i>>1)} sc1"]
        mark = [lambda: box.update(q=a.lastvm())]
        T = lambda l: [(x, None) for x in l]
        if OPT['qmode'] == 0 and OPT['pb']:
            pre8 += T(qa + qcv(0) + qcv(1) + qcv(2) + qcv(3) + [x for i in range(4) for x in qst(i)[:2]])
            if OPT.get('pbq'): pre8 += T(sts + [qst(i)[2] for i in range(4)]) + mark
            else: win[16] += T(sts + [qst(i)[2] for i in range(2)]); win[17] += T([qst(i)[2] for i in range(2, 4)]) + mark
        elif OPT['qmode'] == 0:
            win[16] += T(qa + sts + qcv(0) + qcv(1) + qst(0) + qst(1)); win[17] += T(qcv(2) + qcv(3) + qst(2) + qst(3)) + mark
        elif OPT['qmode'] == 1:
            win[16] += T(qa + qcv(0) + qcv(1)); win[18] += T(sts + qst(0) + qcv(2)); win[20] += T(qcv(3) + qst(1) + qst(2) + qst(3)) + mark
        else:
            win[16] += T(qa + qcv(0) + qcv(1) + qcv(2) + qcv(3)); win[18] += T(sts + qst(0) + qst(1) + qst(2) + qst(3)) + mark
        def qflag():
            assert a.vm_done > box['s0']
            if P != 'P': s0_check(P)
            a(f"""
            s_lshl4_add_u32 s{sT[0]}, s{sQ}, s{sTI}
            s_lshl_b32 s{sT[0]}, s{sT[0]}, 7
            s_add_u32 s{sT[0]}, s{sT[0]}, {WS_F1}
            s_lshl_b32 s{sT[1]}, s{sW}, 24
            s_add_u32 s{sT[0]}, s{sT[0]}, s{sT[1]}
            v_mov_b32 v{t1}, 1
            s_mov_b64 exec, 1
            buffer_store_dword v{t1}, v{vZ}, {srd(SWS)}, s{sT[0]} offen sc1
            s_mov_b64 exec, -1
            """)
        if P != 'P': box['flag'] = qflag
    if P == 'S':
        win[16] = [(x, None) for x in (f"v_mul_f32 v{t2}, {fbits(-math.log2(math.e)):#x}, v{ACCE}", f"v_exp_f32 v{t2}, v{t2}", f"v_add_f32 v{t2}, 1.0, v{t2}", f"v_rcp_f32 v{t2}, v{t2}")] + win[16]
        win[20].append((f"s_mov_b64 exec, 0xffff\nbuffer_store_dword v{t2}, v{vSA}, {srd(SWS)}, s{sEXW} offen sc1\ns_mov_b64 exec, -1", None))
    if OPT['clw'] <= 32:
        win[nxt(max(OPT['clw'], max(24, 2 * QF + 1) if ISQ else 0))].append(
            (f"v_mov_b32 v24, -1\nv_mov_b32 v25, -1\nv_mov_b32 v26, -1\nv_mov_b32 v27, -1\nbuffer_store_dwordx4 v[24:27], v{vL16}, {srd(SWS)}, s{sT[9]} offen sc1", None))
    queue = setup_queue()
    ws = [c for c in range(21 if ISQ else 20, 2 * S1 - 1) if usable(c)]
    for k, c in enumerate(ws):
        left = [x for x in queue if 2 * x[0] - 2 <= c]
        take = min(len(left), -(-len(queue) // (len(ws) - k)))
        win[c] += [(x[1], None) for x in left[:take]]; queue = queue[take:]
    assert not queue
    win[16].insert(0, (f"v_subrev_u32 v{vXR[0]}, {WR}, v{vWR[0]}\nv_subrev_u32 v{vXR[1]}, {WR}, v{vWR[1]}\nv_add_u32 v{vXR[2]}, {WR}, v{vWR[0]}\nv_add_u32 v{vXR[3]}, {WR}, v{vWR[1]}", None))

    def cluster(c, what='mr'):
        M = mfmas(c >> 1, c & 1) if (c >= 0 and 'm' in what) else []
        em = e_mfmas(c) if M else []
        for i, x in enumerate(em): M.insert(1 + (8 // len(em) + 1) * i, x)
        d = c + 1
        R = []
        if d < 32 and 'r' in what:
            if d < 16: R += x_reads(d >> 1, d & 1)
            for i in range(4): R += w_reads(d >> 1, d & 1, i)
            R += e_reads(d)
        a.wait(a.lastlg())
        if M: a("s_setprio 2")
        n = max(len(M), 1); k = 0
        last = n - 1 if (c & 1 or ((c >> 1) + 1) not in bars) else n - 2
        for i in range(n):
            if M: a(M[i])
            want = len(R) if i >= last else -(-len(R) * (i + 1) // (last + 1))
            while k < want: a(R[k]); k += 1
        if M: a("s_setprio 0")

    for sig in range(16):
        if sig == 8 and OPT['pb']:
            cluster(15, 'm')
            for it in pre8: emit(it)
        if sig in bars:
            if sig in cover or sig < 8: a.wait(tok[cover.get(sig, sig)])
            if ISQ and sig == QF: a.wait(box['q'])
            if sig == S1 and P != 'P': s1_check(P)
            a("s_barrier")
            if sig == QF and 'flag' in box: box['flag']()
        if sig == 1: stamp(1)
        if sig == 8: stamp(2)
        if sig < 11: stamp(sig, 1)
        if sig < 5: stamp(5 + sig, 5)
        if sig >= 6: stamp(sig - 6, 2)
        D = []
        if P == 'C' and sig == 2:
            assert a.vm_done >= ctok[1]
            win[4].append((f"v_mov_b32 v{t0}, 1\ns_mov_b64 exec, 1\nbuffer_store_dword v{t0}, v{vZ}, {srd(SDBG)}, 0 offen sc1\ns_mov_b64 exec, -1", None))
        for sg in sched.get(sig, []): D += dma_groups(sg)
        if sig == S1: D += [(x, None) for x in first_loads()]
        if sig == (7 if ISQ else 9) and P != 'P':
            def s0_load():
                if not ISQ:
                    a(f"s_cmp_lg_u32 s{sW}, 0\ns_cbranch_scc1 L_nos0l{P}\nbuffer_load_dword v{vS0}, v{vZ}, {srd(SDBG)}, 0 offen sc1\nL_nos0l{P}:")
                    a.vm -= 1
                else:
                    a(f"buffer_load_dword v{vS0}, v{vZ}, {srd(SDBG)}, 0 offen sc1")
                box['s0'] = a.vm
            D.insert(len(D) - 1, s0_load)
        head, mid, tail = [], D, []
        if sig < OPT['late']: mid, tail = [], D
        elif (sig + 1) not in bars: mid, tail = D[:len(D)//2], D[len(D)//2:]
        elif sig in bars and len(D) >= 4: head, mid = D[:OPT['na']], D[OPT['na']:]
        for it in head: emit(it)
        cluster(2 * sig - 1, 'r' if (sig == 8 and OPT['pb']) else 'mr')
        if sig == S1 - 1 and P != 'P':
            assert a.vm_done > box['s0']
            s1_issue(P)
        for it in front.get(2 * sig, []) + mid + win[2 * sig]: emit(it)
        cluster(2 * sig)
        for it in front.get(2 * sig + 1, []) + tail + win[2 * sig + 1]: emit(it)
    a.wait(a.lastlg())
    assert not win[32]

setup_common()
dispatch()
proj_path('G')
a("L_join:")
a.forget()

for m in mfmas(15, 1): a(m)
stamp(3); stamp(10, 2)
stamp(5, 3)
if OPT['s1'] == 16:
    s1_check('J')
    stamp(6, 3)
    a("s_barrier")
    stamp(7, 3)
    for x in first_loads(): a(x)
stamp(4); stamp(8, 3)
for b in range(2):
    for jp in range(2):
        g0 = gelu_pair(ACC[1] + 16 * b, 2 * jp, vGT, pk=OPT['pk2']); g1 = gelu_pair(ACC[1] + 16 * b, 2 * jp + 1, t0, pk=OPT['pk2'])
        for x, y in zip(g0, g1):
            a(x); a(y)
        if b == 1 and jp == 0:
            for x in to_frag(ACC[1]): a(x)
a(f"s_mov_b32 s{sT[7]}, s{sT[9]}\ns_mov_b32 s{sT[8]}, 0xffff\ns_mov_b32 s{sT[9]}, 0xffff")
for x in to_frag(ACC[1] + 16): a(x)
stamp(9, 3)
a.wait_vm0()
a("s_barrier")
stamp(5); stamp(10, 3)

def qk(S, Q): return f"v_mfma_f32_32x32x16_bf16 {vr(S,16)}, {vr(KF,4)}, {vr(Q,4)}, 0"
def pv(O, V, S): return f"v_smfmac_f32_32x32x32_bf16 {vr(O,16)}, {vr(V,4)}, {vr(S,8)}, v{vIDX}"
NT, B1, B2 = 32, 8, OPT['b2']
def rec(t): return (t % NSLOT) * 2048
def rdK(t): return a(f"ds_read_b128 {vr(KF,4)}, v{vAK} offset:{rec(t)}")
def rdV(t2, t1):
    a(f"s_mov_b64 exec, s[{sT[8]}:{sT[9]}]")
    if t2 is not None: a(f"ds_read_b128 {vr(V2,4)}, v{vAV} offset:{rec(t2) + 1536}")
    if t1 is not None: a(f"ds_read_b128 {vr(V1[t1&1],4)}, v{vAV} offset:{rec(t1) + 1024}")
    a("s_mov_b64 exec, -1")
    return a.lastlg()
wtok, htok, rtok, box = {}, {}, {}, {}
m0own = [None]; wstart = set()
def w_off(u): return sR[u & 3] if u < 14 else sWOF
def w_load_a(u):
    a(f"s_add_u32 m0, s{sRING}, {(u & 3) * 2048}"); m0own[0] = ('w', u); wstart.add(u)
    assert u == 0 or (u - 1) in wtok
    if 0 < u < 14: a(f"s_sub_u32 s{sR[u&3]}, s{sR[(u-1)&3]}, 16384\ns_cselect_b32 s{sR[u&3]}, {13*16384}, s{sR[u&3]}")
    elif u == 14: a(f"s_lshl_b32 s{sWOF}, s{sU}, 14")
    elif u > 14: a(f"s_add_u32 s{sWOF}, s{sWOF}, 16384\ns_and_b32 s{sWOF}, s{sWOF}, 0xffff")
    a(f"buffer_load_dwordx4 v{vDS}, {srd(SWD if u < 14 else SWO)}, s{w_off(u)} offen lds")
def w_load_b(u):
    if m0own[0] != ('w', u):
        a(f"s_add_u32 m0, s{sRING}, {(u & 3) * 2048}"); m0own[0] = ('w', u)
    wtok[u] = a(f"buffer_load_dwordx4 v{vDS1}, {srd(SWD if u < 14 else SWO)}, s{w_off(u)} offen offset:1024 lds")
def h_load_a(u):
    assert u in wstart and (u + 4) not in wstart
    a(f"buffer_load_dwordx4 {vr(HF[u&3],4)}, v{vH0}, {srd(SWS)}, s{sR[u&3]} offen sc1")
def h_load_b(u):
    assert (u + 4) not in wstart
    htok[u] = a(f"buffer_load_dwordx4 {vr(HF[u&3]+4,4)}, v{vH1}, {srd(SWS)}, s{sR[u&3]} offen sc1")
def w_read(u, b):
    if b == 0: a.wait(wtok[u], htok[u])
    for e in range(2):
        rtok[u, b] = a(f"ds_read_b64_tr_b16 {vr(WF[u&1] + 4*b + 2*e, 2)}, v{(vDR0, vDR1)[b]} offset:{(u & 3) * 2048 + e*512}")
def d_mfma(u, k):
    tb, b = k >> 1, k & 1
    a.wait(rtok[u, 1])
    d = vr(DACC + 32 * tb + 16 * b, 16)
    a(f"v_mfma_f32_32x32x16_bf16 {d}, {vr(WF[u&1]+4*b,4)}, {vr(HF[u&3]+4*tb,4)}, {'0' if u == 0 else d}")

if OPT.get('x_now'):
    def w_load_a(u): pass
    def w_load_b(u): wtok[u] = None
if OPT.get('x_noh'):
    def h_load_a(u): pass
    def h_load_b(u): htok[u] = None
if OPT.get('x_noread'):
    def w_read(u, b): rtok[u, b] = None
ev, mf = {}, {}
SNAP = OPT.get('snap', 1)
B1P = 32 * (B1 - 1) + 11
EV, EVA, EK, EKA = OPT.get('ev', 5), OPT.get('eva', 0), OPT.get('ek', 11), OPT.get('eka', 0)
busy = {32 * t + o for t in range(NT) for o in (EV, EK, 18)}
def nextpos(p):
    while SNAP and (p & 15) not in (2, 5, 8, 11, 14): p += 1
    return p
def at(pos, f, limit=None):
    p = nextpos(pos)
    while SNAP and limit is not None and p in busy and nextpos(p + 1) <= limit: p = nextpos(p + 1)
    busy.add(p)
    ev.setdefault(p, []).append(f)
    return p
def h_store(b): box['h'] = a((f"s_add_u32 s{sHO}, s{sHO}, 16384\n" if b else "") + f"buffer_store_dwordx4 {vr(ACC[1]+16*b,4)}, v{vST}, {srd(SWS)}, s{sHO} offen sc1")
def late_store(k):
    if k == 2:
        a(f"v_mov_b32 v24, -1\nv_mov_b32 v25, -1\nv_mov_b32 v26, -1\nv_mov_b32 v27, -1\nbuffer_store_dwordx4 v[24:27], v{vL16}, {srd(SWS)}, s{sT[7]} offen sc1")
        return
    a(f"""
    s_cmp_eq_u32 s{sU}, 0
    s_cbranch_scc1 L_nols{k}
    s_sub_u32 s{sT[2]}, s{sHO}, {65536 - 16384*k}
    buffer_store_dwordx4 {vr(ACC[0]+16*k,4)}, v{vST}, {srd(SWS)}, s{sT[2]} offen sc1
    L_nols{k}:
    """)
    a.vm -= 1
pp = OPT.get('p_st', 1); STS = OPT.get('p_sts', 1)
for k in list(range(OPT['nearly'], 2)) + ([2] if OPT['clw'] > 32 else []):
    pp = at(pp, lambda k=k: late_store(k), pp + 12) + STS
pp = at(pp, lambda: h_store(0), pp + 12) + STS
pp = at(pp, lambda: h_store(1), pp + 12)
assert pp < B1P
def kv_emit(m, i):
    if i == 0: m0own[0] = ('kv', m)
    if m0own[0] != ('kv', m):
        a(f"s_add_u32 m0, s{sKVM}, {(4 * m % NSLOT) * 2048}"); m0own[0] = ('kv', m)
    kvtok[m] = a(kv_step(m)[i])
for m in range(KV_FIRST, 8):
    p = OPT['p_kv'] + OPT['p_kvs'] * (m - KV_FIRST) if m < 6 else OPT['p_kv2'] + 20 * (m - 6)
    p = at(p, lambda m=m: kv_emit(m, 0), p + 8)
    at(p + 1, lambda m=m: kv_emit(m, 1), p + 9)
assert OPT['p_kv2'] > B1P
def h_flag():
    a(f"""
    s_lshl_b32 s{sT[1]}, s{sW}, 24
    s_add_u32 s{sT[1]}, s{sT[1]}, s{sF2}
    v_mov_b32 v{t0}, 1
    s_mov_b64 exec, 1
    buffer_store_dword v{t0}, v{vZ}, {srd(SWS)}, s{sT[1]} offen sc1
    s_mov_b64 exec, -1
    """)
def f2_load():
    box['f2'] = a(f"s_mov_b64 exec, 15\nbuffer_load_dwordx4 {vr(F2D,4)}, v{vF2}, {srd(SWS)}, s{sF2R} offen sc1")
    a("s_mov_b64 exec, -1")
at(OPT['p_f2'], f2_load, OPT['p_f2'] + 8)
def f2_check():
    a.wait(box['f2'])
    test = f"v_min3_u32 v{F2D}, v{F2D}, v{F2D+1}, v{F2D+2}\nv_min_u32 v{F2D}, v{F2D}, v{F2D+3}\nv_cmp_ne_u32 vcc, 1, v{F2D}"
    a(f"s_mov_b64 exec, 15\n{test}\ns_cbranch_vccnz L_s2retry\nL_s2done:\ns_mov_b64 exec, -1")
    cold.append(f"""
    L_s2retry:
    s_mov_b32 s{sT[1]}, 0
    L_s2poll:
    buffer_load_dwordx4 {vr(F2D,4)}, v{vF2}, {srd(SWS)}, s{sF2R} offen sc1
    s_add_u32 s{sT[1]}, s{sT[1]}, 1
    s_waitcnt vmcnt(0)
    {test}
    s_cbranch_vccz L_s2done
    s_sleep {OPT.get('slp', 6)}
    s_cmp_lt_u32 s{sT[1]}, {SPIN}
    s_cbranch_scc1 L_s2poll
    s_branch L_s2done
    """)
    a(f"buffer_load_dword v{vG}, v{vG}, {srd(SWS)}, s{sGA} offen sc1")
    stamp(9)
PCHK = at(OPT['p_chk'], f2_check, OPT['p_chk'] + 8)
D0, DE = OPT['d0'], OPT['dend']
allsl = [32 * t + o for t in range(D0, DE) for o in (8, 14, 24, 30)]
assert len(allsl) >= 56
slots = [allsl[(i * len(allsl)) // 56] for i in range(56)]
for u in range(14):
    rp = slots[0] - 16 if u == 0 else slots[4 * u - 2] + 1
    lim = slots[4 * u] - 9
    p = at(rp, lambda u=u: w_read(u, 0), lim - 3); at(p + 1, lambda u=u: w_read(u, 1), lim)
    for k in range(4): mf[slots[4 * u + k]] = (lambda u=u, k=k: d_mfma(u, k))
for u in range(18):
    pw = OPT['p_fill'] + OPT['p_fills'] * u if u < 4 else slots[4 * (u - 4)] + 1
    p = at(pw, lambda u=u: w_load_a(u), pw + 8); p = at(p + 1, lambda u=u: w_load_b(u), p + 8)
    if u < 3:
        ph = PCHK + 1 + OPT.get('p_hs', 13) * u
        p = at(ph, lambda u=u: h_load_a(u), ph + 4); at(p + 1, lambda u=u: h_load_b(u), p + 5)
    if 4 <= u < 15:
        p = at(p + 1, lambda u=u: h_load_a(u - 1), p + 8); at(p + 1, lambda u=u: h_load_b(u - 1), p + 8)
for lo, hi, fr in ((0, B1P, (OPT.get('la1', 30), OPT.get('la2', 70), OPT.get('la3', 94))), (B1P, 32 * B2, (OPT.get('lb1', 35), OPT.get('lb2', 80), OPT.get('lb3', 96))),
                   (32 * B2, 32 * NT, (OPT.get('lc1', 60), OPT.get('lc2', 87), OPT.get('lc3', 96)))):
    for k in range(3): at(lo + ((hi - lo) * fr[k]) // 100, lambda k=k: a(f"s_setprio {2-k}"))

def merge_addr():
    a(f"""
    s_mul_i32 s{sT[0]}, s{sW}, 2304
    s_add_u32 s{sT[0]}, s{sT[0]}, {MERGE}
    s_xor_b32 s{sT[1]}, s{sW}, 4
    s_mul_i32 s{sT[1]}, s{sT[1]}, 2304
    s_add_u32 s{sT[1]}, s{sT[1]}, {MERGE}
    v_add_u32 v{t0}, s{sT[0]}, v{vL16}
    v_add_u32 v{t1}, s{sT[1]}, v{vL16}
    v_lshl_add_u32 v{t2}, v{L}, 2, s{sT[0]}
    v_lshl_add_u32 v{t3}, v{L}, 2, s{sT[1]}
    s_add_u32 s{sOO}, s{sOO}, {WS_O}
    s_mov_b32 s{sT[6]}, {fbits(2.0**-60):#x}
    s_mov_b32 s{sT[7]}, {fbits(2.0**60) - fbits(2.0**-60):#x}
    """)
at(32 * NT - 11, merge_addr)
at(32 * NT - 8, lambda: a(f"ds_write_b128 v{t0}, {vr(OA,4)}\nds_write_b128 v{t0}, {vr(OA+4,4)} offset:1024\nds_write_b32 v{t2}, v{OA+8} offset:2048"))

a("s_setprio 3")
tK = rdK(0); tV = rdV(None, 0)
a.wait(tK)
a(qk(SA, QA))
for t in range(NT):
    if t == B2:
        a.wait(kvtok[7]); a("s_barrier\ns_setprio 3"); stamp(0)
    nx = t + 1 if t + 1 < NT else None
    for ph, (S, So, O, Oo, Qo) in enumerate(((SA, SB, OA, OB, QB), (SB, SA, OB, OA, QA))):
        for e in range(16):
            pos = 32 * t + 16 * ph + e
            def own(after):
                global tV, tK
                if ph == 0 and (e, after) == (EV, EVA):
                    if t == 0: a.wait(tV)
                    tV = rdV(t, nx if t != B1 - 1 else None)
                if ph == 0 and (e, after) == (EK, EKA) and nx and t != B1 - 1: tK = rdK(nx)
            for f in ev.pop(pos, []): f()
            own(0)
            if pos == B1P:
                a.wait(kvtok[5], box['h'], tV); a("s_barrier\ns_setprio 3"); stamp(6)
                tK = rdK(nx); tV = rdV(None, nx)
                h_flag()
            if e == 2:
                if ph == 1: a.wait(tV, None if OPT.get('w2') else tK)
                if t > 0 or ph == 1: a(pv(Oo, V2, So + 8))
            if (e == 5 and not (t == 0 and ph == 0)) or (t == 0 and ph == 0 and e == 0):
                if ph == 1: a.wait(tK)
                if ph == 0 or nx: a(qk(So, Qo))
            if e == 11: a(pv(O, V1[t & 1], S))
            if pos in mf: mf.pop(pos)()
            own(1)
            a(f"v_exp_f32 v{S+e}, v{S+e}")
assert not mf
assert not ev, sorted(ev)
a.wait_lg0()
a(pv(OB, V2, SB + 8))
stamp(7); stamp(0, 4)
a("s_barrier")
stamp(1, 4)
a(f"""
ds_read_b32 v{SA+8}, v{t3} offset:2048
ds_read_b128 {vr(SA,4)}, v{t1}
ds_read_b128 {vr(SA+4,4)}, v{t1} offset:1024
s_lshl_b32 s{sT[3]}, s{sW}, 13
s_xor_b32 s{sT[2]}, s{sT[3]}, 8192
v_add_u32 v24, s{sT[2]}, v{vL16}
v_add_u32 v26, s{sT[3]}, v{vL16}
s_waitcnt lgkmcnt(2)
v_add_f32 v{OB+8}, v{OB+8}, v{SA+8}
v_rcp_f32 v{t0}, v{OB+8}
""")
a.wait_lg0()
OS = 128
for j in range(2): a(f"v_pk_add_f32 {vr(OB+2*j,2)}, {vr(OB+2*j,2)}, {vr(SA+2*j,2)}")
a(f"v_mul_f32 v{t0}, v{t0}, v{vG}")
for j in range(2, 4): a(f"v_pk_add_f32 {vr(OB+2*j,2)}, {vr(OB+2*j,2)}, {vr(SA+2*j,2)}")
for j in range(4): a(f"v_pk_mul_f32 {vr(OB+2*j,2)}, {vr(OB+2*j,2)}, {vr(t0,2)} op_sel_hi:[1,0]")
a(f"""
v_pk_add_f32 {vr(t2,2)}, {vr(OB,2)}, {vr(OB+2,2)}
v_pk_add_f32 {vr(t0,2)}, {vr(OB+4,2)}, {vr(OB+6,2)}
v_cvt_pk_bf16_f32 v{OS}, v{OB}, v{OB+1}
v_pk_add_f32 {vr(t2,2)}, {vr(t2,2)}, {vr(t0,2)}
v_cvt_pk_bf16_f32 v{OS+1}, v{OB+2}, v{OB+3}
v_add_f32 v{t2}, v{t2}, v{t3}
v_cvt_pk_bf16_f32 v{OS+2}, v{OB+4}, v{OB+5}
v_fma_f32 v{t2}, v{t2}, 0, v{OB+8}
v_cvt_pk_bf16_f32 v{OS+3}, v{OB+6}, v{OB+7}
v_subrev_u32 v{t2}, s{sT[6]}, v{t2}
v_cmp_lt_u32 vcc, s{sT[7]}, v{t2}
""")
if OPT['force_fb']: a("s_mov_b64 vcc, -1")
a(f"""
s_cbranch_vccnz L_true_max
L_norm:
buffer_store_dwordx4 {vr(OS,4)}, v{vL16}, {srd(SWS)}, s{sOO} offen sc1
""")
stamp(8); stamp(2, 4)

OF, WOF, XT = 32, 176, 96
vO1 = 27
fill = f"""
s_andn2_b32 s{sT[2]}, s{sRING}, 8192
v_add_u32 v28, s{sT[2]}, v{vTRP}
v_xor_b32 v29, 64, v28
v_sub_f32 v{vG}, 1.0, v{vG}
v_add_u32 v{vO1}, 4096, v{vL16}
s_and_b32 s{sT[1]}, s{sW}, 1
s_lshl1_add_u32 s{sT[0]}, s{sI}, s{sT[1]}
s_lshr_b32 s{sT[1]}, s{sW}, 1
s_lshl2_add_u32 s{sT[0]}, s{sT[0]}, s{sT[1]}
s_lshl_b32 s{sT[0]}, s{sT[0]}, 13
s_add_u32 s{sT[0]}, s{sT[0]}, {WS_O}
""".strip().split('\n')
for v in range(4):
    fill += f"s_add_u32 s{sT[1]}, s{sU}, {v}\ns_and_b32 s{sT[1]}, s{sT[1]}, 3\ns_lshl_b32 s{sT[1]}, s{sT[1]}, 10\ns_add_u32 s{sT[4+v]}, s{sT[0]}, s{sT[1]}".split('\n')
fill += f"""
v_and_b32 v{t0}, 31, v{L}
v_lshrrev_b32 v{t1}, 5, v{L}
v_and_b32 v{t2}, 7, v{L}
v_xor_b32 v{t1}, v{t1}, v{t2}
v_lshlrev_b32 v{t1}, 4, v{t1}
v_lshl_add_u32 v{t0}, v{t0}, 8, v{t1}
v_add_u32 v9, s{sT[3]}, v{t0}
v_xor_b32 v10, 32, v9
v_xor_b32 v11, 64, v9
v_xor_b32 v12, 0x60, v9
v_lshrrev_b32 v{t0}, 3, v{L}
v_lshlrev_b32 v{t1}, 1, v{t2}
v_xor_b32 v{t1}, v{t1}, v{t0}
v_lshlrev_b32 v{t1}, 4, v{t1}
v_lshl_add_u32 v{t1}, v{t0}, 8, v{t1}
v_add_u32 v1, s{sMX}, v{t1}
v_xor_b32 v2, 16, v1
s_lshl3_add_u32 s{sT[3]}, s{sI}, s{sW}
s_lshl_b32 s{sT[3]}, s{sT[3]}, 6
s_add_u32 s{sT[3]}, s{sT[3]}, s{sJ}
s_lshl_b32 s{sT[3]}, s{sT[3]}, 7
v_lshlrev_b32 v{t2}, 4, v{t2}
v_lshl_add_u32 v5, v{t0}, 10, v{t2}
s_mov_b32 s{sT[2]}, 0
""".strip().split('\n')
for j in range(8):
    a(f"ds_write_b128 v24, {vr(DACC+32+4*j,4)} offset:{1024*j}")
    for x in fill[len(fill) * j // 8: len(fill) * (j + 1) // 8]: a(x)
def o_loads():
    for v in range(8):
        a(f"buffer_load_dwordx4 {vr(OF + 4*v, 4)}, v{vO1 if v >> 2 else vL16}, {srd(SWS)}, s{sT[4 + (v&3)]} offen sc1")
stamp(3, 4)
a.wait(wtok[17], a.lastlg())
a(f"s_cmp_ge_u32 s{sW}, 4")
a("s_barrier")
stamp(4, 4)
a("s_setprio 1\ns_cbranch_scc1 L_ol1\ns_setprio 0")
o_loads()
a("L_ol1:")
xt = [a(f"ds_read_b128 {vr(XT+4*j,4)}, v26 offset:{1024*j}") for j in range(8)]
def wo_read(v):
    slot = ((14 + v) & 3) * 2048 + (v >> 2) * 8192
    for b in range(2):
        for e in range(2):
            a(f"ds_read_b64_tr_b16 {vr(WOF + 8*v + 4*b + 2*e, 2)}, v{28 + b} offset:{slot + e*512}")
for j in range(8):
    a.wait(xt[j])
    for i in range(2):
        r = 4 * j + 2 * i
        a(f"v_pk_add_f32 {vr(DACC+r,2)}, {vr(DACC+r,2)}, {vr(XT+r,2)}")
    for i in range(2):
        r = 4 * j + 2 * i
        a(f"v_pk_mul_f32 {vr(DACC+r,2)}, {vr(DACC+r,2)}, {vr(vG,2)} op_sel_hi:[1,0]")
stamp(5, 4)
a("s_setprio 0\ns_cbranch_scc0 L_ol2")
o_loads()
a("L_ol2:")
for j in range(8): wo_read(j)
stamp(6, 4)
a("L_s3poll:")
a.wait_vm0()
a(f"v_max_u32 v{t0}, v{OF}, v{OF+1}\nv_max_u32 v{t1}, v{OF+2}, v{OF+3}")
for j in range(2, 16): a(f"v_max3_u32 v{t0 + (j&1)}, v{t0 + (j&1)}, v{OF+2*j}, v{OF+2*j+1}")
a(f"""
v_max_u32 v{t0}, v{t0}, v{t1}
v_cmp_eq_u32 vcc, -1, v{t0}
s_cbranch_vccnz L_s3retry
L_s3done:
""")
stamp(10); stamp(7, 4)
a.wait_lg0()
def fin_write(b, qd): a(f"ds_write_b128 v{9+qd}, {vr(DACC + 16*b + 4*qd, 4)} offset:{b*128}")
for b in range(2):
    for v in range(8):
        d = vr(DACC + 16 * b, 16)
        a(f"v_mfma_f32_32x32x16_bf16 {d}, {vr(WOF+8*v+4*b,4)}, {vr(OF+4*v,4)}, {d}")
        if b == 1 and v < 3: a("s_nop 2")
        if b == 1 and 3 <= v < 7: fin_write(0, v - 3)
stamp(8, 4)
for qd in range(4): fin_write(1, qd)
a.wait_lg0()
a("s_barrier")
stamp(9, 4)
RD = 176
rt = []
for p in range(4):
    for e in range(2):
        rt.append(a(f"ds_read_b128 {vr(RD + 8*p + 4*e, 4)}, v{1 + e} offset:{p*16384}"))
for p in range(1, 4):
    a.wait(rt[2 * p + 1])
    for j in range(4):
        a(f"v_pk_add_f32 {vr(RD+2*j,2)}, {vr(RD+2*j,2)}, {vr(RD+8*p+2*j,2)}")
for j in range(4): a(f"v_cvt_pk_bf16_f32 v{RD+j}, v{RD+2*j}, v{RD+2*j+1}")
a(f"buffer_store_dwordx4 {vr(RD,4)}, v5, {srd(SOUT)}, s{sT[3]} offen {['', 'sc1'][OPT['outm']]}")
stamp(10, 4)
if OPT['stamp']:
    a("s_waitcnt vmcnt(0)")
    stamp(11)
    a("s_waitcnt lgkmcnt(0)")
    a(f"s_mov_b32 s28, s{sT[2]}")
    if 'crit' in OPT:
        a(f"""
        s_cmp_lg_u32 s{sW}, 7
        s_cbranch_scc1 L_end
        s_lshl_b32 s{sT[0]}, s2, 6
        s_add_u32 s{sT[0]}, s{sT[0]}, {WS_STAMP}
        v_mov_b32 v1, 0
        """)
        for k in range(14): a(f"v_mov_b32 v2, s{4+2*k}\nbuffer_store_dword v2, v1, {srd(SWS)}, s{sT[0]} offen offset:{4*k} sc1")
        a(f"""
        s_cmp_lg_u32 s2, 0
        s_cbranch_scc1 L_end
        L_pad0:
        s_memrealtime s[{sT[2]}:{sT[3]}]
        s_waitcnt lgkmcnt(0)
        s_sub_u32 s{sT[2]}, s{sT[2]}, s30
        s_cmp_lt_u32 s{sT[2]}, 5000
        s_cbranch_scc1 L_pad0
        v_lshlrev_b32 v1, 6, v{L}
        s_mov_b32 s{sT[4]}, 0
        s_mov_b32 s{sT[5]}, -1
        """)
        for g in range(4):
            a(f"""
            s_mov_b32 s{sT[0]}, {WS_STAMP + 4096*g}
            buffer_load_dword v2, v1, {srd(SWS)}, s{sT[0]} offen offset:{4*OPT['crit']} sc1
            buffer_load_dword v3, v1, {srd(SWS)}, s{sT[0]} offen offset:52 sc1
            s_waitcnt vmcnt(0)
            v_subrev_u32 v2, s30, v2
            v_add_u32 v2, 1000, v2
            v_lshlrev_b32 v2, 8, v2
            v_add_u32 v2, v2, v{L}
            v_add_u32 v2, {64*g}, v2
            v_subrev_u32 v3, s30, v3
            v_add_u32 v3, 1000, v3
            s_nop 1
            """)
            for i in range(64): a(f"v_readlane_b32 s{sT[6]}, v2, {i}\nv_readlane_b32 s{sT[7]}, v3, {i}\ns_nop 0\ns_max_u32 s{sT[4]}, s{sT[4]}, s{sT[6]}\ns_min_u32 s{sT[5]}, s{sT[5]}, s{sT[7]}")
        a(f"""
        s_and_b32 s{sT[4]}, s{sT[4]}, 255
        s_lshl_b32 s{sT[0]}, s{sT[4]}, 6
        s_add_u32 s{sT[0]}, s{sT[0]}, {WS_STAMP}
        v_lshlrev_b32 v1, 2, v{L}
        buffer_load_dword v2, v1, {srd(SWS)}, s{sT[0]} offen sc1
        s_add_u32 s{sT[5]}, s{sT[5]}, s30
        s_sub_u32 s{sT[5]}, s{sT[5]}, 1000
        s_waitcnt vmcnt(0)
        v_subrev_u32 v2, s{sT[5]}, v2
        s_nop 1
        v_writelane_b32 v2, s{sT[4]}, 14
        s_mov_b64 exec, 0x7fff
        buffer_store_dword v2, v1, {srd(SDBG)}, 0 offen offset:4
        """)
    elif 'dk' in OPT:
        a(f"""
        s_cmp_lg_u32 s{sW}, {OPT.get('dw', 7)}
        s_cbranch_scc1 L_end
        s_lshl_b32 s{sT[0]}, s2, 2
        s_add_u32 s{sT[0]}, s{sT[0]}, {WS_STAMP}
        v_mov_b32 v2, s{4+2*OPT['dk']}
        v_mov_b32 v1, 0
        buffer_store_dword v2, v1, {srd(SWS)}, s{sT[0]} offen sc1
        s_cmp_lg_u32 s2, 0
        s_cbranch_scc1 L_end
        L_pad0:
        s_memrealtime s[{sT[2]}:{sT[3]}]
        s_waitcnt lgkmcnt(0)
        s_sub_u32 s{sT[2]}, s{sT[2]}, s30
        s_cmp_lt_u32 s{sT[2]}, 5000
        s_cbranch_scc1 L_pad0
        v_mul_u32_u24 v1, {4*OPT['dstride']}, v{L}
        s_mov_b32 s{sT[0]}, {WS_STAMP + 4*OPT['dbase']}
        buffer_load_dword v2, v1, {srd(SWS)}, s{sT[0]} offen sc1
        s_waitcnt vmcnt(0)
        v_subrev_u32 v2, s30, v2
        v_add_u32 v2, 100000, v2
        s_mov_b32 s{sT[4]}, 0
        s_mov_b32 s{sT[5]}, -1
        """)
        for i in range(OPT['dn']): a(f"v_readlane_b32 s{sT[6]}, v2, {i}\ns_nop 1\ns_max_u32 s{sT[4]}, s{sT[4]}, s{sT[6]}\ns_min_u32 s{sT[5]}, s{sT[5]}, s{sT[6]}")
        a(f"""
        s_sub_u32 s{sT[0]}, s{sT[4]}, s{sT[5]}
        s_min_u32 s{sT[0]}, s{sT[0]}, 2000
        s_mul_i32 s{sT[0]}, s{sT[0]}, 10
        s_add_u32 s{sT[0]}, s{sT[0]}, 6000
        L_pad:
        s_memrealtime s[{sT[2]}:{sT[3]}]
        s_waitcnt lgkmcnt(0)
        s_sub_u32 s{sT[2]}, s{sT[2]}, s30
        s_cmp_lt_u32 s{sT[2]}, s{sT[0]}
        s_cbranch_scc1 L_pad
        """)
    elif 'pad' in OPT:
        K = OPT['pad']
        a(f"s_and_b32 s{sT[0]}, s2, {OPT.get('padm', 0)}\ns_cmp_lg_u32 s{sT[0]}, {OPT.get('padv', 0)}\ns_cbranch_scc1 L_end")
        if K >= 0: a(f"s_sub_u32 s{sT[0]}, s{4+2*K}, s{4+2*OPT.get('padb', 13)}\ns_mul_i32 s{sT[0]}, s{sT[0]}, {OPT.get('padx', 4)}")
        else: a(f"s_mov_b32 s{sT[0]}, 0")
        a(f"""
        s_add_u32 s{sT[0]}, s{sT[0]}, 6000
        L_pad:
        s_memrealtime s[{sT[2]}:{sT[3]}]
        s_waitcnt lgkmcnt(0)
        s_sub_u32 s{sT[2]}, s{sT[2]}, s30
        s_cmp_lt_u32 s{sT[2]}, s{sT[0]}
        s_cbranch_scc1 L_pad
        """)
    else:
        a(f"s_lshl3_add_u32 s{sT[0]}, s2, s{sW}\ns_lshl_b32 s{sT[0]}, s{sT[0]}, 6\ns_add_u32 s{sT[0]}, s{sT[0]}, {WS_STAMP}")
        a("v_mov_b32 v1, 0\ns_mov_b64 exec, 1")
        for k in range(14):
            a(f"v_mov_b32 v2, s{4+2*k}\nbuffer_store_dword v2, v1, {srd(SWS)}, s{sT[0]} offen offset:{4*k}")
a("L_end:\ns_endpgm")
a("L_s3retry:")
o_loads()
a(f"""
s_add_u32 s{sT[2]}, s{sT[2]}, 1
s_cmp_lt_u32 s{sT[2]}, {SPIN}
s_cbranch_scc1 L_s3poll
s_waitcnt vmcnt(0)
s_branch L_s3done
""")

for P in 'KVPSC':
    a(f".p2align 6\nL_path{P}:")
    a.forget()
    proj_path(P)
    a("s_branch L_join")
for x in cold: a(x)

CM = SB
a(f"""
L_true_max:
s_waitcnt vmcnt(0) lgkmcnt(0)
v_mov_b32 v{t0}, 0xff800000
s_mov_b32 s{sT[0]}, {WS_KV}
L_tm1:
buffer_load_dwordx4 {vr(KF,4)}, v{vL16}, {srd(SWS)}, s{sT[0]} offen sc1
s_waitcnt vmcnt(0)
{qk(SA, QB)}
""")
for j in range(8): a(f"v_max3_f32 v{t0}, v{t0}, v{SA+2*j}, v{SA+2*j+1}")
a(f"""
s_add_u32 s{sT[0]}, s{sT[0]}, 2048
s_cmp_lt_u32 s{sT[0]}, {WS_KV + 64*2048}
s_cbranch_scc1 L_tm1
v_mov_b32 v{t1}, v{t0}
v_permlane32_swap_b32 v{t0}, v{t1}
v_max_f32 v{t0}, v{t0}, v{t1}
""")
for r in range(16): a(f"v_sub_f32 v{CM+r}, 0, v{t0}\nv_mov_b32 v{OB+r}, 0")
a(f"""
s_mov_b32 s{sT[0]}, {WS_KV}
L_tm2:
buffer_load_dwordx4 {vr(KF,4)}, v{vL16}, {srd(SWS)}, s{sT[0]} offen sc1
s_mov_b64 exec, s[{sT[8]}:{sT[9]}]
buffer_load_dwordx4 {vr(V1[0],4)}, v{vPV}, {srd(SWS)}, s{sT[0]} offen offset:1024 sc1
buffer_load_dwordx4 {vr(V2,4)}, v{vPV}, {srd(SWS)}, s{sT[0]} offen offset:1536 sc1
s_mov_b64 exec, -1
s_waitcnt vmcnt(0)
v_mfma_f32_32x32x16_bf16 {vr(SA,16)}, {vr(KF,4)}, {vr(QB,4)}, {vr(CM,16)}
""")
for e in range(16): a(f"v_exp_f32 v{SA+e}, v{SA+e}")
a(pv(OB, V1[0], SA)); a(pv(OB, V2, SA + 8))
a(f"""
s_add_u32 s{sT[0]}, s{sT[0]}, 2048
s_cmp_lt_u32 s{sT[0]}, {WS_KV + 64*2048}
s_nop 7
s_cbranch_scc1 L_tm2
s_nop 7
v_rcp_f32 v{t0}, v{OB+8}
s_nop 0
v_mul_f32 v{t0}, v{t0}, v{vG}
""")
for j in range(4): a(f"v_pk_mul_f32 {vr(OB+2*j,2)}, {vr(OB+2*j,2)}, {vr(t0,2)} op_sel_hi:[1,0]")
for j in range(4): a(f"v_cvt_pk_bf16_f32 v{OS+j}, v{OB+2*j}, v{OB+2*j+1}")
for j in range(4): a(f"v_min_u32 v{OS+j}, -2, v{OS+j}")
a("s_branch L_norm\nL_last:")

bad = a.check_branches()
assert not bad, bad

hdr = open(f'cdna_kernels/{NAME}.s.ref').read().split('\n')
head = [l for l in hdr if l.startswith(';') and '@launch' not in l]
body = a.text()
if OPT.get('stm'):
    import re
    body = re.sub(r'(buffer_store_dwordx4 .*s\[52:55\].*) sc1', lambda m: m.group(1) + [' sc1', ' sc1 nt', ' sc0 sc1', ' sc0 sc1 nt'][OPT['stm']], body)
out = "\n".join(head) + f"\n; @launch grid=(256,1,1) block=(512,1,1) lds={LDS_BYTES}\n"
out += f""".amdgcn_target "amdgcn-amd-amdhsa--gfx950"
.text
.globl {NAME}_kernel
.p2align 8
.type {NAME}_kernel,@function
{NAME}_kernel:
{body}
.section .rodata,"a"
.p2align 6
.amdhsa_kernel {NAME}_kernel
  .amdhsa_next_free_vgpr 256
  .amdhsa_next_free_sgpr 102
  .amdhsa_accum_offset 256
  .amdhsa_group_segment_fixed_size 0
  .amdhsa_kernarg_size 104
  .amdhsa_user_sgpr_count 2
  .amdhsa_user_sgpr_kernarg_segment_ptr 1
  .amdhsa_system_sgpr_workgroup_id_x 1
.end_amdhsa_kernel
"""
open(sys.argv[1], 'w').write(out)
print("instructions:", sum(1 for i in a.ins if i.ws), "auto nops:", a.nnop, file=sys.stderr)
```

```python
import sys, math, struct
sys.path.insert(0, 'gen')
from asmlib import Asm

NAME = 'gated_mix__grouped_kv_mqa__geglu_ffn__prompt'
OPT = dict(stamp=0, grp=0, force_fb=0, qflag=11, s1=16, b2=22, outm=1, ofast=0,
           p_kv=1, p_kvs=14, p_st=60, p_sts=20, p_fill=160, p_fills=60, p_kv2=366, p_f2=440, p_chk=470, d0=16, dend=32,
           late=1, pk2=1, nearly=1, h0w=24, h1w=30, clw=22, na=1, gend=30, dwt=4, qbar=0, cpf=1, qmode=0, qf=11, exs=4, spf=0, pb=2, pbq0=0, rq=0, rg=1, r1=1, qfirst=2, vlate=1, jearly=0, lad=1, gb14=1, gbar=0)
for x in sys.argv[2:]:
    k, v = x.split('='); OPT[k] = int(v)

def fbits(x): return struct.unpack('<I', struct.pack('<f', x))[0]

WS_KV, WS_G, WS_F1, WS_Q, WS_O, WS_H, WS_STAMP = 0, 0x20000, 0x30000, 0x100000, 0x300000, 0x500000, 0xC00000
WS_F2 = WS_F1 + 8192
WS_SIZE = 0x1000000
CLEAR_WG = 128
WR, EX = 65536, 131072
NSLOT, HALF, RING = 24, 49152, 98304
MERGE = 65536
LDS_BYTES = 163840
SPIN = 0x40000
SX, SWG, SWU, SWQ, SEX, SWS, SDBG, SWD, SWO, SOUT = 32, 36, 40, 44, 48, 52, 56, 60, 64, 92
sW, sTI, sQ, sU, sROT, sXO, sWOF, sMX, sMW, sI, sJ, sROT0 = range(68, 80)
sT = list(range(80, 90))
sEXW, sEXO = 90, 91
sC1 = 96
sF2, sRH, sRING, sOO = 98, 99, 100, 101
sHO = 3
sKVM, sKVO, sQA, sGA = 32, 33, 34, 35
sF2R = 46
sR = [sRH, 44, 45, 47]
def srd(n): return f"s[{n}:{n+3}]"
def vr(b, n): return f"v[{b}:{b+n-1}]"

vXS0, vXS1, vWS = 1, 2, 3
vST = 4
vXR = [5, 6, 7, 8]
vWR = [9, 10]
vES, vER, vSA = 11, [12, 13], 30
vL16, vLANE = 14, 15
vC0 = 16
vZ = 17
vGT = 18
t0, t1, t2, t3 = 20, 21, 22, 23
vS0, vWS2 = 28, 27
vPV, vPD, vTRP = 29, 0, 31
F = [32, 48]
ACC = [64, 96]
XF = 128
ACCE, WE = 96, 100
GW = 147456
L = vLANE
QA, QB, KF, V2, V1 = 128, 132, 136, 140, [144, 148]
vG, vIDX, vAK, vAV, vKVS = 152, 154, 155, 156, 157
vDR0, vDR1, vH0, vH1 = 159, 160, 161, 162
vDS, vDS1, vF2 = vPD, 158, 163
F2D = 164
OA, OB, SA, SB = 176, 192, 208, 224
WF = [240, 248]
HF = [32, 40, 48, 56]
DACC = 64

a = Asm()
CLK = 's_memtime' if OPT['stamp'] == 2 else 's_memrealtime'
def stamp(k, grp=0):
    if grp != OPT['grp'] and k != 11: return
    if OPT['stamp']: a(f"{CLK} s[{4+2*k}:{5+2*k}]")
def mk_srd(n, p, size):
    a(f"s_mov_b32 s{n}, s{p}\ns_mov_b32 s{n+1}, s{p+1}\ns_mov_b32 s{n+2}, {size}\ns_mov_b32 s{n+3}, 0x20000")

PG = 3584
C0 = -2.0 * math.sqrt(2.0 / math.pi) * math.log2(math.e)
C1 = C0 * 0.044715
QS = 0.25 * math.log2(math.e)

a("s_cmp_ge_u32 s2, 256\ns_cbranch_scc1 L_end")
a("s_load_dwordx16 s[4:19], s[0:1], 0\ns_load_dwordx8 s[20:27], s[0:1], 64\ns_load_dwordx2 s[28:29], s[0:1], 96")
if OPT['stamp']: a(f"{CLK} s[30:31]")
def code_prefetch():
    a(f"""
    s_getpc_b64 s[{sT[8]}:{sT[9]}]
    L_pc:
    s_andn2_b32 s{sT[7]}, s2, 7
    s_lshl_b32 s{sT[7]}, s{sT[7]}, 8
    v_lshl_add_u32 v{t3}, v0, 2, s{sT[7]}
    v_min_u32 v{t3}, L_last-L_pc-4, v{t3}
    s_mov_b32 exec_lo, 1
    s_mov_b32 exec_hi, 1
    global_load_dword v{vS0}, v{t3}, s[{sT[8]}:{sT[9]}]
    s_mov_b64 exec, -1
    """)
if OPT['cpf'] == 1: code_prefetch()
a(f"""
v_readfirstlane_b32 s{sW}, v0
v_lshrrev_b32 v{t1}, 4, v0
v_lshrrev_b32 v{t0}, 3, v0
v_xor_b32 v{t1}, v0, v{t1}
s_lshr_b32 s{sU}, s2, 6
s_bfe_u32 s{sJ}, s2, 0x30003
v_and_b32 v{t1}, 7, v{t1}
s_and_b32 s{sT[2]}, s2, 1
s_lshl3_add_u32 s{sTI}, s{sT[2]}, s{sJ}
v_lshlrev_b32 v{t1}, 4, v{t1}
s_lshl1_add_u32 s{sROT0}, s{sU}, s{sJ}
s_and_b32 s{sROT0}, s{sROT0}, 7
v_lshl_add_u32 v{vXS0}, v{t0}, 10, v{t1}
s_lshl_b32 s{sT[0]}, s{sTI}, 17
s_lshl_b32 s{sXO}, s{sROT0}, 7
s_add_u32 s{sXO}, s{sXO}, s{sT[0]}
s_lshl_b32 s{sMW}, s{sW}, 4
s_mov_b32 m0, s{sMW}
s_mov_b32 s{SX+2}, {2048*1024}
s_mov_b32 s{SX+3}, 0x20000
""")
a(f"""
s_bfe_u32 s{sT[1]}, s{sW}, 0x10006
s_lshl_b32 s{sT[1]}, s{sT[1]}, 2
v_and_or_b32 v{t1}, v{t0}, 2, s{sT[1]}
s_bfe_u32 s{sQ}, s2, 0x20001
s_mul_i32 s{sT[1]}, s{sQ}, 7
v_xor_b32 v{t1}, v0, v{t1}
s_lshl1_add_u32 s{sT[1]}, s{sU}, s{sT[1]}
s_sub_u32 s{sT[1]}, s{sT[1]}, 1
v_and_b32 v{t1}, 7, v{t1}
s_lshl_b32 s{sT[2]}, s{sQ}, 1
s_movk_i32 s{sT[3]}, {PG}
v_lshlrev_b32 v{vWS2}, 4, v{t1}
s_mov_b32 s{SWG+3}, 0x20000
s_mov_b32 s{SWU+3}, 0x20000
s_cmp_eq_u32 s{sU}, 0
s_cselect_b32 s{sT[1]}, s{sT[2]}, s{sT[1]}
s_cselect_b32 s{sT[3]}, 1024, s{sT[3]}
s_cselect_b32 s{sT[2]}, 128, 0
v_mad_u32_u24 v{vWS}, v{t0}, s{sT[3]}, v{vWS2}
s_lshl_b32 s{SWG+2}, s{sT[3]}, 9
s_mov_b32 s{SWU+2}, s{SWG+2}
s_mul_i32 s{sWOF}, s{sROT0}, s{sT[3]}
s_lshl1_add_u32 s{sWOF}, s{sT[1]}, s{sWOF}
s_lshl_b32 s{sWOF}, s{sWOF}, 6
s_cmp_eq_u32 s{sU}, 0
{CLK + ' s[84:85]' if OPT['grp'] == 5 else ''}
s_waitcnt lgkmcnt(0)
{CLK + ' s[86:87]' if OPT['grp'] == 5 else ''}
s_mov_b64 s[{SX}:{SX+1}], s[4:5]
s_cselect_b64 s[{SWG}:{SWG+1}], s[6:7], s[16:17]
s_cselect_b64 s[{SWU}:{SWU+1}], s[6:7], s[18:19]
""")
def first_stage(x0, x1, xstep, wstep):
    a(f"""
    buffer_load_dwordx4 v{x0}, {srd(SX)}, s{sXO} offen lds
    s_add_u32 m0, s{sMW}, {WR}
    s_add_u32 s{sXO}, s{sXO}, {xstep}
    buffer_load_dwordx4 v{vWS}, {srd(SWG)}, s{sWOF} offen lds
    s_add_u32 m0, s{sMW}, {WR + 8192}
    s_add_u32 s{sWOF}, s{sWOF}, {wstep}
    buffer_load_dwordx4 v{vWS}, {srd(SWU)}, s{sWOF} offen lds
    s_add_u32 m0, s{sMW}, 8192
    s_nop 0
    buffer_load_dwordx4 v{x1}, {srd(SX)}, s{sXO} offen lds
    """)
if OPT['qfirst']: a("s_cbranch_scc0 L_late")
first_stage(vXS0, vXS0, 65536, f"s{sT[2]}")
if OPT['qfirst']: a("L_late:")
if OPT['grp'] == 5: a(f"{CLK} s[88:89]\ns_waitcnt lgkmcnt(0)\ns_mov_b32 s4, s84\ns_mov_b32 s14, s86\ns_mov_b32 s5, s88")
a(f"""
s_lshr_b32 s{sW}, s{sW}, 6
v_add_u32 v{vXS0}, s{sT[0]}, v{vXS0}
v_add_u32 v{vXS1}, 0x10000, v{vXS0}
s_sub_u32 s{sXO}, s{sXO}, s{sT[0]}
s_lshl_b32 s{sT[1]}, s{sT[1]}, 7
s_sub_u32 s{sWOF}, s{sWOF}, s{sT[1]}
v_add_u32 v{vWS}, s{sT[1]}, v{vWS}
s_movk_i32 s{sT[3]}, {PG}
v_mad_u32_u24 v{vWS2}, v{t0}, s{sT[3]}, v{vWS2}
s_mul_i32 s{sT[1]}, s{sQ}, {7*128}
v_add_u32 v{vWS2}, s{sT[1]}, v{vWS2}
v_and_b32 v{L}, 63, v0
v_lshlrev_b32 v{vL16}, 4, v{L}
s_and_b32 s{sT[0]}, s2, 7
s_lshl2_add_u32 s{sI}, s{sT[0]}, s{sU}
s_add_u32 s{sROT}, s{sROT0}, 1
s_and_b32 s{sROT}, s{sROT}, 7
s_lshl_b32 s{sMX}, s{sW}, 11
""")
def late_loads(k):
    if OPT['qfirst'] != k: return
    a(f"s_cmp_eq_u32 s{sU}, 0\ns_cbranch_scc1 L_early")
    first_stage(vXS0, vXS1, 0, 0)
    a("L_early:")
late_loads(1)
def dispatch():
    a(f"""
    s_lshr_b32 s{sT[1]}, s{sW}, 2
    s_lshl1_add_u32 s{sT[0]}, s{sU}, s{sT[1]}
    s_lshr_b32 s{sT[1]}, s{sQ}, 1
    s_lshl1_add_u32 s{sT[0]}, s{sT[0]}, s{sT[1]}
    s_cmp_eq_u32 s{sT[0]}, 0
    s_cbranch_scc1 L_pathK
    s_cmp_eq_u32 s{sT[0]}, 1
    s_cbranch_scc1 L_pathV
    s_cmp_lt_u32 s{sT[0]}, 4
    s_cbranch_scc1 L_pathP
    s_cmp_eq_u32 s{sT[0]}, 4
    s_cbranch_scc1 L_pathS
    s_add_u32 s{sT[0]}, s{sMW}, s2
    s_cmp_eq_u32 s{sT[0]}, {CLEAR_WG + 1024}
    s_cbranch_scc1 L_pathC
    """)

PATH = ['G']
def wslot(sig):
    if sig < 8: return WR + (sig & 3) * 16384
    if sig >= 14: return EX + (sig - 14) * 16384
    return (0 if sig & 1 else WR) + ((sig - 8) >> 1) * 16384
def waddr(sig, b):
    return {0: vXR[b], 1: vWR[b], 2: vXR[2 + b]}[wslot(sig) >> 16]

def dma_ops(sig, path):
    p = sig >> 3
    isq = (path in 'KVP' and p == 0)
    pitch = 1024 if isq else PG
    sa, sb = (SWQ, SWQ) if isq else (SWG, SWU)
    xs, ws = (sig & 3) * 16384, wslot(sig)
    pre = f"s_mul_i32 s{sWOF}, s{sROT}, {64*pitch}\n"
    if path in 'GSC' and p == 1: pre += f"s_add_u32 s{sWOF}, s{sWOF}, 128\n"
    mid = f"s_add_u32 s{sWOF}, s{sWOF}, 128\n" if isq else ""
    inc, wrap = f"s_add_u32 s{sROT}, s{sROT}, 1\n", f"s_and_b32 s{sROT}, s{sROT}, 7\n"
    vw = vWS2 if (path in 'KVP' and p == 1) else vWS
    wa = f"s_add_u32 m0, s{sMW}, {ws}\n{{}}buffer_load_dwordx4 v{vw}, {srd(sa)}, s{sWOF} offen lds"
    wb = f"s_add_u32 m0, s{sMW}, {ws+8192}\n{{}}buffer_load_dwordx4 v{vw}, {srd(sb)}, s{sWOF} offen lds"
    if p == 0:
        return [f"s_add_u32 m0, s{sMW}, {xs}\ns_lshl_b32 s{sXO}, s{sROT}, 7\nbuffer_load_dwordx4 v{vXS0}, {srd(SX)}, s{sXO} offen lds",
                wa.format(pre), wb.format(mid + inc),
                f"s_add_u32 m0, s{sMW}, {xs+8192}\n{wrap}buffer_load_dwordx4 v{vXS1}, {srd(SX)}, s{sXO} offen lds"]
    return [wa.format(pre), wb.format(inc + wrap)]

def setup_common():
    mk_srd(SWS, 28, WS_SIZE)
    if OPT.get('wso'): a(f"s_add_u32 s{SWS}, s{SWS}, {OPT['wso'] << 20}\ns_addc_u32 s{SWS+1}, s{SWS+1}, 0")
    mk_srd(SDBG, 26, 256); mk_srd(SWD, 20, 1792 * 1024); mk_srd(SWO, 12, 512 * 1024); mk_srd(SOUT, 24, 2048 * 1024)
    late_loads(2)
    a(f"""
    s_and_b32 s{sT[0]}, s{sW}, 3
    s_lshr_b32 s{sT[1]}, s{sW}, 2
    s_xor_b32 s{sT[5]}, s{sT[1]}, s{sQ}
    s_and_b32 s{sT[5]}, s{sT[5]}, 1
    s_lshl1_add_u32 s{sT[0]}, s{sT[0]}, s{sT[5]}
    s_lshl_b32 s{sT[0]}, s{sT[0]}, 11
    v_and_b32 v{t0}, 15, v{L}
    v_bfe_u32 v{t1}, v{L}, 1, 3
    v_lshrrev_b32 v{t2}, 4, v{L}
    v_xor_b32 v{t1}, v{t1}, v{t2}
    v_lshlrev_b32 v{t1}, 4, v{t1}
    v_lshl_add_u32 v{t1}, v{t0}, 7, v{t1}
    v_add_u32 v{vXR[0]}, s{sT[0]}, v{t1}
    v_xor_b32 v{vXR[1]}, 0x800, v{vXR[0]}
    v_xor_b32 v{vXR[2]}, 64, v{vXR[0]}
    v_xor_b32 v{vXR[3]}, 64, v{vXR[1]}
    s_lshl_b32 s{sT[2]}, s{sT[5]}, 8
    v_xor_b32 v{vST}, s{sT[2]}, v{vL16}
    """)
    a(f"""
    v_lshrrev_b32 v{t3}, 5, v{L}
    v_lshlrev_b32 v{t0}, 4, v{t0}
    v_lshl_add_u32 v{vPV}, v{t3}, 8, v{t0}
    """)
    late_loads(3)
    a(f"""
    v_bfe_u32 v{t0}, v{L}, 2, 2
    v_lshl_add_u32 v{t1}, v{t2}, 3, v{t0}
    v_lshlrev_b32 v{t1}, 7, v{t1}
    v_bfe_u32 v{t2}, v{L}, 3, 2
    s_lshl_b32 s{sT[1]}, s{sT[1]}, 1
    v_xor_b32 v{t2}, s{sT[1]}, v{t2}
    v_lshl_add_u32 v{t1}, v{t2}, 5, v{t1}
    v_and_b32 v{t2}, 3, v{L}
    v_lshl_add_u32 v{t1}, v{t2}, 3, v{t1}
    v_add_u32 v{vWR[0]}, {WR}, v{t1}
    v_xor_b32 v{vWR[1]}, 32, v{vWR[0]}
    """)
    a(f"""
    v_lshl_add_u32 v{t3}, v{t3}, 3, v{t0}
    v_lshlrev_b32 v{t3}, 7, v{t3}
    v_lshrrev_b32 v{t0}, 1, v{t0}
    v_lshl_add_u32 v{t3}, v{t0}, 6, v{t3}
    v_lshl_add_u32 v{t3}, v{t2}, 3, v{t3}
    v_bfe_u32 v{t2}, v{L}, 4, 1
    v_lshl_add_u32 v{vTRP}, v{t2}, 5, v{t3}
    v_lshlrev_b32 v{t2}, 2, v{t2}
    v_and_b32 v{t1}, 7, v{L}
    v_xor_b32 v{t1}, v{t1}, v{t2}
    v_lshlrev_b32 v{t1}, 4, v{t1}
    v_lshrrev_b32 v{t0}, 3, v{L}
    v_lshl_add_u32 v{t0}, v{t0}, 10, v{t1}
    s_lshl_b32 s{sT[0]}, s{sJ}, 7
    v_add_u32 v{vPD}, s{sT[0]}, v{t0}
    v_mov_b32 v{vZ}, 0
    v_mov_b32 v{vC0}, {fbits(C0):#x}
    s_mov_b32 s{sC1}, {fbits(C1):#x}
    s_mov_b32 s{sC1+1}, {fbits(C1):#x}
    """)
    late_loads(4)
    a(f"""
    s_lshr_b32 s{sT[3]}, s{sW}, 2
    s_and_b32 s{sT[1]}, s{sW}, 3
    s_lshl2_add_u32 s{sT[0]}, s{sTI}, s{sT[1]}
    s_lshl_b32 s{sT[8]}, s{sT[0]}, 5
    s_and_b32 s{sT[2]}, s{sT[0]}, 15
    s_lshr_b32 s{sT[0]}, s{sT[0]}, 4
    s_mul_i32 s{sT[0]}, s{sT[0]}, 112
    s_mul_i32 s{sT[1]}, s{sQ}, 28
    s_add_u32 s{sT[0]}, s{sT[0]}, s{sT[1]}
    s_lshl3_add_u32 s{sT[0]}, s{sU}, s{sT[0]}
    s_lshl1_add_u32 s{sT[0]}, s{sT[3]}, s{sT[0]}
    s_lshl4_add_u32 s{sT[0]}, s{sT[0]}, s{sT[2]}
    s_lshl_b32 s{sT[0]}, s{sT[0]}, 10
    s_add_u32 s{sHO}, s{sT[0]}, {WS_H}
    s_lshl3_add_u32 s{sT[4]}, s{sQ}, s{sT[8]}
    s_lshl1_add_u32 s{sT[4]}, s{sT[3]}, s{sT[4]}
    s_lshl_b32 s{sT[4]}, s{sT[4]}, 10
    s_lshl2_add_u32 s{sT[1]}, s{sQ}, s{sU}
    s_lshl2_add_u32 s{sF2}, s{sTI}, s{sQ}
    s_lshl_b32 s{sF2}, s{sF2}, 5
    s_add_u32 s{sF2}, s{sF2}, s{sU}
    s_lshl_b32 s{sF2}, s{sF2}, 2
    s_add_u32 s{sF2}, s{sF2}, {WS_F2}
    s_lshl1_add_u32 s{sT[9]}, s{sT[1]}, s{sT[8]}
    s_add_u32 s{sT[9]}, s{sT[9]}, s{sT[3]}
    s_lshl_b32 s{sT[9]}, s{sT[9]}, 10
    s_add_u32 s{sT[9]}, s{sT[9]}, {WS_O}
    s_and_b32 s{sT[1]}, s{sW}, 1
    s_lshl1_add_u32 s{sT[1]}, s{sI}, s{sT[1]}
    s_lshl3_add_u32 s{sT[2]}, s{sT[1]}, s{sJ}
    s_lshl_b32 s{sT[2]}, s{sT[2]}, 2
    s_and_b32 s{sT[1]}, s{sW}, 2
    s_add_u32 s{sT[2]}, s{sT[2]}, s{sT[1]}
    s_add_u32 s{sT[2]}, s{sT[2]}, s{sT[3]}
    s_lshl_b32 s{sOO}, s{sT[2]}, 10
    s_lshl_b32 s{sRING}, s{sW}, 13
    s_add_u32 s{sRING}, s{sRING}, {RING}
    s_mul_i32 s{sRH}, s{sJ}, 7
    s_lshr_b32 s{sRH}, s{sRH}, 2
    s_mul_i32 s{sT[1]}, s{sU}, 7
    s_lshr_b32 s{sT[1]}, s{sT[1]}, 1
    s_add_u32 s{sRH}, s{sRH}, s{sT[1]}
    s_cmp_ge_u32 s{sRH}, 14
    s_cselect_b32 s{sT[1]}, 14, 0
    s_sub_u32 s{sRH}, s{sRH}, s{sT[1]}
    s_lshl_b32 s{sRH}, s{sRH}, 14
    s_mul_i32 s{sT[1]}, s{sW}, {14*16384}
    s_add_u32 s{SWD}, s{SWD}, s{sT[1]}
    s_addc_u32 s{SWD+1}, s{SWD+1}, 0
    s_sub_u32 s{SWD+2}, s{SWD+2}, s{sT[1]}
    s_lshl_b32 s{sT[1]}, s{sW}, 16
    s_add_u32 s{SWO}, s{SWO}, s{sT[1]}
    s_addc_u32 s{SWO+1}, s{SWO+1}, 0
    s_sub_u32 s{SWO+2}, s{SWO+2}, s{sT[1]}
    """)

def setup_path(P):
    if P in 'KV':
        a(f"""
        v_lshrrev_b32 v{t2}, 4, v{L}
        v_and_b32 v{t0}, 15, v{L}
        v_lshlrev_b32 v{t1}, 3, v{t0}
        v_lshl_add_u32 v{t1}, v{t2}, 8, v{t1}
        v_and_b32 v{t3}, 1, v{t2}
        v_lshl_add_u32 v{t1}, v{t3}, 7, v{t1}
        v_add_u32 v{vER[0]}, {EX}, v{t1}
        v_xor_b32 v{vER[1]}, 0x80, v{vER[0]}
        v_lshlrev_b32 v{t1}, 7, v{t3}
        v_xor_b32 v{vES}, v{t1}, v{vL16}
        s_add_u32 s{sEXO}, s{sW}, s{sROT0}
        s_and_b32 s{sEXO}, s{sEXO}, 7
        s_lshl_b32 s{sEXO}, s{sEXO}, 11
        s_lshr_b32 s{sEXW}, s{sT[4]}, 15
        v_lshrrev_b32 v{t2}, 1, v{t2}
        """)
        if P == 'K':
            a(f"""
            s_lshl3_add_u32 s{sEXW}, s{sEXW}, s{sT[5]}
            s_lshl_b32 s{sEXW}, s{sEXW}, 8
            v_lshlrev_b32 v{t2}, 9, v{t2}
            """)
        else:
            a(f"""
            s_lshl2_add_u32 s{sEXW}, s{sEXW}, s{sT[5]}
            s_lshl_b32 s{sEXW}, s{sEXW}, 9
            s_add_u32 s{sEXW}, s{sEXW}, 1024
            v_lshlrev_b32 v{t2}, 8, v{t2}
            v_and_b32 v{t0}, 3, v{L}
            v_bfe_u32 v{t1}, v{L}, 2, 1
            v_lshl_add_u32 v{t0}, v{t1}, 3, v{t0}
            v_bfe_u32 v{t1}, v{L}, 3, 1
            v_lshl_add_u32 v{t0}, v{t1}, 2, v{t0}
            """)
        a(f"""
        v_lshl_add_u32 v{t2}, v{t0}, 4, v{t2}
        v_lshl_add_u32 v{vSA}, v{t3}, 3, v{t2}
        """)
    if P == 'P':
        a(f"""
        v_bfe_u32 v{t1}, v{L}, 4, 1
        v_lshlrev_b32 v{t1}, 7, v{t1}
        v_xor_b32 v{vES}, v{t1}, v{vL16}
        s_add_u32 s{sEXO}, s{sW}, s{sROT0}
        s_and_b32 s{sEXO}, s{sEXO}, 7
        s_lshl_b32 s{sEXO}, s{sEXO}, 11
        """)
    if P == 'S':
        a(f"""
        s_lshl_b32 s{sEXO}, s{sROT0}, 7
        v_add_u32 v{vES}, s{sEXO}, v{vL16}
        v_and_b32 v{vES}, 0x3ff, v{vES}
        v_and_b32 v{t0}, 48, v{L}
        v_add_u32 v{vER[0]}, {GW}, v{t0}
        v_and_b32 v{t0}, 15, v{L}
        v_lshlrev_b32 v{vSA}, 2, v{t0}
        s_lshr_b32 s{sEXW}, s{sT[4]}, 15
        s_lshl1_add_u32 s{sEXW}, s{sEXW}, s{sT[5]}
        s_lshl_b32 s{sEXW}, s{sEXW}, 6
        s_add_u32 s{sEXW}, s{sEXW}, {WS_G}
        """)

def x_reads(sig, j):
    return [f"ds_read_b128 {vr(XF + 16*sig + 8*j + 4*tq, 4)}, v{vXR[2*j+tq]} offset:{(sig & 3) * 16384}" for tq in range(2)]
def w_reads(sig, j, i):
    b, part = i >> 1, i & 1
    off = (wslot(sig) & 0xffff) + part * 8192 + j * 4096
    return [f"ds_read_b64_tr_b16 {vr(F[j] + 4*i + 2*e, 2)}, v{waddr(sig, b)} offset:{off + e*512}" for e in range(2)]
def e_steps(c):
    c0 = 2 * OPT['exs']
    if PATH[0] in 'KVS': return [2 * (c - c0), 2 * (c - c0) + 1] if c0 <= c < 2 * c0 else ([c] if 2 * c0 <= c < 16 else [])
    return []
def e_buf(c, i): return WE + 16 + 4 * i if (PATH[0] == 'S' and c == 15) else WE + 8 * (c & 1) + 4 * i
def e_reads(c):
    if PATH[0] == 'S':
        cs = [] if c == 15 else ([14, 15] if c == 14 else [c])
        return [f"ds_read_b128 {vr(e_buf(x, i), 4)}, v{vER[0]} offset:{k*64}" for x in cs for i, k in enumerate(e_steps(x))]
    return [f"ds_read_b64_tr_b16 {vr(e_buf(c, i) + 2*e, 2)}, v{vER[e]} offset:{k*1024}" for i, k in enumerate(e_steps(c)) for e in range(2)]
def e_mfmas(c):
    out = []
    for i, k in enumerate(e_steps(c)):
        acc, w, x = vr(ACCE, 4), vr(e_buf(c, i), 4), vr(XF + 8 * k, 4)
        A, B = (x, w) if PATH[0] == 'V' else (w, x)
        out.append(f"v_mfma_f32_16x16x32_bf16 {acc}, {A}, {B}, {'0' if k == 0 else acc}")
    return out
def mfmas(sig, j):
    out = []
    for i in range(4):
        for tq in range(2):
            d = vr(ACC[sig >> 3] + 8 * i + 4 * tq, 4)
            c = "0" if ((sig & 7) == 0 and j == 0) else d
            out.append(f"v_mfma_f32_16x16x32_bf16 {d}, {vr(F[j] + 4*i, 4)}, {vr(XF + 16*(sig&7) + 8*j + 4*tq, 4)}, {c}")
    return out

def gelu_pair(base, j, T=vGT, pk=False):
    G = vr(base + 2 * j, 2); U = vr(base + 8 + 2 * j, 2); TT = vr(T, 2)
    g0, g1, u0, u1 = base + 2 * j, base + 2 * j + 1, base + 8 + 2 * j, base + 9 + 2 * j
    if pk:
        return [f"v_pk_mul_f32 {TT}, {G}, {G}",
                f"v_pk_fma_f32 {TT}, {TT}, s[{sC1}:{sC1+1}], {vr(vC0,2)} op_sel_hi:[1,1,0]",
                f"v_pk_mul_f32 {TT}, {TT}, {G}",
                f"v_exp_f32 v{T}, v{T}", f"v_exp_f32 v{T+1}, v{T+1}",
                f"v_pk_mul_f32 {G}, {G}, {U}",
                f"v_pk_add_f32 {TT}, {TT}, 1.0 op_sel_hi:[1,0]",
                f"v_rcp_f32 v{T}, v{T}", f"v_rcp_f32 v{T+1}, v{T+1}",
                f"v_pk_mul_f32 {G}, {G}, {TT}",
                f"v_cvt_pk_bf16_f32 v{base+j}, v{g0}, v{g1}"]
    return [f"v_mul_f32 v{T}, v{g0}, v{g0}", f"v_mul_f32 v{T+1}, v{g1}, v{g1}",
            f"v_fma_f32 v{T}, v{T}, s{sC1}, v{vC0}", f"v_fma_f32 v{T+1}, v{T+1}, s{sC1}, v{vC0}",
            f"v_mul_f32 v{T}, v{T}, v{g0}", f"v_mul_f32 v{T+1}, v{T+1}, v{g1}",
            f"v_exp_f32 v{T}, v{T}", f"v_exp_f32 v{T+1}, v{T+1}",
            f"v_mul_f32 v{g0}, v{g0}, v{u0}", f"v_add_f32 v{T}, 1.0, v{T}", f"v_add_f32 v{T+1}, 1.0, v{T+1}",
            f"v_rcp_f32 v{T}, v{T}", f"v_rcp_f32 v{T+1}, v{T+1}",
            f"v_mul_f32 v{g1}, v{g1}, v{u1}",
            f"v_mul_f32 v{g0}, v{g0}, v{T}", f"v_mul_f32 v{g1}, v{g1}, v{T+1}",
            f"v_cvt_pk_bf16_f32 v{base+j}, v{g0}, v{g1}"]
def to_frag(base):
    return [f"v_permlane16_swap_b32 v{base}, v{base+2}", f"v_permlane16_swap_b32 v{base+1}, v{base+3}"]

def cost(x):
    c = 0
    for l in x.strip().split('\n'):
        l = l.strip()
        if not l or l.startswith(';') or l.endswith(':'): continue
        c += 8 if l.startswith(('v_exp', 'v_rcp')) else (OPT.get('vmc', 16) if l.startswith('buffer_') else 4)
    return c

kvtok = {}
def kv_step(m):
    slot = (4 * m % NSLOT) * 2048
    if m == 0: x = f"s_mov_b32 m0, s{sKVM}\ns_nop 0\n"
    else: x = f"s_add_u32 s{sKVO}, s{sKVO}, 8192\ns_add_u32 m0, s{sKVM}, {slot}\ns_and_b32 s{sKVO}, s{sKVO}, 0xffff\n"
    return [x + f"buffer_load_dwordx4 v{vKVS}, {srd(SWS)}, s{sKVO} offen sc1 lds", f"buffer_load_dwordx4 v{vKVS}, {srd(SWS)}, s{sKVO} offen offset:1024 sc1 lds"]
KV_FIRST = 2
def first_loads():
    return [f"buffer_load_dwordx4 {vr(QA,4)}, v{vL16}, {srd(SWS)}, s{sQA} offen sc1\ns_xor_b32 s{sQA}, s{sQA}, 1024"] + kv_step(0) + \
           [f"buffer_load_dwordx4 {vr(QB,4)}, v{vL16}, {srd(SWS)}, s{sQA} offen sc1"] + kv_step(1)

def setup_queue(late=False):
    q = []
    def add(st, txt):
        for l in txt.strip().split('\n'): q.append((st, l.strip().replace('|', '\n')))
    add(11, f"""
    s_lshr_b32 s{sT[3]}, s{sW}, 2
    s_and_b32 s{sT[5]}, s{sW}, 1
    s_lshl_b32 s{sT[6]}, s{sT[3]}, 16
    v_add_u32 v{vKVS}, s{sT[6]}, v{vL16}
    s_mul_i32 s{sT[3]}, s{sT[3]}, {HALF}
    v_add_u32 v{vAK}, s{sT[3]}, v{vL16}
    v_add_u32 v{vAV}, s{sT[3]}, v{vPV}
    s_and_b32 s{sT[6]}, s{sW}, 3
    s_lshl_b32 s{sT[7]}, s{sT[6]}, 11
    s_add_u32 s{sKVM}, s{sT[7]}, s{sT[3]}
    s_lshr_b32 s{sT[7]}, s2, 3
    s_add_u32 s{sT[6]}, s{sT[6]}, s{sT[7]}
    s_and_b32 s{sT[6]}, s{sT[6]}, 31
    s_lshl_b32 s{sKVO}, s{sT[6]}, 11
    s_add_u32 s{sQA}, s{sOO}, {WS_Q}
    s_xor_b32 s{sQA}, s{sQA}, 1024
    s_lshl1_add_u32 s{sGA}, s{sI}, s{sT[5]}
    s_lshl_b32 s{sGA}, s{sGA}, 7
    s_add_u32 s{sGA}, s{sGA}, {WS_G}
    v_and_b32 v{vG}, 31, v{L}
    v_lshlrev_b32 v{vG}, 2, v{vG}
    v_mov_b32 v{vIDX}, 0xdddddddd
    v_mov_b32 v{V2+1}, 0x3f803f80
    s_mov_b32 vcc_lo, 0x110000|s_mov_b32 vcc_hi, 0x110000|v_cndmask_b32 v{V2}, 0, v{V2+1}, vcc
    """)
    for r in range(V2 + 1, V2 + 12): add(11, f"v_mov_b32 v{r}, v{V2}")
    add(12, f"""
    v_add_u32 v{vDR0}, s{sRING}, v{vTRP}
    v_xor_b32 v{vDR1}, 64, v{vDR0}
    v_add_u32 v{vDS1}, 7168, v{vDS}
    s_lshr_b32 s{sT[6]}, s{sI}, 3
    s_lshl3_add_u32 s{sT[6]}, s{sT[6]}, s{sW}
    s_mul_i32 s{sT[6]}, s{sT[6]}, {14*16}
    s_and_b32 s{sT[7]}, s{sI}, 7
    s_lshl1_add_u32 s{sT[7]}, s{sT[7]}, s{sT[5]}
    s_add_u32 s{sT[6]}, s{sT[6]}, s{sT[7]}
    s_lshl_b32 s{sT[6]}, s{sT[6]}, 10
    s_add_u32 s{sT[6]}, s{sT[6]}, {WS_H}
    v_add_u32 v{vH0}, s{sT[6]}, v{vL16}
    v_xor_b32 v{vH1}, 0x400, v{vH0}
    v_lshlrev_b32 v{vF2}, 7, v{L}
    s_lshr_b32 s{sF2R}, s{sI}, 1
    s_lshl_b32 s{sF2R}, s{sF2R}, 9
    s_add_u32 s{sF2R}, s{sF2R}, {WS_F2}
    """)
    for r in range(9): add(13, f"v_mov_b32 v{OA+r}, 0")
    for r in range(9): add(14, f"v_mov_b32 v{OB+r}, 0")
    if OPT['vlate']:
        cut = [i for i, x in enumerate(q) if x[1].startswith(f"v_and_b32 v{vG}, 31")][0]
        if late: return [x[1] for x in q[cut:]]
        return q[:cut]
    return [] if late else q

cold = []
def s0_check(P):
    a(f"v_cmp_eq_u32 vcc, 0, v{vS0}\ns_cbranch_vccnz L_s0retry{P}\nL_s0done{P}:")
    cold.append(f"""
    L_s0retry{P}:
    s_mov_b32 s{sT[1]}, 0
    L_s0poll{P}:
    buffer_load_dword v{vS0}, v{vZ}, {srd(SDBG)}, 0 offen sc1
    s_add_u32 s{sT[1]}, s{sT[1]}, 1
    s_waitcnt vmcnt(0)
    v_cmp_eq_u32 vcc, 0, v{vS0}
    s_cbranch_vccz L_s0done{P}
    s_cmp_lt_u32 s{sT[1]}, {SPIN}
    s_cbranch_scc1 L_s0poll{P}
    s_branch L_s0done{P}
    """)
def s1_issue(P):
    a(f"s_cmp_lg_u32 s{sW}, 0\ns_cbranch_scc1 L_nopoll0{P}")
    if P in 'GSC': s0_check(P)
    a(f"""
    s_mov_b32 s{sT[1]}, {WS_F1}
    v_lshlrev_b32 v{t1}, 7, v{L}
    buffer_load_dword v{t0}, v{t1}, {srd(SWS)}, s{sT[1]} offen sc1
    L_nopoll0{P}:
    """)
    a.vm -= 1
def s1_check(P):
    a(f"""
    s_cmp_lg_u32 s{sW}, 0
    s_cbranch_scc1 L_s1done{P}
    s_mov_b32 s{sT[0]}, 0
    L_s1poll{P}:
    s_waitcnt vmcnt(0)
    v_cmp_ne_u32 vcc, 1, v{t0}
    s_cbranch_vccz L_s1done{P}
    s_mov_b64 exec, vcc
    buffer_load_dword v{t0}, v{t1}, {srd(SWS)}, s{sT[1]} offen sc1
    s_mov_b64 exec, -1
    s_add_u32 s{sT[0]}, s{sT[0]}, 1
    s_cmp_lt_u32 s{sT[0]}, {SPIN}
    s_cbranch_scc1 L_s1poll{P}
    s_waitcnt vmcnt(0)
    L_s1done{P}:
    """)
    a.vm -= 1

def proj_path(P):
    tok = {}
    PATH[0] = P
    S1 = OPT['s1']
    sched = {s: [s + 2] for s in range(6)}
    ISQ = P in 'KVP'
    PB = OPT['pbq0'] if ISQ else OPT['pb']
    QF = OPT['qf']
    sched.update({6: [8, 9], 7: [10, 11], 8: [12, 13], 9: [14, 15]}); cover = {8: 9, 10: 11, 12: 15}
    if ISQ and OPT['qmode'] == 0:
        del sched[8], sched[9]
        sched.update({10: [12, 13], 11: [14, 15]}); cover = {8: 9, 10: 11, 12: 13, 14: 15}
    bars = set(range(8)) | set(cover) | {S1}
    if OPT['gb14']: bars |= {14}
    if OPT['gbar'] and not ISQ: bars |= set(range(8, 16))
    if ISQ: bars |= {QF} | ({9} if OPT['qmode'] else set()) | (set(range(10, 16)) if OPT['qbar'] else set())
    def dma_groups(sg):
        d = dma_ops(sg, P)
        if ISQ and sg == OPT['exs']:
            d.insert(1, f"""
            s_add_u32 m0, s{sMX}, {EX}
            s_nop 0
            buffer_load_dwordx4 v{vES}, {srd(SEX)}, s{sEXO} offen lds
            buffer_load_dwordx4 v{vES}, {srd(SEX)}, s{sEXO} offen offset:1024 lds
            """)
        if P == 'S' and sg == OPT['exs']:
            d.insert(1, f"s_mov_b32 m0, {GW}\ns_nop 0\nbuffer_load_dwordx4 v{vES}, {srd(SEX)}, 0 offen lds")
        return [(x, sg if k == len(d) - 1 else None) for k, x in enumerate(d)]
    def emit(it):
        if callable(it): return it()
        a(it[0])
        if it[1] is not None: tok[it[1]] = a.lastvm()
    tok[0] = a.lastvm()
    if ISQ: mk_srd(SWQ, 6, 512 * 1024)
    if not OPT['spf']:
        for it in dma_groups(1): emit(it)
    if ISQ: mk_srd(SWG, 16, 512 * PG); mk_srd(SWU, 18, 512 * PG)
    if P in 'KVS': mk_srd(SEX, {'K': 8, 'V': 10, 'S': 22}[P], 1024 if P == 'S' else 16384)
    if P == 'P': a(f"s_cmp_lt_u32 s{sQ}, 2\ns_cselect_b64 s[{SEX}:{SEX+1}], s[8:9], s[10:11]\ns_mov_b32 s{SEX+2}, 16384\ns_mov_b32 s{SEX+3}, 0x20000")
    setup_path(P)
    if OPT['grp'] == 5: a("s_mov_b32 s6, s14\ns_mov_b32 s8, s5")
    stamp(3, 5)
    if OPT['spf']:
        for it in dma_groups(1): emit(it)
    stamp(4, 5)
    if P == 'C':
        ctok = a(f"v_lshlrev_b32 v{t0}, 7, v{L}\ns_mov_b32 s{sT[1]}, {WS_F1}\nbuffer_store_dword v{vZ}, v{t0}, {srd(SWS)}, s{sT[1]} offen sc1")
    win = {c: [] for c in range(33)}
    box = {}; front = {}; pre8 = []; lvl = [3]
    def usable(c):
        return c % 2 == 0 or ((c + 1) // 2) not in bars
    def nxt(c):
        while not usable(c): c += 1
        return c
    if not ISQ:
        gq = []
        for b in range(2):
            for j in range(4): gq += gelu_pair(ACC[0] + 16 * b, j)
            gq += to_frag(ACC[0] + 16 * b)
            if b == 0: n0 = len(gq)
        npre = 17 * (PB - 1) if PB else 0
        pre8 += [(x, None) for j in range(max(PB - 1, 0)) for x in gelu_pair(ACC[0], j, pk=OPT.get('pbk', 0))]
        gq = gq[npre:]; n0 -= npre
        ws = [c for c in range(16, OPT['gend'] + 1) if usable(c)]
        ndma = {16: 2, 17: 2, 18: 4} if 9 not in bars else {16: 4, 18: 4}
        tot = len(gq) + OPT['dwt'] * 8
        done = 0; accw = 0
        for k, c in enumerate(ws):
            accw += OPT['dwt'] * ndma.get(c, 0)
            upto = max(done, tot * (k + 1) // len(ws) - accw)
            win[c] += [(x, None) for x in gq[done:upto]]
            if done < n0 <= upto: c0 = c
            done = upto
        assert done == len(gq)
        for b in range(OPT['nearly']):
            c = nxt(max(OPT[f'h{b}w'], c0 if b == 0 else ws[-1]))
            win[c].append((f"s_sub_u32 s{sT[2]}, s{sHO}, {65536 - 16384*b}\nbuffer_store_dwordx4 {vr(ACC[0]+16*b,4)}, v{vST}, {srd(SWS)}, s{sT[2]} offen sc1", None))
    else:
        qa = [f"s_add_u32 s{sT[8]}, s{sT[4]}, {WS_Q + 4096}\ns_add_u32 s{sT[4]}, s{sT[4]}, {WS_Q}"]
        if P == 'K': qa += [f"v_mul_f32 v{ACCE+r}, {fbits(QS):#x}, v{ACCE+r}" for r in range(4)]
        sts = []
        if P in 'KV':
            qa += [f"v_cvt_pk_bf16_f32 v{vGT}, v{ACCE}, v{ACCE+1}", f"v_cvt_pk_bf16_f32 v{vGT+1}, v{ACCE+2}, v{ACCE+3}"]
            sts.append(f"buffer_store_dwordx2 {vr(vGT,2)}, v{vSA}, {srd(SWS)}, s{sEXW} offen sc1")
        if P == 'P':
            sts.append(f"s_andn2_b32 s{sT[0]}, s{sF2}, 127\nv_lshlrev_b32 v{t2}, 2, v{L}\ns_mov_b32 exec_hi, 0\nbuffer_store_dword v{vZ}, v{t2}, {srd(SWS)}, s{sT[0]} offen sc1\ns_mov_b32 exec_hi, -1")
        def qcv(i): return [f"v_cvt_pk_bf16_f32 v{ACC[0]+8*i+j}, v{ACC[0]+8*i+2*j}, v{ACC[0]+8*i+2*j+1}" for j in range(4)]
        def qst(i): return to_frag(ACC[0] + 8 * i) + [f"buffer_store_dwordx4 {vr(ACC[0]+8*i,4)}, v{vST}, {srd(SWS)}, s{sT[8 if i & 1 else 4]} offen offset:{1024*(i>>1)} sc1"]
        mark = [lambda: box.update(q=a.lastvm())]
        T = lambda l: [(x, None) for x in l]
        if OPT['qmode'] == 0 and PB:
            pre8 += T(qa + qcv(0) + qcv(1) + qcv(2) + qcv(3) + [x for i in range(4) for x in qst(i)[:2]])
            if OPT.get('pbq'): pre8 += T(sts + [qst(i)[2] for i in range(4)]) + mark
            else: win[16] += T(sts + [qst(i)[2] for i in range(2)]); win[17] += T([qst(i)[2] for i in range(2, 4)]) + mark
        elif OPT['qmode'] == 0:
            win[16] += T(qa + sts + qcv(0) + qcv(1) + qst(0) + qst(1)); win[17] += T(qcv(2) + qcv(3) + qst(2) + qst(3)) + mark
        elif OPT['qmode'] == 1:
            win[16] += T(qa + qcv(0) + qcv(1)); win[18] += T(sts + qst(0) + qcv(2)); win[20] += T(qcv(3) + qst(1) + qst(2) + qst(3)) + mark
        else:
            win[16] += T(qa + qcv(0) + qcv(1) + qcv(2) + qcv(3)); win[18] += T(sts + qst(0) + qst(1) + qst(2) + qst(3)) + mark
        def qflag():
            assert a.vm_done > box['s0']
            if P != 'P': s0_check(P)
            a(f"""
            s_lshl4_add_u32 s{sT[0]}, s{sQ}, s{sTI}
            s_lshl_b32 s{sT[0]}, s{sT[0]}, 7
            s_add_u32 s{sT[0]}, s{sT[0]}, {WS_F1}
            s_lshl_b32 s{sT[1]}, s{sW}, 24
            s_add_u32 s{sT[0]}, s{sT[0]}, s{sT[1]}
            v_mov_b32 v{t1}, 1
            s_mov_b64 exec, 1
            buffer_store_dword v{t1}, v{vZ}, {srd(SWS)}, s{sT[0]} offen sc1
            s_mov_b64 exec, -1
            """)
        if P != 'P': box['flag'] = qflag
    if P == 'S':
        win[16] = [(x, None) for x in (f"v_mul_f32 v{t2}, {fbits(-math.log2(math.e)):#x}, v{ACCE}", f"v_exp_f32 v{t2}, v{t2}", f"v_add_f32 v{t2}, 1.0, v{t2}", f"v_rcp_f32 v{t2}, v{t2}")] + win[16]
        win[20].append((f"s_mov_b64 exec, 0xffff\nbuffer_store_dword v{t2}, v{vSA}, {srd(SWS)}, s{sEXW} offen sc1\ns_mov_b64 exec, -1", None))
    if OPT['clw'] <= 32:
        win[nxt(max(OPT['clw'], max(24, 2 * QF + 1) if ISQ else 0))].append(
            (f"v_mov_b32 v24, -1\nv_mov_b32 v25, -1\nv_mov_b32 v26, -1\nv_mov_b32 v27, -1\nbuffer_store_dwordx4 v[24:27], v{vL16}, {srd(SWS)}, s{sT[9]} offen sc1", None))
    queue = setup_queue()
    ws = [c for c in range(21 if ISQ else 20, 2 * S1 - 1) if usable(c)]
    for k, c in enumerate(ws):
        left = [x for x in queue if 2 * x[0] - 2 <= c]
        take = min(len(left), -(-len(queue) // (len(ws) - k)))
        win[c] += [(x[1], None) for x in left[:take]]; queue = queue[take:]
    assert not queue
    win[16].insert(0, (f"v_subrev_u32 v{vXR[0]}, {WR}, v{vWR[0]}\nv_subrev_u32 v{vXR[1]}, {WR}, v{vWR[1]}\nv_add_u32 v{vXR[2]}, {WR}, v{vWR[0]}\nv_add_u32 v{vXR[3]}, {WR}, v{vWR[1]}", None))

    def cluster(c, what='mr'):
        M = mfmas(c >> 1, c & 1) if (c >= 0 and 'm' in what) else []
        em = e_mfmas(c) if M else []
        for i, x in enumerate(em): M.insert(1 + (8 // len(em) + 1) * i, x)
        d = c + 1
        R = []
        if d < 32 and 'r' in what:
            if d < 16: R += x_reads(d >> 1, d & 1)
            for i in range(4): R += w_reads(d >> 1, d & 1, i)
            R += e_reads(d)
        a.wait(a.lastlg())
        if M and not OPT['lad']: a("s_setprio 2")
        n = max(len(M), 1); k = 0
        last = n - 1 if (c & 1 or ((c >> 1) + 1) not in bars) else n - 2
        if M: last = min(last, n - 1 - OPT['rq' if ISQ else 'rg'] if c >= 16 else n - 1 - OPT['r1'])
        for i in range(n):
            if M: a(M[i])
            want = len(R) if i >= last else -(-len(R) * (i + 1) // (last + 1))
            while k < want: a(R[k]); k += 1
        if M and not OPT['lad']: a("s_setprio 0")
        if M and OPT['lad'] and lvl[0] > 0 and not (c % 2 == 0 and (c >> 1) + 1 in bars and not (c == 14 and PB)):
            lvl[0] -= 1; a(f"s_setprio {lvl[0]}")

    for sig in range(16):
        if sig == 8 and PB:
            cluster(15, 'm')
            for it in pre8: emit(it)
        if sig in bars:
            if sig in cover or sig < 8: a.wait(tok[cover.get(sig, sig)])
            if ISQ and sig == QF: a.wait(box['q'])
            if sig == S1 and P != 'P': s1_check(P)
            if OPT['lad']: lvl[0] = 3; a("s_setprio 3")
            a("s_barrier")
            if sig == QF and 'flag' in box: box['flag']()
        if sig == 1: stamp(1)
        if sig == 8: stamp(2)
        if sig < 11: stamp(sig, 1)
        if sig < 5: stamp(5 + sig, 5)
        if sig >= 6: stamp(sig - 6, 2)
        D = []
        if P == 'C' and sig == 2:
            assert a.vm_done >= ctok[1]
            win[4].append((f"v_mov_b32 v{t0}, 1\ns_mov_b64 exec, 1\nbuffer_store_dword v{t0}, v{vZ}, {srd(SDBG)}, 0 offen sc1\ns_mov_b64 exec, -1", None))
        for sg in sched.get(sig, []): D += dma_groups(sg)
        if sig == S1: D += [(x, None) for x in first_loads()]
        if sig == (7 if ISQ else 9) and P != 'P':
            def s0_load():
                if not ISQ:
                    a(f"s_cmp_lg_u32 s{sW}, 0\ns_cbranch_scc1 L_nos0l{P}\nbuffer_load_dword v{vS0}, v{vZ}, {srd(SDBG)}, 0 offen sc1\nL_nos0l{P}:")
                    a.vm -= 1
                else:
                    a(f"buffer_load_dword v{vS0}, v{vZ}, {srd(SDBG)}, 0 offen sc1")
                box['s0'] = a.vm
            D.insert(len(D) - 1, s0_load)
        head, mid, tail = [], D, []
        if sig < OPT['late']: mid, tail = [], D
        elif (sig + 1) not in bars: mid, tail = D[:len(D)//2], D[len(D)//2:]
        elif sig in bars and len(D) >= 4: head, mid = D[:OPT['na']], D[OPT['na']:]
        for it in head: emit(it)
        cluster(2 * sig - 1, 'r' if (sig == 8 and PB) else 'mr')
        if sig == S1 - 1 and P != 'P':
            assert a.vm_done > box['s0']
            s1_issue(P)
        for it in front.get(2 * sig, []) + mid + win[2 * sig]: emit(it)
        cluster(2 * sig)
        for it in front.get(2 * sig + 1, []) + tail + win[2 * sig + 1]: emit(it)
    a.wait(a.lastlg())
    assert not win[32]

setup_common()
dispatch()
proj_path('G')
a("L_join:")
a.forget()

JE = OPT['jearly'] and OPT['s1'] == 16
if not JE:
    for m in mfmas(15, 1): a(m)
    a("s_setprio 0")
stamp(3); stamp(10, 2)
stamp(5, 3)
if OPT['s1'] == 16:
    s1_check('J')
    stamp(6, 3)
    a("s_barrier")
    stamp(7, 3)
    fl = first_loads()
    if JE:
        nfirst = OPT['jearly'] - 1
        for x in fl[:nfirst]: a(x)
        for m in mfmas(15, 1): a(m)
        fl = fl[nfirst:]
    for x in fl: a(x)
stamp(4); stamp(8, 3)
for b in range(2):
    for jp in range(2):
        g0 = gelu_pair(ACC[1] + 16 * b, 2 * jp, vGT, pk=OPT['pk2']); g1 = gelu_pair(ACC[1] + 16 * b, 2 * jp + 1, t0, pk=OPT['pk2'])
        for x, y in zip(g0, g1):
            a(x); a(y)
        if b == 1 and jp == 0:
            for x in to_frag(ACC[1]): a(x)
for x in to_frag(ACC[1] + 16): a(x)
for x in setup_queue(True): a(x)
a(f"s_mov_b32 s{sT[7]}, s{sT[9]}\ns_mov_b32 s{sT[8]}, 0xffff\ns_mov_b32 s{sT[9]}, 0xffff")
stamp(9, 3)
a.wait_vm0()
a("s_barrier")
stamp(5); stamp(10, 3)

def qk(S, Q): return f"v_mfma_f32_32x32x16_bf16 {vr(S,16)}, {vr(KF,4)}, {vr(Q,4)}, 0"
def pv(O, V, S): return f"v_smfmac_f32_32x32x32_bf16 {vr(O,16)}, {vr(V,4)}, {vr(S,8)}, v{vIDX}"
NT, B1, B2 = 32, 8, OPT['b2']
def rec(t): return (t % NSLOT) * 2048
def rdK(t): return a(f"ds_read_b128 {vr(KF,4)}, v{vAK} offset:{rec(t)}")
def rdV(t2, t1):
    a(f"s_mov_b64 exec, s[{sT[8]}:{sT[9]}]")
    if t2 is not None: a(f"ds_read_b128 {vr(V2,4)}, v{vAV} offset:{rec(t2) + 1536}")
    if t1 is not None: a(f"ds_read_b128 {vr(V1[t1&1],4)}, v{vAV} offset:{rec(t1) + 1024}")
    a("s_mov_b64 exec, -1")
    return a.lastlg()
wtok, htok, rtok, box = {}, {}, {}, {}
m0own = [None]; wstart = set()
def w_off(u): return sR[u & 3] if u < 14 else sWOF
def w_load_a(u):
    a(f"s_add_u32 m0, s{sRING}, {(u & 3) * 2048}"); m0own[0] = ('w', u); wstart.add(u)
    assert u == 0 or (u - 1) in wtok
    if 0 < u < 14: a(f"s_sub_u32 s{sR[u&3]}, s{sR[(u-1)&3]}, 16384\ns_cselect_b32 s{sR[u&3]}, {13*16384}, s{sR[u&3]}")
    elif u == 14: a(f"s_lshl_b32 s{sWOF}, s{sU}, 14")
    elif u > 14: a(f"s_add_u32 s{sWOF}, s{sWOF}, 16384\ns_and_b32 s{sWOF}, s{sWOF}, 0xffff")
    a(f"buffer_load_dwordx4 v{vDS}, {srd(SWD if u < 14 else SWO)}, s{w_off(u)} offen lds")
def w_load_b(u):
    if m0own[0] != ('w', u):
        a(f"s_add_u32 m0, s{sRING}, {(u & 3) * 2048}"); m0own[0] = ('w', u)
    wtok[u] = a(f"buffer_load_dwordx4 v{vDS1}, {srd(SWD if u < 14 else SWO)}, s{w_off(u)} offen offset:1024 lds")
def h_load_a(u):
    assert u in wstart and (u + 4) not in wstart
    a(f"buffer_load_dwordx4 {vr(HF[u&3],4)}, v{vH0}, {srd(SWS)}, s{sR[u&3]} offen sc1")
def h_load_b(u):
    assert (u + 4) not in wstart
    htok[u] = a(f"buffer_load_dwordx4 {vr(HF[u&3]+4,4)}, v{vH1}, {srd(SWS)}, s{sR[u&3]} offen sc1")
def w_read(u, b):
    if b == 0: a.wait(wtok[u], htok[u])
    for e in range(2):
        rtok[u, b] = a(f"ds_read_b64_tr_b16 {vr(WF[u&1] + 4*b + 2*e, 2)}, v{(vDR0, vDR1)[b]} offset:{(u & 3) * 2048 + e*512}")
def d_mfma(u, k):
    tb, b = k >> 1, k & 1
    a.wait(rtok[u, 1])
    d = vr(DACC + 32 * tb + 16 * b, 16)
    a(f"v_mfma_f32_32x32x16_bf16 {d}, {vr(WF[u&1]+4*b,4)}, {vr(HF[u&3]+4*tb,4)}, {'0' if u == 0 else d}")

if OPT.get('x_now'):
    def w_load_a(u): pass
    def w_load_b(u): wtok[u] = None
if OPT.get('x_noh'):
    def h_load_a(u): pass
    def h_load_b(u): htok[u] = None
if OPT.get('x_noread'):
    def w_read(u, b): rtok[u, b] = None
ev, mf = {}, {}
SNAP = OPT.get('snap', 1)
B1P = 32 * (B1 - 1) + 11
EV, EVA, EK, EKA = OPT.get('ev', 5), OPT.get('eva', 0), OPT.get('ek', 11), OPT.get('eka', 0)
busy = {32 * t + o for t in range(NT) for o in (EV, EK, 18)}
def nextpos(p):
    while SNAP and (p & 15) not in (2, 5, 8, 11, 14): p += 1
    return p
def at(pos, f, limit=None):
    p = nextpos(pos)
    while SNAP and limit is not None and p in busy and nextpos(p + 1) <= limit: p = nextpos(p + 1)
    busy.add(p)
    ev.setdefault(p, []).append(f)
    return p
def h_store(b): box['h'] = a((f"s_add_u32 s{sHO}, s{sHO}, 16384\n" if b else "") + f"buffer_store_dwordx4 {vr(ACC[1]+16*b,4)}, v{vST}, {srd(SWS)}, s{sHO} offen sc1")
def late_store(k):
    if k == 2:
        a(f"v_mov_b32 v24, -1\nv_mov_b32 v25, -1\nv_mov_b32 v26, -1\nv_mov_b32 v27, -1\nbuffer_store_dwordx4 v[24:27], v{vL16}, {srd(SWS)}, s{sT[7]} offen sc1")
        return
    a(f"""
    s_cmp_eq_u32 s{sU}, 0
    s_cbranch_scc1 L_nols{k}
    s_sub_u32 s{sT[2]}, s{sHO}, {65536 - 16384*k}
    buffer_store_dwordx4 {vr(ACC[0]+16*k,4)}, v{vST}, {srd(SWS)}, s{sT[2]} offen sc1
    L_nols{k}:
    """)
    a.vm -= 1
pp = OPT.get('p_st', 1); STS = OPT.get('p_sts', 1)
for k in list(range(OPT['nearly'], 2)) + ([2] if OPT['clw'] > 32 else []):
    pp = at(pp, lambda k=k: late_store(k), pp + 12) + STS
pp = at(pp, lambda: h_store(0), pp + 12) + STS
pp = at(pp, lambda: h_store(1), pp + 12)
assert pp < B1P
def kv_emit(m, i):
    if i == 0: m0own[0] = ('kv', m)
    if m0own[0] != ('kv', m):
        a(f"s_add_u32 m0, s{sKVM}, {(4 * m % NSLOT) * 2048}"); m0own[0] = ('kv', m)
    kvtok[m] = a(kv_step(m)[i])
for m in range(KV_FIRST, 8):
    p = OPT['p_kv'] + OPT['p_kvs'] * (m - KV_FIRST) if m < 6 else OPT['p_kv2'] + 20 * (m - 6)
    p = at(p, lambda m=m: kv_emit(m, 0), p + 8)
    at(p + 1, lambda m=m: kv_emit(m, 1), p + 9)
assert OPT['p_kv2'] > B1P
def h_flag():
    a(f"""
    s_lshl_b32 s{sT[1]}, s{sW}, 24
    s_add_u32 s{sT[1]}, s{sT[1]}, s{sF2}
    v_mov_b32 v{t0}, 1
    s_mov_b64 exec, 1
    buffer_store_dword v{t0}, v{vZ}, {srd(SWS)}, s{sT[1]} offen sc1
    s_mov_b64 exec, -1
    """)
def f2_load():
    box['f2'] = a(f"s_mov_b64 exec, 15\nbuffer_load_dwordx4 {vr(F2D,4)}, v{vF2}, {srd(SWS)}, s{sF2R} offen sc1")
    a("s_mov_b64 exec, -1")
at(OPT['p_f2'], f2_load, OPT['p_f2'] + 8)
def f2_check():
    a.wait(box['f2'])
    test = f"v_min3_u32 v{F2D}, v{F2D}, v{F2D+1}, v{F2D+2}\nv_min_u32 v{F2D}, v{F2D}, v{F2D+3}\nv_cmp_ne_u32 vcc, 1, v{F2D}"
    a(f"s_mov_b64 exec, 15\n{test}\ns_cbranch_vccnz L_s2retry\nL_s2done:\ns_mov_b64 exec, -1")
    cold.append(f"""
    L_s2retry:
    s_mov_b32 s{sT[1]}, 0
    L_s2poll:
    buffer_load_dwordx4 {vr(F2D,4)}, v{vF2}, {srd(SWS)}, s{sF2R} offen sc1
    s_add_u32 s{sT[1]}, s{sT[1]}, 1
    s_waitcnt vmcnt(0)
    {test}
    s_cbranch_vccz L_s2done
    s_sleep {OPT.get('slp', 6)}
    s_cmp_lt_u32 s{sT[1]}, {SPIN}
    s_cbranch_scc1 L_s2poll
    s_branch L_s2done
    """)
    a(f"buffer_load_dword v{vG}, v{vG}, {srd(SWS)}, s{sGA} offen sc1")
    stamp(9)
PCHK = at(OPT['p_chk'], f2_check, OPT['p_chk'] + 8)
D0, DE = OPT['d0'], OPT['dend']
allsl = [32 * t + o for t in range(D0, DE) for o in (8, 14, 24, 30)]
assert len(allsl) >= 56
slots = [allsl[(i * len(allsl)) // 56] for i in range(56)]
for u in range(14):
    rp = slots[0] - 16 if u == 0 else slots[4 * u - 2] + 1
    lim = slots[4 * u] - 9
    p = at(rp, lambda u=u: w_read(u, 0), lim - 3); at(p + 1, lambda u=u: w_read(u, 1), lim)
    for k in range(4): mf[slots[4 * u + k]] = (lambda u=u, k=k: d_mfma(u, k))
for u in range(18):
    pw = OPT['p_fill'] + OPT['p_fills'] * u if u < 4 else slots[4 * (u - 4)] + 1
    p = at(pw, lambda u=u: w_load_a(u), pw + 8); p = at(p + 1, lambda u=u: w_load_b(u), p + 8)
    if u < 3:
        ph = PCHK + 1 + OPT.get('p_hs', 13) * u
        p = at(ph, lambda u=u: h_load_a(u), ph + 4); at(p + 1, lambda u=u: h_load_b(u), p + 5)
    if 4 <= u < 15:
        p = at(p + 1, lambda u=u: h_load_a(u - 1), p + 8); at(p + 1, lambda u=u: h_load_b(u - 1), p + 8)
for lo, hi, fr in ((0, B1P, (OPT.get('la1', 30), OPT.get('la2', 70), OPT.get('la3', 94))), (B1P, 32 * B2, (OPT.get('lb1', 35), OPT.get('lb2', 80), OPT.get('lb3', 96))),
                   (32 * B2, 32 * NT, (OPT.get('lc1', 60), OPT.get('lc2', 87), OPT.get('lc3', 96)))):
    for k in range(3): at(lo + ((hi - lo) * fr[k]) // 100, lambda k=k: a(f"s_setprio {2-k}"))

def merge_addr():
    a(f"""
    s_mul_i32 s{sT[0]}, s{sW}, 2304
    s_add_u32 s{sT[0]}, s{sT[0]}, {MERGE}
    s_xor_b32 s{sT[1]}, s{sW}, 4
    s_mul_i32 s{sT[1]}, s{sT[1]}, 2304
    s_add_u32 s{sT[1]}, s{sT[1]}, {MERGE}
    v_add_u32 v{t0}, s{sT[0]}, v{vL16}
    v_add_u32 v{t1}, s{sT[1]}, v{vL16}
    v_lshl_add_u32 v{t2}, v{L}, 2, s{sT[0]}
    v_lshl_add_u32 v{t3}, v{L}, 2, s{sT[1]}
    s_add_u32 s{sOO}, s{sOO}, {WS_O}
    s_mov_b32 s{sT[6]}, {fbits(2.0**-60):#x}
    s_mov_b32 s{sT[7]}, {fbits(2.0**60) - fbits(2.0**-60):#x}
    """)
at(32 * NT - 11, merge_addr)
at(32 * NT - 8, lambda: a(f"ds_write_b128 v{t0}, {vr(OA,4)}\nds_write_b128 v{t0}, {vr(OA+4,4)} offset:1024\nds_write_b32 v{t2}, v{OA+8} offset:2048"))

a("s_setprio 3")
tK = rdK(0); tV = rdV(None, 0)
a.wait(tK)
a(qk(SA, QA))
for t in range(NT):
    if t == B2:
        a.wait(kvtok[7]); a("s_barrier\ns_setprio 3"); stamp(0)
    nx = t + 1 if t + 1 < NT else None
    for ph, (S, So, O, Oo, Qo) in enumerate(((SA, SB, OA, OB, QB), (SB, SA, OB, OA, QA))):
        for e in range(16):
            pos = 32 * t + 16 * ph + e
            def own(after):
                global tV, tK
                if ph == 0 and (e, after) == (EV, EVA):
                    if t == 0: a.wait(tV)
                    tV = rdV(t, nx if t != B1 - 1 else None)
                if ph == 0 and (e, after) == (EK, EKA) and nx and t != B1 - 1: tK = rdK(nx)
            for f in ev.pop(pos, []): f()
            own(0)
            if pos == B1P:
                a.wait(kvtok[5], box['h'], tV); a("s_barrier\ns_setprio 3"); stamp(6)
                tK = rdK(nx); tV = rdV(None, nx)
                h_flag()
            if e == 2:
                if ph == 1: a.wait(tV, None if OPT.get('w2') else tK)
                if t > 0 or ph == 1: a(pv(Oo, V2, So + 8))
            if (e == 5 and not (t == 0 and ph == 0)) or (t == 0 and ph == 0 and e == 0):
                if ph == 1: a.wait(tK)
                if ph == 0 or nx: a(qk(So, Qo))
            if e == 11: a(pv(O, V1[t & 1], S))
            if pos in mf: mf.pop(pos)()
            own(1)
            a(f"v_exp_f32 v{S+e}, v{S+e}")
assert not mf
assert not ev, sorted(ev)
a.wait_lg0()
a(pv(OB, V2, SB + 8))
stamp(7); stamp(0, 4)
a("s_barrier")
stamp(1, 4)
a(f"""
ds_read_b32 v{SA+8}, v{t3} offset:2048
ds_read_b128 {vr(SA,4)}, v{t1}
ds_read_b128 {vr(SA+4,4)}, v{t1} offset:1024
s_lshl_b32 s{sT[3]}, s{sW}, 13
s_xor_b32 s{sT[2]}, s{sT[3]}, 8192
v_add_u32 v24, s{sT[2]}, v{vL16}
v_add_u32 v26, s{sT[3]}, v{vL16}
s_waitcnt lgkmcnt(2)
v_add_f32 v{OB+8}, v{OB+8}, v{SA+8}
v_rcp_f32 v{t0}, v{OB+8}
""")
a.wait_lg0()
OS = 128
for j in range(2): a(f"v_pk_add_f32 {vr(OB+2*j,2)}, {vr(OB+2*j,2)}, {vr(SA+2*j,2)}")
a(f"v_mul_f32 v{t0}, v{t0}, v{vG}")
for j in range(2, 4): a(f"v_pk_add_f32 {vr(OB+2*j,2)}, {vr(OB+2*j,2)}, {vr(SA+2*j,2)}")
for j in range(4): a(f"v_pk_mul_f32 {vr(OB+2*j,2)}, {vr(OB+2*j,2)}, {vr(t0,2)} op_sel_hi:[1,0]")
a(f"""
v_pk_add_f32 {vr(t2,2)}, {vr(OB,2)}, {vr(OB+2,2)}
v_pk_add_f32 {vr(t0,2)}, {vr(OB+4,2)}, {vr(OB+6,2)}
v_cvt_pk_bf16_f32 v{OS}, v{OB}, v{OB+1}
v_pk_add_f32 {vr(t2,2)}, {vr(t2,2)}, {vr(t0,2)}
v_cvt_pk_bf16_f32 v{OS+1}, v{OB+2}, v{OB+3}
v_add_f32 v{t2}, v{t2}, v{t3}
v_cvt_pk_bf16_f32 v{OS+2}, v{OB+4}, v{OB+5}
v_fma_f32 v{t2}, v{t2}, 0, v{OB+8}
v_cvt_pk_bf16_f32 v{OS+3}, v{OB+6}, v{OB+7}
v_subrev_u32 v{t2}, s{sT[6]}, v{t2}
v_cmp_lt_u32 vcc, s{sT[7]}, v{t2}
""")
if OPT['force_fb']: a("s_mov_b64 vcc, -1")
a(f"""
s_cbranch_vccnz L_true_max
L_norm:
buffer_store_dwordx4 {vr(OS,4)}, v{vL16}, {srd(SWS)}, s{sOO} offen sc1
""")
stamp(8); stamp(2, 4)

OF, WOF, XT = 32, 176, 96
vO1 = 27
fill = f"""
s_andn2_b32 s{sT[2]}, s{sRING}, 8192
v_add_u32 v28, s{sT[2]}, v{vTRP}
v_xor_b32 v29, 64, v28
v_sub_f32 v{vG}, 1.0, v{vG}
v_add_u32 v{vO1}, 4096, v{vL16}
s_and_b32 s{sT[1]}, s{sW}, 1
s_lshl1_add_u32 s{sT[0]}, s{sI}, s{sT[1]}
s_lshr_b32 s{sT[1]}, s{sW}, 1
s_lshl2_add_u32 s{sT[0]}, s{sT[0]}, s{sT[1]}
s_lshl_b32 s{sT[0]}, s{sT[0]}, 13
s_add_u32 s{sT[0]}, s{sT[0]}, {WS_O}
""".strip().split('\n')
for v in range(4):
    fill += f"s_add_u32 s{sT[1]}, s{sU}, {v}\ns_and_b32 s{sT[1]}, s{sT[1]}, 3\ns_lshl_b32 s{sT[1]}, s{sT[1]}, 10\ns_add_u32 s{sT[4+v]}, s{sT[0]}, s{sT[1]}".split('\n')
fill += f"""
v_and_b32 v{t0}, 31, v{L}
v_lshrrev_b32 v{t1}, 5, v{L}
v_and_b32 v{t2}, 7, v{L}
v_xor_b32 v{t1}, v{t1}, v{t2}
v_lshlrev_b32 v{t1}, 4, v{t1}
v_lshl_add_u32 v{t0}, v{t0}, 8, v{t1}
v_add_u32 v9, s{sT[3]}, v{t0}
v_xor_b32 v10, 32, v9
v_xor_b32 v11, 64, v9
v_xor_b32 v12, 0x60, v9
v_lshrrev_b32 v{t0}, 3, v{L}
v_lshlrev_b32 v{t1}, 1, v{t2}
v_xor_b32 v{t1}, v{t1}, v{t0}
v_lshlrev_b32 v{t1}, 4, v{t1}
v_lshl_add_u32 v{t1}, v{t0}, 8, v{t1}
v_add_u32 v1, s{sMX}, v{t1}
v_xor_b32 v2, 16, v1
s_lshl3_add_u32 s{sT[3]}, s{sI}, s{sW}
s_lshl_b32 s{sT[3]}, s{sT[3]}, 6
s_add_u32 s{sT[3]}, s{sT[3]}, s{sJ}
s_lshl_b32 s{sT[3]}, s{sT[3]}, 7
v_lshlrev_b32 v{t2}, 4, v{t2}
v_lshl_add_u32 v5, v{t0}, 10, v{t2}
s_mov_b32 s{sT[2]}, 0
""".strip().split('\n')
for j in range(8):
    a(f"ds_write_b128 v24, {vr(DACC+32+4*j,4)} offset:{1024*j}")
    for x in fill[len(fill) * j // 8: len(fill) * (j + 1) // 8]: a(x)
def o_loads():
    for v in range(8):
        a(f"buffer_load_dwordx4 {vr(OF + 4*v, 4)}, v{vO1 if v >> 2 else vL16}, {srd(SWS)}, s{sT[4 + (v&3)]} offen sc1")
stamp(3, 4)
a.wait(wtok[17], a.lastlg())
a(f"s_cmp_ge_u32 s{sW}, 4")
a("s_barrier")
stamp(4, 4)
a("s_setprio 1\ns_cbranch_scc1 L_ol1\ns_setprio 0")
o_loads()
a("L_ol1:")
xt = [a(f"ds_read_b128 {vr(XT+4*j,4)}, v26 offset:{1024*j}") for j in range(8)]
def wo_read(v):
    slot = ((14 + v) & 3) * 2048 + (v >> 2) * 8192
    for b in range(2):
        for e in range(2):
            a(f"ds_read_b64_tr_b16 {vr(WOF + 8*v + 4*b + 2*e, 2)}, v{28 + b} offset:{slot + e*512}")
for j in range(8):
    a.wait(xt[j])
    for i in range(2):
        r = 4 * j + 2 * i
        a(f"v_pk_add_f32 {vr(DACC+r,2)}, {vr(DACC+r,2)}, {vr(XT+r,2)}")
    for i in range(2):
        r = 4 * j + 2 * i
        a(f"v_pk_mul_f32 {vr(DACC+r,2)}, {vr(DACC+r,2)}, {vr(vG,2)} op_sel_hi:[1,0]")
stamp(5, 4)
a("s_setprio 0\ns_cbranch_scc0 L_ol2")
o_loads()
a("L_ol2:")
for j in range(8): wo_read(j)
stamp(6, 4)
a("L_s3poll:")
a.wait_vm0()
a(f"v_max_u32 v{t0}, v{OF}, v{OF+1}\nv_max_u32 v{t1}, v{OF+2}, v{OF+3}")
for j in range(2, 16): a(f"v_max3_u32 v{t0 + (j&1)}, v{t0 + (j&1)}, v{OF+2*j}, v{OF+2*j+1}")
a(f"""
v_max_u32 v{t0}, v{t0}, v{t1}
v_cmp_eq_u32 vcc, -1, v{t0}
s_cbranch_vccnz L_s3retry
L_s3done:
""")
stamp(10); stamp(7, 4)
a.wait_lg0()
def fin_write(b, qd): a(f"ds_write_b128 v{9+qd}, {vr(DACC + 16*b + 4*qd, 4)} offset:{b*128}")
for b in range(2):
    for v in range(8):
        d = vr(DACC + 16 * b, 16)
        a(f"v_mfma_f32_32x32x16_bf16 {d}, {vr(WOF+8*v+4*b,4)}, {vr(OF+4*v,4)}, {d}")
        if b == 1 and v < 3: a("s_nop 2")
        if b == 1 and 3 <= v < 7: fin_write(0, v - 3)
stamp(8, 4)
for qd in range(4): fin_write(1, qd)
a.wait_lg0()
a("s_barrier")
stamp(9, 4)
RD = 176
rt = []
for p in range(4):
    for e in range(2):
        rt.append(a(f"ds_read_b128 {vr(RD + 8*p + 4*e, 4)}, v{1 + e} offset:{p*16384}"))
for p in range(1, 4):
    a.wait(rt[2 * p + 1])
    for j in range(4):
        a(f"v_pk_add_f32 {vr(RD+2*j,2)}, {vr(RD+2*j,2)}, {vr(RD+8*p+2*j,2)}")
for j in range(4): a(f"v_cvt_pk_bf16_f32 v{RD+j}, v{RD+2*j}, v{RD+2*j+1}")
a(f"buffer_store_dwordx4 {vr(RD,4)}, v5, {srd(SOUT)}, s{sT[3]} offen {['', 'sc1'][OPT['outm']]}")
stamp(10, 4)
if OPT['stamp']:
    a("s_waitcnt vmcnt(0)")
    stamp(11)
    a("s_waitcnt lgkmcnt(0)")
    a(f"s_mov_b32 s28, s{sT[2]}")
    if 'crit' in OPT:
        a(f"""
        s_cmp_lg_u32 s{sW}, 7
        s_cbranch_scc1 L_end
        s_lshl_b32 s{sT[0]}, s2, 6
        s_add_u32 s{sT[0]}, s{sT[0]}, {WS_STAMP}
        v_mov_b32 v1, 0
        """)
        for k in range(14): a(f"v_mov_b32 v2, s{4+2*k}\nbuffer_store_dword v2, v1, {srd(SWS)}, s{sT[0]} offen offset:{4*k} sc1")
        a(f"""
        s_cmp_lg_u32 s2, 0
        s_cbranch_scc1 L_end
        L_pad0:
        s_memrealtime s[{sT[2]}:{sT[3]}]
        s_waitcnt lgkmcnt(0)
        s_sub_u32 s{sT[2]}, s{sT[2]}, s30
        s_cmp_lt_u32 s{sT[2]}, 5000
        s_cbranch_scc1 L_pad0
        v_lshlrev_b32 v1, 6, v{L}
        s_mov_b32 s{sT[4]}, 0
        s_mov_b32 s{sT[5]}, -1
        """)
        for g in range(4):
            a(f"""
            s_mov_b32 s{sT[0]}, {WS_STAMP + 4096*g}
            buffer_load_dword v2, v1, {srd(SWS)}, s{sT[0]} offen offset:{4*OPT['crit']} sc1
            buffer_load_dword v3, v1, {srd(SWS)}, s{sT[0]} offen offset:52 sc1
            s_waitcnt vmcnt(0)
            v_subrev_u32 v2, s30, v2
            v_add_u32 v2, 1000, v2
            v_lshlrev_b32 v2, 8, v2
            v_add_u32 v2, v2, v{L}
            v_add_u32 v2, {64*g}, v2
            v_subrev_u32 v3, s30, v3
            v_add_u32 v3, 1000, v3
            s_nop 1
            """)
            for i in range(64): a(f"v_readlane_b32 s{sT[6]}, v2, {i}\nv_readlane_b32 s{sT[7]}, v3, {i}\ns_nop 0\ns_max_u32 s{sT[4]}, s{sT[4]}, s{sT[6]}\ns_min_u32 s{sT[5]}, s{sT[5]}, s{sT[7]}")
        a(f"""
        s_and_b32 s{sT[4]}, s{sT[4]}, 255
        s_lshl_b32 s{sT[0]}, s{sT[4]}, 6
        s_add_u32 s{sT[0]}, s{sT[0]}, {WS_STAMP}
        v_lshlrev_b32 v1, 2, v{L}
        buffer_load_dword v2, v1, {srd(SWS)}, s{sT[0]} offen sc1
        s_add_u32 s{sT[5]}, s{sT[5]}, s30
        s_sub_u32 s{sT[5]}, s{sT[5]}, 1000
        s_waitcnt vmcnt(0)
        v_subrev_u32 v2, s{sT[5]}, v2
        s_nop 1
        v_writelane_b32 v2, s{sT[4]}, 14
        s_mov_b64 exec, 0x7fff
        buffer_store_dword v2, v1, {srd(SDBG)}, 0 offen offset:4
        """)
    elif 'dk' in OPT:
        a(f"""
        s_cmp_lg_u32 s{sW}, {OPT.get('dw', 7)}
        s_cbranch_scc1 L_end
        s_lshl_b32 s{sT[0]}, s2, 2
        s_add_u32 s{sT[0]}, s{sT[0]}, {WS_STAMP}
        v_mov_b32 v2, s{4+2*OPT['dk']}
        v_mov_b32 v1, 0
        buffer_store_dword v2, v1, {srd(SWS)}, s{sT[0]} offen sc1
        s_cmp_lg_u32 s2, 0
        s_cbranch_scc1 L_end
        L_pad0:
        s_memrealtime s[{sT[2]}:{sT[3]}]
        s_waitcnt lgkmcnt(0)
        s_sub_u32 s{sT[2]}, s{sT[2]}, s30
        s_cmp_lt_u32 s{sT[2]}, 5000
        s_cbranch_scc1 L_pad0
        v_mul_u32_u24 v1, {4*OPT['dstride']}, v{L}
        s_mov_b32 s{sT[0]}, {WS_STAMP + 4*OPT['dbase']}
        buffer_load_dword v2, v1, {srd(SWS)}, s{sT[0]} offen sc1
        s_waitcnt vmcnt(0)
        v_subrev_u32 v2, s30, v2
        v_add_u32 v2, 100000, v2
        s_mov_b32 s{sT[4]}, 0
        s_mov_b32 s{sT[5]}, -1
        """)
        for i in range(OPT['dn']): a(f"v_readlane_b32 s{sT[6]}, v2, {i}\ns_nop 1\ns_max_u32 s{sT[4]}, s{sT[4]}, s{sT[6]}\ns_min_u32 s{sT[5]}, s{sT[5]}, s{sT[6]}")
        a(f"""
        s_sub_u32 s{sT[0]}, s{sT[4]}, s{sT[5]}
        s_min_u32 s{sT[0]}, s{sT[0]}, 2000
        s_mul_i32 s{sT[0]}, s{sT[0]}, 10
        s_add_u32 s{sT[0]}, s{sT[0]}, 6000
        L_pad:
        s_memrealtime s[{sT[2]}:{sT[3]}]
        s_waitcnt lgkmcnt(0)
        s_sub_u32 s{sT[2]}, s{sT[2]}, s30
        s_cmp_lt_u32 s{sT[2]}, s{sT[0]}
        s_cbranch_scc1 L_pad
        """)
    elif 'pad' in OPT:
        K = OPT['pad']
        a(f"s_and_b32 s{sT[0]}, s2, {OPT.get('padm', 0)}\ns_cmp_lg_u32 s{sT[0]}, {OPT.get('padv', 0)}\ns_cbranch_scc1 L_end")
        if K >= 0: a(f"s_sub_u32 s{sT[0]}, s{4+2*K}, s{4+2*OPT.get('padb', 13)}\ns_mul_i32 s{sT[0]}, s{sT[0]}, {OPT.get('padx', 4)}")
        else: a(f"s_mov_b32 s{sT[0]}, 0")
        a(f"""
        s_add_u32 s{sT[0]}, s{sT[0]}, 6000
        L_pad:
        s_memrealtime s[{sT[2]}:{sT[3]}]
        s_waitcnt lgkmcnt(0)
        s_sub_u32 s{sT[2]}, s{sT[2]}, s30
        s_cmp_lt_u32 s{sT[2]}, s{sT[0]}
        s_cbranch_scc1 L_pad
        """)
    else:
        a(f"s_lshl3_add_u32 s{sT[0]}, s2, s{sW}\ns_lshl_b32 s{sT[0]}, s{sT[0]}, 6\ns_add_u32 s{sT[0]}, s{sT[0]}, {WS_STAMP}")
        a("v_mov_b32 v1, 0\ns_mov_b64 exec, 1")
        for k in range(14):
            a(f"v_mov_b32 v2, s{4+2*k}\nbuffer_store_dword v2, v1, {srd(SWS)}, s{sT[0]} offen offset:{4*k}")
a("L_end:\ns_endpgm")
a("L_s3retry:")
o_loads()
a(f"""
s_add_u32 s{sT[2]}, s{sT[2]}, 1
s_cmp_lt_u32 s{sT[2]}, {SPIN}
s_cbranch_scc1 L_s3poll
s_waitcnt vmcnt(0)
s_branch L_s3done
""")

for P in 'KVPSC':
    a(f".p2align 6\nL_path{P}:")
    a.forget()
    proj_path(P)
    a("s_branch L_join")
for x in cold: a(x)

CM = SB
a(f"""
L_true_max:
s_waitcnt vmcnt(0) lgkmcnt(0)
v_mov_b32 v{t0}, 0xff800000
s_mov_b32 s{sT[0]}, {WS_KV}
L_tm1:
buffer_load_dwordx4 {vr(KF,4)}, v{vL16}, {srd(SWS)}, s{sT[0]} offen sc1
s_waitcnt vmcnt(0)
{qk(SA, QB)}
""")
for j in range(8): a(f"v_max3_f32 v{t0}, v{t0}, v{SA+2*j}, v{SA+2*j+1}")
a(f"""
s_add_u32 s{sT[0]}, s{sT[0]}, 2048
s_cmp_lt_u32 s{sT[0]}, {WS_KV + 64*2048}
s_cbranch_scc1 L_tm1
v_mov_b32 v{t1}, v{t0}
v_permlane32_swap_b32 v{t0}, v{t1}
v_max_f32 v{t0}, v{t0}, v{t1}
""")
for r in range(16): a(f"v_sub_f32 v{CM+r}, 0, v{t0}\nv_mov_b32 v{OB+r}, 0")
a(f"""
s_mov_b32 s{sT[0]}, {WS_KV}
L_tm2:
buffer_load_dwordx4 {vr(KF,4)}, v{vL16}, {srd(SWS)}, s{sT[0]} offen sc1
s_mov_b64 exec, s[{sT[8]}:{sT[9]}]
buffer_load_dwordx4 {vr(V1[0],4)}, v{vPV}, {srd(SWS)}, s{sT[0]} offen offset:1024 sc1
buffer_load_dwordx4 {vr(V2,4)}, v{vPV}, {srd(SWS)}, s{sT[0]} offen offset:1536 sc1
s_mov_b64 exec, -1
s_waitcnt vmcnt(0)
v_mfma_f32_32x32x16_bf16 {vr(SA,16)}, {vr(KF,4)}, {vr(QB,4)}, {vr(CM,16)}
""")
for e in range(16): a(f"v_exp_f32 v{SA+e}, v{SA+e}")
a(pv(OB, V1[0], SA)); a(pv(OB, V2, SA + 8))
a(f"""
s_add_u32 s{sT[0]}, s{sT[0]}, 2048
s_cmp_lt_u32 s{sT[0]}, {WS_KV + 64*2048}
s_nop 7
s_cbranch_scc1 L_tm2
s_nop 7
v_rcp_f32 v{t0}, v{OB+8}
s_nop 0
v_mul_f32 v{t0}, v{t0}, v{vG}
""")
for j in range(4): a(f"v_pk_mul_f32 {vr(OB+2*j,2)}, {vr(OB+2*j,2)}, {vr(t0,2)} op_sel_hi:[1,0]")
for j in range(4): a(f"v_cvt_pk_bf16_f32 v{OS+j}, v{OB+2*j}, v{OB+2*j+1}")
for j in range(4): a(f"v_min_u32 v{OS+j}, -2, v{OS+j}")
a("s_branch L_norm\nL_last:")

bad = a.check_branches()
assert not bad, bad

hdr = open(f'cdna_kernels/{NAME}.s.ref').read().split('\n')
head = [l for l in hdr if l.startswith(';') and '@launch' not in l]
body = a.text()
if OPT.get('stm'):
    import re
    body = re.sub(r'(buffer_store_dwordx4 .*s\[52:55\].*) sc1', lambda m: m.group(1) + [' sc1', ' sc1 nt', ' sc0 sc1', ' sc0 sc1 nt'][OPT['stm']], body)
out = "\n".join(head) + f"\n; @launch grid=(256,1,1) block=(512,1,1) lds={LDS_BYTES}\n"
out += f""".amdgcn_target "amdgcn-amd-amdhsa--gfx950"
.text
.globl {NAME}_kernel
.p2align 8
.type {NAME}_kernel,@function
{NAME}_kernel:
{body}
.section .rodata,"a"
.p2align 6
.amdhsa_kernel {NAME}_kernel
  .amdhsa_next_free_vgpr 256
  .amdhsa_next_free_sgpr 102
  .amdhsa_accum_offset 256
  .amdhsa_group_segment_fixed_size 0
  .amdhsa_kernarg_size 104
  .amdhsa_user_sgpr_count 2
  .amdhsa_user_sgpr_kernarg_segment_ptr 1
  .amdhsa_system_sgpr_workgroup_id_x 1
.end_amdhsa_kernel
"""
open(sys.argv[1], 'w').write(out)
print("instructions:", sum(1 for i in a.ins if i.ws), "auto nops:", a.nnop, file=sys.stderr)
```

```python
import sys, math, struct
sys.path.insert(0, 'gen')
from asmlib import Asm

NAME = 'gated_mix__grouped_kv_mqa__geglu_ffn__prompt'
OPT = dict(stamp=0, grp=0, force_fb=0, qflag=11, s1=16, b2=22, outm=1, ofast=0,
           p_kv=1, p_kvs=14, p_st=60, p_sts=20, p_fill=160, p_fills=60, p_kv2=366, p_f2=440, p_chk=470, d0=16, dend=32,
           late=1, pk2=1, nearly=1, h0w=24, h1w=30, clw=22, na=1, gend=30, dwt=4, qbar=0, cpf=1, qmode=0, qf=11, exs=4, spf=0, pb=2, pbq0=0, rq=0, rg=1, r1=1, qfirst=3, vlate=0, jearly=0, jlate=0, s1slp=0, s1w=30, lad=1, gb14=1, gbar=0)
for x in sys.argv[2:]:
    k, v = x.split('='); OPT[k] = int(v)

def fbits(x): return struct.unpack('<I', struct.pack('<f', x))[0]

WS_KV, WS_G, WS_F1, WS_Q, WS_O, WS_H, WS_STAMP = 0, 0x20000, 0x30000, 0x100000, 0x300000, 0x500000, 0xC00000
WS_F2 = WS_F1 + 8192
WS_SIZE = 0x1000000
CLEAR_WG = 128
WR, EX = 65536, 131072
NSLOT, HALF, RING = 24, 49152, 98304
MERGE = 65536
LDS_BYTES = 163840
SPIN = 0x40000
SX, SWG, SWU, SWQ, SEX, SWS, SDBG, SWD, SWO, SOUT = 32, 36, 40, 44, 48, 52, 56, 60, 64, 92
sW, sTI, sQ, sU, sROT, sXO, sWOF, sMX, sMW, sI, sJ, sROT0 = range(68, 80)
sT = list(range(80, 90))
sEXW, sEXO = 90, 91
sC1 = 96
sF2, sRH, sRING, sOO = 98, 99, 100, 101
sHO = 3
sKVM, sKVO, sQA, sGA = 32, 33, 34, 35
sF2R = 46
sR = [sRH, 44, 45, 47]
def srd(n): return f"s[{n}:{n+3}]"
def vr(b, n): return f"v[{b}:{b+n-1}]"

vXS0, vXS1, vWS = 1, 2, 3
vST = 4
vXR = [5, 6, 7, 8]
vWR = [9, 10]
vES, vER, vSA = 11, [12, 13], 30
vL16, vLANE = 14, 15
vC0 = 16
vZ = 17
vGT = 18
t0, t1, t2, t3 = 20, 21, 22, 23
vS0, vWS2 = 28, 27
vPV, vPD, vTRP = 29, 0, 31
F = [32, 48]
ACC = [64, 96]
XF = 128
ACCE, WE = 96, 100
GW = 147456
L = vLANE
QA, QB, KF, V2, V1 = 128, 132, 136, 140, [144, 148]
vG, vIDX, vAK, vAV, vKVS = 152, 154, 155, 156, 157
vDR0, vDR1, vH0, vH1 = 159, 160, 161, 162
vDS, vDS1, vF2 = vPD, 158, 163
F2D = 164
OA, OB, SA, SB = 176, 192, 208, 224
WF = [240, 248]
HF = [32, 40, 48, 56]
DACC = 64

a = Asm()
CLK = 's_memtime' if OPT['stamp'] == 2 else 's_memrealtime'
def stamp(k, grp=0):
    if grp != OPT['grp'] and k != 11: return
    if OPT['stamp']: a(f"{CLK} s[{4+2*k}:{5+2*k}]")
def mk_srd(n, p, size):
    a(f"s_mov_b32 s{n}, s{p}\ns_mov_b32 s{n+1}, s{p+1}\ns_mov_b32 s{n+2}, {size}\ns_mov_b32 s{n+3}, 0x20000")

PG = 3584
C0 = -2.0 * math.sqrt(2.0 / math.pi) * math.log2(math.e)
C1 = C0 * 0.044715
QS = 0.25 * math.log2(math.e)

a("s_cmp_ge_u32 s2, 256\ns_cbranch_scc1 L_end")
a("s_load_dwordx16 s[4:19], s[0:1], 0\ns_load_dwordx8 s[20:27], s[0:1], 64\ns_load_dwordx2 s[28:29], s[0:1], 96")
if OPT['stamp']: a(f"{CLK} s[30:31]")
def code_prefetch():
    a(f"""
    s_getpc_b64 s[{sT[8]}:{sT[9]}]
    L_pc:
    s_andn2_b32 s{sT[7]}, s2, 7
    s_lshl_b32 s{sT[7]}, s{sT[7]}, 8
    v_lshl_add_u32 v{t3}, v0, 2, s{sT[7]}
    v_min_u32 v{t3}, L_last-L_pc-4, v{t3}
    s_mov_b32 exec_lo, 1
    s_mov_b32 exec_hi, 1
    global_load_dword v{vS0}, v{t3}, s[{sT[8]}:{sT[9]}]
    s_mov_b64 exec, -1
    """)
if OPT['cpf'] == 1: code_prefetch()
a(f"""
v_readfirstlane_b32 s{sW}, v0
v_lshrrev_b32 v{t1}, 4, v0
v_lshrrev_b32 v{t0}, 3, v0
v_xor_b32 v{t1}, v0, v{t1}
s_lshr_b32 s{sU}, s2, 6
s_bfe_u32 s{sJ}, s2, 0x30003
v_and_b32 v{t1}, 7, v{t1}
s_and_b32 s{sT[2]}, s2, 1
s_lshl3_add_u32 s{sTI}, s{sT[2]}, s{sJ}
v_lshlrev_b32 v{t1}, 4, v{t1}
s_lshl1_add_u32 s{sROT0}, s{sU}, s{sJ}
s_and_b32 s{sROT0}, s{sROT0}, 7
v_lshl_add_u32 v{vXS0}, v{t0}, 10, v{t1}
s_lshl_b32 s{sT[0]}, s{sTI}, 17
s_lshl_b32 s{sXO}, s{sROT0}, 7
s_add_u32 s{sXO}, s{sXO}, s{sT[0]}
s_lshl_b32 s{sMW}, s{sW}, 4
s_mov_b32 m0, s{sMW}
s_mov_b32 s{SX+2}, {2048*1024}
s_mov_b32 s{SX+3}, 0x20000
""")
a(f"""
s_bfe_u32 s{sT[1]}, s{sW}, 0x10006
s_lshl_b32 s{sT[1]}, s{sT[1]}, 2
v_and_or_b32 v{t1}, v{t0}, 2, s{sT[1]}
s_bfe_u32 s{sQ}, s2, 0x20001
s_mul_i32 s{sT[1]}, s{sQ}, 7
v_xor_b32 v{t1}, v0, v{t1}
s_lshl1_add_u32 s{sT[1]}, s{sU}, s{sT[1]}
s_sub_u32 s{sT[1]}, s{sT[1]}, 1
v_and_b32 v{t1}, 7, v{t1}
s_lshl_b32 s{sT[2]}, s{sQ}, 1
s_movk_i32 s{sT[3]}, {PG}
v_lshlrev_b32 v{vWS2}, 4, v{t1}
s_mov_b32 s{SWG+3}, 0x20000
s_mov_b32 s{SWU+3}, 0x20000
s_cmp_eq_u32 s{sU}, 0
s_cselect_b32 s{sT[1]}, s{sT[2]}, s{sT[1]}
s_cselect_b32 s{sT[3]}, 1024, s{sT[3]}
s_cselect_b32 s{sT[2]}, 128, 0
v_mad_u32_u24 v{vWS}, v{t0}, s{sT[3]}, v{vWS2}
s_lshl_b32 s{SWG+2}, s{sT[3]}, 9
s_mov_b32 s{SWU+2}, s{SWG+2}
s_mul_i32 s{sWOF}, s{sROT0}, s{sT[3]}
s_lshl1_add_u32 s{sWOF}, s{sT[1]}, s{sWOF}
s_lshl_b32 s{sWOF}, s{sWOF}, 6
s_cmp_eq_u32 s{sU}, 0
{CLK + ' s[84:85]' if OPT['grp'] == 5 else ''}
s_waitcnt lgkmcnt(0)
{CLK + ' s[86:87]' if OPT['grp'] == 5 else ''}
s_mov_b64 s[{SX}:{SX+1}], s[4:5]
s_cselect_b64 s[{SWG}:{SWG+1}], s[6:7], s[16:17]
s_cselect_b64 s[{SWU}:{SWU+1}], s[6:7], s[18:19]
""")
def first_stage(x0, x1, xstep, wstep):
    a(f"""
    buffer_load_dwordx4 v{x0}, {srd(SX)}, s{sXO} offen lds
    s_add_u32 m0, s{sMW}, {WR}
    s_add_u32 s{sXO}, s{sXO}, {xstep}
    buffer_load_dwordx4 v{vWS}, {srd(SWG)}, s{sWOF} offen lds
    s_add_u32 m0, s{sMW}, {WR + 8192}
    s_add_u32 s{sWOF}, s{sWOF}, {wstep}
    buffer_load_dwordx4 v{vWS}, {srd(SWU)}, s{sWOF} offen lds
    s_add_u32 m0, s{sMW}, 8192
    s_nop 0
    buffer_load_dwordx4 v{x1}, {srd(SX)}, s{sXO} offen lds
    """)
if OPT['qfirst']: a("s_cbranch_scc0 L_late")
first_stage(vXS0, vXS0, 65536, f"s{sT[2]}")
if OPT['qfirst']: a("L_late:")
if OPT['grp'] == 5: a(f"{CLK} s[88:89]\ns_waitcnt lgkmcnt(0)\ns_mov_b32 s4, s84\ns_mov_b32 s14, s86\ns_mov_b32 s5, s88")
a(f"""
s_lshr_b32 s{sW}, s{sW}, 6
v_add_u32 v{vXS0}, s{sT[0]}, v{vXS0}
v_add_u32 v{vXS1}, 0x10000, v{vXS0}
s_sub_u32 s{sXO}, s{sXO}, s{sT[0]}
s_lshl_b32 s{sT[1]}, s{sT[1]}, 7
s_sub_u32 s{sWOF}, s{sWOF}, s{sT[1]}
v_add_u32 v{vWS}, s{sT[1]}, v{vWS}
s_movk_i32 s{sT[3]}, {PG}
v_mad_u32_u24 v{vWS2}, v{t0}, s{sT[3]}, v{vWS2}
s_mul_i32 s{sT[1]}, s{sQ}, {7*128}
v_add_u32 v{vWS2}, s{sT[1]}, v{vWS2}
v_and_b32 v{L}, 63, v0
v_lshlrev_b32 v{vL16}, 4, v{L}
s_and_b32 s{sT[0]}, s2, 7
s_lshl2_add_u32 s{sI}, s{sT[0]}, s{sU}
s_add_u32 s{sROT}, s{sROT0}, 1
s_and_b32 s{sROT}, s{sROT}, 7
s_lshl_b32 s{sMX}, s{sW}, 11
""")
def late_loads(k):
    if OPT['qfirst'] != k: return
    a(f"s_cmp_eq_u32 s{sU}, 0\ns_cbranch_scc1 L_early")
    first_stage(vXS0, vXS1, 0, 0)
    a("L_early:")
late_loads(1)
def dispatch():
    a(f"""
    s_lshr_b32 s{sT[1]}, s{sW}, 2
    s_lshl1_add_u32 s{sT[0]}, s{sU}, s{sT[1]}
    s_lshr_b32 s{sT[1]}, s{sQ}, 1
    s_lshl1_add_u32 s{sT[0]}, s{sT[0]}, s{sT[1]}
    s_cmp_eq_u32 s{sT[0]}, 0
    s_cbranch_scc1 L_pathK
    s_cmp_eq_u32 s{sT[0]}, 1
    s_cbranch_scc1 L_pathV
    s_cmp_lt_u32 s{sT[0]}, 4
    s_cbranch_scc1 L_pathP
    s_cmp_eq_u32 s{sT[0]}, 4
    s_cbranch_scc1 L_pathS
    s_add_u32 s{sT[0]}, s{sMW}, s2
    s_cmp_eq_u32 s{sT[0]}, {CLEAR_WG + 1024}
    s_cbranch_scc1 L_pathC
    """)

PATH = ['G']
def wslot(sig):
    if sig < 8: return WR + (sig & 3) * 16384
    if sig >= 14: return EX + (sig - 14) * 16384
    return (0 if sig & 1 else WR) + ((sig - 8) >> 1) * 16384
def waddr(sig, b):
    return {0: vXR[b], 1: vWR[b], 2: vXR[2 + b]}[wslot(sig) >> 16]

def dma_ops(sig, path):
    p = sig >> 3
    isq = (path in 'KVP' and p == 0)
    pitch = 1024 if isq else PG
    sa, sb = (SWQ, SWQ) if isq else (SWG, SWU)
    xs, ws = (sig & 3) * 16384, wslot(sig)
    pre = f"s_mul_i32 s{sWOF}, s{sROT}, {64*pitch}\n"
    if path in 'GSC' and p == 1: pre += f"s_add_u32 s{sWOF}, s{sWOF}, 128\n"
    mid = f"s_add_u32 s{sWOF}, s{sWOF}, 128\n" if isq else ""
    inc, wrap = f"s_add_u32 s{sROT}, s{sROT}, 1\n", f"s_and_b32 s{sROT}, s{sROT}, 7\n"
    vw = vWS2 if (path in 'KVP' and p == 1) else vWS
    wa = f"s_add_u32 m0, s{sMW}, {ws}\n{{}}buffer_load_dwordx4 v{vw}, {srd(sa)}, s{sWOF} offen lds"
    wb = f"s_add_u32 m0, s{sMW}, {ws+8192}\n{{}}buffer_load_dwordx4 v{vw}, {srd(sb)}, s{sWOF} offen lds"
    if p == 0:
        return [f"s_add_u32 m0, s{sMW}, {xs}\ns_lshl_b32 s{sXO}, s{sROT}, 7\nbuffer_load_dwordx4 v{vXS0}, {srd(SX)}, s{sXO} offen lds",
                wa.format(pre), wb.format(mid + inc),
                f"s_add_u32 m0, s{sMW}, {xs+8192}\n{wrap}buffer_load_dwordx4 v{vXS1}, {srd(SX)}, s{sXO} offen lds"]
    return [wa.format(pre), wb.format(inc + wrap)]

def setup_common():
    mk_srd(SWS, 28, WS_SIZE)
    if OPT.get('wso'): a(f"s_add_u32 s{SWS}, s{SWS}, {OPT['wso'] << 20}\ns_addc_u32 s{SWS+1}, s{SWS+1}, 0")
    mk_srd(SDBG, 26, 256); mk_srd(SWD, 20, 1792 * 1024); mk_srd(SWO, 12, 512 * 1024); mk_srd(SOUT, 24, 2048 * 1024)
    late_loads(2)
    a(f"""
    s_and_b32 s{sT[0]}, s{sW}, 3
    s_lshr_b32 s{sT[1]}, s{sW}, 2
    s_xor_b32 s{sT[5]}, s{sT[1]}, s{sQ}
    s_and_b32 s{sT[5]}, s{sT[5]}, 1
    s_lshl1_add_u32 s{sT[0]}, s{sT[0]}, s{sT[5]}
    s_lshl_b32 s{sT[0]}, s{sT[0]}, 11
    v_and_b32 v{t0}, 15, v{L}
    v_bfe_u32 v{t1}, v{L}, 1, 3
    v_lshrrev_b32 v{t2}, 4, v{L}
    v_xor_b32 v{t1}, v{t1}, v{t2}
    v_lshlrev_b32 v{t1}, 4, v{t1}
    v_lshl_add_u32 v{t1}, v{t0}, 7, v{t1}
    v_add_u32 v{vXR[0]}, s{sT[0]}, v{t1}
    v_xor_b32 v{vXR[1]}, 0x800, v{vXR[0]}
    v_xor_b32 v{vXR[2]}, 64, v{vXR[0]}
    v_xor_b32 v{vXR[3]}, 64, v{vXR[1]}
    s_lshl_b32 s{sT[2]}, s{sT[5]}, 8
    v_xor_b32 v{vST}, s{sT[2]}, v{vL16}
    """)
    a(f"""
    v_lshrrev_b32 v{t3}, 5, v{L}
    v_lshlrev_b32 v{t0}, 4, v{t0}
    v_lshl_add_u32 v{vPV}, v{t3}, 8, v{t0}
    """)
    late_loads(3)
    a(f"""
    v_bfe_u32 v{t0}, v{L}, 2, 2
    v_lshl_add_u32 v{t1}, v{t2}, 3, v{t0}
    v_lshlrev_b32 v{t1}, 7, v{t1}
    v_bfe_u32 v{t2}, v{L}, 3, 2
    s_lshl_b32 s{sT[1]}, s{sT[1]}, 1
    v_xor_b32 v{t2}, s{sT[1]}, v{t2}
    v_lshl_add_u32 v{t1}, v{t2}, 5, v{t1}
    v_and_b32 v{t2}, 3, v{L}
    v_lshl_add_u32 v{t1}, v{t2}, 3, v{t1}
    v_add_u32 v{vWR[0]}, {WR}, v{t1}
    v_xor_b32 v{vWR[1]}, 32, v{vWR[0]}
    """)
    a(f"""
    v_lshl_add_u32 v{t3}, v{t3}, 3, v{t0}
    v_lshlrev_b32 v{t3}, 7, v{t3}
    v_lshrrev_b32 v{t0}, 1, v{t0}
    v_lshl_add_u32 v{t3}, v{t0}, 6, v{t3}
    v_lshl_add_u32 v{t3}, v{t2}, 3, v{t3}
    v_bfe_u32 v{t2}, v{L}, 4, 1
    v_lshl_add_u32 v{vTRP}, v{t2}, 5, v{t3}
    v_lshlrev_b32 v{t2}, 2, v{t2}
    v_and_b32 v{t1}, 7, v{L}
    v_xor_b32 v{t1}, v{t1}, v{t2}
    v_lshlrev_b32 v{t1}, 4, v{t1}
    v_lshrrev_b32 v{t0}, 3, v{L}
    v_lshl_add_u32 v{t0}, v{t0}, 10, v{t1}
    s_lshl_b32 s{sT[0]}, s{sJ}, 7
    v_add_u32 v{vPD}, s{sT[0]}, v{t0}
    v_mov_b32 v{vZ}, 0
    v_mov_b32 v{vC0}, {fbits(C0):#x}
    s_mov_b32 s{sC1}, {fbits(C1):#x}
    s_mov_b32 s{sC1+1}, {fbits(C1):#x}
    """)
    late_loads(4)
    a(f"""
    s_lshr_b32 s{sT[3]}, s{sW}, 2
    s_and_b32 s{sT[1]}, s{sW}, 3
    s_lshl2_add_u32 s{sT[0]}, s{sTI}, s{sT[1]}
    s_lshl_b32 s{sT[8]}, s{sT[0]}, 5
    s_and_b32 s{sT[2]}, s{sT[0]}, 15
    s_lshr_b32 s{sT[0]}, s{sT[0]}, 4
    s_mul_i32 s{sT[0]}, s{sT[0]}, 112
    s_mul_i32 s{sT[1]}, s{sQ}, 28
    s_add_u32 s{sT[0]}, s{sT[0]}, s{sT[1]}
    s_lshl3_add_u32 s{sT[0]}, s{sU}, s{sT[0]}
    s_lshl1_add_u32 s{sT[0]}, s{sT[3]}, s{sT[0]}
    s_lshl4_add_u32 s{sT[0]}, s{sT[0]}, s{sT[2]}
    s_lshl_b32 s{sT[0]}, s{sT[0]}, 10
    s_add_u32 s{sHO}, s{sT[0]}, {WS_H}
    s_lshl3_add_u32 s{sT[4]}, s{sQ}, s{sT[8]}
    s_lshl1_add_u32 s{sT[4]}, s{sT[3]}, s{sT[4]}
    s_lshl_b32 s{sT[4]}, s{sT[4]}, 10
    s_lshl2_add_u32 s{sT[1]}, s{sQ}, s{sU}
    s_lshl2_add_u32 s{sF2}, s{sTI}, s{sQ}
    s_lshl_b32 s{sF2}, s{sF2}, 5
    s_add_u32 s{sF2}, s{sF2}, s{sU}
    s_lshl_b32 s{sF2}, s{sF2}, 2
    s_add_u32 s{sF2}, s{sF2}, {WS_F2}
    s_lshl1_add_u32 s{sT[9]}, s{sT[1]}, s{sT[8]}
    s_add_u32 s{sT[9]}, s{sT[9]}, s{sT[3]}
    s_lshl_b32 s{sT[9]}, s{sT[9]}, 10
    s_add_u32 s{sT[9]}, s{sT[9]}, {WS_O}
    s_and_b32 s{sT[1]}, s{sW}, 1
    s_lshl1_add_u32 s{sT[1]}, s{sI}, s{sT[1]}
    s_lshl3_add_u32 s{sT[2]}, s{sT[1]}, s{sJ}
    s_lshl_b32 s{sT[2]}, s{sT[2]}, 2
    s_and_b32 s{sT[1]}, s{sW}, 2
    s_add_u32 s{sT[2]}, s{sT[2]}, s{sT[1]}
    s_add_u32 s{sT[2]}, s{sT[2]}, s{sT[3]}
    s_lshl_b32 s{sOO}, s{sT[2]}, 10
    s_lshl_b32 s{sRING}, s{sW}, 13
    s_add_u32 s{sRING}, s{sRING}, {RING}
    s_mul_i32 s{sRH}, s{sJ}, 7
    s_lshr_b32 s{sRH}, s{sRH}, 2
    s_mul_i32 s{sT[1]}, s{sU}, 7
    s_lshr_b32 s{sT[1]}, s{sT[1]}, 1
    s_add_u32 s{sRH}, s{sRH}, s{sT[1]}
    s_cmp_ge_u32 s{sRH}, 14
    s_cselect_b32 s{sT[1]}, 14, 0
    s_sub_u32 s{sRH}, s{sRH}, s{sT[1]}
    s_lshl_b32 s{sRH}, s{sRH}, 14
    s_mul_i32 s{sT[1]}, s{sW}, {14*16384}
    s_add_u32 s{SWD}, s{SWD}, s{sT[1]}
    s_addc_u32 s{SWD+1}, s{SWD+1}, 0
    s_sub_u32 s{SWD+2}, s{SWD+2}, s{sT[1]}
    s_lshl_b32 s{sT[1]}, s{sW}, 16
    s_add_u32 s{SWO}, s{SWO}, s{sT[1]}
    s_addc_u32 s{SWO+1}, s{SWO+1}, 0
    s_sub_u32 s{SWO+2}, s{SWO+2}, s{sT[1]}
    """)

def setup_path(P):
    if P in 'KV':
        a(f"""
        v_lshrrev_b32 v{t2}, 4, v{L}
        v_and_b32 v{t0}, 15, v{L}
        v_lshlrev_b32 v{t1}, 3, v{t0}
        v_lshl_add_u32 v{t1}, v{t2}, 8, v{t1}
        v_and_b32 v{t3}, 1, v{t2}
        v_lshl_add_u32 v{t1}, v{t3}, 7, v{t1}
        v_add_u32 v{vER[0]}, {EX}, v{t1}
        v_xor_b32 v{vER[1]}, 0x80, v{vER[0]}
        v_lshlrev_b32 v{t1}, 7, v{t3}
        v_xor_b32 v{vES}, v{t1}, v{vL16}
        s_add_u32 s{sEXO}, s{sW}, s{sROT0}
        s_and_b32 s{sEXO}, s{sEXO}, 7
        s_lshl_b32 s{sEXO}, s{sEXO}, 11
        s_lshr_b32 s{sEXW}, s{sT[4]}, 15
        v_lshrrev_b32 v{t2}, 1, v{t2}
        """)
        if P == 'K':
            a(f"""
            s_lshl3_add_u32 s{sEXW}, s{sEXW}, s{sT[5]}
            s_lshl_b32 s{sEXW}, s{sEXW}, 8
            v_lshlrev_b32 v{t2}, 9, v{t2}
            """)
        else:
            a(f"""
            s_lshl2_add_u32 s{sEXW}, s{sEXW}, s{sT[5]}
            s_lshl_b32 s{sEXW}, s{sEXW}, 9
            s_add_u32 s{sEXW}, s{sEXW}, 1024
            v_lshlrev_b32 v{t2}, 8, v{t2}
            v_and_b32 v{t0}, 3, v{L}
            v_bfe_u32 v{t1}, v{L}, 2, 1
            v_lshl_add_u32 v{t0}, v{t1}, 3, v{t0}
            v_bfe_u32 v{t1}, v{L}, 3, 1
            v_lshl_add_u32 v{t0}, v{t1}, 2, v{t0}
            """)
        a(f"""
        v_lshl_add_u32 v{t2}, v{t0}, 4, v{t2}
        v_lshl_add_u32 v{vSA}, v{t3}, 3, v{t2}
        """)
    if P == 'P':
        a(f"""
        v_bfe_u32 v{t1}, v{L}, 4, 1
        v_lshlrev_b32 v{t1}, 7, v{t1}
        v_xor_b32 v{vES}, v{t1}, v{vL16}
        s_add_u32 s{sEXO}, s{sW}, s{sROT0}
        s_and_b32 s{sEXO}, s{sEXO}, 7
        s_lshl_b32 s{sEXO}, s{sEXO}, 11
        """)
    if P == 'S':
        a(f"""
        s_lshl_b32 s{sEXO}, s{sROT0}, 7
        v_add_u32 v{vES}, s{sEXO}, v{vL16}
        v_and_b32 v{vES}, 0x3ff, v{vES}
        v_and_b32 v{t0}, 48, v{L}
        v_add_u32 v{vER[0]}, {GW}, v{t0}
        v_and_b32 v{t0}, 15, v{L}
        v_lshlrev_b32 v{vSA}, 2, v{t0}
        s_lshr_b32 s{sEXW}, s{sT[4]}, 15
        s_lshl1_add_u32 s{sEXW}, s{sEXW}, s{sT[5]}
        s_lshl_b32 s{sEXW}, s{sEXW}, 6
        s_add_u32 s{sEXW}, s{sEXW}, {WS_G}
        """)

def x_reads(sig, j):
    return [f"ds_read_b128 {vr(XF + 16*sig + 8*j + 4*tq, 4)}, v{vXR[2*j+tq]} offset:{(sig & 3) * 16384}" for tq in range(2)]
def w_reads(sig, j, i):
    b, part = i >> 1, i & 1
    off = (wslot(sig) & 0xffff) + part * 8192 + j * 4096
    return [f"ds_read_b64_tr_b16 {vr(F[j] + 4*i + 2*e, 2)}, v{waddr(sig, b)} offset:{off + e*512}" for e in range(2)]
def e_steps(c):
    c0 = 2 * OPT['exs']
    if PATH[0] in 'KVS': return [2 * (c - c0), 2 * (c - c0) + 1] if c0 <= c < 2 * c0 else ([c] if 2 * c0 <= c < 16 else [])
    return []
def e_buf(c, i): return WE + 16 + 4 * i if (PATH[0] == 'S' and c == 15) else WE + 8 * (c & 1) + 4 * i
def e_reads(c):
    if PATH[0] == 'S':
        cs = [] if c == 15 else ([14, 15] if c == 14 else [c])
        return [f"ds_read_b128 {vr(e_buf(x, i), 4)}, v{vER[0]} offset:{k*64}" for x in cs for i, k in enumerate(e_steps(x))]
    return [f"ds_read_b64_tr_b16 {vr(e_buf(c, i) + 2*e, 2)}, v{vER[e]} offset:{k*1024}" for i, k in enumerate(e_steps(c)) for e in range(2)]
def e_mfmas(c):
    out = []
    for i, k in enumerate(e_steps(c)):
        acc, w, x = vr(ACCE, 4), vr(e_buf(c, i), 4), vr(XF + 8 * k, 4)
        A, B = (x, w) if PATH[0] == 'V' else (w, x)
        out.append(f"v_mfma_f32_16x16x32_bf16 {acc}, {A}, {B}, {'0' if k == 0 else acc}")
    return out
def mfmas(sig, j):
    out = []
    for i in range(4):
        for tq in range(2):
            d = vr(ACC[sig >> 3] + 8 * i + 4 * tq, 4)
            c = "0" if ((sig & 7) == 0 and j == 0) else d
            out.append(f"v_mfma_f32_16x16x32_bf16 {d}, {vr(F[j] + 4*i, 4)}, {vr(XF + 16*(sig&7) + 8*j + 4*tq, 4)}, {c}")
    return out

def gelu_pair(base, j, T=vGT, pk=False):
    G = vr(base + 2 * j, 2); U = vr(base + 8 + 2 * j, 2); TT = vr(T, 2)
    g0, g1, u0, u1 = base + 2 * j, base + 2 * j + 1, base + 8 + 2 * j, base + 9 + 2 * j
    if pk:
        return [f"v_pk_mul_f32 {TT}, {G}, {G}",
                f"v_pk_fma_f32 {TT}, {TT}, s[{sC1}:{sC1+1}], {vr(vC0,2)} op_sel_hi:[1,1,0]",
                f"v_pk_mul_f32 {TT}, {TT}, {G}",
                f"v_exp_f32 v{T}, v{T}", f"v_exp_f32 v{T+1}, v{T+1}",
                f"v_pk_mul_f32 {G}, {G}, {U}",
                f"v_pk_add_f32 {TT}, {TT}, 1.0 op_sel_hi:[1,0]",
                f"v_rcp_f32 v{T}, v{T}", f"v_rcp_f32 v{T+1}, v{T+1}",
                f"v_pk_mul_f32 {G}, {G}, {TT}",
                f"v_cvt_pk_bf16_f32 v{base+j}, v{g0}, v{g1}"]
    return [f"v_mul_f32 v{T}, v{g0}, v{g0}", f"v_mul_f32 v{T+1}, v{g1}, v{g1}",
            f"v_fma_f32 v{T}, v{T}, s{sC1}, v{vC0}", f"v_fma_f32 v{T+1}, v{T+1}, s{sC1}, v{vC0}",
            f"v_mul_f32 v{T}, v{T}, v{g0}", f"v_mul_f32 v{T+1}, v{T+1}, v{g1}",
            f"v_exp_f32 v{T}, v{T}", f"v_exp_f32 v{T+1}, v{T+1}",
            f"v_mul_f32 v{g0}, v{g0}, v{u0}", f"v_add_f32 v{T}, 1.0, v{T}", f"v_add_f32 v{T+1}, 1.0, v{T+1}",
            f"v_rcp_f32 v{T}, v{T}", f"v_rcp_f32 v{T+1}, v{T+1}",
            f"v_mul_f32 v{g1}, v{g1}, v{u1}",
            f"v_mul_f32 v{g0}, v{g0}, v{T}", f"v_mul_f32 v{g1}, v{g1}, v{T+1}",
            f"v_cvt_pk_bf16_f32 v{base+j}, v{g0}, v{g1}"]
def to_frag(base):
    return [f"v_permlane16_swap_b32 v{base}, v{base+2}", f"v_permlane16_swap_b32 v{base+1}, v{base+3}"]

def cost(x):
    c = 0
    for l in x.strip().split('\n'):
        l = l.strip()
        if not l or l.startswith(';') or l.endswith(':'): continue
        c += 8 if l.startswith(('v_exp', 'v_rcp')) else (OPT.get('vmc', 16) if l.startswith('buffer_') else 4)
    return c

kvtok = {}
def kv_step(m):
    slot = (4 * m % NSLOT) * 2048
    if m == 0: x = f"s_mov_b32 m0, s{sKVM}\ns_nop 0\n"
    else: x = f"s_add_u32 s{sKVO}, s{sKVO}, 8192\ns_add_u32 m0, s{sKVM}, {slot}\ns_and_b32 s{sKVO}, s{sKVO}, 0xffff\n"
    return [x + f"buffer_load_dwordx4 v{vKVS}, {srd(SWS)}, s{sKVO} offen sc1 lds", f"buffer_load_dwordx4 v{vKVS}, {srd(SWS)}, s{sKVO} offen offset:1024 sc1 lds"]
KV_FIRST = 2
def first_loads():
    return [f"buffer_load_dwordx4 {vr(QA,4)}, v{vL16}, {srd(SWS)}, s{sQA} offen sc1\ns_xor_b32 s{sQA}, s{sQA}, 1024"] + kv_step(0) + \
           [f"buffer_load_dwordx4 {vr(QB,4)}, v{vL16}, {srd(SWS)}, s{sQA} offen sc1"] + kv_step(1)

def setup_queue(late=False):
    q = []
    def add(st, txt):
        for l in txt.strip().split('\n'): q.append((st, l.strip().replace('|', '\n')))
    add(11, f"""
    s_lshr_b32 s{sT[3]}, s{sW}, 2
    s_and_b32 s{sT[5]}, s{sW}, 1
    s_lshl_b32 s{sT[6]}, s{sT[3]}, 16
    v_add_u32 v{vKVS}, s{sT[6]}, v{vL16}
    s_mul_i32 s{sT[3]}, s{sT[3]}, {HALF}
    v_add_u32 v{vAK}, s{sT[3]}, v{vL16}
    v_add_u32 v{vAV}, s{sT[3]}, v{vPV}
    s_and_b32 s{sT[6]}, s{sW}, 3
    s_lshl_b32 s{sT[7]}, s{sT[6]}, 11
    s_add_u32 s{sKVM}, s{sT[7]}, s{sT[3]}
    s_lshr_b32 s{sT[7]}, s2, 3
    s_add_u32 s{sT[6]}, s{sT[6]}, s{sT[7]}
    s_and_b32 s{sT[6]}, s{sT[6]}, 31
    s_lshl_b32 s{sKVO}, s{sT[6]}, 11
    s_add_u32 s{sQA}, s{sOO}, {WS_Q}
    s_xor_b32 s{sQA}, s{sQA}, 1024
    s_lshl1_add_u32 s{sGA}, s{sI}, s{sT[5]}
    s_lshl_b32 s{sGA}, s{sGA}, 7
    s_add_u32 s{sGA}, s{sGA}, {WS_G}
    v_and_b32 v{vG}, 31, v{L}
    v_lshlrev_b32 v{vG}, 2, v{vG}
    v_mov_b32 v{vIDX}, 0xdddddddd
    v_mov_b32 v{V2+1}, 0x3f803f80
    s_mov_b32 vcc_lo, 0x110000|s_mov_b32 vcc_hi, 0x110000|v_cndmask_b32 v{V2}, 0, v{V2+1}, vcc
    """)
    for r in range(V2 + 1, V2 + 12): add(11, f"v_mov_b32 v{r}, v{V2}")
    add(12, f"""
    v_add_u32 v{vDR0}, s{sRING}, v{vTRP}
    v_xor_b32 v{vDR1}, 64, v{vDR0}
    v_add_u32 v{vDS1}, 7168, v{vDS}
    s_lshr_b32 s{sT[6]}, s{sI}, 3
    s_lshl3_add_u32 s{sT[6]}, s{sT[6]}, s{sW}
    s_mul_i32 s{sT[6]}, s{sT[6]}, {14*16}
    s_and_b32 s{sT[7]}, s{sI}, 7
    s_lshl1_add_u32 s{sT[7]}, s{sT[7]}, s{sT[5]}
    s_add_u32 s{sT[6]}, s{sT[6]}, s{sT[7]}
    s_lshl_b32 s{sT[6]}, s{sT[6]}, 10
    s_add_u32 s{sT[6]}, s{sT[6]}, {WS_H}
    v_add_u32 v{vH0}, s{sT[6]}, v{vL16}
    v_xor_b32 v{vH1}, 0x400, v{vH0}
    v_lshlrev_b32 v{vF2}, 7, v{L}
    s_lshr_b32 s{sF2R}, s{sI}, 1
    s_lshl_b32 s{sF2R}, s{sF2R}, 9
    s_add_u32 s{sF2R}, s{sF2R}, {WS_F2}
    """)
    for r in range(9): add(13, f"v_mov_b32 v{OA+r}, 0")
    for r in range(9): add(14, f"v_mov_b32 v{OB+r}, 0")
    if OPT['vlate']:
        cut = [i for i, x in enumerate(q) if x[1].startswith(f"v_and_b32 v{vG}, 31")][0]
        if late: return [x[1] for x in q[cut:]]
        return q[:cut]
    return [] if late else q

cold = []
def s0_check(P):
    a(f"v_cmp_eq_u32 vcc, 0, v{vS0}\ns_cbranch_vccnz L_s0retry{P}\nL_s0done{P}:")
    cold.append(f"""
    L_s0retry{P}:
    s_mov_b32 s{sT[1]}, 0
    L_s0poll{P}:
    buffer_load_dword v{vS0}, v{vZ}, {srd(SDBG)}, 0 offen sc1
    s_add_u32 s{sT[1]}, s{sT[1]}, 1
    s_waitcnt vmcnt(0)
    v_cmp_eq_u32 vcc, 0, v{vS0}
    s_cbranch_vccz L_s0done{P}
    s_cmp_lt_u32 s{sT[1]}, {SPIN}
    s_cbranch_scc1 L_s0poll{P}
    s_branch L_s0done{P}
    """)
def s1_issue(P):
    a(f"s_cmp_lg_u32 s{sW}, 0\ns_cbranch_scc1 L_nopoll0{P}")
    if P in 'GSC': s0_check(P)
    a(f"""
    s_mov_b32 s{sT[1]}, {WS_F1}
    v_lshlrev_b32 v{t1}, 7, v{L}
    buffer_load_dword v{t0}, v{t1}, {srd(SWS)}, s{sT[1]} offen sc1
    L_nopoll0{P}:
    """)
    a.vm -= 1
def s1_check(P):
    a(f"""
    s_cmp_lg_u32 s{sW}, 0
    s_cbranch_scc1 L_s1done{P}
    s_mov_b32 s{sT[0]}, 0
    L_s1poll{P}:
    s_waitcnt vmcnt(0)
    v_cmp_ne_u32 vcc, 1, v{t0}
    s_cbranch_vccz L_s1done{P}
    {'s_sleep ' + str(OPT['s1slp']) if OPT['s1slp'] else ''}
    s_mov_b64 exec, vcc
    buffer_load_dword v{t0}, v{t1}, {srd(SWS)}, s{sT[1]} offen sc1
    s_mov_b64 exec, -1
    s_add_u32 s{sT[0]}, s{sT[0]}, 1
    s_cmp_lt_u32 s{sT[0]}, {SPIN}
    s_cbranch_scc1 L_s1poll{P}
    s_waitcnt vmcnt(0)
    L_s1done{P}:
    """)
    a.vm -= 1

def proj_path(P):
    tok = {}
    PATH[0] = P
    S1 = OPT['s1']
    sched = {s: [s + 2] for s in range(6)}
    ISQ = P in 'KVP'
    PB = OPT['pbq0'] if ISQ else OPT['pb']
    QF = OPT['qf']
    sched.update({6: [8, 9], 7: [10, 11], 8: [12, 13], 9: [14, 15]}); cover = {8: 9, 10: 11, 12: 15}
    if ISQ and OPT['qmode'] == 0:
        del sched[8], sched[9]
        sched.update({10: [12, 13], 11: [14, 15]}); cover = {8: 9, 10: 11, 12: 13, 14: 15}
    bars = set(range(8)) | set(cover) | {S1}
    if OPT['gb14']: bars |= {14}
    if OPT['gbar'] and not ISQ: bars |= set(range(8, 16))
    if ISQ: bars |= {QF} | ({9} if OPT['qmode'] else set()) | (set(range(10, 16)) if OPT['qbar'] else set())
    def dma_groups(sg):
        d = dma_ops(sg, P)
        if ISQ and sg == OPT['exs']:
            d.insert(1, f"""
            s_add_u32 m0, s{sMX}, {EX}
            s_nop 0
            buffer_load_dwordx4 v{vES}, {srd(SEX)}, s{sEXO} offen lds
            buffer_load_dwordx4 v{vES}, {srd(SEX)}, s{sEXO} offen offset:1024 lds
            """)
        if P == 'S' and sg == OPT['exs']:
            d.insert(1, f"s_mov_b32 m0, {GW}\ns_nop 0\nbuffer_load_dwordx4 v{vES}, {srd(SEX)}, 0 offen lds")
        return [(x, sg if k == len(d) - 1 else None) for k, x in enumerate(d)]
    def emit(it):
        if callable(it): return it()
        a(it[0])
        if it[1] is not None: tok[it[1]] = a.lastvm()
    tok[0] = a.lastvm()
    if ISQ: mk_srd(SWQ, 6, 512 * 1024)
    if not OPT['spf']:
        for it in dma_groups(1): emit(it)
    if ISQ: mk_srd(SWG, 16, 512 * PG); mk_srd(SWU, 18, 512 * PG)
    if P in 'KVS': mk_srd(SEX, {'K': 8, 'V': 10, 'S': 22}[P], 1024 if P == 'S' else 16384)
    if P == 'P': a(f"s_cmp_lt_u32 s{sQ}, 2\ns_cselect_b64 s[{SEX}:{SEX+1}], s[8:9], s[10:11]\ns_mov_b32 s{SEX+2}, 16384\ns_mov_b32 s{SEX+3}, 0x20000")
    setup_path(P)
    if OPT['grp'] == 5: a("s_mov_b32 s6, s14\ns_mov_b32 s8, s5")
    stamp(3, 5)
    if OPT['spf']:
        for it in dma_groups(1): emit(it)
    stamp(4, 5)
    if P == 'C':
        ctok = a(f"v_lshlrev_b32 v{t0}, 7, v{L}\ns_mov_b32 s{sT[1]}, {WS_F1}\nbuffer_store_dword v{vZ}, v{t0}, {srd(SWS)}, s{sT[1]} offen sc1")
    win = {c: [] for c in range(33)}
    box = {}; front = {}; pre8 = []; lvl = [3]
    def usable(c):
        return c % 2 == 0 or ((c + 1) // 2) not in bars
    def nxt(c):
        while not usable(c): c += 1
        return c
    if not ISQ:
        gq = []
        for b in range(2):
            for j in range(4): gq += gelu_pair(ACC[0] + 16 * b, j)
            gq += to_frag(ACC[0] + 16 * b)
            if b == 0: n0 = len(gq)
        npre = 17 * (PB - 1) if PB else 0
        pre8 += [(x, None) for j in range(max(PB - 1, 0)) for x in gelu_pair(ACC[0], j, pk=OPT.get('pbk', 0))]
        gq = gq[npre:]; n0 -= npre
        ws = [c for c in range(16, OPT['gend'] + 1) if usable(c)]
        ndma = {16: 2, 17: 2, 18: 4} if 9 not in bars else {16: 4, 18: 4}
        tot = len(gq) + OPT['dwt'] * 8
        done = 0; accw = 0
        for k, c in enumerate(ws):
            accw += OPT['dwt'] * ndma.get(c, 0)
            upto = max(done, tot * (k + 1) // len(ws) - accw)
            win[c] += [(x, None) for x in gq[done:upto]]
            if done < n0 <= upto: c0 = c
            done = upto
        assert done == len(gq)
        for b in range(OPT['nearly']):
            c = nxt(max(OPT[f'h{b}w'], c0 if b == 0 else ws[-1]))
            win[c].append((f"s_sub_u32 s{sT[2]}, s{sHO}, {65536 - 16384*b}\nbuffer_store_dwordx4 {vr(ACC[0]+16*b,4)}, v{vST}, {srd(SWS)}, s{sT[2]} offen sc1", None))
    else:
        qa = [f"s_add_u32 s{sT[8]}, s{sT[4]}, {WS_Q + 4096}\ns_add_u32 s{sT[4]}, s{sT[4]}, {WS_Q}"]
        if P == 'K': qa += [f"v_mul_f32 v{ACCE+r}, {fbits(QS):#x}, v{ACCE+r}" for r in range(4)]
        sts = []
        if P in 'KV':
            qa += [f"v_cvt_pk_bf16_f32 v{vGT}, v{ACCE}, v{ACCE+1}", f"v_cvt_pk_bf16_f32 v{vGT+1}, v{ACCE+2}, v{ACCE+3}"]
            sts.append(f"buffer_store_dwordx2 {vr(vGT,2)}, v{vSA}, {srd(SWS)}, s{sEXW} offen sc1")
        if P == 'P':
            sts.append(f"s_andn2_b32 s{sT[0]}, s{sF2}, 127\nv_lshlrev_b32 v{t2}, 2, v{L}\ns_mov_b32 exec_hi, 0\nbuffer_store_dword v{vZ}, v{t2}, {srd(SWS)}, s{sT[0]} offen sc1\ns_mov_b32 exec_hi, -1")
        def qcv(i): return [f"v_cvt_pk_bf16_f32 v{ACC[0]+8*i+j}, v{ACC[0]+8*i+2*j}, v{ACC[0]+8*i+2*j+1}" for j in range(4)]
        def qst(i): return to_frag(ACC[0] + 8 * i) + [f"buffer_store_dwordx4 {vr(ACC[0]+8*i,4)}, v{vST}, {srd(SWS)}, s{sT[8 if i & 1 else 4]} offen offset:{1024*(i>>1)} sc1"]
        mark = [lambda: box.update(q=a.lastvm())]
        T = lambda l: [(x, None) for x in l]
        if OPT['qmode'] == 0 and PB:
            pre8 += T(qa + qcv(0) + qcv(1) + qcv(2) + qcv(3) + [x for i in range(4) for x in qst(i)[:2]])
            if OPT.get('pbq'): pre8 += T(sts + [qst(i)[2] for i in range(4)]) + mark
            else: win[16] += T(sts + [qst(i)[2] for i in range(2)]); win[17] += T([qst(i)[2] for i in range(2, 4)]) + mark
        elif OPT['qmode'] == 0:
            win[16] += T(qa + sts + qcv(0) + qcv(1) + qst(0) + qst(1)); win[17] += T(qcv(2) + qcv(3) + qst(2) + qst(3)) + mark
        elif OPT['qmode'] == 1:
            win[16] += T(qa + qcv(0) + qcv(1)); win[18] += T(sts + qst(0) + qcv(2)); win[20] += T(qcv(3) + qst(1) + qst(2) + qst(3)) + mark
        else:
            win[16] += T(qa + qcv(0) + qcv(1) + qcv(2) + qcv(3)); win[18] += T(sts + qst(0) + qst(1) + qst(2) + qst(3)) + mark
        def qflag():
            assert a.vm_done > box['s0']
            if P != 'P': s0_check(P)
            a(f"""
            s_lshl4_add_u32 s{sT[0]}, s{sQ}, s{sTI}
            s_lshl_b32 s{sT[0]}, s{sT[0]}, 7
            s_add_u32 s{sT[0]}, s{sT[0]}, {WS_F1}
            s_lshl_b32 s{sT[1]}, s{sW}, 24
            s_add_u32 s{sT[0]}, s{sT[0]}, s{sT[1]}
            v_mov_b32 v{t1}, 1
            s_mov_b64 exec, 1
            buffer_store_dword v{t1}, v{vZ}, {srd(SWS)}, s{sT[0]} offen sc1
            s_mov_b64 exec, -1
            """)
        if P != 'P': box['flag'] = qflag
    if P == 'S':
        win[16] = [(x, None) for x in (f"v_mul_f32 v{t2}, {fbits(-math.log2(math.e)):#x}, v{ACCE}", f"v_exp_f32 v{t2}, v{t2}", f"v_add_f32 v{t2}, 1.0, v{t2}", f"v_rcp_f32 v{t2}, v{t2}")] + win[16]
        win[20].append((f"s_mov_b64 exec, 0xffff\nbuffer_store_dword v{t2}, v{vSA}, {srd(SWS)}, s{sEXW} offen sc1\ns_mov_b64 exec, -1", None))
    if OPT['clw'] <= 32:
        win[nxt(max(OPT['clw'], max(24, 2 * QF + 1) if ISQ else 0))].append(
            (f"v_mov_b32 v24, -1\nv_mov_b32 v25, -1\nv_mov_b32 v26, -1\nv_mov_b32 v27, -1\nbuffer_store_dwordx4 v[24:27], v{vL16}, {srd(SWS)}, s{sT[9]} offen sc1", None))
    queue = setup_queue()
    ws = [c for c in range(21 if ISQ else 20, 2 * S1 - 1) if usable(c)]
    for k, c in enumerate(ws):
        left = [x for x in queue if 2 * x[0] - 2 <= c]
        take = min(len(left), -(-len(queue) // (len(ws) - k)))
        win[c] += [(x[1], None) for x in left[:take]]; queue = queue[take:]
    assert not queue
    win[16].insert(0, (f"v_subrev_u32 v{vXR[0]}, {WR}, v{vWR[0]}\nv_subrev_u32 v{vXR[1]}, {WR}, v{vWR[1]}\nv_add_u32 v{vXR[2]}, {WR}, v{vWR[0]}\nv_add_u32 v{vXR[3]}, {WR}, v{vWR[1]}", None))

    def cluster(c, what='mr'):
        M = mfmas(c >> 1, c & 1) if (c >= 0 and 'm' in what) else []
        em = e_mfmas(c) if M else []
        for i, x in enumerate(em): M.insert(1 + (8 // len(em) + 1) * i, x)
        d = c + 1
        R = []
        if d < 32 and 'r' in what:
            if d < 16: R += x_reads(d >> 1, d & 1)
            for i in range(4): R += w_reads(d >> 1, d & 1, i)
            R += e_reads(d)
        a.wait(a.lastlg())
        if M and not OPT['lad']: a("s_setprio 2")
        n = max(len(M), 1); k = 0
        last = n - 1 if (c & 1 or ((c >> 1) + 1) not in bars) else n - 2
        if M: last = min(last, n - 1 - OPT['rq' if ISQ else 'rg'] if c >= 16 else n - 1 - OPT['r1'])
        for i in range(n):
            if M: a(M[i])
            want = len(R) if i >= last else -(-len(R) * (i + 1) // (last + 1))
            while k < want: a(R[k]); k += 1
        if M and not OPT['lad']: a("s_setprio 0")
        if M and OPT['lad'] and lvl[0] > 0 and not (c % 2 == 0 and (c >> 1) + 1 in bars and not (c == 14 and PB)):
            lvl[0] -= 1; a(f"s_setprio {lvl[0]}")

    for sig in range(16):
        if sig == 8 and PB:
            cluster(15, 'm')
            for it in pre8: emit(it)
        if sig in bars:
            if sig in cover or sig < 8: a.wait(tok[cover.get(sig, sig)])
            if ISQ and sig == QF: a.wait(box['q'])
            if sig == S1 and P != 'P': s1_check(P)
            if OPT['lad']: lvl[0] = 3; a("s_setprio 3")
            a("s_barrier")
            if sig == QF and 'flag' in box: box['flag']()
        if sig == 1: stamp(1)
        if sig == 8: stamp(2)
        if sig < 11: stamp(sig, 1)
        if sig < 5: stamp(5 + sig, 5)
        if sig >= 6: stamp(sig - 6, 2)
        D = []
        if P == 'C' and sig == 2:
            assert a.vm_done >= ctok[1]
            win[4].append((f"v_mov_b32 v{t0}, 1\ns_mov_b64 exec, 1\nbuffer_store_dword v{t0}, v{vZ}, {srd(SDBG)}, 0 offen sc1\ns_mov_b64 exec, -1", None))
        for sg in sched.get(sig, []): D += dma_groups(sg)
        if sig == S1: D += [(x, None) for x in first_loads()]
        if sig == (7 if ISQ else 9) and P != 'P':
            def s0_load():
                if not ISQ:
                    a(f"s_cmp_lg_u32 s{sW}, 0\ns_cbranch_scc1 L_nos0l{P}\nbuffer_load_dword v{vS0}, v{vZ}, {srd(SDBG)}, 0 offen sc1\nL_nos0l{P}:")
                    a.vm -= 1
                else:
                    a(f"buffer_load_dword v{vS0}, v{vZ}, {srd(SDBG)}, 0 offen sc1")
                box['s0'] = a.vm
            D.insert(len(D) - 1, s0_load)
        head, mid, tail = [], D, []
        if sig < OPT['late']: mid, tail = [], D
        elif (sig + 1) not in bars: mid, tail = D[:len(D)//2], D[len(D)//2:]
        elif sig in bars and len(D) >= 4: head, mid = D[:OPT['na']], D[OPT['na']:]
        for it in head: emit(it)
        cluster(2 * sig - 1, 'r' if (sig == 8 and PB) else 'mr')
        if sig == S1 - 1 and P != 'P' and OPT['s1w'] == 30:
            assert a.vm_done > box['s0']
            s1_issue(P)
        for it in front.get(2 * sig, []) + mid + win[2 * sig]: emit(it)
        cluster(2 * sig)
        for it in front.get(2 * sig + 1, []) + tail + win[2 * sig + 1]: emit(it)
    if P != 'P' and OPT['s1w'] == 31: s1_issue(P)
    a.wait(a.lastlg())
    assert not win[32]

setup_common()
dispatch()
proj_path('G')
a("L_join:")
a.forget()

JE = OPT['jearly'] and OPT['s1'] == 16
if not JE:
    for m in mfmas(15, 1): a(m)
    a("s_setprio 0")
stamp(3); stamp(10, 2)
def gelu_chunk(k):
    b, jp = k >> 1, k & 1
    g0 = gelu_pair(ACC[1] + 16 * b, 2 * jp, vGT, pk=OPT['pk2']); g1 = gelu_pair(ACC[1] + 16 * b, 2 * jp + 1, t2, pk=OPT['pk2'])
    for x, y in zip(g0, g1):
        a(x); a(y)
    if k == 2:
        for x in to_frag(ACC[1]): a(x)
for k in range(OPT['jlate']): gelu_chunk(k)
stamp(5, 3)
if OPT['s1'] == 16:
    s1_check('J')
    stamp(6, 3)
    a("s_barrier")
    stamp(7, 3)
    fl = first_loads()
    if JE:
        nfirst = OPT['jearly'] - 1
        for x in fl[:nfirst]: a(x)
        for m in mfmas(15, 1): a(m)
        fl = fl[nfirst:]
    for x in fl: a(x)
stamp(4); stamp(8, 3)
for k in range(OPT['jlate'], 4): gelu_chunk(k)
for x in to_frag(ACC[1] + 16): a(x)
for x in setup_queue(True): a(x)
a(f"s_mov_b32 s{sT[7]}, s{sT[9]}\ns_mov_b32 s{sT[8]}, 0xffff\ns_mov_b32 s{sT[9]}, 0xffff")
stamp(9, 3)
a.wait_vm0()
a("s_barrier")
stamp(5); stamp(10, 3)

def qk(S, Q): return f"v_mfma_f32_32x32x16_bf16 {vr(S,16)}, {vr(KF,4)}, {vr(Q,4)}, 0"
def pv(O, V, S): return f"v_smfmac_f32_32x32x32_bf16 {vr(O,16)}, {vr(V,4)}, {vr(S,8)}, v{vIDX}"
NT, B1, B2 = 32, 8, OPT['b2']
def rec(t): return (t % NSLOT) * 2048
def rdK(t): return a(f"ds_read_b128 {vr(KF,4)}, v{vAK} offset:{rec(t)}")
def rdV(t2, t1):
    a(f"s_mov_b64 exec, s[{sT[8]}:{sT[9]}]")
    if t2 is not None: a(f"ds_read_b128 {vr(V2,4)}, v{vAV} offset:{rec(t2) + 1536}")
    if t1 is not None: a(f"ds_read_b128 {vr(V1[t1&1],4)}, v{vAV} offset:{rec(t1) + 1024}")
    a("s_mov_b64 exec, -1")
    return a.lastlg()
wtok, htok, rtok, box = {}, {}, {}, {}
m0own = [None]; wstart = set()
def w_off(u): return sR[u & 3] if u < 14 else sWOF
def w_load_a(u):
    a(f"s_add_u32 m0, s{sRING}, {(u & 3) * 2048}"); m0own[0] = ('w', u); wstart.add(u)
    assert u == 0 or (u - 1) in wtok
    if 0 < u < 14: a(f"s_sub_u32 s{sR[u&3]}, s{sR[(u-1)&3]}, 16384\ns_cselect_b32 s{sR[u&3]}, {13*16384}, s{sR[u&3]}")
    elif u == 14: a(f"s_lshl_b32 s{sWOF}, s{sU}, 14")
    elif u > 14: a(f"s_add_u32 s{sWOF}, s{sWOF}, 16384\ns_and_b32 s{sWOF}, s{sWOF}, 0xffff")
    a(f"buffer_load_dwordx4 v{vDS}, {srd(SWD if u < 14 else SWO)}, s{w_off(u)} offen lds")
def w_load_b(u):
    if m0own[0] != ('w', u):
        a(f"s_add_u32 m0, s{sRING}, {(u & 3) * 2048}"); m0own[0] = ('w', u)
    wtok[u] = a(f"buffer_load_dwordx4 v{vDS1}, {srd(SWD if u < 14 else SWO)}, s{w_off(u)} offen offset:1024 lds")
def h_load_a(u):
    assert u in wstart and (u + 4) not in wstart
    a(f"buffer_load_dwordx4 {vr(HF[u&3],4)}, v{vH0}, {srd(SWS)}, s{sR[u&3]} offen sc1")
def h_load_b(u):
    assert (u + 4) not in wstart
    htok[u] = a(f"buffer_load_dwordx4 {vr(HF[u&3]+4,4)}, v{vH1}, {srd(SWS)}, s{sR[u&3]} offen sc1")
def w_read(u, b):
    if b == 0: a.wait(wtok[u], htok[u])
    for e in range(2):
        rtok[u, b] = a(f"ds_read_b64_tr_b16 {vr(WF[u&1] + 4*b + 2*e, 2)}, v{(vDR0, vDR1)[b]} offset:{(u & 3) * 2048 + e*512}")
def d_mfma(u, k):
    tb, b = k >> 1, k & 1
    a.wait(rtok[u, 1])
    d = vr(DACC + 32 * tb + 16 * b, 16)
    a(f"v_mfma_f32_32x32x16_bf16 {d}, {vr(WF[u&1]+4*b,4)}, {vr(HF[u&3]+4*tb,4)}, {'0' if u == 0 else d}")

if OPT.get('x_now'):
    def w_load_a(u): pass
    def w_load_b(u): wtok[u] = None
if OPT.get('x_noh'):
    def h_load_a(u): pass
    def h_load_b(u): htok[u] = None
if OPT.get('x_noread'):
    def w_read(u, b): rtok[u, b] = None
ev, mf = {}, {}
SNAP = OPT.get('snap', 1)
B1P = 32 * (B1 - 1) + 11
EV, EVA, EK, EKA = OPT.get('ev', 5), OPT.get('eva', 0), OPT.get('ek', 11), OPT.get('eka', 0)
busy = {32 * t + o for t in range(NT) for o in (EV, EK, 18)}
def nextpos(p):
    while SNAP and (p & 15) not in (2, 5, 8, 11, 14): p += 1
    return p
def at(pos, f, limit=None):
    p = nextpos(pos)
    while SNAP and limit is not None and p in busy and nextpos(p + 1) <= limit: p = nextpos(p + 1)
    busy.add(p)
    ev.setdefault(p, []).append(f)
    return p
def h_store(b): box['h'] = a((f"s_add_u32 s{sHO}, s{sHO}, 16384\n" if b else "") + f"buffer_store_dwordx4 {vr(ACC[1]+16*b,4)}, v{vST}, {srd(SWS)}, s{sHO} offen sc1")
def late_store(k):
    if k == 2:
        a(f"v_mov_b32 v24, -1\nv_mov_b32 v25, -1\nv_mov_b32 v26, -1\nv_mov_b32 v27, -1\nbuffer_store_dwordx4 v[24:27], v{vL16}, {srd(SWS)}, s{sT[7]} offen sc1")
        return
    a(f"""
    s_cmp_eq_u32 s{sU}, 0
    s_cbranch_scc1 L_nols{k}
    s_sub_u32 s{sT[2]}, s{sHO}, {65536 - 16384*k}
    buffer_store_dwordx4 {vr(ACC[0]+16*k,4)}, v{vST}, {srd(SWS)}, s{sT[2]} offen sc1
    L_nols{k}:
    """)
    a.vm -= 1
pp = OPT.get('p_st', 1); STS = OPT.get('p_sts', 1)
for k in list(range(OPT['nearly'], 2)) + ([2] if OPT['clw'] > 32 else []):
    pp = at(pp, lambda k=k: late_store(k), pp + 12) + STS
pp = at(pp, lambda: h_store(0), pp + 12) + STS
pp = at(pp, lambda: h_store(1), pp + 12)
assert pp < B1P
def kv_emit(m, i):
    if i == 0: m0own[0] = ('kv', m)
    if m0own[0] != ('kv', m):
        a(f"s_add_u32 m0, s{sKVM}, {(4 * m % NSLOT) * 2048}"); m0own[0] = ('kv', m)
    kvtok[m] = a(kv_step(m)[i])
for m in range(KV_FIRST, 8):
    p = OPT['p_kv'] + OPT['p_kvs'] * (m - KV_FIRST) if m < 6 else OPT['p_kv2'] + 20 * (m - 6)
    p = at(p, lambda m=m: kv_emit(m, 0), p + 8)
    at(p + 1, lambda m=m: kv_emit(m, 1), p + 9)
assert OPT['p_kv2'] > B1P
def h_flag():
    a(f"""
    s_lshl_b32 s{sT[1]}, s{sW}, 24
    s_add_u32 s{sT[1]}, s{sT[1]}, s{sF2}
    v_mov_b32 v{t0}, 1
    s_mov_b64 exec, 1
    buffer_store_dword v{t0}, v{vZ}, {srd(SWS)}, s{sT[1]} offen sc1
    s_mov_b64 exec, -1
    """)
def f2_load():
    box['f2'] = a(f"s_mov_b64 exec, 15\nbuffer_load_dwordx4 {vr(F2D,4)}, v{vF2}, {srd(SWS)}, s{sF2R} offen sc1")
    a("s_mov_b64 exec, -1")
at(OPT['p_f2'], f2_load, OPT['p_f2'] + 8)
def f2_check():
    a.wait(box['f2'])
    test = f"v_min3_u32 v{F2D}, v{F2D}, v{F2D+1}, v{F2D+2}\nv_min_u32 v{F2D}, v{F2D}, v{F2D+3}\nv_cmp_ne_u32 vcc, 1, v{F2D}"
    a(f"s_mov_b64 exec, 15\n{test}\ns_cbranch_vccnz L_s2retry\nL_s2done:\ns_mov_b64 exec, -1")
    cold.append(f"""
    L_s2retry:
    s_mov_b32 s{sT[1]}, 0
    L_s2poll:
    buffer_load_dwordx4 {vr(F2D,4)}, v{vF2}, {srd(SWS)}, s{sF2R} offen sc1
    s_add_u32 s{sT[1]}, s{sT[1]}, 1
    s_waitcnt vmcnt(0)
    {test}
    s_cbranch_vccz L_s2done
    s_sleep {OPT.get('slp', 6)}
    s_cmp_lt_u32 s{sT[1]}, {SPIN}
    s_cbranch_scc1 L_s2poll
    s_branch L_s2done
    """)
    a(f"buffer_load_dword v{vG}, v{vG}, {srd(SWS)}, s{sGA} offen sc1")
    stamp(9)
PCHK = at(OPT['p_chk'], f2_check, OPT['p_chk'] + 8)
D0, DE = OPT['d0'], OPT['dend']
allsl = [32 * t + o for t in range(D0, DE) for o in (8, 14, 24, 30)]
assert len(allsl) >= 56
slots = [allsl[(i * len(allsl)) // 56] for i in range(56)]
for u in range(14):
    rp = slots[0] - 16 if u == 0 else slots[4 * u - 2] + 1
    lim = slots[4 * u] - 9
    p = at(rp, lambda u=u: w_read(u, 0), lim - 3); at(p + 1, lambda u=u: w_read(u, 1), lim)
    for k in range(4): mf[slots[4 * u + k]] = (lambda u=u, k=k: d_mfma(u, k))
for u in range(18):
    pw = OPT['p_fill'] + OPT['p_fills'] * u if u < 4 else slots[4 * (u - 4)] + 1
    p = at(pw, lambda u=u: w_load_a(u), pw + 8); p = at(p + 1, lambda u=u: w_load_b(u), p + 8)
    if u < 3:
        ph = PCHK + 1 + OPT.get('p_hs', 13) * u
        p = at(ph, lambda u=u: h_load_a(u), ph + 4); at(p + 1, lambda u=u: h_load_b(u), p + 5)
    if 4 <= u < 15:
        p = at(p + 1, lambda u=u: h_load_a(u - 1), p + 8); at(p + 1, lambda u=u: h_load_b(u - 1), p + 8)
for lo, hi, fr in ((0, B1P, (OPT.get('la1', 30), OPT.get('la2', 70), OPT.get('la3', 94))), (B1P, 32 * B2, (OPT.get('lb1', 35), OPT.get('lb2', 80), OPT.get('lb3', 96))),
                   (32 * B2, 32 * NT, (OPT.get('lc1', 60), OPT.get('lc2', 87), OPT.get('lc3', 96)))):
    for k in range(3): at(lo + ((hi - lo) * fr[k]) // 100, lambda k=k: a(f"s_setprio {2-k}"))

def merge_addr():
    a(f"""
    s_mul_i32 s{sT[0]}, s{sW}, 2304
    s_add_u32 s{sT[0]}, s{sT[0]}, {MERGE}
    s_xor_b32 s{sT[1]}, s{sW}, 4
    s_mul_i32 s{sT[1]}, s{sT[1]}, 2304
    s_add_u32 s{sT[1]}, s{sT[1]}, {MERGE}
    v_add_u32 v{t0}, s{sT[0]}, v{vL16}
    v_add_u32 v{t1}, s{sT[1]}, v{vL16}
    v_lshl_add_u32 v{t2}, v{L}, 2, s{sT[0]}
    v_lshl_add_u32 v{t3}, v{L}, 2, s{sT[1]}
    s_add_u32 s{sOO}, s{sOO}, {WS_O}
    s_mov_b32 s{sT[6]}, {fbits(2.0**-60):#x}
    s_mov_b32 s{sT[7]}, {fbits(2.0**60) - fbits(2.0**-60):#x}
    """)
at(32 * NT - 11, merge_addr)
at(32 * NT - 8, lambda: a(f"ds_write_b128 v{t0}, {vr(OA,4)}\nds_write_b128 v{t0}, {vr(OA+4,4)} offset:1024\nds_write_b32 v{t2}, v{OA+8} offset:2048"))

a("s_setprio 3")
tK = rdK(0); tV = rdV(None, 0)
a.wait(tK)
a(qk(SA, QA))
for t in range(NT):
    if t == B2:
        a.wait(kvtok[7]); a("s_barrier\ns_setprio 3"); stamp(0)
    nx = t + 1 if t + 1 < NT else None
    for ph, (S, So, O, Oo, Qo) in enumerate(((SA, SB, OA, OB, QB), (SB, SA, OB, OA, QA))):
        for e in range(16):
            pos = 32 * t + 16 * ph + e
            def own(after):
                global tV, tK
                if ph == 0 and (e, after) == (EV, EVA):
                    if t == 0: a.wait(tV)
                    tV = rdV(t, nx if t != B1 - 1 else None)
                if ph == 0 and (e, after) == (EK, EKA) and nx and t != B1 - 1: tK = rdK(nx)
            for f in ev.pop(pos, []): f()
            own(0)
            if pos == B1P:
                a.wait(kvtok[5], box['h'], tV); a("s_barrier\ns_setprio 3"); stamp(6)
                tK = rdK(nx); tV = rdV(None, nx)
                h_flag()
            if e == 2:
                if ph == 1: a.wait(tV, None if OPT.get('w2') else tK)
                if t > 0 or ph == 1: a(pv(Oo, V2, So + 8))
            if (e == 5 and not (t == 0 and ph == 0)) or (t == 0 and ph == 0 and e == 0):
                if ph == 1: a.wait(tK)
                if ph == 0 or nx: a(qk(So, Qo))
            if e == 11: a(pv(O, V1[t & 1], S))
            if pos in mf: mf.pop(pos)()
            own(1)
            a(f"v_exp_f32 v{S+e}, v{S+e}")
assert not mf
assert not ev, sorted(ev)
a.wait_lg0()
a(pv(OB, V2, SB + 8))
stamp(7); stamp(0, 4)
a("s_barrier")
stamp(1, 4)
a(f"""
ds_read_b32 v{SA+8}, v{t3} offset:2048
ds_read_b128 {vr(SA,4)}, v{t1}
ds_read_b128 {vr(SA+4,4)}, v{t1} offset:1024
s_lshl_b32 s{sT[3]}, s{sW}, 13
s_xor_b32 s{sT[2]}, s{sT[3]}, 8192
v_add_u32 v24, s{sT[2]}, v{vL16}
v_add_u32 v26, s{sT[3]}, v{vL16}
s_waitcnt lgkmcnt(2)
v_add_f32 v{OB+8}, v{OB+8}, v{SA+8}
v_rcp_f32 v{t0}, v{OB+8}
""")
a.wait_lg0()
OS = 128
for j in range(2): a(f"v_pk_add_f32 {vr(OB+2*j,2)}, {vr(OB+2*j,2)}, {vr(SA+2*j,2)}")
a(f"v_mul_f32 v{t0}, v{t0}, v{vG}")
for j in range(2, 4): a(f"v_pk_add_f32 {vr(OB+2*j,2)}, {vr(OB+2*j,2)}, {vr(SA+2*j,2)}")
for j in range(4): a(f"v_pk_mul_f32 {vr(OB+2*j,2)}, {vr(OB+2*j,2)}, {vr(t0,2)} op_sel_hi:[1,0]")
a(f"""
v_pk_add_f32 {vr(t2,2)}, {vr(OB,2)}, {vr(OB+2,2)}
v_pk_add_f32 {vr(t0,2)}, {vr(OB+4,2)}, {vr(OB+6,2)}
v_cvt_pk_bf16_f32 v{OS}, v{OB}, v{OB+1}
v_pk_add_f32 {vr(t2,2)}, {vr(t2,2)}, {vr(t0,2)}
v_cvt_pk_bf16_f32 v{OS+1}, v{OB+2}, v{OB+3}
v_add_f32 v{t2}, v{t2}, v{t3}
v_cvt_pk_bf16_f32 v{OS+2}, v{OB+4}, v{OB+5}
v_fma_f32 v{t2}, v{t2}, 0, v{OB+8}
v_cvt_pk_bf16_f32 v{OS+3}, v{OB+6}, v{OB+7}
v_subrev_u32 v{t2}, s{sT[6]}, v{t2}
v_cmp_lt_u32 vcc, s{sT[7]}, v{t2}
""")
if OPT['force_fb']: a("s_mov_b64 vcc, -1")
a(f"""
s_cbranch_vccnz L_true_max
L_norm:
buffer_store_dwordx4 {vr(OS,4)}, v{vL16}, {srd(SWS)}, s{sOO} offen sc1
""")
stamp(8); stamp(2, 4)

OF, WOF, XT = 32, 176, 96
vO1 = 27
fill = f"""
s_andn2_b32 s{sT[2]}, s{sRING}, 8192
v_add_u32 v28, s{sT[2]}, v{vTRP}
v_xor_b32 v29, 64, v28
v_sub_f32 v{vG}, 1.0, v{vG}
v_add_u32 v{vO1}, 4096, v{vL16}
s_and_b32 s{sT[1]}, s{sW}, 1
s_lshl1_add_u32 s{sT[0]}, s{sI}, s{sT[1]}
s_lshr_b32 s{sT[1]}, s{sW}, 1
s_lshl2_add_u32 s{sT[0]}, s{sT[0]}, s{sT[1]}
s_lshl_b32 s{sT[0]}, s{sT[0]}, 13
s_add_u32 s{sT[0]}, s{sT[0]}, {WS_O}
""".strip().split('\n')
for v in range(4):
    fill += f"s_add_u32 s{sT[1]}, s{sU}, {v}\ns_and_b32 s{sT[1]}, s{sT[1]}, 3\ns_lshl_b32 s{sT[1]}, s{sT[1]}, 10\ns_add_u32 s{sT[4+v]}, s{sT[0]}, s{sT[1]}".split('\n')
fill += f"""
v_and_b32 v{t0}, 31, v{L}
v_lshrrev_b32 v{t1}, 5, v{L}
v_and_b32 v{t2}, 7, v{L}
v_xor_b32 v{t1}, v{t1}, v{t2}
v_lshlrev_b32 v{t1}, 4, v{t1}
v_lshl_add_u32 v{t0}, v{t0}, 8, v{t1}
v_add_u32 v9, s{sT[3]}, v{t0}
v_xor_b32 v10, 32, v9
v_xor_b32 v11, 64, v9
v_xor_b32 v12, 0x60, v9
v_lshrrev_b32 v{t0}, 3, v{L}
v_lshlrev_b32 v{t1}, 1, v{t2}
v_xor_b32 v{t1}, v{t1}, v{t0}
v_lshlrev_b32 v{t1}, 4, v{t1}
v_lshl_add_u32 v{t1}, v{t0}, 8, v{t1}
v_add_u32 v1, s{sMX}, v{t1}
v_xor_b32 v2, 16, v1
s_lshl3_add_u32 s{sT[3]}, s{sI}, s{sW}
s_lshl_b32 s{sT[3]}, s{sT[3]}, 6
s_add_u32 s{sT[3]}, s{sT[3]}, s{sJ}
s_lshl_b32 s{sT[3]}, s{sT[3]}, 7
v_lshlrev_b32 v{t2}, 4, v{t2}
v_lshl_add_u32 v5, v{t0}, 10, v{t2}
s_mov_b32 s{sT[2]}, 0
""".strip().split('\n')
for j in range(8):
    a(f"ds_write_b128 v24, {vr(DACC+32+4*j,4)} offset:{1024*j}")
    for x in fill[len(fill) * j // 8: len(fill) * (j + 1) // 8]: a(x)
def o_loads():
    for v in range(8):
        a(f"buffer_load_dwordx4 {vr(OF + 4*v, 4)}, v{vO1 if v >> 2 else vL16}, {srd(SWS)}, s{sT[4 + (v&3)]} offen sc1")
stamp(3, 4)
a.wait(wtok[17], a.lastlg())
a(f"s_cmp_ge_u32 s{sW}, 4")
a("s_barrier")
stamp(4, 4)
a("s_setprio 1\ns_cbranch_scc1 L_ol1\ns_setprio 0")
o_loads()
a("L_ol1:")
xt = [a(f"ds_read_b128 {vr(XT+4*j,4)}, v26 offset:{1024*j}") for j in range(8)]
def wo_read(v):
    slot = ((14 + v) & 3) * 2048 + (v >> 2) * 8192
    for b in range(2):
        for e in range(2):
            a(f"ds_read_b64_tr_b16 {vr(WOF + 8*v + 4*b + 2*e, 2)}, v{28 + b} offset:{slot + e*512}")
for j in range(8):
    a.wait(xt[j])
    for i in range(2):
        r = 4 * j + 2 * i
        a(f"v_pk_add_f32 {vr(DACC+r,2)}, {vr(DACC+r,2)}, {vr(XT+r,2)}")
    for i in range(2):
        r = 4 * j + 2 * i
        a(f"v_pk_mul_f32 {vr(DACC+r,2)}, {vr(DACC+r,2)}, {vr(vG,2)} op_sel_hi:[1,0]")
stamp(5, 4)
a("s_setprio 0\ns_cbranch_scc0 L_ol2")
o_loads()
a("L_ol2:")
for j in range(8): wo_read(j)
stamp(6, 4)
a("L_s3poll:")
a.wait_vm0()
a(f"v_max_u32 v{t0}, v{OF}, v{OF+1}\nv_max_u32 v{t1}, v{OF+2}, v{OF+3}")
for j in range(2, 16): a(f"v_max3_u32 v{t0 + (j&1)}, v{t0 + (j&1)}, v{OF+2*j}, v{OF+2*j+1}")
a(f"""
v_max_u32 v{t0}, v{t0}, v{t1}
v_cmp_eq_u32 vcc, -1, v{t0}
s_cbranch_vccnz L_s3retry
L_s3done:
""")
stamp(10); stamp(7, 4)
a.wait_lg0()
def fin_write(b, qd): a(f"ds_write_b128 v{9+qd}, {vr(DACC + 16*b + 4*qd, 4)} offset:{b*128}")
for b in range(2):
    for v in range(8):
        d = vr(DACC + 16 * b, 16)
        a(f"v_mfma_f32_32x32x16_bf16 {d}, {vr(WOF+8*v+4*b,4)}, {vr(OF+4*v,4)}, {d}")
        if b == 1 and v < 3: a("s_nop 2")
        if b == 1 and 3 <= v < 7: fin_write(0, v - 3)
stamp(8, 4)
for qd in range(4): fin_write(1, qd)
a.wait_lg0()
a("s_barrier")
stamp(9, 4)
RD = 176
rt = []
for p in range(4):
    for e in range(2):
        rt.append(a(f"ds_read_b128 {vr(RD + 8*p + 4*e, 4)}, v{1 + e} offset:{p*16384}"))
for p in range(1, 4):
    a.wait(rt[2 * p + 1])
    for j in range(4):
        a(f"v_pk_add_f32 {vr(RD+2*j,2)}, {vr(RD+2*j,2)}, {vr(RD+8*p+2*j,2)}")
for j in range(4): a(f"v_cvt_pk_bf16_f32 v{RD+j}, v{RD+2*j}, v{RD+2*j+1}")
a(f"buffer_store_dwordx4 {vr(RD,4)}, v5, {srd(SOUT)}, s{sT[3]} offen {['', 'sc1'][OPT['outm']]}")
stamp(10, 4)
if OPT['stamp']:
    a("s_waitcnt vmcnt(0)")
    stamp(11)
    a("s_waitcnt lgkmcnt(0)")
    a(f"s_mov_b32 s28, s{sT[2]}")
    if 'crit' in OPT:
        a(f"""
        s_cmp_lg_u32 s{sW}, 7
        s_cbranch_scc1 L_end
        s_lshl_b32 s{sT[0]}, s2, 6
        s_add_u32 s{sT[0]}, s{sT[0]}, {WS_STAMP}
        v_mov_b32 v1, 0
        """)
        for k in range(14): a(f"v_mov_b32 v2, s{4+2*k}\nbuffer_store_dword v2, v1, {srd(SWS)}, s{sT[0]} offen offset:{4*k} sc1")
        a(f"""
        s_cmp_lg_u32 s2, 0
        s_cbranch_scc1 L_end
        L_pad0:
        s_memrealtime s[{sT[2]}:{sT[3]}]
        s_waitcnt lgkmcnt(0)
        s_sub_u32 s{sT[2]}, s{sT[2]}, s30
        s_cmp_lt_u32 s{sT[2]}, 5000
        s_cbranch_scc1 L_pad0
        v_lshlrev_b32 v1, 6, v{L}
        s_mov_b32 s{sT[4]}, 0
        s_mov_b32 s{sT[5]}, -1
        """)
        for g in range(4):
            a(f"""
            s_mov_b32 s{sT[0]}, {WS_STAMP + 4096*g}
            buffer_load_dword v2, v1, {srd(SWS)}, s{sT[0]} offen offset:{4*OPT['crit']} sc1
            buffer_load_dword v3, v1, {srd(SWS)}, s{sT[0]} offen offset:52 sc1
            s_waitcnt vmcnt(0)
            v_subrev_u32 v2, s30, v2
            v_add_u32 v2, 1000, v2
            v_lshlrev_b32 v2, 8, v2
            v_add_u32 v2, v2, v{L}
            v_add_u32 v2, {64*g}, v2
            v_subrev_u32 v3, s30, v3
            v_add_u32 v3, 1000, v3
            s_nop 1
            """)
            for i in range(64): a(f"v_readlane_b32 s{sT[6]}, v2, {i}\nv_readlane_b32 s{sT[7]}, v3, {i}\ns_nop 0\ns_max_u32 s{sT[4]}, s{sT[4]}, s{sT[6]}\ns_min_u32 s{sT[5]}, s{sT[5]}, s{sT[7]}")
        a(f"""
        s_and_b32 s{sT[4]}, s{sT[4]}, 255
        s_lshl_b32 s{sT[0]}, s{sT[4]}, 6
        s_add_u32 s{sT[0]}, s{sT[0]}, {WS_STAMP}
        v_lshlrev_b32 v1, 2, v{L}
        buffer_load_dword v2, v1, {srd(SWS)}, s{sT[0]} offen sc1
        s_add_u32 s{sT[5]}, s{sT[5]}, s30
        s_sub_u32 s{sT[5]}, s{sT[5]}, 1000
        s_waitcnt vmcnt(0)
        v_subrev_u32 v2, s{sT[5]}, v2
        s_nop 1
        v_writelane_b32 v2, s{sT[4]}, 14
        s_mov_b64 exec, 0x7fff
        buffer_store_dword v2, v1, {srd(SDBG)}, 0 offen offset:4
        """)
    elif 'dk' in OPT:
        a(f"""
        s_cmp_lg_u32 s{sW}, {OPT.get('dw', 7)}
        s_cbranch_scc1 L_end
        s_lshl_b32 s{sT[0]}, s2, 2
        s_add_u32 s{sT[0]}, s{sT[0]}, {WS_STAMP}
        v_mov_b32 v2, s{4+2*OPT['dk']}
        v_mov_b32 v1, 0
        buffer_store_dword v2, v1, {srd(SWS)}, s{sT[0]} offen sc1
        s_cmp_lg_u32 s2, 0
        s_cbranch_scc1 L_end
        L_pad0:
        s_memrealtime s[{sT[2]}:{sT[3]}]
        s_waitcnt lgkmcnt(0)
        s_sub_u32 s{sT[2]}, s{sT[2]}, s30
        s_cmp_lt_u32 s{sT[2]}, 5000
        s_cbranch_scc1 L_pad0
        v_mul_u32_u24 v1, {4*OPT['dstride']}, v{L}
        s_mov_b32 s{sT[0]}, {WS_STAMP + 4*OPT['dbase']}
        buffer_load_dword v2, v1, {srd(SWS)}, s{sT[0]} offen sc1
        s_waitcnt vmcnt(0)
        v_subrev_u32 v2, s30, v2
        v_add_u32 v2, 100000, v2
        s_mov_b32 s{sT[4]}, 0
        s_mov_b32 s{sT[5]}, -1
        """)
        for i in range(OPT['dn']): a(f"v_readlane_b32 s{sT[6]}, v2, {i}\ns_nop 1\ns_max_u32 s{sT[4]}, s{sT[4]}, s{sT[6]}\ns_min_u32 s{sT[5]}, s{sT[5]}, s{sT[6]}")
        a(f"""
        s_sub_u32 s{sT[0]}, s{sT[4]}, s{sT[5]}
        s_min_u32 s{sT[0]}, s{sT[0]}, 2000
        s_mul_i32 s{sT[0]}, s{sT[0]}, 10
        s_add_u32 s{sT[0]}, s{sT[0]}, 6000
        L_pad:
        s_memrealtime s[{sT[2]}:{sT[3]}]
        s_waitcnt lgkmcnt(0)
        s_sub_u32 s{sT[2]}, s{sT[2]}, s30
        s_cmp_lt_u32 s{sT[2]}, s{sT[0]}
        s_cbranch_scc1 L_pad
        """)
    elif 'pad' in OPT:
        K = OPT['pad']
        a(f"s_and_b32 s{sT[0]}, s2, {OPT.get('padm', 0)}\ns_cmp_lg_u32 s{sT[0]}, {OPT.get('padv', 0)}\ns_cbranch_scc1 L_end")
        if K >= 0: a(f"s_sub_u32 s{sT[0]}, s{4+2*K}, s{4+2*OPT.get('padb', 13)}\ns_mul_i32 s{sT[0]}, s{sT[0]}, {OPT.get('padx', 4)}")
        else: a(f"s_mov_b32 s{sT[0]}, 0")
        a(f"""
        s_add_u32 s{sT[0]}, s{sT[0]}, 6000
        L_pad:
        s_memrealtime s[{sT[2]}:{sT[3]}]
        s_waitcnt lgkmcnt(0)
        s_sub_u32 s{sT[2]}, s{sT[2]}, s30
        s_cmp_lt_u32 s{sT[2]}, s{sT[0]}
        s_cbranch_scc1 L_pad
        """)
    else:
        a(f"s_lshl3_add_u32 s{sT[0]}, s2, s{sW}\ns_lshl_b32 s{sT[0]}, s{sT[0]}, 6\ns_add_u32 s{sT[0]}, s{sT[0]}, {WS_STAMP}")
        a("v_mov_b32 v1, 0\ns_mov_b64 exec, 1")
        for k in range(14):
            a(f"v_mov_b32 v2, s{4+2*k}\nbuffer_store_dword v2, v1, {srd(SWS)}, s{sT[0]} offen offset:{4*k}")
a("L_end:\ns_endpgm")
a("L_s3retry:")
o_loads()
a(f"""
s_add_u32 s{sT[2]}, s{sT[2]}, 1
s_cmp_lt_u32 s{sT[2]}, {SPIN}
s_cbranch_scc1 L_s3poll
s_waitcnt vmcnt(0)
s_branch L_s3done
""")

for P in 'KVPSC':
    a(f".p2align 6\nL_path{P}:")
    a.forget()
    proj_path(P)
    a("s_branch L_join")
for x in cold: a(x)

CM = SB
a(f"""
L_true_max:
s_waitcnt vmcnt(0) lgkmcnt(0)
v_mov_b32 v{t0}, 0xff800000
s_mov_b32 s{sT[0]}, {WS_KV}
L_tm1:
buffer_load_dwordx4 {vr(KF,4)}, v{vL16}, {srd(SWS)}, s{sT[0]} offen sc1
s_waitcnt vmcnt(0)
{qk(SA, QB)}
""")
for j in range(8): a(f"v_max3_f32 v{t0}, v{t0}, v{SA+2*j}, v{SA+2*j+1}")
a(f"""
s_add_u32 s{sT[0]}, s{sT[0]}, 2048
s_cmp_lt_u32 s{sT[0]}, {WS_KV + 64*2048}
s_cbranch_scc1 L_tm1
v_mov_b32 v{t1}, v{t0}
v_permlane32_swap_b32 v{t0}, v{t1}
v_max_f32 v{t0}, v{t0}, v{t1}
""")
for r in range(16): a(f"v_sub_f32 v{CM+r}, 0, v{t0}\nv_mov_b32 v{OB+r}, 0")
a(f"""
s_mov_b32 s{sT[0]}, {WS_KV}
L_tm2:
buffer_load_dwordx4 {vr(KF,4)}, v{vL16}, {srd(SWS)}, s{sT[0]} offen sc1
s_mov_b64 exec, s[{sT[8]}:{sT[9]}]
buffer_load_dwordx4 {vr(V1[0],4)}, v{vPV}, {srd(SWS)}, s{sT[0]} offen offset:1024 sc1
buffer_load_dwordx4 {vr(V2,4)}, v{vPV}, {srd(SWS)}, s{sT[0]} offen offset:1536 sc1
s_mov_b64 exec, -1
s_waitcnt vmcnt(0)
v_mfma_f32_32x32x16_bf16 {vr(SA,16)}, {vr(KF,4)}, {vr(QB,4)}, {vr(CM,16)}
""")
for e in range(16): a(f"v_exp_f32 v{SA+e}, v{SA+e}")
a(pv(OB, V1[0], SA)); a(pv(OB, V2, SA + 8))
a(f"""
s_add_u32 s{sT[0]}, s{sT[0]}, 2048
s_cmp_lt_u32 s{sT[0]}, {WS_KV + 64*2048}
s_nop 7
s_cbranch_scc1 L_tm2
s_nop 7
v_rcp_f32 v{t0}, v{OB+8}
s_nop 0
v_mul_f32 v{t0}, v{t0}, v{vG}
""")
for j in range(4): a(f"v_pk_mul_f32 {vr(OB+2*j,2)}, {vr(OB+2*j,2)}, {vr(t0,2)} op_sel_hi:[1,0]")
for j in range(4): a(f"v_cvt_pk_bf16_f32 v{OS+j}, v{OB+2*j}, v{OB+2*j+1}")
for j in range(4): a(f"v_min_u32 v{OS+j}, -2, v{OS+j}")
a("s_branch L_norm\nL_last:")

bad = a.check_branches()
assert not bad, bad

hdr = open(f'cdna_kernels/{NAME}.s.ref').read().split('\n')
head = [l for l in hdr if l.startswith(';') and '@launch' not in l]
body = a.text()
if OPT.get('stm'):
    import re
    body = re.sub(r'(buffer_store_dwordx4 .*s\[52:55\].*) sc1', lambda m: m.group(1) + [' sc1', ' sc1 nt', ' sc0 sc1', ' sc0 sc1 nt'][OPT['stm']], body)
out = "\n".join(head) + f"\n; @launch grid=(256,1,1) block=(512,1,1) lds={LDS_BYTES}\n"
out += f""".amdgcn_target "amdgcn-amd-amdhsa--gfx950"
.text
.globl {NAME}_kernel
.p2align 8
.type {NAME}_kernel,@function
{NAME}_kernel:
{body}
.section .rodata,"a"
.p2align 6
.amdhsa_kernel {NAME}_kernel
  .amdhsa_next_free_vgpr 256
  .amdhsa_next_free_sgpr 102
  .amdhsa_accum_offset 256
  .amdhsa_group_segment_fixed_size 0
  .amdhsa_kernarg_size 104
  .amdhsa_user_sgpr_count 2
  .amdhsa_user_sgpr_kernarg_segment_ptr 1
  .amdhsa_system_sgpr_workgroup_id_x 1
.end_amdhsa_kernel
"""
open(sys.argv[1], 'w').write(out)
print("instructions:", sum(1 for i in a.ins if i.ws), "auto nops:", a.nnop, file=sys.stderr)
```

```python
import sys, math, struct
sys.path.insert(0, 'gen')
from asmlib import Asm

NAME = 'gated_mix__grouped_kv_mqa__geglu_ffn__prompt'
OPT = dict(stamp=0, grp=0, force_fb=0, qflag=11, s1=16, b2=22, outm=1, ofast=0,
           p_kv=1, p_kvs=14, p_st=60, p_sts=20, p_fill=160, p_fills=60, p_kv2=366, p_f2=440, p_chk=470, d0=16, dend=32,
           late=0, pk2=1, nearly=1, h0w=24, h1w=30, clw=22, na=1, gend=30, dwt=0, qbar=0, cpf=1, qmode=0, qf=11, exs=1, spf=1, pb=1, pbq0=0, rq=1, rg=1, r1=1, qfirst=0, vlate=0, jearly=5, xsite=5, woe=0, oe=0, tlb=0, rotm=2, rots=12, dxs=3, wt=1, lb1=50, lb3=92, lc1=70, jlate=0, s1slp=0, s1w=30, lad=1, gb14=1, gbar=0)
for x in sys.argv[2:]:
    k, v = x.split('='); OPT[k] = int(v)

def fbits(x): return struct.unpack('<I', struct.pack('<f', x))[0]

WS_KV, WS_G, WS_F1, WS_Q, WS_O, WS_H, WS_STAMP = 0, 0x20000, 0x30000, 0x100000, 0x300000, 0x500000, 0xC00000
WS_F2 = WS_F1 + 8192
WS_SIZE = 0x1000000
CLEAR_WG = 128
WR, EX = 65536, 131072
NSLOT, HALF, RING = 24, 49152, 98304
MERGE = 65536
LDS_BYTES = 163840
SPIN = 0x400000
SX, SWG, SWU, SWQ, SEX, SWS, SDBG, SWD, SWO, SOUT = 32, 36, 40, 44, 48, 52, 56, 60, 64, 92
sW, sTI, sQ, sU, sROT, sXO, sWOF, sMX, sMW, sI, sJ, sROT0 = range(68, 80)
sT = list(range(80, 90))
sEXW, sEXO = 90, 91
sC1 = 96
sF2, sRH, sRING, sOO = 98, 99, 100, 101
sHO = 3
sKVM, sKVO, sQA, sGA = 32, 33, 34, 35
sF2R = 46
sR = [sRH, 44, 45, 47]
def srd(n): return f"s[{n}:{n+3}]"
def vr(b, n): return f"v[{b}:{b+n-1}]"

vXS0, vXS1, vWS = 1, 2, 3
vST = 4
vXR = [5, 6, 7, 8]
vWR = [9, 10]
vES, vER, vSA = 11, [12, 13], 30
vL16, vLANE = 14, 15
vC0 = 16
vZ = 17
vGT = 18
t0, t1, t2, t3 = 20, 21, 22, 23
vS0, vWS2 = 28, 27
vPV, vPD, vTRP = 29, 0, 31
F = [32, 48]
ACC = [64, 96]
XF = 128
ACCE, WE = 96, 100
GW = 147456
L = vLANE
QA, QB, KF, V2, V1 = 128, 132, 136, 140, [144, 148]
vG, vIDX, vAK, vAV, vKVS = 152, 154, 155, 156, 157
vDR0, vDR1, vH0, vH1 = 159, 160, 161, 162
vDS, vDS1, vF2 = vPD, 158, 163
F2D = 164
OA, OB, SA, SB = 176, 192, 208, 224
WF = [240, 248]
HF = [32, 40, 48, 56]
DACC = 64

a = Asm()
CLK = 's_memtime' if OPT['stamp'] == 2 else 's_memrealtime'
def stamp(k, grp=0):
    if grp != OPT['grp'] and k != 11: return
    if OPT['stamp']: a(f"{CLK} s[{4+2*k}:{5+2*k}]")
def mk_srd(n, p, size):
    a(f"s_mov_b32 s{n}, s{p}\ns_mov_b32 s{n+1}, s{p+1}\ns_mov_b32 s{n+2}, {size}\ns_mov_b32 s{n+3}, 0x20000")

PG = 3584
C0 = -2.0 * math.sqrt(2.0 / math.pi) * math.log2(math.e)
C1 = C0 * 0.044715
QS = 0.25 * math.log2(math.e)

a("s_cmp_ge_u32 s2, 256\ns_cbranch_scc1 L_end")
a("s_load_dwordx16 s[4:19], s[0:1], 0\ns_load_dwordx8 s[20:27], s[0:1], 64\ns_load_dwordx2 s[28:29], s[0:1], 96")
if OPT['stamp']: a(f"{CLK} s[30:31]")
def code_prefetch():
    a(f"""
    s_getpc_b64 s[{sT[8]}:{sT[9]}]
    L_pc:
    s_andn2_b32 s{sT[7]}, s2, 7
    s_lshl_b32 s{sT[7]}, s{sT[7]}, 8
    v_lshl_add_u32 v{t3}, v0, 2, s{sT[7]}
    v_min_u32 v{t3}, L_last-L_pc-4, v{t3}
    s_mov_b32 exec_lo, 1
    s_mov_b32 exec_hi, 1
    global_load_dword v{vS0}, v{t3}, s[{sT[8]}:{sT[9]}]
    s_mov_b64 exec, -1
    """)
if OPT['cpf'] == 1: code_prefetch()
ROTC = {8: f"s_lshl1_add_u32 s{sROT0}, s{sU}, s{sJ}\ns_and_b32 s{sROT0}, s{sROT0}, 7",
        4: f"s_add_u32 s{sROT0}, s{sU}, s{sJ}\ns_and_b32 s{sROT0}, s{sROT0}, 3\ns_lshl_b32 s{sROT0}, s{sROT0}, 1",
        2: f"s_add_u32 s{sROT0}, s{sU}, s{sJ}\ns_and_b32 s{sROT0}, s{sROT0}, 1\ns_lshl_b32 s{sROT0}, s{sROT0}, 2",
        3: f"s_add_u32 s{sROT0}, s{sU}, s{sJ}\ns_lshl_b32 s{sROT0}, s{sROT0}, 1\ns_lshr_b32 s{sROT0}, 0x124924, s{sROT0}\ns_and_b32 s{sROT0}, s{sROT0}, 3\ns_mul_i32 s{sROT0}, s{sROT0}, 3",
        1: f"s_mov_b32 s{sROT0}, 0"}[OPT['rotm']]
if OPT['rots']:
    ROTC += f"\ns_bfe_u32 s{sQ}, s2, 0x20001\ns_mul_i32 s{sT[1]}, s{sQ}, {OPT['rots'] // 10}\ns_add_u32 s{sROT0}, s{sROT0}, s{sT[1]}\ns_mul_i32 s{sT[1]}, s{sT[2]}, {OPT['rots'] % 10}\ns_add_u32 s{sROT0}, s{sROT0}, s{sT[1]}\ns_and_b32 s{sROT0}, s{sROT0}, 7"
a(f"""
v_readfirstlane_b32 s{sW}, v0
v_lshrrev_b32 v{t1}, 4, v0
v_lshrrev_b32 v{t0}, 3, v0
v_xor_b32 v{t1}, v0, v{t1}
s_lshr_b32 s{sU}, s2, 6
s_bfe_u32 s{sJ}, s2, 0x30003
v_and_b32 v{t1}, 7, v{t1}
s_and_b32 s{sT[2]}, s2, 1
s_lshl3_add_u32 s{sTI}, s{sT[2]}, s{sJ}
v_lshlrev_b32 v{t1}, 4, v{t1}
{ROTC}
v_lshl_add_u32 v{vXS0}, v{t0}, 10, v{t1}
s_lshl_b32 s{sT[0]}, s{sTI}, 17
s_lshl_b32 s{sXO}, s{sROT0}, 7
s_add_u32 s{sXO}, s{sXO}, s{sT[0]}
s_lshl_b32 s{sMW}, s{sW}, 4
s_mov_b32 m0, s{sMW}
s_mov_b32 s{SX+2}, {2048*1024}
s_mov_b32 s{SX+3}, 0x20000
""")
a(f"""
s_bfe_u32 s{sT[1]}, s{sW}, 0x10006
s_lshl_b32 s{sT[1]}, s{sT[1]}, 2
v_and_or_b32 v{t1}, v{t0}, 2, s{sT[1]}
s_bfe_u32 s{sQ}, s2, 0x20001
s_mul_i32 s{sT[1]}, s{sQ}, 7
v_xor_b32 v{t1}, v0, v{t1}
s_lshl1_add_u32 s{sT[1]}, s{sU}, s{sT[1]}
s_sub_u32 s{sT[1]}, s{sT[1]}, 1
v_and_b32 v{t1}, 7, v{t1}
s_lshl_b32 s{sT[2]}, s{sQ}, 1
s_movk_i32 s{sT[3]}, {PG}
v_lshlrev_b32 v{vWS2}, 4, v{t1}
s_mov_b32 s{SWG+3}, 0x20000
s_mov_b32 s{SWU+3}, 0x20000
s_cmp_eq_u32 s{sU}, 0
s_cselect_b32 s{sT[1]}, s{sT[2]}, s{sT[1]}
s_cselect_b32 s{sT[3]}, 1024, s{sT[3]}
s_cselect_b32 s{sT[2]}, 128, 0
v_mad_u32_u24 v{vWS}, v{t0}, s{sT[3]}, v{vWS2}
s_lshl_b32 s{SWG+2}, s{sT[3]}, 9
s_mov_b32 s{SWU+2}, s{SWG+2}
s_mul_i32 s{sWOF}, s{sROT0}, s{sT[3]}
s_lshl1_add_u32 s{sWOF}, s{sT[1]}, s{sWOF}
s_lshl_b32 s{sWOF}, s{sWOF}, 6
s_cmp_eq_u32 s{sU}, 0
{CLK + ' s[84:85]' if OPT['grp'] == 5 else ''}
s_waitcnt lgkmcnt(0)
{CLK + ' s[86:87]' if OPT['grp'] == 5 else ''}
s_mov_b64 s[{SX}:{SX+1}], s[4:5]
s_cselect_b64 s[{SWG}:{SWG+1}], s[6:7], s[16:17]
s_cselect_b64 s[{SWU}:{SWU+1}], s[6:7], s[18:19]
""")
def first_stage(x0, x1, xstep, wstep):
    a(f"""
    buffer_load_dwordx4 v{x0}, {srd(SX)}, s{sXO} offen lds
    s_add_u32 m0, s{sMW}, {WR}
    s_add_u32 s{sXO}, s{sXO}, {xstep}
    buffer_load_dwordx4 v{vWS}, {srd(SWG)}, s{sWOF} offen lds
    s_add_u32 m0, s{sMW}, {WR + 8192}
    s_add_u32 s{sWOF}, s{sWOF}, {wstep}
    buffer_load_dwordx4 v{vWS}, {srd(SWU)}, s{sWOF} offen lds
    s_add_u32 m0, s{sMW}, 8192
    s_nop 0
    buffer_load_dwordx4 v{x1}, {srd(SX)}, s{sXO} offen lds
    """)
if OPT['qfirst']: a("s_cbranch_scc0 L_late")
first_stage(vXS0, vXS0, 65536, f"s{sT[2]}")
if OPT['wt']:
    assert not OPT['qfirst']
    a(f"""
    s_lshr_b32 s{sT[4]}, s{sW}, 7
    s_lshr_b32 s{sT[5]}, s{sJ}, 1
    s_cmp_lg_u32 s{sT[4]}, s{sT[5]}
    s_cbranch_scc1 L_nowt
    s_add_u32 s{sT[4]}, s{sROT0}, 1
    s_and_b32 s{sT[4]}, s{sT[4]}, 7
    s_mul_i32 s{sT[4]}, s{sT[4]}, s{sT[3]}
    s_lshl1_add_u32 s{sT[4]}, s{sT[1]}, s{sT[4]}
    s_lshl_b32 s{sT[4]}, s{sT[4]}, 6
    buffer_load_dword v32, v{vWS}, {srd(SWG)}, s{sT[4]} offen
    s_add_u32 s{sT[4]}, s{sT[4]}, s{sT[2]}
    buffer_load_dword v33, v{vWS}, {srd(SWU)}, s{sT[4]} offen
    L_nowt:
    """)
if OPT['qfirst']: a("L_late:")
if OPT['grp'] == 5: a(f"{CLK} s[88:89]\ns_waitcnt lgkmcnt(0)\ns_mov_b32 s4, s84\ns_mov_b32 s14, s86\ns_mov_b32 s5, s88")
a(f"""
s_lshr_b32 s{sW}, s{sW}, 6
v_add_u32 v{vXS0}, s{sT[0]}, v{vXS0}
v_add_u32 v{vXS1}, 0x10000, v{vXS0}
s_sub_u32 s{sXO}, s{sXO}, s{sT[0]}
s_lshl_b32 s{sT[1]}, s{sT[1]}, 7
s_sub_u32 s{sWOF}, s{sWOF}, s{sT[1]}
v_add_u32 v{vWS}, s{sT[1]}, v{vWS}
s_movk_i32 s{sT[3]}, {PG}
v_mad_u32_u24 v{vWS2}, v{t0}, s{sT[3]}, v{vWS2}
s_mul_i32 s{sT[1]}, s{sQ}, {7*128}
v_add_u32 v{vWS2}, s{sT[1]}, v{vWS2}
v_and_b32 v{L}, 63, v0
v_lshlrev_b32 v{vL16}, 4, v{L}
s_and_b32 s{sT[0]}, s2, 7
s_lshl2_add_u32 s{sI}, s{sT[0]}, s{sU}
s_add_u32 s{sROT}, s{sROT0}, 1
s_and_b32 s{sROT}, s{sROT}, 7
s_lshl_b32 s{sMX}, s{sW}, 11
""")
def late_loads(k):
    if OPT['qfirst'] != k: return
    a(f"s_cmp_eq_u32 s{sU}, 0\ns_cbranch_scc1 L_early")
    first_stage(vXS0, vXS1, 0, 0)
    a("L_early:")
late_loads(1)
def dispatch():
    a(f"""
    s_lshr_b32 s{sT[1]}, s{sW}, 2
    s_lshl1_add_u32 s{sT[0]}, s{sU}, s{sT[1]}
    s_lshr_b32 s{sT[1]}, s{sQ}, 1
    s_lshl1_add_u32 s{sT[0]}, s{sT[0]}, s{sT[1]}
    s_cmp_eq_u32 s{sT[0]}, 0
    s_cbranch_scc1 L_pathK
    s_cmp_eq_u32 s{sT[0]}, 1
    s_cbranch_scc1 L_pathV
    s_cmp_lt_u32 s{sT[0]}, 4
    s_cbranch_scc1 L_pathP
    s_cmp_eq_u32 s{sT[0]}, 4
    s_cbranch_scc1 L_pathS
    s_add_u32 s{sT[0]}, s{sMW}, s2
    s_cmp_eq_u32 s{sT[0]}, {CLEAR_WG + 1024}
    s_cbranch_scc1 L_pathC
    """)

PATH = ['G']
def wslot(sig):
    if sig < 8: return WR + (sig & 3) * 16384
    if sig >= 14: return EX + (sig - 14) * 16384
    return (0 if sig & 1 else WR) + ((sig - 8) >> 1) * 16384
def waddr(sig, b):
    return {0: vXR[b], 1: vWR[b], 2: vXR[2 + b]}[wslot(sig) >> 16]

def dma_ops(sig, path):
    p = sig >> 3
    isq = (path in 'KVP' and p == 0)
    pitch = 1024 if isq else PG
    sa, sb = (SWQ, SWQ) if isq else (SWG, SWU)
    xs, ws = (sig & 3) * 16384, wslot(sig)
    pre = f"s_mul_i32 s{sWOF}, s{sROT}, {64*pitch}\n"
    if path in 'GSC' and p == 1: pre += f"s_add_u32 s{sWOF}, s{sWOF}, 128\n"
    mid = f"s_add_u32 s{sWOF}, s{sWOF}, 128\n" if isq else ""
    inc, wrap = f"s_add_u32 s{sROT}, s{sROT}, 1\n", f"s_and_b32 s{sROT}, s{sROT}, 7\n"
    vw = vWS2 if (path in 'KVP' and p == 1) else vWS
    wa = f"s_add_u32 m0, s{sMW}, {ws}\n{{}}buffer_load_dwordx4 v{vw}, {srd(sa)}, s{sWOF} offen lds"
    wb = f"s_add_u32 m0, s{sMW}, {ws+8192}\n{{}}buffer_load_dwordx4 v{vw}, {srd(sb)}, s{sWOF} offen lds"
    if p == 0:
        return [f"s_add_u32 m0, s{sMW}, {xs}\ns_lshl_b32 s{sXO}, s{sROT}, 7\nbuffer_load_dwordx4 v{vXS0}, {srd(SX)}, s{sXO} offen lds",
                wa.format(pre), wb.format(mid + inc),
                f"s_add_u32 m0, s{sMW}, {xs+8192}\n{wrap}buffer_load_dwordx4 v{vXS1}, {srd(SX)}, s{sXO} offen lds"]
    return [wa.format(pre), wb.format(inc + wrap)]

def setup_common():
    mk_srd(SWS, 28, WS_SIZE)
    if OPT.get('wso'): a(f"s_add_u32 s{SWS}, s{SWS}, {OPT['wso'] << 20}\ns_addc_u32 s{SWS+1}, s{SWS+1}, 0")
    mk_srd(SDBG, 26, 256); mk_srd(SWD, 20, 1792 * 1024); mk_srd(SWO, 12, 512 * 1024); mk_srd(SOUT, 24, 2048 * 1024)
    late_loads(2)
    a(f"""
    s_and_b32 s{sT[0]}, s{sW}, 3
    s_lshr_b32 s{sT[1]}, s{sW}, 2
    s_xor_b32 s{sT[5]}, s{sT[1]}, s{sQ}
    s_and_b32 s{sT[5]}, s{sT[5]}, 1
    s_lshl1_add_u32 s{sT[0]}, s{sT[0]}, s{sT[5]}
    s_lshl_b32 s{sT[0]}, s{sT[0]}, 11
    v_and_b32 v{t0}, 15, v{L}
    v_bfe_u32 v{t1}, v{L}, 1, 3
    v_lshrrev_b32 v{t2}, 4, v{L}
    v_xor_b32 v{t1}, v{t1}, v{t2}
    v_lshlrev_b32 v{t1}, 4, v{t1}
    v_lshl_add_u32 v{t1}, v{t0}, 7, v{t1}
    v_add_u32 v{vXR[0]}, s{sT[0]}, v{t1}
    v_xor_b32 v{vXR[1]}, 0x800, v{vXR[0]}
    v_xor_b32 v{vXR[2]}, 64, v{vXR[0]}
    v_xor_b32 v{vXR[3]}, 64, v{vXR[1]}
    s_lshl_b32 s{sT[2]}, s{sT[5]}, 8
    v_xor_b32 v{vST}, s{sT[2]}, v{vL16}
    """)
    a(f"""
    v_lshrrev_b32 v{t3}, 5, v{L}
    v_lshlrev_b32 v{t0}, 4, v{t0}
    v_lshl_add_u32 v{vPV}, v{t3}, 8, v{t0}
    """)
    late_loads(3)
    a(f"""
    v_bfe_u32 v{t0}, v{L}, 2, 2
    v_lshl_add_u32 v{t1}, v{t2}, 3, v{t0}
    v_lshlrev_b32 v{t1}, 7, v{t1}
    v_bfe_u32 v{t2}, v{L}, 3, 2
    s_lshl_b32 s{sT[1]}, s{sT[1]}, 1
    v_xor_b32 v{t2}, s{sT[1]}, v{t2}
    v_lshl_add_u32 v{t1}, v{t2}, 5, v{t1}
    v_and_b32 v{t2}, 3, v{L}
    v_lshl_add_u32 v{t1}, v{t2}, 3, v{t1}
    v_add_u32 v{vWR[0]}, {WR}, v{t1}
    v_xor_b32 v{vWR[1]}, 32, v{vWR[0]}
    """)
    a(f"""
    v_lshl_add_u32 v{t3}, v{t3}, 3, v{t0}
    v_lshlrev_b32 v{t3}, 7, v{t3}
    v_lshrrev_b32 v{t0}, 1, v{t0}
    v_lshl_add_u32 v{t3}, v{t0}, 6, v{t3}
    v_lshl_add_u32 v{t3}, v{t2}, 3, v{t3}
    v_bfe_u32 v{t2}, v{L}, 4, 1
    v_lshl_add_u32 v{vTRP}, v{t2}, 5, v{t3}
    v_lshlrev_b32 v{t2}, 2, v{t2}
    v_and_b32 v{t1}, 7, v{L}
    v_xor_b32 v{t1}, v{t1}, v{t2}
    v_lshlrev_b32 v{t1}, 4, v{t1}
    v_lshrrev_b32 v{t0}, 3, v{L}
    v_lshl_add_u32 v{t0}, v{t0}, 10, v{t1}
    s_lshl_b32 s{sT[0]}, s{sJ}, 7
    v_add_u32 v{vPD}, s{sT[0]}, v{t0}
    v_mov_b32 v{vZ}, 0
    v_mov_b32 v{vC0}, {fbits(C0):#x}
    s_mov_b32 s{sC1}, {fbits(C1):#x}
    s_mov_b32 s{sC1+1}, {fbits(C1):#x}
    """)
    late_loads(4)
    a(f"""
    s_lshr_b32 s{sT[3]}, s{sW}, 2
    s_and_b32 s{sT[1]}, s{sW}, 3
    s_lshl2_add_u32 s{sT[0]}, s{sTI}, s{sT[1]}
    s_lshl_b32 s{sT[8]}, s{sT[0]}, 5
    s_and_b32 s{sT[2]}, s{sT[0]}, 15
    s_lshr_b32 s{sT[0]}, s{sT[0]}, 4
    s_mul_i32 s{sT[0]}, s{sT[0]}, 112
    s_mul_i32 s{sT[1]}, s{sQ}, 28
    s_add_u32 s{sT[0]}, s{sT[0]}, s{sT[1]}
    s_lshl3_add_u32 s{sT[0]}, s{sU}, s{sT[0]}
    s_lshl1_add_u32 s{sT[0]}, s{sT[3]}, s{sT[0]}
    s_lshl4_add_u32 s{sT[0]}, s{sT[0]}, s{sT[2]}
    s_lshl_b32 s{sT[0]}, s{sT[0]}, 10
    s_add_u32 s{sHO}, s{sT[0]}, {WS_H}
    s_lshl3_add_u32 s{sT[4]}, s{sQ}, s{sT[8]}
    s_lshl1_add_u32 s{sT[4]}, s{sT[3]}, s{sT[4]}
    s_lshl_b32 s{sT[4]}, s{sT[4]}, 10
    s_lshl2_add_u32 s{sT[1]}, s{sQ}, s{sU}
    s_lshl2_add_u32 s{sF2}, s{sTI}, s{sQ}
    s_lshl_b32 s{sF2}, s{sF2}, 5
    s_add_u32 s{sF2}, s{sF2}, s{sU}
    s_lshl_b32 s{sF2}, s{sF2}, 2
    s_add_u32 s{sF2}, s{sF2}, {WS_F2}
    s_lshl1_add_u32 s{sT[9]}, s{sT[1]}, s{sT[8]}
    s_add_u32 s{sT[9]}, s{sT[9]}, s{sT[3]}
    s_lshl_b32 s{sT[9]}, s{sT[9]}, 10
    s_add_u32 s{sT[9]}, s{sT[9]}, {WS_O}
    s_lshl1_add_u32 s{sT[1]}, s{sI}, s{sT[3]}
    s_lshl3_add_u32 s{sT[2]}, s{sT[1]}, s{sJ}
    s_and_b32 s{sT[1]}, s{sW}, 3
    s_lshl2_add_u32 s{sT[2]}, s{sT[2]}, s{sT[1]}
    s_lshl_b32 s{sOO}, s{sT[2]}, 10
    s_lshl_b32 s{sRING}, s{sW}, 13
    s_add_u32 s{sRING}, s{sRING}, {RING}
    s_mul_i32 s{sRH}, s{sJ}, 7
    s_lshr_b32 s{sRH}, s{sRH}, 2
    s_mul_i32 s{sT[1]}, s{sU}, 7
    s_lshr_b32 s{sT[1]}, s{sT[1]}, 1
    s_add_u32 s{sRH}, s{sRH}, s{sT[1]}
    s_and_b32 s{sT[1]}, s2, {OPT['dxs']}
    s_add_u32 s{sRH}, s{sRH}, s{sT[1]}
    s_cmp_ge_u32 s{sRH}, 14
    s_cselect_b32 s{sT[1]}, 14, 0
    s_sub_u32 s{sRH}, s{sRH}, s{sT[1]}
    s_lshl_b32 s{sRH}, s{sRH}, 14
    s_mul_i32 s{sT[1]}, s{sW}, {14*16384}
    s_add_u32 s{SWD}, s{SWD}, s{sT[1]}
    s_addc_u32 s{SWD+1}, s{SWD+1}, 0
    s_sub_u32 s{SWD+2}, s{SWD+2}, s{sT[1]}
    s_lshl_b32 s{sT[1]}, s{sW}, 16
    s_add_u32 s{SWO}, s{SWO}, s{sT[1]}
    s_addc_u32 s{SWO+1}, s{SWO+1}, 0
    s_sub_u32 s{SWO+2}, s{SWO+2}, s{sT[1]}
    """)

def setup_path(P):
    if P in 'KV':
        a(f"""
        v_lshrrev_b32 v{t2}, 4, v{L}
        v_and_b32 v{t0}, 15, v{L}
        v_lshlrev_b32 v{t1}, 3, v{t0}
        v_lshl_add_u32 v{t1}, v{t2}, 8, v{t1}
        v_and_b32 v{t3}, 1, v{t2}
        v_lshl_add_u32 v{t1}, v{t3}, 7, v{t1}
        v_add_u32 v{vER[0]}, {EX}, v{t1}
        v_xor_b32 v{vER[1]}, 0x80, v{vER[0]}
        v_lshlrev_b32 v{t1}, 7, v{t3}
        v_xor_b32 v{vES}, v{t1}, v{vL16}
        s_add_u32 s{sEXO}, s{sW}, s{sROT0}
        s_and_b32 s{sEXO}, s{sEXO}, 7
        s_lshl_b32 s{sEXO}, s{sEXO}, 11
        s_lshr_b32 s{sEXW}, s{sT[4]}, 15
        v_lshrrev_b32 v{t2}, 1, v{t2}
        """)
        if P == 'K':
            a(f"""
            s_lshl3_add_u32 s{sEXW}, s{sEXW}, s{sT[5]}
            s_lshl_b32 s{sEXW}, s{sEXW}, 8
            v_lshlrev_b32 v{t2}, 9, v{t2}
            """)
        else:
            a(f"""
            s_lshl2_add_u32 s{sEXW}, s{sEXW}, s{sT[5]}
            s_lshl_b32 s{sEXW}, s{sEXW}, 9
            s_add_u32 s{sEXW}, s{sEXW}, 1024
            v_lshlrev_b32 v{t2}, 8, v{t2}
            v_and_b32 v{t0}, 3, v{L}
            v_bfe_u32 v{t1}, v{L}, 2, 1
            v_lshl_add_u32 v{t0}, v{t1}, 3, v{t0}
            v_bfe_u32 v{t1}, v{L}, 3, 1
            v_lshl_add_u32 v{t0}, v{t1}, 2, v{t0}
            """)
        a(f"""
        v_lshl_add_u32 v{t2}, v{t0}, 4, v{t2}
        v_lshl_add_u32 v{vSA}, v{t3}, 3, v{t2}
        """)
    if P == 'P':
        a(f"""
        v_bfe_u32 v{t1}, v{L}, 4, 1
        v_lshlrev_b32 v{t1}, 7, v{t1}
        v_xor_b32 v{vES}, v{t1}, v{vL16}
        s_add_u32 s{sEXO}, s{sW}, s{sROT0}
        s_and_b32 s{sEXO}, s{sEXO}, 7
        s_lshl_b32 s{sEXO}, s{sEXO}, 11
        """)
    if P == 'S':
        a(f"""
        s_lshl_b32 s{sEXO}, s{sROT0}, 7
        v_add_u32 v{vES}, s{sEXO}, v{vL16}
        v_and_b32 v{vES}, 0x3ff, v{vES}
        v_and_b32 v{t0}, 48, v{L}
        v_add_u32 v{vER[0]}, {GW}, v{t0}
        v_and_b32 v{t0}, 15, v{L}
        v_lshlrev_b32 v{vSA}, 2, v{t0}
        s_lshr_b32 s{sEXW}, s{sT[4]}, 15
        s_lshl1_add_u32 s{sEXW}, s{sEXW}, s{sT[5]}
        s_lshl_b32 s{sEXW}, s{sEXW}, 6
        s_add_u32 s{sEXW}, s{sEXW}, {WS_G}
        """)

def x_reads(sig, j):
    return [f"ds_read_b128 {vr(XF + 16*sig + 8*j + 4*tq, 4)}, v{vXR[2*j+tq]} offset:{(sig & 3) * 16384}" for tq in range(2)]
def w_reads(sig, j, i):
    b, part = i >> 1, i & 1
    off = (wslot(sig) & 0xffff) + part * 8192 + j * 4096
    return [f"ds_read_b64_tr_b16 {vr(F[j] + 4*i + 2*e, 2)}, v{waddr(sig, b)} offset:{off + e*512}" for e in range(2)]
def e_steps(c):
    c0 = 2 * OPT['exs']
    if PATH[0] in 'KVS': return [2 * (c - c0), 2 * (c - c0) + 1] if c0 <= c < 2 * c0 else ([c] if 2 * c0 <= c < 16 else [])
    return []
def e_buf(c, i): return WE + 16 + 4 * i if (PATH[0] == 'S' and c == 15) else WE + 8 * (c & 1) + 4 * i
def e_reads(c):
    if PATH[0] == 'S':
        cs = [] if c == 15 else ([14, 15] if c == 14 else [c])
        return [f"ds_read_b128 {vr(e_buf(x, i), 4)}, v{vER[0]} offset:{k*64}" for x in cs for i, k in enumerate(e_steps(x))]
    return [f"ds_read_b64_tr_b16 {vr(e_buf(c, i) + 2*e, 2)}, v{vER[e]} offset:{k*1024}" for i, k in enumerate(e_steps(c)) for e in range(2)]
def e_mfmas(c):
    out = []
    for i, k in enumerate(e_steps(c)):
        acc, w, x = vr(ACCE, 4), vr(e_buf(c, i), 4), vr(XF + 8 * k, 4)
        A, B = (x, w) if PATH[0] == 'V' else (w, x)
        out.append(f"v_mfma_f32_16x16x32_bf16 {acc}, {A}, {B}, {'0' if k == 0 else acc}")
    return out
def mfmas(sig, j):
    out = []
    for i in range(4):
        for tq in range(2):
            d = vr(ACC[sig >> 3] + 8 * i + 4 * tq, 4)
            c = "0" if ((sig & 7) == 0 and j == 0) else d
            out.append(f"v_mfma_f32_16x16x32_bf16 {d}, {vr(F[j] + 4*i, 4)}, {vr(XF + 16*(sig&7) + 8*j + 4*tq, 4)}, {c}")
    return out

def gelu_pair(base, j, T=vGT, pk=False):
    G = vr(base + 2 * j, 2); U = vr(base + 8 + 2 * j, 2); TT = vr(T, 2)
    g0, g1, u0, u1 = base + 2 * j, base + 2 * j + 1, base + 8 + 2 * j, base + 9 + 2 * j
    if pk:
        return [f"v_pk_mul_f32 {TT}, {G}, {G}",
                f"v_pk_fma_f32 {TT}, {TT}, s[{sC1}:{sC1+1}], {vr(vC0,2)} op_sel_hi:[1,1,0]",
                f"v_pk_mul_f32 {TT}, {TT}, {G}",
                f"v_exp_f32 v{T}, v{T}", f"v_exp_f32 v{T+1}, v{T+1}",
                f"v_pk_mul_f32 {G}, {G}, {U}",
                f"v_pk_add_f32 {TT}, {TT}, 1.0 op_sel_hi:[1,0]",
                f"v_rcp_f32 v{T}, v{T}", f"v_rcp_f32 v{T+1}, v{T+1}",
                f"v_pk_mul_f32 {G}, {G}, {TT}",
                f"v_cvt_pk_bf16_f32 v{base+j}, v{g0}, v{g1}"]
    return [f"v_mul_f32 v{T}, v{g0}, v{g0}", f"v_mul_f32 v{T+1}, v{g1}, v{g1}",
            f"v_fma_f32 v{T}, v{T}, s{sC1}, v{vC0}", f"v_fma_f32 v{T+1}, v{T+1}, s{sC1}, v{vC0}",
            f"v_mul_f32 v{T}, v{T}, v{g0}", f"v_mul_f32 v{T+1}, v{T+1}, v{g1}",
            f"v_exp_f32 v{T}, v{T}", f"v_exp_f32 v{T+1}, v{T+1}",
            f"v_mul_f32 v{g0}, v{g0}, v{u0}", f"v_add_f32 v{T}, 1.0, v{T}", f"v_add_f32 v{T+1}, 1.0, v{T+1}",
            f"v_rcp_f32 v{T}, v{T}", f"v_rcp_f32 v{T+1}, v{T+1}",
            f"v_mul_f32 v{g1}, v{g1}, v{u1}",
            f"v_mul_f32 v{g0}, v{g0}, v{T}", f"v_mul_f32 v{g1}, v{g1}, v{T+1}",
            f"v_cvt_pk_bf16_f32 v{base+j}, v{g0}, v{g1}"]
def to_frag(base):
    return [f"v_permlane16_swap_b32 v{base}, v{base+2}", f"v_permlane16_swap_b32 v{base+1}, v{base+3}"]

def cost(x):
    c = 0
    for l in x.strip().split('\n'):
        l = l.strip()
        if not l or l.startswith(';') or l.endswith(':'): continue
        c += 8 if l.startswith(('v_exp', 'v_rcp')) else (OPT.get('vmc', 16) if l.startswith('buffer_') else 4)
    return c

kvtok = {}
def kv_step(m):
    slot = (4 * m % NSLOT) * 2048
    if m == 0: x = f"s_mov_b32 m0, s{sKVM}\ns_nop 0\n"
    else: x = f"s_add_u32 s{sKVO}, s{sKVO}, 8192\ns_add_u32 m0, s{sKVM}, {slot}\ns_and_b32 s{sKVO}, s{sKVO}, 0xffff\n"
    return [x + f"buffer_load_dwordx4 v{vKVS}, {srd(SWS)}, s{sKVO} offen sc1 lds", f"buffer_load_dwordx4 v{vKVS}, {srd(SWS)}, s{sKVO} offen offset:1024 sc1 lds"]
KV_FIRST = 2
def first_loads():
    return [f"buffer_load_dwordx4 {vr(QA,4)}, v{vL16}, {srd(SWS)}, s{sQA} offen sc1\ns_xor_b32 s{sQA}, s{sQA}, 1024"] + kv_step(0) + \
           [f"buffer_load_dwordx4 {vr(QB,4)}, v{vL16}, {srd(SWS)}, s{sQA} offen sc1"] + kv_step(1)

def setup_queue(late=False):
    q = []
    def add(st, txt):
        for l in txt.strip().split('\n'): q.append((st, l.strip().replace('|', '\n')))
    add(11, f"""
    s_lshr_b32 s{sT[5]}, s{sW}, 2
    s_lshl_b32 s{sT[6]}, s{sT[5]}, 16
    v_add_u32 v{vKVS}, s{sT[6]}, v{vL16}
    s_and_b32 s{sT[3]}, s{sW}, 1
    s_mul_i32 s{sT[3]}, s{sT[3]}, {HALF}
    v_add_u32 v{vAK}, s{sT[3]}, v{vL16}
    v_add_u32 v{vAV}, s{sT[3]}, v{vPV}
    s_mul_i32 s{sT[3]}, s{sT[5]}, {HALF}
    s_and_b32 s{sT[6]}, s{sW}, 3
    s_lshl_b32 s{sT[7]}, s{sT[6]}, 11
    s_add_u32 s{sKVM}, s{sT[7]}, s{sT[3]}
    s_lshr_b32 s{sT[7]}, s2, 3
    s_add_u32 s{sT[6]}, s{sT[6]}, s{sT[7]}
    s_and_b32 s{sT[6]}, s{sT[6]}, 31
    s_lshl_b32 s{sKVO}, s{sT[6]}, 11
    s_add_u32 s{sQA}, s{sOO}, {WS_Q}
    s_xor_b32 s{sQA}, s{sQA}, 1024
    s_lshl1_add_u32 s{sGA}, s{sI}, s{sT[5]}
    s_lshl_b32 s{sGA}, s{sGA}, 7
    s_add_u32 s{sGA}, s{sGA}, {WS_G}
    v_and_b32 v{vG}, 31, v{L}
    v_lshlrev_b32 v{vG}, 2, v{vG}
    v_mov_b32 v{vIDX}, 0xdddddddd
    v_mov_b32 v{V2+1}, 0x3f803f80
    s_mov_b32 vcc_lo, 0x110000|s_mov_b32 vcc_hi, 0x110000|v_cndmask_b32 v{V2}, 0, v{V2+1}, vcc
    """)
    for r in range(V2 + 1, V2 + 12): add(11, f"v_mov_b32 v{r}, v{V2}")
    add(12, f"""
    v_add_u32 v{vDR0}, s{sRING}, v{vTRP}
    v_xor_b32 v{vDR1}, 64, v{vDR0}
    v_add_u32 v{vDS1}, 7168, v{vDS}
    s_lshr_b32 s{sT[6]}, s{sI}, 3
    s_lshl3_add_u32 s{sT[6]}, s{sT[6]}, s{sW}
    s_mul_i32 s{sT[6]}, s{sT[6]}, {14*16}
    s_and_b32 s{sT[7]}, s{sI}, 7
    s_lshl1_add_u32 s{sT[7]}, s{sT[7]}, s{sT[5]}
    s_add_u32 s{sT[6]}, s{sT[6]}, s{sT[7]}
    s_lshl_b32 s{sT[6]}, s{sT[6]}, 10
    s_add_u32 s{sT[6]}, s{sT[6]}, {WS_H}
    v_add_u32 v{vH0}, s{sT[6]}, v{vL16}
    v_xor_b32 v{vH1}, 0x400, v{vH0}
    v_lshlrev_b32 v{vF2}, 7, v{L}
    s_lshr_b32 s{sF2R}, s{sI}, 1
    s_lshl_b32 s{sF2R}, s{sF2R}, 9
    s_add_u32 s{sF2R}, s{sF2R}, {WS_F2}
    """)
    for r in range(9): add(13, f"v_mov_b32 v{OA+r}, 0")
    for r in range(9): add(14, f"v_mov_b32 v{OB+r}, 0")
    if OPT['vlate']:
        cut = [i for i, x in enumerate(q) if x[1].startswith(f"v_and_b32 v{vG}, 31")][0]
        if late: return [x[1] for x in q[cut:]]
        return q[:cut]
    return [] if late else q

cold = []
def s0_check(P):
    a(f"v_cmp_eq_u32 vcc, 0, v{vS0}\ns_cbranch_vccnz L_s0retry{P}\nL_s0done{P}:")
    cold.append(f"""
    L_s0retry{P}:
    s_mov_b32 s{sT[1]}, 0
    L_s0poll{P}:
    buffer_load_dword v{vS0}, v{vZ}, {srd(SDBG)}, 0 offen sc1
    s_add_u32 s{sT[1]}, s{sT[1]}, 1
    s_waitcnt vmcnt(0)
    v_cmp_eq_u32 vcc, 0, v{vS0}
    s_cbranch_vccz L_s0done{P}
    s_cmp_lt_u32 s{sT[1]}, {SPIN}
    s_cbranch_scc1 L_s0poll{P}
    s_branch L_s0done{P}
    """)
def s1_issue(P):
    a(f"s_cmp_lg_u32 s{sW}, 0\ns_cbranch_scc1 L_nopoll0{P}")
    if P in 'GSC': s0_check(P)
    a(f"""
    s_mov_b32 s{sT[1]}, {WS_F1}
    v_lshlrev_b32 v{t1}, 7, v{L}
    buffer_load_dword v{t0}, v{t1}, {srd(SWS)}, s{sT[1]} offen sc1
    L_nopoll0{P}:
    """)
    a.vm -= 1
def s1_check(P):
    a(f"""
    s_cmp_lg_u32 s{sW}, 0
    s_cbranch_scc1 L_s1done{P}
    s_mov_b32 s{sT[0]}, 0
    L_s1poll{P}:
    s_waitcnt vmcnt(0)
    v_cmp_ne_u32 vcc, 1, v{t0}
    s_cbranch_vccz L_s1done{P}
    {'s_sleep ' + str(OPT['s1slp']) if OPT['s1slp'] else ''}
    s_mov_b64 exec, vcc
    buffer_load_dword v{t0}, v{t1}, {srd(SWS)}, s{sT[1]} offen sc1
    s_mov_b64 exec, -1
    s_add_u32 s{sT[0]}, s{sT[0]}, 1
    s_cmp_lt_u32 s{sT[0]}, {SPIN}
    s_cbranch_scc1 L_s1poll{P}
    s_waitcnt vmcnt(0)
    L_s1done{P}:
    """)
    a.vm -= 1

def proj_path(P):
    tok = {}
    PATH[0] = P
    S1 = OPT['s1']
    sched = {s: [s + 2] for s in range(6)}
    ISQ = P in 'KVP'
    PB = OPT['pbq0'] if ISQ else OPT['pb']
    QF = OPT['qf']
    sched.update({6: [8, 9], 7: [10, 11], 8: [12, 13], 9: [14, 15]}); cover = {8: 9, 10: 11, 12: 15}
    if ISQ and OPT['qmode'] == 0:
        del sched[8], sched[9]
        sched.update({10: [12, 13], 11: [14, 15]}); cover = {8: 9, 10: 11, 12: 13, 14: 15}
    bars = set(range(8)) | set(cover) | {S1}
    if OPT['gb14']: bars |= {14}
    if OPT['gbar'] and not ISQ: bars |= set(range(8, 16))
    if ISQ: bars |= {QF} | ({9} if OPT['qmode'] else set()) | (set(range(10, 16)) if OPT['qbar'] else set())
    def dma_groups(sg):
        d = dma_ops(sg, P)
        if ISQ and sg == OPT['exs']:
            d.insert(1, f"""
            s_add_u32 m0, s{sMX}, {EX}
            s_nop 0
            buffer_load_dwordx4 v{vES}, {srd(SEX)}, s{sEXO} offen lds
            buffer_load_dwordx4 v{vES}, {srd(SEX)}, s{sEXO} offen offset:1024 lds
            """)
        if P == 'S' and sg == OPT['exs']:
            d.insert(1, f"s_mov_b32 m0, {GW}\ns_nop 0\nbuffer_load_dwordx4 v{vES}, {srd(SEX)}, 0 offen lds")
        return [(x, sg if k == len(d) - 1 else None) for k, x in enumerate(d)]
    def emit(it):
        if callable(it): return it()
        a(it[0])
        if it[1] is not None: tok[it[1]] = a.lastvm()
    tok[0] = a.lastvm()
    if ISQ: mk_srd(SWQ, 6, 512 * 1024)
    if not OPT['spf']:
        for it in dma_groups(1): emit(it)
    if ISQ: mk_srd(SWG, 16, 512 * PG); mk_srd(SWU, 18, 512 * PG)
    if P in 'KVS': mk_srd(SEX, {'K': 8, 'V': 10, 'S': 22}[P], 1024 if P == 'S' else 16384)
    if P == 'P': a(f"s_cmp_lt_u32 s{sQ}, 2\ns_cselect_b64 s[{SEX}:{SEX+1}], s[8:9], s[10:11]\ns_mov_b32 s{SEX+2}, 16384\ns_mov_b32 s{SEX+3}, 0x20000")
    setup_path(P)
    if OPT['grp'] == 5: a("s_mov_b32 s6, s14\ns_mov_b32 s8, s5")
    stamp(3, 5)
    if OPT['spf']:
        for it in dma_groups(1): emit(it)
    stamp(4, 5)
    if P == 'C':
        ctok = a(f"v_lshlrev_b32 v{t0}, 7, v{L}\ns_mov_b32 s{sT[1]}, {WS_F1}\nbuffer_store_dword v{vZ}, v{t0}, {srd(SWS)}, s{sT[1]} offen sc1")
    win = {c: [] for c in range(33)}
    box = {}; front = {}; pre8 = []; lvl = [3]
    def usable(c):
        return c % 2 == 0 or ((c + 1) // 2) not in bars
    def nxt(c):
        while not usable(c): c += 1
        return c
    if not ISQ:
        gq = []
        for b in range(2):
            for j in range(4): gq += gelu_pair(ACC[0] + 16 * b, j)
            gq += to_frag(ACC[0] + 16 * b)
            if b == 0: n0 = len(gq)
        npre = 17 * (PB - 1) if PB else 0
        pre8 += [(x, None) for j in range(max(PB - 1, 0)) for x in gelu_pair(ACC[0], j, pk=OPT.get('pbk', 0))]
        gq = gq[npre:]; n0 -= npre
        ws = [c for c in range(16, OPT['gend'] + 1) if usable(c)]
        ndma = {16: 2, 17: 2, 18: 4} if 9 not in bars else {16: 4, 18: 4}
        tot = len(gq) + OPT['dwt'] * 8
        done = 0; accw = 0
        for k, c in enumerate(ws):
            accw += OPT['dwt'] * ndma.get(c, 0)
            upto = max(done, tot * (k + 1) // len(ws) - accw)
            win[c] += [(x, None) for x in gq[done:upto]]
            if done < n0 <= upto: c0 = c
            done = upto
        assert done == len(gq)
        for b in range(OPT['nearly']):
            c = nxt(max(OPT[f'h{b}w'], c0 if b == 0 else ws[-1]))
            win[c].append((f"s_sub_u32 s{sT[2]}, s{sHO}, {65536 - 16384*b}\nbuffer_store_dwordx4 {vr(ACC[0]+16*b,4)}, v{vST}, {srd(SWS)}, s{sT[2]} offen sc1", None))
    else:
        qa = [f"s_add_u32 s{sT[8]}, s{sT[4]}, {WS_Q + 4096}\ns_add_u32 s{sT[4]}, s{sT[4]}, {WS_Q}"]
        if P == 'K': qa += [f"v_mul_f32 v{ACCE+r}, {fbits(QS):#x}, v{ACCE+r}" for r in range(4)]
        sts = []
        if P in 'KV':
            qa += [f"v_cvt_pk_bf16_f32 v{vGT}, v{ACCE}, v{ACCE+1}", f"v_cvt_pk_bf16_f32 v{vGT+1}, v{ACCE+2}, v{ACCE+3}"]
            sts.append(f"buffer_store_dwordx2 {vr(vGT,2)}, v{vSA}, {srd(SWS)}, s{sEXW} offen sc1")
        if P == 'P':
            sts.append(f"s_andn2_b32 s{sT[0]}, s{sF2}, 127\nv_lshlrev_b32 v{t2}, 2, v{L}\ns_mov_b32 exec_hi, 0\nbuffer_store_dword v{vZ}, v{t2}, {srd(SWS)}, s{sT[0]} offen sc1\ns_mov_b32 exec_hi, -1")
        def qcv(i): return [f"v_cvt_pk_bf16_f32 v{ACC[0]+8*i+j}, v{ACC[0]+8*i+2*j}, v{ACC[0]+8*i+2*j+1}" for j in range(4)]
        def qst(i): return to_frag(ACC[0] + 8 * i) + [f"buffer_store_dwordx4 {vr(ACC[0]+8*i,4)}, v{vST}, {srd(SWS)}, s{sT[8 if i & 1 else 4]} offen offset:{1024*(i>>1)} sc1"]
        mark = [lambda: box.update(q=a.lastvm())]
        T = lambda l: [(x, None) for x in l]
        if OPT['qmode'] == 0 and PB:
            pre8 += T(qa + qcv(0) + qcv(1) + qcv(2) + qcv(3) + [x for i in range(4) for x in qst(i)[:2]])
            if OPT.get('pbq'): pre8 += T(sts + [qst(i)[2] for i in range(4)]) + mark
            else: win[16] += T(sts + [qst(i)[2] for i in range(2)]); win[17] += T([qst(i)[2] for i in range(2, 4)]) + mark
        elif OPT['qmode'] == 0:
            win[16] += T(qa + sts + qcv(0) + qcv(1) + qst(0) + qst(1)); win[17] += T(qcv(2) + qcv(3) + qst(2) + qst(3)) + mark
        elif OPT['qmode'] == 1:
            win[16] += T(qa + qcv(0) + qcv(1)); win[18] += T(sts + qst(0) + qcv(2)); win[20] += T(qcv(3) + qst(1) + qst(2) + qst(3)) + mark
        else:
            win[16] += T(qa + qcv(0) + qcv(1) + qcv(2) + qcv(3)); win[18] += T(sts + qst(0) + qst(1) + qst(2) + qst(3)) + mark
        def qflag():
            assert a.vm_done > box['s0']
            if P != 'P': s0_check(P)
            a(f"""
            s_lshl4_add_u32 s{sT[0]}, s{sQ}, s{sTI}
            s_lshl_b32 s{sT[0]}, s{sT[0]}, 7
            s_add_u32 s{sT[0]}, s{sT[0]}, {WS_F1}
            s_lshl_b32 s{sT[1]}, s{sW}, 24
            s_add_u32 s{sT[0]}, s{sT[0]}, s{sT[1]}
            v_mov_b32 v{t1}, 1
            s_mov_b64 exec, 1
            buffer_store_dword v{t1}, v{vZ}, {srd(SWS)}, s{sT[0]} offen sc1
            s_mov_b64 exec, -1
            """)
        if P != 'P': box['flag'] = qflag
    if P == 'S':
        win[16] = [(x, None) for x in (f"v_mul_f32 v{t2}, {fbits(-math.log2(math.e)):#x}, v{ACCE}", f"v_exp_f32 v{t2}, v{t2}", f"v_add_f32 v{t2}, 1.0, v{t2}", f"v_rcp_f32 v{t2}, v{t2}")] + win[16]
        win[20].append((f"s_mov_b64 exec, 0xffff\nbuffer_store_dword v{t2}, v{vSA}, {srd(SWS)}, s{sEXW} offen sc1\ns_mov_b64 exec, -1", None))
    if OPT['clw'] <= 32:
        win[nxt(max(OPT['clw'], max(24, 2 * QF + 1) if ISQ else 0))].append(
            (f"v_mov_b32 v24, -1\nv_mov_b32 v25, -1\nv_mov_b32 v26, -1\nv_mov_b32 v27, -1\nbuffer_store_dwordx4 v[24:27], v{vL16}, {srd(SWS)}, s{sT[9]} offen sc1", None))
    queue = setup_queue()
    ws = [c for c in range(21 if ISQ else 20, 2 * S1 - 1) if usable(c)]
    for k, c in enumerate(ws):
        left = [x for x in queue if 2 * x[0] - 2 <= c]
        take = min(len(left), -(-len(queue) // (len(ws) - k)))
        win[c] += [(x[1], None) for x in left[:take]]; queue = queue[take:]
    assert not queue
    win[16].insert(0, (f"v_subrev_u32 v{vXR[0]}, {WR}, v{vWR[0]}\nv_subrev_u32 v{vXR[1]}, {WR}, v{vWR[1]}\nv_add_u32 v{vXR[2]}, {WR}, v{vWR[0]}\nv_add_u32 v{vXR[3]}, {WR}, v{vWR[1]}", None))

    def cluster(c, what='mr'):
        M = mfmas(c >> 1, c & 1) if (c >= 0 and 'm' in what) else []
        em = e_mfmas(c) if M else []
        for i, x in enumerate(em): M.insert(1 + (8 // len(em) + 1) * i, x)
        d = c + 1
        R = []
        if d < 32 and 'r' in what:
            if d < 16: R += x_reads(d >> 1, d & 1)
            for i in range(4): R += w_reads(d >> 1, d & 1, i)
            R += e_reads(d)
        a.wait(a.lastlg())
        if M and not OPT['lad']: a("s_setprio 2")
        n = max(len(M), 1); k = 0
        last = n - 1 if (c & 1 or ((c >> 1) + 1) not in bars) else n - 2
        if M: last = min(last, n - 1 - OPT['rq' if ISQ else 'rg'] if c >= 16 else n - 1 - OPT['r1'])
        for i in range(n):
            if M: a(M[i])
            want = len(R) if i >= last else -(-len(R) * (i + 1) // (last + 1))
            while k < want: a(R[k]); k += 1
        if M and not OPT['lad']: a("s_setprio 0")
        if M and OPT['lad'] and lvl[0] > 0 and not (c % 2 == 0 and (c >> 1) + 1 in bars and not (c == 14 and PB)):
            lvl[0] -= 1; a(f"s_setprio {lvl[0]}")

    for sig in range(16):
        if sig == 8 and PB:
            cluster(15, 'm')
            for it in pre8: emit(it)
        if sig in bars:
            if sig in cover or sig < 8: a.wait(tok[cover.get(sig, sig)])
            if ISQ and sig == QF: a.wait(box['q'])
            if sig == S1 and P != 'P': s1_check(P)
            if OPT['lad']: lvl[0] = 3; a("s_setprio 3")
            a("s_barrier")
            if sig == QF and 'flag' in box: box['flag']()
        if sig == 1: stamp(1)
        if sig == 8: stamp(2)
        if sig < 11: stamp(sig, 1)
        if sig < 5: stamp(5 + sig, 5)
        if sig >= 6: stamp(sig - 6, 2)
        D = []
        if P == 'C' and sig == 2:
            assert a.vm_done >= ctok[1]
            win[4].append((f"v_mov_b32 v{t0}, 1\ns_mov_b64 exec, 1\nbuffer_store_dword v{t0}, v{vZ}, {srd(SDBG)}, 0 offen sc1\ns_mov_b64 exec, -1", None))
        for sg in sched.get(sig, []): D += dma_groups(sg)
        if sig == S1: D += [(x, None) for x in first_loads()]
        if sig == (7 if ISQ else 9) and P != 'P':
            def s0_load():
                if not ISQ:
                    a(f"s_cmp_lg_u32 s{sW}, 0\ns_cbranch_scc1 L_nos0l{P}\nbuffer_load_dword v{vS0}, v{vZ}, {srd(SDBG)}, 0 offen sc1\nL_nos0l{P}:")
                    a.vm -= 1
                else:
                    a(f"buffer_load_dword v{vS0}, v{vZ}, {srd(SDBG)}, 0 offen sc1")
                box['s0'] = a.vm
            D.insert(len(D) - 1, s0_load)
        head, mid, tail = [], D, []
        if sig < OPT['late']: mid, tail = [], D
        elif (sig + 1) not in bars: mid, tail = D[:len(D)//2], D[len(D)//2:]
        elif sig in bars and len(D) >= 4: head, mid = D[:OPT['na']], D[OPT['na']:]
        for it in head: emit(it)
        cluster(2 * sig - 1, 'r' if (sig == 8 and PB) else 'mr')
        if sig == S1 - 1 and P != 'P' and OPT['s1w'] == 30:
            assert a.vm_done > box['s0']
            s1_issue(P)
        for it in front.get(2 * sig, []) + mid + win[2 * sig]: emit(it)
        cluster(2 * sig)
        for it in front.get(2 * sig + 1, []) + tail + win[2 * sig + 1]: emit(it)
    if P != 'P' and OPT['s1w'] == 31: s1_issue(P)
    a.wait(a.lastlg())
    assert not win[32]

setup_common()
if OPT['tlb']:
    a(f"s_cmp_lg_u32 s{sW}, 6\ns_cbranch_scc1 L_notlb")
    if OPT['tlb'] == 1:
        a(f"""
        v_lshlrev_b32 v{t0}, 21, v{L}
        s_mov_b32 s{sT[0]}, 0x80000
        s_mov_b64 exec, 63
        buffer_load_dword v32, v{t0}, {srd(SWS)}, s{sT[0]} offen
        s_mov_b64 exec, 1
        buffer_load_dword v33, v{vZ}, {srd(SWD)}, 0 offen
        buffer_load_dword v34, v{vZ}, {srd(SWO)}, 0 offen
        buffer_load_dword v35, v{vZ}, {srd(SOUT)}, 0 offen
        s_mov_b64 exec, -1
        """)
    else:
        a(f"""
        s_lshr_b32 s{sT[0]}, s2, 3
        s_lshl_b32 s{sT[0]}, s{sT[0]}, 16
        v_lshlrev_b32 v{t0}, 21, v{L}
        s_mov_b64 exec, 63
        buffer_load_dword v32, v{t0}, {srd(SWS)}, s{sT[0]} offen
        s_mov_b64 exec, 1
        v_mov_b32 v{t0}, s{sT[0]}
        v_min_u32 v{t1}, {1792*1024 - 4}, v{t0}
        global_load_dword v33, v{t1}, s[20:21]
        v_min_u32 v{t1}, {512*1024 - 4}, v{t0}
        global_load_dword v34, v{t1}, s[12:13]
        buffer_load_dword v35, v{t0}, {srd(SOUT)}, 0 offen
        s_mov_b64 exec, -1
        """)
    a("L_notlb:")
dispatch()
proj_path('G')
a("L_join:")
a.forget()

JE = OPT['jearly'] and OPT['s1'] == 16
if not JE:
    for m in mfmas(15, 1): a(m)
    a("s_setprio 0")
stamp(3); stamp(10, 2)
def gelu_chunk(k):
    b, jp = k >> 1, k & 1
    g0 = gelu_pair(ACC[1] + 16 * b, 2 * jp, vGT, pk=OPT['pk2']); g1 = gelu_pair(ACC[1] + 16 * b, 2 * jp + 1, t2, pk=OPT['pk2'])
    for x, y in zip(g0, g1):
        a(x); a(y)
    if k == 2:
        for x in to_frag(ACC[1]): a(x)
for k in range(OPT['jlate']): gelu_chunk(k)
stamp(5, 3)
if OPT['s1'] == 16:
    s1_check('J')
    stamp(6, 3)
    a("s_barrier")
    stamp(7, 3)
    fl = first_loads()
    if JE:
        nfirst = OPT['jearly'] - 1
        for x in fl[:nfirst]: a(x)
        for m in mfmas(15, 1): a(m)
        fl = fl[nfirst:]
    for x in fl: a(x)
stamp(4); stamp(8, 3)
for k in range(OPT['jlate'], 4): gelu_chunk(k)
for x in to_frag(ACC[1] + 16): a(x)
for x in setup_queue(True): a(x)
a(f"s_mov_b32 s{sT[7]}, s{sT[9]}\ns_mov_b32 s{sT[8]}, 0xffff\ns_mov_b32 s{sT[9]}, 0xffff")
stamp(9, 3)
a.wait_vm0()
a("s_barrier")
stamp(5); stamp(10, 3)

def qk(S, Q): return f"v_mfma_f32_32x32x16_bf16 {vr(S,16)}, {vr(KF,4)}, {vr(Q,4)}, 0"
def pv(O, V, S): return f"v_smfmac_f32_32x32x32_bf16 {vr(O,16)}, {vr(V,4)}, {vr(S,8)}, v{vIDX}"
NT, B1, B2 = 32, 8, OPT['b2']
def rec(t): return (t % NSLOT) * 2048
def rdK(t): return a(f"ds_read_b128 {vr(KF,4)}, v{vAK} offset:{rec(t)}")
def rdV(t2, t1):
    a(f"s_mov_b64 exec, s[{sT[8]}:{sT[9]}]")
    if t2 is not None: a(f"ds_read_b128 {vr(V2,4)}, v{vAV} offset:{rec(t2) + 1536}")
    if t1 is not None: a(f"ds_read_b128 {vr(V1[t1&1],4)}, v{vAV} offset:{rec(t1) + 1024}")
    a("s_mov_b64 exec, -1")
    return a.lastlg()
wtok, htok, rtok, box = {}, {}, {}, {}
m0own = [None]; wstart = set()
def w_off(u): return sR[u & 3] if u < 14 else sWOF
def w_load_a(u):
    a(f"s_add_u32 m0, s{sRING}, {(u & 3) * 2048}"); m0own[0] = ('w', u); wstart.add(u)
    assert u == 0 or (u - 1) in wtok
    if 0 < u < 14: a(f"s_sub_u32 s{sR[u&3]}, s{sR[(u-1)&3]}, 16384\ns_cselect_b32 s{sR[u&3]}, {13*16384}, s{sR[u&3]}")
    elif u == 14: a(f"s_lshl_b32 s{sWOF}, s{sU}, 14")
    elif u > 14: a(f"s_add_u32 s{sWOF}, s{sWOF}, 16384\ns_and_b32 s{sWOF}, s{sWOF}, 0xffff")
    a(f"buffer_load_dwordx4 v{vDS}, {srd(SWD if u < 14 else SWO)}, s{w_off(u)} offen lds")
def w_load_b(u):
    if m0own[0] != ('w', u):
        a(f"s_add_u32 m0, s{sRING}, {(u & 3) * 2048}"); m0own[0] = ('w', u)
    wtok[u] = a(f"buffer_load_dwordx4 v{vDS1}, {srd(SWD if u < 14 else SWO)}, s{w_off(u)} offen offset:1024 lds")
def h_load_a(u):
    assert u in wstart and (u + 4) not in wstart
    a(f"buffer_load_dwordx4 {vr(HF[u&3],4)}, v{vH0}, {srd(SWS)}, s{sR[u&3]} offen sc1")
def h_load_b(u):
    assert (u + 4) not in wstart
    htok[u] = a(f"buffer_load_dwordx4 {vr(HF[u&3]+4,4)}, v{vH1}, {srd(SWS)}, s{sR[u&3]} offen sc1")
def w_read(u, b):
    if b == 0: a.wait(wtok[u], htok[u])
    for e in range(2):
        rtok[u, b] = a(f"ds_read_b64_tr_b16 {vr(WF[u&1] + 4*b + 2*e, 2)}, v{(vDR0, vDR1)[b]} offset:{(u & 3) * 2048 + e*512}")
def d_mfma(u, k):
    tb, b = k >> 1, k & 1
    a.wait(rtok[u, 1])
    d = vr(DACC + 32 * tb + 16 * b, 16)
    a(f"v_mfma_f32_32x32x16_bf16 {d}, {vr(WF[u&1]+4*b,4)}, {vr(HF[u&3]+4*tb,4)}, {'0' if u == 0 else d}")

if OPT.get('x_now'):
    def w_load_a(u): pass
    def w_load_b(u): wtok[u] = None
if OPT.get('x_noh'):
    def h_load_a(u): pass
    def h_load_b(u): htok[u] = None
if OPT.get('x_noread'):
    def w_read(u, b): rtok[u, b] = None
ev, mf = {}, {}
SNAP = OPT.get('snap', 1)
B1P = 32 * (B1 - 1) + 11
EV, EVA, EK, EKA = OPT.get('ev', 5), OPT.get('eva', 0), OPT.get('ek', 11), OPT.get('eka', 0)
busy = {32 * t + o for t in range(NT) for o in (EV, EK, 18)}
def nextpos(p):
    while SNAP and (p & 15) not in (2, 5, 8, 11, 14): p += 1
    return p
def at(pos, f, limit=None):
    p = nextpos(pos)
    while SNAP and limit is not None and p in busy and nextpos(p + 1) <= limit: p = nextpos(p + 1)
    busy.add(p)
    ev.setdefault(p, []).append(f)
    return p
def h_store(b): box['h'] = a((f"s_add_u32 s{sHO}, s{sHO}, 16384\n" if b else "") + f"buffer_store_dwordx4 {vr(ACC[1]+16*b,4)}, v{vST}, {srd(SWS)}, s{sHO} offen sc1")
def late_store(k):
    if k == 2:
        a(f"v_mov_b32 v24, -1\nv_mov_b32 v25, -1\nv_mov_b32 v26, -1\nv_mov_b32 v27, -1\nbuffer_store_dwordx4 v[24:27], v{vL16}, {srd(SWS)}, s{sT[7]} offen sc1")
        return
    a(f"""
    s_cmp_eq_u32 s{sU}, 0
    s_cbranch_scc1 L_nols{k}
    s_sub_u32 s{sT[2]}, s{sHO}, {65536 - 16384*k}
    buffer_store_dwordx4 {vr(ACC[0]+16*k,4)}, v{vST}, {srd(SWS)}, s{sT[2]} offen sc1
    L_nols{k}:
    """)
    a.vm -= 1
pp = OPT.get('p_st', 1); STS = OPT.get('p_sts', 1)
for k in list(range(OPT['nearly'], 2)) + ([2] if OPT['clw'] > 32 else []):
    pp = at(pp, lambda k=k: late_store(k), pp + 12) + STS
pp = at(pp, lambda: h_store(0), pp + 12) + STS
pp = at(pp, lambda: h_store(1), pp + 12)
assert pp < B1P
def kv_emit(m, i):
    if i == 0: m0own[0] = ('kv', m)
    if m0own[0] != ('kv', m):
        a(f"s_add_u32 m0, s{sKVM}, {(4 * m % NSLOT) * 2048}"); m0own[0] = ('kv', m)
    kvtok[m] = a(kv_step(m)[i])
for m in range(KV_FIRST, 8):
    p = OPT['p_kv'] + OPT['p_kvs'] * (m - KV_FIRST) if m < 6 else OPT['p_kv2'] + 20 * (m - 6)
    p = at(p, lambda m=m: kv_emit(m, 0), p + 8)
    at(p + 1, lambda m=m: kv_emit(m, 1), p + 9)
assert OPT['p_kv2'] > B1P
def h_flag():
    a(f"""
    s_lshl_b32 s{sT[1]}, s{sW}, 24
    s_add_u32 s{sT[1]}, s{sT[1]}, s{sF2}
    v_mov_b32 v{t0}, 1
    s_mov_b64 exec, 1
    buffer_store_dword v{t0}, v{vZ}, {srd(SWS)}, s{sT[1]} offen sc1
    s_mov_b64 exec, -1
    """)
def f2_load():
    box['f2'] = a(f"s_mov_b64 exec, 15\nbuffer_load_dwordx4 {vr(F2D,4)}, v{vF2}, {srd(SWS)}, s{sF2R} offen sc1")
    a("s_mov_b64 exec, -1")
at(OPT['p_f2'], f2_load, OPT['p_f2'] + 8)
def f2_check():
    a.wait(box['f2'])
    test = f"v_min3_u32 v{F2D}, v{F2D}, v{F2D+1}, v{F2D+2}\nv_min_u32 v{F2D}, v{F2D}, v{F2D+3}\nv_cmp_ne_u32 vcc, 1, v{F2D}"
    a(f"s_mov_b64 exec, 15\n{test}\ns_cbranch_vccnz L_s2retry\nL_s2done:\ns_mov_b64 exec, -1")
    cold.append(f"""
    L_s2retry:
    s_mov_b32 s{sT[1]}, 0
    L_s2poll:
    buffer_load_dwordx4 {vr(F2D,4)}, v{vF2}, {srd(SWS)}, s{sF2R} offen sc1
    s_add_u32 s{sT[1]}, s{sT[1]}, 1
    s_waitcnt vmcnt(0)
    {test}
    s_cbranch_vccz L_s2done
    s_sleep {OPT.get('slp', 6)}
    s_cmp_lt_u32 s{sT[1]}, {SPIN}
    s_cbranch_scc1 L_s2poll
    s_branch L_s2done
    """)
    a(f"buffer_load_dword v{vG}, v{vG}, {srd(SWS)}, s{sGA} offen sc1")
    stamp(9)
PCHK = at(OPT['p_chk'], f2_check, OPT['p_chk'] + 8)
D0, DE = OPT['d0'], OPT['dend']
allsl = [32 * t + o for t in range(D0, DE) for o in (8, 14, 24, 30)]
assert len(allsl) >= 56
slots = [allsl[(i * len(allsl)) // 56] for i in range(56)]
for u in range(14):
    rp = slots[0] - 16 if u == 0 else slots[4 * u - 2] + 1
    lim = slots[4 * u] - 9
    p = at(rp, lambda u=u: w_read(u, 0), lim - 3); at(p + 1, lambda u=u: w_read(u, 1), lim)
    for k in range(4): mf[slots[4 * u + k]] = (lambda u=u, k=k: d_mfma(u, k))
for u in range(18):
    pw = OPT['p_fill'] + OPT['p_fills'] * u if u < 4 else slots[4 * (u - 4)] + 1
    p = at(pw, lambda u=u: w_load_a(u), pw + 8); p = at(p + 1, lambda u=u: w_load_b(u), p + 8)
    if u < 3:
        ph = PCHK + 1 + OPT.get('p_hs', 13) * u
        p = at(ph, lambda u=u: h_load_a(u), ph + 4); at(p + 1, lambda u=u: h_load_b(u), p + 5)
    if 4 <= u < 15:
        p = at(p + 1, lambda u=u: h_load_a(u - 1), p + 8); at(p + 1, lambda u=u: h_load_b(u - 1), p + 8)
for lo, hi, fr in ((0, B1P, (OPT.get('la1', 30), OPT.get('la2', 70), OPT.get('la3', 94))), (B1P, 32 * B2, (OPT.get('lb1', 35), OPT.get('lb2', 80), OPT.get('lb3', 96))),
                   (32 * B2, 32 * NT, (OPT.get('lc1', 60), OPT.get('lc2', 87), OPT.get('lc3', 96)))):
    for k in range(3): at(lo + ((hi - lo) * fr[k]) // 100, lambda k=k: a(f"s_setprio {2-k}"))

def merge_addr():
    a(f"""
    s_mul_i32 s{sT[0]}, s{sW}, 2304
    s_add_u32 s{sT[0]}, s{sT[0]}, {MERGE}
    s_xor_b32 s{sT[1]}, s{sW}, 1
    s_mul_i32 s{sT[1]}, s{sT[1]}, 2304
    s_add_u32 s{sT[1]}, s{sT[1]}, {MERGE}
    v_add_u32 v{t0}, s{sT[0]}, v{vL16}
    v_add_u32 v{t1}, s{sT[1]}, v{vL16}
    v_lshl_add_u32 v{t2}, v{L}, 2, s{sT[0]}
    v_lshl_add_u32 v{t3}, v{L}, 2, s{sT[1]}
    s_add_u32 s{sOO}, s{sOO}, {WS_O}
    s_mov_b32 s{sT[6]}, {fbits(2.0**-60):#x}
    s_mov_b32 s{sT[7]}, {fbits(2.0**60) - fbits(2.0**-60):#x}
    """)
at(32 * NT - 11, merge_addr)
at(32 * NT - 8, lambda: a(f"ds_write_b128 v{t0}, {vr(OA,4)}\nds_write_b128 v{t0}, {vr(OA+4,4)} offset:1024\nds_write_b32 v{t2}, v{OA+8} offset:2048"))

a("s_setprio 3")
tK = rdK(0); tV = rdV(None, 0)
a.wait(tK)
a(qk(SA, QA))
for t in range(NT):
    if t == B2:
        a.wait(kvtok[7]); a("s_barrier\ns_setprio 3"); stamp(0)
    nx = t + 1 if t + 1 < NT else None
    for ph, (S, So, O, Oo, Qo) in enumerate(((SA, SB, OA, OB, QB), (SB, SA, OB, OA, QA))):
        for e in range(16):
            pos = 32 * t + 16 * ph + e
            def own(after):
                global tV, tK
                if ph == 0 and (e, after) == (EV, EVA):
                    if t == 0: a.wait(tV)
                    tV = rdV(t, nx if t != B1 - 1 else None)
                if ph == 0 and (e, after) == (EK, EKA) and nx and t != B1 - 1: tK = rdK(nx)
            for f in ev.pop(pos, []): f()
            own(0)
            if pos == B1P:
                a.wait(kvtok[5], box['h'], tV); a("s_barrier\ns_setprio 3"); stamp(6)
                tK = rdK(nx); tV = rdV(None, nx)
                h_flag()
            if e == 2:
                if ph == 1: a.wait(tV, None if OPT.get('w2') else tK)
                if t > 0 or ph == 1: a(pv(Oo, V2, So + 8))
            if (e == 5 and not (t == 0 and ph == 0)) or (t == 0 and ph == 0 and e == 0):
                if ph == 1: a.wait(tK)
                if ph == 0 or nx: a(qk(So, Qo))
            if e == 11: a(pv(O, V1[t & 1], S))
            if pos in mf: mf.pop(pos)()
            own(1)
            a(f"v_exp_f32 v{S+e}, v{S+e}")
assert not mf
assert not ev, sorted(ev)
if OPT['woe']: a.wait(wtok[17])
a.wait_lg0()
a(pv(OB, V2, SB + 8))
stamp(7); stamp(0, 4)
a("s_barrier")
stamp(1, 4)
a(f"""
ds_read_b32 v{SA+8}, v{t3} offset:2048
ds_read_b128 {vr(SA,4)}, v{t1}
ds_read_b128 {vr(SA+4,4)}, v{t1} offset:1024
s_lshl_b32 s{sT[3]}, s{sW}, 13
s_xor_b32 s{sT[2]}, s{sT[3]}, 0x8000
v_add_u32 v24, s{sT[2]}, v{vL16}
v_add_u32 v26, s{sT[3]}, v{vL16}
s_waitcnt lgkmcnt(2)
v_add_f32 v{OB+8}, v{OB+8}, v{SA+8}
v_rcp_f32 v{t0}, v{OB+8}
""")
a.wait_lg0()
OS = 128
for j in range(2): a(f"v_pk_add_f32 {vr(OB+2*j,2)}, {vr(OB+2*j,2)}, {vr(SA+2*j,2)}")
a(f"v_mul_f32 v{t0}, v{t0}, v{vG}")
for j in range(2, 4): a(f"v_pk_add_f32 {vr(OB+2*j,2)}, {vr(OB+2*j,2)}, {vr(SA+2*j,2)}")
for j in range(4): a(f"v_pk_mul_f32 {vr(OB+2*j,2)}, {vr(OB+2*j,2)}, {vr(t0,2)} op_sel_hi:[1,0]")
a(f"""
v_pk_add_f32 {vr(t2,2)}, {vr(OB,2)}, {vr(OB+2,2)}
v_pk_add_f32 {vr(t0,2)}, {vr(OB+4,2)}, {vr(OB+6,2)}
v_cvt_pk_bf16_f32 v{OS}, v{OB}, v{OB+1}
v_pk_add_f32 {vr(t2,2)}, {vr(t2,2)}, {vr(t0,2)}
v_cvt_pk_bf16_f32 v{OS+1}, v{OB+2}, v{OB+3}
v_add_f32 v{t2}, v{t2}, v{t3}
v_cvt_pk_bf16_f32 v{OS+2}, v{OB+4}, v{OB+5}
v_fma_f32 v{t2}, v{t2}, 0, v{OB+8}
v_cvt_pk_bf16_f32 v{OS+3}, v{OB+6}, v{OB+7}
v_subrev_u32 v{t2}, s{sT[6]}, v{t2}
v_cmp_lt_u32 vcc, s{sT[7]}, v{t2}
""")
if OPT['force_fb']: a("s_mov_b64 vcc, -1")
a(f"""
s_cbranch_vccnz L_true_max
L_norm:
buffer_store_dwordx4 {vr(OS,4)}, v{vL16}, {srd(SWS)}, s{sOO} offen sc1
""")
stamp(8); stamp(2, 4)

OF, WOF, XT = 32, 176, 96
vO1 = 27
fill = f"""
s_and_b32 s{sT[1]}, s{sW}, 3
s_lshl_b32 s{sT[2]}, s{sT[1]}, 13
s_add_u32 s{sT[2]}, s{sT[2]}, {RING}
v_add_u32 v28, s{sT[2]}, v{vTRP}
v_xor_b32 v29, 64, v28
v_sub_f32 v{vG}, 1.0, v{vG}
v_add_u32 v{vO1}, 0x4000, v{vL16}
s_lshr_b32 s{sT[9]}, s{sW}, 2
s_lshl1_add_u32 s{sT[0]}, s{sI}, s{sT[9]}
s_lshl3_add_u32 s{sT[0]}, s{sT[0]}, s{sT[1]}
s_lshl_b32 s{sT[0]}, s{sT[0]}, 12
s_add_u32 s{sT[0]}, s{sT[0]}, {WS_O}
s_lshl4_add_u32 s{sT[8]}, s{sT[9]}, s{sT[1]}
s_lshl_b32 s{sT[8]}, s{sT[8]}, 11
""".strip().split('\n')
for v in range(4):
    fill += f"s_add_u32 s{sT[1]}, s{sU}, {v}\ns_and_b32 s{sT[1]}, s{sT[1]}, 3\ns_lshl_b32 s{sT[1]}, s{sT[1]}, 10\ns_add_u32 s{sT[4+v]}, s{sT[0]}, s{sT[1]}".split('\n')
fill += f"""
v_and_b32 v{t0}, 31, v{L}
v_lshrrev_b32 v{t1}, 5, v{L}
v_and_b32 v{t2}, 7, v{L}
v_xor_b32 v{t1}, v{t1}, v{t2}
v_lshlrev_b32 v{t1}, 4, v{t1}
v_lshl_add_u32 v{t0}, v{t0}, 8, v{t1}
v_add_u32 v9, s{sT[3]}, v{t0}
v_xor_b32 v10, 32, v9
v_xor_b32 v11, 64, v9
v_xor_b32 v12, 0x60, v9
v_lshrrev_b32 v{t0}, 3, v{L}
v_lshlrev_b32 v{t1}, 1, v{t2}
v_xor_b32 v{t1}, v{t1}, v{t0}
v_lshlrev_b32 v{t1}, 4, v{t1}
v_lshl_add_u32 v{t1}, v{t0}, 8, v{t1}
v_add_u32 v1, s{sT[8]}, v{t1}
v_xor_b32 v2, 16, v1
s_lshl3_add_u32 s{sT[3]}, s{sI}, s{sW}
s_lshl_b32 s{sT[3]}, s{sT[3]}, 6
s_add_u32 s{sT[3]}, s{sT[3]}, s{sJ}
s_lshl_b32 s{sT[3]}, s{sT[3]}, 7
v_lshlrev_b32 v{t2}, 4, v{t2}
v_lshl_add_u32 v5, v{t0}, 10, v{t2}
s_mov_b32 s{sT[2]}, 0
""".strip().split('\n')
def wo_read(v):
    slot = ((14 + v) & 3) * 2048 + (v >> 2) * 32768
    for b in range(2):
        for e in range(2):
            a(f"ds_read_b64_tr_b16 {vr(WOF + 8*v + 4*b + 2*e, 2)}, v{28 + b} offset:{slot + e*512}")
for j in range(8):
    xw = a(f"ds_write_b128 v24, {vr(DACC+32+4*j,4)} offset:{1024*j}")
    for x in fill[len(fill) * j // 8: len(fill) * (j + 1) // 8]: a(x)
    if OPT['woe'] == 1: wo_read(j)
if OPT['woe'] == 2:
    for j in range(8): wo_read(j)
def o_loads():
    for v in range(8):
        a(f"buffer_load_dwordx4 {vr(OF + 4*v, 4)}, v{vO1 if v >> 2 else vL16}, {srd(SWS)}, s{sT[4 + (v&3)]} offen sc1")
stamp(3, 4)
a.wait(wtok[17], xw)
a(f"s_cmp_ge_u32 s{sW}, 4")
if not OPT['oe']: a("s_barrier"); stamp(4, 4)
a("s_setprio 1\ns_cbranch_scc1 L_ol1\ns_setprio 0")
o_loads()
a("L_ol1:")
if OPT['oe']: a("s_barrier"); stamp(4, 4)
xt = [a(f"ds_read_b128 {vr(XT+4*j,4)}, v26 offset:{1024*j}") for j in range(8)]
for j in range(8):
    a.wait(xt[j])
    for i in range(2):
        r = 4 * j + 2 * i
        a(f"v_pk_add_f32 {vr(DACC+r,2)}, {vr(DACC+r,2)}, {vr(XT+r,2)}")
    for i in range(2):
        r = 4 * j + 2 * i
        a(f"v_pk_mul_f32 {vr(DACC+r,2)}, {vr(DACC+r,2)}, {vr(vG,2)} op_sel_hi:[1,0]")
stamp(5, 4)
a("s_setprio 0\ns_cbranch_scc0 L_ol2")
o_loads()
a("L_ol2:")
if not OPT['woe']:
    for j in range(8): wo_read(j)
stamp(6, 4)
a.wait_lg0()
ND = XT
a("L_s3poll:")
def wo_mfma(v, b): a(f"v_mfma_f32_32x32x16_bf16 {vr(ND+16*b,16)}, {vr(WOF+8*v+4*b,4)}, {vr(OF+4*v,4)}, {vr((DACC if v == 0 else ND)+16*b,16)}")
def chk(v):
    if v == 0: a(f"v_max_u32 v{t0}, v{OF}, v{OF+1}\nv_max_u32 v{t1}, v{OF+2}, v{OF+3}")
    else: a(f"v_max3_u32 v{t0}, v{t0}, v{OF+4*v}, v{OF+4*v+1}\nv_max3_u32 v{t1}, v{t1}, v{OF+4*v+2}, v{OF+4*v+3}")
def xsite():
    a(f"s_cmp_eq_u32 s{sT[9]}, 0\ns_cbranch_scc1 L_nox\ns_mov_b32 s{sT[9]}, 0\ns_barrier\nL_nox:")
for v in range(6):
    a(f"s_waitcnt vmcnt({7-v})")
    if v == 0: stamp(10); stamp(7, 4)
    wo_mfma(v, 0); chk(v); wo_mfma(v, 1)
    if v == OPT['xsite']: xsite()
a("s_waitcnt vmcnt(1)"); wo_mfma(6, 0); chk(6)
a("s_waitcnt vmcnt(0)"); wo_mfma(7, 0); chk(7)
a.vm_done = a.vm
wo_mfma(6, 1)
if OPT['xsite'] == 6: xsite()
a(f"v_max_u32 v{t0}, v{t0}, v{t1}\nv_cmp_eq_u32 vcc, -1, v{t0}")
wo_mfma(7, 1)
if OPT['xsite'] == 7: xsite()
a("s_cbranch_vccnz L_s3retry\nL_s3done:")
stamp(8, 4)
for b in range(2):
    if OPT['xsite'] >= 6: a("s_nop 2" if b == 0 else "s_nop 3")
    for qd in range(4): a(f"ds_write_b128 v{9+qd}, {vr(ND + 16*b + 4*qd, 4)} offset:{b*128}")
a(f"s_cmp_ge_u32 s{sW}, 4")
a.wait_lg0()
a("s_barrier")
stamp(9, 4)
RD = 176
rt = []
for p in range(4):
    for e in range(2):
        rt.append(a(f"ds_read_b128 {vr(RD + 8*p + 4*e, 4)}, v{1 + e} offset:{p*8192}"))
for p in range(1, 4):
    a.wait(rt[2 * p + 1])
    for j in range(4):
        if OPT.get('fpk', 1): a(f"v_pk_add_f32 {vr(RD+2*j,2)}, {vr(RD+2*j,2)}, {vr(RD+8*p+2*j,2)}")
        else: a(f"v_add_f32 v{RD+2*j}, v{RD+2*j}, v{RD+8*p+2*j}\nv_add_f32 v{RD+2*j+1}, v{RD+2*j+1}, v{RD+8*p+2*j+1}")
for j in range(4): a(f"v_cvt_pk_bf16_f32 v{RD+j}, v{RD+2*j}, v{RD+2*j+1}")
a(f"buffer_store_dwordx4 {vr(RD,4)}, v5, {srd(SOUT)}, s{sT[3]} offen {['', 'sc1'][OPT['outm']]}")
a("s_cbranch_scc1 L_noy\ns_barrier\nL_noy:")
stamp(10, 4)
if OPT['stamp']:
    a("s_waitcnt vmcnt(0)")
    stamp(11)
    a("s_waitcnt lgkmcnt(0)")
    a(f"s_mov_b32 s28, s{sT[2]}")
    if 'span' in OPT:
        a(f"""
        s_lshl3_add_u32 s{sT[0]}, s2, s{sW}
        s_lshl_b32 s{sT[0]}, s{sT[0]}, 3
        s_add_u32 s{sT[0]}, s{sT[0]}, {WS_STAMP}
        v_mov_b32 v1, 0
        v_mov_b32 v2, s{4+2*OPT['span']}
        v_mov_b32 v3, s30
        s_mov_b64 exec, 1
        buffer_store_dwordx2 v[2:3], v1, {srd(SWS)}, s{sT[0]} offen sc1
        s_mov_b64 exec, -1
        s_add_u32 s{sT[0]}, s2, s{sW}
        s_cmp_lg_u32 s{sT[0]}, 0
        s_cbranch_scc1 L_end
        L_pad0:
        s_memrealtime s[{sT[2]}:{sT[3]}]
        s_waitcnt lgkmcnt(0)
        s_sub_u32 s{sT[2]}, s{sT[2]}, s30
        s_cmp_lt_u32 s{sT[2]}, 4500
        s_cbranch_scc1 L_pad0
        v_mov_b32 v4, 0
        v_mov_b32 v5, -1
        s_sub_u32 s{sT[1]}, s30, 1000
        """)
        for g in range(16):
            a(f"""
            s_mov_b32 s{sT[0]}, {WS_STAMP + 1024*g}
            buffer_load_dwordx4 v[8:11], v{vL16}, {srd(SWS)}, s{sT[0]} offen sc1
            s_waitcnt vmcnt(0)
            v_subrev_u32 v8, s{sT[1]}, v8
            v_subrev_u32 v9, s{sT[1]}, v9
            v_subrev_u32 v10, s{sT[1]}, v10
            v_subrev_u32 v11, s{sT[1]}, v11
            v_max3_u32 v4, v4, v8, v10
            v_min3_u32 v5, v5, v9, v11
            """)
        a(f"s_mov_b32 s{sT[4]}, 0\ns_mov_b32 s{sT[5]}, -1")
        for i in range(64): a(f"v_readlane_b32 s{sT[6]}, v4, {i}\nv_readlane_b32 s{sT[7]}, v5, {i}\ns_nop 0\ns_max_u32 s{sT[4]}, s{sT[4]}, s{sT[6]}\ns_min_u32 s{sT[5]}, s{sT[5]}, s{sT[7]}")
        a(f"""
        s_sub_u32 s{sT[0]}, s{sT[4]}, s{sT[5]}
        s_sub_u32 s{sT[0]}, s{sT[0]}, {OPT.get('spanb', 2000)}
        s_min_u32 s{sT[0]}, s{sT[0]}, 2500
        s_mul_i32 s{sT[0]}, s{sT[0]}, 10
        s_add_u32 s{sT[0]}, s{sT[0]}, 6000
        L_pad:
        s_memrealtime s[{sT[2]}:{sT[3]}]
        s_waitcnt lgkmcnt(0)
        s_sub_u32 s{sT[2]}, s{sT[2]}, s30
        s_cmp_lt_u32 s{sT[2]}, s{sT[0]}
        s_cbranch_scc1 L_pad
        """)
    elif 'crit' in OPT:
        a(f"""
        s_cmp_lg_u32 s{sW}, 7
        s_cbranch_scc1 L_end
        s_lshl_b32 s{sT[0]}, s2, 6
        s_add_u32 s{sT[0]}, s{sT[0]}, {WS_STAMP}
        v_mov_b32 v1, 0
        """)
        for k in range(14): a(f"v_mov_b32 v2, s{4+2*k}\nbuffer_store_dword v2, v1, {srd(SWS)}, s{sT[0]} offen offset:{4*k} sc1")
        a(f"""
        s_cmp_lg_u32 s2, 0
        s_cbranch_scc1 L_end
        L_pad0:
        s_memrealtime s[{sT[2]}:{sT[3]}]
        s_waitcnt lgkmcnt(0)
        s_sub_u32 s{sT[2]}, s{sT[2]}, s30
        s_cmp_lt_u32 s{sT[2]}, 5000
        s_cbranch_scc1 L_pad0
        v_lshlrev_b32 v1, 6, v{L}
        s_mov_b32 s{sT[4]}, 0
        s_mov_b32 s{sT[5]}, -1
        """)
        for g in range(4):
            a(f"""
            s_mov_b32 s{sT[0]}, {WS_STAMP + 4096*g}
            buffer_load_dword v2, v1, {srd(SWS)}, s{sT[0]} offen offset:{4*OPT['crit']} sc1
            buffer_load_dword v3, v1, {srd(SWS)}, s{sT[0]} offen offset:52 sc1
            s_waitcnt vmcnt(0)
            v_subrev_u32 v2, s30, v2
            v_add_u32 v2, 1000, v2
            v_lshlrev_b32 v2, 8, v2
            v_add_u32 v2, v2, v{L}
            v_add_u32 v2, {64*g}, v2
            v_subrev_u32 v3, s30, v3
            v_add_u32 v3, 1000, v3
            s_nop 1
            """)
            for i in range(64): a(f"v_readlane_b32 s{sT[6]}, v2, {i}\nv_readlane_b32 s{sT[7]}, v3, {i}\ns_nop 0\ns_max_u32 s{sT[4]}, s{sT[4]}, s{sT[6]}\ns_min_u32 s{sT[5]}, s{sT[5]}, s{sT[7]}")
        a(f"""
        s_and_b32 s{sT[4]}, s{sT[4]}, 255
        s_lshl_b32 s{sT[0]}, s{sT[4]}, 6
        s_add_u32 s{sT[0]}, s{sT[0]}, {WS_STAMP}
        v_lshlrev_b32 v1, 2, v{L}
        buffer_load_dword v2, v1, {srd(SWS)}, s{sT[0]} offen sc1
        s_add_u32 s{sT[5]}, s{sT[5]}, s30
        s_sub_u32 s{sT[5]}, s{sT[5]}, 1000
        s_waitcnt vmcnt(0)
        v_subrev_u32 v2, s{sT[5]}, v2
        s_nop 1
        v_writelane_b32 v2, s{sT[4]}, 14
        s_mov_b64 exec, 0x7fff
        buffer_store_dword v2, v1, {srd(SDBG)}, 0 offen offset:4
        """)
    elif 'dk' in OPT:
        a(f"""
        s_cmp_lg_u32 s{sW}, {OPT.get('dw', 7)}
        s_cbranch_scc1 L_end
        s_lshl_b32 s{sT[0]}, s2, 2
        s_add_u32 s{sT[0]}, s{sT[0]}, {WS_STAMP}
        v_mov_b32 v2, s{4+2*OPT['dk']}
        v_mov_b32 v1, 0
        buffer_store_dword v2, v1, {srd(SWS)}, s{sT[0]} offen sc1
        s_cmp_lg_u32 s2, 0
        s_cbranch_scc1 L_end
        L_pad0:
        s_memrealtime s[{sT[2]}:{sT[3]}]
        s_waitcnt lgkmcnt(0)
        s_sub_u32 s{sT[2]}, s{sT[2]}, s30
        s_cmp_lt_u32 s{sT[2]}, 5000
        s_cbranch_scc1 L_pad0
        v_mul_u32_u24 v1, {4*OPT['dstride']}, v{L}
        s_mov_b32 s{sT[0]}, {WS_STAMP + 4*OPT['dbase']}
        buffer_load_dword v2, v1, {srd(SWS)}, s{sT[0]} offen sc1
        s_waitcnt vmcnt(0)
        v_subrev_u32 v2, s30, v2
        v_add_u32 v2, 100000, v2
        s_mov_b32 s{sT[4]}, 0
        s_mov_b32 s{sT[5]}, -1
        """)
        for i in range(OPT['dn']): a(f"v_readlane_b32 s{sT[6]}, v2, {i}\ns_nop 1\ns_max_u32 s{sT[4]}, s{sT[4]}, s{sT[6]}\ns_min_u32 s{sT[5]}, s{sT[5]}, s{sT[6]}")
        a(f"""
        s_sub_u32 s{sT[0]}, s{sT[4]}, s{sT[5]}
        s_min_u32 s{sT[0]}, s{sT[0]}, 2000
        s_mul_i32 s{sT[0]}, s{sT[0]}, 10
        s_add_u32 s{sT[0]}, s{sT[0]}, 6000
        L_pad:
        s_memrealtime s[{sT[2]}:{sT[3]}]
        s_waitcnt lgkmcnt(0)
        s_sub_u32 s{sT[2]}, s{sT[2]}, s30
        s_cmp_lt_u32 s{sT[2]}, s{sT[0]}
        s_cbranch_scc1 L_pad
        """)
    elif 'pad' in OPT:
        K = OPT['pad']
        a(f"s_and_b32 s{sT[0]}, s2, {OPT.get('padm', 0)}\ns_cmp_lg_u32 s{sT[0]}, {OPT.get('padv', 0)}\ns_cbranch_scc1 L_end")
        if K >= 0: a(f"s_sub_u32 s{sT[0]}, s{4+2*K}, s{4+2*OPT.get('padb', 13)}\ns_mul_i32 s{sT[0]}, s{sT[0]}, {OPT.get('padx', 4)}")
        else: a(f"s_mov_b32 s{sT[0]}, 0")
        a(f"""
        s_add_u32 s{sT[0]}, s{sT[0]}, 6000
        L_pad:
        s_memrealtime s[{sT[2]}:{sT[3]}]
        s_waitcnt lgkmcnt(0)
        s_sub_u32 s{sT[2]}, s{sT[2]}, s30
        s_cmp_lt_u32 s{sT[2]}, s{sT[0]}
        s_cbranch_scc1 L_pad
        """)
    else:
        a(f"s_lshl3_add_u32 s{sT[0]}, s2, s{sW}\ns_lshl_b32 s{sT[0]}, s{sT[0]}, 6\ns_add_u32 s{sT[0]}, s{sT[0]}, {WS_STAMP}")
        a("v_mov_b32 v1, 0\ns_mov_b64 exec, 1")
        for k in range(14):
            a(f"v_mov_b32 v2, s{4+2*k}\nbuffer_store_dword v2, v1, {srd(SWS)}, s{sT[0]} offen offset:{4*k}")
a("L_end:\ns_endpgm")
a("L_s3retry:")
o_loads()
a(f"""
s_add_u32 s{sT[2]}, s{sT[2]}, 1
s_cmp_lt_u32 s{sT[2]}, {SPIN}
s_nop 7
s_cbranch_scc1 L_s3poll
s_waitcnt vmcnt(0)
s_branch L_s3done
""")

for P in 'KVPSC':
    a(f".p2align 6\nL_path{P}:")
    a.forget()
    proj_path(P)
    a("s_branch L_join")
for x in cold: a(x)

CM = SB
a(f"""
L_true_max:
s_waitcnt vmcnt(0) lgkmcnt(0)
v_mov_b32 v{t0}, 0xff800000
s_mov_b32 s{sT[0]}, {WS_KV}
L_tm1:
buffer_load_dwordx4 {vr(KF,4)}, v{vL16}, {srd(SWS)}, s{sT[0]} offen sc1
s_waitcnt vmcnt(0)
{qk(SA, QB)}
""")
for j in range(8): a(f"v_max3_f32 v{t0}, v{t0}, v{SA+2*j}, v{SA+2*j+1}")
a(f"""
s_add_u32 s{sT[0]}, s{sT[0]}, 2048
s_cmp_lt_u32 s{sT[0]}, {WS_KV + 64*2048}
s_cbranch_scc1 L_tm1
v_mov_b32 v{t1}, v{t0}
v_permlane32_swap_b32 v{t0}, v{t1}
v_max_f32 v{t0}, v{t0}, v{t1}
""")
for r in range(16): a(f"v_sub_f32 v{CM+r}, 0, v{t0}\nv_mov_b32 v{OB+r}, 0")
a(f"""
s_mov_b32 s{sT[0]}, {WS_KV}
L_tm2:
buffer_load_dwordx4 {vr(KF,4)}, v{vL16}, {srd(SWS)}, s{sT[0]} offen sc1
s_mov_b64 exec, s[{sT[8]}:{sT[9]}]
buffer_load_dwordx4 {vr(V1[0],4)}, v{vPV}, {srd(SWS)}, s{sT[0]} offen offset:1024 sc1
buffer_load_dwordx4 {vr(V2,4)}, v{vPV}, {srd(SWS)}, s{sT[0]} offen offset:1536 sc1
s_mov_b64 exec, -1
s_waitcnt vmcnt(0)
v_mfma_f32_32x32x16_bf16 {vr(SA,16)}, {vr(KF,4)}, {vr(QB,4)}, {vr(CM,16)}
""")
for e in range(16): a(f"v_exp_f32 v{SA+e}, v{SA+e}")
a(pv(OB, V1[0], SA)); a(pv(OB, V2, SA + 8))
a(f"""
s_add_u32 s{sT[0]}, s{sT[0]}, 2048
s_cmp_lt_u32 s{sT[0]}, {WS_KV + 64*2048}
s_nop 7
s_cbranch_scc1 L_tm2
s_nop 7
v_rcp_f32 v{t0}, v{OB+8}
s_nop 0
v_mul_f32 v{t0}, v{t0}, v{vG}
""")
for j in range(4): a(f"v_pk_mul_f32 {vr(OB+2*j,2)}, {vr(OB+2*j,2)}, {vr(t0,2)} op_sel_hi:[1,0]")
for j in range(4): a(f"v_cvt_pk_bf16_f32 v{OS+j}, v{OB+2*j}, v{OB+2*j+1}")
for j in range(4): a(f"v_min_u32 v{OS+j}, -2, v{OS+j}")
a("s_branch L_norm\nL_last:")

bad = a.check_branches()
assert not bad, bad

hdr = open(f'cdna_kernels/{NAME}.s.ref').read().split('\n')
head = [l for l in hdr if l.startswith(';') and '@launch' not in l]
body = a.text()
if OPT.get('stm'):
    import re
    body = re.sub(r'(buffer_store_dwordx4 .*s\[52:55\].*) sc1', lambda m: m.group(1) + [' sc1', ' sc1 nt', ' sc0 sc1', ' sc0 sc1 nt'][OPT['stm']], body)
out = "\n".join(head) + f"\n; @launch grid=(256,1,1) block=(512,1,1) lds={LDS_BYTES}\n"
out += f""".amdgcn_target "amdgcn-amd-amdhsa--gfx950"
.text
.globl {NAME}_kernel
.p2align 8
.type {NAME}_kernel,@function
{NAME}_kernel:
{body}
.section .rodata,"a"
.p2align 6
.amdhsa_kernel {NAME}_kernel
  .amdhsa_next_free_vgpr 256
  .amdhsa_next_free_sgpr 102
  .amdhsa_accum_offset 256
  .amdhsa_group_segment_fixed_size 0
  .amdhsa_kernarg_size 104
  .amdhsa_user_sgpr_count 2
  .amdhsa_user_sgpr_kernarg_segment_ptr 1
  .amdhsa_system_sgpr_workgroup_id_x 1
.end_amdhsa_kernel
"""
open(sys.argv[1], 'w').write(out)
print("instructions:", sum(1 for i in a.ins if i.ws), "auto nops:", a.nnop, file=sys.stderr)
```

```python
import sys, math, struct
sys.path.insert(0, 'gen')
from asmlib import Asm

NAME = 'gated_mix__grouped_kv_mqa__geglu_ffn__prompt'
OPT = dict(stamp=0, grp=0, force_fb=0, qflag=11, s1=16, b2=22, outm=1, ofast=0,
           p_kv=1, p_kvs=14, p_st=60, p_sts=20, p_fill=160, p_fills=60, p_kv2=366, p_f2=440, p_chk=470, d0=16, dend=32,
           late=0, pk2=1, nearly=1, h0w=24, h1w=30, clw=22, na=1, gend=30, dwt=0, qbar=0, cpf=1, qmode=0, qf=11, exs=1, spf=1, pb=1, pbq0=0, rq=1, rg=1, r1=1, qfirst=0, vlate=0, jearly=5, xsite=5, woe=0, oe=0, tlb=0, rotm=2, rots=12, dxs=3, wt=1, lb1=50, lb3=92, lc1=70, jlate=0, s1slp=0, s1w=30, lad=1, gb14=1, gbar=0)
for x in sys.argv[2:]:
    k, v = x.split('='); OPT[k] = int(v)

def fbits(x): return struct.unpack('<I', struct.pack('<f', x))[0]

WS_KV, WS_G, WS_F1, WS_Q, WS_H, WS_STAMP = 0, 0x20000, 0x30000, 0x300000, 0x500000, 0xC00000
WS_O = WS_Q
WS_F2 = WS_F1 + 8192
WS_SIZE = 0x1000000
CLEAR_WG = 128
WR, EX = 65536, 131072
NSLOT, HALF, RING = 24, 49152, 98304
MERGE = 65536
LDS_BYTES = 163840
SPIN = 0x400000
SX, SWG, SWU, SWQ, SEX, SWS, SDBG, SWD, SWO, SOUT = 32, 36, 40, 44, 48, 52, 56, 60, 64, 92
sW, sTI, sQ, sU, sROT, sXO, sWOF, sMX, sMW, sI, sJ, sROT0 = range(68, 80)
sT = list(range(80, 90))
sEXW, sEXO = 90, 91
sC1 = 96
sF2, sRH, sRING, sOO = 98, 99, 100, 101
sHO = 3
sKVM, sKVO, sQA, sGA = 32, 33, 34, 35
sF2R, sF2W = 46, 38
sR = [sRH, 44, 45, 47]
def srd(n): return f"s[{n}:{n+3}]"
def vr(b, n): return f"v[{b}:{b+n-1}]"

vXS0, vXS1, vWS = 1, 2, 3
vST = 4
vXR = [5, 6, 7, 8]
vWR = [9, 10]
vES, vER, vSA = 11, [12, 13], 30
vL16, vLANE = 14, 15
vC0 = 16
vZ = 17
vGT = 18
t0, t1, t2, t3 = 20, 21, 22, 23
vS0, vWS2 = 28, 27
vPV, vPD, vTRP = 29, 0, 31
F = [32, 48]
ACC = [64, 96]
XF = 128
ACCE, WE = 96, 100
GW = 147456
L = vLANE
QA, QB, KF, V2, V1 = 128, 132, 136, 140, [144, 148]
vG, vIDX, vAK, vAV, vKVS = 152, 154, 155, 156, 157
vDR0, vDR1, vH0, vH1 = 159, 160, 161, 162
vDS, vDS1, vF2 = vPD, 158, 163
F2D = 164
vONE = 168
OA, OB, SA, SB = 176, 192, 208, 224
WF = [240, 248]
HF = [32, 40, 48, 56]
DACC = 64

a = Asm()
CLK = 's_memtime' if OPT['stamp'] == 2 else 's_memrealtime'
def stamp(k, grp=0):
    if grp != OPT['grp'] and k != 11: return
    if OPT['stamp']: a(f"{CLK} s[{4+2*k}:{5+2*k}]")
def mk_srd(n, p, size):
    a(f"s_mov_b32 s{n}, s{p}\ns_mov_b32 s{n+1}, s{p+1}\ns_mov_b32 s{n+2}, {size}\ns_mov_b32 s{n+3}, 0x20000")

PG = 3584
C0 = -2.0 * math.sqrt(2.0 / math.pi) * math.log2(math.e)
C1 = C0 * 0.044715
QS = 0.25 * math.log2(math.e)

a("s_cmp_ge_u32 s2, 256\ns_cbranch_scc1 L_end")
a("s_load_dwordx16 s[4:19], s[0:1], 0\ns_load_dwordx8 s[20:27], s[0:1], 64\ns_load_dwordx2 s[28:29], s[0:1], 96")
if OPT['stamp']: a(f"{CLK} s[30:31]")
def code_prefetch():
    a(f"""
    s_getpc_b64 s[{sT[8]}:{sT[9]}]
    L_pc:
    s_andn2_b32 s{sT[7]}, s2, 7
    s_lshl_b32 s{sT[7]}, s{sT[7]}, 8
    v_lshl_add_u32 v{t3}, v0, 2, s{sT[7]}
    v_min_u32 v{t3}, L_last-L_pc-4, v{t3}
    s_mov_b32 exec_lo, 1
    s_mov_b32 exec_hi, 1
    global_load_dword v{vS0}, v{t3}, s[{sT[8]}:{sT[9]}]
    s_mov_b64 exec, -1
    """)
if OPT['cpf'] == 1: code_prefetch()
ROTC = {8: f"s_lshl1_add_u32 s{sROT0}, s{sU}, s{sJ}\ns_and_b32 s{sROT0}, s{sROT0}, 7",
        4: f"s_add_u32 s{sROT0}, s{sU}, s{sJ}\ns_and_b32 s{sROT0}, s{sROT0}, 3\ns_lshl_b32 s{sROT0}, s{sROT0}, 1",
        2: f"s_add_u32 s{sROT0}, s{sU}, s{sJ}\ns_and_b32 s{sROT0}, s{sROT0}, 1\ns_lshl_b32 s{sROT0}, s{sROT0}, 2",
        3: f"s_add_u32 s{sROT0}, s{sU}, s{sJ}\ns_lshl_b32 s{sROT0}, s{sROT0}, 1\ns_lshr_b32 s{sROT0}, 0x124924, s{sROT0}\ns_and_b32 s{sROT0}, s{sROT0}, 3\ns_mul_i32 s{sROT0}, s{sROT0}, 3",
        1: f"s_mov_b32 s{sROT0}, 0"}[OPT['rotm']]
if OPT['rots']:
    ROTC += f"\ns_bfe_u32 s{sQ}, s2, 0x20001\ns_mul_i32 s{sT[1]}, s{sQ}, {OPT['rots'] // 10}\ns_add_u32 s{sROT0}, s{sROT0}, s{sT[1]}\ns_mul_i32 s{sT[1]}, s{sT[2]}, {OPT['rots'] % 10}\ns_add_u32 s{sROT0}, s{sROT0}, s{sT[1]}\ns_and_b32 s{sROT0}, s{sROT0}, 7"
a(f"""
v_readfirstlane_b32 s{sW}, v0
v_lshrrev_b32 v{t1}, 4, v0
v_lshrrev_b32 v{t0}, 3, v0
v_xor_b32 v{t1}, v0, v{t1}
s_lshr_b32 s{sU}, s2, 6
s_bfe_u32 s{sJ}, s2, 0x30003
v_and_b32 v{t1}, 7, v{t1}
s_and_b32 s{sT[2]}, s2, 1
s_lshl3_add_u32 s{sTI}, s{sT[2]}, s{sJ}
v_lshlrev_b32 v{t1}, 4, v{t1}
{ROTC}
v_lshl_add_u32 v{vXS0}, v{t0}, 10, v{t1}
s_lshl_b32 s{sT[0]}, s{sTI}, 17
s_lshl_b32 s{sXO}, s{sROT0}, 7
s_add_u32 s{sXO}, s{sXO}, s{sT[0]}
s_lshl_b32 s{sMW}, s{sW}, 4
s_mov_b32 m0, s{sMW}
s_mov_b32 s{SX+2}, {2048*1024}
s_mov_b32 s{SX+3}, 0x20000
""")
a(f"""
s_bfe_u32 s{sT[1]}, s{sW}, 0x10006
s_lshl_b32 s{sT[1]}, s{sT[1]}, 2
v_and_or_b32 v{t1}, v{t0}, 2, s{sT[1]}
s_bfe_u32 s{sQ}, s2, 0x20001
s_mul_i32 s{sT[1]}, s{sQ}, 7
v_xor_b32 v{t1}, v0, v{t1}
s_lshl1_add_u32 s{sT[1]}, s{sU}, s{sT[1]}
s_sub_u32 s{sT[1]}, s{sT[1]}, 1
v_and_b32 v{t1}, 7, v{t1}
s_lshl_b32 s{sT[2]}, s{sQ}, 1
s_movk_i32 s{sT[3]}, {PG}
v_lshlrev_b32 v{vWS2}, 4, v{t1}
s_mov_b32 s{SWG+3}, 0x20000
s_mov_b32 s{SWU+3}, 0x20000
s_cmp_eq_u32 s{sU}, 0
s_cselect_b32 s{sT[1]}, s{sT[2]}, s{sT[1]}
s_cselect_b32 s{sT[3]}, 1024, s{sT[3]}
s_cselect_b32 s{sT[2]}, 128, 0
v_mad_u32_u24 v{vWS}, v{t0}, s{sT[3]}, v{vWS2}
s_lshl_b32 s{SWG+2}, s{sT[3]}, 9
s_mov_b32 s{SWU+2}, s{SWG+2}
s_mul_i32 s{sWOF}, s{sROT0}, s{sT[3]}
s_lshl1_add_u32 s{sWOF}, s{sT[1]}, s{sWOF}
s_lshl_b32 s{sWOF}, s{sWOF}, 6
s_cmp_eq_u32 s{sU}, 0
{CLK + ' s[84:85]' if OPT['grp'] == 5 else ''}
s_waitcnt lgkmcnt(0)
{CLK + ' s[86:87]' if OPT['grp'] == 5 else ''}
s_mov_b64 s[{SX}:{SX+1}], s[4:5]
s_cselect_b64 s[{SWG}:{SWG+1}], s[6:7], s[16:17]
s_cselect_b64 s[{SWU}:{SWU+1}], s[6:7], s[18:19]
""")
def first_stage(x0, x1, xstep, wstep):
    a(f"""
    buffer_load_dwordx4 v{x0}, {srd(SX)}, s{sXO} offen lds
    s_add_u32 m0, s{sMW}, {WR}
    s_add_u32 s{sXO}, s{sXO}, {xstep}
    buffer_load_dwordx4 v{vWS}, {srd(SWG)}, s{sWOF} offen lds
    s_add_u32 m0, s{sMW}, {WR + 8192}
    s_add_u32 s{sWOF}, s{sWOF}, {wstep}
    buffer_load_dwordx4 v{vWS}, {srd(SWU)}, s{sWOF} offen lds
    s_add_u32 m0, s{sMW}, 8192
    s_nop 0
    buffer_load_dwordx4 v{x1}, {srd(SX)}, s{sXO} offen lds
    """)
if OPT['qfirst']: a("s_cbranch_scc0 L_late")
first_stage(vXS0, vXS0, 65536, f"s{sT[2]}")
if OPT['wt']:
    assert not OPT['qfirst']
    a(f"""
    s_lshr_b32 s{sT[4]}, s{sW}, 7
    s_lshr_b32 s{sT[5]}, s{sJ}, 1
    s_cmp_lg_u32 s{sT[4]}, s{sT[5]}
    s_cbranch_scc1 L_nowt
    s_add_u32 s{sT[4]}, s{sROT0}, 1
    s_and_b32 s{sT[4]}, s{sT[4]}, 7
    s_mul_i32 s{sT[4]}, s{sT[4]}, s{sT[3]}
    s_lshl1_add_u32 s{sT[4]}, s{sT[1]}, s{sT[4]}
    s_lshl_b32 s{sT[4]}, s{sT[4]}, 6
    buffer_load_dword v32, v{vWS}, {srd(SWG)}, s{sT[4]} offen
    s_add_u32 s{sT[4]}, s{sT[4]}, s{sT[2]}
    buffer_load_dword v33, v{vWS}, {srd(SWU)}, s{sT[4]} offen
    L_nowt:
    """)
if OPT['qfirst']: a("L_late:")
if OPT['grp'] == 5: a(f"{CLK} s[88:89]\ns_waitcnt lgkmcnt(0)\ns_mov_b32 s4, s84\ns_mov_b32 s14, s86\ns_mov_b32 s5, s88")
a(f"""
s_lshr_b32 s{sW}, s{sW}, 6
v_add_u32 v{vXS0}, s{sT[0]}, v{vXS0}
v_add_u32 v{vXS1}, 0x10000, v{vXS0}
s_sub_u32 s{sXO}, s{sXO}, s{sT[0]}
s_lshl_b32 s{sT[1]}, s{sT[1]}, 7
s_sub_u32 s{sWOF}, s{sWOF}, s{sT[1]}
v_add_u32 v{vWS}, s{sT[1]}, v{vWS}
s_movk_i32 s{sT[3]}, {PG}
v_mad_u32_u24 v{vWS2}, v{t0}, s{sT[3]}, v{vWS2}
s_mul_i32 s{sT[1]}, s{sQ}, {7*128}
v_add_u32 v{vWS2}, s{sT[1]}, v{vWS2}
v_and_b32 v{L}, 63, v0
v_lshlrev_b32 v{vL16}, 4, v{L}
s_and_b32 s{sT[0]}, s2, 7
s_lshl2_add_u32 s{sI}, s{sT[0]}, s{sU}
s_add_u32 s{sROT}, s{sROT0}, 1
s_and_b32 s{sROT}, s{sROT}, 7
s_lshl_b32 s{sMX}, s{sW}, 11
""")
def late_loads(k):
    if OPT['qfirst'] != k: return
    a(f"s_cmp_eq_u32 s{sU}, 0\ns_cbranch_scc1 L_early")
    first_stage(vXS0, vXS1, 0, 0)
    a("L_early:")
late_loads(1)
def dispatch():
    a(f"""
    s_lshr_b32 s{sT[1]}, s{sW}, 2
    s_lshl1_add_u32 s{sT[0]}, s{sU}, s{sT[1]}
    s_lshr_b32 s{sT[1]}, s{sQ}, 1
    s_lshl1_add_u32 s{sT[0]}, s{sT[0]}, s{sT[1]}
    s_cmp_eq_u32 s{sT[0]}, 0
    s_cbranch_scc1 L_pathK
    s_cmp_eq_u32 s{sT[0]}, 1
    s_cbranch_scc1 L_pathV
    s_cmp_lt_u32 s{sT[0]}, 4
    s_cbranch_scc1 L_pathP
    s_cmp_eq_u32 s{sT[0]}, 4
    s_cbranch_scc1 L_pathS
    s_add_u32 s{sT[0]}, s{sMW}, s2
    s_cmp_eq_u32 s{sT[0]}, {CLEAR_WG + 1024}
    s_cbranch_scc1 L_pathC
    """)

PATH = ['G']
def wslot(sig):
    if sig < 8: return WR + (sig & 3) * 16384
    if sig >= 14: return EX + (sig - 14) * 16384
    return (0 if sig & 1 else WR) + ((sig - 8) >> 1) * 16384
def waddr(sig, b):
    return {0: vXR[b], 1: vWR[b], 2: vXR[2 + b]}[wslot(sig) >> 16]

def dma_ops(sig, path):
    p = sig >> 3
    isq = (path in 'KVP' and p == 0)
    pitch = 1024 if isq else PG
    sa, sb = (SWQ, SWQ) if isq else (SWG, SWU)
    xs, ws = (sig & 3) * 16384, wslot(sig)
    pre = f"s_mul_i32 s{sWOF}, s{sROT}, {64*pitch}\n"
    if path in 'GSC' and p == 1: pre += f"s_add_u32 s{sWOF}, s{sWOF}, 128\n"
    mid = f"s_add_u32 s{sWOF}, s{sWOF}, 128\n" if isq else ""
    inc, wrap = f"s_add_u32 s{sROT}, s{sROT}, 1\n", f"s_and_b32 s{sROT}, s{sROT}, 7\n"
    vw = vWS2 if (path in 'KVP' and p == 1) else vWS
    wa = f"s_add_u32 m0, s{sMW}, {ws}\n{{}}buffer_load_dwordx4 v{vw}, {srd(sa)}, s{sWOF} offen lds"
    wb = f"s_add_u32 m0, s{sMW}, {ws+8192}\n{{}}buffer_load_dwordx4 v{vw}, {srd(sb)}, s{sWOF} offen lds"
    if p == 0:
        return [f"s_add_u32 m0, s{sMW}, {xs}\ns_lshl_b32 s{sXO}, s{sROT}, 7\nbuffer_load_dwordx4 v{vXS0}, {srd(SX)}, s{sXO} offen lds",
                wa.format(pre), wb.format(mid + inc),
                f"s_add_u32 m0, s{sMW}, {xs+8192}\n{wrap}buffer_load_dwordx4 v{vXS1}, {srd(SX)}, s{sXO} offen lds"]
    return [wa.format(pre), wb.format(inc + wrap)]

def setup_common():
    mk_srd(SWS, 28, WS_SIZE)
    if OPT.get('wso'): a(f"s_add_u32 s{SWS}, s{SWS}, {OPT['wso'] << 20}\ns_addc_u32 s{SWS+1}, s{SWS+1}, 0")
    mk_srd(SDBG, 26, 256); mk_srd(SWD, 20, 1792 * 1024); mk_srd(SWO, 12, 512 * 1024); mk_srd(SOUT, 24, 2048 * 1024)
    late_loads(2)
    a(f"""
    s_and_b32 s{sT[0]}, s{sW}, 3
    s_lshr_b32 s{sT[1]}, s{sW}, 2
    s_xor_b32 s{sT[5]}, s{sT[1]}, s{sQ}
    s_and_b32 s{sT[5]}, s{sT[5]}, 1
    s_lshl1_add_u32 s{sT[0]}, s{sT[0]}, s{sT[5]}
    s_lshl_b32 s{sT[0]}, s{sT[0]}, 11
    v_and_b32 v{t0}, 15, v{L}
    v_bfe_u32 v{t1}, v{L}, 1, 3
    v_lshrrev_b32 v{t2}, 4, v{L}
    v_xor_b32 v{t1}, v{t1}, v{t2}
    v_lshlrev_b32 v{t1}, 4, v{t1}
    v_lshl_add_u32 v{t1}, v{t0}, 7, v{t1}
    v_add_u32 v{vXR[0]}, s{sT[0]}, v{t1}
    v_xor_b32 v{vXR[1]}, 0x800, v{vXR[0]}
    v_xor_b32 v{vXR[2]}, 64, v{vXR[0]}
    v_xor_b32 v{vXR[3]}, 64, v{vXR[1]}
    s_lshl_b32 s{sT[2]}, s{sT[5]}, 8
    v_xor_b32 v{vST}, s{sT[2]}, v{vL16}
    """)
    a(f"""
    v_lshrrev_b32 v{t3}, 5, v{L}
    v_lshlrev_b32 v{t0}, 4, v{t0}
    v_lshl_add_u32 v{vPV}, v{t3}, 8, v{t0}
    """)
    late_loads(3)
    a(f"""
    v_bfe_u32 v{t0}, v{L}, 2, 2
    v_lshl_add_u32 v{t1}, v{t2}, 3, v{t0}
    v_lshlrev_b32 v{t1}, 7, v{t1}
    v_bfe_u32 v{t2}, v{L}, 3, 2
    s_lshl_b32 s{sT[1]}, s{sT[1]}, 1
    v_xor_b32 v{t2}, s{sT[1]}, v{t2}
    v_lshl_add_u32 v{t1}, v{t2}, 5, v{t1}
    v_and_b32 v{t2}, 3, v{L}
    v_lshl_add_u32 v{t1}, v{t2}, 3, v{t1}
    v_add_u32 v{vWR[0]}, {WR}, v{t1}
    v_xor_b32 v{vWR[1]}, 32, v{vWR[0]}
    """)
    a(f"""
    v_lshl_add_u32 v{t3}, v{t3}, 3, v{t0}
    v_lshlrev_b32 v{t3}, 7, v{t3}
    v_lshrrev_b32 v{t0}, 1, v{t0}
    v_lshl_add_u32 v{t3}, v{t0}, 6, v{t3}
    v_lshl_add_u32 v{t3}, v{t2}, 3, v{t3}
    v_bfe_u32 v{t2}, v{L}, 4, 1
    v_lshl_add_u32 v{vTRP}, v{t2}, 5, v{t3}
    v_lshlrev_b32 v{t2}, 2, v{t2}
    v_and_b32 v{t1}, 7, v{L}
    v_xor_b32 v{t1}, v{t1}, v{t2}
    v_lshlrev_b32 v{t1}, 4, v{t1}
    v_lshrrev_b32 v{t0}, 3, v{L}
    v_lshl_add_u32 v{t0}, v{t0}, 10, v{t1}
    s_lshl_b32 s{sT[0]}, s{sJ}, 7
    v_add_u32 v{vPD}, s{sT[0]}, v{t0}
    v_mov_b32 v{vZ}, 0
    v_mov_b32 v{vC0}, {fbits(C0):#x}
    s_mov_b32 s{sC1}, {fbits(C1):#x}
    s_mov_b32 s{sC1+1}, {fbits(C1):#x}
    """)
    late_loads(4)
    a(f"""
    s_lshr_b32 s{sT[3]}, s{sW}, 2
    s_and_b32 s{sT[1]}, s{sW}, 3
    s_lshl2_add_u32 s{sT[0]}, s{sTI}, s{sT[1]}
    s_lshl_b32 s{sT[8]}, s{sT[0]}, 5
    s_and_b32 s{sT[2]}, s{sT[0]}, 15
    s_lshr_b32 s{sT[0]}, s{sT[0]}, 4
    s_mul_i32 s{sT[0]}, s{sT[0]}, 112
    s_mul_i32 s{sT[1]}, s{sQ}, 28
    s_add_u32 s{sT[0]}, s{sT[0]}, s{sT[1]}
    s_lshl3_add_u32 s{sT[0]}, s{sU}, s{sT[0]}
    s_lshl1_add_u32 s{sT[0]}, s{sT[3]}, s{sT[0]}
    s_lshl4_add_u32 s{sT[0]}, s{sT[0]}, s{sT[2]}
    s_lshl_b32 s{sT[0]}, s{sT[0]}, 10
    s_add_u32 s{sHO}, s{sT[0]}, {WS_H}
    s_lshl3_add_u32 s{sT[4]}, s{sQ}, s{sT[8]}
    s_lshl1_add_u32 s{sT[4]}, s{sT[3]}, s{sT[4]}
    s_lshl_b32 s{sT[4]}, s{sT[4]}, 10
    s_lshl2_add_u32 s{sF2}, s{sTI}, s{sQ}
    s_lshl_b32 s{sF2}, s{sF2}, 5
    s_add_u32 s{sF2}, s{sF2}, s{sU}
    s_lshl_b32 s{sF2}, s{sF2}, 2
    s_add_u32 s{sF2}, s{sF2}, {WS_F2}
    s_lshl1_add_u32 s{sT[1]}, s{sI}, s{sT[3]}
    s_lshl3_add_u32 s{sT[2]}, s{sT[1]}, s{sJ}
    s_and_b32 s{sT[1]}, s{sW}, 3
    s_lshl2_add_u32 s{sT[2]}, s{sT[2]}, s{sT[1]}
    s_lshl_b32 s{sOO}, s{sT[2]}, 10
    s_lshl_b32 s{sRING}, s{sW}, 13
    s_add_u32 s{sRING}, s{sRING}, {RING}
    s_mul_i32 s{sRH}, s{sJ}, 7
    s_lshr_b32 s{sRH}, s{sRH}, 2
    s_mul_i32 s{sT[1]}, s{sU}, 7
    s_lshr_b32 s{sT[1]}, s{sT[1]}, 1
    s_add_u32 s{sRH}, s{sRH}, s{sT[1]}
    s_and_b32 s{sT[1]}, s2, {OPT['dxs']}
    s_add_u32 s{sRH}, s{sRH}, s{sT[1]}
    s_cmp_ge_u32 s{sRH}, 14
    s_cselect_b32 s{sT[1]}, 14, 0
    s_sub_u32 s{sRH}, s{sRH}, s{sT[1]}
    s_lshl_b32 s{sRH}, s{sRH}, 14
    s_mul_i32 s{sT[1]}, s{sW}, {14*16384}
    s_add_u32 s{SWD}, s{SWD}, s{sT[1]}
    s_addc_u32 s{SWD+1}, s{SWD+1}, 0
    s_sub_u32 s{SWD+2}, s{SWD+2}, s{sT[1]}
    s_lshl_b32 s{sT[1]}, s{sW}, 16
    s_add_u32 s{SWO}, s{SWO}, s{sT[1]}
    s_addc_u32 s{SWO+1}, s{SWO+1}, 0
    s_sub_u32 s{SWO+2}, s{SWO+2}, s{sT[1]}
    """)

def setup_path(P):
    if P in 'KV':
        a(f"""
        v_lshrrev_b32 v{t2}, 4, v{L}
        v_and_b32 v{t0}, 15, v{L}
        v_lshlrev_b32 v{t1}, 3, v{t0}
        v_lshl_add_u32 v{t1}, v{t2}, 8, v{t1}
        v_and_b32 v{t3}, 1, v{t2}
        v_lshl_add_u32 v{t1}, v{t3}, 7, v{t1}
        v_add_u32 v{vER[0]}, {EX}, v{t1}
        v_xor_b32 v{vER[1]}, 0x80, v{vER[0]}
        v_lshlrev_b32 v{t1}, 7, v{t3}
        v_xor_b32 v{vES}, v{t1}, v{vL16}
        s_add_u32 s{sEXO}, s{sW}, s{sROT0}
        s_and_b32 s{sEXO}, s{sEXO}, 7
        s_lshl_b32 s{sEXO}, s{sEXO}, 11
        s_lshr_b32 s{sEXW}, s{sT[4]}, 15
        v_lshrrev_b32 v{t2}, 1, v{t2}
        """)
        if P == 'K':
            a(f"""
            s_lshl3_add_u32 s{sEXW}, s{sEXW}, s{sT[5]}
            s_lshl_b32 s{sEXW}, s{sEXW}, 8
            v_lshlrev_b32 v{t2}, 9, v{t2}
            """)
        else:
            a(f"""
            s_lshl2_add_u32 s{sEXW}, s{sEXW}, s{sT[5]}
            s_lshl_b32 s{sEXW}, s{sEXW}, 9
            s_add_u32 s{sEXW}, s{sEXW}, 1024
            v_lshlrev_b32 v{t2}, 8, v{t2}
            v_and_b32 v{t0}, 3, v{L}
            v_bfe_u32 v{t1}, v{L}, 2, 1
            v_lshl_add_u32 v{t0}, v{t1}, 3, v{t0}
            v_bfe_u32 v{t1}, v{L}, 3, 1
            v_lshl_add_u32 v{t0}, v{t1}, 2, v{t0}
            """)
        a(f"""
        v_lshl_add_u32 v{t2}, v{t0}, 4, v{t2}
        v_lshl_add_u32 v{vSA}, v{t3}, 3, v{t2}
        """)
    if P == 'P':
        a(f"""
        v_bfe_u32 v{t1}, v{L}, 4, 1
        v_lshlrev_b32 v{t1}, 7, v{t1}
        v_xor_b32 v{vES}, v{t1}, v{vL16}
        s_add_u32 s{sEXO}, s{sW}, s{sROT0}
        s_and_b32 s{sEXO}, s{sEXO}, 7
        s_lshl_b32 s{sEXO}, s{sEXO}, 11
        """)
    if P == 'S':
        a(f"""
        s_lshl_b32 s{sEXO}, s{sROT0}, 7
        v_add_u32 v{vES}, s{sEXO}, v{vL16}
        v_and_b32 v{vES}, 0x3ff, v{vES}
        v_and_b32 v{t0}, 48, v{L}
        v_add_u32 v{vER[0]}, {GW}, v{t0}
        v_and_b32 v{t0}, 15, v{L}
        v_lshlrev_b32 v{vSA}, 2, v{t0}
        s_lshr_b32 s{sEXW}, s{sT[4]}, 15
        s_lshl1_add_u32 s{sEXW}, s{sEXW}, s{sT[5]}
        s_lshl_b32 s{sEXW}, s{sEXW}, 6
        s_add_u32 s{sEXW}, s{sEXW}, {WS_G}
        """)

def x_reads(sig, j):
    return [f"ds_read_b128 {vr(XF + 16*sig + 8*j + 4*tq, 4)}, v{vXR[2*j+tq]} offset:{(sig & 3) * 16384}" for tq in range(2)]
def w_reads(sig, j, i):
    b, part = i >> 1, i & 1
    off = (wslot(sig) & 0xffff) + part * 8192 + j * 4096
    return [f"ds_read_b64_tr_b16 {vr(F[j] + 4*i + 2*e, 2)}, v{waddr(sig, b)} offset:{off + e*512}" for e in range(2)]
def e_steps(c):
    c0 = 2 * OPT['exs']
    if PATH[0] in 'KVS': return [2 * (c - c0), 2 * (c - c0) + 1] if c0 <= c < 2 * c0 else ([c] if 2 * c0 <= c < 16 else [])
    return []
def e_buf(c, i): return WE + 16 + 4 * i if (PATH[0] == 'S' and c == 15) else WE + 8 * (c & 1) + 4 * i
def e_reads(c):
    if PATH[0] == 'S':
        cs = [] if c == 15 else ([14, 15] if c == 14 else [c])
        return [f"ds_read_b128 {vr(e_buf(x, i), 4)}, v{vER[0]} offset:{k*64}" for x in cs for i, k in enumerate(e_steps(x))]
    return [f"ds_read_b64_tr_b16 {vr(e_buf(c, i) + 2*e, 2)}, v{vER[e]} offset:{k*1024}" for i, k in enumerate(e_steps(c)) for e in range(2)]
def e_mfmas(c):
    out = []
    for i, k in enumerate(e_steps(c)):
        acc, w, x = vr(ACCE, 4), vr(e_buf(c, i), 4), vr(XF + 8 * k, 4)
        A, B = (x, w) if PATH[0] == 'V' else (w, x)
        out.append(f"v_mfma_f32_16x16x32_bf16 {acc}, {A}, {B}, {'0' if k == 0 else acc}")
    return out
def mfmas(sig, j):
    out = []
    for i in range(4):
        for tq in range(2):
            d = vr(ACC[sig >> 3] + 8 * i + 4 * tq, 4)
            c = "0" if ((sig & 7) == 0 and j == 0) else d
            out.append(f"v_mfma_f32_16x16x32_bf16 {d}, {vr(F[j] + 4*i, 4)}, {vr(XF + 16*(sig&7) + 8*j + 4*tq, 4)}, {c}")
    return out

def gelu_pair(base, j, T=vGT, pk=False):
    G = vr(base + 2 * j, 2); U = vr(base + 8 + 2 * j, 2); TT = vr(T, 2)
    g0, g1, u0, u1 = base + 2 * j, base + 2 * j + 1, base + 8 + 2 * j, base + 9 + 2 * j
    if pk:
        return [f"v_pk_mul_f32 {TT}, {G}, {G}",
                f"v_pk_fma_f32 {TT}, {TT}, s[{sC1}:{sC1+1}], {vr(vC0,2)} op_sel_hi:[1,1,0]",
                f"v_pk_mul_f32 {TT}, {TT}, {G}",
                f"v_exp_f32 v{T}, v{T}", f"v_exp_f32 v{T+1}, v{T+1}",
                f"v_pk_mul_f32 {G}, {G}, {U}",
                f"v_pk_add_f32 {TT}, {TT}, 1.0 op_sel_hi:[1,0]",
                f"v_rcp_f32 v{T}, v{T}", f"v_rcp_f32 v{T+1}, v{T+1}",
                f"v_pk_mul_f32 {G}, {G}, {TT}",
                f"v_cvt_pk_bf16_f32 v{base+j}, v{g0}, v{g1}"]
    return [f"v_mul_f32 v{T}, v{g0}, v{g0}", f"v_mul_f32 v{T+1}, v{g1}, v{g1}",
            f"v_fma_f32 v{T}, v{T}, s{sC1}, v{vC0}", f"v_fma_f32 v{T+1}, v{T+1}, s{sC1}, v{vC0}",
            f"v_mul_f32 v{T}, v{T}, v{g0}", f"v_mul_f32 v{T+1}, v{T+1}, v{g1}",
            f"v_exp_f32 v{T}, v{T}", f"v_exp_f32 v{T+1}, v{T+1}",
            f"v_mul_f32 v{g0}, v{g0}, v{u0}", f"v_add_f32 v{T}, 1.0, v{T}", f"v_add_f32 v{T+1}, 1.0, v{T+1}",
            f"v_rcp_f32 v{T}, v{T}", f"v_rcp_f32 v{T+1}, v{T+1}",
            f"v_mul_f32 v{g1}, v{g1}, v{u1}",
            f"v_mul_f32 v{g0}, v{g0}, v{T}", f"v_mul_f32 v{g1}, v{g1}, v{T+1}",
            f"v_cvt_pk_bf16_f32 v{base+j}, v{g0}, v{g1}"]
def to_frag(base):
    return [f"v_permlane16_swap_b32 v{base}, v{base+2}", f"v_permlane16_swap_b32 v{base+1}, v{base+3}"]

def cost(x):
    c = 0
    for l in x.strip().split('\n'):
        l = l.strip()
        if not l or l.startswith(';') or l.endswith(':'): continue
        c += 8 if l.startswith(('v_exp', 'v_rcp')) else (OPT.get('vmc', 16) if l.startswith('buffer_') else 4)
    return c

kvtok = {}
def kv_step(m):
    slot = (4 * m % NSLOT) * 2048
    if m == 0: x = f"s_mov_b32 m0, s{sKVM}\ns_nop 0\n"
    else: x = f"s_add_u32 s{sKVO}, s{sKVO}, 8192\ns_add_u32 m0, s{sKVM}, {slot}\ns_and_b32 s{sKVO}, s{sKVO}, 0xffff\n"
    return [x + f"buffer_load_dwordx4 v{vKVS}, {srd(SWS)}, s{sKVO} offen sc1 lds", f"buffer_load_dwordx4 v{vKVS}, {srd(SWS)}, s{sKVO} offen offset:1024 sc1 lds"]
KV_FIRST = 2
def first_loads():
    return [f"buffer_load_dwordx4 {vr(QA,4)}, v{vL16}, {srd(SWS)}, s{sQA} offen sc1\ns_xor_b32 s{sQA}, s{sQA}, 1024"] + kv_step(0) + \
           [f"buffer_load_dwordx4 {vr(QB,4)}, v{vL16}, {srd(SWS)}, s{sQA} offen sc1"] + kv_step(1)

def setup_queue(late=False):
    q = []
    def add(st, txt):
        for l in txt.strip().split('\n'): q.append((st, l.strip().replace('|', '\n')))
    add(11, f"""
    s_lshr_b32 s{sT[5]}, s{sW}, 2
    s_lshl_b32 s{sT[6]}, s{sT[5]}, 16
    v_add_u32 v{vKVS}, s{sT[6]}, v{vL16}
    s_and_b32 s{sT[3]}, s{sW}, 1
    s_mul_i32 s{sT[3]}, s{sT[3]}, {HALF}
    v_add_u32 v{vAK}, s{sT[3]}, v{vL16}
    v_add_u32 v{vAV}, s{sT[3]}, v{vPV}
    s_mul_i32 s{sT[3]}, s{sT[5]}, {HALF}
    s_and_b32 s{sT[6]}, s{sW}, 3
    s_lshl_b32 s{sT[7]}, s{sT[6]}, 11
    s_add_u32 s{sKVM}, s{sT[7]}, s{sT[3]}
    s_lshr_b32 s{sT[7]}, s2, 3
    s_add_u32 s{sT[6]}, s{sT[6]}, s{sT[7]}
    s_and_b32 s{sT[6]}, s{sT[6]}, 31
    s_lshl_b32 s{sKVO}, s{sT[6]}, 11
    s_add_u32 s{sQA}, s{sOO}, {WS_Q}
    s_xor_b32 s{sQA}, s{sQA}, 1024
    s_lshl1_add_u32 s{sGA}, s{sI}, s{sT[5]}
    s_lshl_b32 s{sGA}, s{sGA}, 7
    s_add_u32 s{sGA}, s{sGA}, {WS_G}
    v_and_b32 v{vG}, 31, v{L}
    v_lshlrev_b32 v{vG}, 2, v{vG}
    v_mov_b32 v{vIDX}, 0xdddddddd
    v_mov_b32 v{V2+1}, 0x3f803f80
    s_mov_b32 vcc_lo, 0x110000|s_mov_b32 vcc_hi, 0x110000|v_cndmask_b32 v{V2}, 0, v{V2+1}, vcc
    """)
    for r in range(V2 + 1, V2 + 12): add(11, f"v_mov_b32 v{r}, v{V2}")
    add(12, f"""
    v_add_u32 v{vDR0}, s{sRING}, v{vTRP}
    v_xor_b32 v{vDR1}, 64, v{vDR0}
    v_add_u32 v{vDS1}, 7168, v{vDS}
    s_lshr_b32 s{sT[6]}, s{sI}, 3
    s_lshl3_add_u32 s{sT[6]}, s{sT[6]}, s{sW}
    s_mul_i32 s{sT[6]}, s{sT[6]}, {14*16}
    s_and_b32 s{sT[7]}, s{sI}, 7
    s_lshl1_add_u32 s{sT[7]}, s{sT[7]}, s{sT[5]}
    s_add_u32 s{sT[6]}, s{sT[6]}, s{sT[7]}
    s_lshl_b32 s{sT[6]}, s{sT[6]}, 10
    s_add_u32 s{sT[6]}, s{sT[6]}, {WS_H}
    v_add_u32 v{vH0}, s{sT[6]}, v{vL16}
    v_xor_b32 v{vH1}, 0x400, v{vH0}
    v_lshlrev_b32 v{vF2}, 7, v{L}
    s_lshr_b32 s{sF2R}, s{sI}, 1
    s_lshl_b32 s{sF2R}, s{sF2R}, 9
    s_add_u32 s{sF2R}, s{sF2R}, {WS_F2}
    """)
    add(13, f"s_lshl_b32 s{sF2W}, s{sW}, 24\ns_add_u32 s{sF2W}, s{sF2W}, s{sF2}\nv_mov_b32 v{vONE}, 1")
    for r in range(9): add(13, f"v_mov_b32 v{OA+r}, 0")
    for r in range(9): add(14, f"v_mov_b32 v{OB+r}, 0")
    if OPT['vlate']:
        cut = [i for i, x in enumerate(q) if x[1].startswith(f"v_and_b32 v{vG}, 31")][0]
        if late: return [x[1] for x in q[cut:]]
        return q[:cut]
    return [] if late else q

cold = []
def s0_check(P):
    a(f"v_cmp_eq_u32 vcc, 0, v{vS0}\ns_cbranch_vccnz L_s0retry{P}\nL_s0done{P}:")
    cold.append(f"""
    L_s0retry{P}:
    s_mov_b32 s{sT[1]}, 0
    L_s0poll{P}:
    buffer_load_dword v{vS0}, v{vZ}, {srd(SDBG)}, 0 offen sc1
    s_add_u32 s{sT[1]}, s{sT[1]}, 1
    s_waitcnt vmcnt(0)
    v_cmp_eq_u32 vcc, 0, v{vS0}
    s_cbranch_vccz L_s0done{P}
    s_cmp_lt_u32 s{sT[1]}, {SPIN}
    s_cbranch_scc1 L_s0poll{P}
    s_branch L_s0done{P}
    """)
def s1_issue(P):
    a(f"s_cmp_lg_u32 s{sW}, 0\ns_cbranch_scc1 L_nopoll0{P}")
    if P in 'GSC': s0_check(P)
    a(f"""
    s_mov_b32 s{sT[1]}, {WS_F1}
    v_lshlrev_b32 v{t1}, 7, v{L}
    buffer_load_dword v{t0}, v{t1}, {srd(SWS)}, s{sT[1]} offen sc1
    L_nopoll0{P}:
    """)
    a.vm -= 1
def s1_check(P):
    a(f"""
    s_cmp_lg_u32 s{sW}, 0
    s_cbranch_scc1 L_s1done{P}
    s_mov_b32 s{sT[0]}, 0
    L_s1poll{P}:
    s_waitcnt vmcnt(0)
    v_cmp_ne_u32 vcc, 1, v{t0}
    s_cbranch_vccz L_s1done{P}
    {'s_sleep ' + str(OPT['s1slp']) if OPT['s1slp'] else ''}
    s_mov_b64 exec, vcc
    buffer_load_dword v{t0}, v{t1}, {srd(SWS)}, s{sT[1]} offen sc1
    s_mov_b64 exec, -1
    s_add_u32 s{sT[0]}, s{sT[0]}, 1
    s_cmp_lt_u32 s{sT[0]}, {SPIN}
    s_cbranch_scc1 L_s1poll{P}
    s_waitcnt vmcnt(0)
    L_s1done{P}:
    """)
    a.vm -= 1

def proj_path(P):
    tok = {}
    PATH[0] = P
    S1 = OPT['s1']
    sched = {s: [s + 2] for s in range(6)}
    ISQ = P in 'KVP'
    PB = OPT['pbq0'] if ISQ else OPT['pb']
    QF = OPT['qf']
    sched.update({6: [8, 9], 7: [10, 11], 8: [12, 13], 9: [14, 15]}); cover = {8: 9, 10: 11, 12: 15}
    if ISQ and OPT['qmode'] == 0:
        del sched[8], sched[9]
        sched.update({10: [12, 13], 11: [14, 15]}); cover = {8: 9, 10: 11, 12: 13, 14: 15}
    bars = set(range(8)) | set(cover) | {S1}
    if OPT['gb14']: bars |= {14}
    if OPT['gbar'] and not ISQ: bars |= set(range(8, 16))
    if ISQ: bars |= {QF} | ({9} if OPT['qmode'] else set()) | (set(range(10, 16)) if OPT['qbar'] else set())
    def dma_groups(sg):
        d = dma_ops(sg, P)
        if ISQ and sg == OPT['exs']:
            d.insert(1, f"""
            s_add_u32 m0, s{sMX}, {EX}
            s_nop 0
            buffer_load_dwordx4 v{vES}, {srd(SEX)}, s{sEXO} offen lds
            buffer_load_dwordx4 v{vES}, {srd(SEX)}, s{sEXO} offen offset:1024 lds
            """)
        if P == 'S' and sg == OPT['exs']:
            d.insert(1, f"s_mov_b32 m0, {GW}\ns_nop 0\nbuffer_load_dwordx4 v{vES}, {srd(SEX)}, 0 offen lds")
        return [(x, sg if k == len(d) - 1 else None) for k, x in enumerate(d)]
    def emit(it):
        if callable(it): return it()
        a(it[0])
        if it[1] is not None: tok[it[1]] = a.lastvm()
    tok[0] = a.lastvm()
    if ISQ: mk_srd(SWQ, 6, 512 * 1024)
    if not OPT['spf']:
        for it in dma_groups(1): emit(it)
    if ISQ: mk_srd(SWG, 16, 512 * PG); mk_srd(SWU, 18, 512 * PG)
    if P in 'KVS': mk_srd(SEX, {'K': 8, 'V': 10, 'S': 22}[P], 1024 if P == 'S' else 16384)
    if P == 'P': a(f"s_cmp_lt_u32 s{sQ}, 2\ns_cselect_b64 s[{SEX}:{SEX+1}], s[8:9], s[10:11]\ns_mov_b32 s{SEX+2}, 16384\ns_mov_b32 s{SEX+3}, 0x20000")
    setup_path(P)
    if OPT['grp'] == 5: a("s_mov_b32 s6, s14\ns_mov_b32 s8, s5")
    stamp(3, 5)
    if OPT['spf']:
        for it in dma_groups(1): emit(it)
    stamp(4, 5)
    if P == 'C':
        ctok = a(f"v_lshlrev_b32 v{t0}, 7, v{L}\ns_mov_b32 s{sT[1]}, {WS_F1}\nbuffer_store_dword v{vZ}, v{t0}, {srd(SWS)}, s{sT[1]} offen sc1")
    win = {c: [] for c in range(33)}
    box = {}; front = {}; pre8 = []; lvl = [3]
    def usable(c):
        return c % 2 == 0 or ((c + 1) // 2) not in bars
    def nxt(c):
        while not usable(c): c += 1
        return c
    if not ISQ:
        gq = []
        for b in range(2):
            for j in range(4): gq += gelu_pair(ACC[0] + 16 * b, j)
            gq += to_frag(ACC[0] + 16 * b)
            if b == 0: n0 = len(gq)
        npre = 17 * (PB - 1) if PB else 0
        pre8 += [(x, None) for j in range(max(PB - 1, 0)) for x in gelu_pair(ACC[0], j, pk=OPT.get('pbk', 0))]
        gq = gq[npre:]; n0 -= npre
        ws = [c for c in range(16, OPT['gend'] + 1) if usable(c)]
        ndma = {16: 2, 17: 2, 18: 4} if 9 not in bars else {16: 4, 18: 4}
        tot = len(gq) + OPT['dwt'] * 8
        done = 0; accw = 0
        for k, c in enumerate(ws):
            accw += OPT['dwt'] * ndma.get(c, 0)
            upto = max(done, tot * (k + 1) // len(ws) - accw)
            win[c] += [(x, None) for x in gq[done:upto]]
            if done < n0 <= upto: c0 = c
            done = upto
        assert done == len(gq)
        for b in range(OPT['nearly']):
            c = nxt(max(OPT[f'h{b}w'], c0 if b == 0 else ws[-1]))
            win[c].append((f"s_sub_u32 s{sT[2]}, s{sHO}, {65536 - 16384*b}\nbuffer_store_dwordx4 {vr(ACC[0]+16*b,4)}, v{vST}, {srd(SWS)}, s{sT[2]} offen sc1", None))
    else:
        qa = [f"s_add_u32 s{sT[8]}, s{sT[4]}, {WS_Q + 4096}\ns_add_u32 s{sT[4]}, s{sT[4]}, {WS_Q}"]
        if P == 'K': qa += [f"v_mul_f32 v{ACCE+r}, {fbits(QS):#x}, v{ACCE+r}" for r in range(4)]
        sts = []
        if P in 'KV':
            qa += [f"v_cvt_pk_bf16_f32 v{vGT}, v{ACCE}, v{ACCE+1}", f"v_cvt_pk_bf16_f32 v{vGT+1}, v{ACCE+2}, v{ACCE+3}"]
            sts.append(f"buffer_store_dwordx2 {vr(vGT,2)}, v{vSA}, {srd(SWS)}, s{sEXW} offen sc1")
        if P == 'P':
            sts.append(f"s_andn2_b32 s{sT[0]}, s{sF2}, 127\nv_lshlrev_b32 v{t2}, 2, v{L}\ns_mov_b32 exec_hi, 0\nbuffer_store_dword v{vZ}, v{t2}, {srd(SWS)}, s{sT[0]} offen sc1\ns_mov_b32 exec_hi, -1")
        def qcv(i): return [f"v_cvt_pk_bf16_f32 v{ACC[0]+8*i+j}, v{ACC[0]+8*i+2*j}, v{ACC[0]+8*i+2*j+1}" for j in range(4)]
        def qst(i): return to_frag(ACC[0] + 8 * i) + [f"v_and_b32 v{ACC[0]+8*i}, -2, v{ACC[0]+8*i}\nbuffer_store_dwordx4 {vr(ACC[0]+8*i,4)}, v{vST}, {srd(SWS)}, s{sT[8 if i & 1 else 4]} offen offset:{1024*(i>>1)} sc1"]
        mark = [lambda: box.update(q=a.lastvm())]
        T = lambda l: [(x, None) for x in l]
        if OPT['qmode'] == 0 and PB:
            pre8 += T(qa + qcv(0) + qcv(1) + qcv(2) + qcv(3) + [x for i in range(4) for x in qst(i)[:2]])
            if OPT.get('pbq'): pre8 += T(sts + [qst(i)[2] for i in range(4)]) + mark
            else: win[16] += T(sts + [qst(i)[2] for i in range(2)]); win[17] += T([qst(i)[2] for i in range(2, 4)]) + mark
        elif OPT['qmode'] == 0:
            win[16] += T(qa + sts + qcv(0) + qcv(1) + qst(0) + qst(1)); win[17] += T(qcv(2) + qcv(3) + qst(2) + qst(3)) + mark
        elif OPT['qmode'] == 1:
            win[16] += T(qa + qcv(0) + qcv(1)); win[18] += T(sts + qst(0) + qcv(2)); win[20] += T(qcv(3) + qst(1) + qst(2) + qst(3)) + mark
        else:
            win[16] += T(qa + qcv(0) + qcv(1) + qcv(2) + qcv(3)); win[18] += T(sts + qst(0) + qst(1) + qst(2) + qst(3)) + mark
        def qflag():
            assert a.vm_done > box['s0']
            if P != 'P': s0_check(P)
            a(f"""
            s_lshl4_add_u32 s{sT[0]}, s{sQ}, s{sTI}
            s_lshl_b32 s{sT[0]}, s{sT[0]}, 7
            s_add_u32 s{sT[0]}, s{sT[0]}, {WS_F1}
            s_lshl_b32 s{sT[1]}, s{sW}, 24
            s_add_u32 s{sT[0]}, s{sT[0]}, s{sT[1]}
            v_mov_b32 v{t1}, 1
            s_mov_b64 exec, 1
            buffer_store_dword v{t1}, v{vZ}, {srd(SWS)}, s{sT[0]} offen sc1
            s_mov_b64 exec, -1
            """)
        if P != 'P': box['flag'] = qflag
    if P == 'S':
        win[16] = [(x, None) for x in (f"v_mul_f32 v{t2}, {fbits(-math.log2(math.e)):#x}, v{ACCE}", f"v_exp_f32 v{t2}, v{t2}", f"v_add_f32 v{t2}, 1.0, v{t2}", f"v_rcp_f32 v{t2}, v{t2}")] + win[16]
        win[20].append((f"s_mov_b64 exec, 0xffff\nbuffer_store_dword v{t2}, v{vSA}, {srd(SWS)}, s{sEXW} offen sc1\ns_mov_b64 exec, -1", None))
    queue = setup_queue()
    ws = [c for c in range(21 if ISQ else 20, 2 * S1 - 1) if usable(c)]
    for k, c in enumerate(ws):
        left = [x for x in queue if 2 * x[0] - 2 <= c]
        take = min(len(left), -(-len(queue) // (len(ws) - k)))
        win[c] += [(x[1], None) for x in left[:take]]; queue = queue[take:]
    assert not queue
    win[16].insert(0, (f"v_subrev_u32 v{vXR[0]}, {WR}, v{vWR[0]}\nv_subrev_u32 v{vXR[1]}, {WR}, v{vWR[1]}\nv_add_u32 v{vXR[2]}, {WR}, v{vWR[0]}\nv_add_u32 v{vXR[3]}, {WR}, v{vWR[1]}", None))

    def cluster(c, what='mr'):
        M = mfmas(c >> 1, c & 1) if (c >= 0 and 'm' in what) else []
        em = e_mfmas(c) if M else []
        for i, x in enumerate(em): M.insert(1 + (8 // len(em) + 1) * i, x)
        d = c + 1
        R = []
        if d < 32 and 'r' in what:
            if d < 16: R += x_reads(d >> 1, d & 1)
            for i in range(4): R += w_reads(d >> 1, d & 1, i)
            R += e_reads(d)
        a.wait(a.lastlg())
        if M and not OPT['lad']: a("s_setprio 2")
        n = max(len(M), 1); k = 0
        last = n - 1 if (c & 1 or ((c >> 1) + 1) not in bars) else n - 2
        if M: last = min(last, n - 1 - OPT['rq' if ISQ else 'rg'] if c >= 16 else n - 1 - OPT['r1'])
        for i in range(n):
            if M: a(M[i])
            want = len(R) if i >= last else -(-len(R) * (i + 1) // (last + 1))
            while k < want: a(R[k]); k += 1
        if M and not OPT['lad']: a("s_setprio 0")
        if M and OPT['lad'] and lvl[0] > 0 and not (c % 2 == 0 and (c >> 1) + 1 in bars and not (c == 14 and PB)):
            lvl[0] -= 1; a(f"s_setprio {lvl[0]}")

    for sig in range(16):
        if sig == 8 and PB:
            cluster(15, 'm')
            for it in pre8: emit(it)
        if sig in bars:
            if sig in cover or sig < 8: a.wait(tok[cover.get(sig, sig)])
            if ISQ and sig == QF: a.wait(box['q'])
            if sig == S1 and P != 'P': s1_check(P)
            if OPT['lad']: lvl[0] = 3; a("s_setprio 3")
            a("s_barrier")
            if sig == QF and 'flag' in box: box['flag']()
        if sig == 1: stamp(1)
        if sig == 8: stamp(2)
        if sig < 11: stamp(sig, 1)
        if sig < 5: stamp(5 + sig, 5)
        if sig >= 6: stamp(sig - 6, 2)
        D = []
        if P == 'C' and sig == 2:
            assert a.vm_done >= ctok[1]
            win[4].append((f"v_mov_b32 v{t0}, 1\ns_mov_b64 exec, 1\nbuffer_store_dword v{t0}, v{vZ}, {srd(SDBG)}, 0 offen sc1\ns_mov_b64 exec, -1", None))
        for sg in sched.get(sig, []): D += dma_groups(sg)
        if sig == S1: D += [(x, None) for x in first_loads()]
        if sig == (7 if ISQ else 9) and P != 'P':
            def s0_load():
                if not ISQ:
                    a(f"s_cmp_lg_u32 s{sW}, 0\ns_cbranch_scc1 L_nos0l{P}\nbuffer_load_dword v{vS0}, v{vZ}, {srd(SDBG)}, 0 offen sc1\nL_nos0l{P}:")
                    a.vm -= 1
                else:
                    a(f"buffer_load_dword v{vS0}, v{vZ}, {srd(SDBG)}, 0 offen sc1")
                box['s0'] = a.vm
            D.insert(len(D) - 1, s0_load)
        head, mid, tail = [], D, []
        if sig < OPT['late']: mid, tail = [], D
        elif (sig + 1) not in bars: mid, tail = D[:len(D)//2], D[len(D)//2:]
        elif sig in bars and len(D) >= 4: head, mid = D[:OPT['na']], D[OPT['na']:]
        for it in head: emit(it)
        cluster(2 * sig - 1, 'r' if (sig == 8 and PB) else 'mr')
        if sig == S1 - 1 and P != 'P' and OPT['s1w'] == 30:
            assert a.vm_done > box['s0']
            s1_issue(P)
        for it in front.get(2 * sig, []) + mid + win[2 * sig]: emit(it)
        cluster(2 * sig)
        for it in front.get(2 * sig + 1, []) + tail + win[2 * sig + 1]: emit(it)
    if P != 'P' and OPT['s1w'] == 31: s1_issue(P)
    a.wait(a.lastlg())
    assert not win[32]

setup_common()
if OPT['tlb']:
    a(f"s_cmp_lg_u32 s{sW}, 6\ns_cbranch_scc1 L_notlb")
    if OPT['tlb'] == 1:
        a(f"""
        v_lshlrev_b32 v{t0}, 21, v{L}
        s_mov_b32 s{sT[0]}, 0x80000
        s_mov_b64 exec, 63
        buffer_load_dword v32, v{t0}, {srd(SWS)}, s{sT[0]} offen
        s_mov_b64 exec, 1
        buffer_load_dword v33, v{vZ}, {srd(SWD)}, 0 offen
        buffer_load_dword v34, v{vZ}, {srd(SWO)}, 0 offen
        buffer_load_dword v35, v{vZ}, {srd(SOUT)}, 0 offen
        s_mov_b64 exec, -1
        """)
    else:
        a(f"""
        s_lshr_b32 s{sT[0]}, s2, 3
        s_lshl_b32 s{sT[0]}, s{sT[0]}, 16
        v_lshlrev_b32 v{t0}, 21, v{L}
        s_mov_b64 exec, 63
        buffer_load_dword v32, v{t0}, {srd(SWS)}, s{sT[0]} offen
        s_mov_b64 exec, 1
        v_mov_b32 v{t0}, s{sT[0]}
        v_min_u32 v{t1}, {1792*1024 - 4}, v{t0}
        global_load_dword v33, v{t1}, s[20:21]
        v_min_u32 v{t1}, {512*1024 - 4}, v{t0}
        global_load_dword v34, v{t1}, s[12:13]
        buffer_load_dword v35, v{t0}, {srd(SOUT)}, 0 offen
        s_mov_b64 exec, -1
        """)
    a("L_notlb:")
dispatch()
proj_path('G')
a("L_join:")
a.forget()

JE = OPT['jearly'] and OPT['s1'] == 16
if not JE:
    for m in mfmas(15, 1): a(m)
    a("s_setprio 0")
stamp(3); stamp(10, 2)
def gelu_chunk(k):
    b, jp = k >> 1, k & 1
    g0 = gelu_pair(ACC[1] + 16 * b, 2 * jp, vGT, pk=OPT['pk2']); g1 = gelu_pair(ACC[1] + 16 * b, 2 * jp + 1, t2, pk=OPT['pk2'])
    for x, y in zip(g0, g1):
        a(x); a(y)
    if k == 2:
        for x in to_frag(ACC[1]): a(x)
for k in range(OPT['jlate']): gelu_chunk(k)
stamp(5, 3)
if OPT['s1'] == 16:
    s1_check('J')
    stamp(6, 3)
    a("s_barrier")
    stamp(7, 3)
    fl = first_loads()
    if JE:
        nfirst = OPT['jearly'] - 1
        for x in fl[:nfirst]: a(x)
        for m in mfmas(15, 1): a(m)
        fl = fl[nfirst:]
    for x in fl: a(x)
stamp(4); stamp(8, 3)
for k in range(OPT['jlate'], 4): gelu_chunk(k)
for x in to_frag(ACC[1] + 16): a(x)
for x in setup_queue(True): a(x)
a(f"s_mov_b32 s{sT[8]}, 0xffff\ns_mov_b32 s{sT[9]}, 0xffff")
stamp(9, 3)
a.wait_vm0()
a("s_barrier")
stamp(5); stamp(10, 3)

def qk(S, Q): return f"v_mfma_f32_32x32x16_bf16 {vr(S,16)}, {vr(KF,4)}, {vr(Q,4)}, 0"
def pv(O, V, S): return f"v_smfmac_f32_32x32x32_bf16 {vr(O,16)}, {vr(V,4)}, {vr(S,8)}, v{vIDX}"
NT, B1, B2 = 32, 8, OPT['b2']
def rec(t): return (t % NSLOT) * 2048
def rdK(t): return a(f"ds_read_b128 {vr(KF,4)}, v{vAK} offset:{rec(t)}")
def rdV(t2, t1):
    a(f"s_mov_b64 exec, s[{sT[8]}:{sT[9]}]")
    if t2 is not None: a(f"ds_read_b128 {vr(V2,4)}, v{vAV} offset:{rec(t2) + 1536}")
    if t1 is not None: a(f"ds_read_b128 {vr(V1[t1&1],4)}, v{vAV} offset:{rec(t1) + 1024}")
    a("s_mov_b64 exec, -1")
    return a.lastlg()
wtok, htok, rtok, box = {}, {}, {}, {}
m0own = [None]; wstart = set()
def w_off(u): return sR[u & 3] if u < 14 else sWOF
def w_load_a(u):
    a(f"s_add_u32 m0, s{sRING}, {(u & 3) * 2048}"); m0own[0] = ('w', u); wstart.add(u)
    assert u == 0 or (u - 1) in wtok
    if 0 < u < 14: a(f"s_sub_u32 s{sR[u&3]}, s{sR[(u-1)&3]}, 16384\ns_cselect_b32 s{sR[u&3]}, {13*16384}, s{sR[u&3]}")
    elif u == 14: a(f"s_lshl_b32 s{sWOF}, s{sU}, 14")
    elif u > 14: a(f"s_add_u32 s{sWOF}, s{sWOF}, 16384\ns_and_b32 s{sWOF}, s{sWOF}, 0xffff")
    a(f"buffer_load_dwordx4 v{vDS}, {srd(SWD if u < 14 else SWO)}, s{w_off(u)} offen lds")
def w_load_b(u):
    if m0own[0] != ('w', u):
        a(f"s_add_u32 m0, s{sRING}, {(u & 3) * 2048}"); m0own[0] = ('w', u)
    wtok[u] = a(f"buffer_load_dwordx4 v{vDS1}, {srd(SWD if u < 14 else SWO)}, s{w_off(u)} offen offset:1024 lds")
def h_load_a(u):
    assert u in wstart and (u + 4) not in wstart
    a(f"buffer_load_dwordx4 {vr(HF[u&3],4)}, v{vH0}, {srd(SWS)}, s{sR[u&3]} offen sc1")
def h_load_b(u):
    assert (u + 4) not in wstart
    htok[u] = a(f"buffer_load_dwordx4 {vr(HF[u&3]+4,4)}, v{vH1}, {srd(SWS)}, s{sR[u&3]} offen sc1")
def w_read(u, b):
    if b == 0: a.wait(wtok[u], htok[u])
    for e in range(2):
        rtok[u, b] = a(f"ds_read_b64_tr_b16 {vr(WF[u&1] + 4*b + 2*e, 2)}, v{(vDR0, vDR1)[b]} offset:{(u & 3) * 2048 + e*512}")
def d_mfma(u, k):
    tb, b = k >> 1, k & 1
    a.wait(rtok[u, 1])
    d = vr(DACC + 32 * tb + 16 * b, 16)
    a(f"v_mfma_f32_32x32x16_bf16 {d}, {vr(WF[u&1]+4*b,4)}, {vr(HF[u&3]+4*tb,4)}, {'0' if u == 0 else d}")

if OPT.get('x_now'):
    def w_load_a(u): pass
    def w_load_b(u): wtok[u] = None
if OPT.get('x_noh'):
    def h_load_a(u): pass
    def h_load_b(u): htok[u] = None
if OPT.get('x_noread'):
    def w_read(u, b): rtok[u, b] = None
ev, mf = {}, {}
SNAP = OPT.get('snap', 1)
B1P = 32 * (B1 - 1) + 11
EV, EVA, EK, EKA = OPT.get('ev', 5), OPT.get('eva', 0), OPT.get('ek', 11), OPT.get('eka', 0)
busy = {32 * t + o for t in range(NT) for o in (EV, EK, 18)}
def nextpos(p):
    while SNAP and (p & 15) not in (2, 5, 8, 11, 14): p += 1
    return p
def at(pos, f, limit=None):
    p = nextpos(pos)
    while SNAP and limit is not None and p in busy and nextpos(p + 1) <= limit: p = nextpos(p + 1)
    busy.add(p)
    ev.setdefault(p, []).append(f)
    return p
def h_store(b): box['h'] = a((f"s_add_u32 s{sHO}, s{sHO}, 16384\n" if b else "") + f"buffer_store_dwordx4 {vr(ACC[1]+16*b,4)}, v{vST}, {srd(SWS)}, s{sHO} offen sc1")
def late_store(k):
    a(f"""
    s_cmp_eq_u32 s{sU}, 0
    s_cbranch_scc1 L_nols{k}
    s_sub_u32 s{sT[2]}, s{sHO}, {65536 - 16384*k}
    buffer_store_dwordx4 {vr(ACC[0]+16*k,4)}, v{vST}, {srd(SWS)}, s{sT[2]} offen sc1
    L_nols{k}:
    """)
    a.vm -= 1
pp = OPT.get('p_st', 1); STS = OPT.get('p_sts', 1)
for k in range(OPT['nearly'], 2):
    pp = at(pp, lambda k=k: late_store(k), pp + 12) + STS
pp = at(pp, lambda: h_store(0), pp + 12) + STS
pp = at(pp, lambda: h_store(1), pp + 12)
assert pp < B1P
def kv_emit(m, i):
    if i == 0: m0own[0] = ('kv', m)
    if m0own[0] != ('kv', m):
        a(f"s_add_u32 m0, s{sKVM}, {(4 * m % NSLOT) * 2048}"); m0own[0] = ('kv', m)
    kvtok[m] = a(kv_step(m)[i])
for m in range(KV_FIRST, 8):
    p = OPT['p_kv'] + OPT['p_kvs'] * (m - KV_FIRST) if m < 6 else OPT['p_kv2'] + 20 * (m - 6)
    p = at(p, lambda m=m: kv_emit(m, 0), p + 8)
    at(p + 1, lambda m=m: kv_emit(m, 1), p + 9)
assert OPT['p_kv2'] > B1P
def h_flag():
    a(f"s_mov_b64 exec, 1\nbuffer_store_dword v{vONE}, v{vZ}, {srd(SWS)}, s{sF2W} offen sc1\ns_mov_b64 exec, -1")
at(B1P + 1, h_flag)
def f2_load():
    box['f2'] = a(f"s_mov_b64 exec, 15\nbuffer_load_dwordx4 {vr(F2D,4)}, v{vF2}, {srd(SWS)}, s{sF2R} offen sc1")
    a("s_mov_b64 exec, -1")
at(OPT['p_f2'], f2_load, OPT['p_f2'] + 8)
def f2_check():
    a.wait(box['f2'])
    test = f"v_min3_u32 v{F2D}, v{F2D}, v{F2D+1}, v{F2D+2}\nv_min_u32 v{F2D}, v{F2D}, v{F2D+3}\nv_cmp_ne_u32 vcc, 1, v{F2D}"
    a(f"s_mov_b64 exec, 15\n{test}\ns_cbranch_vccnz L_s2retry\nL_s2done:\ns_mov_b64 exec, -1")
    cold.append(f"""
    L_s2retry:
    s_mov_b32 s{sT[1]}, 0
    L_s2poll:
    buffer_load_dwordx4 {vr(F2D,4)}, v{vF2}, {srd(SWS)}, s{sF2R} offen sc1
    s_add_u32 s{sT[1]}, s{sT[1]}, 1
    s_waitcnt vmcnt(0)
    {test}
    s_cbranch_vccz L_s2done
    s_sleep {OPT.get('slp', 6)}
    s_cmp_lt_u32 s{sT[1]}, {SPIN}
    s_cbranch_scc1 L_s2poll
    s_branch L_s2done
    """)
    a(f"buffer_load_dword v{vG}, v{vG}, {srd(SWS)}, s{sGA} offen sc1")
    stamp(9)
PCHK = at(OPT['p_chk'], f2_check, OPT['p_chk'] + 8)
D0, DE = OPT['d0'], OPT['dend']
allsl = [32 * t + o for t in range(D0, DE) for o in (8, 14, 24, 30)]
assert len(allsl) >= 56
slots = [allsl[(i * len(allsl)) // 56] for i in range(56)]
for u in range(14):
    rp = slots[0] - 16 if u == 0 else slots[4 * u - 2] + 1
    lim = slots[4 * u] - 9
    p = at(rp, lambda u=u: w_read(u, 0), lim - 3); at(p + 1, lambda u=u: w_read(u, 1), lim)
    for k in range(4): mf[slots[4 * u + k]] = (lambda u=u, k=k: d_mfma(u, k))
for u in range(18):
    pw = OPT['p_fill'] + OPT['p_fills'] * u if u < 4 else slots[4 * (u - 4)] + 1
    p = at(pw, lambda u=u: w_load_a(u), pw + 8); p = at(p + 1, lambda u=u: w_load_b(u), p + 8)
    if u < 3:
        ph = PCHK + 1 + OPT.get('p_hs', 13) * u
        p = at(ph, lambda u=u: h_load_a(u), ph + 4); at(p + 1, lambda u=u: h_load_b(u), p + 5)
    if 4 <= u < 15:
        p = at(p + 1, lambda u=u: h_load_a(u - 1), p + 8); at(p + 1, lambda u=u: h_load_b(u - 1), p + 8)
for lo, hi, fr in ((0, B1P, (OPT.get('la1', 30), OPT.get('la2', 70), OPT.get('la3', 94))), (B1P, 32 * B2, (OPT.get('lb1', 35), OPT.get('lb2', 80), OPT.get('lb3', 96))),
                   (32 * B2, 32 * NT, (OPT.get('lc1', 60), OPT.get('lc2', 87), OPT.get('lc3', 96)))):
    for k in range(3): at(lo + ((hi - lo) * fr[k]) // 100, lambda k=k: a(f"s_setprio {2-k}"))

def merge_addr():
    a(f"""
    s_mul_i32 s{sT[0]}, s{sW}, 2304
    s_add_u32 s{sT[0]}, s{sT[0]}, {MERGE}
    s_xor_b32 s{sT[1]}, s{sW}, 1
    s_mul_i32 s{sT[1]}, s{sT[1]}, 2304
    s_add_u32 s{sT[1]}, s{sT[1]}, {MERGE}
    v_add_u32 v{t0}, s{sT[0]}, v{vL16}
    v_add_u32 v{t1}, s{sT[1]}, v{vL16}
    v_lshl_add_u32 v{t2}, v{L}, 2, s{sT[0]}
    v_lshl_add_u32 v{t3}, v{L}, 2, s{sT[1]}
    s_add_u32 s{sOO}, s{sOO}, {WS_O}
    s_mov_b32 s{sT[6]}, {fbits(2.0**-60):#x}
    s_mov_b32 s{sT[7]}, {fbits(2.0**60) - fbits(2.0**-60):#x}
    """)
at(32 * NT - 11, merge_addr)
at(32 * NT - 8, lambda: a(f"ds_write_b128 v{t0}, {vr(OA,4)}\nds_write_b128 v{t0}, {vr(OA+4,4)} offset:1024\nds_write_b32 v{t2}, v{OA+8} offset:2048"))

a("s_setprio 3")
tK = rdK(0); tV = rdV(None, 0)
a.wait(tK)
a(qk(SA, QA))
for t in range(NT):
    if t == B2:
        a.wait(kvtok[7]); a("s_barrier\ns_setprio 3"); stamp(0)
    nx = t + 1 if t + 1 < NT else None
    for ph, (S, So, O, Oo, Qo) in enumerate(((SA, SB, OA, OB, QB), (SB, SA, OB, OA, QA))):
        for e in range(16):
            pos = 32 * t + 16 * ph + e
            def own(after):
                global tV, tK
                if ph == 0 and (e, after) == (EV, EVA):
                    if t == 0: a.wait(tV)
                    tV = rdV(t, nx if t != B1 - 1 else None)
                if ph == 0 and (e, after) == (EK, EKA) and nx and t != B1 - 1: tK = rdK(nx)
            for f in ev.pop(pos, []): f()
            own(0)
            if pos == B1P:
                a.wait(kvtok[5], box['h'], tV); a("s_barrier\ns_setprio 3"); stamp(6)
                tK = rdK(nx); tV = rdV(None, nx)
            if e == 2:
                if ph == 1: a.wait(tV, None if OPT.get('w2') else tK)
                if t > 0 or ph == 1: a(pv(Oo, V2, So + 8))
            if (e == 5 and not (t == 0 and ph == 0)) or (t == 0 and ph == 0 and e == 0):
                if ph == 1: a.wait(tK)
                if ph == 0 or nx: a(qk(So, Qo))
            if e == 11: a(pv(O, V1[t & 1], S))
            if pos in mf: mf.pop(pos)()
            own(1)
            a(f"v_exp_f32 v{S+e}, v{S+e}")
assert not mf
assert not ev, sorted(ev)
if OPT['woe']: a.wait(wtok[17])
a.wait_lg0()
a(pv(OB, V2, SB + 8))
stamp(7); stamp(0, 4)
a("s_barrier")
stamp(1, 4)
a(f"""
ds_read_b32 v{SA+8}, v{t3} offset:2048
ds_read_b128 {vr(SA,4)}, v{t1}
ds_read_b128 {vr(SA+4,4)}, v{t1} offset:1024
s_lshl_b32 s{sT[3]}, s{sW}, 13
s_xor_b32 s{sT[2]}, s{sT[3]}, 0x8000
v_add_u32 v24, s{sT[2]}, v{vL16}
v_add_u32 v26, s{sT[3]}, v{vL16}
s_waitcnt lgkmcnt(2)
v_add_f32 v{OB+8}, v{OB+8}, v{SA+8}
v_rcp_f32 v{t0}, v{OB+8}
""")
a.wait_lg0()
OS = 128
for j in range(2): a(f"v_pk_add_f32 {vr(OB+2*j,2)}, {vr(OB+2*j,2)}, {vr(SA+2*j,2)}")
a(f"v_mul_f32 v{t0}, v{t0}, v{vG}")
for j in range(2, 4): a(f"v_pk_add_f32 {vr(OB+2*j,2)}, {vr(OB+2*j,2)}, {vr(SA+2*j,2)}")
for j in range(4): a(f"v_pk_mul_f32 {vr(OB+2*j,2)}, {vr(OB+2*j,2)}, {vr(t0,2)} op_sel_hi:[1,0]")
a(f"""
v_pk_add_f32 {vr(t2,2)}, {vr(OB,2)}, {vr(OB+2,2)}
v_pk_add_f32 {vr(t0,2)}, {vr(OB+4,2)}, {vr(OB+6,2)}
v_cvt_pk_bf16_f32 v{OS}, v{OB}, v{OB+1}
v_pk_add_f32 {vr(t2,2)}, {vr(t2,2)}, {vr(t0,2)}
v_cvt_pk_bf16_f32 v{OS+1}, v{OB+2}, v{OB+3}
v_add_f32 v{t2}, v{t2}, v{t3}
v_cvt_pk_bf16_f32 v{OS+2}, v{OB+4}, v{OB+5}
v_fma_f32 v{t2}, v{t2}, 0, v{OB+8}
v_cvt_pk_bf16_f32 v{OS+3}, v{OB+6}, v{OB+7}
v_subrev_u32 v{t2}, s{sT[6]}, v{t2}
v_or_b32 v{OS}, 1, v{OS}
v_cmp_lt_u32 vcc, s{sT[7]}, v{t2}
""")
if OPT['force_fb']: a("s_mov_b64 vcc, -1")
a(f"""
s_cbranch_vccnz L_true_max
L_norm:
buffer_store_dwordx4 {vr(OS,4)}, v{vL16}, {srd(SWS)}, s{sOO} offen sc1
""")
stamp(8); stamp(2, 4)

OF, WOF, XT = 32, 176, 96
vO1 = 27
fill = f"""
s_and_b32 s{sT[1]}, s{sW}, 3
s_lshl_b32 s{sT[2]}, s{sT[1]}, 13
s_add_u32 s{sT[2]}, s{sT[2]}, {RING}
v_add_u32 v28, s{sT[2]}, v{vTRP}
v_xor_b32 v29, 64, v28
v_sub_f32 v{vG}, 1.0, v{vG}
v_add_u32 v{vO1}, 0x4000, v{vL16}
s_lshr_b32 s{sT[9]}, s{sW}, 2
s_lshl1_add_u32 s{sT[0]}, s{sI}, s{sT[9]}
s_lshl3_add_u32 s{sT[0]}, s{sT[0]}, s{sT[1]}
s_lshl_b32 s{sT[0]}, s{sT[0]}, 12
s_add_u32 s{sT[0]}, s{sT[0]}, {WS_O}
s_lshl4_add_u32 s{sT[8]}, s{sT[9]}, s{sT[1]}
s_lshl_b32 s{sT[8]}, s{sT[8]}, 11
""".strip().split('\n')
for v in range(4):
    fill += f"s_add_u32 s{sT[1]}, s{sU}, {v}\ns_and_b32 s{sT[1]}, s{sT[1]}, 3\ns_lshl_b32 s{sT[1]}, s{sT[1]}, 10\ns_add_u32 s{sT[4+v]}, s{sT[0]}, s{sT[1]}".split('\n')
fill += f"""
v_and_b32 v{t0}, 31, v{L}
v_lshrrev_b32 v{t1}, 5, v{L}
v_and_b32 v{t2}, 7, v{L}
v_xor_b32 v{t1}, v{t1}, v{t2}
v_lshlrev_b32 v{t1}, 4, v{t1}
v_lshl_add_u32 v{t0}, v{t0}, 8, v{t1}
v_add_u32 v9, s{sT[3]}, v{t0}
v_xor_b32 v10, 32, v9
v_xor_b32 v11, 64, v9
v_xor_b32 v12, 0x60, v9
v_lshrrev_b32 v{t0}, 3, v{L}
v_lshlrev_b32 v{t1}, 1, v{t2}
v_xor_b32 v{t1}, v{t1}, v{t0}
v_lshlrev_b32 v{t1}, 4, v{t1}
v_lshl_add_u32 v{t1}, v{t0}, 8, v{t1}
v_add_u32 v1, s{sT[8]}, v{t1}
v_xor_b32 v2, 16, v1
s_lshl3_add_u32 s{sT[3]}, s{sI}, s{sW}
s_lshl_b32 s{sT[3]}, s{sT[3]}, 6
s_add_u32 s{sT[3]}, s{sT[3]}, s{sJ}
s_lshl_b32 s{sT[3]}, s{sT[3]}, 7
v_lshlrev_b32 v{t2}, 4, v{t2}
v_lshl_add_u32 v5, v{t0}, 10, v{t2}
s_mov_b32 s{sT[2]}, 0
""".strip().split('\n')
def wo_read(v):
    slot = ((14 + v) & 3) * 2048 + (v >> 2) * 32768
    for b in range(2):
        for e in range(2):
            a(f"ds_read_b64_tr_b16 {vr(WOF + 8*v + 4*b + 2*e, 2)}, v{28 + b} offset:{slot + e*512}")
for j in range(8):
    xw = a(f"ds_write_b128 v24, {vr(DACC+32+4*j,4)} offset:{1024*j}")
    for x in fill[len(fill) * j // 8: len(fill) * (j + 1) // 8]: a(x)
    if OPT['woe'] == 1: wo_read(j)
if OPT['woe'] == 2:
    for j in range(8): wo_read(j)
def o_loads():
    for v in range(8):
        a(f"buffer_load_dwordx4 {vr(OF + 4*v, 4)}, v{vO1 if v >> 2 else vL16}, {srd(SWS)}, s{sT[4 + (v&3)]} offen sc1")
stamp(3, 4)
a.wait(wtok[17], xw)
a(f"s_cmp_ge_u32 s{sW}, 4")
if not OPT['oe']: a("s_barrier"); stamp(4, 4)
a("s_setprio 1\ns_cbranch_scc1 L_ol1\ns_setprio 0")
o_loads()
a("L_ol1:")
if OPT['oe']: a("s_barrier"); stamp(4, 4)
xt = [a(f"ds_read_b128 {vr(XT+4*j,4)}, v26 offset:{1024*j}") for j in range(8)]
for j in range(8):
    a.wait(xt[j])
    for i in range(2):
        r = 4 * j + 2 * i
        a(f"v_pk_add_f32 {vr(DACC+r,2)}, {vr(DACC+r,2)}, {vr(XT+r,2)}")
    for i in range(2):
        r = 4 * j + 2 * i
        a(f"v_pk_mul_f32 {vr(DACC+r,2)}, {vr(DACC+r,2)}, {vr(vG,2)} op_sel_hi:[1,0]")
stamp(5, 4)
a("s_setprio 0\ns_cbranch_scc0 L_ol2")
o_loads()
a("L_ol2:")
if not OPT['woe']:
    for j in range(8): wo_read(j)
stamp(6, 4)
a.wait_lg0()
ND = XT
a("L_s3poll:")
def wo_mfma(v, b): a(f"v_mfma_f32_32x32x16_bf16 {vr(ND+16*b,16)}, {vr(WOF+8*v+4*b,4)}, {vr(OF+4*v,4)}, {vr((DACC if v == 0 else ND)+16*b,16)}")
def chk(v): a(f"v_and_b32 v{t0}, {1 if v == 0 else 'v' + str(t0)}, v{OF+4*v}")
def xsite():
    a(f"s_cmp_eq_u32 s{sT[9]}, 0\ns_cbranch_scc1 L_nox\ns_mov_b32 s{sT[9]}, 0\ns_barrier\nL_nox:")
for v in range(6):
    a(f"s_waitcnt vmcnt({7-v})")
    if v == 0: stamp(10); stamp(7, 4)
    wo_mfma(v, 0); chk(v); wo_mfma(v, 1)
    if v == OPT['xsite']: xsite()
a("s_waitcnt vmcnt(1)"); wo_mfma(6, 0); chk(6)
a("s_waitcnt vmcnt(0)"); wo_mfma(7, 0); chk(7)
a.vm_done = a.vm
wo_mfma(6, 1)
if OPT['xsite'] == 6: xsite()
a(f"v_cmp_eq_u32 vcc, 0, v{t0}")
wo_mfma(7, 1)
if OPT['xsite'] == 7: xsite()
a("s_cbranch_vccnz L_s3retry\nL_s3done:")
stamp(8, 4)
for b in range(2):
    if OPT['xsite'] >= 6: a("s_nop 2" if b == 0 else "s_nop 3")
    for qd in range(4): a(f"ds_write_b128 v{9+qd}, {vr(ND + 16*b + 4*qd, 4)} offset:{b*128}")
a(f"s_cmp_ge_u32 s{sW}, 4")
a.wait_lg0()
a("s_barrier")
stamp(9, 4)
RD = 176
rt = []
for p in range(4):
    for e in range(2):
        rt.append(a(f"ds_read_b128 {vr(RD + 8*p + 4*e, 4)}, v{1 + e} offset:{p*8192}"))
for p in range(1, 4):
    a.wait(rt[2 * p + 1])
    for j in range(4):
        if OPT.get('fpk', 1): a(f"v_pk_add_f32 {vr(RD+2*j,2)}, {vr(RD+2*j,2)}, {vr(RD+8*p+2*j,2)}")
        else: a(f"v_add_f32 v{RD+2*j}, v{RD+2*j}, v{RD+8*p+2*j}\nv_add_f32 v{RD+2*j+1}, v{RD+2*j+1}, v{RD+8*p+2*j+1}")
for j in range(4): a(f"v_cvt_pk_bf16_f32 v{RD+j}, v{RD+2*j}, v{RD+2*j+1}")
a(f"buffer_store_dwordx4 {vr(RD,4)}, v5, {srd(SOUT)}, s{sT[3]} offen {['', 'sc1'][OPT['outm']]}")
a("s_cbranch_scc1 L_noy\ns_barrier\nL_noy:")
stamp(10, 4)
if OPT['stamp']:
    a("s_waitcnt vmcnt(0)")
    stamp(11)
    a("s_waitcnt lgkmcnt(0)")
    a(f"s_mov_b32 s28, s{sT[2]}")
    if 'span' in OPT:
        a(f"""
        s_lshl3_add_u32 s{sT[0]}, s2, s{sW}
        s_lshl_b32 s{sT[0]}, s{sT[0]}, 3
        s_add_u32 s{sT[0]}, s{sT[0]}, {WS_STAMP}
        v_mov_b32 v1, 0
        v_mov_b32 v2, s{4+2*OPT['span']}
        v_mov_b32 v3, s30
        s_mov_b64 exec, 1
        buffer_store_dwordx2 v[2:3], v1, {srd(SWS)}, s{sT[0]} offen sc1
        s_mov_b64 exec, -1
        s_add_u32 s{sT[0]}, s2, s{sW}
        s_cmp_lg_u32 s{sT[0]}, 0
        s_cbranch_scc1 L_end
        L_pad0:
        s_memrealtime s[{sT[2]}:{sT[3]}]
        s_waitcnt lgkmcnt(0)
        s_sub_u32 s{sT[2]}, s{sT[2]}, s30
        s_cmp_lt_u32 s{sT[2]}, 4500
        s_cbranch_scc1 L_pad0
        v_mov_b32 v4, 0
        v_mov_b32 v5, -1
        s_sub_u32 s{sT[1]}, s30, 1000
        """)
        for g in range(16):
            a(f"""
            s_mov_b32 s{sT[0]}, {WS_STAMP + 1024*g}
            buffer_load_dwordx4 v[8:11], v{vL16}, {srd(SWS)}, s{sT[0]} offen sc1
            s_waitcnt vmcnt(0)
            v_subrev_u32 v8, s{sT[1]}, v8
            v_subrev_u32 v9, s{sT[1]}, v9
            v_subrev_u32 v10, s{sT[1]}, v10
            v_subrev_u32 v11, s{sT[1]}, v11
            v_max3_u32 v4, v4, v8, v10
            v_min3_u32 v5, v5, v9, v11
            """)
        a(f"s_mov_b32 s{sT[4]}, 0\ns_mov_b32 s{sT[5]}, -1")
        for i in range(64): a(f"v_readlane_b32 s{sT[6]}, v4, {i}\nv_readlane_b32 s{sT[7]}, v5, {i}\ns_nop 0\ns_max_u32 s{sT[4]}, s{sT[4]}, s{sT[6]}\ns_min_u32 s{sT[5]}, s{sT[5]}, s{sT[7]}")
        a(f"""
        s_sub_u32 s{sT[0]}, s{sT[4]}, s{sT[5]}
        s_sub_u32 s{sT[0]}, s{sT[0]}, {OPT.get('spanb', 2000)}
        s_min_u32 s{sT[0]}, s{sT[0]}, 2500
        s_mul_i32 s{sT[0]}, s{sT[0]}, 10
        s_add_u32 s{sT[0]}, s{sT[0]}, 6000
        L_pad:
        s_memrealtime s[{sT[2]}:{sT[3]}]
        s_waitcnt lgkmcnt(0)
        s_sub_u32 s{sT[2]}, s{sT[2]}, s30
        s_cmp_lt_u32 s{sT[2]}, s{sT[0]}
        s_cbranch_scc1 L_pad
        """)
    elif 'crit' in OPT:
        a(f"""
        s_cmp_lg_u32 s{sW}, 7
        s_cbranch_scc1 L_end
        s_lshl_b32 s{sT[0]}, s2, 6
        s_add_u32 s{sT[0]}, s{sT[0]}, {WS_STAMP}
        v_mov_b32 v1, 0
        """)
        for k in range(14): a(f"v_mov_b32 v2, s{4+2*k}\nbuffer_store_dword v2, v1, {srd(SWS)}, s{sT[0]} offen offset:{4*k} sc1")
        a(f"""
        s_cmp_lg_u32 s2, 0
        s_cbranch_scc1 L_end
        L_pad0:
        s_memrealtime s[{sT[2]}:{sT[3]}]
        s_waitcnt lgkmcnt(0)
        s_sub_u32 s{sT[2]}, s{sT[2]}, s30
        s_cmp_lt_u32 s{sT[2]}, 5000
        s_cbranch_scc1 L_pad0
        v_lshlrev_b32 v1, 6, v{L}
        s_mov_b32 s{sT[4]}, 0
        s_mov_b32 s{sT[5]}, -1
        """)
        for g in range(4):
            a(f"""
            s_mov_b32 s{sT[0]}, {WS_STAMP + 4096*g}
            buffer_load_dword v2, v1, {srd(SWS)}, s{sT[0]} offen offset:{4*OPT['crit']} sc1
            buffer_load_dword v3, v1, {srd(SWS)}, s{sT[0]} offen offset:52 sc1
            s_waitcnt vmcnt(0)
            v_subrev_u32 v2, s30, v2
            v_add_u32 v2, 1000, v2
            v_lshlrev_b32 v2, 8, v2
            v_add_u32 v2, v2, v{L}
            v_add_u32 v2, {64*g}, v2
            v_subrev_u32 v3, s30, v3
            v_add_u32 v3, 1000, v3
            s_nop 1
            """)
            for i in range(64): a(f"v_readlane_b32 s{sT[6]}, v2, {i}\nv_readlane_b32 s{sT[7]}, v3, {i}\ns_nop 0\ns_max_u32 s{sT[4]}, s{sT[4]}, s{sT[6]}\ns_min_u32 s{sT[5]}, s{sT[5]}, s{sT[7]}")
        a(f"""
        s_and_b32 s{sT[4]}, s{sT[4]}, 255
        s_lshl_b32 s{sT[0]}, s{sT[4]}, 6
        s_add_u32 s{sT[0]}, s{sT[0]}, {WS_STAMP}
        v_lshlrev_b32 v1, 2, v{L}
        buffer_load_dword v2, v1, {srd(SWS)}, s{sT[0]} offen sc1
        s_add_u32 s{sT[5]}, s{sT[5]}, s30
        s_sub_u32 s{sT[5]}, s{sT[5]}, 1000
        s_waitcnt vmcnt(0)
        v_subrev_u32 v2, s{sT[5]}, v2
        s_nop 1
        v_writelane_b32 v2, s{sT[4]}, 14
        s_mov_b64 exec, 0x7fff
        buffer_store_dword v2, v1, {srd(SDBG)}, 0 offen offset:4
        """)
    elif 'dk' in OPT:
        a(f"""
        s_cmp_lg_u32 s{sW}, {OPT.get('dw', 7)}
        s_cbranch_scc1 L_end
        s_lshl_b32 s{sT[0]}, s2, 2
        s_add_u32 s{sT[0]}, s{sT[0]}, {WS_STAMP}
        v_mov_b32 v2, s{4+2*OPT['dk']}
        v_mov_b32 v1, 0
        buffer_store_dword v2, v1, {srd(SWS)}, s{sT[0]} offen sc1
        s_cmp_lg_u32 s2, 0
        s_cbranch_scc1 L_end
        L_pad0:
        s_memrealtime s[{sT[2]}:{sT[3]}]
        s_waitcnt lgkmcnt(0)
        s_sub_u32 s{sT[2]}, s{sT[2]}, s30
        s_cmp_lt_u32 s{sT[2]}, 5000
        s_cbranch_scc1 L_pad0
        v_mul_u32_u24 v1, {4*OPT['dstride']}, v{L}
        s_mov_b32 s{sT[0]}, {WS_STAMP + 4*OPT['dbase']}
        buffer_load_dword v2, v1, {srd(SWS)}, s{sT[0]} offen sc1
        s_waitcnt vmcnt(0)
        v_subrev_u32 v2, s30, v2
        v_add_u32 v2, 100000, v2
        s_mov_b32 s{sT[4]}, 0
        s_mov_b32 s{sT[5]}, -1
        """)
        for i in range(OPT['dn']): a(f"v_readlane_b32 s{sT[6]}, v2, {i}\ns_nop 1\ns_max_u32 s{sT[4]}, s{sT[4]}, s{sT[6]}\ns_min_u32 s{sT[5]}, s{sT[5]}, s{sT[6]}")
        a(f"""
        s_sub_u32 s{sT[0]}, s{sT[4]}, s{sT[5]}
        s_min_u32 s{sT[0]}, s{sT[0]}, 2000
        s_mul_i32 s{sT[0]}, s{sT[0]}, 10
        s_add_u32 s{sT[0]}, s{sT[0]}, 6000
        L_pad:
        s_memrealtime s[{sT[2]}:{sT[3]}]
        s_waitcnt lgkmcnt(0)
        s_sub_u32 s{sT[2]}, s{sT[2]}, s30
        s_cmp_lt_u32 s{sT[2]}, s{sT[0]}
        s_cbranch_scc1 L_pad
        """)
    elif 'pad' in OPT:
        K = OPT['pad']
        a(f"s_and_b32 s{sT[0]}, s2, {OPT.get('padm', 0)}\ns_cmp_lg_u32 s{sT[0]}, {OPT.get('padv', 0)}\ns_cbranch_scc1 L_end")
        if K >= 0: a(f"s_sub_u32 s{sT[0]}, s{4+2*K}, s{4+2*OPT.get('padb', 13)}\ns_mul_i32 s{sT[0]}, s{sT[0]}, {OPT.get('padx', 4)}")
        else: a(f"s_mov_b32 s{sT[0]}, 0")
        a(f"""
        s_add_u32 s{sT[0]}, s{sT[0]}, 6000
        L_pad:
        s_memrealtime s[{sT[2]}:{sT[3]}]
        s_waitcnt lgkmcnt(0)
        s_sub_u32 s{sT[2]}, s{sT[2]}, s30
        s_cmp_lt_u32 s{sT[2]}, s{sT[0]}
        s_cbranch_scc1 L_pad
        """)
    else:
        a(f"s_lshl3_add_u32 s{sT[0]}, s2, s{sW}\ns_lshl_b32 s{sT[0]}, s{sT[0]}, 6\ns_add_u32 s{sT[0]}, s{sT[0]}, {WS_STAMP}")
        a("v_mov_b32 v1, 0\ns_mov_b64 exec, 1")
        for k in range(14):
            a(f"v_mov_b32 v2, s{4+2*k}\nbuffer_store_dword v2, v1, {srd(SWS)}, s{sT[0]} offen offset:{4*k}")
a("L_end:\ns_endpgm")
a("L_s3retry:")
o_loads()
a(f"""
s_add_u32 s{sT[2]}, s{sT[2]}, 1
s_cmp_lt_u32 s{sT[2]}, {SPIN}
s_nop 7
s_cbranch_scc1 L_s3poll
s_waitcnt vmcnt(0)
s_branch L_s3done
""")

for P in 'KVPSC':
    a(f".p2align 6\nL_path{P}:")
    a.forget()
    proj_path(P)
    a("s_branch L_join")
for x in cold: a(x)

CM = SB
a(f"""
L_true_max:
s_waitcnt vmcnt(0) lgkmcnt(0)
v_mov_b32 v{t0}, 0xff800000
s_mov_b32 s{sT[0]}, {WS_KV}
L_tm1:
buffer_load_dwordx4 {vr(KF,4)}, v{vL16}, {srd(SWS)}, s{sT[0]} offen sc1
s_waitcnt vmcnt(0)
{qk(SA, QB)}
""")
for j in range(8): a(f"v_max3_f32 v{t0}, v{t0}, v{SA+2*j}, v{SA+2*j+1}")
a(f"""
s_add_u32 s{sT[0]}, s{sT[0]}, 2048
s_cmp_lt_u32 s{sT[0]}, {WS_KV + 64*2048}
s_cbranch_scc1 L_tm1
v_mov_b32 v{t1}, v{t0}
v_permlane32_swap_b32 v{t0}, v{t1}
v_max_f32 v{t0}, v{t0}, v{t1}
""")
for r in range(16): a(f"v_sub_f32 v{CM+r}, 0, v{t0}\nv_mov_b32 v{OB+r}, 0")
a(f"""
s_mov_b32 s{sT[0]}, {WS_KV}
L_tm2:
buffer_load_dwordx4 {vr(KF,4)}, v{vL16}, {srd(SWS)}, s{sT[0]} offen sc1
s_mov_b64 exec, s[{sT[8]}:{sT[9]}]
buffer_load_dwordx4 {vr(V1[0],4)}, v{vPV}, {srd(SWS)}, s{sT[0]} offen offset:1024 sc1
buffer_load_dwordx4 {vr(V2,4)}, v{vPV}, {srd(SWS)}, s{sT[0]} offen offset:1536 sc1
s_mov_b64 exec, -1
s_waitcnt vmcnt(0)
v_mfma_f32_32x32x16_bf16 {vr(SA,16)}, {vr(KF,4)}, {vr(QB,4)}, {vr(CM,16)}
""")
for e in range(16): a(f"v_exp_f32 v{SA+e}, v{SA+e}")
a(pv(OB, V1[0], SA)); a(pv(OB, V2, SA + 8))
a(f"""
s_add_u32 s{sT[0]}, s{sT[0]}, 2048
s_cmp_lt_u32 s{sT[0]}, {WS_KV + 64*2048}
s_nop 7
s_cbranch_scc1 L_tm2
s_nop 7
v_rcp_f32 v{t0}, v{OB+8}
s_nop 0
v_mul_f32 v{t0}, v{t0}, v{vG}
""")
for j in range(4): a(f"v_pk_mul_f32 {vr(OB+2*j,2)}, {vr(OB+2*j,2)}, {vr(t0,2)} op_sel_hi:[1,0]")
for j in range(4): a(f"v_cvt_pk_bf16_f32 v{OS+j}, v{OB+2*j}, v{OB+2*j+1}")
a(f"v_or_b32 v{OS}, 1, v{OS}")
a("s_branch L_norm\nL_last:")

bad = a.check_branches()
assert not bad, bad

hdr = open(f'cdna_kernels/{NAME}.s.ref').read().split('\n')
head = [l for l in hdr if l.startswith(';') and '@launch' not in l]
body = a.text()
if OPT.get('stm'):
    import re
    body = re.sub(r'(buffer_store_dwordx4 .*s\[52:55\].*) sc1', lambda m: m.group(1) + [' sc1', ' sc1 nt', ' sc0 sc1', ' sc0 sc1 nt'][OPT['stm']], body)
out = "\n".join(head) + f"\n; @launch grid=(256,1,1) block=(512,1,1) lds={LDS_BYTES}\n"
out += f""".amdgcn_target "amdgcn-amd-amdhsa--gfx950"
.text
.globl {NAME}_kernel
.p2align 8
.type {NAME}_kernel,@function
{NAME}_kernel:
{body}
.section .rodata,"a"
.p2align 6
.amdhsa_kernel {NAME}_kernel
  .amdhsa_next_free_vgpr 256
  .amdhsa_next_free_sgpr 102
  .amdhsa_accum_offset 256
  .amdhsa_group_segment_fixed_size 0
  .amdhsa_kernarg_size 104
  .amdhsa_user_sgpr_count 2
  .amdhsa_user_sgpr_kernarg_segment_ptr 1
  .amdhsa_system_sgpr_workgroup_id_x 1
.end_amdhsa_kernel
"""
open(sys.argv[1], 'w').write(out)
print("instructions:", sum(1 for i in a.ins if i.ws), "auto nops:", a.nnop, file=sys.stderr)
```

```python
import sys, math, struct
sys.path.insert(0, 'gen')
from asmlib import Asm

NAME = 'gated_mix__grouped_kv_mqa__geglu_ffn__prompt'
OPT = dict(stamp=0, grp=0, force_fb=0, qflag=11, s1=16, b2=22, outm=1, ofast=0,
           p_kv=20, p_kvs=40, p_st=1, p_sts=40, p_fill=160, p_fills=70, p_kv2=390, p_f2=440, p_chk=470, d0=16, dend=32,
           late=0, pk2=1, nearly=1, h0w=24, h1w=30, clw=22, na=1, gend=30, dwt=0, qbar=0, cpf=1, qmode=0, qf=11, exs=1, spf=1, pb=1, pbq0=0, rq=1, rg=1, r1=1, qfirst=0, vlate=0, jearly=5, xsite=5, woe=0, oe=0, tlb=0, rotm=2, rots=12, dxs=3, wt=1, mpf=21, hst=0, oz=0, eb0=0, lb1=50, lb3=92, lc1=70, jlate=0, s1slp=0, s1w=30, lad=1, gb14=1, gbar=0)
for x in sys.argv[2:]:
    k, v = x.split('='); OPT[k] = int(v)

def fbits(x): return struct.unpack('<I', struct.pack('<f', x))[0]

WS_KV, WS_G, WS_F1, WS_Q, WS_H, WS_STAMP = 0, 0x20000, 0x30000, 0x300000, 0x500000, 0xC00000
WS_O = WS_Q
WS_F2 = WS_F1 + 8192
WS_SIZE = 0x1000000
CLEAR_WG = 128
WR, EX = 65536, 131072
NSLOT, HALF, RING = 24, 49152, 98304
MERGE = 65536
LDS_BYTES = 163840
SPIN = 0x400000
SX, SWG, SWU, SWQ, SEX, SWS, SDBG, SWD, SWO, SOUT = 32, 36, 40, 44, 48, 52, 56, 60, 64, 92
sW, sTI, sQ, sU, sROT, sXO, sWOF, sMX, sMW, sI, sJ, sROT0 = range(68, 80)
sT = list(range(80, 90))
sEXW, sEXO = 90, 91
sC1 = 96
sF2, sRH, sRING, sOO = 98, 99, 100, 101
sHO = 3
sKVM, sKVO, sQA, sGA = 32, 33, 34, 35
sF2R, sF2W = 46, 38
sR = [sRH, 44, 45, 47]
def srd(n): return f"s[{n}:{n+3}]"
def vr(b, n): return f"v[{b}:{b+n-1}]"

vXS0, vXS1, vWS = 1, 2, 3
vST = 4
vXR = [5, 6, 7, 8]
vWR = [9, 10]
vES, vER, vSA = 11, [12, 13], 30
vL16, vLANE = 14, 15
vC0 = 16
vZ = 17
vGT = 18
t0, t1, t2, t3 = 20, 21, 22, 23
vS0, vWS2 = 28, 27
vPV, vPD, vTRP = 29, 0, 31
F = [32, 48]
ACC = [64, 96]
XF = 128
ACCE, WE = 96, 100
GW = 147456
L = vLANE
QA, QB, KF, V2, V1 = 128, 132, 136, 140, [144, 148]
vG, vIDX, vAK, vAV, vKVS = 152, 154, 155, 156, 157
vDR0, vDR1, vH0, vH1 = 159, 160, 161, 162
vDS, vDS1, vF2 = vPD, 158, 163
F2D = 164
vONE = 168
vM = [169, 170, 171, 172]
OA, OB, SA, SB = 176, 192, 208, 224
WF = [240, 248]
HF = [32, 40, 48, 56]
DACC = 64

a = Asm()
CLK = 's_memtime' if OPT['stamp'] == 2 else 's_memrealtime'
def stamp(k, grp=0):
    if grp != OPT['grp'] and k != 11: return
    if OPT['stamp']: a(f"{CLK} s[{4+2*k}:{5+2*k}]")
def mk_srd(n, p, size):
    a(f"s_mov_b32 s{n}, s{p}\ns_mov_b32 s{n+1}, s{p+1}\ns_mov_b32 s{n+2}, {size}\ns_mov_b32 s{n+3}, 0x20000")

PG = 3584
C0 = -2.0 * math.sqrt(2.0 / math.pi) * math.log2(math.e)
C1 = C0 * 0.044715
QS = 0.25 * math.log2(math.e)

a("s_cmp_ge_u32 s2, 256\ns_cbranch_scc1 L_end")
a("s_load_dwordx16 s[4:19], s[0:1], 0\ns_load_dwordx8 s[20:27], s[0:1], 64\ns_load_dwordx2 s[28:29], s[0:1], 96")
if OPT['stamp']: a(f"{CLK} s[30:31]")
def code_prefetch():
    a(f"""
    s_getpc_b64 s[{sT[8]}:{sT[9]}]
    L_pc:
    s_andn2_b32 s{sT[7]}, s2, 7
    s_lshl_b32 s{sT[7]}, s{sT[7]}, 8
    v_lshl_add_u32 v{t3}, v0, 2, s{sT[7]}
    v_min_u32 v{t3}, L_last-L_pc-4, v{t3}
    s_mov_b32 exec_lo, 1
    s_mov_b32 exec_hi, 1
    global_load_dword v{vS0}, v{t3}, s[{sT[8]}:{sT[9]}]
    s_mov_b64 exec, -1
    """)
if OPT['cpf'] == 1: code_prefetch()
ROTC = {8: f"s_lshl1_add_u32 s{sROT0}, s{sU}, s{sJ}\ns_and_b32 s{sROT0}, s{sROT0}, 7",
        4: f"s_add_u32 s{sROT0}, s{sU}, s{sJ}\ns_and_b32 s{sROT0}, s{sROT0}, 3\ns_lshl_b32 s{sROT0}, s{sROT0}, 1",
        2: f"s_add_u32 s{sROT0}, s{sU}, s{sJ}\ns_and_b32 s{sROT0}, s{sROT0}, 1\ns_lshl_b32 s{sROT0}, s{sROT0}, 2",
        3: f"s_add_u32 s{sROT0}, s{sU}, s{sJ}\ns_lshl_b32 s{sROT0}, s{sROT0}, 1\ns_lshr_b32 s{sROT0}, 0x124924, s{sROT0}\ns_and_b32 s{sROT0}, s{sROT0}, 3\ns_mul_i32 s{sROT0}, s{sROT0}, 3",
        1: f"s_mov_b32 s{sROT0}, 0"}[OPT['rotm']]
if OPT['rots']:
    ROTC += f"\ns_bfe_u32 s{sQ}, s2, 0x20001\ns_mul_i32 s{sT[1]}, s{sQ}, {OPT['rots'] // 10}\ns_add_u32 s{sROT0}, s{sROT0}, s{sT[1]}\ns_mul_i32 s{sT[1]}, s{sT[2]}, {OPT['rots'] % 10}\ns_add_u32 s{sROT0}, s{sROT0}, s{sT[1]}\ns_and_b32 s{sROT0}, s{sROT0}, 7"
a(f"""
v_readfirstlane_b32 s{sW}, v0
v_lshrrev_b32 v{t1}, 4, v0
v_lshrrev_b32 v{t0}, 3, v0
v_xor_b32 v{t1}, v0, v{t1}
s_lshr_b32 s{sU}, s2, 6
s_bfe_u32 s{sJ}, s2, 0x30003
v_and_b32 v{t1}, 7, v{t1}
s_and_b32 s{sT[2]}, s2, 1
s_lshl3_add_u32 s{sTI}, s{sT[2]}, s{sJ}
v_lshlrev_b32 v{t1}, 4, v{t1}
{ROTC}
v_lshl_add_u32 v{vXS0}, v{t0}, 10, v{t1}
s_lshl_b32 s{sT[0]}, s{sTI}, 17
s_lshl_b32 s{sXO}, s{sROT0}, 7
s_add_u32 s{sXO}, s{sXO}, s{sT[0]}
s_lshl_b32 s{sMW}, s{sW}, 4
s_mov_b32 m0, s{sMW}
s_mov_b32 s{SX+2}, {2048*1024}
s_mov_b32 s{SX+3}, 0x20000
""")
a(f"""
s_bfe_u32 s{sT[1]}, s{sW}, 0x10006
s_lshl_b32 s{sT[1]}, s{sT[1]}, 2
v_and_or_b32 v{t1}, v{t0}, 2, s{sT[1]}
s_bfe_u32 s{sQ}, s2, 0x20001
s_mul_i32 s{sT[1]}, s{sQ}, 7
v_xor_b32 v{t1}, v0, v{t1}
s_lshl1_add_u32 s{sT[1]}, s{sU}, s{sT[1]}
s_sub_u32 s{sT[1]}, s{sT[1]}, 1
v_and_b32 v{t1}, 7, v{t1}
s_lshl_b32 s{sT[2]}, s{sQ}, 1
s_movk_i32 s{sT[3]}, {PG}
v_lshlrev_b32 v{vWS2}, 4, v{t1}
s_mov_b32 s{SWG+3}, 0x20000
s_mov_b32 s{SWU+3}, 0x20000
s_cmp_eq_u32 s{sU}, 0
s_cselect_b32 s{sT[1]}, s{sT[2]}, s{sT[1]}
s_cselect_b32 s{sT[3]}, 1024, s{sT[3]}
s_cselect_b32 s{sT[2]}, 128, 0
v_mad_u32_u24 v{vWS}, v{t0}, s{sT[3]}, v{vWS2}
s_lshl_b32 s{SWG+2}, s{sT[3]}, 9
s_mov_b32 s{SWU+2}, s{SWG+2}
s_mul_i32 s{sWOF}, s{sROT0}, s{sT[3]}
s_lshl1_add_u32 s{sWOF}, s{sT[1]}, s{sWOF}
s_lshl_b32 s{sWOF}, s{sWOF}, 6
s_cmp_eq_u32 s{sU}, 0
{CLK + ' s[84:85]' if OPT['grp'] == 5 else ''}
s_waitcnt lgkmcnt(0)
{CLK + ' s[86:87]' if OPT['grp'] == 5 else ''}
s_mov_b64 s[{SX}:{SX+1}], s[4:5]
s_cselect_b64 s[{SWG}:{SWG+1}], s[6:7], s[16:17]
s_cselect_b64 s[{SWU}:{SWU+1}], s[6:7], s[18:19]
""")
def first_stage(x0, x1, xstep, wstep):
    a(f"""
    buffer_load_dwordx4 v{x0}, {srd(SX)}, s{sXO} offen lds
    s_add_u32 m0, s{sMW}, {WR}
    s_add_u32 s{sXO}, s{sXO}, {xstep}
    buffer_load_dwordx4 v{vWS}, {srd(SWG)}, s{sWOF} offen lds
    s_add_u32 m0, s{sMW}, {WR + 8192}
    s_add_u32 s{sWOF}, s{sWOF}, {wstep}
    buffer_load_dwordx4 v{vWS}, {srd(SWU)}, s{sWOF} offen lds
    s_add_u32 m0, s{sMW}, 8192
    s_nop 0
    buffer_load_dwordx4 v{x1}, {srd(SX)}, s{sXO} offen lds
    """)
if OPT['qfirst']: a("s_cbranch_scc0 L_late")
first_stage(vXS0, vXS0, 65536, f"s{sT[2]}")
if OPT['wt']:
    assert not OPT['qfirst']
    a(f"""
    s_lshr_b32 s{sT[4]}, s{sW}, 7
    s_lshr_b32 s{sT[5]}, s{sJ}, 1
    s_cmp_lg_u32 s{sT[4]}, s{sT[5]}
    s_cbranch_scc1 L_nowt
    s_add_u32 s{sT[4]}, s{sROT0}, 1
    s_and_b32 s{sT[4]}, s{sT[4]}, 7
    s_mul_i32 s{sT[4]}, s{sT[4]}, s{sT[3]}
    s_lshl1_add_u32 s{sT[4]}, s{sT[1]}, s{sT[4]}
    s_lshl_b32 s{sT[4]}, s{sT[4]}, 6
    buffer_load_dword v32, v{vWS}, {srd(SWG)}, s{sT[4]} offen
    s_add_u32 s{sT[4]}, s{sT[4]}, s{sT[2]}
    buffer_load_dword v33, v{vWS}, {srd(SWU)}, s{sT[4]} offen
    L_nowt:
    """)
if OPT['qfirst']: a("L_late:")
if OPT['grp'] == 5: a(f"{CLK} s[88:89]\ns_waitcnt lgkmcnt(0)\ns_mov_b32 s4, s84\ns_mov_b32 s14, s86\ns_mov_b32 s5, s88")
a(f"""
s_lshr_b32 s{sW}, s{sW}, 6
v_add_u32 v{vXS0}, s{sT[0]}, v{vXS0}
v_add_u32 v{vXS1}, 0x10000, v{vXS0}
s_sub_u32 s{sXO}, s{sXO}, s{sT[0]}
s_lshl_b32 s{sT[1]}, s{sT[1]}, 7
s_sub_u32 s{sWOF}, s{sWOF}, s{sT[1]}
v_add_u32 v{vWS}, s{sT[1]}, v{vWS}
s_movk_i32 s{sT[3]}, {PG}
v_mad_u32_u24 v{vWS2}, v{t0}, s{sT[3]}, v{vWS2}
s_mul_i32 s{sT[1]}, s{sQ}, {7*128}
v_add_u32 v{vWS2}, s{sT[1]}, v{vWS2}
v_and_b32 v{L}, 63, v0
v_lshlrev_b32 v{vL16}, 4, v{L}
s_and_b32 s{sT[0]}, s2, 7
s_lshl2_add_u32 s{sI}, s{sT[0]}, s{sU}
s_add_u32 s{sROT}, s{sROT0}, 1
s_and_b32 s{sROT}, s{sROT}, 7
s_lshl_b32 s{sMX}, s{sW}, 11
""")
def late_loads(k):
    if OPT['qfirst'] != k: return
    a(f"s_cmp_eq_u32 s{sU}, 0\ns_cbranch_scc1 L_early")
    first_stage(vXS0, vXS1, 0, 0)
    a("L_early:")
late_loads(1)
def dispatch():
    a(f"""
    s_lshr_b32 s{sT[1]}, s{sW}, 2
    s_lshl1_add_u32 s{sT[0]}, s{sU}, s{sT[1]}
    s_lshr_b32 s{sT[1]}, s{sQ}, 1
    s_lshl1_add_u32 s{sT[0]}, s{sT[0]}, s{sT[1]}
    s_cmp_eq_u32 s{sT[0]}, 0
    s_cbranch_scc1 L_pathK
    s_cmp_eq_u32 s{sT[0]}, 1
    s_cbranch_scc1 L_pathV
    s_cmp_lt_u32 s{sT[0]}, 4
    s_cbranch_scc1 L_pathP
    s_cmp_eq_u32 s{sT[0]}, 4
    s_cbranch_scc1 L_pathS
    s_add_u32 s{sT[0]}, s{sMW}, s2
    s_cmp_eq_u32 s{sT[0]}, {CLEAR_WG + 1024}
    s_cbranch_scc1 L_pathC
    """)

PATH = ['G']
def wslot(sig):
    if sig < 8: return WR + (sig & 3) * 16384
    if sig >= 14: return EX + (sig - 14) * 16384
    return (0 if sig & 1 else WR) + ((sig - 8) >> 1) * 16384
def waddr(sig, b):
    return {0: vXR[b], 1: vWR[b], 2: vXR[2 + b]}[wslot(sig) >> 16]

def dma_ops(sig, path):
    p = sig >> 3
    isq = (path in 'KVP' and p == 0)
    pitch = 1024 if isq else PG
    sa, sb = (SWQ, SWQ) if isq else (SWG, SWU)
    xs, ws = (sig & 3) * 16384, wslot(sig)
    pre = f"s_mul_i32 s{sWOF}, s{sROT}, {64*pitch}\n"
    if path in 'GSC' and p == 1: pre += f"s_add_u32 s{sWOF}, s{sWOF}, 128\n"
    mid = f"s_add_u32 s{sWOF}, s{sWOF}, 128\n" if isq else ""
    inc, wrap = f"s_add_u32 s{sROT}, s{sROT}, 1\n", f"s_and_b32 s{sROT}, s{sROT}, 7\n"
    vw = vWS2 if (path in 'KVP' and p == 1) else vWS
    wa = f"s_add_u32 m0, s{sMW}, {ws}\n{{}}buffer_load_dwordx4 v{vw}, {srd(sa)}, s{sWOF} offen lds"
    wb = f"s_add_u32 m0, s{sMW}, {ws+8192}\n{{}}buffer_load_dwordx4 v{vw}, {srd(sb)}, s{sWOF} offen lds"
    if p == 0:
        return [f"s_add_u32 m0, s{sMW}, {xs}\ns_lshl_b32 s{sXO}, s{sROT}, 7\nbuffer_load_dwordx4 v{vXS0}, {srd(SX)}, s{sXO} offen lds",
                wa.format(pre), wb.format(mid + inc),
                f"s_add_u32 m0, s{sMW}, {xs+8192}\n{wrap}buffer_load_dwordx4 v{vXS1}, {srd(SX)}, s{sXO} offen lds"]
    return [wa.format(pre), wb.format(inc + wrap)]

def setup_common():
    mk_srd(SWS, 28, WS_SIZE)
    if OPT.get('wso'): a(f"s_add_u32 s{SWS}, s{SWS}, {OPT['wso'] << 20}\ns_addc_u32 s{SWS+1}, s{SWS+1}, 0")
    mk_srd(SDBG, 26, 256); mk_srd(SWD, 20, 1792 * 1024); mk_srd(SWO, 12, 512 * 1024); mk_srd(SOUT, 24, 2048 * 1024)
    late_loads(2)
    a(f"""
    s_and_b32 s{sT[0]}, s{sW}, 3
    s_lshr_b32 s{sT[1]}, s{sW}, 2
    s_xor_b32 s{sT[5]}, s{sT[1]}, s{sQ}
    s_and_b32 s{sT[5]}, s{sT[5]}, 1
    s_lshl1_add_u32 s{sT[0]}, s{sT[0]}, s{sT[5]}
    s_lshl_b32 s{sT[0]}, s{sT[0]}, 11
    v_and_b32 v{t0}, 15, v{L}
    v_bfe_u32 v{t1}, v{L}, 1, 3
    v_lshrrev_b32 v{t2}, 4, v{L}
    v_xor_b32 v{t1}, v{t1}, v{t2}
    v_lshlrev_b32 v{t1}, 4, v{t1}
    v_lshl_add_u32 v{t1}, v{t0}, 7, v{t1}
    v_add_u32 v{vXR[0]}, s{sT[0]}, v{t1}
    v_xor_b32 v{vXR[1]}, 0x800, v{vXR[0]}
    v_xor_b32 v{vXR[2]}, 64, v{vXR[0]}
    v_xor_b32 v{vXR[3]}, 64, v{vXR[1]}
    s_lshl_b32 s{sT[2]}, s{sT[5]}, 8
    v_xor_b32 v{vST}, s{sT[2]}, v{vL16}
    """)
    a(f"""
    v_lshrrev_b32 v{t3}, 5, v{L}
    v_lshlrev_b32 v{t0}, 4, v{t0}
    v_lshl_add_u32 v{vPV}, v{t3}, 8, v{t0}
    """)
    late_loads(3)
    a(f"""
    v_bfe_u32 v{t0}, v{L}, 2, 2
    v_lshl_add_u32 v{t1}, v{t2}, 3, v{t0}
    v_lshlrev_b32 v{t1}, 7, v{t1}
    v_bfe_u32 v{t2}, v{L}, 3, 2
    s_lshl_b32 s{sT[1]}, s{sT[1]}, 1
    v_xor_b32 v{t2}, s{sT[1]}, v{t2}
    v_lshl_add_u32 v{t1}, v{t2}, 5, v{t1}
    v_and_b32 v{t2}, 3, v{L}
    v_lshl_add_u32 v{t1}, v{t2}, 3, v{t1}
    v_add_u32 v{vWR[0]}, {WR}, v{t1}
    v_xor_b32 v{vWR[1]}, 32, v{vWR[0]}
    """)
    a(f"""
    v_lshl_add_u32 v{t3}, v{t3}, 3, v{t0}
    v_lshlrev_b32 v{t3}, 7, v{t3}
    v_lshrrev_b32 v{t0}, 1, v{t0}
    v_lshl_add_u32 v{t3}, v{t0}, 6, v{t3}
    v_lshl_add_u32 v{t3}, v{t2}, 3, v{t3}
    v_bfe_u32 v{t2}, v{L}, 4, 1
    v_lshl_add_u32 v{vTRP}, v{t2}, 5, v{t3}
    v_lshlrev_b32 v{t2}, 2, v{t2}
    v_and_b32 v{t1}, 7, v{L}
    v_xor_b32 v{t1}, v{t1}, v{t2}
    v_lshlrev_b32 v{t1}, 4, v{t1}
    v_lshrrev_b32 v{t0}, 3, v{L}
    v_lshl_add_u32 v{t0}, v{t0}, 10, v{t1}
    s_lshl_b32 s{sT[0]}, s{sJ}, 7
    v_add_u32 v{vPD}, s{sT[0]}, v{t0}
    v_mov_b32 v{vZ}, 0
    v_mov_b32 v{vC0}, {fbits(C0):#x}
    s_mov_b32 s{sC1}, {fbits(C1):#x}
    s_mov_b32 s{sC1+1}, {fbits(C1):#x}
    """)
    late_loads(4)
    a(f"""
    s_lshr_b32 s{sT[3]}, s{sW}, 2
    s_and_b32 s{sT[1]}, s{sW}, 3
    s_lshl2_add_u32 s{sT[0]}, s{sTI}, s{sT[1]}
    s_lshl_b32 s{sT[8]}, s{sT[0]}, 5
    s_and_b32 s{sT[2]}, s{sT[0]}, 15
    s_lshr_b32 s{sT[0]}, s{sT[0]}, 4
    s_mul_i32 s{sT[0]}, s{sT[0]}, 112
    s_mul_i32 s{sT[1]}, s{sQ}, 28
    s_add_u32 s{sT[0]}, s{sT[0]}, s{sT[1]}
    s_lshl3_add_u32 s{sT[0]}, s{sU}, s{sT[0]}
    s_lshl1_add_u32 s{sT[0]}, s{sT[3]}, s{sT[0]}
    s_lshl4_add_u32 s{sT[0]}, s{sT[0]}, s{sT[2]}
    s_lshl_b32 s{sT[0]}, s{sT[0]}, 10
    s_add_u32 s{sHO}, s{sT[0]}, {WS_H}
    s_lshl3_add_u32 s{sT[4]}, s{sQ}, s{sT[8]}
    s_lshl1_add_u32 s{sT[4]}, s{sT[3]}, s{sT[4]}
    s_lshl_b32 s{sT[4]}, s{sT[4]}, 10
    s_lshl2_add_u32 s{sF2}, s{sTI}, s{sQ}
    s_lshl_b32 s{sF2}, s{sF2}, 5
    s_add_u32 s{sF2}, s{sF2}, s{sU}
    s_lshl_b32 s{sF2}, s{sF2}, 2
    s_add_u32 s{sF2}, s{sF2}, {WS_F2}
    s_lshl1_add_u32 s{sT[1]}, s{sI}, s{sT[3]}
    s_lshl3_add_u32 s{sT[2]}, s{sT[1]}, s{sJ}
    s_and_b32 s{sT[1]}, s{sW}, 3
    s_lshl2_add_u32 s{sT[2]}, s{sT[2]}, s{sT[1]}
    s_lshl_b32 s{sOO}, s{sT[2]}, 10
    s_lshl_b32 s{sRING}, s{sW}, 13
    s_add_u32 s{sRING}, s{sRING}, {RING}
    s_mul_i32 s{sRH}, s{sJ}, 7
    s_lshr_b32 s{sRH}, s{sRH}, 2
    s_mul_i32 s{sT[1]}, s{sU}, 7
    s_lshr_b32 s{sT[1]}, s{sT[1]}, 1
    s_add_u32 s{sRH}, s{sRH}, s{sT[1]}
    s_and_b32 s{sT[1]}, s2, {OPT['dxs']}
    s_add_u32 s{sRH}, s{sRH}, s{sT[1]}
    s_cmp_ge_u32 s{sRH}, 14
    s_cselect_b32 s{sT[1]}, 14, 0
    s_sub_u32 s{sRH}, s{sRH}, s{sT[1]}
    s_lshl_b32 s{sRH}, s{sRH}, 14
    s_mul_i32 s{sT[1]}, s{sW}, {14*16384}
    s_add_u32 s{SWD}, s{SWD}, s{sT[1]}
    s_addc_u32 s{SWD+1}, s{SWD+1}, 0
    s_sub_u32 s{SWD+2}, s{SWD+2}, s{sT[1]}
    s_lshl_b32 s{sT[1]}, s{sW}, 16
    s_add_u32 s{SWO}, s{SWO}, s{sT[1]}
    s_addc_u32 s{SWO+1}, s{SWO+1}, 0
    s_sub_u32 s{SWO+2}, s{SWO+2}, s{sT[1]}
    """)

def setup_path(P):
    if P in 'GC' and OPT['mpf']:
        a(f"""
        s_cmp_eq_u32 s{sU}, 2
        s_cselect_b64 s[{SEX}:{SEX+1}], s[{SWD}:{SWD+1}], s[{SWO}:{SWO+1}]
        s_cselect_b32 s{SEX+2}, s{SWD+2}, s{SWO+2}
        s_cselect_b32 s{sT[0]}, 28, 8
        s_mov_b32 s{SEX+3}, 0x20000
        s_cmp_eq_u32 s{sU}, 1
        s_cselect_b32 s{SEX+2}, 0, s{SEX+2}
        s_and_b32 s{sT[1]}, s2, 63
        s_mul_i32 s{sT[1]}, s{sT[1]}, s{sT[0]}
        s_sub_u32 s{sT[0]}, s{sT[0]}, 1
        v_min_u32 v{vES}, s{sT[0]}, v{L}
        v_add_lshl_u32 v{vES}, v{vES}, s{sT[1]}, 7
        """)
    if P in 'KV':
        a(f"""
        v_lshrrev_b32 v{t2}, 4, v{L}
        v_and_b32 v{t0}, 15, v{L}
        v_lshlrev_b32 v{t1}, 3, v{t0}
        v_lshl_add_u32 v{t1}, v{t2}, 8, v{t1}
        v_and_b32 v{t3}, 1, v{t2}
        v_lshl_add_u32 v{t1}, v{t3}, 7, v{t1}
        v_add_u32 v{vER[0]}, {EX}, v{t1}
        v_xor_b32 v{vER[1]}, 0x80, v{vER[0]}
        v_lshlrev_b32 v{t1}, 7, v{t3}
        v_xor_b32 v{vES}, v{t1}, v{vL16}
        s_add_u32 s{sEXO}, s{sW}, s{sROT0}
        s_and_b32 s{sEXO}, s{sEXO}, 7
        s_lshl_b32 s{sEXO}, s{sEXO}, 11
        s_lshr_b32 s{sEXW}, s{sT[4]}, 15
        v_lshrrev_b32 v{t2}, 1, v{t2}
        """)
        if P == 'K':
            a(f"""
            s_lshl3_add_u32 s{sEXW}, s{sEXW}, s{sT[5]}
            s_lshl_b32 s{sEXW}, s{sEXW}, 8
            v_lshlrev_b32 v{t2}, 9, v{t2}
            """)
        else:
            a(f"""
            s_lshl2_add_u32 s{sEXW}, s{sEXW}, s{sT[5]}
            s_lshl_b32 s{sEXW}, s{sEXW}, 9
            s_add_u32 s{sEXW}, s{sEXW}, 1024
            v_lshlrev_b32 v{t2}, 8, v{t2}
            v_and_b32 v{t0}, 3, v{L}
            v_bfe_u32 v{t1}, v{L}, 2, 1
            v_lshl_add_u32 v{t0}, v{t1}, 3, v{t0}
            v_bfe_u32 v{t1}, v{L}, 3, 1
            v_lshl_add_u32 v{t0}, v{t1}, 2, v{t0}
            """)
        a(f"""
        v_lshl_add_u32 v{t2}, v{t0}, 4, v{t2}
        v_lshl_add_u32 v{vSA}, v{t3}, 3, v{t2}
        """)
    if P == 'P':
        a(f"""
        v_bfe_u32 v{t1}, v{L}, 4, 1
        v_lshlrev_b32 v{t1}, 7, v{t1}
        v_xor_b32 v{vES}, v{t1}, v{vL16}
        s_add_u32 s{sEXO}, s{sW}, s{sROT0}
        s_and_b32 s{sEXO}, s{sEXO}, 7
        s_lshl_b32 s{sEXO}, s{sEXO}, 11
        """)
    if P == 'S':
        a(f"""
        s_lshl_b32 s{sEXO}, s{sROT0}, 7
        v_add_u32 v{vES}, s{sEXO}, v{vL16}
        v_and_b32 v{vES}, 0x3ff, v{vES}
        v_and_b32 v{t0}, 48, v{L}
        v_add_u32 v{vER[0]}, {GW}, v{t0}
        v_and_b32 v{t0}, 15, v{L}
        v_lshlrev_b32 v{vSA}, 2, v{t0}
        s_lshr_b32 s{sEXW}, s{sT[4]}, 15
        s_lshl1_add_u32 s{sEXW}, s{sEXW}, s{sT[5]}
        s_lshl_b32 s{sEXW}, s{sEXW}, 6
        s_add_u32 s{sEXW}, s{sEXW}, {WS_G}
        """)

def x_reads(sig, j):
    return [f"ds_read_b128 {vr(XF + 16*sig + 8*j + 4*tq, 4)}, v{vXR[2*j+tq]} offset:{(sig & 3) * 16384}" for tq in range(2)]
def w_reads(sig, j, i):
    b, part = i >> 1, i & 1
    off = (wslot(sig) & 0xffff) + part * 8192 + j * 4096
    return [f"ds_read_b64_tr_b16 {vr(F[j] + 4*i + 2*e, 2)}, v{waddr(sig, b)} offset:{off + e*512}" for e in range(2)]
def e_steps(c):
    c0 = 2 * OPT['exs']
    if PATH[0] in 'KVS': return [2 * (c - c0), 2 * (c - c0) + 1] if c0 <= c < 2 * c0 else ([c] if 2 * c0 <= c < 16 else [])
    return []
def e_buf(c, i): return WE + 16 + 4 * i if (PATH[0] == 'S' and c == 15) else WE + 8 * (c & 1) + 4 * i
def e_reads(c):
    if PATH[0] == 'S':
        cs = [] if c == 15 else ([14, 15] if c == 14 else [c])
        return [f"ds_read_b128 {vr(e_buf(x, i), 4)}, v{vER[0]} offset:{k*64}" for x in cs for i, k in enumerate(e_steps(x))]
    return [f"ds_read_b64_tr_b16 {vr(e_buf(c, i) + 2*e, 2)}, v{vER[e]} offset:{k*1024}" for i, k in enumerate(e_steps(c)) for e in range(2)]
def e_mfmas(c):
    out = []
    for i, k in enumerate(e_steps(c)):
        acc, w, x = vr(ACCE, 4), vr(e_buf(c, i), 4), vr(XF + 8 * k, 4)
        A, B = (x, w) if PATH[0] == 'V' else (w, x)
        out.append(f"v_mfma_f32_16x16x32_bf16 {acc}, {A}, {B}, {'0' if k == 0 else acc}")
    return out
def mfmas(sig, j):
    out = []
    for i in range(4):
        for tq in range(2):
            d = vr(ACC[sig >> 3] + 8 * i + 4 * tq, 4)
            c = "0" if ((sig & 7) == 0 and j == 0) else d
            out.append(f"v_mfma_f32_16x16x32_bf16 {d}, {vr(F[j] + 4*i, 4)}, {vr(XF + 16*(sig&7) + 8*j + 4*tq, 4)}, {c}")
    return out

def gelu_pair(base, j, T=vGT, pk=False):
    G = vr(base + 2 * j, 2); U = vr(base + 8 + 2 * j, 2); TT = vr(T, 2)
    g0, g1, u0, u1 = base + 2 * j, base + 2 * j + 1, base + 8 + 2 * j, base + 9 + 2 * j
    if pk:
        return [f"v_pk_mul_f32 {TT}, {G}, {G}",
                f"v_pk_fma_f32 {TT}, {TT}, s[{sC1}:{sC1+1}], {vr(vC0,2)} op_sel_hi:[1,1,0]",
                f"v_pk_mul_f32 {TT}, {TT}, {G}",
                f"v_exp_f32 v{T}, v{T}", f"v_exp_f32 v{T+1}, v{T+1}",
                f"v_pk_mul_f32 {G}, {G}, {U}",
                f"v_pk_add_f32 {TT}, {TT}, 1.0 op_sel_hi:[1,0]",
                f"v_rcp_f32 v{T}, v{T}", f"v_rcp_f32 v{T+1}, v{T+1}",
                f"v_pk_mul_f32 {G}, {G}, {TT}",
                f"v_cvt_pk_bf16_f32 v{base+j}, v{g0}, v{g1}"]
    return [f"v_mul_f32 v{T}, v{g0}, v{g0}", f"v_mul_f32 v{T+1}, v{g1}, v{g1}",
            f"v_fma_f32 v{T}, v{T}, s{sC1}, v{vC0}", f"v_fma_f32 v{T+1}, v{T+1}, s{sC1}, v{vC0}",
            f"v_mul_f32 v{T}, v{T}, v{g0}", f"v_mul_f32 v{T+1}, v{T+1}, v{g1}",
            f"v_exp_f32 v{T}, v{T}", f"v_exp_f32 v{T+1}, v{T+1}",
            f"v_mul_f32 v{g0}, v{g0}, v{u0}", f"v_add_f32 v{T}, 1.0, v{T}", f"v_add_f32 v{T+1}, 1.0, v{T+1}",
            f"v_rcp_f32 v{T}, v{T}", f"v_rcp_f32 v{T+1}, v{T+1}",
            f"v_mul_f32 v{g1}, v{g1}, v{u1}",
            f"v_mul_f32 v{g0}, v{g0}, v{T}", f"v_mul_f32 v{g1}, v{g1}, v{T+1}",
            f"v_cvt_pk_bf16_f32 v{base+j}, v{g0}, v{g1}"]
def to_frag(base):
    return [f"v_permlane16_swap_b32 v{base}, v{base+2}", f"v_permlane16_swap_b32 v{base+1}, v{base+3}"]

def cost(x):
    c = 0
    for l in x.strip().split('\n'):
        l = l.strip()
        if not l or l.startswith(';') or l.endswith(':'): continue
        c += 8 if l.startswith(('v_exp', 'v_rcp')) else (OPT.get('vmc', 16) if l.startswith('buffer_') else 4)
    return c

kvtok = {}
def kv_step(m):
    slot = (4 * m % NSLOT) * 2048
    if m == 0: x = f"s_mov_b32 m0, s{sKVM}\ns_nop 0\n"
    else: x = f"s_add_u32 s{sKVO}, s{sKVO}, 8192\ns_add_u32 m0, s{sKVM}, {slot}\ns_and_b32 s{sKVO}, s{sKVO}, 0xffff\n"
    return [x + f"buffer_load_dwordx4 v{vKVS}, {srd(SWS)}, s{sKVO} offen sc1 lds", f"buffer_load_dwordx4 v{vKVS}, {srd(SWS)}, s{sKVO} offen offset:1024 sc1 lds"]
KV_FIRST = 2
def first_loads():
    return [f"buffer_load_dwordx4 {vr(QA,4)}, v{vL16}, {srd(SWS)}, s{sQA} offen sc1\ns_xor_b32 s{sQA}, s{sQA}, 1024"] + kv_step(0) + \
           [f"buffer_load_dwordx4 {vr(QB,4)}, v{vL16}, {srd(SWS)}, s{sQA} offen sc1"] + kv_step(1)

def setup_queue(late=False):
    q = []
    def add(st, txt):
        for l in txt.strip().split('\n'): q.append((st, l.strip().replace('|', '\n')))
    add(11, f"""
    s_lshr_b32 s{sT[5]}, s{sW}, 2
    s_lshl_b32 s{sT[6]}, s{sT[5]}, 16
    v_add_u32 v{vKVS}, s{sT[6]}, v{vL16}
    s_and_b32 s{sT[3]}, s{sW}, 1
    s_mul_i32 s{sT[3]}, s{sT[3]}, {HALF}
    v_add_u32 v{vAK}, s{sT[3]}, v{vL16}
    v_add_u32 v{vAV}, s{sT[3]}, v{vPV}
    s_mul_i32 s{sT[3]}, s{sT[5]}, {HALF}
    s_and_b32 s{sT[6]}, s{sW}, 3
    s_lshl_b32 s{sT[7]}, s{sT[6]}, 11
    s_add_u32 s{sKVM}, s{sT[7]}, s{sT[3]}
    s_lshr_b32 s{sT[7]}, s2, 3
    s_add_u32 s{sT[6]}, s{sT[6]}, s{sT[7]}
    s_and_b32 s{sT[6]}, s{sT[6]}, 31
    s_lshl_b32 s{sKVO}, s{sT[6]}, 11
    s_add_u32 s{sQA}, s{sOO}, {WS_Q}
    s_xor_b32 s{sQA}, s{sQA}, 1024
    s_lshl1_add_u32 s{sGA}, s{sI}, s{sT[5]}
    s_lshl_b32 s{sGA}, s{sGA}, 7
    s_add_u32 s{sGA}, s{sGA}, {WS_G}
    v_and_b32 v{vG}, 31, v{L}
    v_lshlrev_b32 v{vG}, 2, v{vG}
    v_mov_b32 v{vIDX}, 0xdddddddd
    v_mov_b32 v{V2+1}, 0x3f803f80
    s_mov_b32 vcc_lo, 0x110000|s_mov_b32 vcc_hi, 0x110000|v_cndmask_b32 v{V2}, 0, v{V2+1}, vcc
    """)
    for r in range(V2 + 1, V2 + 12): add(11, f"v_mov_b32 v{r}, v{V2}")
    add(12, f"""
    v_add_u32 v{vDR0}, s{sRING}, v{vTRP}
    v_xor_b32 v{vDR1}, 64, v{vDR0}
    v_add_u32 v{vDS1}, 7168, v{vDS}
    s_lshr_b32 s{sT[6]}, s{sI}, 3
    s_lshl3_add_u32 s{sT[6]}, s{sT[6]}, s{sW}
    s_mul_i32 s{sT[6]}, s{sT[6]}, {14*16}
    s_and_b32 s{sT[7]}, s{sI}, 7
    s_lshl1_add_u32 s{sT[7]}, s{sT[7]}, s{sT[5]}
    s_add_u32 s{sT[6]}, s{sT[6]}, s{sT[7]}
    s_lshl_b32 s{sT[6]}, s{sT[6]}, 10
    s_add_u32 s{sT[6]}, s{sT[6]}, {WS_H}
    v_add_u32 v{vH0}, s{sT[6]}, v{vL16}
    v_xor_b32 v{vH1}, 0x400, v{vH0}
    v_lshlrev_b32 v{vF2}, 7, v{L}
    s_lshr_b32 s{sF2R}, s{sI}, 1
    s_lshl_b32 s{sF2R}, s{sF2R}, 9
    s_add_u32 s{sF2R}, s{sF2R}, {WS_F2}
    """)
    add(13, f"s_lshl_b32 s{sF2W}, s{sW}, 24\ns_add_u32 s{sF2W}, s{sF2W}, s{sF2}\nv_mov_b32 v{vONE}, 1")
    add(13, f"""
    s_mul_i32 s{sT[6]}, s{sW}, 2304
    s_add_u32 s{sT[6]}, s{sT[6]}, {MERGE}
    v_add_u32 v{vM[0]}, s{sT[6]}, v{vL16}
    v_lshl_add_u32 v{vM[2]}, v{L}, 2, s{sT[6]}
    s_xor_b32 s{sT[7]}, s{sW}, 1
    s_mul_i32 s{sT[7]}, s{sT[7]}, 2304
    s_add_u32 s{sT[7]}, s{sT[7]}, {MERGE}
    v_add_u32 v{vM[1]}, s{sT[7]}, v{vL16}
    v_lshl_add_u32 v{vM[3]}, v{L}, 2, s{sT[7]}
    """)
    for st, O in ((13, OA), (14, OB)):
        if OPT['oz']:
            add(st, f"buffer_load_dwordx4 {vr(O,4)}, v{vL16}, {srd(SDBG)}, 0 offen offset:256\nbuffer_load_dwordx4 {vr(O+4,4)}, v{vL16}, {srd(SDBG)}, 0 offen offset:256\nv_mov_b32 v{O+8}, 0")
        else:
            for r in range(9): add(st, f"v_mov_b32 v{O+r}, 0")
    if OPT['vlate']:
        cut = [i for i, x in enumerate(q) if x[1].startswith(f"v_and_b32 v{vG}, 31")][0]
        if late: return [x[1] for x in q[cut:]]
        return q[:cut]
    return [] if late else q

cold = []
def s0_check(P):
    a(f"v_cmp_eq_u32 vcc, 0, v{vS0}\ns_cbranch_vccnz L_s0retry{P}\nL_s0done{P}:")
    cold.append(f"""
    L_s0retry{P}:
    s_mov_b32 s{sT[1]}, 0
    L_s0poll{P}:
    buffer_load_dword v{vS0}, v{vZ}, {srd(SDBG)}, 0 offen sc1
    s_add_u32 s{sT[1]}, s{sT[1]}, 1
    s_waitcnt vmcnt(0)
    v_cmp_eq_u32 vcc, 0, v{vS0}
    s_cbranch_vccz L_s0done{P}
    s_cmp_lt_u32 s{sT[1]}, {SPIN}
    s_cbranch_scc1 L_s0poll{P}
    s_branch L_s0done{P}
    """)
def s1_issue(P):
    a(f"s_cmp_lg_u32 s{sW}, 0\ns_cbranch_scc1 L_nopoll0{P}")
    if P in 'GSC': s0_check(P)
    a(f"""
    s_mov_b32 s{sT[1]}, {WS_F1}
    v_lshlrev_b32 v{t1}, 7, v{L}
    buffer_load_dword v{t0}, v{t1}, {srd(SWS)}, s{sT[1]} offen sc1
    L_nopoll0{P}:
    """)
    a.vm -= 1
def s1_check(P):
    a(f"""
    s_cmp_lg_u32 s{sW}, 0
    s_cbranch_scc1 L_s1done{P}
    s_mov_b32 s{sT[0]}, 0
    L_s1poll{P}:
    s_waitcnt vmcnt(0)
    v_cmp_ne_u32 vcc, 1, v{t0}
    s_cbranch_vccz L_s1done{P}
    {'s_sleep ' + str(OPT['s1slp']) if OPT['s1slp'] else ''}
    s_mov_b64 exec, vcc
    buffer_load_dword v{t0}, v{t1}, {srd(SWS)}, s{sT[1]} offen sc1
    s_mov_b64 exec, -1
    s_add_u32 s{sT[0]}, s{sT[0]}, 1
    s_cmp_lt_u32 s{sT[0]}, {SPIN}
    s_cbranch_scc1 L_s1poll{P}
    s_waitcnt vmcnt(0)
    L_s1done{P}:
    """)
    a.vm -= 1

def proj_path(P):
    tok = {}
    PATH[0] = P
    S1 = OPT['s1']
    sched = {s: [s + 2] for s in range(6)}
    ISQ = P in 'KVP'
    PB = OPT['pbq0'] if ISQ else OPT['pb']
    QF = OPT['qf']
    sched.update({6: [8, 9], 7: [10, 11], 8: [12, 13], 9: [14, 15]}); cover = {8: 9, 10: 11, 12: 15}
    if ISQ and OPT['qmode'] == 0:
        del sched[8], sched[9]
        sched.update({10: [12, 13], 11: [14, 15]}); cover = {8: 9, 10: 11, 12: 13, 14: 15}
    bars = set(range(8)) | set(cover) | {S1}
    if OPT['gb14']: bars |= {14}
    if OPT['gbar'] and not ISQ: bars |= set(range(8, 16))
    if ISQ: bars |= {QF} | ({9} if OPT['qmode'] else set()) | (set(range(10, 16)) if OPT['qbar'] else set())
    def dma_groups(sg):
        d = dma_ops(sg, P)
        if ISQ and sg == OPT['exs']:
            d.insert(1, f"""
            s_add_u32 m0, s{sMX}, {EX}
            s_nop 0
            buffer_load_dwordx4 v{vES}, {srd(SEX)}, s{sEXO} offen lds
            buffer_load_dwordx4 v{vES}, {srd(SEX)}, s{sEXO} offen offset:1024 lds
            """)
        if P == 'S' and sg == OPT['exs']:
            d.insert(1, f"s_mov_b32 m0, {GW}\ns_nop 0\nbuffer_load_dwordx4 v{vES}, {srd(SEX)}, 0 offen lds")
        return [(x, sg if k == len(d) - 1 else None) for k, x in enumerate(d)]
    def emit(it):
        if callable(it): return it()
        a(it[0])
        if it[1] is not None: tok[it[1]] = a.lastvm()
    tok[0] = a.lastvm()
    if ISQ: mk_srd(SWQ, 6, 512 * 1024)
    if not OPT['spf']:
        for it in dma_groups(1): emit(it)
    if ISQ: mk_srd(SWG, 16, 512 * PG); mk_srd(SWU, 18, 512 * PG)
    if P in 'KVS': mk_srd(SEX, {'K': 8, 'V': 10, 'S': 22}[P], 1024 if P == 'S' else 16384)
    if P == 'P': a(f"s_cmp_lt_u32 s{sQ}, 2\ns_cselect_b64 s[{SEX}:{SEX+1}], s[8:9], s[10:11]\ns_mov_b32 s{SEX+2}, 16384\ns_mov_b32 s{SEX+3}, 0x20000")
    setup_path(P)
    if OPT['grp'] == 5: a("s_mov_b32 s6, s14\ns_mov_b32 s8, s5")
    stamp(3, 5)
    if OPT['spf']:
        for it in dma_groups(1): emit(it)
    stamp(4, 5)
    if P == 'C':
        ctok = a(f"v_lshlrev_b32 v{t0}, 7, v{L}\ns_mov_b32 s{sT[1]}, {WS_F1}\nbuffer_store_dword v{vZ}, v{t0}, {srd(SWS)}, s{sT[1]} offen sc1")
    win = {c: [] for c in range(33)}
    box = {}; front = {}; pre8 = []; lvl = [3]
    def usable(c):
        return c % 2 == 0 or ((c + 1) // 2) not in bars
    def nxt(c):
        while not usable(c): c += 1
        return c
    if not ISQ:
        gq = []
        for b in range(2):
            for j in range(4): gq += gelu_pair(ACC[0] + 16 * b, j)
            gq += to_frag(ACC[0] + 16 * b)
            if b == 0: n0 = len(gq)
        npre = 17 * (PB - 1) if PB else 0
        pre8 += [(x, None) for j in range(max(PB - 1, 0)) for x in gelu_pair(ACC[0], j, pk=OPT.get('pbk', 0))]
        gq = gq[npre:]; n0 -= npre
        ws = [c for c in range(16, OPT['gend'] + 1) if usable(c)]
        ndma = {16: 2, 17: 2, 18: 4} if 9 not in bars else {16: 4, 18: 4}
        tot = len(gq) + OPT['dwt'] * 8
        done = 0; accw = 0
        for k, c in enumerate(ws):
            accw += OPT['dwt'] * ndma.get(c, 0)
            upto = max(done, tot * (k + 1) // len(ws) - accw)
            win[c] += [(x, None) for x in gq[done:upto]]
            if done < n0 <= upto: c0 = c
            done = upto
        assert done == len(gq)
        for b in range(OPT['nearly']):
            c = nxt(max(OPT[f'h{b}w'], c0 if b == 0 else ws[-1]))
            win[c].append((f"s_sub_u32 s{sT[2]}, s{sHO}, {65536 - 16384*b}\nbuffer_store_dwordx4 {vr(ACC[0]+16*b,4)}, v{vST}, {srd(SWS)}, s{sT[2]} offen sc1", None))
    else:
        qa = [f"s_add_u32 s{sT[8]}, s{sT[4]}, {WS_Q + 4096}\ns_add_u32 s{sT[4]}, s{sT[4]}, {WS_Q}"]
        if P == 'K': qa += [f"v_mul_f32 v{ACCE+r}, {fbits(QS):#x}, v{ACCE+r}" for r in range(4)]
        sts = []
        if P in 'KV':
            qa += [f"v_cvt_pk_bf16_f32 v{vGT}, v{ACCE}, v{ACCE+1}", f"v_cvt_pk_bf16_f32 v{vGT+1}, v{ACCE+2}, v{ACCE+3}"]
            sts.append(f"buffer_store_dwordx2 {vr(vGT,2)}, v{vSA}, {srd(SWS)}, s{sEXW} offen sc1")
        if P == 'P':
            sts.append(f"s_andn2_b32 s{sT[0]}, s{sF2}, 127\nv_lshlrev_b32 v{t2}, 2, v{L}\ns_mov_b32 exec_hi, 0\nbuffer_store_dword v{vZ}, v{t2}, {srd(SWS)}, s{sT[0]} offen sc1\ns_mov_b32 exec_hi, -1")
        def qcv(i): return [f"v_cvt_pk_bf16_f32 v{ACC[0]+8*i+j}, v{ACC[0]+8*i+2*j}, v{ACC[0]+8*i+2*j+1}" for j in range(4)]
        def qst(i): return to_frag(ACC[0] + 8 * i) + [f"v_and_b32 v{ACC[0]+8*i}, -2, v{ACC[0]+8*i}\nbuffer_store_dwordx4 {vr(ACC[0]+8*i,4)}, v{vST}, {srd(SWS)}, s{sT[8 if i & 1 else 4]} offen offset:{1024*(i>>1)} sc1"]
        mark = [lambda: box.update(q=a.lastvm())]
        T = lambda l: [(x, None) for x in l]
        if OPT['qmode'] == 0 and PB:
            pre8 += T(qa + qcv(0) + qcv(1) + qcv(2) + qcv(3) + [x for i in range(4) for x in qst(i)[:2]])
            if OPT.get('pbq'): pre8 += T(sts + [qst(i)[2] for i in range(4)]) + mark
            else: win[16] += T(sts + [qst(i)[2] for i in range(2)]); win[17] += T([qst(i)[2] for i in range(2, 4)]) + mark
        elif OPT['qmode'] == 0:
            win[16] += T(qa + sts + qcv(0) + qcv(1) + qst(0) + qst(1)); win[17] += T(qcv(2) + qcv(3) + qst(2) + qst(3)) + mark
        elif OPT['qmode'] == 1:
            win[16] += T(qa + qcv(0) + qcv(1)); win[18] += T(sts + qst(0) + qcv(2)); win[20] += T(qcv(3) + qst(1) + qst(2) + qst(3)) + mark
        else:
            win[16] += T(qa + qcv(0) + qcv(1) + qcv(2) + qcv(3)); win[18] += T(sts + qst(0) + qst(1) + qst(2) + qst(3)) + mark
        def qflag():
            assert a.vm_done > box['s0']
            if P != 'P': s0_check(P)
            a(f"""
            s_lshl4_add_u32 s{sT[0]}, s{sQ}, s{sTI}
            s_lshl_b32 s{sT[0]}, s{sT[0]}, 7
            s_add_u32 s{sT[0]}, s{sT[0]}, {WS_F1}
            s_lshl_b32 s{sT[1]}, s{sW}, 24
            s_add_u32 s{sT[0]}, s{sT[0]}, s{sT[1]}
            v_mov_b32 v{t1}, 1
            s_mov_b64 exec, 1
            buffer_store_dword v{t1}, v{vZ}, {srd(SWS)}, s{sT[0]} offen sc1
            s_mov_b64 exec, -1
            """)
        if P != 'P': box['flag'] = qflag
    if P in 'GC' and OPT['mpf']:
        win[OPT['mpf']].insert(0, (f"buffer_load_dword v24, v{vES}, {srd(SEX)}, 0 offen", None))
    if P == 'S':
        win[16] = [(x, None) for x in (f"v_mul_f32 v{t2}, {fbits(-math.log2(math.e)):#x}, v{ACCE}", f"v_exp_f32 v{t2}, v{t2}", f"v_add_f32 v{t2}, 1.0, v{t2}", f"v_rcp_f32 v{t2}, v{t2}")] + win[16]
        win[20].append((f"s_mov_b64 exec, 0xffff\nbuffer_store_dword v{t2}, v{vSA}, {srd(SWS)}, s{sEXW} offen sc1\ns_mov_b64 exec, -1", None))
    queue = setup_queue()
    ws = [c for c in range(21 if ISQ else 20, 2 * S1 - 1) if usable(c)]
    for k, c in enumerate(ws):
        left = [x for x in queue if 2 * x[0] - 2 <= c]
        take = min(len(left), -(-len(queue) // (len(ws) - k)))
        win[c] += [(x[1], None) for x in left[:take]]; queue = queue[take:]
    assert not queue
    win[16].insert(0, (f"v_subrev_u32 v{vXR[0]}, {WR}, v{vWR[0]}\nv_subrev_u32 v{vXR[1]}, {WR}, v{vWR[1]}\nv_add_u32 v{vXR[2]}, {WR}, v{vWR[0]}\nv_add_u32 v{vXR[3]}, {WR}, v{vWR[1]}", None))

    def cluster(c, what='mr'):
        M = mfmas(c >> 1, c & 1) if (c >= 0 and 'm' in what) else []
        em = e_mfmas(c) if M else []
        for i, x in enumerate(em): M.insert(1 + (8 // len(em) + 1) * i, x)
        d = c + 1
        R = []
        if d < 32 and 'r' in what:
            if d < 16: R += x_reads(d >> 1, d & 1)
            for i in range(4): R += w_reads(d >> 1, d & 1, i)
            R += e_reads(d)
        a.wait(a.lastlg())
        if M and not OPT['lad']: a("s_setprio 2")
        n = max(len(M), 1); k = 0
        last = n - 1 if (c & 1 or ((c >> 1) + 1) not in bars) else n - 2
        if M: last = min(last, n - 1 - OPT['rq' if ISQ else 'rg'] if c >= 16 else n - 1 - OPT['r1'])
        for i in range(n):
            if M: a(M[i])
            want = len(R) if i >= last else -(-len(R) * (i + 1) // (last + 1))
            while k < want: a(R[k]); k += 1
        if M and not OPT['lad']: a("s_setprio 0")
        if M and OPT['lad'] and lvl[0] > 0 and not (c % 2 == 0 and (c >> 1) + 1 in bars and not (c == 14 and PB)):
            lvl[0] -= 1; a(f"s_setprio {lvl[0]}")

    for sig in range(16):
        if sig == 8 and PB:
            cluster(15, 'm')
            for it in pre8: emit(it)
        if sig in bars:
            if sig in cover or sig < 8: a.wait(tok[cover.get(sig, sig)])
            if ISQ and sig == QF: a.wait(box['q'])
            if sig == S1 and P != 'P': s1_check(P)
            if OPT['lad']: lvl[0] = 3; a("s_setprio 3")
            a("s_barrier")
            if sig == QF and 'flag' in box: box['flag']()
        if sig == 1: stamp(1)
        if sig == 8: stamp(2)
        if sig < 11: stamp(sig, 1)
        if sig < 5: stamp(5 + sig, 5)
        if sig >= 6: stamp(sig - 6, 2)
        D = []
        if P == 'C' and sig == 2:
            assert a.vm_done >= ctok[1]
            win[4].append((f"v_mov_b32 v{t0}, 1\ns_mov_b64 exec, 1\nbuffer_store_dword v{t0}, v{vZ}, {srd(SDBG)}, 0 offen sc1\ns_mov_b64 exec, -1", None))
        for sg in sched.get(sig, []): D += dma_groups(sg)
        if sig == S1: D += [(x, None) for x in first_loads()]
        if sig == (7 if ISQ else 9) and P != 'P':
            def s0_load():
                if not ISQ:
                    a(f"s_cmp_lg_u32 s{sW}, 0\ns_cbranch_scc1 L_nos0l{P}\nbuffer_load_dword v{vS0}, v{vZ}, {srd(SDBG)}, 0 offen sc1\nL_nos0l{P}:")
                    a.vm -= 1
                else:
                    a(f"buffer_load_dword v{vS0}, v{vZ}, {srd(SDBG)}, 0 offen sc1")
                box['s0'] = a.vm
            D.insert(len(D) - 1, s0_load)
        head, mid, tail = [], D, []
        if sig < OPT['late']: mid, tail = [], D
        elif (sig + 1) not in bars: mid, tail = D[:len(D)//2], D[len(D)//2:]
        elif sig in bars and len(D) >= 4: head, mid = D[:OPT['na']], D[OPT['na']:]
        for it in head: emit(it)
        cluster(2 * sig - 1, 'r' if (sig == 8 and PB) else 'mr')
        if sig == S1 - 1 and P != 'P' and OPT['s1w'] == 30:
            assert a.vm_done > box['s0']
            s1_issue(P)
        for it in front.get(2 * sig, []) + mid + win[2 * sig]: emit(it)
        cluster(2 * sig)
        for it in front.get(2 * sig + 1, []) + tail + win[2 * sig + 1]: emit(it)
    if P != 'P' and OPT['s1w'] == 31: s1_issue(P)
    a.wait(a.lastlg())
    assert not win[32]

setup_common()
if OPT['tlb']:
    a(f"s_cmp_lg_u32 s{sW}, 6\ns_cbranch_scc1 L_notlb")
    if OPT['tlb'] == 1:
        a(f"""
        v_lshlrev_b32 v{t0}, 21, v{L}
        s_mov_b32 s{sT[0]}, 0x80000
        s_mov_b64 exec, 63
        buffer_load_dword v32, v{t0}, {srd(SWS)}, s{sT[0]} offen
        s_mov_b64 exec, 1
        buffer_load_dword v33, v{vZ}, {srd(SWD)}, 0 offen
        buffer_load_dword v34, v{vZ}, {srd(SWO)}, 0 offen
        buffer_load_dword v35, v{vZ}, {srd(SOUT)}, 0 offen
        s_mov_b64 exec, -1
        """)
    else:
        a(f"""
        s_lshr_b32 s{sT[0]}, s2, 3
        s_lshl_b32 s{sT[0]}, s{sT[0]}, 16
        v_lshlrev_b32 v{t0}, 21, v{L}
        s_mov_b64 exec, 63
        buffer_load_dword v32, v{t0}, {srd(SWS)}, s{sT[0]} offen
        s_mov_b64 exec, 1
        v_mov_b32 v{t0}, s{sT[0]}
        v_min_u32 v{t1}, {1792*1024 - 4}, v{t0}
        global_load_dword v33, v{t1}, s[20:21]
        v_min_u32 v{t1}, {512*1024 - 4}, v{t0}
        global_load_dword v34, v{t1}, s[12:13]
        buffer_load_dword v35, v{t0}, {srd(SOUT)}, 0 offen
        s_mov_b64 exec, -1
        """)
    a("L_notlb:")
dispatch()
proj_path('G')
a("L_join:")
a.forget()

JE = OPT['jearly'] and OPT['s1'] == 16
if not JE:
    for m in mfmas(15, 1): a(m)
    a("s_setprio 0")
stamp(3); stamp(10, 2)
def gelu_chunk(k):
    b, jp = k >> 1, k & 1
    g0 = gelu_pair(ACC[1] + 16 * b, 2 * jp, vGT, pk=OPT['pk2']); g1 = gelu_pair(ACC[1] + 16 * b, 2 * jp + 1, t2, pk=OPT['pk2'])
    for x, y in zip(g0, g1):
        a(x); a(y)
    if k == 2:
        for x in to_frag(ACC[1]): a(x)
for k in range(OPT['jlate']): gelu_chunk(k)
stamp(5, 3)
if OPT['s1'] == 16:
    s1_check('J')
    stamp(6, 3)
    a("s_barrier")
    stamp(7, 3)
    fl = first_loads()
    if JE:
        nfirst = OPT['jearly'] - 1
        for x in fl[:nfirst]: a(x)
        for m in mfmas(15, 1): a(m)
        fl = fl[nfirst:]
    for x in fl: a(x)
stamp(4); stamp(8, 3)
fltok = a.lastvm()
HST = OPT['hst']
def hs(k):
    if k >= HST: return
    if k == 0:
        assert OPT['nearly'] == 1
        a(f"s_sub_u32 s{sT[2]}, s{sHO}, {65536 - 16384}\ns_cmp_eq_u32 s{sU}, 0\ns_cselect_b32 s{sT[2]}, {WS_SIZE}, s{sT[2]}\nbuffer_store_dwordx4 {vr(ACC[0]+16,4)}, v{vST}, {srd(SWS)}, s{sT[2]} offen sc1")
    else:
        hbox['h'] = a((f"s_add_u32 s{sHO}, s{sHO}, 16384\n" if k == 2 else "") + f"buffer_store_dwordx4 {vr(ACC[1]+16*(k-1),4)}, v{vST}, {srd(SWS)}, s{sHO} offen sc1")
hbox = {}
for k in range(OPT['jlate'], 4 - OPT['eb0']):
    gelu_chunk(k)
    if k == OPT.get('hs0', 1): hs(0)
    if k == 2: hs(1)
if not OPT['eb0']:
    for x in to_frag(ACC[1] + 16): a(x)
for x in setup_queue(True): a(x)
a(f"s_mov_b32 s{sT[8]}, 0xffff\ns_mov_b32 s{sT[9]}, 0xffff")
hs(2)
stamp(9, 3)
a.wait(fltok)
a("s_barrier")
if not OPT['eb0']: stamp(5); stamp(10, 3)

def qk(S, Q): return f"v_mfma_f32_32x32x16_bf16 {vr(S,16)}, {vr(KF,4)}, {vr(Q,4)}, 0"
def pv(O, V, S): return f"v_smfmac_f32_32x32x32_bf16 {vr(O,16)}, {vr(V,4)}, {vr(S,8)}, v{vIDX}"
NT, B1, B2 = 32, 8, OPT['b2']
def rec(t): return (t % NSLOT) * 2048
def rdK(t): return a(f"ds_read_b128 {vr(KF,4)}, v{vAK} offset:{rec(t)}")
def rdV(t2, t1):
    a(f"s_mov_b64 exec, s[{sT[8]}:{sT[9]}]")
    if t2 is not None: a(f"ds_read_b128 {vr(V2,4)}, v{vAV} offset:{rec(t2) + 1536}")
    if t1 is not None: a(f"ds_read_b128 {vr(V1[t1&1],4)}, v{vAV} offset:{rec(t1) + 1024}")
    a("s_mov_b64 exec, -1")
    return a.lastlg()
wtok, htok, rtok, box = {}, {}, {}, {}
m0own = [None]; wstart = set()
def w_off(u): return sR[u & 3] if u < 14 else sWOF
def w_load_a(u):
    a(f"s_add_u32 m0, s{sRING}, {(u & 3) * 2048}"); m0own[0] = ('w', u); wstart.add(u)
    assert u == 0 or (u - 1) in wtok
    if 0 < u < 14: a(f"s_sub_u32 s{sR[u&3]}, s{sR[(u-1)&3]}, 16384\ns_cselect_b32 s{sR[u&3]}, {13*16384}, s{sR[u&3]}")
    elif u == 14: a(f"s_lshl_b32 s{sWOF}, s{sU}, 14")
    elif u > 14: a(f"s_add_u32 s{sWOF}, s{sWOF}, 16384\ns_and_b32 s{sWOF}, s{sWOF}, 0xffff")
    a(f"buffer_load_dwordx4 v{vDS}, {srd(SWD if u < 14 else SWO)}, s{w_off(u)} offen lds")
def w_load_b(u):
    if m0own[0] != ('w', u):
        a(f"s_add_u32 m0, s{sRING}, {(u & 3) * 2048}"); m0own[0] = ('w', u)
    wtok[u] = a(f"buffer_load_dwordx4 v{vDS1}, {srd(SWD if u < 14 else SWO)}, s{w_off(u)} offen offset:1024 lds")
def h_load_a(u):
    assert u in wstart and (u + 4) not in wstart
    a(f"buffer_load_dwordx4 {vr(HF[u&3],4)}, v{vH0}, {srd(SWS)}, s{sR[u&3]} offen sc1")
def h_load_b(u):
    assert (u + 4) not in wstart
    htok[u] = a(f"buffer_load_dwordx4 {vr(HF[u&3]+4,4)}, v{vH1}, {srd(SWS)}, s{sR[u&3]} offen sc1")
def w_read(u, b):
    if b == 0: a.wait(wtok[u], htok[u])
    for e in range(2):
        rtok[u, b] = a(f"ds_read_b64_tr_b16 {vr(WF[u&1] + 4*b + 2*e, 2)}, v{(vDR0, vDR1)[b]} offset:{(u & 3) * 2048 + e*512}")
def d_mfma(u, k):
    tb, b = k >> 1, k & 1
    a.wait(rtok[u, 1])
    d = vr(DACC + 32 * tb + 16 * b, 16)
    a(f"v_mfma_f32_32x32x16_bf16 {d}, {vr(WF[u&1]+4*b,4)}, {vr(HF[u&3]+4*tb,4)}, {'0' if u == 0 else d}")

if OPT.get('x_now'):
    def w_load_a(u): pass
    def w_load_b(u): wtok[u] = None
if OPT.get('x_noh'):
    def h_load_a(u): pass
    def h_load_b(u): htok[u] = None
if OPT.get('x_noread'):
    def w_read(u, b): rtok[u, b] = None
ev, mf = {}, {}
SNAP = OPT.get('snap', 1)
B1P = 32 * (B1 - 1) + 11
EV, EVA, EK, EKA = OPT.get('ev', 5), OPT.get('eva', 0), OPT.get('ek', 11), OPT.get('eka', 0)
busy = {32 * t + o for t in range(NT) for o in (EV, EK, 18)}
def nextpos(p):
    while SNAP and (p & 15) not in (2, 5, 8, 11, 14): p += 1
    return p
def at(pos, f, limit=None):
    p = nextpos(pos)
    while SNAP and limit is not None and p in busy and nextpos(p + 1) <= limit: p = nextpos(p + 1)
    busy.add(p)
    ev.setdefault(p, []).append(f)
    return p
def h_store(b): box['h'] = a((f"s_add_u32 s{sHO}, s{sHO}, 16384\n" if b else "") + f"buffer_store_dwordx4 {vr(ACC[1]+16*b,4)}, v{vST}, {srd(SWS)}, s{sHO} offen sc1")
def late_store(k):
    a(f"""
    s_cmp_eq_u32 s{sU}, 0
    s_cbranch_scc1 L_nols{k}
    s_sub_u32 s{sT[2]}, s{sHO}, {65536 - 16384*k}
    buffer_store_dwordx4 {vr(ACC[0]+16*k,4)}, v{vST}, {srd(SWS)}, s{sT[2]} offen sc1
    L_nols{k}:
    """)
    a.vm -= 1
pp = OPT.get('p_st', 1); STS = OPT.get('p_sts', 1)
box.update(hbox)
for k in range(OPT['nearly'] + (HST > 0), 2):
    pp = at(pp, lambda k=k: late_store(k), pp + 12) + STS
if HST < 2: pp = at(pp, lambda: h_store(0), pp + 12) + STS
if HST < 3: pp = at(pp, lambda: h_store(1), pp + 12)
assert pp < B1P
def kv_emit(m, i):
    if i == 0: m0own[0] = ('kv', m)
    if m0own[0] != ('kv', m):
        a(f"s_add_u32 m0, s{sKVM}, {(4 * m % NSLOT) * 2048}"); m0own[0] = ('kv', m)
    kvtok[m] = a(kv_step(m)[i])
for m in range(KV_FIRST, 8):
    p = OPT['p_kv'] + OPT['p_kvs'] * (m - KV_FIRST) if m < 6 else OPT['p_kv2'] + 20 * (m - 6)
    p = at(p, lambda m=m: kv_emit(m, 0), p + 8)
    at(p + 1, lambda m=m: kv_emit(m, 1), p + 9)
assert OPT['p_kv2'] > B1P
def h_flag():
    a(f"s_mov_b64 exec, 1\nbuffer_store_dword v{vONE}, v{vZ}, {srd(SWS)}, s{sF2W} offen sc1\ns_mov_b64 exec, -1")
at(B1P + 1, h_flag)
def f2_load():
    box['f2'] = a(f"s_mov_b64 exec, 15\nbuffer_load_dwordx4 {vr(F2D,4)}, v{vF2}, {srd(SWS)}, s{sF2R} offen sc1")
    a("s_mov_b64 exec, -1")
at(OPT['p_f2'], f2_load, OPT['p_f2'] + 8)
def f2_check():
    a.wait(box['f2'])
    test = f"v_min3_u32 v{F2D}, v{F2D}, v{F2D+1}, v{F2D+2}\nv_min_u32 v{F2D}, v{F2D}, v{F2D+3}\nv_cmp_ne_u32 vcc, 1, v{F2D}"
    a(f"s_mov_b64 exec, 15\n{test}\ns_cbranch_vccnz L_s2retry\nL_s2done:\ns_mov_b64 exec, -1")
    cold.append(f"""
    L_s2retry:
    s_mov_b32 s{sT[1]}, 0
    L_s2poll:
    buffer_load_dwordx4 {vr(F2D,4)}, v{vF2}, {srd(SWS)}, s{sF2R} offen sc1
    s_add_u32 s{sT[1]}, s{sT[1]}, 1
    s_waitcnt vmcnt(0)
    {test}
    s_cbranch_vccz L_s2done
    s_sleep {OPT.get('slp', 6)}
    s_cmp_lt_u32 s{sT[1]}, {SPIN}
    s_cbranch_scc1 L_s2poll
    s_branch L_s2done
    """)
    a(f"buffer_load_dword v{vG}, v{vG}, {srd(SWS)}, s{sGA} offen sc1")
    stamp(9)
PCHK = at(OPT['p_chk'], f2_check, OPT['p_chk'] + 8)
D0, DE = OPT['d0'], OPT['dend']
allsl = [32 * t + o for t in range(D0, DE) for o in (8, 14, 24, 30)]
assert len(allsl) >= 56
slots = [allsl[(i * len(allsl)) // 56] for i in range(56)]
for u in range(14):
    rp = slots[0] - 16 if u == 0 else slots[4 * u - 2] + 1
    lim = slots[4 * u] - 9
    p = at(rp, lambda u=u: w_read(u, 0), lim - 3); at(p + 1, lambda u=u: w_read(u, 1), lim)
    for k in range(4): mf[slots[4 * u + k]] = (lambda u=u, k=k: d_mfma(u, k))
for u in range(18):
    pw = OPT['p_fill'] + OPT['p_fills'] * u if u < 4 else slots[4 * (u - 4)] + 1
    p = at(pw, lambda u=u: w_load_a(u), pw + 8); p = at(p + 1, lambda u=u: w_load_b(u), p + 8)
    if u < 3:
        ph = PCHK + 1 + OPT.get('p_hs', 13) * u
        p = at(ph, lambda u=u: h_load_a(u), ph + 4); at(p + 1, lambda u=u: h_load_b(u), p + 5)
    if 4 <= u < 15:
        p = at(p + 1, lambda u=u: h_load_a(u - 1), p + 8); at(p + 1, lambda u=u: h_load_b(u - 1), p + 8)
for lo, hi, fr in ((0, B1P, (OPT.get('la1', 30), OPT.get('la2', 70), OPT.get('la3', 94))), (B1P, 32 * B2, (OPT.get('lb1', 35), OPT.get('lb2', 80), OPT.get('lb3', 96))),
                   (32 * B2, 32 * NT, (OPT.get('lc1', 60), OPT.get('lc2', 87), OPT.get('lc3', 96)))):
    for k in range(3): at(lo + ((hi - lo) * fr[k]) // 100, lambda k=k: a(f"s_setprio {2-k}"))

at(32 * NT - 2, lambda: a(f"ds_write_b128 v{vM[0]}, {vr(OA,4)}\nds_write_b128 v{vM[0]}, {vr(OA+4,4)} offset:1024\nds_write_b32 v{vM[2]}, v{OA+8} offset:2048"))

a("s_setprio 3")
tK = rdK(0); tV = rdV(None, 0)
for k in range(4 - OPT['eb0'], 4): gelu_chunk(k)
if OPT['eb0']: stamp(5); stamp(10, 3)
a.wait(tK)
a(qk(SA, QA))
if OPT['eb0']:
    for x in to_frag(ACC[1] + 16): a(x)
for t in range(NT):
    if t == B2:
        a.wait(kvtok[7]); a("s_barrier\ns_setprio 3"); stamp(0)
    nx = t + 1 if t + 1 < NT else None
    for ph, (S, So, O, Oo, Qo) in enumerate(((SA, SB, OA, OB, QB), (SB, SA, OB, OA, QA))):
        for e in range(16):
            pos = 32 * t + 16 * ph + e
            def own(after):
                global tV, tK
                if ph == 0 and (e, after) == (EV, EVA):
                    if t == 0: a.wait(tV)
                    tV = rdV(t, nx if t != B1 - 1 else None)
                if ph == 0 and (e, after) == (EK, EKA) and nx and t != B1 - 1: tK = rdK(nx)
            for f in ev.pop(pos, []): f()
            own(0)
            if pos == B1P:
                a.wait(kvtok[5], box['h'], tV); a("s_barrier\ns_setprio 3"); stamp(6)
                tK = rdK(nx); tV = rdV(None, nx)
            if e == 2:
                if ph == 1: a.wait(tV, None if OPT.get('w2') else tK)
                if t > 0 or ph == 1: a(pv(Oo, V2, So + 8))
            if (e == 5 and not (t == 0 and ph == 0)) or (t == 0 and ph == 0 and e == 0):
                if ph == 1: a.wait(tK)
                if ph == 0 or nx: a(qk(So, Qo))
            if e == 11: a(pv(O, V1[t & 1], S))
            if pos in mf: mf.pop(pos)()
            own(1)
            a(f"v_exp_f32 v{S+e}, v{S+e}")
assert not mf
assert not ev, sorted(ev)
if OPT['woe']: a.wait(wtok[17])
a(pv(OB, V2, SB + 8))
a.wait_lg0()
stamp(7); stamp(0, 4)
a("s_barrier")
stamp(1, 4)
a(f"""
ds_read_b32 v{SA+8}, v{vM[3]} offset:2048
ds_read_b128 {vr(SA,4)}, v{vM[1]}
ds_read_b128 {vr(SA+4,4)}, v{vM[1]} offset:1024
s_add_u32 s{sOO}, s{sOO}, {WS_O}
s_mov_b32 s{sT[6]}, {fbits(2.0**-60):#x}
s_mov_b32 s{sT[7]}, {fbits(2.0**60) - fbits(2.0**-60):#x}
s_lshl_b32 s{sT[3]}, s{sW}, 13
s_xor_b32 s{sT[2]}, s{sT[3]}, 0x8000
v_add_u32 v24, s{sT[2]}, v{vL16}
v_add_u32 v26, s{sT[3]}, v{vL16}
s_waitcnt lgkmcnt(2)
v_add_f32 v{OB+8}, v{OB+8}, v{SA+8}
v_rcp_f32 v{t0}, v{OB+8}
""")
a.wait_lg0()
OS = 128
for j in range(2): a(f"v_pk_add_f32 {vr(OB+2*j,2)}, {vr(OB+2*j,2)}, {vr(SA+2*j,2)}")
a(f"v_mul_f32 v{t0}, v{t0}, v{vG}")
for j in range(2, 4): a(f"v_pk_add_f32 {vr(OB+2*j,2)}, {vr(OB+2*j,2)}, {vr(SA+2*j,2)}")
for j in range(4): a(f"v_pk_mul_f32 {vr(OB+2*j,2)}, {vr(OB+2*j,2)}, {vr(t0,2)} op_sel_hi:[1,0]")
a(f"""
v_pk_add_f32 {vr(t2,2)}, {vr(OB,2)}, {vr(OB+2,2)}
v_pk_add_f32 {vr(t0,2)}, {vr(OB+4,2)}, {vr(OB+6,2)}
v_cvt_pk_bf16_f32 v{OS}, v{OB}, v{OB+1}
v_pk_add_f32 {vr(t2,2)}, {vr(t2,2)}, {vr(t0,2)}
v_cvt_pk_bf16_f32 v{OS+1}, v{OB+2}, v{OB+3}
v_add_f32 v{t2}, v{t2}, v{t3}
v_cvt_pk_bf16_f32 v{OS+2}, v{OB+4}, v{OB+5}
v_fma_f32 v{t2}, v{t2}, 0, v{OB+8}
v_cvt_pk_bf16_f32 v{OS+3}, v{OB+6}, v{OB+7}
v_subrev_u32 v{t2}, s{sT[6]}, v{t2}
v_or_b32 v{OS}, 1, v{OS}
v_cmp_lt_u32 vcc, s{sT[7]}, v{t2}
""")
if OPT['force_fb']: a("s_mov_b64 vcc, -1")
a(f"""
s_cbranch_vccnz L_true_max
L_norm:
buffer_store_dwordx4 {vr(OS,4)}, v{vL16}, {srd(SWS)}, s{sOO} offen sc1
""")
stamp(8); stamp(2, 4)

OF, WOF, XT = 32, 176, 96
vO1 = 27
fill = f"""
s_and_b32 s{sT[1]}, s{sW}, 3
s_lshl_b32 s{sT[2]}, s{sT[1]}, 13
s_add_u32 s{sT[2]}, s{sT[2]}, {RING}
v_add_u32 v28, s{sT[2]}, v{vTRP}
v_xor_b32 v29, 64, v28
v_sub_f32 v{vG}, 1.0, v{vG}
v_add_u32 v{vO1}, 0x4000, v{vL16}
s_lshr_b32 s{sT[9]}, s{sW}, 2
s_lshl1_add_u32 s{sT[0]}, s{sI}, s{sT[9]}
s_lshl3_add_u32 s{sT[0]}, s{sT[0]}, s{sT[1]}
s_lshl_b32 s{sT[0]}, s{sT[0]}, 12
s_add_u32 s{sT[0]}, s{sT[0]}, {WS_O}
s_lshl4_add_u32 s{sT[8]}, s{sT[9]}, s{sT[1]}
s_lshl_b32 s{sT[8]}, s{sT[8]}, 11
""".strip().split('\n')
for v in range(4):
    fill += f"s_add_u32 s{sT[1]}, s{sU}, {v}\ns_and_b32 s{sT[1]}, s{sT[1]}, 3\ns_lshl_b32 s{sT[1]}, s{sT[1]}, 10\ns_add_u32 s{sT[4+v]}, s{sT[0]}, s{sT[1]}".split('\n')
fill += f"""
v_and_b32 v{t0}, 31, v{L}
v_lshrrev_b32 v{t1}, 5, v{L}
v_and_b32 v{t2}, 7, v{L}
v_xor_b32 v{t1}, v{t1}, v{t2}
v_lshlrev_b32 v{t1}, 4, v{t1}
v_lshl_add_u32 v{t0}, v{t0}, 8, v{t1}
v_add_u32 v9, s{sT[3]}, v{t0}
v_xor_b32 v10, 32, v9
v_xor_b32 v11, 64, v9
v_xor_b32 v12, 0x60, v9
v_lshrrev_b32 v{t0}, 3, v{L}
v_lshlrev_b32 v{t1}, 1, v{t2}
v_xor_b32 v{t1}, v{t1}, v{t0}
v_lshlrev_b32 v{t1}, 4, v{t1}
v_lshl_add_u32 v{t1}, v{t0}, 8, v{t1}
v_add_u32 v1, s{sT[8]}, v{t1}
v_xor_b32 v2, 16, v1
s_lshl3_add_u32 s{sT[3]}, s{sI}, s{sW}
s_lshl_b32 s{sT[3]}, s{sT[3]}, 6
s_add_u32 s{sT[3]}, s{sT[3]}, s{sJ}
s_lshl_b32 s{sT[3]}, s{sT[3]}, 7
v_lshlrev_b32 v{t2}, 4, v{t2}
v_lshl_add_u32 v5, v{t0}, 10, v{t2}
s_mov_b32 s{sT[2]}, 0
""".strip().split('\n')
def wo_read(v):
    slot = ((14 + v) & 3) * 2048 + (v >> 2) * 32768
    for b in range(2):
        for e in range(2):
            a(f"ds_read_b64_tr_b16 {vr(WOF + 8*v + 4*b + 2*e, 2)}, v{28 + b} offset:{slot + e*512}")
for j in range(8):
    xw = a(f"ds_write_b128 v24, {vr(DACC+32+4*j,4)} offset:{1024*j}")
    for x in fill[len(fill) * j // 8: len(fill) * (j + 1) // 8]: a(x)
    if OPT['woe'] == 1: wo_read(j)
if OPT['woe'] == 2:
    for j in range(8): wo_read(j)
def o_loads():
    for v in range(8):
        a(f"buffer_load_dwordx4 {vr(OF + 4*v, 4)}, v{vO1 if v >> 2 else vL16}, {srd(SWS)}, s{sT[4 + (v&3)]} offen sc1")
stamp(3, 4)
a.wait(wtok[17], xw)
a(f"s_cmp_ge_u32 s{sW}, 4")
if not OPT['oe']: a("s_barrier"); stamp(4, 4)
a("s_setprio 1\ns_cbranch_scc1 L_ol1\ns_setprio 0")
o_loads()
a("L_ol1:")
if OPT['oe']: a("s_barrier"); stamp(4, 4)
xt = [a(f"ds_read_b128 {vr(XT+4*j,4)}, v26 offset:{1024*j}") for j in range(8)]
for j in range(8):
    a.wait(xt[j])
    for i in range(2):
        r = 4 * j + 2 * i
        a(f"v_pk_add_f32 {vr(DACC+r,2)}, {vr(DACC+r,2)}, {vr(XT+r,2)}")
    for i in range(2):
        r = 4 * j + 2 * i
        a(f"v_pk_mul_f32 {vr(DACC+r,2)}, {vr(DACC+r,2)}, {vr(vG,2)} op_sel_hi:[1,0]")
stamp(5, 4)
a("s_setprio 0\ns_cbranch_scc0 L_ol2")
o_loads()
a("L_ol2:")
if not OPT['woe']:
    for j in range(8): wo_read(j)
stamp(6, 4)
a.wait_lg0()
ND = XT
a("L_s3poll:")
def wo_mfma(v, b): a(f"v_mfma_f32_32x32x16_bf16 {vr(ND+16*b,16)}, {vr(WOF+8*v+4*b,4)}, {vr(OF+4*v,4)}, {vr((DACC if v == 0 else ND)+16*b,16)}")
def chk(v): a(f"v_and_b32 v{t0}, {1 if v == 0 else 'v' + str(t0)}, v{OF+4*v}")
def xsite():
    a(f"s_cmp_eq_u32 s{sT[9]}, 0\ns_cbranch_scc1 L_nox\ns_mov_b32 s{sT[9]}, 0\ns_barrier\nL_nox:")
for v in range(6):
    a(f"s_waitcnt vmcnt({7-v})")
    if v == 0: stamp(10); stamp(7, 4)
    wo_mfma(v, 0); chk(v); wo_mfma(v, 1)
    if v == OPT['xsite']: xsite()
a("s_waitcnt vmcnt(1)"); wo_mfma(6, 0); chk(6)
a("s_waitcnt vmcnt(0)"); wo_mfma(7, 0); chk(7)
a.vm_done = a.vm
wo_mfma(6, 1)
if OPT['xsite'] == 6: xsite()
a(f"v_cmp_eq_u32 vcc, 0, v{t0}")
wo_mfma(7, 1)
if OPT['xsite'] == 7: xsite()
a("s_cbranch_vccnz L_s3retry\nL_s3done:")
stamp(8, 4)
for b in range(2):
    if OPT['xsite'] >= 6: a("s_nop 2" if b == 0 else "s_nop 3")
    for qd in range(4): a(f"ds_write_b128 v{9+qd}, {vr(ND + 16*b + 4*qd, 4)} offset:{b*128}")
a(f"s_cmp_ge_u32 s{sW}, 4")
a.wait_lg0()
a("s_barrier")
stamp(9, 4)
RD = 176
rt = []
for p in range(4):
    for e in range(2):
        rt.append(a(f"ds_read_b128 {vr(RD + 8*p + 4*e, 4)}, v{1 + e} offset:{p*8192}"))
for p in range(1, 4):
    a.wait(rt[2 * p + 1])
    for j in range(4):
        if OPT.get('fpk', 1): a(f"v_pk_add_f32 {vr(RD+2*j,2)}, {vr(RD+2*j,2)}, {vr(RD+8*p+2*j,2)}")
        else: a(f"v_add_f32 v{RD+2*j}, v{RD+2*j}, v{RD+8*p+2*j}\nv_add_f32 v{RD+2*j+1}, v{RD+2*j+1}, v{RD+8*p+2*j+1}")
for j in range(4): a(f"v_cvt_pk_bf16_f32 v{RD+j}, v{RD+2*j}, v{RD+2*j+1}")
a(f"buffer_store_dwordx4 {vr(RD,4)}, v5, {srd(SOUT)}, s{sT[3]} offen {['', 'sc1'][OPT['outm']]}")
a("s_cbranch_scc1 L_noy\ns_barrier\nL_noy:")
stamp(10, 4)
if OPT['stamp']:
    a("s_waitcnt vmcnt(0)")
    stamp(11)
    a("s_waitcnt lgkmcnt(0)")
    a(f"s_mov_b32 s28, s{sT[2]}")
    if 'span' in OPT:
        a(f"""
        s_lshl3_add_u32 s{sT[0]}, s2, s{sW}
        s_lshl_b32 s{sT[0]}, s{sT[0]}, 3
        s_add_u32 s{sT[0]}, s{sT[0]}, {WS_STAMP}
        v_mov_b32 v1, 0
        v_mov_b32 v2, s{4+2*OPT['span']}
        v_mov_b32 v3, s30
        s_mov_b64 exec, 1
        buffer_store_dwordx2 v[2:3], v1, {srd(SWS)}, s{sT[0]} offen sc1
        s_mov_b64 exec, -1
        s_add_u32 s{sT[0]}, s2, s{sW}
        s_cmp_lg_u32 s{sT[0]}, 0
        s_cbranch_scc1 L_end
        L_pad0:
        s_memrealtime s[{sT[2]}:{sT[3]}]
        s_waitcnt lgkmcnt(0)
        s_sub_u32 s{sT[2]}, s{sT[2]}, s30
        s_cmp_lt_u32 s{sT[2]}, 4500
        s_cbranch_scc1 L_pad0
        v_mov_b32 v4, 0
        v_mov_b32 v5, -1
        s_sub_u32 s{sT[1]}, s30, 1000
        """)
        for g in range(16):
            a(f"""
            s_mov_b32 s{sT[0]}, {WS_STAMP + 1024*g}
            buffer_load_dwordx4 v[8:11], v{vL16}, {srd(SWS)}, s{sT[0]} offen sc1
            s_waitcnt vmcnt(0)
            v_subrev_u32 v8, s{sT[1]}, v8
            v_subrev_u32 v9, s{sT[1]}, v9
            v_subrev_u32 v10, s{sT[1]}, v10
            v_subrev_u32 v11, s{sT[1]}, v11
            v_max3_u32 v4, v4, v8, v10
            v_min3_u32 v5, v5, v9, v11
            """)
        a(f"s_mov_b32 s{sT[4]}, 0\ns_mov_b32 s{sT[5]}, -1")
        for i in range(64): a(f"v_readlane_b32 s{sT[6]}, v4, {i}\nv_readlane_b32 s{sT[7]}, v5, {i}\ns_nop 0\ns_max_u32 s{sT[4]}, s{sT[4]}, s{sT[6]}\ns_min_u32 s{sT[5]}, s{sT[5]}, s{sT[7]}")
        a(f"""
        s_sub_u32 s{sT[0]}, s{sT[4]}, s{sT[5]}
        s_sub_u32 s{sT[0]}, s{sT[0]}, {OPT.get('spanb', 2000)}
        s_min_u32 s{sT[0]}, s{sT[0]}, 2500
        s_mul_i32 s{sT[0]}, s{sT[0]}, 10
        s_add_u32 s{sT[0]}, s{sT[0]}, 6000
        L_pad:
        s_memrealtime s[{sT[2]}:{sT[3]}]
        s_waitcnt lgkmcnt(0)
        s_sub_u32 s{sT[2]}, s{sT[2]}, s30
        s_cmp_lt_u32 s{sT[2]}, s{sT[0]}
        s_cbranch_scc1 L_pad
        """)
    elif 'crit' in OPT:
        a(f"""
        s_cmp_lg_u32 s{sW}, 7
        s_cbranch_scc1 L_end
        s_lshl_b32 s{sT[0]}, s2, 6
        s_add_u32 s{sT[0]}, s{sT[0]}, {WS_STAMP}
        v_mov_b32 v1, 0
        """)
        for k in range(14): a(f"v_mov_b32 v2, s{4+2*k}\nbuffer_store_dword v2, v1, {srd(SWS)}, s{sT[0]} offen offset:{4*k} sc1")
        a(f"""
        s_cmp_lg_u32 s2, 0
        s_cbranch_scc1 L_end
        L_pad0:
        s_memrealtime s[{sT[2]}:{sT[3]}]
        s_waitcnt lgkmcnt(0)
        s_sub_u32 s{sT[2]}, s{sT[2]}, s30
        s_cmp_lt_u32 s{sT[2]}, 5000
        s_cbranch_scc1 L_pad0
        v_lshlrev_b32 v1, 6, v{L}
        s_mov_b32 s{sT[4]}, 0
        s_mov_b32 s{sT[5]}, -1
        """)
        for g in range(4):
            a(f"""
            s_mov_b32 s{sT[0]}, {WS_STAMP + 4096*g}
            buffer_load_dword v2, v1, {srd(SWS)}, s{sT[0]} offen offset:{4*OPT['crit']} sc1
            buffer_load_dword v3, v1, {srd(SWS)}, s{sT[0]} offen offset:52 sc1
            s_waitcnt vmcnt(0)
            v_subrev_u32 v2, s30, v2
            v_add_u32 v2, 1000, v2
            v_lshlrev_b32 v2, 8, v2
            v_add_u32 v2, v2, v{L}
            v_add_u32 v2, {64*g}, v2
            v_subrev_u32 v3, s30, v3
            v_add_u32 v3, 1000, v3
            s_nop 1
            """)
            for i in range(64): a(f"v_readlane_b32 s{sT[6]}, v2, {i}\nv_readlane_b32 s{sT[7]}, v3, {i}\ns_nop 0\ns_max_u32 s{sT[4]}, s{sT[4]}, s{sT[6]}\ns_min_u32 s{sT[5]}, s{sT[5]}, s{sT[7]}")
        a(f"""
        s_and_b32 s{sT[4]}, s{sT[4]}, 255
        s_lshl_b32 s{sT[0]}, s{sT[4]}, 6
        s_add_u32 s{sT[0]}, s{sT[0]}, {WS_STAMP}
        v_lshlrev_b32 v1, 2, v{L}
        buffer_load_dword v2, v1, {srd(SWS)}, s{sT[0]} offen sc1
        s_add_u32 s{sT[5]}, s{sT[5]}, s30
        s_sub_u32 s{sT[5]}, s{sT[5]}, 1000
        s_waitcnt vmcnt(0)
        v_subrev_u32 v2, s{sT[5]}, v2
        s_nop 1
        v_writelane_b32 v2, s{sT[4]}, 14
        s_mov_b64 exec, 0x7fff
        buffer_store_dword v2, v1, {srd(SDBG)}, 0 offen offset:4
        """)
    elif 'dk' in OPT:
        a(f"""
        s_cmp_lg_u32 s{sW}, {OPT.get('dw', 7)}
        s_cbranch_scc1 L_end
        s_lshl_b32 s{sT[0]}, s2, 2
        s_add_u32 s{sT[0]}, s{sT[0]}, {WS_STAMP}
        v_mov_b32 v2, s{4+2*OPT['dk']}
        v_mov_b32 v1, 0
        buffer_store_dword v2, v1, {srd(SWS)}, s{sT[0]} offen sc1
        s_cmp_lg_u32 s2, 0
        s_cbranch_scc1 L_end
        L_pad0:
        s_memrealtime s[{sT[2]}:{sT[3]}]
        s_waitcnt lgkmcnt(0)
        s_sub_u32 s{sT[2]}, s{sT[2]}, s30
        s_cmp_lt_u32 s{sT[2]}, 5000
        s_cbranch_scc1 L_pad0
        v_mul_u32_u24 v1, {4*OPT['dstride']}, v{L}
        s_mov_b32 s{sT[0]}, {WS_STAMP + 4*OPT['dbase']}
        buffer_load_dword v2, v1, {srd(SWS)}, s{sT[0]} offen sc1
        s_waitcnt vmcnt(0)
        v_subrev_u32 v2, s30, v2
        v_add_u32 v2, 100000, v2
        s_mov_b32 s{sT[4]}, 0
        s_mov_b32 s{sT[5]}, -1
        """)
        for i in range(OPT['dn']): a(f"v_readlane_b32 s{sT[6]}, v2, {i}\ns_nop 1\ns_max_u32 s{sT[4]}, s{sT[4]}, s{sT[6]}\ns_min_u32 s{sT[5]}, s{sT[5]}, s{sT[6]}")
        a(f"""
        s_sub_u32 s{sT[0]}, s{sT[4]}, s{sT[5]}
        s_min_u32 s{sT[0]}, s{sT[0]}, 2000
        s_mul_i32 s{sT[0]}, s{sT[0]}, 10
        s_add_u32 s{sT[0]}, s{sT[0]}, 6000
        L_pad:
        s_memrealtime s[{sT[2]}:{sT[3]}]
        s_waitcnt lgkmcnt(0)
        s_sub_u32 s{sT[2]}, s{sT[2]}, s30
        s_cmp_lt_u32 s{sT[2]}, s{sT[0]}
        s_cbranch_scc1 L_pad
        """)
    elif 'pad' in OPT:
        K = OPT['pad']
        a(f"s_and_b32 s{sT[0]}, s2, {OPT.get('padm', 0)}\ns_cmp_lg_u32 s{sT[0]}, {OPT.get('padv', 0)}\ns_cbranch_scc1 L_end")
        if K >= 0: a(f"s_sub_u32 s{sT[0]}, s{4+2*K}, s{4+2*OPT.get('padb', 13)}\ns_mul_i32 s{sT[0]}, s{sT[0]}, {OPT.get('padx', 4)}")
        else: a(f"s_mov_b32 s{sT[0]}, 0")
        a(f"""
        s_add_u32 s{sT[0]}, s{sT[0]}, 6000
        L_pad:
        s_memrealtime s[{sT[2]}:{sT[3]}]
        s_waitcnt lgkmcnt(0)
        s_sub_u32 s{sT[2]}, s{sT[2]}, s30
        s_cmp_lt_u32 s{sT[2]}, s{sT[0]}
        s_cbranch_scc1 L_pad
        """)
    else:
        a(f"s_lshl3_add_u32 s{sT[0]}, s2, s{sW}\ns_lshl_b32 s{sT[0]}, s{sT[0]}, 6\ns_add_u32 s{sT[0]}, s{sT[0]}, {WS_STAMP}")
        a("v_mov_b32 v1, 0\ns_mov_b64 exec, 1")
        for k in range(14):
            a(f"v_mov_b32 v2, s{4+2*k}\nbuffer_store_dword v2, v1, {srd(SWS)}, s{sT[0]} offen offset:{4*k}")
a("L_end:\ns_endpgm")
a("L_s3retry:")
o_loads()
a(f"""
s_add_u32 s{sT[2]}, s{sT[2]}, 1
s_cmp_lt_u32 s{sT[2]}, {SPIN}
s_nop 7
s_cbranch_scc1 L_s3poll
s_waitcnt vmcnt(0)
s_branch L_s3done
""")

for P in 'KVPSC':
    a(f".p2align 6\nL_path{P}:")
    a.forget()
    proj_path(P)
    a("s_branch L_join")
for x in cold: a(x)

CM = SB
a(f"""
L_true_max:
s_waitcnt vmcnt(0) lgkmcnt(0)
v_mov_b32 v{t0}, 0xff800000
s_mov_b32 s{sT[0]}, {WS_KV}
L_tm1:
buffer_load_dwordx4 {vr(KF,4)}, v{vL16}, {srd(SWS)}, s{sT[0]} offen sc1
s_waitcnt vmcnt(0)
{qk(SA, QB)}
""")
for j in range(8): a(f"v_max3_f32 v{t0}, v{t0}, v{SA+2*j}, v{SA+2*j+1}")
a(f"""
s_add_u32 s{sT[0]}, s{sT[0]}, 2048
s_cmp_lt_u32 s{sT[0]}, {WS_KV + 64*2048}
s_cbranch_scc1 L_tm1
v_mov_b32 v{t1}, v{t0}
v_permlane32_swap_b32 v{t0}, v{t1}
v_max_f32 v{t0}, v{t0}, v{t1}
""")
for r in range(16): a(f"v_sub_f32 v{CM+r}, 0, v{t0}\nv_mov_b32 v{OB+r}, 0")
a(f"""
s_mov_b32 s{sT[0]}, {WS_KV}
L_tm2:
buffer_load_dwordx4 {vr(KF,4)}, v{vL16}, {srd(SWS)}, s{sT[0]} offen sc1
s_mov_b64 exec, s[{sT[8]}:{sT[9]}]
buffer_load_dwordx4 {vr(V1[0],4)}, v{vPV}, {srd(SWS)}, s{sT[0]} offen offset:1024 sc1
buffer_load_dwordx4 {vr(V2,4)}, v{vPV}, {srd(SWS)}, s{sT[0]} offen offset:1536 sc1
s_mov_b64 exec, -1
s_waitcnt vmcnt(0)
v_mfma_f32_32x32x16_bf16 {vr(SA,16)}, {vr(KF,4)}, {vr(QB,4)}, {vr(CM,16)}
""")
for e in range(16): a(f"v_exp_f32 v{SA+e}, v{SA+e}")
a(pv(OB, V1[0], SA)); a(pv(OB, V2, SA + 8))
a(f"""
s_add_u32 s{sT[0]}, s{sT[0]}, 2048
s_cmp_lt_u32 s{sT[0]}, {WS_KV + 64*2048}
s_nop 7
s_cbranch_scc1 L_tm2
s_nop 7
v_rcp_f32 v{t0}, v{OB+8}
s_nop 0
v_mul_f32 v{t0}, v{t0}, v{vG}
""")
for j in range(4): a(f"v_pk_mul_f32 {vr(OB+2*j,2)}, {vr(OB+2*j,2)}, {vr(t0,2)} op_sel_hi:[1,0]")
for j in range(4): a(f"v_cvt_pk_bf16_f32 v{OS+j}, v{OB+2*j}, v{OB+2*j+1}")
a(f"v_or_b32 v{OS}, 1, v{OS}")
a("s_branch L_norm\nL_last:")

bad = a.check_branches()
assert not bad, bad

hdr = open(f'cdna_kernels/{NAME}.s.ref').read().split('\n')
head = [l for l in hdr if l.startswith(';') and '@launch' not in l]
body = a.text()
if OPT.get('jit'):
    import random
    rnd = random.Random(OPT['jit']); o = []; n = 0
    for l in body.split('\n'):
        t = l.strip()
        if (t.startswith(('buffer_store', 'ds_write_b128')) or (o and o[-1].strip() == 's_barrier')) and rnd.random() < 0.5:
            n += 1
            o += [f"    s_cselect_b32 s1, 1, 0", f"    s_add_u32 s0, s2, s{sMW}", f"    s_mul_i32 s0, s0, {rnd.randrange(1 << 20, 1 << 30) | 1}", f"    s_bitcmp1_b32 s0, 27",
                  f"    s_cbranch_scc0 L_jit{n}", f"    s_sleep {rnd.randrange(1, 40)}", f"L_jit{n}:", f"    s_cmp_lg_u32 s1, 0"]
        o.append(l)
    body = '\n'.join(o)
if OPT.get('stm'):
    import re
    body = re.sub(r'(buffer_store_dwordx4 .*s\[52:55\].*) sc1', lambda m: m.group(1) + [' sc1', ' sc1 nt', ' sc0 sc1', ' sc0 sc1 nt'][OPT['stm']], body)
out = "\n".join(head) + f"\n; @launch grid=(256,1,1) block=(512,1,1) lds={LDS_BYTES}\n"
out += f""".amdgcn_target "amdgcn-amd-amdhsa--gfx950"
.text
.globl {NAME}_kernel
.p2align 8
.type {NAME}_kernel,@function
{NAME}_kernel:
{body}
.section .rodata,"a"
.p2align 6
.amdhsa_kernel {NAME}_kernel
  .amdhsa_next_free_vgpr 256
  .amdhsa_next_free_sgpr 102
  .amdhsa_accum_offset 256
  .amdhsa_group_segment_fixed_size 0
  .amdhsa_kernarg_size 104
  .amdhsa_user_sgpr_count 2
  .amdhsa_user_sgpr_kernarg_segment_ptr 1
  .amdhsa_system_sgpr_workgroup_id_x 1
.end_amdhsa_kernel
"""
open(sys.argv[1], 'w').write(out)
print("instructions:", sum(1 for i in a.ins if i.ws), "auto nops:", a.nnop, file=sys.stderr)
```

```python
import sys, math, struct
sys.path.insert(0, 'gen')
from asmlib import Asm

NAME = 'gated_mix__grouped_kv_mqa__geglu_ffn__prompt'
OPT = dict(stamp=0, grp=0, force_fb=0, qflag=11, s1=16, b2=22, outm=1, ofast=0,
           p_kv=20, p_kvs=40, p_st=1, p_sts=40, p_fill=160, p_fills=70, p_kv2=390, p_f2=440, p_chk=470, d0=16, dend=32,
           late=0, pk2=1, nearly=1, h0w=24, h1w=30, clw=22, na=1, gend=30, dwt=0, qbar=0, cpf=1, qmode=0, qf=11, exs=1, spf=1, pb=1, pbq0=0, rq=1, rg=1, r1=1, qfirst=0, vlate=0, jearly=5, xsite=5, woe=0, oe=0, tlb=0, rotm=2, rots=12, dxs=3, wt=1, mpf=21, pal=1, drot=42, kvr=4, oG=768, oK=704, oP=1280, oS=640, hst=0, oz=0, eb0=0, lb1=50, lb3=92, lc1=70, jlate=0, s1slp=0, s1w=30, lad=1, gb14=1, gbar=0)
for x in sys.argv[2:]:
    k, v = x.split('='); OPT[k] = int(v)

OPT['oV'] = OPT['oK']; OPT['oC'] = min(OPT['oG'], 448)
def fbits(x): return struct.unpack('<I', struct.pack('<f', x))[0]

WS_KV, WS_G, WS_F1, WS_Q, WS_H, WS_STAMP = 0, 0x20000, 0x30000, 0x300000, 0x500000, 0xC00000
WS_O = WS_Q
WS_F2 = WS_F1 + 8192
WS_SIZE = 0x1000000
CLEAR_WG = 128
WR, EX = 65536, 131072
NSLOT, HALF, RING = 24, 49152, 98304
MERGE = 65536
LDS_BYTES = 163840
SPIN = 0x400000
SX, SWG, SWU, SWQ, SEX, SWS, SDBG, SWD, SWO, SOUT = 32, 36, 40, 44, 48, 52, 56, 60, 64, 92
sW, sTI, sQ, sU, sROT, sXO, sWOF, sMX, sMW, sI, sJ, sROT0 = range(68, 80)
sT = list(range(80, 90))
sEXW, sEXO = 90, 91
sC1 = 96
sF2, sRH, sRING, sOO = 98, 99, 100, 101
sHO = 3
sKVM, sKVO, sQA, sGA = 32, 33, 34, 35
sF2R, sF2W = 46, 38
sR = [sRH, 44, 45, 47]
def srd(n): return f"s[{n}:{n+3}]"
def vr(b, n): return f"v[{b}:{b+n-1}]"

vXS0, vXS1, vWS = 1, 2, 3
vST = 4
vXR = [5, 6, 7, 8]
vWR = [9, 10]
vES, vER, vSA = 11, [12, 13], 30
vL16, vLANE = 14, 15
vC0 = 16
vZ = 17
vGT = 18
t0, t1, t2, t3 = 20, 21, 22, 23
vS0, vWS2 = 28, 27
vPV, vPD, vTRP = 29, 0, 31
F = [32, 48]
ACC = [64, 96]
XF = 128
ACCE, WE = 96, 100
GW = 147456
L = vLANE
QA, QB, KF, V2, V1 = 128, 132, 136, 140, [144, 148]
vG, vIDX, vAK, vAV, vKVS = 152, 154, 155, 156, 157
vDR0, vDR1, vH0, vH1 = 159, 160, 161, 162
vDS, vDS1, vF2 = vPD, 158, 163
F2D = 164
vONE = 168
vM = [169, 170, 171, 172]
OA, OB, SA, SB = 176, 192, 208, 224
WF = [240, 248]
HF = [32, 40, 48, 56]
DACC = 64

a = Asm()
CLK = 's_memtime' if OPT['stamp'] == 2 else 's_memrealtime'
def stamp(k, grp=0):
    if grp != OPT['grp'] and k != 11: return
    if OPT['stamp']: a(f"{CLK} s[{4+2*k}:{5+2*k}]")
def mk_srd(n, p, size):
    a(f"s_mov_b32 s{n}, s{p}\ns_mov_b32 s{n+1}, s{p+1}\ns_mov_b32 s{n+2}, {size}\ns_mov_b32 s{n+3}, 0x20000")

PG = 3584
C0 = -2.0 * math.sqrt(2.0 / math.pi) * math.log2(math.e)
C1 = C0 * 0.044715
QS = 0.25 * math.log2(math.e)

a("s_cmp_ge_u32 s2, 256\ns_cbranch_scc1 L_end")
a("s_load_dwordx16 s[4:19], s[0:1], 0\ns_load_dwordx8 s[20:27], s[0:1], 64\ns_load_dwordx2 s[28:29], s[0:1], 96")
if OPT['stamp']: a(f"{CLK} s[30:31]")
def code_prefetch():
    a(f"""
    s_getpc_b64 s[{sT[8]}:{sT[9]}]
    L_pc:
    s_andn2_b32 s{sT[7]}, s2, 7
    s_lshl_b32 s{sT[7]}, s{sT[7]}, 8
    v_lshl_add_u32 v{t3}, v0, 2, s{sT[7]}
    v_min_u32 v{t3}, L_last-L_pc-4, v{t3}
    s_mov_b32 exec_lo, 1
    s_mov_b32 exec_hi, 1
    global_load_dword v{vS0}, v{t3}, s[{sT[8]}:{sT[9]}]
    s_mov_b64 exec, -1
    """)
if OPT['cpf'] == 1: code_prefetch()
ROTC = {8: f"s_lshl1_add_u32 s{sROT0}, s{sU}, s{sJ}\ns_and_b32 s{sROT0}, s{sROT0}, 7",
        4: f"s_add_u32 s{sROT0}, s{sU}, s{sJ}\ns_and_b32 s{sROT0}, s{sROT0}, 3\ns_lshl_b32 s{sROT0}, s{sROT0}, 1",
        2: f"s_add_u32 s{sROT0}, s{sU}, s{sJ}\ns_and_b32 s{sROT0}, s{sROT0}, 1\ns_lshl_b32 s{sROT0}, s{sROT0}, 2",
        3: f"s_add_u32 s{sROT0}, s{sU}, s{sJ}\ns_lshl_b32 s{sROT0}, s{sROT0}, 1\ns_lshr_b32 s{sROT0}, 0x124924, s{sROT0}\ns_and_b32 s{sROT0}, s{sROT0}, 3\ns_mul_i32 s{sROT0}, s{sROT0}, 3",
        1: f"s_mov_b32 s{sROT0}, 0"}[OPT['rotm']]
if OPT['rots']:
    ROTC += f"\ns_bfe_u32 s{sQ}, s2, 0x20001\ns_mul_i32 s{sT[1]}, s{sQ}, {OPT['rots'] // 10}\ns_add_u32 s{sROT0}, s{sROT0}, s{sT[1]}\ns_mul_i32 s{sT[1]}, s{sT[2]}, {OPT['rots'] % 10}\ns_add_u32 s{sROT0}, s{sROT0}, s{sT[1]}\ns_and_b32 s{sROT0}, s{sROT0}, 7"
a(f"""
v_readfirstlane_b32 s{sW}, v0
v_lshrrev_b32 v{t1}, 4, v0
v_lshrrev_b32 v{t0}, 3, v0
v_xor_b32 v{t1}, v0, v{t1}
s_lshr_b32 s{sU}, s2, 6
s_bfe_u32 s{sJ}, s2, 0x30003
v_and_b32 v{t1}, 7, v{t1}
s_and_b32 s{sT[2]}, s2, 1
s_lshl3_add_u32 s{sTI}, s{sT[2]}, s{sJ}
v_lshlrev_b32 v{t1}, 4, v{t1}
{ROTC}
v_lshl_add_u32 v{vXS0}, v{t0}, 10, v{t1}
s_lshl_b32 s{sT[0]}, s{sTI}, 17
s_lshl_b32 s{sXO}, s{sROT0}, 7
s_add_u32 s{sXO}, s{sXO}, s{sT[0]}
s_lshl_b32 s{sMW}, s{sW}, 4
s_mov_b32 m0, s{sMW}
s_mov_b32 s{SX+2}, {2048*1024}
s_mov_b32 s{SX+3}, 0x20000
""")
a(f"""
s_bfe_u32 s{sT[1]}, s{sW}, 0x10006
s_lshl_b32 s{sT[1]}, s{sT[1]}, 2
v_and_or_b32 v{t1}, v{t0}, 2, s{sT[1]}
s_bfe_u32 s{sQ}, s2, 0x20001
s_mul_i32 s{sT[1]}, s{sQ}, 7
v_xor_b32 v{t1}, v0, v{t1}
s_lshl1_add_u32 s{sT[1]}, s{sU}, s{sT[1]}
s_sub_u32 s{sT[1]}, s{sT[1]}, 1
v_and_b32 v{t1}, 7, v{t1}
s_lshl_b32 s{sT[2]}, s{sQ}, 1
s_movk_i32 s{sT[3]}, {PG}
v_lshlrev_b32 v{vWS2}, 4, v{t1}
s_mov_b32 s{SWG+3}, 0x20000
s_mov_b32 s{SWU+3}, 0x20000
s_cmp_eq_u32 s{sU}, 0
s_cselect_b32 s{sT[1]}, s{sT[2]}, s{sT[1]}
s_cselect_b32 s{sT[3]}, 1024, s{sT[3]}
s_cselect_b32 s{sT[2]}, 128, 0
v_mad_u32_u24 v{vWS}, v{t0}, s{sT[3]}, v{vWS2}
s_lshl_b32 s{SWG+2}, s{sT[3]}, 9
s_mov_b32 s{SWU+2}, s{SWG+2}
s_mul_i32 s{sWOF}, s{sROT0}, s{sT[3]}
s_lshl1_add_u32 s{sWOF}, s{sT[1]}, s{sWOF}
s_lshl_b32 s{sWOF}, s{sWOF}, 6
s_cmp_eq_u32 s{sU}, 0
{CLK + ' s[84:85]' if OPT['grp'] == 5 else ''}
s_waitcnt lgkmcnt(0)
{CLK + ' s[86:87]' if OPT['grp'] == 5 else ''}
s_mov_b64 s[{SX}:{SX+1}], s[4:5]
s_cselect_b64 s[{SWG}:{SWG+1}], s[6:7], s[16:17]
s_cselect_b64 s[{SWU}:{SWU+1}], s[6:7], s[18:19]
""")
def first_stage(x0, x1, xstep, wstep):
    a(f"""
    buffer_load_dwordx4 v{x0}, {srd(SX)}, s{sXO} offen lds
    s_add_u32 m0, s{sMW}, {WR}
    s_add_u32 s{sXO}, s{sXO}, {xstep}
    buffer_load_dwordx4 v{vWS}, {srd(SWG)}, s{sWOF} offen lds
    s_add_u32 m0, s{sMW}, {WR + 8192}
    s_add_u32 s{sWOF}, s{sWOF}, {wstep}
    buffer_load_dwordx4 v{vWS}, {srd(SWU)}, s{sWOF} offen lds
    s_add_u32 m0, s{sMW}, 8192
    s_nop 0
    buffer_load_dwordx4 v{x1}, {srd(SX)}, s{sXO} offen lds
    """)
if OPT['qfirst']: a("s_cbranch_scc0 L_late")
first_stage(vXS0, vXS0, 65536, f"s{sT[2]}")
if OPT['wt']:
    assert not OPT['qfirst']
    a(f"""
    s_lshr_b32 s{sT[4]}, s{sW}, 7
    s_lshr_b32 s{sT[5]}, s{sJ}, 1
    s_cmp_lg_u32 s{sT[4]}, s{sT[5]}
    s_cbranch_scc1 L_nowt
    s_add_u32 s{sT[4]}, s{sROT0}, 1
    s_and_b32 s{sT[4]}, s{sT[4]}, 7
    s_mul_i32 s{sT[4]}, s{sT[4]}, s{sT[3]}
    s_lshl1_add_u32 s{sT[4]}, s{sT[1]}, s{sT[4]}
    s_lshl_b32 s{sT[4]}, s{sT[4]}, 6
    buffer_load_dword v32, v{vWS}, {srd(SWG)}, s{sT[4]} offen
    s_add_u32 s{sT[4]}, s{sT[4]}, s{sT[2]}
    buffer_load_dword v33, v{vWS}, {srd(SWU)}, s{sT[4]} offen
    L_nowt:
    """)
if OPT['qfirst']: a("L_late:")
if OPT['grp'] == 5: a(f"{CLK} s[88:89]\ns_waitcnt lgkmcnt(0)\ns_mov_b32 s4, s84\ns_mov_b32 s14, s86\ns_mov_b32 s5, s88")
a(f"""
s_lshr_b32 s{sW}, s{sW}, 6
v_add_u32 v{vXS0}, s{sT[0]}, v{vXS0}
v_add_u32 v{vXS1}, 0x10000, v{vXS0}
s_sub_u32 s{sXO}, s{sXO}, s{sT[0]}
s_lshl_b32 s{sT[1]}, s{sT[1]}, 7
s_sub_u32 s{sWOF}, s{sWOF}, s{sT[1]}
v_add_u32 v{vWS}, s{sT[1]}, v{vWS}
s_movk_i32 s{sT[3]}, {PG}
v_mad_u32_u24 v{vWS2}, v{t0}, s{sT[3]}, v{vWS2}
s_mul_i32 s{sT[1]}, s{sQ}, {7*128}
v_add_u32 v{vWS2}, s{sT[1]}, v{vWS2}
v_and_b32 v{L}, 63, v0
v_lshlrev_b32 v{vL16}, 4, v{L}
s_and_b32 s{sT[0]}, s2, 7
s_lshl2_add_u32 s{sI}, s{sT[0]}, s{sU}
s_add_u32 s{sROT}, s{sROT0}, 1
s_and_b32 s{sROT}, s{sROT}, 7
s_lshl_b32 s{sMX}, s{sW}, 11
""")
def late_loads(k):
    if OPT['qfirst'] != k: return
    a(f"s_cmp_eq_u32 s{sU}, 0\ns_cbranch_scc1 L_early")
    first_stage(vXS0, vXS1, 0, 0)
    a("L_early:")
late_loads(1)
def dispatch():
    a(f"""
    s_lshr_b32 s{sT[1]}, s{sW}, 2
    s_lshl1_add_u32 s{sT[0]}, s{sU}, s{sT[1]}
    s_lshr_b32 s{sT[1]}, s{sQ}, 1
    s_lshl1_add_u32 s{sT[0]}, s{sT[0]}, s{sT[1]}
    s_cmp_eq_u32 s{sT[0]}, 0
    s_cbranch_scc1 L_pathK
    s_cmp_eq_u32 s{sT[0]}, 1
    s_cbranch_scc1 L_pathV
    s_cmp_lt_u32 s{sT[0]}, 4
    s_cbranch_scc1 L_pathP
    s_cmp_eq_u32 s{sT[0]}, 4
    s_cbranch_scc1 L_pathS
    s_add_u32 s{sT[0]}, s{sMW}, s2
    s_cmp_eq_u32 s{sT[0]}, {CLEAR_WG + 1024}
    s_cbranch_scc1 L_pathC
    """)

PATH = ['G']
def wslot(sig):
    if sig < 8: return WR + (sig & 3) * 16384
    if sig >= 14: return EX + (sig - 14) * 16384
    return (0 if sig & 1 else WR) + ((sig - 8) >> 1) * 16384
def waddr(sig, b):
    return {0: vXR[b], 1: vWR[b], 2: vXR[2 + b]}[wslot(sig) >> 16]

def dma_ops(sig, path):
    p = sig >> 3
    isq = (path in 'KVP' and p == 0)
    pitch = 1024 if isq else PG
    sa, sb = (SWQ, SWQ) if isq else (SWG, SWU)
    xs, ws = (sig & 3) * 16384, wslot(sig)
    pre = f"s_mul_i32 s{sWOF}, s{sROT}, {64*pitch}\n"
    if path in 'GSC' and p == 1: pre += f"s_add_u32 s{sWOF}, s{sWOF}, 128\n"
    mid = f"s_add_u32 s{sWOF}, s{sWOF}, 128\n" if isq else ""
    inc, wrap = f"s_add_u32 s{sROT}, s{sROT}, 1\n", f"s_and_b32 s{sROT}, s{sROT}, 7\n"
    vw = vWS2 if (path in 'KVP' and p == 1) else vWS
    wa = f"s_add_u32 m0, s{sMW}, {ws}\n{{}}buffer_load_dwordx4 v{vw}, {srd(sa)}, s{sWOF} offen lds"
    wb = f"s_add_u32 m0, s{sMW}, {ws+8192}\n{{}}buffer_load_dwordx4 v{vw}, {srd(sb)}, s{sWOF} offen lds"
    if p == 0:
        return [f"s_add_u32 m0, s{sMW}, {xs}\ns_lshl_b32 s{sXO}, s{sROT}, 7\nbuffer_load_dwordx4 v{vXS0}, {srd(SX)}, s{sXO} offen lds",
                wa.format(pre), wb.format(mid + inc),
                f"s_add_u32 m0, s{sMW}, {xs+8192}\n{wrap}buffer_load_dwordx4 v{vXS1}, {srd(SX)}, s{sXO} offen lds"]
    return [wa.format(pre), wb.format(inc + wrap)]

DROT = {8: f"s_mul_i32 s{sRH}, s{sJ}, 7\ns_lshr_b32 s{sRH}, s{sRH}, 2\ns_mul_i32 s{sT[1]}, s{sU}, 7\ns_lshr_b32 s{sT[1]}, s{sT[1]}, 1\ns_add_u32 s{sRH}, s{sRH}, s{sT[1]}",
        4: f"s_add_u32 s{sRH}, s{sJ}, s{sU}\ns_and_b32 s{sRH}, s{sRH}, 3\ns_mul_i32 s{sRH}, s{sRH}, 7\ns_lshr_b32 s{sRH}, s{sRH}, 1",
        2: f"s_add_u32 s{sRH}, s{sJ}, s{sU}\ns_and_b32 s{sRH}, s{sRH}, 1\ns_mul_i32 s{sRH}, s{sRH}, 7",
        42: f"s_lshl1_add_u32 s{sRH}, s{sJ}, s{sU}\ns_and_b32 s{sRH}, s{sRH}, 3\ns_mul_i32 s{sRH}, s{sRH}, 7\ns_lshr_b32 s{sRH}, s{sRH}, 1"}[OPT['drot']]
def setup_common():
    mk_srd(SWS, 28, WS_SIZE)
    if OPT.get('wso'): a(f"s_add_u32 s{SWS}, s{SWS}, {OPT['wso'] << 20}\ns_addc_u32 s{SWS+1}, s{SWS+1}, 0")
    mk_srd(SDBG, 26, 256); mk_srd(SWD, 20, 1792 * 1024); mk_srd(SWO, 12, 512 * 1024); mk_srd(SOUT, 24, 2048 * 1024)
    late_loads(2)
    a(f"""
    s_and_b32 s{sT[0]}, s{sW}, 3
    s_lshr_b32 s{sT[1]}, s{sW}, 2
    s_xor_b32 s{sT[5]}, s{sT[1]}, s{sQ}
    s_and_b32 s{sT[5]}, s{sT[5]}, 1
    s_lshl1_add_u32 s{sT[0]}, s{sT[0]}, s{sT[5]}
    s_lshl_b32 s{sT[0]}, s{sT[0]}, 11
    v_and_b32 v{t0}, 15, v{L}
    v_bfe_u32 v{t1}, v{L}, 1, 3
    v_lshrrev_b32 v{t2}, 4, v{L}
    v_xor_b32 v{t1}, v{t1}, v{t2}
    v_lshlrev_b32 v{t1}, 4, v{t1}
    v_lshl_add_u32 v{t1}, v{t0}, 7, v{t1}
    v_add_u32 v{vXR[0]}, s{sT[0]}, v{t1}
    v_xor_b32 v{vXR[1]}, 0x800, v{vXR[0]}
    v_xor_b32 v{vXR[2]}, 64, v{vXR[0]}
    v_xor_b32 v{vXR[3]}, 64, v{vXR[1]}
    s_lshl_b32 s{sT[2]}, s{sT[5]}, 8
    v_xor_b32 v{vST}, s{sT[2]}, v{vL16}
    """)
    a(f"""
    v_lshrrev_b32 v{t3}, 5, v{L}
    v_lshlrev_b32 v{t0}, 4, v{t0}
    v_lshl_add_u32 v{vPV}, v{t3}, 8, v{t0}
    """)
    late_loads(3)
    a(f"""
    v_bfe_u32 v{t0}, v{L}, 2, 2
    v_lshl_add_u32 v{t1}, v{t2}, 3, v{t0}
    v_lshlrev_b32 v{t1}, 7, v{t1}
    v_bfe_u32 v{t2}, v{L}, 3, 2
    s_lshl_b32 s{sT[1]}, s{sT[1]}, 1
    v_xor_b32 v{t2}, s{sT[1]}, v{t2}
    v_lshl_add_u32 v{t1}, v{t2}, 5, v{t1}
    v_and_b32 v{t2}, 3, v{L}
    v_lshl_add_u32 v{t1}, v{t2}, 3, v{t1}
    v_add_u32 v{vWR[0]}, {WR}, v{t1}
    v_xor_b32 v{vWR[1]}, 32, v{vWR[0]}
    """)
    a(f"""
    v_lshl_add_u32 v{t3}, v{t3}, 3, v{t0}
    v_lshlrev_b32 v{t3}, 7, v{t3}
    v_lshrrev_b32 v{t0}, 1, v{t0}
    v_lshl_add_u32 v{t3}, v{t0}, 6, v{t3}
    v_lshl_add_u32 v{t3}, v{t2}, 3, v{t3}
    v_bfe_u32 v{t2}, v{L}, 4, 1
    v_lshl_add_u32 v{vTRP}, v{t2}, 5, v{t3}
    v_lshlrev_b32 v{t2}, 2, v{t2}
    v_and_b32 v{t1}, 7, v{L}
    v_xor_b32 v{t1}, v{t1}, v{t2}
    v_lshlrev_b32 v{t1}, 4, v{t1}
    v_lshrrev_b32 v{t0}, 3, v{L}
    v_lshl_add_u32 v{t0}, v{t0}, 10, v{t1}
    s_lshl_b32 s{sT[0]}, s{sJ}, 7
    v_add_u32 v{vPD}, s{sT[0]}, v{t0}
    v_mov_b32 v{vZ}, 0
    v_mov_b32 v{vC0}, {fbits(C0):#x}
    s_mov_b32 s{sC1}, {fbits(C1):#x}
    s_mov_b32 s{sC1+1}, {fbits(C1):#x}
    """)
    late_loads(4)
    a(f"""
    s_lshr_b32 s{sT[3]}, s{sW}, 2
    s_and_b32 s{sT[1]}, s{sW}, 3
    s_lshl2_add_u32 s{sT[0]}, s{sTI}, s{sT[1]}
    s_lshl_b32 s{sT[8]}, s{sT[0]}, 5
    s_and_b32 s{sT[2]}, s{sT[0]}, 15
    s_lshr_b32 s{sT[0]}, s{sT[0]}, 4
    s_mul_i32 s{sT[0]}, s{sT[0]}, 112
    s_mul_i32 s{sT[1]}, s{sQ}, 28
    s_add_u32 s{sT[0]}, s{sT[0]}, s{sT[1]}
    s_lshl3_add_u32 s{sT[0]}, s{sU}, s{sT[0]}
    s_lshl1_add_u32 s{sT[0]}, s{sT[3]}, s{sT[0]}
    s_lshl4_add_u32 s{sT[0]}, s{sT[0]}, s{sT[2]}
    s_lshl_b32 s{sT[0]}, s{sT[0]}, 10
    s_add_u32 s{sHO}, s{sT[0]}, {WS_H}
    s_lshl3_add_u32 s{sT[4]}, s{sQ}, s{sT[8]}
    s_lshl1_add_u32 s{sT[4]}, s{sT[3]}, s{sT[4]}
    s_lshl_b32 s{sT[4]}, s{sT[4]}, 10
    s_lshl2_add_u32 s{sF2}, s{sTI}, s{sQ}
    s_lshl_b32 s{sF2}, s{sF2}, 5
    s_add_u32 s{sF2}, s{sF2}, s{sU}
    s_lshl_b32 s{sF2}, s{sF2}, 2
    s_add_u32 s{sF2}, s{sF2}, {WS_F2}
    s_lshl1_add_u32 s{sT[1]}, s{sI}, s{sT[3]}
    s_lshl3_add_u32 s{sT[2]}, s{sT[1]}, s{sJ}
    s_and_b32 s{sT[1]}, s{sW}, 3
    s_lshl2_add_u32 s{sT[2]}, s{sT[2]}, s{sT[1]}
    s_lshl_b32 s{sOO}, s{sT[2]}, 10
    s_lshl_b32 s{sRING}, s{sW}, 13
    s_add_u32 s{sRING}, s{sRING}, {RING}
    {DROT}
    s_and_b32 s{sT[1]}, s2, {OPT['dxs']}
    s_add_u32 s{sRH}, s{sRH}, s{sT[1]}
    s_cmp_ge_u32 s{sRH}, 14
    s_cselect_b32 s{sT[1]}, 14, 0
    s_sub_u32 s{sRH}, s{sRH}, s{sT[1]}
    s_lshl_b32 s{sRH}, s{sRH}, 14
    s_mul_i32 s{sT[1]}, s{sW}, {14*16384}
    s_add_u32 s{SWD}, s{SWD}, s{sT[1]}
    s_addc_u32 s{SWD+1}, s{SWD+1}, 0
    s_sub_u32 s{SWD+2}, s{SWD+2}, s{sT[1]}
    s_lshl_b32 s{sT[1]}, s{sW}, 16
    s_add_u32 s{SWO}, s{SWO}, s{sT[1]}
    s_addc_u32 s{SWO+1}, s{SWO+1}, 0
    s_sub_u32 s{SWO+2}, s{SWO+2}, s{sT[1]}
    """)

def setup_path(P):
    if P in 'GC' and OPT['mpf']:
        a(f"""
        s_cmp_eq_u32 s{sU}, 2
        s_cselect_b64 s[{SEX}:{SEX+1}], s[{SWD}:{SWD+1}], s[{SWO}:{SWO+1}]
        s_cselect_b32 s{SEX+2}, s{SWD+2}, s{SWO+2}
        s_cselect_b32 s{sT[0]}, 28, 8
        s_mov_b32 s{SEX+3}, 0x20000
        s_cmp_eq_u32 s{sU}, 1
        s_cselect_b32 s{SEX+2}, 0, s{SEX+2}
        s_and_b32 s{sT[1]}, s2, 63
        s_mul_i32 s{sT[1]}, s{sT[1]}, s{sT[0]}
        s_sub_u32 s{sT[0]}, s{sT[0]}, 1
        v_min_u32 v{vES}, s{sT[0]}, v{L}
        v_add_lshl_u32 v{vES}, v{vES}, s{sT[1]}, 7
        """)
    if P in 'KV':
        a(f"""
        v_lshrrev_b32 v{t2}, 4, v{L}
        v_and_b32 v{t0}, 15, v{L}
        v_lshlrev_b32 v{t1}, 3, v{t0}
        v_lshl_add_u32 v{t1}, v{t2}, 8, v{t1}
        v_and_b32 v{t3}, 1, v{t2}
        v_lshl_add_u32 v{t1}, v{t3}, 7, v{t1}
        v_add_u32 v{vER[0]}, {EX}, v{t1}
        v_xor_b32 v{vER[1]}, 0x80, v{vER[0]}
        v_lshlrev_b32 v{t1}, 7, v{t3}
        v_xor_b32 v{vES}, v{t1}, v{vL16}
        s_add_u32 s{sEXO}, s{sW}, s{sROT0}
        s_and_b32 s{sEXO}, s{sEXO}, 7
        s_lshl_b32 s{sEXO}, s{sEXO}, 11
        s_lshr_b32 s{sEXW}, s{sT[4]}, 15
        v_lshrrev_b32 v{t2}, 1, v{t2}
        """)
        if P == 'K':
            a(f"""
            s_lshl3_add_u32 s{sEXW}, s{sEXW}, s{sT[5]}
            s_lshl_b32 s{sEXW}, s{sEXW}, 8
            v_lshlrev_b32 v{t2}, 9, v{t2}
            """)
        else:
            a(f"""
            s_lshl2_add_u32 s{sEXW}, s{sEXW}, s{sT[5]}
            s_lshl_b32 s{sEXW}, s{sEXW}, 9
            s_add_u32 s{sEXW}, s{sEXW}, 1024
            v_lshlrev_b32 v{t2}, 8, v{t2}
            v_and_b32 v{t0}, 3, v{L}
            v_bfe_u32 v{t1}, v{L}, 2, 1
            v_lshl_add_u32 v{t0}, v{t1}, 3, v{t0}
            v_bfe_u32 v{t1}, v{L}, 3, 1
            v_lshl_add_u32 v{t0}, v{t1}, 2, v{t0}
            """)
        a(f"""
        v_lshl_add_u32 v{t2}, v{t0}, 4, v{t2}
        v_lshl_add_u32 v{vSA}, v{t3}, 3, v{t2}
        """)
    if P == 'P':
        a(f"""
        v_bfe_u32 v{t1}, v{L}, 4, 1
        v_lshlrev_b32 v{t1}, 7, v{t1}
        v_xor_b32 v{vES}, v{t1}, v{vL16}
        s_add_u32 s{sEXO}, s{sW}, s{sROT0}
        s_and_b32 s{sEXO}, s{sEXO}, 7
        s_lshl_b32 s{sEXO}, s{sEXO}, 11
        """)
    if P == 'S':
        a(f"""
        s_lshl_b32 s{sEXO}, s{sROT0}, 7
        v_add_u32 v{vES}, s{sEXO}, v{vL16}
        v_and_b32 v{vES}, 0x3ff, v{vES}
        v_and_b32 v{t0}, 48, v{L}
        v_add_u32 v{vER[0]}, {GW}, v{t0}
        v_and_b32 v{t0}, 15, v{L}
        v_lshlrev_b32 v{vSA}, 2, v{t0}
        s_lshr_b32 s{sEXW}, s{sT[4]}, 15
        s_lshl1_add_u32 s{sEXW}, s{sEXW}, s{sT[5]}
        s_lshl_b32 s{sEXW}, s{sEXW}, 6
        s_add_u32 s{sEXW}, s{sEXW}, {WS_G}
        """)

def x_reads(sig, j):
    return [f"ds_read_b128 {vr(XF + 16*sig + 8*j + 4*tq, 4)}, v{vXR[2*j+tq]} offset:{(sig & 3) * 16384}" for tq in range(2)]
def w_reads(sig, j, i):
    b, part = i >> 1, i & 1
    off = (wslot(sig) & 0xffff) + part * 8192 + j * 4096
    return [f"ds_read_b64_tr_b16 {vr(F[j] + 4*i + 2*e, 2)}, v{waddr(sig, b)} offset:{off + e*512}" for e in range(2)]
def e_steps(c):
    c0 = 2 * OPT['exs']
    if PATH[0] in 'KVS': return [2 * (c - c0), 2 * (c - c0) + 1] if c0 <= c < 2 * c0 else ([c] if 2 * c0 <= c < 16 else [])
    return []
def e_buf(c, i): return WE + 16 + 4 * i if (PATH[0] == 'S' and c == 15) else WE + 8 * (c & 1) + 4 * i
def e_reads(c):
    if PATH[0] == 'S':
        cs = [] if c == 15 else ([14, 15] if c == 14 else [c])
        return [f"ds_read_b128 {vr(e_buf(x, i), 4)}, v{vER[0]} offset:{k*64}" for x in cs for i, k in enumerate(e_steps(x))]
    return [f"ds_read_b64_tr_b16 {vr(e_buf(c, i) + 2*e, 2)}, v{vER[e]} offset:{k*1024}" for i, k in enumerate(e_steps(c)) for e in range(2)]
def e_mfmas(c):
    out = []
    for i, k in enumerate(e_steps(c)):
        acc, w, x = vr(ACCE, 4), vr(e_buf(c, i), 4), vr(XF + 8 * k, 4)
        A, B = (x, w) if PATH[0] == 'V' else (w, x)
        out.append(f"v_mfma_f32_16x16x32_bf16 {acc}, {A}, {B}, {'0' if k == 0 else acc}")
    return out
def mfmas(sig, j):
    out = []
    for i in range(4):
        for tq in range(2):
            d = vr(ACC[sig >> 3] + 8 * i + 4 * tq, 4)
            c = "0" if ((sig & 7) == 0 and j == 0) else d
            out.append(f"v_mfma_f32_16x16x32_bf16 {d}, {vr(F[j] + 4*i, 4)}, {vr(XF + 16*(sig&7) + 8*j + 4*tq, 4)}, {c}")
    return out

def gelu_pair(base, j, T=vGT, pk=False):
    G = vr(base + 2 * j, 2); U = vr(base + 8 + 2 * j, 2); TT = vr(T, 2)
    g0, g1, u0, u1 = base + 2 * j, base + 2 * j + 1, base + 8 + 2 * j, base + 9 + 2 * j
    if pk:
        return [f"v_pk_mul_f32 {TT}, {G}, {G}",
                f"v_pk_fma_f32 {TT}, {TT}, s[{sC1}:{sC1+1}], {vr(vC0,2)} op_sel_hi:[1,1,0]",
                f"v_pk_mul_f32 {TT}, {TT}, {G}",
                f"v_exp_f32 v{T}, v{T}", f"v_exp_f32 v{T+1}, v{T+1}",
                f"v_pk_mul_f32 {G}, {G}, {U}",
                f"v_pk_add_f32 {TT}, {TT}, 1.0 op_sel_hi:[1,0]",
                f"v_rcp_f32 v{T}, v{T}", f"v_rcp_f32 v{T+1}, v{T+1}",
                f"v_pk_mul_f32 {G}, {G}, {TT}",
                f"v_cvt_pk_bf16_f32 v{base+j}, v{g0}, v{g1}"]
    return [f"v_mul_f32 v{T}, v{g0}, v{g0}", f"v_mul_f32 v{T+1}, v{g1}, v{g1}",
            f"v_fma_f32 v{T}, v{T}, s{sC1}, v{vC0}", f"v_fma_f32 v{T+1}, v{T+1}, s{sC1}, v{vC0}",
            f"v_mul_f32 v{T}, v{T}, v{g0}", f"v_mul_f32 v{T+1}, v{T+1}, v{g1}",
            f"v_exp_f32 v{T}, v{T}", f"v_exp_f32 v{T+1}, v{T+1}",
            f"v_mul_f32 v{g0}, v{g0}, v{u0}", f"v_add_f32 v{T}, 1.0, v{T}", f"v_add_f32 v{T+1}, 1.0, v{T+1}",
            f"v_rcp_f32 v{T}, v{T}", f"v_rcp_f32 v{T+1}, v{T+1}",
            f"v_mul_f32 v{g1}, v{g1}, v{u1}",
            f"v_mul_f32 v{g0}, v{g0}, v{T}", f"v_mul_f32 v{g1}, v{g1}, v{T+1}",
            f"v_cvt_pk_bf16_f32 v{base+j}, v{g0}, v{g1}"]
def to_frag(base):
    return [f"v_permlane16_swap_b32 v{base}, v{base+2}", f"v_permlane16_swap_b32 v{base+1}, v{base+3}"]

def cost(x):
    c = 0
    for l in x.strip().split('\n'):
        l = l.strip()
        if not l or l.startswith(';') or l.endswith(':'): continue
        c += 8 if l.startswith(('v_exp', 'v_rcp')) else (OPT.get('vmc', 16) if l.startswith('buffer_') else 4)
    return c

kvtok = {}
def kv_step(m):
    slot = (4 * m % NSLOT) * 2048
    if m == 0: x = f"s_mov_b32 m0, s{sKVM}\ns_nop 0\n"
    else: x = f"s_add_u32 s{sKVO}, s{sKVO}, 8192\ns_add_u32 m0, s{sKVM}, {slot}\ns_and_b32 s{sKVO}, s{sKVO}, 0xffff\n"
    return [x + f"buffer_load_dwordx4 v{vKVS}, {srd(SWS)}, s{sKVO} offen sc1 lds", f"buffer_load_dwordx4 v{vKVS}, {srd(SWS)}, s{sKVO} offen offset:1024 sc1 lds"]
KV_FIRST = 2
def first_loads():
    return [f"buffer_load_dwordx4 {vr(QA,4)}, v{vL16}, {srd(SWS)}, s{sQA} offen sc1\ns_xor_b32 s{sQA}, s{sQA}, 1024"] + kv_step(0) + \
           [f"buffer_load_dwordx4 {vr(QB,4)}, v{vL16}, {srd(SWS)}, s{sQA} offen sc1"] + kv_step(1)

KVR = {0: f"s_lshr_b32 s{sT[7]}, s2, 3", 1: f"s_mov_b32 s{sT[7]}, 0", 2: f"s_and_b32 s{sT[7]}, s2, 16", 3: f"s_lshl_b32 s{sT[7]}, s2, 3", 4: f"s_lshl_b32 s{sT[7]}, s2, 2"}[OPT['kvr']]
def setup_queue(late=False):
    q = []
    def add(st, txt):
        for l in txt.strip().split('\n'): q.append((st, l.strip().replace('|', '\n')))
    add(11, f"""
    s_lshr_b32 s{sT[5]}, s{sW}, 2
    s_lshl_b32 s{sT[6]}, s{sT[5]}, 16
    v_add_u32 v{vKVS}, s{sT[6]}, v{vL16}
    s_and_b32 s{sT[3]}, s{sW}, 1
    s_mul_i32 s{sT[3]}, s{sT[3]}, {HALF}
    v_add_u32 v{vAK}, s{sT[3]}, v{vL16}
    v_add_u32 v{vAV}, s{sT[3]}, v{vPV}
    s_mul_i32 s{sT[3]}, s{sT[5]}, {HALF}
    s_and_b32 s{sT[6]}, s{sW}, 3
    s_lshl_b32 s{sT[7]}, s{sT[6]}, 11
    s_add_u32 s{sKVM}, s{sT[7]}, s{sT[3]}
    {KVR}
    s_add_u32 s{sT[6]}, s{sT[6]}, s{sT[7]}
    s_and_b32 s{sT[6]}, s{sT[6]}, 31
    s_lshl_b32 s{sKVO}, s{sT[6]}, 11
    s_add_u32 s{sQA}, s{sOO}, {WS_Q}
    s_xor_b32 s{sQA}, s{sQA}, 1024
    s_lshl1_add_u32 s{sGA}, s{sI}, s{sT[5]}
    s_lshl_b32 s{sGA}, s{sGA}, 7
    s_add_u32 s{sGA}, s{sGA}, {WS_G}
    v_and_b32 v{vG}, 31, v{L}
    v_lshlrev_b32 v{vG}, 2, v{vG}
    v_mov_b32 v{vIDX}, 0xdddddddd
    v_mov_b32 v{V2+1}, 0x3f803f80
    s_mov_b32 vcc_lo, 0x110000|s_mov_b32 vcc_hi, 0x110000|v_cndmask_b32 v{V2}, 0, v{V2+1}, vcc
    """)
    for r in range(V2 + 1, V2 + 12): add(11, f"v_mov_b32 v{r}, v{V2}")
    add(12, f"""
    v_add_u32 v{vDR0}, s{sRING}, v{vTRP}
    v_xor_b32 v{vDR1}, 64, v{vDR0}
    v_add_u32 v{vDS1}, 7168, v{vDS}
    s_lshr_b32 s{sT[6]}, s{sI}, 3
    s_lshl3_add_u32 s{sT[6]}, s{sT[6]}, s{sW}
    s_mul_i32 s{sT[6]}, s{sT[6]}, {14*16}
    s_and_b32 s{sT[7]}, s{sI}, 7
    s_lshl1_add_u32 s{sT[7]}, s{sT[7]}, s{sT[5]}
    s_add_u32 s{sT[6]}, s{sT[6]}, s{sT[7]}
    s_lshl_b32 s{sT[6]}, s{sT[6]}, 10
    s_add_u32 s{sT[6]}, s{sT[6]}, {WS_H}
    v_add_u32 v{vH0}, s{sT[6]}, v{vL16}
    v_xor_b32 v{vH1}, 0x400, v{vH0}
    v_lshlrev_b32 v{vF2}, 7, v{L}
    s_lshr_b32 s{sF2R}, s{sI}, 1
    s_lshl_b32 s{sF2R}, s{sF2R}, 9
    s_add_u32 s{sF2R}, s{sF2R}, {WS_F2}
    """)
    add(13, f"s_lshl_b32 s{sF2W}, s{sW}, 24\ns_add_u32 s{sF2W}, s{sF2W}, s{sF2}\nv_mov_b32 v{vONE}, 1")
    add(13, f"""
    s_mul_i32 s{sT[6]}, s{sW}, 2304
    s_add_u32 s{sT[6]}, s{sT[6]}, {MERGE}
    v_add_u32 v{vM[0]}, s{sT[6]}, v{vL16}
    v_lshl_add_u32 v{vM[2]}, v{L}, 2, s{sT[6]}
    s_xor_b32 s{sT[7]}, s{sW}, 1
    s_mul_i32 s{sT[7]}, s{sT[7]}, 2304
    s_add_u32 s{sT[7]}, s{sT[7]}, {MERGE}
    v_add_u32 v{vM[1]}, s{sT[7]}, v{vL16}
    v_lshl_add_u32 v{vM[3]}, v{L}, 2, s{sT[7]}
    """)
    for st, O in ((13, OA), (14, OB)):
        if OPT['oz']:
            add(st, f"buffer_load_dwordx4 {vr(O,4)}, v{vL16}, {srd(SDBG)}, 0 offen offset:256\nbuffer_load_dwordx4 {vr(O+4,4)}, v{vL16}, {srd(SDBG)}, 0 offen offset:256\nv_mov_b32 v{O+8}, 0")
        else:
            for r in range(9): add(st, f"v_mov_b32 v{O+r}, 0")
    if OPT['vlate']:
        cut = [i for i, x in enumerate(q) if x[1].startswith(f"v_and_b32 v{vG}, 31")][0]
        if late: return [x[1] for x in q[cut:]]
        return q[:cut]
    return [] if late else q

cold = []
def s0_check(P):
    a(f"v_cmp_eq_u32 vcc, 0, v{vS0}\ns_cbranch_vccnz L_s0retry{P}\nL_s0done{P}:")
    cold.append(f"""
    L_s0retry{P}:
    s_mov_b32 s{sT[1]}, 0
    L_s0poll{P}:
    buffer_load_dword v{vS0}, v{vZ}, {srd(SDBG)}, 0 offen sc1
    s_add_u32 s{sT[1]}, s{sT[1]}, 1
    s_waitcnt vmcnt(0)
    v_cmp_eq_u32 vcc, 0, v{vS0}
    s_cbranch_vccz L_s0done{P}
    s_cmp_lt_u32 s{sT[1]}, {SPIN}
    s_cbranch_scc1 L_s0poll{P}
    s_branch L_s0done{P}
    """)
def s1_issue(P):
    a(f"s_cmp_lg_u32 s{sW}, 0\ns_cbranch_scc1 L_nopoll0{P}")
    if P in 'GSC': s0_check(P)
    a(f"""
    s_mov_b32 s{sT[1]}, {WS_F1}
    v_lshlrev_b32 v{t1}, 7, v{L}
    buffer_load_dword v{t0}, v{t1}, {srd(SWS)}, s{sT[1]} offen sc1
    L_nopoll0{P}:
    """)
    a.vm -= 1
def s1_check(P):
    a(f"""
    s_cmp_lg_u32 s{sW}, 0
    s_cbranch_scc1 L_s1done{P}
    s_mov_b32 s{sT[0]}, 0
    L_s1poll{P}:
    s_waitcnt vmcnt(0)
    v_cmp_ne_u32 vcc, 1, v{t0}
    s_cbranch_vccz L_s1done{P}
    {'s_sleep ' + str(OPT['s1slp']) if OPT['s1slp'] else ''}
    s_mov_b64 exec, vcc
    buffer_load_dword v{t0}, v{t1}, {srd(SWS)}, s{sT[1]} offen sc1
    s_mov_b64 exec, -1
    s_add_u32 s{sT[0]}, s{sT[0]}, 1
    s_cmp_lt_u32 s{sT[0]}, {SPIN}
    s_cbranch_scc1 L_s1poll{P}
    s_waitcnt vmcnt(0)
    L_s1done{P}:
    """)
    a.vm -= 1

def proj_path(P):
    tok = {}
    PATH[0] = P
    S1 = OPT['s1']
    sched = {s: [s + 2] for s in range(6)}
    ISQ = P in 'KVP'
    PB = OPT['pbq0'] if ISQ else OPT['pb']
    QF = OPT['qf']
    sched.update({6: [8, 9], 7: [10, 11], 8: [12, 13], 9: [14, 15]}); cover = {8: 9, 10: 11, 12: 15}
    if ISQ and OPT['qmode'] == 0:
        del sched[8], sched[9]
        sched.update({10: [12, 13], 11: [14, 15]}); cover = {8: 9, 10: 11, 12: 13, 14: 15}
    bars = set(range(8)) | set(cover) | {S1}
    if OPT['gb14']: bars |= {14}
    if OPT['gbar'] and not ISQ: bars |= set(range(8, 16))
    if ISQ: bars |= {QF} | ({9} if OPT['qmode'] else set()) | (set(range(10, 16)) if OPT['qbar'] else set())
    def dma_groups(sg):
        d = dma_ops(sg, P)
        if ISQ and sg == OPT['exs']:
            d.insert(1, f"""
            s_add_u32 m0, s{sMX}, {EX}
            s_nop 0
            buffer_load_dwordx4 v{vES}, {srd(SEX)}, s{sEXO} offen lds
            buffer_load_dwordx4 v{vES}, {srd(SEX)}, s{sEXO} offen offset:1024 lds
            """)
        if P == 'S' and sg == OPT['exs']:
            d.insert(1, f"s_mov_b32 m0, {GW}\ns_nop 0\nbuffer_load_dwordx4 v{vES}, {srd(SEX)}, 0 offen lds")
        return [(x, sg if k == len(d) - 1 else None) for k, x in enumerate(d)]
    def emit(it):
        if callable(it): return it()
        a(it[0])
        if it[1] is not None: tok[it[1]] = a.lastvm()
    tok[0] = a.lastvm()
    if ISQ: mk_srd(SWQ, 6, 512 * 1024)
    if not OPT['spf']:
        for it in dma_groups(1): emit(it)
    if ISQ: mk_srd(SWG, 16, 512 * PG); mk_srd(SWU, 18, 512 * PG)
    if P in 'KVS': mk_srd(SEX, {'K': 8, 'V': 10, 'S': 22}[P], 1024 if P == 'S' else 16384)
    if P == 'P': a(f"s_cmp_lt_u32 s{sQ}, 2\ns_cselect_b64 s[{SEX}:{SEX+1}], s[8:9], s[10:11]\ns_mov_b32 s{SEX+2}, 16384\ns_mov_b32 s{SEX+3}, 0x20000")
    setup_path(P)
    if OPT['grp'] == 5: a("s_mov_b32 s6, s14\ns_mov_b32 s8, s5")
    stamp(3, 5)
    if OPT['spf']:
        for it in dma_groups(1): emit(it)
    stamp(4, 5)
    if P == 'C':
        ctok = a(f"v_lshlrev_b32 v{t0}, 7, v{L}\ns_mov_b32 s{sT[1]}, {WS_F1}\nbuffer_store_dword v{vZ}, v{t0}, {srd(SWS)}, s{sT[1]} offen sc1")
    win = {c: [] for c in range(33)}
    box = {}; front = {}; pre8 = []; lvl = [3]
    def usable(c):
        return c % 2 == 0 or ((c + 1) // 2) not in bars
    def nxt(c):
        while not usable(c): c += 1
        return c
    if not ISQ:
        gq = []
        for b in range(2):
            for j in range(4): gq += gelu_pair(ACC[0] + 16 * b, j)
            gq += to_frag(ACC[0] + 16 * b)
            if b == 0: n0 = len(gq)
        npre = 17 * (PB - 1) if PB else 0
        pre8 += [(x, None) for j in range(max(PB - 1, 0)) for x in gelu_pair(ACC[0], j, pk=OPT.get('pbk', 0))]
        gq = gq[npre:]; n0 -= npre
        ws = [c for c in range(16, OPT['gend'] + 1) if usable(c)]
        ndma = {16: 2, 17: 2, 18: 4} if 9 not in bars else {16: 4, 18: 4}
        tot = len(gq) + OPT['dwt'] * 8
        done = 0; accw = 0
        for k, c in enumerate(ws):
            accw += OPT['dwt'] * ndma.get(c, 0)
            upto = max(done, tot * (k + 1) // len(ws) - accw)
            win[c] += [(x, None) for x in gq[done:upto]]
            if done < n0 <= upto: c0 = c
            done = upto
        assert done == len(gq)
        for b in range(OPT['nearly']):
            c = nxt(max(OPT[f'h{b}w'], c0 if b == 0 else ws[-1]))
            win[c].append((f"s_sub_u32 s{sT[2]}, s{sHO}, {65536 - 16384*b}\nbuffer_store_dwordx4 {vr(ACC[0]+16*b,4)}, v{vST}, {srd(SWS)}, s{sT[2]} offen sc1", None))
    else:
        qa = [f"s_add_u32 s{sT[8]}, s{sT[4]}, {WS_Q + 4096}\ns_add_u32 s{sT[4]}, s{sT[4]}, {WS_Q}"]
        if P == 'K': qa += [f"v_mul_f32 v{ACCE+r}, {fbits(QS):#x}, v{ACCE+r}" for r in range(4)]
        sts = []
        if P in 'KV':
            qa += [f"v_cvt_pk_bf16_f32 v{vGT}, v{ACCE}, v{ACCE+1}", f"v_cvt_pk_bf16_f32 v{vGT+1}, v{ACCE+2}, v{ACCE+3}"]
            sts.append(f"buffer_store_dwordx2 {vr(vGT,2)}, v{vSA}, {srd(SWS)}, s{sEXW} offen sc1")
        if P == 'P':
            sts.append(f"s_andn2_b32 s{sT[0]}, s{sF2}, 127\nv_lshlrev_b32 v{t2}, 2, v{L}\ns_mov_b32 exec_hi, 0\nbuffer_store_dword v{vZ}, v{t2}, {srd(SWS)}, s{sT[0]} offen sc1\ns_mov_b32 exec_hi, -1")
        def qcv(i): return [f"v_cvt_pk_bf16_f32 v{ACC[0]+8*i+j}, v{ACC[0]+8*i+2*j}, v{ACC[0]+8*i+2*j+1}" for j in range(4)]
        def qst(i): return to_frag(ACC[0] + 8 * i) + [f"v_and_b32 v{ACC[0]+8*i}, -2, v{ACC[0]+8*i}\nbuffer_store_dwordx4 {vr(ACC[0]+8*i,4)}, v{vST}, {srd(SWS)}, s{sT[8 if i & 1 else 4]} offen offset:{1024*(i>>1)} sc1"]
        mark = [lambda: box.update(q=a.lastvm())]
        T = lambda l: [(x, None) for x in l]
        if OPT['qmode'] == 0 and PB:
            pre8 += T(qa + qcv(0) + qcv(1) + qcv(2) + qcv(3) + [x for i in range(4) for x in qst(i)[:2]])
            if OPT.get('pbq'): pre8 += T(sts + [qst(i)[2] for i in range(4)]) + mark
            else: win[16] += T(sts + [qst(i)[2] for i in range(2)]); win[17] += T([qst(i)[2] for i in range(2, 4)]) + mark
        elif OPT['qmode'] == 0:
            win[16] += T(qa + sts + qcv(0) + qcv(1) + qst(0) + qst(1)); win[17] += T(qcv(2) + qcv(3) + qst(2) + qst(3)) + mark
        elif OPT['qmode'] == 1:
            win[16] += T(qa + qcv(0) + qcv(1)); win[18] += T(sts + qst(0) + qcv(2)); win[20] += T(qcv(3) + qst(1) + qst(2) + qst(3)) + mark
        else:
            win[16] += T(qa + qcv(0) + qcv(1) + qcv(2) + qcv(3)); win[18] += T(sts + qst(0) + qst(1) + qst(2) + qst(3)) + mark
        def qflag():
            assert a.vm_done > box['s0']
            if P != 'P': s0_check(P)
            a(f"""
            s_lshl4_add_u32 s{sT[0]}, s{sQ}, s{sTI}
            s_lshl_b32 s{sT[0]}, s{sT[0]}, 7
            s_add_u32 s{sT[0]}, s{sT[0]}, {WS_F1}
            s_lshl_b32 s{sT[1]}, s{sW}, 24
            s_add_u32 s{sT[0]}, s{sT[0]}, s{sT[1]}
            v_mov_b32 v{t1}, 1
            s_mov_b64 exec, 1
            buffer_store_dword v{t1}, v{vZ}, {srd(SWS)}, s{sT[0]} offen sc1
            s_mov_b64 exec, -1
            """)
        if P != 'P': box['flag'] = qflag
    if P in 'GC' and OPT['mpf']:
        win[OPT['mpf']].insert(0, (f"buffer_load_dword v24, v{vES}, {srd(SEX)}, 0 offen", None))
    if P == 'S':
        gs = [(x, None) for x in (f"v_mul_f32 v{t2}, {fbits(-math.log2(math.e)):#x}, v{ACCE}", f"v_exp_f32 v{t2}, v{t2}", f"v_add_f32 v{t2}, 1.0, v{t2}", f"v_rcp_f32 v{t2}, v{t2}",
                                  f"buffer_store_dword v{t2}, v{vSA}, {srd(SWS)}, s{sEXW} offen sc1")]
        if PB: pre8 += gs
        else: win[16] = gs + win[16]
    queue = setup_queue()
    ws = [c for c in range(21 if ISQ else 20, 2 * S1 - 1) if usable(c)]
    for k, c in enumerate(ws):
        left = [x for x in queue if 2 * x[0] - 2 <= c]
        take = min(len(left), -(-len(queue) // (len(ws) - k)))
        win[c] += [(x[1], None) for x in left[:take]]; queue = queue[take:]
    assert not queue
    win[16].insert(0, (f"v_subrev_u32 v{vXR[0]}, {WR}, v{vWR[0]}\nv_subrev_u32 v{vXR[1]}, {WR}, v{vWR[1]}\nv_add_u32 v{vXR[2]}, {WR}, v{vWR[0]}\nv_add_u32 v{vXR[3]}, {WR}, v{vWR[1]}", None))

    def cluster(c, what='mr'):
        M = mfmas(c >> 1, c & 1) if (c >= 0 and 'm' in what) else []
        em = e_mfmas(c) if M else []
        for i, x in enumerate(em): M.insert(1 + (8 // len(em) + 1) * i, x)
        d = c + 1
        R = []
        if d < 32 and 'r' in what:
            if d < 16: R += x_reads(d >> 1, d & 1)
            for i in range(4): R += w_reads(d >> 1, d & 1, i)
            R += e_reads(d)
        a.wait(a.lastlg())
        if M and not OPT['lad']: a("s_setprio 2")
        n = max(len(M), 1); k = 0
        last = n - 1 if (c & 1 or ((c >> 1) + 1) not in bars) else n - 2
        if M: last = min(last, n - 1 - OPT['rq' if ISQ else 'rg'] if c >= 16 else n - 1 - OPT['r1'])
        for i in range(n):
            if M: a(M[i])
            want = len(R) if i >= last else -(-len(R) * (i + 1) // (last + 1))
            while k < want: a(R[k]); k += 1
        if M and not OPT['lad']: a("s_setprio 0")
        if M and OPT['lad'] and lvl[0] > 0 and not (c % 2 == 0 and (c >> 1) + 1 in bars and not (c == 14 and PB)):
            lvl[0] -= 1; a(f"s_setprio {lvl[0]}")

    for sig in range(16):
        if sig == 8 and PB:
            cluster(15, 'm')
            for it in pre8: emit(it)
        if sig in bars:
            if sig in cover or sig < 8: a.wait(tok[cover.get(sig, sig)])
            if ISQ and sig == QF: a.wait(box['q'])
            if sig == S1 and P != 'P': s1_check(P)
            if OPT['lad']: lvl[0] = 3; a("s_setprio 3")
            a("s_barrier")
            if sig == QF and 'flag' in box: box['flag']()
        if sig == 1: stamp(1)
        if sig == 8: stamp(2)
        if sig < 11: stamp(sig, 1)
        if sig < 5: stamp(5 + sig, 5)
        if sig >= 6: stamp(sig - 6, 2)
        D = []
        if P == 'C' and sig == 2:
            assert a.vm_done >= ctok[1]
            win[4].append((f"v_mov_b32 v{t0}, 1\ns_mov_b64 exec, 1\nbuffer_store_dword v{t0}, v{vZ}, {srd(SDBG)}, 0 offen sc1\ns_mov_b64 exec, -1", None))
        for sg in sched.get(sig, []): D += dma_groups(sg)
        if sig == S1: D += [(x, None) for x in first_loads()]
        if sig == (7 if ISQ else 9) and P != 'P':
            def s0_load():
                if not ISQ:
                    a(f"s_cmp_lg_u32 s{sW}, 0\ns_cbranch_scc1 L_nos0l{P}\nbuffer_load_dword v{vS0}, v{vZ}, {srd(SDBG)}, 0 offen sc1\nL_nos0l{P}:")
                    a.vm -= 1
                else:
                    a(f"buffer_load_dword v{vS0}, v{vZ}, {srd(SDBG)}, 0 offen sc1")
                box['s0'] = a.vm
            D.insert(len(D) - 1, s0_load)
        head, mid, tail = [], D, []
        if sig < OPT['late']: mid, tail = [], D
        elif (sig + 1) not in bars: mid, tail = D[:len(D)//2], D[len(D)//2:]
        elif sig in bars and len(D) >= 4: head, mid = D[:OPT['na']], D[OPT['na']:]
        for it in head: emit(it)
        cluster(2 * sig - 1, 'r' if (sig == 8 and PB) else 'mr')
        if sig == S1 - 1 and P != 'P' and OPT['s1w'] == 30:
            assert a.vm_done > box['s0']
            s1_issue(P)
        for it in front.get(2 * sig, []) + mid + win[2 * sig]: emit(it)
        cluster(2 * sig)
        for it in front.get(2 * sig + 1, []) + tail + win[2 * sig + 1]: emit(it)
    if P != 'P' and OPT['s1w'] == 31: s1_issue(P)
    a.wait(a.lastlg())
    assert not win[32]

setup_common()
if OPT['tlb']:
    a(f"s_cmp_lg_u32 s{sW}, 6\ns_cbranch_scc1 L_notlb")
    if OPT['tlb'] == 1:
        a(f"""
        v_lshlrev_b32 v{t0}, 21, v{L}
        s_mov_b32 s{sT[0]}, 0x80000
        s_mov_b64 exec, 63
        buffer_load_dword v32, v{t0}, {srd(SWS)}, s{sT[0]} offen
        s_mov_b64 exec, 1
        buffer_load_dword v33, v{vZ}, {srd(SWD)}, 0 offen
        buffer_load_dword v34, v{vZ}, {srd(SWO)}, 0 offen
        buffer_load_dword v35, v{vZ}, {srd(SOUT)}, 0 offen
        s_mov_b64 exec, -1
        """)
    else:
        a(f"""
        s_lshr_b32 s{sT[0]}, s2, 3
        s_lshl_b32 s{sT[0]}, s{sT[0]}, 16
        v_lshlrev_b32 v{t0}, 21, v{L}
        s_mov_b64 exec, 63
        buffer_load_dword v32, v{t0}, {srd(SWS)}, s{sT[0]} offen
        s_mov_b64 exec, 1
        v_mov_b32 v{t0}, s{sT[0]}
        v_min_u32 v{t1}, {1792*1024 - 4}, v{t0}
        global_load_dword v33, v{t1}, s[20:21]
        v_min_u32 v{t1}, {512*1024 - 4}, v{t0}
        global_load_dword v34, v{t1}, s[12:13]
        buffer_load_dword v35, v{t0}, {srd(SOUT)}, 0 offen
        s_mov_b64 exec, -1
        """)
    a("L_notlb:")
dispatch()
if OPT['pal']: a(f"s_branch L_pathG\n.p2align 12\n.fill {OPT['oG'] // 4}, 4, 0xbf800000\nL_pathG:")
proj_path('G')
a("L_join:")
a.forget()

JE = OPT['jearly'] and OPT['s1'] == 16
if not JE:
    for m in mfmas(15, 1): a(m)
    a("s_setprio 0")
stamp(3); stamp(10, 2)
def gelu_chunk(k):
    b, jp = k >> 1, k & 1
    g0 = gelu_pair(ACC[1] + 16 * b, 2 * jp, vGT, pk=OPT['pk2']); g1 = gelu_pair(ACC[1] + 16 * b, 2 * jp + 1, t2, pk=OPT['pk2'])
    for x, y in zip(g0, g1):
        a(x); a(y)
    if k == 2:
        for x in to_frag(ACC[1]): a(x)
for k in range(OPT['jlate']): gelu_chunk(k)
stamp(5, 3)
if OPT['s1'] == 16:
    s1_check('J')
    stamp(6, 3)
    a("s_barrier")
    stamp(7, 3)
    fl = first_loads()
    if JE:
        nfirst = OPT['jearly'] - 1
        for x in fl[:nfirst]: a(x)
        for m in mfmas(15, 1): a(m)
        fl = fl[nfirst:]
    for x in fl: a(x)
stamp(4); stamp(8, 3)
fltok = a.lastvm()
HST = OPT['hst']
def hs(k):
    if k >= HST: return
    if k == 0:
        assert OPT['nearly'] == 1
        a(f"s_sub_u32 s{sT[2]}, s{sHO}, {65536 - 16384}\ns_cmp_eq_u32 s{sU}, 0\ns_cselect_b32 s{sT[2]}, {WS_SIZE}, s{sT[2]}\nbuffer_store_dwordx4 {vr(ACC[0]+16,4)}, v{vST}, {srd(SWS)}, s{sT[2]} offen sc1")
    else:
        hbox['h'] = a((f"s_add_u32 s{sHO}, s{sHO}, 16384\n" if k == 2 else "") + f"buffer_store_dwordx4 {vr(ACC[1]+16*(k-1),4)}, v{vST}, {srd(SWS)}, s{sHO} offen sc1")
hbox = {}
for k in range(OPT['jlate'], 4 - OPT['eb0']):
    gelu_chunk(k)
    if k == OPT.get('hs0', 1): hs(0)
    if k == 2: hs(1)
if not OPT['eb0']:
    for x in to_frag(ACC[1] + 16): a(x)
for x in setup_queue(True): a(x)
a(f"s_mov_b32 s{sT[8]}, 0xffff\ns_mov_b32 s{sT[9]}, 0xffff")
hs(2)
stamp(9, 3)
a.wait(fltok)
a("s_barrier")
if not OPT['eb0']: stamp(5); stamp(10, 3)

def qk(S, Q): return f"v_mfma_f32_32x32x16_bf16 {vr(S,16)}, {vr(KF,4)}, {vr(Q,4)}, 0"
def pv(O, V, S): return f"v_smfmac_f32_32x32x32_bf16 {vr(O,16)}, {vr(V,4)}, {vr(S,8)}, v{vIDX}"
NT, B1, B2 = 32, 8, OPT['b2']
def rec(t): return (t % NSLOT) * 2048
def rdK(t): return a(f"ds_read_b128 {vr(KF,4)}, v{vAK} offset:{rec(t)}")
def rdV(t2, t1):
    a(f"s_mov_b64 exec, s[{sT[8]}:{sT[9]}]")
    if t2 is not None: a(f"ds_read_b128 {vr(V2,4)}, v{vAV} offset:{rec(t2) + 1536}")
    if t1 is not None: a(f"ds_read_b128 {vr(V1[t1&1],4)}, v{vAV} offset:{rec(t1) + 1024}")
    a("s_mov_b64 exec, -1")
    return a.lastlg()
wtok, htok, rtok, box = {}, {}, {}, {}
m0own = [None]; wstart = set()
def w_off(u): return sR[u & 3] if u < 14 else sWOF
def w_load_a(u):
    a(f"s_add_u32 m0, s{sRING}, {(u & 3) * 2048}"); m0own[0] = ('w', u); wstart.add(u)
    assert u == 0 or (u - 1) in wtok
    if 0 < u < 14: a(f"s_sub_u32 s{sR[u&3]}, s{sR[(u-1)&3]}, 16384\ns_cselect_b32 s{sR[u&3]}, {13*16384}, s{sR[u&3]}")
    elif u == 14: a(f"s_lshl_b32 s{sWOF}, s{sU}, 14")
    elif u > 14: a(f"s_add_u32 s{sWOF}, s{sWOF}, 16384\ns_and_b32 s{sWOF}, s{sWOF}, 0xffff")
    a(f"buffer_load_dwordx4 v{vDS}, {srd(SWD if u < 14 else SWO)}, s{w_off(u)} offen lds")
def w_load_b(u):
    if m0own[0] != ('w', u):
        a(f"s_add_u32 m0, s{sRING}, {(u & 3) * 2048}"); m0own[0] = ('w', u)
    wtok[u] = a(f"buffer_load_dwordx4 v{vDS1}, {srd(SWD if u < 14 else SWO)}, s{w_off(u)} offen offset:1024 lds")
def h_load_a(u):
    assert u in wstart and (u + 4) not in wstart
    a(f"buffer_load_dwordx4 {vr(HF[u&3],4)}, v{vH0}, {srd(SWS)}, s{sR[u&3]} offen sc1")
def h_load_b(u):
    assert (u + 4) not in wstart
    htok[u] = a(f"buffer_load_dwordx4 {vr(HF[u&3]+4,4)}, v{vH1}, {srd(SWS)}, s{sR[u&3]} offen sc1")
def w_read(u, b):
    if b == 0: a.wait(wtok[u], htok[u])
    for e in range(2):
        rtok[u, b] = a(f"ds_read_b64_tr_b16 {vr(WF[u&1] + 4*b + 2*e, 2)}, v{(vDR0, vDR1)[b]} offset:{(u & 3) * 2048 + e*512}")
def d_mfma(u, k):
    tb, b = k >> 1, k & 1
    a.wait(rtok[u, 1])
    d = vr(DACC + 32 * tb + 16 * b, 16)
    a(f"v_mfma_f32_32x32x16_bf16 {d}, {vr(WF[u&1]+4*b,4)}, {vr(HF[u&3]+4*tb,4)}, {'0' if u == 0 else d}")

if OPT.get('x_now'):
    def w_load_a(u): pass
    def w_load_b(u): wtok[u] = None
if OPT.get('x_noh'):
    def h_load_a(u): pass
    def h_load_b(u): htok[u] = None
if OPT.get('x_noread'):
    def w_read(u, b): rtok[u, b] = None
ev, mf = {}, {}
SNAP = OPT.get('snap', 1)
B1P = 32 * (B1 - 1) + 11
EV, EVA, EK, EKA = OPT.get('ev', 5), OPT.get('eva', 0), OPT.get('ek', 11), OPT.get('eka', 0)
busy = {32 * t + o for t in range(NT) for o in (EV, EK, 18)}
def nextpos(p):
    while SNAP and (p & 15) not in (2, 5, 8, 11, 14): p += 1
    return p
def at(pos, f, limit=None):
    p = nextpos(pos)
    while SNAP and limit is not None and p in busy and nextpos(p + 1) <= limit: p = nextpos(p + 1)
    busy.add(p)
    ev.setdefault(p, []).append(f)
    return p
def h_store(b): box['h'] = a((f"s_add_u32 s{sHO}, s{sHO}, 16384\n" if b else "") + f"buffer_store_dwordx4 {vr(ACC[1]+16*b,4)}, v{vST}, {srd(SWS)}, s{sHO} offen sc1")
def late_store(k):
    a(f"""
    s_cmp_eq_u32 s{sU}, 0
    s_cbranch_scc1 L_nols{k}
    s_sub_u32 s{sT[2]}, s{sHO}, {65536 - 16384*k}
    buffer_store_dwordx4 {vr(ACC[0]+16*k,4)}, v{vST}, {srd(SWS)}, s{sT[2]} offen sc1
    L_nols{k}:
    """)
    a.vm -= 1
pp = OPT.get('p_st', 1); STS = OPT.get('p_sts', 1)
box.update(hbox)
for k in range(OPT['nearly'] + (HST > 0), 2):
    pp = at(pp, lambda k=k: late_store(k), pp + 12) + STS
if HST < 2: pp = at(pp, lambda: h_store(0), pp + 12) + STS
if HST < 3: pp = at(pp, lambda: h_store(1), pp + 12)
assert pp < B1P
def kv_emit(m, i):
    if i == 0: m0own[0] = ('kv', m)
    if m0own[0] != ('kv', m):
        a(f"s_add_u32 m0, s{sKVM}, {(4 * m % NSLOT) * 2048}"); m0own[0] = ('kv', m)
    kvtok[m] = a(kv_step(m)[i])
for m in range(KV_FIRST, 8):
    p = OPT['p_kv'] + OPT['p_kvs'] * (m - KV_FIRST) if m < 6 else OPT['p_kv2'] + 20 * (m - 6)
    p = at(p, lambda m=m: kv_emit(m, 0), p + 8)
    at(p + 1, lambda m=m: kv_emit(m, 1), p + 9)
assert OPT['p_kv2'] > B1P
def h_flag():
    a(f"s_mov_b64 exec, 1\nbuffer_store_dword v{vONE}, v{vZ}, {srd(SWS)}, s{sF2W} offen sc1\ns_mov_b64 exec, -1")
at(B1P + 1, h_flag)
def f2_load():
    box['f2'] = a(f"s_mov_b64 exec, 15\nbuffer_load_dwordx4 {vr(F2D,4)}, v{vF2}, {srd(SWS)}, s{sF2R} offen sc1")
    a("s_mov_b64 exec, -1")
at(OPT['p_f2'], f2_load, OPT['p_f2'] + 8)
def f2_check():
    a.wait(box['f2'])
    test = f"v_min3_u32 v{F2D}, v{F2D}, v{F2D+1}, v{F2D+2}\nv_min_u32 v{F2D}, v{F2D}, v{F2D+3}\nv_cmp_ne_u32 vcc, 1, v{F2D}"
    a(f"s_mov_b64 exec, 15\n{test}\ns_cbranch_vccnz L_s2retry\nL_s2done:\ns_mov_b64 exec, -1")
    cold.append(f"""
    L_s2retry:
    s_mov_b32 s{sT[1]}, 0
    L_s2poll:
    buffer_load_dwordx4 {vr(F2D,4)}, v{vF2}, {srd(SWS)}, s{sF2R} offen sc1
    s_add_u32 s{sT[1]}, s{sT[1]}, 1
    s_waitcnt vmcnt(0)
    {test}
    s_cbranch_vccz L_s2done
    {'s_sleep ' + str(OPT['slp']) if OPT.get('slp') else ''}
    s_cmp_lt_u32 s{sT[1]}, {SPIN}
    s_cbranch_scc1 L_s2poll
    s_branch L_s2done
    """)
    a(f"buffer_load_dword v{vG}, v{vG}, {srd(SWS)}, s{sGA} offen sc1")
    stamp(9)
PCHK = at(OPT['p_chk'], f2_check, OPT['p_chk'] + 8)
D0, DE = OPT['d0'], OPT['dend']
allsl = [32 * t + o for t in range(D0, DE) for o in (8, 14, 24, 30)]
assert len(allsl) >= 56
slots = [allsl[(i * len(allsl)) // 56] for i in range(56)]
for u in range(14):
    rp = slots[0] - 16 if u == 0 else slots[4 * u - 2] + 1
    lim = slots[4 * u] - 9
    p = at(rp, lambda u=u: w_read(u, 0), lim - 3); at(p + 1, lambda u=u: w_read(u, 1), lim)
    for k in range(4): mf[slots[4 * u + k]] = (lambda u=u, k=k: d_mfma(u, k))
for u in range(18):
    pw = OPT['p_fill'] + OPT['p_fills'] * u if u < 4 else slots[4 * (u - 4)] + 1
    p = at(pw, lambda u=u: w_load_a(u), pw + 8); p = at(p + 1, lambda u=u: w_load_b(u), p + 8)
    if u < 3:
        ph = PCHK + 1 + OPT.get('p_hs', 13) * u
        p = at(ph, lambda u=u: h_load_a(u), ph + 4); at(p + 1, lambda u=u: h_load_b(u), p + 5)
    if 4 <= u < 15:
        p = at(p + 1, lambda u=u: h_load_a(u - 1), p + 8); at(p + 1, lambda u=u: h_load_b(u - 1), p + 8)
for lo, hi, fr in ((0, B1P, (OPT.get('la1', 30), OPT.get('la2', 70), OPT.get('la3', 94))), (B1P, 32 * B2, (OPT.get('lb1', 35), OPT.get('lb2', 80), OPT.get('lb3', 96))),
                   (32 * B2, 32 * NT, (OPT.get('lc1', 60), OPT.get('lc2', 87), OPT.get('lc3', 96)))):
    for k in range(3): at(lo + ((hi - lo) * fr[k]) // 100, lambda k=k: a(f"s_setprio {2-k}"))

if OPT['grp'] == 6:
    for k, p in enumerate((240, 300, 380, 436, 466, 490, 520, 560, 600, 650, 700)): at(p, lambda k=k: stamp(k, 6))
at(32 * NT - 2, lambda: a(f"ds_write_b128 v{vM[0]}, {vr(OA,4)}\nds_write_b128 v{vM[0]}, {vr(OA+4,4)} offset:1024\nds_write_b32 v{vM[2]}, v{OA+8} offset:2048"))

a("s_setprio 3")
tK = rdK(0); tV = rdV(None, 0)
for k in range(4 - OPT['eb0'], 4): gelu_chunk(k)
if OPT['eb0']: stamp(5); stamp(10, 3)
a.wait(tK)
a(qk(SA, QA))
if OPT['eb0']:
    for x in to_frag(ACC[1] + 16): a(x)
for t in range(NT):
    if t == B2:
        a.wait(kvtok[7]); a("s_barrier\ns_setprio 3"); stamp(0)
    nx = t + 1 if t + 1 < NT else None
    for ph, (S, So, O, Oo, Qo) in enumerate(((SA, SB, OA, OB, QB), (SB, SA, OB, OA, QA))):
        for e in range(16):
            pos = 32 * t + 16 * ph + e
            def own(after):
                global tV, tK
                if ph == 0 and (e, after) == (EV, EVA):
                    if t == 0: a.wait(tV)
                    tV = rdV(t, nx if t != B1 - 1 else None)
                if ph == 0 and (e, after) == (EK, EKA) and nx and t != B1 - 1: tK = rdK(nx)
            for f in ev.pop(pos, []): f()
            own(0)
            if pos == B1P:
                a.wait(kvtok[5], box['h'], tV); a("s_barrier\ns_setprio 3"); stamp(6)
                tK = rdK(nx); tV = rdV(None, nx)
            if e == 2:
                if ph == 1: a.wait(tV, None if OPT.get('w2') else tK)
                if t > 0 or ph == 1: a(pv(Oo, V2, So + 8))
            if (e == 5 and not (t == 0 and ph == 0)) or (t == 0 and ph == 0 and e == 0):
                if ph == 1: a.wait(tK)
                if ph == 0 or nx: a(qk(So, Qo))
            if e == 11: a(pv(O, V1[t & 1], S))
            if pos in mf: mf.pop(pos)()
            own(1)
            a(f"v_exp_f32 v{S+e}, v{S+e}")
assert not mf
assert not ev, sorted(ev)
if OPT['woe']: a.wait(wtok[17])
a(pv(OB, V2, SB + 8))
a.wait_lg0()
stamp(7); stamp(0, 4)
a("s_barrier")
stamp(1, 4)
a(f"""
ds_read_b32 v{SA+8}, v{vM[3]} offset:2048
ds_read_b128 {vr(SA,4)}, v{vM[1]}
ds_read_b128 {vr(SA+4,4)}, v{vM[1]} offset:1024
s_add_u32 s{sOO}, s{sOO}, {WS_O}
s_mov_b32 s{sT[6]}, {fbits(2.0**-60):#x}
s_mov_b32 s{sT[7]}, {fbits(2.0**60) - fbits(2.0**-60):#x}
s_lshl_b32 s{sT[3]}, s{sW}, 13
s_xor_b32 s{sT[2]}, s{sT[3]}, 0x8000
v_add_u32 v24, s{sT[2]}, v{vL16}
v_add_u32 v26, s{sT[3]}, v{vL16}
s_waitcnt lgkmcnt(2)
v_add_f32 v{OB+8}, v{OB+8}, v{SA+8}
v_rcp_f32 v{t0}, v{OB+8}
""")
a.wait_lg0()
OS = 128
for j in range(2): a(f"v_pk_add_f32 {vr(OB+2*j,2)}, {vr(OB+2*j,2)}, {vr(SA+2*j,2)}")
a(f"v_mul_f32 v{t0}, v{t0}, v{vG}")
for j in range(2, 4): a(f"v_pk_add_f32 {vr(OB+2*j,2)}, {vr(OB+2*j,2)}, {vr(SA+2*j,2)}")
for j in range(4): a(f"v_pk_mul_f32 {vr(OB+2*j,2)}, {vr(OB+2*j,2)}, {vr(t0,2)} op_sel_hi:[1,0]")
a(f"""
v_pk_add_f32 {vr(t2,2)}, {vr(OB,2)}, {vr(OB+2,2)}
v_pk_add_f32 {vr(t0,2)}, {vr(OB+4,2)}, {vr(OB+6,2)}
v_cvt_pk_bf16_f32 v{OS}, v{OB}, v{OB+1}
v_pk_add_f32 {vr(t2,2)}, {vr(t2,2)}, {vr(t0,2)}
v_cvt_pk_bf16_f32 v{OS+1}, v{OB+2}, v{OB+3}
v_add_f32 v{t2}, v{t2}, v{t3}
v_cvt_pk_bf16_f32 v{OS+2}, v{OB+4}, v{OB+5}
v_fma_f32 v{t2}, v{t2}, 0, v{OB+8}
v_cvt_pk_bf16_f32 v{OS+3}, v{OB+6}, v{OB+7}
v_subrev_u32 v{t2}, s{sT[6]}, v{t2}
v_or_b32 v{OS}, 1, v{OS}
v_cmp_lt_u32 vcc, s{sT[7]}, v{t2}
""")
if OPT['force_fb']: a("s_mov_b64 vcc, -1")
a(f"""
s_cbranch_vccnz L_true_max
L_norm:
buffer_store_dwordx4 {vr(OS,4)}, v{vL16}, {srd(SWS)}, s{sOO} offen sc1
""")
stamp(8); stamp(2, 4)

OF, WOF, XT = 32, 176, 96
vO1 = 27
fill = f"""
s_and_b32 s{sT[1]}, s{sW}, 3
s_lshl_b32 s{sT[2]}, s{sT[1]}, 13
s_add_u32 s{sT[2]}, s{sT[2]}, {RING}
v_add_u32 v28, s{sT[2]}, v{vTRP}
v_xor_b32 v29, 64, v28
v_sub_f32 v{vG}, 1.0, v{vG}
v_add_u32 v{vO1}, 0x4000, v{vL16}
s_lshr_b32 s{sT[9]}, s{sW}, 2
s_lshl1_add_u32 s{sT[0]}, s{sI}, s{sT[9]}
s_lshl3_add_u32 s{sT[0]}, s{sT[0]}, s{sT[1]}
s_lshl_b32 s{sT[0]}, s{sT[0]}, 12
s_add_u32 s{sT[0]}, s{sT[0]}, {WS_O}
s_lshl4_add_u32 s{sT[8]}, s{sT[9]}, s{sT[1]}
s_lshl_b32 s{sT[8]}, s{sT[8]}, 11
""".strip().split('\n')
for v in range(4):
    fill += f"s_add_u32 s{sT[1]}, s{sU}, {v}\ns_and_b32 s{sT[1]}, s{sT[1]}, 3\ns_lshl_b32 s{sT[1]}, s{sT[1]}, 10\ns_add_u32 s{sT[4+v]}, s{sT[0]}, s{sT[1]}".split('\n')
fill += f"""
v_and_b32 v{t0}, 31, v{L}
v_lshrrev_b32 v{t1}, 5, v{L}
v_and_b32 v{t2}, 7, v{L}
v_xor_b32 v{t1}, v{t1}, v{t2}
v_lshlrev_b32 v{t1}, 4, v{t1}
v_lshl_add_u32 v{t0}, v{t0}, 8, v{t1}
v_add_u32 v9, s{sT[3]}, v{t0}
v_xor_b32 v10, 32, v9
v_xor_b32 v11, 64, v9
v_xor_b32 v12, 0x60, v9
v_lshrrev_b32 v{t0}, 3, v{L}
v_lshlrev_b32 v{t1}, 1, v{t2}
v_xor_b32 v{t1}, v{t1}, v{t0}
v_lshlrev_b32 v{t1}, 4, v{t1}
v_lshl_add_u32 v{t1}, v{t0}, 8, v{t1}
v_add_u32 v1, s{sT[8]}, v{t1}
v_xor_b32 v2, 16, v1
s_lshl3_add_u32 s{sT[3]}, s{sI}, s{sW}
s_lshl_b32 s{sT[3]}, s{sT[3]}, 6
s_add_u32 s{sT[3]}, s{sT[3]}, s{sJ}
s_lshl_b32 s{sT[3]}, s{sT[3]}, 7
v_lshlrev_b32 v{t2}, 4, v{t2}
v_lshl_add_u32 v5, v{t0}, 10, v{t2}
s_mov_b32 s{sT[2]}, 0
""".strip().split('\n')
def wo_read(v):
    slot = ((14 + v) & 3) * 2048 + (v >> 2) * 32768
    for b in range(2):
        for e in range(2):
            a(f"ds_read_b64_tr_b16 {vr(WOF + 8*v + 4*b + 2*e, 2)}, v{28 + b} offset:{slot + e*512}")
for j in range(8):
    xw = a(f"ds_write_b128 v24, {vr(DACC+32+4*j,4)} offset:{1024*j}")
    for x in fill[len(fill) * j // 8: len(fill) * (j + 1) // 8]: a(x)
    if OPT['woe'] == 1: wo_read(j)
if OPT['woe'] == 2:
    for j in range(8): wo_read(j)
def o_loads():
    for v in range(8):
        a(f"buffer_load_dwordx4 {vr(OF + 4*v, 4)}, v{vO1 if v >> 2 else vL16}, {srd(SWS)}, s{sT[4 + (v&3)]} offen sc1")
stamp(3, 4)
a.wait(wtok[17], xw)
a(f"s_cmp_ge_u32 s{sW}, 4")
if not OPT['oe']: a("s_barrier"); stamp(4, 4)
a("s_setprio 1\ns_cbranch_scc1 L_ol1\ns_setprio 0")
o_loads()
a("L_ol1:")
if OPT['oe']: a("s_barrier"); stamp(4, 4)
xt = [a(f"ds_read_b128 {vr(XT+4*j,4)}, v26 offset:{1024*j}") for j in range(8)]
for j in range(8):
    a.wait(xt[j])
    for i in range(2):
        r = 4 * j + 2 * i
        a(f"v_pk_add_f32 {vr(DACC+r,2)}, {vr(DACC+r,2)}, {vr(XT+r,2)}")
    for i in range(2):
        r = 4 * j + 2 * i
        a(f"v_pk_mul_f32 {vr(DACC+r,2)}, {vr(DACC+r,2)}, {vr(vG,2)} op_sel_hi:[1,0]")
stamp(5, 4)
a("s_setprio 0\ns_cbranch_scc0 L_ol2")
o_loads()
a("L_ol2:")
if not OPT['woe']:
    for j in range(8): wo_read(j)
stamp(6, 4)
a.wait_lg0()
ND = XT
a("L_s3poll:")
def wo_mfma(v, b): a(f"v_mfma_f32_32x32x16_bf16 {vr(ND+16*b,16)}, {vr(WOF+8*v+4*b,4)}, {vr(OF+4*v,4)}, {vr((DACC if v == 0 else ND)+16*b,16)}")
def chk(v): a(f"v_and_b32 v{t0}, {1 if v == 0 else 'v' + str(t0)}, v{OF+4*v}")
def xsite():
    a(f"s_cmp_eq_u32 s{sT[9]}, 0\ns_cbranch_scc1 L_nox\ns_mov_b32 s{sT[9]}, 0\ns_barrier\nL_nox:")
for v in range(6):
    a(f"s_waitcnt vmcnt({7-v})")
    if v == 0: stamp(10); stamp(7, 4)
    wo_mfma(v, 0); chk(v); wo_mfma(v, 1)
    if v == OPT['xsite']: xsite()
a("s_waitcnt vmcnt(1)"); wo_mfma(6, 0); chk(6)
a("s_waitcnt vmcnt(0)"); wo_mfma(7, 0); chk(7)
a.vm_done = a.vm
wo_mfma(6, 1)
if OPT['xsite'] == 6: xsite()
a(f"v_cmp_eq_u32 vcc, 0, v{t0}")
wo_mfma(7, 1)
if OPT['xsite'] == 7: xsite()
a("s_cbranch_vccnz L_s3retry\nL_s3done:")
stamp(8, 4)
for b in range(2):
    if OPT['xsite'] >= 6: a("s_nop 2" if b == 0 else "s_nop 3")
    for qd in range(4): a(f"ds_write_b128 v{9+qd}, {vr(ND + 16*b + 4*qd, 4)} offset:{b*128}")
a(f"s_cmp_ge_u32 s{sW}, 4")
a.wait_lg0()
a("s_barrier")
stamp(9, 4)
RD = 176
rt = []
for p in range(4):
    for e in range(2):
        rt.append(a(f"ds_read_b128 {vr(RD + 8*p + 4*e, 4)}, v{1 + e} offset:{p*8192}"))
for p in range(1, 4):
    a.wait(rt[2 * p + 1])
    for j in range(4):
        if OPT.get('fpk', 1): a(f"v_pk_add_f32 {vr(RD+2*j,2)}, {vr(RD+2*j,2)}, {vr(RD+8*p+2*j,2)}")
        else: a(f"v_add_f32 v{RD+2*j}, v{RD+2*j}, v{RD+8*p+2*j}\nv_add_f32 v{RD+2*j+1}, v{RD+2*j+1}, v{RD+8*p+2*j+1}")
for j in range(4): a(f"v_cvt_pk_bf16_f32 v{RD+j}, v{RD+2*j}, v{RD+2*j+1}")
a(f"buffer_store_dwordx4 {vr(RD,4)}, v5, {srd(SOUT)}, s{sT[3]} offen {['', 'sc1'][OPT['outm']]}")
a("s_cbranch_scc1 L_noy\ns_barrier\nL_noy:")
stamp(10, 4)
if OPT['stamp']:
    a("s_waitcnt vmcnt(0)")
    stamp(11)
    a("s_waitcnt lgkmcnt(0)")
    a(f"s_mov_b32 s28, s{sT[2]}")
    if 'span' in OPT:
        a(f"""
        s_lshl3_add_u32 s{sT[0]}, s2, s{sW}
        s_lshl_b32 s{sT[0]}, s{sT[0]}, 3
        s_add_u32 s{sT[0]}, s{sT[0]}, {WS_STAMP}
        v_mov_b32 v1, 0
        v_mov_b32 v2, s{4+2*OPT['span']}
        v_mov_b32 v3, s30
        s_mov_b64 exec, 1
        buffer_store_dwordx2 v[2:3], v1, {srd(SWS)}, s{sT[0]} offen sc1
        s_mov_b64 exec, -1
        s_add_u32 s{sT[0]}, s2, s{sW}
        s_cmp_lg_u32 s{sT[0]}, 0
        s_cbranch_scc1 L_end
        L_pad0:
        s_memrealtime s[{sT[2]}:{sT[3]}]
        s_waitcnt lgkmcnt(0)
        s_sub_u32 s{sT[2]}, s{sT[2]}, s30
        s_cmp_lt_u32 s{sT[2]}, 4500
        s_cbranch_scc1 L_pad0
        v_mov_b32 v4, 0
        v_mov_b32 v5, -1
        s_sub_u32 s{sT[1]}, s30, 1000
        """)
        for g in range(16):
            a(f"""
            s_mov_b32 s{sT[0]}, {WS_STAMP + 1024*g}
            buffer_load_dwordx4 v[8:11], v{vL16}, {srd(SWS)}, s{sT[0]} offen sc1
            s_waitcnt vmcnt(0)
            v_subrev_u32 v8, s{sT[1]}, v8
            v_subrev_u32 v9, s{sT[1]}, v9
            v_subrev_u32 v10, s{sT[1]}, v10
            v_subrev_u32 v11, s{sT[1]}, v11
            v_max3_u32 v4, v4, v8, v10
            v_min3_u32 v5, v5, v9, v11
            """)
        a(f"s_mov_b32 s{sT[4]}, 0\ns_mov_b32 s{sT[5]}, -1")
        for i in range(64): a(f"v_readlane_b32 s{sT[6]}, v4, {i}\nv_readlane_b32 s{sT[7]}, v5, {i}\ns_nop 0\ns_max_u32 s{sT[4]}, s{sT[4]}, s{sT[6]}\ns_min_u32 s{sT[5]}, s{sT[5]}, s{sT[7]}")
        a(f"""
        s_sub_u32 s{sT[0]}, s{sT[4]}, s{sT[5]}
        s_sub_u32 s{sT[0]}, s{sT[0]}, {OPT.get('spanb', 2000)}
        s_min_u32 s{sT[0]}, s{sT[0]}, 2500
        s_mul_i32 s{sT[0]}, s{sT[0]}, 10
        s_add_u32 s{sT[0]}, s{sT[0]}, 6000
        L_pad:
        s_memrealtime s[{sT[2]}:{sT[3]}]
        s_waitcnt lgkmcnt(0)
        s_sub_u32 s{sT[2]}, s{sT[2]}, s30
        s_cmp_lt_u32 s{sT[2]}, s{sT[0]}
        s_cbranch_scc1 L_pad
        """)
    elif 'crit' in OPT:
        a(f"""
        s_cmp_lg_u32 s{sW}, 7
        s_cbranch_scc1 L_end
        s_lshl_b32 s{sT[0]}, s2, 6
        s_add_u32 s{sT[0]}, s{sT[0]}, {WS_STAMP}
        v_mov_b32 v1, 0
        """)
        for k in range(14): a(f"v_mov_b32 v2, s{4+2*k}\nbuffer_store_dword v2, v1, {srd(SWS)}, s{sT[0]} offen offset:{4*k} sc1")
        a(f"""
        s_cmp_lg_u32 s2, 0
        s_cbranch_scc1 L_end
        L_pad0:
        s_memrealtime s[{sT[2]}:{sT[3]}]
        s_waitcnt lgkmcnt(0)
        s_sub_u32 s{sT[2]}, s{sT[2]}, s30
        s_cmp_lt_u32 s{sT[2]}, 5000
        s_cbranch_scc1 L_pad0
        v_lshlrev_b32 v1, 6, v{L}
        s_mov_b32 s{sT[4]}, 0
        s_mov_b32 s{sT[5]}, -1
        """)
        for g in range(4):
            a(f"""
            s_mov_b32 s{sT[0]}, {WS_STAMP + 4096*g}
            buffer_load_dword v2, v1, {srd(SWS)}, s{sT[0]} offen offset:{4*OPT['crit']} sc1
            buffer_load_dword v3, v1, {srd(SWS)}, s{sT[0]} offen offset:52 sc1
            s_waitcnt vmcnt(0)
            v_subrev_u32 v2, s30, v2
            v_add_u32 v2, 1000, v2
            v_lshlrev_b32 v2, 8, v2
            v_add_u32 v2, v2, v{L}
            v_add_u32 v2, {64*g}, v2
            v_subrev_u32 v3, s30, v3
            v_add_u32 v3, 1000, v3
            s_nop 1
            """)
            for i in range(64): a(f"v_readlane_b32 s{sT[6]}, v2, {i}\nv_readlane_b32 s{sT[7]}, v3, {i}\ns_nop 0\ns_max_u32 s{sT[4]}, s{sT[4]}, s{sT[6]}\ns_min_u32 s{sT[5]}, s{sT[5]}, s{sT[7]}")
        a(f"""
        s_and_b32 s{sT[4]}, s{sT[4]}, 255
        s_lshl_b32 s{sT[0]}, s{sT[4]}, 6
        s_add_u32 s{sT[0]}, s{sT[0]}, {WS_STAMP}
        v_lshlrev_b32 v1, 2, v{L}
        buffer_load_dword v2, v1, {srd(SWS)}, s{sT[0]} offen sc1
        s_add_u32 s{sT[5]}, s{sT[5]}, s30
        s_sub_u32 s{sT[5]}, s{sT[5]}, 1000
        s_waitcnt vmcnt(0)
        v_subrev_u32 v2, s{sT[5]}, v2
        s_nop 1
        v_writelane_b32 v2, s{sT[4]}, 14
        s_mov_b64 exec, 0x7fff
        buffer_store_dword v2, v1, {srd(SDBG)}, 0 offen offset:4
        """)
    elif 'dk' in OPT:
        a(f"""
        s_cmp_lg_u32 s{sW}, {OPT.get('dw', 7)}
        s_cbranch_scc1 L_end
        s_lshl_b32 s{sT[0]}, s2, 2
        s_add_u32 s{sT[0]}, s{sT[0]}, {WS_STAMP}
        v_mov_b32 v2, s{4+2*OPT['dk']}
        v_mov_b32 v1, 0
        buffer_store_dword v2, v1, {srd(SWS)}, s{sT[0]} offen sc1
        s_cmp_lg_u32 s2, 0
        s_cbranch_scc1 L_end
        L_pad0:
        s_memrealtime s[{sT[2]}:{sT[3]}]
        s_waitcnt lgkmcnt(0)
        s_sub_u32 s{sT[2]}, s{sT[2]}, s30
        s_cmp_lt_u32 s{sT[2]}, 5000
        s_cbranch_scc1 L_pad0
        v_mul_u32_u24 v1, {4*OPT['dstride']}, v{L}
        s_mov_b32 s{sT[0]}, {WS_STAMP + 4*OPT['dbase']}
        buffer_load_dword v2, v1, {srd(SWS)}, s{sT[0]} offen sc1
        s_waitcnt vmcnt(0)
        v_subrev_u32 v2, s30, v2
        v_add_u32 v2, 100000, v2
        s_mov_b32 s{sT[4]}, 0
        s_mov_b32 s{sT[5]}, -1
        """)
        for i in range(OPT['dn']): a(f"v_readlane_b32 s{sT[6]}, v2, {i}\ns_nop 1\ns_max_u32 s{sT[4]}, s{sT[4]}, s{sT[6]}\ns_min_u32 s{sT[5]}, s{sT[5]}, s{sT[6]}")
        a(f"""
        s_sub_u32 s{sT[0]}, s{sT[4]}, s{sT[5]}
        s_min_u32 s{sT[0]}, s{sT[0]}, 2000
        s_mul_i32 s{sT[0]}, s{sT[0]}, 10
        s_add_u32 s{sT[0]}, s{sT[0]}, 6000
        L_pad:
        s_memrealtime s[{sT[2]}:{sT[3]}]
        s_waitcnt lgkmcnt(0)
        s_sub_u32 s{sT[2]}, s{sT[2]}, s30
        s_cmp_lt_u32 s{sT[2]}, s{sT[0]}
        s_cbranch_scc1 L_pad
        """)
    elif 'pad' in OPT:
        K = OPT['pad']
        a(f"s_and_b32 s{sT[0]}, s2, {OPT.get('padm', 0)}\ns_cmp_lg_u32 s{sT[0]}, {OPT.get('padv', 0)}\ns_cbranch_scc1 L_end")
        if K >= 0: a(f"s_sub_u32 s{sT[0]}, s{4+2*K}, s{4+2*OPT.get('padb', 13)}\ns_mul_i32 s{sT[0]}, s{sT[0]}, {OPT.get('padx', 4)}")
        else: a(f"s_mov_b32 s{sT[0]}, 0")
        a(f"""
        s_add_u32 s{sT[0]}, s{sT[0]}, 6000
        L_pad:
        s_memrealtime s[{sT[2]}:{sT[3]}]
        s_waitcnt lgkmcnt(0)
        s_sub_u32 s{sT[2]}, s{sT[2]}, s30
        s_cmp_lt_u32 s{sT[2]}, s{sT[0]}
        s_cbranch_scc1 L_pad
        """)
    else:
        a(f"s_lshl3_add_u32 s{sT[0]}, s2, s{sW}\ns_lshl_b32 s{sT[0]}, s{sT[0]}, 6\ns_add_u32 s{sT[0]}, s{sT[0]}, {WS_STAMP}")
        a("v_mov_b32 v1, 0\ns_mov_b64 exec, 1")
        for k in range(14):
            a(f"v_mov_b32 v2, s{4+2*k}\nbuffer_store_dword v2, v1, {srd(SWS)}, s{sT[0]} offen offset:{4*k}")
a("L_end:\ns_endpgm")
a("L_s3retry:")
o_loads()
a(f"""
s_add_u32 s{sT[2]}, s{sT[2]}, 1
s_cmp_lt_u32 s{sT[2]}, {SPIN}
s_nop 7
s_cbranch_scc1 L_s3poll
s_waitcnt vmcnt(0)
s_branch L_s3done
""")

for P in 'KVPSC':
    a("; ---- projection phase, " + {'K': 'query workgroups, waves 0-3: also k', 'V': 'query workgroups, waves 0-3: also v', 'P': 'query workgroups, waves 4-7',
                                      'S': 'gate/up waves that also form the mixing gate', 'C': 'gate/up wave that also clears the ready words'}[P])
    a(f".p2align 12\n.fill {OPT['o' + P] // 4}, 4, 0xbf800000\nL_path{P}:" if OPT['pal'] else f".p2align 6\nL_path{P}:")
    a.forget()
    proj_path(P)
    a("s_branch L_join")
for x in cold: a(x)

CM = SB
a(f"""
L_true_max:
s_waitcnt vmcnt(0) lgkmcnt(0)
v_mov_b32 v{t0}, 0xff800000
s_mov_b32 s{sT[0]}, {WS_KV}
L_tm1:
buffer_load_dwordx4 {vr(KF,4)}, v{vL16}, {srd(SWS)}, s{sT[0]} offen sc1
s_waitcnt vmcnt(0)
{qk(SA, QB)}
""")
for j in range(8): a(f"v_max3_f32 v{t0}, v{t0}, v{SA+2*j}, v{SA+2*j+1}")
a(f"""
s_add_u32 s{sT[0]}, s{sT[0]}, 2048
s_cmp_lt_u32 s{sT[0]}, {WS_KV + 64*2048}
s_cbranch_scc1 L_tm1
v_mov_b32 v{t1}, v{t0}
v_permlane32_swap_b32 v{t0}, v{t1}
v_max_f32 v{t0}, v{t0}, v{t1}
""")
for r in range(16): a(f"v_sub_f32 v{CM+r}, 0, v{t0}\nv_mov_b32 v{OB+r}, 0")
a(f"""
s_mov_b32 s{sT[0]}, {WS_KV}
L_tm2:
buffer_load_dwordx4 {vr(KF,4)}, v{vL16}, {srd(SWS)}, s{sT[0]} offen sc1
s_mov_b64 exec, s[{sT[8]}:{sT[9]}]
buffer_load_dwordx4 {vr(V1[0],4)}, v{vPV}, {srd(SWS)}, s{sT[0]} offen offset:1024 sc1
buffer_load_dwordx4 {vr(V2,4)}, v{vPV}, {srd(SWS)}, s{sT[0]} offen offset:1536 sc1
s_mov_b64 exec, -1
s_waitcnt vmcnt(0)
v_mfma_f32_32x32x16_bf16 {vr(SA,16)}, {vr(KF,4)}, {vr(QB,4)}, {vr(CM,16)}
""")
for e in range(16): a(f"v_exp_f32 v{SA+e}, v{SA+e}")
a(pv(OB, V1[0], SA)); a(pv(OB, V2, SA + 8))
a(f"""
s_add_u32 s{sT[0]}, s{sT[0]}, 2048
s_cmp_lt_u32 s{sT[0]}, {WS_KV + 64*2048}
s_nop 7
s_cbranch_scc1 L_tm2
s_nop 7
v_rcp_f32 v{t0}, v{OB+8}
s_nop 0
v_mul_f32 v{t0}, v{t0}, v{vG}
""")
for j in range(4): a(f"v_pk_mul_f32 {vr(OB+2*j,2)}, {vr(OB+2*j,2)}, {vr(t0,2)} op_sel_hi:[1,0]")
for j in range(4): a(f"v_cvt_pk_bf16_f32 v{OS+j}, v{OB+2*j}, v{OB+2*j+1}")
a(f"v_or_b32 v{OS}, 1, v{OS}")
a("s_branch L_norm\nL_last:")

bad = a.check_branches()
assert not bad, bad

hdr = open(f'cdna_kernels/{NAME}.s.ref').read().split('\n')
head = [l for l in hdr if l.startswith(';') and '@launch' not in l]
body = a.text()
if OPT.get('jit'):
    import random
    rnd = random.Random(OPT['jit']); o = []; n = 0
    for l in body.split('\n'):
        t = l.strip()
        if (t.startswith(('buffer_store', 'ds_write_b128')) or (o and o[-1].strip() == 's_barrier')) and rnd.random() < 0.5:
            n += 1
            o += [f"    s_cselect_b32 s1, 1, 0", f"    s_add_u32 s0, s2, s{sMW}", f"    s_mul_i32 s0, s0, {rnd.randrange(1 << 20, 1 << 30) | 1}", f"    s_bitcmp1_b32 s0, 27",
                  f"    s_cbranch_scc0 L_jit{n}", f"    s_sleep {rnd.randrange(1, 40)}", f"L_jit{n}:", f"    s_cmp_lg_u32 s1, 0"]
        o.append(l)
    body = '\n'.join(o)
if OPT.get('stm'):
    import re
    body = re.sub(r'(buffer_store_dwordx4 .*s\[52:55\].*) sc1', lambda m: m.group(1) + [' sc1', ' sc1 nt', ' sc0 sc1', ' sc0 sc1 nt'][OPT['stm']], body)
out = "\n".join(head) + f"\n; @launch grid=(256,1,1) block=(512,1,1) lds={LDS_BYTES}\n"
out += f""".amdgcn_target "amdgcn-amd-amdhsa--gfx950"
.text
.globl {NAME}_kernel
.p2align 8
.type {NAME}_kernel,@function
{NAME}_kernel:
{body}
.section .rodata,"a"
.p2align 6
.amdhsa_kernel {NAME}_kernel
  .amdhsa_next_free_vgpr 256
  .amdhsa_next_free_sgpr 102
  .amdhsa_accum_offset 256
  .amdhsa_group_segment_fixed_size 0
  .amdhsa_kernarg_size 104
  .amdhsa_user_sgpr_count 2
  .amdhsa_user_sgpr_kernarg_segment_ptr 1
  .amdhsa_system_sgpr_workgroup_id_x 1
.end_amdhsa_kernel
"""
open(sys.argv[1], 'w').write(out)
print("instructions:", sum(1 for i in a.ins if i.ws), "auto nops:", a.nnop, file=sys.stderr)
```

```python
import sys, math, struct
sys.path.insert(0, 'gen')
from asmlib import Asm

NAME = 'gated_mix__grouped_kv_mqa__geglu_ffn__prompt'
OPT = dict(stamp=0, grp=0, force_fb=0, qflag=11, s1=16, b2=22, outm=1, ofast=0,
           p_kv=20, p_kvs=40, p_st=1, p_sts=40, p_fill=160, p_fills=70, p_kv2=390, p_f2=440, p_chk=470, d0=16, dend=32,
           late=0, pk2=1, nearly=1, h0w=24, h1w=30, clw=22, na=1, gend=30, dwt=0, qbar=0, cpf=1, qmode=0, qf=12, exs=1, spf=1, pb=2, pbq0=0, rq=1, rg=1, r1=1, qfirst=0, vlate=0, jearly=5, xsite=5, woe=0, oe=0, tlb=0, rotm=2, rots=12, dxs=3, wt=1, mpf=21, pal=1, chk=1, rota=1, drot=42, kvr=4, oG=768, oK=576, oP=1088, oS=640, hst=0, oz=0, eb0=0, lb1=50, lb3=92, lc1=70, jlate=0, s1slp=0, s1w=30, lad=1, gb14=1, gbar=0)
for x in sys.argv[2:]:
    k, v = x.split('='); OPT[k] = int(v)

OPT['oV'] = OPT['oK']; OPT['oC'] = min(OPT['oG'], 448)
def fbits(x): return struct.unpack('<I', struct.pack('<f', x))[0]

WS_KV, WS_G, WS_F1, WS_Q, WS_H, WS_STAMP = 0, 0x20000, 0x30000, 0x300000, 0x500000, 0xC00000
WS_O = WS_Q
WS_F2 = WS_F1 + 8192
WS_SIZE = 0x1000000
CLEAR_WG = 128
WR, EX = 65536, 131072
NSLOT, HALF, RING = 24, 49152, 98304
MERGE = 65536
LDS_BYTES = 163840
SPIN = 0x400000
SX, SWG, SWU, SWQ, SEX, SWS, SDBG, SWD, SWO, SOUT = 32, 36, 40, 44, 48, 52, 56, 60, 64, 92
sW, sTI, sQ, sU, sROT, sXO, sWOF, sMX, sMW, sI, sJ, sROT0 = range(68, 80)
sT = list(range(80, 90))
sEXW, sEXO = 90, 91
sC1 = 96
sF2, sRH, sRING, sOO = 98, 99, 100, 101
sHO, sH1 = 3, 0
sKVM, sKVO, sQA, sGA = 32, 33, 34, 35
sF2R, sF2W = 46, 38
sR = [sRH, 44, 45, 47]
def srd(n): return f"s[{n}:{n+3}]"
def vr(b, n): return f"v[{b}:{b+n-1}]"

vXS0, vXS1, vWS = 1, 2, 3
vST = 4
vXR = [5, 6, 7, 8]
vWR = [9, 10]
vES, vER, vSA = 11, [12, 13], 30
vL16, vLANE = 14, 15
vC0 = 16
vZ = 17
vGT = 18
t0, t1, t2, t3 = 20, 21, 22, 23
vS0, vWS2 = 28, 27
vPV, vPD, vTRP = 29, 0, 31
F = [32, 48]
ACC = [64, 96]
XF = 128
ACCE, WE = 96, 100
GW = 147456
L = vLANE
QA, QB, KF, V2, V1 = 128, 132, 136, 140, [144, 148]
vG, vIDX, vAK, vAV, vKVS = 152, 154, 155, 156, 157
vDR0, vDR1, vH0, vH1 = 159, 160, 161, 162
vDS, vDS1, vF2 = vPD, 158, 163
F2D = 164
vONE = 168
vM = [169, 170, 171, 172]
OA, OB, SA, SB = 176, 192, 208, 224
WF = [240, 248]
HF = [32, 40, 48, 56]
DACC = 64

a = Asm()
CLK = 's_memtime' if OPT['stamp'] == 2 else 's_memrealtime'
def stamp(k, grp=0):
    if grp != OPT['grp'] and k != 11: return
    if OPT['stamp']: a(f"{CLK} s[{4+2*k}:{5+2*k}]")
def mk_srd(n, p, size):
    a(f"s_mov_b32 s{n}, s{p}\ns_mov_b32 s{n+1}, s{p+1}\ns_mov_b32 s{n+2}, {size}\ns_mov_b32 s{n+3}, 0x20000")

PG = 3584
C0 = -2.0 * math.sqrt(2.0 / math.pi) * math.log2(math.e)
C1 = C0 * 0.044715
QS = 0.25 * math.log2(math.e)

a("s_cmp_ge_u32 s2, 256\ns_cbranch_scc1 L_end")
a("s_load_dwordx16 s[4:19], s[0:1], 0\ns_load_dwordx8 s[20:27], s[0:1], 64\ns_load_dwordx2 s[28:29], s[0:1], 96")
if OPT['stamp']: a(f"{CLK} s[30:31]")
def code_prefetch():
    a(f"""
    s_getpc_b64 s[{sT[8]}:{sT[9]}]
    L_pc:
    s_andn2_b32 s{sT[7]}, s2, 7
    s_lshl_b32 s{sT[7]}, s{sT[7]}, 8
    v_lshl_add_u32 v{t3}, v0, 2, s{sT[7]}
    v_min_u32 v{t3}, L_last-L_pc-4, v{t3}
    s_mov_b32 exec_lo, 1
    s_mov_b32 exec_hi, 1
    global_load_dword v{vS0}, v{t3}, s[{sT[8]}:{sT[9]}]
    s_mov_b64 exec, -1
    """)
if OPT['cpf'] == 1: code_prefetch()
CH1, CH2 = [0] * 16, [0] * 16
for q_ in range(4):
    if OPT['chk']:
        slow = [r for r in range(7) if (7 * q_ + r) % 4 == 3]; order = slow + [r for r in range(7) if r not in slow]
        CH2[4*q_+3], CH2[4*q_+2], CH2[4*q_+1], CH2[4*q_], CH1[4*q_+1], CH1[4*q_+2], CH1[4*q_+3] = order
    else:
        for u_ in range(4): CH2[4*q_+u_] = 2 * u_; CH1[4*q_+u_] = max(2 * u_ - 1, 0)
def chunk_of(tab, dst, tmp):
    v = sum(x << (4 * i) for i, x in enumerate(tab))
    return f"""s_mov_b32 s{tmp}, {v & 0xffffffff:#x}
s_mov_b32 s{tmp+1}, {v >> 32:#x}
s_lshl2_add_u32 s{dst}, s{sQ}, s{sU}
s_lshl_b32 s{dst}, s{dst}, 2
s_lshr_b64 s[{tmp}:{tmp+1}], s[{tmp}:{tmp+1}], s{dst}
s_and_b32 s{tmp}, s{tmp}, 7
s_mul_i32 s{dst}, s{sQ}, 7
s_add_u32 s{dst}, s{dst}, s{tmp}"""
ROTC = {8: f"s_lshl1_add_u32 s{sROT0}, s{sU}, s{sJ}\ns_and_b32 s{sROT0}, s{sROT0}, 7",
        4: f"s_add_u32 s{sROT0}, s{sU}, s{sJ}\ns_and_b32 s{sROT0}, s{sROT0}, 3\ns_lshl_b32 s{sROT0}, s{sROT0}, 1",
        2: f"s_add_u32 s{sROT0}, s{sU}, s{sJ}\ns_and_b32 s{sROT0}, s{sROT0}, 1\ns_lshl_b32 s{sROT0}, s{sROT0}, 2",
        3: f"s_add_u32 s{sROT0}, s{sU}, s{sJ}\ns_lshl_b32 s{sROT0}, s{sROT0}, 1\ns_lshr_b32 s{sROT0}, 0x124924, s{sROT0}\ns_and_b32 s{sROT0}, s{sROT0}, 3\ns_mul_i32 s{sROT0}, s{sROT0}, 3",
        1: f"s_mov_b32 s{sROT0}, 0"}[OPT['rotm']]
if OPT['rots']:
    ROTC += f"\ns_bfe_u32 s{sQ}, s2, 0x20001\ns_mul_i32 s{sT[1]}, s{sQ}, {OPT['rots'] // 10}\ns_add_u32 s{sROT0}, s{sROT0}, s{sT[1]}\ns_mul_i32 s{sT[1]}, s{sT[2]}, {OPT['rots'] % 10}\ns_add_u32 s{sROT0}, s{sROT0}, s{sT[1]}\n" + (f"s_add_u32 s{sROT0}, s{sROT0}, {OPT['rota']}\n" if OPT['rota'] else "") + f"s_and_b32 s{sROT0}, s{sROT0}, 7"
a(f"""
v_readfirstlane_b32 s{sW}, v0
v_lshrrev_b32 v{t1}, 4, v0
v_lshrrev_b32 v{t0}, 3, v0
v_xor_b32 v{t1}, v0, v{t1}
s_lshr_b32 s{sU}, s2, 6
s_bfe_u32 s{sJ}, s2, 0x30003
v_and_b32 v{t1}, 7, v{t1}
s_and_b32 s{sT[2]}, s2, 1
s_lshl3_add_u32 s{sTI}, s{sT[2]}, s{sJ}
v_lshlrev_b32 v{t1}, 4, v{t1}
{ROTC}
v_lshl_add_u32 v{vXS0}, v{t0}, 10, v{t1}
s_lshl_b32 s{sT[0]}, s{sTI}, 17
s_lshl_b32 s{sXO}, s{sROT0}, 7
s_add_u32 s{sXO}, s{sXO}, s{sT[0]}
s_lshl_b32 s{sMW}, s{sW}, 4
s_mov_b32 m0, s{sMW}
s_mov_b32 s{SX+2}, {2048*1024}
s_mov_b32 s{SX+3}, 0x20000
""")
a(f"""
s_bfe_u32 s{sT[1]}, s{sW}, 0x10006
s_lshl_b32 s{sT[1]}, s{sT[1]}, 2
v_and_or_b32 v{t1}, v{t0}, 2, s{sT[1]}
s_bfe_u32 s{sQ}, s2, 0x20001
v_xor_b32 v{t1}, v0, v{t1}
{chunk_of(CH1, sT[1], sT[4])}
v_and_b32 v{t1}, 7, v{t1}
s_lshl_b32 s{sT[2]}, s{sQ}, 1
s_movk_i32 s{sT[3]}, {PG}
v_lshlrev_b32 v{vWS2}, 4, v{t1}
s_mov_b32 s{SWG+3}, 0x20000
s_mov_b32 s{SWU+3}, 0x20000
s_cmp_eq_u32 s{sU}, 0
s_cselect_b32 s{sT[1]}, s{sT[2]}, s{sT[1]}
s_cselect_b32 s{sT[3]}, 1024, s{sT[3]}
s_cselect_b32 s{sT[2]}, 128, 0
v_mad_u32_u24 v{vWS}, v{t0}, s{sT[3]}, v{vWS2}
s_lshl_b32 s{SWG+2}, s{sT[3]}, 9
s_mov_b32 s{SWU+2}, s{SWG+2}
s_mul_i32 s{sWOF}, s{sROT0}, s{sT[3]}
s_lshl1_add_u32 s{sWOF}, s{sT[1]}, s{sWOF}
s_lshl_b32 s{sWOF}, s{sWOF}, 6
s_cmp_eq_u32 s{sU}, 0
{CLK + ' s[84:85]' if OPT['grp'] == 5 else ''}
s_waitcnt lgkmcnt(0)
{CLK + ' s[86:87]' if OPT['grp'] == 5 else ''}
s_mov_b64 s[{SX}:{SX+1}], s[4:5]
s_cselect_b64 s[{SWG}:{SWG+1}], s[6:7], s[16:17]
s_cselect_b64 s[{SWU}:{SWU+1}], s[6:7], s[18:19]
""")
def first_stage(x0, x1, xstep, wstep):
    a(f"""
    buffer_load_dwordx4 v{x0}, {srd(SX)}, s{sXO} offen lds
    s_add_u32 m0, s{sMW}, {WR}
    s_add_u32 s{sXO}, s{sXO}, {xstep}
    buffer_load_dwordx4 v{vWS}, {srd(SWG)}, s{sWOF} offen lds
    s_add_u32 m0, s{sMW}, {WR + 8192}
    s_add_u32 s{sWOF}, s{sWOF}, {wstep}
    buffer_load_dwordx4 v{vWS}, {srd(SWU)}, s{sWOF} offen lds
    s_add_u32 m0, s{sMW}, 8192
    s_nop 0
    buffer_load_dwordx4 v{x1}, {srd(SX)}, s{sXO} offen lds
    """)
if OPT['qfirst']: a("s_cbranch_scc0 L_late")
first_stage(vXS0, vXS0, 65536, f"s{sT[2]}")
if OPT['wt']:
    assert not OPT['qfirst']
    a(f"""
    s_lshr_b32 s{sT[4]}, s{sW}, 7
    s_lshr_b32 s{sT[5]}, s{sJ}, 1
    s_cmp_lg_u32 s{sT[4]}, s{sT[5]}
    s_cbranch_scc1 L_nowt
    s_add_u32 s{sT[4]}, s{sROT0}, 1
    s_and_b32 s{sT[4]}, s{sT[4]}, 7
    s_mul_i32 s{sT[4]}, s{sT[4]}, s{sT[3]}
    s_lshl1_add_u32 s{sT[4]}, s{sT[1]}, s{sT[4]}
    s_lshl_b32 s{sT[4]}, s{sT[4]}, 6
    buffer_load_dword v32, v{vWS}, {srd(SWG)}, s{sT[4]} offen
    s_add_u32 s{sT[4]}, s{sT[4]}, s{sT[2]}
    buffer_load_dword v33, v{vWS}, {srd(SWU)}, s{sT[4]} offen
    L_nowt:
    """)
if OPT['qfirst']: a("L_late:")
if OPT['grp'] == 5: a(f"{CLK} s[88:89]\ns_waitcnt lgkmcnt(0)\ns_mov_b32 s4, s84\ns_mov_b32 s14, s86\ns_mov_b32 s5, s88")
a(f"""
s_lshr_b32 s{sW}, s{sW}, 6
v_add_u32 v{vXS0}, s{sT[0]}, v{vXS0}
v_add_u32 v{vXS1}, 0x10000, v{vXS0}
s_sub_u32 s{sXO}, s{sXO}, s{sT[0]}
s_mov_b32 s{sH1}, s{sT[1]}
s_lshl_b32 s{sT[1]}, s{sT[1]}, 7
s_sub_u32 s{sWOF}, s{sWOF}, s{sT[1]}
v_add_u32 v{vWS}, s{sT[1]}, v{vWS}
s_movk_i32 s{sT[3]}, {PG}
v_mad_u32_u24 v{vWS2}, v{t0}, s{sT[3]}, v{vWS2}
{chunk_of(CH2, sHO, sT[4])}
s_lshl_b32 s{sT[1]}, s{sHO}, 7
v_add_u32 v{vWS2}, s{sT[1]}, v{vWS2}
v_and_b32 v{L}, 63, v0
v_lshlrev_b32 v{vL16}, 4, v{L}
s_and_b32 s{sT[0]}, s2, 7
s_lshl2_add_u32 s{sI}, s{sT[0]}, s{sU}
s_add_u32 s{sROT}, s{sROT0}, 1
s_and_b32 s{sROT}, s{sROT}, 7
s_lshl_b32 s{sMX}, s{sW}, 11
""")
def late_loads(k):
    if OPT['qfirst'] != k: return
    a(f"s_cmp_eq_u32 s{sU}, 0\ns_cbranch_scc1 L_early")
    first_stage(vXS0, vXS1, 0, 0)
    a("L_early:")
late_loads(1)
def dispatch():
    a(f"""
    s_lshr_b32 s{sT[1]}, s{sW}, 2
    s_lshl1_add_u32 s{sT[0]}, s{sU}, s{sT[1]}
    s_lshr_b32 s{sT[1]}, s{sQ}, 1
    s_lshl1_add_u32 s{sT[0]}, s{sT[0]}, s{sT[1]}
    s_cmp_eq_u32 s{sT[0]}, 0
    s_cbranch_scc1 L_pathK
    s_cmp_eq_u32 s{sT[0]}, 1
    s_cbranch_scc1 L_pathV
    s_cmp_lt_u32 s{sT[0]}, 4
    s_cbranch_scc1 L_pathP
    s_cmp_eq_u32 s{sT[0]}, 4
    s_cbranch_scc1 L_pathS
    s_add_u32 s{sT[0]}, s{sMW}, s2
    s_cmp_eq_u32 s{sT[0]}, {CLEAR_WG + 1024}
    s_cbranch_scc1 L_pathC
    """)

PATH = ['G']
def wslot(sig):
    if sig < 8: return WR + (sig & 3) * 16384
    if sig >= 14: return EX + (sig - 14) * 16384
    return (0 if sig & 1 else WR) + ((sig - 8) >> 1) * 16384
def waddr(sig, b):
    return {0: vXR[b], 1: vWR[b], 2: vXR[2 + b]}[wslot(sig) >> 16]

def dma_ops(sig, path):
    p = sig >> 3
    isq = (path in 'KVP' and p == 0)
    pitch = 1024 if isq else PG
    sa, sb = (SWQ, SWQ) if isq else (SWG, SWU)
    xs, ws = (sig & 3) * 16384, wslot(sig)
    pre = f"s_mul_i32 s{sWOF}, s{sROT}, {64*pitch}\n"
    mid = f"s_add_u32 s{sWOF}, s{sWOF}, 128\n" if isq else ""
    inc, wrap = f"s_add_u32 s{sROT}, s{sROT}, 1\n", f"s_and_b32 s{sROT}, s{sROT}, 7\n"
    vw = vWS2 if p == 1 else vWS
    wa = f"s_add_u32 m0, s{sMW}, {ws}\n{{}}buffer_load_dwordx4 v{vw}, {srd(sa)}, s{sWOF} offen lds"
    wb = f"s_add_u32 m0, s{sMW}, {ws+8192}\n{{}}buffer_load_dwordx4 v{vw}, {srd(sb)}, s{sWOF} offen lds"
    if p == 0:
        return [f"s_add_u32 m0, s{sMW}, {xs}\ns_lshl_b32 s{sXO}, s{sROT}, 7\nbuffer_load_dwordx4 v{vXS0}, {srd(SX)}, s{sXO} offen lds",
                wa.format(pre), wb.format(mid + inc),
                f"s_add_u32 m0, s{sMW}, {xs+8192}\n{wrap}buffer_load_dwordx4 v{vXS1}, {srd(SX)}, s{sXO} offen lds"]
    return [wa.format(pre), wb.format(inc + wrap)]

DROT = {8: f"s_mul_i32 s{sRH}, s{sJ}, 7\ns_lshr_b32 s{sRH}, s{sRH}, 2\ns_mul_i32 s{sT[1]}, s{sU}, 7\ns_lshr_b32 s{sT[1]}, s{sT[1]}, 1\ns_add_u32 s{sRH}, s{sRH}, s{sT[1]}",
        4: f"s_add_u32 s{sRH}, s{sJ}, s{sU}\ns_and_b32 s{sRH}, s{sRH}, 3\ns_mul_i32 s{sRH}, s{sRH}, 7\ns_lshr_b32 s{sRH}, s{sRH}, 1",
        2: f"s_add_u32 s{sRH}, s{sJ}, s{sU}\ns_and_b32 s{sRH}, s{sRH}, 1\ns_mul_i32 s{sRH}, s{sRH}, 7",
        42: f"s_lshl1_add_u32 s{sRH}, s{sJ}, s{sU}\ns_and_b32 s{sRH}, s{sRH}, 3\ns_mul_i32 s{sRH}, s{sRH}, 7\ns_lshr_b32 s{sRH}, s{sRH}, 1"}[OPT['drot']]
def setup_common():
    mk_srd(SWS, 28, WS_SIZE)
    if OPT.get('wso'): a(f"s_add_u32 s{SWS}, s{SWS}, {OPT['wso'] << 20}\ns_addc_u32 s{SWS+1}, s{SWS+1}, 0")
    mk_srd(SDBG, 26, 256); mk_srd(SWD, 20, 1792 * 1024); mk_srd(SWO, 12, 512 * 1024); mk_srd(SOUT, 24, 2048 * 1024)
    late_loads(2)
    a(f"""
    s_and_b32 s{sT[0]}, s{sW}, 3
    s_lshr_b32 s{sT[1]}, s{sW}, 2
    s_xor_b32 s{sT[5]}, s{sT[1]}, s{sQ}
    s_and_b32 s{sT[5]}, s{sT[5]}, 1
    s_lshl1_add_u32 s{sT[0]}, s{sT[0]}, s{sT[5]}
    s_lshl_b32 s{sT[0]}, s{sT[0]}, 11
    v_and_b32 v{t0}, 15, v{L}
    v_bfe_u32 v{t1}, v{L}, 1, 3
    v_lshrrev_b32 v{t2}, 4, v{L}
    v_xor_b32 v{t1}, v{t1}, v{t2}
    v_lshlrev_b32 v{t1}, 4, v{t1}
    v_lshl_add_u32 v{t1}, v{t0}, 7, v{t1}
    v_add_u32 v{vXR[0]}, s{sT[0]}, v{t1}
    v_xor_b32 v{vXR[1]}, 0x800, v{vXR[0]}
    v_xor_b32 v{vXR[2]}, 64, v{vXR[0]}
    v_xor_b32 v{vXR[3]}, 64, v{vXR[1]}
    s_lshl_b32 s{sT[2]}, s{sT[5]}, 8
    v_xor_b32 v{vST}, s{sT[2]}, v{vL16}
    """)
    a(f"""
    v_lshrrev_b32 v{t3}, 5, v{L}
    v_lshlrev_b32 v{t0}, 4, v{t0}
    v_lshl_add_u32 v{vPV}, v{t3}, 8, v{t0}
    """)
    late_loads(3)
    a(f"""
    v_bfe_u32 v{t0}, v{L}, 2, 2
    v_lshl_add_u32 v{t1}, v{t2}, 3, v{t0}
    v_lshlrev_b32 v{t1}, 7, v{t1}
    v_bfe_u32 v{t2}, v{L}, 3, 2
    s_lshl_b32 s{sT[1]}, s{sT[1]}, 1
    v_xor_b32 v{t2}, s{sT[1]}, v{t2}
    v_lshl_add_u32 v{t1}, v{t2}, 5, v{t1}
    v_and_b32 v{t2}, 3, v{L}
    v_lshl_add_u32 v{t1}, v{t2}, 3, v{t1}
    v_add_u32 v{vWR[0]}, {WR}, v{t1}
    v_xor_b32 v{vWR[1]}, 32, v{vWR[0]}
    """)
    a(f"""
    v_lshl_add_u32 v{t3}, v{t3}, 3, v{t0}
    v_lshlrev_b32 v{t3}, 7, v{t3}
    v_lshrrev_b32 v{t0}, 1, v{t0}
    v_lshl_add_u32 v{t3}, v{t0}, 6, v{t3}
    v_lshl_add_u32 v{t3}, v{t2}, 3, v{t3}
    v_bfe_u32 v{t2}, v{L}, 4, 1
    v_lshl_add_u32 v{vTRP}, v{t2}, 5, v{t3}
    v_lshlrev_b32 v{t2}, 2, v{t2}
    v_and_b32 v{t1}, 7, v{L}
    v_xor_b32 v{t1}, v{t1}, v{t2}
    v_lshlrev_b32 v{t1}, 4, v{t1}
    v_lshrrev_b32 v{t0}, 3, v{L}
    v_lshl_add_u32 v{t0}, v{t0}, 10, v{t1}
    s_lshl_b32 s{sT[0]}, s{sJ}, 7
    v_add_u32 v{vPD}, s{sT[0]}, v{t0}
    v_mov_b32 v{vZ}, 0
    v_mov_b32 v{vC0}, {fbits(C0):#x}
    s_mov_b32 s{sC1}, {fbits(C1):#x}
    s_mov_b32 s{sC1+1}, {fbits(C1):#x}
    """)
    late_loads(4)
    a(f"""
    s_lshr_b32 s{sT[3]}, s{sW}, 2
    s_and_b32 s{sT[1]}, s{sW}, 3
    s_lshl2_add_u32 s{sT[0]}, s{sTI}, s{sT[1]}
    s_lshl_b32 s{sT[8]}, s{sT[0]}, 5
    s_and_b32 s{sT[2]}, s{sT[0]}, 15
    s_lshr_b32 s{sT[0]}, s{sT[0]}, 4
    s_mul_i32 s{sT[0]}, s{sT[0]}, 112
    s_lshl1_add_u32 s{sT[0]}, s{sT[3]}, s{sT[0]}
    s_lshl4_add_u32 s{sT[0]}, s{sT[0]}, s{sT[2]}
    s_lshl_b32 s{sT[0]}, s{sT[0]}, 10
    s_add_u32 s{sT[0]}, s{sT[0]}, {WS_H}
    s_lshl_b32 s{sHO}, s{sHO}, 16
    s_add_u32 s{sHO}, s{sHO}, s{sT[0]}
    s_lshl_b32 s{sH1}, s{sH1}, 16
    s_add_u32 s{sH1}, s{sH1}, s{sT[0]}
    s_lshl3_add_u32 s{sT[4]}, s{sQ}, s{sT[8]}
    s_lshl1_add_u32 s{sT[4]}, s{sT[3]}, s{sT[4]}
    s_lshl_b32 s{sT[4]}, s{sT[4]}, 10
    s_lshl2_add_u32 s{sF2}, s{sTI}, s{sQ}
    s_lshl_b32 s{sF2}, s{sF2}, 5
    s_add_u32 s{sF2}, s{sF2}, s{sU}
    s_lshl_b32 s{sF2}, s{sF2}, 2
    s_add_u32 s{sF2}, s{sF2}, {WS_F2}
    s_lshl1_add_u32 s{sT[1]}, s{sI}, s{sT[3]}
    s_lshl3_add_u32 s{sT[2]}, s{sT[1]}, s{sJ}
    s_and_b32 s{sT[1]}, s{sW}, 3
    s_lshl2_add_u32 s{sT[2]}, s{sT[2]}, s{sT[1]}
    s_lshl_b32 s{sOO}, s{sT[2]}, 10
    s_lshl_b32 s{sRING}, s{sW}, 13
    s_add_u32 s{sRING}, s{sRING}, {RING}
    {DROT}
    s_and_b32 s{sT[1]}, s2, {OPT['dxs']}
    s_add_u32 s{sRH}, s{sRH}, s{sT[1]}
    s_cmp_ge_u32 s{sRH}, 14
    s_cselect_b32 s{sT[1]}, 14, 0
    s_sub_u32 s{sRH}, s{sRH}, s{sT[1]}
    s_lshl_b32 s{sRH}, s{sRH}, 14
    s_mul_i32 s{sT[1]}, s{sW}, {14*16384}
    s_add_u32 s{SWD}, s{SWD}, s{sT[1]}
    s_addc_u32 s{SWD+1}, s{SWD+1}, 0
    s_sub_u32 s{SWD+2}, s{SWD+2}, s{sT[1]}
    s_lshl_b32 s{sT[1]}, s{sW}, 16
    s_add_u32 s{SWO}, s{SWO}, s{sT[1]}
    s_addc_u32 s{SWO+1}, s{SWO+1}, 0
    s_sub_u32 s{SWO+2}, s{SWO+2}, s{sT[1]}
    """)

def setup_path(P):
    if P in 'GC' and OPT['mpf']:
        a(f"""
        s_cmp_eq_u32 s{sU}, 2
        s_cselect_b64 s[{SEX}:{SEX+1}], s[{SWD}:{SWD+1}], s[{SWO}:{SWO+1}]
        s_cselect_b32 s{SEX+2}, s{SWD+2}, s{SWO+2}
        s_cselect_b32 s{sT[0]}, 28, 8
        s_mov_b32 s{SEX+3}, 0x20000
        s_cmp_eq_u32 s{sU}, 1
        s_cselect_b32 s{SEX+2}, 0, s{SEX+2}
        s_and_b32 s{sT[1]}, s2, 63
        s_mul_i32 s{sT[1]}, s{sT[1]}, s{sT[0]}
        s_sub_u32 s{sT[0]}, s{sT[0]}, 1
        v_min_u32 v{vES}, s{sT[0]}, v{L}
        v_add_lshl_u32 v{vES}, v{vES}, s{sT[1]}, 7
        """)
    if P in 'KV':
        a(f"""
        v_lshrrev_b32 v{t2}, 4, v{L}
        v_and_b32 v{t0}, 15, v{L}
        v_lshlrev_b32 v{t1}, 3, v{t0}
        v_lshl_add_u32 v{t1}, v{t2}, 8, v{t1}
        v_and_b32 v{t3}, 1, v{t2}
        v_lshl_add_u32 v{t1}, v{t3}, 7, v{t1}
        v_add_u32 v{vER[0]}, {EX}, v{t1}
        v_xor_b32 v{vER[1]}, 0x80, v{vER[0]}
        v_lshlrev_b32 v{t1}, 7, v{t3}
        v_xor_b32 v{vES}, v{t1}, v{vL16}
        s_add_u32 s{sEXO}, s{sW}, s{sROT0}
        s_and_b32 s{sEXO}, s{sEXO}, 7
        s_lshl_b32 s{sEXO}, s{sEXO}, 11
        s_lshr_b32 s{sEXW}, s{sT[4]}, 15
        v_lshrrev_b32 v{t2}, 1, v{t2}
        """)
        if P == 'K':
            a(f"""
            s_lshl3_add_u32 s{sEXW}, s{sEXW}, s{sT[5]}
            s_lshl_b32 s{sEXW}, s{sEXW}, 8
            v_lshlrev_b32 v{t2}, 9, v{t2}
            """)
        else:
            a(f"""
            s_lshl2_add_u32 s{sEXW}, s{sEXW}, s{sT[5]}
            s_lshl_b32 s{sEXW}, s{sEXW}, 9
            s_add_u32 s{sEXW}, s{sEXW}, 1024
            v_lshlrev_b32 v{t2}, 8, v{t2}
            v_and_b32 v{t0}, 3, v{L}
            v_bfe_u32 v{t1}, v{L}, 2, 1
            v_lshl_add_u32 v{t0}, v{t1}, 3, v{t0}
            v_bfe_u32 v{t1}, v{L}, 3, 1
            v_lshl_add_u32 v{t0}, v{t1}, 2, v{t0}
            """)
        a(f"""
        v_lshl_add_u32 v{t2}, v{t0}, 4, v{t2}
        v_lshl_add_u32 v{vSA}, v{t3}, 3, v{t2}
        """)
    if P == 'P':
        a(f"""
        v_bfe_u32 v{t1}, v{L}, 4, 1
        v_lshlrev_b32 v{t1}, 7, v{t1}
        v_xor_b32 v{vES}, v{t1}, v{vL16}
        s_add_u32 s{sEXO}, s{sW}, s{sROT0}
        s_and_b32 s{sEXO}, s{sEXO}, 7
        s_lshl_b32 s{sEXO}, s{sEXO}, 11
        """)
    if P == 'S':
        a(f"""
        s_lshl_b32 s{sEXO}, s{sROT0}, 7
        v_add_u32 v{vES}, s{sEXO}, v{vL16}
        v_and_b32 v{vES}, 0x3ff, v{vES}
        v_and_b32 v{t0}, 48, v{L}
        v_add_u32 v{vER[0]}, {GW}, v{t0}
        v_and_b32 v{t0}, 15, v{L}
        v_lshlrev_b32 v{vSA}, 2, v{t0}
        s_lshr_b32 s{sEXW}, s{sT[4]}, 15
        s_lshl1_add_u32 s{sEXW}, s{sEXW}, s{sT[5]}
        s_lshl_b32 s{sEXW}, s{sEXW}, 6
        s_add_u32 s{sEXW}, s{sEXW}, {WS_G}
        """)

def x_reads(sig, j):
    return [f"ds_read_b128 {vr(XF + 16*sig + 8*j + 4*tq, 4)}, v{vXR[2*j+tq]} offset:{(sig & 3) * 16384}" for tq in range(2)]
def w_reads(sig, j, i):
    b, part = i >> 1, i & 1
    off = (wslot(sig) & 0xffff) + part * 8192 + j * 4096
    return [f"ds_read_b64_tr_b16 {vr(F[j] + 4*i + 2*e, 2)}, v{waddr(sig, b)} offset:{off + e*512}" for e in range(2)]
def e_steps(c):
    c0 = 2 * OPT['exs']
    if PATH[0] in 'KVS': return [2 * (c - c0), 2 * (c - c0) + 1] if c0 <= c < 2 * c0 else ([c] if 2 * c0 <= c < 16 else [])
    return []
def e_buf(c, i): return WE + 16 + 4 * i if (PATH[0] == 'S' and c == 15) else WE + 8 * (c & 1) + 4 * i
def e_reads(c):
    if PATH[0] == 'S':
        cs = [] if c == 15 else ([14, 15] if c == 14 else [c])
        return [f"ds_read_b128 {vr(e_buf(x, i), 4)}, v{vER[0]} offset:{k*64}" for x in cs for i, k in enumerate(e_steps(x))]
    return [f"ds_read_b64_tr_b16 {vr(e_buf(c, i) + 2*e, 2)}, v{vER[e]} offset:{k*1024}" for i, k in enumerate(e_steps(c)) for e in range(2)]
def e_mfmas(c):
    out = []
    for i, k in enumerate(e_steps(c)):
        acc, w, x = vr(ACCE, 4), vr(e_buf(c, i), 4), vr(XF + 8 * k, 4)
        A, B = (x, w) if PATH[0] == 'V' else (w, x)
        out.append(f"v_mfma_f32_16x16x32_bf16 {acc}, {A}, {B}, {'0' if k == 0 else acc}")
    return out
def mfmas(sig, j):
    out = []
    for i in range(4):
        for tq in range(2):
            d = vr(ACC[sig >> 3] + 8 * i + 4 * tq, 4)
            c = "0" if ((sig & 7) == 0 and j == 0) else d
            out.append(f"v_mfma_f32_16x16x32_bf16 {d}, {vr(F[j] + 4*i, 4)}, {vr(XF + 16*(sig&7) + 8*j + 4*tq, 4)}, {c}")
    return out

def gelu_pair(base, j, T=vGT, pk=False):
    G = vr(base + 2 * j, 2); U = vr(base + 8 + 2 * j, 2); TT = vr(T, 2)
    g0, g1, u0, u1 = base + 2 * j, base + 2 * j + 1, base + 8 + 2 * j, base + 9 + 2 * j
    if pk:
        return [f"v_pk_mul_f32 {TT}, {G}, {G}",
                f"v_pk_fma_f32 {TT}, {TT}, s[{sC1}:{sC1+1}], {vr(vC0,2)} op_sel_hi:[1,1,0]",
                f"v_pk_mul_f32 {TT}, {TT}, {G}",
                f"v_exp_f32 v{T}, v{T}", f"v_exp_f32 v{T+1}, v{T+1}",
                f"v_pk_mul_f32 {G}, {G}, {U}",
                f"v_pk_add_f32 {TT}, {TT}, 1.0 op_sel_hi:[1,0]",
                f"v_rcp_f32 v{T}, v{T}", f"v_rcp_f32 v{T+1}, v{T+1}",
                f"v_pk_mul_f32 {G}, {G}, {TT}",
                f"v_cvt_pk_bf16_f32 v{base+j}, v{g0}, v{g1}"]
    return [f"v_mul_f32 v{T}, v{g0}, v{g0}", f"v_mul_f32 v{T+1}, v{g1}, v{g1}",
            f"v_fma_f32 v{T}, v{T}, s{sC1}, v{vC0}", f"v_fma_f32 v{T+1}, v{T+1}, s{sC1}, v{vC0}",
            f"v_mul_f32 v{T}, v{T}, v{g0}", f"v_mul_f32 v{T+1}, v{T+1}, v{g1}",
            f"v_exp_f32 v{T}, v{T}", f"v_exp_f32 v{T+1}, v{T+1}",
            f"v_mul_f32 v{g0}, v{g0}, v{u0}", f"v_add_f32 v{T}, 1.0, v{T}", f"v_add_f32 v{T+1}, 1.0, v{T+1}",
            f"v_rcp_f32 v{T}, v{T}", f"v_rcp_f32 v{T+1}, v{T+1}",
            f"v_mul_f32 v{g1}, v{g1}, v{u1}",
            f"v_mul_f32 v{g0}, v{g0}, v{T}", f"v_mul_f32 v{g1}, v{g1}, v{T+1}",
            f"v_cvt_pk_bf16_f32 v{base+j}, v{g0}, v{g1}"]
def to_frag(base):
    return [f"v_permlane16_swap_b32 v{base}, v{base+2}", f"v_permlane16_swap_b32 v{base+1}, v{base+3}"]

def cost(x):
    c = 0
    for l in x.strip().split('\n'):
        l = l.strip()
        if not l or l.startswith(';') or l.endswith(':'): continue
        c += 8 if l.startswith(('v_exp', 'v_rcp')) else (OPT.get('vmc', 16) if l.startswith('buffer_') else 4)
    return c

kvtok = {}
def kv_step(m):
    slot = (4 * m % NSLOT) * 2048
    if m == 0: x = f"s_mov_b32 m0, s{sKVM}\ns_nop 0\n"
    else: x = f"s_add_u32 s{sKVO}, s{sKVO}, 8192\ns_add_u32 m0, s{sKVM}, {slot}\ns_and_b32 s{sKVO}, s{sKVO}, 0xffff\n"
    return [x + f"buffer_load_dwordx4 v{vKVS}, {srd(SWS)}, s{sKVO} offen sc1 lds", f"buffer_load_dwordx4 v{vKVS}, {srd(SWS)}, s{sKVO} offen offset:1024 sc1 lds"]
KV_FIRST = 2
def first_loads():
    return [f"buffer_load_dwordx4 {vr(QA,4)}, v{vL16}, {srd(SWS)}, s{sQA} offen sc1\ns_xor_b32 s{sQA}, s{sQA}, 1024"] + kv_step(0) + \
           [f"buffer_load_dwordx4 {vr(QB,4)}, v{vL16}, {srd(SWS)}, s{sQA} offen sc1"] + kv_step(1)

KVR = {0: f"s_lshr_b32 s{sT[7]}, s2, 3", 1: f"s_mov_b32 s{sT[7]}, 0", 2: f"s_and_b32 s{sT[7]}, s2, 16", 3: f"s_lshl_b32 s{sT[7]}, s2, 3", 4: f"s_lshl_b32 s{sT[7]}, s2, 2"}[OPT['kvr']]
def setup_queue(late=False):
    q = []
    def add(st, txt):
        for l in txt.strip().split('\n'): q.append((st, l.strip().replace('|', '\n')))
    add(11, f"""
    s_lshr_b32 s{sT[5]}, s{sW}, 2
    s_lshl_b32 s{sT[6]}, s{sT[5]}, 16
    v_add_u32 v{vKVS}, s{sT[6]}, v{vL16}
    s_and_b32 s{sT[3]}, s{sW}, 1
    s_mul_i32 s{sT[3]}, s{sT[3]}, {HALF}
    v_add_u32 v{vAK}, s{sT[3]}, v{vL16}
    v_add_u32 v{vAV}, s{sT[3]}, v{vPV}
    s_mul_i32 s{sT[3]}, s{sT[5]}, {HALF}
    s_and_b32 s{sT[6]}, s{sW}, 3
    s_lshl_b32 s{sT[7]}, s{sT[6]}, 11
    s_add_u32 s{sKVM}, s{sT[7]}, s{sT[3]}
    {KVR}
    s_add_u32 s{sT[6]}, s{sT[6]}, s{sT[7]}
    s_and_b32 s{sT[6]}, s{sT[6]}, 31
    s_lshl_b32 s{sKVO}, s{sT[6]}, 11
    s_add_u32 s{sQA}, s{sOO}, {WS_Q}
    s_xor_b32 s{sQA}, s{sQA}, 1024
    s_lshl1_add_u32 s{sGA}, s{sI}, s{sT[5]}
    s_lshl_b32 s{sGA}, s{sGA}, 7
    s_add_u32 s{sGA}, s{sGA}, {WS_G}
    v_and_b32 v{vG}, 31, v{L}
    v_lshlrev_b32 v{vG}, 2, v{vG}
    v_mov_b32 v{vIDX}, 0xdddddddd
    v_mov_b32 v{V2+1}, 0x3f803f80
    s_mov_b32 vcc_lo, 0x110000|s_mov_b32 vcc_hi, 0x110000|v_cndmask_b32 v{V2}, 0, v{V2+1}, vcc
    """)
    for r in range(V2 + 1, V2 + 12): add(11, f"v_mov_b32 v{r}, v{V2}")
    add(12, f"""
    v_add_u32 v{vDR0}, s{sRING}, v{vTRP}
    v_xor_b32 v{vDR1}, 64, v{vDR0}
    v_add_u32 v{vDS1}, 7168, v{vDS}
    s_lshr_b32 s{sT[6]}, s{sI}, 3
    s_lshl3_add_u32 s{sT[6]}, s{sT[6]}, s{sW}
    s_mul_i32 s{sT[6]}, s{sT[6]}, {14*16}
    s_and_b32 s{sT[7]}, s{sI}, 7
    s_lshl1_add_u32 s{sT[7]}, s{sT[7]}, s{sT[5]}
    s_add_u32 s{sT[6]}, s{sT[6]}, s{sT[7]}
    s_lshl_b32 s{sT[6]}, s{sT[6]}, 10
    s_add_u32 s{sT[6]}, s{sT[6]}, {WS_H}
    v_add_u32 v{vH0}, s{sT[6]}, v{vL16}
    v_xor_b32 v{vH1}, 0x400, v{vH0}
    v_lshlrev_b32 v{vF2}, 7, v{L}
    s_lshr_b32 s{sF2R}, s{sI}, 1
    s_lshl_b32 s{sF2R}, s{sF2R}, 9
    s_add_u32 s{sF2R}, s{sF2R}, {WS_F2}
    """)
    add(13, f"s_lshl_b32 s{sF2W}, s{sW}, 24\ns_add_u32 s{sF2W}, s{sF2W}, s{sF2}\nv_mov_b32 v{vONE}, 1")
    add(13, f"""
    s_mul_i32 s{sT[6]}, s{sW}, 2304
    s_add_u32 s{sT[6]}, s{sT[6]}, {MERGE}
    v_add_u32 v{vM[0]}, s{sT[6]}, v{vL16}
    v_lshl_add_u32 v{vM[2]}, v{L}, 2, s{sT[6]}
    s_xor_b32 s{sT[7]}, s{sW}, 1
    s_mul_i32 s{sT[7]}, s{sT[7]}, 2304
    s_add_u32 s{sT[7]}, s{sT[7]}, {MERGE}
    v_add_u32 v{vM[1]}, s{sT[7]}, v{vL16}
    v_lshl_add_u32 v{vM[3]}, v{L}, 2, s{sT[7]}
    """)
    for st, O in ((13, OA), (14, OB)):
        if OPT['oz']:
            add(st, f"buffer_load_dwordx4 {vr(O,4)}, v{vL16}, {srd(SDBG)}, 0 offen offset:256\nbuffer_load_dwordx4 {vr(O+4,4)}, v{vL16}, {srd(SDBG)}, 0 offen offset:256\nv_mov_b32 v{O+8}, 0")
        else:
            for r in range(9): add(st, f"v_mov_b32 v{O+r}, 0")
    if OPT['vlate']:
        cut = [i for i, x in enumerate(q) if x[1].startswith(f"v_and_b32 v{vG}, 31")][0]
        if late: return [x[1] for x in q[cut:]]
        return q[:cut]
    return [] if late else q

cold = []
def s0_check(P):
    a(f"v_cmp_eq_u32 vcc, 0, v{vS0}\ns_cbranch_vccnz L_s0retry{P}\nL_s0done{P}:")
    cold.append(f"""
    L_s0retry{P}:
    s_mov_b32 s{sT[1]}, 0
    L_s0poll{P}:
    buffer_load_dword v{vS0}, v{vZ}, {srd(SDBG)}, 0 offen sc1
    s_add_u32 s{sT[1]}, s{sT[1]}, 1
    s_waitcnt vmcnt(0)
    v_cmp_eq_u32 vcc, 0, v{vS0}
    s_cbranch_vccz L_s0done{P}
    s_cmp_lt_u32 s{sT[1]}, {SPIN}
    s_cbranch_scc1 L_s0poll{P}
    s_branch L_s0done{P}
    """)
def s1_issue(P):
    a(f"s_cmp_lg_u32 s{sW}, 0\ns_cbranch_scc1 L_nopoll0{P}")
    if P in 'GSC': s0_check(P)
    a(f"""
    s_mov_b32 s{sT[1]}, {WS_F1}
    v_lshlrev_b32 v{t1}, 7, v{L}
    buffer_load_dword v{t0}, v{t1}, {srd(SWS)}, s{sT[1]} offen sc1
    L_nopoll0{P}:
    """)
    a.vm -= 1
def s1_check(P):
    a(f"""
    s_cmp_lg_u32 s{sW}, 0
    s_cbranch_scc1 L_s1done{P}
    s_mov_b32 s{sT[0]}, 0
    L_s1poll{P}:
    s_waitcnt vmcnt(0)
    v_cmp_ne_u32 vcc, 1, v{t0}
    s_cbranch_vccz L_s1done{P}
    {'s_sleep ' + str(OPT['s1slp']) if OPT['s1slp'] else ''}
    s_mov_b64 exec, vcc
    buffer_load_dword v{t0}, v{t1}, {srd(SWS)}, s{sT[1]} offen sc1
    s_mov_b64 exec, -1
    s_add_u32 s{sT[0]}, s{sT[0]}, 1
    s_cmp_lt_u32 s{sT[0]}, {SPIN}
    s_cbranch_scc1 L_s1poll{P}
    s_waitcnt vmcnt(0)
    L_s1done{P}:
    """)
    a.vm -= 1

def proj_path(P):
    tok = {}
    PATH[0] = P
    S1 = OPT['s1']
    sched = {s: [s + 2] for s in range(6)}
    ISQ = P in 'KVP'
    PB = OPT['pbq0'] if ISQ else OPT['pb']
    QF = OPT['qf']
    sched.update({6: [8, 9], 7: [10, 11], 8: [12, 13], 9: [14, 15]}); cover = {8: 9, 10: 11, 12: 15}
    if ISQ and OPT['qmode'] == 0:
        del sched[8], sched[9]
        sched.update({10: [12, 13], 11: [14, 15]}); cover = {8: 9, 10: 11, 12: 13, 14: 15}
    bars = set(range(8)) | set(cover) | {S1}
    if OPT['gb14']: bars |= {14}
    if OPT['gbar'] and not ISQ: bars |= set(range(8, 16))
    if ISQ: bars |= {QF} | ({9} if OPT['qmode'] else set()) | (set(range(10, 16)) if OPT['qbar'] else set())
    def dma_groups(sg):
        d = dma_ops(sg, P)
        if ISQ and sg == OPT['exs']:
            d.insert(1, f"""
            s_add_u32 m0, s{sMX}, {EX}
            s_nop 0
            buffer_load_dwordx4 v{vES}, {srd(SEX)}, s{sEXO} offen lds
            buffer_load_dwordx4 v{vES}, {srd(SEX)}, s{sEXO} offen offset:1024 lds
            """)
        if P == 'S' and sg == OPT['exs']:
            d.insert(1, f"s_mov_b32 m0, {GW}\ns_nop 0\nbuffer_load_dwordx4 v{vES}, {srd(SEX)}, 0 offen lds")
        return [(x, sg if k == len(d) - 1 else None) for k, x in enumerate(d)]
    def emit(it):
        if callable(it): return it()
        a(it[0])
        if it[1] is not None: tok[it[1]] = a.lastvm()
    tok[0] = a.lastvm()
    if ISQ: mk_srd(SWQ, 6, 512 * 1024)
    if not OPT['spf']:
        for it in dma_groups(1): emit(it)
    if ISQ: mk_srd(SWG, 16, 512 * PG); mk_srd(SWU, 18, 512 * PG)
    if P in 'KVS': mk_srd(SEX, {'K': 8, 'V': 10, 'S': 22}[P], 1024 if P == 'S' else 16384)
    if P == 'P': a(f"s_cmp_lt_u32 s{sQ}, 2\ns_cselect_b64 s[{SEX}:{SEX+1}], s[8:9], s[10:11]\ns_mov_b32 s{SEX+2}, 16384\ns_mov_b32 s{SEX+3}, 0x20000")
    setup_path(P)
    if OPT['grp'] == 5: a("s_mov_b32 s6, s14\ns_mov_b32 s8, s5")
    stamp(3, 5)
    if OPT['spf']:
        for it in dma_groups(1): emit(it)
    stamp(4, 5)
    if P == 'C':
        ctok = a(f"v_lshlrev_b32 v{t0}, 7, v{L}\ns_mov_b32 s{sT[1]}, {WS_F1}\nbuffer_store_dword v{vZ}, v{t0}, {srd(SWS)}, s{sT[1]} offen sc1")
    win = {c: [] for c in range(33)}
    box = {}; front = {}; pre8 = []; lvl = [3]
    def usable(c):
        return c % 2 == 0 or ((c + 1) // 2) not in bars
    def nxt(c):
        while not usable(c): c += 1
        return c
    if not ISQ:
        gq = []
        for b in range(2):
            for j in range(4): gq += gelu_pair(ACC[0] + 16 * b, j)
            gq += to_frag(ACC[0] + 16 * b)
            if b == 0: n0 = len(gq)
        npre = 17 * (PB - 1) if PB else 0
        pre8 += [(x, None) for j in range(max(PB - 1, 0)) for x in gelu_pair(ACC[0], j, pk=OPT.get('pbk', 0))]
        gq = gq[npre:]; n0 -= npre
        ws = [c for c in range(16, OPT['gend'] + 1) if usable(c)]
        ndma = {16: 2, 17: 2, 18: 4} if 9 not in bars else {16: 4, 18: 4}
        tot = len(gq) + OPT['dwt'] * 8
        done = 0; accw = 0
        for k, c in enumerate(ws):
            accw += OPT['dwt'] * ndma.get(c, 0)
            upto = max(done, tot * (k + 1) // len(ws) - accw)
            win[c] += [(x, None) for x in gq[done:upto]]
            if done < n0 <= upto: c0 = c
            done = upto
        assert done == len(gq)
        for b in range(OPT['nearly']):
            c = nxt(max(OPT[f'h{b}w'], c0 if b == 0 else ws[-1]))
            win[c].append((f"s_add_u32 s{sT[2]}, s{sH1}, {16384*b}\nbuffer_store_dwordx4 {vr(ACC[0]+16*b,4)}, v{vST}, {srd(SWS)}, s{sT[2]} offen sc1", None))
    else:
        qa = [f"s_add_u32 s{sT[8]}, s{sT[4]}, {WS_Q + 4096}\ns_add_u32 s{sT[4]}, s{sT[4]}, {WS_Q}"]
        if P == 'K': qa += [f"v_mul_f32 v{ACCE+r}, {fbits(QS):#x}, v{ACCE+r}" for r in range(4)]
        sts = []
        if P in 'KV':
            qa += [f"v_cvt_pk_bf16_f32 v{vGT}, v{ACCE}, v{ACCE+1}", f"v_cvt_pk_bf16_f32 v{vGT+1}, v{ACCE+2}, v{ACCE+3}"]
            sts.append(f"buffer_store_dwordx2 {vr(vGT,2)}, v{vSA}, {srd(SWS)}, s{sEXW} offen sc1")
        if P == 'P':
            sts.append(f"s_andn2_b32 s{sT[0]}, s{sF2}, 127\nv_lshlrev_b32 v{t2}, 2, v{L}\ns_mov_b32 exec_hi, 0\nbuffer_store_dword v{vZ}, v{t2}, {srd(SWS)}, s{sT[0]} offen sc1\ns_mov_b32 exec_hi, -1")
        def qcv(i): return [f"v_cvt_pk_bf16_f32 v{ACC[0]+8*i+j}, v{ACC[0]+8*i+2*j}, v{ACC[0]+8*i+2*j+1}" for j in range(4)]
        def qst(i): return to_frag(ACC[0] + 8 * i) + [f"v_and_b32 v{ACC[0]+8*i}, -2, v{ACC[0]+8*i}\nbuffer_store_dwordx4 {vr(ACC[0]+8*i,4)}, v{vST}, {srd(SWS)}, s{sT[8 if i & 1 else 4]} offen offset:{1024*(i>>1)} sc1"]
        mark = [lambda: box.update(q=a.lastvm())]
        T = lambda l: [(x, None) for x in l]
        if OPT['qmode'] == 0 and PB:
            pre8 += T(qa + qcv(0) + qcv(1) + qcv(2) + qcv(3) + [x for i in range(4) for x in qst(i)[:2]])
            if OPT.get('pbq'): pre8 += T(sts + [qst(i)[2] for i in range(4)]) + mark
            else: win[16] += T(sts + [qst(i)[2] for i in range(2)]); win[17] += T([qst(i)[2] for i in range(2, 4)]) + mark
        elif OPT['qmode'] == 0:
            win[16] += T(qa + sts + qcv(0) + qcv(1) + qst(0) + qst(1)); win[17] += T(qcv(2) + qcv(3) + qst(2) + qst(3)) + mark
        elif OPT['qmode'] == 1:
            win[16] += T(qa + qcv(0) + qcv(1)); win[18] += T(sts + qst(0) + qcv(2)); win[20] += T(qcv(3) + qst(1) + qst(2) + qst(3)) + mark
        else:
            win[16] += T(qa + qcv(0) + qcv(1) + qcv(2) + qcv(3)); win[18] += T(sts + qst(0) + qst(1) + qst(2) + qst(3)) + mark
        def qflag():
            assert a.vm_done > box['s0']
            if P != 'P': s0_check(P)
            a(f"""
            s_lshl4_add_u32 s{sT[0]}, s{sQ}, s{sTI}
            s_lshl_b32 s{sT[0]}, s{sT[0]}, 7
            s_add_u32 s{sT[0]}, s{sT[0]}, {WS_F1}
            s_lshl_b32 s{sT[1]}, s{sW}, 24
            s_add_u32 s{sT[0]}, s{sT[0]}, s{sT[1]}
            v_mov_b32 v{t1}, 1
            s_mov_b64 exec, 1
            buffer_store_dword v{t1}, v{vZ}, {srd(SWS)}, s{sT[0]} offen sc1
            s_mov_b64 exec, -1
            """)
        if P != 'P': box['flag'] = qflag
    if P in 'GC' and OPT['mpf']:
        win[OPT['mpf']].insert(0, (f"buffer_load_dword v24, v{vES}, {srd(SEX)}, 0 offen", None))
    if P == 'S':
        gs = [(x, None) for x in (f"v_mul_f32 v{t2}, {fbits(-math.log2(math.e)):#x}, v{ACCE}", f"v_exp_f32 v{t2}, v{t2}", f"v_add_f32 v{t2}, 1.0, v{t2}", f"v_rcp_f32 v{t2}, v{t2}",
                                  f"buffer_store_dword v{t2}, v{vSA}, {srd(SWS)}, s{sEXW} offen sc1")]
        if PB: pre8 += gs
        else: win[16] = gs + win[16]
    queue = setup_queue()
    ws = [c for c in range(21 if ISQ else 20, 2 * S1 - 1) if usable(c)]
    for k, c in enumerate(ws):
        left = [x for x in queue if 2 * x[0] - 2 <= c]
        take = min(len(left), -(-len(queue) // (len(ws) - k)))
        win[c] += [(x[1], None) for x in left[:take]]; queue = queue[take:]
    assert not queue
    win[16].insert(0, (f"v_subrev_u32 v{vXR[0]}, {WR}, v{vWR[0]}\nv_subrev_u32 v{vXR[1]}, {WR}, v{vWR[1]}\nv_add_u32 v{vXR[2]}, {WR}, v{vWR[0]}\nv_add_u32 v{vXR[3]}, {WR}, v{vWR[1]}", None))

    def cluster(c, what='mr'):
        M = mfmas(c >> 1, c & 1) if (c >= 0 and 'm' in what) else []
        em = e_mfmas(c) if M else []
        for i, x in enumerate(em): M.insert(1 + (8 // len(em) + 1) * i, x)
        d = c + 1
        R = []
        if d < 32 and 'r' in what:
            if d < 16: R += x_reads(d >> 1, d & 1)
            for i in range(4): R += w_reads(d >> 1, d & 1, i)
            R += e_reads(d)
        a.wait(a.lastlg())
        if M and not OPT['lad']: a("s_setprio 2")
        n = max(len(M), 1); k = 0
        last = n - 1 if (c & 1 or ((c >> 1) + 1) not in bars) else n - 2
        if M: last = min(last, n - 1 - OPT['rq' if ISQ else 'rg'] if c >= 16 else n - 1 - OPT['r1'])
        for i in range(n):
            if M: a(M[i])
            want = len(R) if i >= last else -(-len(R) * (i + 1) // (last + 1))
            while k < want: a(R[k]); k += 1
        if M and not OPT['lad']: a("s_setprio 0")
        if M and OPT['lad'] and lvl[0] > 0 and not (c % 2 == 0 and (c >> 1) + 1 in bars and not (c == 14 and PB)):
            lvl[0] -= 1; a(f"s_setprio {lvl[0]}")

    for sig in range(16):
        if sig == 8 and PB:
            cluster(15, 'm')
            for it in pre8: emit(it)
        if sig in bars:
            if sig in cover or sig < 8: a.wait(tok[cover.get(sig, sig)])
            if ISQ and sig == QF: a.wait(box['q'])
            if sig == S1 and P != 'P': s1_check(P)
            if OPT['lad']: lvl[0] = 3; a("s_setprio 3")
            a("s_barrier")
            if sig == QF and 'flag' in box: box['flag']()
        if sig == 1: stamp(1)
        if sig == 8: stamp(2)
        if sig < 11: stamp(sig, 1)
        if sig < 5: stamp(5 + sig, 5)
        if sig >= 6: stamp(sig - 6, 2)
        D = []
        if P == 'C' and sig == 2:
            assert a.vm_done >= ctok[1]
            win[4].append((f"v_mov_b32 v{t0}, 1\ns_mov_b64 exec, 1\nbuffer_store_dword v{t0}, v{vZ}, {srd(SDBG)}, 0 offen sc1\ns_mov_b64 exec, -1", None))
        for sg in sched.get(sig, []): D += dma_groups(sg)
        if sig == S1: D += [(x, None) for x in first_loads()]
        if sig == (7 if ISQ else 9) and P != 'P':
            def s0_load():
                if not ISQ:
                    a(f"s_cmp_lg_u32 s{sW}, 0\ns_cbranch_scc1 L_nos0l{P}\nbuffer_load_dword v{vS0}, v{vZ}, {srd(SDBG)}, 0 offen sc1\nL_nos0l{P}:")
                    a.vm -= 1
                else:
                    a(f"buffer_load_dword v{vS0}, v{vZ}, {srd(SDBG)}, 0 offen sc1")
                box['s0'] = a.vm
            D.insert(len(D) - 1, s0_load)
        head, mid, tail = [], D, []
        if sig < OPT['late']: mid, tail = [], D
        elif (sig + 1) not in bars: mid, tail = D[:len(D)//2], D[len(D)//2:]
        elif sig in bars and len(D) >= 4: head, mid = D[:OPT['na']], D[OPT['na']:]
        for it in head: emit(it)
        cluster(2 * sig - 1, 'r' if (sig == 8 and PB) else 'mr')
        if sig == S1 - 1 and P != 'P' and OPT['s1w'] == 30:
            assert a.vm_done > box['s0']
            s1_issue(P)
        for it in front.get(2 * sig, []) + mid + win[2 * sig]: emit(it)
        cluster(2 * sig)
        for it in front.get(2 * sig + 1, []) + tail + win[2 * sig + 1]: emit(it)
    if P != 'P' and OPT['s1w'] == 31: s1_issue(P)
    a.wait(a.lastlg())
    assert not win[32]

setup_common()
if OPT['tlb']:
    a(f"s_cmp_lg_u32 s{sW}, 6\ns_cbranch_scc1 L_notlb")
    if OPT['tlb'] == 1:
        a(f"""
        v_lshlrev_b32 v{t0}, 21, v{L}
        s_mov_b32 s{sT[0]}, 0x80000
        s_mov_b64 exec, 63
        buffer_load_dword v32, v{t0}, {srd(SWS)}, s{sT[0]} offen
        s_mov_b64 exec, 1
        buffer_load_dword v33, v{vZ}, {srd(SWD)}, 0 offen
        buffer_load_dword v34, v{vZ}, {srd(SWO)}, 0 offen
        buffer_load_dword v35, v{vZ}, {srd(SOUT)}, 0 offen
        s_mov_b64 exec, -1
        """)
    else:
        a(f"""
        s_lshr_b32 s{sT[0]}, s2, 3
        s_lshl_b32 s{sT[0]}, s{sT[0]}, 16
        v_lshlrev_b32 v{t0}, 21, v{L}
        s_mov_b64 exec, 63
        buffer_load_dword v32, v{t0}, {srd(SWS)}, s{sT[0]} offen
        s_mov_b64 exec, 1
        v_mov_b32 v{t0}, s{sT[0]}
        v_min_u32 v{t1}, {1792*1024 - 4}, v{t0}
        global_load_dword v33, v{t1}, s[20:21]
        v_min_u32 v{t1}, {512*1024 - 4}, v{t0}
        global_load_dword v34, v{t1}, s[12:13]
        buffer_load_dword v35, v{t0}, {srd(SOUT)}, 0 offen
        s_mov_b64 exec, -1
        """)
    a("L_notlb:")
dispatch()
if OPT['pal']: a(f"s_branch L_pathG\n.p2align 12\n.fill {OPT['oG'] // 4}, 4, 0xbf800000\nL_pathG:")
proj_path('G')
a("L_join:")
a.forget()

JE = OPT['jearly'] and OPT['s1'] == 16
if not JE:
    for m in mfmas(15, 1): a(m)
    a("s_setprio 0")
stamp(3); stamp(10, 2)
def gelu_chunk(k):
    b, jp = k >> 1, k & 1
    g0 = gelu_pair(ACC[1] + 16 * b, 2 * jp, vGT, pk=OPT['pk2']); g1 = gelu_pair(ACC[1] + 16 * b, 2 * jp + 1, t2, pk=OPT['pk2'])
    for x, y in zip(g0, g1):
        a(x); a(y)
    if k == 2:
        for x in to_frag(ACC[1]): a(x)
for k in range(OPT['jlate']): gelu_chunk(k)
stamp(5, 3)
if OPT['s1'] == 16:
    s1_check('J')
    stamp(6, 3)
    a("s_barrier")
    stamp(7, 3)
    fl = first_loads()
    if JE:
        nfirst = OPT['jearly'] - 1
        for x in fl[:nfirst]: a(x)
        for m in mfmas(15, 1): a(m)
        fl = fl[nfirst:]
    for x in fl: a(x)
stamp(4); stamp(8, 3)
fltok = a.lastvm()
HST = OPT['hst']
def hs(k):
    if k >= HST: return
    if k == 0:
        assert OPT['nearly'] == 1
        a(f"s_add_u32 s{sT[2]}, s{sH1}, 16384\ns_cmp_eq_u32 s{sU}, 0\ns_cselect_b32 s{sT[2]}, {WS_SIZE}, s{sT[2]}\nbuffer_store_dwordx4 {vr(ACC[0]+16,4)}, v{vST}, {srd(SWS)}, s{sT[2]} offen sc1")
    else:
        hbox['h'] = a((f"s_add_u32 s{sHO}, s{sHO}, 16384\n" if k == 2 else "") + f"buffer_store_dwordx4 {vr(ACC[1]+16*(k-1),4)}, v{vST}, {srd(SWS)}, s{sHO} offen sc1")
hbox = {}
for k in range(OPT['jlate'], 4 - OPT['eb0']):
    gelu_chunk(k)
    if k == OPT.get('hs0', 1): hs(0)
    if k == 2: hs(1)
if not OPT['eb0']:
    for x in to_frag(ACC[1] + 16): a(x)
for x in setup_queue(True): a(x)
a(f"s_mov_b32 s{sT[8]}, 0xffff\ns_mov_b32 s{sT[9]}, 0xffff")
hs(2)
stamp(9, 3)
a.wait(fltok)
a("s_barrier")
if not OPT['eb0']: stamp(5); stamp(10, 3)

def qk(S, Q): return f"v_mfma_f32_32x32x16_bf16 {vr(S,16)}, {vr(KF,4)}, {vr(Q,4)}, 0"
def pv(O, V, S): return f"v_smfmac_f32_32x32x32_bf16 {vr(O,16)}, {vr(V,4)}, {vr(S,8)}, v{vIDX}"
NT, B1, B2 = 32, 8, OPT['b2']
def rec(t): return (t % NSLOT) * 2048
def rdK(t): return a(f"ds_read_b128 {vr(KF,4)}, v{vAK} offset:{rec(t)}")
def rdV(t2, t1):
    a(f"s_mov_b64 exec, s[{sT[8]}:{sT[9]}]")
    if t2 is not None: a(f"ds_read_b128 {vr(V2,4)}, v{vAV} offset:{rec(t2) + 1536}")
    if t1 is not None: a(f"ds_read_b128 {vr(V1[t1&1],4)}, v{vAV} offset:{rec(t1) + 1024}")
    a("s_mov_b64 exec, -1")
    return a.lastlg()
wtok, htok, rtok, box = {}, {}, {}, {}
m0own = [None]; wstart = set()
def w_off(u): return sR[u & 3] if u < 14 else sWOF
def w_load_a(u):
    a(f"s_add_u32 m0, s{sRING}, {(u & 3) * 2048}"); m0own[0] = ('w', u); wstart.add(u)
    assert u == 0 or (u - 1) in wtok
    if 0 < u < 14: a(f"s_sub_u32 s{sR[u&3]}, s{sR[(u-1)&3]}, 16384\ns_cselect_b32 s{sR[u&3]}, {13*16384}, s{sR[u&3]}")
    elif u == 14: a(f"s_lshl_b32 s{sWOF}, s{sU}, 14")
    elif u > 14: a(f"s_add_u32 s{sWOF}, s{sWOF}, 16384\ns_and_b32 s{sWOF}, s{sWOF}, 0xffff")
    a(f"buffer_load_dwordx4 v{vDS}, {srd(SWD if u < 14 else SWO)}, s{w_off(u)} offen lds")
def w_load_b(u):
    if m0own[0] != ('w', u):
        a(f"s_add_u32 m0, s{sRING}, {(u & 3) * 2048}"); m0own[0] = ('w', u)
    wtok[u] = a(f"buffer_load_dwordx4 v{vDS1}, {srd(SWD if u < 14 else SWO)}, s{w_off(u)} offen offset:1024 lds")
def h_load_a(u):
    assert u in wstart and (u + 4) not in wstart
    a(f"buffer_load_dwordx4 {vr(HF[u&3],4)}, v{vH0}, {srd(SWS)}, s{sR[u&3]} offen sc1")
def h_load_b(u):
    assert (u + 4) not in wstart
    htok[u] = a(f"buffer_load_dwordx4 {vr(HF[u&3]+4,4)}, v{vH1}, {srd(SWS)}, s{sR[u&3]} offen sc1")
def w_read(u, b):
    if b == 0: a.wait(wtok[u], htok[u])
    for e in range(2):
        rtok[u, b] = a(f"ds_read_b64_tr_b16 {vr(WF[u&1] + 4*b + 2*e, 2)}, v{(vDR0, vDR1)[b]} offset:{(u & 3) * 2048 + e*512}")
def d_mfma(u, k):
    tb, b = k >> 1, k & 1
    a.wait(rtok[u, 1])
    d = vr(DACC + 32 * tb + 16 * b, 16)
    a(f"v_mfma_f32_32x32x16_bf16 {d}, {vr(WF[u&1]+4*b,4)}, {vr(HF[u&3]+4*tb,4)}, {'0' if u == 0 else d}")

if OPT.get('x_now'):
    def w_load_a(u): pass
    def w_load_b(u): wtok[u] = None
if OPT.get('x_noh'):
    def h_load_a(u): pass
    def h_load_b(u): htok[u] = None
if OPT.get('x_noread'):
    def w_read(u, b): rtok[u, b] = None
ev, mf = {}, {}
SNAP = OPT.get('snap', 1)
B1P = 32 * (B1 - 1) + 11
EV, EVA, EK, EKA = OPT.get('ev', 5), OPT.get('eva', 0), OPT.get('ek', 11), OPT.get('eka', 0)
busy = {32 * t + o for t in range(NT) for o in (EV, EK, 18)}
def nextpos(p):
    while SNAP and (p & 15) not in (2, 5, 8, 11, 14): p += 1
    return p
def at(pos, f, limit=None):
    p = nextpos(pos)
    while SNAP and limit is not None and p in busy and nextpos(p + 1) <= limit: p = nextpos(p + 1)
    busy.add(p)
    ev.setdefault(p, []).append(f)
    return p
def h_store(b): box['h'] = a((f"s_add_u32 s{sHO}, s{sHO}, 16384\n" if b else "") + f"buffer_store_dwordx4 {vr(ACC[1]+16*b,4)}, v{vST}, {srd(SWS)}, s{sHO} offen sc1")
def late_store(k):
    a(f"""
    s_cmp_eq_u32 s{sU}, 0
    s_cbranch_scc1 L_nols{k}
    s_add_u32 s{sT[2]}, s{sH1}, {16384*k}
    buffer_store_dwordx4 {vr(ACC[0]+16*k,4)}, v{vST}, {srd(SWS)}, s{sT[2]} offen sc1
    L_nols{k}:
    """)
    a.vm -= 1
pp = OPT.get('p_st', 1); STS = OPT.get('p_sts', 1)
box.update(hbox)
for k in range(OPT['nearly'] + (HST > 0), 2):
    pp = at(pp, lambda k=k: late_store(k), pp + 12) + STS
if HST < 2: pp = at(pp, lambda: h_store(0), pp + 12) + STS
if HST < 3: pp = at(pp, lambda: h_store(1), pp + 12)
assert pp < B1P
def kv_emit(m, i):
    if i == 0: m0own[0] = ('kv', m)
    if m0own[0] != ('kv', m):
        a(f"s_add_u32 m0, s{sKVM}, {(4 * m % NSLOT) * 2048}"); m0own[0] = ('kv', m)
    kvtok[m] = a(kv_step(m)[i])
for m in range(KV_FIRST, 8):
    p = OPT['p_kv'] + OPT['p_kvs'] * (m - KV_FIRST) if m < 6 else OPT['p_kv2'] + 20 * (m - 6)
    p = at(p, lambda m=m: kv_emit(m, 0), p + 8)
    at(p + 1, lambda m=m: kv_emit(m, 1), p + 9)
assert OPT['p_kv2'] > B1P
def h_flag():
    a(f"s_mov_b64 exec, 1\nbuffer_store_dword v{vONE}, v{vZ}, {srd(SWS)}, s{sF2W} offen sc1\ns_mov_b64 exec, -1")
at(B1P + 1, h_flag)
def f2_load():
    box['f2'] = a(f"s_mov_b64 exec, 15\nbuffer_load_dwordx4 {vr(F2D,4)}, v{vF2}, {srd(SWS)}, s{sF2R} offen sc1")
    a("s_mov_b64 exec, -1")
at(OPT['p_f2'], f2_load, OPT['p_f2'] + 8)
def f2_check():
    a.wait(box['f2'])
    test = f"v_min3_u32 v{F2D}, v{F2D}, v{F2D+1}, v{F2D+2}\nv_min_u32 v{F2D}, v{F2D}, v{F2D+3}\nv_cmp_ne_u32 vcc, 1, v{F2D}"
    a(f"s_mov_b64 exec, 15\n{test}\ns_cbranch_vccnz L_s2retry\nL_s2done:\ns_mov_b64 exec, -1")
    cold.append(f"""
    L_s2retry:
    s_mov_b32 s{sT[1]}, 0
    L_s2poll:
    buffer_load_dwordx4 {vr(F2D,4)}, v{vF2}, {srd(SWS)}, s{sF2R} offen sc1
    s_add_u32 s{sT[1]}, s{sT[1]}, 1
    s_waitcnt vmcnt(0)
    {test}
    s_cbranch_vccz L_s2done
    {'s_sleep ' + str(OPT['slp']) if OPT.get('slp') else ''}
    s_cmp_lt_u32 s{sT[1]}, {SPIN}
    s_cbranch_scc1 L_s2poll
    s_branch L_s2done
    """)
    a(f"buffer_load_dword v{vG}, v{vG}, {srd(SWS)}, s{sGA} offen sc1")
    stamp(9)
PCHK = at(OPT['p_chk'], f2_check, OPT['p_chk'] + 8)
D0, DE = OPT['d0'], OPT['dend']
allsl = [32 * t + o for t in range(D0, DE) for o in (8, 14, 24, 30)]
assert len(allsl) >= 56
slots = [allsl[(i * len(allsl)) // 56] for i in range(56)]
for u in range(14):
    rp = slots[0] - 16 if u == 0 else slots[4 * u - 2] + 1
    lim = slots[4 * u] - 9
    p = at(rp, lambda u=u: w_read(u, 0), lim - 3); at(p + 1, lambda u=u: w_read(u, 1), lim)
    for k in range(4): mf[slots[4 * u + k]] = (lambda u=u, k=k: d_mfma(u, k))
for u in range(18):
    pw = OPT['p_fill'] + OPT['p_fills'] * u if u < 4 else slots[4 * (u - 4)] + 1
    p = at(pw, lambda u=u: w_load_a(u), pw + 8); p = at(p + 1, lambda u=u: w_load_b(u), p + 8)
    if u < 3:
        ph = PCHK + 1 + OPT.get('p_hs', 13) * u
        p = at(ph, lambda u=u: h_load_a(u), ph + 4); at(p + 1, lambda u=u: h_load_b(u), p + 5)
    if 4 <= u < 15:
        p = at(p + 1, lambda u=u: h_load_a(u - 1), p + 8); at(p + 1, lambda u=u: h_load_b(u - 1), p + 8)
for lo, hi, fr in ((0, B1P, (OPT.get('la1', 30), OPT.get('la2', 70), OPT.get('la3', 94))), (B1P, 32 * B2, (OPT.get('lb1', 35), OPT.get('lb2', 80), OPT.get('lb3', 96))),
                   (32 * B2, 32 * NT, (OPT.get('lc1', 60), OPT.get('lc2', 87), OPT.get('lc3', 96)))):
    for k in range(3): at(lo + ((hi - lo) * fr[k]) // 100, lambda k=k: a(f"s_setprio {2-k}"))

if OPT['grp'] == 6:
    for k, p in enumerate((240, 300, 380, 436, 466, 490, 520, 560, 600, 650, 700)): at(p, lambda k=k: stamp(k, 6))
at(32 * NT - 2, lambda: a(f"ds_write_b128 v{vM[0]}, {vr(OA,4)}\nds_write_b128 v{vM[0]}, {vr(OA+4,4)} offset:1024\nds_write_b32 v{vM[2]}, v{OA+8} offset:2048"))

a("s_setprio 3")
tK = rdK(0); tV = rdV(None, 0)
for k in range(4 - OPT['eb0'], 4): gelu_chunk(k)
if OPT['eb0']: stamp(5); stamp(10, 3)
a.wait(tK)
a(qk(SA, QA))
if OPT['eb0']:
    for x in to_frag(ACC[1] + 16): a(x)
for t in range(NT):
    if t == B2:
        a.wait(kvtok[7]); a("s_barrier\ns_setprio 3"); stamp(0)
    nx = t + 1 if t + 1 < NT else None
    for ph, (S, So, O, Oo, Qo) in enumerate(((SA, SB, OA, OB, QB), (SB, SA, OB, OA, QA))):
        for e in range(16):
            pos = 32 * t + 16 * ph + e
            def own(after):
                global tV, tK
                if ph == 0 and (e, after) == (EV, EVA):
                    if t == 0: a.wait(tV)
                    tV = rdV(t, nx if t != B1 - 1 else None)
                if ph == 0 and (e, after) == (EK, EKA) and nx and t != B1 - 1: tK = rdK(nx)
            for f in ev.pop(pos, []): f()
            own(0)
            if pos == B1P:
                a.wait(kvtok[5], box['h'], tV); a("s_barrier\ns_setprio 3"); stamp(6)
                tK = rdK(nx); tV = rdV(None, nx)
            if e == 2:
                if ph == 1: a.wait(tV, None if OPT.get('w2') else tK)
                if t > 0 or ph == 1: a(pv(Oo, V2, So + 8))
            if (e == 5 and not (t == 0 and ph == 0)) or (t == 0 and ph == 0 and e == 0):
                if ph == 1: a.wait(tK)
                if ph == 0 or nx: a(qk(So, Qo))
            if e == 11: a(pv(O, V1[t & 1], S))
            if pos in mf: mf.pop(pos)()
            own(1)
            a(f"v_exp_f32 v{S+e}, v{S+e}")
assert not mf
assert not ev, sorted(ev)
if OPT['woe']: a.wait(wtok[17])
a(pv(OB, V2, SB + 8))
a.wait_lg0()
stamp(7); stamp(0, 4)
a("s_barrier")
stamp(1, 4)
a(f"""
ds_read_b32 v{SA+8}, v{vM[3]} offset:2048
ds_read_b128 {vr(SA,4)}, v{vM[1]}
ds_read_b128 {vr(SA+4,4)}, v{vM[1]} offset:1024
s_add_u32 s{sOO}, s{sOO}, {WS_O}
s_mov_b32 s{sT[6]}, {fbits(2.0**-60):#x}
s_mov_b32 s{sT[7]}, {fbits(2.0**60) - fbits(2.0**-60):#x}
s_lshl_b32 s{sT[3]}, s{sW}, 13
s_xor_b32 s{sT[2]}, s{sT[3]}, 0x8000
v_add_u32 v24, s{sT[2]}, v{vL16}
v_add_u32 v26, s{sT[3]}, v{vL16}
s_waitcnt lgkmcnt(2)
v_add_f32 v{OB+8}, v{OB+8}, v{SA+8}
v_rcp_f32 v{t0}, v{OB+8}
""")
a.wait_lg0()
OS = 128
for j in range(2): a(f"v_pk_add_f32 {vr(OB+2*j,2)}, {vr(OB+2*j,2)}, {vr(SA+2*j,2)}")
a(f"v_mul_f32 v{t0}, v{t0}, v{vG}")
for j in range(2, 4): a(f"v_pk_add_f32 {vr(OB+2*j,2)}, {vr(OB+2*j,2)}, {vr(SA+2*j,2)}")
for j in range(4): a(f"v_pk_mul_f32 {vr(OB+2*j,2)}, {vr(OB+2*j,2)}, {vr(t0,2)} op_sel_hi:[1,0]")
a(f"""
v_pk_add_f32 {vr(t2,2)}, {vr(OB,2)}, {vr(OB+2,2)}
v_pk_add_f32 {vr(t0,2)}, {vr(OB+4,2)}, {vr(OB+6,2)}
v_cvt_pk_bf16_f32 v{OS}, v{OB}, v{OB+1}
v_pk_add_f32 {vr(t2,2)}, {vr(t2,2)}, {vr(t0,2)}
v_cvt_pk_bf16_f32 v{OS+1}, v{OB+2}, v{OB+3}
v_add_f32 v{t2}, v{t2}, v{t3}
v_cvt_pk_bf16_f32 v{OS+2}, v{OB+4}, v{OB+5}
v_fma_f32 v{t2}, v{t2}, 0, v{OB+8}
v_cvt_pk_bf16_f32 v{OS+3}, v{OB+6}, v{OB+7}
v_subrev_u32 v{t2}, s{sT[6]}, v{t2}
v_or_b32 v{OS}, 1, v{OS}
v_cmp_lt_u32 vcc, s{sT[7]}, v{t2}
""")
if OPT['force_fb']: a("s_mov_b64 vcc, -1")
a(f"""
s_cbranch_vccnz L_true_max
L_norm:
buffer_store_dwordx4 {vr(OS,4)}, v{vL16}, {srd(SWS)}, s{sOO} offen sc1
""")
stamp(8); stamp(2, 4)

OF, WOF, XT = 32, 176, 96
vO1 = 27
fill = f"""
s_and_b32 s{sT[1]}, s{sW}, 3
s_lshl_b32 s{sT[2]}, s{sT[1]}, 13
s_add_u32 s{sT[2]}, s{sT[2]}, {RING}
v_add_u32 v28, s{sT[2]}, v{vTRP}
v_xor_b32 v29, 64, v28
v_sub_f32 v{vG}, 1.0, v{vG}
v_add_u32 v{vO1}, 0x4000, v{vL16}
s_lshr_b32 s{sT[9]}, s{sW}, 2
s_lshl1_add_u32 s{sT[0]}, s{sI}, s{sT[9]}
s_lshl3_add_u32 s{sT[0]}, s{sT[0]}, s{sT[1]}
s_lshl_b32 s{sT[0]}, s{sT[0]}, 12
s_add_u32 s{sT[0]}, s{sT[0]}, {WS_O}
s_lshl4_add_u32 s{sT[8]}, s{sT[9]}, s{sT[1]}
s_lshl_b32 s{sT[8]}, s{sT[8]}, 11
""".strip().split('\n')
for v in range(4):
    fill += f"s_add_u32 s{sT[1]}, s{sU}, {v}\ns_and_b32 s{sT[1]}, s{sT[1]}, 3\ns_lshl_b32 s{sT[1]}, s{sT[1]}, 10\ns_add_u32 s{sT[4+v]}, s{sT[0]}, s{sT[1]}".split('\n')
fill += f"""
v_and_b32 v{t0}, 31, v{L}
v_lshrrev_b32 v{t1}, 5, v{L}
v_and_b32 v{t2}, 7, v{L}
v_xor_b32 v{t1}, v{t1}, v{t2}
v_lshlrev_b32 v{t1}, 4, v{t1}
v_lshl_add_u32 v{t0}, v{t0}, 8, v{t1}
v_add_u32 v9, s{sT[3]}, v{t0}
v_xor_b32 v10, 32, v9
v_xor_b32 v11, 64, v9
v_xor_b32 v12, 0x60, v9
v_lshrrev_b32 v{t0}, 3, v{L}
v_lshlrev_b32 v{t1}, 1, v{t2}
v_xor_b32 v{t1}, v{t1}, v{t0}
v_lshlrev_b32 v{t1}, 4, v{t1}
v_lshl_add_u32 v{t1}, v{t0}, 8, v{t1}
v_add_u32 v1, s{sT[8]}, v{t1}
v_xor_b32 v2, 16, v1
s_lshl3_add_u32 s{sT[3]}, s{sI}, s{sW}
s_lshl_b32 s{sT[3]}, s{sT[3]}, 6
s_add_u32 s{sT[3]}, s{sT[3]}, s{sJ}
s_lshl_b32 s{sT[3]}, s{sT[3]}, 7
v_lshlrev_b32 v{t2}, 4, v{t2}
v_lshl_add_u32 v5, v{t0}, 10, v{t2}
s_mov_b32 s{sT[2]}, 0
""".strip().split('\n')
def wo_read(v):
    slot = ((14 + v) & 3) * 2048 + (v >> 2) * 32768
    for b in range(2):
        for e in range(2):
            a(f"ds_read_b64_tr_b16 {vr(WOF + 8*v + 4*b + 2*e, 2)}, v{28 + b} offset:{slot + e*512}")
for j in range(8):
    xw = a(f"ds_write_b128 v24, {vr(DACC+32+4*j,4)} offset:{1024*j}")
    for x in fill[len(fill) * j // 8: len(fill) * (j + 1) // 8]: a(x)
    if OPT['woe'] == 1: wo_read(j)
if OPT['woe'] == 2:
    for j in range(8): wo_read(j)
def o_loads():
    for v in range(8):
        a(f"buffer_load_dwordx4 {vr(OF + 4*v, 4)}, v{vO1 if v >> 2 else vL16}, {srd(SWS)}, s{sT[4 + (v&3)]} offen sc1")
stamp(3, 4)
a.wait(wtok[17], xw)
a(f"s_cmp_ge_u32 s{sW}, 4")
if not OPT['oe']: a("s_barrier"); stamp(4, 4)
a("s_setprio 1\ns_cbranch_scc1 L_ol1\ns_setprio 0")
o_loads()
a("L_ol1:")
if OPT['oe']: a("s_barrier"); stamp(4, 4)
xt = [a(f"ds_read_b128 {vr(XT+4*j,4)}, v26 offset:{1024*j}") for j in range(8)]
for j in range(8):
    a.wait(xt[j])
    for i in range(2):
        r = 4 * j + 2 * i
        a(f"v_pk_add_f32 {vr(DACC+r,2)}, {vr(DACC+r,2)}, {vr(XT+r,2)}")
    for i in range(2):
        r = 4 * j + 2 * i
        a(f"v_pk_mul_f32 {vr(DACC+r,2)}, {vr(DACC+r,2)}, {vr(vG,2)} op_sel_hi:[1,0]")
stamp(5, 4)
a("s_setprio 0\ns_cbranch_scc0 L_ol2")
o_loads()
a("L_ol2:")
if not OPT['woe']:
    for j in range(8): wo_read(j)
stamp(6, 4)
a.wait_lg0()
ND = XT
a("L_s3poll:")
def wo_mfma(v, b): a(f"v_mfma_f32_32x32x16_bf16 {vr(ND+16*b,16)}, {vr(WOF+8*v+4*b,4)}, {vr(OF+4*v,4)}, {vr((DACC if v == 0 else ND)+16*b,16)}")
def chk(v): a(f"v_and_b32 v{t0}, {1 if v == 0 else 'v' + str(t0)}, v{OF+4*v}")
def xsite():
    a(f"s_cmp_eq_u32 s{sT[9]}, 0\ns_cbranch_scc1 L_nox\ns_mov_b32 s{sT[9]}, 0\ns_barrier\nL_nox:")
for v in range(6):
    a(f"s_waitcnt vmcnt({7-v})")
    if v == 0: stamp(10); stamp(7, 4)
    wo_mfma(v, 0); chk(v); wo_mfma(v, 1)
    if v == OPT['xsite']: xsite()
a("s_waitcnt vmcnt(1)"); wo_mfma(6, 0); chk(6)
a("s_waitcnt vmcnt(0)"); wo_mfma(7, 0); chk(7)
a.vm_done = a.vm
wo_mfma(6, 1)
if OPT['xsite'] == 6: xsite()
a(f"v_cmp_eq_u32 vcc, 0, v{t0}")
wo_mfma(7, 1)
if OPT['xsite'] == 7: xsite()
a("s_cbranch_vccnz L_s3retry\nL_s3done:")
stamp(8, 4)
for b in range(2):
    if OPT['xsite'] >= 6: a("s_nop 2" if b == 0 else "s_nop 3")
    for qd in range(4): a(f"ds_write_b128 v{9+qd}, {vr(ND + 16*b + 4*qd, 4)} offset:{b*128}")
a(f"s_cmp_ge_u32 s{sW}, 4")
a.wait_lg0()
a("s_barrier")
stamp(9, 4)
RD = 176
rt = []
for p in range(4):
    for e in range(2):
        rt.append(a(f"ds_read_b128 {vr(RD + 8*p + 4*e, 4)}, v{1 + e} offset:{p*8192}"))
for p in range(1, 4):
    a.wait(rt[2 * p + 1])
    for j in range(4):
        if OPT.get('fpk', 1): a(f"v_pk_add_f32 {vr(RD+2*j,2)}, {vr(RD+2*j,2)}, {vr(RD+8*p+2*j,2)}")
        else: a(f"v_add_f32 v{RD+2*j}, v{RD+2*j}, v{RD+8*p+2*j}\nv_add_f32 v{RD+2*j+1}, v{RD+2*j+1}, v{RD+8*p+2*j+1}")
for j in range(4): a(f"v_cvt_pk_bf16_f32 v{RD+j}, v{RD+2*j}, v{RD+2*j+1}")
a(f"buffer_store_dwordx4 {vr(RD,4)}, v5, {srd(SOUT)}, s{sT[3]} offen {['', 'sc1'][OPT['outm']]}")
a("s_cbranch_scc1 L_noy\ns_barrier\nL_noy:")
stamp(10, 4)
if OPT['stamp']:
    a("s_waitcnt vmcnt(0)")
    stamp(11)
    a("s_waitcnt lgkmcnt(0)")
    a(f"s_mov_b32 s28, s{sT[2]}")
    if 'span' in OPT:
        a(f"""
        s_lshl3_add_u32 s{sT[0]}, s2, s{sW}
        s_lshl_b32 s{sT[0]}, s{sT[0]}, 3
        s_add_u32 s{sT[0]}, s{sT[0]}, {WS_STAMP}
        v_mov_b32 v1, 0
        v_mov_b32 v2, s{4+2*OPT['span']}
        v_mov_b32 v3, s30
        s_mov_b64 exec, 1
        buffer_store_dwordx2 v[2:3], v1, {srd(SWS)}, s{sT[0]} offen sc1
        s_mov_b64 exec, -1
        s_add_u32 s{sT[0]}, s2, s{sW}
        s_cmp_lg_u32 s{sT[0]}, 0
        s_cbranch_scc1 L_end
        L_pad0:
        s_memrealtime s[{sT[2]}:{sT[3]}]
        s_waitcnt lgkmcnt(0)
        s_sub_u32 s{sT[2]}, s{sT[2]}, s30
        s_cmp_lt_u32 s{sT[2]}, 4500
        s_cbranch_scc1 L_pad0
        v_mov_b32 v4, 0
        v_mov_b32 v5, -1
        s_sub_u32 s{sT[1]}, s30, 1000
        """)
        for g in range(16):
            a(f"""
            s_mov_b32 s{sT[0]}, {WS_STAMP + 1024*g}
            buffer_load_dwordx4 v[8:11], v{vL16}, {srd(SWS)}, s{sT[0]} offen sc1
            s_waitcnt vmcnt(0)
            v_subrev_u32 v8, s{sT[1]}, v8
            v_subrev_u32 v9, s{sT[1]}, v9
            v_subrev_u32 v10, s{sT[1]}, v10
            v_subrev_u32 v11, s{sT[1]}, v11
            v_max3_u32 v4, v4, v8, v10
            v_min3_u32 v5, v5, v9, v11
            """)
        a(f"s_mov_b32 s{sT[4]}, 0\ns_mov_b32 s{sT[5]}, -1")
        for i in range(64): a(f"v_readlane_b32 s{sT[6]}, v4, {i}\nv_readlane_b32 s{sT[7]}, v5, {i}\ns_nop 0\ns_max_u32 s{sT[4]}, s{sT[4]}, s{sT[6]}\ns_min_u32 s{sT[5]}, s{sT[5]}, s{sT[7]}")
        a(f"""
        s_sub_u32 s{sT[0]}, s{sT[4]}, s{sT[5]}
        s_sub_u32 s{sT[0]}, s{sT[0]}, {OPT.get('spanb', 2000)}
        s_min_u32 s{sT[0]}, s{sT[0]}, 2500
        s_mul_i32 s{sT[0]}, s{sT[0]}, 10
        s_add_u32 s{sT[0]}, s{sT[0]}, 6000
        L_pad:
        s_memrealtime s[{sT[2]}:{sT[3]}]
        s_waitcnt lgkmcnt(0)
        s_sub_u32 s{sT[2]}, s{sT[2]}, s30
        s_cmp_lt_u32 s{sT[2]}, s{sT[0]}
        s_cbranch_scc1 L_pad
        """)
    elif 'crit' in OPT:
        a(f"""
        s_cmp_lg_u32 s{sW}, 7
        s_cbranch_scc1 L_end
        s_lshl_b32 s{sT[0]}, s2, 6
        s_add_u32 s{sT[0]}, s{sT[0]}, {WS_STAMP}
        v_mov_b32 v1, 0
        """)
        for k in range(14): a(f"v_mov_b32 v2, s{4+2*k}\nbuffer_store_dword v2, v1, {srd(SWS)}, s{sT[0]} offen offset:{4*k} sc1")
        a(f"""
        s_cmp_lg_u32 s2, 0
        s_cbranch_scc1 L_end
        L_pad0:
        s_memrealtime s[{sT[2]}:{sT[3]}]
        s_waitcnt lgkmcnt(0)
        s_sub_u32 s{sT[2]}, s{sT[2]}, s30
        s_cmp_lt_u32 s{sT[2]}, 5000
        s_cbranch_scc1 L_pad0
        v_lshlrev_b32 v1, 6, v{L}
        s_mov_b32 s{sT[4]}, 0
        s_mov_b32 s{sT[5]}, -1
        """)
        for g in range(4):
            a(f"""
            s_mov_b32 s{sT[0]}, {WS_STAMP + 4096*g}
            buffer_load_dword v2, v1, {srd(SWS)}, s{sT[0]} offen offset:{4*OPT['crit']} sc1
            buffer_load_dword v3, v1, {srd(SWS)}, s{sT[0]} offen offset:52 sc1
            s_waitcnt vmcnt(0)
            v_subrev_u32 v2, s30, v2
            v_add_u32 v2, 1000, v2
            v_lshlrev_b32 v2, 8, v2
            v_add_u32 v2, v2, v{L}
            v_add_u32 v2, {64*g}, v2
            v_subrev_u32 v3, s30, v3
            v_add_u32 v3, 1000, v3
            s_nop 1
            """)
            for i in range(64): a(f"v_readlane_b32 s{sT[6]}, v2, {i}\nv_readlane_b32 s{sT[7]}, v3, {i}\ns_nop 0\ns_max_u32 s{sT[4]}, s{sT[4]}, s{sT[6]}\ns_min_u32 s{sT[5]}, s{sT[5]}, s{sT[7]}")
        a(f"""
        s_and_b32 s{sT[4]}, s{sT[4]}, 255
        s_lshl_b32 s{sT[0]}, s{sT[4]}, 6
        s_add_u32 s{sT[0]}, s{sT[0]}, {WS_STAMP}
        v_lshlrev_b32 v1, 2, v{L}
        buffer_load_dword v2, v1, {srd(SWS)}, s{sT[0]} offen sc1
        s_add_u32 s{sT[5]}, s{sT[5]}, s30
        s_sub_u32 s{sT[5]}, s{sT[5]}, 1000
        s_waitcnt vmcnt(0)
        v_subrev_u32 v2, s{sT[5]}, v2
        s_nop 1
        v_writelane_b32 v2, s{sT[4]}, 14
        s_mov_b64 exec, 0x7fff
        buffer_store_dword v2, v1, {srd(SDBG)}, 0 offen offset:4
        """)
    elif 'dk' in OPT:
        a(f"""
        s_cmp_lg_u32 s{sW}, {OPT.get('dw', 7)}
        s_cbranch_scc1 L_end
        s_lshl_b32 s{sT[0]}, s2, 2
        s_add_u32 s{sT[0]}, s{sT[0]}, {WS_STAMP}
        v_mov_b32 v2, s{4+2*OPT['dk']}
        v_mov_b32 v1, 0
        buffer_store_dword v2, v1, {srd(SWS)}, s{sT[0]} offen sc1
        s_cmp_lg_u32 s2, 0
        s_cbranch_scc1 L_end
        L_pad0:
        s_memrealtime s[{sT[2]}:{sT[3]}]
        s_waitcnt lgkmcnt(0)
        s_sub_u32 s{sT[2]}, s{sT[2]}, s30
        s_cmp_lt_u32 s{sT[2]}, 5000
        s_cbranch_scc1 L_pad0
        v_mul_u32_u24 v1, {4*OPT['dstride']}, v{L}
        s_mov_b32 s{sT[0]}, {WS_STAMP + 4*OPT['dbase']}
        buffer_load_dword v2, v1, {srd(SWS)}, s{sT[0]} offen sc1
        s_waitcnt vmcnt(0)
        v_subrev_u32 v2, s30, v2
        v_add_u32 v2, 100000, v2
        s_mov_b32 s{sT[4]}, 0
        s_mov_b32 s{sT[5]}, -1
        """)
        for i in range(OPT['dn']): a(f"v_readlane_b32 s{sT[6]}, v2, {i}\ns_nop 1\ns_max_u32 s{sT[4]}, s{sT[4]}, s{sT[6]}\ns_min_u32 s{sT[5]}, s{sT[5]}, s{sT[6]}")
        a(f"""
        s_sub_u32 s{sT[0]}, s{sT[4]}, s{sT[5]}
        s_min_u32 s{sT[0]}, s{sT[0]}, 2000
        s_mul_i32 s{sT[0]}, s{sT[0]}, 10
        s_add_u32 s{sT[0]}, s{sT[0]}, 6000
        L_pad:
        s_memrealtime s[{sT[2]}:{sT[3]}]
        s_waitcnt lgkmcnt(0)
        s_sub_u32 s{sT[2]}, s{sT[2]}, s30
        s_cmp_lt_u32 s{sT[2]}, s{sT[0]}
        s_cbranch_scc1 L_pad
        """)
    elif 'pad' in OPT:
        K = OPT['pad']
        a(f"s_and_b32 s{sT[0]}, s2, {OPT.get('padm', 0)}\ns_cmp_lg_u32 s{sT[0]}, {OPT.get('padv', 0)}\ns_cbranch_scc1 L_end")
        if K >= 0: a(f"s_sub_u32 s{sT[0]}, s{4+2*K}, s{4+2*OPT.get('padb', 13)}\ns_mul_i32 s{sT[0]}, s{sT[0]}, {OPT.get('padx', 4)}")
        else: a(f"s_mov_b32 s{sT[0]}, 0")
        a(f"""
        s_add_u32 s{sT[0]}, s{sT[0]}, 6000
        L_pad:
        s_memrealtime s[{sT[2]}:{sT[3]}]
        s_waitcnt lgkmcnt(0)
        s_sub_u32 s{sT[2]}, s{sT[2]}, s30
        s_cmp_lt_u32 s{sT[2]}, s{sT[0]}
        s_cbranch_scc1 L_pad
        """)
    else:
        a(f"s_lshl3_add_u32 s{sT[0]}, s2, s{sW}\ns_lshl_b32 s{sT[0]}, s{sT[0]}, 6\ns_add_u32 s{sT[0]}, s{sT[0]}, {WS_STAMP}")
        a("v_mov_b32 v1, 0\ns_mov_b64 exec, 1")
        for k in range(14):
            a(f"v_mov_b32 v2, s{4+2*k}\nbuffer_store_dword v2, v1, {srd(SWS)}, s{sT[0]} offen offset:{4*k}")
a("L_end:\ns_endpgm")
a("L_s3retry:")
o_loads()
a(f"""
s_add_u32 s{sT[2]}, s{sT[2]}, 1
s_cmp_lt_u32 s{sT[2]}, {SPIN}
s_nop 7
s_cbranch_scc1 L_s3poll
s_waitcnt vmcnt(0)
s_branch L_s3done
""")

for P in 'KVPSC':
    a("; ---- projection phase, " + {'K': 'query workgroups, waves 0-3: also k', 'V': 'query workgroups, waves 0-3: also v', 'P': 'query workgroups, waves 4-7',
                                      'S': 'gate/up waves that also form the mixing gate', 'C': 'gate/up wave that also clears the ready words'}[P])
    a(f".p2align 12\n.fill {OPT['o' + P] // 4}, 4, 0xbf800000\nL_path{P}:" if OPT['pal'] else f".p2align 6\nL_path{P}:")
    a.forget()
    proj_path(P)
    a("s_branch L_join")
for x in cold: a(x)

CM = SB
a(f"""
L_true_max:
s_waitcnt vmcnt(0) lgkmcnt(0)
v_mov_b32 v{t0}, 0xff800000
s_mov_b32 s{sT[0]}, {WS_KV}
L_tm1:
buffer_load_dwordx4 {vr(KF,4)}, v{vL16}, {srd(SWS)}, s{sT[0]} offen sc1
s_waitcnt vmcnt(0)
{qk(SA, QB)}
""")
for j in range(8): a(f"v_max3_f32 v{t0}, v{t0}, v{SA+2*j}, v{SA+2*j+1}")
a(f"""
s_add_u32 s{sT[0]}, s{sT[0]}, 2048
s_cmp_lt_u32 s{sT[0]}, {WS_KV + 64*2048}
s_cbranch_scc1 L_tm1
v_mov_b32 v{t1}, v{t0}
v_permlane32_swap_b32 v{t0}, v{t1}
v_max_f32 v{t0}, v{t0}, v{t1}
""")
for r in range(16): a(f"v_sub_f32 v{CM+r}, 0, v{t0}\nv_mov_b32 v{OB+r}, 0")
a(f"""
s_mov_b32 s{sT[0]}, {WS_KV}
L_tm2:
buffer_load_dwordx4 {vr(KF,4)}, v{vL16}, {srd(SWS)}, s{sT[0]} offen sc1
s_mov_b64 exec, s[{sT[8]}:{sT[9]}]
buffer_load_dwordx4 {vr(V1[0],4)}, v{vPV}, {srd(SWS)}, s{sT[0]} offen offset:1024 sc1
buffer_load_dwordx4 {vr(V2,4)}, v{vPV}, {srd(SWS)}, s{sT[0]} offen offset:1536 sc1
s_mov_b64 exec, -1
s_waitcnt vmcnt(0)
v_mfma_f32_32x32x16_bf16 {vr(SA,16)}, {vr(KF,4)}, {vr(QB,4)}, {vr(CM,16)}
""")
for e in range(16): a(f"v_exp_f32 v{SA+e}, v{SA+e}")
a(pv(OB, V1[0], SA)); a(pv(OB, V2, SA + 8))
a(f"""
s_add_u32 s{sT[0]}, s{sT[0]}, 2048
s_cmp_lt_u32 s{sT[0]}, {WS_KV + 64*2048}
s_nop 7
s_cbranch_scc1 L_tm2
s_nop 7
v_rcp_f32 v{t0}, v{OB+8}
s_nop 0
v_mul_f32 v{t0}, v{t0}, v{vG}
""")
for j in range(4): a(f"v_pk_mul_f32 {vr(OB+2*j,2)}, {vr(OB+2*j,2)}, {vr(t0,2)} op_sel_hi:[1,0]")
for j in range(4): a(f"v_cvt_pk_bf16_f32 v{OS+j}, v{OB+2*j}, v{OB+2*j+1}")
a(f"v_or_b32 v{OS}, 1, v{OS}")
a("s_branch L_norm\nL_last:")

bad = a.check_branches()
assert not bad, bad

hdr = open(f'cdna_kernels/{NAME}.s.ref').read().split('\n')
head = [l for l in hdr if l.startswith(';') and '@launch' not in l]
body = a.text()
if OPT.get('jit'):
    import random
    rnd = random.Random(OPT['jit']); o = []; n = 0
    for l in body.split('\n'):
        t = l.strip()
        if (t.startswith(('buffer_store', 'ds_write_b128')) or (o and o[-1].strip() == 's_barrier')) and rnd.random() < 0.5:
            n += 1
            o += [f"    s_cselect_b32 s1, 1, 0", f"    s_add_u32 s30, s2, s{sMW}", f"    s_mul_i32 s30, s30, {rnd.randrange(1 << 20, 1 << 30) | 1}", f"    s_bitcmp1_b32 s30, 27",
                  f"    s_cbranch_scc0 L_jit{n}", f"    s_sleep {rnd.randrange(1, 40)}", f"L_jit{n}:", f"    s_cmp_lg_u32 s1, 0"]
        o.append(l)
    body = '\n'.join(o)
if OPT.get('stm'):
    import re
    body = re.sub(r'(buffer_store_dwordx4 .*s\[52:55\].*) sc1', lambda m: m.group(1) + [' sc1', ' sc1 nt', ' sc0 sc1', ' sc0 sc1 nt'][OPT['stm']], body)
out = "\n".join(head) + f"\n; @launch grid=(256,1,1) block=(512,1,1) lds={LDS_BYTES}\n"
out += f""".amdgcn_target "amdgcn-amd-amdhsa--gfx950"
.text
.globl {NAME}_kernel
.p2align 8
.type {NAME}_kernel,@function
{NAME}_kernel:
{body}
.section .rodata,"a"
.p2align 6
.amdhsa_kernel {NAME}_kernel
  .amdhsa_next_free_vgpr 256
  .amdhsa_next_free_sgpr 102
  .amdhsa_accum_offset 256
  .amdhsa_group_segment_fixed_size 0
  .amdhsa_kernarg_size 104
  .amdhsa_user_sgpr_count 2
  .amdhsa_user_sgpr_kernarg_segment_ptr 1
  .amdhsa_system_sgpr_workgroup_id_x 1
.end_amdhsa_kernel
"""
open(sys.argv[1], 'w').write(out)
print("instructions:", sum(1 for i in a.ins if i.ws), "auto nops:", a.nnop, file=sys.stderr)
```

```python
import sys, math, struct
sys.path.insert(0, 'gen')
from asmlib import Asm

NAME = 'gated_mix__grouped_kv_mqa__geglu_ffn__prompt'
OPT = dict(stamp=0, grp=0, force_fb=0, qflag=11, s1=16, b2=22, outm=1, ofast=0,
           p_kv=1, p_kvs=14, p_st=60, p_sts=20, p_fill=160, p_fills=60, p_kv2=366, p_f2=440, p_chk=470, d0=16, dend=32,
           late=0, pk2=1, nearly=1, h0w=24, h1w=30, p_clr=250, p_f3=960, na=1, gend=30, dwt=0, qbar=0, cpf=1, qmode=0, qf=11, exs=1, spf=1, pb=1, pbq0=0, rq=1, rg=1, r1=1, qfirst=0, vlate=0, jearly=5, xsite=5, woe=0, oe=0, tlb=0, rotm=2, rots=12, dxs=3, wt=1, lb1=50, lb3=92, lc1=70, jlate=0, s1slp=0, s1w=30, lad=1, gb14=1, gbar=0)
for x in sys.argv[2:]:
    k, v = x.split('='); OPT[k] = int(v)

def fbits(x): return struct.unpack('<I', struct.pack('<f', x))[0]

WS_KV, WS_G, WS_F1, WS_Q, WS_O, WS_H, WS_STAMP = 0, 0x20000, 0x30000, 0x100000, 0x300000, 0x500000, 0xC00000
WS_F2 = WS_F1 + 8192
WS_SIZE = 0x1000000
CLEAR_WG = 128
WR, EX = 65536, 131072
NSLOT, HALF, RING = 24, 49152, 98304
MERGE = 65536
LDS_BYTES = 163840
SPIN = 0x400000
SX, SWG, SWU, SWQ, SEX, SWS, SDBG, SWD, SWO, SOUT = 32, 36, 40, 44, 48, 52, 56, 60, 64, 92
sW, sTI, sQ, sU, sROT, sXO, sWOF, sMX, sMW, sI, sJ, sROT0 = range(68, 80)
sT = list(range(80, 90))
sEXW, sEXO = 90, 91
sC1 = 96
sF2, sRH, sRING, sOO = 98, 99, 100, 101
sHO = 3
sKVM, sKVO, sQA, sGA = 32, 33, 34, 35
sF2R = 46
sF3W, sF3R, sF2W = 36, 37, 38
sR = [sRH, 44, 45, 47]
def srd(n): return f"s[{n}:{n+3}]"
def vr(b, n): return f"v[{b}:{b+n-1}]"

vXS0, vXS1, vWS = 1, 2, 3
vST = 4
vXR = [5, 6, 7, 8]
vWR = [9, 10]
vES, vER, vSA = 11, [12, 13], 30
vL16, vLANE = 14, 15
vC0 = 16
vZ = 17
vGT = 18
t0, t1, t2, t3 = 20, 21, 22, 23
vS0, vWS2 = 28, 27
vPV, vPD, vTRP = 29, 0, 31
F = [32, 48]
ACC = [64, 96]
XF = 128
ACCE, WE = 96, 100
GW = 147456
L = vLANE
QA, QB, KF, V2, V1 = 128, 132, 136, 140, [144, 148]
vG, vIDX, vAK, vAV, vKVS = 152, 154, 155, 156, 157
vDR0, vDR1, vH0, vH1 = 159, 160, 161, 162
vDS, vDS1, vF2 = vPD, 158, 163
F2D = 164
vONE = 168
OA, OB, SA, SB = 176, 192, 208, 224
WF = [240, 248]
HF = [32, 40, 48, 56]
DACC = 64

a = Asm()
CLK = 's_memtime' if OPT['stamp'] == 2 else 's_memrealtime'
def stamp(k, grp=0):
    if grp != OPT['grp'] and k != 11: return
    if OPT['stamp']: a(f"{CLK} s[{4+2*k}:{5+2*k}]")
def mk_srd(n, p, size):
    a(f"s_mov_b32 s{n}, s{p}\ns_mov_b32 s{n+1}, s{p+1}\ns_mov_b32 s{n+2}, {size}\ns_mov_b32 s{n+3}, 0x20000")

PG = 3584
C0 = -2.0 * math.sqrt(2.0 / math.pi) * math.log2(math.e)
C1 = C0 * 0.044715
QS = 0.25 * math.log2(math.e)

a("s_cmp_ge_u32 s2, 256\ns_cbranch_scc1 L_end")
a("s_load_dwordx16 s[4:19], s[0:1], 0\ns_load_dwordx8 s[20:27], s[0:1], 64\ns_load_dwordx2 s[28:29], s[0:1], 96")
if OPT['stamp']: a(f"{CLK} s[30:31]")
def code_prefetch():
    a(f"""
    s_getpc_b64 s[{sT[8]}:{sT[9]}]
    L_pc:
    s_andn2_b32 s{sT[7]}, s2, 7
    s_lshl_b32 s{sT[7]}, s{sT[7]}, 8
    v_lshl_add_u32 v{t3}, v0, 2, s{sT[7]}
    v_min_u32 v{t3}, L_last-L_pc-4, v{t3}
    s_mov_b32 exec_lo, 1
    s_mov_b32 exec_hi, 1
    global_load_dword v{vS0}, v{t3}, s[{sT[8]}:{sT[9]}]
    s_mov_b64 exec, -1
    """)
if OPT['cpf'] == 1: code_prefetch()
ROTC = {8: f"s_lshl1_add_u32 s{sROT0}, s{sU}, s{sJ}\ns_and_b32 s{sROT0}, s{sROT0}, 7",
        4: f"s_add_u32 s{sROT0}, s{sU}, s{sJ}\ns_and_b32 s{sROT0}, s{sROT0}, 3\ns_lshl_b32 s{sROT0}, s{sROT0}, 1",
        2: f"s_add_u32 s{sROT0}, s{sU}, s{sJ}\ns_and_b32 s{sROT0}, s{sROT0}, 1\ns_lshl_b32 s{sROT0}, s{sROT0}, 2",
        3: f"s_add_u32 s{sROT0}, s{sU}, s{sJ}\ns_lshl_b32 s{sROT0}, s{sROT0}, 1\ns_lshr_b32 s{sROT0}, 0x124924, s{sROT0}\ns_and_b32 s{sROT0}, s{sROT0}, 3\ns_mul_i32 s{sROT0}, s{sROT0}, 3",
        1: f"s_mov_b32 s{sROT0}, 0"}[OPT['rotm']]
if OPT['rots']:
    ROTC += f"\ns_bfe_u32 s{sQ}, s2, 0x20001\ns_mul_i32 s{sT[1]}, s{sQ}, {OPT['rots'] // 10}\ns_add_u32 s{sROT0}, s{sROT0}, s{sT[1]}\ns_mul_i32 s{sT[1]}, s{sT[2]}, {OPT['rots'] % 10}\ns_add_u32 s{sROT0}, s{sROT0}, s{sT[1]}\ns_and_b32 s{sROT0}, s{sROT0}, 7"
a(f"""
v_readfirstlane_b32 s{sW}, v0
v_lshrrev_b32 v{t1}, 4, v0
v_lshrrev_b32 v{t0}, 3, v0
v_xor_b32 v{t1}, v0, v{t1}
s_lshr_b32 s{sU}, s2, 6
s_bfe_u32 s{sJ}, s2, 0x30003
v_and_b32 v{t1}, 7, v{t1}
s_and_b32 s{sT[2]}, s2, 1
s_lshl3_add_u32 s{sTI}, s{sT[2]}, s{sJ}
v_lshlrev_b32 v{t1}, 4, v{t1}
{ROTC}
v_lshl_add_u32 v{vXS0}, v{t0}, 10, v{t1}
s_lshl_b32 s{sT[0]}, s{sTI}, 17
s_lshl_b32 s{sXO}, s{sROT0}, 7
s_add_u32 s{sXO}, s{sXO}, s{sT[0]}
s_lshl_b32 s{sMW}, s{sW}, 4
s_mov_b32 m0, s{sMW}
s_mov_b32 s{SX+2}, {2048*1024}
s_mov_b32 s{SX+3}, 0x20000
""")
a(f"""
s_bfe_u32 s{sT[1]}, s{sW}, 0x10006
s_lshl_b32 s{sT[1]}, s{sT[1]}, 2
v_and_or_b32 v{t1}, v{t0}, 2, s{sT[1]}
s_bfe_u32 s{sQ}, s2, 0x20001
s_mul_i32 s{sT[1]}, s{sQ}, 7
v_xor_b32 v{t1}, v0, v{t1}
s_lshl1_add_u32 s{sT[1]}, s{sU}, s{sT[1]}
s_sub_u32 s{sT[1]}, s{sT[1]}, 1
v_and_b32 v{t1}, 7, v{t1}
s_lshl_b32 s{sT[2]}, s{sQ}, 1
s_movk_i32 s{sT[3]}, {PG}
v_lshlrev_b32 v{vWS2}, 4, v{t1}
s_mov_b32 s{SWG+3}, 0x20000
s_mov_b32 s{SWU+3}, 0x20000
s_cmp_eq_u32 s{sU}, 0
s_cselect_b32 s{sT[1]}, s{sT[2]}, s{sT[1]}
s_cselect_b32 s{sT[3]}, 1024, s{sT[3]}
s_cselect_b32 s{sT[2]}, 128, 0
v_mad_u32_u24 v{vWS}, v{t0}, s{sT[3]}, v{vWS2}
s_lshl_b32 s{SWG+2}, s{sT[3]}, 9
s_mov_b32 s{SWU+2}, s{SWG+2}
s_mul_i32 s{sWOF}, s{sROT0}, s{sT[3]}
s_lshl1_add_u32 s{sWOF}, s{sT[1]}, s{sWOF}
s_lshl_b32 s{sWOF}, s{sWOF}, 6
s_cmp_eq_u32 s{sU}, 0
{CLK + ' s[84:85]' if OPT['grp'] == 5 else ''}
s_waitcnt lgkmcnt(0)
{CLK + ' s[86:87]' if OPT['grp'] == 5 else ''}
s_mov_b64 s[{SX}:{SX+1}], s[4:5]
s_cselect_b64 s[{SWG}:{SWG+1}], s[6:7], s[16:17]
s_cselect_b64 s[{SWU}:{SWU+1}], s[6:7], s[18:19]
""")
def first_stage(x0, x1, xstep, wstep):
    a(f"""
    buffer_load_dwordx4 v{x0}, {srd(SX)}, s{sXO} offen lds
    s_add_u32 m0, s{sMW}, {WR}
    s_add_u32 s{sXO}, s{sXO}, {xstep}
    buffer_load_dwordx4 v{vWS}, {srd(SWG)}, s{sWOF} offen lds
    s_add_u32 m0, s{sMW}, {WR + 8192}
    s_add_u32 s{sWOF}, s{sWOF}, {wstep}
    buffer_load_dwordx4 v{vWS}, {srd(SWU)}, s{sWOF} offen lds
    s_add_u32 m0, s{sMW}, 8192
    s_nop 0
    buffer_load_dwordx4 v{x1}, {srd(SX)}, s{sXO} offen lds
    """)
if OPT['qfirst']: a("s_cbranch_scc0 L_late")
first_stage(vXS0, vXS0, 65536, f"s{sT[2]}")
if OPT['wt']:
    assert not OPT['qfirst']
    a(f"""
    s_lshr_b32 s{sT[4]}, s{sW}, 7
    s_lshr_b32 s{sT[5]}, s{sJ}, 1
    s_cmp_lg_u32 s{sT[4]}, s{sT[5]}
    s_cbranch_scc1 L_nowt
    s_add_u32 s{sT[4]}, s{sROT0}, 1
    s_and_b32 s{sT[4]}, s{sT[4]}, 7
    s_mul_i32 s{sT[4]}, s{sT[4]}, s{sT[3]}
    s_lshl1_add_u32 s{sT[4]}, s{sT[1]}, s{sT[4]}
    s_lshl_b32 s{sT[4]}, s{sT[4]}, 6
    buffer_load_dword v32, v{vWS}, {srd(SWG)}, s{sT[4]} offen
    s_add_u32 s{sT[4]}, s{sT[4]}, s{sT[2]}
    buffer_load_dword v33, v{vWS}, {srd(SWU)}, s{sT[4]} offen
    L_nowt:
    """)
if OPT['qfirst']: a("L_late:")
if OPT['grp'] == 5: a(f"{CLK} s[88:89]\ns_waitcnt lgkmcnt(0)\ns_mov_b32 s4, s84\ns_mov_b32 s14, s86\ns_mov_b32 s5, s88")
a(f"""
s_lshr_b32 s{sW}, s{sW}, 6
v_add_u32 v{vXS0}, s{sT[0]}, v{vXS0}
v_add_u32 v{vXS1}, 0x10000, v{vXS0}
s_sub_u32 s{sXO}, s{sXO}, s{sT[0]}
s_lshl_b32 s{sT[1]}, s{sT[1]}, 7
s_sub_u32 s{sWOF}, s{sWOF}, s{sT[1]}
v_add_u32 v{vWS}, s{sT[1]}, v{vWS}
s_movk_i32 s{sT[3]}, {PG}
v_mad_u32_u24 v{vWS2}, v{t0}, s{sT[3]}, v{vWS2}
s_mul_i32 s{sT[1]}, s{sQ}, {7*128}
v_add_u32 v{vWS2}, s{sT[1]}, v{vWS2}
v_and_b32 v{L}, 63, v0
v_lshlrev_b32 v{vL16}, 4, v{L}
s_and_b32 s{sT[0]}, s2, 7
s_lshl2_add_u32 s{sI}, s{sT[0]}, s{sU}
s_add_u32 s{sROT}, s{sROT0}, 1
s_and_b32 s{sROT}, s{sROT}, 7
s_lshl_b32 s{sMX}, s{sW}, 11
""")
def late_loads(k):
    if OPT['qfirst'] != k: return
    a(f"s_cmp_eq_u32 s{sU}, 0\ns_cbranch_scc1 L_early")
    first_stage(vXS0, vXS1, 0, 0)
    a("L_early:")
late_loads(1)
def dispatch():
    a(f"""
    s_lshr_b32 s{sT[1]}, s{sW}, 2
    s_lshl1_add_u32 s{sT[0]}, s{sU}, s{sT[1]}
    s_lshr_b32 s{sT[1]}, s{sQ}, 1
    s_lshl1_add_u32 s{sT[0]}, s{sT[0]}, s{sT[1]}
    s_cmp_eq_u32 s{sT[0]}, 0
    s_cbranch_scc1 L_pathK
    s_cmp_eq_u32 s{sT[0]}, 1
    s_cbranch_scc1 L_pathV
    s_cmp_lt_u32 s{sT[0]}, 4
    s_cbranch_scc1 L_pathP
    s_cmp_eq_u32 s{sT[0]}, 4
    s_cbranch_scc1 L_pathS
    s_add_u32 s{sT[0]}, s{sMW}, s2
    s_cmp_eq_u32 s{sT[0]}, {CLEAR_WG + 1024}
    s_cbranch_scc1 L_pathC
    """)

PATH = ['G']
def wslot(sig):
    if sig < 8: return WR + (sig & 3) * 16384
    if sig >= 14: return EX + (sig - 14) * 16384
    return (0 if sig & 1 else WR) + ((sig - 8) >> 1) * 16384
def waddr(sig, b):
    return {0: vXR[b], 1: vWR[b], 2: vXR[2 + b]}[wslot(sig) >> 16]

def dma_ops(sig, path):
    p = sig >> 3
    isq = (path in 'KVP' and p == 0)
    pitch = 1024 if isq else PG
    sa, sb = (SWQ, SWQ) if isq else (SWG, SWU)
    xs, ws = (sig & 3) * 16384, wslot(sig)
    pre = f"s_mul_i32 s{sWOF}, s{sROT}, {64*pitch}\n"
    if path in 'GSC' and p == 1: pre += f"s_add_u32 s{sWOF}, s{sWOF}, 128\n"
    mid = f"s_add_u32 s{sWOF}, s{sWOF}, 128\n" if isq else ""
    inc, wrap = f"s_add_u32 s{sROT}, s{sROT}, 1\n", f"s_and_b32 s{sROT}, s{sROT}, 7\n"
    vw = vWS2 if (path in 'KVP' and p == 1) else vWS
    wa = f"s_add_u32 m0, s{sMW}, {ws}\n{{}}buffer_load_dwordx4 v{vw}, {srd(sa)}, s{sWOF} offen lds"
    wb = f"s_add_u32 m0, s{sMW}, {ws+8192}\n{{}}buffer_load_dwordx4 v{vw}, {srd(sb)}, s{sWOF} offen lds"
    if p == 0:
        return [f"s_add_u32 m0, s{sMW}, {xs}\ns_lshl_b32 s{sXO}, s{sROT}, 7\nbuffer_load_dwordx4 v{vXS0}, {srd(SX)}, s{sXO} offen lds",
                wa.format(pre), wb.format(mid + inc),
                f"s_add_u32 m0, s{sMW}, {xs+8192}\n{wrap}buffer_load_dwordx4 v{vXS1}, {srd(SX)}, s{sXO} offen lds"]
    return [wa.format(pre), wb.format(inc + wrap)]

def setup_common():
    mk_srd(SWS, 28, WS_SIZE)
    if OPT.get('wso'): a(f"s_add_u32 s{SWS}, s{SWS}, {OPT['wso'] << 20}\ns_addc_u32 s{SWS+1}, s{SWS+1}, 0")
    mk_srd(SDBG, 26, 256); mk_srd(SWD, 20, 1792 * 1024); mk_srd(SWO, 12, 512 * 1024); mk_srd(SOUT, 24, 2048 * 1024)
    late_loads(2)
    a(f"""
    s_and_b32 s{sT[0]}, s{sW}, 3
    s_lshr_b32 s{sT[1]}, s{sW}, 2
    s_xor_b32 s{sT[5]}, s{sT[1]}, s{sQ}
    s_and_b32 s{sT[5]}, s{sT[5]}, 1
    s_lshl1_add_u32 s{sT[0]}, s{sT[0]}, s{sT[5]}
    s_lshl_b32 s{sT[0]}, s{sT[0]}, 11
    v_and_b32 v{t0}, 15, v{L}
    v_bfe_u32 v{t1}, v{L}, 1, 3
    v_lshrrev_b32 v{t2}, 4, v{L}
    v_xor_b32 v{t1}, v{t1}, v{t2}
    v_lshlrev_b32 v{t1}, 4, v{t1}
    v_lshl_add_u32 v{t1}, v{t0}, 7, v{t1}
    v_add_u32 v{vXR[0]}, s{sT[0]}, v{t1}
    v_xor_b32 v{vXR[1]}, 0x800, v{vXR[0]}
    v_xor_b32 v{vXR[2]}, 64, v{vXR[0]}
    v_xor_b32 v{vXR[3]}, 64, v{vXR[1]}
    s_lshl_b32 s{sT[2]}, s{sT[5]}, 8
    v_xor_b32 v{vST}, s{sT[2]}, v{vL16}
    """)
    a(f"""
    v_lshrrev_b32 v{t3}, 5, v{L}
    v_lshlrev_b32 v{t0}, 4, v{t0}
    v_lshl_add_u32 v{vPV}, v{t3}, 8, v{t0}
    """)
    late_loads(3)
    a(f"""
    v_bfe_u32 v{t0}, v{L}, 2, 2
    v_lshl_add_u32 v{t1}, v{t2}, 3, v{t0}
    v_lshlrev_b32 v{t1}, 7, v{t1}
    v_bfe_u32 v{t2}, v{L}, 3, 2
    s_lshl_b32 s{sT[1]}, s{sT[1]}, 1
    v_xor_b32 v{t2}, s{sT[1]}, v{t2}
    v_lshl_add_u32 v{t1}, v{t2}, 5, v{t1}
    v_and_b32 v{t2}, 3, v{L}
    v_lshl_add_u32 v{t1}, v{t2}, 3, v{t1}
    v_add_u32 v{vWR[0]}, {WR}, v{t1}
    v_xor_b32 v{vWR[1]}, 32, v{vWR[0]}
    """)
    a(f"""
    v_lshl_add_u32 v{t3}, v{t3}, 3, v{t0}
    v_lshlrev_b32 v{t3}, 7, v{t3}
    v_lshrrev_b32 v{t0}, 1, v{t0}
    v_lshl_add_u32 v{t3}, v{t0}, 6, v{t3}
    v_lshl_add_u32 v{t3}, v{t2}, 3, v{t3}
    v_bfe_u32 v{t2}, v{L}, 4, 1
    v_lshl_add_u32 v{vTRP}, v{t2}, 5, v{t3}
    v_lshlrev_b32 v{t2}, 2, v{t2}
    v_and_b32 v{t1}, 7, v{L}
    v_xor_b32 v{t1}, v{t1}, v{t2}
    v_lshlrev_b32 v{t1}, 4, v{t1}
    v_lshrrev_b32 v{t0}, 3, v{L}
    v_lshl_add_u32 v{t0}, v{t0}, 10, v{t1}
    s_lshl_b32 s{sT[0]}, s{sJ}, 7
    v_add_u32 v{vPD}, s{sT[0]}, v{t0}
    v_mov_b32 v{vZ}, 0
    v_mov_b32 v{vC0}, {fbits(C0):#x}
    s_mov_b32 s{sC1}, {fbits(C1):#x}
    s_mov_b32 s{sC1+1}, {fbits(C1):#x}
    """)
    late_loads(4)
    a(f"""
    s_lshr_b32 s{sT[3]}, s{sW}, 2
    s_and_b32 s{sT[1]}, s{sW}, 3
    s_lshl2_add_u32 s{sT[0]}, s{sTI}, s{sT[1]}
    s_lshl_b32 s{sT[8]}, s{sT[0]}, 5
    s_and_b32 s{sT[2]}, s{sT[0]}, 15
    s_lshr_b32 s{sT[0]}, s{sT[0]}, 4
    s_mul_i32 s{sT[0]}, s{sT[0]}, 112
    s_mul_i32 s{sT[1]}, s{sQ}, 28
    s_add_u32 s{sT[0]}, s{sT[0]}, s{sT[1]}
    s_lshl3_add_u32 s{sT[0]}, s{sU}, s{sT[0]}
    s_lshl1_add_u32 s{sT[0]}, s{sT[3]}, s{sT[0]}
    s_lshl4_add_u32 s{sT[0]}, s{sT[0]}, s{sT[2]}
    s_lshl_b32 s{sT[0]}, s{sT[0]}, 10
    s_add_u32 s{sHO}, s{sT[0]}, {WS_H}
    s_lshl3_add_u32 s{sT[4]}, s{sQ}, s{sT[8]}
    s_lshl1_add_u32 s{sT[4]}, s{sT[3]}, s{sT[4]}
    s_lshl_b32 s{sT[4]}, s{sT[4]}, 10
    s_lshl2_add_u32 s{sF2}, s{sTI}, s{sQ}
    s_lshl_b32 s{sF2}, s{sF2}, 6
    s_add_u32 s{sF2}, s{sF2}, s{sU}
    s_lshl_b32 s{sF2}, s{sF2}, 2
    s_add_u32 s{sF2}, s{sF2}, {WS_F2}
    s_lshl1_add_u32 s{sT[1]}, s{sI}, s{sT[3]}
    s_lshl3_add_u32 s{sT[2]}, s{sT[1]}, s{sJ}
    s_and_b32 s{sT[1]}, s{sW}, 3
    s_lshl2_add_u32 s{sT[2]}, s{sT[2]}, s{sT[1]}
    s_lshl_b32 s{sOO}, s{sT[2]}, 10
    s_lshl_b32 s{sRING}, s{sW}, 13
    s_add_u32 s{sRING}, s{sRING}, {RING}
    s_mul_i32 s{sRH}, s{sJ}, 7
    s_lshr_b32 s{sRH}, s{sRH}, 2
    s_mul_i32 s{sT[1]}, s{sU}, 7
    s_lshr_b32 s{sT[1]}, s{sT[1]}, 1
    s_add_u32 s{sRH}, s{sRH}, s{sT[1]}
    s_and_b32 s{sT[1]}, s2, {OPT['dxs']}
    s_add_u32 s{sRH}, s{sRH}, s{sT[1]}
    s_cmp_ge_u32 s{sRH}, 14
    s_cselect_b32 s{sT[1]}, 14, 0
    s_sub_u32 s{sRH}, s{sRH}, s{sT[1]}
    s_lshl_b32 s{sRH}, s{sRH}, 14
    s_mul_i32 s{sT[1]}, s{sW}, {14*16384}
    s_add_u32 s{SWD}, s{SWD}, s{sT[1]}
    s_addc_u32 s{SWD+1}, s{SWD+1}, 0
    s_sub_u32 s{SWD+2}, s{SWD+2}, s{sT[1]}
    s_lshl_b32 s{sT[1]}, s{sW}, 16
    s_add_u32 s{SWO}, s{SWO}, s{sT[1]}
    s_addc_u32 s{SWO+1}, s{SWO+1}, 0
    s_sub_u32 s{SWO+2}, s{SWO+2}, s{sT[1]}
    """)

def setup_path(P):
    if P in 'KV':
        a(f"""
        v_lshrrev_b32 v{t2}, 4, v{L}
        v_and_b32 v{t0}, 15, v{L}
        v_lshlrev_b32 v{t1}, 3, v{t0}
        v_lshl_add_u32 v{t1}, v{t2}, 8, v{t1}
        v_and_b32 v{t3}, 1, v{t2}
        v_lshl_add_u32 v{t1}, v{t3}, 7, v{t1}
        v_add_u32 v{vER[0]}, {EX}, v{t1}
        v_xor_b32 v{vER[1]}, 0x80, v{vER[0]}
        v_lshlrev_b32 v{t1}, 7, v{t3}
        v_xor_b32 v{vES}, v{t1}, v{vL16}
        s_add_u32 s{sEXO}, s{sW}, s{sROT0}
        s_and_b32 s{sEXO}, s{sEXO}, 7
        s_lshl_b32 s{sEXO}, s{sEXO}, 11
        s_lshr_b32 s{sEXW}, s{sT[4]}, 15
        v_lshrrev_b32 v{t2}, 1, v{t2}
        """)
        if P == 'K':
            a(f"""
            s_lshl3_add_u32 s{sEXW}, s{sEXW}, s{sT[5]}
            s_lshl_b32 s{sEXW}, s{sEXW}, 8
            v_lshlrev_b32 v{t2}, 9, v{t2}
            """)
        else:
            a(f"""
            s_lshl2_add_u32 s{sEXW}, s{sEXW}, s{sT[5]}
            s_lshl_b32 s{sEXW}, s{sEXW}, 9
            s_add_u32 s{sEXW}, s{sEXW}, 1024
            v_lshlrev_b32 v{t2}, 8, v{t2}
            v_and_b32 v{t0}, 3, v{L}
            v_bfe_u32 v{t1}, v{L}, 2, 1
            v_lshl_add_u32 v{t0}, v{t1}, 3, v{t0}
            v_bfe_u32 v{t1}, v{L}, 3, 1
            v_lshl_add_u32 v{t0}, v{t1}, 2, v{t0}
            """)
        a(f"""
        v_lshl_add_u32 v{t2}, v{t0}, 4, v{t2}
        v_lshl_add_u32 v{vSA}, v{t3}, 3, v{t2}
        """)
    if P == 'P':
        a(f"""
        v_bfe_u32 v{t1}, v{L}, 4, 1
        v_lshlrev_b32 v{t1}, 7, v{t1}
        v_xor_b32 v{vES}, v{t1}, v{vL16}
        s_add_u32 s{sEXO}, s{sW}, s{sROT0}
        s_and_b32 s{sEXO}, s{sEXO}, 7
        s_lshl_b32 s{sEXO}, s{sEXO}, 11
        """)
    if P == 'S':
        a(f"""
        s_lshl_b32 s{sEXO}, s{sROT0}, 7
        v_add_u32 v{vES}, s{sEXO}, v{vL16}
        v_and_b32 v{vES}, 0x3ff, v{vES}
        v_and_b32 v{t0}, 48, v{L}
        v_add_u32 v{vER[0]}, {GW}, v{t0}
        v_and_b32 v{t0}, 15, v{L}
        v_lshlrev_b32 v{vSA}, 2, v{t0}
        s_lshr_b32 s{sEXW}, s{sT[4]}, 15
        s_lshl1_add_u32 s{sEXW}, s{sEXW}, s{sT[5]}
        s_lshl_b32 s{sEXW}, s{sEXW}, 6
        s_add_u32 s{sEXW}, s{sEXW}, {WS_G}
        """)

def x_reads(sig, j):
    return [f"ds_read_b128 {vr(XF + 16*sig + 8*j + 4*tq, 4)}, v{vXR[2*j+tq]} offset:{(sig & 3) * 16384}" for tq in range(2)]
def w_reads(sig, j, i):
    b, part = i >> 1, i & 1
    off = (wslot(sig) & 0xffff) + part * 8192 + j * 4096
    return [f"ds_read_b64_tr_b16 {vr(F[j] + 4*i + 2*e, 2)}, v{waddr(sig, b)} offset:{off + e*512}" for e in range(2)]
def e_steps(c):
    c0 = 2 * OPT['exs']
    if PATH[0] in 'KVS': return [2 * (c - c0), 2 * (c - c0) + 1] if c0 <= c < 2 * c0 else ([c] if 2 * c0 <= c < 16 else [])
    return []
def e_buf(c, i): return WE + 16 + 4 * i if (PATH[0] == 'S' and c == 15) else WE + 8 * (c & 1) + 4 * i
def e_reads(c):
    if PATH[0] == 'S':
        cs = [] if c == 15 else ([14, 15] if c == 14 else [c])
        return [f"ds_read_b128 {vr(e_buf(x, i), 4)}, v{vER[0]} offset:{k*64}" for x in cs for i, k in enumerate(e_steps(x))]
    return [f"ds_read_b64_tr_b16 {vr(e_buf(c, i) + 2*e, 2)}, v{vER[e]} offset:{k*1024}" for i, k in enumerate(e_steps(c)) for e in range(2)]
def e_mfmas(c):
    out = []
    for i, k in enumerate(e_steps(c)):
        acc, w, x = vr(ACCE, 4), vr(e_buf(c, i), 4), vr(XF + 8 * k, 4)
        A, B = (x, w) if PATH[0] == 'V' else (w, x)
        out.append(f"v_mfma_f32_16x16x32_bf16 {acc}, {A}, {B}, {'0' if k == 0 else acc}")
    return out
def mfmas(sig, j):
    out = []
    for i in range(4):
        for tq in range(2):
            d = vr(ACC[sig >> 3] + 8 * i + 4 * tq, 4)
            c = "0" if ((sig & 7) == 0 and j == 0) else d
            out.append(f"v_mfma_f32_16x16x32_bf16 {d}, {vr(F[j] + 4*i, 4)}, {vr(XF + 16*(sig&7) + 8*j + 4*tq, 4)}, {c}")
    return out

def gelu_pair(base, j, T=vGT, pk=False):
    G = vr(base + 2 * j, 2); U = vr(base + 8 + 2 * j, 2); TT = vr(T, 2)
    g0, g1, u0, u1 = base + 2 * j, base + 2 * j + 1, base + 8 + 2 * j, base + 9 + 2 * j
    if pk:
        return [f"v_pk_mul_f32 {TT}, {G}, {G}",
                f"v_pk_fma_f32 {TT}, {TT}, s[{sC1}:{sC1+1}], {vr(vC0,2)} op_sel_hi:[1,1,0]",
                f"v_pk_mul_f32 {TT}, {TT}, {G}",
                f"v_exp_f32 v{T}, v{T}", f"v_exp_f32 v{T+1}, v{T+1}",
                f"v_pk_mul_f32 {G}, {G}, {U}",
                f"v_pk_add_f32 {TT}, {TT}, 1.0 op_sel_hi:[1,0]",
                f"v_rcp_f32 v{T}, v{T}", f"v_rcp_f32 v{T+1}, v{T+1}",
                f"v_pk_mul_f32 {G}, {G}, {TT}",
                f"v_cvt_pk_bf16_f32 v{base+j}, v{g0}, v{g1}"]
    return [f"v_mul_f32 v{T}, v{g0}, v{g0}", f"v_mul_f32 v{T+1}, v{g1}, v{g1}",
            f"v_fma_f32 v{T}, v{T}, s{sC1}, v{vC0}", f"v_fma_f32 v{T+1}, v{T+1}, s{sC1}, v{vC0}",
            f"v_mul_f32 v{T}, v{T}, v{g0}", f"v_mul_f32 v{T+1}, v{T+1}, v{g1}",
            f"v_exp_f32 v{T}, v{T}", f"v_exp_f32 v{T+1}, v{T+1}",
            f"v_mul_f32 v{g0}, v{g0}, v{u0}", f"v_add_f32 v{T}, 1.0, v{T}", f"v_add_f32 v{T+1}, 1.0, v{T+1}",
            f"v_rcp_f32 v{T}, v{T}", f"v_rcp_f32 v{T+1}, v{T+1}",
            f"v_mul_f32 v{g1}, v{g1}, v{u1}",
            f"v_mul_f32 v{g0}, v{g0}, v{T}", f"v_mul_f32 v{g1}, v{g1}, v{T+1}",
            f"v_cvt_pk_bf16_f32 v{base+j}, v{g0}, v{g1}"]
def to_frag(base):
    return [f"v_permlane16_swap_b32 v{base}, v{base+2}", f"v_permlane16_swap_b32 v{base+1}, v{base+3}"]

def cost(x):
    c = 0
    for l in x.strip().split('\n'):
        l = l.strip()
        if not l or l.startswith(';') or l.endswith(':'): continue
        c += 8 if l.startswith(('v_exp', 'v_rcp')) else (OPT.get('vmc', 16) if l.startswith('buffer_') else 4)
    return c

kvtok = {}
def kv_step(m):
    slot = (4 * m % NSLOT) * 2048
    if m == 0: x = f"s_mov_b32 m0, s{sKVM}\ns_nop 0\n"
    else: x = f"s_add_u32 s{sKVO}, s{sKVO}, 8192\ns_add_u32 m0, s{sKVM}, {slot}\ns_and_b32 s{sKVO}, s{sKVO}, 0xffff\n"
    return [x + f"buffer_load_dwordx4 v{vKVS}, {srd(SWS)}, s{sKVO} offen sc1 lds", f"buffer_load_dwordx4 v{vKVS}, {srd(SWS)}, s{sKVO} offen offset:1024 sc1 lds"]
KV_FIRST = 2
def first_loads():
    return [f"buffer_load_dwordx4 {vr(QA,4)}, v{vL16}, {srd(SWS)}, s{sQA} offen sc1\ns_xor_b32 s{sQA}, s{sQA}, 1024"] + kv_step(0) + \
           [f"buffer_load_dwordx4 {vr(QB,4)}, v{vL16}, {srd(SWS)}, s{sQA} offen sc1"] + kv_step(1)

def setup_queue(late=False):
    q = []
    def add(st, txt):
        for l in txt.strip().split('\n'): q.append((st, l.strip().replace('|', '\n')))
    add(11, f"""
    s_lshr_b32 s{sT[5]}, s{sW}, 2
    s_lshl_b32 s{sT[6]}, s{sT[5]}, 16
    v_add_u32 v{vKVS}, s{sT[6]}, v{vL16}
    s_and_b32 s{sT[3]}, s{sW}, 1
    s_mul_i32 s{sT[3]}, s{sT[3]}, {HALF}
    v_add_u32 v{vAK}, s{sT[3]}, v{vL16}
    v_add_u32 v{vAV}, s{sT[3]}, v{vPV}
    s_mul_i32 s{sT[3]}, s{sT[5]}, {HALF}
    s_and_b32 s{sT[6]}, s{sW}, 3
    s_lshl_b32 s{sT[7]}, s{sT[6]}, 11
    s_add_u32 s{sKVM}, s{sT[7]}, s{sT[3]}
    s_lshr_b32 s{sT[7]}, s2, 3
    s_add_u32 s{sT[6]}, s{sT[6]}, s{sT[7]}
    s_and_b32 s{sT[6]}, s{sT[6]}, 31
    s_lshl_b32 s{sKVO}, s{sT[6]}, 11
    s_add_u32 s{sQA}, s{sOO}, {WS_Q}
    s_xor_b32 s{sQA}, s{sQA}, 1024
    s_lshl1_add_u32 s{sGA}, s{sI}, s{sT[5]}
    s_lshl_b32 s{sGA}, s{sGA}, 7
    s_add_u32 s{sGA}, s{sGA}, {WS_G}
    v_and_b32 v{vG}, 31, v{L}
    v_lshlrev_b32 v{vG}, 2, v{vG}
    v_mov_b32 v{vIDX}, 0xdddddddd
    v_mov_b32 v{V2+1}, 0x3f803f80
    s_mov_b32 vcc_lo, 0x110000|s_mov_b32 vcc_hi, 0x110000|v_cndmask_b32 v{V2}, 0, v{V2+1}, vcc
    """)
    for r in range(V2 + 1, V2 + 12): add(11, f"v_mov_b32 v{r}, v{V2}")
    add(12, f"""
    v_add_u32 v{vDR0}, s{sRING}, v{vTRP}
    v_xor_b32 v{vDR1}, 64, v{vDR0}
    v_add_u32 v{vDS1}, 7168, v{vDS}
    s_lshr_b32 s{sT[6]}, s{sI}, 3
    s_lshl3_add_u32 s{sT[6]}, s{sT[6]}, s{sW}
    s_mul_i32 s{sT[6]}, s{sT[6]}, {14*16}
    s_and_b32 s{sT[7]}, s{sI}, 7
    s_lshl1_add_u32 s{sT[7]}, s{sT[7]}, s{sT[5]}
    s_add_u32 s{sT[6]}, s{sT[6]}, s{sT[7]}
    s_lshl_b32 s{sT[6]}, s{sT[6]}, 10
    s_add_u32 s{sT[6]}, s{sT[6]}, {WS_H}
    v_add_u32 v{vH0}, s{sT[6]}, v{vL16}
    v_xor_b32 v{vH1}, 0x400, v{vH0}
    v_lshlrev_b32 v{vF2}, 8, v{L}
    s_lshr_b32 s{sF2R}, s{sI}, 1
    s_lshl_b32 s{sF2R}, s{sF2R}, 10
    s_add_u32 s{sF2R}, s{sF2R}, {WS_F2}
    """)
    add(13, f"""
    s_lshl_b32 s{sF3R}, s{sI}, 9
    s_add_u32 s{sF3R}, s{sF3R}, {WS_F2 + 128}
    s_lshl_b32 s{sF2W}, s{sW}, 24
    s_lshl2_add_u32 s{sF3W}, s{sJ}, s{sF3R}
    s_add_u32 s{sF3W}, s{sF3W}, s{sF2W}
    s_add_u32 s{sF2W}, s{sF2W}, s{sF2}
    v_mov_b32 v{vONE}, 1
    """)
    for r in range(9): add(13, f"v_mov_b32 v{OA+r}, 0")
    for r in range(9): add(14, f"v_mov_b32 v{OB+r}, 0")
    if OPT['vlate']:
        cut = [i for i, x in enumerate(q) if x[1].startswith(f"v_and_b32 v{vG}, 31")][0]
        if late: return [x[1] for x in q[cut:]]
        return q[:cut]
    return [] if late else q

cold = []
def s0_check(P):
    a(f"v_cmp_eq_u32 vcc, 0, v{vS0}\ns_cbranch_vccnz L_s0retry{P}\nL_s0done{P}:")
    cold.append(f"""
    L_s0retry{P}:
    s_mov_b32 s{sT[1]}, 0
    L_s0poll{P}:
    buffer_load_dword v{vS0}, v{vZ}, {srd(SDBG)}, 0 offen sc1
    s_add_u32 s{sT[1]}, s{sT[1]}, 1
    s_waitcnt vmcnt(0)
    v_cmp_eq_u32 vcc, 0, v{vS0}
    s_cbranch_vccz L_s0done{P}
    s_cmp_lt_u32 s{sT[1]}, {SPIN}
    s_cbranch_scc1 L_s0poll{P}
    s_branch L_s0done{P}
    """)
def s1_issue(P):
    a(f"s_cmp_lg_u32 s{sW}, 0\ns_cbranch_scc1 L_nopoll0{P}")
    if P in 'GSC': s0_check(P)
    a(f"""
    s_mov_b32 s{sT[1]}, {WS_F1}
    v_lshlrev_b32 v{t1}, 7, v{L}
    buffer_load_dword v{t0}, v{t1}, {srd(SWS)}, s{sT[1]} offen sc1
    L_nopoll0{P}:
    """)
    a.vm -= 1
def s1_check(P):
    a(f"""
    s_cmp_lg_u32 s{sW}, 0
    s_cbranch_scc1 L_s1done{P}
    s_mov_b32 s{sT[0]}, 0
    L_s1poll{P}:
    s_waitcnt vmcnt(0)
    v_cmp_ne_u32 vcc, 1, v{t0}
    s_cbranch_vccz L_s1done{P}
    {'s_sleep ' + str(OPT['s1slp']) if OPT['s1slp'] else ''}
    s_mov_b64 exec, vcc
    buffer_load_dword v{t0}, v{t1}, {srd(SWS)}, s{sT[1]} offen sc1
    s_mov_b64 exec, -1
    s_add_u32 s{sT[0]}, s{sT[0]}, 1
    s_cmp_lt_u32 s{sT[0]}, {SPIN}
    s_cbranch_scc1 L_s1poll{P}
    s_waitcnt vmcnt(0)
    L_s1done{P}:
    """)
    a.vm -= 1

def proj_path(P):
    tok = {}
    PATH[0] = P
    S1 = OPT['s1']
    sched = {s: [s + 2] for s in range(6)}
    ISQ = P in 'KVP'
    PB = OPT['pbq0'] if ISQ else OPT['pb']
    QF = OPT['qf']
    sched.update({6: [8, 9], 7: [10, 11], 8: [12, 13], 9: [14, 15]}); cover = {8: 9, 10: 11, 12: 15}
    if ISQ and OPT['qmode'] == 0:
        del sched[8], sched[9]
        sched.update({10: [12, 13], 11: [14, 15]}); cover = {8: 9, 10: 11, 12: 13, 14: 15}
    bars = set(range(8)) | set(cover) | {S1}
    if OPT['gb14']: bars |= {14}
    if OPT['gbar'] and not ISQ: bars |= set(range(8, 16))
    if ISQ: bars |= {QF} | ({9} if OPT['qmode'] else set()) | (set(range(10, 16)) if OPT['qbar'] else set())
    def dma_groups(sg):
        d = dma_ops(sg, P)
        if ISQ and sg == OPT['exs']:
            d.insert(1, f"""
            s_add_u32 m0, s{sMX}, {EX}
            s_nop 0
            buffer_load_dwordx4 v{vES}, {srd(SEX)}, s{sEXO} offen lds
            buffer_load_dwordx4 v{vES}, {srd(SEX)}, s{sEXO} offen offset:1024 lds
            """)
        if P == 'S' and sg == OPT['exs']:
            d.insert(1, f"s_mov_b32 m0, {GW}\ns_nop 0\nbuffer_load_dwordx4 v{vES}, {srd(SEX)}, 0 offen lds")
        return [(x, sg if k == len(d) - 1 else None) for k, x in enumerate(d)]
    def emit(it):
        if callable(it): return it()
        a(it[0])
        if it[1] is not None: tok[it[1]] = a.lastvm()
    tok[0] = a.lastvm()
    if ISQ: mk_srd(SWQ, 6, 512 * 1024)
    if not OPT['spf']:
        for it in dma_groups(1): emit(it)
    if ISQ: mk_srd(SWG, 16, 512 * PG); mk_srd(SWU, 18, 512 * PG)
    if P in 'KVS': mk_srd(SEX, {'K': 8, 'V': 10, 'S': 22}[P], 1024 if P == 'S' else 16384)
    if P == 'P': a(f"s_cmp_lt_u32 s{sQ}, 2\ns_cselect_b64 s[{SEX}:{SEX+1}], s[8:9], s[10:11]\ns_mov_b32 s{SEX+2}, 16384\ns_mov_b32 s{SEX+3}, 0x20000")
    setup_path(P)
    if OPT['grp'] == 5: a("s_mov_b32 s6, s14\ns_mov_b32 s8, s5")
    stamp(3, 5)
    if OPT['spf']:
        for it in dma_groups(1): emit(it)
    stamp(4, 5)
    if P == 'C':
        ctok = a(f"v_lshlrev_b32 v{t0}, 7, v{L}\ns_mov_b32 s{sT[1]}, {WS_F1}\nbuffer_store_dword v{vZ}, v{t0}, {srd(SWS)}, s{sT[1]} offen sc1")
    win = {c: [] for c in range(33)}
    box = {}; front = {}; pre8 = []; lvl = [3]
    def usable(c):
        return c % 2 == 0 or ((c + 1) // 2) not in bars
    def nxt(c):
        while not usable(c): c += 1
        return c
    if not ISQ:
        gq = []
        for b in range(2):
            for j in range(4): gq += gelu_pair(ACC[0] + 16 * b, j)
            gq += to_frag(ACC[0] + 16 * b)
            if b == 0: n0 = len(gq)
        npre = 17 * (PB - 1) if PB else 0
        pre8 += [(x, None) for j in range(max(PB - 1, 0)) for x in gelu_pair(ACC[0], j, pk=OPT.get('pbk', 0))]
        gq = gq[npre:]; n0 -= npre
        ws = [c for c in range(16, OPT['gend'] + 1) if usable(c)]
        ndma = {16: 2, 17: 2, 18: 4} if 9 not in bars else {16: 4, 18: 4}
        tot = len(gq) + OPT['dwt'] * 8
        done = 0; accw = 0
        for k, c in enumerate(ws):
            accw += OPT['dwt'] * ndma.get(c, 0)
            upto = max(done, tot * (k + 1) // len(ws) - accw)
            win[c] += [(x, None) for x in gq[done:upto]]
            if done < n0 <= upto: c0 = c
            done = upto
        assert done == len(gq)
        for b in range(OPT['nearly']):
            c = nxt(max(OPT[f'h{b}w'], c0 if b == 0 else ws[-1]))
            win[c].append((f"s_sub_u32 s{sT[2]}, s{sHO}, {65536 - 16384*b}\nbuffer_store_dwordx4 {vr(ACC[0]+16*b,4)}, v{vST}, {srd(SWS)}, s{sT[2]} offen sc1", None))
    else:
        qa = [f"s_add_u32 s{sT[8]}, s{sT[4]}, {WS_Q + 4096}\ns_add_u32 s{sT[4]}, s{sT[4]}, {WS_Q}"]
        if P == 'K': qa += [f"v_mul_f32 v{ACCE+r}, {fbits(QS):#x}, v{ACCE+r}" for r in range(4)]
        sts = []
        if P in 'KV':
            qa += [f"v_cvt_pk_bf16_f32 v{vGT}, v{ACCE}, v{ACCE+1}", f"v_cvt_pk_bf16_f32 v{vGT+1}, v{ACCE+2}, v{ACCE+3}"]
            sts.append(f"buffer_store_dwordx2 {vr(vGT,2)}, v{vSA}, {srd(SWS)}, s{sEXW} offen sc1")
        if P == 'P':
            sts.append(f"v_lshlrev_b32 v{t2}, 2, v{L}\nbuffer_store_dword v{vZ}, v{t2}, {srd(SWS)}, s{sF2} offen sc1")
        def qcv(i): return [f"v_cvt_pk_bf16_f32 v{ACC[0]+8*i+j}, v{ACC[0]+8*i+2*j}, v{ACC[0]+8*i+2*j+1}" for j in range(4)]
        def qst(i): return to_frag(ACC[0] + 8 * i) + [f"buffer_store_dwordx4 {vr(ACC[0]+8*i,4)}, v{vST}, {srd(SWS)}, s{sT[8 if i & 1 else 4]} offen offset:{1024*(i>>1)} sc1"]
        mark = [lambda: box.update(q=a.lastvm())]
        T = lambda l: [(x, None) for x in l]
        if OPT['qmode'] == 0 and PB:
            pre8 += T(qa + qcv(0) + qcv(1) + qcv(2) + qcv(3) + [x for i in range(4) for x in qst(i)[:2]])
            if OPT.get('pbq'): pre8 += T(sts + [qst(i)[2] for i in range(4)]) + mark
            else: win[16] += T(sts + [qst(i)[2] for i in range(2)]); win[17] += T([qst(i)[2] for i in range(2, 4)]) + mark
        elif OPT['qmode'] == 0:
            win[16] += T(qa + sts + qcv(0) + qcv(1) + qst(0) + qst(1)); win[17] += T(qcv(2) + qcv(3) + qst(2) + qst(3)) + mark
        elif OPT['qmode'] == 1:
            win[16] += T(qa + qcv(0) + qcv(1)); win[18] += T(sts + qst(0) + qcv(2)); win[20] += T(qcv(3) + qst(1) + qst(2) + qst(3)) + mark
        else:
            win[16] += T(qa + qcv(0) + qcv(1) + qcv(2) + qcv(3)); win[18] += T(sts + qst(0) + qst(1) + qst(2) + qst(3)) + mark
        def qflag():
            assert a.vm_done > box['s0']
            if P != 'P': s0_check(P)
            a(f"""
            s_lshl4_add_u32 s{sT[0]}, s{sQ}, s{sTI}
            s_lshl_b32 s{sT[0]}, s{sT[0]}, 7
            s_add_u32 s{sT[0]}, s{sT[0]}, {WS_F1}
            s_lshl_b32 s{sT[1]}, s{sW}, 24
            s_add_u32 s{sT[0]}, s{sT[0]}, s{sT[1]}
            v_mov_b32 v{t1}, 1
            s_mov_b64 exec, 1
            buffer_store_dword v{t1}, v{vZ}, {srd(SWS)}, s{sT[0]} offen sc1
            s_mov_b64 exec, -1
            """)
        if P != 'P': box['flag'] = qflag
    if P == 'S':
        win[16] = [(x, None) for x in (f"v_mul_f32 v{t2}, {fbits(-math.log2(math.e)):#x}, v{ACCE}", f"v_exp_f32 v{t2}, v{t2}", f"v_add_f32 v{t2}, 1.0, v{t2}", f"v_rcp_f32 v{t2}, v{t2}")] + win[16]
        win[20].append((f"s_mov_b64 exec, 0xffff\nbuffer_store_dword v{t2}, v{vSA}, {srd(SWS)}, s{sEXW} offen sc1\ns_mov_b64 exec, -1", None))
    queue = setup_queue()
    ws = [c for c in range(21 if ISQ else 20, 2 * S1 - 1) if usable(c)]
    for k, c in enumerate(ws):
        left = [x for x in queue if 2 * x[0] - 2 <= c]
        take = min(len(left), -(-len(queue) // (len(ws) - k)))
        win[c] += [(x[1], None) for x in left[:take]]; queue = queue[take:]
    assert not queue
    win[16].insert(0, (f"v_subrev_u32 v{vXR[0]}, {WR}, v{vWR[0]}\nv_subrev_u32 v{vXR[1]}, {WR}, v{vWR[1]}\nv_add_u32 v{vXR[2]}, {WR}, v{vWR[0]}\nv_add_u32 v{vXR[3]}, {WR}, v{vWR[1]}", None))

    def cluster(c, what='mr'):
        M = mfmas(c >> 1, c & 1) if (c >= 0 and 'm' in what) else []
        em = e_mfmas(c) if M else []
        for i, x in enumerate(em): M.insert(1 + (8 // len(em) + 1) * i, x)
        d = c + 1
        R = []
        if d < 32 and 'r' in what:
            if d < 16: R += x_reads(d >> 1, d & 1)
            for i in range(4): R += w_reads(d >> 1, d & 1, i)
            R += e_reads(d)
        a.wait(a.lastlg())
        if M and not OPT['lad']: a("s_setprio 2")
        n = max(len(M), 1); k = 0
        last = n - 1 if (c & 1 or ((c >> 1) + 1) not in bars) else n - 2
        if M: last = min(last, n - 1 - OPT['rq' if ISQ else 'rg'] if c >= 16 else n - 1 - OPT['r1'])
        for i in range(n):
            if M: a(M[i])
            want = len(R) if i >= last else -(-len(R) * (i + 1) // (last + 1))
            while k < want: a(R[k]); k += 1
        if M and not OPT['lad']: a("s_setprio 0")
        if M and OPT['lad'] and lvl[0] > 0 and not (c % 2 == 0 and (c >> 1) + 1 in bars and not (c == 14 and PB)):
            lvl[0] -= 1; a(f"s_setprio {lvl[0]}")

    for sig in range(16):
        if sig == 8 and PB:
            cluster(15, 'm')
            for it in pre8: emit(it)
        if sig in bars:
            if sig in cover or sig < 8: a.wait(tok[cover.get(sig, sig)])
            if ISQ and sig == QF: a.wait(box['q'])
            if sig == S1 and P != 'P': s1_check(P)
            if OPT['lad']: lvl[0] = 3; a("s_setprio 3")
            a("s_barrier")
            if sig == QF and 'flag' in box: box['flag']()
        if sig == 1: stamp(1)
        if sig == 8: stamp(2)
        if sig < 11: stamp(sig, 1)
        if sig < 5: stamp(5 + sig, 5)
        if sig >= 6: stamp(sig - 6, 2)
        D = []
        if P == 'C' and sig == 2:
            assert a.vm_done >= ctok[1]
            win[4].append((f"v_mov_b32 v{t0}, 1\ns_mov_b64 exec, 1\nbuffer_store_dword v{t0}, v{vZ}, {srd(SDBG)}, 0 offen sc1\ns_mov_b64 exec, -1", None))
        for sg in sched.get(sig, []): D += dma_groups(sg)
        if sig == S1: D += [(x, None) for x in first_loads()]
        if sig == (7 if ISQ else 9) and P != 'P':
            def s0_load():
                if not ISQ:
                    a(f"s_cmp_lg_u32 s{sW}, 0\ns_cbranch_scc1 L_nos0l{P}\nbuffer_load_dword v{vS0}, v{vZ}, {srd(SDBG)}, 0 offen sc1\nL_nos0l{P}:")
                    a.vm -= 1
                else:
                    a(f"buffer_load_dword v{vS0}, v{vZ}, {srd(SDBG)}, 0 offen sc1")
                box['s0'] = a.vm
            D.insert(len(D) - 1, s0_load)
        head, mid, tail = [], D, []
        if sig < OPT['late']: mid, tail = [], D
        elif (sig + 1) not in bars: mid, tail = D[:len(D)//2], D[len(D)//2:]
        elif sig in bars and len(D) >= 4: head, mid = D[:OPT['na']], D[OPT['na']:]
        for it in head: emit(it)
        cluster(2 * sig - 1, 'r' if (sig == 8 and PB) else 'mr')
        if sig == S1 - 1 and P != 'P' and OPT['s1w'] == 30:
            assert a.vm_done > box['s0']
            s1_issue(P)
        for it in front.get(2 * sig, []) + mid + win[2 * sig]: emit(it)
        cluster(2 * sig)
        for it in front.get(2 * sig + 1, []) + tail + win[2 * sig + 1]: emit(it)
    if P != 'P' and OPT['s1w'] == 31: s1_issue(P)
    a.wait(a.lastlg())
    assert not win[32]

setup_common()
if OPT['tlb']:
    a(f"s_cmp_lg_u32 s{sW}, 6\ns_cbranch_scc1 L_notlb")
    if OPT['tlb'] == 1:
        a(f"""
        v_lshlrev_b32 v{t0}, 21, v{L}
        s_mov_b32 s{sT[0]}, 0x80000
        s_mov_b64 exec, 63
        buffer_load_dword v32, v{t0}, {srd(SWS)}, s{sT[0]} offen
        s_mov_b64 exec, 1
        buffer_load_dword v33, v{vZ}, {srd(SWD)}, 0 offen
        buffer_load_dword v34, v{vZ}, {srd(SWO)}, 0 offen
        buffer_load_dword v35, v{vZ}, {srd(SOUT)}, 0 offen
        s_mov_b64 exec, -1
        """)
    else:
        a(f"""
        s_lshr_b32 s{sT[0]}, s2, 3
        s_lshl_b32 s{sT[0]}, s{sT[0]}, 16
        v_lshlrev_b32 v{t0}, 21, v{L}
        s_mov_b64 exec, 63
        buffer_load_dword v32, v{t0}, {srd(SWS)}, s{sT[0]} offen
        s_mov_b64 exec, 1
        v_mov_b32 v{t0}, s{sT[0]}
        v_min_u32 v{t1}, {1792*1024 - 4}, v{t0}
        global_load_dword v33, v{t1}, s[20:21]
        v_min_u32 v{t1}, {512*1024 - 4}, v{t0}
        global_load_dword v34, v{t1}, s[12:13]
        buffer_load_dword v35, v{t0}, {srd(SOUT)}, 0 offen
        s_mov_b64 exec, -1
        """)
    a("L_notlb:")
dispatch()
proj_path('G')
a("L_join:")
a.forget()

JE = OPT['jearly'] and OPT['s1'] == 16
if not JE:
    for m in mfmas(15, 1): a(m)
    a("s_setprio 0")
stamp(3); stamp(10, 2)
def gelu_chunk(k):
    b, jp = k >> 1, k & 1
    g0 = gelu_pair(ACC[1] + 16 * b, 2 * jp, vGT, pk=OPT['pk2']); g1 = gelu_pair(ACC[1] + 16 * b, 2 * jp + 1, t2, pk=OPT['pk2'])
    for x, y in zip(g0, g1):
        a(x); a(y)
    if k == 2:
        for x in to_frag(ACC[1]): a(x)
for k in range(OPT['jlate']): gelu_chunk(k)
stamp(5, 3)
if OPT['s1'] == 16:
    s1_check('J')
    stamp(6, 3)
    a("s_barrier")
    stamp(7, 3)
    fl = first_loads()
    if JE:
        nfirst = OPT['jearly'] - 1
        for x in fl[:nfirst]: a(x)
        for m in mfmas(15, 1): a(m)
        fl = fl[nfirst:]
    for x in fl: a(x)
stamp(4); stamp(8, 3)
for k in range(OPT['jlate'], 4): gelu_chunk(k)
for x in to_frag(ACC[1] + 16): a(x)
for x in setup_queue(True): a(x)
a(f"s_mov_b32 s{sT[8]}, 0xffff\ns_mov_b32 s{sT[9]}, 0xffff\ns_add_u32 s{sOO}, s{sOO}, {WS_O}")
stamp(9, 3)
a.wait_vm0()
a("s_barrier")
stamp(5); stamp(10, 3)

def qk(S, Q): return f"v_mfma_f32_32x32x16_bf16 {vr(S,16)}, {vr(KF,4)}, {vr(Q,4)}, 0"
def pv(O, V, S): return f"v_smfmac_f32_32x32x32_bf16 {vr(O,16)}, {vr(V,4)}, {vr(S,8)}, v{vIDX}"
NT, B1, B2 = 32, 8, OPT['b2']
def rec(t): return (t % NSLOT) * 2048
def rdK(t): return a(f"ds_read_b128 {vr(KF,4)}, v{vAK} offset:{rec(t)}")
def rdV(t2, t1):
    a(f"s_mov_b64 exec, s[{sT[8]}:{sT[9]}]")
    if t2 is not None: a(f"ds_read_b128 {vr(V2,4)}, v{vAV} offset:{rec(t2) + 1536}")
    if t1 is not None: a(f"ds_read_b128 {vr(V1[t1&1],4)}, v{vAV} offset:{rec(t1) + 1024}")
    a("s_mov_b64 exec, -1")
    return a.lastlg()
wtok, htok, rtok, box = {}, {}, {}, {}
m0own = [None]; wstart = set()
def w_off(u): return sR[u & 3] if u < 14 else sWOF
def w_load_a(u):
    a(f"s_add_u32 m0, s{sRING}, {(u & 3) * 2048}"); m0own[0] = ('w', u); wstart.add(u)
    assert u == 0 or (u - 1) in wtok
    if 0 < u < 14: a(f"s_sub_u32 s{sR[u&3]}, s{sR[(u-1)&3]}, 16384\ns_cselect_b32 s{sR[u&3]}, {13*16384}, s{sR[u&3]}")
    elif u == 14: a(f"s_lshl_b32 s{sWOF}, s{sU}, 14")
    elif u > 14: a(f"s_add_u32 s{sWOF}, s{sWOF}, 16384\ns_and_b32 s{sWOF}, s{sWOF}, 0xffff")
    a(f"buffer_load_dwordx4 v{vDS}, {srd(SWD if u < 14 else SWO)}, s{w_off(u)} offen lds")
def w_load_b(u):
    if m0own[0] != ('w', u):
        a(f"s_add_u32 m0, s{sRING}, {(u & 3) * 2048}"); m0own[0] = ('w', u)
    wtok[u] = a(f"buffer_load_dwordx4 v{vDS1}, {srd(SWD if u < 14 else SWO)}, s{w_off(u)} offen offset:1024 lds")
def h_load_a(u):
    assert u in wstart and (u + 4) not in wstart
    a(f"buffer_load_dwordx4 {vr(HF[u&3],4)}, v{vH0}, {srd(SWS)}, s{sR[u&3]} offen sc1")
def h_load_b(u):
    assert (u + 4) not in wstart
    htok[u] = a(f"buffer_load_dwordx4 {vr(HF[u&3]+4,4)}, v{vH1}, {srd(SWS)}, s{sR[u&3]} offen sc1")
def w_read(u, b):
    if b == 0: a.wait(wtok[u], htok[u])
    for e in range(2):
        rtok[u, b] = a(f"ds_read_b64_tr_b16 {vr(WF[u&1] + 4*b + 2*e, 2)}, v{(vDR0, vDR1)[b]} offset:{(u & 3) * 2048 + e*512}")
def d_mfma(u, k):
    tb, b = k >> 1, k & 1
    a.wait(rtok[u, 1])
    d = vr(DACC + 32 * tb + 16 * b, 16)
    a(f"v_mfma_f32_32x32x16_bf16 {d}, {vr(WF[u&1]+4*b,4)}, {vr(HF[u&3]+4*tb,4)}, {'0' if u == 0 else d}")

if OPT.get('x_now'):
    def w_load_a(u): pass
    def w_load_b(u): wtok[u] = None
if OPT.get('x_noh'):
    def h_load_a(u): pass
    def h_load_b(u): htok[u] = None
if OPT.get('x_noread'):
    def w_read(u, b): rtok[u, b] = None
ev, mf = {}, {}
SNAP = OPT.get('snap', 1)
B1P = 32 * (B1 - 1) + 11
EV, EVA, EK, EKA = OPT.get('ev', 5), OPT.get('eva', 0), OPT.get('ek', 11), OPT.get('eka', 0)
busy = {32 * t + o for t in range(NT) for o in (EV, EK, 18)}
def nextpos(p):
    while SNAP and (p & 15) not in (2, 5, 8, 11, 14): p += 1
    return p
def at(pos, f, limit=None):
    p = nextpos(pos)
    while SNAP and limit is not None and p in busy and nextpos(p + 1) <= limit: p = nextpos(p + 1)
    busy.add(p)
    ev.setdefault(p, []).append(f)
    return p
def h_store(b): box['h'] = a((f"s_add_u32 s{sHO}, s{sHO}, 16384\n" if b else "") + f"buffer_store_dwordx4 {vr(ACC[1]+16*b,4)}, v{vST}, {srd(SWS)}, s{sHO} offen sc1")
def late_store(k):
    a(f"""
    s_cmp_eq_u32 s{sU}, 0
    s_cbranch_scc1 L_nols{k}
    s_sub_u32 s{sT[2]}, s{sHO}, {65536 - 16384*k}
    buffer_store_dwordx4 {vr(ACC[0]+16*k,4)}, v{vST}, {srd(SWS)}, s{sT[2]} offen sc1
    L_nols{k}:
    """)
    a.vm -= 1
pp = OPT.get('p_st', 1); STS = OPT.get('p_sts', 1)
for k in range(OPT['nearly'], 2):
    pp = at(pp, lambda k=k: late_store(k), pp + 12) + STS
pp = at(pp, lambda: h_store(0), pp + 12) + STS
pp = at(pp, lambda: h_store(1), pp + 12)
assert pp < B1P
def kv_emit(m, i):
    if i == 0: m0own[0] = ('kv', m)
    if m0own[0] != ('kv', m):
        a(f"s_add_u32 m0, s{sKVM}, {(4 * m % NSLOT) * 2048}"); m0own[0] = ('kv', m)
    kvtok[m] = a(kv_step(m)[i])
for m in range(KV_FIRST, 8):
    p = OPT['p_kv'] + OPT['p_kvs'] * (m - KV_FIRST) if m < 6 else OPT['p_kv2'] + 20 * (m - 6)
    p = at(p, lambda m=m: kv_emit(m, 0), p + 8)
    at(p + 1, lambda m=m: kv_emit(m, 1), p + 9)
assert OPT['p_kv2'] > B1P
def h_flag():
    a(f"s_mov_b64 exec, 1\nbuffer_store_dword v{vONE}, v{vZ}, {srd(SWS)}, s{sF2W} offen sc1\ns_mov_b64 exec, -1")
at(B1P + 1, h_flag)
def f2_load():
    box['f2'] = a(f"s_mov_b64 exec, 15\nbuffer_load_dwordx4 {vr(F2D,4)}, v{vF2}, {srd(SWS)}, s{sF2R} offen sc1")
    a("s_mov_b64 exec, -1")
at(OPT['p_f2'], f2_load, OPT['p_f2'] + 8)
def f2_check():
    a.wait(box['f2'])
    test = f"v_min3_u32 v{F2D}, v{F2D}, v{F2D+1}, v{F2D+2}\nv_min_u32 v{F2D}, v{F2D}, v{F2D+3}\nv_cmp_ne_u32 vcc, 1, v{F2D}"
    a(f"s_mov_b64 exec, 15\n{test}\ns_cbranch_vccnz L_s2retry\nL_s2done:\ns_mov_b64 exec, -1")
    cold.append(f"""
    L_s2retry:
    s_mov_b32 s{sT[1]}, 0
    L_s2poll:
    buffer_load_dwordx4 {vr(F2D,4)}, v{vF2}, {srd(SWS)}, s{sF2R} offen sc1
    s_add_u32 s{sT[1]}, s{sT[1]}, 1
    s_waitcnt vmcnt(0)
    {test}
    s_cbranch_vccz L_s2done
    s_sleep {OPT.get('slp', 6)}
    s_cmp_lt_u32 s{sT[1]}, {SPIN}
    s_cbranch_scc1 L_s2poll
    s_branch L_s2done
    """)
    a(f"buffer_load_dword v{vG}, v{vG}, {srd(SWS)}, s{sGA} offen sc1")
    stamp(9)
PCHK = at(OPT['p_chk'], f2_check, OPT['p_chk'] + 8)
def o_clear():
    a("v_mov_b64 v[24:25], -1\nv_mov_b64 v[26:27], -1")
    box['clr'] = a(f"buffer_store_dwordx4 v[24:27], v{vL16}, {srd(SWS)}, s{sOO} offen sc1")
at(OPT['p_clr'], o_clear, OPT['p_clr'] + 8)
def o_flag(): a(f"s_mov_b64 exec, 1\nbuffer_store_dword v{vONE}, v{vZ}, {srd(SWS)}, s{sF3W} offen sc1\ns_mov_b64 exec, -1")
at(32 * B2 + 12, o_flag, 32 * B2 + 40)
def f3_load():
    box['f3'] = a(f"s_mov_b64 exec, 3\nbuffer_load_dwordx4 {vr(F2D,4)}, v{vL16}, {srd(SWS)}, s{sF3R} offen sc1")
    a("s_mov_b64 exec, -1")
at(OPT['p_f3'], f3_load, OPT['p_f3'] + 8)
def f3_check():
    a(f"s_cmp_lg_u32 s{sW}, 0\ns_cbranch_scc1 L_s4skip")
    vd = a.vm_done
    a.wait(box['f3'])
    a.vm_done = vd
    test = f"v_min3_u32 v{F2D}, v{F2D}, v{F2D+1}, v{F2D+2}\nv_min_u32 v{F2D}, v{F2D}, v{F2D+3}\nv_cmp_ne_u32 vcc, 1, v{F2D}"
    a(f"s_mov_b64 exec, 3\n{test}\ns_cbranch_vccnz L_s4retry\nL_s4done:\ns_mov_b64 exec, -1\nL_s4skip:")
    cold.append(f"""
    L_s4retry:
    s_mov_b32 s{sF2}, 0
    L_s4poll:
    buffer_load_dwordx4 {vr(F2D,4)}, v{vL16}, {srd(SWS)}, s{sF3R} offen sc1
    s_add_u32 s{sF2}, s{sF2}, 1
    s_waitcnt vmcnt(0)
    {test}
    s_cbranch_vccz L_s4done
    s_sleep 4
    s_cmp_lt_u32 s{sF2}, {SPIN}
    s_cbranch_scc1 L_s4poll
    s_branch L_s4done
    """)
D0, DE = OPT['d0'], OPT['dend']
allsl = [32 * t + o for t in range(D0, DE) for o in (8, 14, 24, 30)]
assert len(allsl) >= 56
slots = [allsl[(i * len(allsl)) // 56] for i in range(56)]
for u in range(14):
    rp = slots[0] - 16 if u == 0 else slots[4 * u - 2] + 1
    lim = slots[4 * u] - 9
    p = at(rp, lambda u=u: w_read(u, 0), lim - 3); at(p + 1, lambda u=u: w_read(u, 1), lim)
    for k in range(4): mf[slots[4 * u + k]] = (lambda u=u, k=k: d_mfma(u, k))
for u in range(18):
    pw = OPT['p_fill'] + OPT['p_fills'] * u if u < 4 else slots[4 * (u - 4)] + 1
    p = at(pw, lambda u=u: w_load_a(u), pw + 8); p = at(p + 1, lambda u=u: w_load_b(u), p + 8)
    if u < 3:
        ph = PCHK + 1 + OPT.get('p_hs', 13) * u
        p = at(ph, lambda u=u: h_load_a(u), ph + 4); at(p + 1, lambda u=u: h_load_b(u), p + 5)
    if 4 <= u < 15:
        p = at(p + 1, lambda u=u: h_load_a(u - 1), p + 8); at(p + 1, lambda u=u: h_load_b(u - 1), p + 8)
for lo, hi, fr in ((0, B1P, (OPT.get('la1', 30), OPT.get('la2', 70), OPT.get('la3', 94))), (B1P, 32 * B2, (OPT.get('lb1', 35), OPT.get('lb2', 80), OPT.get('lb3', 96))),
                   (32 * B2, 32 * NT, (OPT.get('lc1', 60), OPT.get('lc2', 87), OPT.get('lc3', 96)))):
    for k in range(3): at(lo + ((hi - lo) * fr[k]) // 100, lambda k=k: a(f"s_setprio {2-k}"))

def merge_addr():
    a(f"""
    s_mul_i32 s{sT[0]}, s{sW}, 2304
    s_add_u32 s{sT[0]}, s{sT[0]}, {MERGE}
    s_xor_b32 s{sT[1]}, s{sW}, 1
    s_mul_i32 s{sT[1]}, s{sT[1]}, 2304
    s_add_u32 s{sT[1]}, s{sT[1]}, {MERGE}
    v_add_u32 v{t0}, s{sT[0]}, v{vL16}
    v_add_u32 v{t1}, s{sT[1]}, v{vL16}
    v_lshl_add_u32 v{t2}, v{L}, 2, s{sT[0]}
    v_lshl_add_u32 v{t3}, v{L}, 2, s{sT[1]}
    s_mov_b32 s{sT[6]}, {fbits(2.0**-60):#x}
    s_mov_b32 s{sT[7]}, {fbits(2.0**60) - fbits(2.0**-60):#x}
    """)
at(32 * NT - 11, merge_addr)
at(32 * NT - 8, lambda: a(f"ds_write_b128 v{t0}, {vr(OA,4)}\nds_write_b128 v{t0}, {vr(OA+4,4)} offset:1024\nds_write_b32 v{t2}, v{OA+8} offset:2048"))

a("s_setprio 3")
tK = rdK(0); tV = rdV(None, 0)
a.wait(tK)
a(qk(SA, QA))
for t in range(NT):
    if t == B2:
        a.wait(kvtok[7], box['clr']); a("s_barrier\ns_setprio 3"); stamp(0)
    nx = t + 1 if t + 1 < NT else None
    for ph, (S, So, O, Oo, Qo) in enumerate(((SA, SB, OA, OB, QB), (SB, SA, OB, OA, QA))):
        for e in range(16):
            pos = 32 * t + 16 * ph + e
            def own(after):
                global tV, tK
                if ph == 0 and (e, after) == (EV, EVA):
                    if t == 0: a.wait(tV)
                    tV = rdV(t, nx if t != B1 - 1 else None)
                if ph == 0 and (e, after) == (EK, EKA) and nx and t != B1 - 1: tK = rdK(nx)
            for f in ev.pop(pos, []): f()
            own(0)
            if pos == B1P:
                a.wait(kvtok[5], box['h'], tV); a("s_barrier\ns_setprio 3"); stamp(6)
                tK = rdK(nx); tV = rdV(None, nx)
            if e == 2:
                if ph == 1: a.wait(tV, None if OPT.get('w2') else tK)
                if t > 0 or ph == 1: a(pv(Oo, V2, So + 8))
            if (e == 5 and not (t == 0 and ph == 0)) or (t == 0 and ph == 0 and e == 0):
                if ph == 1: a.wait(tK)
                if ph == 0 or nx: a(qk(So, Qo))
            if e == 11: a(pv(O, V1[t & 1], S))
            if pos in mf: mf.pop(pos)()
            own(1)
            a(f"v_exp_f32 v{S+e}, v{S+e}")
assert not mf
assert not ev, sorted(ev)
if OPT['woe']: a.wait(wtok[17])
a.wait_lg0()
a(pv(OB, V2, SB + 8))
stamp(7); stamp(0, 4)
a("s_barrier")
stamp(1, 4)
a(f"""
ds_read_b32 v{SA+8}, v{t3} offset:2048
ds_read_b128 {vr(SA,4)}, v{t1}
ds_read_b128 {vr(SA+4,4)}, v{t1} offset:1024
s_lshl_b32 s{sT[3]}, s{sW}, 13
s_xor_b32 s{sT[2]}, s{sT[3]}, 0x8000
v_add_u32 v24, s{sT[2]}, v{vL16}
v_add_u32 v26, s{sT[3]}, v{vL16}
s_waitcnt lgkmcnt(2)
v_add_f32 v{OB+8}, v{OB+8}, v{SA+8}
v_rcp_f32 v{t0}, v{OB+8}
""")
a.wait_lg0()
OS = 128
for j in range(2): a(f"v_pk_add_f32 {vr(OB+2*j,2)}, {vr(OB+2*j,2)}, {vr(SA+2*j,2)}")
a(f"v_mul_f32 v{t0}, v{t0}, v{vG}")
for j in range(2, 4): a(f"v_pk_add_f32 {vr(OB+2*j,2)}, {vr(OB+2*j,2)}, {vr(SA+2*j,2)}")
for j in range(4): a(f"v_pk_mul_f32 {vr(OB+2*j,2)}, {vr(OB+2*j,2)}, {vr(t0,2)} op_sel_hi:[1,0]")
a(f"""
v_pk_add_f32 {vr(t2,2)}, {vr(OB,2)}, {vr(OB+2,2)}
v_pk_add_f32 {vr(t0,2)}, {vr(OB+4,2)}, {vr(OB+6,2)}
v_cvt_pk_bf16_f32 v{OS}, v{OB}, v{OB+1}
v_pk_add_f32 {vr(t2,2)}, {vr(t2,2)}, {vr(t0,2)}
v_cvt_pk_bf16_f32 v{OS+1}, v{OB+2}, v{OB+3}
v_add_f32 v{t2}, v{t2}, v{t3}
v_cvt_pk_bf16_f32 v{OS+2}, v{OB+4}, v{OB+5}
v_fma_f32 v{t2}, v{t2}, 0, v{OB+8}
v_cvt_pk_bf16_f32 v{OS+3}, v{OB+6}, v{OB+7}
v_subrev_u32 v{t2}, s{sT[6]}, v{t2}
v_cmp_lt_u32 vcc, s{sT[7]}, v{t2}
""")
if OPT['force_fb']: a("s_mov_b64 vcc, -1")
a(f"""
s_cbranch_vccnz L_true_max
L_norm:
buffer_store_dwordx4 {vr(OS,4)}, v{vL16}, {srd(SWS)}, s{sOO} offen sc1
""")
stamp(8); stamp(2, 4)

OF, WOF, XT = 32, 176, 96
vO1 = 27
fill = f"""
s_and_b32 s{sT[1]}, s{sW}, 3
s_lshl_b32 s{sT[2]}, s{sT[1]}, 13
s_add_u32 s{sT[2]}, s{sT[2]}, {RING}
v_add_u32 v28, s{sT[2]}, v{vTRP}
v_xor_b32 v29, 64, v28
v_sub_f32 v{vG}, 1.0, v{vG}
v_add_u32 v{vO1}, 0x4000, v{vL16}
s_lshr_b32 s{sT[9]}, s{sW}, 2
s_lshl1_add_u32 s{sT[0]}, s{sI}, s{sT[9]}
s_lshl3_add_u32 s{sT[0]}, s{sT[0]}, s{sT[1]}
s_lshl_b32 s{sT[0]}, s{sT[0]}, 12
s_add_u32 s{sT[0]}, s{sT[0]}, {WS_O}
s_lshl4_add_u32 s{sT[8]}, s{sT[9]}, s{sT[1]}
s_lshl_b32 s{sT[8]}, s{sT[8]}, 11
""".strip().split('\n')
for v in range(4):
    fill += f"s_add_u32 s{sT[1]}, s{sU}, {v}\ns_and_b32 s{sT[1]}, s{sT[1]}, 3\ns_lshl_b32 s{sT[1]}, s{sT[1]}, 10\ns_add_u32 s{sT[4+v]}, s{sT[0]}, s{sT[1]}".split('\n')
fill += f"""
v_and_b32 v{t0}, 31, v{L}
v_lshrrev_b32 v{t1}, 5, v{L}
v_and_b32 v{t2}, 7, v{L}
v_xor_b32 v{t1}, v{t1}, v{t2}
v_lshlrev_b32 v{t1}, 4, v{t1}
v_lshl_add_u32 v{t0}, v{t0}, 8, v{t1}
v_add_u32 v9, s{sT[3]}, v{t0}
v_xor_b32 v10, 32, v9
v_xor_b32 v11, 64, v9
v_xor_b32 v12, 0x60, v9
v_lshrrev_b32 v{t0}, 3, v{L}
v_lshlrev_b32 v{t1}, 1, v{t2}
v_xor_b32 v{t1}, v{t1}, v{t0}
v_lshlrev_b32 v{t1}, 4, v{t1}
v_lshl_add_u32 v{t1}, v{t0}, 8, v{t1}
v_add_u32 v1, s{sT[8]}, v{t1}
v_xor_b32 v2, 16, v1
s_lshl3_add_u32 s{sT[3]}, s{sI}, s{sW}
s_lshl_b32 s{sT[3]}, s{sT[3]}, 6
s_add_u32 s{sT[3]}, s{sT[3]}, s{sJ}
s_lshl_b32 s{sT[3]}, s{sT[3]}, 7
v_lshlrev_b32 v{t2}, 4, v{t2}
v_lshl_add_u32 v5, v{t0}, 10, v{t2}
s_mov_b32 s{sT[2]}, 0
""".strip().split('\n')
def wo_read(v):
    slot = ((14 + v) & 3) * 2048 + (v >> 2) * 32768
    for b in range(2):
        for e in range(2):
            a(f"ds_read_b64_tr_b16 {vr(WOF + 8*v + 4*b + 2*e, 2)}, v{28 + b} offset:{slot + e*512}")
for j in range(8):
    xw = a(f"ds_write_b128 v24, {vr(DACC+32+4*j,4)} offset:{1024*j}")
    for x in fill[len(fill) * j // 8: len(fill) * (j + 1) // 8]: a(x)
    if OPT['woe'] == 1: wo_read(j)
if OPT['woe'] == 2:
    for j in range(8): wo_read(j)
def o_loads():
    for v in range(8):
        a(f"buffer_load_dwordx4 {vr(OF + 4*v, 4)}, v{vO1 if v >> 2 else vL16}, {srd(SWS)}, s{sT[4 + (v&3)]} offen sc1")
f3_check()
stamp(3, 4)
a.wait(wtok[17], xw)
a(f"s_cmp_ge_u32 s{sW}, 4")
if not OPT['oe']: a("s_barrier"); stamp(4, 4)
a("s_setprio 1\ns_cbranch_scc1 L_ol1\ns_setprio 0")
o_loads()
a("L_ol1:")
assert not OPT['oe']
xt = [a(f"ds_read_b128 {vr(XT+4*j,4)}, v26 offset:{1024*j}") for j in range(8)]
for j in range(8):
    a.wait(xt[j])
    for i in range(2):
        r = 4 * j + 2 * i
        a(f"v_pk_add_f32 {vr(DACC+r,2)}, {vr(DACC+r,2)}, {vr(XT+r,2)}")
    for i in range(2):
        r = 4 * j + 2 * i
        a(f"v_pk_mul_f32 {vr(DACC+r,2)}, {vr(DACC+r,2)}, {vr(vG,2)} op_sel_hi:[1,0]")
stamp(5, 4)
a("s_setprio 0\ns_cbranch_scc0 L_ol2")
o_loads()
a("L_ol2:")
if not OPT['woe']:
    for j in range(8): wo_read(j)
stamp(6, 4)
a.wait_lg0()
ND = XT
a("L_s3poll:")
def wo_mfma(v, b): a(f"v_mfma_f32_32x32x16_bf16 {vr(ND+16*b,16)}, {vr(WOF+8*v+4*b,4)}, {vr(OF+4*v,4)}, {vr((DACC if v == 0 else ND)+16*b,16)}")
def chk(v):
    if v == 0: a(f"v_max_u32 v{t0}, v{OF}, v{OF+1}\nv_max_u32 v{t1}, v{OF+2}, v{OF+3}")
    else: a(f"v_max3_u32 v{t0}, v{t0}, v{OF+4*v}, v{OF+4*v+1}\nv_max3_u32 v{t1}, v{t1}, v{OF+4*v+2}, v{OF+4*v+3}")
def xsite():
    a(f"s_cmp_eq_u32 s{sT[9]}, 0\ns_cbranch_scc1 L_nox\ns_mov_b32 s{sT[9]}, 0\ns_barrier\nL_nox:")
for v in range(6):
    a(f"s_waitcnt vmcnt({7-v})")
    if v == 0: stamp(10); stamp(7, 4)
    wo_mfma(v, 0); chk(v); wo_mfma(v, 1)
    if v == OPT['xsite']: xsite()
a("s_waitcnt vmcnt(1)"); wo_mfma(6, 0); chk(6)
a("s_waitcnt vmcnt(0)"); wo_mfma(7, 0); chk(7)
a.vm_done = a.vm
wo_mfma(6, 1)
if OPT['xsite'] == 6: xsite()
a(f"v_max_u32 v{t0}, v{t0}, v{t1}\nv_cmp_eq_u32 vcc, -1, v{t0}")
wo_mfma(7, 1)
if OPT['xsite'] == 7: xsite()
a("s_cbranch_vccnz L_s3retry\nL_s3done:")
stamp(8, 4)
for b in range(2):
    if OPT['xsite'] >= 6: a("s_nop 2" if b == 0 else "s_nop 3")
    for qd in range(4): a(f"ds_write_b128 v{9+qd}, {vr(ND + 16*b + 4*qd, 4)} offset:{b*128}")
a(f"s_cmp_ge_u32 s{sW}, 4")
a.wait_lg0()
a("s_barrier")
stamp(9, 4)
RD = 176
rt = []
for p in range(4):
    for e in range(2):
        rt.append(a(f"ds_read_b128 {vr(RD + 8*p + 4*e, 4)}, v{1 + e} offset:{p*8192}"))
for p in range(1, 4):
    a.wait(rt[2 * p + 1])
    for j in range(4):
        if OPT.get('fpk', 1): a(f"v_pk_add_f32 {vr(RD+2*j,2)}, {vr(RD+2*j,2)}, {vr(RD+8*p+2*j,2)}")
        else: a(f"v_add_f32 v{RD+2*j}, v{RD+2*j}, v{RD+8*p+2*j}\nv_add_f32 v{RD+2*j+1}, v{RD+2*j+1}, v{RD+8*p+2*j+1}")
for j in range(4): a(f"v_cvt_pk_bf16_f32 v{RD+j}, v{RD+2*j}, v{RD+2*j+1}")
a(f"buffer_store_dwordx4 {vr(RD,4)}, v5, {srd(SOUT)}, s{sT[3]} offen {['', 'sc1'][OPT['outm']]}")
a("s_cbranch_scc1 L_noy\ns_barrier\nL_noy:")
stamp(10, 4)
if OPT['stamp']:
    a("s_waitcnt vmcnt(0)")
    stamp(11)
    a("s_waitcnt lgkmcnt(0)")
    a(f"s_mov_b32 s28, s{sT[2]}")
    if 'span' in OPT:
        a(f"""
        s_lshl3_add_u32 s{sT[0]}, s2, s{sW}
        s_lshl_b32 s{sT[0]}, s{sT[0]}, 3
        s_add_u32 s{sT[0]}, s{sT[0]}, {WS_STAMP}
        v_mov_b32 v1, 0
        v_mov_b32 v2, s{4+2*OPT['span']}
        v_mov_b32 v3, s30
        s_mov_b64 exec, 1
        buffer_store_dwordx2 v[2:3], v1, {srd(SWS)}, s{sT[0]} offen sc1
        s_mov_b64 exec, -1
        s_add_u32 s{sT[0]}, s2, s{sW}
        s_cmp_lg_u32 s{sT[0]}, 0
        s_cbranch_scc1 L_end
        L_pad0:
        s_memrealtime s[{sT[2]}:{sT[3]}]
        s_waitcnt lgkmcnt(0)
        s_sub_u32 s{sT[2]}, s{sT[2]}, s30
        s_cmp_lt_u32 s{sT[2]}, 4500
        s_cbranch_scc1 L_pad0
        v_mov_b32 v4, 0
        v_mov_b32 v5, -1
        s_sub_u32 s{sT[1]}, s30, 1000
        """)
        for g in range(16):
            a(f"""
            s_mov_b32 s{sT[0]}, {WS_STAMP + 1024*g}
            buffer_load_dwordx4 v[8:11], v{vL16}, {srd(SWS)}, s{sT[0]} offen sc1
            s_waitcnt vmcnt(0)
            v_subrev_u32 v8, s{sT[1]}, v8
            v_subrev_u32 v9, s{sT[1]}, v9
            v_subrev_u32 v10, s{sT[1]}, v10
            v_subrev_u32 v11, s{sT[1]}, v11
            v_max3_u32 v4, v4, v8, v10
            v_min3_u32 v5, v5, v9, v11
            """)
        a(f"s_mov_b32 s{sT[4]}, 0\ns_mov_b32 s{sT[5]}, -1")
        for i in range(64): a(f"v_readlane_b32 s{sT[6]}, v4, {i}\nv_readlane_b32 s{sT[7]}, v5, {i}\ns_nop 0\ns_max_u32 s{sT[4]}, s{sT[4]}, s{sT[6]}\ns_min_u32 s{sT[5]}, s{sT[5]}, s{sT[7]}")
        a(f"""
        s_sub_u32 s{sT[0]}, s{sT[4]}, s{sT[5]}
        s_sub_u32 s{sT[0]}, s{sT[0]}, {OPT.get('spanb', 2000)}
        s_min_u32 s{sT[0]}, s{sT[0]}, 2500
        s_mul_i32 s{sT[0]}, s{sT[0]}, 10
        s_add_u32 s{sT[0]}, s{sT[0]}, 6000
        L_pad:
        s_memrealtime s[{sT[2]}:{sT[3]}]
        s_waitcnt lgkmcnt(0)
        s_sub_u32 s{sT[2]}, s{sT[2]}, s30
        s_cmp_lt_u32 s{sT[2]}, s{sT[0]}
        s_cbranch_scc1 L_pad
        """)
    elif 'crit' in OPT:
        a(f"""
        s_cmp_lg_u32 s{sW}, 7
        s_cbranch_scc1 L_end
        s_lshl_b32 s{sT[0]}, s2, 6
        s_add_u32 s{sT[0]}, s{sT[0]}, {WS_STAMP}
        v_mov_b32 v1, 0
        """)
        for k in range(14): a(f"v_mov_b32 v2, s{4+2*k}\nbuffer_store_dword v2, v1, {srd(SWS)}, s{sT[0]} offen offset:{4*k} sc1")
        a(f"""
        s_cmp_lg_u32 s2, 0
        s_cbranch_scc1 L_end
        L_pad0:
        s_memrealtime s[{sT[2]}:{sT[3]}]
        s_waitcnt lgkmcnt(0)
        s_sub_u32 s{sT[2]}, s{sT[2]}, s30
        s_cmp_lt_u32 s{sT[2]}, 5000
        s_cbranch_scc1 L_pad0
        v_lshlrev_b32 v1, 6, v{L}
        s_mov_b32 s{sT[4]}, 0
        s_mov_b32 s{sT[5]}, -1
        """)
        for g in range(4):
            a(f"""
            s_mov_b32 s{sT[0]}, {WS_STAMP + 4096*g}
            buffer_load_dword v2, v1, {srd(SWS)}, s{sT[0]} offen offset:{4*OPT['crit']} sc1
            buffer_load_dword v3, v1, {srd(SWS)}, s{sT[0]} offen offset:52 sc1
            s_waitcnt vmcnt(0)
            v_subrev_u32 v2, s30, v2
            v_add_u32 v2, 1000, v2
            v_lshlrev_b32 v2, 8, v2
            v_add_u32 v2, v2, v{L}
            v_add_u32 v2, {64*g}, v2
            v_subrev_u32 v3, s30, v3
            v_add_u32 v3, 1000, v3
            s_nop 1
            """)
            for i in range(64): a(f"v_readlane_b32 s{sT[6]}, v2, {i}\nv_readlane_b32 s{sT[7]}, v3, {i}\ns_nop 0\ns_max_u32 s{sT[4]}, s{sT[4]}, s{sT[6]}\ns_min_u32 s{sT[5]}, s{sT[5]}, s{sT[7]}")
        a(f"""
        s_and_b32 s{sT[4]}, s{sT[4]}, 255
        s_lshl_b32 s{sT[0]}, s{sT[4]}, 6
        s_add_u32 s{sT[0]}, s{sT[0]}, {WS_STAMP}
        v_lshlrev_b32 v1, 2, v{L}
        buffer_load_dword v2, v1, {srd(SWS)}, s{sT[0]} offen sc1
        s_add_u32 s{sT[5]}, s{sT[5]}, s30
        s_sub_u32 s{sT[5]}, s{sT[5]}, 1000
        s_waitcnt vmcnt(0)
        v_subrev_u32 v2, s{sT[5]}, v2
        s_nop 1
        v_writelane_b32 v2, s{sT[4]}, 14
        s_mov_b64 exec, 0x7fff
        buffer_store_dword v2, v1, {srd(SDBG)}, 0 offen offset:4
        """)
    elif 'dk' in OPT:
        a(f"""
        s_cmp_lg_u32 s{sW}, {OPT.get('dw', 7)}
        s_cbranch_scc1 L_end
        s_lshl_b32 s{sT[0]}, s2, 2
        s_add_u32 s{sT[0]}, s{sT[0]}, {WS_STAMP}
        v_mov_b32 v2, s{4+2*OPT['dk']}
        v_mov_b32 v1, 0
        buffer_store_dword v2, v1, {srd(SWS)}, s{sT[0]} offen sc1
        s_cmp_lg_u32 s2, 0
        s_cbranch_scc1 L_end
        L_pad0:
        s_memrealtime s[{sT[2]}:{sT[3]}]
        s_waitcnt lgkmcnt(0)
        s_sub_u32 s{sT[2]}, s{sT[2]}, s30
        s_cmp_lt_u32 s{sT[2]}, 5000
        s_cbranch_scc1 L_pad0
        v_mul_u32_u24 v1, {4*OPT['dstride']}, v{L}
        s_mov_b32 s{sT[0]}, {WS_STAMP + 4*OPT['dbase']}
        buffer_load_dword v2, v1, {srd(SWS)}, s{sT[0]} offen sc1
        s_waitcnt vmcnt(0)
        v_subrev_u32 v2, s30, v2
        v_add_u32 v2, 100000, v2
        s_mov_b32 s{sT[4]}, 0
        s_mov_b32 s{sT[5]}, -1
        """)
        for i in range(OPT['dn']): a(f"v_readlane_b32 s{sT[6]}, v2, {i}\ns_nop 1\ns_max_u32 s{sT[4]}, s{sT[4]}, s{sT[6]}\ns_min_u32 s{sT[5]}, s{sT[5]}, s{sT[6]}")
        a(f"""
        s_sub_u32 s{sT[0]}, s{sT[4]}, s{sT[5]}
        s_min_u32 s{sT[0]}, s{sT[0]}, 2000
        s_mul_i32 s{sT[0]}, s{sT[0]}, 10
        s_add_u32 s{sT[0]}, s{sT[0]}, 6000
        L_pad:
        s_memrealtime s[{sT[2]}:{sT[3]}]
        s_waitcnt lgkmcnt(0)
        s_sub_u32 s{sT[2]}, s{sT[2]}, s30
        s_cmp_lt_u32 s{sT[2]}, s{sT[0]}
        s_cbranch_scc1 L_pad
        """)
    elif 'pad' in OPT:
        K = OPT['pad']
        a(f"s_and_b32 s{sT[0]}, s2, {OPT.get('padm', 0)}\ns_cmp_lg_u32 s{sT[0]}, {OPT.get('padv', 0)}\ns_cbranch_scc1 L_end")
        if K >= 0: a(f"s_sub_u32 s{sT[0]}, s{4+2*K}, s{4+2*OPT.get('padb', 13)}\ns_mul_i32 s{sT[0]}, s{sT[0]}, {OPT.get('padx', 4)}")
        else: a(f"s_mov_b32 s{sT[0]}, 0")
        a(f"""
        s_add_u32 s{sT[0]}, s{sT[0]}, 6000
        L_pad:
        s_memrealtime s[{sT[2]}:{sT[3]}]
        s_waitcnt lgkmcnt(0)
        s_sub_u32 s{sT[2]}, s{sT[2]}, s30
        s_cmp_lt_u32 s{sT[2]}, s{sT[0]}
        s_cbranch_scc1 L_pad
        """)
    else:
        a(f"s_lshl3_add_u32 s{sT[0]}, s2, s{sW}\ns_lshl_b32 s{sT[0]}, s{sT[0]}, 6\ns_add_u32 s{sT[0]}, s{sT[0]}, {WS_STAMP}")
        a("v_mov_b32 v1, 0\ns_mov_b64 exec, 1")
        for k in range(14):
            a(f"v_mov_b32 v2, s{4+2*k}\nbuffer_store_dword v2, v1, {srd(SWS)}, s{sT[0]} offen offset:{4*k}")
a("L_end:\ns_endpgm")
a("L_s3retry:")
o_loads()
a(f"""
s_add_u32 s{sT[2]}, s{sT[2]}, 1
s_cmp_lt_u32 s{sT[2]}, {SPIN}
s_nop 7
s_cbranch_scc1 L_s3poll
s_waitcnt vmcnt(0)
s_branch L_s3done
""")

for P in 'KVPSC':
    a(f".p2align 6\nL_path{P}:")
    a.forget()
    proj_path(P)
    a("s_branch L_join")
for x in cold: a(x)

CM = SB
a(f"""
L_true_max:
s_waitcnt vmcnt(0) lgkmcnt(0)
v_mov_b32 v{t0}, 0xff800000
s_mov_b32 s{sT[0]}, {WS_KV}
L_tm1:
buffer_load_dwordx4 {vr(KF,4)}, v{vL16}, {srd(SWS)}, s{sT[0]} offen sc1
s_waitcnt vmcnt(0)
{qk(SA, QB)}
""")
for j in range(8): a(f"v_max3_f32 v{t0}, v{t0}, v{SA+2*j}, v{SA+2*j+1}")
a(f"""
s_add_u32 s{sT[0]}, s{sT[0]}, 2048
s_cmp_lt_u32 s{sT[0]}, {WS_KV + 64*2048}
s_cbranch_scc1 L_tm1
v_mov_b32 v{t1}, v{t0}
v_permlane32_swap_b32 v{t0}, v{t1}
v_max_f32 v{t0}, v{t0}, v{t1}
""")
for r in range(16): a(f"v_sub_f32 v{CM+r}, 0, v{t0}\nv_mov_b32 v{OB+r}, 0")
a(f"""
s_mov_b32 s{sT[0]}, {WS_KV}
L_tm2:
buffer_load_dwordx4 {vr(KF,4)}, v{vL16}, {srd(SWS)}, s{sT[0]} offen sc1
s_mov_b64 exec, s[{sT[8]}:{sT[9]}]
buffer_load_dwordx4 {vr(V1[0],4)}, v{vPV}, {srd(SWS)}, s{sT[0]} offen offset:1024 sc1
buffer_load_dwordx4 {vr(V2,4)}, v{vPV}, {srd(SWS)}, s{sT[0]} offen offset:1536 sc1
s_mov_b64 exec, -1
s_waitcnt vmcnt(0)
v_mfma_f32_32x32x16_bf16 {vr(SA,16)}, {vr(KF,4)}, {vr(QB,4)}, {vr(CM,16)}
""")
for e in range(16): a(f"v_exp_f32 v{SA+e}, v{SA+e}")
a(pv(OB, V1[0], SA)); a(pv(OB, V2, SA + 8))
a(f"""
s_add_u32 s{sT[0]}, s{sT[0]}, 2048
s_cmp_lt_u32 s{sT[0]}, {WS_KV + 64*2048}
s_nop 7
s_cbranch_scc1 L_tm2
s_nop 7
v_rcp_f32 v{t0}, v{OB+8}
s_nop 0
v_mul_f32 v{t0}, v{t0}, v{vG}
""")
for j in range(4): a(f"v_pk_mul_f32 {vr(OB+2*j,2)}, {vr(OB+2*j,2)}, {vr(t0,2)} op_sel_hi:[1,0]")
for j in range(4): a(f"v_cvt_pk_bf16_f32 v{OS+j}, v{OB+2*j}, v{OB+2*j+1}")
for j in range(4): a(f"v_min_u32 v{OS+j}, -2, v{OS+j}")
a("s_branch L_norm\nL_last:")

bad = a.check_branches()
assert not bad, bad

hdr = open(f'cdna_kernels/{NAME}.s.ref').read().split('\n')
head = [l for l in hdr if l.startswith(';') and '@launch' not in l]
body = a.text()
if OPT.get('stm'):
    import re
    body = re.sub(r'(buffer_store_dwordx4 .*s\[52:55\].*) sc1', lambda m: m.group(1) + [' sc1', ' sc1 nt', ' sc0 sc1', ' sc0 sc1 nt'][OPT['stm']], body)
out = "\n".join(head) + f"\n; @launch grid=(256,1,1) block=(512,1,1) lds={LDS_BYTES}\n"
out += f""".amdgcn_target "amdgcn-amd-amdhsa--gfx950"
.text
.globl {NAME}_kernel
.p2align 8
.type {NAME}_kernel,@function
{NAME}_kernel:
{body}
.section .rodata,"a"
.p2align 6
.amdhsa_kernel {NAME}_kernel
  .amdhsa_next_free_vgpr 256
  .amdhsa_next_free_sgpr 102
  .amdhsa_accum_offset 256
  .amdhsa_group_segment_fixed_size 0
  .amdhsa_kernarg_size 104
  .amdhsa_user_sgpr_count 2
  .amdhsa_user_sgpr_kernarg_segment_ptr 1
  .amdhsa_system_sgpr_workgroup_id_x 1
.end_amdhsa_kernel
"""
open(sys.argv[1], 'w').write(out)
print("instructions:", sum(1 for i in a.ins if i.ws), "auto nops:", a.nnop, file=sys.stderr)
```

```python
import sys, math, struct
sys.path.insert(0, 'gen')
from asmlib import Asm

NAME = 'gated_mix__grouped_kv_mqa__geglu_ffn__prompt'
OPT = dict(stamp=0, grp=0, force_fb=0, qflag=11, s1=16, b2=22, outm=1, ofast=0,
           p_kv=20, p_kvs=40, p_st=1, p_sts=40, p_fill=160, p_fills=70, p_kv2=390, p_f2=440, p_chk=470, d0=16, dend=32,
           late=0, pk2=1, nearly=1, h0w=24, h1w=30, clw=22, na=1, gend=30, dwt=0, qbar=0, cpf=1, qmode=0, qf=11, exs=1, spf=1, pb=2, pbq0=0, rq=1, rg=1, r1=1, qfirst=0, vlate=0, jearly=5, xsite=5, woe=0, oe=0, tlb=0, rotm=2, rots=12, dxs=3, wt=1, mpf=21, pal=1, qs=2, qe=0, wt2=0, mv64=0, gb9=0, chk=1, rota=1, drot=42, kvr=4, oG=576, oK=384, oP=896, oS=448, hst=0, oz=0, eb0=0, lb1=50, lb3=92, lc1=70, jlate=0, s1slp=0, s1w=30, lad=1, gb14=1, gbar=0)
for x in sys.argv[2:]:
    k, v = x.split('='); OPT[k] = int(v)

OPT['oV'] = OPT['oK']; OPT['oC'] = min(OPT['oG'], 448)
def fbits(x): return struct.unpack('<I', struct.pack('<f', x))[0]

WS_KV, WS_G, WS_F1, WS_Q, WS_H, WS_STAMP = 0, 0x20000, 0x30000, 0x300000, 0x500000, 0xC00000
WS_O = WS_Q
WS_F2 = WS_F1 + 8192
WS_SIZE = 0x1000000
CLEAR_WG = 128
WR, EX = 65536, 131072
NSLOT, HALF, RING = 24, 49152, 98304
MERGE = 65536
LDS_BYTES = 163840
SPIN = 0x400000
SX, SWG, SWU, SWQ, SEX, SWS, SDBG, SWD, SWO, SOUT = 32, 36, 40, 44, 48, 52, 56, 60, 64, 92
sW, sTI, sQ, sU, sROT, sXO, sWOF, sMX, sMW, sI, sJ, sROT0 = range(68, 80)
sT = list(range(80, 90))
sEXW, sEXO = 90, 91
sC1 = 96
sF2, sRH, sRING, sOO = 98, 99, 100, 101
sHO, sH1 = 3, 0
sKVM, sKVO, sQA, sGA = sT[3], sT[5], 1, sROT0
sF2R, sF2W = sC1 + 1, sF2
sR = [sRH, 44, 45, 47]
def srd(n): return f"s[{n}:{n+3}]"
def vr(b, n): return f"v[{b}:{b+n-1}]"

vXS0, vXS1, vWS = 1, 2, 3
vST = 4
vXR = [5, 6, 7, 8]
vWR = [9, 10]
vES, vER, vSA = 11, [12, 13], 30
vL16, vLANE = 14, 15
vC0 = 16
vZ = 17
vGT = 18
t0, t1, t2, t3 = 20, 21, 22, 23
vS0, vWS2 = 28, 27
vPV, vPD, vTRP = 29, 0, 31
F = [32, 48]
ACC = [64, 96]
XF = 128
ACCE, WE = 96, 100
GW = 147456
L = vLANE
QA, QB, KF, V2, V1 = 128, 132, 136, 140, [144, 148]
vG, vIDX, vAK, vAV, vKVS = 152, 154, 24, 25, 26
vDR0, vDR1, vH0, vH1 = 159, 160, 161, 162
vDS, vDS1, vF2 = vPD, 158, 163
F2D = 164
vONE = 168
vM = [169, 170, 171, 172]
OA, OB, SA, SB = 176, 192, 208, 224
WF = [240, 248]
HF = [32, 40, 48, 56]
DACC = 64

a = Asm()
CLK = 's_memtime' if OPT['stamp'] == 2 else 's_memrealtime'
def stamp(k, grp=0):
    if grp != OPT['grp'] and k != 11: return
    if OPT['stamp']: a(f"{CLK} s[{4+2*k}:{5+2*k}]")
def mk_srd(n, p, size):
    a(f"s_mov_b32 s{n}, s{p}\ns_mov_b32 s{n+1}, s{p+1}\ns_mov_b32 s{n+2}, {size}\ns_mov_b32 s{n+3}, 0x20000")

PG = 3584
C0 = -2.0 * math.sqrt(2.0 / math.pi) * math.log2(math.e)
C1 = C0 * 0.044715
QS = 0.25 * math.log2(math.e)

a("; Code paths start at fixed offsets inside 4 KiB pages; the alignment padding in front of them is never executed.")
a("s_cmp_ge_u32 s2, 256\ns_cbranch_scc1 L_end")
a("s_load_dwordx16 s[4:19], s[0:1], 0\ns_load_dwordx8 s[20:27], s[0:1], 64\ns_load_dwordx2 s[28:29], s[0:1], 96")
if OPT['stamp']: a(f"{CLK} s[30:31]")
def code_prefetch():
    a(f"""
    s_getpc_b64 s[{sT[8]}:{sT[9]}]
    L_pc:
    s_andn2_b32 s{sT[7]}, s2, 7
    s_lshl_b32 s{sT[7]}, s{sT[7]}, 8
    v_lshl_add_u32 v{t3}, v0, 2, s{sT[7]}
    v_min_u32 v{t3}, L_last-L_pc-4, v{t3}
    s_mov_b32 exec_lo, 1
    s_mov_b32 exec_hi, 1
    global_load_dword v{vS0}, v{t3}, s[{sT[8]}:{sT[9]}]
    s_mov_b64 exec, -1
    """)
if OPT['cpf'] == 1: code_prefetch()
CH1, CH2 = [0] * 16, [0] * 16
for q_ in range(4):
    if OPT['chk']:
        slow = [r for r in range(7) if (7 * q_ + r) % 4 == 3]; order = slow + [r for r in range(7) if r not in slow]
        CH2[4*q_+3], CH2[4*q_+2], CH2[4*q_+1], CH2[4*q_], CH1[4*q_+1], CH1[4*q_+2], CH1[4*q_+3] = order
    else:
        for u_ in range(4): CH2[4*q_+u_] = 2 * u_; CH1[4*q_+u_] = max(2 * u_ - 1, 0)
def chunk_of(tab, dst, tmp):
    v = sum(x << (4 * i) for i, x in enumerate(tab))
    return f"""s_mov_b32 s{tmp}, {v & 0xffffffff:#x}
s_mov_b32 s{tmp+1}, {v >> 32:#x}
s_lshl2_add_u32 s{dst}, s{sQ}, s{sU}
s_lshl_b32 s{dst}, s{dst}, 2
s_lshr_b64 s[{tmp}:{tmp+1}], s[{tmp}:{tmp+1}], s{dst}
s_and_b32 s{tmp}, s{tmp}, 7
s_mul_i32 s{dst}, s{sQ}, 7
s_add_u32 s{dst}, s{dst}, s{tmp}"""
ROTC = {8: f"s_lshl1_add_u32 s{sROT0}, s{sU}, s{sJ}\ns_and_b32 s{sROT0}, s{sROT0}, 7",
        4: f"s_add_u32 s{sROT0}, s{sU}, s{sJ}\ns_and_b32 s{sROT0}, s{sROT0}, 3\ns_lshl_b32 s{sROT0}, s{sROT0}, 1",
        2: f"s_add_u32 s{sROT0}, s{sU}, s{sJ}\ns_and_b32 s{sROT0}, s{sROT0}, 1\ns_lshl_b32 s{sROT0}, s{sROT0}, 2",
        3: f"s_add_u32 s{sROT0}, s{sU}, s{sJ}\ns_lshl_b32 s{sROT0}, s{sROT0}, 1\ns_lshr_b32 s{sROT0}, 0x124924, s{sROT0}\ns_and_b32 s{sROT0}, s{sROT0}, 3\ns_mul_i32 s{sROT0}, s{sROT0}, 3",
        1: f"s_mov_b32 s{sROT0}, 0"}[OPT['rotm']]
if OPT['rots']:
    ROTC += f"\ns_bfe_u32 s{sQ}, s2, 0x20001\ns_mul_i32 s{sT[1]}, s{sQ}, {OPT['rots'] // 10}\ns_add_u32 s{sROT0}, s{sROT0}, s{sT[1]}\ns_mul_i32 s{sT[1]}, s{sT[2]}, {OPT['rots'] % 10}\ns_add_u32 s{sROT0}, s{sROT0}, s{sT[1]}\n" + (f"s_add_u32 s{sROT0}, s{sROT0}, {OPT['rota']}\n" if OPT['rota'] else "") + f"s_and_b32 s{sROT0}, s{sROT0}, 7"
a(f"""
v_readfirstlane_b32 s{sW}, v0
v_lshrrev_b32 v{t1}, 4, v0
v_lshrrev_b32 v{t0}, 3, v0
v_xor_b32 v{t1}, v0, v{t1}
s_lshr_b32 s{sU}, s2, 6
s_bfe_u32 s{sJ}, s2, 0x30003
v_and_b32 v{t1}, 7, v{t1}
s_and_b32 s{sT[2]}, s2, 1
s_lshl3_add_u32 s{sTI}, s{sT[2]}, s{sJ}
v_lshlrev_b32 v{t1}, 4, v{t1}
{ROTC}
v_lshl_add_u32 v{vXS0}, v{t0}, 10, v{t1}
s_lshl_b32 s{sT[0]}, s{sTI}, 17
s_lshl_b32 s{sXO}, s{sROT0}, 7
s_add_u32 s{sXO}, s{sXO}, s{sT[0]}
s_lshl_b32 s{sMW}, s{sW}, 4
s_mov_b32 m0, s{sMW}
s_mov_b32 s{SX+2}, {2048*1024}
s_mov_b32 s{SX+3}, 0x20000
""")
a(f"""
s_bfe_u32 s{sT[1]}, s{sW}, 0x10006
s_lshl_b32 s{sT[1]}, s{sT[1]}, 2
v_and_or_b32 v{t1}, v{t0}, 2, s{sT[1]}
s_bfe_u32 s{sQ}, s2, 0x20001
v_xor_b32 v{t1}, v0, v{t1}
{chunk_of(CH1, sT[1], sT[4])}
v_and_b32 v{t1}, 7, v{t1}
s_lshl_b32 s{sT[2]}, s{sQ}, 1
s_movk_i32 s{sT[3]}, {PG}
v_lshlrev_b32 v{vWS2}, 4, v{t1}
s_mov_b32 s{SWG+3}, 0x20000
s_mov_b32 s{SWU+3}, 0x20000
s_cmp_eq_u32 s{sU}, 0
s_cselect_b32 s{sT[1]}, s{sT[2]}, s{sT[1]}
s_cselect_b32 s{sT[3]}, 1024, s{sT[3]}
s_cselect_b32 s{sT[2]}, 128, 0
v_mad_u32_u24 v{vWS}, v{t0}, s{sT[3]}, v{vWS2}
s_lshl_b32 s{SWG+2}, s{sT[3]}, 9
s_mov_b32 s{SWU+2}, s{SWG+2}
s_mul_i32 s{sWOF}, s{sROT0}, s{sT[3]}
s_lshl1_add_u32 s{sWOF}, s{sT[1]}, s{sWOF}
s_lshl_b32 s{sWOF}, s{sWOF}, 6
s_cmp_eq_u32 s{sU}, 0
{CLK + ' s[84:85]' if OPT['grp'] == 5 else ''}
s_waitcnt lgkmcnt(0)
{CLK + ' s[86:87]' if OPT['grp'] == 5 else ''}
s_mov_b64 s[{SX}:{SX+1}], s[4:5]
s_cselect_b64 s[{SWG}:{SWG+1}], s[6:7], s[16:17]
s_cselect_b64 s[{SWU}:{SWU+1}], s[6:7], s[18:19]
""")
def first_stage(x0, x1, xstep, wstep):
    a(f"""
    buffer_load_dwordx4 v{x0}, {srd(SX)}, s{sXO} offen lds
    s_add_u32 m0, s{sMW}, {WR}
    s_add_u32 s{sXO}, s{sXO}, {xstep}
    buffer_load_dwordx4 v{vWS}, {srd(SWG)}, s{sWOF} offen lds
    s_add_u32 m0, s{sMW}, {WR + 8192}
    s_add_u32 s{sWOF}, s{sWOF}, {wstep}
    buffer_load_dwordx4 v{vWS}, {srd(SWU)}, s{sWOF} offen lds
    s_add_u32 m0, s{sMW}, 8192
    s_nop 0
    buffer_load_dwordx4 v{x1}, {srd(SX)}, s{sXO} offen lds
    """)
if OPT['qfirst']: a("s_cbranch_scc0 L_late")
first_stage(vXS0, vXS0, 65536, f"s{sT[2]}")
if OPT['wt']:
    assert not OPT['qfirst']
    a(f"""
    s_lshr_b32 s{sT[4]}, s{sW}, 7
    s_lshr_b32 s{sT[5]}, s{sJ}, 1
    s_cmp_lg_u32 s{sT[4]}, s{sT[5]}
    s_cbranch_scc1 L_nowt
    s_add_u32 s{sT[4]}, s{sROT0}, 1
    s_and_b32 s{sT[4]}, s{sT[4]}, 7
    s_mul_i32 s{sT[4]}, s{sT[4]}, s{sT[3]}
    s_lshl1_add_u32 s{sT[4]}, s{sT[1]}, s{sT[4]}
    s_lshl_b32 s{sT[4]}, s{sT[4]}, 6
    buffer_load_dword v32, v{vWS}, {srd(SWG)}, s{sT[4]} offen
    s_add_u32 s{sT[4]}, s{sT[4]}, s{sT[2]}
    buffer_load_dword v33, v{vWS}, {srd(SWU)}, s{sT[4]} offen
    L_nowt:
    """)
if OPT['qfirst']: a("L_late:")
if OPT['grp'] == 5: a(f"{CLK} s[88:89]\ns_waitcnt lgkmcnt(0)\ns_mov_b32 s4, s84\ns_mov_b32 s14, s86\ns_mov_b32 s5, s88")
a(f"""
s_lshr_b32 s{sW}, s{sW}, 6
v_add_u32 v{vXS0}, s{sT[0]}, v{vXS0}
v_add_u32 v{vXS1}, 0x10000, v{vXS0}
s_sub_u32 s{sXO}, s{sXO}, s{sT[0]}
s_mov_b32 s{sH1}, s{sT[1]}
s_lshl_b32 s{sT[1]}, s{sT[1]}, 7
s_sub_u32 s{sWOF}, s{sWOF}, s{sT[1]}
v_add_u32 v{vWS}, s{sT[1]}, v{vWS}
s_movk_i32 s{sT[3]}, {PG}
v_mad_u32_u24 v{vWS2}, v{t0}, s{sT[3]}, v{vWS2}
{chunk_of(CH2, sHO, sT[4])}
s_lshl_b32 s{sT[1]}, s{sHO}, 7
v_add_u32 v{vWS2}, s{sT[1]}, v{vWS2}
v_and_b32 v{L}, 63, v0
v_lshlrev_b32 v{vL16}, 4, v{L}
s_and_b32 s{sT[0]}, s2, 7
s_lshl2_add_u32 s{sI}, s{sT[0]}, s{sU}
s_add_u32 s{sROT}, s{sROT0}, 1
s_and_b32 s{sROT}, s{sROT}, 7
s_lshl_b32 s{sMX}, s{sW}, 11
""")
def late_loads(k):
    if OPT['qfirst'] != k: return
    a(f"s_cmp_eq_u32 s{sU}, 0\ns_cbranch_scc1 L_early")
    first_stage(vXS0, vXS1, 0, 0)
    a("L_early:")
late_loads(1)
def dispatch():
    a(f"""
    s_lshr_b32 s{sT[1]}, s{sW}, 2
    s_lshl1_add_u32 s{sT[0]}, s{sU}, s{sT[1]}
    s_lshr_b32 s{sT[1]}, s{sQ}, 1
    s_lshl1_add_u32 s{sT[0]}, s{sT[0]}, s{sT[1]}
    s_cmp_eq_u32 s{sT[0]}, 0
    s_cbranch_scc1 L_pathK
    s_cmp_eq_u32 s{sT[0]}, 1
    s_cbranch_scc1 L_pathV
    s_cmp_lt_u32 s{sT[0]}, 4
    s_cbranch_scc1 L_pathP
    s_cmp_eq_u32 s{sT[0]}, 4
    s_cbranch_scc1 L_pathS
    s_add_u32 s{sT[0]}, s{sMW}, s2
    s_cmp_eq_u32 s{sT[0]}, {CLEAR_WG + 1024}
    s_cbranch_scc1 L_pathC
    """)

PATH = ['G']
def wslot(sig):
    if sig < 8: return WR + (sig & 3) * 16384
    if sig >= 14: return EX + (sig - 14) * 16384
    return (0 if sig & 1 else WR) + ((sig - 8) >> 1) * 16384
def waddr(sig, b):
    return {0: vXR[b], 1: vWR[b], 2: vXR[2 + b]}[wslot(sig) >> 16]

def dma_ops(sig, path):
    p = sig >> 3
    isq = (path in 'KVP' and p == 0)
    pitch = 1024 if isq else PG
    sa, sb = (SWQ, SWQ) if isq else (SWG, SWU)
    xs, ws = (sig & 3) * 16384, wslot(sig)
    pre = f"s_mul_i32 s{sWOF}, s{sROT}, {64*pitch}\n"
    mid = f"s_add_u32 s{sWOF}, s{sWOF}, 128\n" if isq else ""
    inc, wrap = f"s_add_u32 s{sROT}, s{sROT}, 1\n", f"s_and_b32 s{sROT}, s{sROT}, 7\n"
    vw = vWS2 if p == 1 else vWS
    wa = f"s_add_u32 m0, s{sMW}, {ws}\n{{}}buffer_load_dwordx4 v{vw}, {srd(sa)}, s{sWOF} offen lds"
    wb = f"s_add_u32 m0, s{sMW}, {ws+8192}\n{{}}buffer_load_dwordx4 v{vw}, {srd(sb)}, s{sWOF} offen lds"
    if p == 0:
        return [f"s_add_u32 m0, s{sMW}, {xs}\ns_lshl_b32 s{sXO}, s{sROT}, 7\nbuffer_load_dwordx4 v{vXS0}, {srd(SX)}, s{sXO} offen lds",
                wa.format(pre), wb.format(mid + inc),
                f"s_add_u32 m0, s{sMW}, {xs+8192}\n{wrap}buffer_load_dwordx4 v{vXS1}, {srd(SX)}, s{sXO} offen lds"]
    return [wa.format(pre), wb.format(inc + wrap)]

DROT = {8: f"s_mul_i32 s{sRH}, s{sJ}, 7\ns_lshr_b32 s{sRH}, s{sRH}, 2\ns_mul_i32 s{sT[1]}, s{sU}, 7\ns_lshr_b32 s{sT[1]}, s{sT[1]}, 1\ns_add_u32 s{sRH}, s{sRH}, s{sT[1]}",
        4: f"s_add_u32 s{sRH}, s{sJ}, s{sU}\ns_and_b32 s{sRH}, s{sRH}, 3\ns_mul_i32 s{sRH}, s{sRH}, 7\ns_lshr_b32 s{sRH}, s{sRH}, 1",
        2: f"s_add_u32 s{sRH}, s{sJ}, s{sU}\ns_and_b32 s{sRH}, s{sRH}, 1\ns_mul_i32 s{sRH}, s{sRH}, 7",
        42: f"s_lshl1_add_u32 s{sRH}, s{sJ}, s{sU}\ns_and_b32 s{sRH}, s{sRH}, 3\ns_mul_i32 s{sRH}, s{sRH}, 7\ns_lshr_b32 s{sRH}, s{sRH}, 1"}[OPT['drot']]
def setup_common():
    mk_srd(SWS, 28, WS_SIZE)
    if OPT.get('wso'): a(f"s_add_u32 s{SWS}, s{SWS}, {OPT['wso'] << 20}\ns_addc_u32 s{SWS+1}, s{SWS+1}, 0")
    mk_srd(SDBG, 26, 256); mk_srd(SWD, 20, 1792 * 1024); mk_srd(SWO, 12, 512 * 1024); mk_srd(SOUT, 24, 2048 * 1024)
    late_loads(2)
    a(f"""
    s_and_b32 s{sT[0]}, s{sW}, 3
    s_lshr_b32 s{sT[1]}, s{sW}, 2
    s_xor_b32 s{sT[5]}, s{sT[1]}, s{sQ}
    s_and_b32 s{sT[5]}, s{sT[5]}, 1
    s_lshl1_add_u32 s{sT[0]}, s{sT[0]}, s{sT[5]}
    s_lshl_b32 s{sT[0]}, s{sT[0]}, 11
    v_and_b32 v{t0}, 15, v{L}
    v_bfe_u32 v{t1}, v{L}, 1, 3
    v_lshrrev_b32 v{t2}, 4, v{L}
    v_xor_b32 v{t1}, v{t1}, v{t2}
    v_lshlrev_b32 v{t1}, 4, v{t1}
    v_lshl_add_u32 v{t1}, v{t0}, 7, v{t1}
    v_add_u32 v{vXR[0]}, s{sT[0]}, v{t1}
    v_xor_b32 v{vXR[1]}, 0x800, v{vXR[0]}
    v_xor_b32 v{vXR[2]}, 64, v{vXR[0]}
    v_xor_b32 v{vXR[3]}, 64, v{vXR[1]}
    s_lshl_b32 s{sT[2]}, s{sT[5]}, 8
    v_xor_b32 v{vST}, s{sT[2]}, v{vL16}
    """)
    a(f"""
    v_lshrrev_b32 v{t3}, 5, v{L}
    v_lshlrev_b32 v{t0}, 4, v{t0}
    v_lshl_add_u32 v{vPV}, v{t3}, 8, v{t0}
    """)
    late_loads(3)
    a(f"""
    v_bfe_u32 v{t0}, v{L}, 2, 2
    v_lshl_add_u32 v{t1}, v{t2}, 3, v{t0}
    v_lshlrev_b32 v{t1}, 7, v{t1}
    v_bfe_u32 v{t2}, v{L}, 3, 2
    s_lshl_b32 s{sT[1]}, s{sT[1]}, 1
    v_xor_b32 v{t2}, s{sT[1]}, v{t2}
    v_lshl_add_u32 v{t1}, v{t2}, 5, v{t1}
    v_and_b32 v{t2}, 3, v{L}
    v_lshl_add_u32 v{t1}, v{t2}, 3, v{t1}
    v_add_u32 v{vWR[0]}, {WR}, v{t1}
    v_xor_b32 v{vWR[1]}, 32, v{vWR[0]}
    """)
    a(f"""
    v_lshl_add_u32 v{t3}, v{t3}, 3, v{t0}
    v_lshlrev_b32 v{t3}, 7, v{t3}
    v_lshrrev_b32 v{t0}, 1, v{t0}
    v_lshl_add_u32 v{t3}, v{t0}, 6, v{t3}
    v_lshl_add_u32 v{t3}, v{t2}, 3, v{t3}
    v_bfe_u32 v{t2}, v{L}, 4, 1
    v_lshl_add_u32 v{vTRP}, v{t2}, 5, v{t3}
    v_lshlrev_b32 v{t2}, 2, v{t2}
    v_and_b32 v{t1}, 7, v{L}
    v_xor_b32 v{t1}, v{t1}, v{t2}
    v_lshlrev_b32 v{t1}, 4, v{t1}
    v_lshrrev_b32 v{t0}, 3, v{L}
    v_lshl_add_u32 v{t0}, v{t0}, 10, v{t1}
    s_lshl_b32 s{sT[0]}, s{sJ}, 7
    v_add_u32 v{vPD}, s{sT[0]}, v{t0}
    v_mov_b32 v{vZ}, 0
    v_mov_b32 v{vC0}, {fbits(C0):#x}
    s_mov_b32 s{sC1}, {fbits(C1):#x}
    """)
    late_loads(4)
    a(f"""
    s_lshr_b32 s{sT[3]}, s{sW}, 2
    s_and_b32 s{sT[1]}, s{sW}, 3
    s_lshl2_add_u32 s{sT[0]}, s{sTI}, s{sT[1]}
    s_lshl_b32 s{sT[8]}, s{sT[0]}, 5
    s_and_b32 s{sT[2]}, s{sT[0]}, 15
    s_lshr_b32 s{sT[0]}, s{sT[0]}, 4
    s_mul_i32 s{sT[0]}, s{sT[0]}, 112
    s_lshl1_add_u32 s{sT[0]}, s{sT[3]}, s{sT[0]}
    s_lshl4_add_u32 s{sT[0]}, s{sT[0]}, s{sT[2]}
    s_lshl_b32 s{sT[0]}, s{sT[0]}, 10
    s_add_u32 s{sT[0]}, s{sT[0]}, {WS_H}
    s_lshl_b32 s{sHO}, s{sHO}, 16
    s_add_u32 s{sHO}, s{sHO}, s{sT[0]}
    s_lshl_b32 s{sH1}, s{sH1}, 16
    s_add_u32 s{sH1}, s{sH1}, s{sT[0]}
    s_lshl3_add_u32 s{sT[4]}, s{sQ}, s{sT[8]}
    s_lshl1_add_u32 s{sT[4]}, s{sT[3]}, s{sT[4]}
    s_lshl_b32 s{sT[4]}, s{sT[4]}, 10
    s_lshl2_add_u32 s{sF2}, s{sTI}, s{sQ}
    s_lshl_b32 s{sF2}, s{sF2}, 5
    s_add_u32 s{sF2}, s{sF2}, s{sU}
    s_lshl_b32 s{sF2}, s{sF2}, 2
    s_add_u32 s{sF2}, s{sF2}, {WS_F2}
    s_lshl1_add_u32 s{sT[1]}, s{sI}, s{sT[3]}
    s_lshl3_add_u32 s{sT[2]}, s{sT[1]}, s{sJ}
    s_and_b32 s{sT[1]}, s{sW}, 3
    s_lshl2_add_u32 s{sT[2]}, s{sT[2]}, s{sT[1]}
    s_lshl_b32 s{sOO}, s{sT[2]}, 10
    s_lshl_b32 s{sRING}, s{sW}, 13
    s_add_u32 s{sRING}, s{sRING}, {RING}
    {DROT}
    s_and_b32 s{sT[1]}, s2, {OPT['dxs']}
    s_add_u32 s{sRH}, s{sRH}, s{sT[1]}
    s_cmp_ge_u32 s{sRH}, 14
    s_cselect_b32 s{sT[1]}, 14, 0
    s_sub_u32 s{sRH}, s{sRH}, s{sT[1]}
    s_lshl_b32 s{sRH}, s{sRH}, 14
    s_mul_i32 s{sT[1]}, s{sW}, {14*16384}
    s_add_u32 s{SWD}, s{SWD}, s{sT[1]}
    s_addc_u32 s{SWD+1}, s{SWD+1}, 0
    s_sub_u32 s{SWD+2}, s{SWD+2}, s{sT[1]}
    s_lshl_b32 s{sT[1]}, s{sW}, 16
    s_add_u32 s{SWO}, s{SWO}, s{sT[1]}
    s_addc_u32 s{SWO+1}, s{SWO+1}, 0
    s_sub_u32 s{SWO+2}, s{SWO+2}, s{sT[1]}
    """)

def setup_path(P):
    if P in 'GC' and OPT['mpf']:
        a(f"""
        s_cmp_eq_u32 s{sU}, 2
        s_cselect_b64 s[{SEX}:{SEX+1}], s[{SWD}:{SWD+1}], s[{SWO}:{SWO+1}]
        s_cselect_b32 s{SEX+2}, s{SWD+2}, s{SWO+2}
        s_cselect_b32 s{sT[0]}, 28, 8
        s_mov_b32 s{SEX+3}, 0x20000
        s_cmp_eq_u32 s{sU}, 1
        s_cselect_b32 s{SEX+2}, 0, s{SEX+2}
        s_and_b32 s{sT[1]}, s2, 63
        s_mul_i32 s{sT[1]}, s{sT[1]}, s{sT[0]}
        s_sub_u32 s{sT[0]}, s{sT[0]}, 1
        v_min_u32 v{vES}, s{sT[0]}, v{L}
        v_add_lshl_u32 v{vES}, v{vES}, s{sT[1]}, 7
        """)
    if P in 'KV':
        a(f"""
        v_lshrrev_b32 v{t2}, 4, v{L}
        v_and_b32 v{t0}, 15, v{L}
        v_lshlrev_b32 v{t1}, 3, v{t0}
        v_lshl_add_u32 v{t1}, v{t2}, 8, v{t1}
        v_and_b32 v{t3}, 1, v{t2}
        v_lshl_add_u32 v{t1}, v{t3}, 7, v{t1}
        v_add_u32 v{vER[0]}, {EX}, v{t1}
        v_xor_b32 v{vER[1]}, 0x80, v{vER[0]}
        v_lshlrev_b32 v{t1}, 7, v{t3}
        v_xor_b32 v{vES}, v{t1}, v{vL16}
        s_add_u32 s{sEXO}, s{sW}, s{sROT0}
        s_and_b32 s{sEXO}, s{sEXO}, 7
        s_lshl_b32 s{sEXO}, s{sEXO}, 11
        s_lshr_b32 s{sEXW}, s{sT[4]}, 15
        v_lshrrev_b32 v{t2}, 1, v{t2}
        """)
        if P == 'K':
            a(f"""
            s_lshl3_add_u32 s{sEXW}, s{sEXW}, s{sT[5]}
            s_lshl_b32 s{sEXW}, s{sEXW}, 8
            v_lshlrev_b32 v{t2}, 9, v{t2}
            """)
        else:
            a(f"""
            s_lshl2_add_u32 s{sEXW}, s{sEXW}, s{sT[5]}
            s_lshl_b32 s{sEXW}, s{sEXW}, 9
            s_add_u32 s{sEXW}, s{sEXW}, 1024
            v_lshlrev_b32 v{t2}, 8, v{t2}
            v_and_b32 v{t0}, 3, v{L}
            v_bfe_u32 v{t1}, v{L}, 2, 1
            v_lshl_add_u32 v{t0}, v{t1}, 3, v{t0}
            v_bfe_u32 v{t1}, v{L}, 3, 1
            v_lshl_add_u32 v{t0}, v{t1}, 2, v{t0}
            """)
        a(f"""
        v_lshl_add_u32 v{t2}, v{t0}, 4, v{t2}
        v_lshl_add_u32 v{vSA}, v{t3}, 3, v{t2}
        """)
    if P == 'P':
        a(f"""
        v_bfe_u32 v{t1}, v{L}, 4, 1
        v_lshlrev_b32 v{t1}, 7, v{t1}
        v_xor_b32 v{vES}, v{t1}, v{vL16}
        s_add_u32 s{sEXO}, s{sW}, s{sROT0}
        s_and_b32 s{sEXO}, s{sEXO}, 7
        s_lshl_b32 s{sEXO}, s{sEXO}, 11
        """)
    if P == 'S':
        a(f"""
        s_lshl_b32 s{sEXO}, s{sROT0}, 7
        v_add_u32 v{vES}, s{sEXO}, v{vL16}
        v_and_b32 v{vES}, 0x3ff, v{vES}
        v_and_b32 v{t0}, 48, v{L}
        v_add_u32 v{vER[0]}, {GW}, v{t0}
        v_and_b32 v{t0}, 15, v{L}
        v_lshlrev_b32 v{vSA}, 2, v{t0}
        s_lshr_b32 s{sEXW}, s{sT[4]}, 15
        s_lshl1_add_u32 s{sEXW}, s{sEXW}, s{sT[5]}
        s_lshl_b32 s{sEXW}, s{sEXW}, 6
        s_add_u32 s{sEXW}, s{sEXW}, {WS_G}
        """)

def x_reads(sig, j):
    return [f"ds_read_b128 {vr(XF + 16*sig + 8*j + 4*tq, 4)}, v{vXR[2*j+tq]} offset:{(sig & 3) * 16384}" for tq in range(2)]
def w_reads(sig, j, i):
    b, part = i >> 1, i & 1
    off = (wslot(sig) & 0xffff) + part * 8192 + j * 4096
    return [f"ds_read_b64_tr_b16 {vr(F[j] + 4*i + 2*e, 2)}, v{waddr(sig, b)} offset:{off + e*512}" for e in range(2)]
def e_steps(c):
    c0 = 2 * OPT['exs']
    if PATH[0] in 'KVS': return [2 * (c - c0), 2 * (c - c0) + 1] if c0 <= c < 2 * c0 else ([c] if 2 * c0 <= c < 16 else [])
    return []
def e_buf(c, i): return WE + 16 + 4 * i if (PATH[0] == 'S' and c == 15) else WE + 8 * (c & 1) + 4 * i
def e_reads(c):
    if PATH[0] == 'S':
        cs = [] if c == 15 else ([14, 15] if c == 14 else [c])
        return [f"ds_read_b128 {vr(e_buf(x, i), 4)}, v{vER[0]} offset:{k*64}" for x in cs for i, k in enumerate(e_steps(x))]
    return [f"ds_read_b64_tr_b16 {vr(e_buf(c, i) + 2*e, 2)}, v{vER[e]} offset:{k*1024}" for i, k in enumerate(e_steps(c)) for e in range(2)]
def e_mfmas(c):
    out = []
    for i, k in enumerate(e_steps(c)):
        acc, w, x = vr(ACCE, 4), vr(e_buf(c, i), 4), vr(XF + 8 * k, 4)
        A, B = (x, w) if PATH[0] == 'V' else (w, x)
        out.append(f"v_mfma_f32_16x16x32_bf16 {acc}, {A}, {B}, {'0' if k == 0 else acc}")
    return out
def mfmas(sig, j):
    out = []
    for i in range(4):
        for tq in range(2):
            d = vr(ACC[sig >> 3] + 8 * i + 4 * tq, 4)
            c = "0" if ((sig & 7) == 0 and j == 0) else d
            out.append(f"v_mfma_f32_16x16x32_bf16 {d}, {vr(F[j] + 4*i, 4)}, {vr(XF + 16*(sig&7) + 8*j + 4*tq, 4)}, {c}")
    return out

def gelu_pair(base, j, T=vGT, pk=False):
    G = vr(base + 2 * j, 2); U = vr(base + 8 + 2 * j, 2); TT = vr(T, 2)
    g0, g1, u0, u1 = base + 2 * j, base + 2 * j + 1, base + 8 + 2 * j, base + 9 + 2 * j
    if pk:
        return [f"v_pk_mul_f32 {TT}, {G}, {G}",
                f"v_pk_fma_f32 {TT}, {TT}, s[{sC1}:{sC1+1}], {vr(vC0,2)} op_sel_hi:[1,0,0]",
                f"v_pk_mul_f32 {TT}, {TT}, {G}",
                f"v_exp_f32 v{T}, v{T}", f"v_exp_f32 v{T+1}, v{T+1}",
                f"v_pk_mul_f32 {G}, {G}, {U}",
                f"v_pk_add_f32 {TT}, {TT}, 1.0 op_sel_hi:[1,0]",
                f"v_rcp_f32 v{T}, v{T}", f"v_rcp_f32 v{T+1}, v{T+1}",
                f"v_pk_mul_f32 {G}, {G}, {TT}",
                f"v_cvt_pk_bf16_f32 v{base+j}, v{g0}, v{g1}"]
    return [f"v_mul_f32 v{T}, v{g0}, v{g0}", f"v_mul_f32 v{T+1}, v{g1}, v{g1}",
            f"v_fma_f32 v{T}, v{T}, s{sC1}, v{vC0}", f"v_fma_f32 v{T+1}, v{T+1}, s{sC1}, v{vC0}",
            f"v_mul_f32 v{T}, v{T}, v{g0}", f"v_mul_f32 v{T+1}, v{T+1}, v{g1}",
            f"v_exp_f32 v{T}, v{T}", f"v_exp_f32 v{T+1}, v{T+1}",
            f"v_mul_f32 v{g0}, v{g0}, v{u0}", f"v_add_f32 v{T}, 1.0, v{T}", f"v_add_f32 v{T+1}, 1.0, v{T+1}",
            f"v_rcp_f32 v{T}, v{T}", f"v_rcp_f32 v{T+1}, v{T+1}",
            f"v_mul_f32 v{g1}, v{g1}, v{u1}",
            f"v_mul_f32 v{g0}, v{g0}, v{T}", f"v_mul_f32 v{g1}, v{g1}, v{T+1}",
            f"v_cvt_pk_bf16_f32 v{base+j}, v{g0}, v{g1}"]
def to_frag(base):
    return [f"v_permlane16_swap_b32 v{base}, v{base+2}", f"v_permlane16_swap_b32 v{base+1}, v{base+3}"]

def cost(x):
    c = 0
    for l in x.strip().split('\n'):
        l = l.strip()
        if not l or l.startswith(';') or l.endswith(':'): continue
        c += 8 if l.startswith(('v_exp', 'v_rcp')) else (OPT.get('vmc', 16) if l.startswith('buffer_') else 4)
    return c

kvtok = {}
def kv_step(m):
    slot = (4 * m % NSLOT) * 2048
    if m == 0: x = f"s_mov_b32 m0, s{sKVM}\ns_nop 0\n"
    else: x = f"s_add_u32 s{sKVO}, s{sKVO}, 8192\ns_add_u32 m0, s{sKVM}, {slot}\ns_and_b32 s{sKVO}, s{sKVO}, 0xffff\n"
    return [x + f"buffer_load_dwordx4 v{vKVS}, {srd(SWS)}, s{sKVO} offen sc1 lds", f"buffer_load_dwordx4 v{vKVS}, {srd(SWS)}, s{sKVO} offen offset:1024 sc1 lds"]
KV_FIRST = 2
def first_loads():
    return [f"buffer_load_dwordx4 {vr(QA,4)}, v{vL16}, {srd(SWS)}, s{sQA} offen sc1\ns_xor_b32 s{sQA}, s{sQA}, 1024"] + kv_step(0) + \
           [f"buffer_load_dwordx4 {vr(QB,4)}, v{vL16}, {srd(SWS)}, s{sQA} offen sc1"] + kv_step(1)

KVR = {0: f"s_lshr_b32 s{sT[7]}, s2, 3", 1: f"s_mov_b32 s{sT[7]}, 0", 2: f"s_and_b32 s{sT[7]}, s2, 16", 3: f"s_lshl_b32 s{sT[7]}, s2, 3", 4: f"s_lshl_b32 s{sT[7]}, s2, 2"}[OPT['kvr']]
def setup_early():
    a(f"""
    s_lshr_b32 s{sT[0]}, s{sW}, 2
    s_lshl_b32 s{sT[1]}, s{sT[0]}, 16
    v_add_u32 v{vKVS}, s{sT[1]}, v{vL16}
    s_and_b32 s{sT[1]}, s{sW}, 1
    s_mul_i32 s{sT[1]}, s{sT[1]}, {HALF}
    v_add_u32 v{vAK}, s{sT[1]}, v{vL16}
    v_add_u32 v{vAV}, s{sT[1]}, v{vPV}
    s_mul_i32 s{sT[1]}, s{sT[0]}, {HALF}
    s_and_b32 s{sT[6]}, s{sW}, 3
    s_lshl_b32 s{sT[7]}, s{sT[6]}, 11
    s_add_u32 s{sKVM}, s{sT[7]}, s{sT[1]}
    {KVR}
    s_add_u32 s{sT[6]}, s{sT[6]}, s{sT[7]}
    s_and_b32 s{sT[6]}, s{sT[6]}, 31
    s_lshl_b32 s{sKVO}, s{sT[6]}, 11
    s_add_u32 s{sQA}, s{sOO}, {WS_Q}
    s_xor_b32 s{sQA}, s{sQA}, 1024
    s_lshl1_add_u32 s{sGA}, s{sI}, s{sT[0]}
    s_lshl_b32 s{sGA}, s{sGA}, 7
    s_add_u32 s{sGA}, s{sGA}, {WS_G}
    s_lshr_b32 s{sT[6]}, s{sI}, 3
    s_lshl3_add_u32 s{sT[6]}, s{sT[6]}, s{sW}
    s_mul_i32 s{sT[6]}, s{sT[6]}, {14*16}
    s_and_b32 s{sT[7]}, s{sI}, 7
    s_lshl1_add_u32 s{sT[7]}, s{sT[7]}, s{sT[0]}
    s_add_u32 s{sT[6]}, s{sT[6]}, s{sT[7]}
    s_lshl_b32 s{sT[6]}, s{sT[6]}, 10
    s_add_u32 s{sT[9]}, s{sT[6]}, {WS_H}
    s_lshr_b32 s{sF2R}, s{sI}, 1
    s_lshl_b32 s{sF2R}, s{sF2R}, 9
    s_add_u32 s{sF2R}, s{sF2R}, {WS_F2}
    s_lshl_b32 s{sT[1]}, s{sW}, 24
    s_add_u32 s{sF2W}, s{sF2}, s{sT[1]}
    s_mul_i32 s{sT[6]}, s{sW}, 2304
    s_add_u32 s{sT[6]}, s{sT[6]}, {MERGE}
    s_xor_b32 s{sT[7]}, s{sW}, 1
    s_mul_i32 s{sT[7]}, s{sT[7]}, 2304
    s_add_u32 s{sT[7]}, s{sT[7]}, {MERGE}
    """)
def setup_queue(late=False):
    q = []
    def add(st, txt):
        for l in txt.strip().split('\n'): q.append((st, l.strip().replace('|', '\n')))
    add(11, f"""
    v_and_b32 v{vG}, 31, v{L}
    v_lshlrev_b32 v{vG}, 2, v{vG}
    v_mov_b32 v{vIDX}, 0xdddddddd
    v_mov_b32 v{V2+1}, 0x3f803f80
    s_mov_b32 vcc_lo, 0x110000|s_mov_b32 vcc_hi, 0x110000|v_cndmask_b32 v{V2}, 0, v{V2+1}, vcc
    """)
    if OPT['mv64']:
        add(11, f"v_mov_b32 v{V2+1}, v{V2}")
        for r in range(V2 + 2, V2 + 12, 2): add(11, f"v_mov_b64 {vr(r,2)}, {vr(V2,2)}")
    else:
        for r in range(V2 + 1, V2 + 12): add(11, f"v_mov_b32 v{r}, v{V2}")
    add(12, f"""
    v_add_u32 v{vDR0}, s{sRING}, v{vTRP}
    v_xor_b32 v{vDR1}, 64, v{vDR0}
    v_add_u32 v{vDS1}, 7168, v{vDS}
    v_add_u32 v{vH0}, s{sT[9]}, v{vL16}
    v_xor_b32 v{vH1}, 0x400, v{vH0}
    v_lshlrev_b32 v{vF2}, 7, v{L}
    v_mov_b32 v{vONE}, 1
    v_add_u32 v{vM[0]}, s{sT[6]}, v{vL16}
    v_lshl_add_u32 v{vM[2]}, v{L}, 2, s{sT[6]}
    v_add_u32 v{vM[1]}, s{sT[7]}, v{vL16}
    v_lshl_add_u32 v{vM[3]}, v{L}, 2, s{sT[7]}
    """)
    for st, O in ((13, OA), (14, OB)):
        if OPT['oz']:
            add(st, f"buffer_load_dwordx4 {vr(O,4)}, v{vL16}, {srd(SDBG)}, 0 offen offset:256\nbuffer_load_dwordx4 {vr(O+4,4)}, v{vL16}, {srd(SDBG)}, 0 offen offset:256\nv_mov_b32 v{O+8}, 0")
        elif OPT['mv64']:
            for r in range(0, 10, 2): add(st, f"v_mov_b64 {vr(O+r,2)}, 0")
        else:
            for r in range(9): add(st, f"v_mov_b32 v{O+r}, 0")
    if OPT['vlate']:
        cut = [i for i, x in enumerate(q) if x[1].startswith(f"v_and_b32 v{vG}, 31")][0]
        if late: return [x[1] for x in q[cut:]]
        return q[:cut]
    return [] if late else q

cold = []
def s0_check(P):
    a(f"v_cmp_eq_u32 vcc, 0, v{vS0}\ns_cbranch_vccnz L_s0retry{P}\nL_s0done{P}:")
    cold.append(f"""
    L_s0retry{P}:
    s_mov_b32 s{sT[1]}, 0
    L_s0poll{P}:
    buffer_load_dword v{vS0}, v{vZ}, {srd(SDBG)}, 0 offen sc1
    s_add_u32 s{sT[1]}, s{sT[1]}, 1
    s_waitcnt vmcnt(0)
    v_cmp_eq_u32 vcc, 0, v{vS0}
    s_cbranch_vccz L_s0done{P}
    s_cmp_lt_u32 s{sT[1]}, {SPIN}
    s_cbranch_scc1 L_s0poll{P}
    s_branch L_s0done{P}
    """)
def s1_issue(P):
    a(f"s_cmp_lg_u32 s{sW}, 0\ns_cbranch_scc1 L_nopoll0{P}")
    if P in 'GSC': s0_check(P)
    a(f"""
    s_mov_b32 s{sT[1]}, {WS_F1}
    v_lshlrev_b32 v{t1}, 7, v{L}
    buffer_load_dword v{t0}, v{t1}, {srd(SWS)}, s{sT[1]} offen sc1
    L_nopoll0{P}:
    """)
    a.vm -= 1
def s1_check(P):
    a(f"""
    s_cmp_lg_u32 s{sW}, 0
    s_cbranch_scc1 L_s1done{P}
    s_mov_b32 s{sT[0]}, 0
    L_s1poll{P}:
    s_waitcnt vmcnt(0)
    v_cmp_ne_u32 vcc, 1, v{t0}
    s_cbranch_vccz L_s1done{P}
    {'s_sleep ' + str(OPT['s1slp']) if OPT['s1slp'] else ''}
    s_mov_b64 exec, vcc
    buffer_load_dword v{t0}, v{t1}, {srd(SWS)}, s{sT[1]} offen sc1
    s_mov_b64 exec, -1
    s_add_u32 s{sT[0]}, s{sT[0]}, 1
    s_cmp_lt_u32 s{sT[0]}, {SPIN}
    s_cbranch_scc1 L_s1poll{P}
    s_waitcnt vmcnt(0)
    L_s1done{P}:
    """)
    a.vm -= 1

def proj_path(P):
    tok = {}
    PATH[0] = P
    S1 = OPT['s1']
    sched = {s: [s + 2] for s in range(6)}
    ISQ = P in 'KVP'
    PB = OPT['pbq0'] if ISQ else OPT['pb']
    QF = OPT['qf']
    sched.update({6: [8, 9], 7: [10, 11], 8: [12, 13], 9: [14, 15]}); cover = {8: 9, 10: 11, 12: 15}
    if ISQ and OPT['qmode'] == 0:
        del sched[8], sched[9]
        if OPT['qs'] == 0: sched.update({10: [12, 13], 11: [14, 15]}); cover = {8: 9, 10: 11, 12: 13, 14: 15}
        elif OPT['qs'] == 1: sched.update({10: [12], 11: [13], 12: [14], 13: [15]}); cover = {8: 9, 10: 11, 12: 12, 13: 13, 14: 14, 15: 15}
        elif OPT['qs'] == 2: sched.update({10: [12, 13], 12: [14, 15]}); cover = {8: 9, 10: 11, 12: 13, 14: 15}
        elif OPT['qs'] == 3: sched.update({9: [12], 10: [13], 11: [14], 12: [15]}); cover = {8: 9, 10: 11, 12: 13, 14: 15}
    bars = set(range(8)) | set(cover) | {S1}
    if OPT['gb14']: bars |= {14}
    if OPT['gb9'] and not ISQ: bars |= {9}; cover.update({8: 8, 9: 9})
    if OPT['gbar'] and not ISQ: bars |= set(range(8, 16))
    if ISQ: bars |= {QF} | ({9} if OPT['qmode'] else set()) | (set(range(10, 16)) if OPT['qbar'] else set())
    def dma_groups(sg):
        d = dma_ops(sg, P)
        if ISQ and sg == OPT['exs']:
            d.insert(1, f"""
            s_add_u32 m0, s{sMX}, {EX}
            s_nop 0
            buffer_load_dwordx4 v{vES}, {srd(SEX)}, s{sEXO} offen lds
            buffer_load_dwordx4 v{vES}, {srd(SEX)}, s{sEXO} offen offset:1024 lds
            """)
        if P == 'S' and sg == OPT['exs']:
            d.insert(1, f"s_mov_b32 m0, {GW}\ns_nop 0\nbuffer_load_dwordx4 v{vES}, {srd(SEX)}, 0 offen lds")
        return [(x, sg if k == len(d) - 1 else None) for k, x in enumerate(d)]
    def emit(it):
        if callable(it): return it()
        a(it[0])
        if it[1] is not None: tok[it[1]] = a.lastvm()
    tok[0] = a.lastvm()
    if ISQ: mk_srd(SWQ, 6, 512 * 1024)
    if not OPT['spf']:
        for it in dma_groups(1): emit(it)
    if ISQ: mk_srd(SWG, 16, 512 * PG); mk_srd(SWU, 18, 512 * PG)
    if P in 'KVS': mk_srd(SEX, {'K': 8, 'V': 10, 'S': 22}[P], 1024 if P == 'S' else 16384)
    if P == 'P': a(f"s_cmp_lt_u32 s{sQ}, 2\ns_cselect_b64 s[{SEX}:{SEX+1}], s[8:9], s[10:11]\ns_mov_b32 s{SEX+2}, 16384\ns_mov_b32 s{SEX+3}, 0x20000")
    if OPT['wt2']:
        a(f"""
        s_bitcmp1_b32 s{sJ}, 1
        s_cselect_b64 s[28:29], s[18:19], s[16:17]
        s_lshr_b32 s{sT[0]}, s{sJ}, 2
        s_add_u32 s{sT[0]}, s{sT[0]}, s{sROT0}
        s_and_b32 s{sT[0]}, s{sT[0]}, 7
        s_mul_i32 s{sT[0]}, s{sT[0]}, {64*PG}
        s_add_u32 s28, s28, s{sT[0]}
        s_addc_u32 s29, s29, 0
        """)
    setup_path(P)
    if OPT['grp'] == 5: a("s_mov_b32 s6, s14\ns_mov_b32 s8, s5")
    stamp(3, 5)
    if OPT['spf']:
        for it in dma_groups(1): emit(it)
    stamp(4, 5)
    setup_early()
    if P == 'C':
        ctok = a(f"v_lshlrev_b32 v{t0}, 7, v{L}\ns_mov_b32 s{sT[1]}, {WS_F1}\nbuffer_store_dword v{vZ}, v{t0}, {srd(SWS)}, s{sT[1]} offen sc1")
    win = {c: [] for c in range(33)}
    box = {}; front = {}; pre8 = []; lvl = [3]
    def usable(c):
        return c % 2 == 0 or ((c + 1) // 2) not in bars
    def nxt(c):
        while not usable(c): c += 1
        return c
    if not ISQ:
        gq = []
        for b in range(2):
            for j in range(4): gq += gelu_pair(ACC[0] + 16 * b, j)
            gq += to_frag(ACC[0] + 16 * b)
            if b == 0: n0 = len(gq)
        npre = 17 * (PB - 1) if PB else 0
        pre8 += [(x, None) for j in range(max(PB - 1, 0)) for x in gelu_pair(ACC[0], j, pk=OPT.get('pbk', 0))]
        gq = gq[npre:]; n0 -= npre
        ws = [c for c in range(16, OPT['gend'] + 1) if usable(c)]
        ndma = {16: 2, 17: 2, 18: 4} if 9 not in bars else {16: 4, 18: 4}
        tot = len(gq) + OPT['dwt'] * 8
        done = 0; accw = 0
        for k, c in enumerate(ws):
            accw += OPT['dwt'] * ndma.get(c, 0)
            upto = max(done, tot * (k + 1) // len(ws) - accw)
            win[c] += [(x, None) for x in gq[done:upto]]
            if done < n0 <= upto: c0 = c
            done = upto
        assert done == len(gq)
        for b in range(OPT['nearly']):
            c = nxt(max(OPT[f'h{b}w'], c0 if b == 0 else ws[-1]))
            win[c].append((f"s_add_u32 s{sT[2]}, s{sH1}, {16384*b}\nbuffer_store_dwordx4 {vr(ACC[0]+16*b,4)}, v{vST}, {srd(SWS)}, s{sT[2]} offen sc1", None))
    else:
        qa = [f"s_add_u32 s{sT[8]}, s{sT[4]}, {WS_Q + 4096}\ns_add_u32 s{sT[4]}, s{sT[4]}, {WS_Q}"]
        if P == 'K': qa += [f"v_mul_f32 v{ACCE+r}, {fbits(QS):#x}, v{ACCE+r}" for r in range(4)]
        sts = []
        if P in 'KV':
            qa += [f"v_cvt_pk_bf16_f32 v{vGT}, v{ACCE}, v{ACCE+1}", f"v_cvt_pk_bf16_f32 v{vGT+1}, v{ACCE+2}, v{ACCE+3}"]
            sts.append(f"buffer_store_dwordx2 {vr(vGT,2)}, v{vSA}, {srd(SWS)}, s{sEXW} offen sc1")
        if P == 'P':
            sts.append(f"s_and_b32 s{sT[0]}, s{sF2}, 0xffff80\nv_lshlrev_b32 v{t2}, 2, v{L}\ns_mov_b32 exec_hi, 0\nbuffer_store_dword v{vZ}, v{t2}, {srd(SWS)}, s{sT[0]} offen sc1\ns_mov_b32 exec_hi, -1")
        def qcv(i): return [f"v_cvt_pk_bf16_f32 v{ACC[0]+8*i+j}, v{ACC[0]+8*i+2*j}, v{ACC[0]+8*i+2*j+1}" for j in range(4)]
        def qst(i): return to_frag(ACC[0] + 8 * i) + [f"v_and_b32 v{ACC[0]+8*i}, -2, v{ACC[0]+8*i}\nbuffer_store_dwordx4 {vr(ACC[0]+8*i,4)}, v{vST}, {srd(SWS)}, s{sT[8 if i & 1 else 4]} offen offset:{1024*(i>>1)} sc1"]
        mark = [lambda: box.update(q=a.lastvm())]
        T = lambda l: [(x, None) for x in l]
        if OPT['qmode'] == 0 and PB:
            pre8 += T(qa + qcv(0) + qcv(1) + qcv(2) + qcv(3) + [x for i in range(4) for x in qst(i)[:2]])
            if OPT.get('pbq'): pre8 += T(sts + [qst(i)[2] for i in range(4)]) + mark
            else: win[16] += T(sts + [qst(i)[2] for i in range(2)]); win[17] += T([qst(i)[2] for i in range(2, 4)]) + mark
        elif OPT['qmode'] == 0:
            if OPT['qe'] == 0: win[16] += T(qa + sts + qcv(0) + qcv(1) + qst(0) + qst(1)); win[17] += T(qcv(2) + qcv(3) + qst(2) + qst(3)) + mark
            elif OPT['qe'] == 1:
                win[16] += T(qa + sts + qcv(0) + qst(0)); win[17] += T(qcv(1) + qcv(2) + qst(1) + qst(2)); front[18] = T(qcv(3) + qst(3)) + mark
            else:
                win[16] += T(qa + qcv(0) + sts + qcv(1) + qst(0)); win[17] += T(qst(1) + qcv(2) + qcv(3) + qst(2)); front[18] = T(qst(3)) + mark
        elif OPT['qmode'] == 1:
            win[16] += T(qa + qcv(0) + qcv(1)); win[18] += T(sts + qst(0) + qcv(2)); win[20] += T(qcv(3) + qst(1) + qst(2) + qst(3)) + mark
        else:
            win[16] += T(qa + qcv(0) + qcv(1) + qcv(2) + qcv(3)); win[18] += T(sts + qst(0) + qst(1) + qst(2) + qst(3)) + mark
        def qflag():
            assert a.vm_done > box['s0']
            if P != 'P': s0_check(P)
            a(f"""
            s_lshl4_add_u32 s{sT[0]}, s{sQ}, s{sTI}
            s_lshl_b32 s{sT[0]}, s{sT[0]}, 7
            s_add_u32 s{sT[0]}, s{sT[0]}, {WS_F1}
            s_lshl_b32 s{sT[1]}, s{sW}, 24
            s_add_u32 s{sT[0]}, s{sT[0]}, s{sT[1]}
            v_mov_b32 v{t1}, 1
            s_mov_b64 exec, 1
            buffer_store_dword v{t1}, v{vZ}, {srd(SWS)}, s{sT[0]} offen sc1
            s_mov_b64 exec, -1
            """)
        if P != 'P': box['flag'] = qflag
    if P in 'GC' and OPT['mpf']:
        win[OPT['mpf']].insert(0, (f"buffer_load_dword v{vES}, v{vES}, {srd(SEX)}, 0 offen", None))
    if P == 'S':
        gs = [(x, None) for x in (f"v_mul_f32 v{t2}, {fbits(-math.log2(math.e)):#x}, v{ACCE}", f"v_exp_f32 v{t2}, v{t2}", f"v_add_f32 v{t2}, 1.0, v{t2}", f"v_rcp_f32 v{t2}, v{t2}",
                                  f"buffer_store_dword v{t2}, v{vSA}, {srd(SWS)}, s{sEXW} offen sc1")]
        if PB: pre8 += gs
        else: win[16] = gs + win[16]
    queue = setup_queue()
    ws = [c for c in range(21 if ISQ else 20, 2 * S1 - 1) if usable(c)]
    for k, c in enumerate(ws):
        left = [x for x in queue if 2 * x[0] - 2 <= c]
        take = min(len(left), -(-len(queue) // (len(ws) - k)))
        win[c] += [(x[1], None) for x in left[:take]]; queue = queue[take:]
    assert not queue
    win[16].insert(0, (f"v_subrev_u32 v{vXR[0]}, {WR}, v{vWR[0]}\nv_subrev_u32 v{vXR[1]}, {WR}, v{vWR[1]}\nv_add_u32 v{vXR[2]}, {WR}, v{vWR[0]}\nv_add_u32 v{vXR[3]}, {WR}, v{vWR[1]}", None))

    def cluster(c, what='mr'):
        M = mfmas(c >> 1, c & 1) if (c >= 0 and 'm' in what) else []
        em = e_mfmas(c) if M else []
        for i, x in enumerate(em): M.insert(1 + (8 // len(em) + 1) * i, x)
        d = c + 1
        R = []
        if d < 32 and 'r' in what:
            if d < 16: R += x_reads(d >> 1, d & 1)
            for i in range(4): R += w_reads(d >> 1, d & 1, i)
            R += e_reads(d)
        a.wait(a.lastlg())
        if M and not OPT['lad']: a("s_setprio 2")
        n = max(len(M), 1); k = 0
        last = n - 1 if (c & 1 or ((c >> 1) + 1) not in bars) else n - 2
        if M: last = min(last, n - 1 - OPT['rq' if ISQ else 'rg'] if c >= 16 else n - 1 - OPT['r1'])
        for i in range(n):
            if M: a(M[i])
            want = len(R) if i >= last else -(-len(R) * (i + 1) // (last + 1))
            while k < want: a(R[k]); k += 1
        if M and not OPT['lad']: a("s_setprio 0")
        if M and OPT['lad'] and lvl[0] > 0 and not (c % 2 == 0 and (c >> 1) + 1 in bars and not (c == 14 and PB)):
            lvl[0] -= 1; a(f"s_setprio {lvl[0]}")

    for sig in range(16):
        if sig == 8 and PB:
            cluster(15, 'm')
            for it in pre8: emit(it)
        if sig in bars:
            if sig in cover or sig < 8: a.wait(tok[cover.get(sig, sig)])
            if ISQ and sig == QF: a.wait(box['q'])
            if sig == S1 and P != 'P': s1_check(P)
            if OPT['lad']: lvl[0] = 3; a("s_setprio 3")
            a("s_barrier")
            if sig == QF and 'flag' in box: box['flag']()
        if sig == 1: stamp(1)
        if sig == 8: stamp(2)
        if sig < 11: stamp(sig, 1)
        if sig < 5: stamp(5 + sig, 5)
        if sig >= 6: stamp(sig - 6, 2)
        D = []
        if P == 'C' and sig == 2:
            assert a.vm_done >= ctok[1]
            win[4].append((f"v_mov_b32 v{t0}, 1\ns_mov_b64 exec, 1\nbuffer_store_dword v{t0}, v{vZ}, {srd(SDBG)}, 0 offen sc1\ns_mov_b64 exec, -1", None))
        for sg in sched.get(sig, []): D += dma_groups(sg)
        if sig == S1: D += [(x, None) for x in first_loads()]
        if sig == (7 if ISQ else 9) and P != 'P':
            def s0_load():
                if not ISQ:
                    a(f"s_cmp_lg_u32 s{sW}, 0\ns_cbranch_scc1 L_nos0l{P}\nbuffer_load_dword v{vS0}, v{vZ}, {srd(SDBG)}, 0 offen sc1\nL_nos0l{P}:")
                    a.vm -= 1
                else:
                    a(f"buffer_load_dword v{vS0}, v{vZ}, {srd(SDBG)}, 0 offen sc1")
                box['s0'] = a.vm
            D.insert(len(D) - 1, s0_load)
        head, mid, tail = [], D, []
        if sig < OPT['late']: mid, tail = [], D
        elif (sig + 1) not in bars: mid, tail = D[:len(D)//2], D[len(D)//2:]
        elif sig in bars and len(D) >= 4: head, mid = D[:OPT['na']], D[OPT['na']:]
        if sig == 6 and OPT['wt2']:
            a(f"global_load_dword v{t3}, v{vWS2}, s[28:29]")
            if OPT['wt2'] == 2: mid = head + mid; head = []
        for it in head: emit(it)
        cluster(2 * sig - 1, 'r' if (sig == 8 and PB) else 'mr')
        if sig == S1 - 1 and P != 'P' and OPT['s1w'] == 30:
            assert a.vm_done > box['s0']
            s1_issue(P)
        for it in front.get(2 * sig, []) + mid + win[2 * sig]: emit(it)
        cluster(2 * sig)
        for it in front.get(2 * sig + 1, []) + tail + win[2 * sig + 1]: emit(it)
    if P != 'P' and OPT['s1w'] == 31: s1_issue(P)
    a.wait(a.lastlg())
    assert not win[32]

setup_common()
if OPT['tlb']:
    a(f"s_cmp_lg_u32 s{sW}, 6\ns_cbranch_scc1 L_notlb")
    if OPT['tlb'] == 1:
        a(f"""
        v_lshlrev_b32 v{t0}, 21, v{L}
        s_mov_b32 s{sT[0]}, 0x80000
        s_mov_b64 exec, 63
        buffer_load_dword v32, v{t0}, {srd(SWS)}, s{sT[0]} offen
        s_mov_b64 exec, 1
        buffer_load_dword v33, v{vZ}, {srd(SWD)}, 0 offen
        buffer_load_dword v34, v{vZ}, {srd(SWO)}, 0 offen
        buffer_load_dword v35, v{vZ}, {srd(SOUT)}, 0 offen
        s_mov_b64 exec, -1
        """)
    else:
        a(f"""
        s_lshr_b32 s{sT[0]}, s2, 3
        s_lshl_b32 s{sT[0]}, s{sT[0]}, 16
        v_lshlrev_b32 v{t0}, 21, v{L}
        s_mov_b64 exec, 63
        buffer_load_dword v32, v{t0}, {srd(SWS)}, s{sT[0]} offen
        s_mov_b64 exec, 1
        v_mov_b32 v{t0}, s{sT[0]}
        v_min_u32 v{t1}, {1792*1024 - 4}, v{t0}
        global_load_dword v33, v{t1}, s[20:21]
        v_min_u32 v{t1}, {512*1024 - 4}, v{t0}
        global_load_dword v34, v{t1}, s[12:13]
        buffer_load_dword v35, v{t0}, {srd(SOUT)}, 0 offen
        s_mov_b64 exec, -1
        """)
    a("L_notlb:")
dispatch()
if OPT['pal']: a(f"s_branch L_pathG\n.p2align 12\n.fill {OPT['oG'] // 4}, 4, 0xbf800000\nL_pathG:")
proj_path('G')
a("L_join:")
a.forget()

JE = OPT['jearly'] and OPT['s1'] == 16
if not JE:
    for m in mfmas(15, 1): a(m)
    a("s_setprio 0")
stamp(3); stamp(10, 2)
def gelu_chunk(k):
    b, jp = k >> 1, k & 1
    g0 = gelu_pair(ACC[1] + 16 * b, 2 * jp, vGT, pk=OPT['pk2']); g1 = gelu_pair(ACC[1] + 16 * b, 2 * jp + 1, t2, pk=OPT['pk2'])
    for x, y in zip(g0, g1):
        a(x); a(y)
    if k == 2:
        for x in to_frag(ACC[1]): a(x)
for k in range(OPT['jlate']): gelu_chunk(k)
stamp(5, 3)
if OPT['s1'] == 16:
    s1_check('J')
    stamp(6, 3)
    a("s_barrier")
    stamp(7, 3)
    fl = first_loads()
    if JE:
        nfirst = OPT['jearly'] - 1
        for x in fl[:nfirst]: a(x)
        for m in mfmas(15, 1): a(m)
        fl = fl[nfirst:]
    for x in fl: a(x)
stamp(4); stamp(8, 3)
fltok = a.lastvm()
HST = OPT['hst']
def hs(k):
    if k >= HST: return
    if k == 0:
        assert OPT['nearly'] == 1
        a(f"s_add_u32 s{sT[2]}, s{sH1}, 16384\ns_cmp_eq_u32 s{sU}, 0\ns_cselect_b32 s{sT[2]}, {WS_SIZE}, s{sT[2]}\nbuffer_store_dwordx4 {vr(ACC[0]+16,4)}, v{vST}, {srd(SWS)}, s{sT[2]} offen sc1")
    else:
        hbox['h'] = a((f"s_add_u32 s{sHO}, s{sHO}, 16384\n" if k == 2 else "") + f"buffer_store_dwordx4 {vr(ACC[1]+16*(k-1),4)}, v{vST}, {srd(SWS)}, s{sHO} offen sc1")
hbox = {}
for k in range(OPT['jlate'], 4 - OPT['eb0']):
    gelu_chunk(k)
    if k == OPT.get('hs0', 1): hs(0)
    if k == 2: hs(1)
if not OPT['eb0']:
    for x in to_frag(ACC[1] + 16): a(x)
for x in setup_queue(True): a(x)
a(f"s_mov_b32 s{sT[8]}, 0xffff\ns_mov_b32 s{sT[9]}, 0xffff")
hs(2)
stamp(9, 3)
a.wait(fltok)
a("s_barrier")
if not OPT['eb0']: stamp(5); stamp(10, 3)

def qk(S, Q): return f"v_mfma_f32_32x32x16_bf16 {vr(S,16)}, {vr(KF,4)}, {vr(Q,4)}, 0"
def pv(O, V, S): return f"v_smfmac_f32_32x32x32_bf16 {vr(O,16)}, {vr(V,4)}, {vr(S,8)}, v{vIDX}"
NT, B1, B2 = 32, 8, OPT['b2']
def rec(t): return (t % NSLOT) * 2048
def rdK(t): return a(f"ds_read_b128 {vr(KF,4)}, v{vAK} offset:{rec(t)}")
def rdV(t2, t1):
    a(f"s_mov_b64 exec, s[{sT[8]}:{sT[9]}]")
    if t2 is not None: a(f"ds_read_b128 {vr(V2,4)}, v{vAV} offset:{rec(t2) + 1536}")
    if t1 is not None: a(f"ds_read_b128 {vr(V1[t1&1],4)}, v{vAV} offset:{rec(t1) + 1024}")
    a("s_mov_b64 exec, -1")
    return a.lastlg()
wtok, htok, rtok, box = {}, {}, {}, {}
m0own = [None]; wstart = set()
def w_off(u): return sR[u & 3] if u < 14 else sWOF
def w_load_a(u):
    a(f"s_add_u32 m0, s{sRING}, {(u & 3) * 2048}"); m0own[0] = ('w', u); wstart.add(u)
    assert u == 0 or (u - 1) in wtok
    if 0 < u < 14: a(f"s_sub_u32 s{sR[u&3]}, s{sR[(u-1)&3]}, 16384\ns_cselect_b32 s{sR[u&3]}, {13*16384}, s{sR[u&3]}")
    elif u == 14: a(f"s_lshl_b32 s{sWOF}, s{sU}, 14")
    elif u > 14: a(f"s_add_u32 s{sWOF}, s{sWOF}, 16384\ns_and_b32 s{sWOF}, s{sWOF}, 0xffff")
    a(f"buffer_load_dwordx4 v{vDS}, {srd(SWD if u < 14 else SWO)}, s{w_off(u)} offen lds")
def w_load_b(u):
    if m0own[0] != ('w', u):
        a(f"s_add_u32 m0, s{sRING}, {(u & 3) * 2048}"); m0own[0] = ('w', u)
    wtok[u] = a(f"buffer_load_dwordx4 v{vDS1}, {srd(SWD if u < 14 else SWO)}, s{w_off(u)} offen offset:1024 lds")
def h_load_a(u):
    assert u in wstart and (u + 4) not in wstart
    a(f"buffer_load_dwordx4 {vr(HF[u&3],4)}, v{vH0}, {srd(SWS)}, s{sR[u&3]} offen sc1")
def h_load_b(u):
    assert (u + 4) not in wstart
    htok[u] = a(f"buffer_load_dwordx4 {vr(HF[u&3]+4,4)}, v{vH1}, {srd(SWS)}, s{sR[u&3]} offen sc1")
def w_read(u, b):
    if b == 0: a.wait(wtok[u], htok[u])
    for e in range(2):
        rtok[u, b] = a(f"ds_read_b64_tr_b16 {vr(WF[u&1] + 4*b + 2*e, 2)}, v{(vDR0, vDR1)[b]} offset:{(u & 3) * 2048 + e*512}")
def d_mfma(u, k):
    tb, b = k >> 1, k & 1
    a.wait(rtok[u, 1])
    d = vr(DACC + 32 * tb + 16 * b, 16)
    a(f"v_mfma_f32_32x32x16_bf16 {d}, {vr(WF[u&1]+4*b,4)}, {vr(HF[u&3]+4*tb,4)}, {'0' if u == 0 else d}")

if OPT.get('x_now'):
    def w_load_a(u): pass
    def w_load_b(u): wtok[u] = None
if OPT.get('x_noh'):
    def h_load_a(u): pass
    def h_load_b(u): htok[u] = None
if OPT.get('x_noread'):
    def w_read(u, b): rtok[u, b] = None
ev, mf = {}, {}
SNAP = OPT.get('snap', 1)
B1P = 32 * (B1 - 1) + 11
EV, EVA, EK, EKA = OPT.get('ev', 5), OPT.get('eva', 0), OPT.get('ek', 11), OPT.get('eka', 0)
busy = {32 * t + o for t in range(NT) for o in (EV, EK, 18)}
def nextpos(p):
    while SNAP and (p & 15) not in (2, 5, 8, 11, 14): p += 1
    return p
def at(pos, f, limit=None):
    p = nextpos(pos)
    while SNAP and limit is not None and p in busy and nextpos(p + 1) <= limit: p = nextpos(p + 1)
    busy.add(p)
    ev.setdefault(p, []).append(f)
    return p
def h_store(b): box['h'] = a((f"s_add_u32 s{sHO}, s{sHO}, 16384\n" if b else "") + f"buffer_store_dwordx4 {vr(ACC[1]+16*b,4)}, v{vST}, {srd(SWS)}, s{sHO} offen sc1")
def late_store(k):
    a(f"""
    s_cmp_eq_u32 s{sU}, 0
    s_cbranch_scc1 L_nols{k}
    s_add_u32 s{sT[2]}, s{sH1}, {16384*k}
    buffer_store_dwordx4 {vr(ACC[0]+16*k,4)}, v{vST}, {srd(SWS)}, s{sT[2]} offen sc1
    L_nols{k}:
    """)
    a.vm -= 1
pp = OPT.get('p_st', 1); STS = OPT.get('p_sts', 1)
box.update(hbox)
for k in range(OPT['nearly'] + (HST > 0), 2):
    pp = at(pp, lambda k=k: late_store(k), pp + 12) + STS
if HST < 2: pp = at(pp, lambda: h_store(0), pp + 12) + STS
if HST < 3: pp = at(pp, lambda: h_store(1), pp + 12)
assert pp < B1P
def kv_emit(m, i):
    if i == 0: m0own[0] = ('kv', m)
    if m0own[0] != ('kv', m):
        a(f"s_add_u32 m0, s{sKVM}, {(4 * m % NSLOT) * 2048}"); m0own[0] = ('kv', m)
    kvtok[m] = a(kv_step(m)[i])
for m in range(KV_FIRST, 8):
    p = OPT['p_kv'] + OPT['p_kvs'] * (m - KV_FIRST) if m < 6 else OPT['p_kv2'] + 20 * (m - 6)
    p = at(p, lambda m=m: kv_emit(m, 0), p + 8)
    at(p + 1, lambda m=m: kv_emit(m, 1), p + 9)
assert OPT['p_kv2'] > B1P
def h_flag():
    a(f"s_mov_b64 exec, 1\nbuffer_store_dword v{vONE}, v{vZ}, {srd(SWS)}, s{sF2W} offen sc1\ns_mov_b64 exec, -1")
at(B1P + 1, h_flag)
def f2_load():
    box['f2'] = a(f"s_mov_b64 exec, 15\nbuffer_load_dwordx4 {vr(F2D,4)}, v{vF2}, {srd(SWS)}, s{sF2R} offen sc1")
    a("s_mov_b64 exec, -1")
at(OPT['p_f2'], f2_load, OPT['p_f2'] + 8)
def f2_check():
    a.wait(box['f2'])
    test = f"v_min3_u32 v{F2D}, v{F2D}, v{F2D+1}, v{F2D+2}\nv_min_u32 v{F2D}, v{F2D}, v{F2D+3}\nv_cmp_ne_u32 vcc, 1, v{F2D}"
    a(f"s_mov_b64 exec, 15\n{test}\ns_cbranch_vccnz L_s2retry\nL_s2done:\ns_mov_b64 exec, -1")
    cold.append(f"""
    L_s2retry:
    s_mov_b32 s{sT[1]}, 0
    L_s2poll:
    buffer_load_dwordx4 {vr(F2D,4)}, v{vF2}, {srd(SWS)}, s{sF2R} offen sc1
    s_add_u32 s{sT[1]}, s{sT[1]}, 1
    s_waitcnt vmcnt(0)
    {test}
    s_cbranch_vccz L_s2done
    {'s_sleep ' + str(OPT['slp']) if OPT.get('slp') else ''}
    s_cmp_lt_u32 s{sT[1]}, {SPIN}
    s_cbranch_scc1 L_s2poll
    s_branch L_s2done
    """)
    a(f"buffer_load_dword v{vG}, v{vG}, {srd(SWS)}, s{sGA} offen sc1")
    stamp(9)
PCHK = at(OPT['p_chk'], f2_check, OPT['p_chk'] + 8)
D0, DE = OPT['d0'], OPT['dend']
allsl = [32 * t + o for t in range(D0, DE) for o in (8, 14, 24, 30)]
assert len(allsl) >= 56
slots = [allsl[(i * len(allsl)) // 56] for i in range(56)]
for u in range(14):
    rp = slots[0] - 16 if u == 0 else slots[4 * u - 2] + 1
    lim = slots[4 * u] - 9
    p = at(rp, lambda u=u: w_read(u, 0), lim - 3); at(p + 1, lambda u=u: w_read(u, 1), lim)
    for k in range(4): mf[slots[4 * u + k]] = (lambda u=u, k=k: d_mfma(u, k))
for u in range(18):
    pw = OPT['p_fill'] + OPT['p_fills'] * u if u < 4 else slots[4 * (u - 4)] + 1
    p = at(pw, lambda u=u: w_load_a(u), pw + 8); p = at(p + 1, lambda u=u: w_load_b(u), p + 8)
    if u < 3:
        ph = PCHK + 1 + OPT.get('p_hs', 13) * u
        p = at(ph, lambda u=u: h_load_a(u), ph + 4); at(p + 1, lambda u=u: h_load_b(u), p + 5)
    if 4 <= u < 15:
        p = at(p + 1, lambda u=u: h_load_a(u - 1), p + 8); at(p + 1, lambda u=u: h_load_b(u - 1), p + 8)
for lo, hi, fr in ((0, B1P, (OPT.get('la1', 30), OPT.get('la2', 70), OPT.get('la3', 94))), (B1P, 32 * B2, (OPT.get('lb1', 35), OPT.get('lb2', 80), OPT.get('lb3', 96))),
                   (32 * B2, 32 * NT, (OPT.get('lc1', 60), OPT.get('lc2', 87), OPT.get('lc3', 96)))):
    for k in range(3): at(lo + ((hi - lo) * fr[k]) // 100, lambda k=k: a(f"s_setprio {2-k}"))

if OPT['grp'] == 6:
    for k, p in enumerate((240, 300, 380, 436, 466, 490, 520, 560, 600, 650, 700)): at(p, lambda k=k: stamp(k, 6))
at(32 * NT - 2, lambda: a(f"ds_write_b128 v{vM[0]}, {vr(OA,4)}\nds_write_b128 v{vM[0]}, {vr(OA+4,4)} offset:1024\nds_write_b32 v{vM[2]}, v{OA+8} offset:2048"))

a("s_setprio 3")
tK = rdK(0); tV = rdV(None, 0)
for k in range(4 - OPT['eb0'], 4): gelu_chunk(k)
if OPT['eb0']: stamp(5); stamp(10, 3)
a.wait(tK)
a(qk(SA, QA))
if OPT['eb0']:
    for x in to_frag(ACC[1] + 16): a(x)
for t in range(NT):
    if t == B2:
        a.wait(kvtok[7]); a("s_barrier\ns_setprio 3"); stamp(0)
    nx = t + 1 if t + 1 < NT else None
    for ph, (S, So, O, Oo, Qo) in enumerate(((SA, SB, OA, OB, QB), (SB, SA, OB, OA, QA))):
        for e in range(16):
            pos = 32 * t + 16 * ph + e
            def own(after):
                global tV, tK
                if ph == 0 and (e, after) == (EV, EVA):
                    if t == 0: a.wait(tV)
                    tV = rdV(t, nx if t != B1 - 1 else None)
                if ph == 0 and (e, after) == (EK, EKA) and nx and t != B1 - 1: tK = rdK(nx)
            for f in ev.pop(pos, []): f()
            own(0)
            if pos == B1P:
                a.wait(kvtok[5], box['h'], tV); a("s_barrier\ns_setprio 3"); stamp(6)
                tK = rdK(nx); tV = rdV(None, nx)
            if e == 2:
                if ph == 1: a.wait(tV, None if OPT.get('w2') else tK)
                if t > 0 or ph == 1: a(pv(Oo, V2, So + 8))
            if (e == 5 and not (t == 0 and ph == 0)) or (t == 0 and ph == 0 and e == 0):
                if ph == 1: a.wait(tK)
                if ph == 0 or nx: a(qk(So, Qo))
            if e == 11: a(pv(O, V1[t & 1], S))
            if pos in mf: mf.pop(pos)()
            own(1)
            a(f"v_exp_f32 v{S+e}, v{S+e}")
assert not mf
assert not ev, sorted(ev)
if OPT['woe']: a.wait(wtok[17])
a(pv(OB, V2, SB + 8))
a.wait_lg0()
stamp(7); stamp(0, 4)
a("s_barrier")
stamp(1, 4)
a(f"""
ds_read_b32 v{SA+8}, v{vM[3]} offset:2048
ds_read_b128 {vr(SA,4)}, v{vM[1]}
ds_read_b128 {vr(SA+4,4)}, v{vM[1]} offset:1024
s_add_u32 s{sOO}, s{sOO}, {WS_O}
s_mov_b32 s{sT[6]}, {fbits(2.0**-60):#x}
s_mov_b32 s{sT[7]}, {fbits(2.0**60) - fbits(2.0**-60):#x}
s_lshl_b32 s{sT[3]}, s{sW}, 13
s_xor_b32 s{sT[2]}, s{sT[3]}, 0x8000
v_add_u32 v24, s{sT[2]}, v{vL16}
v_add_u32 v26, s{sT[3]}, v{vL16}
s_waitcnt lgkmcnt(2)
v_add_f32 v{OB+8}, v{OB+8}, v{SA+8}
v_rcp_f32 v{t0}, v{OB+8}
""")
a.wait_lg0()
OS = 128
for j in range(2): a(f"v_pk_add_f32 {vr(OB+2*j,2)}, {vr(OB+2*j,2)}, {vr(SA+2*j,2)}")
a(f"v_mul_f32 v{t0}, v{t0}, v{vG}")
for j in range(2, 4): a(f"v_pk_add_f32 {vr(OB+2*j,2)}, {vr(OB+2*j,2)}, {vr(SA+2*j,2)}")
for j in range(4): a(f"v_pk_mul_f32 {vr(OB+2*j,2)}, {vr(OB+2*j,2)}, {vr(t0,2)} op_sel_hi:[1,0]")
a(f"""
v_pk_add_f32 {vr(t2,2)}, {vr(OB,2)}, {vr(OB+2,2)}
v_pk_add_f32 {vr(t0,2)}, {vr(OB+4,2)}, {vr(OB+6,2)}
v_cvt_pk_bf16_f32 v{OS}, v{OB}, v{OB+1}
v_pk_add_f32 {vr(t2,2)}, {vr(t2,2)}, {vr(t0,2)}
v_cvt_pk_bf16_f32 v{OS+1}, v{OB+2}, v{OB+3}
v_add_f32 v{t2}, v{t2}, v{t3}
v_cvt_pk_bf16_f32 v{OS+2}, v{OB+4}, v{OB+5}
v_fma_f32 v{t2}, v{t2}, 0, v{OB+8}
v_cvt_pk_bf16_f32 v{OS+3}, v{OB+6}, v{OB+7}
v_subrev_u32 v{t2}, s{sT[6]}, v{t2}
v_or_b32 v{OS}, 1, v{OS}
v_cmp_lt_u32 vcc, s{sT[7]}, v{t2}
""")
if OPT['force_fb']: a("s_mov_b64 vcc, -1")
a(f"""
s_cbranch_vccnz L_true_max
L_norm:
buffer_store_dwordx4 {vr(OS,4)}, v{vL16}, {srd(SWS)}, s{sOO} offen sc1
""")
stamp(8); stamp(2, 4)

OF, WOF, XT = 32, 176, 96
vO1 = 27
fill = f"""
s_and_b32 s{sT[1]}, s{sW}, 3
s_lshl_b32 s{sT[2]}, s{sT[1]}, 13
s_add_u32 s{sT[2]}, s{sT[2]}, {RING}
v_add_u32 v28, s{sT[2]}, v{vTRP}
v_xor_b32 v29, 64, v28
v_sub_f32 v{vG}, 1.0, v{vG}
v_add_u32 v{vO1}, 0x4000, v{vL16}
s_lshr_b32 s{sT[9]}, s{sW}, 2
s_lshl1_add_u32 s{sT[0]}, s{sI}, s{sT[9]}
s_lshl3_add_u32 s{sT[0]}, s{sT[0]}, s{sT[1]}
s_lshl_b32 s{sT[0]}, s{sT[0]}, 12
s_add_u32 s{sT[0]}, s{sT[0]}, {WS_O}
s_lshl4_add_u32 s{sT[8]}, s{sT[9]}, s{sT[1]}
s_lshl_b32 s{sT[8]}, s{sT[8]}, 11
""".strip().split('\n')
for v in range(4):
    fill += f"s_add_u32 s{sT[1]}, s{sU}, {v}\ns_and_b32 s{sT[1]}, s{sT[1]}, 3\ns_lshl_b32 s{sT[1]}, s{sT[1]}, 10\ns_add_u32 s{sT[4+v]}, s{sT[0]}, s{sT[1]}".split('\n')
fill += f"""
v_and_b32 v{t0}, 31, v{L}
v_lshrrev_b32 v{t1}, 5, v{L}
v_and_b32 v{t2}, 7, v{L}
v_xor_b32 v{t1}, v{t1}, v{t2}
v_lshlrev_b32 v{t1}, 4, v{t1}
v_lshl_add_u32 v{t0}, v{t0}, 8, v{t1}
v_add_u32 v9, s{sT[3]}, v{t0}
v_xor_b32 v10, 32, v9
v_xor_b32 v11, 64, v9
v_xor_b32 v12, 0x60, v9
v_lshrrev_b32 v{t0}, 3, v{L}
v_lshlrev_b32 v{t1}, 1, v{t2}
v_xor_b32 v{t1}, v{t1}, v{t0}
v_lshlrev_b32 v{t1}, 4, v{t1}
v_lshl_add_u32 v{t1}, v{t0}, 8, v{t1}
v_add_u32 v1, s{sT[8]}, v{t1}
v_xor_b32 v2, 16, v1
s_lshl3_add_u32 s{sT[3]}, s{sI}, s{sW}
s_lshl_b32 s{sT[3]}, s{sT[3]}, 6
s_add_u32 s{sT[3]}, s{sT[3]}, s{sJ}
s_lshl_b32 s{sT[3]}, s{sT[3]}, 7
v_lshlrev_b32 v{t2}, 4, v{t2}
v_lshl_add_u32 v5, v{t0}, 10, v{t2}
s_mov_b32 s{sT[2]}, 0
""".strip().split('\n')
def wo_read(v):
    slot = ((14 + v) & 3) * 2048 + (v >> 2) * 32768
    for b in range(2):
        for e in range(2):
            a(f"ds_read_b64_tr_b16 {vr(WOF + 8*v + 4*b + 2*e, 2)}, v{28 + b} offset:{slot + e*512}")
for j in range(8):
    xw = a(f"ds_write_b128 v24, {vr(DACC+32+4*j,4)} offset:{1024*j}")
    for x in fill[len(fill) * j // 8: len(fill) * (j + 1) // 8]: a(x)
    if OPT['woe'] == 1: wo_read(j)
if OPT['woe'] == 2:
    for j in range(8): wo_read(j)
def o_loads():
    for v in range(8):
        a(f"buffer_load_dwordx4 {vr(OF + 4*v, 4)}, v{vO1 if v >> 2 else vL16}, {srd(SWS)}, s{sT[4 + (v&3)]} offen sc1")
stamp(3, 4)
a.wait(wtok[17], xw)
a(f"s_cmp_ge_u32 s{sW}, 4")
if not OPT['oe']: a("s_barrier"); stamp(4, 4)
a("s_setprio 1\ns_cbranch_scc1 L_ol1\ns_setprio 0")
o_loads()
a("L_ol1:")
if OPT['oe']: a("s_barrier"); stamp(4, 4)
xt = [a(f"ds_read_b128 {vr(XT+4*j,4)}, v26 offset:{1024*j}") for j in range(8)]
for j in range(8):
    a.wait(xt[j])
    for i in range(2):
        r = 4 * j + 2 * i
        a(f"v_pk_add_f32 {vr(DACC+r,2)}, {vr(DACC+r,2)}, {vr(XT+r,2)}")
    for i in range(2):
        r = 4 * j + 2 * i
        a(f"v_pk_mul_f32 {vr(DACC+r,2)}, {vr(DACC+r,2)}, {vr(vG,2)} op_sel_hi:[1,0]")
stamp(5, 4)
a("s_setprio 0\ns_cbranch_scc0 L_ol2")
o_loads()
a("L_ol2:")
if not OPT['woe']:
    for j in range(8): wo_read(j)
stamp(6, 4)
a.wait_lg0()
ND = XT
a("L_s3poll:")
def wo_mfma(v, b): a(f"v_mfma_f32_32x32x16_bf16 {vr(ND+16*b,16)}, {vr(WOF+8*v+4*b,4)}, {vr(OF+4*v,4)}, {vr((DACC if v == 0 else ND)+16*b,16)}")
def chk(v): a(f"v_and_b32 v{t0}, {1 if v == 0 else 'v' + str(t0)}, v{OF+4*v}")
def xsite():
    a(f"s_cmp_eq_u32 s{sT[9]}, 0\ns_cbranch_scc1 L_nox\ns_mov_b32 s{sT[9]}, 0\ns_barrier\nL_nox:")
for v in range(6):
    a(f"s_waitcnt vmcnt({7-v})")
    if v == 0: stamp(10); stamp(7, 4)
    wo_mfma(v, 0); chk(v); wo_mfma(v, 1)
    if v == OPT['xsite']: xsite()
a("s_waitcnt vmcnt(1)"); wo_mfma(6, 0); chk(6)
a("s_waitcnt vmcnt(0)"); wo_mfma(7, 0); chk(7)
a.vm_done = a.vm
wo_mfma(6, 1)
if OPT['xsite'] == 6: xsite()
a(f"v_cmp_eq_u32 vcc, 0, v{t0}")
wo_mfma(7, 1)
if OPT['xsite'] == 7: xsite()
a("s_cbranch_vccnz L_s3retry\nL_s3done:")
stamp(8, 4)
for b in range(2):
    if OPT['xsite'] >= 6: a("s_nop 2" if b == 0 else "s_nop 3")
    for qd in range(4): a(f"ds_write_b128 v{9+qd}, {vr(ND + 16*b + 4*qd, 4)} offset:{b*128}")
a(f"s_cmp_ge_u32 s{sW}, 4")
a.wait_lg0()
a("s_barrier")
stamp(9, 4)
RD = 176
rt = []
for p in range(4):
    for e in range(2):
        rt.append(a(f"ds_read_b128 {vr(RD + 8*p + 4*e, 4)}, v{1 + e} offset:{p*8192}"))
for p in range(1, 4):
    a.wait(rt[2 * p + 1])
    for j in range(4):
        if OPT.get('fpk', 1): a(f"v_pk_add_f32 {vr(RD+2*j,2)}, {vr(RD+2*j,2)}, {vr(RD+8*p+2*j,2)}")
        else: a(f"v_add_f32 v{RD+2*j}, v{RD+2*j}, v{RD+8*p+2*j}\nv_add_f32 v{RD+2*j+1}, v{RD+2*j+1}, v{RD+8*p+2*j+1}")
for j in range(4): a(f"v_cvt_pk_bf16_f32 v{RD+j}, v{RD+2*j}, v{RD+2*j+1}")
a(f"buffer_store_dwordx4 {vr(RD,4)}, v5, {srd(SOUT)}, s{sT[3]} offen {['', 'sc1'][OPT['outm']]}")
a("s_cbranch_scc1 L_noy\ns_barrier\nL_noy:")
stamp(10, 4)
if OPT['stamp']:
    a("s_waitcnt vmcnt(0)")
    stamp(11)
    a("s_waitcnt lgkmcnt(0)")
    a(f"s_mov_b32 s28, s{sT[2]}")
    if 'span' in OPT:
        a(f"""
        s_lshl3_add_u32 s{sT[0]}, s2, s{sW}
        s_lshl_b32 s{sT[0]}, s{sT[0]}, 3
        s_add_u32 s{sT[0]}, s{sT[0]}, {WS_STAMP}
        v_mov_b32 v1, 0
        v_mov_b32 v2, s{4+2*OPT['span']}
        v_mov_b32 v3, s30
        s_mov_b64 exec, 1
        buffer_store_dwordx2 v[2:3], v1, {srd(SWS)}, s{sT[0]} offen sc1
        s_mov_b64 exec, -1
        s_add_u32 s{sT[0]}, s2, s{sW}
        s_cmp_lg_u32 s{sT[0]}, 0
        s_cbranch_scc1 L_end
        L_pad0:
        s_memrealtime s[{sT[2]}:{sT[3]}]
        s_waitcnt lgkmcnt(0)
        s_sub_u32 s{sT[2]}, s{sT[2]}, s30
        s_cmp_lt_u32 s{sT[2]}, 4500
        s_cbranch_scc1 L_pad0
        v_mov_b32 v4, 0
        v_mov_b32 v5, -1
        s_sub_u32 s{sT[1]}, s30, 1000
        """)
        for g in range(16):
            a(f"""
            s_mov_b32 s{sT[0]}, {WS_STAMP + 1024*g}
            buffer_load_dwordx4 v[8:11], v{vL16}, {srd(SWS)}, s{sT[0]} offen sc1
            s_waitcnt vmcnt(0)
            v_subrev_u32 v8, s{sT[1]}, v8
            v_subrev_u32 v9, s{sT[1]}, v9
            v_subrev_u32 v10, s{sT[1]}, v10
            v_subrev_u32 v11, s{sT[1]}, v11
            v_max3_u32 v4, v4, v8, v10
            v_min3_u32 v5, v5, v9, v11
            """)
        a(f"s_mov_b32 s{sT[4]}, 0\ns_mov_b32 s{sT[5]}, -1")
        for i in range(64): a(f"v_readlane_b32 s{sT[6]}, v4, {i}\nv_readlane_b32 s{sT[7]}, v5, {i}\ns_nop 0\ns_max_u32 s{sT[4]}, s{sT[4]}, s{sT[6]}\ns_min_u32 s{sT[5]}, s{sT[5]}, s{sT[7]}")
        a(f"""
        s_sub_u32 s{sT[0]}, s{sT[4]}, s{sT[5]}
        s_sub_u32 s{sT[0]}, s{sT[0]}, {OPT.get('spanb', 2000)}
        s_min_u32 s{sT[0]}, s{sT[0]}, 2500
        s_mul_i32 s{sT[0]}, s{sT[0]}, 10
        s_add_u32 s{sT[0]}, s{sT[0]}, 6000
        L_pad:
        s_memrealtime s[{sT[2]}:{sT[3]}]
        s_waitcnt lgkmcnt(0)
        s_sub_u32 s{sT[2]}, s{sT[2]}, s30
        s_cmp_lt_u32 s{sT[2]}, s{sT[0]}
        s_cbranch_scc1 L_pad
        """)
    elif 'crit' in OPT:
        a(f"""
        s_cmp_lg_u32 s{sW}, 7
        s_cbranch_scc1 L_end
        s_lshl_b32 s{sT[0]}, s2, 6
        s_add_u32 s{sT[0]}, s{sT[0]}, {WS_STAMP}
        v_mov_b32 v1, 0
        """)
        for k in range(14): a(f"v_mov_b32 v2, s{4+2*k}\nbuffer_store_dword v2, v1, {srd(SWS)}, s{sT[0]} offen offset:{4*k} sc1")
        a(f"""
        s_cmp_lg_u32 s2, 0
        s_cbranch_scc1 L_end
        L_pad0:
        s_memrealtime s[{sT[2]}:{sT[3]}]
        s_waitcnt lgkmcnt(0)
        s_sub_u32 s{sT[2]}, s{sT[2]}, s30
        s_cmp_lt_u32 s{sT[2]}, 5000
        s_cbranch_scc1 L_pad0
        v_lshlrev_b32 v1, 6, v{L}
        s_mov_b32 s{sT[4]}, 0
        s_mov_b32 s{sT[5]}, -1
        """)
        for g in range(4):
            a(f"""
            s_mov_b32 s{sT[0]}, {WS_STAMP + 4096*g}
            buffer_load_dword v2, v1, {srd(SWS)}, s{sT[0]} offen offset:{4*OPT['crit']} sc1
            buffer_load_dword v3, v1, {srd(SWS)}, s{sT[0]} offen offset:52 sc1
            s_waitcnt vmcnt(0)
            v_subrev_u32 v2, s30, v2
            v_add_u32 v2, 1000, v2
            v_lshlrev_b32 v2, 8, v2
            v_add_u32 v2, v2, v{L}
            v_add_u32 v2, {64*g}, v2
            v_subrev_u32 v3, s30, v3
            v_add_u32 v3, 1000, v3
            s_nop 1
            """)
            for i in range(64): a(f"v_readlane_b32 s{sT[6]}, v2, {i}\nv_readlane_b32 s{sT[7]}, v3, {i}\ns_nop 0\ns_max_u32 s{sT[4]}, s{sT[4]}, s{sT[6]}\ns_min_u32 s{sT[5]}, s{sT[5]}, s{sT[7]}")
        a(f"""
        s_and_b32 s{sT[4]}, s{sT[4]}, 255
        s_lshl_b32 s{sT[0]}, s{sT[4]}, 6
        s_add_u32 s{sT[0]}, s{sT[0]}, {WS_STAMP}
        v_lshlrev_b32 v1, 2, v{L}
        buffer_load_dword v2, v1, {srd(SWS)}, s{sT[0]} offen sc1
        s_add_u32 s{sT[5]}, s{sT[5]}, s30
        s_sub_u32 s{sT[5]}, s{sT[5]}, 1000
        s_waitcnt vmcnt(0)
        v_subrev_u32 v2, s{sT[5]}, v2
        s_nop 1
        v_writelane_b32 v2, s{sT[4]}, 14
        s_mov_b64 exec, 0x7fff
        buffer_store_dword v2, v1, {srd(SDBG)}, 0 offen offset:4
        """)
    elif 'dk' in OPT:
        a(f"""
        s_cmp_lg_u32 s{sW}, {OPT.get('dw', 7)}
        s_cbranch_scc1 L_end
        s_lshl_b32 s{sT[0]}, s2, 2
        s_add_u32 s{sT[0]}, s{sT[0]}, {WS_STAMP}
        v_mov_b32 v2, s{4+2*OPT['dk']}
        v_mov_b32 v1, 0
        buffer_store_dword v2, v1, {srd(SWS)}, s{sT[0]} offen sc1
        s_cmp_lg_u32 s2, 0
        s_cbranch_scc1 L_end
        L_pad0:
        s_memrealtime s[{sT[2]}:{sT[3]}]
        s_waitcnt lgkmcnt(0)
        s_sub_u32 s{sT[2]}, s{sT[2]}, s30
        s_cmp_lt_u32 s{sT[2]}, 5000
        s_cbranch_scc1 L_pad0
        v_mul_u32_u24 v1, {4*OPT['dstride']}, v{L}
        s_mov_b32 s{sT[0]}, {WS_STAMP + 4*OPT['dbase']}
        buffer_load_dword v2, v1, {srd(SWS)}, s{sT[0]} offen sc1
        s_waitcnt vmcnt(0)
        v_subrev_u32 v2, s30, v2
        v_add_u32 v2, 100000, v2
        s_mov_b32 s{sT[4]}, 0
        s_mov_b32 s{sT[5]}, -1
        """)
        for i in range(OPT['dn']): a(f"v_readlane_b32 s{sT[6]}, v2, {i}\ns_nop 1\ns_max_u32 s{sT[4]}, s{sT[4]}, s{sT[6]}\ns_min_u32 s{sT[5]}, s{sT[5]}, s{sT[6]}")
        a(f"""
        s_sub_u32 s{sT[0]}, s{sT[4]}, s{sT[5]}
        s_min_u32 s{sT[0]}, s{sT[0]}, 2000
        s_mul_i32 s{sT[0]}, s{sT[0]}, 10
        s_add_u32 s{sT[0]}, s{sT[0]}, 6000
        L_pad:
        s_memrealtime s[{sT[2]}:{sT[3]}]
        s_waitcnt lgkmcnt(0)
        s_sub_u32 s{sT[2]}, s{sT[2]}, s30
        s_cmp_lt_u32 s{sT[2]}, s{sT[0]}
        s_cbranch_scc1 L_pad
        """)
    elif 'pad' in OPT:
        K = OPT['pad']
        a(f"s_and_b32 s{sT[0]}, s2, {OPT.get('padm', 0)}\ns_cmp_lg_u32 s{sT[0]}, {OPT.get('padv', 0)}\ns_cbranch_scc1 L_end")
        if K >= 0: a(f"s_sub_u32 s{sT[0]}, s{4+2*K}, s{4+2*OPT.get('padb', 13)}\ns_mul_i32 s{sT[0]}, s{sT[0]}, {OPT.get('padx', 4)}")
        elif K == -2: a(f"s_getreg_b32 s{sT[0]}, hwreg(HW_REG_XCC_ID)\ns_and_b32 s{sT[0]}, s{sT[0]}, 15\ns_mul_i32 s{sT[0]}, s{sT[0]}, 1000")
        else: a(f"s_mov_b32 s{sT[0]}, 0")
        a(f"""
        s_add_u32 s{sT[0]}, s{sT[0]}, 6000
        L_pad:
        s_memrealtime s[{sT[2]}:{sT[3]}]
        s_waitcnt lgkmcnt(0)
        s_sub_u32 s{sT[2]}, s{sT[2]}, s30
        s_cmp_lt_u32 s{sT[2]}, s{sT[0]}
        s_cbranch_scc1 L_pad
        """)
    else:
        a(f"s_lshl3_add_u32 s{sT[0]}, s2, s{sW}\ns_lshl_b32 s{sT[0]}, s{sT[0]}, 6\ns_add_u32 s{sT[0]}, s{sT[0]}, {WS_STAMP}")
        a("v_mov_b32 v1, 0\ns_mov_b64 exec, 1")
        for k in range(14):
            a(f"v_mov_b32 v2, s{4+2*k}\nbuffer_store_dword v2, v1, {srd(SWS)}, s{sT[0]} offen offset:{4*k}")
a("L_end:\ns_endpgm")
a("L_s3retry:")
o_loads()
a(f"""
s_add_u32 s{sT[2]}, s{sT[2]}, 1
s_cmp_lt_u32 s{sT[2]}, {SPIN}
s_nop 7
s_cbranch_scc1 L_s3poll
s_waitcnt vmcnt(0)
s_branch L_s3done
""")

for P in 'KVPSC':
    a("; ---- projection phase, " + {'K': 'query workgroups, waves 0-3: also k', 'V': 'query workgroups, waves 0-3: also v', 'P': 'query workgroups, waves 4-7',
                                      'S': 'gate/up waves that also form the mixing gate', 'C': 'gate/up wave that also clears the ready words'}[P])
    a(f".p2align 12\n.fill {OPT['o' + P] // 4}, 4, 0xbf800000\nL_path{P}:" if OPT['pal'] else f".p2align 6\nL_path{P}:")
    a.forget()
    proj_path(P)
    a("s_branch L_join")
for x in cold: a(x)

CM = SB
a(f"""
L_true_max:
s_waitcnt vmcnt(0) lgkmcnt(0)
v_mov_b32 v{t0}, 0xff800000
s_mov_b32 s{sT[0]}, {WS_KV}
L_tm1:
buffer_load_dwordx4 {vr(KF,4)}, v{vL16}, {srd(SWS)}, s{sT[0]} offen sc1
s_waitcnt vmcnt(0)
{qk(SA, QB)}
""")
for j in range(8): a(f"v_max3_f32 v{t0}, v{t0}, v{SA+2*j}, v{SA+2*j+1}")
a(f"""
s_add_u32 s{sT[0]}, s{sT[0]}, 2048
s_cmp_lt_u32 s{sT[0]}, {WS_KV + 64*2048}
s_cbranch_scc1 L_tm1
v_mov_b32 v{t1}, v{t0}
v_permlane32_swap_b32 v{t0}, v{t1}
v_max_f32 v{t0}, v{t0}, v{t1}
""")
for r in range(16): a(f"v_sub_f32 v{CM+r}, 0, v{t0}\nv_mov_b32 v{OB+r}, 0")
a(f"""
s_mov_b32 s{sT[0]}, {WS_KV}
L_tm2:
buffer_load_dwordx4 {vr(KF,4)}, v{vL16}, {srd(SWS)}, s{sT[0]} offen sc1
s_mov_b64 exec, s[{sT[8]}:{sT[9]}]
buffer_load_dwordx4 {vr(V1[0],4)}, v{vPV}, {srd(SWS)}, s{sT[0]} offen offset:1024 sc1
buffer_load_dwordx4 {vr(V2,4)}, v{vPV}, {srd(SWS)}, s{sT[0]} offen offset:1536 sc1
s_mov_b64 exec, -1
s_waitcnt vmcnt(0)
v_mfma_f32_32x32x16_bf16 {vr(SA,16)}, {vr(KF,4)}, {vr(QB,4)}, {vr(CM,16)}
""")
for e in range(16): a(f"v_exp_f32 v{SA+e}, v{SA+e}")
a(pv(OB, V1[0], SA)); a(pv(OB, V2, SA + 8))
a(f"""
s_add_u32 s{sT[0]}, s{sT[0]}, 2048
s_cmp_lt_u32 s{sT[0]}, {WS_KV + 64*2048}
s_nop 7
s_cbranch_scc1 L_tm2
s_nop 7
v_rcp_f32 v{t0}, v{OB+8}
s_nop 0
v_mul_f32 v{t0}, v{t0}, v{vG}
""")
for j in range(4): a(f"v_pk_mul_f32 {vr(OB+2*j,2)}, {vr(OB+2*j,2)}, {vr(t0,2)} op_sel_hi:[1,0]")
for j in range(4): a(f"v_cvt_pk_bf16_f32 v{OS+j}, v{OB+2*j}, v{OB+2*j+1}")
a(f"v_or_b32 v{OS}, 1, v{OS}")
a("s_branch L_norm\nL_last:")

bad = a.check_branches()
assert not bad, bad

hdr = open(f'cdna_kernels/{NAME}.s.ref').read().split('\n')
head = [l for l in hdr if l.startswith(';') and '@launch' not in l]
body = a.text()
if OPT.get('jit'):
    import random
    rnd = random.Random(OPT['jit']); o = []; n = 0
    for l in body.split('\n'):
        t = l.strip()
        if (t.startswith(('buffer_store', 'ds_write_b128')) or (o and o[-1].strip() == 's_barrier')) and rnd.random() < 0.5:
            n += 1
            o += [f"    s_cselect_b32 s31, 1, 0", f"    s_add_u32 s30, s2, s{sMW}", f"    s_mul_i32 s30, s30, {rnd.randrange(1 << 20, 1 << 30) | 1}", f"    s_bitcmp1_b32 s30, 27",
                  f"    s_cbranch_scc0 L_jit{n}", f"    s_sleep {rnd.randrange(1, 40)}", f"L_jit{n}:", f"    s_cmp_lg_u32 s31, 0"]
        o.append(l)
    body = '\n'.join(o)
if OPT.get('stm'):
    import re
    body = re.sub(r'(buffer_store_dwordx4 .*s\[52:55\].*) sc1', lambda m: m.group(1) + [' sc1', ' sc1 nt', ' sc0 sc1', ' sc0 sc1 nt'][OPT['stm']], body)
out = "\n".join(head) + f"\n; @launch grid=(256,1,1) block=(512,1,1) lds={LDS_BYTES}\n"
out += f""".amdgcn_target "amdgcn-amd-amdhsa--gfx950"
.text
.globl {NAME}_kernel
.p2align 8
.type {NAME}_kernel,@function
{NAME}_kernel:
{body}
.section .rodata,"a"
.p2align 6
.amdhsa_kernel {NAME}_kernel
  .amdhsa_next_free_vgpr 256
  .amdhsa_next_free_sgpr 102
  .amdhsa_accum_offset 256
  .amdhsa_group_segment_fixed_size 0
  .amdhsa_kernarg_size 104
  .amdhsa_user_sgpr_count 2
  .amdhsa_user_sgpr_kernarg_segment_ptr 1
  .amdhsa_system_sgpr_workgroup_id_x 1
.end_amdhsa_kernel
"""
open(sys.argv[1], 'w').write(out)
print("instructions:", sum(1 for i in a.ins if i.ws), "auto nops:", a.nnop, file=sys.stderr)
```

```python
import sys, math, struct
sys.path.insert(0, 'gen')
from asmlib import Asm

NAME = 'gated_mix__grouped_kv_mqa__geglu_ffn__prompt'
OPT = dict(stamp=0, grp=0, force_fb=0, qflag=11, s1=16, b2=22, outm=1, ofast=0,
           p_kv=20, p_kvs=40, p_st=1, p_sts=40, p_fill=160, p_fills=70, p_kv2=390, p_f2=440, p_chk=470, d0=16, dend=32,
           late=0, pk2=1, nearly=1, h0w=24, h1w=30, clw=22, na=1, gend=30, dwt=0, qbar=0, cpf=1, qmode=0, qf=11, exs=1, spf=1, pb=2, pbq0=0, rq=1, rg=1, r1=1, qfirst=0, vlate=0, jearly=5, xsite=5, woe=0, oe=0, tlb=0, rotm=2, rots=12, dxs=3, wt=1, mpf=21, pal=1, qs=2, qe=0, wt2=0, xf=1, p_xl=900, mv64=0, gb9=0, chk=1, rota=1, drot=42, kvr=4, oG=576, oK=384, oP=896, oS=448, hst=0, oz=0, eb0=0, lb1=50, lb3=92, lc1=70, jlate=0, s1slp=0, s1w=30, lad=1, gb14=1, gbar=0)
for x in sys.argv[2:]:
    k, v = x.split('='); OPT[k] = int(v)

OPT['oV'] = OPT['oK']; OPT['oC'] = min(OPT['oG'], 448)
def fbits(x): return struct.unpack('<I', struct.pack('<f', x))[0]

WS_KV, WS_G, WS_F1, WS_Q, WS_H, WS_STAMP = 0, 0x20000, 0x30000, 0x300000, 0x500000, 0xC00000
WS_O = WS_Q
WS_F2 = WS_F1 + 8192
WS_X = 0x40000
WS_SIZE = 0x1000000
CLEAR_WG = 128
WR, EX = 65536, 131072
NSLOT, HALF, RING = 24, 49152, 98304
MERGE = 65536
LDS_BYTES = 163840
SPIN = 0x400000
SX, SWG, SWU, SWQ, SEX, SWS, SDBG, SWD, SWO, SOUT = 32, 36, 40, 44, 48, 52, 56, 60, 64, 92
sW, sTI, sQ, sU, sROT, sXO, sWOF, sMX, sMW, sI, sJ, sROT0 = range(68, 80)
sT = list(range(80, 90))
sEXW, sEXO = 90, 91
sC1 = 96
sF2, sRH, sRING, sOO = 98, 99, 100, 101
sHO, sH1 = 3, 0
sKVM, sKVO, sQA, sGA = sT[3], sT[5], 1, sROT0
sF2R, sF2W = sC1 + 1, sF2
sR = [sRH, 44, 45, 47]
def srd(n): return f"s[{n}:{n+3}]"
def vr(b, n): return f"v[{b}:{b+n-1}]"

vXS0, vXS1, vWS = 1, 2, 3
vST = 4
vXR = [5, 6, 7, 8]
vWR = [9, 10]
vES, vER, vSA = 11, [12, 13], 30
vL16, vLANE = 14, 15
vC0 = 16
vZ = 17
vGT = 18
t0, t1, t2, t3 = 20, 21, 22, 23
vS0, vWS2 = 28, 27
vPV, vPD, vTRP = 29, 0, 31
F = [32, 48]
ACC = [64, 96]
XF = 128
ACCE, WE = 96, 100
GW = 147456
L = vLANE
QA, QB, KF, V2, V1 = 128, 132, 136, 140, [144, 148]
vG, vIDX, vAK, vAV, vKVS = 152, 154, 24, 25, 26
vDR0, vDR1, vH0, vH1 = 159, 160, 161, 162
vDS, vDS1, vF2 = vPD, 158, 163
F2D = 164
vONE = 168
QX, OX, PX, vL4 = 48, 32, 4, 13
sXW, sXR, sQX = 32, 33, 34
vM = [169, 170, 171, 172]
OA, OB, SA, SB = 176, 192, 208, 224
WF = [240, 248]
HF = [32, 40, 48, 56]
DACC = 64

a = Asm()
CLK = 's_memtime' if OPT['stamp'] == 2 else 's_memrealtime'
def stamp(k, grp=0):
    if grp != OPT['grp'] and k != 11: return
    if OPT['stamp']: a(f"{CLK} s[{4+2*k}:{5+2*k}]")
def mk_srd(n, p, size):
    a(f"s_mov_b32 s{n}, s{p}\ns_mov_b32 s{n+1}, s{p+1}\ns_mov_b32 s{n+2}, {size}\ns_mov_b32 s{n+3}, 0x20000")

PG = 3584
C0 = -2.0 * math.sqrt(2.0 / math.pi) * math.log2(math.e)
C1 = C0 * 0.044715
QS = 0.25 * math.log2(math.e)

a("s_cmp_ge_u32 s2, 256\ns_cbranch_scc1 L_end")
a("s_load_dwordx16 s[4:19], s[0:1], 0\ns_load_dwordx8 s[20:27], s[0:1], 64\ns_load_dwordx2 s[28:29], s[0:1], 96")
if OPT['stamp']: a(f"{CLK} s[30:31]")
def code_prefetch():
    a(f"""
    s_getpc_b64 s[{sT[8]}:{sT[9]}]
    L_pc:
    s_andn2_b32 s{sT[7]}, s2, 7
    s_lshl_b32 s{sT[7]}, s{sT[7]}, 8
    v_lshl_add_u32 v{t3}, v0, 2, s{sT[7]}
    v_min_u32 v{t3}, L_last-L_pc-4, v{t3}
    s_mov_b32 exec_lo, 1
    s_mov_b32 exec_hi, 1
    global_load_dword v{vS0}, v{t3}, s[{sT[8]}:{sT[9]}]
    s_mov_b64 exec, -1
    """)
if OPT['cpf'] == 1: code_prefetch()
CH1, CH2 = [0] * 16, [0] * 16
for q_ in range(4):
    if OPT['chk']:
        slow = [r for r in range(7) if (7 * q_ + r) % 4 == 3]; order = slow + [r for r in range(7) if r not in slow]
        CH2[4*q_+3], CH2[4*q_+2], CH2[4*q_+1], CH2[4*q_], CH1[4*q_+1], CH1[4*q_+2], CH1[4*q_+3] = order
    else:
        for u_ in range(4): CH2[4*q_+u_] = 2 * u_; CH1[4*q_+u_] = max(2 * u_ - 1, 0)
def chunk_of(tab, dst, tmp):
    v = sum(x << (4 * i) for i, x in enumerate(tab))
    return f"""s_mov_b32 s{tmp}, {v & 0xffffffff:#x}
s_mov_b32 s{tmp+1}, {v >> 32:#x}
s_lshl2_add_u32 s{dst}, s{sQ}, s{sU}
s_lshl_b32 s{dst}, s{dst}, 2
s_lshr_b64 s[{tmp}:{tmp+1}], s[{tmp}:{tmp+1}], s{dst}
s_and_b32 s{tmp}, s{tmp}, 7
s_mul_i32 s{dst}, s{sQ}, 7
s_add_u32 s{dst}, s{dst}, s{tmp}"""
ROTC = {8: f"s_lshl1_add_u32 s{sROT0}, s{sU}, s{sJ}\ns_and_b32 s{sROT0}, s{sROT0}, 7",
        4: f"s_add_u32 s{sROT0}, s{sU}, s{sJ}\ns_and_b32 s{sROT0}, s{sROT0}, 3\ns_lshl_b32 s{sROT0}, s{sROT0}, 1",
        2: f"s_add_u32 s{sROT0}, s{sU}, s{sJ}\ns_and_b32 s{sROT0}, s{sROT0}, 1\ns_lshl_b32 s{sROT0}, s{sROT0}, 2",
        3: f"s_add_u32 s{sROT0}, s{sU}, s{sJ}\ns_lshl_b32 s{sROT0}, s{sROT0}, 1\ns_lshr_b32 s{sROT0}, 0x124924, s{sROT0}\ns_and_b32 s{sROT0}, s{sROT0}, 3\ns_mul_i32 s{sROT0}, s{sROT0}, 3",
        1: f"s_mov_b32 s{sROT0}, 0"}[OPT['rotm']]
if OPT['rots']:
    ROTC += f"\ns_bfe_u32 s{sQ}, s2, 0x20001\ns_mul_i32 s{sT[1]}, s{sQ}, {OPT['rots'] // 10}\ns_add_u32 s{sROT0}, s{sROT0}, s{sT[1]}\ns_mul_i32 s{sT[1]}, s{sT[2]}, {OPT['rots'] % 10}\ns_add_u32 s{sROT0}, s{sROT0}, s{sT[1]}\n" + (f"s_add_u32 s{sROT0}, s{sROT0}, {OPT['rota']}\n" if OPT['rota'] else "") + f"s_and_b32 s{sROT0}, s{sROT0}, 7"
a(f"""
v_readfirstlane_b32 s{sW}, v0
v_lshrrev_b32 v{t1}, 4, v0
v_lshrrev_b32 v{t0}, 3, v0
v_xor_b32 v{t1}, v0, v{t1}
s_lshr_b32 s{sU}, s2, 6
s_bfe_u32 s{sJ}, s2, 0x30003
v_and_b32 v{t1}, 7, v{t1}
s_and_b32 s{sT[2]}, s2, 1
s_lshl3_add_u32 s{sTI}, s{sT[2]}, s{sJ}
v_lshlrev_b32 v{t1}, 4, v{t1}
{ROTC}
v_lshl_add_u32 v{vXS0}, v{t0}, 10, v{t1}
s_lshl_b32 s{sT[0]}, s{sTI}, 17
s_lshl_b32 s{sXO}, s{sROT0}, 7
s_add_u32 s{sXO}, s{sXO}, s{sT[0]}
s_lshl_b32 s{sMW}, s{sW}, 4
s_mov_b32 m0, s{sMW}
s_mov_b32 s{SX+2}, {2048*1024}
s_mov_b32 s{SX+3}, 0x20000
""")
a(f"""
s_bfe_u32 s{sT[1]}, s{sW}, 0x10006
s_lshl_b32 s{sT[1]}, s{sT[1]}, 2
v_and_or_b32 v{t1}, v{t0}, 2, s{sT[1]}
s_bfe_u32 s{sQ}, s2, 0x20001
v_xor_b32 v{t1}, v0, v{t1}
{chunk_of(CH1, sT[1], sT[4])}
v_and_b32 v{t1}, 7, v{t1}
s_lshl_b32 s{sT[2]}, s{sQ}, 1
s_movk_i32 s{sT[3]}, {PG}
v_lshlrev_b32 v{vWS2}, 4, v{t1}
s_mov_b32 s{SWG+3}, 0x20000
s_mov_b32 s{SWU+3}, 0x20000
s_cmp_eq_u32 s{sU}, 0
s_cselect_b32 s{sT[1]}, s{sT[2]}, s{sT[1]}
s_cselect_b32 s{sT[3]}, 1024, s{sT[3]}
s_cselect_b32 s{sT[2]}, 128, 0
v_mad_u32_u24 v{vWS}, v{t0}, s{sT[3]}, v{vWS2}
s_lshl_b32 s{SWG+2}, s{sT[3]}, 9
s_mov_b32 s{SWU+2}, s{SWG+2}
s_mul_i32 s{sWOF}, s{sROT0}, s{sT[3]}
s_lshl1_add_u32 s{sWOF}, s{sT[1]}, s{sWOF}
s_lshl_b32 s{sWOF}, s{sWOF}, 6
s_cmp_eq_u32 s{sU}, 0
{CLK + ' s[84:85]' if OPT['grp'] == 5 else ''}
s_waitcnt lgkmcnt(0)
{CLK + ' s[86:87]' if OPT['grp'] == 5 else ''}
s_mov_b64 s[{SX}:{SX+1}], s[4:5]
s_cselect_b64 s[{SWG}:{SWG+1}], s[6:7], s[16:17]
s_cselect_b64 s[{SWU}:{SWU+1}], s[6:7], s[18:19]
""")
def first_stage(x0, x1, xstep, wstep):
    a(f"""
    buffer_load_dwordx4 v{x0}, {srd(SX)}, s{sXO} offen lds
    s_add_u32 m0, s{sMW}, {WR}
    s_add_u32 s{sXO}, s{sXO}, {xstep}
    buffer_load_dwordx4 v{vWS}, {srd(SWG)}, s{sWOF} offen lds
    s_add_u32 m0, s{sMW}, {WR + 8192}
    s_add_u32 s{sWOF}, s{sWOF}, {wstep}
    buffer_load_dwordx4 v{vWS}, {srd(SWU)}, s{sWOF} offen lds
    s_add_u32 m0, s{sMW}, 8192
    s_nop 0
    buffer_load_dwordx4 v{x1}, {srd(SX)}, s{sXO} offen lds
    """)
if OPT['qfirst']: a("s_cbranch_scc0 L_late")
first_stage(vXS0, vXS0, 65536, f"s{sT[2]}")
if OPT['wt']:
    assert not OPT['qfirst']
    a(f"""
    s_lshr_b32 s{sT[4]}, s{sW}, 7
    s_lshr_b32 s{sT[5]}, s{sJ}, 1
    s_cmp_lg_u32 s{sT[4]}, s{sT[5]}
    s_cbranch_scc1 L_nowt
    s_add_u32 s{sT[4]}, s{sROT0}, 1
    s_and_b32 s{sT[4]}, s{sT[4]}, 7
    s_mul_i32 s{sT[4]}, s{sT[4]}, s{sT[3]}
    s_lshl1_add_u32 s{sT[4]}, s{sT[1]}, s{sT[4]}
    s_lshl_b32 s{sT[4]}, s{sT[4]}, 6
    buffer_load_dword v32, v{vWS}, {srd(SWG)}, s{sT[4]} offen
    s_add_u32 s{sT[4]}, s{sT[4]}, s{sT[2]}
    buffer_load_dword v33, v{vWS}, {srd(SWU)}, s{sT[4]} offen
    L_nowt:
    """)
if OPT['qfirst']: a("L_late:")
if OPT['grp'] == 5: a(f"{CLK} s[88:89]\ns_waitcnt lgkmcnt(0)\ns_mov_b32 s4, s84\ns_mov_b32 s14, s86\ns_mov_b32 s5, s88")
a(f"""
s_lshr_b32 s{sW}, s{sW}, 6
v_add_u32 v{vXS0}, s{sT[0]}, v{vXS0}
v_add_u32 v{vXS1}, 0x10000, v{vXS0}
s_sub_u32 s{sXO}, s{sXO}, s{sT[0]}
s_mov_b32 s{sH1}, s{sT[1]}
s_lshl_b32 s{sT[1]}, s{sT[1]}, 7
s_sub_u32 s{sWOF}, s{sWOF}, s{sT[1]}
v_add_u32 v{vWS}, s{sT[1]}, v{vWS}
s_movk_i32 s{sT[3]}, {PG}
v_mad_u32_u24 v{vWS2}, v{t0}, s{sT[3]}, v{vWS2}
{chunk_of(CH2, sHO, sT[4])}
s_lshl_b32 s{sT[1]}, s{sHO}, 7
v_add_u32 v{vWS2}, s{sT[1]}, v{vWS2}
v_and_b32 v{L}, 63, v0
v_lshlrev_b32 v{vL16}, 4, v{L}
s_and_b32 s{sT[0]}, s2, 7
s_lshl2_add_u32 s{sI}, s{sT[0]}, s{sU}
s_add_u32 s{sROT}, s{sROT0}, 1
s_and_b32 s{sROT}, s{sROT}, 7
s_lshl_b32 s{sMX}, s{sW}, 11
""")
def late_loads(k):
    if OPT['qfirst'] != k: return
    a(f"s_cmp_eq_u32 s{sU}, 0\ns_cbranch_scc1 L_early")
    first_stage(vXS0, vXS1, 0, 0)
    a("L_early:")
late_loads(1)
def dispatch():
    a(f"""
    s_lshr_b32 s{sT[1]}, s{sW}, 2
    s_lshl1_add_u32 s{sT[0]}, s{sU}, s{sT[1]}
    s_lshr_b32 s{sT[1]}, s{sQ}, 1
    s_lshl1_add_u32 s{sT[0]}, s{sT[0]}, s{sT[1]}
    s_cmp_eq_u32 s{sT[0]}, 0
    s_cbranch_scc1 L_pathK
    s_cmp_eq_u32 s{sT[0]}, 1
    s_cbranch_scc1 L_pathV
    s_cmp_lt_u32 s{sT[0]}, 4
    s_cbranch_scc1 L_pathP
    s_cmp_eq_u32 s{sT[0]}, 4
    s_cbranch_scc1 L_pathS
    s_add_u32 s{sT[0]}, s{sMW}, s2
    s_cmp_eq_u32 s{sT[0]}, {CLEAR_WG + 1024}
    s_cbranch_scc1 L_pathC
    """)

PATH = ['G']
def wslot(sig):
    if sig < 8: return WR + (sig & 3) * 16384
    if sig >= 14: return EX + (sig - 14) * 16384
    return (0 if sig & 1 else WR) + ((sig - 8) >> 1) * 16384
def waddr(sig, b):
    return {0: vXR[b], 1: vWR[b], 2: vXR[2 + b]}[wslot(sig) >> 16]

def dma_ops(sig, path):
    p = sig >> 3
    isq = (path in 'KVP' and p == 0)
    pitch = 1024 if isq else PG
    sa, sb = (SWQ, SWQ) if isq else (SWG, SWU)
    xs, ws = (sig & 3) * 16384, wslot(sig)
    pre = f"s_mul_i32 s{sWOF}, s{sROT}, {64*pitch}\n"
    mid = f"s_add_u32 s{sWOF}, s{sWOF}, 128\n" if isq else ""
    inc, wrap = f"s_add_u32 s{sROT}, s{sROT}, 1\n", f"s_and_b32 s{sROT}, s{sROT}, 7\n"
    vw = vWS2 if p == 1 else vWS
    wa = f"s_add_u32 m0, s{sMW}, {ws}\n{{}}buffer_load_dwordx4 v{vw}, {srd(sa)}, s{sWOF} offen lds"
    wb = f"s_add_u32 m0, s{sMW}, {ws+8192}\n{{}}buffer_load_dwordx4 v{vw}, {srd(sb)}, s{sWOF} offen lds"
    if p == 0:
        return [f"s_add_u32 m0, s{sMW}, {xs}\ns_lshl_b32 s{sXO}, s{sROT}, 7\nbuffer_load_dwordx4 v{vXS0}, {srd(SX)}, s{sXO} offen lds",
                wa.format(pre), wb.format(mid + inc),
                f"s_add_u32 m0, s{sMW}, {xs+8192}\n{wrap}buffer_load_dwordx4 v{vXS1}, {srd(SX)}, s{sXO} offen lds"]
    return [wa.format(pre), wb.format(inc + wrap)]

DROT = {8: f"s_mul_i32 s{sRH}, s{sJ}, 7\ns_lshr_b32 s{sRH}, s{sRH}, 2\ns_mul_i32 s{sT[1]}, s{sU}, 7\ns_lshr_b32 s{sT[1]}, s{sT[1]}, 1\ns_add_u32 s{sRH}, s{sRH}, s{sT[1]}",
        4: f"s_add_u32 s{sRH}, s{sJ}, s{sU}\ns_and_b32 s{sRH}, s{sRH}, 3\ns_mul_i32 s{sRH}, s{sRH}, 7\ns_lshr_b32 s{sRH}, s{sRH}, 1",
        2: f"s_add_u32 s{sRH}, s{sJ}, s{sU}\ns_and_b32 s{sRH}, s{sRH}, 1\ns_mul_i32 s{sRH}, s{sRH}, 7",
        42: f"s_lshl1_add_u32 s{sRH}, s{sJ}, s{sU}\ns_and_b32 s{sRH}, s{sRH}, 3\ns_mul_i32 s{sRH}, s{sRH}, 7\ns_lshr_b32 s{sRH}, s{sRH}, 1"}[OPT['drot']]
def setup_common():
    mk_srd(SWS, 28, WS_SIZE)
    if OPT.get('wso'): a(f"s_add_u32 s{SWS}, s{SWS}, {OPT['wso'] << 20}\ns_addc_u32 s{SWS+1}, s{SWS+1}, 0")
    mk_srd(SDBG, 26, 256); mk_srd(SWD, 20, 1792 * 1024); mk_srd(SWO, 12, 512 * 1024); mk_srd(SOUT, 24, 2048 * 1024)
    late_loads(2)
    a(f"""
    s_and_b32 s{sT[0]}, s{sW}, 3
    s_lshr_b32 s{sT[1]}, s{sW}, 2
    s_xor_b32 s{sT[5]}, s{sT[1]}, s{sQ}
    s_and_b32 s{sT[5]}, s{sT[5]}, 1
    s_lshl1_add_u32 s{sT[0]}, s{sT[0]}, s{sT[5]}
    s_lshl_b32 s{sT[0]}, s{sT[0]}, 11
    v_and_b32 v{t0}, 15, v{L}
    v_bfe_u32 v{t1}, v{L}, 1, 3
    v_lshrrev_b32 v{t2}, 4, v{L}
    v_xor_b32 v{t1}, v{t1}, v{t2}
    v_lshlrev_b32 v{t1}, 4, v{t1}
    v_lshl_add_u32 v{t1}, v{t0}, 7, v{t1}
    v_add_u32 v{vXR[0]}, s{sT[0]}, v{t1}
    v_xor_b32 v{vXR[1]}, 0x800, v{vXR[0]}
    v_xor_b32 v{vXR[2]}, 64, v{vXR[0]}
    v_xor_b32 v{vXR[3]}, 64, v{vXR[1]}
    s_lshl_b32 s{sT[2]}, s{sT[5]}, 8
    v_xor_b32 v{vST}, s{sT[2]}, v{vL16}
    """)
    a(f"""
    v_lshrrev_b32 v{t3}, 5, v{L}
    v_lshlrev_b32 v{t0}, 4, v{t0}
    v_lshl_add_u32 v{vPV}, v{t3}, 8, v{t0}
    """)
    late_loads(3)
    a(f"""
    v_bfe_u32 v{t0}, v{L}, 2, 2
    v_lshl_add_u32 v{t1}, v{t2}, 3, v{t0}
    v_lshlrev_b32 v{t1}, 7, v{t1}
    v_bfe_u32 v{t2}, v{L}, 3, 2
    s_lshl_b32 s{sT[1]}, s{sT[1]}, 1
    v_xor_b32 v{t2}, s{sT[1]}, v{t2}
    v_lshl_add_u32 v{t1}, v{t2}, 5, v{t1}
    v_and_b32 v{t2}, 3, v{L}
    v_lshl_add_u32 v{t1}, v{t2}, 3, v{t1}
    v_add_u32 v{vWR[0]}, {WR}, v{t1}
    v_xor_b32 v{vWR[1]}, 32, v{vWR[0]}
    """)
    a(f"""
    v_lshl_add_u32 v{t3}, v{t3}, 3, v{t0}
    v_lshlrev_b32 v{t3}, 7, v{t3}
    v_lshrrev_b32 v{t0}, 1, v{t0}
    v_lshl_add_u32 v{t3}, v{t0}, 6, v{t3}
    v_lshl_add_u32 v{t3}, v{t2}, 3, v{t3}
    v_bfe_u32 v{t2}, v{L}, 4, 1
    v_lshl_add_u32 v{vTRP}, v{t2}, 5, v{t3}
    v_lshlrev_b32 v{t2}, 2, v{t2}
    v_and_b32 v{t1}, 7, v{L}
    v_xor_b32 v{t1}, v{t1}, v{t2}
    v_lshlrev_b32 v{t1}, 4, v{t1}
    v_lshrrev_b32 v{t0}, 3, v{L}
    v_lshl_add_u32 v{t0}, v{t0}, 10, v{t1}
    s_lshl_b32 s{sT[0]}, s{sJ}, 7
    v_add_u32 v{vPD}, s{sT[0]}, v{t0}
    v_mov_b32 v{vZ}, 0
    v_mov_b32 v{vC0}, {fbits(C0):#x}
    s_mov_b32 s{sC1}, {fbits(C1):#x}
    """)
    late_loads(4)
    a(f"""
    s_lshr_b32 s{sT[3]}, s{sW}, 2
    s_and_b32 s{sT[1]}, s{sW}, 3
    s_lshl2_add_u32 s{sT[0]}, s{sTI}, s{sT[1]}
    s_lshl_b32 s{sT[8]}, s{sT[0]}, 5
    s_and_b32 s{sT[2]}, s{sT[0]}, 15
    s_lshr_b32 s{sT[0]}, s{sT[0]}, 4
    s_mul_i32 s{sT[0]}, s{sT[0]}, 112
    s_lshl1_add_u32 s{sT[0]}, s{sT[3]}, s{sT[0]}
    s_lshl4_add_u32 s{sT[0]}, s{sT[0]}, s{sT[2]}
    s_lshl_b32 s{sT[0]}, s{sT[0]}, 10
    s_add_u32 s{sT[0]}, s{sT[0]}, {WS_H}
    s_lshl_b32 s{sHO}, s{sHO}, 16
    s_add_u32 s{sHO}, s{sHO}, s{sT[0]}
    s_lshl_b32 s{sH1}, s{sH1}, 16
    s_add_u32 s{sH1}, s{sH1}, s{sT[0]}
    s_lshl3_add_u32 s{sT[4]}, s{sQ}, s{sT[8]}
    s_lshl1_add_u32 s{sT[4]}, s{sT[3]}, s{sT[4]}
    s_lshl_b32 s{sT[4]}, s{sT[4]}, 10
    s_lshl2_add_u32 s{sF2}, s{sTI}, s{sQ}
    s_lshl_b32 s{sF2}, s{sF2}, 5
    s_add_u32 s{sF2}, s{sF2}, s{sU}
    s_lshl_b32 s{sF2}, s{sF2}, 2
    s_add_u32 s{sF2}, s{sF2}, {WS_F2}
    s_lshl1_add_u32 s{sT[1]}, s{sI}, s{sT[3]}
    s_lshl3_add_u32 s{sT[2]}, s{sT[1]}, s{sJ}
    s_and_b32 s{sT[1]}, s{sW}, 3
    s_lshl2_add_u32 s{sT[2]}, s{sT[2]}, s{sT[1]}
    s_lshl_b32 s{sOO}, s{sT[2]}, 10
    s_lshl_b32 s{sRING}, s{sW}, 13
    s_add_u32 s{sRING}, s{sRING}, {RING}
    {DROT}
    s_and_b32 s{sT[1]}, s2, {OPT['dxs']}
    s_add_u32 s{sRH}, s{sRH}, s{sT[1]}
    s_cmp_ge_u32 s{sRH}, 14
    s_cselect_b32 s{sT[1]}, 14, 0
    s_sub_u32 s{sRH}, s{sRH}, s{sT[1]}
    s_lshl_b32 s{sRH}, s{sRH}, 14
    s_mul_i32 s{sT[1]}, s{sW}, {14*16384}
    s_add_u32 s{SWD}, s{SWD}, s{sT[1]}
    s_addc_u32 s{SWD+1}, s{SWD+1}, 0
    s_sub_u32 s{SWD+2}, s{SWD+2}, s{sT[1]}
    s_lshl_b32 s{sT[1]}, s{sW}, 16
    s_add_u32 s{SWO}, s{SWO}, s{sT[1]}
    s_addc_u32 s{SWO+1}, s{SWO+1}, 0
    s_sub_u32 s{SWO+2}, s{SWO+2}, s{sT[1]}
    """)

def setup_path(P):
    if P in 'GC' and OPT['mpf']:
        a(f"""
        s_cmp_eq_u32 s{sU}, 2
        s_cselect_b64 s[{SEX}:{SEX+1}], s[{SWD}:{SWD+1}], s[{SWO}:{SWO+1}]
        s_cselect_b32 s{SEX+2}, s{SWD+2}, s{SWO+2}
        s_cselect_b32 s{sT[0]}, 28, 8
        s_mov_b32 s{SEX+3}, 0x20000
        s_cmp_eq_u32 s{sU}, 1
        s_cselect_b32 s{SEX+2}, 0, s{SEX+2}
        s_and_b32 s{sT[1]}, s2, 63
        s_mul_i32 s{sT[1]}, s{sT[1]}, s{sT[0]}
        s_sub_u32 s{sT[0]}, s{sT[0]}, 1
        v_min_u32 v{vES}, s{sT[0]}, v{L}
        v_add_lshl_u32 v{vES}, v{vES}, s{sT[1]}, 7
        """)
    if P in 'KV':
        a(f"""
        v_lshrrev_b32 v{t2}, 4, v{L}
        v_and_b32 v{t0}, 15, v{L}
        v_lshlrev_b32 v{t1}, 3, v{t0}
        v_lshl_add_u32 v{t1}, v{t2}, 8, v{t1}
        v_and_b32 v{t3}, 1, v{t2}
        v_lshl_add_u32 v{t1}, v{t3}, 7, v{t1}
        v_add_u32 v{vER[0]}, {EX}, v{t1}
        v_xor_b32 v{vER[1]}, 0x80, v{vER[0]}
        v_lshlrev_b32 v{t1}, 7, v{t3}
        v_xor_b32 v{vES}, v{t1}, v{vL16}
        s_add_u32 s{sEXO}, s{sW}, s{sROT0}
        s_and_b32 s{sEXO}, s{sEXO}, 7
        s_lshl_b32 s{sEXO}, s{sEXO}, 11
        s_lshr_b32 s{sEXW}, s{sT[4]}, 15
        v_lshrrev_b32 v{t2}, 1, v{t2}
        """)
        if P == 'K':
            a(f"""
            s_lshl3_add_u32 s{sEXW}, s{sEXW}, s{sT[5]}
            s_lshl_b32 s{sEXW}, s{sEXW}, 8
            v_lshlrev_b32 v{t2}, 9, v{t2}
            """)
        else:
            a(f"""
            s_lshl2_add_u32 s{sEXW}, s{sEXW}, s{sT[5]}
            s_lshl_b32 s{sEXW}, s{sEXW}, 9
            s_add_u32 s{sEXW}, s{sEXW}, 1024
            v_lshlrev_b32 v{t2}, 8, v{t2}
            v_and_b32 v{t0}, 3, v{L}
            v_bfe_u32 v{t1}, v{L}, 2, 1
            v_lshl_add_u32 v{t0}, v{t1}, 3, v{t0}
            v_bfe_u32 v{t1}, v{L}, 3, 1
            v_lshl_add_u32 v{t0}, v{t1}, 2, v{t0}
            """)
        a(f"""
        v_lshl_add_u32 v{t2}, v{t0}, 4, v{t2}
        v_lshl_add_u32 v{vSA}, v{t3}, 3, v{t2}
        """)
    if P == 'P':
        a(f"""
        v_bfe_u32 v{t1}, v{L}, 4, 1
        v_lshlrev_b32 v{t1}, 7, v{t1}
        v_xor_b32 v{vES}, v{t1}, v{vL16}
        s_add_u32 s{sEXO}, s{sW}, s{sROT0}
        s_and_b32 s{sEXO}, s{sEXO}, 7
        s_lshl_b32 s{sEXO}, s{sEXO}, 11
        """)
    if P == 'S':
        a(f"""
        s_lshl_b32 s{sEXO}, s{sROT0}, 7
        v_add_u32 v{vES}, s{sEXO}, v{vL16}
        v_and_b32 v{vES}, 0x3ff, v{vES}
        v_and_b32 v{t0}, 48, v{L}
        v_add_u32 v{vER[0]}, {GW}, v{t0}
        v_and_b32 v{t0}, 15, v{L}
        v_lshlrev_b32 v{vSA}, 2, v{t0}
        s_lshr_b32 s{sEXW}, s{sT[4]}, 15
        s_lshl1_add_u32 s{sEXW}, s{sEXW}, s{sT[5]}
        s_lshl_b32 s{sEXW}, s{sEXW}, 6
        s_add_u32 s{sEXW}, s{sEXW}, {WS_G}
        """)

def x_reads(sig, j):
    return [f"ds_read_b128 {vr(XF + 16*sig + 8*j + 4*tq, 4)}, v{vXR[2*j+tq]} offset:{(sig & 3) * 16384}" for tq in range(2)]
def w_reads(sig, j, i):
    b, part = i >> 1, i & 1
    off = (wslot(sig) & 0xffff) + part * 8192 + j * 4096
    return [f"ds_read_b64_tr_b16 {vr(F[j] + 4*i + 2*e, 2)}, v{waddr(sig, b)} offset:{off + e*512}" for e in range(2)]
def e_steps(c):
    c0 = 2 * OPT['exs']
    if PATH[0] in 'KVS': return [2 * (c - c0), 2 * (c - c0) + 1] if c0 <= c < 2 * c0 else ([c] if 2 * c0 <= c < 16 else [])
    return []
def e_buf(c, i): return WE + 16 + 4 * i if (PATH[0] == 'S' and c == 15) else WE + 8 * (c & 1) + 4 * i
def e_reads(c):
    if PATH[0] == 'S':
        cs = [] if c == 15 else ([14, 15] if c == 14 else [c])
        return [f"ds_read_b128 {vr(e_buf(x, i), 4)}, v{vER[0]} offset:{k*64}" for x in cs for i, k in enumerate(e_steps(x))]
    return [f"ds_read_b64_tr_b16 {vr(e_buf(c, i) + 2*e, 2)}, v{vER[e]} offset:{k*1024}" for i, k in enumerate(e_steps(c)) for e in range(2)]
def e_mfmas(c):
    out = []
    for i, k in enumerate(e_steps(c)):
        acc, w, x = vr(ACCE, 4), vr(e_buf(c, i), 4), vr(XF + 8 * k, 4)
        A, B = (x, w) if PATH[0] == 'V' else (w, x)
        out.append(f"v_mfma_f32_16x16x32_bf16 {acc}, {A}, {B}, {'0' if k == 0 else acc}")
    return out
def mfmas(sig, j):
    out = []
    for i in range(4):
        for tq in range(2):
            d = vr(ACC[sig >> 3] + 8 * i + 4 * tq, 4)
            c = "0" if ((sig & 7) == 0 and j == 0) else d
            out.append(f"v_mfma_f32_16x16x32_bf16 {d}, {vr(F[j] + 4*i, 4)}, {vr(XF + 16*(sig&7) + 8*j + 4*tq, 4)}, {c}")
    return out

def gelu_pair(base, j, T=vGT, pk=False):
    G = vr(base + 2 * j, 2); U = vr(base + 8 + 2 * j, 2); TT = vr(T, 2)
    g0, g1, u0, u1 = base + 2 * j, base + 2 * j + 1, base + 8 + 2 * j, base + 9 + 2 * j
    if pk:
        return [f"v_pk_mul_f32 {TT}, {G}, {G}",
                f"v_pk_fma_f32 {TT}, {TT}, s[{sC1}:{sC1+1}], {vr(vC0,2)} op_sel_hi:[1,0,0]",
                f"v_pk_mul_f32 {TT}, {TT}, {G}",
                f"v_exp_f32 v{T}, v{T}", f"v_exp_f32 v{T+1}, v{T+1}",
                f"v_pk_mul_f32 {G}, {G}, {U}",
                f"v_pk_add_f32 {TT}, {TT}, 1.0 op_sel_hi:[1,0]",
                f"v_rcp_f32 v{T}, v{T}", f"v_rcp_f32 v{T+1}, v{T+1}",
                f"v_pk_mul_f32 {G}, {G}, {TT}",
                f"v_cvt_pk_bf16_f32 v{base+j}, v{g0}, v{g1}"]
    return [f"v_mul_f32 v{T}, v{g0}, v{g0}", f"v_mul_f32 v{T+1}, v{g1}, v{g1}",
            f"v_fma_f32 v{T}, v{T}, s{sC1}, v{vC0}", f"v_fma_f32 v{T+1}, v{T+1}, s{sC1}, v{vC0}",
            f"v_mul_f32 v{T}, v{T}, v{g0}", f"v_mul_f32 v{T+1}, v{T+1}, v{g1}",
            f"v_exp_f32 v{T}, v{T}", f"v_exp_f32 v{T+1}, v{T+1}",
            f"v_mul_f32 v{g0}, v{g0}, v{u0}", f"v_add_f32 v{T}, 1.0, v{T}", f"v_add_f32 v{T+1}, 1.0, v{T+1}",
            f"v_rcp_f32 v{T}, v{T}", f"v_rcp_f32 v{T+1}, v{T+1}",
            f"v_mul_f32 v{g1}, v{g1}, v{u1}",
            f"v_mul_f32 v{g0}, v{g0}, v{T}", f"v_mul_f32 v{g1}, v{g1}, v{T+1}",
            f"v_cvt_pk_bf16_f32 v{base+j}, v{g0}, v{g1}"]
def to_frag(base):
    return [f"v_permlane16_swap_b32 v{base}, v{base+2}", f"v_permlane16_swap_b32 v{base+1}, v{base+3}"]

def cost(x):
    c = 0
    for l in x.strip().split('\n'):
        l = l.strip()
        if not l or l.startswith(';') or l.endswith(':'): continue
        c += 8 if l.startswith(('v_exp', 'v_rcp')) else (OPT.get('vmc', 16) if l.startswith('buffer_') else 4)
    return c

kvtok = {}
def kv_step(m):
    slot = (4 * m % NSLOT) * 2048
    if m == 0: x = f"s_mov_b32 m0, s{sKVM}\ns_nop 0\n"
    else: x = f"s_add_u32 s{sKVO}, s{sKVO}, 8192\ns_add_u32 m0, s{sKVM}, {slot}\ns_and_b32 s{sKVO}, s{sKVO}, 0xffff\n"
    return [x + f"buffer_load_dwordx4 v{vKVS}, {srd(SWS)}, s{sKVO} offen sc1 lds", f"buffer_load_dwordx4 v{vKVS}, {srd(SWS)}, s{sKVO} offen offset:1024 sc1 lds"]
KV_FIRST = 2
def first_loads():
    return [f"buffer_load_dwordx4 {vr(QA,4)}, v{vL16}, {srd(SWS)}, s{sQA} offen sc1\ns_xor_b32 s{sQA}, s{sQA}, 1024"] + kv_step(0) + \
           [f"buffer_load_dwordx4 {vr(QB,4)}, v{vL16}, {srd(SWS)}, s{sQA} offen sc1"] + kv_step(1) + \
           ([f"buffer_load_dwordx4 {vr(QX,4)}, v{vL16}, {srd(SWS)}, s{sQX} offen sc1"] if OPT['xf'] else [])

KVR = {0: f"s_lshr_b32 s{sT[7]}, s2, 3", 1: f"s_mov_b32 s{sT[7]}, 0", 2: f"s_and_b32 s{sT[7]}, s2, 16", 3: f"s_lshl_b32 s{sT[7]}, s2, 3", 4: f"s_lshl_b32 s{sT[7]}, s2, 2"}[OPT['kvr']]
def setup_early():
    a(f"""
    s_lshr_b32 s{sT[0]}, s{sW}, 2
    s_lshl_b32 s{sT[1]}, s{sT[0]}, 16
    v_add_u32 v{vKVS}, s{sT[1]}, v{vL16}
    s_and_b32 s{sT[1]}, s{sW}, 1
    s_mul_i32 s{sT[1]}, s{sT[1]}, {HALF}
    v_add_u32 v{vAK}, s{sT[1]}, v{vL16}
    v_add_u32 v{vAV}, s{sT[1]}, v{vPV}
    s_mul_i32 s{sT[1]}, s{sT[0]}, {HALF}
    s_and_b32 s{sT[6]}, s{sW}, 3
    s_lshl_b32 s{sT[7]}, s{sT[6]}, 11
    s_add_u32 s{sKVM}, s{sT[7]}, s{sT[1]}
    {KVR}
    s_add_u32 s{sT[6]}, s{sT[6]}, s{sT[7]}
    s_and_b32 s{sT[6]}, s{sT[6]}, 31
    s_lshl_b32 s{sKVO}, s{sT[6]}, 11
    s_add_u32 s{sQA}, s{sOO}, {WS_Q}
    s_xor_b32 s{sQA}, s{sQA}, 1024
    s_lshl1_add_u32 s{sGA}, s{sI}, s{sT[0]}
    s_lshl_b32 s{sGA}, s{sGA}, 7
    s_add_u32 s{sGA}, s{sGA}, {WS_G}
    s_lshr_b32 s{sT[6]}, s{sI}, 3
    s_lshl3_add_u32 s{sT[6]}, s{sT[6]}, s{sW}
    s_mul_i32 s{sT[6]}, s{sT[6]}, {14*16}
    s_and_b32 s{sT[7]}, s{sI}, 7
    s_lshl1_add_u32 s{sT[7]}, s{sT[7]}, s{sT[0]}
    s_add_u32 s{sT[6]}, s{sT[6]}, s{sT[7]}
    s_lshl_b32 s{sT[6]}, s{sT[6]}, 10
    s_add_u32 s{sT[9]}, s{sT[6]}, {WS_H}
    s_lshr_b32 s{sF2R}, s{sI}, 1
    s_lshl_b32 s{sF2R}, s{sF2R}, 9
    s_add_u32 s{sF2R}, s{sF2R}, {WS_F2}
    s_lshl_b32 s{sT[1]}, s{sW}, 24
    s_add_u32 s{sF2W}, s{sF2}, s{sT[1]}
    s_mul_i32 s{sT[6]}, s{sW}, 2304
    s_add_u32 s{sT[6]}, s{sT[6]}, {MERGE}
    s_xor_b32 s{sT[7]}, s{sW}, 1
    s_mul_i32 s{sT[7]}, s{sT[7]}, 2304
    s_add_u32 s{sT[7]}, s{sT[7]}, {MERGE}
    """)
def setup_queue(late=False):
    q = []
    def add(st, txt):
        for l in txt.strip().split('\n'): q.append((st, l.strip().replace('|', '\n')))
    add(11, f"""
    v_and_b32 v{vG}, 31, v{L}
    v_lshlrev_b32 v{vG}, 2, v{vG}
    v_mov_b32 v{vIDX}, 0xdddddddd
    v_mov_b32 v{V2+1}, 0x3f803f80
    s_mov_b32 vcc_lo, 0x110000|s_mov_b32 vcc_hi, 0x110000|v_cndmask_b32 v{V2}, 0, v{V2+1}, vcc
    """)
    if OPT['mv64']:
        add(11, f"v_mov_b32 v{V2+1}, v{V2}")
        for r in range(V2 + 2, V2 + 12, 2): add(11, f"v_mov_b64 {vr(r,2)}, {vr(V2,2)}")
    else:
        for r in range(V2 + 1, V2 + 12): add(11, f"v_mov_b32 v{r}, v{V2}")
    add(12, f"""
    v_add_u32 v{vDR0}, s{sRING}, v{vTRP}
    v_xor_b32 v{vDR1}, 64, v{vDR0}
    v_add_u32 v{vDS1}, 7168, v{vDS}
    v_add_u32 v{vH0}, s{sT[9]}, v{vL16}
    v_xor_b32 v{vH1}, 0x400, v{vH0}
    v_lshl_add_u32 v{vF2}, v{L}, 7, s{sF2R}
    v_mov_b32 v{vONE}, 1
    v_add_u32 v{vM[0]}, s{sT[6]}, v{vL16}
    v_lshl_add_u32 v{vM[2]}, v{L}, 2, s{sT[6]}
    v_add_u32 v{vM[1]}, s{sT[7]}, v{vL16}
    v_lshl_add_u32 v{vM[3]}, v{L}, 2, s{sT[7]}
    """)
    if OPT['xf']:
        add(12, f"""
        s_lshl2_add_u32 s{sXR}, s{sJ}, s{sQ}
        s_lshl_b32 s{sXR}, s{sXR}, 7
        s_add_u32 s{sXR}, s{sXR}, {WS_F2}
        v_writelane_b32 v{vF2}, s{sXR}, 4
        v_lshlrev_b32 v{vL4}, 2, v{L}
        s_lshr_b32 s{sXW}, s2, 1
        s_lshl3_add_u32 s{sXW}, s{sXW}, s{sW}
        s_mul_i32 s{sXW}, s{sXW}, 2304
        s_add_u32 s{sXW}, s{sXW}, {WS_X}
        s_add_u32 s{sQX}, s{sOO}, {WS_Q + 8*32*1024}
        s_bitcmp1_b32 s2, 0|s_cselect_b32 s{sXR}, s{sXW}, {WS_SIZE}|s_cselect_b32 s{sQX}, {WS_SIZE}, s{sQX}
        """)
    for st, O in ((13, OA), (14, OB)):
        if OPT['oz']:
            add(st, f"buffer_load_dwordx4 {vr(O,4)}, v{vL16}, {srd(SDBG)}, 0 offen offset:256\nbuffer_load_dwordx4 {vr(O+4,4)}, v{vL16}, {srd(SDBG)}, 0 offen offset:256\nv_mov_b32 v{O+8}, 0")
        elif OPT['mv64']:
            for r in range(0, 10, 2): add(st, f"v_mov_b64 {vr(O+r,2)}, 0")
        else:
            for r in range(9): add(st, f"v_mov_b32 v{O+r}, 0")
    if OPT['vlate']:
        cut = [i for i, x in enumerate(q) if x[1].startswith(f"v_and_b32 v{vG}, 31")][0]
        if late: return [x[1] for x in q[cut:]]
        return q[:cut]
    return [] if late else q

cold = []
def s0_check(P):
    a(f"v_cmp_eq_u32 vcc, 0, v{vS0}\ns_cbranch_vccnz L_s0retry{P}\nL_s0done{P}:")
    cold.append(f"""
    L_s0retry{P}:
    s_mov_b32 s{sT[1]}, 0
    L_s0poll{P}:
    buffer_load_dword v{vS0}, v{vZ}, {srd(SDBG)}, 0 offen sc1
    s_add_u32 s{sT[1]}, s{sT[1]}, 1
    s_waitcnt vmcnt(0)
    v_cmp_eq_u32 vcc, 0, v{vS0}
    s_cbranch_vccz L_s0done{P}
    s_cmp_lt_u32 s{sT[1]}, {SPIN}
    s_cbranch_scc1 L_s0poll{P}
    s_branch L_s0done{P}
    """)
def s1_issue(P):
    a(f"s_cmp_lg_u32 s{sW}, 0\ns_cbranch_scc1 L_nopoll0{P}")
    if P in 'GSC': s0_check(P)
    a(f"""
    s_mov_b32 s{sT[1]}, {WS_F1}
    v_lshlrev_b32 v{t1}, 7, v{L}
    buffer_load_dword v{t0}, v{t1}, {srd(SWS)}, s{sT[1]} offen sc1
    L_nopoll0{P}:
    """)
    a.vm -= 1
def s1_check(P):
    a(f"""
    s_cmp_lg_u32 s{sW}, 0
    s_cbranch_scc1 L_s1done{P}
    s_mov_b32 s{sT[0]}, 0
    L_s1poll{P}:
    s_waitcnt vmcnt(0)
    v_cmp_ne_u32 vcc, 1, v{t0}
    s_cbranch_vccz L_s1done{P}
    {'s_sleep ' + str(OPT['s1slp']) if OPT['s1slp'] else ''}
    s_mov_b64 exec, vcc
    buffer_load_dword v{t0}, v{t1}, {srd(SWS)}, s{sT[1]} offen sc1
    s_mov_b64 exec, -1
    s_add_u32 s{sT[0]}, s{sT[0]}, 1
    s_cmp_lt_u32 s{sT[0]}, {SPIN}
    s_cbranch_scc1 L_s1poll{P}
    s_waitcnt vmcnt(0)
    L_s1done{P}:
    """)
    a.vm -= 1

def proj_path(P):
    tok = {}
    PATH[0] = P
    S1 = OPT['s1']
    sched = {s: [s + 2] for s in range(6)}
    ISQ = P in 'KVP'
    PB = OPT['pbq0'] if ISQ else OPT['pb']
    QF = OPT['qf']
    sched.update({6: [8, 9], 7: [10, 11], 8: [12, 13], 9: [14, 15]}); cover = {8: 9, 10: 11, 12: 15}
    if ISQ and OPT['qmode'] == 0:
        del sched[8], sched[9]
        if OPT['qs'] == 0: sched.update({10: [12, 13], 11: [14, 15]}); cover = {8: 9, 10: 11, 12: 13, 14: 15}
        elif OPT['qs'] == 1: sched.update({10: [12], 11: [13], 12: [14], 13: [15]}); cover = {8: 9, 10: 11, 12: 12, 13: 13, 14: 14, 15: 15}
        elif OPT['qs'] == 2: sched.update({10: [12, 13], 12: [14, 15]}); cover = {8: 9, 10: 11, 12: 13, 14: 15}
        elif OPT['qs'] == 3: sched.update({9: [12], 10: [13], 11: [14], 12: [15]}); cover = {8: 9, 10: 11, 12: 13, 14: 15}
    bars = set(range(8)) | set(cover) | {S1}
    if OPT['gb14']: bars |= {14}
    if OPT['gb9'] and not ISQ: bars |= {9}; cover.update({8: 8, 9: 9})
    if OPT['gbar'] and not ISQ: bars |= set(range(8, 16))
    if ISQ: bars |= {QF} | ({9} if OPT['qmode'] else set()) | (set(range(10, 16)) if OPT['qbar'] else set())
    def dma_groups(sg):
        d = dma_ops(sg, P)
        if ISQ and sg == OPT['exs']:
            d.insert(1, f"""
            s_add_u32 m0, s{sMX}, {EX}
            s_nop 0
            buffer_load_dwordx4 v{vES}, {srd(SEX)}, s{sEXO} offen lds
            buffer_load_dwordx4 v{vES}, {srd(SEX)}, s{sEXO} offen offset:1024 lds
            """)
        if P == 'S' and sg == OPT['exs']:
            d.insert(1, f"s_mov_b32 m0, {GW}\ns_nop 0\nbuffer_load_dwordx4 v{vES}, {srd(SEX)}, 0 offen lds")
        return [(x, sg if k == len(d) - 1 else None) for k, x in enumerate(d)]
    def emit(it):
        if callable(it): return it()
        a(it[0])
        if it[1] is not None: tok[it[1]] = a.lastvm()
    tok[0] = a.lastvm()
    if ISQ: mk_srd(SWQ, 6, 512 * 1024)
    if not OPT['spf']:
        for it in dma_groups(1): emit(it)
    if ISQ: mk_srd(SWG, 16, 512 * PG); mk_srd(SWU, 18, 512 * PG)
    if P in 'KVS': mk_srd(SEX, {'K': 8, 'V': 10, 'S': 22}[P], 1024 if P == 'S' else 16384)
    if P == 'P': a(f"s_cmp_lt_u32 s{sQ}, 2\ns_cselect_b64 s[{SEX}:{SEX+1}], s[8:9], s[10:11]\ns_mov_b32 s{SEX+2}, 16384\ns_mov_b32 s{SEX+3}, 0x20000")
    if OPT['wt2']:
        a(f"""
        s_bitcmp1_b32 s{sJ}, 1
        s_cselect_b64 s[28:29], s[18:19], s[16:17]
        s_lshr_b32 s{sT[0]}, s{sJ}, 2
        s_add_u32 s{sT[0]}, s{sT[0]}, s{sROT0}
        s_and_b32 s{sT[0]}, s{sT[0]}, 7
        s_mul_i32 s{sT[0]}, s{sT[0]}, {64*PG}
        s_add_u32 s28, s28, s{sT[0]}
        s_addc_u32 s29, s29, 0
        """)
    setup_path(P)
    if OPT['grp'] == 5: a("s_mov_b32 s6, s14\ns_mov_b32 s8, s5")
    stamp(3, 5)
    if OPT['spf']:
        for it in dma_groups(1): emit(it)
    stamp(4, 5)
    setup_early()
    if P == 'C':
        ctok = a(f"v_lshlrev_b32 v{t0}, 7, v{L}\ns_mov_b32 s{sT[1]}, {WS_F1}\nbuffer_store_dword v{vZ}, v{t0}, {srd(SWS)}, s{sT[1]} offen sc1")
    win = {c: [] for c in range(33)}
    box = {}; front = {}; pre8 = []; lvl = [3]
    def usable(c):
        return c % 2 == 0 or ((c + 1) // 2) not in bars
    def nxt(c):
        while not usable(c): c += 1
        return c
    if not ISQ:
        gq = []
        for b in range(2):
            for j in range(4): gq += gelu_pair(ACC[0] + 16 * b, j)
            gq += to_frag(ACC[0] + 16 * b)
            if b == 0: n0 = len(gq)
        npre = 17 * (PB - 1) if PB else 0
        pre8 += [(x, None) for j in range(max(PB - 1, 0)) for x in gelu_pair(ACC[0], j, pk=OPT.get('pbk', 0))]
        gq = gq[npre:]; n0 -= npre
        ws = [c for c in range(16, OPT['gend'] + 1) if usable(c)]
        ndma = {16: 2, 17: 2, 18: 4} if 9 not in bars else {16: 4, 18: 4}
        tot = len(gq) + OPT['dwt'] * 8
        done = 0; accw = 0
        for k, c in enumerate(ws):
            accw += OPT['dwt'] * ndma.get(c, 0)
            upto = max(done, tot * (k + 1) // len(ws) - accw)
            win[c] += [(x, None) for x in gq[done:upto]]
            if done < n0 <= upto: c0 = c
            done = upto
        assert done == len(gq)
        for b in range(OPT['nearly']):
            c = nxt(max(OPT[f'h{b}w'], c0 if b == 0 else ws[-1]))
            win[c].append((f"s_add_u32 s{sT[2]}, s{sH1}, {16384*b}\nbuffer_store_dwordx4 {vr(ACC[0]+16*b,4)}, v{vST}, {srd(SWS)}, s{sT[2]} offen sc1", None))
    else:
        qa = [f"s_add_u32 s{sT[8]}, s{sT[4]}, {WS_Q + 4096}\ns_add_u32 s{sT[4]}, s{sT[4]}, {WS_Q}"]
        if P == 'K': qa += [f"v_mul_f32 v{ACCE+r}, {fbits(QS):#x}, v{ACCE+r}" for r in range(4)]
        sts = []
        if P in 'KV':
            qa += [f"v_cvt_pk_bf16_f32 v{vGT}, v{ACCE}, v{ACCE+1}", f"v_cvt_pk_bf16_f32 v{vGT+1}, v{ACCE+2}, v{ACCE+3}"]
            sts.append(f"buffer_store_dwordx2 {vr(vGT,2)}, v{vSA}, {srd(SWS)}, s{sEXW} offen sc1")
        if P == 'P':
            sts.append(f"s_and_b32 s{sT[0]}, s{sF2}, 0xffff80\nv_lshlrev_b32 v{t2}, 2, v{L}\ns_mov_b32 exec_hi, 0\nbuffer_store_dword v{vZ}, v{t2}, {srd(SWS)}, s{sT[0]} offen sc1\ns_mov_b32 exec_hi, -1")
        def qcv(i): return [f"v_cvt_pk_bf16_f32 v{ACC[0]+8*i+j}, v{ACC[0]+8*i+2*j}, v{ACC[0]+8*i+2*j+1}" for j in range(4)]
        def qst(i): return to_frag(ACC[0] + 8 * i) + [f"v_and_b32 v{ACC[0]+8*i}, -2, v{ACC[0]+8*i}\nbuffer_store_dwordx4 {vr(ACC[0]+8*i,4)}, v{vST}, {srd(SWS)}, s{sT[8 if i & 1 else 4]} offen offset:{1024*(i>>1)} sc1"]
        mark = [lambda: box.update(q=a.lastvm())]
        T = lambda l: [(x, None) for x in l]
        if OPT['qmode'] == 0 and PB:
            pre8 += T(qa + qcv(0) + qcv(1) + qcv(2) + qcv(3) + [x for i in range(4) for x in qst(i)[:2]])
            if OPT.get('pbq'): pre8 += T(sts + [qst(i)[2] for i in range(4)]) + mark
            else: win[16] += T(sts + [qst(i)[2] for i in range(2)]); win[17] += T([qst(i)[2] for i in range(2, 4)]) + mark
        elif OPT['qmode'] == 0:
            if OPT['qe'] == 0: win[16] += T(qa + sts + qcv(0) + qcv(1) + qst(0) + qst(1)); win[17] += T(qcv(2) + qcv(3) + qst(2) + qst(3)) + mark
            elif OPT['qe'] == 1:
                win[16] += T(qa + sts + qcv(0) + qst(0)); win[17] += T(qcv(1) + qcv(2) + qst(1) + qst(2)); front[18] = T(qcv(3) + qst(3)) + mark
            else:
                win[16] += T(qa + qcv(0) + sts + qcv(1) + qst(0)); win[17] += T(qst(1) + qcv(2) + qcv(3) + qst(2)); front[18] = T(qst(3)) + mark
        elif OPT['qmode'] == 1:
            win[16] += T(qa + qcv(0) + qcv(1)); win[18] += T(sts + qst(0) + qcv(2)); win[20] += T(qcv(3) + qst(1) + qst(2) + qst(3)) + mark
        else:
            win[16] += T(qa + qcv(0) + qcv(1) + qcv(2) + qcv(3)); win[18] += T(sts + qst(0) + qst(1) + qst(2) + qst(3)) + mark
        def qflag():
            assert a.vm_done > box['s0']
            if P != 'P': s0_check(P)
            a(f"""
            s_lshl4_add_u32 s{sT[0]}, s{sQ}, s{sTI}
            s_lshl_b32 s{sT[0]}, s{sT[0]}, 7
            s_add_u32 s{sT[0]}, s{sT[0]}, {WS_F1}
            s_lshl_b32 s{sT[1]}, s{sW}, 24
            s_add_u32 s{sT[0]}, s{sT[0]}, s{sT[1]}
            v_mov_b32 v{t1}, 1
            s_mov_b64 exec, 1
            buffer_store_dword v{t1}, v{vZ}, {srd(SWS)}, s{sT[0]} offen sc1
            s_mov_b64 exec, -1
            """)
        if P != 'P': box['flag'] = qflag
    if P in 'GC' and OPT['mpf']:
        win[OPT['mpf']].insert(0, (f"buffer_load_dword v{vES}, v{vES}, {srd(SEX)}, 0 offen", None))
    if P == 'S':
        gs = [(x, None) for x in (f"v_mul_f32 v{t2}, {fbits(-math.log2(math.e)):#x}, v{ACCE}", f"v_exp_f32 v{t2}, v{t2}", f"v_add_f32 v{t2}, 1.0, v{t2}", f"v_rcp_f32 v{t2}, v{t2}",
                                  f"buffer_store_dword v{t2}, v{vSA}, {srd(SWS)}, s{sEXW} offen sc1")]
        if PB: pre8 += gs
        else: win[16] = gs + win[16]
    queue = setup_queue()
    ws = [c for c in range(21 if ISQ else 20, 2 * S1 - 1) if usable(c)]
    for k, c in enumerate(ws):
        left = [x for x in queue if 2 * x[0] - 2 <= c]
        take = min(len(left), -(-len(queue) // (len(ws) - k)))
        win[c] += [(x[1], None) for x in left[:take]]; queue = queue[take:]
    assert not queue
    win[16].insert(0, (f"v_subrev_u32 v{vXR[0]}, {WR}, v{vWR[0]}\nv_subrev_u32 v{vXR[1]}, {WR}, v{vWR[1]}\nv_add_u32 v{vXR[2]}, {WR}, v{vWR[0]}\nv_add_u32 v{vXR[3]}, {WR}, v{vWR[1]}", None))

    def cluster(c, what='mr'):
        M = mfmas(c >> 1, c & 1) if (c >= 0 and 'm' in what) else []
        em = e_mfmas(c) if M else []
        for i, x in enumerate(em): M.insert(1 + (8 // len(em) + 1) * i, x)
        d = c + 1
        R = []
        if d < 32 and 'r' in what:
            if d < 16: R += x_reads(d >> 1, d & 1)
            for i in range(4): R += w_reads(d >> 1, d & 1, i)
            R += e_reads(d)
        a.wait(a.lastlg())
        if M and not OPT['lad']: a("s_setprio 2")
        n = max(len(M), 1); k = 0
        last = n - 1 if (c & 1 or ((c >> 1) + 1) not in bars) else n - 2
        if M: last = min(last, n - 1 - OPT['rq' if ISQ else 'rg'] if c >= 16 else n - 1 - OPT['r1'])
        for i in range(n):
            if M: a(M[i])
            want = len(R) if i >= last else -(-len(R) * (i + 1) // (last + 1))
            while k < want: a(R[k]); k += 1
        if M and not OPT['lad']: a("s_setprio 0")
        if M and OPT['lad'] and lvl[0] > 0 and not (c % 2 == 0 and (c >> 1) + 1 in bars and not (c == 14 and PB)):
            lvl[0] -= 1; a(f"s_setprio {lvl[0]}")

    for sig in range(16):
        if sig == 8 and PB:
            cluster(15, 'm')
            for it in pre8: emit(it)
        if sig in bars:
            if sig in cover or sig < 8: a.wait(tok[cover.get(sig, sig)])
            if ISQ and sig == QF: a.wait(box['q'])
            if sig == S1 and P != 'P': s1_check(P)
            if OPT['lad']: lvl[0] = 3; a("s_setprio 3")
            a("s_barrier")
            if sig == QF and 'flag' in box: box['flag']()
        if sig == 1: stamp(1)
        if sig == 8: stamp(2)
        if sig < 11: stamp(sig, 1)
        if sig < 5: stamp(5 + sig, 5)
        if sig >= 6: stamp(sig - 6, 2)
        D = []
        if P == 'C' and sig == 2:
            assert a.vm_done >= ctok[1]
            win[4].append((f"v_mov_b32 v{t0}, 1\ns_mov_b64 exec, 1\nbuffer_store_dword v{t0}, v{vZ}, {srd(SDBG)}, 0 offen sc1\ns_mov_b64 exec, -1", None))
        for sg in sched.get(sig, []): D += dma_groups(sg)
        if sig == S1: D += [(x, None) for x in first_loads()]
        if sig == (7 if ISQ else 9) and P != 'P':
            def s0_load():
                if not ISQ:
                    a(f"s_cmp_lg_u32 s{sW}, 0\ns_cbranch_scc1 L_nos0l{P}\nbuffer_load_dword v{vS0}, v{vZ}, {srd(SDBG)}, 0 offen sc1\nL_nos0l{P}:")
                    a.vm -= 1
                else:
                    a(f"buffer_load_dword v{vS0}, v{vZ}, {srd(SDBG)}, 0 offen sc1")
                box['s0'] = a.vm
            D.insert(len(D) - 1, s0_load)
        head, mid, tail = [], D, []
        if sig < OPT['late']: mid, tail = [], D
        elif (sig + 1) not in bars: mid, tail = D[:len(D)//2], D[len(D)//2:]
        elif sig in bars and len(D) >= 4: head, mid = D[:OPT['na']], D[OPT['na']:]
        if sig == 6 and OPT['wt2']:
            a(f"global_load_dword v{t3}, v{vWS2}, s[28:29]")
            if OPT['wt2'] == 2: mid = head + mid; head = []
        for it in head: emit(it)
        cluster(2 * sig - 1, 'r' if (sig == 8 and PB) else 'mr')
        if sig == S1 - 1 and P != 'P' and OPT['s1w'] == 30:
            assert a.vm_done > box['s0']
            s1_issue(P)
        for it in front.get(2 * sig, []) + mid + win[2 * sig]: emit(it)
        cluster(2 * sig)
        for it in front.get(2 * sig + 1, []) + tail + win[2 * sig + 1]: emit(it)
    if P != 'P' and OPT['s1w'] == 31: s1_issue(P)
    a.wait(a.lastlg())
    assert not win[32]

setup_common()
if OPT['tlb']:
    a(f"s_cmp_lg_u32 s{sW}, 6\ns_cbranch_scc1 L_notlb")
    if OPT['tlb'] == 1:
        a(f"""
        v_lshlrev_b32 v{t0}, 21, v{L}
        s_mov_b32 s{sT[0]}, 0x80000
        s_mov_b64 exec, 63
        buffer_load_dword v32, v{t0}, {srd(SWS)}, s{sT[0]} offen
        s_mov_b64 exec, 1
        buffer_load_dword v33, v{vZ}, {srd(SWD)}, 0 offen
        buffer_load_dword v34, v{vZ}, {srd(SWO)}, 0 offen
        buffer_load_dword v35, v{vZ}, {srd(SOUT)}, 0 offen
        s_mov_b64 exec, -1
        """)
    else:
        a(f"""
        s_lshr_b32 s{sT[0]}, s2, 3
        s_lshl_b32 s{sT[0]}, s{sT[0]}, 16
        v_lshlrev_b32 v{t0}, 21, v{L}
        s_mov_b64 exec, 63
        buffer_load_dword v32, v{t0}, {srd(SWS)}, s{sT[0]} offen
        s_mov_b64 exec, 1
        v_mov_b32 v{t0}, s{sT[0]}
        v_min_u32 v{t1}, {1792*1024 - 4}, v{t0}
        global_load_dword v33, v{t1}, s[20:21]
        v_min_u32 v{t1}, {512*1024 - 4}, v{t0}
        global_load_dword v34, v{t1}, s[12:13]
        buffer_load_dword v35, v{t0}, {srd(SOUT)}, 0 offen
        s_mov_b64 exec, -1
        """)
    a("L_notlb:")
dispatch()
if OPT['pal']: a(f"s_branch L_pathG\n.p2align 12\n.fill {OPT['oG'] // 4}, 4, 0xbf800000\nL_pathG:")
proj_path('G')
a("L_join:")
a.forget()

JE = OPT['jearly'] and OPT['s1'] == 16
if not JE:
    for m in mfmas(15, 1): a(m)
    a("s_setprio 0")
stamp(3); stamp(10, 2)
def gelu_chunk(k):
    b, jp = k >> 1, k & 1
    g0 = gelu_pair(ACC[1] + 16 * b, 2 * jp, vGT, pk=OPT['pk2']); g1 = gelu_pair(ACC[1] + 16 * b, 2 * jp + 1, t2, pk=OPT['pk2'])
    for x, y in zip(g0, g1):
        a(x); a(y)
    if k == 2:
        for x in to_frag(ACC[1]): a(x)
for k in range(OPT['jlate']): gelu_chunk(k)
stamp(5, 3)
if OPT['s1'] == 16:
    s1_check('J')
    stamp(6, 3)
    a("s_barrier")
    stamp(7, 3)
    fl = first_loads()
    if JE:
        nfirst = OPT['jearly'] - 1
        for x in fl[:nfirst]: a(x)
        for m in mfmas(15, 1): a(m)
        fl = fl[nfirst:]
    for x in fl: a(x)
stamp(4); stamp(8, 3)
fltok = a.lastvm()
HST = OPT['hst']
def hs(k):
    if k >= HST: return
    if k == 0:
        assert OPT['nearly'] == 1
        a(f"s_add_u32 s{sT[2]}, s{sH1}, 16384\ns_cmp_eq_u32 s{sU}, 0\ns_cselect_b32 s{sT[2]}, {WS_SIZE}, s{sT[2]}\nbuffer_store_dwordx4 {vr(ACC[0]+16,4)}, v{vST}, {srd(SWS)}, s{sT[2]} offen sc1")
    else:
        hbox['h'] = a((f"s_add_u32 s{sHO}, s{sHO}, 16384\n" if k == 2 else "") + f"buffer_store_dwordx4 {vr(ACC[1]+16*(k-1),4)}, v{vST}, {srd(SWS)}, s{sHO} offen sc1")
hbox = {}
for k in range(OPT['jlate'], 4 - OPT['eb0']):
    gelu_chunk(k)
    if k == OPT.get('hs0', 1): hs(0)
    if k == 2: hs(1)
if not OPT['eb0']:
    for x in to_frag(ACC[1] + 16): a(x)
for x in setup_queue(True): a(x)
a(f"s_mov_b32 s{sT[8]}, 0xffff\ns_mov_b32 s{sT[9]}, 0xffff")
hs(2)
stamp(9, 3)
a.wait(fltok)
a("s_barrier")
if not OPT['eb0']: stamp(5); stamp(10, 3)

def qk(S, Q): return f"v_mfma_f32_32x32x16_bf16 {vr(S,16)}, {vr(KF,4)}, {vr(Q,4)}, 0"
def pv(O, V, S): return f"v_smfmac_f32_32x32x32_bf16 {vr(O,16)}, {vr(V,4)}, {vr(S,8)}, v{vIDX}"
NT, B1, B2 = 32, 8, OPT['b2']
def rec(t): return (t % NSLOT) * 2048
def rdK(t): return a(f"ds_read_b128 {vr(KF,4)}, v{vAK} offset:{rec(t)}")
def rdV(t2, t1):
    a(f"s_mov_b64 exec, s[{sT[8]}:{sT[9]}]")
    if t2 is not None: a(f"ds_read_b128 {vr(V2,4)}, v{vAV} offset:{rec(t2) + 1536}")
    if t1 is not None: a(f"ds_read_b128 {vr(V1[t1&1],4)}, v{vAV} offset:{rec(t1) + 1024}")
    a("s_mov_b64 exec, -1")
    return a.lastlg()
wtok, htok, rtok, box = {}, {}, {}, {}
m0own = [None]; wstart = set()
def w_off(u): return sR[u & 3] if u < 14 else sWOF
def w_load_a(u):
    a(f"s_add_u32 m0, s{sRING}, {(u & 3) * 2048}"); m0own[0] = ('w', u); wstart.add(u)
    assert u == 0 or (u - 1) in wtok
    if 0 < u < 14: a(f"s_sub_u32 s{sR[u&3]}, s{sR[(u-1)&3]}, 16384\ns_cselect_b32 s{sR[u&3]}, {13*16384}, s{sR[u&3]}")
    elif u == 14: a(f"s_lshl_b32 s{sWOF}, s{sU}, 14")
    elif u > 14: a(f"s_add_u32 s{sWOF}, s{sWOF}, 16384\ns_and_b32 s{sWOF}, s{sWOF}, 0xffff")
    a(f"buffer_load_dwordx4 v{vDS}, {srd(SWD if u < 14 else SWO)}, s{w_off(u)} offen lds")
def w_load_b(u):
    if m0own[0] != ('w', u):
        a(f"s_add_u32 m0, s{sRING}, {(u & 3) * 2048}"); m0own[0] = ('w', u)
    wtok[u] = a(f"buffer_load_dwordx4 v{vDS1}, {srd(SWD if u < 14 else SWO)}, s{w_off(u)} offen offset:1024 lds")
def h_load_a(u):
    assert u in wstart and (u + 4) not in wstart
    a(f"buffer_load_dwordx4 {vr(HF[u&3],4)}, v{vH0}, {srd(SWS)}, s{sR[u&3]} offen sc1")
def h_load_b(u):
    assert (u + 4) not in wstart
    htok[u] = a(f"buffer_load_dwordx4 {vr(HF[u&3]+4,4)}, v{vH1}, {srd(SWS)}, s{sR[u&3]} offen sc1")
def w_read(u, b):
    if b == 0: a.wait(wtok[u], htok[u])
    for e in range(2):
        rtok[u, b] = a(f"ds_read_b64_tr_b16 {vr(WF[u&1] + 4*b + 2*e, 2)}, v{(vDR0, vDR1)[b]} offset:{(u & 3) * 2048 + e*512}")
def d_mfma(u, k):
    tb, b = k >> 1, k & 1
    a.wait(rtok[u, 1])
    d = vr(DACC + 32 * tb + 16 * b, 16)
    a(f"v_mfma_f32_32x32x16_bf16 {d}, {vr(WF[u&1]+4*b,4)}, {vr(HF[u&3]+4*tb,4)}, {'0' if u == 0 else d}")

if OPT.get('x_now'):
    def w_load_a(u): pass
    def w_load_b(u): wtok[u] = None
if OPT.get('x_noh'):
    def h_load_a(u): pass
    def h_load_b(u): htok[u] = None
if OPT.get('x_noread'):
    def w_read(u, b): rtok[u, b] = None
ev, mf = {}, {}
SNAP = OPT.get('snap', 1)
B1P = 32 * (B1 - 1) + 11
EV, EVA, EK, EKA = OPT.get('ev', 5), OPT.get('eva', 0), OPT.get('ek', 11), OPT.get('eka', 0)
busy = {32 * t + o for t in range(NT) for o in (EV, EK, 18)}
def nextpos(p):
    while SNAP and (p & 15) not in (2, 5, 8, 11, 14): p += 1
    return p
def at(pos, f, limit=None):
    p = nextpos(pos)
    while SNAP and limit is not None and p in busy and nextpos(p + 1) <= limit: p = nextpos(p + 1)
    busy.add(p)
    ev.setdefault(p, []).append(f)
    return p
def h_store(b): box['h'] = a((f"s_add_u32 s{sHO}, s{sHO}, 16384\n" if b else "") + f"buffer_store_dwordx4 {vr(ACC[1]+16*b,4)}, v{vST}, {srd(SWS)}, s{sHO} offen sc1")
uniq = [0]
def late_store(k):
    uniq[0] += 1
    a(f"""
    s_cmp_eq_u32 s{sU}, 0
    s_cbranch_scc1 L_nols{uniq[0]}
    s_add_u32 s{sT[2]}, s{sH1}, {16384*k}
    buffer_store_dwordx4 {vr(ACC[0]+16*k,4)}, v{vST}, {srd(SWS)}, s{sT[2]} offen sc1
    L_nols{uniq[0]}:
    """)
    a.vm -= 1
pp = OPT.get('p_st', 1); STS = OPT.get('p_sts', 1)
box.update(hbox)
for k in range(OPT['nearly'] + (HST > 0), 2):
    pp = at(pp, lambda k=k: late_store(k), pp + 12) + STS
if HST < 2: pp = at(pp, lambda: h_store(0), pp + 12) + STS
if HST < 3: pp = at(pp, lambda: h_store(1), pp + 12)
assert pp < B1P
def kv_emit(m, i):
    if i == 0: m0own[0] = ('kv', m)
    if m0own[0] != ('kv', m):
        a(f"s_add_u32 m0, s{sKVM}, {(4 * m % NSLOT) * 2048}"); m0own[0] = ('kv', m)
    kvtok[m] = a(kv_step(m)[i])
for m in range(KV_FIRST, 8):
    p = OPT['p_kv'] + OPT['p_kvs'] * (m - KV_FIRST) if m < 6 else OPT['p_kv2'] + 20 * (m - 6)
    p = at(p, lambda m=m: kv_emit(m, 0), p + 8)
    at(p + 1, lambda m=m: kv_emit(m, 1), p + 9)
assert OPT['p_kv2'] > B1P
def h_flag():
    a(f"s_mov_b64 exec, 1\nbuffer_store_dword v{vONE}, v{vZ}, {srd(SWS)}, s{sF2W} offen sc1\ns_mov_b64 exec, -1")
at(B1P + 1, h_flag)
def f2_load():
    box['f2'] = a(f"s_mov_b64 exec, {31 if OPT['xf'] else 15}\nbuffer_load_dwordx4 {vr(F2D,4)}, v{vF2}, {srd(SWS)}, 0 offen sc1")
    a("s_mov_b64 exec, -1")
at(OPT['p_f2'], f2_load, OPT['p_f2'] + 8)
def f2_check():
    a.wait(box['f2'])
    test = f"v_min3_u32 v{F2D}, v{F2D}, v{F2D+1}, v{F2D+2}\nv_min_u32 v{F2D}, v{F2D}, v{F2D+3}\nv_cmp_ne_u32 vcc, 1, v{F2D}"
    a(f"s_mov_b64 exec, {31 if OPT['xf'] else 15}\n{test}\ns_cbranch_vccnz L_s2retry\nL_s2done:\ns_mov_b64 exec, -1")
    cold.append(f"""
    L_s2retry:
    s_mov_b32 s{sT[1]}, 0
    L_s2poll:
    buffer_load_dwordx4 {vr(F2D,4)}, v{vF2}, {srd(SWS)}, 0 offen sc1
    s_add_u32 s{sT[1]}, s{sT[1]}, 1
    s_waitcnt vmcnt(0)
    {test}
    s_cbranch_vccz L_s2done
    {'s_sleep ' + str(OPT['slp']) if OPT.get('slp') else ''}
    s_cmp_lt_u32 s{sT[1]}, {SPIN}
    s_cbranch_scc1 L_s2poll
    s_branch L_s2done
    """)
    a(f"buffer_load_dword v{vG}, v{vG}, {srd(SWS)}, s{sGA} offen sc1")
    stamp(9)
PCHK = at(OPT['p_chk'], f2_check, OPT['p_chk'] + 8)
D0, DE = OPT['d0'], OPT['dend']
allsl = [32 * t + o for t in range(D0, DE) for o in (8, 14, 24, 30)]
assert len(allsl) >= 56
slots = [allsl[(i * len(allsl)) // 56] for i in range(56)]
for u in range(14):
    rp = slots[0] - 16 if u == 0 else slots[4 * u - 2] + 1
    lim = slots[4 * u] - 9
    p = at(rp, lambda u=u: w_read(u, 0), lim - 3); at(p + 1, lambda u=u: w_read(u, 1), lim)
    for k in range(4): mf[slots[4 * u + k]] = (lambda u=u, k=k: d_mfma(u, k))
for u in range(18):
    pw = OPT['p_fill'] + OPT['p_fills'] * u if u < 4 else slots[4 * (u - 4)] + 1
    p = at(pw, lambda u=u: w_load_a(u), pw + 8); p = at(p + 1, lambda u=u: w_load_b(u), p + 8)
    if u < 3:
        ph = PCHK + 1 + OPT.get('p_hs', 13) * u
        p = at(ph, lambda u=u: h_load_a(u), ph + 4); at(p + 1, lambda u=u: h_load_b(u), p + 5)
    if 4 <= u < 15:
        p = at(p + 1, lambda u=u: h_load_a(u - 1), p + 8); at(p + 1, lambda u=u: h_load_b(u - 1), p + 8)
for lo, hi, fr in ((0, B1P, (OPT.get('la1', 30), OPT.get('la2', 70), OPT.get('la3', 94))), (B1P, 32 * B2, (OPT.get('lb1', 35), OPT.get('lb2', 80), OPT.get('lb3', 96))),
                   (32 * B2, 32 * NT, (OPT.get('lc1', 60), OPT.get('lc2', 87), OPT.get('lc3', 96)))):
    for k in range(3): at(lo + ((hi - lo) * fr[k]) // 100, lambda k=k: a(f"s_setprio {2-k}"))

if OPT['grp'] == 6:
    for k, p in enumerate((240, 300, 380, 436, 466, 490, 520, 560, 600, 650, 700)): at(p, lambda k=k: stamp(k, 6))
if OPT['xf']:
    assert OPT['kvr'] == 4 and (OPT['s1'] == 16 and OPT['jearly'] <= 7) and OPT['p_xl'] > PCHK
    p = OPT['p_xl']
    for x in (f"buffer_load_dwordx4 {vr(PX,4)}, v{vL16}, {srd(SWS)}, s{sXR} offen sc1", f"buffer_load_dwordx4 {vr(PX+4,4)}, v{vL16}, {srd(SWS)}, s{sXR} offen offset:1024 sc1",
              f"buffer_load_dword v{PX+8}, v{vL4}, {srd(SWS)}, s{sXR} offen offset:2048 sc1"):
        p = at(p, lambda x=x: box.update(px=a(x)), p + 16) + 1
at(32 * NT - 2, lambda: a(f"ds_write_b128 v{vM[0]}, {vr(OA,4)}\nds_write_b128 v{vM[0]}, {vr(OA+4,4)} offset:1024\nds_write_b32 v{vM[2]}, v{OA+8} offset:2048"))

a("s_setprio 3")
def iteration(t, evs, Ofirst=None):
    global tV, tK
    if t == B2:
        a.wait(kvtok[7]); a("s_barrier\ns_setprio 3"); stamp(0)
    nx = t + 1 if t + 1 < NT else None
    cold0 = (t == 0 and Ofirst is None)
    for ph, (S, So, O, Oo, Qo) in enumerate(((SA, SB, OA, OB, QB), (SB, SA, OB, OA, QA))):
        for e in range(16):
            pos = 32 * t + 16 * ph + e
            for f in evs.pop(pos, []): f()
            if ph == 0 and e == EV:
                if cold0: a.wait(tV)
                tV = rdV(t, nx if t != B1 - 1 else None)
            if ph == 0 and e == EK and nx and t != B1 - 1: tK = rdK(nx)
            if pos == B1P:
                a.wait(kvtok[5], box['h'], tV); a("s_barrier\ns_setprio 3"); stamp(6)
                tK = rdK(nx); tV = rdV(None, nx)
            if e == 2:
                if ph == 1 or Ofirst: a.wait(tV, tK)
                if not (cold0 and ph == 0): a(pv(Ofirst if (Ofirst and ph == 0) else Oo, V2, So + 8))
            if (e == 5 and not (cold0 and ph == 0)) or (cold0 and ph == 0 and e == 0):
                if ph == 0 or nx: a(qk(So, Qo))
            if e == 11: a(pv(O, V1[t & 1], S))
            if pos in mf: mf.pop(pos)()
            a(f"v_exp_f32 v{S+e}, v{S+e}")
if not OPT['xf']:
    tK = rdK(0); tV = rdV(None, 0)
    a.wait(tK)
    a(qk(SA, QA))
    iteration(0, ev)
else:
    early = [f for p in sorted(ev) if p < 32 for f in ev[p]]
    for p in [p for p in ev if p < 32]: del ev[p]
    main = a
    a = Asm(); a("; ---- even workgroups: the neighbour's first key tile of both halves, then the own first one\nL_even:")
    def rdX(dst, base, off, masked):
        return a(f"ds_read_b128 {vr(dst,4)}, v{base} offset:{off}")
    MASK, FULL = f"s_mov_b64 exec, s[{sT[8]}:{sT[9]}]", "s_mov_b64 exec, -1"
    R0, R1 = 4 * 2048, HALF + 4 * 2048
    k0 = a(f"ds_read_b128 {vr(KF,4)}, v{vL16} offset:{R0}")
    a(f"{MASK}\nds_read_b128 {vr(V1[0],4)}, v{vPV} offset:{R0+1024}\nds_read_b128 {vr(V2,4)}, v{vPV} offset:{R0+1536}\nds_read_b128 {vr(V1[1],4)}, v{vPV} offset:{R1+1024}\n{FULL}")
    for r in range(0, 10, 2): a(f"v_mov_b64 {vr(OX+r,2)}, 0")
    a.wait(k0)
    a(qk(SA, QX))
    k1 = a(f"ds_read_b128 {vr(KF,4)}, v{vL16} offset:{R1}")
    early[0]()
    a("s_nop 8")
    for e in range(16):
        if e == 5: a.wait(k1); a(qk(SB, QX))
        if e == 11: tK = rdK(0); a(pv(OX, V1[0], SA))
        a(f"v_exp_f32 v{SA+e}, v{SA+e}")
    rest = list(early[1:])
    for e in range(16):
        if e == 2: a(pv(OX, V2, SA + 8))
        if e == 5:
            a.wait(tK)
            a(f"{MASK}\nds_read_b128 {vr(V2,4)}, v{vPV} offset:{R1+1536}\nds_read_b128 {vr(V1[0],4)}, v{vAV} offset:{rec(0)+1024}\n{FULL}"); tV = a.lastlg()
            a(qk(SA, QA))
        if e in (8, 11, 14) and rest: rest.pop(0)()
        if e == 11: a(pv(OX, V1[1], SB))
        a(f"v_exp_f32 v{SB+e}, v{SB+e}")
    assert not rest
    iteration(0, {21: [lambda: a(f"buffer_store_dwordx4 {vr(OX,4)}, v{vL16}, {srd(SWS)}, s{sXW} offen sc1")],
                  24: [lambda: a(f"buffer_store_dwordx4 {vr(OX+4,4)}, v{vL16}, {srd(SWS)}, s{sXW} offen offset:1024 sc1")],
                  27: [lambda: a(f"buffer_store_dword v{OX+8}, v{vL4}, {srd(SWS)}, s{sXW} offen offset:2048 sc1")]}, Ofirst=OX)
    assert a.lg_done == a.lg
    a("s_branch L_it1")
    even_block = a.ins
    a = main
    a("s_bitcmp0_b32 s2, 0\ns_cbranch_scc1 L_even")
    tK = rdK(1); tV = rdV(None, 1)
    for r in range(8, 16, 2): a(f"v_mov_b64 {vr(SB+r,2)}, 0")
    early[0]()
    a.wait(tV)
    a(qk(SA, QA))
    for f in early[1:]: f()
    a("s_nop 6\nL_it1:")
    assert 'h' not in box
for t in range(1, NT): iteration(t, ev)
assert not mf
assert not ev, sorted(ev)
if OPT['woe']: a.wait(wtok[17])
a(pv(OB, V2, SB + 8))
a.wait_lg0()
stamp(7); stamp(0, 4)
a("s_barrier")
stamp(1, 4)
a(f"""
ds_read_b32 v{SA+8}, v{vM[3]} offset:2048
ds_read_b128 {vr(SA,4)}, v{vM[1]}
ds_read_b128 {vr(SA+4,4)}, v{vM[1]} offset:1024
s_add_u32 s{sOO}, s{sOO}, {WS_O}
s_mov_b32 s{sT[6]}, {fbits(2.0**-60):#x}
s_mov_b32 s{sT[7]}, {fbits(2.0**60) - fbits(2.0**-60):#x}
s_lshl_b32 s{sT[3]}, s{sW}, 13
s_xor_b32 s{sT[2]}, s{sT[3]}, 0x8000
v_add_u32 v24, s{sT[2]}, v{vL16}
v_add_u32 v26, s{sT[3]}, v{vL16}
""")
if OPT['xf']:
    a.wait(box['px'])
    a(f"v_add_f32 v{OB+8}, v{OB+8}, v{PX+8}")
    for j in range(4): a(f"v_pk_add_f32 {vr(OB+2*j,2)}, {vr(OB+2*j,2)}, {vr(PX+2*j,2)}")
a(f"""
s_waitcnt lgkmcnt(2)
v_add_f32 v{OB+8}, v{OB+8}, v{SA+8}
v_rcp_f32 v{t0}, v{OB+8}
""")
a.wait_lg0()
OS = 128
for j in range(2): a(f"v_pk_add_f32 {vr(OB+2*j,2)}, {vr(OB+2*j,2)}, {vr(SA+2*j,2)}")
a(f"v_mul_f32 v{t0}, v{t0}, v{vG}")
for j in range(2, 4): a(f"v_pk_add_f32 {vr(OB+2*j,2)}, {vr(OB+2*j,2)}, {vr(SA+2*j,2)}")
for j in range(4): a(f"v_pk_mul_f32 {vr(OB+2*j,2)}, {vr(OB+2*j,2)}, {vr(t0,2)} op_sel_hi:[1,0]")
a(f"""
v_pk_add_f32 {vr(t2,2)}, {vr(OB,2)}, {vr(OB+2,2)}
v_pk_add_f32 {vr(t0,2)}, {vr(OB+4,2)}, {vr(OB+6,2)}
v_cvt_pk_bf16_f32 v{OS}, v{OB}, v{OB+1}
v_pk_add_f32 {vr(t2,2)}, {vr(t2,2)}, {vr(t0,2)}
v_cvt_pk_bf16_f32 v{OS+1}, v{OB+2}, v{OB+3}
v_add_f32 v{t2}, v{t2}, v{t3}
v_cvt_pk_bf16_f32 v{OS+2}, v{OB+4}, v{OB+5}
v_fma_f32 v{t2}, v{t2}, 0, v{OB+8}
v_cvt_pk_bf16_f32 v{OS+3}, v{OB+6}, v{OB+7}
v_subrev_u32 v{t2}, s{sT[6]}, v{t2}
v_or_b32 v{OS}, 1, v{OS}
v_cmp_lt_u32 vcc, s{sT[7]}, v{t2}
""")
if OPT['force_fb']: a("s_mov_b64 vcc, -1")
a(f"""
s_cbranch_vccnz L_true_max
L_norm:
buffer_store_dwordx4 {vr(OS,4)}, v{vL16}, {srd(SWS)}, s{sOO} offen sc1
""")
stamp(8); stamp(2, 4)

OF, WOF, XT = 32, 176, 96
vO1 = 27
fill = f"""
s_and_b32 s{sT[1]}, s{sW}, 3
s_lshl_b32 s{sT[2]}, s{sT[1]}, 13
s_add_u32 s{sT[2]}, s{sT[2]}, {RING}
v_add_u32 v28, s{sT[2]}, v{vTRP}
v_xor_b32 v29, 64, v28
v_sub_f32 v{vG}, 1.0, v{vG}
v_add_u32 v{vO1}, 0x4000, v{vL16}
s_lshr_b32 s{sT[9]}, s{sW}, 2
s_lshl1_add_u32 s{sT[0]}, s{sI}, s{sT[9]}
s_lshl3_add_u32 s{sT[0]}, s{sT[0]}, s{sT[1]}
s_lshl_b32 s{sT[0]}, s{sT[0]}, 12
s_add_u32 s{sT[0]}, s{sT[0]}, {WS_O}
s_lshl4_add_u32 s{sT[8]}, s{sT[9]}, s{sT[1]}
s_lshl_b32 s{sT[8]}, s{sT[8]}, 11
""".strip().split('\n')
for v in range(4):
    fill += f"s_add_u32 s{sT[1]}, s{sU}, {v}\ns_and_b32 s{sT[1]}, s{sT[1]}, 3\ns_lshl_b32 s{sT[1]}, s{sT[1]}, 10\ns_add_u32 s{sT[4+v]}, s{sT[0]}, s{sT[1]}".split('\n')
fill += f"""
v_and_b32 v{t0}, 31, v{L}
v_lshrrev_b32 v{t1}, 5, v{L}
v_and_b32 v{t2}, 7, v{L}
v_xor_b32 v{t1}, v{t1}, v{t2}
v_lshlrev_b32 v{t1}, 4, v{t1}
v_lshl_add_u32 v{t0}, v{t0}, 8, v{t1}
v_add_u32 v9, s{sT[3]}, v{t0}
v_xor_b32 v10, 32, v9
v_xor_b32 v11, 64, v9
v_xor_b32 v12, 0x60, v9
v_lshrrev_b32 v{t0}, 3, v{L}
v_lshlrev_b32 v{t1}, 1, v{t2}
v_xor_b32 v{t1}, v{t1}, v{t0}
v_lshlrev_b32 v{t1}, 4, v{t1}
v_lshl_add_u32 v{t1}, v{t0}, 8, v{t1}
v_add_u32 v1, s{sT[8]}, v{t1}
v_xor_b32 v2, 16, v1
s_lshl3_add_u32 s{sT[3]}, s{sI}, s{sW}
s_lshl_b32 s{sT[3]}, s{sT[3]}, 6
s_add_u32 s{sT[3]}, s{sT[3]}, s{sJ}
s_lshl_b32 s{sT[3]}, s{sT[3]}, 7
v_lshlrev_b32 v{t2}, 4, v{t2}
v_lshl_add_u32 v5, v{t0}, 10, v{t2}
s_mov_b32 s{sT[2]}, 0
""".strip().split('\n')
def wo_read(v):
    slot = ((14 + v) & 3) * 2048 + (v >> 2) * 32768
    for b in range(2):
        for e in range(2):
            a(f"ds_read_b64_tr_b16 {vr(WOF + 8*v + 4*b + 2*e, 2)}, v{28 + b} offset:{slot + e*512}")
for j in range(8):
    xw = a(f"ds_write_b128 v24, {vr(DACC+32+4*j,4)} offset:{1024*j}")
    for x in fill[len(fill) * j // 8: len(fill) * (j + 1) // 8]: a(x)
    if OPT['woe'] == 1: wo_read(j)
if OPT['woe'] == 2:
    for j in range(8): wo_read(j)
def o_loads():
    for v in range(8):
        a(f"buffer_load_dwordx4 {vr(OF + 4*v, 4)}, v{vO1 if v >> 2 else vL16}, {srd(SWS)}, s{sT[4 + (v&3)]} offen sc1")
stamp(3, 4)
a.wait(wtok[17], xw)
a(f"s_cmp_ge_u32 s{sW}, 4")
if not OPT['oe']: a("s_barrier"); stamp(4, 4)
a("s_setprio 1\ns_cbranch_scc1 L_ol1\ns_setprio 0")
o_loads()
a("L_ol1:")
if OPT['oe']: a("s_barrier"); stamp(4, 4)
xt = [a(f"ds_read_b128 {vr(XT+4*j,4)}, v26 offset:{1024*j}") for j in range(8)]
for j in range(8):
    a.wait(xt[j])
    for i in range(2):
        r = 4 * j + 2 * i
        a(f"v_pk_add_f32 {vr(DACC+r,2)}, {vr(DACC+r,2)}, {vr(XT+r,2)}")
    for i in range(2):
        r = 4 * j + 2 * i
        a(f"v_pk_mul_f32 {vr(DACC+r,2)}, {vr(DACC+r,2)}, {vr(vG,2)} op_sel_hi:[1,0]")
stamp(5, 4)
a("s_setprio 0\ns_cbranch_scc0 L_ol2")
o_loads()
a("L_ol2:")
if not OPT['woe']:
    for j in range(8): wo_read(j)
stamp(6, 4)
a.wait_lg0()
ND = XT
a("L_s3poll:")
def wo_mfma(v, b): a(f"v_mfma_f32_32x32x16_bf16 {vr(ND+16*b,16)}, {vr(WOF+8*v+4*b,4)}, {vr(OF+4*v,4)}, {vr((DACC if v == 0 else ND)+16*b,16)}")
def chk(v): a(f"v_and_b32 v{t0}, {1 if v == 0 else 'v' + str(t0)}, v{OF+4*v}")
def xsite():
    a(f"s_cmp_eq_u32 s{sT[9]}, 0\ns_cbranch_scc1 L_nox\ns_mov_b32 s{sT[9]}, 0\ns_barrier\nL_nox:")
for v in range(6):
    a(f"s_waitcnt vmcnt({7-v})")
    if v == 0: stamp(10); stamp(7, 4)
    wo_mfma(v, 0); chk(v); wo_mfma(v, 1)
    if v == OPT['xsite']: xsite()
a("s_waitcnt vmcnt(1)"); wo_mfma(6, 0); chk(6)
a("s_waitcnt vmcnt(0)"); wo_mfma(7, 0); chk(7)
a.vm_done = a.vm
wo_mfma(6, 1)
if OPT['xsite'] == 6: xsite()
a(f"v_cmp_eq_u32 vcc, 0, v{t0}")
wo_mfma(7, 1)
if OPT['xsite'] == 7: xsite()
a("s_cbranch_vccnz L_s3retry\nL_s3done:")
stamp(8, 4)
for b in range(2):
    if OPT['xsite'] >= 6: a("s_nop 2" if b == 0 else "s_nop 3")
    for qd in range(4): a(f"ds_write_b128 v{9+qd}, {vr(ND + 16*b + 4*qd, 4)} offset:{b*128}")
a(f"s_cmp_ge_u32 s{sW}, 4")
a.wait_lg0()
a("s_barrier")
stamp(9, 4)
RD = 176
rt = []
for p in range(4):
    for e in range(2):
        rt.append(a(f"ds_read_b128 {vr(RD + 8*p + 4*e, 4)}, v{1 + e} offset:{p*8192}"))
for p in range(1, 4):
    a.wait(rt[2 * p + 1])
    for j in range(4):
        if OPT.get('fpk', 1): a(f"v_pk_add_f32 {vr(RD+2*j,2)}, {vr(RD+2*j,2)}, {vr(RD+8*p+2*j,2)}")
        else: a(f"v_add_f32 v{RD+2*j}, v{RD+2*j}, v{RD+8*p+2*j}\nv_add_f32 v{RD+2*j+1}, v{RD+2*j+1}, v{RD+8*p+2*j+1}")
for j in range(4): a(f"v_cvt_pk_bf16_f32 v{RD+j}, v{RD+2*j}, v{RD+2*j+1}")
a(f"buffer_store_dwordx4 {vr(RD,4)}, v5, {srd(SOUT)}, s{sT[3]} offen {['', 'sc1'][OPT['outm']]}")
a("s_cbranch_scc1 L_noy\ns_barrier\nL_noy:")
stamp(10, 4)
if OPT['stamp']:
    a("s_waitcnt vmcnt(0)")
    stamp(11)
    a("s_waitcnt lgkmcnt(0)")
    a(f"s_mov_b32 s28, s{sT[2]}")
    if 'span' in OPT:
        a(f"""
        s_lshl3_add_u32 s{sT[0]}, s2, s{sW}
        s_lshl_b32 s{sT[0]}, s{sT[0]}, 3
        s_add_u32 s{sT[0]}, s{sT[0]}, {WS_STAMP}
        v_mov_b32 v1, 0
        v_mov_b32 v2, s{4+2*OPT['span']}
        v_mov_b32 v3, s30
        s_mov_b64 exec, 1
        buffer_store_dwordx2 v[2:3], v1, {srd(SWS)}, s{sT[0]} offen sc1
        s_mov_b64 exec, -1
        s_add_u32 s{sT[0]}, s2, s{sW}
        s_cmp_lg_u32 s{sT[0]}, 0
        s_cbranch_scc1 L_end
        L_pad0:
        s_memrealtime s[{sT[2]}:{sT[3]}]
        s_waitcnt lgkmcnt(0)
        s_sub_u32 s{sT[2]}, s{sT[2]}, s30
        s_cmp_lt_u32 s{sT[2]}, 4500
        s_cbranch_scc1 L_pad0
        v_mov_b32 v4, 0
        v_mov_b32 v5, -1
        s_sub_u32 s{sT[1]}, s30, 1000
        """)
        for g in range(16):
            a(f"""
            s_mov_b32 s{sT[0]}, {WS_STAMP + 1024*g}
            buffer_load_dwordx4 v[8:11], v{vL16}, {srd(SWS)}, s{sT[0]} offen sc1
            s_waitcnt vmcnt(0)
            v_subrev_u32 v8, s{sT[1]}, v8
            v_subrev_u32 v9, s{sT[1]}, v9
            v_subrev_u32 v10, s{sT[1]}, v10
            v_subrev_u32 v11, s{sT[1]}, v11
            v_max3_u32 v4, v4, v8, v10
            v_min3_u32 v5, v5, v9, v11
            """)
        a(f"s_mov_b32 s{sT[4]}, 0\ns_mov_b32 s{sT[5]}, -1")
        for i in range(64): a(f"v_readlane_b32 s{sT[6]}, v4, {i}\nv_readlane_b32 s{sT[7]}, v5, {i}\ns_nop 0\ns_max_u32 s{sT[4]}, s{sT[4]}, s{sT[6]}\ns_min_u32 s{sT[5]}, s{sT[5]}, s{sT[7]}")
        a(f"""
        s_sub_u32 s{sT[0]}, s{sT[4]}, s{sT[5]}
        s_sub_u32 s{sT[0]}, s{sT[0]}, {OPT.get('spanb', 2000)}
        s_min_u32 s{sT[0]}, s{sT[0]}, 2500
        s_mul_i32 s{sT[0]}, s{sT[0]}, 10
        s_add_u32 s{sT[0]}, s{sT[0]}, 6000
        L_pad:
        s_memrealtime s[{sT[2]}:{sT[3]}]
        s_waitcnt lgkmcnt(0)
        s_sub_u32 s{sT[2]}, s{sT[2]}, s30
        s_cmp_lt_u32 s{sT[2]}, s{sT[0]}
        s_cbranch_scc1 L_pad
        """)
    elif 'crit' in OPT:
        a(f"""
        s_cmp_lg_u32 s{sW}, 7
        s_cbranch_scc1 L_end
        s_lshl_b32 s{sT[0]}, s2, 6
        s_add_u32 s{sT[0]}, s{sT[0]}, {WS_STAMP}
        v_mov_b32 v1, 0
        """)
        for k in range(14): a(f"v_mov_b32 v2, s{4+2*k}\nbuffer_store_dword v2, v1, {srd(SWS)}, s{sT[0]} offen offset:{4*k} sc1")
        a(f"""
        s_cmp_lg_u32 s2, 0
        s_cbranch_scc1 L_end
        L_pad0:
        s_memrealtime s[{sT[2]}:{sT[3]}]
        s_waitcnt lgkmcnt(0)
        s_sub_u32 s{sT[2]}, s{sT[2]}, s30
        s_cmp_lt_u32 s{sT[2]}, 5000
        s_cbranch_scc1 L_pad0
        v_lshlrev_b32 v1, 6, v{L}
        s_mov_b32 s{sT[4]}, 0
        s_mov_b32 s{sT[5]}, -1
        """)
        for g in range(4):
            a(f"""
            s_mov_b32 s{sT[0]}, {WS_STAMP + 4096*g}
            buffer_load_dword v2, v1, {srd(SWS)}, s{sT[0]} offen offset:{4*OPT['crit']} sc1
            buffer_load_dword v3, v1, {srd(SWS)}, s{sT[0]} offen offset:52 sc1
            s_waitcnt vmcnt(0)
            v_subrev_u32 v2, s30, v2
            v_add_u32 v2, 1000, v2
            v_lshlrev_b32 v2, 8, v2
            v_add_u32 v2, v2, v{L}
            v_add_u32 v2, {64*g}, v2
            v_subrev_u32 v3, s30, v3
            v_add_u32 v3, 1000, v3
            s_nop 1
            """)
            for i in range(64): a(f"v_readlane_b32 s{sT[6]}, v2, {i}\nv_readlane_b32 s{sT[7]}, v3, {i}\ns_nop 0\ns_max_u32 s{sT[4]}, s{sT[4]}, s{sT[6]}\ns_min_u32 s{sT[5]}, s{sT[5]}, s{sT[7]}")
        a(f"""
        s_and_b32 s{sT[4]}, s{sT[4]}, 255
        s_lshl_b32 s{sT[0]}, s{sT[4]}, 6
        s_add_u32 s{sT[0]}, s{sT[0]}, {WS_STAMP}
        v_lshlrev_b32 v1, 2, v{L}
        buffer_load_dword v2, v1, {srd(SWS)}, s{sT[0]} offen sc1
        s_add_u32 s{sT[5]}, s{sT[5]}, s30
        s_sub_u32 s{sT[5]}, s{sT[5]}, 1000
        s_waitcnt vmcnt(0)
        v_subrev_u32 v2, s{sT[5]}, v2
        s_nop 1
        v_writelane_b32 v2, s{sT[4]}, 14
        s_mov_b64 exec, 0x7fff
        buffer_store_dword v2, v1, {srd(SDBG)}, 0 offen offset:4
        """)
    elif 'dk' in OPT:
        a(f"""
        s_cmp_lg_u32 s{sW}, {OPT.get('dw', 7)}
        s_cbranch_scc1 L_end
        s_lshl_b32 s{sT[0]}, s2, 2
        s_add_u32 s{sT[0]}, s{sT[0]}, {WS_STAMP}
        v_mov_b32 v2, s{4+2*OPT['dk']}
        v_mov_b32 v1, 0
        buffer_store_dword v2, v1, {srd(SWS)}, s{sT[0]} offen sc1
        s_cmp_lg_u32 s2, 0
        s_cbranch_scc1 L_end
        L_pad0:
        s_memrealtime s[{sT[2]}:{sT[3]}]
        s_waitcnt lgkmcnt(0)
        s_sub_u32 s{sT[2]}, s{sT[2]}, s30
        s_cmp_lt_u32 s{sT[2]}, 5000
        s_cbranch_scc1 L_pad0
        v_mul_u32_u24 v1, {4*OPT['dstride']}, v{L}
        s_mov_b32 s{sT[0]}, {WS_STAMP + 4*OPT['dbase']}
        buffer_load_dword v2, v1, {srd(SWS)}, s{sT[0]} offen sc1
        s_waitcnt vmcnt(0)
        v_subrev_u32 v2, s30, v2
        v_add_u32 v2, 100000, v2
        s_mov_b32 s{sT[4]}, 0
        s_mov_b32 s{sT[5]}, -1
        """)
        for i in range(OPT['dn']): a(f"v_readlane_b32 s{sT[6]}, v2, {i}\ns_nop 1\ns_max_u32 s{sT[4]}, s{sT[4]}, s{sT[6]}\ns_min_u32 s{sT[5]}, s{sT[5]}, s{sT[6]}")
        a(f"""
        s_sub_u32 s{sT[0]}, s{sT[4]}, s{sT[5]}
        s_min_u32 s{sT[0]}, s{sT[0]}, 2000
        s_mul_i32 s{sT[0]}, s{sT[0]}, 10
        s_add_u32 s{sT[0]}, s{sT[0]}, 6000
        L_pad:
        s_memrealtime s[{sT[2]}:{sT[3]}]
        s_waitcnt lgkmcnt(0)
        s_sub_u32 s{sT[2]}, s{sT[2]}, s30
        s_cmp_lt_u32 s{sT[2]}, s{sT[0]}
        s_cbranch_scc1 L_pad
        """)
    elif 'pad' in OPT:
        K = OPT['pad']
        a(f"s_and_b32 s{sT[0]}, s2, {OPT.get('padm', 0)}\ns_cmp_lg_u32 s{sT[0]}, {OPT.get('padv', 0)}\ns_cbranch_scc1 L_end")
        if K >= 0: a(f"s_sub_u32 s{sT[0]}, s{4+2*K}, s{4+2*OPT.get('padb', 13)}\ns_mul_i32 s{sT[0]}, s{sT[0]}, {OPT.get('padx', 4)}")
        elif K == -2: a(f"s_getreg_b32 s{sT[0]}, hwreg(HW_REG_XCC_ID)\ns_and_b32 s{sT[0]}, s{sT[0]}, 15\ns_mul_i32 s{sT[0]}, s{sT[0]}, 1000")
        else: a(f"s_mov_b32 s{sT[0]}, 0")
        a(f"""
        s_add_u32 s{sT[0]}, s{sT[0]}, 6000
        L_pad:
        s_memrealtime s[{sT[2]}:{sT[3]}]
        s_waitcnt lgkmcnt(0)
        s_sub_u32 s{sT[2]}, s{sT[2]}, s30
        s_cmp_lt_u32 s{sT[2]}, s{sT[0]}
        s_cbranch_scc1 L_pad
        """)
    else:
        a(f"s_lshl3_add_u32 s{sT[0]}, s2, s{sW}\ns_lshl_b32 s{sT[0]}, s{sT[0]}, 6\ns_add_u32 s{sT[0]}, s{sT[0]}, {WS_STAMP}")
        a("v_mov_b32 v1, 0\ns_mov_b64 exec, 1")
        for k in range(14):
            a(f"v_mov_b32 v2, s{4+2*k}\nbuffer_store_dword v2, v1, {srd(SWS)}, s{sT[0]} offen offset:{4*k}")
a("L_end:\ns_endpgm")
a("L_s3retry:")
o_loads()
a(f"""
s_add_u32 s{sT[2]}, s{sT[2]}, 1
s_cmp_lt_u32 s{sT[2]}, {SPIN}
s_nop 7
s_cbranch_scc1 L_s3poll
s_waitcnt vmcnt(0)
s_branch L_s3done
""")

for P in 'KVPSC':
    a("; ---- projection phase, " + {'K': 'query workgroups, waves 0-3: also k', 'V': 'query workgroups, waves 0-3: also v', 'P': 'query workgroups, waves 4-7',
                                      'S': 'gate/up waves that also form the mixing gate', 'C': 'gate/up wave that also clears the ready words'}[P])
    a(f".p2align 12\n.fill {OPT['o' + P] // 4}, 4, 0xbf800000\nL_path{P}:" if OPT['pal'] else f".p2align 6\nL_path{P}:")
    a.forget()
    proj_path(P)
    a("s_branch L_join")
for x in cold: a(x)

CM = SB
a(f"""
L_true_max:
s_waitcnt vmcnt(0) lgkmcnt(0)
v_mov_b32 v{t0}, 0xff800000
s_mov_b32 s{sT[0]}, {WS_KV}
L_tm1:
buffer_load_dwordx4 {vr(KF,4)}, v{vL16}, {srd(SWS)}, s{sT[0]} offen sc1
s_waitcnt vmcnt(0)
{qk(SA, QB)}
""")
for j in range(8): a(f"v_max3_f32 v{t0}, v{t0}, v{SA+2*j}, v{SA+2*j+1}")
a(f"""
s_add_u32 s{sT[0]}, s{sT[0]}, 2048
s_cmp_lt_u32 s{sT[0]}, {WS_KV + 64*2048}
s_cbranch_scc1 L_tm1
v_mov_b32 v{t1}, v{t0}
v_permlane32_swap_b32 v{t0}, v{t1}
v_max_f32 v{t0}, v{t0}, v{t1}
""")
for r in range(16): a(f"v_sub_f32 v{CM+r}, 0, v{t0}\nv_mov_b32 v{OB+r}, 0")
a(f"""
s_mov_b32 s{sT[0]}, {WS_KV}
L_tm2:
buffer_load_dwordx4 {vr(KF,4)}, v{vL16}, {srd(SWS)}, s{sT[0]} offen sc1
s_mov_b64 exec, s[{sT[8]}:{sT[9]}]
buffer_load_dwordx4 {vr(V1[0],4)}, v{vPV}, {srd(SWS)}, s{sT[0]} offen offset:1024 sc1
buffer_load_dwordx4 {vr(V2,4)}, v{vPV}, {srd(SWS)}, s{sT[0]} offen offset:1536 sc1
s_mov_b64 exec, -1
s_waitcnt vmcnt(0)
v_mfma_f32_32x32x16_bf16 {vr(SA,16)}, {vr(KF,4)}, {vr(QB,4)}, {vr(CM,16)}
""")
for e in range(16): a(f"v_exp_f32 v{SA+e}, v{SA+e}")
a(pv(OB, V1[0], SA)); a(pv(OB, V2, SA + 8))
a(f"""
s_add_u32 s{sT[0]}, s{sT[0]}, 2048
s_cmp_lt_u32 s{sT[0]}, {WS_KV + 64*2048}
s_nop 7
s_cbranch_scc1 L_tm2
s_nop 7
v_rcp_f32 v{t0}, v{OB+8}
s_nop 0
v_mul_f32 v{t0}, v{t0}, v{vG}
""")
for j in range(4): a(f"v_pk_mul_f32 {vr(OB+2*j,2)}, {vr(OB+2*j,2)}, {vr(t0,2)} op_sel_hi:[1,0]")
for j in range(4): a(f"v_cvt_pk_bf16_f32 v{OS+j}, v{OB+2*j}, v{OB+2*j+1}")
a(f"v_or_b32 v{OS}, 1, v{OS}")
a("s_branch L_norm\nL_last:")

if OPT['xf']:
    k = [i for i, x in enumerate(a.ins) if x.text == 's_branch L_pathG'][0]
    a.ins[k + 1:k + 1] = even_block
bad = a.check_branches()
assert not bad, bad

hdr = open(f'cdna_kernels/{NAME}.s.ref').read().split('\n')
head = [l for l in hdr if l.startswith(';') and '@launch' not in l]
body = a.text()
if OPT.get('jit'):
    import random
    rnd = random.Random(OPT['jit']); o = []; n = 0
    for l in body.split('\n'):
        t = l.strip()
        if (t.startswith(('buffer_store', 'ds_write_b128')) or (o and o[-1].strip() == 's_barrier')) and rnd.random() < 0.5:
            n += 1
            o += [f"    s_cselect_b32 s31, 1, 0", f"    s_add_u32 s30, s2, s{sMW}", f"    s_mul_i32 s30, s30, {rnd.randrange(1 << 20, 1 << 30) | 1}", f"    s_bitcmp1_b32 s30, 27",
                  f"    s_cbranch_scc0 L_jit{n}", f"    s_sleep {rnd.randrange(1, 40)}", f"L_jit{n}:", f"    s_cmp_lg_u32 s31, 0"]
        o.append(l)
    body = '\n'.join(o)
if OPT.get('stm'):
    import re
    body = re.sub(r'(buffer_store_dwordx4 .*s\[52:55\].*) sc1', lambda m: m.group(1) + [' sc1', ' sc1 nt', ' sc0 sc1', ' sc0 sc1 nt'][OPT['stm']], body)
out = "\n".join(head) + f"\n; @launch grid=(256,1,1) block=(512,1,1) lds={LDS_BYTES}\n"
out += f""".amdgcn_target "amdgcn-amd-amdhsa--gfx950"
.text
.globl {NAME}_kernel
.p2align 8
.type {NAME}_kernel,@function
{NAME}_kernel:
{body}
.section .rodata,"a"
.p2align 6
.amdhsa_kernel {NAME}_kernel
  .amdhsa_next_free_vgpr 256
  .amdhsa_next_free_sgpr 102
  .amdhsa_accum_offset 256
  .amdhsa_group_segment_fixed_size 0
  .amdhsa_kernarg_size 104
  .amdhsa_user_sgpr_count 2
  .amdhsa_user_sgpr_kernarg_segment_ptr 1
  .amdhsa_system_sgpr_workgroup_id_x 1
.end_amdhsa_kernel
"""
open(sys.argv[1], 'w').write(out)
print("instructions:", sum(1 for i in a.ins if i.ws), "auto nops:", a.nnop, file=sys.stderr)
```

```python
import sys, math, struct
sys.path.insert(0, 'gen')
from asmlib import Asm

NAME = 'gated_mix__grouped_kv_mqa__geglu_ffn__prompt'
OPT = dict(stamp=0, grp=0, force_fb=0, qflag=11, s1=16, b2=22, outm=1, ofast=0,
           p_kv=20, p_kvs=40, p_st=1, p_sts=40, p_fill=160, p_fills=70, p_kv2=390, p_f2=440, p_chk=470, d0=16, dend=32,
           late=0, pk2=1, nearly=1, h0w=24, h1w=30, clw=22, na=1, gend=30, dwt=0, qbar=0, cpf=1, qmode=0, qf=11, exs=1, spf=1, pb=2, pbq0=0, rq=1, rg=1, r1=1, qfirst=0, vlate=0, jearly=5, xsite=5, woe=0, oe=0, tlb=0, rotm=2, rots=12, dxs=3, wt=1, mpf=21, pal=1, qs=2, qe=0, wt2=0, mv64=1, nz=16, ch1=1, ch2=4, snake=1, gb9=0, chk=1, rota=1, drot=42, kvr=4, oG=576, oK=384, oP=896, oS=448, hst=0, oz=0, eb0=0, lb1=50, lb3=92, lc1=70, jlate=0, s1slp=0, s1w=30, lad=1, gb14=1, gbar=0)
for x in sys.argv[2:]:
    k, v = x.split('='); OPT[k] = int(v)

OPT['oV'] = OPT['oK']; OPT['oC'] = min(OPT['oG'], 448)
def fbits(x): return struct.unpack('<I', struct.pack('<f', x))[0]

WS_KV, WS_G, WS_F1, WS_Q, WS_H, WS_STAMP = 0, 0x20000, 0x30000, 0x300000, 0x500000, 0xC00000
WS_O = WS_Q
WS_F2 = WS_F1 + 8192
WS_SIZE = 0x1000000
CLEAR_WG = 128
WR, EX = 65536, 131072
NSLOT, HALF, RING = 24, 49152, 98304
MERGE = 65536
LDS_BYTES = 163840
SPIN = 0x400000
SX, SWG, SWU, SWQ, SEX, SWS, SDBG, SWD, SWO, SOUT = 32, 36, 40, 44, 48, 52, 56, 60, 64, 92
sW, sTI, sQ, sU, sROT, sXO, sWOF, sMX, sMW, sI, sJ, sROT0 = range(68, 80)
sT = list(range(80, 90))
sEXW, sEXO = 90, 91
sC1 = 96
sF2, sRH, sRING, sOO = 98, 99, 100, 101
sHO, sH1 = 3, 0
sKVM, sKVO, sQA, sGA = sT[3], sT[5], 1, sROT0
sF2R, sF2W = sC1 + 1, sF2
sR = [sRH, 44, 45, 47]
def srd(n): return f"s[{n}:{n+3}]"
def vr(b, n): return f"v[{b}:{b+n-1}]"

vXS0, vXS1, vWS = 1, 2, 3
vST = 4
vXR = [5, 6, 7, 8]
vWR = [9, 10]
vES, vER, vSA = 11, [12, 13], 30
vL16, vLANE = 14, 15
vC0 = 16
vZ = 17
vGT = 18
t0, t1, t2, t3 = 20, 21, 22, 23
vS0, vWS2 = 28, 27
vPV, vPD, vTRP = 29, 0, 31
F = [32, 48]
ACC = [64, 96]
XF = 128
ACCE, WE = 96, 100
GW = 147456
L = vLANE
QA, QB, KF, V2, V1 = 128, 132, 136, 140, [144, 148]
vG, vIDX, vAK, vAV, vKVS = 152, 154, 24, 25, 26
vDR0, vDR1, vH0, vH1 = 159, 160, 161, 162
vDS, vDS1, vF2 = vPD, 158, 163
F2D = 164
vONE = 168
vM = [169, 170, 171, 172]
OA, OB, SA, SB = 176, 192, 208, 224
WF = [240, 248]
HF = [32, 40, 48, 56]
DACC = 64

a = Asm()
CLK = 's_memtime' if OPT['stamp'] == 2 else 's_memrealtime'
def stamp(k, grp=0):
    if grp != OPT['grp'] and k != 11: return
    if OPT['stamp']: a(f"{CLK} s[{4+2*k}:{5+2*k}]")
def mk_srd(n, p, size):
    a(f"s_mov_b32 s{n}, s{p}\ns_mov_b32 s{n+1}, s{p+1}\ns_mov_b32 s{n+2}, {size}\ns_mov_b32 s{n+3}, 0x20000")

PG = 3584
C0 = -2.0 * math.sqrt(2.0 / math.pi) * math.log2(math.e)
C1 = C0 * 0.044715
QS = 0.25 * math.log2(math.e)

a("; Code paths start at fixed offsets inside 4 KiB pages; the alignment padding in front of them is never executed.")
a("s_cmp_ge_u32 s2, 256\ns_cbranch_scc1 L_end")
a("s_load_dwordx16 s[4:19], s[0:1], 0\ns_load_dwordx8 s[20:27], s[0:1], 64\ns_load_dwordx2 s[28:29], s[0:1], 96")
if OPT['stamp']: a(f"{CLK} s[30:31]")
def code_prefetch():
    a(f"""
    s_getpc_b64 s[{sT[8]}:{sT[9]}]
    L_pc:
    s_andn2_b32 s{sT[7]}, s2, 7
    s_lshl_b32 s{sT[7]}, s{sT[7]}, 8
    v_lshl_add_u32 v{t3}, v0, 2, s{sT[7]}
    v_min_u32 v{t3}, L_last-L_pc-4, v{t3}
    s_mov_b32 exec_lo, 1
    s_mov_b32 exec_hi, 1
    global_load_dword v{vS0}, v{t3}, s[{sT[8]}:{sT[9]}]
    s_mov_b64 exec, -1
    """)
if OPT['cpf'] == 1: code_prefetch()
CH1, CH2 = [0] * 16, [0] * 16
for q_ in range(4):
    if OPT['chk']:
        slow = [r for r in range(7) if (7 * q_ + r) % 4 == 3]; order = slow + [r for r in range(7) if r not in slow]
        CH2[4*q_+3], CH2[4*q_+2], CH2[4*q_+1], CH2[4*q_], CH1[4*q_+1], CH1[4*q_+2], CH1[4*q_+3] = order
    else:
        for u_ in range(4): CH2[4*q_+u_] = 2 * u_; CH1[4*q_+u_] = max(2 * u_ - 1, 0)
def chunk_of(tab, dst, tmp):
    v = sum(x << (4 * i) for i, x in enumerate(tab))
    return f"""s_mov_b32 s{tmp}, {v & 0xffffffff:#x}
s_mov_b32 s{tmp+1}, {v >> 32:#x}
s_lshl2_add_u32 s{dst}, s{sQ}, s{sU}
s_lshl_b32 s{dst}, s{dst}, 2
s_lshr_b64 s[{tmp}:{tmp+1}], s[{tmp}:{tmp+1}], s{dst}
s_and_b32 s{tmp}, s{tmp}, 7
s_mul_i32 s{dst}, s{sQ}, 7
s_add_u32 s{dst}, s{dst}, s{tmp}"""
ROTC = {8: f"s_lshl1_add_u32 s{sROT0}, s{sU}, s{sJ}\ns_and_b32 s{sROT0}, s{sROT0}, 7",
        4: f"s_add_u32 s{sROT0}, s{sU}, s{sJ}\ns_and_b32 s{sROT0}, s{sROT0}, 3\ns_lshl_b32 s{sROT0}, s{sROT0}, 1",
        2: f"s_add_u32 s{sROT0}, s{sU}, s{sJ}\ns_and_b32 s{sROT0}, s{sROT0}, 1\ns_lshl_b32 s{sROT0}, s{sROT0}, 2",
        3: f"s_add_u32 s{sROT0}, s{sU}, s{sJ}\ns_lshl_b32 s{sROT0}, s{sROT0}, 1\ns_lshr_b32 s{sROT0}, 0x124924, s{sROT0}\ns_and_b32 s{sROT0}, s{sROT0}, 3\ns_mul_i32 s{sROT0}, s{sROT0}, 3",
        1: f"s_mov_b32 s{sROT0}, 0"}[OPT['rotm']]
if OPT['rots']:
    ROTC += f"\ns_bfe_u32 s{sQ}, s2, 0x20001\ns_mul_i32 s{sT[1]}, s{sQ}, {OPT['rots'] // 10}\ns_add_u32 s{sROT0}, s{sROT0}, s{sT[1]}\ns_mul_i32 s{sT[1]}, s{sT[2]}, {OPT['rots'] % 10}\ns_add_u32 s{sROT0}, s{sROT0}, s{sT[1]}\n" + (f"s_add_u32 s{sROT0}, s{sROT0}, {OPT['rota']}\n" if OPT['rota'] else "") + f"s_and_b32 s{sROT0}, s{sROT0}, 7"
a(f"""
v_readfirstlane_b32 s{sW}, v0
v_lshrrev_b32 v{t1}, 4, v0
v_lshrrev_b32 v{t0}, 3, v0
v_xor_b32 v{t1}, v0, v{t1}
s_lshr_b32 s{sU}, s2, 6
s_bfe_u32 s{sJ}, s2, 0x30003
v_and_b32 v{t1}, 7, v{t1}
s_and_b32 s{sT[2]}, s2, 1
s_lshl3_add_u32 s{sTI}, s{sT[2]}, s{sJ}
v_lshlrev_b32 v{t1}, 4, v{t1}
{ROTC}
v_lshl_add_u32 v{vXS0}, v{t0}, 10, v{t1}
s_lshl_b32 s{sT[0]}, s{sTI}, 17
s_lshl_b32 s{sXO}, s{sROT0}, 7
s_add_u32 s{sXO}, s{sXO}, s{sT[0]}
s_lshl_b32 s{sMW}, s{sW}, 4
s_mov_b32 m0, s{sMW}
s_mov_b32 s{SX+2}, {2048*1024}
s_mov_b32 s{SX+3}, 0x20000
""")
a(f"""
s_bfe_u32 s{sT[1]}, s{sW}, 0x10006
s_lshl_b32 s{sT[1]}, s{sT[1]}, 2
v_and_or_b32 v{t1}, v{t0}, 2, s{sT[1]}
s_bfe_u32 s{sQ}, s2, 0x20001
v_xor_b32 v{t1}, v0, v{t1}
{chunk_of(CH1, sT[1], sT[4])}
v_and_b32 v{t1}, 7, v{t1}
s_lshl_b32 s{sT[2]}, s{sQ}, 1
s_movk_i32 s{sT[3]}, {PG}
v_lshlrev_b32 v{vWS2}, 4, v{t1}
s_mov_b32 s{SWG+3}, 0x20000
s_mov_b32 s{SWU+3}, 0x20000
s_cmp_eq_u32 s{sU}, 0
s_cselect_b32 s{sT[1]}, s{sT[2]}, s{sT[1]}
s_cselect_b32 s{sT[3]}, 1024, s{sT[3]}
s_cselect_b32 s{sT[2]}, 128, 0
v_mad_u32_u24 v{vWS}, v{t0}, s{sT[3]}, v{vWS2}
s_lshl_b32 s{SWG+2}, s{sT[3]}, 9
s_mov_b32 s{SWU+2}, s{SWG+2}
s_mul_i32 s{sWOF}, s{sROT0}, s{sT[3]}
s_lshl1_add_u32 s{sWOF}, s{sT[1]}, s{sWOF}
s_lshl_b32 s{sWOF}, s{sWOF}, 6
s_cmp_eq_u32 s{sU}, 0
{CLK + ' s[84:85]' if OPT['grp'] == 5 else ''}
s_waitcnt lgkmcnt(0)
{CLK + ' s[86:87]' if OPT['grp'] == 5 else ''}
s_mov_b64 s[{SX}:{SX+1}], s[4:5]
s_cselect_b64 s[{SWG}:{SWG+1}], s[6:7], s[16:17]
s_cselect_b64 s[{SWU}:{SWU+1}], s[6:7], s[18:19]
""")
def first_stage(x0, x1, xstep, wstep):
    a(f"""
    buffer_load_dwordx4 v{x0}, {srd(SX)}, s{sXO} offen lds
    s_add_u32 m0, s{sMW}, {WR}
    s_add_u32 s{sXO}, s{sXO}, {xstep}
    buffer_load_dwordx4 v{vWS}, {srd(SWG)}, s{sWOF} offen lds
    s_add_u32 m0, s{sMW}, {WR + 8192}
    s_add_u32 s{sWOF}, s{sWOF}, {wstep}
    buffer_load_dwordx4 v{vWS}, {srd(SWU)}, s{sWOF} offen lds
    s_add_u32 m0, s{sMW}, 8192
    s_nop 0
    buffer_load_dwordx4 v{x1}, {srd(SX)}, s{sXO} offen lds
    """)
if OPT['qfirst']: a("s_cbranch_scc0 L_late")
first_stage(vXS0, vXS0, 65536, f"s{sT[2]}")
if OPT['wt']:
    assert not OPT['qfirst']
    a(f"""
    s_lshr_b32 s{sT[4]}, s{sW}, 7
    s_lshr_b32 s{sT[5]}, s{sJ}, 1
    s_cmp_lg_u32 s{sT[4]}, s{sT[5]}
    s_cbranch_scc1 L_nowt
    s_add_u32 s{sT[4]}, s{sROT0}, 1
    s_and_b32 s{sT[4]}, s{sT[4]}, 7
    s_mul_i32 s{sT[4]}, s{sT[4]}, s{sT[3]}
    s_lshl1_add_u32 s{sT[4]}, s{sT[1]}, s{sT[4]}
    s_lshl_b32 s{sT[4]}, s{sT[4]}, 6
    buffer_load_dword v32, v{vWS}, {srd(SWG)}, s{sT[4]} offen
    s_add_u32 s{sT[4]}, s{sT[4]}, s{sT[2]}
    buffer_load_dword v33, v{vWS}, {srd(SWU)}, s{sT[4]} offen
    L_nowt:
    """)
if OPT['qfirst']: a("L_late:")
if OPT['grp'] == 5: a(f"{CLK} s[88:89]\ns_waitcnt lgkmcnt(0)\ns_mov_b32 s4, s84\ns_mov_b32 s14, s86\ns_mov_b32 s5, s88")
a(f"""
s_lshr_b32 s{sW}, s{sW}, 6
v_add_u32 v{vXS0}, s{sT[0]}, v{vXS0}
v_add_u32 v{vXS1}, 0x10000, v{vXS0}
s_sub_u32 s{sXO}, s{sXO}, s{sT[0]}
s_mov_b32 s{sH1}, s{sT[1]}
s_lshl_b32 s{sT[1]}, s{sT[1]}, 7
s_sub_u32 s{sWOF}, s{sWOF}, s{sT[1]}
v_add_u32 v{vWS}, s{sT[1]}, v{vWS}
s_movk_i32 s{sT[3]}, {PG}
v_mad_u32_u24 v{vWS2}, v{t0}, s{sT[3]}, v{vWS2}
{chunk_of(CH2, sHO, sT[4])}
s_lshl_b32 s{sT[1]}, s{sHO}, 7
v_add_u32 v{vWS2}, s{sT[1]}, v{vWS2}
v_and_b32 v{L}, 63, v0
v_lshlrev_b32 v{vL16}, 4, v{L}
s_and_b32 s{sT[0]}, s2, 7
s_lshl2_add_u32 s{sI}, s{sT[0]}, s{sU}
s_add_u32 s{sROT}, s{sROT0}, 1
s_and_b32 s{sROT}, s{sROT}, 7
s_lshl_b32 s{sMX}, s{sW}, 11
""")
def late_loads(k):
    if OPT['qfirst'] != k: return
    a(f"s_cmp_eq_u32 s{sU}, 0\ns_cbranch_scc1 L_early")
    first_stage(vXS0, vXS1, 0, 0)
    a("L_early:")
late_loads(1)
def dispatch():
    a(f"""
    s_lshr_b32 s{sT[1]}, s{sW}, 2
    s_lshl1_add_u32 s{sT[0]}, s{sU}, s{sT[1]}
    s_lshr_b32 s{sT[1]}, s{sQ}, 1
    s_lshl1_add_u32 s{sT[0]}, s{sT[0]}, s{sT[1]}
    s_cmp_eq_u32 s{sT[0]}, 0
    s_cbranch_scc1 L_pathK
    s_cmp_eq_u32 s{sT[0]}, 1
    s_cbranch_scc1 L_pathV
    s_cmp_lt_u32 s{sT[0]}, 4
    s_cbranch_scc1 L_pathP
    s_cmp_eq_u32 s{sT[0]}, 4
    s_cbranch_scc1 L_pathS
    s_add_u32 s{sT[0]}, s{sMW}, s2
    s_cmp_eq_u32 s{sT[0]}, {CLEAR_WG + 1024}
    s_cbranch_scc1 L_pathC
    """)

PATH = ['G']
def wslot(sig):
    if sig < 8: return WR + (sig & 3) * 16384
    if sig >= 14: return EX + (sig - 14) * 16384
    return (0 if sig & 1 else WR) + ((sig - 8) >> 1) * 16384
def waddr(sig, b):
    return {0: vXR[b], 1: vWR[b], 2: vXR[2 + b]}[wslot(sig) >> 16]

def dma_ops(sig, path):
    p = sig >> 3
    isq = (path in 'KVP' and p == 0)
    pitch = 1024 if isq else PG
    sa, sb = (SWQ, SWQ) if isq else (SWG, SWU)
    xs, ws = (sig & 3) * 16384, wslot(sig)
    pre = f"s_mul_i32 s{sWOF}, s{sROT}, {64*pitch}\n"
    mid = f"s_add_u32 s{sWOF}, s{sWOF}, 128\n" if isq else ""
    inc, wrap = f"s_add_u32 s{sROT}, s{sROT}, 1\n", f"s_and_b32 s{sROT}, s{sROT}, 7\n"
    vw = vWS2 if p == 1 else vWS
    wa = f"s_add_u32 m0, s{sMW}, {ws}\n{{}}buffer_load_dwordx4 v{vw}, {srd(sa)}, s{sWOF} offen lds"
    wb = f"s_add_u32 m0, s{sMW}, {ws+8192}\n{{}}buffer_load_dwordx4 v{vw}, {srd(sb)}, s{sWOF} offen lds"
    if p == 0:
        return [f"s_add_u32 m0, s{sMW}, {xs}\ns_lshl_b32 s{sXO}, s{sROT}, 7\nbuffer_load_dwordx4 v{vXS0}, {srd(SX)}, s{sXO} offen lds",
                wa.format(pre), wb.format(mid + inc),
                f"s_add_u32 m0, s{sMW}, {xs+8192}\n{wrap}buffer_load_dwordx4 v{vXS1}, {srd(SX)}, s{sXO} offen lds"]
    return [wa.format(pre), wb.format(inc + wrap)]

DROT = {8: f"s_mul_i32 s{sRH}, s{sJ}, 7\ns_lshr_b32 s{sRH}, s{sRH}, 2\ns_mul_i32 s{sT[1]}, s{sU}, 7\ns_lshr_b32 s{sT[1]}, s{sT[1]}, 1\ns_add_u32 s{sRH}, s{sRH}, s{sT[1]}",
        4: f"s_add_u32 s{sRH}, s{sJ}, s{sU}\ns_and_b32 s{sRH}, s{sRH}, 3\ns_mul_i32 s{sRH}, s{sRH}, 7\ns_lshr_b32 s{sRH}, s{sRH}, 1",
        2: f"s_add_u32 s{sRH}, s{sJ}, s{sU}\ns_and_b32 s{sRH}, s{sRH}, 1\ns_mul_i32 s{sRH}, s{sRH}, 7",
        42: f"s_lshl1_add_u32 s{sRH}, s{sJ}, s{sU}\ns_and_b32 s{sRH}, s{sRH}, 3\ns_mul_i32 s{sRH}, s{sRH}, 7\ns_lshr_b32 s{sRH}, s{sRH}, 1"}[OPT['drot']]
def setup_common():
    mk_srd(SWS, 28, WS_SIZE)
    if OPT.get('wso'): a(f"s_add_u32 s{SWS}, s{SWS}, {OPT['wso'] << 20}\ns_addc_u32 s{SWS+1}, s{SWS+1}, 0")
    mk_srd(SDBG, 26, 256); mk_srd(SWD, 20, 1792 * 1024); mk_srd(SWO, 12, 512 * 1024); mk_srd(SOUT, 24, 2048 * 1024)
    late_loads(2)
    a(f"""
    s_and_b32 s{sT[0]}, s{sW}, 3
    s_lshr_b32 s{sT[1]}, s{sW}, 2
    s_xor_b32 s{sT[5]}, s{sT[1]}, s{sQ}
    s_and_b32 s{sT[5]}, s{sT[5]}, 1
    s_lshl1_add_u32 s{sT[0]}, s{sT[0]}, s{sT[5]}
    s_lshl_b32 s{sT[0]}, s{sT[0]}, 11
    v_and_b32 v{t0}, 15, v{L}
    v_bfe_u32 v{t1}, v{L}, 1, 3
    v_lshrrev_b32 v{t2}, 4, v{L}
    v_xor_b32 v{t1}, v{t1}, v{t2}
    v_lshlrev_b32 v{t1}, 4, v{t1}
    v_lshl_add_u32 v{t1}, v{t0}, 7, v{t1}
    v_add_u32 v{vXR[0]}, s{sT[0]}, v{t1}
    v_xor_b32 v{vXR[1]}, 0x800, v{vXR[0]}
    v_xor_b32 v{vXR[2]}, 64, v{vXR[0]}
    v_xor_b32 v{vXR[3]}, 64, v{vXR[1]}
    s_lshl_b32 s{sT[2]}, s{sT[5]}, 8
    v_xor_b32 v{vST}, s{sT[2]}, v{vL16}
    """)
    a(f"""
    v_lshrrev_b32 v{t3}, 5, v{L}
    v_lshlrev_b32 v{t0}, 4, v{t0}
    v_lshl_add_u32 v{vPV}, v{t3}, 8, v{t0}
    """)
    late_loads(3)
    a(f"""
    v_bfe_u32 v{t0}, v{L}, 2, 2
    v_lshl_add_u32 v{t1}, v{t2}, 3, v{t0}
    v_lshlrev_b32 v{t1}, 7, v{t1}
    v_bfe_u32 v{t2}, v{L}, 3, 2
    s_lshl_b32 s{sT[1]}, s{sT[1]}, 1
    v_xor_b32 v{t2}, s{sT[1]}, v{t2}
    v_lshl_add_u32 v{t1}, v{t2}, 5, v{t1}
    v_and_b32 v{t2}, 3, v{L}
    v_lshl_add_u32 v{t1}, v{t2}, 3, v{t1}
    v_add_u32 v{vWR[0]}, {WR}, v{t1}
    v_xor_b32 v{vWR[1]}, 32, v{vWR[0]}
    """)
    a(f"""
    v_lshl_add_u32 v{t3}, v{t3}, 3, v{t0}
    v_lshlrev_b32 v{t3}, 7, v{t3}
    v_lshrrev_b32 v{t0}, 1, v{t0}
    v_lshl_add_u32 v{t3}, v{t0}, 6, v{t3}
    v_lshl_add_u32 v{t3}, v{t2}, 3, v{t3}
    v_bfe_u32 v{t2}, v{L}, 4, 1
    v_lshl_add_u32 v{vTRP}, v{t2}, 5, v{t3}
    v_lshlrev_b32 v{t2}, 2, v{t2}
    v_and_b32 v{t1}, 7, v{L}
    v_xor_b32 v{t1}, v{t1}, v{t2}
    v_lshlrev_b32 v{t1}, 4, v{t1}
    v_lshrrev_b32 v{t0}, 3, v{L}
    v_lshl_add_u32 v{t0}, v{t0}, 10, v{t1}
    s_lshl_b32 s{sT[0]}, s{sJ}, 7
    v_add_u32 v{vPD}, s{sT[0]}, v{t0}
    v_mov_b32 v{vZ}, 0
    v_mov_b32 v{vC0}, {fbits(C0):#x}
    s_mov_b32 s{sC1}, {fbits(C1):#x}
    """)
    late_loads(4)
    a(f"""
    s_lshr_b32 s{sT[3]}, s{sW}, 2
    s_and_b32 s{sT[1]}, s{sW}, 3
    s_lshl2_add_u32 s{sT[0]}, s{sTI}, s{sT[1]}
    s_lshl_b32 s{sT[8]}, s{sT[0]}, 5
    s_and_b32 s{sT[2]}, s{sT[0]}, 15
    s_lshr_b32 s{sT[0]}, s{sT[0]}, 4
    s_mul_i32 s{sT[0]}, s{sT[0]}, 112
    s_lshl1_add_u32 s{sT[0]}, s{sT[3]}, s{sT[0]}
    s_lshl4_add_u32 s{sT[0]}, s{sT[0]}, s{sT[2]}
    s_lshl_b32 s{sT[0]}, s{sT[0]}, 10
    s_add_u32 s{sT[0]}, s{sT[0]}, {WS_H}
    s_lshl_b32 s{sHO}, s{sHO}, 16
    s_add_u32 s{sHO}, s{sHO}, s{sT[0]}
    s_lshl_b32 s{sH1}, s{sH1}, 16
    s_add_u32 s{sH1}, s{sH1}, s{sT[0]}
    s_lshl3_add_u32 s{sT[4]}, s{sQ}, s{sT[8]}
    s_lshl1_add_u32 s{sT[4]}, s{sT[3]}, s{sT[4]}
    s_lshl_b32 s{sT[4]}, s{sT[4]}, 10
    s_lshl2_add_u32 s{sF2}, s{sTI}, s{sQ}
    s_lshl_b32 s{sF2}, s{sF2}, 5
    s_add_u32 s{sF2}, s{sF2}, s{sU}
    s_lshl_b32 s{sF2}, s{sF2}, 2
    s_add_u32 s{sF2}, s{sF2}, {WS_F2}
    s_lshl1_add_u32 s{sT[1]}, s{sI}, s{sT[3]}
    s_lshl3_add_u32 s{sT[2]}, s{sT[1]}, s{sJ}
    s_and_b32 s{sT[1]}, s{sW}, 3
    s_lshl2_add_u32 s{sT[2]}, s{sT[2]}, s{sT[1]}
    s_lshl_b32 s{sOO}, s{sT[2]}, 10
    s_lshl_b32 s{sRING}, s{sW}, 13
    s_add_u32 s{sRING}, s{sRING}, {RING}
    {DROT}
    s_and_b32 s{sT[1]}, s2, {OPT['dxs']}
    s_add_u32 s{sRH}, s{sRH}, s{sT[1]}
    s_cmp_ge_u32 s{sRH}, 14
    s_cselect_b32 s{sT[1]}, 14, 0
    s_sub_u32 s{sRH}, s{sRH}, s{sT[1]}
    s_lshl_b32 s{sRH}, s{sRH}, 14
    s_mul_i32 s{sT[1]}, s{sW}, {14*16384}
    s_add_u32 s{SWD}, s{SWD}, s{sT[1]}
    s_addc_u32 s{SWD+1}, s{SWD+1}, 0
    s_sub_u32 s{SWD+2}, s{SWD+2}, s{sT[1]}
    s_lshl_b32 s{sT[1]}, s{sW}, 16
    s_add_u32 s{SWO}, s{SWO}, s{sT[1]}
    s_addc_u32 s{SWO+1}, s{SWO+1}, 0
    s_sub_u32 s{SWO+2}, s{SWO+2}, s{sT[1]}
    """)

def setup_path(P):
    if P in 'GC' and OPT['mpf']:
        a(f"""
        s_cmp_eq_u32 s{sU}, 2
        s_cselect_b64 s[{SEX}:{SEX+1}], s[{SWD}:{SWD+1}], s[{SWO}:{SWO+1}]
        s_cselect_b32 s{SEX+2}, s{SWD+2}, s{SWO+2}
        s_cselect_b32 s{sT[0]}, 28, 8
        s_mov_b32 s{SEX+3}, 0x20000
        s_cmp_eq_u32 s{sU}, 1
        s_cselect_b32 s{SEX+2}, 0, s{SEX+2}
        s_and_b32 s{sT[1]}, s2, 63
        s_mul_i32 s{sT[1]}, s{sT[1]}, s{sT[0]}
        s_sub_u32 s{sT[0]}, s{sT[0]}, 1
        v_min_u32 v{vES}, s{sT[0]}, v{L}
        v_add_lshl_u32 v{vES}, v{vES}, s{sT[1]}, 7
        """)
    if P in 'KV':
        a(f"""
        v_lshrrev_b32 v{t2}, 4, v{L}
        v_and_b32 v{t0}, 15, v{L}
        v_lshlrev_b32 v{t1}, 3, v{t0}
        v_lshl_add_u32 v{t1}, v{t2}, 8, v{t1}
        v_and_b32 v{t3}, 1, v{t2}
        v_lshl_add_u32 v{t1}, v{t3}, 7, v{t1}
        v_add_u32 v{vER[0]}, {EX}, v{t1}
        v_xor_b32 v{vER[1]}, 0x80, v{vER[0]}
        v_lshlrev_b32 v{t1}, 7, v{t3}
        v_xor_b32 v{vES}, v{t1}, v{vL16}
        s_add_u32 s{sEXO}, s{sW}, s{sROT0}
        s_and_b32 s{sEXO}, s{sEXO}, 7
        s_lshl_b32 s{sEXO}, s{sEXO}, 11
        s_lshr_b32 s{sEXW}, s{sT[4]}, 15
        v_lshrrev_b32 v{t2}, 1, v{t2}
        """)
        if P == 'K':
            a(f"""
            s_lshl3_add_u32 s{sEXW}, s{sEXW}, s{sT[5]}
            s_lshl_b32 s{sEXW}, s{sEXW}, 8
            v_lshlrev_b32 v{t2}, 9, v{t2}
            """)
        else:
            a(f"""
            s_lshl2_add_u32 s{sEXW}, s{sEXW}, s{sT[5]}
            s_lshl_b32 s{sEXW}, s{sEXW}, 9
            s_add_u32 s{sEXW}, s{sEXW}, 1024
            v_lshlrev_b32 v{t2}, 8, v{t2}
            v_and_b32 v{t0}, 3, v{L}
            v_bfe_u32 v{t1}, v{L}, 2, 1
            v_lshl_add_u32 v{t0}, v{t1}, 3, v{t0}
            v_bfe_u32 v{t1}, v{L}, 3, 1
            v_lshl_add_u32 v{t0}, v{t1}, 2, v{t0}
            """)
        a(f"""
        v_lshl_add_u32 v{t2}, v{t0}, 4, v{t2}
        v_lshl_add_u32 v{vSA}, v{t3}, 3, v{t2}
        """)
    if P == 'P':
        a(f"""
        v_bfe_u32 v{t1}, v{L}, 4, 1
        v_lshlrev_b32 v{t1}, 7, v{t1}
        v_xor_b32 v{vES}, v{t1}, v{vL16}
        s_add_u32 s{sEXO}, s{sW}, s{sROT0}
        s_and_b32 s{sEXO}, s{sEXO}, 7
        s_lshl_b32 s{sEXO}, s{sEXO}, 11
        """)
    if P == 'S':
        a(f"""
        s_lshl_b32 s{sEXO}, s{sROT0}, 7
        v_add_u32 v{vES}, s{sEXO}, v{vL16}
        v_and_b32 v{vES}, 0x3ff, v{vES}
        v_and_b32 v{t0}, 48, v{L}
        v_add_u32 v{vER[0]}, {GW}, v{t0}
        v_and_b32 v{t0}, 15, v{L}
        v_lshlrev_b32 v{vSA}, 2, v{t0}
        s_lshr_b32 s{sEXW}, s{sT[4]}, 15
        s_lshl1_add_u32 s{sEXW}, s{sEXW}, s{sT[5]}
        s_lshl_b32 s{sEXW}, s{sEXW}, 6
        s_add_u32 s{sEXW}, s{sEXW}, {WS_G}
        """)

def plan(c):
    run = OPT['ch1'] if c < 16 else OPT['ch2']
    if run == 1: return [(c, i) for i in range(4)]
    if run == 2: return [((c & ~1) + j, 2 * (c & 1) + p) for p in range(2) for j in range(2)]
    return [((c & ~3) + k, c & 3) for k in range(4)]
def x_reads(c):
    ks = [c] if OPT['ch1'] == 1 else ([] if c & 1 else [c, c + 1])
    return [f"ds_read_b128 {vr(XF + 8*k + 4*tq, 4)}, v{vXR[2*(k&1)+tq]} offset:{((k >> 1) & 3) * 16384}" for k in ks for tq in range(2)]
def w_reads(c):
    out = []
    for n, (k, i) in enumerate(plan(c)):
        sig, j, b, part = k >> 1, k & 1, i >> 1, i & 1
        off = (wslot(sig) & 0xffff) + part * 8192 + j * 4096
        out += [f"ds_read_b64_tr_b16 {vr(F[c&1] + 4*n + 2*e, 2)}, v{waddr(sig, b)} offset:{off + e*512}" for e in range(2)]
    return out
def e_steps(c):
    c0 = 2 * OPT['exs']
    if PATH[0] in 'KVS': return [2 * (c - c0), 2 * (c - c0) + 1] if c0 <= c < 2 * c0 else ([c] if 2 * c0 <= c < 16 else [])
    return []
def e_buf(c, i): return WE + 16 + 4 * i if (PATH[0] == 'S' and c == 15) else WE + 8 * (c & 1) + 4 * i
def e_reads(c):
    if PATH[0] == 'S':
        cs = [] if c == 15 else ([14, 15] if c == 14 else [c])
        return [f"ds_read_b128 {vr(e_buf(x, i), 4)}, v{vER[0]} offset:{k*64}" for x in cs for i, k in enumerate(e_steps(x))]
    return [f"ds_read_b64_tr_b16 {vr(e_buf(c, i) + 2*e, 2)}, v{vER[e]} offset:{k*1024}" for i, k in enumerate(e_steps(c)) for e in range(2)]
def e_mfmas(c):
    out = []
    for i, k in enumerate(e_steps(c)):
        acc, w, x = vr(ACCE, 4), vr(e_buf(c, i), 4), vr(XF + 8 * k, 4)
        A, B = (x, w) if PATH[0] == 'V' else (w, x)
        out.append(f"v_mfma_f32_16x16x32_bf16 {acc}, {A}, {B}, {'0' if k == 0 else acc}")
    return out
def mfmas(sig, j):
    c = 2 * sig + j
    pl = plan(c); out = []
    for i in sorted({i for k, i in pl}):
        for tq in range(2):
            seq = [(n, k) for n, (k, t) in enumerate(pl) if t == i]
            if tq == 1 and OPT['snake'] and not any((k & 15) == 0 for n, k in seq): seq.reverse()
            for n, k in seq:
                d = vr(ACC[c >> 4] + 8 * i + 4 * tq, 4)
                out.append(f"v_mfma_f32_16x16x32_bf16 {d}, {vr(F[c&1] + 4*n, 4)}, {vr(XF + 8*(k & 15) + 4*tq, 4)}, {'0' if (k & 15) == 0 else d}")
    return out

def gelu_pair(base, j, T=vGT, pk=False):
    G = vr(base + 2 * j, 2); U = vr(base + 8 + 2 * j, 2); TT = vr(T, 2)
    g0, g1, u0, u1 = base + 2 * j, base + 2 * j + 1, base + 8 + 2 * j, base + 9 + 2 * j
    if pk:
        return [f"v_pk_mul_f32 {TT}, {G}, {G}",
                f"v_pk_fma_f32 {TT}, {TT}, s[{sC1}:{sC1+1}], {vr(vC0,2)} op_sel_hi:[1,0,0]",
                f"v_pk_mul_f32 {TT}, {TT}, {G}",
                f"v_exp_f32 v{T}, v{T}", f"v_exp_f32 v{T+1}, v{T+1}",
                f"v_pk_mul_f32 {G}, {G}, {U}",
                f"v_pk_add_f32 {TT}, {TT}, 1.0 op_sel_hi:[1,0]",
                f"v_rcp_f32 v{T}, v{T}", f"v_rcp_f32 v{T+1}, v{T+1}",
                f"v_pk_mul_f32 {G}, {G}, {TT}",
                f"v_cvt_pk_bf16_f32 v{base+j}, v{g0}, v{g1}"]
    return [f"v_mul_f32 v{T}, v{g0}, v{g0}", f"v_mul_f32 v{T+1}, v{g1}, v{g1}",
            f"v_fma_f32 v{T}, v{T}, s{sC1}, v{vC0}", f"v_fma_f32 v{T+1}, v{T+1}, s{sC1}, v{vC0}",
            f"v_mul_f32 v{T}, v{T}, v{g0}", f"v_mul_f32 v{T+1}, v{T+1}, v{g1}",
            f"v_exp_f32 v{T}, v{T}", f"v_exp_f32 v{T+1}, v{T+1}",
            f"v_mul_f32 v{g0}, v{g0}, v{u0}", f"v_add_f32 v{T}, 1.0, v{T}", f"v_add_f32 v{T+1}, 1.0, v{T+1}",
            f"v_rcp_f32 v{T}, v{T}", f"v_rcp_f32 v{T+1}, v{T+1}",
            f"v_mul_f32 v{g1}, v{g1}, v{u1}",
            f"v_mul_f32 v{g0}, v{g0}, v{T}", f"v_mul_f32 v{g1}, v{g1}, v{T+1}",
            f"v_cvt_pk_bf16_f32 v{base+j}, v{g0}, v{g1}"]
def to_frag(base):
    return [f"v_permlane16_swap_b32 v{base}, v{base+2}", f"v_permlane16_swap_b32 v{base+1}, v{base+3}"]

def cost(x):
    c = 0
    for l in x.strip().split('\n'):
        l = l.strip()
        if not l or l.startswith(';') or l.endswith(':'): continue
        c += 8 if l.startswith(('v_exp', 'v_rcp')) else (OPT.get('vmc', 16) if l.startswith('buffer_') else 4)
    return c

kvtok = {}
def kv_step(m):
    slot = (4 * m % NSLOT) * 2048
    if m == 0: x = f"s_mov_b32 m0, s{sKVM}\ns_nop 0\n"
    else: x = f"s_add_u32 s{sKVO}, s{sKVO}, 8192\ns_add_u32 m0, s{sKVM}, {slot}\ns_and_b32 s{sKVO}, s{sKVO}, 0xffff\n"
    return [x + f"buffer_load_dwordx4 v{vKVS}, {srd(SWS)}, s{sKVO} offen sc1 lds", f"buffer_load_dwordx4 v{vKVS}, {srd(SWS)}, s{sKVO} offen offset:1024 sc1 lds"]
KV_FIRST = 2
def first_loads():
    return [f"buffer_load_dwordx4 {vr(QA,4)}, v{vL16}, {srd(SWS)}, s{sQA} offen sc1\ns_xor_b32 s{sQA}, s{sQA}, 1024"] + kv_step(0) + \
           [f"buffer_load_dwordx4 {vr(QB,4)}, v{vL16}, {srd(SWS)}, s{sQA} offen sc1"] + kv_step(1)

KVR = {0: f"s_lshr_b32 s{sT[7]}, s2, 3", 1: f"s_mov_b32 s{sT[7]}, 0", 2: f"s_and_b32 s{sT[7]}, s2, 16", 3: f"s_lshl_b32 s{sT[7]}, s2, 3", 4: f"s_lshl_b32 s{sT[7]}, s2, 2"}[OPT['kvr']]
def setup_early():
    a(f"""
    s_lshr_b32 s{sT[0]}, s{sW}, 2
    s_lshl_b32 s{sT[1]}, s{sT[0]}, 16
    v_add_u32 v{vKVS}, s{sT[1]}, v{vL16}
    s_and_b32 s{sT[1]}, s{sW}, 1
    s_mul_i32 s{sT[1]}, s{sT[1]}, {HALF}
    v_add_u32 v{vAK}, s{sT[1]}, v{vL16}
    v_add_u32 v{vAV}, s{sT[1]}, v{vPV}
    s_mul_i32 s{sT[1]}, s{sT[0]}, {HALF}
    s_and_b32 s{sT[6]}, s{sW}, 3
    s_lshl_b32 s{sT[7]}, s{sT[6]}, 11
    s_add_u32 s{sKVM}, s{sT[7]}, s{sT[1]}
    {KVR}
    s_add_u32 s{sT[6]}, s{sT[6]}, s{sT[7]}
    s_and_b32 s{sT[6]}, s{sT[6]}, 31
    s_lshl_b32 s{sKVO}, s{sT[6]}, 11
    s_add_u32 s{sQA}, s{sOO}, {WS_Q}
    s_xor_b32 s{sQA}, s{sQA}, 1024
    s_lshl1_add_u32 s{sGA}, s{sI}, s{sT[0]}
    s_lshl_b32 s{sGA}, s{sGA}, 7
    s_add_u32 s{sGA}, s{sGA}, {WS_G}
    s_lshr_b32 s{sT[6]}, s{sI}, 3
    s_lshl3_add_u32 s{sT[6]}, s{sT[6]}, s{sW}
    s_mul_i32 s{sT[6]}, s{sT[6]}, {14*16}
    s_and_b32 s{sT[7]}, s{sI}, 7
    s_lshl1_add_u32 s{sT[7]}, s{sT[7]}, s{sT[0]}
    s_add_u32 s{sT[6]}, s{sT[6]}, s{sT[7]}
    s_lshl_b32 s{sT[6]}, s{sT[6]}, 10
    s_add_u32 s{sT[9]}, s{sT[6]}, {WS_H}
    s_lshr_b32 s{sF2R}, s{sI}, 1
    s_lshl_b32 s{sF2R}, s{sF2R}, 9
    s_add_u32 s{sF2R}, s{sF2R}, {WS_F2}
    s_lshl_b32 s{sT[1]}, s{sW}, 24
    s_add_u32 s{sF2W}, s{sF2}, s{sT[1]}
    s_mul_i32 s{sT[6]}, s{sW}, 2304
    s_add_u32 s{sT[6]}, s{sT[6]}, {MERGE}
    s_xor_b32 s{sT[7]}, s{sW}, 1
    s_mul_i32 s{sT[7]}, s{sT[7]}, 2304
    s_add_u32 s{sT[7]}, s{sT[7]}, {MERGE}
    """)
def setup_queue(late=False):
    q = []
    def add(st, txt):
        for l in txt.strip().split('\n'): q.append((st, l.strip().replace('|', '\n')))
    add(11, f"""
    v_and_b32 v{vG}, 31, v{L}
    v_lshlrev_b32 v{vG}, 2, v{vG}
    v_mov_b32 v{vIDX}, 0xdddddddd
    v_mov_b32 v{V2+1}, 0x3f803f80
    s_mov_b32 vcc_lo, 0x110000|s_mov_b32 vcc_hi, 0x110000|v_cndmask_b32 v{V2}, 0, v{V2+1}, vcc
    """)
    if OPT['mv64']:
        add(11, f"v_mov_b32 v{V2+1}, v{V2}")
        for r in range(V2 + 2, V2 + 12, 2): add(11, f"v_mov_b64 {vr(r,2)}, {vr(V2,2)}")
    else:
        for r in range(V2 + 1, V2 + 12): add(11, f"v_mov_b32 v{r}, v{V2}")
    add(12, f"""
    v_add_u32 v{vDR0}, s{sRING}, v{vTRP}
    v_xor_b32 v{vDR1}, 64, v{vDR0}
    v_add_u32 v{vDS1}, 7168, v{vDS}
    v_add_u32 v{vH0}, s{sT[9]}, v{vL16}
    v_xor_b32 v{vH1}, 0x400, v{vH0}
    v_lshlrev_b32 v{vF2}, 7, v{L}
    v_mov_b32 v{vONE}, 1
    v_add_u32 v{vM[0]}, s{sT[6]}, v{vL16}
    v_lshl_add_u32 v{vM[2]}, v{L}, 2, s{sT[6]}
    v_add_u32 v{vM[1]}, s{sT[7]}, v{vL16}
    v_lshl_add_u32 v{vM[3]}, v{L}, 2, s{sT[7]}
    """)
    for st, O in ((13, OA), (14, OB)):
        if OPT['oz']:
            add(st, f"buffer_load_dwordx4 {vr(O,4)}, v{vL16}, {srd(SDBG)}, 0 offen offset:256\nbuffer_load_dwordx4 {vr(O+4,4)}, v{vL16}, {srd(SDBG)}, 0 offen offset:256\nv_mov_b32 v{O+8}, 0")
        elif OPT['mv64']:
            for r in range(0, OPT['nz'], 2): add(st, f"v_mov_b64 {vr(O+r,2)}, 0")
        else:
            for r in range(9): add(st, f"v_mov_b32 v{O+r}, 0")
    if OPT['vlate']:
        cut = [i for i, x in enumerate(q) if x[1].startswith(f"v_and_b32 v{vG}, 31")][0]
        if late: return [x[1] for x in q[cut:]]
        return q[:cut]
    return [] if late else q

cold = []
def s0_check(P):
    a(f"v_cmp_eq_u32 vcc, 0, v{vS0}\ns_cbranch_vccnz L_s0retry{P}\nL_s0done{P}:")
    cold.append(f"""
    L_s0retry{P}:
    s_mov_b32 s{sT[1]}, 0
    L_s0poll{P}:
    buffer_load_dword v{vS0}, v{vZ}, {srd(SDBG)}, 0 offen sc1
    s_add_u32 s{sT[1]}, s{sT[1]}, 1
    s_waitcnt vmcnt(0)
    v_cmp_eq_u32 vcc, 0, v{vS0}
    s_cbranch_vccz L_s0done{P}
    s_cmp_lt_u32 s{sT[1]}, {SPIN}
    s_cbranch_scc1 L_s0poll{P}
    s_branch L_s0done{P}
    """)
def s1_issue(P):
    a(f"s_cmp_lg_u32 s{sW}, 0\ns_cbranch_scc1 L_nopoll0{P}")
    if P in 'GSC': s0_check(P)
    a(f"""
    s_mov_b32 s{sT[1]}, {WS_F1}
    v_lshlrev_b32 v{t1}, 7, v{L}
    buffer_load_dword v{t0}, v{t1}, {srd(SWS)}, s{sT[1]} offen sc1
    L_nopoll0{P}:
    """)
    a.vm -= 1
def s1_check(P):
    a(f"""
    s_cmp_lg_u32 s{sW}, 0
    s_cbranch_scc1 L_s1done{P}
    s_mov_b32 s{sT[0]}, 0
    L_s1poll{P}:
    s_waitcnt vmcnt(0)
    v_cmp_ne_u32 vcc, 1, v{t0}
    s_cbranch_vccz L_s1done{P}
    {'s_sleep ' + str(OPT['s1slp']) if OPT['s1slp'] else ''}
    s_mov_b64 exec, vcc
    buffer_load_dword v{t0}, v{t1}, {srd(SWS)}, s{sT[1]} offen sc1
    s_mov_b64 exec, -1
    s_add_u32 s{sT[0]}, s{sT[0]}, 1
    s_cmp_lt_u32 s{sT[0]}, {SPIN}
    s_cbranch_scc1 L_s1poll{P}
    s_waitcnt vmcnt(0)
    L_s1done{P}:
    """)
    a.vm -= 1

def proj_path(P):
    tok = {}
    PATH[0] = P
    S1 = OPT['s1']
    sched = {s: [s + 2] for s in range(6)}
    ISQ = P in 'KVP'
    PB = OPT['pbq0'] if ISQ else OPT['pb']
    QF = OPT['qf']
    sched.update({6: [8, 9], 7: [10, 11], 8: [12, 13], 9: [14, 15]}); cover = {8: 9, 10: 11, 12: 15}
    if ISQ and OPT['qmode'] == 0:
        del sched[8], sched[9]
        if OPT['qs'] == 0: sched.update({10: [12, 13], 11: [14, 15]}); cover = {8: 9, 10: 11, 12: 13, 14: 15}
        elif OPT['qs'] == 1: sched.update({10: [12], 11: [13], 12: [14], 13: [15]}); cover = {8: 9, 10: 11, 12: 12, 13: 13, 14: 14, 15: 15}
        elif OPT['qs'] == 2: sched.update({10: [12, 13], 12: [14, 15]}); cover = {8: 9, 10: 11, 12: 13, 14: 15}
        elif OPT['qs'] == 3: sched.update({9: [12], 10: [13], 11: [14], 12: [15]}); cover = {8: 9, 10: 11, 12: 13, 14: 15}
    bars = set(range(8)) | set(cover) | {S1}
    assert OPT['ch2'] < 4 or all(cover.get(x, 15) >= x + 1 for x in (8, 10, 12, 14))
    if OPT['gb14']: bars |= {14}
    if OPT['gb9'] and not ISQ: bars |= {9}; cover.update({8: 8, 9: 9})
    if OPT['gbar'] and not ISQ: bars |= set(range(8, 16))
    if ISQ: bars |= {QF} | ({9} if OPT['qmode'] else set()) | (set(range(10, 16)) if OPT['qbar'] else set())
    def dma_groups(sg):
        d = dma_ops(sg, P)
        if ISQ and sg == OPT['exs']:
            d.insert(1, f"""
            s_add_u32 m0, s{sMX}, {EX}
            s_nop 0
            buffer_load_dwordx4 v{vES}, {srd(SEX)}, s{sEXO} offen lds
            buffer_load_dwordx4 v{vES}, {srd(SEX)}, s{sEXO} offen offset:1024 lds
            """)
        if P == 'S' and sg == OPT['exs']:
            d.insert(1, f"s_mov_b32 m0, {GW}\ns_nop 0\nbuffer_load_dwordx4 v{vES}, {srd(SEX)}, 0 offen lds")
        return [(x, sg if k == len(d) - 1 else None) for k, x in enumerate(d)]
    def emit(it):
        if callable(it): return it()
        a(it[0])
        if it[1] is not None: tok[it[1]] = a.lastvm()
    tok[0] = a.lastvm()
    if ISQ: mk_srd(SWQ, 6, 512 * 1024)
    if not OPT['spf']:
        for it in dma_groups(1): emit(it)
    if ISQ: mk_srd(SWG, 16, 512 * PG); mk_srd(SWU, 18, 512 * PG)
    if P in 'KVS': mk_srd(SEX, {'K': 8, 'V': 10, 'S': 22}[P], 1024 if P == 'S' else 16384)
    if P == 'P': a(f"s_cmp_lt_u32 s{sQ}, 2\ns_cselect_b64 s[{SEX}:{SEX+1}], s[8:9], s[10:11]\ns_mov_b32 s{SEX+2}, 16384\ns_mov_b32 s{SEX+3}, 0x20000")
    if OPT['wt2']:
        a(f"""
        s_bitcmp1_b32 s{sJ}, 1
        s_cselect_b64 s[28:29], s[18:19], s[16:17]
        s_lshr_b32 s{sT[0]}, s{sJ}, 2
        s_add_u32 s{sT[0]}, s{sT[0]}, s{sROT0}
        s_and_b32 s{sT[0]}, s{sT[0]}, 7
        s_mul_i32 s{sT[0]}, s{sT[0]}, {64*PG}
        s_add_u32 s28, s28, s{sT[0]}
        s_addc_u32 s29, s29, 0
        """)
    setup_path(P)
    if OPT['grp'] == 5: a("s_mov_b32 s6, s14\ns_mov_b32 s8, s5")
    stamp(3, 5)
    if OPT['spf']:
        for it in dma_groups(1): emit(it)
    stamp(4, 5)
    setup_early()
    if P == 'C':
        ctok = a(f"v_lshlrev_b32 v{t0}, 7, v{L}\ns_mov_b32 s{sT[1]}, {WS_F1}\nbuffer_store_dword v{vZ}, v{t0}, {srd(SWS)}, s{sT[1]} offen sc1")
    win = {c: [] for c in range(33)}
    box = {}; front = {}; pre8 = []; early8 = []; lvl = [3]
    def usable(c):
        return c % 2 == 0 or ((c + 1) // 2) not in bars
    def nxt(c):
        while not usable(c): c += 1
        return c
    if not ISQ:
        gq = []
        for b in range(2):
            for j in range(4): gq += gelu_pair(ACC[0] + 16 * b, j)
            gq += to_frag(ACC[0] + 16 * b)
            if b == 0: n0 = len(gq)
        npre = 17 * (PB - 1) if PB else 0
        pre8 += [(x, None) for j in range(max(PB - 1, 0)) for x in gelu_pair(ACC[0], j, pk=OPT.get('pbk', 0))]
        gq = gq[npre:]; n0 -= npre
        ws = [c for c in range(16, OPT['gend'] + 1) if usable(c)]
        ndma = {16: 2, 17: 2, 18: 4} if 9 not in bars else {16: 4, 18: 4}
        tot = len(gq) + OPT['dwt'] * 8
        done = 0; accw = 0
        for k, c in enumerate(ws):
            accw += OPT['dwt'] * ndma.get(c, 0)
            upto = max(done, tot * (k + 1) // len(ws) - accw)
            win[c] += [(x, None) for x in gq[done:upto]]
            if done < n0 <= upto: c0 = c
            done = upto
        assert done == len(gq)
        for b in range(OPT['nearly']):
            c = nxt(max(OPT[f'h{b}w'], c0 if b == 0 else ws[-1]))
            win[c].append((f"s_add_u32 s{sT[2]}, s{sH1}, {16384*b}\nbuffer_store_dwordx4 {vr(ACC[0]+16*b,4)}, v{vST}, {srd(SWS)}, s{sT[2]} offen sc1", None))
    else:
        qa = [f"s_add_u32 s{sT[8]}, s{sT[4]}, {WS_Q + 4096}\ns_add_u32 s{sT[4]}, s{sT[4]}, {WS_Q}"]
        if P == 'K': qa += [f"v_mul_f32 v{ACCE+r}, {fbits(QS):#x}, v{ACCE+r}" for r in range(4)]
        sts = []
        if P in 'KV':
            qa += [f"v_cvt_pk_bf16_f32 v{vGT}, v{ACCE}, v{ACCE+1}", f"v_cvt_pk_bf16_f32 v{vGT+1}, v{ACCE+2}, v{ACCE+3}"]
            sts.append(f"buffer_store_dwordx2 {vr(vGT,2)}, v{vSA}, {srd(SWS)}, s{sEXW} offen sc1")
        if P == 'P':
            sts.append(f"s_and_b32 s{sT[0]}, s{sF2}, 0xffff80\nv_lshlrev_b32 v{t2}, 2, v{L}\ns_mov_b32 exec_hi, 0\nbuffer_store_dword v{vZ}, v{t2}, {srd(SWS)}, s{sT[0]} offen sc1\ns_mov_b32 exec_hi, -1")
        def qcv(i): return [f"v_cvt_pk_bf16_f32 v{ACC[0]+8*i+j}, v{ACC[0]+8*i+2*j}, v{ACC[0]+8*i+2*j+1}" for j in range(4)]
        def qst(i): return to_frag(ACC[0] + 8 * i) + [f"v_and_b32 v{ACC[0]+8*i}, -2, v{ACC[0]+8*i}\nbuffer_store_dwordx4 {vr(ACC[0]+8*i,4)}, v{vST}, {srd(SWS)}, s{sT[8 if i & 1 else 4]} offen offset:{1024*(i>>1)} sc1"]
        mark = [lambda: box.update(q=a.lastvm())]
        T = lambda l: [(x, None) for x in l]
        if OPT['qmode'] == 0 and PB:
            pre8 += T(qa + qcv(0) + qcv(1) + qcv(2) + qcv(3) + [x for i in range(4) for x in qst(i)[:2]])
            if OPT.get('pbq'): pre8 += T(sts + [qst(i)[2] for i in range(4)]) + mark
            else: win[16] += T(sts + [qst(i)[2] for i in range(2)]); win[17] += T([qst(i)[2] for i in range(2, 4)]) + mark
        elif OPT['qmode'] == 0:
            if OPT['qe'] == 0: win[16] += T(qa + sts + qcv(0) + qcv(1) + qst(0) + qst(1)); win[17] += T(qcv(2) + qcv(3) + qst(2) + qst(3)) + mark
            elif OPT['qe'] == 1:
                win[16] += T(qa + sts + qcv(0) + qst(0)); win[17] += T(qcv(1) + qcv(2) + qst(1) + qst(2)); front[18] = T(qcv(3) + qst(3)) + mark
            else:
                win[16] += T(qa + qcv(0) + sts + qcv(1) + qst(0)); win[17] += T(qst(1) + qcv(2) + qcv(3) + qst(2)); front[18] = T(qst(3)) + mark
        elif OPT['qmode'] == 1:
            win[16] += T(qa + qcv(0) + qcv(1)); win[18] += T(sts + qst(0) + qcv(2)); win[20] += T(qcv(3) + qst(1) + qst(2) + qst(3)) + mark
        else:
            win[16] += T(qa + qcv(0) + qcv(1) + qcv(2) + qcv(3)); win[18] += T(sts + qst(0) + qst(1) + qst(2) + qst(3)) + mark
        def qflag():
            assert a.vm_done > box['s0']
            if P != 'P': s0_check(P)
            a(f"""
            s_lshl4_add_u32 s{sT[0]}, s{sQ}, s{sTI}
            s_lshl_b32 s{sT[0]}, s{sT[0]}, 7
            s_add_u32 s{sT[0]}, s{sT[0]}, {WS_F1}
            s_lshl_b32 s{sT[1]}, s{sW}, 24
            s_add_u32 s{sT[0]}, s{sT[0]}, s{sT[1]}
            v_mov_b32 v{t1}, 1
            s_mov_b64 exec, 1
            buffer_store_dword v{t1}, v{vZ}, {srd(SWS)}, s{sT[0]} offen sc1
            s_mov_b64 exec, -1
            """)
        if P != 'P': box['flag'] = qflag
    if P in 'GC' and OPT['mpf']:
        win[OPT['mpf']].insert(0, (f"buffer_load_dword v{vES}, v{vES}, {srd(SEX)}, 0 offen", None))
    if P == 'S':
        gs = [(x, None) for x in (f"v_mul_f32 v{t2}, {fbits(-math.log2(math.e)):#x}, v{ACCE}", f"v_exp_f32 v{t2}, v{t2}", f"v_add_f32 v{t2}, 1.0, v{t2}", f"v_rcp_f32 v{t2}, v{t2}",
                                  f"buffer_store_dword v{t2}, v{vSA}, {srd(SWS)}, s{sEXW} offen sc1")]
        if PB: pre8 += gs
        else: win[16] = gs + win[16]
    queue = setup_queue()
    ws = [c for c in range(21 if ISQ else 20, 2 * S1 - 1) if usable(c)]
    for k, c in enumerate(ws):
        left = [x for x in queue if ({11: 20, 12: 24, 13: 24, 14: 28}[x[0]] if OPT['ch2'] == 4 else 2 * x[0] - 2) <= c]
        take = min(len(left), -(-len(queue) // (len(ws) - k)))
        win[c] += [(x[1], None) for x in left[:take]]; queue = queue[take:]
    assert not queue
    (early8 if OPT['ch2'] == 4 else win[16]).insert(0, (f"v_subrev_u32 v{vXR[0]}, {WR}, v{vWR[0]}\nv_subrev_u32 v{vXR[1]}, {WR}, v{vWR[1]}\nv_add_u32 v{vXR[2]}, {WR}, v{vWR[0]}\nv_add_u32 v{vXR[3]}, {WR}, v{vWR[1]}", None))

    def cluster(c, what='mr'):
        M = mfmas(c >> 1, c & 1) if (c >= 0 and 'm' in what) else []
        em = e_mfmas(c) if M else []
        for i, x in enumerate(em): M.insert(1 + (8 // len(em) + 1) * i if OPT['ch1'] == 1 else 2 + i, x)
        d = c + 1
        R = []
        if d < 32 and 'r' in what:
            if d < 16: R += x_reads(d)
            R += w_reads(d)
            R += e_reads(d)
        a.wait(a.lastlg())
        if M and not OPT['lad']: a("s_setprio 2")
        n = max(len(M), 1); k = 0
        last = n - 1 if (c & 1 or ((c >> 1) + 1) not in bars) else n - 2
        if M: last = min(last, n - 1 - OPT['rq' if ISQ else 'rg'] if c >= 16 else n - 1 - OPT['r1'])
        for i in range(n):
            if M: a(M[i])
            want = len(R) if i >= last else -(-len(R) * (i + 1) // (last + 1))
            while k < want: a(R[k]); k += 1
        if M and not OPT['lad']: a("s_setprio 0")
        if M and OPT['lad'] and lvl[0] > 0 and not (c % 2 == 0 and (c >> 1) + 1 in bars and not (c == 14 and PB)):
            lvl[0] -= 1; a(f"s_setprio {lvl[0]}")

    for sig in range(16):
        if sig == 8:
            for it in early8: emit(it)
        if sig == 8 and PB:
            cluster(15, 'm')
            for it in pre8: emit(it)
        if sig in bars:
            if sig in cover or sig < 8: a.wait(tok[cover.get(sig, sig)])
            if ISQ and sig == QF: a.wait(box['q'])
            if sig == S1 and P != 'P': s1_check(P)
            if OPT['lad']: lvl[0] = 3; a("s_setprio 3")
            a("s_barrier")
            if sig == QF and 'flag' in box: box['flag']()
        if sig == 1: stamp(1)
        if sig == 8: stamp(2)
        if sig < 11: stamp(sig, 1)
        if sig < 5: stamp(5 + sig, 5)
        if sig >= 6: stamp(sig - 6, 2)
        D = []
        if P == 'C' and sig == 2:
            assert a.vm_done >= ctok[1]
            win[4].append((f"v_mov_b32 v{t0}, 1\ns_mov_b64 exec, 1\nbuffer_store_dword v{t0}, v{vZ}, {srd(SDBG)}, 0 offen sc1\ns_mov_b64 exec, -1", None))
        for sg in sched.get(sig, []): D += dma_groups(sg)
        if sig == S1: D += [(x, None) for x in first_loads()]
        if sig == (7 if ISQ else 9) and P != 'P':
            def s0_load():
                if not ISQ:
                    a(f"s_cmp_lg_u32 s{sW}, 0\ns_cbranch_scc1 L_nos0l{P}\nbuffer_load_dword v{vS0}, v{vZ}, {srd(SDBG)}, 0 offen sc1\nL_nos0l{P}:")
                    a.vm -= 1
                else:
                    a(f"buffer_load_dword v{vS0}, v{vZ}, {srd(SDBG)}, 0 offen sc1")
                box['s0'] = a.vm
            D.insert(len(D) - 1, s0_load)
        head, mid, tail = [], D, []
        if sig < OPT['late']: mid, tail = [], D
        elif (sig + 1) not in bars: mid, tail = D[:len(D)//2], D[len(D)//2:]
        elif sig in bars and len(D) >= 4: head, mid = D[:OPT['na']], D[OPT['na']:]
        if sig == 6 and OPT['wt2']:
            a(f"global_load_dword v{t3}, v{vWS2}, s[28:29]")
            if OPT['wt2'] == 2: mid = head + mid; head = []
        for it in head: emit(it)
        cluster(2 * sig - 1, 'r' if (sig == 8 and PB) else 'mr')
        if sig == S1 - 1 and P != 'P' and OPT['s1w'] == 30:
            assert a.vm_done > box['s0']
            s1_issue(P)
        for it in front.get(2 * sig, []) + mid + win[2 * sig]: emit(it)
        cluster(2 * sig)
        for it in front.get(2 * sig + 1, []) + tail + win[2 * sig + 1]: emit(it)
    if P != 'P' and OPT['s1w'] == 31: s1_issue(P)
    a.wait(a.lastlg())
    assert not win[32]

setup_common()
if OPT['tlb']:
    a(f"s_cmp_lg_u32 s{sW}, 6\ns_cbranch_scc1 L_notlb")
    if OPT['tlb'] == 1:
        a(f"""
        v_lshlrev_b32 v{t0}, 21, v{L}
        s_mov_b32 s{sT[0]}, 0x80000
        s_mov_b64 exec, 63
        buffer_load_dword v32, v{t0}, {srd(SWS)}, s{sT[0]} offen
        s_mov_b64 exec, 1
        buffer_load_dword v33, v{vZ}, {srd(SWD)}, 0 offen
        buffer_load_dword v34, v{vZ}, {srd(SWO)}, 0 offen
        buffer_load_dword v35, v{vZ}, {srd(SOUT)}, 0 offen
        s_mov_b64 exec, -1
        """)
    else:
        a(f"""
        s_lshr_b32 s{sT[0]}, s2, 3
        s_lshl_b32 s{sT[0]}, s{sT[0]}, 16
        v_lshlrev_b32 v{t0}, 21, v{L}
        s_mov_b64 exec, 63
        buffer_load_dword v32, v{t0}, {srd(SWS)}, s{sT[0]} offen
        s_mov_b64 exec, 1
        v_mov_b32 v{t0}, s{sT[0]}
        v_min_u32 v{t1}, {1792*1024 - 4}, v{t0}
        global_load_dword v33, v{t1}, s[20:21]
        v_min_u32 v{t1}, {512*1024 - 4}, v{t0}
        global_load_dword v34, v{t1}, s[12:13]
        buffer_load_dword v35, v{t0}, {srd(SOUT)}, 0 offen
        s_mov_b64 exec, -1
        """)
    a("L_notlb:")
dispatch()
if OPT['pal']: a(f"s_branch L_pathG\n.p2align 12\n.fill {OPT['oG'] // 4}, 4, 0xbf800000\nL_pathG:")
proj_path('G')
a("L_join:")
a.forget()

JE = OPT['jearly'] and OPT['s1'] == 16
if not JE:
    for m in mfmas(15, 1): a(m)
    a("s_setprio 0")
stamp(3); stamp(10, 2)
def gelu_chunk(k):
    b, jp = k >> 1, k & 1
    g0 = gelu_pair(ACC[1] + 16 * b, 2 * jp, vGT, pk=OPT['pk2']); g1 = gelu_pair(ACC[1] + 16 * b, 2 * jp + 1, t2, pk=OPT['pk2'])
    for x, y in zip(g0, g1):
        a(x); a(y)
    if k == 2:
        for x in to_frag(ACC[1]): a(x)
for k in range(OPT['jlate']): gelu_chunk(k)
stamp(5, 3)
if OPT['s1'] == 16:
    s1_check('J')
    stamp(6, 3)
    a("s_barrier")
    stamp(7, 3)
    fl = first_loads()
    if JE:
        nfirst = OPT['jearly'] - 1
        for x in fl[:nfirst]: a(x)
        for m in mfmas(15, 1): a(m)
        fl = fl[nfirst:]
    for x in fl: a(x)
stamp(4); stamp(8, 3)
fltok = a.lastvm()
HST = OPT['hst']
def hs(k):
    if k >= HST: return
    if k == 0:
        assert OPT['nearly'] == 1
        a(f"s_add_u32 s{sT[2]}, s{sH1}, 16384\ns_cmp_eq_u32 s{sU}, 0\ns_cselect_b32 s{sT[2]}, {WS_SIZE}, s{sT[2]}\nbuffer_store_dwordx4 {vr(ACC[0]+16,4)}, v{vST}, {srd(SWS)}, s{sT[2]} offen sc1")
    else:
        hbox['h'] = a((f"s_add_u32 s{sHO}, s{sHO}, 16384\n" if k == 2 else "") + f"buffer_store_dwordx4 {vr(ACC[1]+16*(k-1),4)}, v{vST}, {srd(SWS)}, s{sHO} offen sc1")
hbox = {}
for k in range(OPT['jlate'], 4 - OPT['eb0']):
    gelu_chunk(k)
    if k == OPT.get('hs0', 1): hs(0)
    if k == 2: hs(1)
if not OPT['eb0']:
    for x in to_frag(ACC[1] + 16): a(x)
for x in setup_queue(True): a(x)
a(f"s_mov_b32 s{sT[8]}, 0xffff\ns_mov_b32 s{sT[9]}, 0xffff")
hs(2)
stamp(9, 3)
a.wait(fltok)
a("s_barrier")
if not OPT['eb0']: stamp(5); stamp(10, 3)

def qk(S, Q): return f"v_mfma_f32_32x32x16_bf16 {vr(S,16)}, {vr(KF,4)}, {vr(Q,4)}, 0"
def pv(O, V, S): return f"v_smfmac_f32_32x32x32_bf16 {vr(O,16)}, {vr(V,4)}, {vr(S,8)}, v{vIDX}"
NT, B1, B2 = 32, 8, OPT['b2']
def rec(t): return (t % NSLOT) * 2048
def rdK(t): return a(f"ds_read_b128 {vr(KF,4)}, v{vAK} offset:{rec(t)}")
def rdV(t2, t1):
    a(f"s_mov_b64 exec, s[{sT[8]}:{sT[9]}]")
    if t2 is not None: a(f"ds_read_b128 {vr(V2,4)}, v{vAV} offset:{rec(t2) + 1536}")
    if t1 is not None: a(f"ds_read_b128 {vr(V1[t1&1],4)}, v{vAV} offset:{rec(t1) + 1024}")
    a("s_mov_b64 exec, -1")
    return a.lastlg()
wtok, htok, rtok, box = {}, {}, {}, {}
m0own = [None]; wstart = set()
def w_off(u): return sR[u & 3] if u < 14 else sWOF
def w_load_a(u):
    a(f"s_add_u32 m0, s{sRING}, {(u & 3) * 2048}"); m0own[0] = ('w', u); wstart.add(u)
    assert u == 0 or (u - 1) in wtok
    if 0 < u < 14: a(f"s_sub_u32 s{sR[u&3]}, s{sR[(u-1)&3]}, 16384\ns_cselect_b32 s{sR[u&3]}, {13*16384}, s{sR[u&3]}")
    elif u == 14: a(f"s_lshl_b32 s{sWOF}, s{sU}, 14")
    elif u > 14: a(f"s_add_u32 s{sWOF}, s{sWOF}, 16384\ns_and_b32 s{sWOF}, s{sWOF}, 0xffff")
    a(f"buffer_load_dwordx4 v{vDS}, {srd(SWD if u < 14 else SWO)}, s{w_off(u)} offen lds")
def w_load_b(u):
    if m0own[0] != ('w', u):
        a(f"s_add_u32 m0, s{sRING}, {(u & 3) * 2048}"); m0own[0] = ('w', u)
    wtok[u] = a(f"buffer_load_dwordx4 v{vDS1}, {srd(SWD if u < 14 else SWO)}, s{w_off(u)} offen offset:1024 lds")
def h_load_a(u):
    assert u in wstart and (u + 4) not in wstart
    a(f"buffer_load_dwordx4 {vr(HF[u&3],4)}, v{vH0}, {srd(SWS)}, s{sR[u&3]} offen sc1")
def h_load_b(u):
    assert (u + 4) not in wstart
    htok[u] = a(f"buffer_load_dwordx4 {vr(HF[u&3]+4,4)}, v{vH1}, {srd(SWS)}, s{sR[u&3]} offen sc1")
def w_read(u, b):
    if b == 0: a.wait(wtok[u], htok[u])
    for e in range(2):
        rtok[u, b] = a(f"ds_read_b64_tr_b16 {vr(WF[u&1] + 4*b + 2*e, 2)}, v{(vDR0, vDR1)[b]} offset:{(u & 3) * 2048 + e*512}")
def d_mfma(u, k):
    tb, b = k >> 1, k & 1
    a.wait(rtok[u, 1])
    d = vr(DACC + 32 * tb + 16 * b, 16)
    a(f"v_mfma_f32_32x32x16_bf16 {d}, {vr(WF[u&1]+4*b,4)}, {vr(HF[u&3]+4*tb,4)}, {'0' if u == 0 else d}")

if OPT.get('x_now'):
    def w_load_a(u): pass
    def w_load_b(u): wtok[u] = None
if OPT.get('x_noh'):
    def h_load_a(u): pass
    def h_load_b(u): htok[u] = None
if OPT.get('x_noread'):
    def w_read(u, b): rtok[u, b] = None
ev, mf = {}, {}
SNAP = OPT.get('snap', 1)
B1P = 32 * (B1 - 1) + 11
EV, EVA, EK, EKA = OPT.get('ev', 5), OPT.get('eva', 0), OPT.get('ek', 11), OPT.get('eka', 0)
busy = {32 * t + o for t in range(NT) for o in (EV, EK, 18)}
def nextpos(p):
    while SNAP and (p & 15) not in (2, 5, 8, 11, 14): p += 1
    return p
def at(pos, f, limit=None):
    p = nextpos(pos)
    while SNAP and limit is not None and p in busy and nextpos(p + 1) <= limit: p = nextpos(p + 1)
    busy.add(p)
    ev.setdefault(p, []).append(f)
    return p
def h_store(b): box['h'] = a((f"s_add_u32 s{sHO}, s{sHO}, 16384\n" if b else "") + f"buffer_store_dwordx4 {vr(ACC[1]+16*b,4)}, v{vST}, {srd(SWS)}, s{sHO} offen sc1")
def late_store(k):
    a(f"""
    s_cmp_eq_u32 s{sU}, 0
    s_cbranch_scc1 L_nols{k}
    s_add_u32 s{sT[2]}, s{sH1}, {16384*k}
    buffer_store_dwordx4 {vr(ACC[0]+16*k,4)}, v{vST}, {srd(SWS)}, s{sT[2]} offen sc1
    L_nols{k}:
    """)
    a.vm -= 1
pp = OPT.get('p_st', 1); STS = OPT.get('p_sts', 1)
box.update(hbox)
for k in range(OPT['nearly'] + (HST > 0), 2):
    pp = at(pp, lambda k=k: late_store(k), pp + 12) + STS
if HST < 2: pp = at(pp, lambda: h_store(0), pp + 12) + STS
if HST < 3: pp = at(pp, lambda: h_store(1), pp + 12)
assert pp < B1P
def kv_emit(m, i):
    if i == 0: m0own[0] = ('kv', m)
    if m0own[0] != ('kv', m):
        a(f"s_add_u32 m0, s{sKVM}, {(4 * m % NSLOT) * 2048}"); m0own[0] = ('kv', m)
    kvtok[m] = a(kv_step(m)[i])
for m in range(KV_FIRST, 8):
    p = OPT['p_kv'] + OPT['p_kvs'] * (m - KV_FIRST) if m < 6 else OPT['p_kv2'] + 20 * (m - 6)
    p = at(p, lambda m=m: kv_emit(m, 0), p + 8)
    at(p + 1, lambda m=m: kv_emit(m, 1), p + 9)
assert OPT['p_kv2'] > B1P
def h_flag():
    a(f"s_mov_b64 exec, 1\nbuffer_store_dword v{vONE}, v{vZ}, {srd(SWS)}, s{sF2W} offen sc1\ns_mov_b64 exec, -1")
at(B1P + 1, h_flag)
def f2_load():
    box['f2'] = a(f"s_mov_b64 exec, 15\nbuffer_load_dwordx4 {vr(F2D,4)}, v{vF2}, {srd(SWS)}, s{sF2R} offen sc1")
    a("s_mov_b64 exec, -1")
at(OPT['p_f2'], f2_load, OPT['p_f2'] + 8)
def f2_check():
    a.wait(box['f2'])
    test = f"v_min3_u32 v{F2D}, v{F2D}, v{F2D+1}, v{F2D+2}\nv_min_u32 v{F2D}, v{F2D}, v{F2D+3}\nv_cmp_ne_u32 vcc, 1, v{F2D}"
    a(f"s_mov_b64 exec, 15\n{test}\ns_cbranch_vccnz L_s2retry\nL_s2done:\ns_mov_b64 exec, -1")
    cold.append(f"""
    L_s2retry:
    s_mov_b32 s{sT[1]}, 0
    L_s2poll:
    buffer_load_dwordx4 {vr(F2D,4)}, v{vF2}, {srd(SWS)}, s{sF2R} offen sc1
    s_add_u32 s{sT[1]}, s{sT[1]}, 1
    s_waitcnt vmcnt(0)
    {test}
    s_cbranch_vccz L_s2done
    {'s_sleep ' + str(OPT['slp']) if OPT.get('slp') else ''}
    s_cmp_lt_u32 s{sT[1]}, {SPIN}
    s_cbranch_scc1 L_s2poll
    s_branch L_s2done
    """)
    a(f"buffer_load_dword v{vG}, v{vG}, {srd(SWS)}, s{sGA} offen sc1")
    stamp(9)
PCHK = at(OPT['p_chk'], f2_check, OPT['p_chk'] + 8)
D0, DE = OPT['d0'], OPT['dend']
allsl = [32 * t + o for t in range(D0, DE) for o in (8, 14, 24, 30)]
assert len(allsl) >= 56
slots = [allsl[(i * len(allsl)) // 56] for i in range(56)]
for u in range(14):
    rp = slots[0] - 16 if u == 0 else slots[4 * u - 2] + 1
    lim = slots[4 * u] - 9
    p = at(rp, lambda u=u: w_read(u, 0), lim - 3); at(p + 1, lambda u=u: w_read(u, 1), lim)
    for k in range(4): mf[slots[4 * u + k]] = (lambda u=u, k=k: d_mfma(u, k))
for u in range(18):
    pw = OPT['p_fill'] + OPT['p_fills'] * u if u < 4 else slots[4 * (u - 4)] + 1
    p = at(pw, lambda u=u: w_load_a(u), pw + 8); p = at(p + 1, lambda u=u: w_load_b(u), p + 8)
    if u < 3:
        ph = PCHK + 1 + OPT.get('p_hs', 13) * u
        p = at(ph, lambda u=u: h_load_a(u), ph + 4); at(p + 1, lambda u=u: h_load_b(u), p + 5)
    if 4 <= u < 15:
        p = at(p + 1, lambda u=u: h_load_a(u - 1), p + 8); at(p + 1, lambda u=u: h_load_b(u - 1), p + 8)
for lo, hi, fr in ((0, B1P, (OPT.get('la1', 30), OPT.get('la2', 70), OPT.get('la3', 94))), (B1P, 32 * B2, (OPT.get('lb1', 35), OPT.get('lb2', 80), OPT.get('lb3', 96))),
                   (32 * B2, 32 * NT, (OPT.get('lc1', 60), OPT.get('lc2', 87), OPT.get('lc3', 96)))):
    for k in range(3): at(lo + ((hi - lo) * fr[k]) // 100, lambda k=k: a(f"s_setprio {2-k}"))

if OPT['grp'] == 6:
    for k, p in enumerate((240, 300, 380, 436, 466, 490, 520, 560, 600, 650, 700)): at(p, lambda k=k: stamp(k, 6))
at(32 * NT - 2, lambda: a(f"ds_write_b128 v{vM[0]}, {vr(OA,4)}\nds_write_b128 v{vM[0]}, {vr(OA+4,4)} offset:1024\nds_write_b32 v{vM[2]}, v{OA+8} offset:2048"))

a("; ---- attention: S = K Q^T (scale and log2 e folded into K), P = 2^S in place, O += V^T P with the high halves of the fp32 P")
a("s_setprio 3")
tK = rdK(0); tV = rdV(None, 0)
for k in range(4 - OPT['eb0'], 4): gelu_chunk(k)
if OPT['eb0']: stamp(5); stamp(10, 3)
a.wait(tK)
a(qk(SA, QA))
if OPT['eb0']:
    for x in to_frag(ACC[1] + 16): a(x)
for t in range(NT):
    if t == B2:
        a.wait(kvtok[7]); a("s_barrier\ns_setprio 3"); stamp(0)
        if OPT.get('x_idle'): a(f"s_sleep {OPT['x_idle']}")
    nx = t + 1 if t + 1 < NT else None
    for ph, (S, So, O, Oo, Qo) in enumerate(((SA, SB, OA, OB, QB), (SB, SA, OB, OA, QA))):
        for e in range(16):
            pos = 32 * t + 16 * ph + e
            def own(after):
                global tV, tK
                if ph == 0 and (e, after) == (EV, EVA):
                    if t == 0: a.wait(tV)
                    tV = rdV(t, nx if t != B1 - 1 else None)
                if ph == 0 and (e, after) == (EK, EKA) and nx and t != B1 - 1: tK = rdK(nx)
            for f in ev.pop(pos, []): f()
            own(0)
            if pos == B1P:
                a.wait(kvtok[5], box['h'], tV); a("s_barrier\ns_setprio 3"); stamp(6)
                tK = rdK(nx); tV = rdV(None, nx)
            if e == 2:
                if ph == 1: a.wait(tV, None if OPT.get('w2') else tK)
                if t > 0 or ph == 1: a(pv(Oo, V2, So + 8))
            if (e == 5 and not (t == 0 and ph == 0)) or (t == 0 and ph == 0 and e == 0):
                if ph == 1: a.wait(tK)
                if ph == 0 or nx: a(qk(So, Qo))
            if e == 11: a(pv(O, V1[t & 1], S))
            if pos in mf: mf.pop(pos)()
            own(1)
            a(f"v_exp_f32 v{S+e}, v{S+e}")
            if OPT.get('x_mov') and e in (3, 9) : a("v_max_u32 v23, v17, v17")
assert not mf
assert not ev, sorted(ev)
if OPT['woe']: a.wait(wtok[17])
a(pv(OB, V2, SB + 8))
a.wait_lg0()
stamp(7); stamp(0, 4)
a("s_barrier")
stamp(1, 4)
a(f"""
ds_read_b32 v{SA+8}, v{vM[3]} offset:2048
ds_read_b128 {vr(SA,4)}, v{vM[1]}
ds_read_b128 {vr(SA+4,4)}, v{vM[1]} offset:1024
s_add_u32 s{sOO}, s{sOO}, {WS_O}
s_mov_b32 s{sT[6]}, {fbits(2.0**-60):#x}
s_mov_b32 s{sT[7]}, {fbits(2.0**60) - fbits(2.0**-60):#x}
s_lshl_b32 s{sT[3]}, s{sW}, 13
s_xor_b32 s{sT[2]}, s{sT[3]}, 0x8000
v_add_u32 v24, s{sT[2]}, v{vL16}
v_add_u32 v26, s{sT[3]}, v{vL16}
s_waitcnt lgkmcnt(2)
v_add_f32 v{OB+8}, v{OB+8}, v{SA+8}
v_rcp_f32 v{t0}, v{OB+8}
""")
a.wait_lg0()
a("; ---- the exponentials were taken with shift 0; that is exact only while the row sum is far inside the fp32 range and nothing")
OS = 128
for j in range(2): a(f"v_pk_add_f32 {vr(OB+2*j,2)}, {vr(OB+2*j,2)}, {vr(SA+2*j,2)}")
a(f"v_mul_f32 v{t0}, v{t0}, v{vG}")
for j in range(2, 4): a(f"v_pk_add_f32 {vr(OB+2*j,2)}, {vr(OB+2*j,2)}, {vr(SA+2*j,2)}")
for j in range(4): a(f"v_pk_mul_f32 {vr(OB+2*j,2)}, {vr(OB+2*j,2)}, {vr(t0,2)} op_sel_hi:[1,0]")
a(f"""
v_pk_add_f32 {vr(t2,2)}, {vr(OB,2)}, {vr(OB+2,2)}
v_pk_add_f32 {vr(t0,2)}, {vr(OB+4,2)}, {vr(OB+6,2)}
v_cvt_pk_bf16_f32 v{OS}, v{OB}, v{OB+1}
v_pk_add_f32 {vr(t2,2)}, {vr(t2,2)}, {vr(t0,2)}
v_cvt_pk_bf16_f32 v{OS+1}, v{OB+2}, v{OB+3}
v_add_f32 v{t2}, v{t2}, v{t3}
v_cvt_pk_bf16_f32 v{OS+2}, v{OB+4}, v{OB+5}
v_fma_f32 v{t2}, v{t2}, 0, v{OB+8}
v_cvt_pk_bf16_f32 v{OS+3}, v{OB+6}, v{OB+7}
v_subrev_u32 v{t2}, s{sT[6]}, v{t2}
v_or_b32 v{OS}, 1, v{OS}
v_cmp_lt_u32 vcc, s{sT[7]}, v{t2}
""")
if OPT['force_fb']: a("s_mov_b64 vcc, -1")
a(f"""
s_cbranch_vccnz L_true_max
L_norm:
buffer_store_dwordx4 {vr(OS,4)}, v{vL16}, {srd(SWS)}, s{sOO} offen sc1
""")
stamp(8); stamp(2, 4)

OF, WOF, XT = 32, 176, 96
vO1 = 27
fill = f"""
s_and_b32 s{sT[1]}, s{sW}, 3
s_lshl_b32 s{sT[2]}, s{sT[1]}, 13
s_add_u32 s{sT[2]}, s{sT[2]}, {RING}
v_add_u32 v28, s{sT[2]}, v{vTRP}
v_xor_b32 v29, 64, v28
v_sub_f32 v{vG}, 1.0, v{vG}
v_add_u32 v{vO1}, 0x4000, v{vL16}
s_lshr_b32 s{sT[9]}, s{sW}, 2
s_lshl1_add_u32 s{sT[0]}, s{sI}, s{sT[9]}
s_lshl3_add_u32 s{sT[0]}, s{sT[0]}, s{sT[1]}
s_lshl_b32 s{sT[0]}, s{sT[0]}, 12
s_add_u32 s{sT[0]}, s{sT[0]}, {WS_O}
s_lshl4_add_u32 s{sT[8]}, s{sT[9]}, s{sT[1]}
s_lshl_b32 s{sT[8]}, s{sT[8]}, 11
""".strip().split('\n')
for v in range(4):
    fill += f"s_add_u32 s{sT[1]}, s{sU}, {v}\ns_and_b32 s{sT[1]}, s{sT[1]}, 3\ns_lshl_b32 s{sT[1]}, s{sT[1]}, 10\ns_add_u32 s{sT[4+v]}, s{sT[0]}, s{sT[1]}".split('\n')
fill += f"""
v_and_b32 v{t0}, 31, v{L}
v_lshrrev_b32 v{t1}, 5, v{L}
v_and_b32 v{t2}, 7, v{L}
v_xor_b32 v{t1}, v{t1}, v{t2}
v_lshlrev_b32 v{t1}, 4, v{t1}
v_lshl_add_u32 v{t0}, v{t0}, 8, v{t1}
v_add_u32 v9, s{sT[3]}, v{t0}
v_xor_b32 v10, 32, v9
v_xor_b32 v11, 64, v9
v_xor_b32 v12, 0x60, v9
v_lshrrev_b32 v{t0}, 3, v{L}
v_lshlrev_b32 v{t1}, 1, v{t2}
v_xor_b32 v{t1}, v{t1}, v{t0}
v_lshlrev_b32 v{t1}, 4, v{t1}
v_lshl_add_u32 v{t1}, v{t0}, 8, v{t1}
v_add_u32 v1, s{sT[8]}, v{t1}
v_xor_b32 v2, 16, v1
s_lshl3_add_u32 s{sT[3]}, s{sI}, s{sW}
s_lshl_b32 s{sT[3]}, s{sT[3]}, 6
s_add_u32 s{sT[3]}, s{sT[3]}, s{sJ}
s_lshl_b32 s{sT[3]}, s{sT[3]}, 7
v_lshlrev_b32 v{t2}, 4, v{t2}
v_lshl_add_u32 v5, v{t0}, 10, v{t2}
s_mov_b32 s{sT[2]}, 0
""".strip().split('\n')
def wo_read(v):
    slot = ((14 + v) & 3) * 2048 + (v >> 2) * 32768
    for b in range(2):
        for e in range(2):
            a(f"ds_read_b64_tr_b16 {vr(WOF + 8*v + 4*b + 2*e, 2)}, v{28 + b} offset:{slot + e*512}")
for j in range(8):
    xw = a(f"ds_write_b128 v24, {vr(DACC+32+4*j,4)} offset:{1024*j}")
    for x in fill[len(fill) * j // 8: len(fill) * (j + 1) // 8]: a(x)
    if OPT['woe'] == 1: wo_read(j)
if OPT['woe'] == 2:
    for j in range(8): wo_read(j)
def o_loads():
    for v in range(8):
        a(f"buffer_load_dwordx4 {vr(OF + 4*v, 4)}, v{vO1 if v >> 2 else vL16}, {srd(SWS)}, s{sT[4 + (v&3)]} offen sc1")
stamp(3, 4)
a.wait(wtok[17], xw)
a(f"s_cmp_ge_u32 s{sW}, 4")
if not OPT['oe']: a("s_barrier"); stamp(4, 4)
a("s_setprio 1\ns_cbranch_scc1 L_ol1\ns_setprio 0")
o_loads()
a("L_ol1:")
if OPT['oe']: a("s_barrier"); stamp(4, 4)
xt = [a(f"ds_read_b128 {vr(XT+4*j,4)}, v26 offset:{1024*j}") for j in range(8)]
for j in range(8):
    a.wait(xt[j])
    for i in range(2):
        r = 4 * j + 2 * i
        a(f"v_pk_add_f32 {vr(DACC+r,2)}, {vr(DACC+r,2)}, {vr(XT+r,2)}")
    for i in range(2):
        r = 4 * j + 2 * i
        a(f"v_pk_mul_f32 {vr(DACC+r,2)}, {vr(DACC+r,2)}, {vr(vG,2)} op_sel_hi:[1,0]")
stamp(5, 4)
a("s_setprio 0\ns_cbranch_scc0 L_ol2")
o_loads()
a("L_ol2:")
if not OPT['woe']:
    for j in range(8): wo_read(j)
stamp(6, 4)
a.wait_lg0()
ND = XT
a("L_s3poll:")
def wo_mfma(v, b): a(f"v_mfma_f32_32x32x16_bf16 {vr(ND+16*b,16)}, {vr(WOF+8*v+4*b,4)}, {vr(OF+4*v,4)}, {vr((DACC if v == 0 else ND)+16*b,16)}")
def chk(v): a(f"v_and_b32 v{t0}, {1 if v == 0 else 'v' + str(t0)}, v{OF+4*v}")
def xsite():
    a(f"s_cmp_eq_u32 s{sT[9]}, 0\ns_cbranch_scc1 L_nox\ns_mov_b32 s{sT[9]}, 0\ns_barrier\nL_nox:")
for v in range(6):
    a(f"s_waitcnt vmcnt({7-v})")
    if v == 0: stamp(10); stamp(7, 4)
    wo_mfma(v, 0); chk(v); wo_mfma(v, 1)
    if v == OPT['xsite']: xsite()
a("s_waitcnt vmcnt(1)"); wo_mfma(6, 0); chk(6)
a("s_waitcnt vmcnt(0)"); wo_mfma(7, 0); chk(7)
a.vm_done = a.vm
wo_mfma(6, 1)
if OPT['xsite'] == 6: xsite()
a(f"v_cmp_eq_u32 vcc, 0, v{t0}")
wo_mfma(7, 1)
if OPT['xsite'] == 7: xsite()
a("s_cbranch_vccnz L_s3retry\nL_s3done:")
stamp(8, 4)
for b in range(2):
    if OPT['xsite'] >= 6: a("s_nop 2" if b == 0 else "s_nop 3")
    for qd in range(4): a(f"ds_write_b128 v{9+qd}, {vr(ND + 16*b + 4*qd, 4)} offset:{b*128}")
a(f"s_cmp_ge_u32 s{sW}, 4")
a.wait_lg0()
a("s_barrier")
stamp(9, 4)
RD = 176
rt = []
for p in range(4):
    for e in range(2):
        rt.append(a(f"ds_read_b128 {vr(RD + 8*p + 4*e, 4)}, v{1 + e} offset:{p*8192}"))
for p in range(1, 4):
    a.wait(rt[2 * p + 1])
    for j in range(4):
        if OPT.get('fpk', 1): a(f"v_pk_add_f32 {vr(RD+2*j,2)}, {vr(RD+2*j,2)}, {vr(RD+8*p+2*j,2)}")
        else: a(f"v_add_f32 v{RD+2*j}, v{RD+2*j}, v{RD+8*p+2*j}\nv_add_f32 v{RD+2*j+1}, v{RD+2*j+1}, v{RD+8*p+2*j+1}")
for j in range(4): a(f"v_cvt_pk_bf16_f32 v{RD+j}, v{RD+2*j}, v{RD+2*j+1}")
a(f"buffer_store_dwordx4 {vr(RD,4)}, v5, {srd(SOUT)}, s{sT[3]} offen {['', 'sc1'][OPT['outm']]}")
a("s_cbranch_scc1 L_noy\ns_barrier\nL_noy:")
stamp(10, 4)
if OPT['stamp']:
    a("s_waitcnt vmcnt(0)")
    stamp(11)
    a("s_waitcnt lgkmcnt(0)")
    a(f"s_mov_b32 s28, s{sT[2]}")
    if 'span' in OPT:
        a(f"""
        s_lshl3_add_u32 s{sT[0]}, s2, s{sW}
        s_lshl_b32 s{sT[0]}, s{sT[0]}, 3
        s_add_u32 s{sT[0]}, s{sT[0]}, {WS_STAMP}
        v_mov_b32 v1, 0
        v_mov_b32 v2, s{4+2*OPT['span']}
        v_mov_b32 v3, s30
        s_mov_b64 exec, 1
        buffer_store_dwordx2 v[2:3], v1, {srd(SWS)}, s{sT[0]} offen sc1
        s_mov_b64 exec, -1
        s_add_u32 s{sT[0]}, s2, s{sW}
        s_cmp_lg_u32 s{sT[0]}, 0
        s_cbranch_scc1 L_end
        L_pad0:
        s_memrealtime s[{sT[2]}:{sT[3]}]
        s_waitcnt lgkmcnt(0)
        s_sub_u32 s{sT[2]}, s{sT[2]}, s30
        s_cmp_lt_u32 s{sT[2]}, 4500
        s_cbranch_scc1 L_pad0
        v_mov_b32 v4, 0
        v_mov_b32 v5, -1
        s_sub_u32 s{sT[1]}, s30, 1000
        """)
        for g in range(16):
            a(f"""
            s_mov_b32 s{sT[0]}, {WS_STAMP + 1024*g}
            buffer_load_dwordx4 v[8:11], v{vL16}, {srd(SWS)}, s{sT[0]} offen sc1
            s_waitcnt vmcnt(0)
            v_subrev_u32 v8, s{sT[1]}, v8
            v_subrev_u32 v9, s{sT[1]}, v9
            v_subrev_u32 v10, s{sT[1]}, v10
            v_subrev_u32 v11, s{sT[1]}, v11
            v_max3_u32 v4, v4, v8, v10
            v_min3_u32 v5, v5, v9, v11
            """)
        a(f"s_mov_b32 s{sT[4]}, 0\ns_mov_b32 s{sT[5]}, -1")
        for i in range(64): a(f"v_readlane_b32 s{sT[6]}, v4, {i}\nv_readlane_b32 s{sT[7]}, v5, {i}\ns_nop 0\ns_max_u32 s{sT[4]}, s{sT[4]}, s{sT[6]}\ns_min_u32 s{sT[5]}, s{sT[5]}, s{sT[7]}")
        a(f"""
        s_sub_u32 s{sT[0]}, s{sT[4]}, s{sT[5]}
        s_sub_u32 s{sT[0]}, s{sT[0]}, {OPT.get('spanb', 2000)}
        s_min_u32 s{sT[0]}, s{sT[0]}, 2500
        s_mul_i32 s{sT[0]}, s{sT[0]}, 10
        s_add_u32 s{sT[0]}, s{sT[0]}, 6000
        L_pad:
        s_memrealtime s[{sT[2]}:{sT[3]}]
        s_waitcnt lgkmcnt(0)
        s_sub_u32 s{sT[2]}, s{sT[2]}, s30
        s_cmp_lt_u32 s{sT[2]}, s{sT[0]}
        s_cbranch_scc1 L_pad
        """)
    elif 'crit' in OPT:
        a(f"""
        s_cmp_lg_u32 s{sW}, 7
        s_cbranch_scc1 L_end
        s_lshl_b32 s{sT[0]}, s2, 6
        s_add_u32 s{sT[0]}, s{sT[0]}, {WS_STAMP}
        v_mov_b32 v1, 0
        """)
        for k in range(14): a(f"v_mov_b32 v2, s{4+2*k}\nbuffer_store_dword v2, v1, {srd(SWS)}, s{sT[0]} offen offset:{4*k} sc1")
        a(f"""
        s_cmp_lg_u32 s2, 0
        s_cbranch_scc1 L_end
        L_pad0:
        s_memrealtime s[{sT[2]}:{sT[3]}]
        s_waitcnt lgkmcnt(0)
        s_sub_u32 s{sT[2]}, s{sT[2]}, s30
        s_cmp_lt_u32 s{sT[2]}, 5000
        s_cbranch_scc1 L_pad0
        v_lshlrev_b32 v1, 6, v{L}
        s_mov_b32 s{sT[4]}, 0
        s_mov_b32 s{sT[5]}, -1
        """)
        for g in range(4):
            a(f"""
            s_mov_b32 s{sT[0]}, {WS_STAMP + 4096*g}
            buffer_load_dword v2, v1, {srd(SWS)}, s{sT[0]} offen offset:{4*OPT['crit']} sc1
            buffer_load_dword v3, v1, {srd(SWS)}, s{sT[0]} offen offset:52 sc1
            s_waitcnt vmcnt(0)
            v_subrev_u32 v2, s30, v2
            v_add_u32 v2, 1000, v2
            v_lshlrev_b32 v2, 8, v2
            v_add_u32 v2, v2, v{L}
            v_add_u32 v2, {64*g}, v2
            v_subrev_u32 v3, s30, v3
            v_add_u32 v3, 1000, v3
            s_nop 1
            """)
            for i in range(64): a(f"v_readlane_b32 s{sT[6]}, v2, {i}\nv_readlane_b32 s{sT[7]}, v3, {i}\ns_nop 0\ns_max_u32 s{sT[4]}, s{sT[4]}, s{sT[6]}\ns_min_u32 s{sT[5]}, s{sT[5]}, s{sT[7]}")
        a(f"""
        s_and_b32 s{sT[4]}, s{sT[4]}, 255
        s_lshl_b32 s{sT[0]}, s{sT[4]}, 6
        s_add_u32 s{sT[0]}, s{sT[0]}, {WS_STAMP}
        v_lshlrev_b32 v1, 2, v{L}
        buffer_load_dword v2, v1, {srd(SWS)}, s{sT[0]} offen sc1
        s_add_u32 s{sT[5]}, s{sT[5]}, s30
        s_sub_u32 s{sT[5]}, s{sT[5]}, 1000
        s_waitcnt vmcnt(0)
        v_subrev_u32 v2, s{sT[5]}, v2
        s_nop 1
        v_writelane_b32 v2, s{sT[4]}, 14
        s_mov_b64 exec, 0x7fff
        buffer_store_dword v2, v1, {srd(SDBG)}, 0 offen offset:4
        """)
    elif 'dk' in OPT:
        a(f"""
        s_cmp_lg_u32 s{sW}, {OPT.get('dw', 7)}
        s_cbranch_scc1 L_end
        s_lshl_b32 s{sT[0]}, s2, 2
        s_add_u32 s{sT[0]}, s{sT[0]}, {WS_STAMP}
        v_mov_b32 v2, s{4+2*OPT['dk']}
        v_mov_b32 v1, 0
        buffer_store_dword v2, v1, {srd(SWS)}, s{sT[0]} offen sc1
        s_cmp_lg_u32 s2, 0
        s_cbranch_scc1 L_end
        L_pad0:
        s_memrealtime s[{sT[2]}:{sT[3]}]
        s_waitcnt lgkmcnt(0)
        s_sub_u32 s{sT[2]}, s{sT[2]}, s30
        s_cmp_lt_u32 s{sT[2]}, 5000
        s_cbranch_scc1 L_pad0
        v_mul_u32_u24 v1, {4*OPT['dstride']}, v{L}
        s_mov_b32 s{sT[0]}, {WS_STAMP + 4*OPT['dbase']}
        buffer_load_dword v2, v1, {srd(SWS)}, s{sT[0]} offen sc1
        s_waitcnt vmcnt(0)
        v_subrev_u32 v2, s30, v2
        v_add_u32 v2, 100000, v2
        s_mov_b32 s{sT[4]}, 0
        s_mov_b32 s{sT[5]}, -1
        """)
        for i in range(OPT['dn']): a(f"v_readlane_b32 s{sT[6]}, v2, {i}\ns_nop 1\ns_max_u32 s{sT[4]}, s{sT[4]}, s{sT[6]}\ns_min_u32 s{sT[5]}, s{sT[5]}, s{sT[6]}")
        a(f"""
        s_sub_u32 s{sT[0]}, s{sT[4]}, s{sT[5]}
        s_min_u32 s{sT[0]}, s{sT[0]}, 2000
        s_mul_i32 s{sT[0]}, s{sT[0]}, 10
        s_add_u32 s{sT[0]}, s{sT[0]}, 6000
        L_pad:
        s_memrealtime s[{sT[2]}:{sT[3]}]
        s_waitcnt lgkmcnt(0)
        s_sub_u32 s{sT[2]}, s{sT[2]}, s30
        s_cmp_lt_u32 s{sT[2]}, s{sT[0]}
        s_cbranch_scc1 L_pad
        """)
    elif 'pad' in OPT:
        K = OPT['pad']
        a(f"s_and_b32 s{sT[0]}, s2, {OPT.get('padm', 0)}\ns_cmp_lg_u32 s{sT[0]}, {OPT.get('padv', 0)}\ns_cbranch_scc1 L_end")
        if K >= 0: a(f"s_sub_u32 s{sT[0]}, s{4+2*K}, s{4+2*OPT.get('padb', 13)}\ns_mul_i32 s{sT[0]}, s{sT[0]}, {OPT.get('padx', 4)}")
        elif K == -2: a(f"s_getreg_b32 s{sT[0]}, hwreg(HW_REG_XCC_ID)\ns_and_b32 s{sT[0]}, s{sT[0]}, 15\ns_mul_i32 s{sT[0]}, s{sT[0]}, 1000")
        else: a(f"s_mov_b32 s{sT[0]}, 0")
        a(f"""
        s_add_u32 s{sT[0]}, s{sT[0]}, 6000
        L_pad:
        s_memrealtime s[{sT[2]}:{sT[3]}]
        s_waitcnt lgkmcnt(0)
        s_sub_u32 s{sT[2]}, s{sT[2]}, s30
        s_cmp_lt_u32 s{sT[2]}, s{sT[0]}
        s_cbranch_scc1 L_pad
        """)
    else:
        a(f"s_lshl3_add_u32 s{sT[0]}, s2, s{sW}\ns_lshl_b32 s{sT[0]}, s{sT[0]}, 6\ns_add_u32 s{sT[0]}, s{sT[0]}, {WS_STAMP}")
        a("v_mov_b32 v1, 0\ns_mov_b64 exec, 1")
        for k in range(14):
            a(f"v_mov_b32 v2, s{4+2*k}\nbuffer_store_dword v2, v1, {srd(SWS)}, s{sT[0]} offen offset:{4*k}")
a("L_end:\ns_endpgm")
a("L_s3retry:")
o_loads()
a(f"""
s_add_u32 s{sT[2]}, s{sT[2]}, 1
s_cmp_lt_u32 s{sT[2]}, {SPIN}
s_nop 7
s_cbranch_scc1 L_s3poll
s_waitcnt vmcnt(0)
s_branch L_s3done
""")

for P in 'KVPSC':
    a("; ---- projection phase, " + {'K': 'query workgroups, waves 0-3: also k', 'V': 'query workgroups, waves 0-3: also v', 'P': 'query workgroups, waves 4-7',
                                      'S': 'gate/up waves that also form the mixing gate', 'C': 'gate/up wave that also clears the ready words'}[P])
    a(f".p2align 12\n.fill {OPT['o' + P] // 4}, 4, 0xbf800000\nL_path{P}:" if OPT['pal'] else f".p2align 6\nL_path{P}:")
    a.forget()
    proj_path(P)
    a("s_branch L_join")
for x in cold: a(x)

CM = SB
a(f"""
L_true_max:
s_waitcnt vmcnt(0) lgkmcnt(0)
v_mov_b32 v{t0}, 0xff800000
s_mov_b32 s{sT[0]}, {WS_KV}
L_tm1:
buffer_load_dwordx4 {vr(KF,4)}, v{vL16}, {srd(SWS)}, s{sT[0]} offen sc1
s_waitcnt vmcnt(0)
{qk(SA, QB)}
""")
for j in range(8): a(f"v_max3_f32 v{t0}, v{t0}, v{SA+2*j}, v{SA+2*j+1}")
a(f"""
s_add_u32 s{sT[0]}, s{sT[0]}, 2048
s_cmp_lt_u32 s{sT[0]}, {WS_KV + 64*2048}
s_cbranch_scc1 L_tm1
v_mov_b32 v{t1}, v{t0}
v_permlane32_swap_b32 v{t0}, v{t1}
v_max_f32 v{t0}, v{t0}, v{t1}
""")
for r in range(16): a(f"v_sub_f32 v{CM+r}, 0, v{t0}\nv_mov_b32 v{OB+r}, 0")
a(f"""
s_mov_b32 s{sT[0]}, {WS_KV}
L_tm2:
buffer_load_dwordx4 {vr(KF,4)}, v{vL16}, {srd(SWS)}, s{sT[0]} offen sc1
s_mov_b64 exec, s[{sT[8]}:{sT[9]}]
buffer_load_dwordx4 {vr(V1[0],4)}, v{vPV}, {srd(SWS)}, s{sT[0]} offen offset:1024 sc1
buffer_load_dwordx4 {vr(V2,4)}, v{vPV}, {srd(SWS)}, s{sT[0]} offen offset:1536 sc1
s_mov_b64 exec, -1
s_waitcnt vmcnt(0)
v_mfma_f32_32x32x16_bf16 {vr(SA,16)}, {vr(KF,4)}, {vr(QB,4)}, {vr(CM,16)}
""")
for e in range(16): a(f"v_exp_f32 v{SA+e}, v{SA+e}")
a(pv(OB, V1[0], SA)); a(pv(OB, V2, SA + 8))
a(f"""
s_add_u32 s{sT[0]}, s{sT[0]}, 2048
s_cmp_lt_u32 s{sT[0]}, {WS_KV + 64*2048}
s_nop 7
s_cbranch_scc1 L_tm2
s_nop 7
v_rcp_f32 v{t0}, v{OB+8}
s_nop 0
v_mul_f32 v{t0}, v{t0}, v{vG}
""")
for j in range(4): a(f"v_pk_mul_f32 {vr(OB+2*j,2)}, {vr(OB+2*j,2)}, {vr(t0,2)} op_sel_hi:[1,0]")
for j in range(4): a(f"v_cvt_pk_bf16_f32 v{OS+j}, v{OB+2*j}, v{OB+2*j+1}")
a(f"v_or_b32 v{OS}, 1, v{OS}")
a("s_branch L_norm\nL_last:")

bad = a.check_branches()
assert not bad, bad

hdr = open(f'cdna_kernels/{NAME}.s.ref').read().split('\n')
head = [l for l in hdr if l.startswith(';') and '@launch' not in l]
body = a.text()
if OPT.get('em16'):
    import re
    L_ = body.split('\n'); o = []; k = 0; cnt = 0
    i0 = [i for i, l in enumerate(L_) if l.startswith('; ---- attention')][0]; i1 = [i for i, l in enumerate(L_) if l.startswith('L_end:')][0]
    itail = [i for i, l in enumerate(L_) if l.startswith('L_s3poll')][0]
    while k < len(L_):
        l = L_[k]
        m = re.match(r'\s*v_mfma_f32_32x32x16_bf16 v\[(64|80|96|112):\d+\], v\[(\d+):\d+\], v\[(\d+):\d+\], v', l)
        if m and i0 < k < i1 and ((k < itail and OPT['em16'] & 3) or (k > itail and OPT['em16'] & 4)):
            d, A, B = int(m.group(1)), int(m.group(2)), int(m.group(3)); cnt += 1
            d1 = d + 4 * ((cnt >> 2) & 3); d2 = d1 if (OPT['em16'] & 1 or k > itail) else d + 4 * (((cnt >> 2) + 1) & 3)
            if k > itail: d1 = d2 = 96 + 4 * ((cnt >> 1) & 7)
            o.append(f"    v_mfma_f32_16x16x32_bf16 {vr(d1,4)}, {vr(A,4)}, {vr(B,4)}, {vr(d1,4)}")
            if k < itail: k += 1; o.append(L_[k])
            o.append(f"    v_mfma_f32_16x16x32_bf16 {vr(d2,4)}, {vr(A ^ 4,4)}, {vr(B ^ (4 if k < itail else 0),4)}, {vr(d2,4)}")
        else: o.append(l)
        k += 1
    body = '\n'.join(o)
if OPT.get('abl'):
    import re
    i0 = body.index('; ---- attention'); i1 = body.index('; ---- the exponentials were taken')
    pat = {1: r'v_mfma_f32_32x32x16_bf16 v\[(64|80|96|112):', 2: r'ds_read_b64_tr_b16', 3: r'buffer_load_dwordx4 v\[(32|36|40|44|48|52|56|60):', 4: r'buffer_load_dwordx4 v(0|158), s\[60:63',
           5: r'v_smfmac', 6: r'ds_read_b128'}[OPT['abl']]
    seg = body[i0:i1].split('\n'); n = 0
    for k, l in enumerate(seg):
        if re.match(r'\s*' + pat, l):
            n += 1
            if n > 8:
                if OPT['abl'] in (3, 4): seg[k] = re.sub(r'(s\[\d+:\d+\]), s\d+', r'\1, s54', l) if OPT['abl'] == 3 else re.sub(r'buffer_load_dwordx4 (v\d+), (s\[\d+:\d+\]), s\d+ offen.*', r'buffer_load_dword v23, \1, \2, s54 offen', l)
                elif OPT['abl'] in (2, 6): seg[k] = '    ds_nop'
                elif OPT['abl'] == 1: seg[k] = '    v_max_u32 v23, v17, v17\n    v_max_u32 v23, v17, v17'
                else: seg[k] = '    v_max_u32 v23, v17, v17\n    v_max_u32 v23, v17, v17\n    v_max_u32 v23, v17, v17'
    if OPT['abl'] == 3: seg = [re.sub(r'buffer_load_dwordx4 v\[\d+:\d+\], (v\d+), (s\[\d+:\d+\]), s54', r'buffer_load_dword v23, \1, \2, s54', l) for l in seg]
    body = body[:i0] + '\n'.join(seg) + body[i1:]
    body = body.replace('s_cbranch_vccnz L_true_max', 's_nop 0')
if OPT.get('jit'):
    import random
    rnd = random.Random(OPT['jit']); o = []; n = 0
    for l in body.split('\n'):
        t = l.strip()
        if (t.startswith(('buffer_store', 'ds_write_b128')) or (o and o[-1].strip() == 's_barrier')) and rnd.random() < 0.5:
            n += 1
            o += [f"    s_cselect_b32 s31, 1, 0", f"    s_add_u32 s30, s2, s{sMW}", f"    s_mul_i32 s30, s30, {rnd.randrange(1 << 20, 1 << 30) | 1}", f"    s_bitcmp1_b32 s30, 27",
                  f"    s_cbranch_scc0 L_jit{n}", f"    s_sleep {rnd.randrange(1, 40)}", f"L_jit{n}:", f"    s_cmp_lg_u32 s31, 0"]
        o.append(l)
    body = '\n'.join(o)
if OPT.get('stm'):
    import re
    body = re.sub(r'(buffer_store_dwordx4 .*s\[52:55\].*) sc1', lambda m: m.group(1) + [' sc1', ' sc1 nt', ' sc0 sc1', ' sc0 sc1 nt'][OPT['stm']], body)
out = "\n".join(head) + f"\n; @launch grid=(256,1,1) block=(512,1,1) lds={LDS_BYTES}\n"
out += f""".amdgcn_target "amdgcn-amd-amdhsa--gfx950"
.text
.globl {NAME}_kernel
.p2align 8
.type {NAME}_kernel,@function
{NAME}_kernel:
{body}
.section .rodata,"a"
.p2align 6
.amdhsa_kernel {NAME}_kernel
  .amdhsa_next_free_vgpr 256
  .amdhsa_next_free_sgpr 102
  .amdhsa_accum_offset 256
  .amdhsa_group_segment_fixed_size 0
  .amdhsa_kernarg_size 104
  .amdhsa_user_sgpr_count 2
  .amdhsa_user_sgpr_kernarg_segment_ptr 1
  .amdhsa_system_sgpr_workgroup_id_x 1
.end_amdhsa_kernel
"""
open(sys.argv[1], 'w').write(out)
print("instructions:", sum(1 for i in a.ins if i.ws), "auto nops:", a.nnop, file=sys.stderr)
```

```python
import sys, math, struct
sys.path.insert(0, 'gen')
from asmlib import Asm

NAME = 'gated_mix__grouped_kv_mqa__geglu_ffn__prompt'
OPT = dict(stamp=0, grp=0, force_fb=0, qflag=11, s1=16, b2=22, outm=1, ofast=0,
           p_kv=20, p_kvs=40, p_st=1, p_sts=40, p_fill=160, p_fills=70, p_kv2=390, p_f2=440, p_chk=470, d0=16, dend=32,
           late=0, pk2=1, nearly=1, h0w=24, h1w=30, clw=22, na=1, gend=30, dwt=0, qbar=0, cpf=1, qmode=0, qf=11, exs=1, spf=1, pb=2, pbq0=0, rq=1, rg=1, r1=1, qfirst=0, vlate=0, jearly=5, xsite=5, woe=0, oe=0, tlb=0, rotm=2, rots=12, dxs=3, wt=1, mpf=21, pal=1, qs=2, qe=0, wt2=0, mv64=1, nz=16, ch1=1, ch2=4, snake=1, gb9=0, chk=1, rota=1, drot=42, kvr=4, oG=576, oK=384, oP=896, oS=448, hst=0, oz=0, eb0=0, lb1=50, lb3=92, lc1=70, jlate=0, s1slp=0, s1w=30, lad=1, gb14=1, gbar=0)
for x in sys.argv[2:]:
    k, v = x.split('='); OPT[k] = int(v)

OPT['oV'] = OPT['oK']; OPT['oC'] = min(OPT['oG'], 448)
def fbits(x): return struct.unpack('<I', struct.pack('<f', x))[0]

WS_KV, WS_G, WS_F1, WS_Q, WS_H, WS_STAMP = 0, 0x20000, 0x30000, 0x300000, 0x500000, 0xC00000
WS_O = WS_Q
WS_F2 = WS_F1 + 8192
WS_SIZE = 0x1000000
CLEAR_WG = 128
WR, EX = 65536, 131072
NSLOT, HALF, RING = 24, 49152, 98304
MERGE = 65536
LDS_BYTES = 163840
SPIN = 0x400000
SX, SWG, SWU, SWQ, SEX, SWS, SDBG, SWD, SWO, SOUT = 32, 36, 40, 44, 48, 52, 56, 60, 64, 92
sW, sTI, sQ, sU, sROT, sXO, sWOF, sMX, sMW, sI, sJ, sROT0 = range(68, 80)
sT = list(range(80, 90))
sEXW, sEXO = 90, 91
sC1 = 96
sF2, sRH, sRING, sOO = 98, 99, 100, 101
sHO, sH1 = 3, 0
sKVM, sKVO, sQA, sGA = sT[3], sT[5], 1, sROT0
sF2R, sF2W = sC1 + 1, sF2
sR = [sRH, 44, 45, 47]
def srd(n): return f"s[{n}:{n+3}]"
def vr(b, n): return f"v[{b}:{b+n-1}]"

vXS0, vXS1, vWS = 1, 2, 3
vST = 4
vXR = [5, 6, 7, 8]
vWR = [9, 10]
vES, vER, vSA = 11, [12, 13], 30
vL16, vLANE = 14, 15
vC0 = 16
vZ = 17
vGT = 18
t0, t1, t2, t3 = 20, 21, 22, 23
vS0, vWS2 = 28, 27
vPV, vPD, vTRP = 29, 0, 31
F = [32, 48]
ACC = [64, 96]
XF = 128
ACCE, WE = 96, 100
GW = 147456
L = vLANE
QA, QB, KF, V2, V1 = 128, 132, 136, 140, [144, 148]
vG, vIDX, vAK, vAV, vKVS = 152, 154, 24, 25, 26
vDR0, vDR1, vH0, vH1 = 159, 160, 161, 162
vDS, vDS1, vF2 = vPD, 158, 163
F2D = 164
vONE = 168
vM = [169, 170, 171, 172]
OA, OB, SA, SB = 176, 192, 208, 224
WF = [240, 248]
HF = [32, 40, 48, 56]
DACC = 64

a = Asm()
CLK = 's_memtime' if OPT['stamp'] == 2 else 's_memrealtime'
def stamp(k, grp=0):
    if grp != OPT['grp'] and k != 11: return
    if OPT['stamp']: a(f"{CLK} s[{4+2*k}:{5+2*k}]")
def mk_srd(n, p, size):
    a(f"s_mov_b32 s{n}, s{p}\ns_mov_b32 s{n+1}, s{p+1}\ns_mov_b32 s{n+2}, {size}\ns_mov_b32 s{n+3}, 0x20000")

PG = 3584
C0 = -2.0 * math.sqrt(2.0 / math.pi) * math.log2(math.e)
C1 = C0 * 0.044715
QS = 0.25 * math.log2(math.e)

a("; Code paths start at fixed offsets inside 4 KiB pages; the alignment padding in front of them is never executed.")
a("s_cmp_ge_u32 s2, 256\ns_cbranch_scc1 L_end")
a("s_load_dwordx16 s[4:19], s[0:1], 0\ns_load_dwordx8 s[20:27], s[0:1], 64\ns_load_dwordx2 s[28:29], s[0:1], 96")
if OPT['stamp']: a(f"{CLK} s[30:31]")
def code_prefetch():
    a(f"""
    s_getpc_b64 s[{sT[8]}:{sT[9]}]
    L_pc:
    s_andn2_b32 s{sT[7]}, s2, 7
    s_lshl_b32 s{sT[7]}, s{sT[7]}, 8
    v_lshl_add_u32 v{t2}, v0, 2, s{sT[7]}
    v_mov_b32 v{t3}, 0
    v_min_u32 v{t2}, L_last-L_pc-4, v{t2}
    s_mov_b32 exec_lo, 1
    s_mov_b32 exec_hi, 1
    v_lshl_add_u64 {vr(t2,2)}, {vr(t2,2)}, 0, s[{sT[8]}:{sT[9]}]
    global_load_dword v{vS0}, {vr(t2,2)}, off
    s_mov_b64 exec, -1
    """)
if OPT['cpf'] == 1: code_prefetch()
CH1, CH2 = [0] * 16, [0] * 16
for q_ in range(4):
    if OPT['chk']:
        slow = [r for r in range(7) if (7 * q_ + r) % 4 == 3]; order = slow + [r for r in range(7) if r not in slow]
        CH2[4*q_+3], CH2[4*q_+2], CH2[4*q_+1], CH2[4*q_], CH1[4*q_+1], CH1[4*q_+2], CH1[4*q_+3] = order
    else:
        for u_ in range(4): CH2[4*q_+u_] = 2 * u_; CH1[4*q_+u_] = max(2 * u_ - 1, 0)
def chunk_of(tab, dst, tmp):
    v = sum(x << (4 * i) for i, x in enumerate(tab))
    return f"""s_mov_b32 s{tmp}, {v & 0xffffffff:#x}
s_mov_b32 s{tmp+1}, {v >> 32:#x}
s_lshl2_add_u32 s{dst}, s{sQ}, s{sU}
s_lshl_b32 s{dst}, s{dst}, 2
s_lshr_b64 s[{tmp}:{tmp+1}], s[{tmp}:{tmp+1}], s{dst}
s_and_b32 s{tmp}, s{tmp}, 7
s_mul_i32 s{dst}, s{sQ}, 7
s_add_u32 s{dst}, s{dst}, s{tmp}"""
ROTC = {8: f"s_lshl1_add_u32 s{sROT0}, s{sU}, s{sJ}\ns_and_b32 s{sROT0}, s{sROT0}, 7",
        4: f"s_add_u32 s{sROT0}, s{sU}, s{sJ}\ns_and_b32 s{sROT0}, s{sROT0}, 3\ns_lshl_b32 s{sROT0}, s{sROT0}, 1",
        2: f"s_add_u32 s{sROT0}, s{sU}, s{sJ}\ns_and_b32 s{sROT0}, s{sROT0}, 1\ns_lshl_b32 s{sROT0}, s{sROT0}, 2",
        3: f"s_add_u32 s{sROT0}, s{sU}, s{sJ}\ns_lshl_b32 s{sROT0}, s{sROT0}, 1\ns_lshr_b32 s{sROT0}, 0x124924, s{sROT0}\ns_and_b32 s{sROT0}, s{sROT0}, 3\ns_mul_i32 s{sROT0}, s{sROT0}, 3",
        1: f"s_mov_b32 s{sROT0}, 0"}[OPT['rotm']]
if OPT['rots']:
    ROTC += f"\ns_bfe_u32 s{sQ}, s2, 0x20001\ns_mul_i32 s{sT[1]}, s{sQ}, {OPT['rots'] // 10}\ns_add_u32 s{sROT0}, s{sROT0}, s{sT[1]}\ns_mul_i32 s{sT[1]}, s{sT[2]}, {OPT['rots'] % 10}\ns_add_u32 s{sROT0}, s{sROT0}, s{sT[1]}\n" + (f"s_add_u32 s{sROT0}, s{sROT0}, {OPT['rota']}\n" if OPT['rota'] else "") + f"s_and_b32 s{sROT0}, s{sROT0}, 7"
a(f"""
v_readfirstlane_b32 s{sW}, v0
v_lshrrev_b32 v{t1}, 4, v0
v_lshrrev_b32 v{t0}, 3, v0
v_xor_b32 v{t1}, v0, v{t1}
s_lshr_b32 s{sU}, s2, 6
s_bfe_u32 s{sJ}, s2, 0x30003
v_and_b32 v{t1}, 7, v{t1}
s_and_b32 s{sT[2]}, s2, 1
s_lshl3_add_u32 s{sTI}, s{sT[2]}, s{sJ}
v_lshlrev_b32 v{t1}, 4, v{t1}
{ROTC}
v_lshl_add_u32 v{vXS0}, v{t0}, 10, v{t1}
s_lshl_b32 s{sT[0]}, s{sTI}, 17
s_lshl_b32 s{sXO}, s{sROT0}, 7
s_add_u32 s{sXO}, s{sXO}, s{sT[0]}
s_lshl_b32 s{sMW}, s{sW}, 4
s_mov_b32 m0, s{sMW}
s_mov_b32 s{SX+2}, {2048*1024}
s_mov_b32 s{SX+3}, 0x20000
""")
a(f"""
s_bfe_u32 s{sT[1]}, s{sW}, 0x10006
s_lshl_b32 s{sT[1]}, s{sT[1]}, 2
v_and_or_b32 v{t1}, v{t0}, 2, s{sT[1]}
s_bfe_u32 s{sQ}, s2, 0x20001
v_xor_b32 v{t1}, v0, v{t1}
{chunk_of(CH1, sT[1], sT[4])}
v_and_b32 v{t1}, 7, v{t1}
s_lshl_b32 s{sT[2]}, s{sQ}, 1
s_movk_i32 s{sT[3]}, {PG}
v_lshlrev_b32 v{vWS2}, 4, v{t1}
s_mov_b32 s{SWG+3}, 0x20000
s_mov_b32 s{SWU+3}, 0x20000
s_cmp_eq_u32 s{sU}, 0
s_cselect_b32 s{sT[1]}, s{sT[2]}, s{sT[1]}
s_cselect_b32 s{sT[3]}, 1024, s{sT[3]}
s_cselect_b32 s{sT[2]}, 128, 0
v_mad_u32_u24 v{vWS}, v{t0}, s{sT[3]}, v{vWS2}
s_lshl_b32 s{SWG+2}, s{sT[3]}, 9
s_mov_b32 s{SWU+2}, s{SWG+2}
s_mul_i32 s{sWOF}, s{sROT0}, s{sT[3]}
s_lshl1_add_u32 s{sWOF}, s{sT[1]}, s{sWOF}
s_lshl_b32 s{sWOF}, s{sWOF}, 6
s_cmp_eq_u32 s{sU}, 0
{CLK + ' s[84:85]' if OPT['grp'] == 5 else ''}
s_waitcnt lgkmcnt(0)
{CLK + ' s[86:87]' if OPT['grp'] == 5 else ''}
s_mov_b64 s[{SX}:{SX+1}], s[4:5]
s_cselect_b64 s[{SWG}:{SWG+1}], s[6:7], s[16:17]
s_cselect_b64 s[{SWU}:{SWU+1}], s[6:7], s[18:19]
""")
def first_stage(x0, x1, xstep, wstep):
    a(f"""
    buffer_load_dwordx4 v{x0}, {srd(SX)}, s{sXO} offen lds
    s_add_u32 m0, s{sMW}, {WR}
    s_add_u32 s{sXO}, s{sXO}, {xstep}
    buffer_load_dwordx4 v{vWS}, {srd(SWG)}, s{sWOF} offen lds
    s_add_u32 m0, s{sMW}, {WR + 8192}
    s_add_u32 s{sWOF}, s{sWOF}, {wstep}
    buffer_load_dwordx4 v{vWS}, {srd(SWU)}, s{sWOF} offen lds
    s_add_u32 m0, s{sMW}, 8192
    s_nop 0
    buffer_load_dwordx4 v{x1}, {srd(SX)}, s{sXO} offen lds
    """)
if OPT['qfirst']: a("s_cbranch_scc0 L_late")
first_stage(vXS0, vXS0, 65536, f"s{sT[2]}")
if OPT['wt']:
    assert not OPT['qfirst']
    a(f"""
    s_lshr_b32 s{sT[4]}, s{sW}, 7
    s_lshr_b32 s{sT[5]}, s{sJ}, 1
    s_cmp_lg_u32 s{sT[4]}, s{sT[5]}
    s_cbranch_scc1 L_nowt
    s_add_u32 s{sT[4]}, s{sROT0}, 1
    s_and_b32 s{sT[4]}, s{sT[4]}, 7
    s_mul_i32 s{sT[4]}, s{sT[4]}, s{sT[3]}
    s_lshl1_add_u32 s{sT[4]}, s{sT[1]}, s{sT[4]}
    s_lshl_b32 s{sT[4]}, s{sT[4]}, 6
    buffer_load_dword v32, v{vWS}, {srd(SWG)}, s{sT[4]} offen
    s_add_u32 s{sT[4]}, s{sT[4]}, s{sT[2]}
    buffer_load_dword v33, v{vWS}, {srd(SWU)}, s{sT[4]} offen
    L_nowt:
    """)
if OPT['qfirst']: a("L_late:")
if OPT['grp'] == 5: a(f"{CLK} s[88:89]\ns_waitcnt lgkmcnt(0)\ns_mov_b32 s4, s84\ns_mov_b32 s14, s86\ns_mov_b32 s5, s88")
a(f"""
s_lshr_b32 s{sW}, s{sW}, 6
v_add_u32 v{vXS0}, s{sT[0]}, v{vXS0}
v_add_u32 v{vXS1}, 0x10000, v{vXS0}
s_sub_u32 s{sXO}, s{sXO}, s{sT[0]}
s_mov_b32 s{sH1}, s{sT[1]}
s_lshl_b32 s{sT[1]}, s{sT[1]}, 7
s_sub_u32 s{sWOF}, s{sWOF}, s{sT[1]}
v_add_u32 v{vWS}, s{sT[1]}, v{vWS}
s_movk_i32 s{sT[3]}, {PG}
v_mad_u32_u24 v{vWS2}, v{t0}, s{sT[3]}, v{vWS2}
{chunk_of(CH2, sHO, sT[4])}
s_lshl_b32 s{sT[1]}, s{sHO}, 7
v_add_u32 v{vWS2}, s{sT[1]}, v{vWS2}
v_and_b32 v{L}, 63, v0
v_lshlrev_b32 v{vL16}, 4, v{L}
s_and_b32 s{sT[0]}, s2, 7
s_lshl2_add_u32 s{sI}, s{sT[0]}, s{sU}
s_add_u32 s{sROT}, s{sROT0}, 1
s_and_b32 s{sROT}, s{sROT}, 7
s_lshl_b32 s{sMX}, s{sW}, 11
""")
def late_loads(k):
    if OPT['qfirst'] != k: return
    a(f"s_cmp_eq_u32 s{sU}, 0\ns_cbranch_scc1 L_early")
    first_stage(vXS0, vXS1, 0, 0)
    a("L_early:")
late_loads(1)
def dispatch():
    a(f"""
    s_lshr_b32 s{sT[1]}, s{sW}, 2
    s_lshl1_add_u32 s{sT[0]}, s{sU}, s{sT[1]}
    s_lshr_b32 s{sT[1]}, s{sQ}, 1
    s_lshl1_add_u32 s{sT[0]}, s{sT[0]}, s{sT[1]}
    s_cmp_eq_u32 s{sT[0]}, 0
    s_cbranch_scc1 L_pathK
    s_cmp_eq_u32 s{sT[0]}, 1
    s_cbranch_scc1 L_pathV
    s_cmp_lt_u32 s{sT[0]}, 4
    s_cbranch_scc1 L_pathP
    s_cmp_eq_u32 s{sT[0]}, 4
    s_cbranch_scc1 L_pathS
    s_add_u32 s{sT[0]}, s{sMW}, s2
    s_cmp_eq_u32 s{sT[0]}, {CLEAR_WG + 1024}
    s_cbranch_scc1 L_pathC
    """)

PATH = ['G']
def wslot(sig):
    if sig < 8: return WR + (sig & 3) * 16384
    if sig >= 14: return EX + (sig - 14) * 16384
    return (0 if sig & 1 else WR) + ((sig - 8) >> 1) * 16384
def waddr(sig, b):
    return {0: vXR[b], 1: vWR[b], 2: vXR[2 + b]}[wslot(sig) >> 16]

def dma_ops(sig, path):
    p = sig >> 3
    isq = (path in 'KVP' and p == 0)
    pitch = 1024 if isq else PG
    sa, sb = (SWQ, SWQ) if isq else (SWG, SWU)
    xs, ws = (sig & 3) * 16384, wslot(sig)
    pre = f"s_mul_i32 s{sWOF}, s{sROT}, {64*pitch}\n"
    mid = f"s_add_u32 s{sWOF}, s{sWOF}, 128\n" if isq else ""
    inc, wrap = f"s_add_u32 s{sROT}, s{sROT}, 1\n", f"s_and_b32 s{sROT}, s{sROT}, 7\n"
    vw = vWS2 if p == 1 else vWS
    wa = f"s_add_u32 m0, s{sMW}, {ws}\n{{}}buffer_load_dwordx4 v{vw}, {srd(sa)}, s{sWOF} offen lds"
    wb = f"s_add_u32 m0, s{sMW}, {ws+8192}\n{{}}buffer_load_dwordx4 v{vw}, {srd(sb)}, s{sWOF} offen lds"
    if p == 0:
        return [f"s_add_u32 m0, s{sMW}, {xs}\ns_lshl_b32 s{sXO}, s{sROT}, 7\nbuffer_load_dwordx4 v{vXS0}, {srd(SX)}, s{sXO} offen lds",
                wa.format(pre), wb.format(mid + inc),
                f"s_add_u32 m0, s{sMW}, {xs+8192}\n{wrap}buffer_load_dwordx4 v{vXS1}, {srd(SX)}, s{sXO} offen lds"]
    return [wa.format(pre), wb.format(inc + wrap)]

DROT = {8: f"s_mul_i32 s{sRH}, s{sJ}, 7\ns_lshr_b32 s{sRH}, s{sRH}, 2\ns_mul_i32 s{sT[1]}, s{sU}, 7\ns_lshr_b32 s{sT[1]}, s{sT[1]}, 1\ns_add_u32 s{sRH}, s{sRH}, s{sT[1]}",
        4: f"s_add_u32 s{sRH}, s{sJ}, s{sU}\ns_and_b32 s{sRH}, s{sRH}, 3\ns_mul_i32 s{sRH}, s{sRH}, 7\ns_lshr_b32 s{sRH}, s{sRH}, 1",
        2: f"s_add_u32 s{sRH}, s{sJ}, s{sU}\ns_and_b32 s{sRH}, s{sRH}, 1\ns_mul_i32 s{sRH}, s{sRH}, 7",
        42: f"s_lshl1_add_u32 s{sRH}, s{sJ}, s{sU}\ns_and_b32 s{sRH}, s{sRH}, 3\ns_mul_i32 s{sRH}, s{sRH}, 7\ns_lshr_b32 s{sRH}, s{sRH}, 1"}[OPT['drot']]
def setup_common():
    mk_srd(SWS, 28, WS_SIZE)
    if OPT.get('wso'): a(f"s_add_u32 s{SWS}, s{SWS}, {OPT['wso'] << 20}\ns_addc_u32 s{SWS+1}, s{SWS+1}, 0")
    mk_srd(SDBG, 26, 256); mk_srd(SWD, 20, 1792 * 1024); mk_srd(SWO, 12, 512 * 1024); mk_srd(SOUT, 24, 2048 * 1024)
    late_loads(2)
    a(f"""
    s_and_b32 s{sT[0]}, s{sW}, 3
    s_lshr_b32 s{sT[1]}, s{sW}, 2
    s_xor_b32 s{sT[5]}, s{sT[1]}, s{sQ}
    s_and_b32 s{sT[5]}, s{sT[5]}, 1
    s_lshl1_add_u32 s{sT[0]}, s{sT[0]}, s{sT[5]}
    s_lshl_b32 s{sT[0]}, s{sT[0]}, 11
    v_and_b32 v{t0}, 15, v{L}
    v_bfe_u32 v{t1}, v{L}, 1, 3
    v_lshrrev_b32 v{t2}, 4, v{L}
    v_xor_b32 v{t1}, v{t1}, v{t2}
    v_lshlrev_b32 v{t1}, 4, v{t1}
    v_lshl_add_u32 v{t1}, v{t0}, 7, v{t1}
    v_add_u32 v{vXR[0]}, s{sT[0]}, v{t1}
    v_xor_b32 v{vXR[1]}, 0x800, v{vXR[0]}
    v_xor_b32 v{vXR[2]}, 64, v{vXR[0]}
    v_xor_b32 v{vXR[3]}, 64, v{vXR[1]}
    s_lshl_b32 s{sT[2]}, s{sT[5]}, 8
    v_xor_b32 v{vST}, s{sT[2]}, v{vL16}
    """)
    a(f"""
    v_lshrrev_b32 v{t3}, 5, v{L}
    v_lshlrev_b32 v{t0}, 4, v{t0}
    v_lshl_add_u32 v{vPV}, v{t3}, 8, v{t0}
    """)
    late_loads(3)
    a(f"""
    v_bfe_u32 v{t0}, v{L}, 2, 2
    v_lshl_add_u32 v{t1}, v{t2}, 3, v{t0}
    v_lshlrev_b32 v{t1}, 7, v{t1}
    v_bfe_u32 v{t2}, v{L}, 3, 2
    s_lshl_b32 s{sT[1]}, s{sT[1]}, 1
    v_xor_b32 v{t2}, s{sT[1]}, v{t2}
    v_lshl_add_u32 v{t1}, v{t2}, 5, v{t1}
    v_and_b32 v{t2}, 3, v{L}
    v_lshl_add_u32 v{t1}, v{t2}, 3, v{t1}
    v_add_u32 v{vWR[0]}, {WR}, v{t1}
    v_xor_b32 v{vWR[1]}, 32, v{vWR[0]}
    """)
    a(f"""
    v_lshl_add_u32 v{t3}, v{t3}, 3, v{t0}
    v_lshlrev_b32 v{t3}, 7, v{t3}
    v_lshrrev_b32 v{t0}, 1, v{t0}
    v_lshl_add_u32 v{t3}, v{t0}, 6, v{t3}
    v_lshl_add_u32 v{t3}, v{t2}, 3, v{t3}
    v_bfe_u32 v{t2}, v{L}, 4, 1
    v_lshl_add_u32 v{vTRP}, v{t2}, 5, v{t3}
    v_lshlrev_b32 v{t2}, 2, v{t2}
    v_and_b32 v{t1}, 7, v{L}
    v_xor_b32 v{t1}, v{t1}, v{t2}
    v_lshlrev_b32 v{t1}, 4, v{t1}
    v_lshrrev_b32 v{t0}, 3, v{L}
    v_lshl_add_u32 v{t0}, v{t0}, 10, v{t1}
    s_lshl_b32 s{sT[0]}, s{sJ}, 7
    v_add_u32 v{vPD}, s{sT[0]}, v{t0}
    v_mov_b32 v{vZ}, 0
    v_mov_b32 v{vC0}, {fbits(C0):#x}
    s_mov_b32 s{sC1}, {fbits(C1):#x}
    """)
    late_loads(4)
    a(f"""
    s_lshr_b32 s{sT[3]}, s{sW}, 2
    s_and_b32 s{sT[1]}, s{sW}, 3
    s_lshl2_add_u32 s{sT[0]}, s{sTI}, s{sT[1]}
    s_lshl_b32 s{sT[8]}, s{sT[0]}, 5
    s_and_b32 s{sT[2]}, s{sT[0]}, 15
    s_lshr_b32 s{sT[0]}, s{sT[0]}, 4
    s_mul_i32 s{sT[0]}, s{sT[0]}, 112
    s_lshl1_add_u32 s{sT[0]}, s{sT[3]}, s{sT[0]}
    s_lshl4_add_u32 s{sT[0]}, s{sT[0]}, s{sT[2]}
    s_lshl_b32 s{sT[0]}, s{sT[0]}, 10
    s_add_u32 s{sT[0]}, s{sT[0]}, {WS_H}
    s_lshl_b32 s{sHO}, s{sHO}, 16
    s_add_u32 s{sHO}, s{sHO}, s{sT[0]}
    s_lshl_b32 s{sH1}, s{sH1}, 16
    s_add_u32 s{sH1}, s{sH1}, s{sT[0]}
    s_lshl3_add_u32 s{sT[4]}, s{sQ}, s{sT[8]}
    s_lshl1_add_u32 s{sT[4]}, s{sT[3]}, s{sT[4]}
    s_lshl_b32 s{sT[4]}, s{sT[4]}, 10
    s_lshl2_add_u32 s{sF2}, s{sTI}, s{sQ}
    s_lshl_b32 s{sF2}, s{sF2}, 5
    s_add_u32 s{sF2}, s{sF2}, s{sU}
    s_lshl_b32 s{sF2}, s{sF2}, 2
    s_add_u32 s{sF2}, s{sF2}, {WS_F2}
    s_lshl1_add_u32 s{sT[1]}, s{sI}, s{sT[3]}
    s_lshl3_add_u32 s{sT[2]}, s{sT[1]}, s{sJ}
    s_and_b32 s{sT[1]}, s{sW}, 3
    s_lshl2_add_u32 s{sT[2]}, s{sT[2]}, s{sT[1]}
    s_lshl_b32 s{sOO}, s{sT[2]}, 10
    s_lshl_b32 s{sRING}, s{sW}, 13
    s_add_u32 s{sRING}, s{sRING}, {RING}
    {DROT}
    s_and_b32 s{sT[1]}, s2, {OPT['dxs']}
    s_add_u32 s{sRH}, s{sRH}, s{sT[1]}
    s_cmp_ge_u32 s{sRH}, 14
    s_cselect_b32 s{sT[1]}, 14, 0
    s_sub_u32 s{sRH}, s{sRH}, s{sT[1]}
    s_lshl_b32 s{sRH}, s{sRH}, 14
    s_mul_i32 s{sT[1]}, s{sW}, {14*16384}
    s_add_u32 s{SWD}, s{SWD}, s{sT[1]}
    s_addc_u32 s{SWD+1}, s{SWD+1}, 0
    s_sub_u32 s{SWD+2}, s{SWD+2}, s{sT[1]}
    s_lshl_b32 s{sT[1]}, s{sW}, 16
    s_add_u32 s{SWO}, s{SWO}, s{sT[1]}
    s_addc_u32 s{SWO+1}, s{SWO+1}, 0
    s_sub_u32 s{SWO+2}, s{SWO+2}, s{sT[1]}
    """)

def setup_path(P):
    if P in 'GC' and OPT['mpf']:
        a(f"""
        s_cmp_eq_u32 s{sU}, 2
        s_cselect_b64 s[{SEX}:{SEX+1}], s[{SWD}:{SWD+1}], s[{SWO}:{SWO+1}]
        s_cselect_b32 s{SEX+2}, s{SWD+2}, s{SWO+2}
        s_cselect_b32 s{sT[0]}, 28, 8
        s_mov_b32 s{SEX+3}, 0x20000
        s_cmp_eq_u32 s{sU}, 1
        s_cselect_b32 s{SEX+2}, 0, s{SEX+2}
        s_and_b32 s{sT[1]}, s2, 63
        s_mul_i32 s{sT[1]}, s{sT[1]}, s{sT[0]}
        s_sub_u32 s{sT[0]}, s{sT[0]}, 1
        v_min_u32 v{vES}, s{sT[0]}, v{L}
        v_add_lshl_u32 v{vES}, v{vES}, s{sT[1]}, 7
        """)
    if P in 'KV':
        a(f"""
        v_lshrrev_b32 v{t2}, 4, v{L}
        v_and_b32 v{t0}, 15, v{L}
        v_lshlrev_b32 v{t1}, 3, v{t0}
        v_lshl_add_u32 v{t1}, v{t2}, 8, v{t1}
        v_and_b32 v{t3}, 1, v{t2}
        v_lshl_add_u32 v{t1}, v{t3}, 7, v{t1}
        v_add_u32 v{vER[0]}, {EX}, v{t1}
        v_xor_b32 v{vER[1]}, 0x80, v{vER[0]}
        v_lshlrev_b32 v{t1}, 7, v{t3}
        v_xor_b32 v{vES}, v{t1}, v{vL16}
        s_add_u32 s{sEXO}, s{sW}, s{sROT0}
        s_and_b32 s{sEXO}, s{sEXO}, 7
        s_lshl_b32 s{sEXO}, s{sEXO}, 11
        s_lshr_b32 s{sEXW}, s{sT[4]}, 15
        v_lshrrev_b32 v{t2}, 1, v{t2}
        """)
        if P == 'K':
            a(f"""
            s_lshl3_add_u32 s{sEXW}, s{sEXW}, s{sT[5]}
            s_lshl_b32 s{sEXW}, s{sEXW}, 8
            v_lshlrev_b32 v{t2}, 9, v{t2}
            """)
        else:
            a(f"""
            s_lshl2_add_u32 s{sEXW}, s{sEXW}, s{sT[5]}
            s_lshl_b32 s{sEXW}, s{sEXW}, 9
            s_add_u32 s{sEXW}, s{sEXW}, 1024
            v_lshlrev_b32 v{t2}, 8, v{t2}
            v_and_b32 v{t0}, 3, v{L}
            v_bfe_u32 v{t1}, v{L}, 2, 1
            v_lshl_add_u32 v{t0}, v{t1}, 3, v{t0}
            v_bfe_u32 v{t1}, v{L}, 3, 1
            v_lshl_add_u32 v{t0}, v{t1}, 2, v{t0}
            """)
        a(f"""
        v_lshl_add_u32 v{t2}, v{t0}, 4, v{t2}
        v_lshl_add_u32 v{vSA}, v{t3}, 3, v{t2}
        """)
    if P == 'P':
        a(f"""
        v_bfe_u32 v{t1}, v{L}, 4, 1
        v_lshlrev_b32 v{t1}, 7, v{t1}
        v_xor_b32 v{vES}, v{t1}, v{vL16}
        s_add_u32 s{sEXO}, s{sW}, s{sROT0}
        s_and_b32 s{sEXO}, s{sEXO}, 7
        s_lshl_b32 s{sEXO}, s{sEXO}, 11
        """)
    if P == 'S':
        a(f"""
        s_lshl_b32 s{sEXO}, s{sROT0}, 7
        v_add_u32 v{vES}, s{sEXO}, v{vL16}
        v_and_b32 v{vES}, 0x3ff, v{vES}
        v_and_b32 v{t0}, 48, v{L}
        v_add_u32 v{vER[0]}, {GW}, v{t0}
        v_and_b32 v{t0}, 15, v{L}
        v_lshlrev_b32 v{vSA}, 2, v{t0}
        s_lshr_b32 s{sEXW}, s{sT[4]}, 15
        s_lshl1_add_u32 s{sEXW}, s{sEXW}, s{sT[5]}
        s_lshl_b32 s{sEXW}, s{sEXW}, 6
        s_add_u32 s{sEXW}, s{sEXW}, {WS_G}
        """)

def plan(c):
    run = OPT['ch1'] if c < 16 else OPT['ch2']
    if run == 1: return [(c, i) for i in range(4)]
    if run == 2: return [((c & ~1) + j, 2 * (c & 1) + p) for p in range(2) for j in range(2)]
    return [((c & ~3) + k, c & 3) for k in range(4)]
def x_reads(c):
    ks = [c] if OPT['ch1'] == 1 else ([] if c & 1 else [c, c + 1])
    return [f"ds_read_b128 {vr(XF + 8*k + 4*tq, 4)}, v{vXR[2*(k&1)+tq]} offset:{((k >> 1) & 3) * 16384}" for k in ks for tq in range(2)]
def w_reads(c):
    out = []
    for n, (k, i) in enumerate(plan(c)):
        sig, j, b, part = k >> 1, k & 1, i >> 1, i & 1
        off = (wslot(sig) & 0xffff) + part * 8192 + j * 4096
        out += [f"ds_read_b64_tr_b16 {vr(F[c&1] + 4*n + 2*e, 2)}, v{waddr(sig, b)} offset:{off + e*512}" for e in range(2)]
    return out
def e_steps(c):
    c0 = 2 * OPT['exs']
    if PATH[0] in 'KVS': return [2 * (c - c0), 2 * (c - c0) + 1] if c0 <= c < 2 * c0 else ([c] if 2 * c0 <= c < 16 else [])
    return []
def e_buf(c, i): return WE + 16 + 4 * i if (PATH[0] == 'S' and c == 15) else WE + 8 * (c & 1) + 4 * i
def e_reads(c):
    if PATH[0] == 'S':
        cs = [] if c == 15 else ([14, 15] if c == 14 else [c])
        return [f"ds_read_b128 {vr(e_buf(x, i), 4)}, v{vER[0]} offset:{k*64}" for x in cs for i, k in enumerate(e_steps(x))]
    return [f"ds_read_b64_tr_b16 {vr(e_buf(c, i) + 2*e, 2)}, v{vER[e]} offset:{k*1024}" for i, k in enumerate(e_steps(c)) for e in range(2)]
def e_mfmas(c):
    out = []
    for i, k in enumerate(e_steps(c)):
        acc, w, x = vr(ACCE, 4), vr(e_buf(c, i), 4), vr(XF + 8 * k, 4)
        A, B = (x, w) if PATH[0] == 'V' else (w, x)
        out.append(f"v_mfma_f32_16x16x32_bf16 {acc}, {A}, {B}, {'0' if k == 0 else acc}")
    return out
def mfmas(sig, j):
    c = 2 * sig + j
    pl = plan(c); out = []
    for i in sorted({i for k, i in pl}):
        for tq in range(2):
            seq = [(n, k) for n, (k, t) in enumerate(pl) if t == i]
            if tq == 1 and OPT['snake'] and not any((k & 15) == 0 for n, k in seq): seq.reverse()
            for n, k in seq:
                d = vr(ACC[c >> 4] + 8 * i + 4 * tq, 4)
                out.append(f"v_mfma_f32_16x16x32_bf16 {d}, {vr(F[c&1] + 4*n, 4)}, {vr(XF + 8*(k & 15) + 4*tq, 4)}, {'0' if (k & 15) == 0 else d}")
    return out

def gelu_pair(base, j, T=vGT, pk=False):
    G = vr(base + 2 * j, 2); U = vr(base + 8 + 2 * j, 2); TT = vr(T, 2)
    g0, g1, u0, u1 = base + 2 * j, base + 2 * j + 1, base + 8 + 2 * j, base + 9 + 2 * j
    if pk:
        return [f"v_pk_mul_f32 {TT}, {G}, {G}",
                f"v_pk_fma_f32 {TT}, {TT}, s[{sC1}:{sC1+1}], {vr(vC0,2)} op_sel_hi:[1,0,0]",
                f"v_pk_mul_f32 {TT}, {TT}, {G}",
                f"v_exp_f32 v{T}, v{T}", f"v_exp_f32 v{T+1}, v{T+1}",
                f"v_pk_mul_f32 {G}, {G}, {U}",
                f"v_pk_add_f32 {TT}, {TT}, 1.0 op_sel_hi:[1,0]",
                f"v_rcp_f32 v{T}, v{T}", f"v_rcp_f32 v{T+1}, v{T+1}",
                f"v_pk_mul_f32 {G}, {G}, {TT}",
                f"v_cvt_pk_bf16_f32 v{base+j}, v{g0}, v{g1}"]
    return [f"v_mul_f32 v{T}, v{g0}, v{g0}", f"v_mul_f32 v{T+1}, v{g1}, v{g1}",
            f"v_fma_f32 v{T}, v{T}, s{sC1}, v{vC0}", f"v_fma_f32 v{T+1}, v{T+1}, s{sC1}, v{vC0}",
            f"v_mul_f32 v{T}, v{T}, v{g0}", f"v_mul_f32 v{T+1}, v{T+1}, v{g1}",
            f"v_exp_f32 v{T}, v{T}", f"v_exp_f32 v{T+1}, v{T+1}",
            f"v_mul_f32 v{g0}, v{g0}, v{u0}", f"v_add_f32 v{T}, 1.0, v{T}", f"v_add_f32 v{T+1}, 1.0, v{T+1}",
            f"v_rcp_f32 v{T}, v{T}", f"v_rcp_f32 v{T+1}, v{T+1}",
            f"v_mul_f32 v{g1}, v{g1}, v{u1}",
            f"v_mul_f32 v{g0}, v{g0}, v{T}", f"v_mul_f32 v{g1}, v{g1}, v{T+1}",
            f"v_cvt_pk_bf16_f32 v{base+j}, v{g0}, v{g1}"]
def to_frag(base):
    return [f"v_permlane16_swap_b32 v{base}, v{base+2}", f"v_permlane16_swap_b32 v{base+1}, v{base+3}"]

def cost(x):
    c = 0
    for l in x.strip().split('\n'):
        l = l.strip()
        if not l or l.startswith(';') or l.endswith(':'): continue
        c += 8 if l.startswith(('v_exp', 'v_rcp')) else (OPT.get('vmc', 16) if l.startswith('buffer_') else 4)
    return c

kvtok = {}
def kv_step(m):
    slot = (4 * m % NSLOT) * 2048
    if m == 0: x = f"s_mov_b32 m0, s{sKVM}\ns_nop 0\n"
    else: x = f"s_add_u32 s{sKVO}, s{sKVO}, 8192\ns_add_u32 m0, s{sKVM}, {slot}\ns_and_b32 s{sKVO}, s{sKVO}, 0xffff\n"
    return [x + f"buffer_load_dwordx4 v{vKVS}, {srd(SWS)}, s{sKVO} offen sc1 lds", f"buffer_load_dwordx4 v{vKVS}, {srd(SWS)}, s{sKVO} offen offset:1024 sc1 lds"]
KV_FIRST = 2
def first_loads():
    return [f"buffer_load_dwordx4 {vr(QA,4)}, v{vL16}, {srd(SWS)}, s{sQA} offen sc1\ns_xor_b32 s{sQA}, s{sQA}, 1024"] + kv_step(0) + \
           [f"buffer_load_dwordx4 {vr(QB,4)}, v{vL16}, {srd(SWS)}, s{sQA} offen sc1"] + kv_step(1)

KVR = {0: f"s_lshr_b32 s{sT[7]}, s2, 3", 1: f"s_mov_b32 s{sT[7]}, 0", 2: f"s_and_b32 s{sT[7]}, s2, 16", 3: f"s_lshl_b32 s{sT[7]}, s2, 3", 4: f"s_lshl_b32 s{sT[7]}, s2, 2"}[OPT['kvr']]
def setup_early():
    a(f"""
    s_lshr_b32 s{sT[0]}, s{sW}, 2
    s_lshl_b32 s{sT[1]}, s{sT[0]}, 16
    v_add_u32 v{vKVS}, s{sT[1]}, v{vL16}
    s_and_b32 s{sT[1]}, s{sW}, 1
    s_mul_i32 s{sT[1]}, s{sT[1]}, {HALF}
    v_add_u32 v{vAK}, s{sT[1]}, v{vL16}
    v_add_u32 v{vAV}, s{sT[1]}, v{vPV}
    s_mul_i32 s{sT[1]}, s{sT[0]}, {HALF}
    s_and_b32 s{sT[6]}, s{sW}, 3
    s_lshl_b32 s{sT[7]}, s{sT[6]}, 11
    s_add_u32 s{sKVM}, s{sT[7]}, s{sT[1]}
    {KVR}
    s_add_u32 s{sT[6]}, s{sT[6]}, s{sT[7]}
    s_and_b32 s{sT[6]}, s{sT[6]}, 31
    s_lshl_b32 s{sKVO}, s{sT[6]}, 11
    s_add_u32 s{sQA}, s{sOO}, {WS_Q}
    s_xor_b32 s{sQA}, s{sQA}, 1024
    s_lshl1_add_u32 s{sGA}, s{sI}, s{sT[0]}
    s_lshl_b32 s{sGA}, s{sGA}, 7
    s_add_u32 s{sGA}, s{sGA}, {WS_G}
    s_lshr_b32 s{sT[6]}, s{sI}, 3
    s_lshl3_add_u32 s{sT[6]}, s{sT[6]}, s{sW}
    s_mul_i32 s{sT[6]}, s{sT[6]}, {14*16}
    s_and_b32 s{sT[7]}, s{sI}, 7
    s_lshl1_add_u32 s{sT[7]}, s{sT[7]}, s{sT[0]}
    s_add_u32 s{sT[6]}, s{sT[6]}, s{sT[7]}
    s_lshl_b32 s{sT[6]}, s{sT[6]}, 10
    s_add_u32 s{sT[9]}, s{sT[6]}, {WS_H}
    s_lshr_b32 s{sF2R}, s{sI}, 1
    s_lshl_b32 s{sF2R}, s{sF2R}, 9
    s_add_u32 s{sF2R}, s{sF2R}, {WS_F2}
    s_lshl_b32 s{sT[1]}, s{sW}, 24
    s_add_u32 s{sF2W}, s{sF2}, s{sT[1]}
    s_mul_i32 s{sT[6]}, s{sW}, 2304
    s_add_u32 s{sT[6]}, s{sT[6]}, {MERGE}
    s_xor_b32 s{sT[7]}, s{sW}, 1
    s_mul_i32 s{sT[7]}, s{sT[7]}, 2304
    s_add_u32 s{sT[7]}, s{sT[7]}, {MERGE}
    """)
def setup_queue(late=False):
    q = []
    def add(st, txt):
        for l in txt.strip().split('\n'): q.append((st, l.strip().replace('|', '\n')))
    add(11, f"""
    v_and_b32 v{vG}, 31, v{L}
    v_lshlrev_b32 v{vG}, 2, v{vG}
    v_mov_b32 v{vIDX}, 0xdddddddd
    v_mov_b32 v{V2+1}, 0x3f803f80
    s_mov_b32 vcc_lo, 0x110000|s_mov_b32 vcc_hi, 0x110000|v_cndmask_b32 v{V2}, 0, v{V2+1}, vcc
    """)
    if OPT['mv64']:
        add(11, f"v_mov_b32 v{V2+1}, v{V2}")
        for r in range(V2 + 2, V2 + 12, 2): add(11, f"v_mov_b64 {vr(r,2)}, {vr(V2,2)}")
    else:
        for r in range(V2 + 1, V2 + 12): add(11, f"v_mov_b32 v{r}, v{V2}")
    add(12, f"""
    v_add_u32 v{vDR0}, s{sRING}, v{vTRP}
    v_xor_b32 v{vDR1}, 64, v{vDR0}
    v_add_u32 v{vDS1}, 7168, v{vDS}
    v_add_u32 v{vH0}, s{sT[9]}, v{vL16}
    v_xor_b32 v{vH1}, 0x400, v{vH0}
    v_lshlrev_b32 v{vF2}, 7, v{L}
    v_mov_b32 v{vONE}, 1
    v_add_u32 v{vM[0]}, s{sT[6]}, v{vL16}
    v_lshl_add_u32 v{vM[2]}, v{L}, 2, s{sT[6]}
    v_add_u32 v{vM[1]}, s{sT[7]}, v{vL16}
    v_lshl_add_u32 v{vM[3]}, v{L}, 2, s{sT[7]}
    """)
    for st, O in ((13, OA), (14, OB)):
        if OPT['oz']:
            add(st, f"buffer_load_dwordx4 {vr(O,4)}, v{vL16}, {srd(SDBG)}, 0 offen offset:256\nbuffer_load_dwordx4 {vr(O+4,4)}, v{vL16}, {srd(SDBG)}, 0 offen offset:256\nv_mov_b32 v{O+8}, 0")
        elif OPT['mv64']:
            for r in range(0, OPT['nz'], 2): add(st, f"v_mov_b64 {vr(O+r,2)}, 0")
        else:
            for r in range(9): add(st, f"v_mov_b32 v{O+r}, 0")
    if OPT['vlate']:
        cut = [i for i, x in enumerate(q) if x[1].startswith(f"v_and_b32 v{vG}, 31")][0]
        if late: return [x[1] for x in q[cut:]]
        return q[:cut]
    return [] if late else q

cold = []
def s0_check(P):
    a(f"v_cmp_eq_u32 vcc, 0, v{vS0}\ns_cbranch_vccnz L_s0retry{P}\nL_s0done{P}:")
    cold.append(f"""
    L_s0retry{P}:
    s_mov_b32 s{sT[1]}, 0
    L_s0poll{P}:
    buffer_load_dword v{vS0}, v{vZ}, {srd(SDBG)}, 0 offen sc1
    s_add_u32 s{sT[1]}, s{sT[1]}, 1
    s_waitcnt vmcnt(0)
    v_cmp_eq_u32 vcc, 0, v{vS0}
    s_cbranch_vccz L_s0done{P}
    s_cmp_lt_u32 s{sT[1]}, {SPIN}
    s_cbranch_scc1 L_s0poll{P}
    s_branch L_s0done{P}
    """)
def s1_issue(P):
    a(f"s_cmp_lg_u32 s{sW}, 0\ns_cbranch_scc1 L_nopoll0{P}")
    if P in 'GSC': s0_check(P)
    a(f"""
    s_mov_b32 s{sT[1]}, {WS_F1}
    v_lshlrev_b32 v{t1}, 7, v{L}
    buffer_load_dword v{t0}, v{t1}, {srd(SWS)}, s{sT[1]} offen sc1
    L_nopoll0{P}:
    """)
    a.vm -= 1
def s1_check(P):
    a(f"""
    s_cmp_lg_u32 s{sW}, 0
    s_cbranch_scc1 L_s1done{P}
    s_mov_b32 s{sT[0]}, 0
    L_s1poll{P}:
    s_waitcnt vmcnt(0)
    v_cmp_ne_u32 vcc, 1, v{t0}
    s_cbranch_vccz L_s1done{P}
    {'s_sleep ' + str(OPT['s1slp']) if OPT['s1slp'] else ''}
    s_mov_b64 exec, vcc
    buffer_load_dword v{t0}, v{t1}, {srd(SWS)}, s{sT[1]} offen sc1
    s_mov_b64 exec, -1
    s_add_u32 s{sT[0]}, s{sT[0]}, 1
    s_cmp_lt_u32 s{sT[0]}, {SPIN}
    s_cbranch_scc1 L_s1poll{P}
    s_waitcnt vmcnt(0)
    L_s1done{P}:
    """)
    a.vm -= 1

def proj_path(P):
    tok = {}
    PATH[0] = P
    S1 = OPT['s1']
    sched = {s: [s + 2] for s in range(6)}
    ISQ = P in 'KVP'
    PB = OPT['pbq0'] if ISQ else OPT['pb']
    QF = OPT['qf']
    sched.update({6: [8, 9], 7: [10, 11], 8: [12, 13], 9: [14, 15]}); cover = {8: 9, 10: 11, 12: 15}
    if ISQ and OPT['qmode'] == 0:
        del sched[8], sched[9]
        if OPT['qs'] == 0: sched.update({10: [12, 13], 11: [14, 15]}); cover = {8: 9, 10: 11, 12: 13, 14: 15}
        elif OPT['qs'] == 1: sched.update({10: [12], 11: [13], 12: [14], 13: [15]}); cover = {8: 9, 10: 11, 12: 12, 13: 13, 14: 14, 15: 15}
        elif OPT['qs'] == 2: sched.update({10: [12, 13], 12: [14, 15]}); cover = {8: 9, 10: 11, 12: 13, 14: 15}
        elif OPT['qs'] == 3: sched.update({9: [12], 10: [13], 11: [14], 12: [15]}); cover = {8: 9, 10: 11, 12: 13, 14: 15}
    bars = set(range(8)) | set(cover) | {S1}
    assert OPT['ch2'] < 4 or all(cover.get(x, 15) >= x + 1 for x in (8, 10, 12, 14))
    if OPT['gb14']: bars |= {14}
    if OPT['gb9'] and not ISQ: bars |= {9}; cover.update({8: 8, 9: 9})
    if OPT['gbar'] and not ISQ: bars |= set(range(8, 16))
    if ISQ: bars |= {QF} | ({9} if OPT['qmode'] else set()) | (set(range(10, 16)) if OPT['qbar'] else set())
    def dma_groups(sg):
        d = dma_ops(sg, P)
        if ISQ and sg == OPT['exs']:
            d.insert(1, f"""
            s_add_u32 m0, s{sMX}, {EX}
            s_nop 0
            buffer_load_dwordx4 v{vES}, {srd(SEX)}, s{sEXO} offen lds
            buffer_load_dwordx4 v{vES}, {srd(SEX)}, s{sEXO} offen offset:1024 lds
            """)
        if P == 'S' and sg == OPT['exs']:
            d.insert(1, f"s_mov_b32 m0, {GW}\ns_nop 0\nbuffer_load_dwordx4 v{vES}, {srd(SEX)}, 0 offen lds")
        return [(x, sg if k == len(d) - 1 else None) for k, x in enumerate(d)]
    def emit(it):
        if callable(it): return it()
        a(it[0])
        if it[1] is not None: tok[it[1]] = a.lastvm()
    tok[0] = a.lastvm()
    if ISQ: mk_srd(SWQ, 6, 512 * 1024)
    if not OPT['spf']:
        for it in dma_groups(1): emit(it)
    if ISQ: mk_srd(SWG, 16, 512 * PG); mk_srd(SWU, 18, 512 * PG)
    if P in 'KVS': mk_srd(SEX, {'K': 8, 'V': 10, 'S': 22}[P], 1024 if P == 'S' else 16384)
    if P == 'P': a(f"s_cmp_lt_u32 s{sQ}, 2\ns_cselect_b64 s[{SEX}:{SEX+1}], s[8:9], s[10:11]\ns_mov_b32 s{SEX+2}, 16384\ns_mov_b32 s{SEX+3}, 0x20000")
    if OPT['wt2']:
        a(f"""
        s_bitcmp1_b32 s{sJ}, 1
        s_cselect_b64 s[28:29], s[18:19], s[16:17]
        s_lshr_b32 s{sT[0]}, s{sJ}, 2
        s_add_u32 s{sT[0]}, s{sT[0]}, s{sROT0}
        s_and_b32 s{sT[0]}, s{sT[0]}, 7
        s_mul_i32 s{sT[0]}, s{sT[0]}, {64*PG}
        s_add_u32 s28, s28, s{sT[0]}
        s_addc_u32 s29, s29, 0
        """)
    setup_path(P)
    if OPT['grp'] == 5: a("s_mov_b32 s6, s14\ns_mov_b32 s8, s5")
    stamp(3, 5)
    if OPT['spf']:
        for it in dma_groups(1): emit(it)
    stamp(4, 5)
    setup_early()
    if P == 'C':
        ctok = a(f"v_lshlrev_b32 v{t0}, 7, v{L}\ns_mov_b32 s{sT[1]}, {WS_F1}\nbuffer_store_dword v{vZ}, v{t0}, {srd(SWS)}, s{sT[1]} offen sc1")
    win = {c: [] for c in range(33)}
    box = {}; front = {}; pre8 = []; early8 = []; lvl = [3]
    def usable(c):
        return c % 2 == 0 or ((c + 1) // 2) not in bars
    def nxt(c):
        while not usable(c): c += 1
        return c
    if not ISQ:
        gq = []
        for b in range(2):
            for j in range(4): gq += gelu_pair(ACC[0] + 16 * b, j)
            gq += to_frag(ACC[0] + 16 * b)
            if b == 0: n0 = len(gq)
        npre = 17 * (PB - 1) if PB else 0
        pre8 += [(x, None) for j in range(max(PB - 1, 0)) for x in gelu_pair(ACC[0], j, pk=OPT.get('pbk', 0))]
        gq = gq[npre:]; n0 -= npre
        ws = [c for c in range(16, OPT['gend'] + 1) if usable(c)]
        ndma = {16: 2, 17: 2, 18: 4} if 9 not in bars else {16: 4, 18: 4}
        tot = len(gq) + OPT['dwt'] * 8
        done = 0; accw = 0
        for k, c in enumerate(ws):
            accw += OPT['dwt'] * ndma.get(c, 0)
            upto = max(done, tot * (k + 1) // len(ws) - accw)
            win[c] += [(x, None) for x in gq[done:upto]]
            if done < n0 <= upto: c0 = c
            done = upto
        assert done == len(gq)
        for b in range(OPT['nearly']):
            c = nxt(max(OPT[f'h{b}w'], c0 if b == 0 else ws[-1]))
            win[c].append((f"s_add_u32 s{sT[2]}, s{sH1}, {16384*b}\nbuffer_store_dwordx4 {vr(ACC[0]+16*b,4)}, v{vST}, {srd(SWS)}, s{sT[2]} offen sc1", None))
    else:
        qa = [f"s_add_u32 s{sT[8]}, s{sT[4]}, {WS_Q + 4096}\ns_add_u32 s{sT[4]}, s{sT[4]}, {WS_Q}"]
        if P == 'K': qa += [f"v_mul_f32 v{ACCE+r}, {fbits(QS):#x}, v{ACCE+r}" for r in range(4)]
        sts = []
        if P in 'KV':
            qa += [f"v_cvt_pk_bf16_f32 v{vGT}, v{ACCE}, v{ACCE+1}", f"v_cvt_pk_bf16_f32 v{vGT+1}, v{ACCE+2}, v{ACCE+3}"]
            sts.append(f"buffer_store_dwordx2 {vr(vGT,2)}, v{vSA}, {srd(SWS)}, s{sEXW} offen sc1")
        if P == 'P':
            sts.append(f"s_and_b32 s{sT[0]}, s{sF2}, 0xffff80\nv_lshlrev_b32 v{t2}, 2, v{L}\ns_mov_b32 exec_hi, 0\nbuffer_store_dword v{vZ}, v{t2}, {srd(SWS)}, s{sT[0]} offen sc1\ns_mov_b32 exec_hi, -1")
        def qcv(i): return [f"v_cvt_pk_bf16_f32 v{ACC[0]+8*i+j}, v{ACC[0]+8*i+2*j}, v{ACC[0]+8*i+2*j+1}" for j in range(4)]
        def qst(i): return to_frag(ACC[0] + 8 * i) + [f"v_and_b32 v{ACC[0]+8*i}, -2, v{ACC[0]+8*i}\nbuffer_store_dwordx4 {vr(ACC[0]+8*i,4)}, v{vST}, {srd(SWS)}, s{sT[8 if i & 1 else 4]} offen offset:{1024*(i>>1)} sc1"]
        mark = [lambda: box.update(q=a.lastvm())]
        T = lambda l: [(x, None) for x in l]
        if OPT['qmode'] == 0 and PB:
            pre8 += T(qa + qcv(0) + qcv(1) + qcv(2) + qcv(3) + [x for i in range(4) for x in qst(i)[:2]])
            if OPT.get('pbq'): pre8 += T(sts + [qst(i)[2] for i in range(4)]) + mark
            else: win[16] += T(sts + [qst(i)[2] for i in range(2)]); win[17] += T([qst(i)[2] for i in range(2, 4)]) + mark
        elif OPT['qmode'] == 0:
            if OPT['qe'] == 0: win[16] += T(qa + sts + qcv(0) + qcv(1) + qst(0) + qst(1)); win[17] += T(qcv(2) + qcv(3) + qst(2) + qst(3)) + mark
            elif OPT['qe'] == 1:
                win[16] += T(qa + sts + qcv(0) + qst(0)); win[17] += T(qcv(1) + qcv(2) + qst(1) + qst(2)); front[18] = T(qcv(3) + qst(3)) + mark
            else:
                win[16] += T(qa + qcv(0) + sts + qcv(1) + qst(0)); win[17] += T(qst(1) + qcv(2) + qcv(3) + qst(2)); front[18] = T(qst(3)) + mark
        elif OPT['qmode'] == 1:
            win[16] += T(qa + qcv(0) + qcv(1)); win[18] += T(sts + qst(0) + qcv(2)); win[20] += T(qcv(3) + qst(1) + qst(2) + qst(3)) + mark
        else:
            win[16] += T(qa + qcv(0) + qcv(1) + qcv(2) + qcv(3)); win[18] += T(sts + qst(0) + qst(1) + qst(2) + qst(3)) + mark
        def qflag():
            assert a.vm_done > box['s0']
            if P != 'P': s0_check(P)
            a(f"""
            s_lshl4_add_u32 s{sT[0]}, s{sQ}, s{sTI}
            s_lshl_b32 s{sT[0]}, s{sT[0]}, 7
            s_add_u32 s{sT[0]}, s{sT[0]}, {WS_F1}
            s_lshl_b32 s{sT[1]}, s{sW}, 24
            s_add_u32 s{sT[0]}, s{sT[0]}, s{sT[1]}
            v_mov_b32 v{t1}, 1
            s_mov_b64 exec, 1
            buffer_store_dword v{t1}, v{vZ}, {srd(SWS)}, s{sT[0]} offen sc1
            s_mov_b64 exec, -1
            """)
        if P != 'P': box['flag'] = qflag
    if P in 'GC' and OPT['mpf']:
        win[OPT['mpf']].insert(0, (f"buffer_load_dword v{vES}, v{vES}, {srd(SEX)}, 0 offen", None))
    if P == 'S':
        gs = [(x, None) for x in (f"v_mul_f32 v{t2}, {fbits(-math.log2(math.e)):#x}, v{ACCE}", f"v_exp_f32 v{t2}, v{t2}", f"v_add_f32 v{t2}, 1.0, v{t2}", f"v_rcp_f32 v{t2}, v{t2}",
                                  f"buffer_store_dword v{t2}, v{vSA}, {srd(SWS)}, s{sEXW} offen sc1")]
        if PB: pre8 += gs
        else: win[16] = gs + win[16]
    queue = setup_queue()
    ws = [c for c in range(21 if ISQ else 20, 2 * S1 - 1) if usable(c)]
    for k, c in enumerate(ws):
        left = [x for x in queue if ({11: 20, 12: 24, 13: 24, 14: 28}[x[0]] if OPT['ch2'] == 4 else 2 * x[0] - 2) <= c]
        take = min(len(left), -(-len(queue) // (len(ws) - k)))
        win[c] += [(x[1], None) for x in left[:take]]; queue = queue[take:]
    assert not queue
    (early8 if OPT['ch2'] == 4 else win[16]).insert(0, (f"v_subrev_u32 v{vXR[0]}, {WR}, v{vWR[0]}\nv_subrev_u32 v{vXR[1]}, {WR}, v{vWR[1]}\nv_add_u32 v{vXR[2]}, {WR}, v{vWR[0]}\nv_add_u32 v{vXR[3]}, {WR}, v{vWR[1]}", None))

    def cluster(c, what='mr'):
        M = mfmas(c >> 1, c & 1) if (c >= 0 and 'm' in what) else []
        em = e_mfmas(c) if M else []
        for i, x in enumerate(em): M.insert(1 + (8 // len(em) + 1) * i if OPT['ch1'] == 1 else 2 + i, x)
        d = c + 1
        R = []
        if d < 32 and 'r' in what:
            if d < 16: R += x_reads(d)
            R += w_reads(d)
            R += e_reads(d)
        a.wait(a.lastlg())
        if M and not OPT['lad']: a("s_setprio 2")
        n = max(len(M), 1); k = 0
        last = n - 1 if (c & 1 or ((c >> 1) + 1) not in bars) else n - 2
        if M: last = min(last, n - 1 - OPT['rq' if ISQ else 'rg'] if c >= 16 else n - 1 - OPT['r1'])
        for i in range(n):
            if M: a(M[i])
            want = len(R) if i >= last else -(-len(R) * (i + 1) // (last + 1))
            while k < want: a(R[k]); k += 1
        if M and not OPT['lad']: a("s_setprio 0")
        if M and OPT['lad'] and lvl[0] > 0 and not (c % 2 == 0 and (c >> 1) + 1 in bars and not (c == 14 and PB)):
            lvl[0] -= 1; a(f"s_setprio {lvl[0]}")

    for sig in range(16):
        if sig == 8:
            for it in early8: emit(it)
        if sig == 8 and PB:
            cluster(15, 'm')
            for it in pre8: emit(it)
        if sig in bars:
            if sig in cover or sig < 8: a.wait(tok[cover.get(sig, sig)])
            if ISQ and sig == QF: a.wait(box['q'])
            if sig == S1 and P != 'P': s1_check(P)
            if OPT['lad']: lvl[0] = 3; a("s_setprio 3")
            a("s_barrier")
            if OPT.get('x_id3') and sig == OPT['x_id3']: a("s_sleep 16")
            if sig == QF and 'flag' in box: box['flag']()
        if sig == 1: stamp(1)
        if sig == 8: stamp(2)
        if sig < 11: stamp(sig, 1)
        if sig < 5: stamp(5 + sig, 5)
        if sig >= 6: stamp(sig - 6, 2)
        D = []
        if P == 'C' and sig == 2:
            assert a.vm_done >= ctok[1]
            win[4].append((f"v_mov_b32 v{t0}, 1\ns_mov_b64 exec, 1\nbuffer_store_dword v{t0}, v{vZ}, {srd(SDBG)}, 0 offen sc1\ns_mov_b64 exec, -1", None))
        for sg in sched.get(sig, []): D += dma_groups(sg)
        if sig == S1: D += [(x, None) for x in first_loads()]
        if sig == (7 if ISQ else 9) and P != 'P':
            def s0_load():
                if not ISQ:
                    a(f"s_cmp_lg_u32 s{sW}, 0\ns_cbranch_scc1 L_nos0l{P}\nbuffer_load_dword v{vS0}, v{vZ}, {srd(SDBG)}, 0 offen sc1\nL_nos0l{P}:")
                    a.vm -= 1
                else:
                    a(f"buffer_load_dword v{vS0}, v{vZ}, {srd(SDBG)}, 0 offen sc1")
                box['s0'] = a.vm
            D.insert(len(D) - 1, s0_load)
        head, mid, tail = [], D, []
        if sig < OPT['late']: mid, tail = [], D
        elif (sig + 1) not in bars: mid, tail = D[:len(D)//2], D[len(D)//2:]
        elif sig in bars and len(D) >= 4: head, mid = D[:OPT['na']], D[OPT['na']:]
        if sig == 6 and OPT['wt2']:
            a(f"global_load_dword v{t3}, v{vWS2}, s[28:29]")
            if OPT['wt2'] == 2: mid = head + mid; head = []
        for it in head: emit(it)
        cluster(2 * sig - 1, 'r' if (sig == 8 and PB) else 'mr')
        if sig == S1 - 1 and P != 'P' and OPT['s1w'] == 30:
            assert a.vm_done > box['s0']
            s1_issue(P)
        for it in front.get(2 * sig, []) + mid + win[2 * sig]: emit(it)
        cluster(2 * sig)
        for it in front.get(2 * sig + 1, []) + tail + win[2 * sig + 1]: emit(it)
    if P != 'P' and OPT['s1w'] == 31: s1_issue(P)
    a.wait(a.lastlg())
    assert not win[32]

setup_common()
if OPT['tlb']:
    a(f"s_cmp_lg_u32 s{sW}, 6\ns_cbranch_scc1 L_notlb")
    if OPT['tlb'] == 1:
        a(f"""
        v_lshlrev_b32 v{t0}, 21, v{L}
        s_mov_b32 s{sT[0]}, 0x80000
        s_mov_b64 exec, 63
        buffer_load_dword v32, v{t0}, {srd(SWS)}, s{sT[0]} offen
        s_mov_b64 exec, 1
        buffer_load_dword v33, v{vZ}, {srd(SWD)}, 0 offen
        buffer_load_dword v34, v{vZ}, {srd(SWO)}, 0 offen
        buffer_load_dword v35, v{vZ}, {srd(SOUT)}, 0 offen
        s_mov_b64 exec, -1
        """)
    else:
        a(f"""
        s_lshr_b32 s{sT[0]}, s2, 3
        s_lshl_b32 s{sT[0]}, s{sT[0]}, 16
        v_lshlrev_b32 v{t0}, 21, v{L}
        s_mov_b64 exec, 63
        buffer_load_dword v32, v{t0}, {srd(SWS)}, s{sT[0]} offen
        s_mov_b64 exec, 1
        v_mov_b32 v{t0}, s{sT[0]}
        v_min_u32 v{t1}, {1792*1024 - 4}, v{t0}
        global_load_dword v33, v{t1}, s[20:21]
        v_min_u32 v{t1}, {512*1024 - 4}, v{t0}
        global_load_dword v34, v{t1}, s[12:13]
        buffer_load_dword v35, v{t0}, {srd(SOUT)}, 0 offen
        s_mov_b64 exec, -1
        """)
    a("L_notlb:")
dispatch()
if OPT['pal']: a(f"s_branch L_pathG\n.p2align 12\n.fill {OPT['oG'] // 4}, 4, 0xbf800000\nL_pathG:")
proj_path('G')
a("L_join:")
a.forget()

JE = OPT['jearly'] and OPT['s1'] == 16
if not JE:
    for m in mfmas(15, 1): a(m)
    a("s_setprio 0")
stamp(3); stamp(10, 2)
def gelu_chunk(k):
    b, jp = k >> 1, k & 1
    g0 = gelu_pair(ACC[1] + 16 * b, 2 * jp, vGT, pk=OPT['pk2']); g1 = gelu_pair(ACC[1] + 16 * b, 2 * jp + 1, t2, pk=OPT['pk2'])
    for x, y in zip(g0, g1):
        a(x); a(y)
    if k == 2:
        for x in to_frag(ACC[1]): a(x)
for k in range(OPT['jlate']): gelu_chunk(k)
stamp(5, 3)
if OPT['s1'] == 16:
    s1_check('J')
    stamp(6, 3)
    a("s_barrier")
    stamp(7, 3)
    fl = first_loads()
    if JE:
        nfirst = OPT['jearly'] - 1
        for x in fl[:nfirst]: a(x)
        for m in mfmas(15, 1): a(m)
        fl = fl[nfirst:]
    for x in fl: a(x)
stamp(4); stamp(8, 3)
fltok = a.lastvm()
HST = OPT['hst']
def hs(k):
    if k >= HST: return
    if k == 0:
        assert OPT['nearly'] == 1
        a(f"s_add_u32 s{sT[2]}, s{sH1}, 16384\ns_cmp_eq_u32 s{sU}, 0\ns_cselect_b32 s{sT[2]}, {WS_SIZE}, s{sT[2]}\nbuffer_store_dwordx4 {vr(ACC[0]+16,4)}, v{vST}, {srd(SWS)}, s{sT[2]} offen sc1")
    else:
        hbox['h'] = a((f"s_add_u32 s{sHO}, s{sHO}, 16384\n" if k == 2 else "") + f"buffer_store_dwordx4 {vr(ACC[1]+16*(k-1),4)}, v{vST}, {srd(SWS)}, s{sHO} offen sc1")
hbox = {}
for k in range(OPT['jlate'], 4 - OPT['eb0']):
    gelu_chunk(k)
    if k == OPT.get('hs0', 1): hs(0)
    if k == 2: hs(1)
if not OPT['eb0']:
    for x in to_frag(ACC[1] + 16): a(x)
for x in setup_queue(True): a(x)
a(f"s_mov_b32 s{sT[8]}, 0xffff\ns_mov_b32 s{sT[9]}, 0xffff")
hs(2)
stamp(9, 3)
a.wait(fltok)
a("s_barrier")
if not OPT['eb0']: stamp(5); stamp(10, 3)

def qk(S, Q): return f"v_mfma_f32_32x32x16_bf16 {vr(S,16)}, {vr(KF,4)}, {vr(Q,4)}, 0"
def pv(O, V, S): return f"v_smfmac_f32_32x32x32_bf16 {vr(O,16)}, {vr(V,4)}, {vr(S,8)}, v{vIDX}"
NT, B1, B2 = 32, 8, OPT['b2']
def rec(t): return (t % NSLOT) * 2048
def rdK(t): return a(f"ds_read_b128 {vr(KF,4)}, v{vAK} offset:{rec(t)}")
def rdV(t2, t1):
    a(f"s_mov_b64 exec, s[{sT[8]}:{sT[9]}]")
    if t2 is not None: a(f"ds_read_b128 {vr(V2,4)}, v{vAV} offset:{rec(t2) + 1536}")
    if t1 is not None: a(f"ds_read_b128 {vr(V1[t1&1],4)}, v{vAV} offset:{rec(t1) + 1024}")
    a("s_mov_b64 exec, -1")
    return a.lastlg()
wtok, htok, rtok, box = {}, {}, {}, {}
m0own = [None]; wstart = set()
def w_off(u): return sR[u & 3] if u < 14 else sWOF
def w_load_a(u):
    a(f"s_add_u32 m0, s{sRING}, {(u & 3) * 2048}"); m0own[0] = ('w', u); wstart.add(u)
    assert u == 0 or (u - 1) in wtok
    if 0 < u < 14: a(f"s_sub_u32 s{sR[u&3]}, s{sR[(u-1)&3]}, 16384\ns_cselect_b32 s{sR[u&3]}, {13*16384}, s{sR[u&3]}")
    elif u == 14: a(f"s_lshl_b32 s{sWOF}, s{sU}, 14")
    elif u > 14: a(f"s_add_u32 s{sWOF}, s{sWOF}, 16384\ns_and_b32 s{sWOF}, s{sWOF}, 0xffff")
    a(f"buffer_load_dwordx4 v{vDS}, {srd(SWD if u < 14 else SWO)}, s{w_off(u)} offen lds")
def w_load_b(u):
    if m0own[0] != ('w', u):
        a(f"s_add_u32 m0, s{sRING}, {(u & 3) * 2048}"); m0own[0] = ('w', u)
    wtok[u] = a(f"buffer_load_dwordx4 v{vDS1}, {srd(SWD if u < 14 else SWO)}, s{w_off(u)} offen offset:1024 lds")
def h_load_a(u):
    assert u in wstart and (u + 4) not in wstart
    a(f"buffer_load_dwordx4 {vr(HF[u&3],4)}, v{vH0}, {srd(SWS)}, s{sR[u&3]} offen sc1")
def h_load_b(u):
    assert (u + 4) not in wstart
    htok[u] = a(f"buffer_load_dwordx4 {vr(HF[u&3]+4,4)}, v{vH1}, {srd(SWS)}, s{sR[u&3]} offen sc1")
def w_read(u, b):
    if b == 0: a.wait(wtok[u], htok[u])
    for e in range(2):
        rtok[u, b] = a(f"ds_read_b64_tr_b16 {vr(WF[u&1] + 4*b + 2*e, 2)}, v{(vDR0, vDR1)[b]} offset:{(u & 3) * 2048 + e*512}")
def d_mfma(u, k):
    tb, b = k >> 1, k & 1
    a.wait(rtok[u, 1])
    d = vr(DACC + 32 * tb + 16 * b, 16)
    a(f"v_mfma_f32_32x32x16_bf16 {d}, {vr(WF[u&1]+4*b,4)}, {vr(HF[u&3]+4*tb,4)}, {'0' if u == 0 else d}")

if OPT.get('x_now'):
    def w_load_a(u): pass
    def w_load_b(u): wtok[u] = None
if OPT.get('x_noh'):
    def h_load_a(u): pass
    def h_load_b(u): htok[u] = None
if OPT.get('x_noread'):
    def w_read(u, b): rtok[u, b] = None
ev, mf = {}, {}
SNAP = OPT.get('snap', 1)
B1P = 32 * (B1 - 1) + 11
EV, EVA, EK, EKA = OPT.get('ev', 5), OPT.get('eva', 0), OPT.get('ek', 11), OPT.get('eka', 0)
busy = {32 * t + o for t in range(NT) for o in (EV, EK, 18)}
def nextpos(p):
    while SNAP and (p & 15) not in (2, 5, 8, 11, 14): p += 1
    return p
def at(pos, f, limit=None):
    p = nextpos(pos)
    while SNAP and limit is not None and p in busy and nextpos(p + 1) <= limit: p = nextpos(p + 1)
    busy.add(p)
    ev.setdefault(p, []).append(f)
    return p
def h_store(b): box['h'] = a((f"s_add_u32 s{sHO}, s{sHO}, 16384\n" if b else "") + f"buffer_store_dwordx4 {vr(ACC[1]+16*b,4)}, v{vST}, {srd(SWS)}, s{sHO} offen sc1")
def late_store(k):
    a(f"""
    s_cmp_eq_u32 s{sU}, 0
    s_cbranch_scc1 L_nols{k}
    s_add_u32 s{sT[2]}, s{sH1}, {16384*k}
    buffer_store_dwordx4 {vr(ACC[0]+16*k,4)}, v{vST}, {srd(SWS)}, s{sT[2]} offen sc1
    L_nols{k}:
    """)
    a.vm -= 1
pp = OPT.get('p_st', 1); STS = OPT.get('p_sts', 1)
box.update(hbox)
for k in range(OPT['nearly'] + (HST > 0), 2):
    pp = at(pp, lambda k=k: late_store(k), pp + 12) + STS
if HST < 2: pp = at(pp, lambda: h_store(0), pp + 12) + STS
if HST < 3: pp = at(pp, lambda: h_store(1), pp + 12)
assert pp < B1P
def kv_emit(m, i):
    if i == 0: m0own[0] = ('kv', m)
    if m0own[0] != ('kv', m):
        a(f"s_add_u32 m0, s{sKVM}, {(4 * m % NSLOT) * 2048}"); m0own[0] = ('kv', m)
    kvtok[m] = a(kv_step(m)[i])
for m in range(KV_FIRST, 8):
    p = OPT['p_kv'] + OPT['p_kvs'] * (m - KV_FIRST) if m < 6 else OPT['p_kv2'] + 20 * (m - 6)
    p = at(p, lambda m=m: kv_emit(m, 0), p + 8)
    at(p + 1, lambda m=m: kv_emit(m, 1), p + 9)
assert OPT['p_kv2'] > B1P
def h_flag():
    a(f"s_mov_b64 exec, 1\nbuffer_store_dword v{vONE}, v{vZ}, {srd(SWS)}, s{sF2W} offen sc1\ns_mov_b64 exec, -1")
at(B1P + 1, h_flag)
def f2_load():
    box['f2'] = a(f"s_mov_b64 exec, 15\nbuffer_load_dwordx4 {vr(F2D,4)}, v{vF2}, {srd(SWS)}, s{sF2R} offen sc1")
    a("s_mov_b64 exec, -1")
at(OPT['p_f2'], f2_load, OPT['p_f2'] + 8)
def f2_check():
    a.wait(box['f2'])
    test = f"v_min3_u32 v{F2D}, v{F2D}, v{F2D+1}, v{F2D+2}\nv_min_u32 v{F2D}, v{F2D}, v{F2D+3}\nv_cmp_ne_u32 vcc, 1, v{F2D}"
    a(f"s_mov_b64 exec, 15\n{test}\ns_cbranch_vccnz L_s2retry\nL_s2done:\ns_mov_b64 exec, -1")
    cold.append(f"""
    L_s2retry:
    s_mov_b32 s{sT[1]}, 0
    L_s2poll:
    buffer_load_dwordx4 {vr(F2D,4)}, v{vF2}, {srd(SWS)}, s{sF2R} offen sc1
    s_add_u32 s{sT[1]}, s{sT[1]}, 1
    s_waitcnt vmcnt(0)
    {test}
    s_cbranch_vccz L_s2done
    {'s_sleep ' + str(OPT['slp']) if OPT.get('slp') else ''}
    s_cmp_lt_u32 s{sT[1]}, {SPIN}
    s_cbranch_scc1 L_s2poll
    s_branch L_s2done
    """)
    a(f"buffer_load_dword v{vG}, v{vG}, {srd(SWS)}, s{sGA} offen sc1")
    stamp(9)
PCHK = at(OPT['p_chk'], f2_check, OPT['p_chk'] + 8)
D0, DE = OPT['d0'], OPT['dend']
allsl = [32 * t + o for t in range(D0, DE) for o in (8, 14, 24, 30)]
assert len(allsl) >= 56
slots = [allsl[(i * len(allsl)) // 56] for i in range(56)]
for u in range(14):
    rp = slots[0] - 16 if u == 0 else slots[4 * u - 2] + 1
    lim = slots[4 * u] - 9
    p = at(rp, lambda u=u: w_read(u, 0), lim - 3); at(p + 1, lambda u=u: w_read(u, 1), lim)
    for k in range(4): mf[slots[4 * u + k]] = (lambda u=u, k=k: d_mfma(u, k))
for u in range(18):
    pw = OPT['p_fill'] + OPT['p_fills'] * u if u < 4 else slots[4 * (u - 4)] + 1
    p = at(pw, lambda u=u: w_load_a(u), pw + 8); p = at(p + 1, lambda u=u: w_load_b(u), p + 8)
    if u < 3:
        ph = PCHK + 1 + OPT.get('p_hs', 13) * u
        p = at(ph, lambda u=u: h_load_a(u), ph + 4); at(p + 1, lambda u=u: h_load_b(u), p + 5)
    if 4 <= u < 15:
        p = at(p + 1, lambda u=u: h_load_a(u - 1), p + 8); at(p + 1, lambda u=u: h_load_b(u - 1), p + 8)
for lo, hi, fr in ((0, B1P, (OPT.get('la1', 30), OPT.get('la2', 70), OPT.get('la3', 94))), (B1P, 32 * B2, (OPT.get('lb1', 35), OPT.get('lb2', 80), OPT.get('lb3', 96))),
                   (32 * B2, 32 * NT, (OPT.get('lc1', 60), OPT.get('lc2', 87), OPT.get('lc3', 96)))):
    for k in range(3): at(lo + ((hi - lo) * fr[k]) // 100, lambda k=k: a(f"s_setprio {2-k}"))

if OPT['grp'] == 6:
    for k, p in enumerate((240, 300, 380, 436, 466, 490, 520, 560, 600, 650, 700)): at(p, lambda k=k: stamp(k, 6))
at(32 * NT - 2, lambda: a(f"ds_write_b128 v{vM[0]}, {vr(OA,4)}\nds_write_b128 v{vM[0]}, {vr(OA+4,4)} offset:1024\nds_write_b32 v{vM[2]}, v{OA+8} offset:2048"))

a("; ---- attention: S = K Q^T (scale and log2 e folded into K), P = 2^S in place, O += V^T P with the high halves of the fp32 P")
a("s_setprio 3")
tK = rdK(0); tV = rdV(None, 0)
for k in range(4 - OPT['eb0'], 4): gelu_chunk(k)
if OPT['eb0']: stamp(5); stamp(10, 3)
a.wait(tK)
a(qk(SA, QA))
if OPT['eb0']:
    for x in to_frag(ACC[1] + 16): a(x)
for t in range(NT):
    if t == B2:
        a.wait(kvtok[7]); a("s_barrier\ns_setprio 3"); stamp(0)
        if OPT.get('x_idle'): a(f"s_sleep {OPT['x_idle']}")
    nx = t + 1 if t + 1 < NT else None
    for ph, (S, So, O, Oo, Qo) in enumerate(((SA, SB, OA, OB, QB), (SB, SA, OB, OA, QA))):
        for e in range(16):
            pos = 32 * t + 16 * ph + e
            def own(after):
                global tV, tK
                if ph == 0 and (e, after) == (EV, EVA):
                    if t == 0: a.wait(tV)
                    tV = rdV(t, nx if t != B1 - 1 else None)
                if ph == 0 and (e, after) == (EK, EKA) and nx and t != B1 - 1: tK = rdK(nx)
            for f in ev.pop(pos, []): f()
            own(0)
            if pos == B1P:
                a.wait(kvtok[5], box['h'], tV); a("s_barrier\ns_setprio 3"); stamp(6)
                tK = rdK(nx); tV = rdV(None, nx)
            if e == 2:
                if ph == 1: a.wait(tV, None if OPT.get('w2') else tK)
                if t > 0 or ph == 1: a(pv(Oo, V2, So + 8))
            if (e == 5 and not (t == 0 and ph == 0)) or (t == 0 and ph == 0 and e == 0):
                if ph == 1: a.wait(tK)
                if ph == 0 or nx: a(qk(So, Qo))
            if e == 11: a(pv(O, V1[t & 1], S))
            if pos in mf: mf.pop(pos)()
            own(1)
            a(f"v_exp_f32 v{S+e}, v{S+e}")
            if OPT.get('x_mov2') and t >= 28: a("v_max_u32 v23, v17, v17")
            if OPT.get('x_mov') and e in (3, 9) : a("v_max_u32 v23, v17, v17")
assert not mf
assert not ev, sorted(ev)
if OPT['woe']: a.wait(wtok[17])
a(pv(OB, V2, SB + 8))
a.wait_lg0()
stamp(7); stamp(0, 4)
a("s_barrier")
stamp(1, 4)
a(f"""
ds_read_b32 v{SA+8}, v{vM[3]} offset:2048
ds_read_b128 {vr(SA,4)}, v{vM[1]}
ds_read_b128 {vr(SA+4,4)}, v{vM[1]} offset:1024
s_add_u32 s{sOO}, s{sOO}, {WS_O}
s_mov_b32 s{sT[6]}, {fbits(2.0**-60):#x}
s_mov_b32 s{sT[7]}, {fbits(2.0**60) - fbits(2.0**-60):#x}
s_lshl_b32 s{sT[3]}, s{sW}, 13
s_xor_b32 s{sT[2]}, s{sT[3]}, 0x8000
v_add_u32 v24, s{sT[2]}, v{vL16}
v_add_u32 v26, s{sT[3]}, v{vL16}
s_waitcnt lgkmcnt(2)
v_add_f32 v{OB+8}, v{OB+8}, v{SA+8}
v_rcp_f32 v{t0}, v{OB+8}
""")
a.wait_lg0()
a("; ---- the exponentials were taken with shift 0; that is exact only while the row sum is far inside the fp32 range and nothing")
OS = 128
for j in range(2): a(f"v_pk_add_f32 {vr(OB+2*j,2)}, {vr(OB+2*j,2)}, {vr(SA+2*j,2)}")
a(f"v_mul_f32 v{t0}, v{t0}, v{vG}")
for j in range(2, 4): a(f"v_pk_add_f32 {vr(OB+2*j,2)}, {vr(OB+2*j,2)}, {vr(SA+2*j,2)}")
for j in range(4): a(f"v_pk_mul_f32 {vr(OB+2*j,2)}, {vr(OB+2*j,2)}, {vr(t0,2)} op_sel_hi:[1,0]")
a(f"""
v_pk_add_f32 {vr(t2,2)}, {vr(OB,2)}, {vr(OB+2,2)}
v_pk_add_f32 {vr(t0,2)}, {vr(OB+4,2)}, {vr(OB+6,2)}
v_cvt_pk_bf16_f32 v{OS}, v{OB}, v{OB+1}
v_pk_add_f32 {vr(t2,2)}, {vr(t2,2)}, {vr(t0,2)}
v_cvt_pk_bf16_f32 v{OS+1}, v{OB+2}, v{OB+3}
v_add_f32 v{t2}, v{t2}, v{t3}
v_cvt_pk_bf16_f32 v{OS+2}, v{OB+4}, v{OB+5}
v_fma_f32 v{t2}, v{t2}, 0, v{OB+8}
v_cvt_pk_bf16_f32 v{OS+3}, v{OB+6}, v{OB+7}
v_subrev_u32 v{t2}, s{sT[6]}, v{t2}
v_or_b32 v{OS}, 1, v{OS}
v_cmp_lt_u32 vcc, s{sT[7]}, v{t2}
""")
if OPT['force_fb']: a("s_mov_b64 vcc, -1")
a(f"""
s_cbranch_vccnz L_true_max
L_norm:
buffer_store_dwordx4 {vr(OS,4)}, v{vL16}, {srd(SWS)}, s{sOO} offen sc1
""")
stamp(8); stamp(2, 4)

OF, WOF, XT = 32, 176, 96
vO1 = 27
fill = f"""
s_and_b32 s{sT[1]}, s{sW}, 3
s_lshl_b32 s{sT[2]}, s{sT[1]}, 13
s_add_u32 s{sT[2]}, s{sT[2]}, {RING}
v_add_u32 v28, s{sT[2]}, v{vTRP}
v_xor_b32 v29, 64, v28
v_sub_f32 v{vG}, 1.0, v{vG}
v_add_u32 v{vO1}, 0x4000, v{vL16}
s_lshr_b32 s{sT[9]}, s{sW}, 2
s_lshl1_add_u32 s{sT[0]}, s{sI}, s{sT[9]}
s_lshl3_add_u32 s{sT[0]}, s{sT[0]}, s{sT[1]}
s_lshl_b32 s{sT[0]}, s{sT[0]}, 12
s_add_u32 s{sT[0]}, s{sT[0]}, {WS_O}
s_lshl4_add_u32 s{sT[8]}, s{sT[9]}, s{sT[1]}
s_lshl_b32 s{sT[8]}, s{sT[8]}, 11
""".strip().split('\n')
for v in range(4):
    fill += f"s_add_u32 s{sT[1]}, s{sU}, {v}\ns_and_b32 s{sT[1]}, s{sT[1]}, 3\ns_lshl_b32 s{sT[1]}, s{sT[1]}, 10\ns_add_u32 s{sT[4+v]}, s{sT[0]}, s{sT[1]}".split('\n')
fill += f"""
v_and_b32 v{t0}, 31, v{L}
v_lshrrev_b32 v{t1}, 5, v{L}
v_and_b32 v{t2}, 7, v{L}
v_xor_b32 v{t1}, v{t1}, v{t2}
v_lshlrev_b32 v{t1}, 4, v{t1}
v_lshl_add_u32 v{t0}, v{t0}, 8, v{t1}
v_add_u32 v9, s{sT[3]}, v{t0}
v_xor_b32 v10, 32, v9
v_xor_b32 v11, 64, v9
v_xor_b32 v12, 0x60, v9
v_lshrrev_b32 v{t0}, 3, v{L}
v_lshlrev_b32 v{t1}, 1, v{t2}
v_xor_b32 v{t1}, v{t1}, v{t0}
v_lshlrev_b32 v{t1}, 4, v{t1}
v_lshl_add_u32 v{t1}, v{t0}, 8, v{t1}
v_add_u32 v1, s{sT[8]}, v{t1}
v_xor_b32 v2, 16, v1
s_lshl3_add_u32 s{sT[3]}, s{sI}, s{sW}
s_lshl_b32 s{sT[3]}, s{sT[3]}, 6
s_add_u32 s{sT[3]}, s{sT[3]}, s{sJ}
s_lshl_b32 s{sT[3]}, s{sT[3]}, 7
v_lshlrev_b32 v{t2}, 4, v{t2}
v_lshl_add_u32 v5, v{t0}, 10, v{t2}
s_mov_b32 s{sT[2]}, 0
""".strip().split('\n')
def wo_read(v):
    slot = ((14 + v) & 3) * 2048 + (v >> 2) * 32768
    for b in range(2):
        for e in range(2):
            a(f"ds_read_b64_tr_b16 {vr(WOF + 8*v + 4*b + 2*e, 2)}, v{28 + b} offset:{slot + e*512}")
for j in range(8):
    xw = a(f"ds_write_b128 v24, {vr(DACC+32+4*j,4)} offset:{1024*j}")
    for x in fill[len(fill) * j // 8: len(fill) * (j + 1) // 8]: a(x)
    if OPT['woe'] == 1: wo_read(j)
if OPT['woe'] == 2:
    for j in range(8): wo_read(j)
def o_loads():
    for v in range(8):
        a(f"buffer_load_dwordx4 {vr(OF + 4*v, 4)}, v{vO1 if v >> 2 else vL16}, {srd(SWS)}, s{sT[4 + (v&3)]} offen sc1")
stamp(3, 4)
a.wait(wtok[17], xw)
a(f"s_cmp_ge_u32 s{sW}, 4")
if not OPT['oe']: a("s_barrier"); stamp(4, 4)
if OPT.get('x_id2'): a(f"s_sleep {OPT['x_id2']}")
a("s_setprio 1\ns_cbranch_scc1 L_ol1\ns_setprio 0")
o_loads()
a("L_ol1:")
if OPT['oe']: a("s_barrier"); stamp(4, 4)
xt = [a(f"ds_read_b128 {vr(XT+4*j,4)}, v26 offset:{1024*j}") for j in range(8)]
for j in range(8):
    a.wait(xt[j])
    for i in range(2):
        r = 4 * j + 2 * i
        a(f"v_pk_add_f32 {vr(DACC+r,2)}, {vr(DACC+r,2)}, {vr(XT+r,2)}")
    for i in range(2):
        r = 4 * j + 2 * i
        a(f"v_pk_mul_f32 {vr(DACC+r,2)}, {vr(DACC+r,2)}, {vr(vG,2)} op_sel_hi:[1,0]")
stamp(5, 4)
a("s_setprio 0\ns_cbranch_scc0 L_ol2")
o_loads()
a("L_ol2:")
if not OPT['woe']:
    for j in range(8): wo_read(j)
stamp(6, 4)
a.wait_lg0()
ND = XT
a("L_s3poll:")
def wo_mfma(v, b): a(f"v_mfma_f32_32x32x16_bf16 {vr(ND+16*b,16)}, {vr(WOF+8*v+4*b,4)}, {vr(OF+4*v,4)}, {vr((DACC if v == 0 else ND)+16*b,16)}")
def chk(v): a(f"v_and_b32 v{t0}, {1 if v == 0 else 'v' + str(t0)}, v{OF+4*v}")
def xsite():
    a(f"s_cmp_eq_u32 s{sT[9]}, 0\ns_cbranch_scc1 L_nox\ns_mov_b32 s{sT[9]}, 0\ns_barrier\nL_nox:")
for v in range(6):
    a(f"s_waitcnt vmcnt({7-v})")
    if v == 0: stamp(10); stamp(7, 4)
    wo_mfma(v, 0); chk(v); wo_mfma(v, 1)
    if v == OPT['xsite']: xsite()
a("s_waitcnt vmcnt(1)"); wo_mfma(6, 0); chk(6)
a("s_waitcnt vmcnt(0)"); wo_mfma(7, 0); chk(7)
a.vm_done = a.vm
wo_mfma(6, 1)
if OPT['xsite'] == 6: xsite()
a(f"v_cmp_eq_u32 vcc, 0, v{t0}")
wo_mfma(7, 1)
if OPT['xsite'] == 7: xsite()
a("s_cbranch_vccnz L_s3retry\nL_s3done:")
stamp(8, 4)
for b in range(2):
    if OPT['xsite'] >= 6: a("s_nop 2" if b == 0 else "s_nop 3")
    for qd in range(4): a(f"ds_write_b128 v{9+qd}, {vr(ND + 16*b + 4*qd, 4)} offset:{b*128}")
a(f"s_cmp_ge_u32 s{sW}, 4")
a.wait_lg0()
a("s_barrier")
stamp(9, 4)
RD = 176
rt = []
for p in range(4):
    for e in range(2):
        rt.append(a(f"ds_read_b128 {vr(RD + 8*p + 4*e, 4)}, v{1 + e} offset:{p*8192}"))
for p in range(1, 4):
    a.wait(rt[2 * p + 1])
    for j in range(4):
        if OPT.get('fpk', 1): a(f"v_pk_add_f32 {vr(RD+2*j,2)}, {vr(RD+2*j,2)}, {vr(RD+8*p+2*j,2)}")
        else: a(f"v_add_f32 v{RD+2*j}, v{RD+2*j}, v{RD+8*p+2*j}\nv_add_f32 v{RD+2*j+1}, v{RD+2*j+1}, v{RD+8*p+2*j+1}")
for j in range(4): a(f"v_cvt_pk_bf16_f32 v{RD+j}, v{RD+2*j}, v{RD+2*j+1}")
a(f"buffer_store_dwordx4 {vr(RD,4)}, v5, {srd(SOUT)}, s{sT[3]} offen {['', 'sc1'][OPT['outm']]}")
a("s_cbranch_scc1 L_noy\ns_barrier\nL_noy:")
stamp(10, 4)
if OPT['stamp']:
    a("s_waitcnt vmcnt(0)")
    stamp(11)
    a("s_waitcnt lgkmcnt(0)")
    a(f"s_mov_b32 s28, s{sT[2]}")
    if 'span' in OPT:
        a(f"""
        s_lshl3_add_u32 s{sT[0]}, s2, s{sW}
        s_lshl_b32 s{sT[0]}, s{sT[0]}, 3
        s_add_u32 s{sT[0]}, s{sT[0]}, {WS_STAMP}
        v_mov_b32 v1, 0
        v_mov_b32 v2, s{4+2*OPT['span']}
        v_mov_b32 v3, s30
        s_mov_b64 exec, 1
        buffer_store_dwordx2 v[2:3], v1, {srd(SWS)}, s{sT[0]} offen sc1
        s_mov_b64 exec, -1
        s_add_u32 s{sT[0]}, s2, s{sW}
        s_cmp_lg_u32 s{sT[0]}, 0
        s_cbranch_scc1 L_end
        L_pad0:
        s_memrealtime s[{sT[2]}:{sT[3]}]
        s_waitcnt lgkmcnt(0)
        s_sub_u32 s{sT[2]}, s{sT[2]}, s30
        s_cmp_lt_u32 s{sT[2]}, 4500
        s_cbranch_scc1 L_pad0
        v_mov_b32 v4, 0
        v_mov_b32 v5, -1
        s_sub_u32 s{sT[1]}, s30, 1000
        """)
        for g in range(16):
            a(f"""
            s_mov_b32 s{sT[0]}, {WS_STAMP + 1024*g}
            buffer_load_dwordx4 v[8:11], v{vL16}, {srd(SWS)}, s{sT[0]} offen sc1
            s_waitcnt vmcnt(0)
            v_subrev_u32 v8, s{sT[1]}, v8
            v_subrev_u32 v9, s{sT[1]}, v9
            v_subrev_u32 v10, s{sT[1]}, v10
            v_subrev_u32 v11, s{sT[1]}, v11
            v_max3_u32 v4, v4, v8, v10
            v_min3_u32 v5, v5, v9, v11
            """)
        a(f"s_mov_b32 s{sT[4]}, 0\ns_mov_b32 s{sT[5]}, -1")
        for i in range(64): a(f"v_readlane_b32 s{sT[6]}, v4, {i}\nv_readlane_b32 s{sT[7]}, v5, {i}\ns_nop 0\ns_max_u32 s{sT[4]}, s{sT[4]}, s{sT[6]}\ns_min_u32 s{sT[5]}, s{sT[5]}, s{sT[7]}")
        a(f"""
        s_sub_u32 s{sT[0]}, s{sT[4]}, s{sT[5]}
        s_sub_u32 s{sT[0]}, s{sT[0]}, {OPT.get('spanb', 2000)}
        s_min_u32 s{sT[0]}, s{sT[0]}, 2500
        s_mul_i32 s{sT[0]}, s{sT[0]}, 10
        s_add_u32 s{sT[0]}, s{sT[0]}, 6000
        L_pad:
        s_memrealtime s[{sT[2]}:{sT[3]}]
        s_waitcnt lgkmcnt(0)
        s_sub_u32 s{sT[2]}, s{sT[2]}, s30
        s_cmp_lt_u32 s{sT[2]}, s{sT[0]}
        s_cbranch_scc1 L_pad
        """)
    elif 'crit' in OPT:
        a(f"""
        s_cmp_lg_u32 s{sW}, 7
        s_cbranch_scc1 L_end
        s_lshl_b32 s{sT[0]}, s2, 6
        s_add_u32 s{sT[0]}, s{sT[0]}, {WS_STAMP}
        v_mov_b32 v1, 0
        """)
        for k in range(14): a(f"v_mov_b32 v2, s{4+2*k}\nbuffer_store_dword v2, v1, {srd(SWS)}, s{sT[0]} offen offset:{4*k} sc1")
        a(f"""
        s_cmp_lg_u32 s2, 0
        s_cbranch_scc1 L_end
        L_pad0:
        s_memrealtime s[{sT[2]}:{sT[3]}]
        s_waitcnt lgkmcnt(0)
        s_sub_u32 s{sT[2]}, s{sT[2]}, s30
        s_cmp_lt_u32 s{sT[2]}, 5000
        s_cbranch_scc1 L_pad0
        v_lshlrev_b32 v1, 6, v{L}
        s_mov_b32 s{sT[4]}, 0
        s_mov_b32 s{sT[5]}, -1
        """)
        for g in range(4):
            a(f"""
            s_mov_b32 s{sT[0]}, {WS_STAMP + 4096*g}
            buffer_load_dword v2, v1, {srd(SWS)}, s{sT[0]} offen offset:{4*OPT['crit']} sc1
            buffer_load_dword v3, v1, {srd(SWS)}, s{sT[0]} offen offset:52 sc1
            s_waitcnt vmcnt(0)
            v_subrev_u32 v2, s30, v2
            v_add_u32 v2, 1000, v2
            v_lshlrev_b32 v2, 8, v2
            v_add_u32 v2, v2, v{L}
            v_add_u32 v2, {64*g}, v2
            v_subrev_u32 v3, s30, v3
            v_add_u32 v3, 1000, v3
            s_nop 1
            """)
            for i in range(64): a(f"v_readlane_b32 s{sT[6]}, v2, {i}\nv_readlane_b32 s{sT[7]}, v3, {i}\ns_nop 0\ns_max_u32 s{sT[4]}, s{sT[4]}, s{sT[6]}\ns_min_u32 s{sT[5]}, s{sT[5]}, s{sT[7]}")
        a(f"""
        s_and_b32 s{sT[4]}, s{sT[4]}, 255
        s_lshl_b32 s{sT[0]}, s{sT[4]}, 6
        s_add_u32 s{sT[0]}, s{sT[0]}, {WS_STAMP}
        v_lshlrev_b32 v1, 2, v{L}
        buffer_load_dword v2, v1, {srd(SWS)}, s{sT[0]} offen sc1
        s_add_u32 s{sT[5]}, s{sT[5]}, s30
        s_sub_u32 s{sT[5]}, s{sT[5]}, 1000
        s_waitcnt vmcnt(0)
        v_subrev_u32 v2, s{sT[5]}, v2
        s_nop 1
        v_writelane_b32 v2, s{sT[4]}, 14
        s_mov_b64 exec, 0x7fff
        buffer_store_dword v2, v1, {srd(SDBG)}, 0 offen offset:4
        """)
    elif 'dk' in OPT:
        a(f"""
        s_cmp_lg_u32 s{sW}, {OPT.get('dw', 7)}
        s_cbranch_scc1 L_end
        s_lshl_b32 s{sT[0]}, s2, 2
        s_add_u32 s{sT[0]}, s{sT[0]}, {WS_STAMP}
        v_mov_b32 v2, s{4+2*OPT['dk']}
        v_mov_b32 v1, 0
        buffer_store_dword v2, v1, {srd(SWS)}, s{sT[0]} offen sc1
        s_cmp_lg_u32 s2, 0
        s_cbranch_scc1 L_end
        L_pad0:
        s_memrealtime s[{sT[2]}:{sT[3]}]
        s_waitcnt lgkmcnt(0)
        s_sub_u32 s{sT[2]}, s{sT[2]}, s30
        s_cmp_lt_u32 s{sT[2]}, 5000
        s_cbranch_scc1 L_pad0
        v_mul_u32_u24 v1, {4*OPT['dstride']}, v{L}
        s_mov_b32 s{sT[0]}, {WS_STAMP + 4*OPT['dbase']}
        buffer_load_dword v2, v1, {srd(SWS)}, s{sT[0]} offen sc1
        s_waitcnt vmcnt(0)
        v_subrev_u32 v2, s30, v2
        v_add_u32 v2, 100000, v2
        s_mov_b32 s{sT[4]}, 0
        s_mov_b32 s{sT[5]}, -1
        """)
        for i in range(OPT['dn']): a(f"v_readlane_b32 s{sT[6]}, v2, {i}\ns_nop 1\ns_max_u32 s{sT[4]}, s{sT[4]}, s{sT[6]}\ns_min_u32 s{sT[5]}, s{sT[5]}, s{sT[6]}")
        a(f"""
        s_sub_u32 s{sT[0]}, s{sT[4]}, s{sT[5]}
        s_min_u32 s{sT[0]}, s{sT[0]}, 2000
        s_mul_i32 s{sT[0]}, s{sT[0]}, 10
        s_add_u32 s{sT[0]}, s{sT[0]}, 6000
        L_pad:
        s_memrealtime s[{sT[2]}:{sT[3]}]
        s_waitcnt lgkmcnt(0)
        s_sub_u32 s{sT[2]}, s{sT[2]}, s30
        s_cmp_lt_u32 s{sT[2]}, s{sT[0]}
        s_cbranch_scc1 L_pad
        """)
    elif 'pad' in OPT:
        K = OPT['pad']
        a(f"s_and_b32 s{sT[0]}, s2, {OPT.get('padm', 0)}\ns_cmp_lg_u32 s{sT[0]}, {OPT.get('padv', 0)}\ns_cbranch_scc1 L_end")
        if K >= 0: a(f"s_sub_u32 s{sT[0]}, s{4+2*K}, s{4+2*OPT.get('padb', 13)}\ns_mul_i32 s{sT[0]}, s{sT[0]}, {OPT.get('padx', 4)}")
        elif K == -2: a(f"s_getreg_b32 s{sT[0]}, hwreg(HW_REG_XCC_ID)\ns_and_b32 s{sT[0]}, s{sT[0]}, 15\ns_mul_i32 s{sT[0]}, s{sT[0]}, 1000")
        else: a(f"s_mov_b32 s{sT[0]}, 0")
        a(f"""
        s_add_u32 s{sT[0]}, s{sT[0]}, 6000
        L_pad:
        s_memrealtime s[{sT[2]}:{sT[3]}]
        s_waitcnt lgkmcnt(0)
        s_sub_u32 s{sT[2]}, s{sT[2]}, s30
        s_cmp_lt_u32 s{sT[2]}, s{sT[0]}
        s_cbranch_scc1 L_pad
        """)
    else:
        a(f"s_lshl3_add_u32 s{sT[0]}, s2, s{sW}\ns_lshl_b32 s{sT[0]}, s{sT[0]}, 6\ns_add_u32 s{sT[0]}, s{sT[0]}, {WS_STAMP}")
        a("v_mov_b32 v1, 0\ns_mov_b64 exec, 1")
        for k in range(14):
            a(f"v_mov_b32 v2, s{4+2*k}\nbuffer_store_dword v2, v1, {srd(SWS)}, s{sT[0]} offen offset:{4*k}")
a("L_end:\ns_endpgm")
a("L_s3retry:")
o_loads()
a(f"""
s_add_u32 s{sT[2]}, s{sT[2]}, 1
s_cmp_lt_u32 s{sT[2]}, {SPIN}
s_nop 7
s_cbranch_scc1 L_s3poll
s_waitcnt vmcnt(0)
s_branch L_s3done
""")

for P in 'KVPSC':
    a("; ---- projection phase, " + {'K': 'query workgroups, waves 0-3: also k', 'V': 'query workgroups, waves 0-3: also v', 'P': 'query workgroups, waves 4-7',
                                      'S': 'gate/up waves that also form the mixing gate', 'C': 'gate/up wave that also clears the ready words'}[P])
    a(f".p2align 12\n.fill {OPT['o' + P] // 4}, 4, 0xbf800000\nL_path{P}:" if OPT['pal'] else f".p2align 6\nL_path{P}:")
    a.forget()
    proj_path(P)
    a("s_branch L_join")
for x in cold: a(x)

CM = SB
a(f"""
L_true_max:
s_waitcnt vmcnt(0) lgkmcnt(0)
v_mov_b32 v{t0}, 0xff800000
s_mov_b32 s{sT[0]}, {WS_KV}
L_tm1:
buffer_load_dwordx4 {vr(KF,4)}, v{vL16}, {srd(SWS)}, s{sT[0]} offen sc1
s_waitcnt vmcnt(0)
{qk(SA, QB)}
""")
for j in range(8): a(f"v_max3_f32 v{t0}, v{t0}, v{SA+2*j}, v{SA+2*j+1}")
a(f"""
s_add_u32 s{sT[0]}, s{sT[0]}, 2048
s_cmp_lt_u32 s{sT[0]}, {WS_KV + 64*2048}
s_cbranch_scc1 L_tm1
v_mov_b32 v{t1}, v{t0}
v_permlane32_swap_b32 v{t0}, v{t1}
v_max_f32 v{t0}, v{t0}, v{t1}
""")
for r in range(16): a(f"v_sub_f32 v{CM+r}, 0, v{t0}\nv_mov_b32 v{OB+r}, 0")
a(f"""
s_mov_b32 s{sT[0]}, {WS_KV}
L_tm2:
buffer_load_dwordx4 {vr(KF,4)}, v{vL16}, {srd(SWS)}, s{sT[0]} offen sc1
s_mov_b64 exec, s[{sT[8]}:{sT[9]}]
buffer_load_dwordx4 {vr(V1[0],4)}, v{vPV}, {srd(SWS)}, s{sT[0]} offen offset:1024 sc1
buffer_load_dwordx4 {vr(V2,4)}, v{vPV}, {srd(SWS)}, s{sT[0]} offen offset:1536 sc1
s_mov_b64 exec, -1
s_waitcnt vmcnt(0)
v_mfma_f32_32x32x16_bf16 {vr(SA,16)}, {vr(KF,4)}, {vr(QB,4)}, {vr(CM,16)}
""")
for e in range(16): a(f"v_exp_f32 v{SA+e}, v{SA+e}")
a(pv(OB, V1[0], SA)); a(pv(OB, V2, SA + 8))
a(f"""
s_add_u32 s{sT[0]}, s{sT[0]}, 2048
s_cmp_lt_u32 s{sT[0]}, {WS_KV + 64*2048}
s_nop 7
s_cbranch_scc1 L_tm2
s_nop 7
v_rcp_f32 v{t0}, v{OB+8}
s_nop 0
v_mul_f32 v{t0}, v{t0}, v{vG}
""")
for j in range(4): a(f"v_pk_mul_f32 {vr(OB+2*j,2)}, {vr(OB+2*j,2)}, {vr(t0,2)} op_sel_hi:[1,0]")
for j in range(4): a(f"v_cvt_pk_bf16_f32 v{OS+j}, v{OB+2*j}, v{OB+2*j+1}")
a(f"v_or_b32 v{OS}, 1, v{OS}")
a("s_branch L_norm\nL_last:")

bad = a.check_branches()
assert not bad, bad

hdr = open(f'cdna_kernels/{NAME}.s.ref').read().split('\n')
head = [l for l in hdr if l.startswith(';') and '@launch' not in l]
body = a.text()
if OPT.get('em16'):
    import re
    L_ = body.split('\n'); o = []; k = 0; cnt = 0
    i0 = [i for i, l in enumerate(L_) if l.startswith('; ---- attention')][0]; i1 = [i for i, l in enumerate(L_) if l.startswith('L_end:')][0]
    itail = [i for i, l in enumerate(L_) if l.startswith('L_s3poll')][0]
    while k < len(L_):
        l = L_[k]
        m = re.match(r'\s*v_mfma_f32_32x32x16_bf16 v\[(64|80|96|112):\d+\], v\[(\d+):\d+\], v\[(\d+):\d+\], v', l)
        if m and i0 < k < i1 and ((k < itail and OPT['em16'] & 3) or (k > itail and OPT['em16'] & 4)):
            d, A, B = int(m.group(1)), int(m.group(2)), int(m.group(3)); cnt += 1
            d1 = d + 4 * ((cnt >> 2) & 3); d2 = d1 if (OPT['em16'] & 1 or k > itail) else d + 4 * (((cnt >> 2) + 1) & 3)
            if k > itail: d1 = d2 = 96 + 4 * ((cnt >> 1) & 7)
            o.append(f"    v_mfma_f32_16x16x32_bf16 {vr(d1,4)}, {vr(A,4)}, {vr(B,4)}, {vr(d1,4)}")
            if k < itail: k += 1; o.append(L_[k])
            o.append(f"    v_mfma_f32_16x16x32_bf16 {vr(d2,4)}, {vr(A ^ 4,4)}, {vr(B ^ (4 if k < itail else 0),4)}, {vr(d2,4)}")
        else: o.append(l)
        k += 1
    body = '\n'.join(o)
if OPT.get('abl'):
    import re
    i0 = body.index('; ---- attention'); i1 = body.index('; ---- the exponentials were taken')
    pat = {1: r'v_mfma_f32_32x32x16_bf16 v\[(64|80|96|112):', 2: r'ds_read_b64_tr_b16', 3: r'buffer_load_dwordx4 v\[(32|36|40|44|48|52|56|60):', 4: r'buffer_load_dwordx4 v(0|158), s\[60:63',
           5: r'v_smfmac', 6: r'ds_read_b128'}[OPT['abl']]
    seg = body[i0:i1].split('\n'); n = 0
    for k, l in enumerate(seg):
        if re.match(r'\s*' + pat, l):
            n += 1
            if n > 8:
                if OPT['abl'] in (3, 4): seg[k] = re.sub(r'(s\[\d+:\d+\]), s\d+', r'\1, s54', l) if OPT['abl'] == 3 else re.sub(r'buffer_load_dwordx4 (v\d+), (s\[\d+:\d+\]), s\d+ offen.*', r'buffer_load_dword v23, \1, \2, s54 offen', l)
                elif OPT['abl'] in (2, 6): seg[k] = '    ds_nop'
                elif OPT['abl'] == 1: seg[k] = '    v_max_u32 v23, v17, v17\n    v_max_u32 v23, v17, v17'
                else: seg[k] = '    v_max_u32 v23, v17, v17\n    v_max_u32 v23, v17, v17\n    v_max_u32 v23, v17, v17'
    if OPT['abl'] == 3: seg = [re.sub(r'buffer_load_dwordx4 v\[\d+:\d+\], (v\d+), (s\[\d+:\d+\]), s54', r'buffer_load_dword v23, \1, \2, s54', l) for l in seg]
    body = body[:i0] + '\n'.join(seg) + body[i1:]
    body = body.replace('s_cbranch_vccnz L_true_max', 's_nop 0')
if OPT.get('jit'):
    import random
    rnd = random.Random(OPT['jit']); o = []; n = 0
    for l in body.split('\n'):
        t = l.strip()
        if (t.startswith(('buffer_store', 'ds_write_b128')) or (o and o[-1].strip() == 's_barrier')) and rnd.random() < 0.5:
            n += 1
            o += [f"    s_cselect_b32 s31, 1, 0", f"    s_add_u32 s30, s2, s{sMW}", f"    s_mul_i32 s30, s30, {rnd.randrange(1 << 20, 1 << 30) | 1}", f"    s_bitcmp1_b32 s30, 27",
                  f"    s_cbranch_scc0 L_jit{n}", f"    s_sleep {rnd.randrange(1, 40)}", f"L_jit{n}:", f"    s_cmp_lg_u32 s31, 0"]
        o.append(l)
    body = '\n'.join(o)
if OPT.get('stm'):
    import re
    body = re.sub(r'(buffer_store_dwordx4 .*s\[52:55\].*) sc1', lambda m: m.group(1) + [' sc1', ' sc1 nt', ' sc0 sc1', ' sc0 sc1 nt'][OPT['stm']], body)
out = "\n".join(head) + f"\n; @launch grid=(256,1,1) block=(512,1,1) lds={LDS_BYTES}\n"
out += f""".amdgcn_target "amdgcn-amd-amdhsa--gfx950"
.text
.globl {NAME}_kernel
.p2align 8
.type {NAME}_kernel,@function
{NAME}_kernel:
{body}
.section .rodata,"a"
.p2align 6
.amdhsa_kernel {NAME}_kernel
  .amdhsa_next_free_vgpr 256
  .amdhsa_next_free_sgpr 102
  .amdhsa_accum_offset 256
  .amdhsa_group_segment_fixed_size 0
  .amdhsa_kernarg_size 104
  .amdhsa_user_sgpr_count 2
  .amdhsa_user_sgpr_kernarg_segment_ptr 1
  .amdhsa_system_sgpr_workgroup_id_x 1
.end_amdhsa_kernel
"""
open(sys.argv[1], 'w').write(out)
print("instructions:", sum(1 for i in a.ins if i.ws), "auto nops:", a.nnop, file=sys.stderr)
```

```python
import sys
sys.path.insert(0, "mb")
from mbl import *

def kern(body, iters, pre="", bx=512, nfv=128):
    s = []
    s.append("s_load_dwordx4 s[4:7], s[0:1], 0")
    s.append("v_lshrrev_b32 v1, 6, v0")
    s.append("v_and_b32 v2, 63, v0")
    s.append("v_readfirstlane_b32 s20, v1")
    s.append("v_lshlrev_b32 v3, 4, v0")
    s.append("v_lshlrev_b32 v4, 4, v2")
    s.append("v_lshlrev_b32 v5, 3, v2")
    s.append("s_waitcnt lgkmcnt(0)")
    for r in range(8, nfv, 4):
        s.append(f"global_load_dwordx4 v[{r}:{r+3}], v3, s[6:7]")
        s.append("v_add_u32 v3, 8192, v3")
        if r % 64 == 60: s.append("s_waitcnt vmcnt(0)")
    s.append("s_waitcnt vmcnt(0)")
    s.append("v_lshlrev_b32 v3, 4, v0")
    for i in range(8):
        s.append(f"ds_write_b128 v3, v[{8+4*i}:{11+4*i}] offset:{i*8192}")
    s.append(pre)
    s.append("s_waitcnt lgkmcnt(0)")
    s.append(f"s_mov_b32 s10, {iters}")
    s.append("s_barrier")
    s.append("s_memtime s[12:13]\ns_memrealtime s[14:15]")
    s.append("s_waitcnt lgkmcnt(0)")
    s.append(".p2align 6\nL_loop:")
    s.append(body)
    s.append("s_sub_u32 s10, s10, 1\ns_cmp_lg_u32 s10, 0\ns_cbranch_scc1 L_loop")
    s.append("s_waitcnt lgkmcnt(0)\ns_barrier")
    s.append("s_memtime s[16:17]\ns_memrealtime s[18:19]")
    s.append("s_waitcnt lgkmcnt(0)")
    s.append("s_sub_u32 s16, s16, s12\ns_sub_u32 s18, s18, s14")
    s.append("s_nop 15\nv_mov_b32 v6, s16\nv_mov_b32 v7, s18")
    s.append("s_lshl_b32 s8, s2, 3\nv_mov_b32 v3, s8")
    s.append("global_store_dwordx2 v3, v[6:7], s[4:5]")
    s.append("s_waitcnt vmcnt(0)")
    return wrap("\n".join(s), gx=256, bx=bx, nfv=256, lds=65536, acc=128)

st = {}
def run(tag, body, iters, pre="", data="rand", bx=512, gx=256):
    asm = kern(body, iters, pre, bx)
    co = build(asm, "mb_kernel", 13, "mb_p")
    if DRY:
        print("ok", tag, cl.address_register_problem(co, "mb_kernel")); return
    if not st:
        rng = np.random.default_rng(0)
        x = rng.normal(size=(1 << 20)).astype(np.float32) * 0.5
        u = (x.view(np.uint32) >> 16).astype(np.uint16)
        st['rand'] = cl.DeviceBuffer.from_numpy(u); st['zero'] = cl.DeviceBuffer.from_numpy(u * 0); st['out'] = cl.DeviceBuffer(1 << 16)
    k = cl.AsmKernel(co, "mb_kernel")
    ka = cl.pack_ptr_kernargs([st['out'].ptr, st[data].ptr] + [st['out'].ptr] * 11)
    res = []
    import time
    for it in range(4):
        time.sleep(0.002)
        k.launch((gx, 1, 1), (bx, 1, 1), ka, 65536); sync()
        r = st['out'].to_numpy(np.uint32, (gx, 2)).astype(np.float64)
        res.append((np.median(r[:, 0]), np.median(r[:, 1]) * 10))
    c, t = np.median([x[0] for x in res[1:]]), np.median([x[1] for x in res[1:]])
    print(f"{tag:58s} {data} gx={gx}: {c:8.0f} cyc {t:7.0f} ns  -> {c/t:.2f} GHz   per-body {c/iters:.0f} cyc {t/iters:.1f} ns", flush=True)
    k.unload()

def R(k, b, n): return f"{k}[{b}:{b+n-1}]"
pre = "\n".join(f"v_accvgpr_write_b32 a{r}, v{r}" for r in range(8, 64)) + "\n" + "\n".join(f"v_mov_b32 v{r}, 0\nv_accvgpr_write_b32 a{r}, 0" for r in range(64, 128))
def m32(g, n): return "\n".join(f"v_mfma_f32_32x32x16_bf16 {R('v',64+16*((i//g)%n),16)}, {R('v',8+4*(i%7),4)}, {R('v',36+4*((i*3)%7),4)}, {R('v',64+16*((i//g)%n),16)}" for i in range(32))
def m16(g, n): return "\n".join(f"v_mfma_f32_16x16x32_bf16 {R('v',64+4*((i//g)%n),4)}, {R('v',8+4*(i%7),4)}, {R('v',36+4*((i*3)%7),4)}, {R('v',64+4*((i//g)%n),4)}" for i in range(64))
def mz(): return "\n".join(f"v_mfma_f32_32x32x16_bf16 {R('v',64+16*(i%4),16)}, {R('v',8+4*(i%7),4)}, {R('v',36+4*((i*3)%7),4)}, 0" for i in range(32))
def sm(g, n): return "\n".join(f"v_smfmac_f32_32x32x32_bf16 {R('v',64+16*((i//g)%n),16)}, {R('v',8+4*(i%5),4)}, {R('v',32+8*((i*3)%4),8)}, v7" for i in range(32))
def sm16(g, n): return "\n".join(f"v_smfmac_f32_16x16x64_bf16 {R('v',64+4*((i//g)%n),4)}, {R('v',8+4*(i%5),4)}, {R('v',32+8*((i*3)%4),8)}, v7" for i in range(64))
def l16(): return "\n".join(f"v_mfma_f32_16x16x16_bf16 {R('v',64+4*(i%16),4)}, {R('v',8+2*(i%7),2)}, {R('v',36+2*((i*3)%7),2)}, 0" for i in range(64))
pre += "\nv_mov_b32 v7, 0xdddddddd"
pre += "\n" + "\n".join(f"v_exp_f32 v{r}, v{r}" for r in range(32, 64))
def pat(zero, ones):
    x = pre + f"\ns_mov_b32 exec_lo, {zero:#x}\ns_mov_b32 exec_hi, {zero:#x}\n" + "\n".join(f"v_mov_b32 v{r}, 0" for r in range(8, 32))
    if ones: x += f"\ns_mov_b32 exec_lo, {ones:#x}\ns_mov_b32 exec_hi, {ones:#x}\n" + "\n".join(f"v_mov_b32 v{r}, 0x3f803f80" for r in range(8, 32))
    return x + "\ns_mov_b64 exec, -1"
def mix():
    o = []
    for i in range(11):
        o.append(f"v_smfmac_f32_32x32x32_bf16 {R('v',64+16*(i%2),16)}, {R('v',8+4*((2*i)%5),4)}, {R('v',32+8*((2*i)%4),8)}, v7")
        o.append(f"v_mfma_f32_32x32x16_bf16 {R('v',96+16*(i%2),16)}, {R('a',8+4*(i%7),4)}, {R('a',40+4*(i%2),4)}, 0")
        o.append(f"v_smfmac_f32_32x32x32_bf16 {R('v',80-16*(i%2),16)}, {R('v',8+4*((2*i+1)%5),4)}, {R('v',32+8*((2*i+1)%4),8)}, v7")
    return "\n".join(o)
for rep in range(2):
    for nm, z in (("upper16", 0xffff0000), ("bit0 odd zero", 0xaaaaaaaa), ("bit0 even zero", 0x55555555), ("b0^b1", 0x66666666), ("b0^b2", 0x5a5a5a5a), ("b0^b3", 0x55aa55aa), ("b0^b4", 0x5555aaaa), ("bit1", 0xcccccccc), ("bit1 low", 0x33333333)):
        run("mix " + nm, mix(), 24, pat(z, 0), bx=256)
```

```python
import sys, math, struct
sys.path.insert(0, 'gen')
from asmlib import Asm

NAME = 'gated_mix__grouped_kv_mqa__geglu_ffn__prompt'
OPT = dict(stamp=0, grp=0, force_fb=0, qflag=11, s1=16, b2=22, outm=1, ofast=0,
           p_kv=20, p_kvs=40, p_st=1, p_sts=40, p_fill=160, p_fills=70, p_kv2=390, p_f2=440, p_chk=470, d0=16, dend=32,
           late=0, pk2=1, nearly=1, h0w=24, h1w=30, clw=22, na=1, gend=30, dwt=0, qbar=0, cpf=1, qmode=0, qf=11, exs=1, spf=1, pb=2, pbq0=0, rq=1, rg=1, r1=1, qfirst=0, vlate=0, jearly=5, xsite=5, woe=0, oe=0, tlb=0, rotm=2, rots=12, dxs=3, wt=1, mpf=21, pal=1, qs=2, qe=0, wt2=0, mv64=1, nz=16, sh=4, vsc=0, kq=0, ch1=1, ch2=4, snake=1, gb9=0, chk=1, rota=1, drot=42, kvr=4, oG=576, oK=384, oP=896, oS=448, hst=0, oz=0, eb0=0, lb1=50, lb3=92, lc1=70, jlate=0, s1slp=0, s1w=30, lad=1, gb14=1, gbar=0)
for x in sys.argv[2:]:
    k, v = x.split('='); OPT[k] = int(v)

OPT['oV'] = OPT['oK']; OPT['oC'] = min(OPT['oG'], 448)
def fbits(x): return struct.unpack('<I', struct.pack('<f', x))[0]

WS_KV, WS_G, WS_F1, WS_Q, WS_H, WS_STAMP = 0, 0x20000, 0x30000, 0x300000, 0x500000, 0xC00000
WS_O = WS_Q
WS_F2 = WS_F1 + 8192
WS_SIZE = 0x1000000
CLEAR_WG = 128
WR, EX = 65536, 131072
NSLOT, HALF, RING = 24, 49152, 98304
MERGE = 65536
LDS_BYTES = 163840
SPIN = 0x400000
SX, SWG, SWU, SWQ, SEX, SWS, SDBG, SWD, SWO, SOUT = 32, 36, 40, 44, 48, 52, 56, 60, 64, 92
sW, sTI, sQ, sU, sROT, sXO, sWOF, sMX, sMW, sI, sJ, sROT0 = range(68, 80)
sT = list(range(80, 90))
sEXW, sEXO = 90, 91
sC1 = 96
sF2, sRH, sRING, sOO = 98, 99, 100, 101
sHO, sH1 = 3, 0
sKVM, sKVO, sQA, sGA = sT[3], sT[5], 1, sROT0
sF2R, sF2W = sC1 + 1, sF2
sR = [sRH, 44, 45, 47]
def srd(n): return f"s[{n}:{n+3}]"
def vr(b, n): return f"v[{b}:{b+n-1}]"

vXS0, vXS1, vWS = 1, 2, 3
vST = 4
vXR = [5, 6, 7, 8]
vWR = [9, 10]
vES, vER, vSA = 11, [12, 13], 30
vL16, vLANE = 14, 15
vC0 = 16
vZ = 17
vGT = 18
t0, t1, t2, t3 = 20, 21, 22, 23
vS0, vWS2 = 28, 27
vPV, vPD, vTRP = 29, 0, 31
F = [32, 48]
ACC = [64, 96]
XF = 128
ACCE, WE = 96, 100
GW = 147456
L = vLANE
QA, QB, KF, V2, V1 = 128, 132, 136, 140, [144, 148]
vG, vIDX, vAK, vAV, vKVS = 152, 154, 24, 25, 26
vDR0, vDR1, vH0, vH1 = 159, 160, 161, 162
vDS, vDS1, vF2 = vPD, 158, 163
F2D = 164
vONE = 168
vM = [169, 170, 171, 172]
OA, OB, SA, SB = 176, 192, 208, 224
WF = [240, 248]
HF = [32, 40, 48, 56]
DACC = 64

a = Asm()
CLK = 's_memtime' if OPT['stamp'] == 2 else 's_memrealtime'
def stamp(k, grp=0):
    if grp != OPT['grp'] and k != 11: return
    if OPT['stamp']: a(f"{CLK} s[{4+2*k}:{5+2*k}]")
def mk_srd(n, p, size):
    a(f"s_mov_b32 s{n}, s{p}\ns_mov_b32 s{n+1}, s{p+1}\ns_mov_b32 s{n+2}, {size}\ns_mov_b32 s{n+3}, 0x20000")

PG = 3584
C0 = -2.0 * math.sqrt(2.0 / math.pi) * math.log2(math.e)
C1 = C0 * 0.044715
QS = 0.25 * math.log2(math.e)

a("; Code paths start at fixed offsets inside 4 KiB pages; the alignment padding in front of them is never executed.")
a("s_cmp_ge_u32 s2, 256\ns_cbranch_scc1 L_end")
a("s_load_dwordx16 s[4:19], s[0:1], 0\ns_load_dwordx8 s[20:27], s[0:1], 64\ns_load_dwordx2 s[28:29], s[0:1], 96")
if OPT['stamp']: a(f"{CLK} s[30:31]")
def code_prefetch():
    a(f"""
    s_getpc_b64 s[{sT[8]}:{sT[9]}]
    L_pc:
    s_andn2_b32 s{sT[7]}, s2, 7
    s_lshl_b32 s{sT[7]}, s{sT[7]}, 8
    v_lshl_add_u32 v{t2}, v0, 2, s{sT[7]}
    v_mov_b32 v{t3}, 0
    v_min_u32 v{t2}, L_last-L_pc-4, v{t2}
    s_mov_b32 exec_lo, 1
    s_mov_b32 exec_hi, 1
    v_lshl_add_u64 {vr(t2,2)}, {vr(t2,2)}, 0, s[{sT[8]}:{sT[9]}]
    global_load_dword v{vS0}, {vr(t2,2)}, off
    s_mov_b64 exec, -1
    """)
if OPT['cpf'] == 1: code_prefetch()
CH1, CH2 = [0] * 16, [0] * 16
for q_ in range(4):
    if OPT['chk']:
        slow = [r for r in range(7) if (7 * q_ + r) % 4 == 3]; order = slow + [r for r in range(7) if r not in slow]
        CH2[4*q_+3], CH2[4*q_+2], CH2[4*q_+1], CH2[4*q_], CH1[4*q_+1], CH1[4*q_+2], CH1[4*q_+3] = order
    else:
        for u_ in range(4): CH2[4*q_+u_] = 2 * u_; CH1[4*q_+u_] = max(2 * u_ - 1, 0)
def chunk_of(tab, dst, tmp):
    v = sum(x << (4 * i) for i, x in enumerate(tab))
    return f"""s_mov_b32 s{tmp}, {v & 0xffffffff:#x}
s_mov_b32 s{tmp+1}, {v >> 32:#x}
s_lshl2_add_u32 s{dst}, s{sQ}, s{sU}
s_lshl_b32 s{dst}, s{dst}, 2
s_lshr_b64 s[{tmp}:{tmp+1}], s[{tmp}:{tmp+1}], s{dst}
s_and_b32 s{tmp}, s{tmp}, 7
s_mul_i32 s{dst}, s{sQ}, 7
s_add_u32 s{dst}, s{dst}, s{tmp}"""
ROTC = {8: f"s_lshl1_add_u32 s{sROT0}, s{sU}, s{sJ}\ns_and_b32 s{sROT0}, s{sROT0}, 7",
        4: f"s_add_u32 s{sROT0}, s{sU}, s{sJ}\ns_and_b32 s{sROT0}, s{sROT0}, 3\ns_lshl_b32 s{sROT0}, s{sROT0}, 1",
        2: f"s_add_u32 s{sROT0}, s{sU}, s{sJ}\ns_and_b32 s{sROT0}, s{sROT0}, 1\ns_lshl_b32 s{sROT0}, s{sROT0}, 2",
        3: f"s_add_u32 s{sROT0}, s{sU}, s{sJ}\ns_lshl_b32 s{sROT0}, s{sROT0}, 1\ns_lshr_b32 s{sROT0}, 0x124924, s{sROT0}\ns_and_b32 s{sROT0}, s{sROT0}, 3\ns_mul_i32 s{sROT0}, s{sROT0}, 3",
        1: f"s_mov_b32 s{sROT0}, 0"}[OPT['rotm']]
if OPT['rots']:
    ROTC += f"\ns_bfe_u32 s{sQ}, s2, 0x20001\ns_mul_i32 s{sT[1]}, s{sQ}, {OPT['rots'] // 10}\ns_add_u32 s{sROT0}, s{sROT0}, s{sT[1]}\ns_mul_i32 s{sT[1]}, s{sT[2]}, {OPT['rots'] % 10}\ns_add_u32 s{sROT0}, s{sROT0}, s{sT[1]}\n" + (f"s_add_u32 s{sROT0}, s{sROT0}, {OPT['rota']}\n" if OPT['rota'] else "") + f"s_and_b32 s{sROT0}, s{sROT0}, 7"
a(f"""
v_readfirstlane_b32 s{sW}, v0
v_lshrrev_b32 v{t1}, 4, v0
v_lshrrev_b32 v{t0}, 3, v0
v_xor_b32 v{t1}, v0, v{t1}
s_lshr_b32 s{sU}, s2, 6
s_bfe_u32 s{sJ}, s2, 0x30003
v_and_b32 v{t1}, 7, v{t1}
s_and_b32 s{sT[2]}, s2, 1
s_lshl3_add_u32 s{sTI}, s{sT[2]}, s{sJ}
v_lshlrev_b32 v{t1}, 4, v{t1}
{ROTC}
v_lshl_add_u32 v{vXS0}, v{t0}, 10, v{t1}
s_lshl_b32 s{sT[0]}, s{sTI}, 17
s_lshl_b32 s{sXO}, s{sROT0}, 7
s_add_u32 s{sXO}, s{sXO}, s{sT[0]}
s_lshl_b32 s{sMW}, s{sW}, 4
s_mov_b32 m0, s{sMW}
s_mov_b32 s{SX+2}, {2048*1024}
s_mov_b32 s{SX+3}, 0x20000
""")
a(f"""
s_bfe_u32 s{sT[1]}, s{sW}, 0x10006
s_lshl_b32 s{sT[1]}, s{sT[1]}, 2
v_and_or_b32 v{t1}, v{t0}, 2, s{sT[1]}
s_bfe_u32 s{sQ}, s2, 0x20001
v_xor_b32 v{t1}, v0, v{t1}
{chunk_of(CH1, sT[1], sT[4])}
v_and_b32 v{t1}, 7, v{t1}
s_lshl_b32 s{sT[2]}, s{sQ}, 1
s_movk_i32 s{sT[3]}, {PG}
v_lshlrev_b32 v{vWS2}, 4, v{t1}
s_mov_b32 s{SWG+3}, 0x20000
s_mov_b32 s{SWU+3}, 0x20000
s_cmp_eq_u32 s{sU}, 0
s_cselect_b32 s{sT[1]}, s{sT[2]}, s{sT[1]}
s_cselect_b32 s{sT[3]}, 1024, s{sT[3]}
s_cselect_b32 s{sT[2]}, 128, 0
v_mad_u32_u24 v{vWS}, v{t0}, s{sT[3]}, v{vWS2}
s_lshl_b32 s{SWG+2}, s{sT[3]}, 9
s_mov_b32 s{SWU+2}, s{SWG+2}
s_mul_i32 s{sWOF}, s{sROT0}, s{sT[3]}
s_lshl1_add_u32 s{sWOF}, s{sT[1]}, s{sWOF}
s_lshl_b32 s{sWOF}, s{sWOF}, 6
s_cmp_eq_u32 s{sU}, 0
{CLK + ' s[84:85]' if OPT['grp'] == 5 else ''}
s_waitcnt lgkmcnt(0)
{CLK + ' s[86:87]' if OPT['grp'] == 5 else ''}
s_mov_b64 s[{SX}:{SX+1}], s[4:5]
s_cselect_b64 s[{SWG}:{SWG+1}], s[6:7], s[16:17]
s_cselect_b64 s[{SWU}:{SWU+1}], s[6:7], s[18:19]
""")
def first_stage(x0, x1, xstep, wstep):
    a(f"""
    buffer_load_dwordx4 v{x0}, {srd(SX)}, s{sXO} offen lds
    s_add_u32 m0, s{sMW}, {WR}
    s_add_u32 s{sXO}, s{sXO}, {xstep}
    buffer_load_dwordx4 v{vWS}, {srd(SWG)}, s{sWOF} offen lds
    s_add_u32 m0, s{sMW}, {WR + 8192}
    s_add_u32 s{sWOF}, s{sWOF}, {wstep}
    buffer_load_dwordx4 v{vWS}, {srd(SWU)}, s{sWOF} offen lds
    s_add_u32 m0, s{sMW}, 8192
    s_nop 0
    buffer_load_dwordx4 v{x1}, {srd(SX)}, s{sXO} offen lds
    """)
if OPT['qfirst']: a("s_cbranch_scc0 L_late")
first_stage(vXS0, vXS0, 65536, f"s{sT[2]}")
if OPT['wt']:
    assert not OPT['qfirst']
    a(f"""
    s_lshr_b32 s{sT[4]}, s{sW}, 7
    s_lshr_b32 s{sT[5]}, s{sJ}, 1
    s_cmp_lg_u32 s{sT[4]}, s{sT[5]}
    s_cbranch_scc1 L_nowt
    s_add_u32 s{sT[4]}, s{sROT0}, 1
    s_and_b32 s{sT[4]}, s{sT[4]}, 7
    s_mul_i32 s{sT[4]}, s{sT[4]}, s{sT[3]}
    s_lshl1_add_u32 s{sT[4]}, s{sT[1]}, s{sT[4]}
    s_lshl_b32 s{sT[4]}, s{sT[4]}, 6
    buffer_load_dword v32, v{vWS}, {srd(SWG)}, s{sT[4]} offen
    s_add_u32 s{sT[4]}, s{sT[4]}, s{sT[2]}
    buffer_load_dword v33, v{vWS}, {srd(SWU)}, s{sT[4]} offen
    L_nowt:
    """)
if OPT['qfirst']: a("L_late:")
if OPT['grp'] == 5: a(f"{CLK} s[88:89]\ns_waitcnt lgkmcnt(0)\ns_mov_b32 s4, s84\ns_mov_b32 s14, s86\ns_mov_b32 s5, s88")
a(f"""
s_lshr_b32 s{sW}, s{sW}, 6
v_add_u32 v{vXS0}, s{sT[0]}, v{vXS0}
v_add_u32 v{vXS1}, 0x10000, v{vXS0}
s_sub_u32 s{sXO}, s{sXO}, s{sT[0]}
s_mov_b32 s{sH1}, s{sT[1]}
s_lshl_b32 s{sT[1]}, s{sT[1]}, 7
s_sub_u32 s{sWOF}, s{sWOF}, s{sT[1]}
v_add_u32 v{vWS}, s{sT[1]}, v{vWS}
s_movk_i32 s{sT[3]}, {PG}
v_mad_u32_u24 v{vWS2}, v{t0}, s{sT[3]}, v{vWS2}
{chunk_of(CH2, sHO, sT[4])}
s_lshl_b32 s{sT[1]}, s{sHO}, 7
v_add_u32 v{vWS2}, s{sT[1]}, v{vWS2}
v_and_b32 v{L}, 63, v0
v_lshlrev_b32 v{vL16}, 4, v{L}
s_and_b32 s{sT[0]}, s2, 7
s_lshl2_add_u32 s{sI}, s{sT[0]}, s{sU}
s_add_u32 s{sROT}, s{sROT0}, 1
s_and_b32 s{sROT}, s{sROT}, 7
s_lshl_b32 s{sMX}, s{sW}, 11
""")
def late_loads(k):
    if OPT['qfirst'] != k: return
    a(f"s_cmp_eq_u32 s{sU}, 0\ns_cbranch_scc1 L_early")
    first_stage(vXS0, vXS1, 0, 0)
    a("L_early:")
late_loads(1)
def dispatch():
    a(f"""
    s_lshr_b32 s{sT[1]}, s{sW}, 2
    s_lshl1_add_u32 s{sT[0]}, s{sU}, s{sT[1]}
    s_lshr_b32 s{sT[1]}, s{sQ}, 1
    s_lshl1_add_u32 s{sT[0]}, s{sT[0]}, s{sT[1]}
    s_cmp_eq_u32 s{sT[0]}, 0
    s_cbranch_scc1 L_pathK
    s_cmp_eq_u32 s{sT[0]}, 1
    s_cbranch_scc1 L_pathV
    s_cmp_lt_u32 s{sT[0]}, 4
    s_cbranch_scc1 L_pathP
    s_cmp_eq_u32 s{sT[0]}, 4
    s_cbranch_scc1 L_pathS
    s_add_u32 s{sT[0]}, s{sMW}, s2
    s_cmp_eq_u32 s{sT[0]}, {CLEAR_WG + 1024}
    s_cbranch_scc1 L_pathC
    """)

PATH = ['G']
def wslot(sig):
    if sig < 8: return WR + (sig & 3) * 16384
    if sig >= 14: return EX + (sig - 14) * 16384
    return (0 if sig & 1 else WR) + ((sig - 8) >> 1) * 16384
def waddr(sig, b):
    return {0: vXR[b], 1: vWR[b], 2: vXR[2 + b]}[wslot(sig) >> 16]

def dma_ops(sig, path):
    p = sig >> 3
    isq = (path in 'KVP' and p == 0)
    pitch = 1024 if isq else PG
    sa, sb = (SWQ, SWQ) if isq else (SWG, SWU)
    xs, ws = (sig & 3) * 16384, wslot(sig)
    pre = f"s_mul_i32 s{sWOF}, s{sROT}, {64*pitch}\n"
    mid = f"s_add_u32 s{sWOF}, s{sWOF}, 128\n" if isq else ""
    inc, wrap = f"s_add_u32 s{sROT}, s{sROT}, 1\n", f"s_and_b32 s{sROT}, s{sROT}, 7\n"
    vw = vWS2 if p == 1 else vWS
    wa = f"s_add_u32 m0, s{sMW}, {ws}\n{{}}buffer_load_dwordx4 v{vw}, {srd(sa)}, s{sWOF} offen lds"
    wb = f"s_add_u32 m0, s{sMW}, {ws+8192}\n{{}}buffer_load_dwordx4 v{vw}, {srd(sb)}, s{sWOF} offen lds"
    if p == 0:
        return [f"s_add_u32 m0, s{sMW}, {xs}\ns_lshl_b32 s{sXO}, s{sROT}, 7\nbuffer_load_dwordx4 v{vXS0}, {srd(SX)}, s{sXO} offen lds",
                wa.format(pre), wb.format(mid + inc),
                f"s_add_u32 m0, s{sMW}, {xs+8192}\n{wrap}buffer_load_dwordx4 v{vXS1}, {srd(SX)}, s{sXO} offen lds"]
    return [wa.format(pre), wb.format(inc + wrap)]

DROT = {8: f"s_mul_i32 s{sRH}, s{sJ}, 7\ns_lshr_b32 s{sRH}, s{sRH}, 2\ns_mul_i32 s{sT[1]}, s{sU}, 7\ns_lshr_b32 s{sT[1]}, s{sT[1]}, 1\ns_add_u32 s{sRH}, s{sRH}, s{sT[1]}",
        4: f"s_add_u32 s{sRH}, s{sJ}, s{sU}\ns_and_b32 s{sRH}, s{sRH}, 3\ns_mul_i32 s{sRH}, s{sRH}, 7\ns_lshr_b32 s{sRH}, s{sRH}, 1",
        2: f"s_add_u32 s{sRH}, s{sJ}, s{sU}\ns_and_b32 s{sRH}, s{sRH}, 1\ns_mul_i32 s{sRH}, s{sRH}, 7",
        42: f"s_lshl1_add_u32 s{sRH}, s{sJ}, s{sU}\ns_and_b32 s{sRH}, s{sRH}, 3\ns_mul_i32 s{sRH}, s{sRH}, 7\ns_lshr_b32 s{sRH}, s{sRH}, 1"}[OPT['drot']]
def setup_common():
    mk_srd(SWS, 28, WS_SIZE)
    if OPT.get('wso'): a(f"s_add_u32 s{SWS}, s{SWS}, {OPT['wso'] << 20}\ns_addc_u32 s{SWS+1}, s{SWS+1}, 0")
    mk_srd(SDBG, 26, 256); mk_srd(SWD, 20, 1792 * 1024); mk_srd(SWO, 12, 512 * 1024); mk_srd(SOUT, 24, 2048 * 1024)
    late_loads(2)
    a(f"""
    s_and_b32 s{sT[0]}, s{sW}, 3
    s_lshr_b32 s{sT[1]}, s{sW}, 2
    s_xor_b32 s{sT[5]}, s{sT[1]}, s{sQ}
    s_and_b32 s{sT[5]}, s{sT[5]}, 1
    s_lshl1_add_u32 s{sT[0]}, s{sT[0]}, s{sT[5]}
    s_lshl_b32 s{sT[0]}, s{sT[0]}, 11
    v_and_b32 v{t0}, 15, v{L}
    v_bfe_u32 v{t1}, v{L}, 1, 3
    v_lshrrev_b32 v{t2}, 4, v{L}
    v_xor_b32 v{t1}, v{t1}, v{t2}
    v_lshlrev_b32 v{t1}, 4, v{t1}
    v_lshl_add_u32 v{t1}, v{t0}, 7, v{t1}
    v_add_u32 v{vXR[0]}, s{sT[0]}, v{t1}
    v_xor_b32 v{vXR[1]}, 0x800, v{vXR[0]}
    v_xor_b32 v{vXR[2]}, 64, v{vXR[0]}
    v_xor_b32 v{vXR[3]}, 64, v{vXR[1]}
    s_lshl_b32 s{sT[2]}, s{sT[5]}, 8
    v_xor_b32 v{vST}, s{sT[2]}, v{vL16}
    """)
    a(f"""
    v_lshrrev_b32 v{t3}, 5, v{L}
    v_lshrrev_b32 v{t0}, 1, v{L}
    v_lshlrev_b32 v{vPV}, 4, v{t0}
    """)
    late_loads(3)
    a(f"""
    v_bfe_u32 v{t0}, v{L}, 2, 2
    v_lshl_add_u32 v{t1}, v{t2}, 3, v{t0}
    v_lshlrev_b32 v{t1}, 7, v{t1}
    v_bfe_u32 v{t2}, v{L}, 3, 2
    s_lshl_b32 s{sT[1]}, s{sT[1]}, 1
    v_xor_b32 v{t2}, s{sT[1]}, v{t2}
    v_lshl_add_u32 v{t1}, v{t2}, 5, v{t1}
    v_and_b32 v{t2}, 3, v{L}
    v_lshl_add_u32 v{t1}, v{t2}, 3, v{t1}
    v_add_u32 v{vWR[0]}, {WR}, v{t1}
    v_xor_b32 v{vWR[1]}, 32, v{vWR[0]}
    """)
    a(f"""
    v_lshl_add_u32 v{t3}, v{t3}, 3, v{t0}
    v_lshlrev_b32 v{t3}, 7, v{t3}
    v_lshrrev_b32 v{t0}, 1, v{t0}
    v_lshl_add_u32 v{t3}, v{t0}, 6, v{t3}
    v_lshl_add_u32 v{t3}, v{t2}, 3, v{t3}
    v_bfe_u32 v{t2}, v{L}, 4, 1
    v_lshl_add_u32 v{vTRP}, v{t2}, 5, v{t3}
    v_lshlrev_b32 v{t2}, 2, v{t2}
    v_and_b32 v{t1}, 7, v{L}
    v_xor_b32 v{t1}, v{t1}, v{t2}
    v_lshlrev_b32 v{t1}, 4, v{t1}
    v_lshrrev_b32 v{t0}, 3, v{L}
    v_lshl_add_u32 v{t0}, v{t0}, 10, v{t1}
    s_lshl_b32 s{sT[0]}, s{sJ}, 7
    v_add_u32 v{vPD}, s{sT[0]}, v{t0}
    v_mov_b32 v{vZ}, 0
    v_mov_b32 v{vC0}, {fbits(C0):#x}
    s_mov_b32 s{sC1}, {fbits(C1):#x}
    """)
    late_loads(4)
    a(f"""
    s_lshr_b32 s{sT[3]}, s{sW}, 2
    s_and_b32 s{sT[1]}, s{sW}, 3
    s_lshl2_add_u32 s{sT[0]}, s{sTI}, s{sT[1]}
    s_lshl_b32 s{sT[8]}, s{sT[0]}, 5
    s_and_b32 s{sT[2]}, s{sT[0]}, 15
    s_lshr_b32 s{sT[0]}, s{sT[0]}, 4
    s_mul_i32 s{sT[0]}, s{sT[0]}, 112
    s_lshl1_add_u32 s{sT[0]}, s{sT[3]}, s{sT[0]}
    s_lshl4_add_u32 s{sT[0]}, s{sT[0]}, s{sT[2]}
    s_lshl_b32 s{sT[0]}, s{sT[0]}, 10
    s_add_u32 s{sT[0]}, s{sT[0]}, {WS_H}
    s_lshl_b32 s{sHO}, s{sHO}, 16
    s_add_u32 s{sHO}, s{sHO}, s{sT[0]}
    s_lshl_b32 s{sH1}, s{sH1}, 16
    s_add_u32 s{sH1}, s{sH1}, s{sT[0]}
    s_lshl3_add_u32 s{sT[4]}, s{sQ}, s{sT[8]}
    s_lshl1_add_u32 s{sT[4]}, s{sT[3]}, s{sT[4]}
    s_lshl_b32 s{sT[4]}, s{sT[4]}, 10
    s_lshl2_add_u32 s{sF2}, s{sTI}, s{sQ}
    s_lshl_b32 s{sF2}, s{sF2}, 5
    s_add_u32 s{sF2}, s{sF2}, s{sU}
    s_lshl_b32 s{sF2}, s{sF2}, 2
    s_add_u32 s{sF2}, s{sF2}, {WS_F2}
    s_lshl1_add_u32 s{sT[1]}, s{sI}, s{sT[3]}
    s_lshl3_add_u32 s{sT[2]}, s{sT[1]}, s{sJ}
    s_and_b32 s{sT[1]}, s{sW}, 3
    s_lshl2_add_u32 s{sT[2]}, s{sT[2]}, s{sT[1]}
    s_lshl_b32 s{sOO}, s{sT[2]}, 10
    s_lshl_b32 s{sRING}, s{sW}, 13
    s_add_u32 s{sRING}, s{sRING}, {RING}
    {DROT}
    s_and_b32 s{sT[1]}, s2, {OPT['dxs']}
    s_add_u32 s{sRH}, s{sRH}, s{sT[1]}
    s_cmp_ge_u32 s{sRH}, 14
    s_cselect_b32 s{sT[1]}, 14, 0
    s_sub_u32 s{sRH}, s{sRH}, s{sT[1]}
    s_lshl_b32 s{sRH}, s{sRH}, 14
    s_mul_i32 s{sT[1]}, s{sW}, {14*16384}
    s_add_u32 s{SWD}, s{SWD}, s{sT[1]}
    s_addc_u32 s{SWD+1}, s{SWD+1}, 0
    s_sub_u32 s{SWD+2}, s{SWD+2}, s{sT[1]}
    s_lshl_b32 s{sT[1]}, s{sW}, 16
    s_add_u32 s{SWO}, s{SWO}, s{sT[1]}
    s_addc_u32 s{SWO+1}, s{SWO+1}, 0
    s_sub_u32 s{SWO+2}, s{SWO+2}, s{sT[1]}
    """)

def setup_path(P):
    if P in 'GC' and OPT['mpf']:
        a(f"""
        s_cmp_eq_u32 s{sU}, 2
        s_cselect_b64 s[{SEX}:{SEX+1}], s[{SWD}:{SWD+1}], s[{SWO}:{SWO+1}]
        s_cselect_b32 s{SEX+2}, s{SWD+2}, s{SWO+2}
        s_cselect_b32 s{sT[0]}, 28, 8
        s_mov_b32 s{SEX+3}, 0x20000
        s_cmp_eq_u32 s{sU}, 1
        s_cselect_b32 s{SEX+2}, 0, s{SEX+2}
        s_and_b32 s{sT[1]}, s2, 63
        s_mul_i32 s{sT[1]}, s{sT[1]}, s{sT[0]}
        s_sub_u32 s{sT[0]}, s{sT[0]}, 1
        v_min_u32 v{vES}, s{sT[0]}, v{L}
        v_add_lshl_u32 v{vES}, v{vES}, s{sT[1]}, 7
        """)
    if P in 'KV':
        a(f"""
        v_lshrrev_b32 v{t2}, 4, v{L}
        v_and_b32 v{t0}, 15, v{L}
        v_lshlrev_b32 v{t1}, 3, v{t0}
        v_lshl_add_u32 v{t1}, v{t2}, 8, v{t1}
        v_and_b32 v{t3}, 1, v{t2}
        v_lshl_add_u32 v{t1}, v{t3}, 7, v{t1}
        v_add_u32 v{vER[0]}, {EX}, v{t1}
        v_xor_b32 v{vER[1]}, 0x80, v{vER[0]}
        v_lshlrev_b32 v{t1}, 7, v{t3}
        v_xor_b32 v{vES}, v{t1}, v{vL16}
        s_add_u32 s{sEXO}, s{sW}, s{sROT0}
        s_and_b32 s{sEXO}, s{sEXO}, 7
        s_lshl_b32 s{sEXO}, s{sEXO}, 11
        s_lshr_b32 s{sEXW}, s{sT[4]}, 15
        v_lshrrev_b32 v{t2}, 1, v{t2}
        """)
        if P == 'K':
            a(f"""
            s_lshl3_add_u32 s{sEXW}, s{sEXW}, s{sT[5]}
            s_lshl_b32 s{sEXW}, s{sEXW}, 8
            v_lshlrev_b32 v{t2}, 9, v{t2}
            """)
        else:
            a(f"""
            s_lshl2_add_u32 s{sEXW}, s{sEXW}, s{sT[5]}
            s_lshl_b32 s{sEXW}, s{sEXW}, 9
            s_add_u32 s{sEXW}, s{sEXW}, 1024
            v_lshlrev_b32 v{t2}, 8, v{t2}
            v_and_b32 v{t0}, 1, v{L}
            v_bfe_u32 v{t1}, v{L}, 1, 2
            v_lshl_add_u32 v{t0}, v{t1}, 2, v{t0}
            v_bfe_u32 v{t1}, v{L}, 3, 1
            v_lshl_add_u32 v{t0}, v{t1}, 1, v{t0}
            """)
        a(f"""
        v_lshl_add_u32 v{t2}, v{t0}, 4, v{t2}
        v_lshl_add_u32 v{vSA}, v{t3}, 3, v{t2}
        """)
    if P == 'P':
        a(f"""
        v_bfe_u32 v{t1}, v{L}, 4, 1
        v_lshlrev_b32 v{t1}, 7, v{t1}
        v_xor_b32 v{vES}, v{t1}, v{vL16}
        s_add_u32 s{sEXO}, s{sW}, s{sROT0}
        s_and_b32 s{sEXO}, s{sEXO}, 7
        s_lshl_b32 s{sEXO}, s{sEXO}, 11
        """)
    if P == 'S':
        a(f"""
        s_lshl_b32 s{sEXO}, s{sROT0}, 7
        v_add_u32 v{vES}, s{sEXO}, v{vL16}
        v_and_b32 v{vES}, 0x3ff, v{vES}
        v_and_b32 v{t0}, 48, v{L}
        v_add_u32 v{vER[0]}, {GW}, v{t0}
        v_and_b32 v{t0}, 15, v{L}
        v_lshlrev_b32 v{vSA}, 2, v{t0}
        s_lshr_b32 s{sEXW}, s{sT[4]}, 15
        s_lshl1_add_u32 s{sEXW}, s{sEXW}, s{sT[5]}
        s_lshl_b32 s{sEXW}, s{sEXW}, 6
        s_add_u32 s{sEXW}, s{sEXW}, {WS_G}
        """)

def plan(c):
    run = OPT['ch1'] if c < 16 else OPT['ch2']
    if run == 1: return [(c, i) for i in range(4)]
    if run == 2: return [((c & ~1) + j, 2 * (c & 1) + p) for p in range(2) for j in range(2)]
    return [((c & ~3) + k, c & 3) for k in range(4)]
def x_reads(c):
    ks = [c] if OPT['ch1'] == 1 else ([] if c & 1 else [c, c + 1])
    return [f"ds_read_b128 {vr(XF + 8*k + 4*tq, 4)}, v{vXR[2*(k&1)+tq]} offset:{((k >> 1) & 3) * 16384}" for k in ks for tq in range(2)]
def w_reads(c):
    out = []
    for n, (k, i) in enumerate(plan(c)):
        sig, j, b, part = k >> 1, k & 1, i >> 1, i & 1
        off = (wslot(sig) & 0xffff) + part * 8192 + j * 4096
        out += [f"ds_read_b64_tr_b16 {vr(F[c&1] + 4*n + 2*e, 2)}, v{waddr(sig, b)} offset:{off + e*512}" for e in range(2)]
    return out
def e_steps(c):
    c0 = 2 * OPT['exs']
    if PATH[0] in 'KVS': return [2 * (c - c0), 2 * (c - c0) + 1] if c0 <= c < 2 * c0 else ([c] if 2 * c0 <= c < 16 else [])
    return []
def e_buf(c, i): return WE + 16 + 4 * i if (PATH[0] == 'S' and c == 15) else WE + 8 * (c & 1) + 4 * i
def e_reads(c):
    if PATH[0] == 'S':
        cs = [] if c == 15 else ([14, 15] if c == 14 else [c])
        return [f"ds_read_b128 {vr(e_buf(x, i), 4)}, v{vER[0]} offset:{k*64}" for x in cs for i, k in enumerate(e_steps(x))]
    return [f"ds_read_b64_tr_b16 {vr(e_buf(c, i) + 2*e, 2)}, v{vER[e]} offset:{k*1024}" for i, k in enumerate(e_steps(c)) for e in range(2)]
def e_mfmas(c):
    out = []
    for i, k in enumerate(e_steps(c)):
        acc, w, x = vr(ACCE, 4), vr(e_buf(c, i), 4), vr(XF + 8 * k, 4)
        A, B = (x, w) if PATH[0] == 'V' else (w, x)
        out.append(f"v_mfma_f32_16x16x32_bf16 {acc}, {A}, {B}, {'0' if k == 0 else acc}")
    return out
def mfmas(sig, j):
    c = 2 * sig + j
    pl = plan(c); out = []
    for i in sorted({i for k, i in pl}):
        for tq in range(2):
            seq = [(n, k) for n, (k, t) in enumerate(pl) if t == i]
            if tq == 1 and OPT['snake'] and not any((k & 15) == 0 for n, k in seq): seq.reverse()
            for n, k in seq:
                d = vr(ACC[c >> 4] + 8 * i + 4 * tq, 4)
                out.append(f"v_mfma_f32_16x16x32_bf16 {d}, {vr(F[c&1] + 4*n, 4)}, {vr(XF + 8*(k & 15) + 4*tq, 4)}, {'0' if (k & 15) == 0 else d}")
    return out

def gelu_pair(base, j, T=vGT, pk=False):
    G = vr(base + 2 * j, 2); U = vr(base + 8 + 2 * j, 2); TT = vr(T, 2)
    g0, g1, u0, u1 = base + 2 * j, base + 2 * j + 1, base + 8 + 2 * j, base + 9 + 2 * j
    if pk:
        return [f"v_pk_mul_f32 {TT}, {G}, {G}",
                f"v_pk_fma_f32 {TT}, {TT}, s[{sC1}:{sC1+1}], {vr(vC0,2)} op_sel_hi:[1,0,0]",
                f"v_pk_mul_f32 {TT}, {TT}, {G}",
                f"v_exp_f32 v{T}, v{T}", f"v_exp_f32 v{T+1}, v{T+1}",
                f"v_pk_mul_f32 {G}, {G}, {U}",
                f"v_pk_add_f32 {TT}, {TT}, 1.0 op_sel_hi:[1,0]",
                f"v_rcp_f32 v{T}, v{T}", f"v_rcp_f32 v{T+1}, v{T+1}",
                f"v_pk_mul_f32 {G}, {G}, {TT}",
                f"v_cvt_pk_bf16_f32 v{base+j}, v{g0}, v{g1}"]
    return [f"v_mul_f32 v{T}, v{g0}, v{g0}", f"v_mul_f32 v{T+1}, v{g1}, v{g1}",
            f"v_fma_f32 v{T}, v{T}, s{sC1}, v{vC0}", f"v_fma_f32 v{T+1}, v{T+1}, s{sC1}, v{vC0}",
            f"v_mul_f32 v{T}, v{T}, v{g0}", f"v_mul_f32 v{T+1}, v{T+1}, v{g1}",
            f"v_exp_f32 v{T}, v{T}", f"v_exp_f32 v{T+1}, v{T+1}",
            f"v_mul_f32 v{g0}, v{g0}, v{u0}", f"v_add_f32 v{T}, 1.0, v{T}", f"v_add_f32 v{T+1}, 1.0, v{T+1}",
            f"v_rcp_f32 v{T}, v{T}", f"v_rcp_f32 v{T+1}, v{T+1}",
            f"v_mul_f32 v{g1}, v{g1}, v{u1}",
            f"v_mul_f32 v{g0}, v{g0}, v{T}", f"v_mul_f32 v{g1}, v{g1}, v{T+1}",
            f"v_cvt_pk_bf16_f32 v{base+j}, v{g0}, v{g1}"]
def to_frag(base):
    return [f"v_permlane16_swap_b32 v{base}, v{base+2}", f"v_permlane16_swap_b32 v{base+1}, v{base+3}"]

def cost(x):
    c = 0
    for l in x.strip().split('\n'):
        l = l.strip()
        if not l or l.startswith(';') or l.endswith(':'): continue
        c += 8 if l.startswith(('v_exp', 'v_rcp')) else (OPT.get('vmc', 16) if l.startswith('buffer_') else 4)
    return c

kvtok = {}
def kv_step(m):
    slot = (4 * m % NSLOT) * 2048
    if m == 0: x = f"s_mov_b32 m0, s{sKVM}\ns_nop 0\n"
    else: x = f"s_add_u32 s{sKVO}, s{sKVO}, 8192\ns_add_u32 m0, s{sKVM}, {slot}\ns_and_b32 s{sKVO}, s{sKVO}, 0xffff\n"
    return [x + f"buffer_load_dwordx4 v{vKVS}, {srd(SWS)}, s{sKVO} offen sc1 lds", f"buffer_load_dwordx4 v{vKVS}, {srd(SWS)}, s{sKVO} offen offset:1024 sc1 lds"]
KV_FIRST = 2
def first_loads():
    return [f"buffer_load_dwordx4 {vr(QA,4)}, v{vL16}, {srd(SWS)}, s{sQA} offen sc1\ns_xor_b32 s{sQA}, s{sQA}, 1024"] + kv_step(0) + \
           [f"buffer_load_dwordx4 {vr(QB,4)}, v{vL16}, {srd(SWS)}, s{sQA} offen sc1"] + kv_step(1)

KVR = {0: f"s_lshr_b32 s{sT[7]}, s2, 3", 1: f"s_mov_b32 s{sT[7]}, 0", 2: f"s_and_b32 s{sT[7]}, s2, 16", 3: f"s_lshl_b32 s{sT[7]}, s2, 3", 4: f"s_lshl_b32 s{sT[7]}, s2, 2"}[OPT['kvr']]
def setup_early():
    a(f"""
    s_lshr_b32 s{sT[0]}, s{sW}, 2
    s_lshl_b32 s{sT[1]}, s{sT[0]}, 16
    v_add_u32 v{vKVS}, s{sT[1]}, v{vL16}
    s_and_b32 s{sT[1]}, s{sW}, 1
    s_mul_i32 s{sT[1]}, s{sT[1]}, {HALF}
    v_add_u32 v{vAK}, s{sT[1]}, v{vL16}
    v_add_u32 v{vAV}, s{sT[1]}, v{vPV}
    s_mul_i32 s{sT[1]}, s{sT[0]}, {HALF}
    s_and_b32 s{sT[6]}, s{sW}, 3
    s_lshl_b32 s{sT[7]}, s{sT[6]}, 11
    s_add_u32 s{sKVM}, s{sT[7]}, s{sT[1]}
    {KVR}
    s_add_u32 s{sT[6]}, s{sT[6]}, s{sT[7]}
    s_and_b32 s{sT[6]}, s{sT[6]}, 31
    s_lshl_b32 s{sKVO}, s{sT[6]}, 11
    s_add_u32 s{sQA}, s{sOO}, {WS_Q}
    s_xor_b32 s{sQA}, s{sQA}, 1024
    s_lshl1_add_u32 s{sGA}, s{sI}, s{sT[0]}
    s_lshl_b32 s{sGA}, s{sGA}, 7
    s_add_u32 s{sGA}, s{sGA}, {WS_G}
    s_lshr_b32 s{sT[6]}, s{sI}, 3
    s_lshl3_add_u32 s{sT[6]}, s{sT[6]}, s{sW}
    s_mul_i32 s{sT[6]}, s{sT[6]}, {14*16}
    s_and_b32 s{sT[7]}, s{sI}, 7
    s_lshl1_add_u32 s{sT[7]}, s{sT[7]}, s{sT[0]}
    s_add_u32 s{sT[6]}, s{sT[6]}, s{sT[7]}
    s_lshl_b32 s{sT[6]}, s{sT[6]}, 10
    s_add_u32 s{sT[9]}, s{sT[6]}, {WS_H}
    s_lshr_b32 s{sF2R}, s{sI}, 1
    s_lshl_b32 s{sF2R}, s{sF2R}, 9
    s_add_u32 s{sF2R}, s{sF2R}, {WS_F2}
    s_lshl_b32 s{sT[1]}, s{sW}, 24
    s_add_u32 s{sF2W}, s{sF2}, s{sT[1]}
    s_mul_i32 s{sT[6]}, s{sW}, 2304
    s_add_u32 s{sT[6]}, s{sT[6]}, {MERGE}
    s_xor_b32 s{sT[7]}, s{sW}, 1
    s_mul_i32 s{sT[7]}, s{sT[7]}, 2304
    s_add_u32 s{sT[7]}, s{sT[7]}, {MERGE}
    """)
def setup_queue(late=False):
    q = []
    def add(st, txt):
        for l in txt.strip().split('\n'): q.append((st, l.strip().replace('|', '\n')))
    add(11, f"""
    v_and_b32 v{vG}, 31, v{L}
    v_lshlrev_b32 v{vG}, 2, v{vG}
    v_mov_b32 v{vIDX}, 0xdddddddd
    v_mov_b32 v{V2+1}, {(fbits(2.0**OPT['vsc']) >> 16) * 0x10001:#x}
    s_mov_b32 vcc_lo, 0x22|s_mov_b32 vcc_hi, 0x22|v_cndmask_b32 v{V2}, 0, v{V2+1}, vcc
    """)
    if OPT['mv64']:
        add(11, f"v_mov_b32 v{V2+1}, v{V2}")
        for r in range(V2 + 2, V2 + 12, 2): add(11, f"v_mov_b64 {vr(r,2)}, {vr(V2,2)}")
    else:
        for r in range(V2 + 1, V2 + 12): add(11, f"v_mov_b32 v{r}, v{V2}")
    add(12, f"""
    v_add_u32 v{vDR0}, s{sRING}, v{vTRP}
    v_xor_b32 v{vDR1}, 64, v{vDR0}
    v_add_u32 v{vDS1}, 7168, v{vDS}
    v_add_u32 v{vH0}, s{sT[9]}, v{vL16}
    v_xor_b32 v{vH1}, 0x400, v{vH0}
    v_lshlrev_b32 v{vF2}, 7, v{L}
    v_mov_b32 v{vONE}, 1
    v_lshl_add_u32 v{vM[2]}, v{L}, 2, s{sT[6]}
    v_lshl_add_u32 v{vM[3]}, v{L}, 2, s{sT[7]}
    """)
    for st, O in ((13, OA), (14, OB)):
        if OPT['oz']:
            add(st, f"buffer_load_dwordx4 {vr(O,4)}, v{vL16}, {srd(SDBG)}, 0 offen offset:256\nbuffer_load_dwordx4 {vr(O+4,4)}, v{vL16}, {srd(SDBG)}, 0 offen offset:256\nv_mov_b32 v{O+8}, 0")
        elif OPT['mv64']:
            for r in range(0, OPT['nz'], 2): add(st, f"v_mov_b64 {vr(O+r,2)}, 0")
        else:
            for r in range(9): add(st, f"v_mov_b32 v{O+r}, 0")
    if OPT['vlate']:
        cut = [i for i, x in enumerate(q) if x[1].startswith(f"v_and_b32 v{vG}, 31")][0]
        if late: return [x[1] for x in q[cut:]]
        return q[:cut]
    return [] if late else q

cold = []
def s0_check(P):
    a(f"v_cmp_eq_u32 vcc, 0, v{vS0}\ns_cbranch_vccnz L_s0retry{P}\nL_s0done{P}:")
    cold.append(f"""
    L_s0retry{P}:
    s_mov_b32 s{sT[1]}, 0
    L_s0poll{P}:
    buffer_load_dword v{vS0}, v{vZ}, {srd(SDBG)}, 0 offen sc1
    s_add_u32 s{sT[1]}, s{sT[1]}, 1
    s_waitcnt vmcnt(0)
    v_cmp_eq_u32 vcc, 0, v{vS0}
    s_cbranch_vccz L_s0done{P}
    s_cmp_lt_u32 s{sT[1]}, {SPIN}
    s_cbranch_scc1 L_s0poll{P}
    s_branch L_s0done{P}
    """)
def s1_issue(P):
    a(f"s_cmp_lg_u32 s{sW}, 0\ns_cbranch_scc1 L_nopoll0{P}")
    if P in 'GSC': s0_check(P)
    a(f"""
    s_mov_b32 s{sT[1]}, {WS_F1}
    v_lshlrev_b32 v{t1}, 7, v{L}
    buffer_load_dword v{t0}, v{t1}, {srd(SWS)}, s{sT[1]} offen sc1
    L_nopoll0{P}:
    """)
    a.vm -= 1
def s1_check(P):
    a(f"""
    s_cmp_lg_u32 s{sW}, 0
    s_cbranch_scc1 L_s1done{P}
    s_mov_b32 s{sT[0]}, 0
    L_s1poll{P}:
    s_waitcnt vmcnt(0)
    v_cmp_ne_u32 vcc, 1, v{t0}
    s_cbranch_vccz L_s1done{P}
    {'s_sleep ' + str(OPT['s1slp']) if OPT['s1slp'] else ''}
    s_mov_b64 exec, vcc
    buffer_load_dword v{t0}, v{t1}, {srd(SWS)}, s{sT[1]} offen sc1
    s_mov_b64 exec, -1
    s_add_u32 s{sT[0]}, s{sT[0]}, 1
    s_cmp_lt_u32 s{sT[0]}, {SPIN}
    s_cbranch_scc1 L_s1poll{P}
    s_waitcnt vmcnt(0)
    L_s1done{P}:
    """)
    a.vm -= 1

def proj_path(P):
    tok = {}
    PATH[0] = P
    S1 = OPT['s1']
    sched = {s: [s + 2] for s in range(6)}
    ISQ = P in 'KVP'
    PB = OPT['pbq0'] if ISQ else OPT['pb']
    QF = OPT['qf']
    sched.update({6: [8, 9], 7: [10, 11], 8: [12, 13], 9: [14, 15]}); cover = {8: 9, 10: 11, 12: 15}
    if ISQ and OPT['qmode'] == 0:
        del sched[8], sched[9]
        if OPT['qs'] == 0: sched.update({10: [12, 13], 11: [14, 15]}); cover = {8: 9, 10: 11, 12: 13, 14: 15}
        elif OPT['qs'] == 1: sched.update({10: [12], 11: [13], 12: [14], 13: [15]}); cover = {8: 9, 10: 11, 12: 12, 13: 13, 14: 14, 15: 15}
        elif OPT['qs'] == 2: sched.update({10: [12, 13], 12: [14, 15]}); cover = {8: 9, 10: 11, 12: 13, 14: 15}
        elif OPT['qs'] == 3: sched.update({9: [12], 10: [13], 11: [14], 12: [15]}); cover = {8: 9, 10: 11, 12: 13, 14: 15}
    bars = set(range(8)) | set(cover) | {S1}
    assert OPT['ch2'] < 4 or all(cover.get(x, 15) >= x + 1 for x in (8, 10, 12, 14))
    if OPT['gb14']: bars |= {14}
    if OPT['gb9'] and not ISQ: bars |= {9}; cover.update({8: 8, 9: 9})
    if OPT['gbar'] and not ISQ: bars |= set(range(8, 16))
    if ISQ: bars |= {QF} | ({9} if OPT['qmode'] else set()) | (set(range(10, 16)) if OPT['qbar'] else set())
    def dma_groups(sg):
        d = dma_ops(sg, P)
        if ISQ and sg == OPT['exs']:
            d.insert(1, f"""
            s_add_u32 m0, s{sMX}, {EX}
            s_nop 0
            buffer_load_dwordx4 v{vES}, {srd(SEX)}, s{sEXO} offen lds
            buffer_load_dwordx4 v{vES}, {srd(SEX)}, s{sEXO} offen offset:1024 lds
            """)
        if P == 'S' and sg == OPT['exs']:
            d.insert(1, f"s_mov_b32 m0, {GW}\ns_nop 0\nbuffer_load_dwordx4 v{vES}, {srd(SEX)}, 0 offen lds")
        return [(x, sg if k == len(d) - 1 else None) for k, x in enumerate(d)]
    def emit(it):
        if callable(it): return it()
        a(it[0])
        if it[1] is not None: tok[it[1]] = a.lastvm()
    tok[0] = a.lastvm()
    if ISQ: mk_srd(SWQ, 6, 512 * 1024)
    if not OPT['spf']:
        for it in dma_groups(1): emit(it)
    if ISQ: mk_srd(SWG, 16, 512 * PG); mk_srd(SWU, 18, 512 * PG)
    if P in 'KVS': mk_srd(SEX, {'K': 8, 'V': 10, 'S': 22}[P], 1024 if P == 'S' else 16384)
    if P == 'P': a(f"s_cmp_lt_u32 s{sQ}, 2\ns_cselect_b64 s[{SEX}:{SEX+1}], s[8:9], s[10:11]\ns_mov_b32 s{SEX+2}, 16384\ns_mov_b32 s{SEX+3}, 0x20000")
    if OPT['wt2']:
        a(f"""
        s_bitcmp1_b32 s{sJ}, 1
        s_cselect_b64 s[28:29], s[18:19], s[16:17]
        s_lshr_b32 s{sT[0]}, s{sJ}, 2
        s_add_u32 s{sT[0]}, s{sT[0]}, s{sROT0}
        s_and_b32 s{sT[0]}, s{sT[0]}, 7
        s_mul_i32 s{sT[0]}, s{sT[0]}, {64*PG}
        s_add_u32 s28, s28, s{sT[0]}
        s_addc_u32 s29, s29, 0
        """)
    setup_path(P)
    if OPT['grp'] == 5: a("s_mov_b32 s6, s14\ns_mov_b32 s8, s5")
    stamp(3, 5)
    if OPT['spf']:
        for it in dma_groups(1): emit(it)
    stamp(4, 5)
    setup_early()
    if P == 'C':
        ctok = a(f"v_lshlrev_b32 v{t0}, 7, v{L}\ns_mov_b32 s{sT[1]}, {WS_F1}\nbuffer_store_dword v{vZ}, v{t0}, {srd(SWS)}, s{sT[1]} offen sc1")
    win = {c: [] for c in range(33)}
    box = {}; front = {}; pre8 = []; early8 = []; lvl = [3]
    def usable(c):
        return c % 2 == 0 or ((c + 1) // 2) not in bars
    def nxt(c):
        while not usable(c): c += 1
        return c
    if not ISQ:
        gq = []
        for b in range(2):
            for j in range(4): gq += gelu_pair(ACC[0] + 16 * b, j)
            gq += to_frag(ACC[0] + 16 * b)
            if b == 0: n0 = len(gq)
        npre = 17 * (PB - 1) if PB else 0
        pre8 += [(x, None) for j in range(max(PB - 1, 0)) for x in gelu_pair(ACC[0], j, pk=OPT.get('pbk', 0))]
        gq = gq[npre:]; n0 -= npre
        ws = [c for c in range(16, OPT['gend'] + 1) if usable(c)]
        ndma = {16: 2, 17: 2, 18: 4} if 9 not in bars else {16: 4, 18: 4}
        tot = len(gq) + OPT['dwt'] * 8
        done = 0; accw = 0
        for k, c in enumerate(ws):
            accw += OPT['dwt'] * ndma.get(c, 0)
            upto = max(done, tot * (k + 1) // len(ws) - accw)
            win[c] += [(x, None) for x in gq[done:upto]]
            if done < n0 <= upto: c0 = c
            done = upto
        assert done == len(gq)
        for b in range(OPT['nearly']):
            c = nxt(max(OPT[f'h{b}w'], c0 if b == 0 else ws[-1]))
            win[c].append((f"s_add_u32 s{sT[2]}, s{sH1}, {16384*b}\nbuffer_store_dwordx4 {vr(ACC[0]+16*b,4)}, v{vST}, {srd(SWS)}, s{sT[2]} offen sc1", None))
    else:
        qa = [f"s_add_u32 s{sT[8]}, s{sT[4]}, {WS_Q + 4096}\ns_add_u32 s{sT[4]}, s{sT[4]}, {WS_Q}"]
        if P == 'K': qa += [f"v_mul_f32 v{ACCE+r}, {fbits(QS):#x}, v{ACCE+r}" for r in range(4)]
        if P == 'V' and OPT['vsc']: qa += [f"v_mul_f32 v{ACCE+r}, {fbits(2.0**OPT['vsc']):#x}, v{ACCE+r}" for r in range(4)]
        sts = []
        if P in 'KV':
            qa += [f"v_cvt_pk_bf16_f32 v{vGT}, v{ACCE}, v{ACCE+1}", f"v_cvt_pk_bf16_f32 v{vGT+1}, v{ACCE+2}, v{ACCE+3}"]
            sts.append(f"buffer_store_dwordx2 {vr(vGT,2)}, v{vSA}, {srd(SWS)}, s{sEXW} offen sc1")
        if P == 'P':
            sts.append(f"s_and_b32 s{sT[0]}, s{sF2}, 0xffff80\nv_lshlrev_b32 v{t2}, 2, v{L}\ns_mov_b32 exec_hi, 0\nbuffer_store_dword v{vZ}, v{t2}, {srd(SWS)}, s{sT[0]} offen sc1\ns_mov_b32 exec_hi, -1")
        def qcv(i): return [f"v_cvt_pk_bf16_f32 v{ACC[0]+8*i+j}, v{ACC[0]+8*i+2*j}, v{ACC[0]+8*i+2*j+1}" for j in range(4)]
        def qst(i): return to_frag(ACC[0] + 8 * i) + [f"v_and_b32 v{ACC[0]+8*i}, -2, v{ACC[0]+8*i}\nbuffer_store_dwordx4 {vr(ACC[0]+8*i,4)}, v{vST}, {srd(SWS)}, s{sT[8 if i & 1 else 4]} offen offset:{1024*(i>>1)} sc1"]
        mark = [lambda: box.update(q=a.lastvm())]
        T = lambda l: [(x, None) for x in l]
        if OPT['qmode'] == 0 and PB:
            pre8 += T(qa + qcv(0) + qcv(1) + qcv(2) + qcv(3) + [x for i in range(4) for x in qst(i)[:2]])
            if OPT.get('pbq'): pre8 += T(sts + [qst(i)[2] for i in range(4)]) + mark
            else: win[16] += T(sts + [qst(i)[2] for i in range(2)]); win[17] += T([qst(i)[2] for i in range(2, 4)]) + mark
        elif OPT['qmode'] == 0:
            if OPT['qe'] == 0: win[16] += T(qa + sts + qcv(0) + qcv(1) + qst(0) + qst(1)); win[17] += T(qcv(2) + qcv(3) + qst(2) + qst(3)) + mark
            elif OPT['qe'] == 1:
                win[16] += T(qa + sts + qcv(0) + qst(0)); win[17] += T(qcv(1) + qcv(2) + qst(1) + qst(2)); front[18] = T(qcv(3) + qst(3)) + mark
            else:
                win[16] += T(qa + qcv(0) + sts + qcv(1) + qst(0)); win[17] += T(qst(1) + qcv(2) + qcv(3) + qst(2)); front[18] = T(qst(3)) + mark
        elif OPT['qmode'] == 1:
            win[16] += T(qa + qcv(0) + qcv(1)); win[18] += T(sts + qst(0) + qcv(2)); win[20] += T(qcv(3) + qst(1) + qst(2) + qst(3)) + mark
        else:
            win[16] += T(qa + qcv(0) + qcv(1) + qcv(2) + qcv(3)); win[18] += T(sts + qst(0) + qst(1) + qst(2) + qst(3)) + mark
        def qflag():
            assert a.vm_done > box['s0']
            if P != 'P': s0_check(P)
            a(f"""
            s_lshl4_add_u32 s{sT[0]}, s{sQ}, s{sTI}
            s_lshl_b32 s{sT[0]}, s{sT[0]}, 7
            s_add_u32 s{sT[0]}, s{sT[0]}, {WS_F1}
            s_lshl_b32 s{sT[1]}, s{sW}, 24
            s_add_u32 s{sT[0]}, s{sT[0]}, s{sT[1]}
            v_mov_b32 v{t1}, 1
            s_mov_b64 exec, 1
            buffer_store_dword v{t1}, v{vZ}, {srd(SWS)}, s{sT[0]} offen sc1
            s_mov_b64 exec, -1
            """)
        if P != 'P': box['flag'] = qflag
    if P in 'GC' and OPT['mpf']:
        win[OPT['mpf']].insert(0, (f"buffer_load_dword v{vES}, v{vES}, {srd(SEX)}, 0 offen", None))
    if P == 'S':
        gs = [(x, None) for x in (f"v_mul_f32 v{t2}, {fbits(-math.log2(math.e)):#x}, v{ACCE}", f"v_exp_f32 v{t2}, v{t2}", f"v_add_f32 v{t2}, 1.0, v{t2}", f"v_rcp_f32 v{t2}, v{t2}",
                                  f"buffer_store_dword v{t2}, v{vSA}, {srd(SWS)}, s{sEXW} offen sc1")]
        if PB: pre8 += gs
        else: win[16] = gs + win[16]
    queue = setup_queue()
    ws = [c for c in range(21 if ISQ else 20, 2 * S1 - 1) if usable(c)]
    for k, c in enumerate(ws):
        left = [x for x in queue if ({11: 20, 12: 24, 13: 24, 14: 28}[x[0]] if OPT['ch2'] == 4 else 2 * x[0] - 2) <= c]
        take = min(len(left), -(-len(queue) // (len(ws) - k)))
        win[c] += [(x[1], None) for x in left[:take]]; queue = queue[take:]
    assert not queue
    (early8 if OPT['ch2'] == 4 else win[16]).insert(0, (f"v_subrev_u32 v{vXR[0]}, {WR}, v{vWR[0]}\nv_subrev_u32 v{vXR[1]}, {WR}, v{vWR[1]}\nv_add_u32 v{vXR[2]}, {WR}, v{vWR[0]}\nv_add_u32 v{vXR[3]}, {WR}, v{vWR[1]}", None))

    def cluster(c, what='mr'):
        M = mfmas(c >> 1, c & 1) if (c >= 0 and 'm' in what) else []
        em = e_mfmas(c) if M else []
        for i, x in enumerate(em): M.insert(1 + (8 // len(em) + 1) * i if OPT['ch1'] == 1 else 2 + i, x)
        d = c + 1
        R = []
        if d < 32 and 'r' in what:
            if d < 16: R += x_reads(d)
            R += w_reads(d)
            R += e_reads(d)
        a.wait(a.lastlg())
        if M and not OPT['lad']: a("s_setprio 2")
        n = max(len(M), 1); k = 0
        last = n - 1 if (c & 1 or ((c >> 1) + 1) not in bars) else n - 2
        if M: last = min(last, n - 1 - OPT['rq' if ISQ else 'rg'] if c >= 16 else n - 1 - OPT['r1'])
        for i in range(n):
            if M: a(M[i])
            want = len(R) if i >= last else -(-len(R) * (i + 1) // (last + 1))
            while k < want: a(R[k]); k += 1
        if M and not OPT['lad']: a("s_setprio 0")
        if M and OPT['lad'] and lvl[0] > 0 and not (c % 2 == 0 and (c >> 1) + 1 in bars and not (c == 14 and PB)):
            lvl[0] -= 1; a(f"s_setprio {lvl[0]}")

    for sig in range(16):
        if sig == 8:
            for it in early8: emit(it)
        if sig == 8 and PB:
            cluster(15, 'm')
            for it in pre8: emit(it)
        if sig in bars:
            if sig in cover or sig < 8: a.wait(tok[cover.get(sig, sig)])
            if ISQ and sig == QF: a.wait(box['q'])
            if sig == S1 and P != 'P': s1_check(P)
            if OPT['lad']: lvl[0] = 3; a("s_setprio 3")
            a("s_barrier")
            if OPT.get('x_id3') and sig == OPT['x_id3']: a("s_sleep 16")
            if sig == QF and 'flag' in box: box['flag']()
        if sig == 1: stamp(1)
        if sig == 8: stamp(2)
        if sig < 11: stamp(sig, 1)
        if sig < 5: stamp(5 + sig, 5)
        if sig >= 6: stamp(sig - 6, 2)
        D = []
        if P == 'C' and sig == 2:
            assert a.vm_done >= ctok[1]
            win[4].append((f"v_mov_b32 v{t0}, 1\ns_mov_b64 exec, 1\nbuffer_store_dword v{t0}, v{vZ}, {srd(SDBG)}, 0 offen sc1\ns_mov_b64 exec, -1", None))
        for sg in sched.get(sig, []): D += dma_groups(sg)
        if sig == S1: D += [(x, None) for x in first_loads()]
        if sig == (7 if ISQ else 9) and P != 'P':
            def s0_load():
                if not ISQ:
                    a(f"s_cmp_lg_u32 s{sW}, 0\ns_cbranch_scc1 L_nos0l{P}\nbuffer_load_dword v{vS0}, v{vZ}, {srd(SDBG)}, 0 offen sc1\nL_nos0l{P}:")
                    a.vm -= 1
                else:
                    a(f"buffer_load_dword v{vS0}, v{vZ}, {srd(SDBG)}, 0 offen sc1")
                box['s0'] = a.vm
            D.insert(len(D) - 1, s0_load)
        head, mid, tail = [], D, []
        if sig < OPT['late']: mid, tail = [], D
        elif (sig + 1) not in bars: mid, tail = D[:len(D)//2], D[len(D)//2:]
        elif sig in bars and len(D) >= 4: head, mid = D[:OPT['na']], D[OPT['na']:]
        if sig == 6 and OPT['wt2']:
            a(f"global_load_dword v{t3}, v{vWS2}, s[28:29]")
            if OPT['wt2'] == 2: mid = head + mid; head = []
        for it in head: emit(it)
        cluster(2 * sig - 1, 'r' if (sig == 8 and PB) else 'mr')
        if sig == S1 - 1 and P != 'P' and OPT['s1w'] == 30:
            assert a.vm_done > box['s0']
            s1_issue(P)
        for it in front.get(2 * sig, []) + mid + win[2 * sig]: emit(it)
        cluster(2 * sig)
        for it in front.get(2 * sig + 1, []) + tail + win[2 * sig + 1]: emit(it)
    if P != 'P' and OPT['s1w'] == 31: s1_issue(P)
    a.wait(a.lastlg())
    assert not win[32]

setup_common()
if OPT['tlb']:
    a(f"s_cmp_lg_u32 s{sW}, 6\ns_cbranch_scc1 L_notlb")
    if OPT['tlb'] == 1:
        a(f"""
        v_lshlrev_b32 v{t0}, 21, v{L}
        s_mov_b32 s{sT[0]}, 0x80000
        s_mov_b64 exec, 63
        buffer_load_dword v32, v{t0}, {srd(SWS)}, s{sT[0]} offen
        s_mov_b64 exec, 1
        buffer_load_dword v33, v{vZ}, {srd(SWD)}, 0 offen
        buffer_load_dword v34, v{vZ}, {srd(SWO)}, 0 offen
        buffer_load_dword v35, v{vZ}, {srd(SOUT)}, 0 offen
        s_mov_b64 exec, -1
        """)
    else:
        a(f"""
        s_lshr_b32 s{sT[0]}, s2, 3
        s_lshl_b32 s{sT[0]}, s{sT[0]}, 16
        v_lshlrev_b32 v{t0}, 21, v{L}
        s_mov_b64 exec, 63
        buffer_load_dword v32, v{t0}, {srd(SWS)}, s{sT[0]} offen
        s_mov_b64 exec, 1
        v_mov_b32 v{t0}, s{sT[0]}
        v_min_u32 v{t1}, {1792*1024 - 4}, v{t0}
        global_load_dword v33, v{t1}, s[20:21]
        v_min_u32 v{t1}, {512*1024 - 4}, v{t0}
        global_load_dword v34, v{t1}, s[12:13]
        buffer_load_dword v35, v{t0}, {srd(SOUT)}, 0 offen
        s_mov_b64 exec, -1
        """)
    a("L_notlb:")
dispatch()
if OPT['pal']: a(f"s_branch L_pathG\n.p2align 12\n.fill {OPT['oG'] // 4}, 4, 0xbf800000\nL_pathG:")
proj_path('G')
a("L_join:")
a.forget()

JE = OPT['jearly'] and OPT['s1'] == 16
if not JE:
    for m in mfmas(15, 1): a(m)
    a("s_setprio 0")
stamp(3); stamp(10, 2)
def gelu_chunk(k):
    b, jp = k >> 1, k & 1
    g0 = gelu_pair(ACC[1] + 16 * b, 2 * jp, vGT, pk=OPT['pk2']); g1 = gelu_pair(ACC[1] + 16 * b, 2 * jp + 1, t2, pk=OPT['pk2'])
    for x, y in zip(g0, g1):
        a(x); a(y)
    if k == 2:
        for x in to_frag(ACC[1]): a(x)
for k in range(OPT['jlate']): gelu_chunk(k)
stamp(5, 3)
if OPT['s1'] == 16:
    s1_check('J')
    stamp(6, 3)
    a("s_barrier")
    stamp(7, 3)
    fl = first_loads()
    if JE:
        nfirst = OPT['jearly'] - 1
        for x in fl[:nfirst]: a(x)
        for m in mfmas(15, 1): a(m)
        fl = fl[nfirst:]
    for x in fl: a(x)
stamp(4); stamp(8, 3)
fltok = a.lastvm()
HST = OPT['hst']
def hs(k):
    if k >= HST: return
    if k == 0:
        assert OPT['nearly'] == 1
        a(f"s_add_u32 s{sT[2]}, s{sH1}, 16384\ns_cmp_eq_u32 s{sU}, 0\ns_cselect_b32 s{sT[2]}, {WS_SIZE}, s{sT[2]}\nbuffer_store_dwordx4 {vr(ACC[0]+16,4)}, v{vST}, {srd(SWS)}, s{sT[2]} offen sc1")
    else:
        hbox['h'] = a((f"s_add_u32 s{sHO}, s{sHO}, 16384\n" if k == 2 else "") + f"buffer_store_dwordx4 {vr(ACC[1]+16*(k-1),4)}, v{vST}, {srd(SWS)}, s{sHO} offen sc1")
hbox = {}
for k in range(OPT['jlate'], 4 - OPT['eb0']):
    gelu_chunk(k)
    if k == OPT.get('hs0', 1): hs(0)
    if k == 2: hs(1)
if not OPT['eb0']:
    for x in to_frag(ACC[1] + 16): a(x)
for x in setup_queue(True): a(x)
a(f"s_mov_b32 s{sT[8]}, 0x55555555\ns_mov_b32 s{sT[9]}, 0x55555555")
hs(2)
stamp(9, 3)
a.wait(fltok)
a("s_barrier")
if not OPT['eb0']: stamp(5); stamp(10, 3)

SHIFT = f"{OPT['sh']}.0" if OPT['sh'] else "0"
def qk(S, Q, c=None): return f"v_mfma_f32_32x32x16_bf16 {vr(S,16)}, {vr(KF,4)}, {vr(Q,4)}, {SHIFT if c is None else c}"
def pv(O, V, S): return f"v_smfmac_f32_32x32x32_bf16 {vr(O,16)}, {vr(V,4)}, {vr(S,8)}, v{vIDX}"
NT, B1, B2 = 32, 8, OPT['b2']
def rec(t): return (t % NSLOT) * 2048
def rdK(t): return a(f"ds_read_b128 {vr(KF,4)}, v{vAK} offset:{rec(t)}")
def rdV(t2, t1):
    a(f"s_mov_b64 exec, s[{sT[8]}:{sT[9]}]")
    if t2 is not None: a(f"ds_read_b128 {vr(V2,4)}, v{vAV} offset:{rec(t2) + 1536}")
    if t1 is not None: a(f"ds_read_b128 {vr(V1[t1&1],4)}, v{vAV} offset:{rec(t1) + 1024}")
    a("s_mov_b64 exec, -1")
    return a.lastlg()
wtok, htok, rtok, box = {}, {}, {}, {}
m0own = [None]; wstart = set()
def w_off(u): return sR[u & 3] if u < 14 else sWOF
def w_load_a(u):
    a(f"s_add_u32 m0, s{sRING}, {(u & 3) * 2048}"); m0own[0] = ('w', u); wstart.add(u)
    assert u == 0 or (u - 1) in wtok
    if 0 < u < 14: a(f"s_sub_u32 s{sR[u&3]}, s{sR[(u-1)&3]}, 16384\ns_cselect_b32 s{sR[u&3]}, {13*16384}, s{sR[u&3]}")
    elif u == 14: a(f"s_lshl_b32 s{sWOF}, s{sU}, 14")
    elif u > 14: a(f"s_add_u32 s{sWOF}, s{sWOF}, 16384\ns_and_b32 s{sWOF}, s{sWOF}, 0xffff")
    a(f"buffer_load_dwordx4 v{vDS}, {srd(SWD if u < 14 else SWO)}, s{w_off(u)} offen lds")
def w_load_b(u):
    if m0own[0] != ('w', u):
        a(f"s_add_u32 m0, s{sRING}, {(u & 3) * 2048}"); m0own[0] = ('w', u)
    wtok[u] = a(f"buffer_load_dwordx4 v{vDS1}, {srd(SWD if u < 14 else SWO)}, s{w_off(u)} offen offset:1024 lds")
def h_load_a(u):
    assert u in wstart and (u + 4) not in wstart
    a(f"buffer_load_dwordx4 {vr(HF[u&3],4)}, v{vH0}, {srd(SWS)}, s{sR[u&3]} offen sc1")
def h_load_b(u):
    assert (u + 4) not in wstart
    htok[u] = a(f"buffer_load_dwordx4 {vr(HF[u&3]+4,4)}, v{vH1}, {srd(SWS)}, s{sR[u&3]} offen sc1")
def w_read(u, b):
    if b == 0: a.wait(wtok[u], htok[u])
    for e in range(2):
        rtok[u, b] = a(f"ds_read_b64_tr_b16 {vr(WF[u&1] + 4*b + 2*e, 2)}, v{(vDR0, vDR1)[b]} offset:{(u & 3) * 2048 + e*512}")
def d_mfma(u, k):
    tb, b = k >> 1, k & 1
    a.wait(rtok[u, 1])
    d = vr(DACC + 32 * tb + 16 * b, 16)
    a(f"v_mfma_f32_32x32x16_bf16 {d}, {vr(WF[u&1]+4*b,4)}, {vr(HF[u&3]+4*tb,4)}, {'0' if u == 0 else d}")

if OPT.get('x_now'):
    def w_load_a(u): pass
    def w_load_b(u): wtok[u] = None
if OPT.get('x_noh'):
    def h_load_a(u): pass
    def h_load_b(u): htok[u] = None
if OPT.get('x_noread'):
    def w_read(u, b): rtok[u, b] = None
ev, mf = {}, {}
SNAP = OPT.get('snap', 1)
B1P = 32 * (B1 - 1) + 11
EV, EVA, EK, EKA = OPT.get('ev', 5), OPT.get('eva', 0), OPT.get('ek', 11), OPT.get('eka', 0)
busy = {32 * t + o for t in range(NT) for o in (EV, EK, 18)}
def nextpos(p):
    while SNAP and (p & 15) not in (2, 5, 8, 11, 14): p += 1
    return p
def at(pos, f, limit=None):
    p = nextpos(pos)
    while SNAP and limit is not None and p in busy and nextpos(p + 1) <= limit: p = nextpos(p + 1)
    busy.add(p)
    ev.setdefault(p, []).append(f)
    return p
def h_store(b): box['h'] = a((f"s_add_u32 s{sHO}, s{sHO}, 16384\n" if b else "") + f"buffer_store_dwordx4 {vr(ACC[1]+16*b,4)}, v{vST}, {srd(SWS)}, s{sHO} offen sc1")
def late_store(k):
    a(f"""
    s_cmp_eq_u32 s{sU}, 0
    s_cbranch_scc1 L_nols{k}
    s_add_u32 s{sT[2]}, s{sH1}, {16384*k}
    buffer_store_dwordx4 {vr(ACC[0]+16*k,4)}, v{vST}, {srd(SWS)}, s{sT[2]} offen sc1
    L_nols{k}:
    """)
    a.vm -= 1
pp = OPT.get('p_st', 1); STS = OPT.get('p_sts', 1)
box.update(hbox)
for k in range(OPT['nearly'] + (HST > 0), 2):
    pp = at(pp, lambda k=k: late_store(k), pp + 12) + STS
if HST < 2: pp = at(pp, lambda: h_store(0), pp + 12) + STS
if HST < 3: pp = at(pp, lambda: h_store(1), pp + 12)
assert pp < B1P
def kv_emit(m, i):
    if i == 0: m0own[0] = ('kv', m)
    if m0own[0] != ('kv', m):
        a(f"s_add_u32 m0, s{sKVM}, {(4 * m % NSLOT) * 2048}"); m0own[0] = ('kv', m)
    kvtok[m] = a(kv_step(m)[i])
for m in range(KV_FIRST, 8):
    p = OPT['p_kv'] + OPT['p_kvs'] * (m - KV_FIRST) if m < 6 else OPT['p_kv2'] + 20 * (m - 6)
    p = at(p, lambda m=m: kv_emit(m, 0), p + 8)
    at(p + 1, lambda m=m: kv_emit(m, 1), p + 9)
assert OPT['p_kv2'] > B1P
def h_flag():
    a(f"s_mov_b64 exec, 1\nbuffer_store_dword v{vONE}, v{vZ}, {srd(SWS)}, s{sF2W} offen sc1\ns_mov_b64 exec, -1")
at(B1P + 1, h_flag)
def f2_load():
    box['f2'] = a(f"s_mov_b64 exec, 15\nbuffer_load_dwordx4 {vr(F2D,4)}, v{vF2}, {srd(SWS)}, s{sF2R} offen sc1")
    a("s_mov_b64 exec, -1")
at(OPT['p_f2'], f2_load, OPT['p_f2'] + 8)
def f2_check():
    a.wait(box['f2'])
    test = f"v_min3_u32 v{F2D}, v{F2D}, v{F2D+1}, v{F2D+2}\nv_min_u32 v{F2D}, v{F2D}, v{F2D+3}\nv_cmp_ne_u32 vcc, 1, v{F2D}"
    a(f"s_mov_b64 exec, 15\n{test}\ns_cbranch_vccnz L_s2retry\nL_s2done:\ns_mov_b64 exec, -1")
    cold.append(f"""
    L_s2retry:
    s_mov_b32 s{sT[1]}, 0
    L_s2poll:
    buffer_load_dwordx4 {vr(F2D,4)}, v{vF2}, {srd(SWS)}, s{sF2R} offen sc1
    s_add_u32 s{sT[1]}, s{sT[1]}, 1
    s_waitcnt vmcnt(0)
    {test}
    s_cbranch_vccz L_s2done
    {'s_sleep ' + str(OPT['slp']) if OPT.get('slp') else ''}
    s_cmp_lt_u32 s{sT[1]}, {SPIN}
    s_cbranch_scc1 L_s2poll
    s_branch L_s2done
    """)
    a(f"buffer_load_dword v{vG}, v{vG}, {srd(SWS)}, s{sGA} offen sc1")
    stamp(9)
PCHK = at(OPT['p_chk'], f2_check, OPT['p_chk'] + 8)
D0, DE = OPT['d0'], OPT['dend']
allsl = [32 * t + o for t in range(D0, DE) for o in (8, 14, 24, 30)]
assert len(allsl) >= 56
slots = [allsl[(i * len(allsl)) // 56] for i in range(56)]
for u in range(14):
    rp = slots[0] - 16 if u == 0 else slots[4 * u - 2] + 1
    lim = slots[4 * u] - 9
    p = at(rp, lambda u=u: w_read(u, 0), lim - 3); at(p + 1, lambda u=u: w_read(u, 1), lim)
    for k in range(4): mf[slots[4 * u + k]] = (lambda u=u, k=k: d_mfma(u, k))
for u in range(18):
    pw = OPT['p_fill'] + OPT['p_fills'] * u if u < 4 else slots[4 * (u - 4)] + 1
    p = at(pw, lambda u=u: w_load_a(u), pw + 8); p = at(p + 1, lambda u=u: w_load_b(u), p + 8)
    if u < 3:
        ph = PCHK + 1 + OPT.get('p_hs', 13) * u
        p = at(ph, lambda u=u: h_load_a(u), ph + 4); at(p + 1, lambda u=u: h_load_b(u), p + 5)
    if 4 <= u < 15:
        p = at(p + 1, lambda u=u: h_load_a(u - 1), p + 8); at(p + 1, lambda u=u: h_load_b(u - 1), p + 8)
for lo, hi, fr in ((0, B1P, (OPT.get('la1', 30), OPT.get('la2', 70), OPT.get('la3', 94))), (B1P, 32 * B2, (OPT.get('lb1', 35), OPT.get('lb2', 80), OPT.get('lb3', 96))),
                   (32 * B2, 32 * NT, (OPT.get('lc1', 60), OPT.get('lc2', 87), OPT.get('lc3', 96)))):
    for k in range(3): at(lo + ((hi - lo) * fr[k]) // 100, lambda k=k: a(f"s_setprio {2-k}"))

if OPT['grp'] == 6:
    for k, p in enumerate((240, 300, 380, 436, 466, 490, 520, 560, 600, 650, 700)): at(p, lambda k=k: stamp(k, 6))
at(32 * NT - 2, lambda: a("\n".join([f"ds_write_b32 v{vM[2]}, v{OA+1} offset:2048"] + [f"ds_write2st64_b32 v{vM[2]}, v{OA+4*j}, v{OA+4*j+2} offset0:{2*j} offset1:{2*j+1}" for j in range(4)])))

a("; ---- attention: S = K Q^T + 4 (scale and log2 e folded into K), P = 2^S in place, O += V^T P with the high halves of the fp32 P")
a("s_setprio 3")
tK = rdK(0); tV = rdV(None, 0)
for k in range(4 - OPT['eb0'], 4): gelu_chunk(k)
if OPT['eb0']: stamp(5); stamp(10, 3)
a.wait(tK)
a(qk(SA, QA))
if OPT['eb0']:
    for x in to_frag(ACC[1] + 16): a(x)
for t in range(NT):
    if t == B2:
        a.wait(kvtok[7]); a("s_barrier\ns_setprio 3"); stamp(0)
        if OPT.get('x_idle'): a(f"s_sleep {OPT['x_idle']}")
    nx = t + 1 if t + 1 < NT else None
    for ph, (S, So, O, Oo, Qo) in enumerate(((SA, SB, OA, OB, QB), (SB, SA, OB, OA, QA))):
        for e in range(16):
            pos = 32 * t + 16 * ph + e
            def own(after):
                global tV, tK
                if ph == 0 and (e, after) == (EV, EVA):
                    if t == 0: a.wait(tV)
                    tV = rdV(t, nx if t != B1 - 1 else None)
                if ph == 0 and (e, after) == (EK, EKA) and nx and t != B1 - 1: tK = rdK(nx)
            for f in ev.pop(pos, []): f()
            own(0)
            if pos == B1P:
                a.wait(kvtok[5], box['h'], tV); a("s_barrier\ns_setprio 3"); stamp(6)
                tK = rdK(nx); tV = rdV(None, nx)
            if e == 2:
                if ph == 1: a.wait(tV, None if OPT.get('w2') else tK)
                if t > 0 or ph == 1: a(pv(Oo, V2, So + 8))
            if (e == 5 and not (t == 0 and ph == 0)) or (t == 0 and ph == 0 and e == 0):
                if ph == 1: a.wait(tK)
                if ph == 0 or nx: a(qk(So, Qo))
            if e == 11: a(pv(O, V1[t & 1], S))
            if pos in mf: mf.pop(pos)()
            own(1)
            a(f"v_exp_f32 v{S+e}, v{S+e}")
            if OPT.get('x_mov2') and t >= 28: a("v_max_u32 v23, v17, v17")
            if OPT.get('x_mov') and e in (3, 9) : a("v_max_u32 v23, v17, v17")
assert not mf
assert not ev, sorted(ev)
if OPT['woe']: a.wait(wtok[17])
a(pv(OB, V2, SB + 8))
a.wait_lg0()
stamp(7); stamp(0, 4)
a("s_barrier")
stamp(1, 4)
a(f"""
ds_read_b32 v{SA+8}, v{vM[3]} offset:2048
ds_read2st64_b32 {vr(SA,2)}, v{vM[3]} offset0:0 offset1:1
ds_read2st64_b32 {vr(SA+2,2)}, v{vM[3]} offset0:2 offset1:3
ds_read2st64_b32 {vr(SA+4,2)}, v{vM[3]} offset0:4 offset1:5
ds_read2st64_b32 {vr(SA+6,2)}, v{vM[3]} offset0:6 offset1:7
s_add_u32 s{sOO}, s{sOO}, {WS_O}
s_mov_b32 s{sT[6]}, {fbits(2.0**-60):#x}
s_mov_b32 s{sT[7]}, {fbits(2.0**60) - fbits(2.0**-60):#x}
s_lshl_b32 s{sT[3]}, s{sW}, 13
s_xor_b32 s{sT[2]}, s{sT[3]}, 0x8000
v_add_u32 v24, s{sT[2]}, v{vL16}
v_add_u32 v26, s{sT[3]}, v{vL16}
s_waitcnt lgkmcnt(4)
v_add_f32 v{SA+8}, v{OB+1}, v{SA+8}
v_rcp_f32 v{t0}, v{SA+8}
s_waitcnt lgkmcnt(2)
""")
a("; ---- the exponentials were taken with a fixed shift; that is exact only while the row sum is far inside the fp32 range and nothing")
OS = 128
for i in range(4): a(f"v_add_f32 v{SA+i}, v{OB+2*i}, v{SA+i}")
a(f"v_mul_f32 v{t0}, v{t0}, v{vG}")
a.wait_lg0()
for i in range(4, 8): a(f"v_add_f32 v{SA+i}, v{OB+2*i}, v{SA+i}")
for j in range(4): a(f"v_pk_mul_f32 {vr(SA+2*j,2)}, {vr(SA+2*j,2)}, {vr(t0,2)} op_sel_hi:[1,0]")
a(f"""
v_pk_add_f32 {vr(t2,2)}, {vr(SA,2)}, {vr(SA+2,2)}
v_pk_add_f32 {vr(t0,2)}, {vr(SA+4,2)}, {vr(SA+6,2)}
v_cvt_pk_bf16_f32 v{OS}, v{SA}, v{SA+1}
v_pk_add_f32 {vr(t2,2)}, {vr(t2,2)}, {vr(t0,2)}
v_cvt_pk_bf16_f32 v{OS+1}, v{SA+2}, v{SA+3}
v_add_f32 v{t2}, v{t2}, v{t3}
v_cvt_pk_bf16_f32 v{OS+2}, v{SA+4}, v{SA+5}
v_fma_f32 v{t2}, v{t2}, 0, v{SA+8}
v_cvt_pk_bf16_f32 v{OS+3}, v{SA+6}, v{SA+7}
v_subrev_u32 v{t2}, s{sT[6]}, v{t2}
v_or_b32 v{OS}, 1, v{OS}
v_cmp_lt_u32 vcc, s{sT[7]}, v{t2}
""")
if OPT['force_fb']: a("s_mov_b64 vcc, -1")
a(f"""
s_cbranch_vccnz L_true_max
L_norm:
buffer_store_dwordx4 {vr(OS,4)}, v{vL16}, {srd(SWS)}, s{sOO} offen sc1
""")
stamp(8); stamp(2, 4)

OF, WOF, XT = 32, 176, 96
vO1 = 27
fill = f"""
s_and_b32 s{sT[1]}, s{sW}, 3
s_lshl_b32 s{sT[2]}, s{sT[1]}, 13
s_add_u32 s{sT[2]}, s{sT[2]}, {RING}
v_add_u32 v28, s{sT[2]}, v{vTRP}
v_xor_b32 v29, 64, v28
v_sub_f32 v{vG}, 1.0, v{vG}
v_add_u32 v{vO1}, 0x4000, v{vL16}
s_lshr_b32 s{sT[9]}, s{sW}, 2
s_lshl1_add_u32 s{sT[0]}, s{sI}, s{sT[9]}
s_lshl3_add_u32 s{sT[0]}, s{sT[0]}, s{sT[1]}
s_lshl_b32 s{sT[0]}, s{sT[0]}, 12
s_add_u32 s{sT[0]}, s{sT[0]}, {WS_O}
s_lshl4_add_u32 s{sT[8]}, s{sT[9]}, s{sT[1]}
s_lshl_b32 s{sT[8]}, s{sT[8]}, 11
""".strip().split('\n')
for v in range(4):
    fill += f"s_add_u32 s{sT[1]}, s{sU}, {v}\ns_and_b32 s{sT[1]}, s{sT[1]}, 3\ns_lshl_b32 s{sT[1]}, s{sT[1]}, 10\ns_add_u32 s{sT[4+v]}, s{sT[0]}, s{sT[1]}".split('\n')
fill += f"""
v_and_b32 v{t0}, 31, v{L}
v_lshrrev_b32 v{t1}, 5, v{L}
v_and_b32 v{t2}, 7, v{L}
v_xor_b32 v{t1}, v{t1}, v{t2}
v_lshlrev_b32 v{t1}, 4, v{t1}
v_lshl_add_u32 v{t0}, v{t0}, 8, v{t1}
v_add_u32 v9, s{sT[3]}, v{t0}
v_xor_b32 v10, 32, v9
v_xor_b32 v11, 64, v9
v_xor_b32 v12, 0x60, v9
v_lshrrev_b32 v{t0}, 3, v{L}
v_lshlrev_b32 v{t1}, 1, v{t2}
v_xor_b32 v{t1}, v{t1}, v{t0}
v_lshlrev_b32 v{t1}, 4, v{t1}
v_lshl_add_u32 v{t1}, v{t0}, 8, v{t1}
v_add_u32 v1, s{sT[8]}, v{t1}
v_xor_b32 v2, 16, v1
s_lshl3_add_u32 s{sT[3]}, s{sI}, s{sW}
s_lshl_b32 s{sT[3]}, s{sT[3]}, 6
s_add_u32 s{sT[3]}, s{sT[3]}, s{sJ}
s_lshl_b32 s{sT[3]}, s{sT[3]}, 7
v_lshlrev_b32 v{t2}, 4, v{t2}
v_lshl_add_u32 v5, v{t0}, 10, v{t2}
s_mov_b32 s{sT[2]}, 0
""".strip().split('\n')
def wo_read(v):
    slot = ((14 + v) & 3) * 2048 + (v >> 2) * 32768
    for b in range(2):
        for e in range(2):
            a(f"ds_read_b64_tr_b16 {vr(WOF + 8*v + 4*b + 2*e, 2)}, v{28 + b} offset:{slot + e*512}")
for j in range(8):
    xw = a(f"ds_write_b128 v24, {vr(DACC+32+4*j,4)} offset:{1024*j}")
    for x in fill[len(fill) * j // 8: len(fill) * (j + 1) // 8]: a(x)
    if OPT['woe'] == 1: wo_read(j)
if OPT['woe'] == 2:
    for j in range(8): wo_read(j)
def o_loads():
    for v in range(8):
        a(f"buffer_load_dwordx4 {vr(OF + 4*v, 4)}, v{vO1 if v >> 2 else vL16}, {srd(SWS)}, s{sT[4 + (v&3)]} offen sc1")
stamp(3, 4)
a.wait(wtok[17], xw)
a(f"s_cmp_ge_u32 s{sW}, 4")
if not OPT['oe']: a("s_barrier"); stamp(4, 4)
if OPT.get('x_id2'): a(f"s_sleep {OPT['x_id2']}")
a("s_setprio 1\ns_cbranch_scc1 L_ol1\ns_setprio 0")
o_loads()
a("L_ol1:")
if OPT['oe']: a("s_barrier"); stamp(4, 4)
xt = [a(f"ds_read_b128 {vr(XT+4*j,4)}, v26 offset:{1024*j}") for j in range(8)]
for j in range(8):
    a.wait(xt[j])
    for i in range(2):
        r = 4 * j + 2 * i
        a(f"v_pk_add_f32 {vr(DACC+r,2)}, {vr(DACC+r,2)}, {vr(XT+r,2)}")
    for i in range(2):
        r = 4 * j + 2 * i
        a(f"v_pk_mul_f32 {vr(DACC+r,2)}, {vr(DACC+r,2)}, {vr(vG,2)} op_sel_hi:[1,0]")
stamp(5, 4)
a("s_setprio 0\ns_cbranch_scc0 L_ol2")
o_loads()
a("L_ol2:")
if not OPT['woe']:
    for j in range(8): wo_read(j)
stamp(6, 4)
a.wait_lg0()
ND = XT
a("L_s3poll:")
def wo_mfma(v, b): a(f"v_mfma_f32_32x32x16_bf16 {vr(ND+16*b,16)}, {vr(WOF+8*v+4*b,4)}, {vr(OF+4*v,4)}, {vr((DACC if v == 0 else ND)+16*b,16)}")
def chk(v): a(f"v_and_b32 v{t0}, {1 if v == 0 else 'v' + str(t0)}, v{OF+4*v}")
def xsite():
    a(f"s_cmp_eq_u32 s{sT[9]}, 0\ns_cbranch_scc1 L_nox\ns_mov_b32 s{sT[9]}, 0\ns_barrier\nL_nox:")
for v in range(6):
    a(f"s_waitcnt vmcnt({7-v})")
    if v == 0: stamp(10); stamp(7, 4)
    wo_mfma(v, 0); chk(v); wo_mfma(v, 1)
    if v == OPT['xsite']: xsite()
a("s_waitcnt vmcnt(1)"); wo_mfma(6, 0); chk(6)
a("s_waitcnt vmcnt(0)"); wo_mfma(7, 0); chk(7)
a.vm_done = a.vm
wo_mfma(6, 1)
if OPT['xsite'] == 6: xsite()
a(f"v_cmp_eq_u32 vcc, 0, v{t0}")
wo_mfma(7, 1)
if OPT['xsite'] == 7: xsite()
a("s_cbranch_vccnz L_s3retry\nL_s3done:")
stamp(8, 4)
for b in range(2):
    if OPT['xsite'] >= 6: a("s_nop 2" if b == 0 else "s_nop 3")
    for qd in range(4): a(f"ds_write_b128 v{9+qd}, {vr(ND + 16*b + 4*qd, 4)} offset:{b*128}")
a(f"s_cmp_ge_u32 s{sW}, 4")
a.wait_lg0()
a("s_barrier")
stamp(9, 4)
RD = 176
rt = []
for p in range(4):
    for e in range(2):
        rt.append(a(f"ds_read_b128 {vr(RD + 8*p + 4*e, 4)}, v{1 + e} offset:{p*8192}"))
for p in range(1, 4):
    a.wait(rt[2 * p + 1])
    for j in range(4):
        if OPT.get('fpk', 1): a(f"v_pk_add_f32 {vr(RD+2*j,2)}, {vr(RD+2*j,2)}, {vr(RD+8*p+2*j,2)}")
        else: a(f"v_add_f32 v{RD+2*j}, v{RD+2*j}, v{RD+8*p+2*j}\nv_add_f32 v{RD+2*j+1}, v{RD+2*j+1}, v{RD+8*p+2*j+1}")
for j in range(4): a(f"v_cvt_pk_bf16_f32 v{RD+j}, v{RD+2*j}, v{RD+2*j+1}")
a(f"buffer_store_dwordx4 {vr(RD,4)}, v5, {srd(SOUT)}, s{sT[3]} offen {['', 'sc1'][OPT['outm']]}")
a("s_cbranch_scc1 L_noy\ns_barrier\nL_noy:")
stamp(10, 4)
if OPT['stamp']:
    a("s_waitcnt vmcnt(0)")
    stamp(11)
    a("s_waitcnt lgkmcnt(0)")
    a(f"s_mov_b32 s28, s{sT[2]}")
    if 'span' in OPT:
        a(f"""
        s_lshl3_add_u32 s{sT[0]}, s2, s{sW}
        s_lshl_b32 s{sT[0]}, s{sT[0]}, 3
        s_add_u32 s{sT[0]}, s{sT[0]}, {WS_STAMP}
        v_mov_b32 v1, 0
        v_mov_b32 v2, s{4+2*OPT['span']}
        v_mov_b32 v3, s30
        s_mov_b64 exec, 1
        buffer_store_dwordx2 v[2:3], v1, {srd(SWS)}, s{sT[0]} offen sc1
        s_mov_b64 exec, -1
        s_add_u32 s{sT[0]}, s2, s{sW}
        s_cmp_lg_u32 s{sT[0]}, 0
        s_cbranch_scc1 L_end
        L_pad0:
        s_memrealtime s[{sT[2]}:{sT[3]}]
        s_waitcnt lgkmcnt(0)
        s_sub_u32 s{sT[2]}, s{sT[2]}, s30
        s_cmp_lt_u32 s{sT[2]}, 4500
        s_cbranch_scc1 L_pad0
        v_mov_b32 v4, 0
        v_mov_b32 v5, -1
        s_sub_u32 s{sT[1]}, s30, 1000
        """)
        for g in range(16):
            a(f"""
            s_mov_b32 s{sT[0]}, {WS_STAMP + 1024*g}
            buffer_load_dwordx4 v[8:11], v{vL16}, {srd(SWS)}, s{sT[0]} offen sc1
            s_waitcnt vmcnt(0)
            v_subrev_u32 v8, s{sT[1]}, v8
            v_subrev_u32 v9, s{sT[1]}, v9
            v_subrev_u32 v10, s{sT[1]}, v10
            v_subrev_u32 v11, s{sT[1]}, v11
            v_max3_u32 v4, v4, v8, v10
            v_min3_u32 v5, v5, v9, v11
            """)
        a(f"s_mov_b32 s{sT[4]}, 0\ns_mov_b32 s{sT[5]}, -1")
        for i in range(64): a(f"v_readlane_b32 s{sT[6]}, v4, {i}\nv_readlane_b32 s{sT[7]}, v5, {i}\ns_nop 0\ns_max_u32 s{sT[4]}, s{sT[4]}, s{sT[6]}\ns_min_u32 s{sT[5]}, s{sT[5]}, s{sT[7]}")
        a(f"""
        s_sub_u32 s{sT[0]}, s{sT[4]}, s{sT[5]}
        s_sub_u32 s{sT[0]}, s{sT[0]}, {OPT.get('spanb', 2000)}
        s_min_u32 s{sT[0]}, s{sT[0]}, 2500
        s_mul_i32 s{sT[0]}, s{sT[0]}, 10
        s_add_u32 s{sT[0]}, s{sT[0]}, 6000
        L_pad:
        s_memrealtime s[{sT[2]}:{sT[3]}]
        s_waitcnt lgkmcnt(0)
        s_sub_u32 s{sT[2]}, s{sT[2]}, s30
        s_cmp_lt_u32 s{sT[2]}, s{sT[0]}
        s_cbranch_scc1 L_pad
        """)
    elif 'crit' in OPT:
        a(f"""
        s_cmp_lg_u32 s{sW}, 7
        s_cbranch_scc1 L_end
        s_lshl_b32 s{sT[0]}, s2, 6
        s_add_u32 s{sT[0]}, s{sT[0]}, {WS_STAMP}
        v_mov_b32 v1, 0
        """)
        for k in range(14): a(f"v_mov_b32 v2, s{4+2*k}\nbuffer_store_dword v2, v1, {srd(SWS)}, s{sT[0]} offen offset:{4*k} sc1")
        a(f"""
        s_cmp_lg_u32 s2, 0
        s_cbranch_scc1 L_end
        L_pad0:
        s_memrealtime s[{sT[2]}:{sT[3]}]
        s_waitcnt lgkmcnt(0)
        s_sub_u32 s{sT[2]}, s{sT[2]}, s30
        s_cmp_lt_u32 s{sT[2]}, 5000
        s_cbranch_scc1 L_pad0
        v_lshlrev_b32 v1, 6, v{L}
        s_mov_b32 s{sT[4]}, 0
        s_mov_b32 s{sT[5]}, -1
        """)
        for g in range(4):
            a(f"""
            s_mov_b32 s{sT[0]}, {WS_STAMP + 4096*g}
            buffer_load_dword v2, v1, {srd(SWS)}, s{sT[0]} offen offset:{4*OPT['crit']} sc1
            buffer_load_dword v3, v1, {srd(SWS)}, s{sT[0]} offen offset:52 sc1
            s_waitcnt vmcnt(0)
            v_subrev_u32 v2, s30, v2
            v_add_u32 v2, 1000, v2
            v_lshlrev_b32 v2, 8, v2
            v_add_u32 v2, v2, v{L}
            v_add_u32 v2, {64*g}, v2
            v_subrev_u32 v3, s30, v3
            v_add_u32 v3, 1000, v3
            s_nop 1
            """)
            for i in range(64): a(f"v_readlane_b32 s{sT[6]}, v2, {i}\nv_readlane_b32 s{sT[7]}, v3, {i}\ns_nop 0\ns_max_u32 s{sT[4]}, s{sT[4]}, s{sT[6]}\ns_min_u32 s{sT[5]}, s{sT[5]}, s{sT[7]}")
        a(f"""
        s_and_b32 s{sT[4]}, s{sT[4]}, 255
        s_lshl_b32 s{sT[0]}, s{sT[4]}, 6
        s_add_u32 s{sT[0]}, s{sT[0]}, {WS_STAMP}
        v_lshlrev_b32 v1, 2, v{L}
        buffer_load_dword v2, v1, {srd(SWS)}, s{sT[0]} offen sc1
        s_add_u32 s{sT[5]}, s{sT[5]}, s30
        s_sub_u32 s{sT[5]}, s{sT[5]}, 1000
        s_waitcnt vmcnt(0)
        v_subrev_u32 v2, s{sT[5]}, v2
        s_nop 1
        v_writelane_b32 v2, s{sT[4]}, 14
        s_mov_b64 exec, 0x7fff
        buffer_store_dword v2, v1, {srd(SDBG)}, 0 offen offset:4
        """)
    elif 'dk' in OPT:
        a(f"""
        s_cmp_lg_u32 s{sW}, {OPT.get('dw', 7)}
        s_cbranch_scc1 L_end
        s_lshl_b32 s{sT[0]}, s2, 2
        s_add_u32 s{sT[0]}, s{sT[0]}, {WS_STAMP}
        v_mov_b32 v2, s{4+2*OPT['dk']}
        v_mov_b32 v1, 0
        buffer_store_dword v2, v1, {srd(SWS)}, s{sT[0]} offen sc1
        s_cmp_lg_u32 s2, 0
        s_cbranch_scc1 L_end
        L_pad0:
        s_memrealtime s[{sT[2]}:{sT[3]}]
        s_waitcnt lgkmcnt(0)
        s_sub_u32 s{sT[2]}, s{sT[2]}, s30
        s_cmp_lt_u32 s{sT[2]}, 5000
        s_cbranch_scc1 L_pad0
        v_mul_u32_u24 v1, {4*OPT['dstride']}, v{L}
        s_mov_b32 s{sT[0]}, {WS_STAMP + 4*OPT['dbase']}
        buffer_load_dword v2, v1, {srd(SWS)}, s{sT[0]} offen sc1
        s_waitcnt vmcnt(0)
        v_subrev_u32 v2, s30, v2
        v_add_u32 v2, 100000, v2
        s_mov_b32 s{sT[4]}, 0
        s_mov_b32 s{sT[5]}, -1
        """)
        for i in range(OPT['dn']): a(f"v_readlane_b32 s{sT[6]}, v2, {i}\ns_nop 1\ns_max_u32 s{sT[4]}, s{sT[4]}, s{sT[6]}\ns_min_u32 s{sT[5]}, s{sT[5]}, s{sT[6]}")
        a(f"""
        s_sub_u32 s{sT[0]}, s{sT[4]}, s{sT[5]}
        s_min_u32 s{sT[0]}, s{sT[0]}, 2000
        s_mul_i32 s{sT[0]}, s{sT[0]}, 10
        s_add_u32 s{sT[0]}, s{sT[0]}, 6000
        L_pad:
        s_memrealtime s[{sT[2]}:{sT[3]}]
        s_waitcnt lgkmcnt(0)
        s_sub_u32 s{sT[2]}, s{sT[2]}, s30
        s_cmp_lt_u32 s{sT[2]}, s{sT[0]}
        s_cbranch_scc1 L_pad
        """)
    elif 'pad' in OPT:
        K = OPT['pad']
        a(f"s_and_b32 s{sT[0]}, s2, {OPT.get('padm', 0)}\ns_cmp_lg_u32 s{sT[0]}, {OPT.get('padv', 0)}\ns_cbranch_scc1 L_end")
        if K >= 0: a(f"s_sub_u32 s{sT[0]}, s{4+2*K}, s{4+2*OPT.get('padb', 13)}\ns_mul_i32 s{sT[0]}, s{sT[0]}, {OPT.get('padx', 4)}")
        elif K == -2: a(f"s_getreg_b32 s{sT[0]}, hwreg(HW_REG_XCC_ID)\ns_and_b32 s{sT[0]}, s{sT[0]}, 15\ns_mul_i32 s{sT[0]}, s{sT[0]}, 1000")
        else: a(f"s_mov_b32 s{sT[0]}, 0")
        a(f"""
        s_add_u32 s{sT[0]}, s{sT[0]}, 6000
        L_pad:
        s_memrealtime s[{sT[2]}:{sT[3]}]
        s_waitcnt lgkmcnt(0)
        s_sub_u32 s{sT[2]}, s{sT[2]}, s30
        s_cmp_lt_u32 s{sT[2]}, s{sT[0]}
        s_cbranch_scc1 L_pad
        """)
    else:
        a(f"s_lshl3_add_u32 s{sT[0]}, s2, s{sW}\ns_lshl_b32 s{sT[0]}, s{sT[0]}, 6\ns_add_u32 s{sT[0]}, s{sT[0]}, {WS_STAMP}")
        a("v_mov_b32 v1, 0\ns_mov_b64 exec, 1")
        for k in range(14):
            a(f"v_mov_b32 v2, s{4+2*k}\nbuffer_store_dword v2, v1, {srd(SWS)}, s{sT[0]} offen offset:{4*k}")
a("L_end:\ns_endpgm")
a("L_s3retry:")
o_loads()
a(f"""
s_add_u32 s{sT[2]}, s{sT[2]}, 1
s_cmp_lt_u32 s{sT[2]}, {SPIN}
s_nop 7
s_cbranch_scc1 L_s3poll
s_waitcnt vmcnt(0)
s_branch L_s3done
""")

for P in 'KVPSC':
    a("; ---- projection phase, " + {'K': 'query workgroups, waves 0-3: also k', 'V': 'query workgroups, waves 0-3: also v', 'P': 'query workgroups, waves 4-7',
                                      'S': 'gate/up waves that also form the mixing gate', 'C': 'gate/up wave that also clears the ready words'}[P])
    a(f".p2align 12\n.fill {OPT['o' + P] // 4}, 4, 0xbf800000\nL_path{P}:" if OPT['pal'] else f".p2align 6\nL_path{P}:")
    a.forget()
    proj_path(P)
    a("s_branch L_join")
for x in cold: a(x)

CM = SB
a(f"""
L_true_max:
s_waitcnt vmcnt(0) lgkmcnt(0)
v_mov_b32 v{t0}, 0xff800000
s_mov_b32 s{sT[0]}, {WS_KV}
L_tm1:
buffer_load_dwordx4 {vr(KF,4)}, v{vL16}, {srd(SWS)}, s{sT[0]} offen sc1
s_waitcnt vmcnt(0)
{qk(SA, QB, 0)}
""")
for j in range(8): a(f"v_max3_f32 v{t0}, v{t0}, v{SA+2*j}, v{SA+2*j+1}")
a(f"""
s_add_u32 s{sT[0]}, s{sT[0]}, 2048
s_cmp_lt_u32 s{sT[0]}, {WS_KV + 64*2048}
s_cbranch_scc1 L_tm1
v_mov_b32 v{t1}, v{t0}
v_permlane32_swap_b32 v{t0}, v{t1}
v_max_f32 v{t0}, v{t0}, v{t1}
""")
for r in range(16): a(f"v_sub_f32 v{CM+r}, 0, v{t0}\nv_mov_b32 v{OB+r}, 0")
a(f"""
s_mov_b32 s{sT[0]}, {WS_KV}
L_tm2:
buffer_load_dwordx4 {vr(KF,4)}, v{vL16}, {srd(SWS)}, s{sT[0]} offen sc1
s_mov_b64 exec, s[{sT[8]}:{sT[9]}]
buffer_load_dwordx4 {vr(V1[0],4)}, v{vPV}, {srd(SWS)}, s{sT[0]} offen offset:1024 sc1
buffer_load_dwordx4 {vr(V2,4)}, v{vPV}, {srd(SWS)}, s{sT[0]} offen offset:1536 sc1
s_mov_b64 exec, -1
s_waitcnt vmcnt(0)
v_mfma_f32_32x32x16_bf16 {vr(SA,16)}, {vr(KF,4)}, {vr(QB,4)}, {vr(CM,16)}
""")
for e in range(16): a(f"v_exp_f32 v{SA+e}, v{SA+e}")
a(pv(OB, V1[0], SA)); a(pv(OB, V2, SA + 8))
a(f"""
s_add_u32 s{sT[0]}, s{sT[0]}, 2048
s_cmp_lt_u32 s{sT[0]}, {WS_KV + 64*2048}
s_nop 7
s_cbranch_scc1 L_tm2
s_nop 7
v_rcp_f32 v{t0}, v{OB+1}
s_nop 0
v_mul_f32 v{t0}, v{t0}, v{vG}
""")
for i in range(8): a(f"v_mul_f32 v{OB+2*i}, v{OB+2*i}, v{t0}")
for j in range(4): a(f"v_cvt_pk_bf16_f32 v{OS+j}, v{OB+4*j}, v{OB+4*j+2}")
a(f"v_or_b32 v{OS}, 1, v{OS}")
a("s_branch L_norm\nL_last:")

bad = a.check_branches()
assert not bad, bad

hdr = open(f'cdna_kernels/{NAME}.s.ref').read().split('\n')
head = [l for l in hdr if l.startswith(';') and '@launch' not in l]
body = a.text()
if OPT.get('em16'):
    import re
    L_ = body.split('\n'); o = []; k = 0; cnt = 0
    i0 = [i for i, l in enumerate(L_) if l.startswith('; ---- attention')][0]; i1 = [i for i, l in enumerate(L_) if l.startswith('L_end:')][0]
    itail = [i for i, l in enumerate(L_) if l.startswith('L_s3poll')][0]
    while k < len(L_):
        l = L_[k]
        m = re.match(r'\s*v_mfma_f32_32x32x16_bf16 v\[(64|80|96|112):\d+\], v\[(\d+):\d+\], v\[(\d+):\d+\], v', l)
        if m and i0 < k < i1 and ((k < itail and OPT['em16'] & 3) or (k > itail and OPT['em16'] & 4)):
            d, A, B = int(m.group(1)), int(m.group(2)), int(m.group(3)); cnt += 1
            d1 = d + 4 * ((cnt >> 2) & 3); d2 = d1 if (OPT['em16'] & 1 or k > itail) else d + 4 * (((cnt >> 2) + 1) & 3)
            if k > itail: d1 = d2 = 96 + 4 * ((cnt >> 1) & 7)
            o.append(f"    v_mfma_f32_16x16x32_bf16 {vr(d1,4)}, {vr(A,4)}, {vr(B,4)}, {vr(d1,4)}")
            if k < itail: k += 1; o.append(L_[k])
            o.append(f"    v_mfma_f32_16x16x32_bf16 {vr(d2,4)}, {vr(A ^ 4,4)}, {vr(B ^ (4 if k < itail else 0),4)}, {vr(d2,4)}")
        else: o.append(l)
        k += 1
    body = '\n'.join(o)
if OPT.get('emp'):
    import re
    L_ = body.split('\n'); o = []; pend = []
    i0 = [i for i, l in enumerate(L_) if l.startswith('; ---- attention')][0]; i1 = [i for i, l in enumerate(L_) if l.startswith('; ---- the exponentials')][0]
    for k, l in enumerate(L_):
        if i0 < k < i1:
            m = re.match(r'\s*v_smfmac_f32_32x32x32_bf16 v\[(\d+):\d+\], (v\[\d+:\d+\]), (v\[(\d+):\d+\]), (v\d+)', l)
            if m:
                d = int(m.group(1)) + (4 if int(m.group(4)) & 8 else 0)
                o.append(f"    v_smfmac_f32_16x16x64_bf16 {vr(d,4)}, {m.group(2)}, {m.group(3)}, {m.group(5)}")
                if OPT['emp'] == 2: pend.append(f"    v_smfmac_f32_16x16x64_bf16 {vr(d+8,4)}, v[4:7], {m.group(3)}, {m.group(5)}")
                continue
            m = re.match(r'\s*v_mfma_f32_32x32x16_bf16 v\[(208|224):\d+\], v\[(\d+):\d+\], v\[(\d+):\d+\], 0', l)
            if m:
                d, A, B = int(m.group(1)), int(m.group(2)), int(m.group(3))
                q = [f"    v_mfma_f32_16x16x16_bf16 {vr(d+4*i,4)}, {vr(A+2*(i&1),2)}, {vr(B+2*(i>>1),2)}, 0" for i in range(4)]
                o.append(q[0]); pend += q[1:]
                continue
            if l.strip().startswith('s_mov_b64 exec, s['): l = '    s_nop 0'
            m = re.match(r'\s*v_exp_f32 v(\d+),', l)
            if m:
                o.append(l)
                if pend: o.append(pend.pop(0))
                if OPT['emp'] == 3: r = int(m.group(1)); r = r - 1 if r & 15 else r + 15; o.append(f"    v_add_f32 v{8 + (r & 3)}, v{8 + (r & 3)}, v{r}")
                continue
        o.append(l)
    body = '\n'.join(o).replace('s_cbranch_vccnz L_true_max', 's_nop 0')
    body = body.replace('; ---- attention: S', '    v_and_b32 v25, 0x1ff, v14\n; ---- attention: S')
    if OPT['emp'] == 2: body = body.replace('L_s2done:', 'L_s2done:\n    s_mov_b64 exec, -1\n    v_mov_b64 v[4:5], 0\n    v_mov_b64 v[6:7], 0')
if OPT.get('abl'):
    import re
    i0 = body.index('; ---- attention'); i1 = body.index('; ---- the exponentials were taken')
    pat = {1: r'v_mfma_f32_32x32x16_bf16 v\[(64|80|96|112):', 2: r'ds_read_b64_tr_b16', 3: r'buffer_load_dwordx4 v\[(32|36|40|44|48|52|56|60):', 4: r'buffer_load_dwordx4 v(0|158), s\[60:63',
           5: r'v_smfmac', 6: r'ds_read_b128'}[OPT['abl']]
    seg = body[i0:i1].split('\n'); n = 0
    for k, l in enumerate(seg):
        if re.match(r'\s*' + pat, l):
            n += 1
            if n > 8:
                if OPT['abl'] in (3, 4): seg[k] = re.sub(r'(s\[\d+:\d+\]), s\d+', r'\1, s54', l) if OPT['abl'] == 3 else re.sub(r'buffer_load_dwordx4 (v\d+), (s\[\d+:\d+\]), s\d+ offen.*', r'buffer_load_dword v23, \1, \2, s54 offen', l)
                elif OPT['abl'] in (2, 6): seg[k] = '    ds_nop'
                elif OPT['abl'] == 1: seg[k] = '    v_max_u32 v23, v17, v17\n    v_max_u32 v23, v17, v17'
                else: seg[k] = '    v_max_u32 v23, v17, v17\n    v_max_u32 v23, v17, v17\n    v_max_u32 v23, v17, v17'
    if OPT['abl'] == 3: seg = [re.sub(r'buffer_load_dwordx4 v\[\d+:\d+\], (v\d+), (s\[\d+:\d+\]), s54', r'buffer_load_dword v23, \1, \2, s54', l) for l in seg]
    body = body[:i0] + '\n'.join(seg) + body[i1:]
    body = body.replace('s_cbranch_vccnz L_true_max', 's_nop 0')
if OPT.get('jit'):
    import random
    rnd = random.Random(OPT['jit']); o = []; n = 0
    for l in body.split('\n'):
        t = l.strip()
        if (t.startswith(('buffer_store', 'ds_write_b128')) or (o and o[-1].strip() == 's_barrier')) and rnd.random() < 0.5:
            n += 1
            o += [f"    s_cselect_b32 s31, 1, 0", f"    s_add_u32 s30, s2, s{sMW}", f"    s_mul_i32 s30, s30, {rnd.randrange(1 << 20, 1 << 30) | 1}", f"    s_bitcmp1_b32 s30, 27",
                  f"    s_cbranch_scc0 L_jit{n}", f"    s_sleep {rnd.randrange(1, 40)}", f"L_jit{n}:", f"    s_cmp_lg_u32 s31, 0"]
        o.append(l)
    body = '\n'.join(o)
if OPT.get('stm'):
    import re
    body = re.sub(r'(buffer_store_dwordx4 .*s\[52:55\].*) sc1', lambda m: m.group(1) + [' sc1', ' sc1 nt', ' sc0 sc1', ' sc0 sc1 nt'][OPT['stm']], body)
out = "\n".join(head) + f"\n; @launch grid=(256,1,1) block=(512,1,1) lds={LDS_BYTES}\n"
out += f""".amdgcn_target "amdgcn-amd-amdhsa--gfx950"
.text
.globl {NAME}_kernel
.p2align 8
.type {NAME}_kernel,@function
{NAME}_kernel:
{body}
.section .rodata,"a"
.p2align 6
.amdhsa_kernel {NAME}_kernel
  .amdhsa_next_free_vgpr 256
  .amdhsa_next_free_sgpr 102
  .amdhsa_accum_offset 256
  .amdhsa_group_segment_fixed_size 0
  .amdhsa_kernarg_size 104
  .amdhsa_user_sgpr_count 2
  .amdhsa_user_sgpr_kernarg_segment_ptr 1
  .amdhsa_system_sgpr_workgroup_id_x 1
.end_amdhsa_kernel
"""
open(sys.argv[1], 'w').write(out)
print("instructions:", sum(1 for i in a.ins if i.ws), "auto nops:", a.nnop, file=sys.stderr)
```
